```python
import torch

def _softmax(x, axis=-1):
    return torch.softmax(x, dim=axis)
def _gelu(x):
    return torch.nn.functional.gelu(x, approximate="tanh")
def _silu(x):
    return torch.nn.functional.silu(x)
def _sigmoid(x):
    return torch.sigmoid(x)
def _layernorm(x, axis=-1, eps=1e-5):
    m = x.mean(dim=axis, keepdim=True)
    v = x.var(dim=axis, keepdim=True, unbiased=False)
    return (x - m) / torch.sqrt(v + eps)
def _scatter_add(tgt, idx, src, axis=0):
    return tgt.clone().index_add_(axis, idx, src)
def _segment_sum(src, seg, n):
    out = torch.zeros((n,) + src.shape[1:], dtype=src.dtype)
    return out.index_add_(0, seg, src)
def _pad(x, pw):
    flat = tuple(v for pair in reversed(pw) for v in pair)
    return torch.nn.functional.pad(x, flat)

kernel_name = 'parallel_sum__grouped_kv_mqa__dense_activation_squared_relu__prompt'

def setup_inputs():

    _w = (lambda a: (lambda t: t.to(torch.bfloat16) if t.is_floating_point() else t)(torch.as_tensor(a)))
    def _A_setup():
        B, S, D, H = 1, 2048, 640, 32
        Dh = D // H
        return {
            "x": _w((lambda *s: torch.randn(*s, dtype=torch.bfloat16) * 0.05)(B, S, D)),
            "wq": _w((lambda *s: torch.randn(*s, dtype=torch.bfloat16) * 0.2)(D, H * Dh)),
            "wk": _w((lambda *s: torch.randn(*s, dtype=torch.bfloat16) * 0.2)(D, Dh)),
            "wv": _w((lambda *s: torch.randn(*s, dtype=torch.bfloat16) * 0.1)(D, Dh)),
            "wo": _w((lambda *s: torch.randn(*s, dtype=torch.bfloat16) * 0.1)(H * Dh, D)),
        }
    _A_in = _A_setup()

    def _B_setup():
        B, S, D, F = 1, 2048, 640, 1536
        return {
            "x": _w((lambda *s: torch.randn(*s, dtype=torch.bfloat16) * 0.05)(B, S, D)),
            "w1": _w((lambda *s: torch.randn(*s, dtype=torch.bfloat16) * 0.1)(D, F)),
            "b1": _w((lambda *s: torch.randn(*s, dtype=torch.bfloat16) * 0.4)(F)),
            "w2": _w((lambda *s: torch.randn(*s, dtype=torch.bfloat16) * 0.1)(F, D)),
            "b2": _w((lambda *s: torch.randn(*s, dtype=torch.bfloat16) * 12.8)(D)),
        }
    _B_in = _B_setup()

    return {
        "A_x": _A_in["x"],
        "A_wq": _A_in["wq"],
        "A_wk": _A_in["wk"],
        "A_wv": _A_in["wv"],
        "A_wo": _A_in["wo"],
        "B_x": _B_in["x"],
        "B_w1": _B_in["w1"],
        "B_b1": _B_in["b1"],
        "B_w2": _B_in["w2"],
        "B_b2": _B_in["b2"],
    }

def reference(A_x, A_wq, A_wk, A_wv, A_wo, B_x, B_w1, B_b1, B_w2, B_b2):
    def _A_ref(x, wq, wk, wv, wo):
        B, S, D = x.shape
        H = 32
        Dh = D // H
        q = (lambda x, *d: x.permute(*d))((x @ wq).reshape(B, S, H, Dh), 0, 2, 1, 3)
        k = x @ wk
        v = x @ wv
        scores = torch.einsum("bhqd,bkd->bhqk", q, k) * (Dh ** -0.5)
        p = _softmax(scores, axis=-1)
        o = torch.einsum("bhqk,bkd->bhqd", p, v)
        return (lambda x, *d: x.permute(*d))(o, 0, 2, 1, 3).reshape(B, S, H * Dh) @ wo

    def _B_ref(x, w1, b1, w2, b2):
        h = torch.einsum("bsd,df->bsf", x, w1) + b1
        zero = torch.zeros_like(h)
        r = torch.where(h > zero, h, zero)
        h = r * r
        out = torch.einsum("bsf,fd->bsd", h, w2) + b2
        return out

    x = A_x
    xn = _layernorm(x, axis=-1)
    return x + _A_ref(xn, A_wq, A_wk, A_wv, A_wo) + _B_ref(xn, B_w1, B_b1, B_w2, B_b2)
```

```python
class Asm:
    def __init__(self):
        self.lines = []
        self.uid = 0
    def __call__(self, s):
        for l in s.strip("\n").split("\n"):
            self.lines.append("  " + l.strip() if not l.strip().endswith(":") else l.strip())
    def c(self, s):
        self.lines.append("  ; " + s)
    def label(self, name):
        self.lines.append(name + ":")
    def newlabel(self, p="L"):
        self.uid += 1
        return f"{p}_{self.uid}"
    def nop(self, n):
        while n > 0:
            k = min(n, 16)
            self.lines.append(f"  s_nop {k-1}")
            n -= k
    def text(self):
        return "\n".join(self.lines) + "\n"

def vr(base, n=1):
    return f"v{base}" if n == 1 else f"v[{base}:{base+n-1}]"
def sr(base, n=1):
    return f"s{base}" if n == 1 else f"s[{base}:{base+n-1}]"
def ar(base, n=1):
    return f"a{base}" if n == 1 else f"a[{base}:{base+n-1}]"

def f32bits(x):
    import struct
    return struct.unpack("<I", struct.pack("<f", x))[0]

def kernel_header(name):
    return f""".globl {name}
.p2align 8
.type {name},@function
{name}:
"""
def kernel_desc(name, vgpr, sgpr=102, accum=None):
    accum = accum or ((vgpr + 3) // 4 * 4)
    return f""".amdhsa_kernel {name}
  .amdhsa_next_free_vgpr {vgpr}
  .amdhsa_next_free_sgpr {sgpr}
  .amdhsa_accum_offset {accum}
  .amdhsa_group_segment_fixed_size 0
  .amdhsa_kernarg_size 104
  .amdhsa_user_sgpr_count 2
  .amdhsa_user_sgpr_kernarg_segment_ptr 1
  .amdhsa_system_sgpr_workgroup_id_x 1
.end_amdhsa_kernel
"""
def srd(a, dst, base_lo, base_hi, size, off=0):
    if off:
        a(f"s_add_u32 s{dst}, s{base_lo}, {off}")
        a(f"s_addc_u32 s{dst+1}, s{base_hi}, 0")
    else:
        a(f"s_mov_b32 s{dst}, s{base_lo}")
        a(f"s_mov_b32 s{dst+1}, s{base_hi}")
    a(f"s_mov_b32 s{dst+2}, {size}")
    a(f"s_mov_b32 s{dst+3}, 0x00020000")
```

```python
import sys, math
from asmlib import *

NAME = "parallel_sum__grouped_kv_mqa__dense_activation_squared_relu__prompt"
WS_XF = 0x0
WS_R  = 0x280000
WS_Q  = 0x290000
WS_KV = 0x510000
WS_O  = 0x550000
WS_H  = 0x7D0000
WS_F2 = 0xDD0000
WS_END = 0x12D0000
NX = 2048 * 640 * 2
QSCALE = (20 ** -0.5) * math.log2(math.e)


WS_DBG = 0x2000000
PROF = False
class Stamps:
    def __init__(self, a): self.a = a; self.n = 1; self.names = []
    def start(self):
        if not PROF: return
        self.a("s_memrealtime s[64:65]"); self.a("s_memtime s[66:67]"); self.a("s_waitcnt lgkmcnt(0)"); self.n = 2
    def mark(self, name):
        if not PROF: return
        assert self.n < 15
        self.a(f"s_memtime s[{64+2*self.n}:{65+2*self.n}]"); self.a("s_waitcnt lgkmcnt(0)")
        self.n += 1; self.names.append(name)
    def end(self, kidx, s_ws_lo, s_w, nw):
        if not PROF: return
        a = self.a
        a("s_waitcnt vmcnt(0)")
        self.mark("final-drain")
        a("s_memrealtime s[94:95]"); a("s_waitcnt lgkmcnt(0)")
        a("s_mov_b64 exec, 1")
        a(f"s_mul_i32 s98, s2, {nw}")
        a(f"s_add_u32 s98, s98, s{s_w}")
        a(f"s_lshl_b32 s98, s98, 6")
        a(f"s_add_u32 s98, s98, {WS_DBG + kidx*0x100000}")
        a(f"s_add_u32 s96, s{s_ws_lo}, s98")
        a(f"s_addc_u32 s97, s{s_ws_lo+1}, 0")
        a(f"v_mov_b32 v0, 0")
        for i in list(range(self.n)) + [15]:
            a(f"v_mov_b32 v1, s{64+2*i}")
            a(f"global_store_dword v0, v1, s[96:97] offset:{4*i}")
        a("s_waitcnt vmcnt(0)")
        STAMP_NAMES[kidx] = self.names
STAMP_NAMES = {}

def decode_wg(a, s_rb, s_cg, tmp):
    a(f"s_lshr_b32 s{s_cg}, s2, 6")
    a(f"s_and_b32 s{s_rb}, s2, 7")
    a(f"s_lshl_b32 s{s_rb}, s{s_rb}, 3")
    a(f"s_bfe_u32 s{tmp}, s2, 0x30003")
    a(f"s_add_u32 s{s_rb}, s{s_rb}, s{tmp}")

def bf16_round(a, dst, src):
    a(f"v_cvt_pk_bf16_f32 v{dst}, v{src}, v{src}")
    a(f"v_lshlrev_b32 v{dst}, 16, v{dst}")

def w_dma_offsets(a, vlane, vW, s_colbytes, pitch_g, tmp):
    for d in range(5):
        a(f"v_add_u32 v{tmp}, {64*d}, v{vlane}")
        a(f"v_mul_u32_u24 v{tmp+1}, 3277, v{tmp}")
        a(f"v_lshrrev_b32 v{tmp+1}, 16, v{tmp+1}")
        a(f"v_mul_u32_u24 v{tmp+2}, 20, v{tmp+1}")
        a(f"v_sub_u32 v{tmp}, v{tmp}, v{tmp+2}")
        a(f"v_lshlrev_b32 v{tmp}, 4, v{tmp}")
        a(f"v_mul_u32_u24 v{tmp+1}, {pitch_g}, v{tmp+1}")
        a(f"v_add3_u32 v{vW+d}, v{tmp}, v{tmp+1}, s{s_colbytes}")
        if 1 <= d <= 3:
            a(f"v_subrev_u32 v{vW+d}, {d*1024}, v{vW+d}")

def w_dma_issue(a, vW, srdW, s_soff, s_ldsbase, lds_off):
    a(f"s_add_u32 m0, s{s_ldsbase}, {lds_off}")
    a("s_nop 0")
    for d in range(4):
        a(f"buffer_load_dwordx4 v{vW+d}, s[{srdW}:{srdW+3}], s{s_soff} offen offset:{d*1024} lds")
    a(f"s_add_u32 m0, s{s_ldsbase}, {lds_off + 4096}")
    a("s_nop 0")
    a(f"buffer_load_dwordx4 v{vW+4}, s[{srdW}:{srdW+3}], s{s_soff} offen lds")

def gen_qkv():
    a = Asm()
    kn = "qkv_kernel"
    SLOT = 6144; NSLOT = 6; WREG = SLOT * NSLOT
    STAT = 4 * WREG
    sX, sWQ, sWE, sWS = 16, 20, 24, 28
    sRB, sCG, sW, sT = 32, 33, 34, 35
    sSoffW, sSoffE, sLds, sCol = 36, 37, 38, 39
    vLane, vH, vN = 1, 2, 3
    vT = 4
    vW = 12
    vE = 17
    vTr = 18
    vTrE = 19
    vXo = 20
    vSum, vSq, vM, vR = 21, 22, 23, 24
    vOne, vSelLo, vSelHi = 25, 26, 27
    X = 32
    WF = 72
    ACC = 96
    TMP = 192
    a(f"s_cmp_ge_u32 s2, 256")
    a(f"s_cbranch_scc1 {kn}_end")
    st = Stamps(a); st.start()
    a("s_load_dwordx4 s[4:7], s[0:1], 0")
    a("s_load_dwordx4 s[8:11], s[0:1], 16")
    a("s_load_dwordx2 s[12:13], s[0:1], 96")
    decode_wg(a, sRB, sCG, sT)
    a(f"v_and_b32 v{vLane}, 63, v0")
    a(f"v_lshrrev_b32 v{vT}, 6, v0")
    a(f"v_lshrrev_b32 v{vH}, 5, v{vLane}")
    a(f"v_readfirstlane_b32 s{sW}, v{vT}")
    a(f"v_and_b32 v{vN}, 31, v{vLane}")
    a(f"s_lshl_b32 s{sT}, s{sRB}, 5")
    a(f"v_add_u32 v{vT}, s{sT}, v{vN}")
    a(f"v_mul_u32_u24 v{vXo}, 1280, v{vT}")
    a(f"v_lshlrev_b32 v{vT}, 4, v{vH}")
    a(f"v_add_u32 v{vXo}, v{vXo}, v{vT}")
    a(f"s_mul_i32 s{sT}, s{sW}, 320")
    a(f"v_add_u32 v{vXo}, s{sT}, v{vXo}")
    a(f"s_mul_i32 s{sCol}, s{sCG}, 320")
    w_dma_offsets(a, vLane, vW, sCol, 1280, vT)
    a(f"v_lshlrev_b32 v{vE}, 4, v{vLane}")
    a(f"v_bfe_u32 v{vT}, v{vLane}, 2, 2")
    a(f"v_lshl_add_u32 v{vT}, v{vH}, 3, v{vT}")
    a(f"v_bfe_u32 v{vT+1}, v{vLane}, 4, 1")
    a(f"v_and_b32 v{vT+2}, 3, v{vLane}")
    a(f"v_lshlrev_b32 v{vT+2}, 3, v{vT+2}")
    a(f"v_lshl_add_u32 v{vT+1}, v{vT+1}, 5, v{vT+2}")
    a(f"s_mul_i32 s{sLds}, s{sW}, {WREG}")
    a(f"v_mul_u32_u24 v{vTr}, 320, v{vT}")
    a(f"v_add3_u32 v{vTr}, v{vTr}, v{vT+1}, s{sLds}")
    a(f"v_mul_u32_u24 v{vTrE}, 40, v{vT}")
    a(f"v_add3_u32 v{vTrE}, v{vTrE}, v{vT+1}, s{sLds}")
    a(f"s_mul_i32 s{sSoffW}, s{sW}, {160*1280}")
    a(f"s_mul_i32 s{sSoffE}, s{sW}, {160*40}")
    st.mark("setup")
    a("s_waitcnt lgkmcnt(0)")
    st.mark("kernarg")
    srd(a, sX, 4, 5, NX)
    srd(a, sWQ, 6, 7, 640*640*2)
    a(f"s_cmp_eq_u32 s{sCG}, 1")
    a(f"s_cselect_b32 s{sWE}, s10, s8")
    a(f"s_cselect_b32 s{sWE+1}, s11, s9")
    a(f"s_mov_b32 s{sWE+2}, {640*20*2}")
    a(f"s_mov_b32 s{sWE+3}, 0x00020000")
    srd(a, sWS, 12, 13, WS_END)
    for s in range(10):
        a(f"buffer_load_dwordx4 {vr(X+4*s,4)}, v{vXo}, s[{sX}:{sX+3}], 0 offen offset:{32*s}")
    def dma_step(s):
        slot = s % NSLOT
        w_dma_issue(a, vW, sWQ, sSoffW, sLds, slot*SLOT)
        a(f"s_add_u32 m0, s{sLds}, {slot*SLOT + 5120}")
        a(f"s_add_u32 s{sSoffW}, s{sSoffW}, {16*1280}")
        a(f"buffer_load_dwordx4 v{vE}, s[{sWE}:{sWE+3}], s{sSoffE} offen lds")
        a(f"s_add_u32 s{sSoffE}, s{sSoffE}, {16*40}")
    for s in range(NSLOT): dma_step(s)
    st.mark("issue")
    for i in range(96): a(f"v_mov_b32 v{ACC+i}, 0")
    a(f"v_mov_b32 v{vOne}, 0x3f803f80")
    a(f"v_mov_b32 v{vSelLo}, 0x00003f80")
    a(f"v_mov_b32 v{vSelHi}, 0x3f800000")
    a(f"v_mov_b32 v{vSum}, 0")
    a(f"v_mov_b32 v{vSq}, 0")
    st.mark("zero")
    a(f"s_waitcnt vmcnt({6*NSLOT})")
    st.mark("xwait")
    for i in range(40):
        a(f"v_dot2c_f32_bf16 v{vSum}, v{X+i}, v{vOne}")
        a(f"v_dot2c_f32_bf16 v{vSq}, v{X+i}, v{X+i}")
    a(f"s_lshl_b32 s{sT}, s{sW}, 9")
    a(f"v_lshlrev_b32 v{vT}, 3, v{vLane}")
    a(f"s_add_u32 s{sT}, s{sT}, {STAT}")
    a(f"v_add_u32 v{vT}, s{sT}, v{vT}")
    a("s_nop 2")
    a(f"v_mov_b32 v{vT+2}, v{vSum}")
    a(f"v_mov_b32 v{vT+3}, v{vSq}")
    a(f"ds_write_b64 v{vT}, v[{vT+2}:{vT+3}]")
    a("s_waitcnt lgkmcnt(0)")
    a("s_barrier")
    a(f"v_lshlrev_b32 v{vT}, 3, v{vN}")
    a(f"v_add_u32 v{vT}, {STAT}, v{vT}")
    for i in range(8):
        a(f"ds_read_b64 v[{TMP+2*i}:{TMP+2*i+1}], v{vT} offset:{256*i}")
    a("s_waitcnt lgkmcnt(0)")
    for i in range(1, 8):
        a(f"v_add_f32 v{TMP}, v{TMP}, v{TMP+2*i}")
        a(f"v_add_f32 v{TMP+1}, v{TMP+1}, v{TMP+2*i+1}")
    inv = f32bits(1.0/640)
    a(f"v_mul_f32 v{vM}, {inv}, v{TMP}")
    a(f"v_mul_f32 v{TMP+1}, {inv}, v{TMP+1}")
    a(f"v_fma_f32 v{TMP+1}, -v{vM}, v{vM}, v{TMP+1}")
    a(f"v_max_f32 v{TMP+1}, 0, v{TMP+1}")
    bf16_round(a, TMP+1, TMP+1)
    a(f"v_add_f32 v{TMP+1}, {f32bits(1e-5)}, v{TMP+1}")
    bf16_round(a, TMP+1, TMP+1)
    a(f"v_sqrt_f32 v{TMP+1}, v{TMP+1}")
    a("s_nop 0")
    bf16_round(a, TMP+1, TMP+1)
    a(f"v_rcp_f32 v{vR}, v{TMP+1}")
    bf16_round(a, vM, vM)
    a(f"v_sub_f32 v{vM}, 0, v{vM}")
    G = 8
    for base in range(0, 40, G):
        for i in range(G):
            a(f"v_dot2_f32_bf16 v{TMP+2*i}, v{X+base+i}, v{vSelLo}, v{vM}")
            a(f"v_dot2_f32_bf16 v{TMP+2*i+1}, v{X+base+i}, v{vSelHi}, v{vM}")
        a("s_nop 2")
        for i in range(G):
            a(f"v_cvt_pk_bf16_f32 v{X+base+i}, v{TMP+2*i}, v{TMP+2*i+1}")
    st.mark("LN")
    outstanding = [6]*NSLOT
    for s in range(10):
        slot = s % NSLOT
        later = min(s + NSLOT, 10) - s - 1
        a(f"s_waitcnt vmcnt({6*later})")
        for ct in range(5):
            a(f"ds_read_b64_tr_b16 v[{WF+4*ct}:{WF+4*ct+1}], v{vTr} offset:{slot*SLOT + ct*64}")
            a(f"ds_read_b64_tr_b16 v[{WF+4*ct+2}:{WF+4*ct+3}], v{vTr} offset:{slot*SLOT + ct*64 + 4*320}")
        a(f"ds_read_b64_tr_b16 v[{WF+20}:{WF+21}], v{vTrE} offset:{slot*SLOT + 5120}")
        a(f"ds_read_b64_tr_b16 v[{WF+22}:{WF+23}], v{vTrE} offset:{slot*SLOT + 5120 + 4*40}")
        for ct in range(6):
            a(f"s_waitcnt lgkmcnt({10-2*ct})")
            a(f"v_mfma_f32_32x32x16_bf16 {vr(ACC+16*ct,16)}, {vr(WF+4*ct,4)}, {vr(X+4*s,4)}, {vr(ACC+16*ct,16)}")
        if s + NSLOT < 10:
            dma_step(s + NSLOT)
    st.mark("kloop")
    a("s_barrier")
    a.nop(12)
    a(f"v_lshlrev_b32 v{vT}, 4, v{vLane}")
    a(f"s_lshl_b32 s{sT}, s{sW}, 10")
    a(f"v_add_u32 v{vT+1}, s{sT}, v{vT}")
    a(f"v_add_u32 v{vT+2}, 49152, v{vT+1}")
    for ct in range(6):
        for q in range(4):
            o = (ct%3)*16384 + q*4096
            a(f"ds_write_b128 v{vT+1+ct//3}, {vr(ACC+16*ct+4*q,4)} offset:{o}")
    a("s_waitcnt lgkmcnt(0)")
    a("s_barrier")
    a(f"s_lshl_b32 s{sT}, s{sW}, 12")
    a(f"v_add_u32 v{vT+1}, s{sT}, v{vT}")
    a(f"v_add_u32 v{vT+2}, 49152, v{vT+1}")
    for ct in range(6):
        for src in range(4):
            o = (ct%3)*16384 + src*1024
            a(f"ds_read_b128 {vr(ACC+16*ct+4*src,4)}, v{vT+1+ct//3} offset:{o}")
    a("s_waitcnt lgkmcnt(0)")
    for ct in range(6):
        for j in range(4):
            b = ACC+16*ct
            a(f"v_add_f32 v{b+j}, v{b+j}, v{b+4+j}")
            a(f"v_add_f32 v{b+8+j}, v{b+8+j}, v{b+12+j}")
            a(f"v_add_f32 v{b+j}, v{b+j}, v{b+8+j}")
    st.mark("reduce")
    a(f"v_mul_f32 v{vT+3}, {f32bits(QSCALE)}, v{vR}")
    a(f"s_lshl_b32 s{sT}, s{sRB}, 5")
    a(f"v_add_u32 v{vT}, s{sT}, v{vN}")
    a(f"v_mul_u32_u24 v{vT}, 1280, v{vT}")
    a(f"v_lshl_add_u32 v{vT}, v{vH}, 3, v{vT}")
    a(f"s_lshl_b32 s{sT}, s{sW}, 4")
    a(f"s_add_u32 s{sT}, s{sT}, s{sCol}")
    a(f"s_add_u32 s{sT}, s{sT}, {WS_Q}")
    for ct in range(5):
        b = ACC+16*ct
        for j in range(4): a(f"v_mul_f32 v{b+j}, v{b+j}, v{vT+3}")
        a(f"v_cvt_pk_bf16_f32 v{b+4}, v{b}, v{b+1}")
        a(f"v_cvt_pk_bf16_f32 v{b+5}, v{b+2}, v{b+3}")
        a(f"buffer_store_dwordx2 v[{b+4}:{b+5}], v{vT}, s[{sWS}:{sWS+3}], s{sT} offen offset:{64*ct}")
    b = ACC+80
    for j in range(4): a(f"v_mul_f32 v{b+j}, v{b+j}, v{vR}")
    L_noov = a.newlabel("noov")
    a(f"s_cmp_lt_u32 s{sW}, 2")
    a(f"s_cbranch_scc1 {L_noov}")
    a(f"v_cmp_eq_u32 vcc, 1, v{vH}")
    a(f"s_cmp_eq_u32 s{sW}, 3")
    a(f"s_cselect_b64 vcc, -1, vcc")
    a(f"s_cselect_b32 s{sT}, 0, 1.0")
    a(f"v_mov_b32 v{vT+4}, s{sT}")
    a(f"v_mov_b32 v{vT+5}, 0")
    a(f"v_cndmask_b32 v{b}, v{b}, v{vT+4}, vcc")
    for j in range(1, 4): a(f"v_cndmask_b32 v{b+j}, v{b+j}, v{vT+5}, vcc")
    a.label(L_noov)
    a(f"v_cvt_pk_bf16_f32 v{b+4}, v{b}, v{b+1}")
    a(f"v_cvt_pk_bf16_f32 v{b+5}, v{b+2}, v{b+3}")
    L_notk, L_notv, L_notx, L_notr = [a.newlabel(x) for x in ("notk", "notv", "notx", "notr")]
    a(f"s_lshl_b32 s{sT}, s{sRB}, 12")
    a(f"s_add_u32 s{sT}, s{sT}, {WS_KV}")
    a(f"s_cmp_lg_u32 s{sCG}, 0")
    a(f"s_cbranch_scc1 {L_notk}")
    a(f"s_cmp_eq_u32 s{sW}, 3")
    a(f"s_cbranch_scc1 {L_notr}")
    a(f"v_lshlrev_b32 v{vT}, 4, v{vLane}")
    a(f"v_lshlrev_b32 v{vT+1}, 3, v{vLane}")
    a(f"v_add_u32 v{vT+1}, 1024, v{vT+1}")
    a(f"s_lshl_b32 s{sT+5}, s{sW}, 3")
    a(f"v_add_u32 v{vT}, s{sT+5}, v{vT}")
    a(f"s_cmp_eq_u32 s{sW}, 2")
    a(f"s_cselect_b64 vcc, -1, 0")
    a(f"v_cndmask_b32 v{vT}, v{vT}, v{vT+1}, vcc")
    a(f"buffer_store_dwordx2 v[{b+4}:{b+5}], v{vT}, s[{sWS}:{sWS+3}], s{sT} offen")
    a(f"s_branch {L_notr}")
    a.label(L_notk)
    a(f"s_cmp_lg_u32 s{sCG}, 1")
    a(f"s_cbranch_scc1 {L_notv}")
    a(f"v_bfe_u32 v{vT}, v{vN}, 4, 1")
    a(f"v_lshlrev_b32 v{vT}, 10, v{vT}")
    a(f"v_bfe_u32 v{vT+1}, v{vN}, 2, 1")
    a(f"v_lshl_add_u32 v{vT}, v{vT+1}, 9, v{vT}")
    a(f"v_bfe_u32 v{vT+1}, v{vN}, 3, 1")
    a(f"v_lshl_add_u32 v{vT}, v{vT+1}, 3, v{vT}")
    a(f"v_and_b32 v{vT+1}, 3, v{vN}")
    a(f"v_lshl_add_u32 v{vT}, v{vT+1}, 1, v{vT}")
    a(f"v_lshl_add_u32 v{vT}, v{vH}, 6, v{vT}")
    a(f"s_lshl_b32 s{sT+5}, s{sW}, 7")
    a(f"s_add_u32 s{sT}, s{sT}, s{sT+5}")
    a(f"buffer_store_short v{b+4}, v{vT}, s[{sWS}:{sWS+3}], s{sT} offen offset:2048")
    a(f"buffer_store_short_d16_hi v{b+4}, v{vT}, s[{sWS}:{sWS+3}], s{sT} offen offset:{2048+16}")
    a(f"buffer_store_short v{b+5}, v{vT}, s[{sWS}:{sWS+3}], s{sT} offen offset:{2048+32}")
    a(f"buffer_store_short_d16_hi v{b+5}, v{vT}, s[{sWS}:{sWS+3}], s{sT} offen offset:{2048+48}")
    a(f"s_branch {L_notr}")
    a.label(L_notv)
    a(f"s_cmp_lg_u32 s{sCG}, 2")
    a(f"s_cbranch_scc1 {L_notx}")
    a(f"s_mul_i32 s{sT}, s{sRB}, 40")
    a(f"s_mul_i32 s{sT+5}, s{sW}, 10")
    a(f"s_add_u32 s{sT}, s{sT}, s{sT+5}")
    a(f"s_lshl_b32 s{sT}, s{sT}, 10")
    a(f"v_lshlrev_b32 v{vT}, 4, v{vLane}")
    for s in range(10):
        if s == 4: a(f"v_add_u32 v{vT}, 4096, v{vT}")
        if s == 8: a(f"v_add_u32 v{vT}, 4096, v{vT}")
        a(f"buffer_store_dwordx4 {vr(X+4*s,4)}, v{vT}, s[{sWS}:{sWS+3}], s{sT} offen offset:{(s%4)*1024}")
    a(f"s_branch {L_notr}")
    a.label(L_notx)
    a(f"s_cmp_lg_u32 s{sW}, 0")
    a(f"s_cbranch_scc1 {L_notr}")
    a(f"s_lshl_b32 s{sT}, s{sRB}, 7")
    a(f"s_add_u32 s{sT}, s{sT}, {WS_R}")
    a(f"v_lshlrev_b32 v{vT}, 2, v{vN}")
    a(f"buffer_store_dword v{vR}, v{vT}, s[{sWS}:{sWS+3}], s{sT} offen")
    a.label(L_notr)
    st.mark("epi-issue")
    st.end(0, 12, sW, 4)
    a.label(f"{kn}_end")
    a("s_endpgm")
    return kn, a.text(), kernel_desc(kn, 256, 102), (256, 256, 151552)


DELTA = 90.0
OPT = {}
def gen_attn():
    a = Asm()
    kn = "attn_kernel"
    sQ, sKV, sO = 8, 12, 16
    sRB, sCG, sW, sT = 20, 21, 22, 23
    sSoff, sLdsW, sIt, sHead = 24, 25, 26, 27
    sMode = 28
    vLane, vH, vN = 1, 2, 3
    vT = 4
    vA16, vA8, vDma, vQo = 12, 13, 14, 15
    S = [16, 32]
    O = 48
    P = 64
    Q1, Q2 = 72, 76
    K1, K2 = 80, 84
    V1, V2 = 88, 92
    vM = 96
    a(f"s_cmp_ge_u32 s2, 256")
    a(f"s_cbranch_scc1 {kn}_end")
    st = Stamps(a); st.start()
    a("s_load_dwordx2 s[4:5], s[0:1], 96")
    decode_wg(a, sRB, sCG, sT)
    a(f"v_and_b32 v{vLane}, 63, v0")
    a(f"v_lshrrev_b32 v{vT}, 6, v0")
    a(f"v_lshrrev_b32 v{vH}, 5, v{vLane}")
    a(f"v_readfirstlane_b32 s{sW}, v{vT}")
    a(f"v_and_b32 v{vN}, 31, v{vLane}")
    a(f"v_lshlrev_b32 v{vA16}, 4, v{vLane}")
    a(f"v_lshlrev_b32 v{vA8}, 3, v{vLane}")
    a(f"s_lshl_b32 s{sHead}, s{sCG}, 3")
    a(f"s_add_u32 s{sHead}, s{sHead}, s{sW}")
    a(f"s_lshl_b32 s{sT}, s{sRB}, 5")
    a(f"v_add_u32 v{vT}, s{sT}, v{vN}")
    a(f"v_mul_u32_u24 v{vQo}, 1280, v{vT}")
    a(f"s_mul_i32 s{sT}, s{sHead}, 40")
    a(f"v_add_u32 v{vQo}, s{sT}, v{vQo}")
    a(f"v_lshl_add_u32 v{vT}, v{vH}, 3, v{vQo}")
    a(f"s_lshl_b32 s{sLdsW}, s{sW}, 11")
    a(f"v_add_u32 v{vDma}, s{sLdsW}, v{vA16}")
    a("s_waitcnt lgkmcnt(0)")
    st.mark("kernarg")
    srd(a, sQ, 4, 5, NX, WS_Q)
    srd(a, sKV, 4, 5, 262144, WS_KV)
    srd(a, sO, 4, 5, NX, WS_O)
    a(f"buffer_load_dwordx2 v[{Q1}:{Q1+1}], v{vT}, s[{sQ}:{sQ+3}], 0 offen")
    a(f"buffer_load_dwordx2 v[{Q1+2}:{Q1+3}], v{vT}, s[{sQ}:{sQ+3}], 0 offen offset:16")
    a(f"buffer_load_dwordx2 v[{Q2}:{Q2+1}], v{vQo}, s[{sQ}:{sQ+3}], 0 offen offset:32")
    def dma_chunk(slot):
        a(f"s_add_u32 m0, s{sLdsW}, {slot*16384}")
        a("s_nop 0")
        a(f"buffer_load_dwordx4 v{vDma}, s[{sKV}:{sKV+3}], s{sSoff} offen lds")
        a(f"buffer_load_dwordx4 v{vDma}, s[{sKV}:{sKV+3}], s{sSoff} offen offset:1024 lds")
        a(f"s_add_u32 s{sSoff}, s{sSoff}, 16384")
    a(f"s_mov_b32 s{sSoff}, 0")
    for c in range(3): dma_chunk(c)
    for i in range(16): a(f"v_mov_b32 v{O+i}, 0")
    a(f"v_cmp_eq_u32 vcc, 1, v{vH}")
    a(f"s_waitcnt vmcnt(4)")
    a(f"v_cndmask_b32 v{Q2}, v{Q2}, 0, vcc") if False else None
    a(f"v_mov_b32 v{vT}, 0")
    a(f"v_cndmask_b32 v{Q2}, v{Q2}, v{vT}, vcc")
    a(f"v_cndmask_b32 v{Q2+1}, v{Q2+1}, v{vT}, vcc")
    a("s_barrier")
    def lds_tile(t):
        return ((t // 4) % 4) * 16384 + (t % 4) * 4096
    def rd_K1(t): a(f"ds_read_b128 {vr(K1,4)}, v{vA16} offset:{lds_tile(t)}")
    def rd_K2(t): a(f"ds_read_b64 {vr(K2,2)}, v{vA8} offset:{lds_tile(t)+1024}")
    def rd_V1(t): a(f"ds_read_b128 {vr(V1,4)}, v{vA16} offset:{lds_tile(t)+2048}")
    def rd_V2(t): a(f"ds_read_b128 {vr(V2,4)}, v{vA16} offset:{lds_tile(t)+3072}")
    def qk1(dst): a(f"v_mfma_f32_32x32x16_bf16 {vr(dst,16)}, {vr(K1,4)}, {vr(Q1,4)}, 0")
    def qk2(dst): a(f"v_mfma_f32_32x32x8_bf16 {vr(dst,16)}, {vr(K2,2)}, {vr(Q2,2)}, {vr(dst,16)}")
    st.mark("firstdata")
    T0 = 2
    a(f"v_mov_b32 v{vM}, 0xff800000")
    for t in range(T0):
        rd_K1(t); rd_K2(t)
        a("s_waitcnt lgkmcnt(0)")
        qk1(S[0]); qk2(S[0])
        a.nop(12)
        for i in range(8):
            a(f"v_max3_f32 v{vM}, v{S[0]+2*i}, v{S[0]+2*i+1}, v{vM}")
    L_setm = f"{kn}_setm"
    a.label(L_setm)
    a(f"v_mov_b32 v{vT}, v{vM}")
    a.nop(2)
    a(f"v_permlane32_swap_b32 v{vM}, v{vT}")
    a.nop(1)
    a(f"v_max_f32 v{vM}, v{vM}, v{vT}")
    a(f"v_add_f32 v{vM}, {f32bits(DELTA)}, v{vM}")
    a(f"v_cvt_pk_bf16_f32 v{vT}, -v{vM}, 0")
    a(f"v_cmp_eq_u32 vcc, 1, v{vH}")
    a.nop(2)
    a(f"v_cndmask_b32 v{Q2}, v{Q2}, v{vT}, vcc")
    rd_K1(0); rd_K2(0)
    for i in range(4, 8): a(f"v_mov_b32 v{P+i}, 0")
    for i in range(4): a(f"v_mov_b32 v{V2+i}, 0")
    a("s_waitcnt lgkmcnt(0)")
    qk1(S[0]); qk2(S[0])
    rd_K1(1); rd_K2(1); rd_V1(0)
    a.nop(12)
    st.mark("sample")
    if OPT.get("prio"):
        a(f"s_cmp_ge_u32 s{sW}, 4")
        a(f"s_cbranch_scc0 {kn}_noprio")
        a("s_setprio 1")
        a.label(f"{kn}_noprio")
    a(f"s_mov_b32 s{sIt}, 0")
    L_loop = f"{kn}_loop"
    a(".p2align 6")
    a.label(L_loop)
    def lw():
        if not OPT.get("nolds"): a("s_waitcnt lgkmcnt(3)")
    def rd(f, t):
        if not OPT.get("nolds"): f(t)
    def e(cur, i): a(f"v_exp_f32 v{cur+i}, v{cur+i}")
    def p(cur, k): a(f"v_cvt_pk_bf16_f32 v{P+k}, v{cur+2*k}, v{cur+2*k+1}")
    for t in range(16):
        cur, nxt = S[t % 2], S[(t+1) % 2]
        if t % 4 == 2:
            if not OPT.get("nobar"):
                a("s_waitcnt vmcnt(2)")
                a("s_barrier")
            if not OPT.get("nodma"): dma_chunk((t // 4 + 3) % 4)
        e(cur, 0); e(cur, 1)
        lw()
        a(f"v_mfma_f32_32x32x16_bf16 {vr(O,16)}, {vr(V2,4)}, {vr(P+4,4)}, {vr(O,16)}")
        rd(rd_V2, t)
        e(cur, 2); e(cur, 3); p(cur, 0); p(cur, 1)
        lw()
        qk1(nxt)
        rd(rd_K1, t+2)
        e(cur, 4); e(cur, 5); e(cur, 6); e(cur, 7); p(cur, 2); p(cur, 3)
        lw()
        qk2(nxt)
        rd(rd_K2, t+2)
        e(cur, 8); e(cur, 9); e(cur, 10); e(cur, 11); p(cur, 4); p(cur, 5)
        lw()
        a(f"v_mfma_f32_32x32x16_bf16 {vr(O,16)}, {vr(V1,4)}, {vr(P,4)}, {vr(O,16)}")
        rd(rd_V1, t+1)
        e(cur, 12); e(cur, 13); e(cur, 14); e(cur, 15); p(cur, 6); p(cur, 7)
    a(f"s_add_u32 s{sIt}, s{sIt}, 1")
    a(f"s_cmp_lt_u32 s{sIt}, 4")
    a(f"s_cbranch_scc1 {L_loop}")
    a("s_waitcnt lgkmcnt(0)")
    st.mark("loop")
    a(f"v_mfma_f32_32x32x16_bf16 {vr(O,16)}, {vr(V2,4)}, {vr(P+4,4)}, {vr(O,16)}")
    a.nop(16)
    L_fin = f"{kn}_fin"
    a.label(L_fin)
    a(f"v_mov_b32 v{vT}, v{O+8}")
    a(f"v_mov_b32 v{vT+1}, v{O+8}")
    a.nop(2)
    a(f"v_permlane32_swap_b32 v{vT}, v{vT+1}")
    a.nop(1)
    a(f"v_rcp_f32 v{vT+2}, v{vT+1}")
    a.nop(1)
    for j in range(12): a(f"v_mul_f32 v{O+j}, v{O+j}, v{vT+2}")
    for k in range(6): a(f"v_cvt_pk_bf16_f32 v{P+k}, v{O+2*k}, v{O+2*k+1}")
    a(f"v_lshl_add_u32 v{vT}, v{vH}, 3, v{vQo}")
    a(f"buffer_store_dwordx2 v[{P}:{P+1}], v{vT}, s[{sO}:{sO+3}], 0 offen")
    a(f"buffer_store_dwordx2 v[{P+2}:{P+3}], v{vT}, s[{sO}:{sO+3}], 0 offen offset:16")
    a(f"v_cmp_eq_u32 vcc, 0, v{vH}")
    a(f"s_and_saveexec_b64 s[30:31], vcc")
    a(f"buffer_store_dwordx2 v[{P+4}:{P+5}], v{vQo}, s[{sO}:{sO+3}], 0 offen offset:32")
    st.mark("epi-issue")
    st.end(1, 4, sW, 8)
    a.label(f"{kn}_end")
    a("s_endpgm")
    return kn, a.text(), kernel_desc(kn, 128, 102), (256, 512, 65536)


def gen_ffn1(kidx):
    a = Asm()
    kn = "ffn1_kernel"
    sW1, sWS, sB1 = 8, 12, 16
    sG, sC, sW, sT, sT2 = 20, 21, 22, 23, 24
    sSoffW, sSoffX, sLdsW = 25, 26, 27
    vLane, vH, vN = 1, 2, 3
    vT = 4
    vW = 10
    vTr, vX16, vR = 13, 14, 15
    XS = 16
    WF = 64
    ACC = 76
    SLOT = 12288
    a(f"s_cmp_ge_u32 s2, 256")
    a(f"s_cbranch_scc1 {kn}_end")
    st = Stamps(a); st.start()
    a("s_load_dwordx4 s[4:7], s[0:1], 48")
    a("s_load_dwordx2 s[28:29], s[0:1], 96")
    a(f"s_and_b32 s{sG}, s2, 7")
    a(f"s_lshl_b32 s{sG}, s{sG}, 1")
    a(f"s_bfe_u32 s{sT}, s2, 0x10003")
    a(f"s_add_u32 s{sG}, s{sG}, s{sT}")
    a(f"s_lshr_b32 s{sC}, s2, 4")
    a(f"v_and_b32 v{vLane}, 63, v0")
    a(f"v_lshrrev_b32 v{vT}, 6, v0")
    a(f"v_lshrrev_b32 v{vH}, 5, v{vLane}")
    a(f"v_readfirstlane_b32 s{sW}, v{vT}")
    a(f"v_and_b32 v{vN}, 31, v{vLane}")
    a(f"v_lshlrev_b32 v{vX16}, 4, v{vLane}")
    a(f"s_mul_i32 s{sT}, s{sW}, 192")
    a(f"s_mul_i32 s{sT2}, s{sC}, 192")
    for i in range(3):
        a(f"v_add_u32 v{vT}, s{sT}, v{vLane}")
        if i: a(f"v_add_u32 v{vT}, {64*i}, v{vT}")
        a(f"v_mul_u32_u24 v{vT+1}, 5462, v{vT}")
        a(f"v_lshrrev_b32 v{vT+1}, 16, v{vT+1}")
        a(f"v_mul_u32_u24 v{vT+2}, 12, v{vT+1}")
        a(f"v_sub_u32 v{vT}, v{vT}, v{vT+2}")
        a(f"v_lshlrev_b32 v{vT}, 4, v{vT}")
        a(f"v_mul_u32_u24 v{vT+1}, 3072, v{vT+1}")
        a(f"v_add3_u32 v{vW+i}, v{vT}, v{vT+1}, s{sT2}")
        if i: a(f"v_subrev_u32 v{vW+i}, {1024*i}, v{vW+i}")
    a(f"v_bfe_u32 v{vT}, v{vLane}, 2, 2")
    a(f"v_lshl_add_u32 v{vT}, v{vH}, 3, v{vT}")
    a(f"v_bfe_u32 v{vT+1}, v{vLane}, 4, 1")
    a(f"v_and_b32 v{vT+2}, 3, v{vLane}")
    a(f"v_lshlrev_b32 v{vT+2}, 3, v{vT+2}")
    a(f"v_lshl_add_u32 v{vT+1}, v{vT+1}, 5, v{vT+2}")
    a(f"v_mul_u32_u24 v{vTr}, 192, v{vT}")
    a(f"v_add_u32 v{vTr}, v{vTr}, v{vT+1}")
    a(f"s_mul_i32 s{sLdsW}, s{sW}, 3072")
    a(f"s_lshl_b32 s{sT}, s{sG}, 2")
    a(f"s_add_u32 s{sT}, s{sT}, s{sW}")
    a(f"s_mul_i32 s{sSoffX}, s{sT}, {40*1024}")
    if WS_XF: a(f"s_add_u32 s{sSoffX}, s{sSoffX}, {WS_XF}")
    a(f"s_mov_b32 s{sSoffW}, 0")
    a("s_waitcnt lgkmcnt(0)")
    srd(a, sW1, 4, 5, 640*1536*2)
    srd(a, sB1, 6, 7, 1536*2)
    srd(a, sWS, 28, 29, WS_END)
    def issue(c):
        xs = XS + 16*(c % 3)
        for i in range(4):
            a(f"buffer_load_dwordx4 {vr(xs+4*i,4)}, v{vX16}, s[{sWS}:{sWS+3}], s{sSoffX} offen offset:{1024*i}")
        a(f"s_add_u32 m0, s{sLdsW}, {(c%3)*SLOT}")
        a(f"s_add_u32 s{sSoffX}, s{sSoffX}, 4096")
        for i in range(3):
            a(f"buffer_load_dwordx4 v{vW+i}, s[{sW1}:{sW1+3}], s{sSoffW} offen offset:{1024*i} lds")
        a(f"s_add_u32 s{sSoffW}, s{sSoffW}, {64*3072}")
    issue(0); issue(1)
    st.mark("setup")
    for c in range(10):
        n_after = 7 if c + 1 < 10 else 0
        a(f"s_waitcnt vmcnt({n_after})")
        a("s_barrier")
        if c + 2 < 10: issue(c + 2)
        xs = XS + 16*(c % 3)
        for k in range(4):
            base = (c % 3)*SLOT + k*16*192
            for ct in range(3):
                a(f"ds_read_b64_tr_b16 v[{WF+4*ct}:{WF+4*ct+1}], v{vTr} offset:{base + ct*64}")
                a(f"ds_read_b64_tr_b16 v[{WF+4*ct+2}:{WF+4*ct+3}], v{vTr} offset:{base + ct*64 + 4*192}")
            for ct in range(3):
                a(f"s_waitcnt lgkmcnt({4-2*ct})")
                cin = "0" if (c == 0 and k == 0) else vr(ACC+16*ct,16)
                a(f"v_mfma_f32_32x32x16_bf16 {vr(ACC+16*ct,16)}, {vr(WF+4*ct,4)}, {vr(xs+4*k,4)}, {cin}")
    st.mark("kloop")
    a(f"s_lshl_b32 s{sT}, s{sG}, 2")
    a(f"s_add_u32 s{sT}, s{sT}, s{sW}")
    a(f"s_lshl_b32 s{sT2}, s{sT}, 7")
    a(f"s_add_u32 s{sT2}, s{sT2}, {WS_R}")
    a(f"v_lshlrev_b32 v{vT}, 2, v{vN}")
    a(f"buffer_load_dword v{vR}, v{vT}, s[{sWS}:{sWS+3}], s{sT2} offen")
    a(f"s_mul_i32 s{sT2}, s{sC}, 192")
    a(f"v_lshlrev_b32 v{vT}, 3, v{vH}")
    B = XS
    for ct in range(3):
        for q in range(4):
            a(f"buffer_load_dwordx2 v[{B+8*ct+2*q}:{B+8*ct+2*q+1}], v{vT}, s[{sB1}:{sB1+3}], s{sT2} offen offset:{64*ct+16*q}")
    a(f"s_mul_i32 s{sT}, s{sT}, 96")
    a(f"s_mul_i32 s{sT2}, s{sC}, 6")
    a(f"s_add_u32 s{sT}, s{sT}, s{sT2}")
    a(f"s_lshl_b32 s{sT}, s{sT}, 10")
    a(f"s_add_u32 s{sT}, s{sT}, {WS_H}")
    a("s_waitcnt vmcnt(0)")
    a.nop(8)
    TB = XS + 24
    for ct in range(3):
        for q in range(4):
            b0, b1_ = B+8*ct+2*q, B+8*ct+2*q+1
            acc = ACC+16*ct+4*q
            a(f"v_lshlrev_b32 v{TB}, 16, v{b0}")
            a(f"v_and_b32 v{TB+1}, 0xffff0000, v{b0}")
            a(f"v_lshlrev_b32 v{TB+2}, 16, v{b1_}")
            a(f"v_and_b32 v{TB+3}, 0xffff0000, v{b1_}")
            for j in range(4): a(f"v_fma_f32 v{acc+j}, v{acc+j}, v{vR}, v{TB+j}")
            for j in range(4): a(f"v_max_f32 v{acc+j}, 0, v{acc+j}")
            for j in range(4): a(f"v_mul_f32 v{acc+j}, v{acc+j}, v{acc+j}")
        for u in range(2):
            for k in range(4):
                a(f"v_cvt_pk_bf16_f32 v{WF+4*u+k}, v{ACC+16*ct+8*u+2*k}, v{ACC+16*ct+8*u+2*k+1}")
        if ct == 2: a(f"v_add_u32 v{vX16}, 4096, v{vX16}")
        for u in range(2):
            o = (2*ct+u)*1024 - (4096 if ct == 2 else 0)
            a(f"buffer_store_dwordx4 {vr(WF+4*u,4)}, v{vX16}, s[{sWS}:{sWS+3}], s{sT} offen offset:{o}")
        a.nop(2)
    st.mark("epi")
    st.end(kidx, 28, sW, 4)
    a.label(f"{kn}_end")
    a("s_endpgm")
    return kn, a.text(), kernel_desc(kn, 128, 102), (256, 256, 3*SLOT)

def gen_ffn2(kidx):
    a = Asm()
    kn = "ffn2_kernel"
    sW2, sWS, sX, sB2 = 8, 12, 16, 36
    sRB, sCG, sW, sT, sT2 = 20, 21, 22, 23, 24
    sSoffW, sSoffX, sLds, sCol, sIt = 25, 26, 27, 30, 31
    vLane, vH, vN = 1, 2, 3
    vW = 4
    vTr, vX16 = 9, 10
    vT = 11
    XS = 16
    WF = 32
    ACC = 52
    ACC = 48; WF = 28; XS = 12 + 0
    XS, WF, ACC = 12, 28, 48
    vT = 28
    SLOT = 5120; NS = 4; WREG = SLOT*NS
    a(f"s_cmp_ge_u32 s2, 256")
    a(f"s_cbranch_scc1 {kn}_end")
    st = Stamps(a); st.start()
    a("s_load_dwordx4 s[4:7], s[0:1], 64")
    a("s_load_dwordx2 s[28:29], s[0:1], 96")
    a("s_load_dwordx2 s[32:33], s[0:1], 0")
    decode_wg(a, sRB, sCG, sT)
    a(f"v_and_b32 v{vLane}, 63, v0")
    a(f"v_lshrrev_b32 v{vT}, 6, v0")
    a(f"v_lshrrev_b32 v{vH}, 5, v{vLane}")
    a(f"v_readfirstlane_b32 s{sW}, v{vT}")
    a(f"v_and_b32 v{vN}, 31, v{vLane}")
    a(f"v_lshlrev_b32 v{vX16}, 4, v{vLane}")
    a(f"s_mul_i32 s{sCol}, s{sCG}, 320")
    w_dma_offsets(a, vLane, vW, sCol, 1280, vT)
    a(f"v_bfe_u32 v{vT}, v{vLane}, 2, 2")
    a(f"v_lshl_add_u32 v{vT}, v{vH}, 2, v{vT}")
    a(f"v_bfe_u32 v{vT+1}, v{vLane}, 4, 1")
    a(f"v_and_b32 v{vT+2}, 3, v{vLane}")
    a(f"v_lshlrev_b32 v{vT+2}, 3, v{vT+2}")
    a(f"v_lshl_add_u32 v{vT+1}, v{vT+1}, 5, v{vT+2}")
    a(f"s_mul_i32 s{sLds}, s{sW}, {WREG}")
    a(f"v_mul_u32_u24 v{vTr}, 320, v{vT}")
    a(f"v_add3_u32 v{vTr}, v{vTr}, v{vT+1}, s{sLds}")
    a(f"s_mul_i32 s{sSoffW}, s{sW}, {24*16*1280}")
    a(f"s_mul_i32 s{sT}, s{sRB}, 96")
    a(f"s_mul_i32 s{sT2}, s{sW}, 24")
    a(f"s_add_u32 s{sT}, s{sT}, s{sT2}")
    a(f"s_lshl_b32 s{sSoffX}, s{sT}, 10")
    a(f"s_add_u32 s{sSoffX}, s{sSoffX}, {WS_H}")
    a("s_waitcnt lgkmcnt(0)")
    srd(a, sW2, 4, 5, 1536*640*2)
    srd(a, sB2, 6, 7, 640*2)
    srd(a, sWS, 28, 29, WS_END)
    srd(a, sX, 32, 33, NX)
    def issue(slot):
        a(f"buffer_load_dwordx4 {vr(XS+4*slot,4)}, v{vX16}, s[{sWS}:{sWS+3}], s{sSoffX} offen")
        a(f"s_add_u32 s{sSoffX}, s{sSoffX}, 1024")
        w_dma_issue(a, vW, sW2, sSoffW, sLds, slot*SLOT)
        a(f"s_add_u32 s{sSoffW}, s{sSoffW}, {16*1280}")
    for i in range(80): a(f"v_mov_b32 v{ACC+i}, 0")
    issue(0); issue(1); issue(2)
    st.mark("setup")
    a(f"s_mov_b32 s{sIt}, 0")
    L = f"{kn}_loop"
    a.label(L)
    for k in range(4):
        a(f"s_waitcnt vmcnt(12)")
        for ct in range(5):
            a(f"ds_read_b64_tr_b16 v[{WF+4*ct}:{WF+4*ct+1}], v{vTr} offset:{k*SLOT + ct*64}")
            a(f"ds_read_b64_tr_b16 v[{WF+4*ct+2}:{WF+4*ct+3}], v{vTr} offset:{k*SLOT + ct*64 + 8*320}")
        issue((k+3) % 4)
        for ct in range(5):
            a(f"s_waitcnt lgkmcnt({8-2*ct})")
            a(f"v_mfma_f32_32x32x16_bf16 {vr(ACC+16*ct,16)}, {vr(WF+4*ct,4)}, {vr(XS+4*k,4)}, {vr(ACC+16*ct,16)}")
    a(f"s_add_u32 s{sIt}, s{sIt}, 1")
    a(f"s_cmp_lt_u32 s{sIt}, 6")
    a(f"s_cbranch_scc1 {L}")
    st.mark("kloop")
    a("s_waitcnt vmcnt(0)")
    a("s_barrier")
    a.nop(12)
    vA, vB_ = XS, XS+1
    a(f"s_lshl_b32 s{sT}, s{sW}, 10")
    a(f"v_add_u32 v{vA}, s{sT}, v{vX16}")
    a(f"v_add_u32 v{vB_}, 49152, v{vA}")
    for ct in range(5):
        for q in range(4):
            o = (ct%3)*16384 + q*4096
            a(f"ds_write_b128 v{vA+ct//3}, {vr(ACC+16*ct+4*q,4)} offset:{o}")
    a(f"s_lshl_b32 s{sT}, s{sRB}, 5")
    a(f"v_add_u32 v{XS+2}, s{sT}, v{vN}")
    a(f"v_mul_u32_u24 v{XS+2}, 1280, v{XS+2}")
    a(f"v_lshl_add_u32 v{XS+2}, v{vH}, 3, v{XS+2}")
    a(f"v_lshlrev_b32 v{XS+3}, 3, v{vH}")
    a(f"s_lshl_b32 s{sT}, s{sW}, 4")
    a(f"s_add_u32 s{sT}, s{sT}, s{sCol}")
    XB = WF
    for ct in range(5):
        a(f"buffer_load_dwordx2 v[{XB+2*ct}:{XB+2*ct+1}], v{XS+2}, s[{sX}:{sX+3}], s{sT} offen offset:{64*ct}")
        a(f"buffer_load_dwordx2 v[{XB+10+2*ct}:{XB+10+2*ct+1}], v{XS+3}, s[{sB2}:{sB2+3}], s{sT} offen offset:{64*ct}")
    a("s_waitcnt lgkmcnt(0)")
    a("s_barrier")
    a(f"s_lshl_b32 s{sT}, s{sW}, 12")
    a(f"v_add_u32 v{vA}, s{sT}, v{vX16}")
    a(f"v_add_u32 v{vB_}, 49152, v{vA}")
    for ct in range(5):
        for src in range(4):
            o = (ct%3)*16384 + src*1024
            a(f"ds_read_b128 {vr(ACC+16*ct+4*src,4)}, v{vA+ct//3} offset:{o}")
    a("s_waitcnt lgkmcnt(0) vmcnt(0)")
    a(f"s_lshl_b32 s{sT}, s{sRB}, 2")
    a(f"s_add_u32 s{sT}, s{sT}, s{sCG}")
    a(f"s_mul_i32 s{sT}, s{sT}, 20")
    a(f"s_add_u32 s{sT}, s{sT}, s{sW}")
    a(f"s_lshl_b32 s{sT}, s{sT}, 10")
    a(f"s_add_u32 s{sT}, s{sT}, {WS_F2}")
    T4 = XS+4
    for ct in range(5):
        b = ACC+16*ct
        for j in range(4):
            a(f"v_add_f32 v{b+j}, v{b+j}, v{b+4+j}")
            a(f"v_add_f32 v{b+8+j}, v{b+8+j}, v{b+12+j}")
        for (src, t) in ((XB+2*ct, T4), (XB+10+2*ct, T4+4)):
            a(f"v_lshlrev_b32 v{t}, 16, v{src}")
            a(f"v_and_b32 v{t+1}, 0xffff0000, v{src}")
            a(f"v_lshlrev_b32 v{t+2}, 16, v{src+1}")
            a(f"v_and_b32 v{t+3}, 0xffff0000, v{src+1}")
        for j in range(4):
            a(f"v_add_f32 v{b+j}, v{b+j}, v{b+8+j}")
            a(f"v_add_f32 v{T4+j}, v{T4+j}, v{T4+4+j}")
        for j in range(4):
            a(f"v_add_f32 v{b+j}, v{b+j}, v{T4+j}")
        if ct == 1: a(f"s_add_u32 s{sT2}, s{sT}, 0")
        a(f"s_add_u32 s{sT2}, s{sT}, {ct*4096}")
        a(f"buffer_store_dwordx4 {vr(b,4)}, v{vX16}, s[{sWS}:{sWS+3}], s{sT2} offen")
    st.mark("epi")
    st.end(kidx, 28, sW, 4)
    a.label(f"{kn}_end")
    a("s_endpgm")
    return kn, a.text(), kernel_desc(kn, 128, 102), (256, 256, 81920)


def gen_post(kidx):
    a = Asm()
    kn = "post_kernel"
    sWO, sWS, sOut = 8, 12, 16
    sRB, sCG, sW, sT, sT2 = 20, 21, 22, 23, 24
    sSoffW, sLds, sKQ, sCH = 25, 26, 27, 30
    vLane, vH, vN = 1, 2, 3
    vW = 4
    vTr0, vTr1, vX16, vXo = 7, 8, 9, 10
    vT = 11
    X = 16
    WF = 56
    ACC = 68
    SLOT = 3072; NS = 3; WREG = SLOT*NS + 1024
    a(f"s_cmp_ge_u32 s2, 256")
    a(f"s_cbranch_scc1 {kn}_end")
    st = Stamps(a); st.start()
    a("s_load_dwordx2 s[4:5], s[0:1], 32")
    a("s_load_dwordx2 s[6:7], s[0:1], 80")
    a("s_load_dwordx2 s[28:29], s[0:1], 96")
    decode_wg(a, sRB, sCG, sT)
    a(f"v_and_b32 v{vLane}, 63, v0")
    a(f"v_lshrrev_b32 v{vT}, 6, v0")
    a(f"v_lshrrev_b32 v{vH}, 5, v{vLane}")
    a(f"v_readfirstlane_b32 s{sW}, v{vT}")
    a(f"v_and_b32 v{vN}, 31, v{vLane}")
    a(f"v_lshlrev_b32 v{vX16}, 4, v{vLane}")
    a(f"s_and_b32 s{sKQ}, s{sW}, 3")
    a(f"s_lshr_b32 s{sCH}, s{sW}, 2")
    a(f"s_mul_i32 s{sLds}, s{sW}, {WREG}")
    a(f"s_lshl_b32 s{sT}, s{sRB}, 5")
    a(f"v_add_u32 v{vT}, s{sT}, v{vN}")
    a(f"v_mul_u32_u24 v{vXo}, 1280, v{vT}")
    a(f"v_lshl_add_u32 v{vXo}, v{vH}, 4, v{vXo}")
    a(f"s_mul_i32 s{sT}, s{sKQ}, 320")
    a(f"s_add_u32 s{sT}, s{sT}, {WS_O}")
    a(f"v_add_u32 v{vXo}, s{sT}, v{vXo}")
    a(f"s_mul_i32 s{sSoffW}, s{sKQ}, {160*1280}")
    a(f"v_bfe_u32 v{vT}, v{vLane}, 2, 2")
    a(f"v_lshl_add_u32 v{vT+1}, v{vH}, 3, v{vT}")
    a(f"v_bfe_u32 v{vT+2}, v{vLane}, 4, 1")
    a(f"v_and_b32 v{vT+3}, 3, v{vLane}")
    a(f"v_lshlrev_b32 v{vT+3}, 3, v{vT+3}")
    a(f"v_lshl_add_u32 v{vT+2}, v{vT+2}, 5, v{vT+3}")
    L_ch1, L_go = f"{kn}_ch1", f"{kn}_go"
    a(f"s_cmp_eq_u32 s{sCH}, 1")
    a(f"s_cbranch_scc1 {L_ch1}")
    a(f"s_mul_i32 s{sT2}, s{sCG}, 320")
    for i in range(3):
        a(f"v_add_u32 v{vT+3}, {64*i}, v{vLane}")
        a(f"v_mul_u32_u24 v{vT+4}, 5462, v{vT+3}")
        a(f"v_lshrrev_b32 v{vT+4}, 16, v{vT+4}")
        a(f"v_mul_u32_u24 v{vW+i}, 12, v{vT+4}")
        a(f"v_sub_u32 v{vT+3}, v{vT+3}, v{vW+i}")
        a(f"v_lshlrev_b32 v{vT+3}, 4, v{vT+3}")
        a(f"v_mul_u32_u24 v{vT+4}, 1280, v{vT+4}")
        a(f"v_add3_u32 v{vW+i}, v{vT+3}, v{vT+4}, s{sT2}")
        if i: a(f"v_subrev_u32 v{vW+i}, {1024*i}, v{vW+i}")
    a(f"v_mul_u32_u24 v{vTr0}, 192, v{vT+1}")
    a(f"v_add3_u32 v{vTr0}, v{vTr0}, v{vT+2}, s{sLds}")
    a(f"s_branch {L_go}")
    a.label(L_ch1)
    a(f"s_mul_i32 s{sT2}, s{sCG}, 320")
    a(f"s_add_u32 s{sT2}, s{sT2}, 192")
    for i in range(2):
        a(f"v_lshrrev_b32 v{vT+4}, 3, v{vLane}")
        a(f"v_and_b32 v{vT+3}, 7, v{vLane}")
        a(f"v_bfe_u32 v{vW+2}, v{vLane}, 4, 1")
        a(f"v_lshlrev_b32 v{vW+2}, 2, v{vW+2}")
        a(f"v_xor_b32 v{vT+3}, v{vT+3}, v{vW+2}")
        a(f"v_lshlrev_b32 v{vT+3}, 4, v{vT+3}")
        if i: a(f"v_add_u32 v{vT+4}, 8, v{vT+4}")
        a(f"v_mul_u32_u24 v{vT+4}, 1280, v{vT+4}")
        a(f"v_add3_u32 v{vW+i}, v{vT+3}, v{vT+4}, s{sT2}")
        if i: a(f"v_subrev_u32 v{vW+i}, {1024*i}, v{vW+i}")
    a(f"v_lshlrev_b32 v{vTr0}, 7, v{vT+1}")
    a(f"v_add3_u32 v{vTr0}, v{vTr0}, v{vT+2}, s{sLds}")
    a(f"v_bfe_u32 v{vT+3}, v{vT}, 1, 1")
    a(f"v_lshlrev_b32 v{vT+3}, 6, v{vT+3}")
    a(f"v_add_u32 v{vTr1}, 64, v{vTr0}")
    a(f"v_sub_u32 v{vTr1}, v{vTr1}, v{vT+3}")
    a(f"v_add_u32 v{vTr0}, v{vTr0}, v{vT+3}")
    a.label(L_go)
    a("s_waitcnt lgkmcnt(0)")
    srd(a, sWO, 4, 5, 640*640*2)
    srd(a, sOut, 6, 7, NX)
    srd(a, sWS, 28, 29, WS_END)
    st.mark("setup")
    def body(nt, tag):
        pitch = 192 if nt == 3 else 128
        def dma(s):
            slot = s % NS
            a(f"s_add_u32 m0, s{sLds}, {slot*SLOT}")
            a("s_nop 0")
            for i in range(nt):
                a(f"buffer_load_dwordx4 v{vW+i}, s[{sWO}:{sWO+3}], s{sSoffW} offen offset:{1024*i} lds")
            a(f"s_add_u32 s{sSoffW}, s{sSoffW}, {16*1280}")
        for s in range(NS): dma(s)
        for s in range(10):
            a(f"buffer_load_dwordx4 {vr(X+4*s,4)}, v{vXo}, s[{sWS}:{sWS+3}], 0 offen offset:{32*s}")
        issued = [("W", s) for s in range(NS) for _ in range(nt)] + [("X", s) for s in range(10)]
        for s in range(10):
            last = max(i for i, e in enumerate(issued) if e == ("W", s) or e == ("X", s))
            a(f"s_waitcnt vmcnt({len(issued) - 1 - last})")
            slot = s % NS
            for ct in range(nt):
                if nt == 3:
                    a(f"ds_read_b64_tr_b16 v[{WF+4*ct}:{WF+4*ct+1}], v{vTr0} offset:{slot*SLOT + ct*64}")
                    a(f"ds_read_b64_tr_b16 v[{WF+4*ct+2}:{WF+4*ct+3}], v{vTr0} offset:{slot*SLOT + ct*64 + 4*192}")
                else:
                    t = vTr0 if ct == 0 else vTr1
                    a(f"ds_read_b64_tr_b16 v[{WF+4*ct}:{WF+4*ct+1}], v{t} offset:{slot*SLOT}")
                    a(f"ds_read_b64_tr_b16 v[{WF+4*ct+2}:{WF+4*ct+3}], v{t} offset:{slot*SLOT + 4*128}")
            for ct in range(nt):
                a(f"s_waitcnt lgkmcnt({2*(nt-1-ct)})")
                cin = "0" if s == 0 else vr(ACC+16*ct,16)
                a(f"v_mfma_f32_32x32x16_bf16 {vr(ACC+16*ct,16)}, {vr(WF+4*ct,4)}, {vr(X+4*s,4)}, {cin}")
            if s + NS < 10:
                dma(s + NS); issued += [("W", s+NS)]*nt
    L_b1, L_red = f"{kn}_b1", f"{kn}_red"
    a(f"s_cmp_eq_u32 s{sCH}, 1")
    a(f"s_cbranch_scc1 {L_b1}")
    body(3, "a")
    a(f"s_branch {L_red}")
    a.label(L_b1)
    body(2, "b")
    a.label(L_red)
    st.mark("kloop")
    a(f"s_lshl_b32 s{sT}, s{sRB}, 2")
    a(f"s_add_u32 s{sT}, s{sT}, s{sCG}")
    a(f"s_mul_i32 s{sT}, s{sT}, 20")
    a(f"s_mul_i32 s{sT2}, s{sCH}, 12")
    a(f"s_add_u32 s{sT}, s{sT}, s{sT2}")
    a(f"s_add_u32 s{sT}, s{sT}, s{sKQ}")
    a(f"s_lshl_b32 s{sT}, s{sT}, 10")
    a(f"s_add_u32 s{sT}, s{sT}, {WS_F2}")
    F = X
    for ct in range(3):
        a(f"s_add_u32 s{sT2}, s{sT}, {ct*4096}")
        a(f"buffer_load_dwordx4 {vr(F+4*ct,4)}, v{vX16}, s[{sWS}:{sWS+3}], s{sT2} offen")
    a("s_barrier")
    a.nop(12)
    vA = vT
    a(f"s_mul_i32 s{sT}, s{sCH}, 49152")
    a(f"s_lshl_b32 s{sT2}, s{sKQ}, 10")
    a(f"s_add_u32 s{sT2}, s{sT2}, s{sT}")
    a(f"v_add_u32 v{vA}, s{sT2}, v{vX16}")
    L_w2 = f"{kn}_w2"
    for ct in range(3):
        if ct == 2:
            a(f"s_cmp_eq_u32 s{sCH}, 1")
            a(f"s_cbranch_scc1 {L_w2}")
        for q in range(4):
            a(f"ds_write_b128 v{vA}, {vr(ACC+16*ct+4*q,4)} offset:{ct*16384 + q*4096}")
    a.label(L_w2)
    a("s_waitcnt lgkmcnt(0)")
    a("s_barrier")
    a(f"s_lshl_b32 s{sT2}, s{sKQ}, 12")
    a(f"s_add_u32 s{sT2}, s{sT2}, s{sT}")
    a(f"v_add_u32 v{vA}, s{sT2}, v{vX16}")
    a(f"s_lshl_b32 s{sT}, s{sRB}, 5")
    a(f"v_add_u32 v{vT+1}, s{sT}, v{vN}")
    a(f"v_mul_u32_u24 v{vT+1}, 1280, v{vT+1}")
    a(f"v_lshl_add_u32 v{vT+1}, v{vH}, 3, v{vT+1}")
    a(f"s_mul_i32 s{sT}, s{sCG}, 320")
    a(f"s_mul_i32 s{sT2}, s{sCH}, 192")
    a(f"s_add_u32 s{sT}, s{sT}, s{sT2}")
    a(f"s_lshl_b32 s{sT2}, s{sKQ}, 4")
    a(f"s_add_u32 s{sT}, s{sT}, s{sT2}")
    L_done = f"{kn}_done"
    for ct in range(3):
        if ct == 2:
            a(f"s_cmp_eq_u32 s{sCH}, 1")
            a(f"s_cbranch_scc1 {L_done}")
        b = ACC+16*ct
        for src in range(4):
            a(f"ds_read_b128 {vr(b+4*src,4)}, v{vA} offset:{ct*16384 + src*1024}")
        a("s_waitcnt lgkmcnt(0) vmcnt(0)")
        for j in range(4):
            a(f"v_add_f32 v{b+j}, v{b+j}, v{b+4+j}")
            a(f"v_add_f32 v{b+8+j}, v{b+8+j}, v{b+12+j}")
        for j in range(4):
            a(f"v_add_f32 v{b+j}, v{b+j}, v{F+4*ct+j}")
        for j in range(4):
            a(f"v_add_f32 v{b+j}, v{b+j}, v{b+8+j}")
        a(f"v_cvt_pk_bf16_f32 v{b+4}, v{b}, v{b+1}")
        a(f"v_cvt_pk_bf16_f32 v{b+5}, v{b+2}, v{b+3}")
        a(f"buffer_store_dwordx2 v[{b+4}:{b+5}], v{vT+1}, s[{sOut}:{sOut+3}], s{sT} offen offset:{64*ct}")
    a.label(L_done)
    st.mark("epi")
    st.end(kidx, 28, sW, 8)
    a.label(f"{kn}_end")
    a("s_endpgm")
    return kn, a.text(), kernel_desc(kn, 128, 102), (256, 512, 81920)

def assemble(kernels, path):
    hdr = "; generated by gen.py\n"
    for kn, _, _, (g, b, lds) in kernels:
        hdr += f"; @launch kernel={kn} grid=({g},1,1) block=({b},1,1) lds={lds}\n"
    s = hdr + '.amdgcn_target "amdgcn-amd-amdhsa--gfx950"\n.text\n'
    for kn, body, _, _ in kernels:
        s += kernel_header(kn) + body
    s += '.section .rodata,"a"\n'
    for kn, _, desc, _ in kernels:
        s += ".p2align 6\n" + desc
    open(path, "w").write(s)

if __name__ == "__main__":
    if "--prof" in sys.argv: PROF = True
    for x in sys.argv:
        if x.startswith("-D"):
            k, _, v = x[2:].partition("="); OPT[k] = int(v) if v else 1
    ks = [gen_qkv(), gen_attn(), gen_ffn1(2), gen_ffn2(3), gen_post(4)]
    assemble(ks, sys.argv[1] if len(sys.argv) > 1 else "k.s")
    if PROF:
        import json; json.dump(STAMP_NAMES, open("stamps.json", "w"))
```

```python
class Asm:
    def __init__(self):
        self.lines = []
        self.uid = 0
    def __call__(self, s):
        for l in s.strip("\n").split("\n"):
            self.lines.append("  " + l.strip() if not l.strip().endswith(":") else l.strip())
    def c(self, s):
        self.lines.append("  ; " + s)
    def label(self, name):
        self.lines.append(name + ":")
    def newlabel(self, p="L"):
        self.uid += 1
        return f"{p}_{self.uid}"
    def nop(self, n):
        while n > 0:
            k = min(n, 16)
            self.lines.append(f"  s_nop {k-1}")
            n -= k
    def text(self):
        return "\n".join(self.lines) + "\n"

def vr(base, n=1):
    return f"v{base}" if n == 1 else f"v[{base}:{base+n-1}]"
def sr(base, n=1):
    return f"s{base}" if n == 1 else f"s[{base}:{base+n-1}]"
def ar(base, n=1):
    return f"a{base}" if n == 1 else f"a[{base}:{base+n-1}]"

def f32bits(x):
    import struct
    return struct.unpack("<I", struct.pack("<f", x))[0]

def kernel_header(name):
    return f""".globl {name}
.p2align 8
.type {name},@function
{name}:
"""
def kernel_desc(name, vgpr, sgpr=102, accum=None):
    accum = accum or ((vgpr + 3) // 4 * 4)
    return f""".amdhsa_kernel {name}
  .amdhsa_next_free_vgpr {vgpr}
  .amdhsa_next_free_sgpr {sgpr}
  .amdhsa_accum_offset {accum}
  .amdhsa_group_segment_fixed_size 0
  .amdhsa_kernarg_size 104
  .amdhsa_user_sgpr_count 2
  .amdhsa_user_sgpr_kernarg_segment_ptr 1
  .amdhsa_system_sgpr_workgroup_id_x 1
.end_amdhsa_kernel
"""
def srd(a, dst, base_lo, base_hi, size, off=0):
    if off:
        a(f"s_add_u32 s{dst}, s{base_lo}, {off}")
        a(f"s_addc_u32 s{dst+1}, s{base_hi}, 0")
    else:
        a(f"s_mov_b32 s{dst}, s{base_lo}")
        a(f"s_mov_b32 s{dst+1}, s{base_hi}")
    a(f"s_mov_b32 s{dst+2}, {size}")
    a(f"s_mov_b32 s{dst+3}, 0x00020000")


class Cnt:
    def __init__(self, a, name, maxv):
        self.a, self.name, self.maxv = a, name, maxv
        self.ops = []
        self.done = 0
    def issue(self, tag, n=1):
        self.ops.extend([tag]*n)
    def need(self, *tags):
        idx = [i for i, t in enumerate(self.ops) if t in tags]
        if not idx: return
        last = max(idx)
        if last < self.done: return
        n = len(self.ops) - 1 - last
        assert n <= self.maxv, (self.name, n)
        self.a(f"s_waitcnt {self.name}({n})")
        self.done = last + 1
    def all(self):
        if self.done < len(self.ops):
            self.a(f"s_waitcnt {self.name}(0)")
            self.done = len(self.ops)
```

```python
import sys, math, json
from asmlib import *

NAME = "parallel_sum__grouped_kv_mqa__dense_activation_squared_relu__prompt"
KN = NAME + "_kernel"
WS_XF = 0x0
WS_R  = 0x280000
WS_KV = 0x290000
WS_OF = 0x2D0000
WS_H  = 0x550000
WS_FL = 0xB50000
WS_WF = 0xB90000
WS_END = 0xE40000
WS_DBG = 0x2000000
FL_KV, FL_D, FL_H, FL_O, FL_W = 0, 128, 640, 896, 1152
FL_N = 1408
FL_SIZE = FL_N * 128
NX = 2048 * 640 * 2
QSCALE = (20 ** -0.5) * math.log2(math.e)
DELTA = 96.0
LDS_BYTES = 81920
PROF = False
OPT = {}
SPIN_MAX = 200000

S_X, S_WQ, S_WK, S_WV, S_WO, S_W1, S_B1, S_W2, S_B2, S_OUT, S_DBG, S_WS = 4, 6, 8, 10, 12, 16, 18, 20, 22, 24, 26, 28
sW = 30
sTag = 31
R_WS = 32
R_FL = 36
R_A = 40
R_B = 44
R_C = 48
sRB, sCG, sT, sT2, sT3 = 52, 53, 54, 55, 56
vLane, vH, vN = 1, 2, 3

class Stamps:
    def __init__(self, a, role): self.a = a; self.n = 1; self.names = []; self.role = role
    def start(self):
        if not PROF: return
        for i in range(68, 94): self.a(f"s_mov_b32 s{i}, 0")
        self.a("s_memrealtime s[64:65]"); self.a("s_memtime s[66:67]"); self.a("s_waitcnt lgkmcnt(0)"); self.n = 2
    def mark(self, name):
        if not PROF: return
        assert self.n < 15
        self.a(f"s_memtime s[{64+2*self.n}:{65+2*self.n}]"); self.a("s_waitcnt lgkmcnt(0)")
        self.n += 1; self.names.append(name)
    def end(self):
        if not PROF: return
        a = self.a
        a("s_waitcnt vmcnt(0)")
        self.mark("final-drain")
        a("s_memrealtime s[94:95]"); a("s_waitcnt lgkmcnt(0)")
        a("s_mov_b64 exec, 1")
        a(f"s_lshl_b32 s98, s2, 3")
        a(f"s_add_u32 s98, s98, s{sW}")
        a(f"s_lshl_b32 s98, s98, 6")
        a(f"s_add_u32 s98, s98, {WS_DBG}")
        a(f"s_add_u32 s96, s{S_WS}, s98")
        a(f"s_addc_u32 s97, s{S_WS+1}, 0")
        a(f"v_mov_b32 v0, 0")
        for i in list(range(14)) + [15]:
            a(f"v_mov_b32 v1, s{64+2*i}")
            a(f"global_store_dword v0, v1, s[96:97] offset:{4*i}")
        a(f"v_mov_b32 v1, {self.n}")
        a(f"global_store_dword v0, v1, s[96:97] offset:56")
        a("s_waitcnt vmcnt(0)")
        STAMP_NAMES[self.role] = self.names
STAMP_NAMES = {}

def bf16_round(a, dst, src):
    a(f"v_cvt_pk_bf16_f32 v{dst}, v{src}, v{src}")
    a(f"v_lshlrev_b32 v{dst}, 16, v{dst}")

def decode_rb_cg(a, j):
    a(f"s_lshr_b32 s{sCG}, s{j}, 6")
    a(f"s_and_b32 s{sRB}, s{j}, 7")
    a(f"s_lshl_b32 s{sRB}, s{sRB}, 3")
    a(f"s_bfe_u32 s{sT}, s{j}, 0x30003")
    a(f"s_add_u32 s{sRB}, s{sRB}, s{sT}")

def get_tag(a, vt, lab):
    L = f"{lab}_tag"
    a(f"s_mov_b32 s{sT3}, {SPIN_MAX}")
    a(f"v_mov_b32 v{vt}, 0")
    a.label(L)
    a(f"global_load_dword v{vt+1}, v{vt}, s[{S_DBG}:{S_DBG+1}] sc1")
    a("s_waitcnt vmcnt(0)")
    a(f"v_readfirstlane_b32 s{sTag}, v{vt+1}")
    a(f"s_sub_u32 s{sT3}, s{sT3}, 1")
    a(f"s_cmp_eq_u32 s{sT3}, 0")
    a(f"s_cbranch_scc1 {L}_done")
    a(f"s_cmp_eq_u32 s{sTag}, 0")
    a(f"s_cbranch_scc0 {L}_done")
    a("s_sleep 1")
    a(f"s_branch {L}")
    a.label(f"{L}_done")

def poll_flags(a, vt, lab, s_idx, nflags, region, tries=None):
    if nflags == 128:
        poll_flags(a, vt, lab + "a", None, 64, region, tries)
        poll_flags(a, vt, lab + "b", None, 64, region + 64, tries)
        return
    L = f"{lab}_poll"
    a(f"v_lshlrev_b32 v{vt}, 7, v{vLane}")
    if s_idx is None:
        a(f"s_mov_b32 s63, {region*128}")
    else:
        a(f"s_lshl_b32 s63, s{s_idx}, 7")
        if region: a(f"s_add_u32 s63, s63, {region*128}")
    a(f"s_mov_b32 s{sT3}, {tries or SPIN_MAX}")
    a("s_mov_b64 s[100:101], exec")
    if nflags < 64:
        a(f"s_mov_b32 exec_lo, {(1 << min(nflags, 32)) - 1 if nflags < 32 else -1}")
        a(f"s_mov_b32 exec_hi, {((1 << (nflags - 32)) - 1) if nflags > 32 else 0}")
    a.label(L)
    a(f"buffer_load_dword v{vt+1}, v{vt}, s[{R_FL}:{R_FL+3}], s63 offen sc1")
    a("s_waitcnt vmcnt(0)")
    a(f"v_cmp_ne_u32 vcc, s{sTag}, v{vt+1}")
    a("s_nop 1")
    a(f"s_and_b64 exec, exec, vcc")
    a(f"s_cbranch_execz {L}_done")
    a(f"s_sub_u32 s{sT3}, s{sT3}, 1")
    a(f"s_cmp_eq_u32 s{sT3}, 0")
    a(f"s_cbranch_scc1 {L}_done")
    a(f"s_sleep {OPT.get('sleep', 2)}")
    a(f"s_branch {L}")
    a.label(f"{L}_done")
    a("s_mov_b64 exec, s[100:101]")

def set_flag(a, vt, s_idx, region):
    a(f"v_mov_b32 v{vt}, s{sTag}")
    a(f"v_mov_b32 v{vt+1}, 0")
    a(f"s_lshl_b32 s63, s{s_idx}, 7")
    if region: a(f"s_add_u32 s63, s63, {region*128}")
    a("s_mov_b64 s[100:101], exec")
    a("s_mov_b64 exec, 1")
    a(f"buffer_store_dword v{vt}, v{vt+1}, s[{R_FL}:{R_FL+3}], s63 offen sc1")
    a("s_mov_b64 exec, s[100:101]")

def tr_addr(a, dst, dst2, pitch, hrows, second_rows, s_base, t):
    a(f"v_bfe_u32 v{t}, v{vLane}, 2, 2")
    a(f"v_mul_u32_u24 v{t+1}, {hrows}, v{vH}")
    a(f"v_add_u32 v{t}, v{t}, v{t+1}")
    a(f"v_bfe_u32 v{t+1}, v{vLane}, 4, 1")
    a(f"v_and_b32 v{t+2}, 3, v{vLane}")
    a(f"v_lshlrev_b32 v{t+2}, 3, v{t+2}")
    a(f"v_lshl_add_u32 v{t+1}, v{t+1}, 5, v{t+2}")
    a(f"v_mul_u32_u24 v{dst}, {pitch}, v{t}")
    a(f"v_add3_u32 v{dst}, v{dst}, v{t+1}, s{s_base}")
    if dst2 is not None:
        a(f"v_add_u32 v{dst2}, {second_rows*pitch}, v{dst}")

def role_A(a):
    OPT["nopre0"] = 1
    st = Stamps(a, "A")
    st.start()
    XB = 0; XP = 1056; XH = 528; RBUF = 42240
    RING = 42496; NSTG = 3; RW = NSTG*1024; DEPTH = 16
    KSTG = 57856
    KVX = 67072
    LFL = XB + 512
    LFL2 = XB + 1040
    T4F = 75264
    SB = [0, 16384, 32768, 49152]
    QBUF = 65536; QP = 328
    sStep, sSoff, sLds, sRho, sWrap, sIt = 57, 58, 59, 60, 61, 57
    vT = 4
    vVo, vTr, vTr2, vX16 = 12, 13, 14, 15
    X = 16
    TMP = 36
    vSum, vSq, vM = 52, 53, 54
    vOne, vSelLo, vSelHi = 56, 57, 58
    vR, vXa, vWst, vTag = 9, 10, 11, 61
    ACC = 16; FB = 32; WS_ = 64
    a(f"s_mov_b32 s{sT2}, s2")
    decode_rb_cg(a, sT2)
    L_notag = "A_notag"
    a(f"s_cmp_lg_u32 s2, 0")
    a(f"s_cbranch_scc1 {L_notag}")
    a(f"s_cmp_lg_u32 s{sW}, 0")
    a(f"s_cbranch_scc1 {L_notag}")
    a(f"s_memrealtime s[62:63]")
    a("s_waitcnt lgkmcnt(0)")
    a(f"s_or_b32 s62, s62, 1")
    a(f"v_mov_b32 v{vT}, s62")
    a(f"v_mov_b32 v{vT+1}, 0")
    a("s_mov_b64 exec, 1")
    a(f"global_store_dword v{vT+1}, v{vT}, s[{S_DBG}:{S_DBG+1}] sc1")
    a("s_mov_b64 exec, -1")
    a.label(L_notag)
    srd(a, R_A, S_X, S_X+1, NX)
    a(f"s_lshl_b32 s{sT}, s{sRB}, 5")
    a(f"s_lshl_b32 s{sT2}, s{sW}, 2")
    a(f"s_add_u32 s{sT}, s{sT}, s{sT2}")
    a(f"v_lshrrev_b32 v{vT}, 4, v{vLane}")
    a(f"v_add_u32 v{vT}, s{sT}, v{vT}")
    a(f"v_mul_u32_u24 v{vT}, 1280, v{vT}")
    a(f"v_and_b32 v{vT+1}, 15, v{vLane}")
    a(f"v_lshl_add_u32 v{vT}, v{vT+1}, 4, v{vT}")
    for i in range(5):
        a(f"buffer_load_dwordx4 {vr(X+4*i,4)}, v{vT}, s[{R_A}:{R_A+3}], 0 offen offset:{256*i}")
    a(f"v_lshlrev_b32 v{vX16}, 4, v{vLane}")
    a(f"s_and_b32 s{sRho}, s{sRB}, 7")
    L_nowe = "A_nowe"
    a(f"s_cmp_lt_u32 s{sW}, 5")
    a(f"s_cbranch_scc1 {L_nowe}")
    a(f"s_cmp_ge_u32 s{sCG}, 2")
    a(f"s_cbranch_scc1 {L_nowe}")
    a(f"s_cmp_eq_u32 s{sCG}, 1")
    a(f"s_cselect_b32 s{R_B}, s{S_WV}, s{S_WK}")
    a(f"s_cselect_b32 s{R_B+1}, s{S_WV+1}, s{S_WK+1}")
    a(f"s_mov_b32 s{R_B+2}, {640*20*2}")
    a(f"s_mov_b32 s{R_B+3}, 0x00020000")
    a(f"s_sub_u32 s{sT}, s{sW}, 5")
    a(f"s_mul_i32 s{sStep}, s{sT}, 13")
    a(f"s_min_u32 s{sT}, s{sT}, 1")
    a(f"s_add_u32 s{sStep}, s{sStep}, s{sT}")
    a(f"s_mul_i32 s{sT}, s{sRho}, 5")
    a(f"s_add_u32 s{sT2}, s{sStep}, s{sT}")
    a(f"s_cmp_ge_u32 s{sT2}, 40")
    a(f"s_cselect_b32 s{sT}, 40, 0")
    a(f"s_sub_u32 s{sT2}, s{sT2}, s{sT}")
    a(f"s_mul_i32 s{sSoff}, s{sT2}, 640")
    for i in range(14):
        a(f"s_add_u32 s{sT}, s{sSoff}, 640")
        a(f"buffer_load_dwordx4 {vr(WS_+4*i,4)}, v{vX16}, s[{R_B}:{R_B+3}], s{sSoff} offen")
        a(f"s_cmp_eq_u32 s{sT}, 25600")
        a(f"s_cselect_b32 s{sSoff}, 0, s{sT}")
    a.label(L_nowe)
    a("s_barrier")
    L_nq = "A_nq"
    a(f"s_cmp_ge_u32 s{sW}, 5")
    a(f"s_cbranch_scc1 {L_nq}")
    srd(a, R_B, S_WQ, S_WQ+1, 640*640*2)
    a(f"v_lshrrev_b32 v{vT}, 2, v{vLane}")
    a(f"v_mul_u32_u24 v{vT}, 1280, v{vT}")
    a(f"v_and_b32 v{vT+1}, 3, v{vLane}")
    a(f"v_lshl_add_u32 v{vT}, v{vT+1}, 4, v{vT}")
    a(f"s_mul_i32 s{sT}, s{sCG}, 320")
    a(f"s_lshl_b32 s{sT2}, s{sW}, 6")
    a(f"s_add_u32 s{sT}, s{sT}, s{sT2}")
    a(f"v_add_u32 v{vVo}, s{sT}, v{vT}")
    a(f"s_mul_i32 s{sLds}, s{sW}, {RW}")
    a(f"s_add_u32 s{sLds}, s{sLds}, {RING}")
    a(f"s_mul_i32 s{sSoff}, s{sRho}, {5*20480}")
    def wload(k):
        d = WS_ + 4*(k % DEPTH)
        a(f"s_add_u32 s{sT}, s{sSoff}, 20480")
        a(f"buffer_load_dwordx4 {vr(d,4)}, v{vVo}, s[{R_B}:{R_B+3}], s{sSoff} offen")
        a(f"s_cmp_eq_u32 s{sT}, {40*20480}")
        a(f"s_cselect_b32 s{sSoff}, 0, s{sT}")
    NW0 = OPT.get("NW0", 8)
    for k in range(NW0): wload(k)
    tr_addr(a, vTr, vTr2, 64, 8, 4, sLds, vT)
    a(f"v_add_u32 v{vWst}, s{sLds}, v{vX16}")
    a(f"s_waitcnt vmcnt({NW0})")
    a(f"s_branch A_xok")
    a.label(L_nq)
    a(f"s_waitcnt vmcnt(14)")
    a(f"s_cmp_lt_u32 s{sCG}, 2")
    a(f"s_cbranch_scc1 A_xok2")
    a(f"s_waitcnt vmcnt(0)")
    a.label("A_xok2")
    a(f"v_mov_b32 v{vT}, 0")
    a(f"global_load_dword v{vTag}, v{vT}, s[{S_DBG}:{S_DBG+1}] sc1")
    a.label("A_xok")
    st.mark("xwait")
    a(f"v_mov_b32 v{vOne}, 0x3f803f80")
    a(f"v_mov_b32 v{vSelLo}, 0x00003f80")
    a(f"v_mov_b32 v{vSelHi}, 0x3f800000")
    for i in range(4): a(f"v_mov_b32 v{TMP+i}, 0")
    for i in range(20):
        a(f"v_dot2c_f32_bf16 v{TMP+(i%2)}, v{X+i}, v{vOne}")
        a(f"v_dot2c_f32_bf16 v{TMP+2+(i%2)}, v{X+i}, v{X+i}")
    a(f"v_lshrrev_b32 v{vT}, 4, v{vLane}")
    a(f"s_lshl_b32 s{sT}, s{sW}, 2")
    a(f"v_add_u32 v{vT}, s{sT}, v{vT}")
    a(f"v_and_b32 v{vT+1}, 1, v{vLane}")
    a(f"v_mul_u32_u24 v{vT+1}, {XH}, v{vT+1}")
    a(f"v_lshl_add_u32 v{vT+1}, v{vT}, 4, v{vT+1}")
    a(f"v_add_f32 v{vSum}, v{TMP}, v{TMP+1}")
    a(f"v_add_f32 v{vSq}, v{TMP+2}, v{TMP+3}")
    a(f"v_bfe_u32 v{vT+2}, v{vLane}, 1, 3")
    a(f"s_mul_i32 s{sT}, s{sRho}, 5")
    a(f"s_sub_u32 s{sT}, 40, s{sT}")
    for ror in (8, 4, 2, 1):
        a(f"v_add_f32_dpp v{vSum}, v{vSum}, v{vSum} row_ror:{ror} row_mask:0xf bank_mask:0xf")
        a(f"v_add_f32_dpp v{vSq}, v{vSq}, v{vSq} row_ror:{ror} row_mask:0xf bank_mask:0xf")
        if ror != 1: a.nop(1)
    a(f"v_add_u32 v{vT+2}, s{sT}, v{vT+2}")
    inv = f32bits(1.0/640)
    a(f"v_mul_f32 v{vM}, {inv}, v{vSum}")
    a(f"v_mul_f32 v{TMP+1}, {inv}, v{vSq}")
    a(f"v_fma_f32 v{TMP+1}, -v{vM}, v{vM}, v{TMP+1}")
    a(f"v_max_f32 v{TMP+1}, 0, v{TMP+1}")
    bf16_round(a, TMP+1, TMP+1)
    bf16_round(a, vM, vM)
    a(f"v_add_f32 v{TMP+1}, {f32bits(1e-5)}, v{TMP+1}")
    a(f"v_sub_f32 v{vM}, 0, v{vM}")
    bf16_round(a, TMP+1, TMP+1)
    a(f"v_sqrt_f32 v{vSum}, v{TMP+1}")
    for base in range(0, 20, 8):
        g = min(8, 20-base)
        for i in range(g):
            a(f"v_dot2_f32_bf16 v{TMP+2*i}, v{X+base+i}, v{vSelLo}, v{vM}")
            a(f"v_dot2_f32_bf16 v{TMP+2*i+1}, v{X+base+i}, v{vSelHi}, v{vM}")
        if base == 0:
            bf16_round(a, vSum, vSum)
            a(f"v_rcp_f32 v{vR}, v{vSum}")
        else:
            a.nop(3)
        for i in range(g):
            a(f"v_cvt_pk_bf16_f32 v{X+base+i}, v{TMP+2*i}, v{TMP+2*i+1}")
    a(f"v_lshlrev_b32 v{vT+3}, 2, v{vT}")
    a(f"ds_write_b32 v{vT+3}, v{vR} offset:{RBUF}")
    for i in range(5):
        if i: a(f"v_add_u32 v{vT+2}, 8, v{vT+2}")
        a(f"v_subrev_u32 v{vT+3}, 40, v{vT+2}")
        a(f"v_min_u32 v{vT+3}, v{vT+3}, v{vT+2}")
        a(f"v_mul_u32_u24 v{vT+3}, {XP}, v{vT+3}")
        a(f"v_add_u32 v{vT+3}, v{vT+3}, v{vT+1}")
        a(f"ds_write_b128 v{vT+3}, {vr(X+4*i,4)} offset:{XB}")
    a(f"v_mul_u32_u24 v{vXa}, {XH}, v{vH}")
    a(f"v_lshl_add_u32 v{vXa}, v{vN}, 4, v{vXa}")
    a(f"s_cmp_ge_u32 s{sW}, 5")
    a(f"s_cbranch_scc1 A_ln5")
    for k in range(NW0, 10): wload(k)
    a(f"s_cmp_eq_u32 s{sW}, 4")
    a(f"s_cbranch_scc1 A_lnb")
    for k in range(10, DEPTH): wload(k)
    a(f"s_branch A_lnb")
    a.label("A_ln5")
    a(f"v_mov_b32 v{vT}, {LFL}")
    for i in range(4): a(f"v_mov_b32 v{TMP+i}, 0")
    a(f"ds_write_b128 v{vT}, v[{TMP}:{TMP+3}]")
    a(f"ds_write_b128 v{vT}, v[{TMP}:{TMP+3}] offset:{LFL2-LFL}")
    a("s_waitcnt vmcnt(0)")
    a(f"v_readfirstlane_b32 s{sTag}, v{vTag}")
    a.label("A_lnb")
    a("s_waitcnt lgkmcnt(0)")
    a("s_barrier")
    a(f"v_lshlrev_b32 v{vT}, 2, v{vN}")
    a(f"ds_read_b32 v{vR}, v{vT} offset:{RBUF}")
    st.mark("LN")
    def ensure_tag(lab):
        a(f"s_cmp_lg_u32 s{sTag}, 0")
        a(f"s_cbranch_scc1 {lab}_have")
        get_tag(a, vT, lab)
        a.label(f"{lab}_have")
    L_kvp, L_exp, L_bar1 = "A_kvp", "A_exp", "A_bar1"
    a(f"s_cmp_ge_u32 s{sW}, 5")
    a(f"s_cbranch_scc1 {L_kvp}")
    a(f"s_cmp_eq_u32 s{sW}, 4")
    a(f"s_cbranch_scc1 A_job4")
    if OPT.get("noq"): a(f"s_branch {L_bar1}")
    def pipe_gemm(nsteps, wr, rd, need_vm, refill, cin0):
        for k in range(5):
            if k < nsteps:
                need_vm(k, -5 + k)
                wr(k)
            if 0 <= k - 2 < nsteps: rd(k - 2)
        for s_ in range(nsteps):
            n_ops = 0
            if s_ + 5 < nsteps:
                need_vm(s_ + 5, s_)
                wr(s_ + 5)
            if s_ + 3 < nsteps: rd(s_ + 3)
            for t in range(s_ + 1, s_ + 4):
                if t + 2 < nsteps: n_ops += 1
                if t < nsteps: n_ops += 3
            a(f"s_waitcnt lgkmcnt({n_ops})")
            f = FB + 8*(s_ % 4)
            cin = cin0 if s_ == 0 else vr(ACC, 16)
            a(f"v_mfma_f32_32x32x16_bf16 {vr(ACC,16)}, {vr(f,4)}, {vr(f+4,4)}, {cin}")
            refill(s_)
    def q_wr(k): a(f"ds_write_b128 v{vWst}, {vr(WS_+4*(k % DEPTH),4)} offset:{(k % NSTG)*1024}")
    def q_rd(k):
        f = FB + 8*(k % 4)
        a(f"ds_read_b64_tr_b16 v[{f}:{f+1}], v{vTr} offset:{(k % NSTG)*1024}")
        a(f"ds_read_b64_tr_b16 v[{f+2}:{f+3}], v{vTr2} offset:{(k % NSTG)*1024}")
        a(f"ds_read_b128 {vr(f+4,4)}, v{vXa} offset:{XB + k*XP}")
    def q_vm(k, s_now):
        issued = DEPTH + max(0, min(s_now, 40 - DEPTH + QOFF) - QOFF) if s_now > 0 else DEPTH
        issued = min(issued, 40)
        a(f"s_waitcnt vmcnt({issued - 1 - k})")
    QOFF = 0
    def q_refill(s_):
        if s_ + DEPTH < 40: wload(s_ + DEPTH)
    pipe_gemm(40, q_wr, q_rd, q_vm, q_refill, "0")
    st.mark("gemm")
    a.nop(12)
    a(f"v_mul_f32 v{vT}, {f32bits(QSCALE)}, v{vR}")
    for j in range(16): a(f"v_mul_f32 v{ACC+j}, v{ACC+j}, v{vT}")
    for k in range(8): a(f"v_cvt_pk_bf16_f32 v{TMP+k}, v{ACC+2*k}, v{ACC+2*k+1}")
    a(f"s_branch {L_bar1}")

    JW = WS_ + 20
    def job_loads():
        srd(a, R_B, S_WQ, S_WQ+1, 640*640*2)
        a(f"v_lshrrev_b32 v{vT}, 2, v{vLane}")
        a(f"v_mul_u32_u24 v{vT}, 1280, v{vT}")
        a(f"v_and_b32 v{vT+1}, 3, v{vLane}")
        a(f"v_lshl_add_u32 v{vT}, v{vT+1}, 4, v{vT}")
        a(f"s_mul_i32 s{sT}, s{sCG}, 320")
        a(f"s_add_u32 s{sT}, s{sT}, 256")
        a(f"v_add_u32 v{vT}, s{sT}, v{vT}")
        a(f"s_sub_u32 s{sT}, s{sW}, 4")
        a(f"s_mul_i32 s{sT}, s{sT}, 10")
        a(f"s_mul_i32 s{sT2}, s{sRho}, 5")
        a(f"s_add_u32 s{sT}, s{sT}, s{sT2}")
        a(f"s_cmp_ge_u32 s{sT}, 40")
        a(f"s_cselect_b32 s{sT2}, 40, 0")
        a(f"s_sub_u32 s{sT}, s{sT}, s{sT2}")
        a(f"s_mul_i32 s{sSoff}, s{sT}, 20480")
        for k in range(10):
            a(f"s_add_u32 s{sT}, s{sSoff}, 20480")
            a(f"buffer_load_dwordx4 {vr(JW+4*k,4)}, v{vT}, s[{R_B}:{R_B+3}], s{sSoff} offen")
            a(f"s_cmp_eq_u32 s{sT}, {40*20480}")
            a(f"s_cselect_b32 s{sSoff}, 0, s{sT}")
    def job_run(raw, vm_after):
        tr_addr(a, vTr, vTr2, 64, 8, 4, sLds, vT)
        a(f"v_add_u32 v{vWst}, s{sLds}, v{vX16}")
        a(f"s_sub_u32 s{sT}, s{sW}, 4")
        a(f"s_mul_i32 s{sT}, s{sT}, {10*XP}")
        a(f"v_add_u32 v{vVo}, s{sT}, v{vXa}")
        def j_wr(k): a(f"ds_write_b128 v{vWst}, {vr(raw+4*k,4)} offset:{(k % NSTG)*1024}")
        def j_rd(k):
            f = FB + 8*(k % 4)
            a(f"ds_read_b64_tr_b16 v[{f}:{f+1}], v{vTr} offset:{(k % NSTG)*1024}")
            a(f"ds_read_b64_tr_b16 v[{f+2}:{f+3}], v{vTr2} offset:{(k % NSTG)*1024}")
            a(f"ds_read_b128 {vr(f+4,4)}, v{vVo} offset:{k*XP}")
        def j_vm(k, s_): a(f"s_waitcnt vmcnt({9 - k + vm_after})")
        pipe_gemm(10, j_wr, j_rd, j_vm, lambda s_: None, "0")
        a("s_waitcnt lgkmcnt(0)")
        a.nop(12)
    def job_publish():
        Lp5, Lpd = a.newlabel("A_jp5"), a.newlabel("A_jpd")
        a(f"s_cmp_eq_u32 s{sW}, 5")
        a(f"s_cbranch_scc1 {Lp5}")
        for q in range(3): a(f"ds_write_b128 v{vWst}, {vr(ACC+4*q,4)} offset:{q*1024}")
        a(f"s_sub_u32 s{sT}, s{sW}, 6")
        a(f"s_lshl_b32 s{sT}, s{sT}, 10")
        a(f"s_add_u32 s{sT}, s{sT}, {T4F}")
        a(f"v_add_u32 v{vT}, s{sT}, v{vX16}")
        a(f"ds_write_b128 v{vT}, {vr(ACC+12,4)}")
        a(f"s_branch {Lpd}")
        a.label(Lp5)
        a(f"v_add_u32 v{vT}, {KVX+4096}, v{vX16}")
        for q in range(4): a(f"ds_write_b128 v{vT}, {vr(ACC+4*q,4)} offset:{q*1024}")
        a.label(Lpd)
        a(f"s_sub_u32 s{sT}, s{sW}, 5")
        a(f"s_lshl_b32 s{sT}, s{sT}, 2")
        a(f"s_add_u32 s{sT}, s{sT}, {LFL2}")
        a(f"v_mov_b32 v{vT}, s{sT}")
        a(f"v_mov_b32 v{vT+1}, 1")
        a(f"ds_write_b32 v{vT}, v{vT+1}")
    a.label("A_job4")
    job_run(WS_, 0)
    a(f"v_mov_b32 v{vT}, {LFL2}")
    a(f"s_mov_b32 s{sT3}, {SPIN_MAX}")
    a.label("A_j4spin")
    a(f"ds_read_b96 v[{vT+2}:{vT+4}], v{vT}")
    a("s_waitcnt lgkmcnt(0)")
    a(f"v_and_b32 v{vT+2}, v{vT+2}, v{vT+3}")
    a(f"v_and_b32 v{vT+2}, v{vT+2}, v{vT+4}")
    a("s_nop 0")
    a(f"v_readfirstlane_b32 s{sT}, v{vT+2}")
    a(f"s_sub_u32 s{sT3}, s{sT3}, 1")
    a(f"s_cmp_eq_u32 s{sT3}, 0")
    a(f"s_cbranch_scc1 A_j4spin_done")
    a(f"s_cmp_eq_u32 s{sT}, 1")
    a(f"s_cbranch_scc0 A_j4spin")
    a.label("A_j4spin_done")
    a(f"v_add_u32 v{vT}, {KVX+4096}, v{vX16}")
    a(f"v_add_u32 v{vT+1}, {KSTG+3072}, v{vX16}")
    a(f"v_add_u32 v{vT+2}, {T4F}, v{vX16}")
    for q in range(4): a(f"ds_read_b128 {vr(64+4*q,4)}, v{vT} offset:{q*1024}")
    for p_ in range(2):
        for q in range(3): a(f"ds_read_b128 {vr(80+16*p_+4*q,4)}, v{vT+1} offset:{p_*3072 + q*1024}")
        a(f"ds_read_b128 {vr(80+16*p_+12,4)}, v{vT+2} offset:{p_*1024}")
    a("s_waitcnt lgkmcnt(0)")
    for j in range(16): a(f"v_add_f32 v{64+j}, v{64+j}, v{80+j}")
    for j in range(16): a(f"v_add_f32 v{ACC+j}, v{ACC+j}, v{96+j}")
    for j in range(16): a(f"v_add_f32 v{ACC+j}, v{ACC+j}, v{64+j}")
    st.mark("job4")
    a(f"v_mul_f32 v{vT}, {f32bits(QSCALE)}, v{vR}")
    for j in range(16): a(f"v_mul_f32 v{ACC+j}, v{ACC+j}, v{vT}")
    for k in range(8): a(f"v_cvt_pk_bf16_f32 v{TMP+k}, v{ACC+2*k}, v{ACC+2*k+1}")
    a(f"s_branch {L_bar1}")
    a.label(L_kvp)
    a("s_setprio 3")
    a(f"s_cmp_ge_u32 s{sCG}, 2")
    a(f"s_cbranch_scc1 A_kvp_skip")
    a(f"s_sub_u32 s{sT}, s{sW}, 5")
    a(f"s_mul_i32 s{sLds}, s{sT}, 3072")
    a(f"s_add_u32 s{sLds}, s{sLds}, {KSTG}")
    tr_addr(a, vTr, vTr2, 40, 8, 4, sLds, vT)
    a(f"v_add_u32 v{vWst}, s{sLds}, v{vX16}")
    a(f"s_mul_i32 s{sT}, s{sStep}, {XP}")
    a(f"v_add_u32 v{vVo}, s{sT}, v{vXa}")
    a(f"v_add_u32 v{vT+4}, {13*XP}, v{vVo}")
    a(f"s_cmp_eq_u32 s{sW}, 5")
    a(f"s_cbranch_scc1 A_kv13")
    for i in range(4): a(f"v_mov_b32 v{WS_+52+i}, 0")
    a(f"v_mov_b32 v{vT+4}, v{vXa}")
    a.label("A_kv13")
    def k_wr(k): a(f"ds_write_b128 v{vWst}, {vr(WS_+4*k,4)} offset:{(k % NSTG)*1024}")
    def k_rd(k):
        f = FB + 8*(k % 4)
        a(f"ds_read_b64_tr_b16 v[{f}:{f+1}], v{vTr} offset:{(k % NSTG)*1024}")
        a(f"ds_read_b64_tr_b16 v[{f+2}:{f+3}], v{vTr2} offset:{(k % NSTG)*1024}")
        if k == 13: a(f"ds_read_b128 {vr(f+4,4)}, v{vT+4}")
        else: a(f"ds_read_b128 {vr(f+4,4)}, v{vVo} offset:{k*XP}")
    pipe_gemm(14, k_wr, k_rd, lambda k, s_: None, lambda s_: None, "0")
    a("s_waitcnt lgkmcnt(0)")
    job_loads()
    a(f"s_cmp_eq_u32 s{sW}, 5")
    a(f"s_cbranch_scc1 A_kv5")
    a(f"s_sub_u32 s{sT}, s{sW}, 6")
    a(f"s_lshl_b32 s{sT}, s{sT}, 12")
    a(f"s_add_u32 s{sT}, s{sT}, {KVX}")
    a(f"v_add_u32 v{vT}, s{sT}, v{vX16}")
    for q in range(4):
        a(f"ds_write_b128 v{vT}, {vr(ACC+4*q,4)} offset:{q*1024}")
    a(f"s_sub_u32 s{sT}, s{sW}, 6")
    a(f"s_lshl_b32 s{sT}, s{sT}, 2")
    a(f"s_add_u32 s{sT}, s{sT}, {LFL}")
    a(f"v_mov_b32 v{vT}, s{sT}")
    a(f"v_mov_b32 v{vT+1}, 1")
    a(f"ds_write_b32 v{vT}, v{vT+1}")
    a(f"s_branch A_kvp_done")
    a.label("A_kv5")
    a(f"v_mov_b32 v{vT}, {LFL}")
    a(f"s_mov_b32 s{sT3}, {SPIN_MAX}")
    a.label("A_kvspin")
    a(f"ds_read_b64 v[{vT+2}:{vT+3}], v{vT}")
    a("s_waitcnt lgkmcnt(0)")
    a(f"v_and_b32 v{vT+2}, v{vT+2}, v{vT+3}")
    a("s_nop 0")
    a(f"v_readfirstlane_b32 s{sT}, v{vT+2}")
    a(f"s_sub_u32 s{sT3}, s{sT3}, 1")
    a(f"s_cmp_eq_u32 s{sT3}, 0")
    a(f"s_cbranch_scc1 A_kvspin_done")
    a(f"s_cmp_eq_u32 s{sT}, 1")
    a(f"s_cbranch_scc0 A_kvspin")
    a.label("A_kvspin_done")
    a(f"v_add_u32 v{vT}, {KVX}, v{vX16}")
    for p_ in range(2):
        for q in range(4):
            a(f"ds_read_b128 {vr(FB+16*p_+4*q,4)}, v{vT} offset:{p_*4096 + q*1024}")
    a("s_waitcnt lgkmcnt(0)")
    for j in range(16):
        a(f"v_add_f32 v{FB+j}, v{FB+j}, v{FB+16+j}")
    for j in range(16):
        a(f"v_add_f32 v{ACC+j}, v{ACC+j}, v{FB+j}")
    for j in range(16): a(f"v_mul_f32 v{ACC+j}, v{ACC+j}, v{vR}")
    a(f"v_cmp_eq_u32 vcc, 1, v{vH}")
    a(f"v_mov_b32 v{vT}, 1.0")
    a(f"v_mov_b32 v{vT+1}, 0")
    a(f"v_cndmask_b32 v{ACC+8}, v{ACC+8}, v{vT}, vcc")
    for j in range(9, 12): a(f"v_cndmask_b32 v{ACC+j}, v{ACC+j}, v{vT+1}, vcc")
    for j in range(12, 16): a(f"v_mov_b32 v{ACC+j}, 0")
    for k in range(8): a(f"v_cvt_pk_bf16_f32 v{TMP+k}, v{ACC+2*k}, v{ACC+2*k+1}")
    a(f"s_lshl_b32 s{sT}, s{sRB}, 12")
    a(f"s_add_u32 s{sT}, s{sT}, {WS_KV}")
    L_v = "A_v"; L_kvdone = "A_kvdone"
    a(f"s_cmp_eq_u32 s{sCG}, 1")
    a(f"s_cbranch_scc1 {L_v}")
    a(f"buffer_store_dwordx4 {vr(TMP,4)}, v{vX16}, s[{R_WS}:{R_WS+3}], s{sT} offen sc1")
    a(f"v_lshlrev_b32 v{vT}, 3, v{vLane}")
    a(f"buffer_store_dwordx2 v[{TMP+4}:{TMP+5}], v{vT}, s[{R_WS}:{R_WS+3}], s{sT} offen offset:1024 sc1")
    a(f"s_branch {L_kvdone}")
    a.label(L_v)
    a(f"s_mov_b32 s{sLds}, {KVX}")
    a(f"v_lshlrev_b32 v{vT}, 6, v{vN}")
    a(f"v_lshl_add_u32 v{vT}, v{vH}, 3, v{vT}")
    a(f"v_add_u32 v{vT}, s{sLds}, v{vT}")
    for q in range(4):
        a(f"ds_write_b64 v{vT}, v[{TMP+2*q}:{TMP+2*q+1}] offset:{16*q}")
    tr_addr(a, vTr, None, 64, 4, 8, sLds, vT+1)
    for u in range(2):
        a(f"ds_read_b64_tr_b16 v[{TMP+8+4*u}:{TMP+9+4*u}], v{vTr} offset:{u*1024}")
        a(f"ds_read_b64_tr_b16 v[{TMP+10+4*u}:{TMP+11+4*u}], v{vTr} offset:{u*1024 + 512}")
    a("s_waitcnt lgkmcnt(0)")
    a(f"buffer_store_dwordx4 {vr(TMP+8,4)}, v{vX16}, s[{R_WS}:{R_WS+3}], s{sT} offen offset:2048 sc1")
    a(f"buffer_store_dwordx4 {vr(TMP+12,4)}, v{vX16}, s[{R_WS}:{R_WS+3}], s{sT} offen offset:3072 sc1")
    a.label(L_kvdone)
    a(f"s_mov_b32 s{sLds}, {KSTG}")
    job_run(JW, 2)
    job_publish()
    ensure_tag("A5")
    a("s_waitcnt vmcnt(0)")
    st.mark("k5:drain")
    a(f"s_lshl_b32 s{sT}, s{sRB}, 1")
    a(f"s_add_u32 s{sT}, s{sT}, s{sCG}")
    set_flag(a, vT, sT, FL_KV)
    a(f"s_branch {L_bar1}")
    a.label("A_kvp_skip")
    job_loads()
    a(f"s_cmp_lg_u32 s{sW}, 5")
    a(f"s_cbranch_scc1 A_kvp_done")
    a(f"s_mov_b32 s{sLds}, {KSTG}")
    job_run(JW, 0)
    job_publish()
    a(f"s_branch {L_bar1}")
    a.label("A_kvp_done")
    a(f"s_mul_i32 s{sT}, s{sCG}, 2")
    a(f"s_add_u32 s{sT}, s{sT}, s{sW}")
    a(f"s_sub_u32 s{sT}, s{sT}, 6")
    a(f"s_sub_u32 s{sT2}, s{sT}, s{sRho}")
    a(f"s_and_b32 s{sT2}, s{sT2}, 7")
    a(f"s_mul_i32 s{sT2}, s{sT2}, {5*XP}")
    a(f"v_add_u32 v{vT}, s{sT2}, v{vXa}")
    for i in range(5):
        a(f"ds_read_b128 {vr(WS_+4*i,4)}, v{vT} offset:{XB + XP*i}")
    a(f"s_mul_i32 s{sT2}, s{sRB}, 40")
    a(f"s_mul_i32 s{sStep}, s{sT}, 5")
    a(f"s_add_u32 s{sT2}, s{sT2}, s{sStep}")
    a(f"s_lshl_b32 s{sT2}, s{sT2}, 10")
    if WS_XF: a(f"s_add_u32 s{sT2}, s{sT2}, {WS_XF}")
    a(f"s_lshl_b32 s{sSoff}, s{sRB}, 3")
    a(f"s_add_u32 s{sSoff}, s{sSoff}, s{sT}")
    a(f"v_add_u32 v{vT+1}, 4096, v{vX16}")
    a("s_waitcnt lgkmcnt(0)")
    for i in range(4):
        a(f"buffer_store_dwordx4 {vr(WS_+4*i,4)}, v{vX16}, s[{R_WS}:{R_WS+3}], s{sT2} offen offset:{1024*i} sc1")
    a(f"buffer_store_dwordx4 {vr(WS_+16,4)}, v{vT+1}, s[{R_WS}:{R_WS+3}], s{sT2} offen sc1")
    L_nor = "A_nor"
    a(f"s_cmp_lg_u32 s{sT}, 0")
    a(f"s_cbranch_scc1 {L_nor}")
    a(f"s_lshl_b32 s{sT2}, s{sRB}, 7")
    a(f"s_add_u32 s{sT2}, s{sT2}, {WS_R}")
    a(f"v_lshlrev_b32 v{vT}, 2, v{vN}")
    a(f"buffer_store_dword v{vR}, v{vT}, s[{R_WS}:{R_WS+3}], s{sT2} offen sc1")
    a.label(L_nor)
    a(f"s_mov_b32 s{sWrap}, s{sSoff}")
    a(f"s_sub_u32 s{sT}, s{sW}, 5")
    a(f"s_mul_i32 s{sLds}, s{sT}, 3072")
    a(f"s_add_u32 s{sLds}, s{sLds}, {KSTG}")
    job_run(JW, 5)
    job_publish()
    ensure_tag("A6")
    a("s_waitcnt vmcnt(0)")
    st.mark("x:drain")
    set_flag(a, vT, sWrap, FL_D)
    a(f"s_cmp_eq_u32 s{sW}, 7")
    a(f"s_cbranch_scc0 {L_bar1}")
    poll_flags(a, vT, "A7", None, 128, FL_KV)
    st.mark("kvpoll")
    srd(a, R_A, S_WS, S_WS+1, 262144, WS_KV)
    a(f"v_lshlrev_b32 v{vT}, 7, v{vLane}")
    for g in range(6):
        a(f"s_mov_b32 s{sT}, {g*8192}")
        a(f"buffer_load_dword v0, v{vT}, s[{R_A}:{R_A+3}], s{sT} offen")
    a(f"s_branch A_bar1_nowait")
    a.label(L_bar1)
    a("s_waitcnt vmcnt(0)")
    a.label("A_bar1_nowait")
    a("s_setprio 0")
    a("s_waitcnt lgkmcnt(0)")
    a("s_barrier")
    st.mark("bar1")
    vA16, vA8, vDma, vA16b, vA8b = vX16, 13, 14, 12, 111
    S = [16, 32]
    O = 48
    P = 96
    Q1, Q2 = 104, 108
    K1, K2 = 112, 116
    V1, V2 = 120, 124
    vM2 = 110
    sSoffK, sLdsW = 58, 59
    srd(a, R_A, S_WS, S_WS+1, 262144, WS_KV)
    a(f"s_lshl_b32 s{sLdsW}, s{sW}, 11")
    a(f"v_add_u32 v{vDma}, s{sLdsW}, v{vA16}")
    a(f"v_lshlrev_b32 v{vA8}, 3, v{vLane}")
    a(f"v_add_u32 v{vA16b}, 32768, v{vA16}")
    a(f"v_add_u32 v{vA8b}, 32768, v{vA8}")
    def dma_chunk(slot):
        a(f"s_add_u32 m0, s{sLdsW}, {SB[slot]}")
        a("s_nop 0")
        a(f"buffer_load_dwordx4 v{vDma}, s[{R_A}:{R_A+3}], s{sSoffK} offen sc1 lds")
        a(f"buffer_load_dwordx4 v{vDma}, s[{R_A}:{R_A+3}], s{sSoffK} offen offset:1024 sc1 lds")
        a(f"s_add_u32 s{sSoffK}, s{sSoffK}, 16384")
    if OPT.get("nopre0"):
        a(f"s_mov_b32 s{sSoffK}, 0")
        for c in (0, 1, 2): dma_chunk(c)
    else:
        a(f"s_mov_b32 s{sSoffK}, 16384")
        for c in (1, 2): dma_chunk(c)
    L_noqw = "A_noqw"
    a(f"v_mul_u32_u24 v{vT}, {QP}, v{vN}")
    a(f"v_add_u32 v{vT}, {QBUF}, v{vT}")
    a(f"s_cmp_ge_u32 s{sW}, 5")
    a(f"s_cbranch_scc1 {L_noqw}")
    a(f"s_lshl_b32 s{sT}, s{sW}, 6")
    a(f"v_lshl_add_u32 v{vT+1}, v{vH}, 3, v{vT}")
    a(f"v_add_u32 v{vT+1}, s{sT}, v{vT+1}")
    for q in range(4):
        a(f"ds_write_b64 v{vT+1}, v[{TMP+2*q}:{TMP+2*q+1}] offset:{16*q}")
    a.label(L_noqw)
    a("s_waitcnt lgkmcnt(0)")
    a("s_barrier")
    a(f"s_mul_i32 s{sT}, s{sW}, 40")
    a(f"v_add_u32 v{vT}, s{sT}, v{vT}")
    a(f"v_lshl_add_u32 v{vT+1}, v{vH}, 3, v{vT}")
    a(f"ds_read_b64 v[{Q1}:{Q1+1}], v{vT+1}")
    a(f"ds_read_b64 v[{Q1+2}:{Q1+3}], v{vT+1} offset:16")
    a(f"ds_read_b64 v[{Q2}:{Q2+1}], v{vT} offset:32")
    def lds_addr(t, off, wide):
        base = SB[(t // 4) % 4] + (t % 4) * 4096 + off
        if base >= 32768: return (vA16b if wide else vA8b), base - 32768
        return (vA16 if wide else vA8), base
    def rd_K1(t): v_, o = lds_addr(t, 0, True); a(f"ds_read_b128 {vr(K1,4)}, v{v_} offset:{o}")
    def rd_K2(t): v_, o = lds_addr(t, 1024, False); a(f"ds_read_b64 {vr(K2,2)}, v{v_} offset:{o}")
    def rd_V1(t): v_, o = lds_addr(t, 2048, True); a(f"ds_read_b128 {vr(V1,4)}, v{v_} offset:{o}")
    def rd_V2(t): v_, o = lds_addr(t, 3072, True); a(f"ds_read_b128 {vr(V2,4)}, v{v_} offset:{o}")
    def qk1(dst): a(f"v_mfma_f32_32x32x16_bf16 {vr(dst,16)}, {vr(K1,4)}, {vr(Q1,4)}, 0")
    def qk2(dst): a(f"v_mfma_f32_32x32x8_bf16 {vr(dst,16)}, {vr(K2,2)}, {vr(Q2,2)}, {vr(dst,16)}")
    if OPT.get("nopre0"):
        a("s_waitcnt vmcnt(4)")
        a("s_barrier")
    rd_K1(0); rd_K2(0)
    for i in range(16): a(f"v_mov_b32 v{O+i}, 0")
    a(f"v_cmp_eq_u32 vcc, 1, v{vH}")
    a(f"v_mov_b32 v{vT}, 0")
    a("s_waitcnt lgkmcnt(0)")
    a(f"v_cndmask_b32 v{Q2}, v{Q2}, v{vT}, vcc")
    a(f"v_cndmask_b32 v{Q2+1}, v{Q2+1}, v{vT}, vcc")
    def set_m(delta):
        a(f"v_mov_b32 v{vT}, v{vM2}")
        a.nop(2)
        a(f"v_permlane32_swap_b32 v{vM2}, v{vT}")
        a.nop(1)
        a(f"v_max_f32 v{vM2}, v{vM2}, v{vT}")
        if delta: a(f"v_add_f32 v{vM2}, {f32bits(delta)}, v{vM2}")
        a(f"v_cvt_pk_bf16_f32 v{vT}, -v{vM2}, 0")
        a(f"v_cmp_eq_u32 vcc, 1, v{vH}")
        a.nop(2)
        a(f"v_cndmask_b32 v{Q2}, v{Q2}, v{vT}, vcc")
    a(f"v_mov_b32 v{vM2}, 0xff800000")
    a.nop(1)
    qk1(S[0]); qk2(S[0])
    rd_K1(1); rd_K2(1)
    a("s_waitcnt lgkmcnt(0)")
    qk1(S[1]); qk2(S[1])
    rd_K1(0); rd_K2(0)
    for i in range(4, 8): a(f"v_mov_b32 v{P+i}, 0")
    for i in range(4): a(f"v_mov_b32 v{V2+i}, 0")
    a.nop(4)
    for i in range(8):
        a(f"v_max3_f32 v{vM2}, v{S[0]+2*i}, v{S[0]+2*i+1}, v{vM2}")
    a.nop(4)
    for i in range(8):
        a(f"v_max3_f32 v{vM2}, v{S[1]+2*i}, v{S[1]+2*i+1}, v{vM2}")
    set_m(DELTA)
    a("s_waitcnt lgkmcnt(0)")
    a.nop(1)
    qk1(S[0]); qk2(S[0])
    rd_K1(1); rd_K2(1); rd_V1(0)
    a.nop(12)
    st.mark("sample")
    a(f"s_setprio {OPT.get('aprio', 0)}")
    a(f"s_mov_b32 s{sIt}, 0")
    L_loop = "A_loop"
    a(".p2align 6")
    a.label(L_loop)
    def e(cur, i): a(f"v_exp_f32 v{cur+i}, v{cur+i}")
    def p(cur, k): a(f"v_cvt_pk_bf16_f32 v{P+k}, v{cur+2*k}, v{cur+2*k+1}")
    for t in range(16):
        cur, nxt = S[t % 2], S[(t+1) % 2]
        if t % 4 == 2:
            a("s_waitcnt vmcnt(2)")
            a("s_barrier")
            dma_chunk((t // 4 + 3) % 4)
        e(cur, 0); e(cur, 1)
        a("s_waitcnt lgkmcnt(3)")
        a(f"v_mfma_f32_32x32x16_bf16 {vr(O,16)}, {vr(V2,4)}, {vr(P+4,4)}, {vr(O,16)}")
        rd_V2(t)
        e(cur, 2); e(cur, 3); p(cur, 0); p(cur, 1)
        a("s_waitcnt lgkmcnt(3)")
        qk1(nxt)
        rd_K1(t+2)
        e(cur, 4); e(cur, 5); e(cur, 6); e(cur, 7); p(cur, 2); p(cur, 3)
        a("s_waitcnt lgkmcnt(3)")
        qk2(nxt)
        rd_K2(t+2)
        e(cur, 8); e(cur, 9); e(cur, 10); e(cur, 11); p(cur, 4); p(cur, 5)
        a("s_waitcnt lgkmcnt(3)")
        a(f"v_mfma_f32_32x32x16_bf16 {vr(O,16)}, {vr(V1,4)}, {vr(P,4)}, {vr(O,16)}")
        rd_V1(t+1)
        e(cur, 12); e(cur, 13); e(cur, 14); e(cur, 15); p(cur, 6); p(cur, 7)
    a(f"s_add_u32 s{sIt}, s{sIt}, 1")
    a(f"s_cmp_lt_u32 s{sIt}, 4")
    a(f"s_cbranch_scc1 {L_loop}")
    a("s_waitcnt lgkmcnt(0)")
    a(f"v_mfma_f32_32x32x16_bf16 {vr(O,16)}, {vr(V2,4)}, {vr(P+4,4)}, {vr(O,16)}")
    a("s_setprio 0")
    st.mark("loop")
    a.nop(16)
    L_fin, L_slow = "A_fin", "A_slow"
    a(f"s_mov_b32 s{sIt}, 0")
    a.label(L_fin)
    a(f"v_mov_b32 v{vT}, v{O+8}")
    a(f"v_mov_b32 v{vT+1}, v{O+8}")
    a.nop(2)
    a(f"v_permlane32_swap_b32 v{vT}, v{vT+1}")
    a(f"v_max3_f32 v{vT+2}, |v{O}|, |v{O+1}|, |v{O+2}|")
    for j in range(3, 12, 2):
        j2 = min(j+1, 11)
        a(f"v_max3_f32 v{vT+2}, |v{O+j}|, |v{O+j2}|, v{vT+2}")
    a(f"v_mov_b32 v{vT+3}, {f32bits(2.0**120)}")
    a(f"v_cmp_nlt_f32 vcc, v{vT+2}, v{vT+3}")
    a(f"v_cmp_nlt_f32 s[62:63], 0, v{vT+1}")
    a.nop(1)
    a(f"s_or_b64 vcc, vcc, s[62:63]")
    a(f"s_cmp_eq_u64 vcc, 0")
    a(f"s_cbranch_scc1 A_store")
    a(f"s_cmp_lg_u32 s{sIt}, 0")
    a(f"s_cbranch_scc1 A_store")
    a(f"s_branch {L_slow}")
    a.label("A_store")
    a(f"v_rcp_f32 v{vT+2}, v{vT+1}")
    a.nop(1)
    for j in range(12): a(f"v_mul_f32 v{O+j}, v{O+j}, v{vT+2}")
    for k in range(6): a(f"v_cvt_pk_bf16_f32 v{P+k}, v{O+2*k}, v{O+2*k+1}")
    a(f"s_lshl_b32 s{sT}, s{sCG}, 3")
    a(f"s_add_u32 s{sT}, s{sT}, s{sW}")
    a(f"s_mul_i32 s{sT}, s{sT}, 20")
    a(f"s_mul_i32 s{sT2}, s{sRB}, {40*1024}")
    a(f"s_add_u32 s{sT2}, s{sT2}, {WS_OF}")
    def oaddr(dst, colv):
        a(f"v_lshrrev_b32 v{dst}, 4, v{colv}")
        a(f"v_lshlrev_b32 v{dst}, 10, v{dst}")
        a(f"v_bfe_u32 v{vT+7}, v{colv}, 3, 1")
        a(f"v_lshl_add_u32 v{dst}, v{vT+7}, 9, v{dst}")
        a(f"v_and_b32 v{vT+7}, 7, v{colv}")
        a(f"v_lshl_add_u32 v{dst}, v{vT+7}, 1, v{dst}")
        a(f"v_lshl_add_u32 v{dst}, v{vN}, 4, v{dst}")
    a(f"v_lshlrev_b32 v{vT+3}, 2, v{vH}")
    a(f"v_add_u32 v{vT+3}, s{sT}, v{vT+3}")
    oaddr(vT+4, vT+3)
    a(f"buffer_store_dwordx2 v[{P}:{P+1}], v{vT+4}, s[{R_WS}:{R_WS+3}], s{sT2} offen sc1")
    a(f"v_add_u32 v{vT+3}, 8, v{vT+3}")
    oaddr(vT+5, vT+3)
    a(f"buffer_store_dwordx2 v[{P+2}:{P+3}], v{vT+5}, s[{R_WS}:{R_WS+3}], s{sT2} offen sc1")
    a(f"s_add_u32 s{sT}, s{sT}, 16")
    a(f"v_mov_b32 v{vT+3}, s{sT}")
    oaddr(vT+6, vT+3)
    a(f"v_cmp_eq_u32 vcc, 0, v{vH}")
    a(f"s_and_saveexec_b64 s[62:63], vcc")
    a(f"buffer_store_dwordx2 v[{P+4}:{P+5}], v{vT+6}, s[{R_WS}:{R_WS+3}], s{sT2} offen sc1")
    a(f"s_mov_b64 exec, s[62:63]")
    a("s_waitcnt vmcnt(0)")
    a("s_barrier")
    L_nofl = "A_nofl"
    a(f"s_cmp_lg_u32 s{sW}, 7")
    a(f"s_cbranch_scc1 {L_nofl}")
    a(f"s_lshl_b32 s{sT}, s{sRB}, 2")
    a(f"s_add_u32 s{sT}, s{sT}, s{sCG}")
    set_flag(a, vT, sT, FL_O)
    a.label(L_nofl)
    st.end()
    a("s_endpgm")
    a.label(L_slow)
    a(f"v_cmp_eq_u32 vcc, 1, v{vH}")
    a(f"v_mov_b32 v{vT}, 0")
    a(f"v_mov_b32 v{vM2}, 0xff800000")
    a(f"v_cndmask_b32 v{Q2}, v{Q2}, v{vT}, vcc")
    a(f"s_mov_b32 s{sSoffK}, 0")
    a.label("A_slow1")
    a(f"buffer_load_dwordx4 {vr(K1,4)}, v{vA16}, s[{R_A}:{R_A+3}], s{sSoffK} offen sc1")
    a(f"buffer_load_dwordx2 {vr(K2,2)}, v{vA8}, s[{R_A}:{R_A+3}], s{sSoffK} offen offset:1024 sc1")
    a("s_waitcnt vmcnt(0)")
    qk1(S[0]); qk2(S[0])
    a.nop(16)
    for i in range(8):
        a(f"v_max3_f32 v{vM2}, v{S[0]+2*i}, v{S[0]+2*i+1}, v{vM2}")
    a(f"s_add_u32 s{sSoffK}, s{sSoffK}, 4096")
    a(f"s_cmp_lt_u32 s{sSoffK}, 262144")
    a(f"s_cbranch_scc1 A_slow1")
    set_m(0.0)
    for i in range(16): a(f"v_mov_b32 v{O+i}, 0")
    a(f"s_mov_b32 s{sSoffK}, 0")
    a.label("A_slow2")
    a(f"buffer_load_dwordx4 {vr(K1,4)}, v{vA16}, s[{R_A}:{R_A+3}], s{sSoffK} offen sc1")
    a(f"buffer_load_dwordx2 {vr(K2,2)}, v{vA8}, s[{R_A}:{R_A+3}], s{sSoffK} offen offset:1024 sc1")
    a(f"buffer_load_dwordx4 {vr(V1,4)}, v{vA16}, s[{R_A}:{R_A+3}], s{sSoffK} offen offset:2048 sc1")
    a(f"buffer_load_dwordx4 {vr(V2,4)}, v{vA16}, s[{R_A}:{R_A+3}], s{sSoffK} offen offset:3072 sc1")
    a("s_waitcnt vmcnt(0)")
    qk1(S[0]); qk2(S[0])
    a.nop(16)
    for i in range(16): e(S[0], i)
    a.nop(1)
    for k in range(8): p(S[0], k)
    a.nop(2)
    a(f"v_mfma_f32_32x32x16_bf16 {vr(O,16)}, {vr(V1,4)}, {vr(P,4)}, {vr(O,16)}")
    a(f"v_mfma_f32_32x32x16_bf16 {vr(O,16)}, {vr(V2,4)}, {vr(P+4,4)}, {vr(O,16)}")
    a(f"s_add_u32 s{sSoffK}, s{sSoffK}, 4096")
    a(f"s_cmp_lt_u32 s{sSoffK}, 262144")
    a(f"s_cbranch_scc1 A_slow2")
    a.nop(16)
    a(f"s_mov_b32 s{sIt}, 1")
    a(f"s_branch {L_fin}")

def role_B1(a):
    st = Stamps(a, "B1")
    st.start()
    if OPT.get("bprio"): a(f"s_setprio {OPT['bprio']}")
    sG, sC = sRB, sCG
    sSoffW, sSoffX, sLdsW, sKH, sXb = 57, 58, 59, 60, 99
    vT = 4; vW = 10; vTr, vX16, vR = 13, 14, 15
    XS = 16; WF = 48; ACC = 76
    SLOT = 24576
    a(f"s_sub_u32 s{sT2}, s2, 256")
    a(f"s_and_b32 s{sG}, s{sT2}, 7")
    a(f"s_lshl_b32 s{sG}, s{sG}, 1")
    a(f"s_bfe_u32 s{sT}, s{sT2}, 0x10003")
    a(f"s_add_u32 s{sG}, s{sG}, s{sT}")
    a(f"s_lshr_b32 s{sC}, s{sT2}, 4")
    a(f"s_lshr_b32 s{sKH}, s{sW}, 2")
    a(f"v_lshlrev_b32 v{vX16}, 4, v{vLane}")
    a(f"s_and_b32 s{sT}, s{sW}, 3")
    a(f"s_mul_i32 s{sT}, s{sT}, 192")
    a(f"s_mul_i32 s{sT2}, s{sC}, 192")
    a(f"s_mul_i32 s{sT3}, s{sKH}, {320*3072}")
    a(f"s_add_u32 s{sT2}, s{sT2}, s{sT3}")
    for i in range(3):
        a(f"v_add_u32 v{vT}, s{sT}, v{vLane}")
        if i: a(f"v_add_u32 v{vT}, {64*i}, v{vT}")
        a(f"v_mul_u32_u24 v{vT+1}, 5462, v{vT}")
        a(f"v_lshrrev_b32 v{vT+1}, 16, v{vT+1}")
        a(f"v_mul_u32_u24 v{vT+2}, 12, v{vT+1}")
        a(f"v_sub_u32 v{vT}, v{vT}, v{vT+2}")
        a(f"v_lshlrev_b32 v{vT}, 4, v{vT}")
        a(f"v_mul_u32_u24 v{vT+1}, 3072, v{vT+1}")
        a(f"v_add3_u32 v{vW+i}, v{vT}, v{vT+1}, s{sT2}")
        if i: a(f"v_subrev_u32 v{vW+i}, {1024*i}, v{vW+i}")
    a(f"s_mul_i32 s{sT}, s{sKH}, 12288")
    tr_addr(a, vTr, None, 192, 8, 4, sT, vT)
    a(f"s_mul_i32 s{sLdsW}, s{sW}, 3072")
    srd(a, R_A, S_W1, S_W1+1, 640*1536*2)
    srd(a, R_B, S_B1, S_B1+1, 1536*2)
    a(f"s_mul_hi_u32 s{sT}, s{sC}, {(1<<32)//5 + 1}")
    a(f"s_mul_i32 s{sT}, s{sT}, 5")
    a(f"s_sub_u32 s{sT}, s{sC}, s{sT}")
    a(f"s_mul_i32 s{sSoffW}, s{sT}, {64*3072}")
    a(f"s_lshl_b32 s{sSoffX}, s{sT}, 12")
    a(f"s_and_b32 s{sT}, s{sW}, 3")
    a(f"s_lshl_b32 s{sT2}, s{sG}, 2")
    a(f"s_add_u32 s{sT}, s{sT}, s{sT2}")
    a(f"s_mul_i32 s{sXb}, s{sT}, {40*1024}")
    a(f"s_mul_i32 s{sT2}, s{sKH}, {20*1024}")
    a(f"s_add_u32 s{sXb}, s{sXb}, s{sT2}")
    if WS_XF: a(f"s_add_u32 s{sXb}, s{sXb}, {WS_XF}")
    def issueW(c):
        a(f"s_add_u32 m0, s{sLdsW}, {(c%3)*SLOT}")
        a(f"s_add_u32 s{sT}, s{sSoffW}, {64*3072}")
        for i in range(3):
            a(f"buffer_load_dwordx4 v{vW+i}, s[{R_A}:{R_A+3}], s{sSoffW} offen offset:{1024*i} lds")
        a(f"s_cmp_eq_u32 s{sT}, {320*3072}")
        a(f"s_cselect_b32 s{sSoffW}, 0, s{sT}")
    def issueX(c):
        xs = XS + 16*(c % 2)
        a(f"s_add_u32 s{sT2}, s{sXb}, s{sSoffX}")
        a(f"s_add_u32 s{sT}, s{sSoffX}, 4096")
        for i in range(4):
            a(f"buffer_load_dwordx4 {vr(xs+4*i,4)}, v{vX16}, s[{R_WS}:{R_WS+3}], s{sT2} offen offset:{1024*i} sc1")
        a(f"s_cmp_eq_u32 s{sT}, 20480")
        a(f"s_cselect_b32 s{sSoffX}, 0, s{sT}")
    a(f"s_cmp_lg_u32 s{sW}, 0")
    a(f"s_cbranch_scc1 B1_pre")
    get_tag(a, vT, "B1")
    a(f"s_lshl_b32 s{sT}, s{sG}, 5")
    poll_flags(a, vT, "B1p", sT, 32, FL_D, tries=OPT.get("wftries", 4))
    a.label("B1_pre")
    a("s_barrier")
    st.mark("prepoll")
    sJ = 96
    a(f"s_sub_u32 s{sJ}, s2, 256")
    srd(a, R_C, S_W2, S_W2+1, 1536*640*2)
    vF = 16
    a(f"v_lshrrev_b32 v32, 2, v{vLane}")
    a(f"v_mul_u32_u24 v32, 1280, v32")
    a(f"v_and_b32 v33, 3, v{vLane}")
    a(f"v_lshl_add_u32 v32, v33, 4, v32")
    a(f"s_lshl_b32 s{sT}, s{sW}, 11")
    a(f"v_add_u32 v33, s{sT}, v{vX16}")
    tr_addr(a, 34, None, 64, 4, 8, sT, vT)
    tr_addr(a, 35, None, 64, 8, 4, sT, vT)
    sDst = [92, 93]; sStp = [94, 95]
    for rnd in range(2):
        Lskip = f"B1_wf{rnd}_skip"
        a(f"s_mov_b32 s{sStp[rnd]}, -1")
        if rnd == 1:
            a(f"s_cmp_ge_u32 s{sW}, 3")
            a(f"s_cbranch_scc1 {Lskip}")
        a(f"s_and_b32 s{sT}, s{sJ}, 63")
        a(f"s_mul_i32 s{sT}, s{sT}, 11")
        a(f"s_add_u32 s{sT}, s{sT}, s{sW}")
        if rnd: a(f"s_add_u32 s{sT}, s{sT}, 8")
        a(f"s_cmp_ge_u32 s{sT}, 680")
        a(f"s_cbranch_scc1 {Lskip}")
        a(f"s_mul_hi_u32 s{sT2}, s{sT}, {(1<<32)//136 + 1}")
        a(f"s_mul_i32 s{sT3}, s{sT2}, 136")
        a(f"s_sub_u32 s{sT}, s{sT}, s{sT3}")
        a(f"s_mov_b32 s{sStp[rnd]}, s{sT}")
        a(f"s_lshr_b32 s{sT3}, s{sJ}, 6")
        a(f"s_mul_i32 s{sT3}, s{sT3}, 5")
        a(f"s_add_u32 s{sT2}, s{sT2}, s{sT3}")
        a(f"s_mul_i32 s62, s{sT2}, 136")
        a(f"s_add_u32 s62, s62, s{sT}")
        a(f"s_lshl_b32 s62, s62, 10")
        a(f"s_add_u32 s{sDst[rnd]}, s62, {WS_WF}")
        a(f"s_lshl_b32 s{sT2}, s{sT2}, 6")
        a(f"s_cmp_lt_u32 s{sT}, 96")
        a(f"s_cselect_b32 s{R_C}, s{S_W2}, s{S_WO}")
        a(f"s_cselect_b32 s{R_C+1}, s{S_W2+1}, s{S_WO+1}")
        a(f"s_cselect_b32 s63, 0, 96")
        a(f"s_mov_b32 s{R_C+2}, {640*640*2}")
        a(f"s_cbranch_scc0 B1_wf{rnd}_a")
        a(f"s_mov_b32 s{R_C+2}, {1536*640*2}")
        a.label(f"B1_wf{rnd}_a")
        a(f"s_sub_u32 s{sT3}, s{sT}, s63")
        a(f"s_mul_i32 s{sT3}, s{sT3}, {16*1280}")
        a(f"s_add_u32 s{sT3}, s{sT3}, s{sT2}")
        a(f"buffer_load_dwordx4 v[{16+4*rnd}:{19+4*rnd}], v32, s[{R_C}:{R_C+3}], s{sT3} offen")
        a.label(Lskip)
    a("s_waitcnt vmcnt(0)")
    for rnd in range(2):
        Lskip = f"B1_wg{rnd}_skip"
        a(f"s_cmp_eq_u32 s{sStp[rnd]}, -1")
        a(f"s_cbranch_scc1 {Lskip}")
        a(f"ds_write_b128 v33, v[{16+4*rnd}:{19+4*rnd}] offset:{1024*rnd}")
        a(f"s_cmp_lt_u32 s{sStp[rnd]}, 96")
        a(f"s_cbranch_scc0 B1_wf{rnd}_n")
        a(f"ds_read_b64_tr_b16 v[{24+4*rnd}:{25+4*rnd}], v34 offset:{1024*rnd}")
        a(f"ds_read_b64_tr_b16 v[{26+4*rnd}:{27+4*rnd}], v34 offset:{1024*rnd+512}")
        a(f"s_branch B1_wf{rnd}_s")
        a.label(f"B1_wf{rnd}_n")
        a(f"ds_read_b64_tr_b16 v[{24+4*rnd}:{25+4*rnd}], v35 offset:{1024*rnd}")
        a(f"ds_read_b64_tr_b16 v[{26+4*rnd}:{27+4*rnd}], v35 offset:{1024*rnd+256}")
        a.label(f"B1_wf{rnd}_s")
        a("s_waitcnt lgkmcnt(0)")
        a(f"buffer_store_dwordx4 v[{24+4*rnd}:{27+4*rnd}], v{vX16}, s[{R_WS}:{R_WS+3}], s{sDst[rnd]} offen sc1")
        a.label(Lskip)
    st.mark("wfprep")
    L_np = "B1_np"
    a(f"s_cmp_lg_u32 s{sW}, 0")
    a(f"s_cbranch_scc1 {L_np}")
    a(f"s_lshl_b32 s{sT}, s{sG}, 5")
    poll_flags(a, vT, "B1", sT, 32, FL_D)
    if OPT.get("b1kv"): poll_flags(a, vT, "B1k", None, 128, FL_KV)
    a.label(L_np)
    a("s_barrier")
    st.mark("wait_d")
    issued = []
    def iX(c): issueX(c); issued.extend([("X", c)]*4)
    def iW(c): issueW(c); issued.extend([("W", c)]*3)
    iX(0); iW(0); iX(1); iW(1); iW(2)
    def wreads(c, k, buf):
        base = (c % 3)*SLOT + k*16*192
        for ct in range(3):
            a(f"ds_read_b64_tr_b16 v[{WF+12*buf+4*ct}:{WF+12*buf+4*ct+1}], v{vTr} offset:{base + ct*64}")
            a(f"ds_read_b64_tr_b16 v[{WF+12*buf+4*ct+2}:{WF+12*buf+4*ct+3}], v{vTr} offset:{base + ct*64 + 4*192}")
    for c in range(5):
        last = max(i for i, e_ in enumerate(issued) if e_ in (("W", c), ("X", c)))
        a(f"s_waitcnt vmcnt({len(issued) - 1 - last})")
        a("s_barrier")
        if c == 0:
            st.mark("b0")
            a(f"s_cmp_lg_u32 s{sW}, 0")
            a(f"s_cbranch_scc1 B1_nofw")
            set_flag(a, vT, sJ, FL_W)
            a.label("B1_nofw")
        if 1 <= c <= 2: iW(c + 2)
        xs = XS + 16*(c % 2)
        wreads(c, 0, 0)
        for k in range(4):
            buf = k % 2
            if k < 3:
                wreads(c, k + 1, 1 - buf)
                a("s_waitcnt lgkmcnt(6)")
            else:
                a("s_waitcnt lgkmcnt(0)")
            for ct in range(3):
                cin = "0" if (c == 0 and k == 0) else vr(ACC+16*ct,16)
                a(f"v_mfma_f32_32x32x16_bf16 {vr(ACC+16*ct,16)}, {vr(WF+12*buf+4*ct,4)}, {vr(xs+4*k,4)}, {cin}")
        if c + 2 < 5: iX(c + 2)
    st.mark("kloop")
    a("s_setprio 3")
    a(f"s_and_b32 s{sT}, s{sW}, 3")
    a(f"s_lshl_b32 s{sT2}, s{sG}, 2")
    a(f"s_add_u32 s{sT}, s{sT}, s{sT2}")
    a(f"s_lshl_b32 s{sT2}, s{sT}, 7")
    a(f"s_add_u32 s{sT2}, s{sT2}, {WS_R}")
    a(f"v_lshlrev_b32 v{vT}, 2, v{vN}")
    a(f"buffer_load_dword v{vR}, v{vT}, s[{R_WS}:{R_WS+3}], s{sT2} offen sc1")
    a(f"s_mul_i32 s{sT2}, s{sC}, 192")
    a(f"s_lshl_b32 s{sT3}, s{sKH}, 5")
    a(f"s_add_u32 s{sT2}, s{sT2}, s{sT3}")
    a(f"v_lshlrev_b32 v{vT}, 3, v{vH}")
    B = XS
    for ct in range(3):
        for q in range(2):
            a(f"buffer_load_dwordx2 v[{B+4*ct+2*q}:{B+4*ct+2*q+1}], v{vT}, s[{R_B}:{R_B+3}], s{sT2} offen offset:{64*ct+16*q}")
    a(f"s_mul_i32 s{sT}, s{sT}, 96")
    a(f"s_mul_i32 s{sT2}, s{sC}, 6")
    a(f"s_add_u32 s{sT}, s{sT}, s{sT2}")
    a(f"s_add_u32 s{sT}, s{sT}, s{sKH}")
    a(f"s_lshl_b32 s{sXb}, s{sT}, 10")
    a(f"s_add_u32 s{sXb}, s{sXb}, {WS_H}")
    a("s_barrier")
    a.nop(4)
    T = XS + 16
    a(f"s_mul_i32 s{sT}, s{sW}, 6144")
    a(f"v_add_u32 v{vT+1}, s{sT}, v{vX16}")
    a(f"s_xor_b32 s{sT}, s{sW}, 4")
    a(f"s_mul_i32 s{sT}, s{sT}, 6144")
    a(f"v_add_u32 v{vT+2}, s{sT}, v{vX16}")
    a(f"s_cmp_eq_u32 s{sKH}, 1")
    a(f"s_cbranch_scc1 B1_x1")
    for ct in range(3):
        for q in range(2):
            a(f"ds_write_b128 v{vT+1}, {vr(ACC+16*ct+8+4*q,4)} offset:{(2*ct+q)*1024}")
    a(f"s_branch B1_x2")
    a.label("B1_x1")
    for ct in range(3):
        for q in range(2):
            a(f"ds_write_b128 v{vT+1}, {vr(ACC+16*ct+4*q,4)} offset:{(2*ct+q)*1024}")
    a.label("B1_x2")
    a("s_waitcnt lgkmcnt(0)")
    a("s_barrier")
    for i in range(6):
        a(f"ds_read_b128 {vr(T+4*i,4)}, v{vT+2} offset:{i*1024}")
    a("s_waitcnt lgkmcnt(0) vmcnt(0)")
    a(f"s_cmp_eq_u32 s{sKH}, 1")
    a(f"s_cbranch_scc1 B1_y1")
    for ct in range(3):
        for j in range(8): a(f"v_add_f32 v{T+8*ct+j}, v{T+8*ct+j}, v{ACC+16*ct+j}")
    a(f"s_branch B1_y2")
    a.label("B1_y1")
    for ct in range(3):
        for j in range(8): a(f"v_add_f32 v{T+8*ct+j}, v{T+8*ct+j}, v{ACC+16*ct+8+j}")
    a.label("B1_y2")
    TB = 56
    for ct in range(3):
        for q in range(2):
            b0 = B+4*ct+2*q
            acc = T+8*ct+4*q
            a(f"v_lshlrev_b32 v{TB}, 16, v{b0}")
            a(f"v_and_b32 v{TB+1}, 0xffff0000, v{b0}")
            a(f"v_lshlrev_b32 v{TB+2}, 16, v{b0+1}")
            a(f"v_and_b32 v{TB+3}, 0xffff0000, v{b0+1}")
            for j in range(4): a(f"v_fma_f32 v{acc+j}, v{acc+j}, v{vR}, v{TB+j}")
            for j in range(4): a(f"v_max_f32 v{acc+j}, 0, v{acc+j}")
            for j in range(4): a(f"v_mul_f32 v{acc+j}, v{acc+j}, v{acc+j}")
        for k in range(4):
            a(f"v_cvt_pk_bf16_f32 v{60+4*ct+k}, v{T+8*ct+2*k}, v{T+8*ct+2*k+1}")
    a(f"v_add_u32 v{vT}, 4096, v{vX16}")
    a(f"buffer_store_dwordx4 {vr(60,4)}, v{vX16}, s[{R_WS}:{R_WS+3}], s{sXb} offen sc1")
    a(f"buffer_store_dwordx4 {vr(64,4)}, v{vX16}, s[{R_WS}:{R_WS+3}], s{sXb} offen offset:2048 sc1")
    a(f"buffer_store_dwordx4 {vr(68,4)}, v{vT}, s[{R_WS}:{R_WS+3}], s{sXb} offen sc1")
    a("s_waitcnt vmcnt(0)")
    a("s_barrier")
    L_nf = "B1_nf"
    a(f"s_cmp_lg_u32 s{sW}, 0")
    a(f"s_cbranch_scc1 {L_nf}")
    a(f"s_lshl_b32 s{sT}, s{sG}, 4")
    a(f"s_add_u32 s{sT}, s{sT}, s{sC}")
    set_flag(a, vT, sT, FL_H)
    a.label(L_nf)
    st.mark("epi")
    st.end()
    a("s_endpgm")

def role_B2(a):
    st = Stamps(a, "B2")
    st.start()
    if OPT.get("bprio"): a(f"s_setprio {OPT['bprio']}")
    sSoffW, sSoffX, sWb, sIt, sRho, sWrapW, sRst = 57, 58, 59, 60, 61, 98, 99
    vT = 4
    vX16, vXa = 14, 15
    ACC = 16
    XR = 48
    WB = 64
    vOut = vT+3
    NXS = 8
    a(f"s_sub_u32 s{sT2}, s2, 512")
    decode_rb_cg(a, sT2)
    a(f"v_lshlrev_b32 v{vX16}, 4, v{vLane}")
    a(f"s_and_b32 s{sRho}, s{sRB}, 7")
    a(f"s_min_u32 s{sT3}, s{sW}, 4")
    a(f"s_mul_i32 s{sT}, s{sCG}, 5")
    a(f"s_add_u32 s{sT}, s{sT}, s{sT3}")
    a(f"s_mul_i32 s{sWb}, s{sT}, {136*1024}")
    a(f"s_add_u32 s{sWb}, s{sWb}, {WS_WF}")
    a(f"s_lshl_b32 s{sT}, s{sT}, 6")
    srd(a, R_C, S_X, S_X+1, NX)
    a(f"s_lshl_b32 s{sT2}, s{sRB}, 5")
    a(f"v_add_u32 v{vT}, s{sT2}, v{vN}")
    a(f"v_mul_u32_u24 v{vT}, 1280, v{vT}")
    a(f"v_lshl_add_u32 v{vT}, v{vH}, 3, v{vT}")
    a(f"v_add_u32 v{vOut}, s{sT}, v{vT}")
    for q in range(4):
        a(f"buffer_load_dwordx2 v[{XR+2*q}:{XR+2*q+1}], v{vOut}, s[{R_C}:{R_C+3}], 0 offen offset:{16*q}")
    srd(a, R_C, S_B2, S_B2+1, 640*2)
    a(f"v_lshlrev_b32 v{vT}, 3, v{vH}")
    for q in range(4):
        a(f"buffer_load_dwordx2 v[{XR+8+2*q}:{XR+8+2*q+1}], v{vT}, s[{R_C}:{R_C+3}], s{sT} offen offset:{16*q}")
    for i in range(16): a(f"v_mov_b32 v{ACC+i}, 0")
    def unpack_add(q, dst):
        for (src, t) in ((XR+2*q, 32), (XR+8+2*q, 36)):
            a(f"v_lshlrev_b32 v{t}, 16, v{src}")
            a(f"v_and_b32 v{t+1}, 0xffff0000, v{src}")
            a(f"v_lshlrev_b32 v{t+2}, 16, v{src+1}")
            a(f"v_and_b32 v{t+3}, 0xffff0000, v{src+1}")
        for j in range(4): a(f"v_add_f32 v{32+j}, v{32+j}, v{36+j}")
        for j in range(4): a(f"v_add_f32 v{dst+j}, v{dst+j}, v{32+j}")
    L_side = "B2_side"
    a(f"s_cmp_ge_u32 s{sW}, 4")
    a(f"s_cbranch_scc1 {L_side}")
    a("s_barrier")
    a("s_waitcnt vmcnt(0)")
    for q in range(4): unpack_add(q, ACC+4*q)
    a(f"s_lshl_b32 s{sSoffW}, s{sRho}, 13")
    a(f"s_mov_b32 s{sWrapW}, {96*1024}")
    a(f"s_mov_b32 s{sRst}, 0")
    def wload(r):
        a(f"s_add_u32 s{sT2}, s{sWb}, s{sSoffW}")
        a(f"s_add_u32 s{sT}, s{sSoffW}, 1024")
        a(f"buffer_load_dwordx4 {vr(r,4)}, v{vX16}, s[{R_WS}:{R_WS+3}], s{sT2} offen sc1")
        a(f"s_cmp_eq_u32 s{sT}, s{sWrapW}")
        a(f"s_cselect_b32 s{sSoffW}, s{sRst}, s{sT}")
    for k in range(16): wload(WB + 4*k)
    st.mark("setup")
    a("s_barrier")
    a(f"s_mov_b32 s{sIt}, 0")
    L1 = "B2_p1"
    a.label(L1)
    XBUF = XR
    for j in range(16):
        k = j % 8
        if k == 0:
            a("s_barrier")
            a(f"s_lshl_b32 s{sT}, s{sIt}, 1")
            if j: a(f"s_add_u32 s{sT}, s{sT}, 1")
            a(f"s_and_b32 s{sT}, s{sT}, {NXS-1}")
            a(f"s_lshl_b32 s{sT}, s{sT}, 13")
            a(f"v_add_u32 v{vXa}, s{sT}, v{vX16}")
            for i in range(3):
                a(f"ds_read_b128 {vr(XBUF+4*i,4)}, v{vXa} offset:{i*1024}")
        if j == 0:
            L1n = "B2_p1n"
            a(f"s_cmp_lg_u32 s{sIt}, 5")
            a(f"s_cbranch_scc1 {L1n}")
            a(f"s_mul_i32 s{sSoffW}, s{sRho}, {5*1024}")
            a(f"s_add_u32 s{sSoffW}, s{sSoffW}, {96*1024}")
            a(f"s_mov_b32 s{sWrapW}, {136*1024}")
            a(f"s_mov_b32 s{sRst}, {96*1024}")
            a.label(L1n)
        if k + 3 < 8:
            a(f"ds_read_b128 {vr(XBUF+4*((k+3)%4),4)}, v{vXa} offset:{(k+3)*1024}")
            a("s_waitcnt vmcnt(15) lgkmcnt(3)")
        else:
            a(f"s_waitcnt vmcnt(15) lgkmcnt({7-k})")
        a(f"v_mfma_f32_32x32x16_bf16 {vr(ACC,16)}, {vr(WB+4*j,4)}, {vr(XBUF+4*(k%4),4)}, {vr(ACC,16)}")
        wload(WB + 4*j)
    a(f"s_add_u32 s{sIt}, s{sIt}, 1")
    a(f"s_cmp_lt_u32 s{sIt}, 6")
    a(f"s_cbranch_scc1 {L1}")
    st.mark("ffn2")
    NBLK = 20
    def blk(s_):
        b = s_ % NBLK
        return (WB + 4*b) if b < 16 else (32 + 4*(b-16))
    for s_ in range(16, 20): wload(blk(s_))
    a("s_barrier")
    a(f"s_branch B2_oload")
    a.label(L_side)
    Lnp0 = "B2_np0"
    a(f"s_cmp_lg_u32 s{sW}, 7")
    a(f"s_cbranch_scc1 {Lnp0}")
    get_tag(a, vT, "B2")
    a(f"s_lshl_b32 s{sT}, s{sCG}, 6")
    poll_flags(a, vT, "B2w", sT, 64, FL_W)
    a.label(Lnp0)
    a("s_barrier")
    a(f"s_sub_u32 s{sT3}, s{sW}, 4")
    a("s_waitcnt vmcnt(0)")
    for jj in range(1, 4):
        Ls = a.newlabel("B2_q")
        a(f"s_cmp_lg_u32 s{sT3}, {jj}")
        a(f"s_cbranch_scc1 {Ls}")
        a(f"v_mov_b32 v{XR}, v{XR+2*jj}")
        a(f"v_mov_b32 v{XR+1}, v{XR+2*jj+1}")
        a(f"v_mov_b32 v{XR+8}, v{XR+8+2*jj}")
        a(f"v_mov_b32 v{XR+9}, v{XR+8+2*jj+1}")
        a.label(Ls)
    for j in range(4): a(f"v_mov_b32 v{40+j}, 0")
    unpack_add(0, 40)
    a(f"s_lshl_b32 s{sRst}, s{sT3}, 11")
    a(f"s_lshl_b32 s{sSoffW}, s{sRho}, 13")
    a(f"s_add_u32 s{sSoffW}, s{sSoffW}, s{sRst}")
    a(f"s_add_u32 s{sWrapW}, s{sRst}, {96*1024}")
    SD = 4
    def wpair(slot):
        a(f"s_add_u32 s{sT2}, s{sWb}, s{sSoffW}")
        a(f"s_add_u32 s{sT}, s{sSoffW}, 8192")
        a(f"buffer_load_dwordx4 {vr(WB+8*slot,4)}, v{vX16}, s[{R_WS}:{R_WS+3}], s{sT2} offen sc1")
        a(f"buffer_load_dwordx4 {vr(WB+8*slot+4,4)}, v{vX16}, s[{R_WS}:{R_WS+3}], s{sT2} offen offset:1024 sc1")
        a(f"s_cmp_eq_u32 s{sT}, s{sWrapW}")
        a(f"s_cselect_b32 s{sSoffW}, s{sRst}, s{sT}")
    for c in range(SD): wpair(c)
    Lnp = "B2_np"
    a(f"s_cmp_lg_u32 s{sW}, 7")
    a(f"s_cbranch_scc1 {Lnp}")
    a(f"s_lshr_b32 s{sT}, s{sRB}, 2")
    a(f"s_lshl_b32 s{sT}, s{sT}, 4")
    poll_flags(a, vT, "B2h", sT, 16, FL_H)
    a.label(Lnp)
    a("s_barrier")
    a(f"s_sub_u32 s{sT3}, s{sW}, 4")
    a(f"s_mul_i32 s{sT}, s{sRB}, {96*1024}")
    a(f"s_add_u32 s63, s{sT}, {WS_H}")
    a(f"s_lshl_b32 s97, s{sT3}, 11")
    a(f"s_add_u32 s63, s63, s97")
    a(f"s_lshl_b32 s{sSoffX}, s{sRho}, 13")
    a(f"v_add_u32 v{vT+5}, s97, v{vX16}")
    vXs = vT+5
    vm = Cnt(a, "vmcnt", 63)
    def xdma(c):
        a(f"s_add_u32 m0, s97, {(c % NXS)*8192}")
        a(f"s_add_u32 s{sT2}, s63, s{sSoffX}")
        a(f"s_add_u32 s{sT}, s{sSoffX}, 8192")
        for i in range(2):
            a(f"buffer_load_dwordx4 v{vX16}, s[{R_WS}:{R_WS+3}], s{sT2} offen offset:{1024*i} sc1 lds")
        a(f"s_cmp_eq_u32 s{sT}, {96*1024}")
        a(f"s_cselect_b32 s{sSoffX}, 0, s{sT}")
        vm.issue(("X", c), 2)
    for c in range(SD): vm.issue(("W", c), 2)
    XD = 6
    for c in range(XD): xdma(c)
    for c in range(12):
        vm.need(("X", c), ("W", c))
        a("s_barrier")
        if c + XD < 12: xdma(c + XD)
        for i in range(2):
            a(f"ds_read_b128 {vr(48+4*i,4)}, v{vXs} offset:{(c % NXS)*8192 + 1024*i}")
        a("s_waitcnt lgkmcnt(1)")
        a(f"v_mfma_f32_32x32x16_bf16 {vr(ACC,16)}, {vr(WB+8*(c%4),4)}, {vr(48,4)}, {vr(ACC,16)}")
        a("s_waitcnt lgkmcnt(0)")
        a(f"v_mfma_f32_32x32x16_bf16 {vr(ACC,16)}, {vr(WB+8*(c%4)+4,4)}, {vr(52,4)}, {vr(ACC,16)}")
        if c + SD < 12: wpair(c % 4); vm.issue(("W", c + SD), 2)
    a(f"s_sub_u32 s{sT3}, s{sW}, 4")
    a(f"s_lshl_b32 s{sT3}, s{sT3}, 1")
    a(f"s_mul_i32 s62, s{sRho}, 5")
    a(f"s_add_u32 s62, s62, s{sT3}")
    for m in range(5):
        for i in range(2):
            a(f"s_add_u32 s{sT}, s62, {8*m+i}")
            a(f"s_cmp_ge_u32 s{sT}, 40")
            a(f"s_cselect_b32 s{sT2}, 40, 0")
            a(f"s_sub_u32 s{sT}, s{sT}, s{sT2}")
            a(f"s_add_u32 s{sT}, s{sT}, 96")
            a(f"s_lshl_b32 s{sT}, s{sT}, 10")
            a(f"s_add_u32 s{sT}, s{sT}, s{sWb}")
            a(f"buffer_load_dwordx4 {vr(WB+4*(2*m+i),4)}, v{vX16}, s[{R_WS}:{R_WS+3}], s{sT} offen sc1")
    Lnp2 = "B2_np2"
    a(f"s_cmp_lg_u32 s{sW}, 7")
    a(f"s_cbranch_scc1 {Lnp2}")
    a(f"s_lshl_b32 s{sT}, s{sRB}, 2")
    poll_flags(a, vT, "B2o", sT, 4, FL_O)
    a.label(Lnp2)
    st.mark("wait_o")
    a("s_barrier")
    a.label("B2_oload")
    a(f"s_mul_i32 s63, s{sRB}, {40*1024}")
    a(f"s_add_u32 s63, s63, {WS_OF}")
    a(f"s_mul_i32 s62, s{sRho}, 5")
    for i in range(5):
        a(f"s_mul_i32 s{sT}, s{sW}, 5")
        a(f"s_add_u32 s{sT}, s{sT}, {i}")
        a(f"s_add_u32 s{sT2}, s{sT}, s62")
        a(f"s_cmp_ge_u32 s{sT2}, 40")
        a(f"s_cselect_b32 s{sIt}, 40, 0")
        a(f"s_sub_u32 s{sT2}, s{sT2}, s{sIt}")
        a(f"s_lshl_b32 s{sT2}, s{sT2}, 10")
        a(f"s_add_u32 s{sT2}, s{sT2}, s63")
        a(f"s_lshl_b32 m0, s{sT}, 10")
        a("s_nop 0")
        a(f"buffer_load_dwordx4 v{vX16}, s[{R_WS}:{R_WS+3}], s{sT2} offen sc1 lds")
    a("s_waitcnt vmcnt(0)")
    a("s_barrier")
    st.mark("oload")
    a(f"s_cmp_ge_u32 s{sW}, 4")
    a(f"s_cbranch_scc1 B2_side2")
    vm = Cnt(a, "vmcnt", 63); lg = Cnt(a, "lgkmcnt", 15)
    def xread(s_):
        r = XBUF + 4*(s_ % 4)
        a(f"ds_read_b128 {vr(r,4)}, v{vX16} offset:{s_*1024}")
        lg.issue(("X", s_))
    for s_ in range(3): xread(s_)
    for s_ in range(40):
        if s_ + 3 < 40: xread(s_ + 3)
        vm.need(("W", s_))
        lg.need(("X", s_))
        a(f"v_mfma_f32_32x32x16_bf16 {vr(ACC,16)}, {vr(blk(s_),4)}, {vr(XBUF+4*(s_%4),4)}, {vr(ACC,16)}")
        if s_ + NBLK < 40:
            wload(blk(s_)); vm.issue(("W", s_ + NBLK))
    st.mark("wo")
    a("s_setprio 3")
    a("s_barrier")
    a.nop(10)
    srd(a, R_C, S_OUT, S_OUT+1, NX)
    for q in range(4):
        a(f"v_cvt_pk_bf16_f32 v{32+2*q}, v{ACC+4*q}, v{ACC+4*q+1}")
        a(f"v_cvt_pk_bf16_f32 v{33+2*q}, v{ACC+4*q+2}, v{ACC+4*q+3}")
        a(f"buffer_store_dwordx2 v[{32+2*q}:{33+2*q}], v{vOut}, s[{R_C}:{R_C+3}], 0 offen offset:{16*q}")
    a("s_barrier")
    st.end()
    a("s_endpgm")
    a.label("B2_side2")
    for k in range(4):
        a(f"ds_read_b128 {vr(48+4*k,4)}, v{vXs} offset:{(8*(k//2)+(k%2))*1024}")
    for k in range(10):
        a(f"s_waitcnt lgkmcnt({min(3, 9-k)})")
        a(f"v_mfma_f32_32x32x16_bf16 {vr(ACC,16)}, {vr(WB+4*k,4)}, {vr(48+4*(k%4),4)}, {vr(ACC,16)}")
        if k + 4 < 10:
            a(f"ds_read_b128 {vr(48+4*(k%4),4)}, v{vXs} offset:{(8*((k+4)//2)+((k+4)%2))*1024}")
    a("s_setprio 3")
    a("s_barrier")
    a.nop(12)
    a(f"s_sub_u32 s{sT3}, s{sW}, 4")
    a(f"s_lshl_b32 s{sT}, s{sT3}, 12")
    a(f"v_add_u32 v{vT}, s{sT}, v{vX16}")
    for q in range(4):
        a(f"ds_write_b128 v{vT}, {vr(ACC+4*q,4)} offset:{q*1024}")
    a("s_waitcnt lgkmcnt(0)")
    a("s_barrier")
    a(f"s_lshl_b32 s{sT}, s{sT3}, 10")
    a(f"v_add_u32 v{vT}, s{sT}, v{vX16}")
    for jj in range(4):
        a(f"ds_read_b128 {vr(ACC+4*jj,4)}, v{vT} offset:{jj*4096}")
    a(f"s_lshl_b32 s{sT}, s{sT3}, 4")
    a(f"v_add_u32 v{vOut}, s{sT}, v{vOut}")
    srd(a, R_C, S_OUT, S_OUT+1, NX)
    a("s_waitcnt lgkmcnt(0)")
    for j in range(4):
        a(f"v_add_f32 v{ACC+j}, v{ACC+j}, v{ACC+4+j}")
        a(f"v_add_f32 v{ACC+8+j}, v{ACC+8+j}, v{ACC+12+j}")
    for j in range(4): a(f"v_add_f32 v{ACC+j}, v{ACC+j}, v{40+j}")
    for j in range(4): a(f"v_add_f32 v{ACC+j}, v{ACC+j}, v{ACC+8+j}")
    a(f"v_cvt_pk_bf16_f32 v32, v{ACC}, v{ACC+1}")
    a(f"v_cvt_pk_bf16_f32 v33, v{ACC+2}, v{ACC+3}")
    a(f"buffer_store_dwordx2 v[32:33], v{vOut}, s[{R_WS if False else R_C}:{R_C+3}], 0 offen")
    st.end()
    a("s_endpgm")

def gen():
    a = Asm()
    a("s_cmp_ge_u32 s2, 768")
    a("s_cbranch_scc1 K_end")
    a("s_load_dwordx16 s[4:19], s[0:1], 0")
    a("s_load_dwordx8 s[20:27], s[0:1], 64")
    a("s_load_dwordx2 s[28:29], s[0:1], 96")
    a(f"v_and_b32 v{vLane}, 63, v0")
    a(f"v_lshrrev_b32 v4, 6, v0")
    a(f"v_lshrrev_b32 v{vH}, 5, v{vLane}")
    a(f"v_readfirstlane_b32 s{sW}, v4")
    a(f"v_and_b32 v{vN}, 31, v{vLane}")
    a("s_waitcnt lgkmcnt(0)")
    srd(a, R_WS, S_WS, S_WS+1, WS_END)
    srd(a, R_FL, S_WS, S_WS+1, FL_SIZE, WS_FL)
    for r in (R_A, R_B, R_C): srd(a, r, S_WS, S_WS+1, WS_END)
    for i in range(4, 16): a(f"v_mov_b32 v{i}, 0")
    a("s_cmp_ge_u32 s2, 512")
    a("s_cbranch_scc1 ROLE_B2")
    a("s_cmp_ge_u32 s2, 256")
    a("s_cbranch_scc1 ROLE_B1")
    role_A(a)
    a.label("ROLE_B1")
    role_B1(a)
    a.label("ROLE_B2")
    role_B2(a)
    a.label("K_end")
    a("s_endpgm")
    grid = OPT.get("grid", 768)
    s = f"; generated by gen2.py\n; @launch grid=({grid},1,1) block=(512,1,1) lds={LDS_BYTES}\n"
    s += '.amdgcn_target "amdgcn-amd-amdhsa--gfx950"\n.text\n'
    s += kernel_header(KN) + a.text()
    s += '.section .rodata,"a"\n.p2align 6\n' + kernel_desc(KN, 128, 102)
    return s

if __name__ == "__main__":
    if "--prof" in sys.argv: PROF = True
    for x in sys.argv:
        if x.startswith("-D"):
            k, _, v = x[2:].partition("="); OPT[k] = int(v) if v else 1
    open(sys.argv[1], "w").write(gen())
    if PROF: json.dump(STAMP_NAMES, open("stamps2.json", "w"))
```

```python
import sys, math, json
from asmlib import *

NAME = "parallel_sum__grouped_kv_mqa__dense_activation_squared_relu__prompt"
KN = NAME + "_kernel"
WS_XF = 0x0
WS_R  = 0x280000
WS_KV = 0x290000
WS_OF = 0x2D0000
WS_H  = 0x550000
WS_FL = 0xB50000
WS_WF = 0xB90000
WS_END = 0xE40000
WS_DBG = 0x2000000
FL_KV, FL_D, FL_H, FL_O, FL_W = 0, 128, 640, 896, 1152
FL_N = 1408
FL_SIZE = FL_N * 128
NX = 2048 * 640 * 2
QSCALE = (20 ** -0.5) * math.log2(math.e)
DELTA = 96.0
LDS_BYTES = 81920
PROF = False
OPT = {}
SPIN_MAX = 200000

S_X, S_WQ, S_WK, S_WV, S_WO, S_W1, S_B1, S_W2, S_B2, S_OUT, S_DBG, S_WS = 4, 6, 8, 10, 12, 16, 18, 20, 22, 24, 26, 28
sW = 30
sTag = 31
R_WS = 32
R_FL = 36
R_A = 40
R_B = 44
R_C = 48
sRB, sCG, sT, sT2, sT3 = 52, 53, 54, 55, 56
vLane, vH, vN = 1, 2, 3

class Stamps:
    def __init__(self, a, role): self.a = a; self.n = 1; self.names = []; self.role = role
    def start(self):
        if not PROF: return
        for i in range(68, 94): self.a(f"s_mov_b32 s{i}, 0")
        self.a("s_memrealtime s[64:65]"); self.a("s_memtime s[66:67]"); self.a("s_waitcnt lgkmcnt(0)"); self.n = 2
    def mark(self, name):
        if not PROF: return
        assert self.n < 15
        self.a(f"s_memtime s[{64+2*self.n}:{65+2*self.n}]"); self.a("s_waitcnt lgkmcnt(0)")
        self.n += 1; self.names.append(name)
    def end(self):
        if not PROF: return
        a = self.a
        a("s_waitcnt vmcnt(0)")
        self.mark("final-drain")
        a("s_memrealtime s[94:95]"); a("s_waitcnt lgkmcnt(0)")
        a("s_mov_b64 exec, 1")
        a(f"s_lshl_b32 s98, s2, 3")
        a(f"s_add_u32 s98, s98, s{sW}")
        a(f"s_lshl_b32 s98, s98, 6")
        a(f"s_add_u32 s98, s98, {WS_DBG}")
        a(f"s_add_u32 s96, s{S_WS}, s98")
        a(f"s_addc_u32 s97, s{S_WS+1}, 0")
        a(f"v_mov_b32 v0, 0")
        for i in list(range(14)) + [15]:
            a(f"v_mov_b32 v1, s{64+2*i}")
            a(f"global_store_dword v0, v1, s[96:97] offset:{4*i}")
        a(f"v_mov_b32 v1, {self.n}")
        a(f"global_store_dword v0, v1, s[96:97] offset:56")
        a("s_waitcnt vmcnt(0)")
        STAMP_NAMES[self.role] = self.names
STAMP_NAMES = {}

def bf16_round(a, dst, src):
    a(f"v_cvt_pk_bf16_f32 v{dst}, v{src}, v{src}")
    a(f"v_lshlrev_b32 v{dst}, 16, v{dst}")

def decode_rb_cg(a, j):
    a(f"s_lshr_b32 s{sCG}, s{j}, 6")
    a(f"s_and_b32 s{sRB}, s{j}, 7")
    a(f"s_lshl_b32 s{sRB}, s{sRB}, 3")
    a(f"s_bfe_u32 s{sT}, s{j}, 0x30003")
    a(f"s_add_u32 s{sRB}, s{sRB}, s{sT}")

def get_tag(a, vt, lab):
    L = f"{lab}_tag"
    a(f"s_mov_b32 s{sT3}, {SPIN_MAX}")
    a(f"v_mov_b32 v{vt}, 0")
    a.label(L)
    a(f"global_load_dword v{vt+1}, v{vt}, s[{S_DBG}:{S_DBG+1}] sc1")
    a("s_waitcnt vmcnt(0)")
    a(f"v_readfirstlane_b32 s{sTag}, v{vt+1}")
    a(f"s_sub_u32 s{sT3}, s{sT3}, 1")
    a(f"s_cmp_eq_u32 s{sT3}, 0")
    a(f"s_cbranch_scc1 {L}_done")
    a(f"s_cmp_eq_u32 s{sTag}, 0")
    a(f"s_cbranch_scc0 {L}_done")
    a("s_sleep 1")
    a(f"s_branch {L}")
    a.label(f"{L}_done")

def poll_flags(a, vt, lab, s_idx, nflags, region, tries=None):
    if nflags == 128:
        poll_flags(a, vt, lab + "a", None, 64, region, tries)
        poll_flags(a, vt, lab + "b", None, 64, region + 64, tries)
        return
    L = f"{lab}_poll"
    a(f"v_lshlrev_b32 v{vt}, 7, v{vLane}")
    if s_idx is None:
        a(f"s_mov_b32 s63, {region*128}")
    else:
        a(f"s_lshl_b32 s63, s{s_idx}, 7")
        if region: a(f"s_add_u32 s63, s63, {region*128}")
    a(f"s_mov_b32 s{sT3}, {tries or SPIN_MAX}")
    a("s_mov_b64 s[100:101], exec")
    if nflags < 64:
        a(f"s_mov_b32 exec_lo, {(1 << min(nflags, 32)) - 1 if nflags < 32 else -1}")
        a(f"s_mov_b32 exec_hi, {((1 << (nflags - 32)) - 1) if nflags > 32 else 0}")
    a.label(L)
    a(f"buffer_load_dword v{vt+1}, v{vt}, s[{R_FL}:{R_FL+3}], s63 offen sc1")
    a("s_waitcnt vmcnt(0)")
    a(f"v_cmp_ne_u32 vcc, s{sTag}, v{vt+1}")
    a("s_nop 1")
    a(f"s_and_b64 exec, exec, vcc")
    a(f"s_cbranch_execz {L}_done")
    a(f"s_sub_u32 s{sT3}, s{sT3}, 1")
    a(f"s_cmp_eq_u32 s{sT3}, 0")
    a(f"s_cbranch_scc1 {L}_done")
    a(f"s_sleep {OPT.get('sleep', 2)}")
    a(f"s_branch {L}")
    a.label(f"{L}_done")
    a("s_mov_b64 exec, s[100:101]")

def set_flag(a, vt, s_idx, region):
    a(f"v_mov_b32 v{vt}, s{sTag}")
    a(f"v_mov_b32 v{vt+1}, 0")
    a(f"s_lshl_b32 s63, s{s_idx}, 7")
    if region: a(f"s_add_u32 s63, s63, {region*128}")
    a("s_mov_b64 s[100:101], exec")
    a("s_mov_b64 exec, 1")
    a(f"buffer_store_dword v{vt}, v{vt+1}, s[{R_FL}:{R_FL+3}], s63 offen sc1")
    a("s_mov_b64 exec, s[100:101]")

def tr_addr(a, dst, dst2, pitch, hrows, second_rows, s_base, t):
    a(f"v_bfe_u32 v{t}, v{vLane}, 2, 2")
    a(f"v_mul_u32_u24 v{t+1}, {hrows}, v{vH}")
    a(f"v_add_u32 v{t}, v{t}, v{t+1}")
    a(f"v_bfe_u32 v{t+1}, v{vLane}, 4, 1")
    a(f"v_and_b32 v{t+2}, 3, v{vLane}")
    a(f"v_lshlrev_b32 v{t+2}, 3, v{t+2}")
    a(f"v_lshl_add_u32 v{t+1}, v{t+1}, 5, v{t+2}")
    a(f"v_mul_u32_u24 v{dst}, {pitch}, v{t}")
    a(f"v_add3_u32 v{dst}, v{dst}, v{t+1}, s{s_base}")
    if dst2 is not None:
        a(f"v_add_u32 v{dst2}, {second_rows*pitch}, v{dst}")

def role_A(a):
    OPT["nopre0"] = 1
    st = Stamps(a, "A")
    st.start()
    XB = 0; XP = 1056; XH = 528; RBUF = 42240
    RING = 42496; NSTG = 3; RW = NSTG*1024; DEPTH = 16
    KSTG = 57856
    KVX = 67072
    LFL = XB + 512
    LFL2 = XB + 1040
    T4F = 75264
    SB = [0, 16384, 32768, 49152]
    QBUF = 65536; QP = 328
    sStep, sSoff, sLds, sRho, sWrap, sIt = 57, 58, 59, 60, 61, 57
    vT = 4
    vVo, vTr, vTr2, vX16 = 12, 13, 14, 15
    X = 16
    TMP = 36
    vSum, vSq, vM = 52, 53, 54
    vOne, vSelLo, vSelHi = 56, 57, 58
    vR, vXa, vWst, vTag = 9, 10, 11, 61
    ACC = 16; FB = 32; WS_ = 64
    a(f"s_mov_b32 s{sT2}, s2")
    decode_rb_cg(a, sT2)
    L_notag = "A_notag"
    a(f"s_cmp_lg_u32 s2, 0")
    a(f"s_cbranch_scc1 {L_notag}")
    a(f"s_cmp_lg_u32 s{sW}, 0")
    a(f"s_cbranch_scc1 {L_notag}")
    a(f"s_memrealtime s[62:63]")
    a("s_waitcnt lgkmcnt(0)")
    a(f"s_or_b32 s62, s62, 1")
    a(f"v_mov_b32 v{vT}, s62")
    a(f"v_mov_b32 v{vT+1}, 0")
    a("s_mov_b64 exec, 1")
    a(f"global_store_dword v{vT+1}, v{vT}, s[{S_DBG}:{S_DBG+1}] sc1")
    a("s_mov_b64 exec, -1")
    a.label(L_notag)
    srd(a, R_A, S_X, S_X+1, NX)
    a(f"s_lshl_b32 s{sT}, s{sRB}, 5")
    a(f"s_lshl_b32 s{sT2}, s{sW}, 2")
    a(f"s_add_u32 s{sT}, s{sT}, s{sT2}")
    a(f"v_lshrrev_b32 v{vT}, 4, v{vLane}")
    a(f"v_add_u32 v{vT}, s{sT}, v{vT}")
    a(f"v_mul_u32_u24 v{vT}, 1280, v{vT}")
    a(f"v_and_b32 v{vT+1}, 15, v{vLane}")
    a(f"v_lshl_add_u32 v{vT}, v{vT+1}, 4, v{vT}")
    for i in range(5):
        a(f"buffer_load_dwordx4 {vr(X+4*i,4)}, v{vT}, s[{R_A}:{R_A+3}], 0 offen offset:{256*i}")
    a(f"v_lshlrev_b32 v{vX16}, 4, v{vLane}")
    a(f"s_and_b32 s{sRho}, s{sRB}, 7")
    L_nowe = "A_nowe"
    a(f"s_cmp_lt_u32 s{sW}, 5")
    a(f"s_cbranch_scc1 {L_nowe}")
    a(f"s_cmp_ge_u32 s{sCG}, 2")
    a(f"s_cbranch_scc1 {L_nowe}")
    a(f"s_cmp_eq_u32 s{sCG}, 1")
    a(f"s_cselect_b32 s{R_B}, s{S_WV}, s{S_WK}")
    a(f"s_cselect_b32 s{R_B+1}, s{S_WV+1}, s{S_WK+1}")
    a(f"s_mov_b32 s{R_B+2}, {640*20*2}")
    a(f"s_mov_b32 s{R_B+3}, 0x00020000")
    a(f"s_sub_u32 s{sT}, s{sW}, 5")
    a(f"s_mul_i32 s{sStep}, s{sT}, 13")
    a(f"s_min_u32 s{sT}, s{sT}, 1")
    a(f"s_add_u32 s{sStep}, s{sStep}, s{sT}")
    a(f"s_mul_i32 s{sT}, s{sRho}, 5")
    a(f"s_add_u32 s{sT2}, s{sStep}, s{sT}")
    a(f"s_cmp_ge_u32 s{sT2}, 40")
    a(f"s_cselect_b32 s{sT}, 40, 0")
    a(f"s_sub_u32 s{sT2}, s{sT2}, s{sT}")
    a(f"s_mul_i32 s{sSoff}, s{sT2}, 640")
    for i in range(14):
        a(f"s_add_u32 s{sT}, s{sSoff}, 640")
        a(f"buffer_load_dwordx4 {vr(WS_+4*i,4)}, v{vX16}, s[{R_B}:{R_B+3}], s{sSoff} offen")
        a(f"s_cmp_eq_u32 s{sT}, 25600")
        a(f"s_cselect_b32 s{sSoff}, 0, s{sT}")
    a.label(L_nowe)
    a("s_barrier")
    L_nq = "A_nq"
    a(f"s_cmp_ge_u32 s{sW}, 5")
    a(f"s_cbranch_scc1 {L_nq}")
    srd(a, R_B, S_WQ, S_WQ+1, 640*640*2)
    a(f"v_lshrrev_b32 v{vT}, 2, v{vLane}")
    a(f"v_mul_u32_u24 v{vT}, 1280, v{vT}")
    a(f"v_and_b32 v{vT+1}, 3, v{vLane}")
    a(f"v_lshl_add_u32 v{vT}, v{vT+1}, 4, v{vT}")
    a(f"s_mul_i32 s{sT}, s{sCG}, 320")
    a(f"s_lshl_b32 s{sT2}, s{sW}, 6")
    a(f"s_add_u32 s{sT}, s{sT}, s{sT2}")
    a(f"v_add_u32 v{vVo}, s{sT}, v{vT}")
    a(f"s_mul_i32 s{sLds}, s{sW}, {RW}")
    a(f"s_add_u32 s{sLds}, s{sLds}, {RING}")
    a(f"s_mul_i32 s{sSoff}, s{sRho}, {5*20480}")
    def wload(k):
        d = WS_ + 4*(k % DEPTH)
        a(f"s_add_u32 s{sT}, s{sSoff}, 20480")
        a(f"buffer_load_dwordx4 {vr(d,4)}, v{vVo}, s[{R_B}:{R_B+3}], s{sSoff} offen")
        a(f"s_cmp_eq_u32 s{sT}, {40*20480}")
        a(f"s_cselect_b32 s{sSoff}, 0, s{sT}")
    NW0 = OPT.get("NW0", 8)
    for k in range(NW0): wload(k)
    tr_addr(a, vTr, vTr2, 64, 8, 4, sLds, vT)
    a(f"v_add_u32 v{vWst}, s{sLds}, v{vX16}")
    a(f"s_waitcnt vmcnt({NW0})")
    a(f"s_branch A_xok")
    a.label(L_nq)
    a(f"s_waitcnt vmcnt(14)")
    a(f"s_cmp_lt_u32 s{sCG}, 2")
    a(f"s_cbranch_scc1 A_xok2")
    a(f"s_waitcnt vmcnt(0)")
    a.label("A_xok2")
    a(f"v_mov_b32 v{vT}, 0")
    a(f"global_load_dword v{vTag}, v{vT}, s[{S_DBG}:{S_DBG+1}] sc1")
    a.label("A_xok")
    st.mark("xwait")
    a(f"v_mov_b32 v{vOne}, 0x3f803f80")
    a(f"v_mov_b32 v{vSelLo}, 0x00003f80")
    a(f"v_mov_b32 v{vSelHi}, 0x3f800000")
    for i in range(4): a(f"v_mov_b32 v{TMP+i}, 0")
    for i in range(20):
        a(f"v_dot2c_f32_bf16 v{TMP+(i%2)}, v{X+i}, v{vOne}")
        a(f"v_dot2c_f32_bf16 v{TMP+2+(i%2)}, v{X+i}, v{X+i}")
    a(f"v_lshrrev_b32 v{vT}, 4, v{vLane}")
    a(f"s_lshl_b32 s{sT}, s{sW}, 2")
    a(f"v_add_u32 v{vT}, s{sT}, v{vT}")
    a(f"v_and_b32 v{vT+1}, 1, v{vLane}")
    a(f"v_mul_u32_u24 v{vT+1}, {XH}, v{vT+1}")
    a(f"v_lshl_add_u32 v{vT+1}, v{vT}, 4, v{vT+1}")
    a(f"v_add_f32 v{vSum}, v{TMP}, v{TMP+1}")
    a(f"v_add_f32 v{vSq}, v{TMP+2}, v{TMP+3}")
    a(f"v_bfe_u32 v{vT+2}, v{vLane}, 1, 3")
    a(f"s_mul_i32 s{sT}, s{sRho}, 5")
    a(f"s_sub_u32 s{sT}, 40, s{sT}")
    for ror in (8, 4, 2, 1):
        a(f"v_add_f32_dpp v{vSum}, v{vSum}, v{vSum} row_ror:{ror} row_mask:0xf bank_mask:0xf")
        a(f"v_add_f32_dpp v{vSq}, v{vSq}, v{vSq} row_ror:{ror} row_mask:0xf bank_mask:0xf")
        if ror != 1: a.nop(1)
    a(f"v_add_u32 v{vT+2}, s{sT}, v{vT+2}")
    inv = f32bits(1.0/640)
    a(f"v_mul_f32 v{vM}, {inv}, v{vSum}")
    a(f"v_mul_f32 v{TMP+1}, {inv}, v{vSq}")
    a(f"v_fma_f32 v{TMP+1}, -v{vM}, v{vM}, v{TMP+1}")
    a(f"v_max_f32 v{TMP+1}, 0, v{TMP+1}")
    bf16_round(a, TMP+1, TMP+1)
    bf16_round(a, vM, vM)
    a(f"v_add_f32 v{TMP+1}, {f32bits(1e-5)}, v{TMP+1}")
    a(f"v_sub_f32 v{vM}, 0, v{vM}")
    bf16_round(a, TMP+1, TMP+1)
    a(f"v_sqrt_f32 v{vSum}, v{TMP+1}")
    for base in range(0, 20, 8):
        g = min(8, 20-base)
        for i in range(g):
            a(f"v_dot2_f32_bf16 v{TMP+2*i}, v{X+base+i}, v{vSelLo}, v{vM}")
            a(f"v_dot2_f32_bf16 v{TMP+2*i+1}, v{X+base+i}, v{vSelHi}, v{vM}")
        if base == 0:
            bf16_round(a, vSum, vSum)
            a(f"v_rcp_f32 v{vR}, v{vSum}")
        else:
            a.nop(3)
        for i in range(g):
            a(f"v_cvt_pk_bf16_f32 v{X+base+i}, v{TMP+2*i}, v{TMP+2*i+1}")
    a(f"v_lshlrev_b32 v{vT+3}, 2, v{vT}")
    a(f"ds_write_b32 v{vT+3}, v{vR} offset:{RBUF}")
    for i in range(5):
        if i: a(f"v_add_u32 v{vT+2}, 8, v{vT+2}")
        a(f"v_subrev_u32 v{vT+3}, 40, v{vT+2}")
        a(f"v_min_u32 v{vT+3}, v{vT+3}, v{vT+2}")
        a(f"v_mul_u32_u24 v{vT+3}, {XP}, v{vT+3}")
        a(f"v_add_u32 v{vT+3}, v{vT+3}, v{vT+1}")
        a(f"ds_write_b128 v{vT+3}, {vr(X+4*i,4)} offset:{XB}")
    a(f"v_mul_u32_u24 v{vXa}, {XH}, v{vH}")
    a(f"v_lshl_add_u32 v{vXa}, v{vN}, 4, v{vXa}")
    a(f"s_cmp_ge_u32 s{sW}, 5")
    a(f"s_cbranch_scc1 A_ln5")
    for k in range(NW0, 10): wload(k)
    a(f"s_cmp_eq_u32 s{sW}, 4")
    a(f"s_cbranch_scc1 A_lnb")
    for k in range(10, DEPTH): wload(k)
    a(f"s_branch A_lnb")
    a.label("A_ln5")
    a(f"v_mov_b32 v{vT}, {LFL}")
    for i in range(4): a(f"v_mov_b32 v{TMP+i}, 0")
    a(f"ds_write_b128 v{vT}, v[{TMP}:{TMP+3}]")
    a(f"ds_write_b128 v{vT}, v[{TMP}:{TMP+3}] offset:{LFL2-LFL}")
    a("s_waitcnt vmcnt(0)")
    a(f"v_readfirstlane_b32 s{sTag}, v{vTag}")
    a.label("A_lnb")
    a("s_waitcnt lgkmcnt(0)")
    a("s_barrier")
    a(f"v_lshlrev_b32 v{vT}, 2, v{vN}")
    a(f"ds_read_b32 v{vR}, v{vT} offset:{RBUF}")
    st.mark("LN")
    def ensure_tag(lab):
        a(f"s_cmp_lg_u32 s{sTag}, 0")
        a(f"s_cbranch_scc1 {lab}_have")
        get_tag(a, vT, lab)
        a.label(f"{lab}_have")
    L_kvp, L_exp, L_bar1 = "A_kvp", "A_exp", "A_bar1"
    a(f"s_cmp_ge_u32 s{sW}, 5")
    a(f"s_cbranch_scc1 {L_kvp}")
    a(f"s_cmp_eq_u32 s{sW}, 4")
    a(f"s_cbranch_scc1 A_job4")
    if OPT.get("noq"): a(f"s_branch {L_bar1}")
    def pipe_gemm(nsteps, wr, rd, need_vm, refill, cin0):
        for k in range(5):
            if k < nsteps:
                need_vm(k, -5 + k)
                wr(k)
            if 0 <= k - 2 < nsteps: rd(k - 2)
        for s_ in range(nsteps):
            n_ops = 0
            if s_ + 5 < nsteps:
                need_vm(s_ + 5, s_)
                wr(s_ + 5)
            if s_ + 3 < nsteps: rd(s_ + 3)
            for t in range(s_ + 1, s_ + 4):
                if t + 2 < nsteps: n_ops += 1
                if t < nsteps: n_ops += 3
            a(f"s_waitcnt lgkmcnt({n_ops})")
            f = FB + 8*(s_ % 4)
            cin = cin0 if s_ == 0 else vr(ACC, 16)
            a(f"v_mfma_f32_32x32x16_bf16 {vr(ACC,16)}, {vr(f,4)}, {vr(f+4,4)}, {cin}")
            refill(s_)
    def q_wr(k): a(f"ds_write_b128 v{vWst}, {vr(WS_+4*(k % DEPTH),4)} offset:{(k % NSTG)*1024}")
    def q_rd(k):
        f = FB + 8*(k % 4)
        a(f"ds_read_b64_tr_b16 v[{f}:{f+1}], v{vTr} offset:{(k % NSTG)*1024}")
        a(f"ds_read_b64_tr_b16 v[{f+2}:{f+3}], v{vTr2} offset:{(k % NSTG)*1024}")
        a(f"ds_read_b128 {vr(f+4,4)}, v{vXa} offset:{XB + k*XP}")
    def q_vm(k, s_now):
        issued = DEPTH + max(0, min(s_now, 40 - DEPTH + QOFF) - QOFF) if s_now > 0 else DEPTH
        issued = min(issued, 40)
        a(f"s_waitcnt vmcnt({issued - 1 - k})")
    QOFF = 0
    def q_refill(s_):
        if s_ + DEPTH < 40: wload(s_ + DEPTH)
    pipe_gemm(40, q_wr, q_rd, q_vm, q_refill, "0")
    st.mark("gemm")
    a.nop(12)
    a(f"v_mul_f32 v{vT}, {f32bits(QSCALE)}, v{vR}")
    for j in range(16): a(f"v_mul_f32 v{ACC+j}, v{ACC+j}, v{vT}")
    for k in range(8): a(f"v_cvt_pk_bf16_f32 v{TMP+k}, v{ACC+2*k}, v{ACC+2*k+1}")
    a(f"s_branch {L_bar1}")

    JW = WS_ + 20
    def job_loads():
        srd(a, R_B, S_WQ, S_WQ+1, 640*640*2)
        a(f"v_lshrrev_b32 v{vT}, 2, v{vLane}")
        a(f"v_mul_u32_u24 v{vT}, 1280, v{vT}")
        a(f"v_and_b32 v{vT+1}, 3, v{vLane}")
        a(f"v_lshl_add_u32 v{vT}, v{vT+1}, 4, v{vT}")
        a(f"s_mul_i32 s{sT}, s{sCG}, 320")
        a(f"s_add_u32 s{sT}, s{sT}, 256")
        a(f"v_add_u32 v{vT}, s{sT}, v{vT}")
        a(f"s_sub_u32 s{sT}, s{sW}, 4")
        a(f"s_mul_i32 s{sT}, s{sT}, 10")
        a(f"s_mul_i32 s{sT2}, s{sRho}, 5")
        a(f"s_add_u32 s{sT}, s{sT}, s{sT2}")
        a(f"s_cmp_ge_u32 s{sT}, 40")
        a(f"s_cselect_b32 s{sT2}, 40, 0")
        a(f"s_sub_u32 s{sT}, s{sT}, s{sT2}")
        a(f"s_mul_i32 s{sSoff}, s{sT}, 20480")
        for k in range(10):
            a(f"s_add_u32 s{sT}, s{sSoff}, 20480")
            a(f"buffer_load_dwordx4 {vr(JW+4*k,4)}, v{vT}, s[{R_B}:{R_B+3}], s{sSoff} offen")
            a(f"s_cmp_eq_u32 s{sT}, {40*20480}")
            a(f"s_cselect_b32 s{sSoff}, 0, s{sT}")
    def job_run(raw, vm_after):
        tr_addr(a, vTr, vTr2, 64, 8, 4, sLds, vT)
        a(f"v_add_u32 v{vWst}, s{sLds}, v{vX16}")
        a(f"s_sub_u32 s{sT}, s{sW}, 4")
        a(f"s_mul_i32 s{sT}, s{sT}, {10*XP}")
        a(f"v_add_u32 v{vVo}, s{sT}, v{vXa}")
        def j_wr(k): a(f"ds_write_b128 v{vWst}, {vr(raw+4*k,4)} offset:{(k % NSTG)*1024}")
        def j_rd(k):
            f = FB + 8*(k % 4)
            a(f"ds_read_b64_tr_b16 v[{f}:{f+1}], v{vTr} offset:{(k % NSTG)*1024}")
            a(f"ds_read_b64_tr_b16 v[{f+2}:{f+3}], v{vTr2} offset:{(k % NSTG)*1024}")
            a(f"ds_read_b128 {vr(f+4,4)}, v{vVo} offset:{k*XP}")
        def j_vm(k, s_): a(f"s_waitcnt vmcnt({9 - k + vm_after})")
        pipe_gemm(10, j_wr, j_rd, j_vm, lambda s_: None, "0")
        a("s_waitcnt lgkmcnt(0)")
        a.nop(12)
    def job_publish():
        Lp5, Lpd = a.newlabel("A_jp5"), a.newlabel("A_jpd")
        a(f"s_cmp_eq_u32 s{sW}, 5")
        a(f"s_cbranch_scc1 {Lp5}")
        for q in range(3): a(f"ds_write_b128 v{vWst}, {vr(ACC+4*q,4)} offset:{q*1024}")
        a(f"s_sub_u32 s{sT}, s{sW}, 6")
        a(f"s_lshl_b32 s{sT}, s{sT}, 10")
        a(f"s_add_u32 s{sT}, s{sT}, {T4F}")
        a(f"v_add_u32 v{vT}, s{sT}, v{vX16}")
        a(f"ds_write_b128 v{vT}, {vr(ACC+12,4)}")
        a(f"s_branch {Lpd}")
        a.label(Lp5)
        a(f"v_add_u32 v{vT}, {KVX+4096}, v{vX16}")
        for q in range(4): a(f"ds_write_b128 v{vT}, {vr(ACC+4*q,4)} offset:{q*1024}")
        a.label(Lpd)
        a(f"s_sub_u32 s{sT}, s{sW}, 5")
        a(f"s_lshl_b32 s{sT}, s{sT}, 2")
        a(f"s_add_u32 s{sT}, s{sT}, {LFL2}")
        a(f"v_mov_b32 v{vT}, s{sT}")
        a(f"v_mov_b32 v{vT+1}, 1")
        a(f"ds_write_b32 v{vT}, v{vT+1}")
    a.label("A_job4")
    job_run(WS_, 0)
    a(f"v_mov_b32 v{vT}, {LFL2}")
    a(f"s_mov_b32 s{sT3}, {SPIN_MAX}")
    a.label("A_j4spin")
    a(f"ds_read_b96 v[{vT+2}:{vT+4}], v{vT}")
    a("s_waitcnt lgkmcnt(0)")
    a(f"v_and_b32 v{vT+2}, v{vT+2}, v{vT+3}")
    a(f"v_and_b32 v{vT+2}, v{vT+2}, v{vT+4}")
    a("s_nop 0")
    a(f"v_readfirstlane_b32 s{sT}, v{vT+2}")
    a(f"s_sub_u32 s{sT3}, s{sT3}, 1")
    a(f"s_cmp_eq_u32 s{sT3}, 0")
    a(f"s_cbranch_scc1 A_j4spin_done")
    a(f"s_cmp_eq_u32 s{sT}, 1")
    a(f"s_cbranch_scc0 A_j4spin")
    a.label("A_j4spin_done")
    a(f"v_add_u32 v{vT}, {KVX+4096}, v{vX16}")
    a(f"v_add_u32 v{vT+1}, {KSTG+3072}, v{vX16}")
    a(f"v_add_u32 v{vT+2}, {T4F}, v{vX16}")
    for q in range(4): a(f"ds_read_b128 {vr(64+4*q,4)}, v{vT} offset:{q*1024}")
    for p_ in range(2):
        for q in range(3): a(f"ds_read_b128 {vr(80+16*p_+4*q,4)}, v{vT+1} offset:{p_*3072 + q*1024}")
        a(f"ds_read_b128 {vr(80+16*p_+12,4)}, v{vT+2} offset:{p_*1024}")
    a("s_waitcnt lgkmcnt(0)")
    for j in range(16): a(f"v_add_f32 v{64+j}, v{64+j}, v{80+j}")
    for j in range(16): a(f"v_add_f32 v{ACC+j}, v{ACC+j}, v{96+j}")
    for j in range(16): a(f"v_add_f32 v{ACC+j}, v{ACC+j}, v{64+j}")
    st.mark("job4")
    a(f"v_mul_f32 v{vT}, {f32bits(QSCALE)}, v{vR}")
    for j in range(16): a(f"v_mul_f32 v{ACC+j}, v{ACC+j}, v{vT}")
    for k in range(8): a(f"v_cvt_pk_bf16_f32 v{TMP+k}, v{ACC+2*k}, v{ACC+2*k+1}")
    a(f"s_branch {L_bar1}")
    a.label(L_kvp)
    a("s_setprio 3")
    a(f"s_cmp_ge_u32 s{sCG}, 2")
    a(f"s_cbranch_scc1 A_kvp_skip")
    a(f"s_sub_u32 s{sT}, s{sW}, 5")
    a(f"s_mul_i32 s{sLds}, s{sT}, 3072")
    a(f"s_add_u32 s{sLds}, s{sLds}, {KSTG}")
    tr_addr(a, vTr, vTr2, 40, 8, 4, sLds, vT)
    a(f"v_add_u32 v{vWst}, s{sLds}, v{vX16}")
    a(f"s_mul_i32 s{sT}, s{sStep}, {XP}")
    a(f"v_add_u32 v{vVo}, s{sT}, v{vXa}")
    a(f"v_add_u32 v{vT+4}, {13*XP}, v{vVo}")
    a(f"s_cmp_eq_u32 s{sW}, 5")
    a(f"s_cbranch_scc1 A_kv13")
    for i in range(4): a(f"v_mov_b32 v{WS_+52+i}, 0")
    a(f"v_mov_b32 v{vT+4}, v{vXa}")
    a.label("A_kv13")
    def k_wr(k): a(f"ds_write_b128 v{vWst}, {vr(WS_+4*k,4)} offset:{(k % NSTG)*1024}")
    def k_rd(k):
        f = FB + 8*(k % 4)
        a(f"ds_read_b64_tr_b16 v[{f}:{f+1}], v{vTr} offset:{(k % NSTG)*1024}")
        a(f"ds_read_b64_tr_b16 v[{f+2}:{f+3}], v{vTr2} offset:{(k % NSTG)*1024}")
        if k == 13: a(f"ds_read_b128 {vr(f+4,4)}, v{vT+4}")
        else: a(f"ds_read_b128 {vr(f+4,4)}, v{vVo} offset:{k*XP}")
    pipe_gemm(14, k_wr, k_rd, lambda k, s_: None, lambda s_: None, "0")
    a("s_waitcnt lgkmcnt(0)")
    job_loads()
    a(f"s_cmp_eq_u32 s{sW}, 5")
    a(f"s_cbranch_scc1 A_kv5")
    a(f"s_sub_u32 s{sT}, s{sW}, 6")
    a(f"s_lshl_b32 s{sT}, s{sT}, 12")
    a(f"s_add_u32 s{sT}, s{sT}, {KVX}")
    a(f"v_add_u32 v{vT}, s{sT}, v{vX16}")
    for q in range(4):
        a(f"ds_write_b128 v{vT}, {vr(ACC+4*q,4)} offset:{q*1024}")
    a(f"s_sub_u32 s{sT}, s{sW}, 6")
    a(f"s_lshl_b32 s{sT}, s{sT}, 2")
    a(f"s_add_u32 s{sT}, s{sT}, {LFL}")
    a(f"v_mov_b32 v{vT}, s{sT}")
    a(f"v_mov_b32 v{vT+1}, 1")
    a(f"ds_write_b32 v{vT}, v{vT+1}")
    a(f"s_branch A_kvp_done")
    a.label("A_kv5")
    a(f"v_mov_b32 v{vT}, {LFL}")
    a(f"s_mov_b32 s{sT3}, {SPIN_MAX}")
    a.label("A_kvspin")
    a(f"ds_read_b64 v[{vT+2}:{vT+3}], v{vT}")
    a("s_waitcnt lgkmcnt(0)")
    a(f"v_and_b32 v{vT+2}, v{vT+2}, v{vT+3}")
    a("s_nop 0")
    a(f"v_readfirstlane_b32 s{sT}, v{vT+2}")
    a(f"s_sub_u32 s{sT3}, s{sT3}, 1")
    a(f"s_cmp_eq_u32 s{sT3}, 0")
    a(f"s_cbranch_scc1 A_kvspin_done")
    a(f"s_cmp_eq_u32 s{sT}, 1")
    a(f"s_cbranch_scc0 A_kvspin")
    a.label("A_kvspin_done")
    a(f"v_add_u32 v{vT}, {KVX}, v{vX16}")
    for p_ in range(2):
        for q in range(4):
            a(f"ds_read_b128 {vr(FB+16*p_+4*q,4)}, v{vT} offset:{p_*4096 + q*1024}")
    a("s_waitcnt lgkmcnt(0)")
    for j in range(16):
        a(f"v_add_f32 v{FB+j}, v{FB+j}, v{FB+16+j}")
    for j in range(16):
        a(f"v_add_f32 v{ACC+j}, v{ACC+j}, v{FB+j}")
    for j in range(16): a(f"v_mul_f32 v{ACC+j}, v{ACC+j}, v{vR}")
    a(f"v_cmp_eq_u32 vcc, 1, v{vH}")
    a(f"v_mov_b32 v{vT}, 1.0")
    a(f"v_mov_b32 v{vT+1}, 0")
    a(f"v_cndmask_b32 v{ACC+8}, v{ACC+8}, v{vT}, vcc")
    for j in range(9, 12): a(f"v_cndmask_b32 v{ACC+j}, v{ACC+j}, v{vT+1}, vcc")
    for j in range(12, 16): a(f"v_mov_b32 v{ACC+j}, 0")
    for k in range(8): a(f"v_cvt_pk_bf16_f32 v{TMP+k}, v{ACC+2*k}, v{ACC+2*k+1}")
    a(f"s_lshl_b32 s{sT}, s{sRB}, 12")
    a(f"s_add_u32 s{sT}, s{sT}, {WS_KV}")
    L_v = "A_v"; L_kvdone = "A_kvdone"
    a(f"s_cmp_eq_u32 s{sCG}, 1")
    a(f"s_cbranch_scc1 {L_v}")
    a(f"buffer_store_dwordx4 {vr(TMP,4)}, v{vX16}, s[{R_WS}:{R_WS+3}], s{sT} offen sc1")
    a(f"v_lshlrev_b32 v{vT}, 3, v{vLane}")
    a(f"buffer_store_dwordx2 v[{TMP+4}:{TMP+5}], v{vT}, s[{R_WS}:{R_WS+3}], s{sT} offen offset:1024 sc1")
    a(f"s_branch {L_kvdone}")
    a.label(L_v)
    a(f"s_mov_b32 s{sLds}, {KVX}")
    a(f"v_lshlrev_b32 v{vT}, 6, v{vN}")
    a(f"v_lshl_add_u32 v{vT}, v{vH}, 3, v{vT}")
    a(f"v_add_u32 v{vT}, s{sLds}, v{vT}")
    for q in range(4):
        a(f"ds_write_b64 v{vT}, v[{TMP+2*q}:{TMP+2*q+1}] offset:{16*q}")
    tr_addr(a, vTr, None, 64, 4, 8, sLds, vT+1)
    for u in range(2):
        a(f"ds_read_b64_tr_b16 v[{TMP+8+4*u}:{TMP+9+4*u}], v{vTr} offset:{u*1024}")
        a(f"ds_read_b64_tr_b16 v[{TMP+10+4*u}:{TMP+11+4*u}], v{vTr} offset:{u*1024 + 512}")
    a("s_waitcnt lgkmcnt(0)")
    a(f"buffer_store_dwordx4 {vr(TMP+8,4)}, v{vX16}, s[{R_WS}:{R_WS+3}], s{sT} offen offset:2048 sc1")
    a(f"buffer_store_dwordx4 {vr(TMP+12,4)}, v{vX16}, s[{R_WS}:{R_WS+3}], s{sT} offen offset:3072 sc1")
    a.label(L_kvdone)
    a(f"s_mov_b32 s{sLds}, {KSTG}")
    job_run(JW, 2)
    job_publish()
    ensure_tag("A5")
    a("s_waitcnt vmcnt(0)")
    st.mark("k5:drain")
    a(f"s_lshl_b32 s{sT}, s{sRB}, 1")
    a(f"s_add_u32 s{sT}, s{sT}, s{sCG}")
    set_flag(a, vT, sT, FL_KV)
    a(f"s_branch {L_bar1}")
    a.label("A_kvp_skip")
    job_loads()
    a(f"s_cmp_lg_u32 s{sW}, 5")
    a(f"s_cbranch_scc1 A_kvp_done")
    a(f"s_mov_b32 s{sLds}, {KSTG}")
    job_run(JW, 0)
    job_publish()
    a(f"s_branch {L_bar1}")
    a.label("A_kvp_done")
    a(f"s_mul_i32 s{sT}, s{sCG}, 2")
    a(f"s_add_u32 s{sT}, s{sT}, s{sW}")
    a(f"s_sub_u32 s{sT}, s{sT}, 6")
    a(f"s_sub_u32 s{sT2}, s{sT}, s{sRho}")
    a(f"s_and_b32 s{sT2}, s{sT2}, 7")
    a(f"s_mul_i32 s{sT2}, s{sT2}, {5*XP}")
    a(f"v_add_u32 v{vT}, s{sT2}, v{vXa}")
    for i in range(5):
        a(f"ds_read_b128 {vr(WS_+4*i,4)}, v{vT} offset:{XB + XP*i}")
    a(f"s_mul_i32 s{sT2}, s{sRB}, 40")
    a(f"s_mul_i32 s{sStep}, s{sT}, 5")
    a(f"s_add_u32 s{sT2}, s{sT2}, s{sStep}")
    a(f"s_lshl_b32 s{sT2}, s{sT2}, 10")
    if WS_XF: a(f"s_add_u32 s{sT2}, s{sT2}, {WS_XF}")
    a(f"s_lshl_b32 s{sSoff}, s{sRB}, 3")
    a(f"s_add_u32 s{sSoff}, s{sSoff}, s{sT}")
    a(f"v_add_u32 v{vT+1}, 4096, v{vX16}")
    a("s_waitcnt lgkmcnt(0)")
    for i in range(4):
        a(f"buffer_store_dwordx4 {vr(WS_+4*i,4)}, v{vX16}, s[{R_WS}:{R_WS+3}], s{sT2} offen offset:{1024*i} sc1")
    a(f"buffer_store_dwordx4 {vr(WS_+16,4)}, v{vT+1}, s[{R_WS}:{R_WS+3}], s{sT2} offen sc1")
    L_nor = "A_nor"
    a(f"s_cmp_lg_u32 s{sT}, 0")
    a(f"s_cbranch_scc1 {L_nor}")
    a(f"s_lshl_b32 s{sT2}, s{sRB}, 7")
    a(f"s_add_u32 s{sT2}, s{sT2}, {WS_R}")
    a(f"v_lshlrev_b32 v{vT}, 2, v{vN}")
    a(f"buffer_store_dword v{vR}, v{vT}, s[{R_WS}:{R_WS+3}], s{sT2} offen sc1")
    a.label(L_nor)
    a(f"s_mov_b32 s{sWrap}, s{sSoff}")
    a(f"s_sub_u32 s{sT}, s{sW}, 5")
    a(f"s_mul_i32 s{sLds}, s{sT}, 3072")
    a(f"s_add_u32 s{sLds}, s{sLds}, {KSTG}")
    job_run(JW, 5)
    job_publish()
    ensure_tag("A6")
    a("s_waitcnt vmcnt(0)")
    st.mark("x:drain")
    set_flag(a, vT, sWrap, FL_D)
    a(f"s_cmp_eq_u32 s{sW}, 7")
    a(f"s_cbranch_scc0 {L_bar1}")
    poll_flags(a, vT, "A7", None, 128, FL_KV)
    st.mark("kvpoll")
    srd(a, R_A, S_WS, S_WS+1, 262144, WS_KV)
    a(f"v_lshlrev_b32 v{vT}, 7, v{vLane}")
    for g in range(6):
        a(f"s_mov_b32 s{sT}, {g*8192}")
        a(f"buffer_load_dword v0, v{vT}, s[{R_A}:{R_A+3}], s{sT} offen")
    a(f"s_branch A_bar1_nowait")
    a.label(L_bar1)
    a("s_waitcnt vmcnt(0)")
    a.label("A_bar1_nowait")
    a("s_setprio 0")
    a("s_waitcnt lgkmcnt(0)")
    a("s_barrier")
    st.mark("bar1")
    vA16, vA8, vDma, vA16b, vA8b = vX16, 13, 14, 12, 111
    S = [16, 32]
    O = 48
    P = 96
    Q1, Q2 = 104, 108
    K1, K2 = 112, 116
    V1, V2 = 120, 124
    vM2 = 110
    sSoffK, sLdsW = 58, 59
    srd(a, R_A, S_WS, S_WS+1, 262144, WS_KV)
    a(f"s_lshl_b32 s{sLdsW}, s{sW}, 11")
    a(f"v_add_u32 v{vDma}, s{sLdsW}, v{vA16}")
    a(f"v_lshlrev_b32 v{vA8}, 3, v{vLane}")
    a(f"v_add_u32 v{vA16b}, 32768, v{vA16}")
    a(f"v_add_u32 v{vA8b}, 32768, v{vA8}")
    def dma_chunk(slot):
        a(f"s_add_u32 m0, s{sLdsW}, {SB[slot]}")
        a("s_nop 0")
        a(f"buffer_load_dwordx4 v{vDma}, s[{R_A}:{R_A+3}], s{sSoffK} offen sc1 lds")
        a(f"buffer_load_dwordx4 v{vDma}, s[{R_A}:{R_A+3}], s{sSoffK} offen offset:1024 sc1 lds")
        a(f"s_add_u32 s{sSoffK}, s{sSoffK}, 16384")
    if OPT.get("nopre0"):
        a(f"s_mov_b32 s{sSoffK}, 0")
        for c in (0, 1, 2): dma_chunk(c)
    else:
        a(f"s_mov_b32 s{sSoffK}, 16384")
        for c in (1, 2): dma_chunk(c)
    L_noqw = "A_noqw"
    a(f"v_mul_u32_u24 v{vT}, {QP}, v{vN}")
    a(f"v_add_u32 v{vT}, {QBUF}, v{vT}")
    a(f"s_cmp_ge_u32 s{sW}, 5")
    a(f"s_cbranch_scc1 {L_noqw}")
    a(f"s_lshl_b32 s{sT}, s{sW}, 6")
    a(f"v_lshl_add_u32 v{vT+1}, v{vH}, 3, v{vT}")
    a(f"v_add_u32 v{vT+1}, s{sT}, v{vT+1}")
    for q in range(4):
        a(f"ds_write_b64 v{vT+1}, v[{TMP+2*q}:{TMP+2*q+1}] offset:{16*q}")
    a.label(L_noqw)
    a("s_waitcnt lgkmcnt(0)")
    a("s_barrier")
    a(f"s_mul_i32 s{sT}, s{sW}, 40")
    a(f"v_add_u32 v{vT}, s{sT}, v{vT}")
    a(f"v_lshl_add_u32 v{vT+1}, v{vH}, 3, v{vT}")
    a(f"ds_read_b64 v[{Q1}:{Q1+1}], v{vT+1}")
    a(f"ds_read_b64 v[{Q1+2}:{Q1+3}], v{vT+1} offset:16")
    a(f"ds_read_b64 v[{Q2}:{Q2+1}], v{vT} offset:32")
    def lds_addr(t, off, wide):
        base = SB[(t // 4) % 4] + (t % 4) * 4096 + off
        if base >= 32768: return (vA16b if wide else vA8b), base - 32768
        return (vA16 if wide else vA8), base
    def rd_K1(t): v_, o = lds_addr(t, 0, True); a(f"ds_read_b128 {vr(K1,4)}, v{v_} offset:{o}")
    def rd_K2(t): v_, o = lds_addr(t, 1024, False); a(f"ds_read_b64 {vr(K2,2)}, v{v_} offset:{o}")
    def rd_V1(t): v_, o = lds_addr(t, 2048, True); a(f"ds_read_b128 {vr(V1,4)}, v{v_} offset:{o}")
    def rd_V2(t): v_, o = lds_addr(t, 3072, True); a(f"ds_read_b128 {vr(V2,4)}, v{v_} offset:{o}")
    def qk1(dst): a(f"v_mfma_f32_32x32x16_bf16 {vr(dst,16)}, {vr(K1,4)}, {vr(Q1,4)}, 0")
    def qk2(dst): a(f"v_mfma_f32_32x32x8_bf16 {vr(dst,16)}, {vr(K2,2)}, {vr(Q2,2)}, {vr(dst,16)}")
    if OPT.get("nopre0"):
        a("s_waitcnt vmcnt(4)")
        a("s_barrier")
    rd_K1(0); rd_K2(0)
    for i in range(16): a(f"v_mov_b32 v{O+i}, 0")
    a(f"v_cmp_eq_u32 vcc, 1, v{vH}")
    a(f"v_mov_b32 v{vT}, 0")
    a("s_waitcnt lgkmcnt(0)")
    a(f"v_cndmask_b32 v{Q2}, v{Q2}, v{vT}, vcc")
    a(f"v_cndmask_b32 v{Q2+1}, v{Q2+1}, v{vT}, vcc")
    def set_m(delta):
        a(f"v_mov_b32 v{vT}, v{vM2}")
        a.nop(2)
        a(f"v_permlane32_swap_b32 v{vM2}, v{vT}")
        a.nop(1)
        a(f"v_max_f32 v{vM2}, v{vM2}, v{vT}")
        if delta: a(f"v_add_f32 v{vM2}, {f32bits(delta)}, v{vM2}")
        a(f"v_cvt_pk_bf16_f32 v{vT}, -v{vM2}, 0")
        a(f"v_cmp_eq_u32 vcc, 1, v{vH}")
        a.nop(2)
        a(f"v_cndmask_b32 v{Q2}, v{Q2}, v{vT}, vcc")
    a(f"v_mov_b32 v{vM2}, 0xff800000")
    a.nop(1)
    qk1(S[0]); qk2(S[0])
    rd_K1(1); rd_K2(1)
    a("s_waitcnt lgkmcnt(0)")
    qk1(S[1]); qk2(S[1])
    rd_K1(0); rd_K2(0)
    for i in range(4, 8): a(f"v_mov_b32 v{P+i}, 0")
    for i in range(4): a(f"v_mov_b32 v{V2+i}, 0")
    a.nop(4)
    for i in range(8):
        a(f"v_max3_f32 v{vM2}, v{S[0]+2*i}, v{S[0]+2*i+1}, v{vM2}")
    a.nop(4)
    for i in range(8):
        a(f"v_max3_f32 v{vM2}, v{S[1]+2*i}, v{S[1]+2*i+1}, v{vM2}")
    set_m(DELTA)
    a("s_waitcnt lgkmcnt(0)")
    a.nop(1)
    qk1(S[0]); qk2(S[0])
    rd_K1(1); rd_K2(1); rd_V1(0)
    a.nop(12)
    st.mark("sample")
    a(f"s_setprio {OPT.get('aprio', 0)}")
    a(f"s_mov_b32 s{sIt}, 0")
    L_loop = "A_loop"
    a(".p2align 6")
    a.label(L_loop)
    def e(cur, i): a(f"v_exp_f32 v{cur+i}, v{cur+i}")
    def p(cur, k): a(f"v_cvt_pk_bf16_f32 v{P+k}, v{cur+2*k}, v{cur+2*k+1}")
    for t in range(16):
        cur, nxt = S[t % 2], S[(t+1) % 2]
        if t % 4 == 2:
            a("s_waitcnt vmcnt(2)")
            a("s_barrier")
            dma_chunk((t // 4 + 3) % 4)
        e(cur, 0); e(cur, 1)
        a("s_waitcnt lgkmcnt(2)")
        a(f"v_mfma_f32_32x32x16_bf16 {vr(O,16)}, {vr(V2,4)}, {vr(P+4,4)}, {vr(O,16)}")
        rd_V2(t)
        e(cur, 2); e(cur, 3); p(cur, 0); p(cur, 1)
        qk1(nxt)
        rd_K1(t+2)
        e(cur, 4); e(cur, 5); e(cur, 6); e(cur, 7); p(cur, 2); p(cur, 3)
        a("s_waitcnt lgkmcnt(2)")
        qk2(nxt)
        rd_K2(t+2)
        e(cur, 8); e(cur, 9); e(cur, 10); e(cur, 11); p(cur, 4); p(cur, 5)
        a(f"v_mfma_f32_32x32x16_bf16 {vr(O,16)}, {vr(V1,4)}, {vr(P,4)}, {vr(O,16)}")
        rd_V1(t+1)
        e(cur, 12); e(cur, 13); e(cur, 14); e(cur, 15); p(cur, 6); p(cur, 7)
    a(f"s_add_u32 s{sIt}, s{sIt}, 1")
    a(f"s_cmp_lt_u32 s{sIt}, 4")
    a(f"s_cbranch_scc1 {L_loop}")
    a("s_waitcnt lgkmcnt(0)")
    a(f"v_mfma_f32_32x32x16_bf16 {vr(O,16)}, {vr(V2,4)}, {vr(P+4,4)}, {vr(O,16)}")
    a("s_setprio 0")
    st.mark("loop")
    a.nop(16)
    L_fin, L_slow = "A_fin", "A_slow"
    a(f"s_mov_b32 s{sIt}, 0")
    a.label(L_fin)
    a(f"v_mov_b32 v{vT}, v{O+8}")
    a(f"v_mov_b32 v{vT+1}, v{O+8}")
    a.nop(2)
    a(f"v_permlane32_swap_b32 v{vT}, v{vT+1}")
    a(f"v_max3_f32 v{vT+2}, |v{O}|, |v{O+1}|, |v{O+2}|")
    for j in range(3, 12, 2):
        j2 = min(j+1, 11)
        a(f"v_max3_f32 v{vT+2}, |v{O+j}|, |v{O+j2}|, v{vT+2}")
    a(f"v_mov_b32 v{vT+3}, {f32bits(2.0**120)}")
    a(f"v_cmp_nlt_f32 vcc, v{vT+2}, v{vT+3}")
    a(f"v_cmp_nlt_f32 s[62:63], 0, v{vT+1}")
    a.nop(1)
    a(f"s_or_b64 vcc, vcc, s[62:63]")
    a(f"s_cmp_eq_u64 vcc, 0")
    a(f"s_cbranch_scc1 A_store")
    a(f"s_cmp_lg_u32 s{sIt}, 0")
    a(f"s_cbranch_scc1 A_store")
    a(f"s_branch {L_slow}")
    a.label("A_store")
    a(f"v_rcp_f32 v{vT+2}, v{vT+1}")
    a.nop(1)
    for j in range(12): a(f"v_mul_f32 v{O+j}, v{O+j}, v{vT+2}")
    for k in range(6): a(f"v_cvt_pk_bf16_f32 v{P+k}, v{O+2*k}, v{O+2*k+1}")
    a(f"s_lshl_b32 s{sT}, s{sCG}, 3")
    a(f"s_add_u32 s{sT}, s{sT}, s{sW}")
    a(f"s_mul_i32 s{sT}, s{sT}, 20")
    a(f"s_mul_i32 s{sT2}, s{sRB}, {40*1024}")
    a(f"s_add_u32 s{sT2}, s{sT2}, {WS_OF}")
    def oaddr(dst, colv):
        a(f"v_lshrrev_b32 v{dst}, 4, v{colv}")
        a(f"v_lshlrev_b32 v{dst}, 10, v{dst}")
        a(f"v_bfe_u32 v{vT+7}, v{colv}, 3, 1")
        a(f"v_lshl_add_u32 v{dst}, v{vT+7}, 9, v{dst}")
        a(f"v_and_b32 v{vT+7}, 7, v{colv}")
        a(f"v_lshl_add_u32 v{dst}, v{vT+7}, 1, v{dst}")
        a(f"v_lshl_add_u32 v{dst}, v{vN}, 4, v{dst}")
    a(f"v_lshlrev_b32 v{vT+3}, 2, v{vH}")
    a(f"v_add_u32 v{vT+3}, s{sT}, v{vT+3}")
    oaddr(vT+4, vT+3)
    a(f"buffer_store_dwordx2 v[{P}:{P+1}], v{vT+4}, s[{R_WS}:{R_WS+3}], s{sT2} offen sc1")
    a(f"v_add_u32 v{vT+3}, 8, v{vT+3}")
    oaddr(vT+5, vT+3)
    a(f"buffer_store_dwordx2 v[{P+2}:{P+3}], v{vT+5}, s[{R_WS}:{R_WS+3}], s{sT2} offen sc1")
    a(f"s_add_u32 s{sT}, s{sT}, 16")
    a(f"v_mov_b32 v{vT+3}, s{sT}")
    oaddr(vT+6, vT+3)
    a(f"v_cmp_eq_u32 vcc, 0, v{vH}")
    a(f"s_and_saveexec_b64 s[62:63], vcc")
    a(f"buffer_store_dwordx2 v[{P+4}:{P+5}], v{vT+6}, s[{R_WS}:{R_WS+3}], s{sT2} offen sc1")
    a(f"s_mov_b64 exec, s[62:63]")
    a("s_waitcnt vmcnt(0)")
    a("s_barrier")
    L_nofl = "A_nofl"
    a(f"s_cmp_lg_u32 s{sW}, 7")
    a(f"s_cbranch_scc1 {L_nofl}")
    a(f"s_lshl_b32 s{sT}, s{sRB}, 2")
    a(f"s_add_u32 s{sT}, s{sT}, s{sCG}")
    set_flag(a, vT, sT, FL_O)
    a.label(L_nofl)
    st.end()
    a("s_endpgm")
    a.label(L_slow)
    a(f"v_cmp_eq_u32 vcc, 1, v{vH}")
    a(f"v_mov_b32 v{vT}, 0")
    a(f"v_mov_b32 v{vM2}, 0xff800000")
    a(f"v_cndmask_b32 v{Q2}, v{Q2}, v{vT}, vcc")
    a(f"s_mov_b32 s{sSoffK}, 0")
    a.label("A_slow1")
    a(f"buffer_load_dwordx4 {vr(K1,4)}, v{vA16}, s[{R_A}:{R_A+3}], s{sSoffK} offen sc1")
    a(f"buffer_load_dwordx2 {vr(K2,2)}, v{vA8}, s[{R_A}:{R_A+3}], s{sSoffK} offen offset:1024 sc1")
    a("s_waitcnt vmcnt(0)")
    qk1(S[0]); qk2(S[0])
    a.nop(16)
    for i in range(8):
        a(f"v_max3_f32 v{vM2}, v{S[0]+2*i}, v{S[0]+2*i+1}, v{vM2}")
    a(f"s_add_u32 s{sSoffK}, s{sSoffK}, 4096")
    a(f"s_cmp_lt_u32 s{sSoffK}, 262144")
    a(f"s_cbranch_scc1 A_slow1")
    set_m(0.0)
    for i in range(16): a(f"v_mov_b32 v{O+i}, 0")
    a(f"s_mov_b32 s{sSoffK}, 0")
    a.label("A_slow2")
    a(f"buffer_load_dwordx4 {vr(K1,4)}, v{vA16}, s[{R_A}:{R_A+3}], s{sSoffK} offen sc1")
    a(f"buffer_load_dwordx2 {vr(K2,2)}, v{vA8}, s[{R_A}:{R_A+3}], s{sSoffK} offen offset:1024 sc1")
    a(f"buffer_load_dwordx4 {vr(V1,4)}, v{vA16}, s[{R_A}:{R_A+3}], s{sSoffK} offen offset:2048 sc1")
    a(f"buffer_load_dwordx4 {vr(V2,4)}, v{vA16}, s[{R_A}:{R_A+3}], s{sSoffK} offen offset:3072 sc1")
    a("s_waitcnt vmcnt(0)")
    qk1(S[0]); qk2(S[0])
    a.nop(16)
    for i in range(16): e(S[0], i)
    a.nop(1)
    for k in range(8): p(S[0], k)
    a.nop(2)
    a(f"v_mfma_f32_32x32x16_bf16 {vr(O,16)}, {vr(V1,4)}, {vr(P,4)}, {vr(O,16)}")
    a(f"v_mfma_f32_32x32x16_bf16 {vr(O,16)}, {vr(V2,4)}, {vr(P+4,4)}, {vr(O,16)}")
    a(f"s_add_u32 s{sSoffK}, s{sSoffK}, 4096")
    a(f"s_cmp_lt_u32 s{sSoffK}, 262144")
    a(f"s_cbranch_scc1 A_slow2")
    a.nop(16)
    a(f"s_mov_b32 s{sIt}, 1")
    a(f"s_branch {L_fin}")

def role_B1(a):
    st = Stamps(a, "B1")
    st.start()
    if OPT.get("bprio"): a(f"s_setprio {OPT['bprio']}")
    sG, sC = sRB, sCG
    sSoffW, sSoffX, sLdsW, sKH, sXb = 57, 58, 59, 60, 99
    vT = 4; vW = 10; vTr, vX16, vR = 13, 14, 15
    XS = 16; WF = 48; ACC = 76
    SLOT = 24576
    a(f"s_sub_u32 s{sT2}, s2, 256")
    a(f"s_and_b32 s{sG}, s{sT2}, 7")
    a(f"s_lshl_b32 s{sG}, s{sG}, 1")
    a(f"s_bfe_u32 s{sT}, s{sT2}, 0x10003")
    a(f"s_add_u32 s{sG}, s{sG}, s{sT}")
    a(f"s_lshr_b32 s{sC}, s{sT2}, 4")
    a(f"s_lshr_b32 s{sKH}, s{sW}, 2")
    a(f"v_lshlrev_b32 v{vX16}, 4, v{vLane}")
    a(f"s_and_b32 s{sT}, s{sW}, 3")
    a(f"s_mul_i32 s{sT}, s{sT}, 192")
    a(f"s_mul_i32 s{sT2}, s{sC}, 192")
    a(f"s_mul_i32 s{sT3}, s{sKH}, {320*3072}")
    a(f"s_add_u32 s{sT2}, s{sT2}, s{sT3}")
    for i in range(3):
        a(f"v_add_u32 v{vT}, s{sT}, v{vLane}")
        if i: a(f"v_add_u32 v{vT}, {64*i}, v{vT}")
        a(f"v_mul_u32_u24 v{vT+1}, 5462, v{vT}")
        a(f"v_lshrrev_b32 v{vT+1}, 16, v{vT+1}")
        a(f"v_mul_u32_u24 v{vT+2}, 12, v{vT+1}")
        a(f"v_sub_u32 v{vT}, v{vT}, v{vT+2}")
        a(f"v_lshlrev_b32 v{vT}, 4, v{vT}")
        a(f"v_mul_u32_u24 v{vT+1}, 3072, v{vT+1}")
        a(f"v_add3_u32 v{vW+i}, v{vT}, v{vT+1}, s{sT2}")
        if i: a(f"v_subrev_u32 v{vW+i}, {1024*i}, v{vW+i}")
    a(f"s_mul_i32 s{sT}, s{sKH}, 12288")
    tr_addr(a, vTr, None, 192, 8, 4, sT, vT)
    a(f"s_mul_i32 s{sLdsW}, s{sW}, 3072")
    srd(a, R_A, S_W1, S_W1+1, 640*1536*2)
    srd(a, R_B, S_B1, S_B1+1, 1536*2)
    a(f"s_mul_hi_u32 s{sT}, s{sC}, {(1<<32)//5 + 1}")
    a(f"s_mul_i32 s{sT}, s{sT}, 5")
    a(f"s_sub_u32 s{sT}, s{sC}, s{sT}")
    a(f"s_mul_i32 s{sSoffW}, s{sT}, {64*3072}")
    a(f"s_lshl_b32 s{sSoffX}, s{sT}, 12")
    a(f"s_and_b32 s{sT}, s{sW}, 3")
    a(f"s_lshl_b32 s{sT2}, s{sG}, 2")
    a(f"s_add_u32 s{sT}, s{sT}, s{sT2}")
    a(f"s_mul_i32 s{sXb}, s{sT}, {40*1024}")
    a(f"s_mul_i32 s{sT2}, s{sKH}, {20*1024}")
    a(f"s_add_u32 s{sXb}, s{sXb}, s{sT2}")
    if WS_XF: a(f"s_add_u32 s{sXb}, s{sXb}, {WS_XF}")
    def issueW(c):
        a(f"s_add_u32 m0, s{sLdsW}, {(c%3)*SLOT}")
        a(f"s_add_u32 s{sT}, s{sSoffW}, {64*3072}")
        for i in range(3):
            a(f"buffer_load_dwordx4 v{vW+i}, s[{R_A}:{R_A+3}], s{sSoffW} offen offset:{1024*i} lds")
        a(f"s_cmp_eq_u32 s{sT}, {320*3072}")
        a(f"s_cselect_b32 s{sSoffW}, 0, s{sT}")
    def issueX(c):
        xs = XS + 16*(c % 2)
        a(f"s_add_u32 s{sT2}, s{sXb}, s{sSoffX}")
        a(f"s_add_u32 s{sT}, s{sSoffX}, 4096")
        for i in range(4):
            a(f"buffer_load_dwordx4 {vr(xs+4*i,4)}, v{vX16}, s[{R_WS}:{R_WS+3}], s{sT2} offen offset:{1024*i} sc1")
        a(f"s_cmp_eq_u32 s{sT}, 20480")
        a(f"s_cselect_b32 s{sSoffX}, 0, s{sT}")
    a(f"s_cmp_lg_u32 s{sW}, 0")
    a(f"s_cbranch_scc1 B1_pre")
    get_tag(a, vT, "B1")
    a(f"s_lshl_b32 s{sT}, s{sG}, 5")
    if OPT.get("wftries", 2): poll_flags(a, vT, "B1p", sT, 32, FL_D, tries=OPT.get("wftries", 2))
    a.label("B1_pre")
    a("s_barrier")
    st.mark("prepoll")
    sJ = 96
    a(f"s_sub_u32 s{sJ}, s2, 256")
    srd(a, R_C, S_W2, S_W2+1, 1536*640*2)
    vF = 16
    a(f"v_lshrrev_b32 v32, 2, v{vLane}")
    a(f"v_mul_u32_u24 v32, 1280, v32")
    a(f"v_and_b32 v33, 3, v{vLane}")
    a(f"v_lshl_add_u32 v32, v33, 4, v32")
    a(f"s_lshl_b32 s{sT}, s{sW}, 11")
    a(f"v_add_u32 v33, s{sT}, v{vX16}")
    tr_addr(a, 34, None, 64, 4, 8, sT, vT)
    tr_addr(a, 35, None, 64, 8, 4, sT, vT)
    sDst = [92, 93]; sStp = [94, 95]
    for rnd in range(2):
        Lskip = f"B1_wf{rnd}_skip"
        a(f"s_mov_b32 s{sStp[rnd]}, -1")
        if rnd == 1:
            a(f"s_cmp_ge_u32 s{sW}, 3")
            a(f"s_cbranch_scc1 {Lskip}")
        a(f"s_and_b32 s{sT}, s{sJ}, 63")
        a(f"s_mul_i32 s{sT}, s{sT}, 11")
        a(f"s_add_u32 s{sT}, s{sT}, s{sW}")
        if rnd: a(f"s_add_u32 s{sT}, s{sT}, 8")
        a(f"s_cmp_ge_u32 s{sT}, 680")
        a(f"s_cbranch_scc1 {Lskip}")
        a(f"s_mul_hi_u32 s{sT2}, s{sT}, {(1<<32)//136 + 1}")
        a(f"s_mul_i32 s{sT3}, s{sT2}, 136")
        a(f"s_sub_u32 s{sT}, s{sT}, s{sT3}")
        a(f"s_mov_b32 s{sStp[rnd]}, s{sT}")
        a(f"s_lshr_b32 s{sT3}, s{sJ}, 6")
        a(f"s_mul_i32 s{sT3}, s{sT3}, 5")
        a(f"s_add_u32 s{sT2}, s{sT2}, s{sT3}")
        a(f"s_mul_i32 s62, s{sT2}, 136")
        a(f"s_add_u32 s62, s62, s{sT}")
        a(f"s_lshl_b32 s62, s62, 10")
        a(f"s_add_u32 s{sDst[rnd]}, s62, {WS_WF}")
        a(f"s_lshl_b32 s{sT2}, s{sT2}, 6")
        a(f"s_cmp_lt_u32 s{sT}, 96")
        a(f"s_cselect_b32 s{R_C}, s{S_W2}, s{S_WO}")
        a(f"s_cselect_b32 s{R_C+1}, s{S_W2+1}, s{S_WO+1}")
        a(f"s_cselect_b32 s63, 0, 96")
        a(f"s_mov_b32 s{R_C+2}, {640*640*2}")
        a(f"s_cbranch_scc0 B1_wf{rnd}_a")
        a(f"s_mov_b32 s{R_C+2}, {1536*640*2}")
        a.label(f"B1_wf{rnd}_a")
        a(f"s_sub_u32 s{sT3}, s{sT}, s63")
        a(f"s_mul_i32 s{sT3}, s{sT3}, {16*1280}")
        a(f"s_add_u32 s{sT3}, s{sT3}, s{sT2}")
        a(f"buffer_load_dwordx4 v[{16+4*rnd}:{19+4*rnd}], v32, s[{R_C}:{R_C+3}], s{sT3} offen")
        a.label(Lskip)
    a("s_waitcnt vmcnt(0)")
    for rnd in range(2):
        Lskip = f"B1_wg{rnd}_skip"
        a(f"s_cmp_eq_u32 s{sStp[rnd]}, -1")
        a(f"s_cbranch_scc1 {Lskip}")
        a(f"ds_write_b128 v33, v[{16+4*rnd}:{19+4*rnd}] offset:{1024*rnd}")
        a(f"s_cmp_lt_u32 s{sStp[rnd]}, 96")
        a(f"s_cbranch_scc0 B1_wf{rnd}_n")
        a(f"ds_read_b64_tr_b16 v[{24+4*rnd}:{25+4*rnd}], v34 offset:{1024*rnd}")
        a(f"ds_read_b64_tr_b16 v[{26+4*rnd}:{27+4*rnd}], v34 offset:{1024*rnd+512}")
        a(f"s_branch B1_wf{rnd}_s")
        a.label(f"B1_wf{rnd}_n")
        a(f"ds_read_b64_tr_b16 v[{24+4*rnd}:{25+4*rnd}], v35 offset:{1024*rnd}")
        a(f"ds_read_b64_tr_b16 v[{26+4*rnd}:{27+4*rnd}], v35 offset:{1024*rnd+256}")
        a.label(f"B1_wf{rnd}_s")
        a("s_waitcnt lgkmcnt(0)")
        a(f"buffer_store_dwordx4 v[{24+4*rnd}:{27+4*rnd}], v{vX16}, s[{R_WS}:{R_WS+3}], s{sDst[rnd]} offen sc1")
        a.label(Lskip)
    st.mark("wfprep")
    if OPT.get("t1", 1):
        a(f"s_cmp_ge_u32 s{sW}, 5")
        a(f"s_cbranch_scc1 B1_not1")
        a(f"s_and_b32 s{sT}, s{sG}, 1")
        a(f"s_mul_i32 s{sT}, s{sT}, 5")
        a(f"s_add_u32 s{sT}, s{sT}, s{sW}")
        a(f"s_mul_i32 s{sT}, s{sT}, {64*3072}")
        a(f"s_mul_i32 s{sT2}, s{sC}, 192")
        a(f"s_add_u32 s{sT}, s{sT}, s{sT2}")
        a(f"v_mul_u32_u24 v36, 3072, v{vLane}")
        a(f"buffer_load_dword v0, v36, s[{R_A}:{R_A+3}], s{sT} offen")
        a(f"buffer_load_dword v0, v36, s[{R_A}:{R_A+3}], s{sT} offen offset:128")
        a.label("B1_not1")
    L_np = "B1_np"
    a(f"s_cmp_lg_u32 s{sW}, 0")
    a(f"s_cbranch_scc1 {L_np}")
    a(f"s_lshl_b32 s{sT}, s{sG}, 5")
    poll_flags(a, vT, "B1", sT, 32, FL_D)
    if OPT.get("b1kv"): poll_flags(a, vT, "B1k", None, 128, FL_KV)
    a.label(L_np)
    a("s_barrier")
    st.mark("wait_d")
    issued = []
    def iX(c): issueX(c); issued.extend([("X", c)]*4)
    def iW(c): issueW(c); issued.extend([("W", c)]*3)
    iW(0); iX(0)
    a("s_barrier")
    iW(1); iX(1)
    a("s_barrier")
    iW(2)
    def wreads(c, k, buf):
        base = (c % 3)*SLOT + k*16*192
        for ct in range(3):
            a(f"ds_read_b64_tr_b16 v[{WF+12*buf+4*ct}:{WF+12*buf+4*ct+1}], v{vTr} offset:{base + ct*64}")
            a(f"ds_read_b64_tr_b16 v[{WF+12*buf+4*ct+2}:{WF+12*buf+4*ct+3}], v{vTr} offset:{base + ct*64 + 4*192}")
    for c in range(5):
        last = max(i for i, e_ in enumerate(issued) if e_ in (("W", c), ("X", c)))
        a(f"s_waitcnt vmcnt({len(issued) - 1 - last})")
        a("s_barrier")
        if c == 0:
            st.mark("b0")
            a(f"s_cmp_lg_u32 s{sW}, 0")
            a(f"s_cbranch_scc1 B1_nofw")
            set_flag(a, vT, sJ, FL_W)
            a.label("B1_nofw")
        if c == 1 and OPT.get("t2", 1):
            a(f"v_lshlrev_b32 v{vT+2}, 7, v{vLane}")
            a(f"s_sub_u32 s{sT}, s2, 256")
            a(f"s_lshr_b32 s{sT}, s{sT}, 3")
            a(f"s_mul_i32 s{sT}, s{sT}, {85*1024}")
            a(f"s_lshl_b32 s{sT2}, s{sW}, 13")
            a(f"s_add_u32 s{sT}, s{sT}, s{sT2}")
            a(f"s_add_u32 s{sT}, s{sT}, {WS_WF}")
            a(f"buffer_load_dword v0, v{vT+2}, s[{R_WS}:{R_WS+3}], s{sT} offen")
            a(f"s_cmp_ge_u32 s{sW}, 3")
            a(f"s_cbranch_scc1 B1_nt2")
            a(f"s_add_u32 s{sT}, s{sT}, 65536")
            a(f"buffer_load_dword v0, v{vT+2}, s[{R_WS}:{R_WS+3}], s{sT} offen")
            a.label("B1_nt2")
            issued.append("T")
        if 1 <= c <= 2: iW(c + 2)
        xs = XS + 16*(c % 2)
        wreads(c, 0, 0)
        for k in range(4):
            buf = k % 2
            if k < 3:
                wreads(c, k + 1, 1 - buf)
                a("s_waitcnt lgkmcnt(6)")
            else:
                a("s_waitcnt lgkmcnt(0)")
            for ct in range(3):
                cin = "0" if (c == 0 and k == 0) else vr(ACC+16*ct,16)
                a(f"v_mfma_f32_32x32x16_bf16 {vr(ACC+16*ct,16)}, {vr(WF+12*buf+4*ct,4)}, {vr(xs+4*k,4)}, {cin}")
        if c + 2 < 5: iX(c + 2)
    st.mark("kloop")
    a("s_setprio 3")
    a(f"s_and_b32 s{sT}, s{sW}, 3")
    a(f"s_lshl_b32 s{sT2}, s{sG}, 2")
    a(f"s_add_u32 s{sT}, s{sT}, s{sT2}")
    a(f"s_lshl_b32 s{sT2}, s{sT}, 7")
    a(f"s_add_u32 s{sT2}, s{sT2}, {WS_R}")
    a(f"v_lshlrev_b32 v{vT}, 2, v{vN}")
    a(f"buffer_load_dword v{vR}, v{vT}, s[{R_WS}:{R_WS+3}], s{sT2} offen sc1")
    a(f"s_mul_i32 s{sT2}, s{sC}, 192")
    a(f"s_lshl_b32 s{sT3}, s{sKH}, 5")
    a(f"s_add_u32 s{sT2}, s{sT2}, s{sT3}")
    a(f"v_lshlrev_b32 v{vT}, 3, v{vH}")
    B = XS
    for ct in range(3):
        for q in range(2):
            a(f"buffer_load_dwordx2 v[{B+4*ct+2*q}:{B+4*ct+2*q+1}], v{vT}, s[{R_B}:{R_B+3}], s{sT2} offen offset:{64*ct+16*q}")
    a(f"s_mul_i32 s{sT}, s{sT}, 96")
    a(f"s_mul_i32 s{sT2}, s{sC}, 6")
    a(f"s_add_u32 s{sT}, s{sT}, s{sT2}")
    a(f"s_add_u32 s{sT}, s{sT}, s{sKH}")
    a(f"s_lshl_b32 s{sXb}, s{sT}, 10")
    a(f"s_add_u32 s{sXb}, s{sXb}, {WS_H}")
    a("s_barrier")
    a.nop(4)
    T = XS + 16
    a(f"s_mul_i32 s{sT}, s{sW}, 6144")
    a(f"v_add_u32 v{vT+1}, s{sT}, v{vX16}")
    a(f"s_xor_b32 s{sT}, s{sW}, 4")
    a(f"s_mul_i32 s{sT}, s{sT}, 6144")
    a(f"v_add_u32 v{vT+2}, s{sT}, v{vX16}")
    a(f"s_cmp_eq_u32 s{sKH}, 1")
    a(f"s_cbranch_scc1 B1_x1")
    for ct in range(3):
        for q in range(2):
            a(f"ds_write_b128 v{vT+1}, {vr(ACC+16*ct+8+4*q,4)} offset:{(2*ct+q)*1024}")
    a(f"s_branch B1_x2")
    a.label("B1_x1")
    for ct in range(3):
        for q in range(2):
            a(f"ds_write_b128 v{vT+1}, {vr(ACC+16*ct+4*q,4)} offset:{(2*ct+q)*1024}")
    a.label("B1_x2")
    a("s_waitcnt lgkmcnt(0)")
    a("s_barrier")
    for i in range(6):
        a(f"ds_read_b128 {vr(T+4*i,4)}, v{vT+2} offset:{i*1024}")
    a("s_waitcnt lgkmcnt(0) vmcnt(0)")
    a(f"s_cmp_eq_u32 s{sKH}, 1")
    a(f"s_cbranch_scc1 B1_y1")
    for ct in range(3):
        for j in range(8): a(f"v_add_f32 v{T+8*ct+j}, v{T+8*ct+j}, v{ACC+16*ct+j}")
    a(f"s_branch B1_y2")
    a.label("B1_y1")
    for ct in range(3):
        for j in range(8): a(f"v_add_f32 v{T+8*ct+j}, v{T+8*ct+j}, v{ACC+16*ct+8+j}")
    a.label("B1_y2")
    TB = 56
    for ct in range(3):
        for q in range(2):
            b0 = B+4*ct+2*q
            acc = T+8*ct+4*q
            a(f"v_lshlrev_b32 v{TB}, 16, v{b0}")
            a(f"v_and_b32 v{TB+1}, 0xffff0000, v{b0}")
            a(f"v_lshlrev_b32 v{TB+2}, 16, v{b0+1}")
            a(f"v_and_b32 v{TB+3}, 0xffff0000, v{b0+1}")
            for j in range(4): a(f"v_fma_f32 v{acc+j}, v{acc+j}, v{vR}, v{TB+j}")
            for j in range(4): a(f"v_max_f32 v{acc+j}, 0, v{acc+j}")
            for j in range(4): a(f"v_mul_f32 v{acc+j}, v{acc+j}, v{acc+j}")
        for k in range(4):
            a(f"v_cvt_pk_bf16_f32 v{60+4*ct+k}, v{T+8*ct+2*k}, v{T+8*ct+2*k+1}")
    a(f"v_add_u32 v{vT}, 4096, v{vX16}")
    a(f"buffer_store_dwordx4 {vr(60,4)}, v{vX16}, s[{R_WS}:{R_WS+3}], s{sXb} offen sc1")
    a(f"buffer_store_dwordx4 {vr(64,4)}, v{vX16}, s[{R_WS}:{R_WS+3}], s{sXb} offen offset:2048 sc1")
    a(f"buffer_store_dwordx4 {vr(68,4)}, v{vT}, s[{R_WS}:{R_WS+3}], s{sXb} offen sc1")
    a("s_waitcnt vmcnt(0)")
    a("s_barrier")
    L_nf = "B1_nf"
    a(f"s_cmp_lg_u32 s{sW}, 0")
    a(f"s_cbranch_scc1 {L_nf}")
    a(f"s_lshl_b32 s{sT}, s{sG}, 4")
    a(f"s_add_u32 s{sT}, s{sT}, s{sC}")
    set_flag(a, vT, sT, FL_H)
    a.label(L_nf)
    st.mark("epi")
    st.end()
    a("s_endpgm")

def role_B2(a):
    st = Stamps(a, "B2")
    st.start()
    if OPT.get("bprio"): a(f"s_setprio {OPT['bprio']}")
    sSoffW, sSoffX, sWb, sIt, sRho, sWrapW, sRst = 57, 58, 59, 60, 61, 98, 99
    vT = 4
    vX16, vXa = 14, 15
    ACC = 16
    XR = 48
    WB = 64
    vOut = vT+3
    NXS = 8
    a(f"s_sub_u32 s{sT2}, s2, 512")
    decode_rb_cg(a, sT2)
    a(f"v_lshlrev_b32 v{vX16}, 4, v{vLane}")
    a(f"s_and_b32 s{sRho}, s{sRB}, 7")
    a(f"s_min_u32 s{sT3}, s{sW}, 4")
    a(f"s_mul_i32 s{sT}, s{sCG}, 5")
    a(f"s_add_u32 s{sT}, s{sT}, s{sT3}")
    a(f"s_mul_i32 s{sWb}, s{sT}, {136*1024}")
    a(f"s_add_u32 s{sWb}, s{sWb}, {WS_WF}")
    a(f"s_lshl_b32 s{sT}, s{sT}, 6")
    srd(a, R_C, S_X, S_X+1, NX)
    a(f"s_lshl_b32 s{sT2}, s{sRB}, 5")
    a(f"v_add_u32 v{vT}, s{sT2}, v{vN}")
    a(f"v_mul_u32_u24 v{vT}, 1280, v{vT}")
    a(f"v_lshl_add_u32 v{vT}, v{vH}, 3, v{vT}")
    a(f"v_add_u32 v{vOut}, s{sT}, v{vT}")
    for q in range(4):
        a(f"buffer_load_dwordx2 v[{XR+2*q}:{XR+2*q+1}], v{vOut}, s[{R_C}:{R_C+3}], 0 offen offset:{16*q}")
    srd(a, R_C, S_B2, S_B2+1, 640*2)
    a(f"v_lshlrev_b32 v{vT}, 3, v{vH}")
    for q in range(4):
        a(f"buffer_load_dwordx2 v[{XR+8+2*q}:{XR+8+2*q+1}], v{vT}, s[{R_C}:{R_C+3}], s{sT} offen offset:{16*q}")
    for i in range(16): a(f"v_mov_b32 v{ACC+i}, 0")
    def unpack_add(q, dst):
        for (src, t) in ((XR+2*q, 32), (XR+8+2*q, 36)):
            a(f"v_lshlrev_b32 v{t}, 16, v{src}")
            a(f"v_and_b32 v{t+1}, 0xffff0000, v{src}")
            a(f"v_lshlrev_b32 v{t+2}, 16, v{src+1}")
            a(f"v_and_b32 v{t+3}, 0xffff0000, v{src+1}")
        for j in range(4): a(f"v_add_f32 v{32+j}, v{32+j}, v{36+j}")
        for j in range(4): a(f"v_add_f32 v{dst+j}, v{dst+j}, v{32+j}")
    L_side = "B2_side"
    a(f"s_cmp_ge_u32 s{sW}, 4")
    a(f"s_cbranch_scc1 {L_side}")
    a("s_barrier")
    a(f"s_lshl_b32 s{sSoffW}, s{sRho}, 13")
    a(f"s_mov_b32 s{sWrapW}, {96*1024}")
    a(f"s_mov_b32 s{sRst}, 0")
    def wload(r):
        a(f"s_add_u32 s{sT2}, s{sWb}, s{sSoffW}")
        a(f"s_add_u32 s{sT}, s{sSoffW}, 1024")
        a(f"buffer_load_dwordx4 {vr(r,4)}, v{vX16}, s[{R_WS}:{R_WS+3}], s{sT2} offen sc1")
        a(f"s_cmp_eq_u32 s{sT}, s{sWrapW}")
        a(f"s_cselect_b32 s{sSoffW}, s{sRst}, s{sT}")
    for k in range(16): wload(WB + 4*k)
    st.mark("setup")
    a("s_barrier")
    a(f"s_mov_b32 s{sIt}, 0")
    L1 = "B2_p1"
    a.label(L1)
    XBUF = 32
    for j in range(16):
        k = j % 8
        if k == 0:
            a("s_barrier")
            a(f"s_lshl_b32 s{sT}, s{sIt}, 1")
            if j: a(f"s_add_u32 s{sT}, s{sT}, 1")
            a(f"s_and_b32 s{sT}, s{sT}, {NXS-1}")
            a(f"s_lshl_b32 s{sT}, s{sT}, 13")
            a(f"v_add_u32 v{vXa}, s{sT}, v{vX16}")
            for i in range(3):
                a(f"ds_read_b128 {vr(XBUF+4*i,4)}, v{vXa} offset:{i*1024}")
        if j == 0:
            L1n = "B2_p1n"
            a(f"s_cmp_lg_u32 s{sIt}, 5")
            a(f"s_cbranch_scc1 {L1n}")
            a(f"s_mul_i32 s{sSoffW}, s{sRho}, {5*1024}")
            a(f"s_add_u32 s{sSoffW}, s{sSoffW}, {96*1024}")
            a(f"s_mov_b32 s{sWrapW}, {136*1024}")
            a(f"s_mov_b32 s{sRst}, {96*1024}")
            a.label(L1n)
        if k + 3 < 8:
            a(f"ds_read_b128 {vr(XBUF+4*((k+3)%4),4)}, v{vXa} offset:{(k+3)*1024}")
            a("s_waitcnt vmcnt(15) lgkmcnt(3)")
        else:
            a(f"s_waitcnt vmcnt(15) lgkmcnt({7-k})")
        a(f"v_mfma_f32_32x32x16_bf16 {vr(ACC,16)}, {vr(WB+4*j,4)}, {vr(XBUF+4*(k%4),4)}, {vr(ACC,16)}")
        wload(WB + 4*j)
    a(f"s_add_u32 s{sIt}, s{sIt}, 1")
    a(f"s_cmp_lt_u32 s{sIt}, 6")
    a(f"s_cbranch_scc1 {L1}")
    st.mark("ffn2")
    a.nop(12)
    for q in range(4): unpack_add(q, ACC+4*q)
    XBUF = XR
    NBLK = 20
    def blk(s_):
        b = s_ % NBLK
        return (WB + 4*b) if b < 16 else (32 + 4*(b-16))
    for s_ in range(16, 20): wload(blk(s_))
    a("s_barrier")
    a(f"s_branch B2_oload")
    a.label(L_side)
    Lnp0 = "B2_np0"
    a(f"s_cmp_lg_u32 s{sW}, 7")
    a(f"s_cbranch_scc1 {Lnp0}")
    get_tag(a, vT, "B2")
    a(f"s_lshl_b32 s{sT}, s{sCG}, 6")
    poll_flags(a, vT, "B2w", sT, 64, FL_W)
    a.label(Lnp0)
    a("s_barrier")
    a(f"s_sub_u32 s{sT3}, s{sW}, 4")
    a("s_waitcnt vmcnt(0)")
    for jj in range(1, 4):
        Ls = a.newlabel("B2_q")
        a(f"s_cmp_lg_u32 s{sT3}, {jj}")
        a(f"s_cbranch_scc1 {Ls}")
        a(f"v_mov_b32 v{XR}, v{XR+2*jj}")
        a(f"v_mov_b32 v{XR+1}, v{XR+2*jj+1}")
        a(f"v_mov_b32 v{XR+8}, v{XR+8+2*jj}")
        a(f"v_mov_b32 v{XR+9}, v{XR+8+2*jj+1}")
        a.label(Ls)
    for j in range(4): a(f"v_mov_b32 v{40+j}, 0")
    unpack_add(0, 40)
    a(f"s_lshl_b32 s{sRst}, s{sT3}, 11")
    a(f"s_lshl_b32 s{sSoffW}, s{sRho}, 13")
    a(f"s_add_u32 s{sSoffW}, s{sSoffW}, s{sRst}")
    a(f"s_add_u32 s{sWrapW}, s{sRst}, {96*1024}")
    SD = 4
    def wpair(slot):
        a(f"s_add_u32 s{sT2}, s{sWb}, s{sSoffW}")
        a(f"s_add_u32 s{sT}, s{sSoffW}, 8192")
        a(f"buffer_load_dwordx4 {vr(WB+8*slot,4)}, v{vX16}, s[{R_WS}:{R_WS+3}], s{sT2} offen sc1")
        a(f"buffer_load_dwordx4 {vr(WB+8*slot+4,4)}, v{vX16}, s[{R_WS}:{R_WS+3}], s{sT2} offen offset:1024 sc1")
        a(f"s_cmp_eq_u32 s{sT}, s{sWrapW}")
        a(f"s_cselect_b32 s{sSoffW}, s{sRst}, s{sT}")
    for c in range(SD): wpair(c)
    Lnp = "B2_np"
    a(f"s_cmp_lg_u32 s{sW}, 7")
    a(f"s_cbranch_scc1 {Lnp}")
    a(f"s_lshr_b32 s{sT}, s{sRB}, 2")
    a(f"s_lshl_b32 s{sT}, s{sT}, 4")
    poll_flags(a, vT, "B2h", sT, 16, FL_H)
    a.label(Lnp)
    a("s_barrier")
    a(f"s_sub_u32 s{sT3}, s{sW}, 4")
    a(f"s_mul_i32 s{sT}, s{sRB}, {96*1024}")
    a(f"s_add_u32 s63, s{sT}, {WS_H}")
    a(f"s_lshl_b32 s97, s{sT3}, 11")
    a(f"s_add_u32 s63, s63, s97")
    a(f"s_lshl_b32 s{sSoffX}, s{sRho}, 13")
    a(f"v_add_u32 v{vT+5}, s97, v{vX16}")
    vXs = vT+5
    vm = Cnt(a, "vmcnt", 63)
    def xdma(c):
        a(f"s_add_u32 m0, s97, {(c % NXS)*8192}")
        a(f"s_add_u32 s{sT2}, s63, s{sSoffX}")
        a(f"s_add_u32 s{sT}, s{sSoffX}, 8192")
        for i in range(2):
            a(f"buffer_load_dwordx4 v{vX16}, s[{R_WS}:{R_WS+3}], s{sT2} offen offset:{1024*i} sc1 lds")
        a(f"s_cmp_eq_u32 s{sT}, {96*1024}")
        a(f"s_cselect_b32 s{sSoffX}, 0, s{sT}")
        vm.issue(("X", c), 2)
    for c in range(SD): vm.issue(("W", c), 2)
    XD = 6
    for c in range(XD): xdma(c)
    for c in range(12):
        vm.need(("X", c), ("W", c))
        a("s_barrier")
        if c + XD < 12: xdma(c + XD)
        for i in range(2):
            a(f"ds_read_b128 {vr(48+4*i,4)}, v{vXs} offset:{(c % NXS)*8192 + 1024*i}")
        a("s_waitcnt lgkmcnt(1)")
        a(f"v_mfma_f32_32x32x16_bf16 {vr(ACC,16)}, {vr(WB+8*(c%4),4)}, {vr(48,4)}, {vr(ACC,16)}")
        a("s_waitcnt lgkmcnt(0)")
        a(f"v_mfma_f32_32x32x16_bf16 {vr(ACC,16)}, {vr(WB+8*(c%4)+4,4)}, {vr(52,4)}, {vr(ACC,16)}")
        if c + SD < 12: wpair(c % 4); vm.issue(("W", c + SD), 2)
    a(f"s_sub_u32 s{sT3}, s{sW}, 4")
    a(f"s_lshl_b32 s{sT3}, s{sT3}, 1")
    a(f"s_mul_i32 s62, s{sRho}, 5")
    a(f"s_add_u32 s62, s62, s{sT3}")
    for m in range(5):
        for i in range(2):
            a(f"s_add_u32 s{sT}, s62, {8*m+i}")
            a(f"s_cmp_ge_u32 s{sT}, 40")
            a(f"s_cselect_b32 s{sT2}, 40, 0")
            a(f"s_sub_u32 s{sT}, s{sT}, s{sT2}")
            a(f"s_add_u32 s{sT}, s{sT}, 96")
            a(f"s_lshl_b32 s{sT}, s{sT}, 10")
            a(f"s_add_u32 s{sT}, s{sT}, s{sWb}")
            a(f"buffer_load_dwordx4 {vr(WB+4*(2*m+i),4)}, v{vX16}, s[{R_WS}:{R_WS+3}], s{sT} offen sc1")
    Lnp2 = "B2_np2"
    a(f"s_cmp_lg_u32 s{sW}, 7")
    a(f"s_cbranch_scc1 {Lnp2}")
    a(f"s_lshl_b32 s{sT}, s{sRB}, 2")
    poll_flags(a, vT, "B2o", sT, 4, FL_O)
    a.label(Lnp2)
    st.mark("wait_o")
    a("s_barrier")
    a.label("B2_oload")
    a(f"s_mul_i32 s63, s{sRB}, {40*1024}")
    a(f"s_add_u32 s63, s63, {WS_OF}")
    a(f"s_mul_i32 s62, s{sRho}, 5")
    for i in range(5):
        a(f"s_mul_i32 s{sT}, s{sW}, 5")
        a(f"s_add_u32 s{sT}, s{sT}, {i}")
        a(f"s_add_u32 s{sT2}, s{sT}, s62")
        a(f"s_cmp_ge_u32 s{sT2}, 40")
        a(f"s_cselect_b32 s{sIt}, 40, 0")
        a(f"s_sub_u32 s{sT2}, s{sT2}, s{sIt}")
        a(f"s_lshl_b32 s{sT2}, s{sT2}, 10")
        a(f"s_add_u32 s{sT2}, s{sT2}, s63")
        a(f"s_lshl_b32 m0, s{sT}, 10")
        a("s_nop 0")
        a(f"buffer_load_dwordx4 v{vX16}, s[{R_WS}:{R_WS+3}], s{sT2} offen sc1 lds")
    a("s_waitcnt vmcnt(0)")
    a("s_barrier")
    st.mark("oload")
    a(f"s_cmp_ge_u32 s{sW}, 4")
    a(f"s_cbranch_scc1 B2_side2")
    vm = Cnt(a, "vmcnt", 63); lg = Cnt(a, "lgkmcnt", 15)
    def xread(s_):
        r = XBUF + 4*(s_ % 4)
        a(f"ds_read_b128 {vr(r,4)}, v{vX16} offset:{s_*1024}")
        lg.issue(("X", s_))
    for s_ in range(3): xread(s_)
    for s_ in range(40):
        if s_ + 3 < 40: xread(s_ + 3)
        vm.need(("W", s_))
        lg.need(("X", s_))
        a(f"v_mfma_f32_32x32x16_bf16 {vr(ACC,16)}, {vr(blk(s_),4)}, {vr(XBUF+4*(s_%4),4)}, {vr(ACC,16)}")
        if s_ + NBLK < 40:
            wload(blk(s_)); vm.issue(("W", s_ + NBLK))
    st.mark("wo")
    a("s_setprio 3")
    a("s_barrier")
    a.nop(10)
    srd(a, R_C, S_OUT, S_OUT+1, NX)
    for q in range(4):
        a(f"v_cvt_pk_bf16_f32 v{32+2*q}, v{ACC+4*q}, v{ACC+4*q+1}")
        a(f"v_cvt_pk_bf16_f32 v{33+2*q}, v{ACC+4*q+2}, v{ACC+4*q+3}")
        a(f"buffer_store_dwordx2 v[{32+2*q}:{33+2*q}], v{vOut}, s[{R_C}:{R_C+3}], 0 offen offset:{16*q}")
    a("s_barrier")
    st.end()
    a("s_endpgm")
    a.label("B2_side2")
    for k in range(4):
        a(f"ds_read_b128 {vr(48+4*k,4)}, v{vXs} offset:{(8*(k//2)+(k%2))*1024}")
    for k in range(10):
        a(f"s_waitcnt lgkmcnt({min(3, 9-k)})")
        a(f"v_mfma_f32_32x32x16_bf16 {vr(ACC,16)}, {vr(WB+4*k,4)}, {vr(48+4*(k%4),4)}, {vr(ACC,16)}")
        if k + 4 < 10:
            a(f"ds_read_b128 {vr(48+4*(k%4),4)}, v{vXs} offset:{(8*((k+4)//2)+((k+4)%2))*1024}")
    a("s_setprio 3")
    a("s_barrier")
    a.nop(12)
    a(f"s_sub_u32 s{sT3}, s{sW}, 4")
    a(f"s_lshl_b32 s{sT}, s{sT3}, 12")
    a(f"v_add_u32 v{vT}, s{sT}, v{vX16}")
    for q in range(4):
        a(f"ds_write_b128 v{vT}, {vr(ACC+4*q,4)} offset:{q*1024}")
    a("s_waitcnt lgkmcnt(0)")
    a("s_barrier")
    a(f"s_lshl_b32 s{sT}, s{sT3}, 10")
    a(f"v_add_u32 v{vT}, s{sT}, v{vX16}")
    for jj in range(4):
        a(f"ds_read_b128 {vr(ACC+4*jj,4)}, v{vT} offset:{jj*4096}")
    a(f"s_lshl_b32 s{sT}, s{sT3}, 4")
    a(f"v_add_u32 v{vOut}, s{sT}, v{vOut}")
    srd(a, R_C, S_OUT, S_OUT+1, NX)
    a("s_waitcnt lgkmcnt(0)")
    for j in range(4):
        a(f"v_add_f32 v{ACC+j}, v{ACC+j}, v{ACC+4+j}")
        a(f"v_add_f32 v{ACC+8+j}, v{ACC+8+j}, v{ACC+12+j}")
    for j in range(4): a(f"v_add_f32 v{ACC+j}, v{ACC+j}, v{40+j}")
    for j in range(4): a(f"v_add_f32 v{ACC+j}, v{ACC+j}, v{ACC+8+j}")
    a(f"v_cvt_pk_bf16_f32 v32, v{ACC}, v{ACC+1}")
    a(f"v_cvt_pk_bf16_f32 v33, v{ACC+2}, v{ACC+3}")
    a(f"buffer_store_dwordx2 v[32:33], v{vOut}, s[{R_WS if False else R_C}:{R_C+3}], 0 offen")
    st.end()
    a("s_endpgm")

def gen():
    a = Asm()
    a("s_cmp_ge_u32 s2, 768")
    a("s_cbranch_scc1 K_end")
    a("s_load_dwordx16 s[4:19], s[0:1], 0")
    a("s_load_dwordx8 s[20:27], s[0:1], 64")
    a("s_load_dwordx2 s[28:29], s[0:1], 96")
    a(f"v_and_b32 v{vLane}, 63, v0")
    a(f"v_lshrrev_b32 v4, 6, v0")
    a(f"v_lshrrev_b32 v{vH}, 5, v{vLane}")
    a(f"v_readfirstlane_b32 s{sW}, v4")
    a(f"v_and_b32 v{vN}, 31, v{vLane}")
    a("s_waitcnt lgkmcnt(0)")
    srd(a, R_WS, S_WS, S_WS+1, WS_END)
    srd(a, R_FL, S_WS, S_WS+1, FL_SIZE, WS_FL)
    for r in (R_A, R_B, R_C): srd(a, r, S_WS, S_WS+1, WS_END)
    for i in range(4, 16): a(f"v_mov_b32 v{i}, 0")
    a("s_cmp_ge_u32 s2, 512")
    a("s_cbranch_scc1 ROLE_B2")
    a("s_cmp_ge_u32 s2, 256")
    a("s_cbranch_scc1 ROLE_B1")
    role_A(a)
    a.label("ROLE_B1")
    role_B1(a)
    a.label("ROLE_B2")
    role_B2(a)
    a.label("K_end")
    a("s_endpgm")
    grid = OPT.get("grid", 768)
    s = f"; generated by gen2.py\n; @launch grid=({grid},1,1) block=(512,1,1) lds={LDS_BYTES}\n"
    s += '.amdgcn_target "amdgcn-amd-amdhsa--gfx950"\n.text\n'
    s += kernel_header(KN) + a.text()
    s += '.section .rodata,"a"\n.p2align 6\n' + kernel_desc(KN, 128, 102)
    return s

if __name__ == "__main__":
    if "--prof" in sys.argv: PROF = True
    for x in sys.argv:
        if x.startswith("-D"):
            k, _, v = x[2:].partition("="); OPT[k] = int(v) if v else 1
    open(sys.argv[1], "w").write(gen())
    if PROF: json.dump(STAMP_NAMES, open("stamps5.json", "w"))
```

```python
import sys, math, json
from asmlib import *

NAME = "parallel_sum__grouped_kv_mqa__dense_activation_squared_relu__prompt"
KN = NAME + "_kernel"
WS_XF = 0x0
WS_R  = 0x280000
WS_KV = 0x290000
WS_OF = 0x2D0000
WS_H  = 0x550000
WS_FL = 0xB50000
WS_WF = 0xB90000
WS_END = 0xE40000
WS_DBG = 0x2000000
FL_KV, FL_D, FL_H, FL_O, FL_W = 0, 128, 640, 896, 1152
FL_N = 1408
FL_SIZE = FL_N * 128
NX = 2048 * 640 * 2
QSCALE = (20 ** -0.5) * math.log2(math.e)
DELTA = 96.0
LDS_BYTES = 81920
PROF = False
OPT = {}
SPIN_MAX = 200000

S_X, S_WQ, S_WK, S_WV, S_WO, S_W1, S_B1, S_W2, S_B2, S_OUT, S_DBG, S_WS = 4, 6, 8, 10, 12, 16, 18, 20, 22, 24, 26, 28
sW = 30
sTag = 31
R_WS = 32
R_FL = 36
R_A = 40
R_B = 44
R_C = 48
sRB, sCG, sT, sT2, sT3 = 52, 53, 54, 55, 56
vLane, vH, vN = 1, 2, 3

class Stamps:
    def __init__(self, a, role): self.a = a; self.n = 1; self.names = []; self.role = role
    def start(self):
        if not PROF: return
        for i in range(68, 94): self.a(f"s_mov_b32 s{i}, 0")
        self.a("s_memrealtime s[64:65]"); self.a("s_memtime s[66:67]"); self.a("s_waitcnt lgkmcnt(0)"); self.n = 2
    def mark(self, name):
        if not PROF: return
        assert self.n < 15
        self.a(f"s_memtime s[{64+2*self.n}:{65+2*self.n}]"); self.a("s_waitcnt lgkmcnt(0)")
        self.n += 1; self.names.append(name)
    def end(self):
        if not PROF: return
        a = self.a
        a("s_waitcnt vmcnt(0)")
        self.mark("final-drain")
        a("s_memrealtime s[94:95]"); a("s_waitcnt lgkmcnt(0)")
        a("s_mov_b64 exec, 1")
        a(f"s_lshl_b32 s98, s2, 3")
        a(f"s_add_u32 s98, s98, s{sW}")
        a(f"s_lshl_b32 s98, s98, 6")
        a(f"s_add_u32 s98, s98, {WS_DBG}")
        a(f"s_add_u32 s96, s{S_WS}, s98")
        a(f"s_addc_u32 s97, s{S_WS+1}, 0")
        a(f"v_mov_b32 v0, 0")
        for i in list(range(14)) + [15]:
            a(f"v_mov_b32 v1, s{64+2*i}")
            a(f"global_store_dword v0, v1, s[96:97] offset:{4*i}")
        a(f"v_mov_b32 v1, {self.n}")
        a(f"global_store_dword v0, v1, s[96:97] offset:56")
        a("s_waitcnt vmcnt(0)")
        STAMP_NAMES[self.role] = self.names
STAMP_NAMES = {}

def OST(): return {0: "", 1: "sc1", 2: "nt", 3: "sc0 sc1"}[OPT.get("ost", 0)]

def bf16_round(a, dst, src):
    a(f"v_cvt_pk_bf16_f32 v{dst}, v{src}, v{src}")
    a(f"v_lshlrev_b32 v{dst}, 16, v{dst}")

def decode_rb_cg(a, j):
    a(f"s_lshr_b32 s{sCG}, s{j}, 6")
    a(f"s_and_b32 s{sRB}, s{j}, 7")
    a(f"s_lshl_b32 s{sRB}, s{sRB}, 3")
    a(f"s_bfe_u32 s{sT}, s{j}, 0x30003")
    a(f"s_add_u32 s{sRB}, s{sRB}, s{sT}")

def get_tag(a, vt, lab):
    L = f"{lab}_tag"
    a(f"s_mov_b32 s{sT3}, {SPIN_MAX}")
    a(f"v_mov_b32 v{vt}, 0")
    a.label(L)
    a(f"global_load_dword v{vt+1}, v{vt}, s[{S_DBG}:{S_DBG+1}] sc1")
    a("s_waitcnt vmcnt(0)")
    a(f"v_readfirstlane_b32 s{sTag}, v{vt+1}")
    a(f"s_sub_u32 s{sT3}, s{sT3}, 1")
    a(f"s_cmp_eq_u32 s{sT3}, 0")
    a(f"s_cbranch_scc1 {L}_done")
    a(f"s_cmp_eq_u32 s{sTag}, 0")
    a(f"s_cbranch_scc0 {L}_done")
    a("s_sleep 1")
    a(f"s_branch {L}")
    a.label(f"{L}_done")

def poll_flags(a, vt, lab, s_idx, nflags, region, tries=None):
    if nflags == 128:
        poll_flags(a, vt, lab + "a", None, 64, region, tries)
        poll_flags(a, vt, lab + "b", None, 64, region + 64, tries)
        return
    L = f"{lab}_poll"
    a(f"v_lshlrev_b32 v{vt}, 7, v{vLane}")
    if s_idx is None:
        a(f"s_mov_b32 s63, {region*128}")
    else:
        a(f"s_lshl_b32 s63, s{s_idx}, 7")
        if region: a(f"s_add_u32 s63, s63, {region*128}")
    a(f"s_mov_b32 s{sT3}, {tries or SPIN_MAX}")
    a("s_mov_b64 s[100:101], exec")
    if nflags < 64:
        a(f"s_mov_b32 exec_lo, {(1 << min(nflags, 32)) - 1 if nflags < 32 else -1}")
        a(f"s_mov_b32 exec_hi, {((1 << (nflags - 32)) - 1) if nflags > 32 else 0}")
    a.label(L)
    a(f"buffer_load_dword v{vt+1}, v{vt}, s[{R_FL}:{R_FL+3}], s63 offen sc1")
    a("s_waitcnt vmcnt(0)")
    a(f"v_cmp_ne_u32 vcc, s{sTag}, v{vt+1}")
    a("s_nop 1")
    a(f"s_and_b64 exec, exec, vcc")
    a(f"s_cbranch_execz {L}_done")
    a(f"s_sub_u32 s{sT3}, s{sT3}, 1")
    a(f"s_cmp_eq_u32 s{sT3}, 0")
    a(f"s_cbranch_scc1 {L}_done")
    a(f"s_sleep {OPT.get('sleep', 2)}")
    a(f"s_branch {L}")
    a.label(f"{L}_done")
    a("s_mov_b64 exec, s[100:101]")

def set_flag(a, vt, s_idx, region):
    a(f"v_mov_b32 v{vt}, s{sTag}")
    a(f"v_mov_b32 v{vt+1}, 0")
    a(f"s_lshl_b32 s63, s{s_idx}, 7")
    if region: a(f"s_add_u32 s63, s63, {region*128}")
    a("s_mov_b64 s[100:101], exec")
    a("s_mov_b64 exec, 1")
    a(f"buffer_store_dword v{vt}, v{vt+1}, s[{R_FL}:{R_FL+3}], s63 offen sc1")
    a("s_mov_b64 exec, s[100:101]")

def tr_addr(a, dst, dst2, pitch, hrows, second_rows, s_base, t):
    a(f"v_bfe_u32 v{t}, v{vLane}, 2, 2")
    a(f"v_mul_u32_u24 v{t+1}, {hrows}, v{vH}")
    a(f"v_add_u32 v{t}, v{t}, v{t+1}")
    a(f"v_bfe_u32 v{t+1}, v{vLane}, 4, 1")
    a(f"v_and_b32 v{t+2}, 3, v{vLane}")
    a(f"v_lshlrev_b32 v{t+2}, 3, v{t+2}")
    a(f"v_lshl_add_u32 v{t+1}, v{t+1}, 5, v{t+2}")
    a(f"v_mul_u32_u24 v{dst}, {pitch}, v{t}")
    a(f"v_add3_u32 v{dst}, v{dst}, v{t+1}, s{s_base}")
    if dst2 is not None:
        a(f"v_add_u32 v{dst2}, {second_rows*pitch}, v{dst}")

def role_A(a):
    OPT["nopre0"] = 1
    st = Stamps(a, "A")
    st.start()
    XB = 0; XP = 1056; XH = 528; RBUF = 42240
    RING = 42496; NSTG = 3; RW = NSTG*1024; DEPTH = 16
    KSTG = 57856
    KVX = 67072
    LFL = XB + 512
    LFL2 = XB + 1040
    T4F = 75264
    SB = [0, 16384, 32768, 49152]
    QBUF = 65536; QP = 328
    sStep, sSoff, sLds, sRho, sWrap, sIt = 57, 58, 59, 60, 61, 57
    vT = 4
    vVo, vTr, vTr2, vX16 = 12, 13, 14, 15
    X = 16
    TMP = 36
    vSum, vSq, vM = 52, 53, 54
    vOne, vSelLo, vSelHi = 56, 57, 58
    vR, vXa, vWst, vTag = 9, 10, 11, 61
    ACC = 16; FB = 32; WS_ = 64
    a(f"s_mov_b32 s{sT2}, s2")
    decode_rb_cg(a, sT2)
    L_notag = "A_notag"
    a(f"s_cmp_lg_u32 s2, 0")
    a(f"s_cbranch_scc1 {L_notag}")
    a(f"s_cmp_lg_u32 s{sW}, 0")
    a(f"s_cbranch_scc1 {L_notag}")
    a(f"s_memrealtime s[62:63]")
    a("s_waitcnt lgkmcnt(0)")
    a(f"s_or_b32 s62, s62, 1")
    a(f"v_mov_b32 v{vT}, s62")
    a(f"v_mov_b32 v{vT+1}, 0")
    a("s_mov_b64 exec, 1")
    a(f"global_store_dword v{vT+1}, v{vT}, s[{S_DBG}:{S_DBG+1}] sc1")
    a("s_mov_b64 exec, -1")
    a.label(L_notag)
    srd(a, R_A, S_X, S_X+1, NX)
    a(f"s_lshl_b32 s{sT}, s{sRB}, 5")
    a(f"s_lshl_b32 s{sT2}, s{sW}, 2")
    a(f"s_add_u32 s{sT}, s{sT}, s{sT2}")
    a(f"v_lshrrev_b32 v{vT}, 4, v{vLane}")
    a(f"v_add_u32 v{vT}, s{sT}, v{vT}")
    a(f"v_mul_u32_u24 v{vT}, 1280, v{vT}")
    a(f"v_and_b32 v{vT+1}, 15, v{vLane}")
    a(f"v_lshl_add_u32 v{vT}, v{vT+1}, 4, v{vT}")
    for i in range(5):
        a(f"buffer_load_dwordx4 {vr(X+4*i,4)}, v{vT}, s[{R_A}:{R_A+3}], 0 offen offset:{256*i}")
    a(f"v_lshlrev_b32 v{vX16}, 4, v{vLane}")
    a(f"s_and_b32 s{sRho}, s{sRB}, 7")
    L_nowe = "A_nowe"
    a(f"s_cmp_lt_u32 s{sW}, 5")
    a(f"s_cbranch_scc1 {L_nowe}")
    a(f"s_cmp_ge_u32 s{sCG}, 2")
    a(f"s_cbranch_scc1 {L_nowe}")
    a(f"s_cmp_eq_u32 s{sCG}, 1")
    a(f"s_cselect_b32 s{R_B}, s{S_WV}, s{S_WK}")
    a(f"s_cselect_b32 s{R_B+1}, s{S_WV+1}, s{S_WK+1}")
    a(f"s_mov_b32 s{R_B+2}, {640*20*2}")
    a(f"s_mov_b32 s{R_B+3}, 0x00020000")
    a(f"s_sub_u32 s{sT}, s{sW}, 5")
    a(f"s_mul_i32 s{sStep}, s{sT}, 13")
    a(f"s_min_u32 s{sT}, s{sT}, 1")
    a(f"s_add_u32 s{sStep}, s{sStep}, s{sT}")
    a(f"s_mul_i32 s{sT}, s{sRho}, 5")
    a(f"s_add_u32 s{sT2}, s{sStep}, s{sT}")
    a(f"s_cmp_ge_u32 s{sT2}, 40")
    a(f"s_cselect_b32 s{sT}, 40, 0")
    a(f"s_sub_u32 s{sT2}, s{sT2}, s{sT}")
    a(f"s_mul_i32 s{sSoff}, s{sT2}, 640")
    for i in range(14):
        a(f"s_add_u32 s{sT}, s{sSoff}, 640")
        a(f"buffer_load_dwordx4 {vr(WS_+4*i,4)}, v{vX16}, s[{R_B}:{R_B+3}], s{sSoff} offen")
        a(f"s_cmp_eq_u32 s{sT}, 25600")
        a(f"s_cselect_b32 s{sSoff}, 0, s{sT}")
    a.label(L_nowe)
    a("s_barrier")
    L_nq = "A_nq"
    a(f"s_cmp_ge_u32 s{sW}, 5")
    a(f"s_cbranch_scc1 {L_nq}")
    srd(a, R_B, S_WQ, S_WQ+1, 640*640*2)
    a(f"v_lshrrev_b32 v{vT}, 2, v{vLane}")
    a(f"v_mul_u32_u24 v{vT}, 1280, v{vT}")
    a(f"v_and_b32 v{vT+1}, 3, v{vLane}")
    a(f"v_lshl_add_u32 v{vT}, v{vT+1}, 4, v{vT}")
    a(f"s_mul_i32 s{sT}, s{sCG}, 320")
    a(f"s_lshl_b32 s{sT2}, s{sW}, 6")
    a(f"s_add_u32 s{sT}, s{sT}, s{sT2}")
    a(f"v_add_u32 v{vVo}, s{sT}, v{vT}")
    a(f"s_mul_i32 s{sLds}, s{sW}, {RW}")
    a(f"s_add_u32 s{sLds}, s{sLds}, {RING}")
    a(f"s_mul_i32 s{sSoff}, s{sRho}, {5*20480}")
    def wload(k):
        d = WS_ + 4*(k % DEPTH)
        a(f"s_add_u32 s{sT}, s{sSoff}, 20480")
        a(f"buffer_load_dwordx4 {vr(d,4)}, v{vVo}, s[{R_B}:{R_B+3}], s{sSoff} offen")
        a(f"s_cmp_eq_u32 s{sT}, {40*20480}")
        a(f"s_cselect_b32 s{sSoff}, 0, s{sT}")
    NW0 = OPT.get("NW0", 8)
    for k in range(NW0): wload(k)
    tr_addr(a, vTr, vTr2, 64, 8, 4, sLds, vT)
    a(f"v_add_u32 v{vWst}, s{sLds}, v{vX16}")
    a(f"s_waitcnt vmcnt({NW0})")
    a(f"s_branch A_xok")
    a.label(L_nq)
    a(f"s_waitcnt vmcnt(14)")
    a(f"s_cmp_lt_u32 s{sCG}, 2")
    a(f"s_cbranch_scc1 A_xok2")
    a(f"s_waitcnt vmcnt(0)")
    a.label("A_xok2")
    a(f"v_mov_b32 v{vT}, 0")
    a(f"global_load_dword v{vTag}, v{vT}, s[{S_DBG}:{S_DBG+1}] sc1")
    a.label("A_xok")
    st.mark("xwait")
    a(f"v_mov_b32 v{vOne}, 0x3f803f80")
    a(f"v_mov_b32 v{vSelLo}, 0x00003f80")
    a(f"v_mov_b32 v{vSelHi}, 0x3f800000")
    for i in range(4): a(f"v_mov_b32 v{TMP+i}, 0")
    for i in range(20):
        a(f"v_dot2c_f32_bf16 v{TMP+(i%2)}, v{X+i}, v{vOne}")
        a(f"v_dot2c_f32_bf16 v{TMP+2+(i%2)}, v{X+i}, v{X+i}")
    a(f"v_lshrrev_b32 v{vT}, 4, v{vLane}")
    a(f"s_lshl_b32 s{sT}, s{sW}, 2")
    a(f"v_add_u32 v{vT}, s{sT}, v{vT}")
    a(f"v_and_b32 v{vT+1}, 1, v{vLane}")
    a(f"v_mul_u32_u24 v{vT+1}, {XH}, v{vT+1}")
    a(f"v_lshl_add_u32 v{vT+1}, v{vT}, 4, v{vT+1}")
    a(f"v_add_f32 v{vSum}, v{TMP}, v{TMP+1}")
    a(f"v_add_f32 v{vSq}, v{TMP+2}, v{TMP+3}")
    a(f"v_bfe_u32 v{vT+2}, v{vLane}, 1, 3")
    a(f"s_mul_i32 s{sT}, s{sRho}, 5")
    a(f"s_sub_u32 s{sT}, 40, s{sT}")
    for ror in (8, 4, 2, 1):
        a(f"v_add_f32_dpp v{vSum}, v{vSum}, v{vSum} row_ror:{ror} row_mask:0xf bank_mask:0xf")
        a(f"v_add_f32_dpp v{vSq}, v{vSq}, v{vSq} row_ror:{ror} row_mask:0xf bank_mask:0xf")
        if ror != 1: a.nop(1)
    a(f"v_add_u32 v{vT+2}, s{sT}, v{vT+2}")
    inv = f32bits(1.0/640)
    a(f"v_mul_f32 v{vM}, {inv}, v{vSum}")
    a(f"v_mul_f32 v{TMP+1}, {inv}, v{vSq}")
    a(f"v_fma_f32 v{TMP+1}, -v{vM}, v{vM}, v{TMP+1}")
    a(f"v_max_f32 v{TMP+1}, 0, v{TMP+1}")
    bf16_round(a, TMP+1, TMP+1)
    bf16_round(a, vM, vM)
    a(f"v_add_f32 v{TMP+1}, {f32bits(1e-5)}, v{TMP+1}")
    a(f"v_sub_f32 v{vM}, 0, v{vM}")
    bf16_round(a, TMP+1, TMP+1)
    a(f"v_sqrt_f32 v{vSum}, v{TMP+1}")
    for base in range(0, 20, 8):
        g = min(8, 20-base)
        for i in range(g):
            a(f"v_dot2_f32_bf16 v{TMP+2*i}, v{X+base+i}, v{vSelLo}, v{vM}")
            a(f"v_dot2_f32_bf16 v{TMP+2*i+1}, v{X+base+i}, v{vSelHi}, v{vM}")
        if base == 0:
            bf16_round(a, vSum, vSum)
            a(f"v_rcp_f32 v{vR}, v{vSum}")
        else:
            a.nop(3)
        for i in range(g):
            a(f"v_cvt_pk_bf16_f32 v{X+base+i}, v{TMP+2*i}, v{TMP+2*i+1}")
    a(f"v_lshlrev_b32 v{vT+3}, 2, v{vT}")
    a(f"ds_write_b32 v{vT+3}, v{vR} offset:{RBUF}")
    for i in range(5):
        if i: a(f"v_add_u32 v{vT+2}, 8, v{vT+2}")
        a(f"v_subrev_u32 v{vT+3}, 40, v{vT+2}")
        a(f"v_min_u32 v{vT+3}, v{vT+3}, v{vT+2}")
        a(f"v_mul_u32_u24 v{vT+3}, {XP}, v{vT+3}")
        a(f"v_add_u32 v{vT+3}, v{vT+3}, v{vT+1}")
        a(f"ds_write_b128 v{vT+3}, {vr(X+4*i,4)} offset:{XB}")
    a(f"v_mul_u32_u24 v{vXa}, {XH}, v{vH}")
    a(f"v_lshl_add_u32 v{vXa}, v{vN}, 4, v{vXa}")
    a(f"s_cmp_ge_u32 s{sW}, 5")
    a(f"s_cbranch_scc1 A_ln5")
    for k in range(NW0, 10): wload(k)
    a(f"s_cmp_eq_u32 s{sW}, 4")
    a(f"s_cbranch_scc1 A_lnb")
    for k in range(10, DEPTH): wload(k)
    a(f"s_branch A_lnb")
    a.label("A_ln5")
    a(f"v_mov_b32 v{vT}, {LFL}")
    for i in range(4): a(f"v_mov_b32 v{TMP+i}, 0")
    a(f"ds_write_b128 v{vT}, v[{TMP}:{TMP+3}]")
    a(f"ds_write_b128 v{vT}, v[{TMP}:{TMP+3}] offset:{LFL2-LFL}")
    a("s_waitcnt vmcnt(0)")
    a(f"v_readfirstlane_b32 s{sTag}, v{vTag}")
    a.label("A_lnb")
    a("s_waitcnt lgkmcnt(0)")
    a("s_barrier")
    a(f"v_lshlrev_b32 v{vT}, 2, v{vN}")
    a(f"ds_read_b32 v{vR}, v{vT} offset:{RBUF}")
    st.mark("LN")
    def ensure_tag(lab):
        a(f"s_cmp_lg_u32 s{sTag}, 0")
        a(f"s_cbranch_scc1 {lab}_have")
        get_tag(a, vT, lab)
        a.label(f"{lab}_have")
    L_kvp, L_exp, L_bar1 = "A_kvp", "A_exp", "A_bar1"
    a(f"s_cmp_ge_u32 s{sW}, 5")
    a(f"s_cbranch_scc1 {L_kvp}")
    a(f"s_cmp_eq_u32 s{sW}, 4")
    a(f"s_cbranch_scc1 A_job4")
    if OPT.get("noq"): a(f"s_branch {L_bar1}")
    def pipe_gemm(nsteps, wr, rd, need_vm, refill, cin0):
        for k in range(5):
            if k < nsteps:
                need_vm(k, -5 + k)
                wr(k)
            if 0 <= k - 2 < nsteps: rd(k - 2)
        for s_ in range(nsteps):
            n_ops = 0
            if s_ + 5 < nsteps:
                need_vm(s_ + 5, s_)
                wr(s_ + 5)
            if s_ + 3 < nsteps: rd(s_ + 3)
            for t in range(s_ + 1, s_ + 4):
                if t + 2 < nsteps: n_ops += 1
                if t < nsteps: n_ops += 3
            a(f"s_waitcnt lgkmcnt({n_ops})")
            f = FB + 8*(s_ % 4)
            cin = cin0 if s_ == 0 else vr(ACC, 16)
            a(f"v_mfma_f32_32x32x16_bf16 {vr(ACC,16)}, {vr(f,4)}, {vr(f+4,4)}, {cin}")
            refill(s_)
    def q_wr(k): a(f"ds_write_b128 v{vWst}, {vr(WS_+4*(k % DEPTH),4)} offset:{(k % NSTG)*1024}")
    def q_rd(k):
        f = FB + 8*(k % 4)
        a(f"ds_read_b64_tr_b16 v[{f}:{f+1}], v{vTr} offset:{(k % NSTG)*1024}")
        a(f"ds_read_b64_tr_b16 v[{f+2}:{f+3}], v{vTr2} offset:{(k % NSTG)*1024}")
        a(f"ds_read_b128 {vr(f+4,4)}, v{vXa} offset:{XB + k*XP}")
    def q_vm(k, s_now):
        issued = DEPTH + max(0, min(s_now, 40 - DEPTH + QOFF) - QOFF) if s_now > 0 else DEPTH
        issued = min(issued, 40)
        a(f"s_waitcnt vmcnt({issued - 1 - k})")
    QOFF = 0
    def q_refill(s_):
        if s_ + DEPTH < 40: wload(s_ + DEPTH)
    pipe_gemm(40, q_wr, q_rd, q_vm, q_refill, "0")
    st.mark("gemm")
    a.nop(12)
    a(f"v_mul_f32 v{vT}, {f32bits(QSCALE)}, v{vR}")
    for j in range(16): a(f"v_mul_f32 v{ACC+j}, v{ACC+j}, v{vT}")
    for k in range(8): a(f"v_cvt_pk_bf16_f32 v{TMP+k}, v{ACC+2*k}, v{ACC+2*k+1}")
    a(f"s_branch {L_bar1}")

    JW = WS_ + 20
    def job_loads():
        srd(a, R_B, S_WQ, S_WQ+1, 640*640*2)
        a(f"v_lshrrev_b32 v{vT}, 2, v{vLane}")
        a(f"v_mul_u32_u24 v{vT}, 1280, v{vT}")
        a(f"v_and_b32 v{vT+1}, 3, v{vLane}")
        a(f"v_lshl_add_u32 v{vT}, v{vT+1}, 4, v{vT}")
        a(f"s_mul_i32 s{sT}, s{sCG}, 320")
        a(f"s_add_u32 s{sT}, s{sT}, 256")
        a(f"v_add_u32 v{vT}, s{sT}, v{vT}")
        a(f"s_sub_u32 s{sT}, s{sW}, 4")
        a(f"s_mul_i32 s{sT}, s{sT}, 10")
        a(f"s_mul_i32 s{sT2}, s{sRho}, 5")
        a(f"s_add_u32 s{sT}, s{sT}, s{sT2}")
        a(f"s_cmp_ge_u32 s{sT}, 40")
        a(f"s_cselect_b32 s{sT2}, 40, 0")
        a(f"s_sub_u32 s{sT}, s{sT}, s{sT2}")
        a(f"s_mul_i32 s{sSoff}, s{sT}, 20480")
        for k in range(10):
            a(f"s_add_u32 s{sT}, s{sSoff}, 20480")
            a(f"buffer_load_dwordx4 {vr(JW+4*k,4)}, v{vT}, s[{R_B}:{R_B+3}], s{sSoff} offen")
            a(f"s_cmp_eq_u32 s{sT}, {40*20480}")
            a(f"s_cselect_b32 s{sSoff}, 0, s{sT}")
    def job_run(raw, vm_after):
        tr_addr(a, vTr, vTr2, 64, 8, 4, sLds, vT)
        a(f"v_add_u32 v{vWst}, s{sLds}, v{vX16}")
        a(f"s_sub_u32 s{sT}, s{sW}, 4")
        a(f"s_mul_i32 s{sT}, s{sT}, {10*XP}")
        a(f"v_add_u32 v{vVo}, s{sT}, v{vXa}")
        def j_wr(k): a(f"ds_write_b128 v{vWst}, {vr(raw+4*k,4)} offset:{(k % NSTG)*1024}")
        def j_rd(k):
            f = FB + 8*(k % 4)
            a(f"ds_read_b64_tr_b16 v[{f}:{f+1}], v{vTr} offset:{(k % NSTG)*1024}")
            a(f"ds_read_b64_tr_b16 v[{f+2}:{f+3}], v{vTr2} offset:{(k % NSTG)*1024}")
            a(f"ds_read_b128 {vr(f+4,4)}, v{vVo} offset:{k*XP}")
        def j_vm(k, s_): a(f"s_waitcnt vmcnt({9 - k + vm_after})")
        pipe_gemm(10, j_wr, j_rd, j_vm, lambda s_: None, "0")
        a("s_waitcnt lgkmcnt(0)")
        a.nop(12)
    def job_publish():
        Lp5, Lpd = a.newlabel("A_jp5"), a.newlabel("A_jpd")
        a(f"s_cmp_eq_u32 s{sW}, 5")
        a(f"s_cbranch_scc1 {Lp5}")
        for q in range(3): a(f"ds_write_b128 v{vWst}, {vr(ACC+4*q,4)} offset:{q*1024}")
        a(f"s_sub_u32 s{sT}, s{sW}, 6")
        a(f"s_lshl_b32 s{sT}, s{sT}, 10")
        a(f"s_add_u32 s{sT}, s{sT}, {T4F}")
        a(f"v_add_u32 v{vT}, s{sT}, v{vX16}")
        a(f"ds_write_b128 v{vT}, {vr(ACC+12,4)}")
        a(f"s_branch {Lpd}")
        a.label(Lp5)
        a(f"v_add_u32 v{vT}, {KVX+4096}, v{vX16}")
        for q in range(4): a(f"ds_write_b128 v{vT}, {vr(ACC+4*q,4)} offset:{q*1024}")
        a.label(Lpd)
        a(f"s_sub_u32 s{sT}, s{sW}, 5")
        a(f"s_lshl_b32 s{sT}, s{sT}, 2")
        a(f"s_add_u32 s{sT}, s{sT}, {LFL2}")
        a(f"v_mov_b32 v{vT}, s{sT}")
        a(f"v_mov_b32 v{vT+1}, 1")
        a(f"ds_write_b32 v{vT}, v{vT+1}")
    a.label("A_job4")
    job_run(WS_, 0)
    a(f"v_mov_b32 v{vT}, {LFL2}")
    a(f"s_mov_b32 s{sT3}, {SPIN_MAX}")
    a.label("A_j4spin")
    a(f"ds_read_b96 v[{vT+2}:{vT+4}], v{vT}")
    a("s_waitcnt lgkmcnt(0)")
    a(f"v_and_b32 v{vT+2}, v{vT+2}, v{vT+3}")
    a(f"v_and_b32 v{vT+2}, v{vT+2}, v{vT+4}")
    a("s_nop 0")
    a(f"v_readfirstlane_b32 s{sT}, v{vT+2}")
    a(f"s_sub_u32 s{sT3}, s{sT3}, 1")
    a(f"s_cmp_eq_u32 s{sT3}, 0")
    a(f"s_cbranch_scc1 A_j4spin_done")
    a(f"s_cmp_eq_u32 s{sT}, 1")
    a(f"s_cbranch_scc0 A_j4spin")
    a.label("A_j4spin_done")
    a(f"v_add_u32 v{vT}, {KVX+4096}, v{vX16}")
    a(f"v_add_u32 v{vT+1}, {KSTG+3072}, v{vX16}")
    a(f"v_add_u32 v{vT+2}, {T4F}, v{vX16}")
    for q in range(4): a(f"ds_read_b128 {vr(64+4*q,4)}, v{vT} offset:{q*1024}")
    for p_ in range(2):
        for q in range(3): a(f"ds_read_b128 {vr(80+16*p_+4*q,4)}, v{vT+1} offset:{p_*3072 + q*1024}")
        a(f"ds_read_b128 {vr(80+16*p_+12,4)}, v{vT+2} offset:{p_*1024}")
    a("s_waitcnt lgkmcnt(0)")
    for j in range(16): a(f"v_add_f32 v{64+j}, v{64+j}, v{80+j}")
    for j in range(16): a(f"v_add_f32 v{ACC+j}, v{ACC+j}, v{96+j}")
    for j in range(16): a(f"v_add_f32 v{ACC+j}, v{ACC+j}, v{64+j}")
    st.mark("job4")
    a(f"v_mul_f32 v{vT}, {f32bits(QSCALE)}, v{vR}")
    for j in range(16): a(f"v_mul_f32 v{ACC+j}, v{ACC+j}, v{vT}")
    for k in range(8): a(f"v_cvt_pk_bf16_f32 v{TMP+k}, v{ACC+2*k}, v{ACC+2*k+1}")
    a(f"s_branch {L_bar1}")
    a.label(L_kvp)
    a("s_setprio 3")
    a(f"s_cmp_ge_u32 s{sCG}, 2")
    a(f"s_cbranch_scc1 A_kvp_skip")
    a(f"s_sub_u32 s{sT}, s{sW}, 5")
    a(f"s_mul_i32 s{sLds}, s{sT}, 3072")
    a(f"s_add_u32 s{sLds}, s{sLds}, {KSTG}")
    tr_addr(a, vTr, vTr2, 40, 8, 4, sLds, vT)
    a(f"v_add_u32 v{vWst}, s{sLds}, v{vX16}")
    a(f"s_mul_i32 s{sT}, s{sStep}, {XP}")
    a(f"v_add_u32 v{vVo}, s{sT}, v{vXa}")
    a(f"v_add_u32 v{vT+4}, {13*XP}, v{vVo}")
    a(f"s_cmp_eq_u32 s{sW}, 5")
    a(f"s_cbranch_scc1 A_kv13")
    for i in range(4): a(f"v_mov_b32 v{WS_+52+i}, 0")
    a(f"v_mov_b32 v{vT+4}, v{vXa}")
    a.label("A_kv13")
    def k_wr(k): a(f"ds_write_b128 v{vWst}, {vr(WS_+4*k,4)} offset:{(k % NSTG)*1024}")
    def k_rd(k):
        f = FB + 8*(k % 4)
        a(f"ds_read_b64_tr_b16 v[{f}:{f+1}], v{vTr} offset:{(k % NSTG)*1024}")
        a(f"ds_read_b64_tr_b16 v[{f+2}:{f+3}], v{vTr2} offset:{(k % NSTG)*1024}")
        if k == 13: a(f"ds_read_b128 {vr(f+4,4)}, v{vT+4}")
        else: a(f"ds_read_b128 {vr(f+4,4)}, v{vVo} offset:{k*XP}")
    pipe_gemm(14, k_wr, k_rd, lambda k, s_: None, lambda s_: None, "0")
    a("s_waitcnt lgkmcnt(0)")
    job_loads()
    a(f"s_cmp_eq_u32 s{sW}, 5")
    a(f"s_cbranch_scc1 A_kv5")
    a(f"s_sub_u32 s{sT}, s{sW}, 6")
    a(f"s_lshl_b32 s{sT}, s{sT}, 12")
    a(f"s_add_u32 s{sT}, s{sT}, {KVX}")
    a(f"v_add_u32 v{vT}, s{sT}, v{vX16}")
    for q in range(4):
        a(f"ds_write_b128 v{vT}, {vr(ACC+4*q,4)} offset:{q*1024}")
    a(f"s_sub_u32 s{sT}, s{sW}, 6")
    a(f"s_lshl_b32 s{sT}, s{sT}, 2")
    a(f"s_add_u32 s{sT}, s{sT}, {LFL}")
    a(f"v_mov_b32 v{vT}, s{sT}")
    a(f"v_mov_b32 v{vT+1}, 1")
    a(f"ds_write_b32 v{vT}, v{vT+1}")
    a(f"s_branch A_kvp_done")
    a.label("A_kv5")
    a(f"v_mov_b32 v{vT}, {LFL}")
    a(f"s_mov_b32 s{sT3}, {SPIN_MAX}")
    a.label("A_kvspin")
    a(f"ds_read_b64 v[{vT+2}:{vT+3}], v{vT}")
    a("s_waitcnt lgkmcnt(0)")
    a(f"v_and_b32 v{vT+2}, v{vT+2}, v{vT+3}")
    a("s_nop 0")
    a(f"v_readfirstlane_b32 s{sT}, v{vT+2}")
    a(f"s_sub_u32 s{sT3}, s{sT3}, 1")
    a(f"s_cmp_eq_u32 s{sT3}, 0")
    a(f"s_cbranch_scc1 A_kvspin_done")
    a(f"s_cmp_eq_u32 s{sT}, 1")
    a(f"s_cbranch_scc0 A_kvspin")
    a.label("A_kvspin_done")
    a(f"v_add_u32 v{vT}, {KVX}, v{vX16}")
    for p_ in range(2):
        for q in range(4):
            a(f"ds_read_b128 {vr(FB+16*p_+4*q,4)}, v{vT} offset:{p_*4096 + q*1024}")
    a("s_waitcnt lgkmcnt(0)")
    for j in range(16):
        a(f"v_add_f32 v{FB+j}, v{FB+j}, v{FB+16+j}")
    for j in range(16):
        a(f"v_add_f32 v{ACC+j}, v{ACC+j}, v{FB+j}")
    for j in range(16): a(f"v_mul_f32 v{ACC+j}, v{ACC+j}, v{vR}")
    a(f"v_cmp_eq_u32 vcc, 1, v{vH}")
    a(f"v_mov_b32 v{vT}, 1.0")
    a(f"v_mov_b32 v{vT+1}, 0")
    a(f"v_cndmask_b32 v{ACC+8}, v{ACC+8}, v{vT}, vcc")
    for j in range(9, 12): a(f"v_cndmask_b32 v{ACC+j}, v{ACC+j}, v{vT+1}, vcc")
    for j in range(12, 16): a(f"v_mov_b32 v{ACC+j}, 0")
    for k in range(8): a(f"v_cvt_pk_bf16_f32 v{TMP+k}, v{ACC+2*k}, v{ACC+2*k+1}")
    a(f"s_lshl_b32 s{sT}, s{sRB}, 12")
    a(f"s_add_u32 s{sT}, s{sT}, {WS_KV}")
    L_v = "A_v"; L_kvdone = "A_kvdone"
    a(f"s_cmp_eq_u32 s{sCG}, 1")
    a(f"s_cbranch_scc1 {L_v}")
    a(f"buffer_store_dwordx4 {vr(TMP,4)}, v{vX16}, s[{R_WS}:{R_WS+3}], s{sT} offen sc1")
    a(f"v_lshlrev_b32 v{vT}, 3, v{vLane}")
    a(f"buffer_store_dwordx2 v[{TMP+4}:{TMP+5}], v{vT}, s[{R_WS}:{R_WS+3}], s{sT} offen offset:1024 sc1")
    a(f"s_branch {L_kvdone}")
    a.label(L_v)
    a(f"s_mov_b32 s{sLds}, {KVX}")
    a(f"v_lshlrev_b32 v{vT}, 6, v{vN}")
    a(f"v_lshl_add_u32 v{vT}, v{vH}, 3, v{vT}")
    a(f"v_add_u32 v{vT}, s{sLds}, v{vT}")
    for q in range(4):
        a(f"ds_write_b64 v{vT}, v[{TMP+2*q}:{TMP+2*q+1}] offset:{16*q}")
    tr_addr(a, vTr, None, 64, 4, 8, sLds, vT+1)
    for u in range(2):
        a(f"ds_read_b64_tr_b16 v[{TMP+8+4*u}:{TMP+9+4*u}], v{vTr} offset:{u*1024}")
        a(f"ds_read_b64_tr_b16 v[{TMP+10+4*u}:{TMP+11+4*u}], v{vTr} offset:{u*1024 + 512}")
    a("s_waitcnt lgkmcnt(0)")
    a(f"buffer_store_dwordx4 {vr(TMP+8,4)}, v{vX16}, s[{R_WS}:{R_WS+3}], s{sT} offen offset:2048 sc1")
    a(f"buffer_store_dwordx4 {vr(TMP+12,4)}, v{vX16}, s[{R_WS}:{R_WS+3}], s{sT} offen offset:3072 sc1")
    a.label(L_kvdone)
    a(f"s_mov_b32 s{sLds}, {KSTG}")
    job_run(JW, 2)
    job_publish()
    ensure_tag("A5")
    a("s_waitcnt vmcnt(0)")
    st.mark("k5:drain")
    a(f"s_lshl_b32 s{sT}, s{sRB}, 1")
    a(f"s_add_u32 s{sT}, s{sT}, s{sCG}")
    set_flag(a, vT, sT, FL_KV)
    a(f"s_branch {L_bar1}")
    a.label("A_kvp_skip")
    job_loads()
    a(f"s_cmp_lg_u32 s{sW}, 5")
    a(f"s_cbranch_scc1 A_kvp_done")
    a(f"s_mov_b32 s{sLds}, {KSTG}")
    job_run(JW, 0)
    job_publish()
    a(f"s_branch {L_bar1}")
    a.label("A_kvp_done")
    a(f"s_mul_i32 s{sT}, s{sCG}, 2")
    a(f"s_add_u32 s{sT}, s{sT}, s{sW}")
    a(f"s_sub_u32 s{sT}, s{sT}, 6")
    a(f"s_sub_u32 s{sT2}, s{sT}, s{sRho}")
    a(f"s_and_b32 s{sT2}, s{sT2}, 7")
    a(f"s_mul_i32 s{sT2}, s{sT2}, {5*XP}")
    a(f"v_add_u32 v{vT}, s{sT2}, v{vXa}")
    for i in range(5):
        a(f"ds_read_b128 {vr(WS_+4*i,4)}, v{vT} offset:{XB + XP*i}")
    a(f"s_mul_i32 s{sT2}, s{sRB}, 40")
    a(f"s_mul_i32 s{sStep}, s{sT}, 5")
    a(f"s_add_u32 s{sT2}, s{sT2}, s{sStep}")
    a(f"s_lshl_b32 s{sT2}, s{sT2}, 10")
    if WS_XF: a(f"s_add_u32 s{sT2}, s{sT2}, {WS_XF}")
    a(f"s_lshl_b32 s{sSoff}, s{sRB}, 3")
    a(f"s_add_u32 s{sSoff}, s{sSoff}, s{sT}")
    a(f"v_add_u32 v{vT+1}, 4096, v{vX16}")
    a("s_waitcnt lgkmcnt(0)")
    for i in range(4):
        a(f"buffer_store_dwordx4 {vr(WS_+4*i,4)}, v{vX16}, s[{R_WS}:{R_WS+3}], s{sT2} offen offset:{1024*i} sc1")
    a(f"buffer_store_dwordx4 {vr(WS_+16,4)}, v{vT+1}, s[{R_WS}:{R_WS+3}], s{sT2} offen sc1")
    L_nor = "A_nor"
    a(f"s_cmp_lg_u32 s{sT}, 0")
    a(f"s_cbranch_scc1 {L_nor}")
    a(f"s_lshl_b32 s{sT2}, s{sRB}, 7")
    a(f"s_add_u32 s{sT2}, s{sT2}, {WS_R}")
    a(f"v_lshlrev_b32 v{vT}, 2, v{vN}")
    a(f"buffer_store_dword v{vR}, v{vT}, s[{R_WS}:{R_WS+3}], s{sT2} offen sc1")
    a.label(L_nor)
    a(f"s_mov_b32 s{sWrap}, s{sSoff}")
    a(f"s_sub_u32 s{sT}, s{sW}, 5")
    a(f"s_mul_i32 s{sLds}, s{sT}, 3072")
    a(f"s_add_u32 s{sLds}, s{sLds}, {KSTG}")
    job_run(JW, 5)
    job_publish()
    ensure_tag("A6")
    a("s_waitcnt vmcnt(0)")
    st.mark("x:drain")
    set_flag(a, vT, sWrap, FL_D)
    a(f"s_cmp_eq_u32 s{sW}, 7")
    a(f"s_cbranch_scc0 {L_bar1}")
    poll_flags(a, vT, "A7", None, 128, FL_KV)
    st.mark("kvpoll")
    srd(a, R_A, S_WS, S_WS+1, 262144, WS_KV)
    a(f"v_lshlrev_b32 v{vT}, 7, v{vLane}")
    for g in range(6):
        a(f"s_mov_b32 s{sT}, {g*8192}")
        a(f"buffer_load_dword v0, v{vT}, s[{R_A}:{R_A+3}], s{sT} offen")
    a(f"s_branch A_bar1_nowait")
    a.label(L_bar1)
    a("s_waitcnt vmcnt(0)")
    a.label("A_bar1_nowait")
    a("s_setprio 0")
    a("s_waitcnt lgkmcnt(0)")
    a("s_barrier")
    st.mark("bar1")
    vA16, vA8, vDma, vA16b, vA8b = vX16, 13, 14, 12, 111
    S = [16, 32]
    O = 48
    P = 96
    Q1, Q2 = 104, 108
    K1, K2 = 112, 116
    V1, V2 = 120, 124
    vM2 = 110
    sSoffK, sLdsW = 58, 59
    srd(a, R_A, S_WS, S_WS+1, 262144, WS_KV)
    a(f"s_lshl_b32 s{sLdsW}, s{sW}, 11")
    a(f"v_add_u32 v{vDma}, s{sLdsW}, v{vA16}")
    a(f"v_lshlrev_b32 v{vA8}, 3, v{vLane}")
    a(f"v_add_u32 v{vA16b}, 32768, v{vA16}")
    a(f"v_add_u32 v{vA8b}, 32768, v{vA8}")
    def dma_chunk(slot):
        a(f"s_add_u32 m0, s{sLdsW}, {SB[slot]}")
        a("s_nop 0")
        a(f"buffer_load_dwordx4 v{vDma}, s[{R_A}:{R_A+3}], s{sSoffK} offen sc1 lds")
        a(f"buffer_load_dwordx4 v{vDma}, s[{R_A}:{R_A+3}], s{sSoffK} offen offset:1024 sc1 lds")
        a(f"s_add_u32 s{sSoffK}, s{sSoffK}, 16384")
    if OPT.get("nopre0"):
        a(f"s_mov_b32 s{sSoffK}, 0")
        for c in (0, 1, 2): dma_chunk(c)
    else:
        a(f"s_mov_b32 s{sSoffK}, 16384")
        for c in (1, 2): dma_chunk(c)
    L_noqw = "A_noqw"
    a(f"v_mul_u32_u24 v{vT}, {QP}, v{vN}")
    a(f"v_add_u32 v{vT}, {QBUF}, v{vT}")
    a(f"s_cmp_ge_u32 s{sW}, 5")
    a(f"s_cbranch_scc1 {L_noqw}")
    a(f"s_lshl_b32 s{sT}, s{sW}, 6")
    a(f"v_lshl_add_u32 v{vT+1}, v{vH}, 3, v{vT}")
    a(f"v_add_u32 v{vT+1}, s{sT}, v{vT+1}")
    for q in range(4):
        a(f"ds_write_b64 v{vT+1}, v[{TMP+2*q}:{TMP+2*q+1}] offset:{16*q}")
    a.label(L_noqw)
    a("s_waitcnt lgkmcnt(0)")
    a("s_barrier")
    a(f"s_mul_i32 s{sT}, s{sW}, 40")
    a(f"v_add_u32 v{vT}, s{sT}, v{vT}")
    a(f"v_lshl_add_u32 v{vT+1}, v{vH}, 3, v{vT}")
    a(f"ds_read_b64 v[{Q1}:{Q1+1}], v{vT+1}")
    a(f"ds_read_b64 v[{Q1+2}:{Q1+3}], v{vT+1} offset:16")
    a(f"ds_read_b64 v[{Q2}:{Q2+1}], v{vT} offset:32")
    def lds_addr(t, off, wide):
        base = SB[(t // 4) % 4] + (t % 4) * 4096 + off
        if base >= 32768: return (vA16b if wide else vA8b), base - 32768
        return (vA16 if wide else vA8), base
    def rd_K1(t): v_, o = lds_addr(t, 0, True); a(f"ds_read_b128 {vr(K1,4)}, v{v_} offset:{o}")
    def rd_K2(t): v_, o = lds_addr(t, 1024, False); a(f"ds_read_b64 {vr(K2,2)}, v{v_} offset:{o}")
    def rd_V1(t): v_, o = lds_addr(t, 2048, True); a(f"ds_read_b128 {vr(V1,4)}, v{v_} offset:{o}")
    def rd_V2(t): v_, o = lds_addr(t, 3072, True); a(f"ds_read_b128 {vr(V2,4)}, v{v_} offset:{o}")
    def qk1(dst): a(f"v_mfma_f32_32x32x16_bf16 {vr(dst,16)}, {vr(K1,4)}, {vr(Q1,4)}, 0")
    def qk2(dst): a(f"v_mfma_f32_32x32x8_bf16 {vr(dst,16)}, {vr(K2,2)}, {vr(Q2,2)}, {vr(dst,16)}")
    if OPT.get("nopre0"):
        a("s_waitcnt vmcnt(4)")
        a("s_barrier")
    rd_K1(0); rd_K2(0)
    for i in range(16): a(f"v_mov_b32 v{O+i}, 0")
    a(f"v_cmp_eq_u32 vcc, 1, v{vH}")
    a(f"v_mov_b32 v{vT}, 0")
    a("s_waitcnt lgkmcnt(0)")
    a(f"v_cndmask_b32 v{Q2}, v{Q2}, v{vT}, vcc")
    a(f"v_cndmask_b32 v{Q2+1}, v{Q2+1}, v{vT}, vcc")
    def set_m(delta):
        a(f"v_mov_b32 v{vT}, v{vM2}")
        a.nop(2)
        a(f"v_permlane32_swap_b32 v{vM2}, v{vT}")
        a.nop(1)
        a(f"v_max_f32 v{vM2}, v{vM2}, v{vT}")
        if delta: a(f"v_add_f32 v{vM2}, {f32bits(delta)}, v{vM2}")
        a(f"v_cvt_pk_bf16_f32 v{vT}, -v{vM2}, 0")
        a(f"v_cmp_eq_u32 vcc, 1, v{vH}")
        a.nop(2)
        a(f"v_cndmask_b32 v{Q2}, v{Q2}, v{vT}, vcc")
    a(f"v_mov_b32 v{vM2}, 0xff800000")
    a.nop(1)
    qk1(S[0]); qk2(S[0])
    rd_K1(1); rd_K2(1)
    a("s_waitcnt lgkmcnt(0)")
    qk1(S[1]); qk2(S[1])
    rd_K1(0); rd_K2(0)
    for i in range(4, 8): a(f"v_mov_b32 v{P+i}, 0")
    for i in range(4): a(f"v_mov_b32 v{V2+i}, 0")
    a.nop(4)
    for i in range(8):
        a(f"v_max3_f32 v{vM2}, v{S[0]+2*i}, v{S[0]+2*i+1}, v{vM2}")
    a.nop(4)
    for i in range(8):
        a(f"v_max3_f32 v{vM2}, v{S[1]+2*i}, v{S[1]+2*i+1}, v{vM2}")
    set_m(DELTA)
    a("s_waitcnt lgkmcnt(0)")
    a.nop(1)
    qk1(S[0]); qk2(S[0])
    rd_K1(1); rd_K2(1); rd_V1(0)
    a.nop(12)
    st.mark("sample")
    a(f"s_setprio {OPT.get('aprio', 0)}")
    a(f"s_mov_b32 s{sIt}, 0")
    L_loop = "A_loop"
    a(".p2align 6")
    a.label(L_loop)
    def e(cur, i): a(f"v_exp_f32 v{cur+i}, v{cur+i}")
    def p(cur, k): a(f"v_cvt_pk_bf16_f32 v{P+k}, v{cur+2*k}, v{cur+2*k+1}")
    for t in range(16):
        cur, nxt = S[t % 2], S[(t+1) % 2]
        if t % 4 == 2:
            a("s_waitcnt vmcnt(2)")
            a("s_barrier")
            dma_chunk((t // 4 + 3) % 4)
        e(cur, 0); e(cur, 1)
        a("s_waitcnt lgkmcnt(2)")
        a(f"v_mfma_f32_32x32x16_bf16 {vr(O,16)}, {vr(V2,4)}, {vr(P+4,4)}, {vr(O,16)}")
        rd_V2(t)
        e(cur, 2); e(cur, 3); p(cur, 0); p(cur, 1)
        qk1(nxt)
        rd_K1(t+2)
        e(cur, 4); e(cur, 5); e(cur, 6); e(cur, 7); p(cur, 2); p(cur, 3)
        a("s_waitcnt lgkmcnt(2)")
        qk2(nxt)
        rd_K2(t+2)
        e(cur, 8); e(cur, 9); e(cur, 10); e(cur, 11); p(cur, 4); p(cur, 5)
        a(f"v_mfma_f32_32x32x16_bf16 {vr(O,16)}, {vr(V1,4)}, {vr(P,4)}, {vr(O,16)}")
        rd_V1(t+1)
        e(cur, 12); e(cur, 13); e(cur, 14); e(cur, 15); p(cur, 6); p(cur, 7)
    a(f"s_add_u32 s{sIt}, s{sIt}, 1")
    a(f"s_cmp_lt_u32 s{sIt}, 4")
    a(f"s_cbranch_scc1 {L_loop}")
    a("s_waitcnt lgkmcnt(0)")
    a(f"v_mfma_f32_32x32x16_bf16 {vr(O,16)}, {vr(V2,4)}, {vr(P+4,4)}, {vr(O,16)}")
    a("s_setprio 0")
    st.mark("loop")
    a.nop(16)
    L_fin, L_slow = "A_fin", "A_slow"
    a(f"s_mov_b32 s{sIt}, 0")
    a.label(L_fin)
    a(f"v_mov_b32 v{vT}, v{O+8}")
    a(f"v_mov_b32 v{vT+1}, v{O+8}")
    a.nop(2)
    a(f"v_permlane32_swap_b32 v{vT}, v{vT+1}")
    a(f"v_max3_f32 v{vT+2}, |v{O}|, |v{O+1}|, |v{O+2}|")
    for j in range(3, 12, 2):
        j2 = min(j+1, 11)
        a(f"v_max3_f32 v{vT+2}, |v{O+j}|, |v{O+j2}|, v{vT+2}")
    a(f"v_mov_b32 v{vT+3}, {f32bits(2.0**120)}")
    a(f"v_cmp_nlt_f32 vcc, v{vT+2}, v{vT+3}")
    a(f"v_cmp_nlt_f32 s[62:63], 0, v{vT+1}")
    a.nop(1)
    a(f"s_or_b64 vcc, vcc, s[62:63]")
    a(f"s_cmp_eq_u64 vcc, 0")
    a(f"s_cbranch_scc1 A_store")
    a(f"s_cmp_lg_u32 s{sIt}, 0")
    a(f"s_cbranch_scc1 A_store")
    a(f"s_branch {L_slow}")
    a.label("A_store")
    a(f"v_rcp_f32 v{vT+2}, v{vT+1}")
    a.nop(1)
    for j in range(12): a(f"v_mul_f32 v{O+j}, v{O+j}, v{vT+2}")
    for k in range(6): a(f"v_cvt_pk_bf16_f32 v{P+k}, v{O+2*k}, v{O+2*k+1}")
    a(f"s_lshl_b32 s{sT}, s{sCG}, 3")
    a(f"s_add_u32 s{sT}, s{sT}, s{sW}")
    a(f"s_mul_i32 s{sT}, s{sT}, 20")
    a(f"s_mul_i32 s{sT2}, s{sRB}, {40*1024}")
    a(f"s_add_u32 s{sT2}, s{sT2}, {WS_OF}")
    def oaddr(dst, colv):
        a(f"v_lshrrev_b32 v{dst}, 4, v{colv}")
        a(f"v_lshlrev_b32 v{dst}, 10, v{dst}")
        a(f"v_bfe_u32 v{vT+7}, v{colv}, 3, 1")
        a(f"v_lshl_add_u32 v{dst}, v{vT+7}, 9, v{dst}")
        a(f"v_and_b32 v{vT+7}, 7, v{colv}")
        a(f"v_lshl_add_u32 v{dst}, v{vT+7}, 1, v{dst}")
        a(f"v_lshl_add_u32 v{dst}, v{vN}, 4, v{dst}")
    a(f"v_lshlrev_b32 v{vT+3}, 2, v{vH}")
    a(f"v_add_u32 v{vT+3}, s{sT}, v{vT+3}")
    oaddr(vT+4, vT+3)
    a(f"buffer_store_dwordx2 v[{P}:{P+1}], v{vT+4}, s[{R_WS}:{R_WS+3}], s{sT2} offen sc1")
    a(f"v_add_u32 v{vT+3}, 8, v{vT+3}")
    oaddr(vT+5, vT+3)
    a(f"buffer_store_dwordx2 v[{P+2}:{P+3}], v{vT+5}, s[{R_WS}:{R_WS+3}], s{sT2} offen sc1")
    a(f"s_add_u32 s{sT}, s{sT}, 16")
    a(f"v_mov_b32 v{vT+3}, s{sT}")
    oaddr(vT+6, vT+3)
    a(f"v_cmp_eq_u32 vcc, 0, v{vH}")
    a(f"s_and_saveexec_b64 s[62:63], vcc")
    a(f"buffer_store_dwordx2 v[{P+4}:{P+5}], v{vT+6}, s[{R_WS}:{R_WS+3}], s{sT2} offen sc1")
    a(f"s_mov_b64 exec, s[62:63]")
    a("s_waitcnt vmcnt(0)")
    a("s_barrier")
    L_nofl = "A_nofl"
    a(f"s_cmp_lg_u32 s{sW}, 7")
    a(f"s_cbranch_scc1 {L_nofl}")
    a(f"s_lshl_b32 s{sT}, s{sRB}, 2")
    a(f"s_add_u32 s{sT}, s{sT}, s{sCG}")
    set_flag(a, vT, sT, FL_O)
    a.label(L_nofl)
    st.end()
    a("s_endpgm")
    a.label(L_slow)
    a(f"v_cmp_eq_u32 vcc, 1, v{vH}")
    a(f"v_mov_b32 v{vT}, 0")
    a(f"v_mov_b32 v{vM2}, 0xff800000")
    a(f"v_cndmask_b32 v{Q2}, v{Q2}, v{vT}, vcc")
    a(f"s_mov_b32 s{sSoffK}, 0")
    a.label("A_slow1")
    a(f"buffer_load_dwordx4 {vr(K1,4)}, v{vA16}, s[{R_A}:{R_A+3}], s{sSoffK} offen sc1")
    a(f"buffer_load_dwordx2 {vr(K2,2)}, v{vA8}, s[{R_A}:{R_A+3}], s{sSoffK} offen offset:1024 sc1")
    a("s_waitcnt vmcnt(0)")
    qk1(S[0]); qk2(S[0])
    a.nop(16)
    for i in range(8):
        a(f"v_max3_f32 v{vM2}, v{S[0]+2*i}, v{S[0]+2*i+1}, v{vM2}")
    a(f"s_add_u32 s{sSoffK}, s{sSoffK}, 4096")
    a(f"s_cmp_lt_u32 s{sSoffK}, 262144")
    a(f"s_cbranch_scc1 A_slow1")
    set_m(0.0)
    for i in range(16): a(f"v_mov_b32 v{O+i}, 0")
    a(f"s_mov_b32 s{sSoffK}, 0")
    a.label("A_slow2")
    a(f"buffer_load_dwordx4 {vr(K1,4)}, v{vA16}, s[{R_A}:{R_A+3}], s{sSoffK} offen sc1")
    a(f"buffer_load_dwordx2 {vr(K2,2)}, v{vA8}, s[{R_A}:{R_A+3}], s{sSoffK} offen offset:1024 sc1")
    a(f"buffer_load_dwordx4 {vr(V1,4)}, v{vA16}, s[{R_A}:{R_A+3}], s{sSoffK} offen offset:2048 sc1")
    a(f"buffer_load_dwordx4 {vr(V2,4)}, v{vA16}, s[{R_A}:{R_A+3}], s{sSoffK} offen offset:3072 sc1")
    a("s_waitcnt vmcnt(0)")
    qk1(S[0]); qk2(S[0])
    a.nop(16)
    for i in range(16): e(S[0], i)
    a.nop(1)
    for k in range(8): p(S[0], k)
    a.nop(2)
    a(f"v_mfma_f32_32x32x16_bf16 {vr(O,16)}, {vr(V1,4)}, {vr(P,4)}, {vr(O,16)}")
    a(f"v_mfma_f32_32x32x16_bf16 {vr(O,16)}, {vr(V2,4)}, {vr(P+4,4)}, {vr(O,16)}")
    a(f"s_add_u32 s{sSoffK}, s{sSoffK}, 4096")
    a(f"s_cmp_lt_u32 s{sSoffK}, 262144")
    a(f"s_cbranch_scc1 A_slow2")
    a.nop(16)
    a(f"s_mov_b32 s{sIt}, 1")
    a(f"s_branch {L_fin}")

def role_B1(a):
    st = Stamps(a, "B1")
    st.start()
    if OPT.get("bprio"): a(f"s_setprio {OPT['bprio']}")
    sG, sC = sRB, sCG
    sSoffW, sSoffX, sLdsW, sKH, sXb = 57, 58, 59, 60, 99
    vT = 4; vW = 10; vTr, vX16, vR = 13, 14, 15
    XS = 16; WF = 48; ACC = 76
    SLOT = 24576
    a(f"s_sub_u32 s{sT2}, s2, 256")
    a(f"s_and_b32 s{sG}, s{sT2}, 7")
    a(f"s_lshl_b32 s{sG}, s{sG}, 1")
    a(f"s_bfe_u32 s{sT}, s{sT2}, 0x10003")
    a(f"s_add_u32 s{sG}, s{sG}, s{sT}")
    a(f"s_lshr_b32 s{sC}, s{sT2}, 4")
    a(f"s_lshr_b32 s{sKH}, s{sW}, 2")
    a(f"v_lshlrev_b32 v{vX16}, 4, v{vLane}")
    a(f"s_and_b32 s{sT}, s{sW}, 3")
    a(f"s_mul_i32 s{sT}, s{sT}, 192")
    a(f"s_mul_i32 s{sT2}, s{sC}, 192")
    a(f"s_mul_i32 s{sT3}, s{sKH}, {320*3072}")
    a(f"s_add_u32 s{sT2}, s{sT2}, s{sT3}")
    for i in range(3):
        a(f"v_add_u32 v{vT}, s{sT}, v{vLane}")
        if i: a(f"v_add_u32 v{vT}, {64*i}, v{vT}")
        a(f"v_mul_u32_u24 v{vT+1}, 5462, v{vT}")
        a(f"v_lshrrev_b32 v{vT+1}, 16, v{vT+1}")
        a(f"v_mul_u32_u24 v{vT+2}, 12, v{vT+1}")
        a(f"v_sub_u32 v{vT}, v{vT}, v{vT+2}")
        a(f"v_lshlrev_b32 v{vT}, 4, v{vT}")
        a(f"v_mul_u32_u24 v{vT+1}, 3072, v{vT+1}")
        a(f"v_add3_u32 v{vW+i}, v{vT}, v{vT+1}, s{sT2}")
        if i: a(f"v_subrev_u32 v{vW+i}, {1024*i}, v{vW+i}")
    a(f"s_mul_i32 s{sT}, s{sKH}, 12288")
    tr_addr(a, vTr, None, 192, 8, 4, sT, vT)
    a(f"s_mul_i32 s{sLdsW}, s{sW}, 3072")
    srd(a, R_A, S_W1, S_W1+1, 640*1536*2)
    srd(a, R_B, S_B1, S_B1+1, 1536*2)
    a(f"s_mul_hi_u32 s{sT}, s{sC}, {(1<<32)//5 + 1}")
    a(f"s_mul_i32 s{sT}, s{sT}, 5")
    a(f"s_sub_u32 s{sT}, s{sC}, s{sT}")
    a(f"s_mul_i32 s{sSoffW}, s{sT}, {64*3072}")
    a(f"s_lshl_b32 s{sSoffX}, s{sT}, 12")
    a(f"s_and_b32 s{sT}, s{sW}, 3")
    a(f"s_lshl_b32 s{sT2}, s{sG}, 2")
    a(f"s_add_u32 s{sT}, s{sT}, s{sT2}")
    a(f"s_mul_i32 s{sXb}, s{sT}, {40*1024}")
    a(f"s_mul_i32 s{sT2}, s{sKH}, {20*1024}")
    a(f"s_add_u32 s{sXb}, s{sXb}, s{sT2}")
    if WS_XF: a(f"s_add_u32 s{sXb}, s{sXb}, {WS_XF}")
    def issueW(c):
        a(f"s_add_u32 m0, s{sLdsW}, {(c%3)*SLOT}")
        a(f"s_add_u32 s{sT}, s{sSoffW}, {64*3072}")
        for i in range(3):
            a(f"buffer_load_dwordx4 v{vW+i}, s[{R_A}:{R_A+3}], s{sSoffW} offen offset:{1024*i} lds")
        a(f"s_cmp_eq_u32 s{sT}, {320*3072}")
        a(f"s_cselect_b32 s{sSoffW}, 0, s{sT}")
    def issueX(c):
        xs = XS + 16*(c % 2)
        a(f"s_add_u32 s{sT2}, s{sXb}, s{sSoffX}")
        a(f"s_add_u32 s{sT}, s{sSoffX}, 4096")
        for i in range(4):
            a(f"buffer_load_dwordx4 {vr(xs+4*i,4)}, v{vX16}, s[{R_WS}:{R_WS+3}], s{sT2} offen offset:{1024*i} sc1")
        a(f"s_cmp_eq_u32 s{sT}, 20480")
        a(f"s_cselect_b32 s{sSoffX}, 0, s{sT}")
    a(f"s_cmp_lg_u32 s{sW}, 0")
    a(f"s_cbranch_scc1 B1_pre")
    get_tag(a, vT, "B1")
    a(f"s_lshl_b32 s{sT}, s{sG}, 5")
    if OPT.get("wftries", 2): poll_flags(a, vT, "B1p", sT, 32, FL_D, tries=OPT.get("wftries", 2))
    a.label("B1_pre")
    a("s_barrier")
    st.mark("prepoll")
    sJ = 96
    a(f"s_sub_u32 s{sJ}, s2, 256")
    srd(a, R_C, S_W2, S_W2+1, 1536*640*2)
    vF = 16
    a(f"v_lshrrev_b32 v32, 2, v{vLane}")
    a(f"v_mul_u32_u24 v32, 1280, v32")
    a(f"v_and_b32 v33, 3, v{vLane}")
    a(f"v_lshl_add_u32 v32, v33, 4, v32")
    a(f"s_lshl_b32 s{sT}, s{sW}, 11")
    a(f"v_add_u32 v33, s{sT}, v{vX16}")
    tr_addr(a, 34, None, 64, 4, 8, sT, vT)
    tr_addr(a, 35, None, 64, 8, 4, sT, vT)
    sDst = [92, 93]; sStp = [94, 95]
    for rnd in range(2):
        Lskip = f"B1_wf{rnd}_skip"
        a(f"s_mov_b32 s{sStp[rnd]}, -1")
        if rnd == 1:
            a(f"s_cmp_ge_u32 s{sW}, 3")
            a(f"s_cbranch_scc1 {Lskip}")
        a(f"s_and_b32 s{sT}, s{sJ}, 63")
        a(f"s_mul_i32 s{sT}, s{sT}, 11")
        a(f"s_add_u32 s{sT}, s{sT}, s{sW}")
        if rnd: a(f"s_add_u32 s{sT}, s{sT}, 8")
        a(f"s_cmp_ge_u32 s{sT}, 680")
        a(f"s_cbranch_scc1 {Lskip}")
        a(f"s_mul_hi_u32 s{sT2}, s{sT}, {(1<<32)//136 + 1}")
        a(f"s_mul_i32 s{sT3}, s{sT2}, 136")
        a(f"s_sub_u32 s{sT}, s{sT}, s{sT3}")
        a(f"s_mov_b32 s{sStp[rnd]}, s{sT}")
        a(f"s_lshr_b32 s{sT3}, s{sJ}, 6")
        a(f"s_mul_i32 s{sT3}, s{sT3}, 5")
        a(f"s_add_u32 s{sT2}, s{sT2}, s{sT3}")
        a(f"s_mul_i32 s62, s{sT2}, 136")
        a(f"s_add_u32 s62, s62, s{sT}")
        a(f"s_lshl_b32 s62, s62, 10")
        a(f"s_add_u32 s{sDst[rnd]}, s62, {WS_WF}")
        a(f"s_lshl_b32 s{sT2}, s{sT2}, 6")
        a(f"s_cmp_lt_u32 s{sT}, 96")
        a(f"s_cselect_b32 s{R_C}, s{S_W2}, s{S_WO}")
        a(f"s_cselect_b32 s{R_C+1}, s{S_W2+1}, s{S_WO+1}")
        a(f"s_cselect_b32 s63, 0, 96")
        a(f"s_mov_b32 s{R_C+2}, {640*640*2}")
        a(f"s_cbranch_scc0 B1_wf{rnd}_a")
        a(f"s_mov_b32 s{R_C+2}, {1536*640*2}")
        a.label(f"B1_wf{rnd}_a")
        a(f"s_sub_u32 s{sT3}, s{sT}, s63")
        a(f"s_mul_i32 s{sT3}, s{sT3}, {16*1280}")
        a(f"s_add_u32 s{sT3}, s{sT3}, s{sT2}")
        a(f"buffer_load_dwordx4 v[{16+4*rnd}:{19+4*rnd}], v32, s[{R_C}:{R_C+3}], s{sT3} offen")
        a.label(Lskip)
    a("s_waitcnt vmcnt(0)")
    for rnd in range(2):
        Lskip = f"B1_wg{rnd}_skip"
        a(f"s_cmp_eq_u32 s{sStp[rnd]}, -1")
        a(f"s_cbranch_scc1 {Lskip}")
        a(f"ds_write_b128 v33, v[{16+4*rnd}:{19+4*rnd}] offset:{1024*rnd}")
        a(f"s_cmp_lt_u32 s{sStp[rnd]}, 96")
        a(f"s_cbranch_scc0 B1_wf{rnd}_n")
        a(f"ds_read_b64_tr_b16 v[{24+4*rnd}:{25+4*rnd}], v34 offset:{1024*rnd}")
        a(f"ds_read_b64_tr_b16 v[{26+4*rnd}:{27+4*rnd}], v34 offset:{1024*rnd+512}")
        a(f"s_branch B1_wf{rnd}_s")
        a.label(f"B1_wf{rnd}_n")
        a(f"ds_read_b64_tr_b16 v[{24+4*rnd}:{25+4*rnd}], v35 offset:{1024*rnd}")
        a(f"ds_read_b64_tr_b16 v[{26+4*rnd}:{27+4*rnd}], v35 offset:{1024*rnd+256}")
        a.label(f"B1_wf{rnd}_s")
        a("s_waitcnt lgkmcnt(0)")
        a(f"buffer_store_dwordx4 v[{24+4*rnd}:{27+4*rnd}], v{vX16}, s[{R_WS}:{R_WS+3}], s{sDst[rnd]} offen sc1")
        a.label(Lskip)
    st.mark("wfprep")
    if OPT.get("t1", 1):
        a(f"s_cmp_ge_u32 s{sW}, 5")
        a(f"s_cbranch_scc1 B1_not1")
        a(f"s_and_b32 s{sT}, s{sG}, 1")
        a(f"s_mul_i32 s{sT}, s{sT}, 5")
        a(f"s_add_u32 s{sT}, s{sT}, s{sW}")
        a(f"s_mul_i32 s{sT}, s{sT}, {64*3072}")
        a(f"s_mul_i32 s{sT2}, s{sC}, 192")
        a(f"s_add_u32 s{sT}, s{sT}, s{sT2}")
        a(f"v_mul_u32_u24 v36, 3072, v{vLane}")
        a(f"buffer_load_dword v0, v36, s[{R_A}:{R_A+3}], s{sT} offen")
        a(f"buffer_load_dword v0, v36, s[{R_A}:{R_A+3}], s{sT} offen offset:128")
        a.label("B1_not1")
    L_np = "B1_np"
    a(f"s_cmp_lg_u32 s{sW}, 0")
    a(f"s_cbranch_scc1 {L_np}")
    a(f"s_lshl_b32 s{sT}, s{sG}, 5")
    poll_flags(a, vT, "B1", sT, 32, FL_D)
    if OPT.get("b1kv"): poll_flags(a, vT, "B1k", None, 128, FL_KV)
    a.label(L_np)
    a("s_barrier")
    st.mark("wait_d")
    issued = []
    def iX(c): issueX(c); issued.extend([("X", c)]*4)
    def iW(c): issueW(c); issued.extend([("W", c)]*3)
    iW(0); iX(0)
    a("s_barrier")
    iW(1); iX(1)
    a("s_barrier")
    iW(2)
    def wreads(c, k, buf):
        base = (c % 3)*SLOT + k*16*192
        for ct in range(3):
            a(f"ds_read_b64_tr_b16 v[{WF+12*buf+4*ct}:{WF+12*buf+4*ct+1}], v{vTr} offset:{base + ct*64}")
            a(f"ds_read_b64_tr_b16 v[{WF+12*buf+4*ct+2}:{WF+12*buf+4*ct+3}], v{vTr} offset:{base + ct*64 + 4*192}")
    for c in range(5):
        last = max(i for i, e_ in enumerate(issued) if e_ in (("W", c), ("X", c)))
        a(f"s_waitcnt vmcnt({len(issued) - 1 - last})")
        a("s_barrier")
        if c == 0:
            st.mark("b0")
            a(f"s_cmp_lg_u32 s{sW}, 0")
            a(f"s_cbranch_scc1 B1_nofw")
            set_flag(a, vT, sJ, FL_W)
            a.label("B1_nofw")
        if c == 1 and OPT.get("t2", 1):
            a(f"v_lshlrev_b32 v{vT+2}, 7, v{vLane}")
            a(f"s_sub_u32 s{sT}, s2, 256")
            a(f"s_lshr_b32 s{sT}, s{sT}, 3")
            a(f"s_mul_i32 s{sT}, s{sT}, {85*1024}")
            a(f"s_lshl_b32 s{sT2}, s{sW}, 13")
            a(f"s_add_u32 s{sT}, s{sT}, s{sT2}")
            a(f"s_add_u32 s{sT}, s{sT}, {WS_WF}")
            a(f"buffer_load_dword v0, v{vT+2}, s[{R_WS}:{R_WS+3}], s{sT} offen")
            a(f"s_cmp_ge_u32 s{sW}, 3")
            a(f"s_cbranch_scc1 B1_nt2")
            a(f"s_add_u32 s{sT}, s{sT}, 65536")
            a(f"buffer_load_dword v0, v{vT+2}, s[{R_WS}:{R_WS+3}], s{sT} offen")
            a.label("B1_nt2")
            issued.append("T")
        if 1 <= c <= 2: iW(c + 2)
        xs = XS + 16*(c % 2)
        wreads(c, 0, 0)
        for k in range(4):
            buf = k % 2
            if k < 3:
                wreads(c, k + 1, 1 - buf)
                a("s_waitcnt lgkmcnt(6)")
            else:
                a("s_waitcnt lgkmcnt(0)")
            for ct in range(3):
                cin = "0" if (c == 0 and k == 0) else vr(ACC+16*ct,16)
                a(f"v_mfma_f32_32x32x16_bf16 {vr(ACC+16*ct,16)}, {vr(WF+12*buf+4*ct,4)}, {vr(xs+4*k,4)}, {cin}")
        if c + 2 < 5: iX(c + 2)
    st.mark("kloop")
    a("s_setprio 3")
    a(f"s_and_b32 s{sT}, s{sW}, 3")
    a(f"s_lshl_b32 s{sT2}, s{sG}, 2")
    a(f"s_add_u32 s{sT}, s{sT}, s{sT2}")
    a(f"s_lshl_b32 s{sT2}, s{sT}, 7")
    a(f"s_add_u32 s{sT2}, s{sT2}, {WS_R}")
    a(f"v_lshlrev_b32 v{vT}, 2, v{vN}")
    a(f"buffer_load_dword v{vR}, v{vT}, s[{R_WS}:{R_WS+3}], s{sT2} offen sc1")
    a(f"s_mul_i32 s{sT2}, s{sC}, 192")
    a(f"s_lshl_b32 s{sT3}, s{sKH}, 5")
    a(f"s_add_u32 s{sT2}, s{sT2}, s{sT3}")
    a(f"v_lshlrev_b32 v{vT}, 3, v{vH}")
    B = XS
    for ct in range(3):
        for q in range(2):
            a(f"buffer_load_dwordx2 v[{B+4*ct+2*q}:{B+4*ct+2*q+1}], v{vT}, s[{R_B}:{R_B+3}], s{sT2} offen offset:{64*ct+16*q}")
    a(f"s_mul_i32 s{sT}, s{sT}, 96")
    a(f"s_mul_i32 s{sT2}, s{sC}, 6")
    a(f"s_add_u32 s{sT}, s{sT}, s{sT2}")
    a(f"s_add_u32 s{sT}, s{sT}, s{sKH}")
    a(f"s_lshl_b32 s{sXb}, s{sT}, 10")
    a(f"s_add_u32 s{sXb}, s{sXb}, {WS_H}")
    a("s_barrier")
    a.nop(4)
    T = XS + 16
    a(f"s_mul_i32 s{sT}, s{sW}, 6144")
    a(f"v_add_u32 v{vT+1}, s{sT}, v{vX16}")
    a(f"s_xor_b32 s{sT}, s{sW}, 4")
    a(f"s_mul_i32 s{sT}, s{sT}, 6144")
    a(f"v_add_u32 v{vT+2}, s{sT}, v{vX16}")
    a(f"s_cmp_eq_u32 s{sKH}, 1")
    a(f"s_cbranch_scc1 B1_x1")
    for ct in range(3):
        for q in range(2):
            a(f"ds_write_b128 v{vT+1}, {vr(ACC+16*ct+8+4*q,4)} offset:{(2*ct+q)*1024}")
    a(f"s_branch B1_x2")
    a.label("B1_x1")
    for ct in range(3):
        for q in range(2):
            a(f"ds_write_b128 v{vT+1}, {vr(ACC+16*ct+4*q,4)} offset:{(2*ct+q)*1024}")
    a.label("B1_x2")
    a("s_waitcnt lgkmcnt(0)")
    a("s_barrier")
    for i in range(6):
        a(f"ds_read_b128 {vr(T+4*i,4)}, v{vT+2} offset:{i*1024}")
    a("s_waitcnt lgkmcnt(0) vmcnt(0)")
    a(f"s_cmp_eq_u32 s{sKH}, 1")
    a(f"s_cbranch_scc1 B1_y1")
    for ct in range(3):
        for j in range(8): a(f"v_add_f32 v{T+8*ct+j}, v{T+8*ct+j}, v{ACC+16*ct+j}")
    a(f"s_branch B1_y2")
    a.label("B1_y1")
    for ct in range(3):
        for j in range(8): a(f"v_add_f32 v{T+8*ct+j}, v{T+8*ct+j}, v{ACC+16*ct+8+j}")
    a.label("B1_y2")
    TB = 56
    for ct in range(3):
        for q in range(2):
            b0 = B+4*ct+2*q
            acc = T+8*ct+4*q
            a(f"v_lshlrev_b32 v{TB}, 16, v{b0}")
            a(f"v_and_b32 v{TB+1}, 0xffff0000, v{b0}")
            a(f"v_lshlrev_b32 v{TB+2}, 16, v{b0+1}")
            a(f"v_and_b32 v{TB+3}, 0xffff0000, v{b0+1}")
            for j in range(4): a(f"v_fma_f32 v{acc+j}, v{acc+j}, v{vR}, v{TB+j}")
            for j in range(4): a(f"v_max_f32 v{acc+j}, 0, v{acc+j}")
            for j in range(4): a(f"v_mul_f32 v{acc+j}, v{acc+j}, v{acc+j}")
        for k in range(4):
            a(f"v_cvt_pk_bf16_f32 v{60+4*ct+k}, v{T+8*ct+2*k}, v{T+8*ct+2*k+1}")
    a(f"v_add_u32 v{vT}, 4096, v{vX16}")
    a(f"buffer_store_dwordx4 {vr(60,4)}, v{vX16}, s[{R_WS}:{R_WS+3}], s{sXb} offen sc1")
    a(f"buffer_store_dwordx4 {vr(64,4)}, v{vX16}, s[{R_WS}:{R_WS+3}], s{sXb} offen offset:2048 sc1")
    a(f"buffer_store_dwordx4 {vr(68,4)}, v{vT}, s[{R_WS}:{R_WS+3}], s{sXb} offen sc1")
    a("s_waitcnt vmcnt(0)")
    a("s_barrier")
    L_nf = "B1_nf"
    a(f"s_cmp_lg_u32 s{sW}, 0")
    a(f"s_cbranch_scc1 {L_nf}")
    a(f"s_lshl_b32 s{sT}, s{sG}, 4")
    a(f"s_add_u32 s{sT}, s{sT}, s{sC}")
    set_flag(a, vT, sT, FL_H)
    a.label(L_nf)
    st.mark("epi")
    st.end()
    a("s_endpgm")

def role_B2(a):
    st = Stamps(a, "B2")
    st.start()
    if OPT.get("bprio"): a(f"s_setprio {OPT['bprio']}")
    sSoffW, sSoffX, sWb, sIt, sRho, sWrapW, sRst = 57, 58, 59, 60, 61, 98, 99
    vT = 4
    vX16, vXa = 14, 15
    ACC = 16
    XR = 48
    WB = 64
    vOut = vT+3
    NXS = 8
    a(f"s_sub_u32 s{sT2}, s2, 512")
    decode_rb_cg(a, sT2)
    a(f"v_lshlrev_b32 v{vX16}, 4, v{vLane}")
    a(f"s_and_b32 s{sRho}, s{sRB}, 7")
    a(f"s_min_u32 s{sT3}, s{sW}, 4")
    a(f"s_mul_i32 s{sT}, s{sCG}, 5")
    a(f"s_add_u32 s{sT}, s{sT}, s{sT3}")
    a(f"s_mul_i32 s{sWb}, s{sT}, {136*1024}")
    a(f"s_add_u32 s{sWb}, s{sWb}, {WS_WF}")
    a(f"s_lshl_b32 s{sT}, s{sT}, 6")
    srd(a, R_C, S_X, S_X+1, NX)
    a(f"s_lshl_b32 s{sT2}, s{sRB}, 5")
    a(f"v_add_u32 v{vT}, s{sT2}, v{vN}")
    a(f"v_mul_u32_u24 v{vT}, 1280, v{vT}")
    a(f"v_lshl_add_u32 v{vT}, v{vH}, 3, v{vT}")
    a(f"v_add_u32 v{vOut}, s{sT}, v{vT}")
    for q in range(4):
        a(f"buffer_load_dwordx2 v[{XR+2*q}:{XR+2*q+1}], v{vOut}, s[{R_C}:{R_C+3}], 0 offen offset:{16*q}")
    srd(a, R_C, S_B2, S_B2+1, 640*2)
    a(f"v_lshlrev_b32 v{vT}, 3, v{vH}")
    for q in range(4):
        a(f"buffer_load_dwordx2 v[{XR+8+2*q}:{XR+8+2*q+1}], v{vT}, s[{R_C}:{R_C+3}], s{sT} offen offset:{16*q}")
    for i in range(16): a(f"v_mov_b32 v{ACC+i}, 0")
    def unpack_add(q, dst):
        for (src, t) in ((XR+2*q, 32), (XR+8+2*q, 36)):
            a(f"v_lshlrev_b32 v{t}, 16, v{src}")
            a(f"v_and_b32 v{t+1}, 0xffff0000, v{src}")
            a(f"v_lshlrev_b32 v{t+2}, 16, v{src+1}")
            a(f"v_and_b32 v{t+3}, 0xffff0000, v{src+1}")
        for j in range(4): a(f"v_add_f32 v{32+j}, v{32+j}, v{36+j}")
        for j in range(4): a(f"v_add_f32 v{dst+j}, v{dst+j}, v{32+j}")
    L_side = "B2_side"
    a(f"s_cmp_ge_u32 s{sW}, 4")
    a(f"s_cbranch_scc1 {L_side}")
    a("s_barrier")
    a(f"s_lshl_b32 s{sSoffW}, s{sRho}, 13")
    a(f"s_mov_b32 s{sWrapW}, {96*1024}")
    a(f"s_mov_b32 s{sRst}, 0")
    def wload(r):
        a(f"s_add_u32 s{sT2}, s{sWb}, s{sSoffW}")
        a(f"s_add_u32 s{sT}, s{sSoffW}, 1024")
        a(f"buffer_load_dwordx4 {vr(r,4)}, v{vX16}, s[{R_WS}:{R_WS+3}], s{sT2} offen sc1")
        a(f"s_cmp_eq_u32 s{sT}, s{sWrapW}")
        a(f"s_cselect_b32 s{sSoffW}, s{sRst}, s{sT}")
    for k in range(16): wload(WB + 4*k)
    st.mark("setup")
    a("s_barrier")
    a(f"s_mov_b32 s{sIt}, 0")
    L1 = "B2_p1"
    a.label(L1)
    XBUF = 32
    for j in range(16):
        k = j % 8
        if k == 0:
            a("s_barrier")
            a(f"s_lshl_b32 s{sT}, s{sIt}, 1")
            if j: a(f"s_add_u32 s{sT}, s{sT}, 1")
            a(f"s_and_b32 s{sT}, s{sT}, {NXS-1}")
            a(f"s_lshl_b32 s{sT}, s{sT}, 13")
            a(f"v_add_u32 v{vXa}, s{sT}, v{vX16}")
            for i in range(3):
                a(f"ds_read_b128 {vr(XBUF+4*i,4)}, v{vXa} offset:{i*1024}")
        if j == 0:
            L1n = "B2_p1n"
            a(f"s_cmp_lg_u32 s{sIt}, 5")
            a(f"s_cbranch_scc1 {L1n}")
            a(f"s_mul_i32 s{sSoffW}, s{sRho}, {5*1024}")
            a(f"s_add_u32 s{sSoffW}, s{sSoffW}, {96*1024}")
            a(f"s_mov_b32 s{sWrapW}, {136*1024}")
            a(f"s_mov_b32 s{sRst}, {96*1024}")
            a.label(L1n)
        if k + 3 < 8:
            a(f"ds_read_b128 {vr(XBUF+4*((k+3)%4),4)}, v{vXa} offset:{(k+3)*1024}")
            a("s_waitcnt vmcnt(15) lgkmcnt(3)")
        else:
            a(f"s_waitcnt vmcnt(15) lgkmcnt({7-k})")
        a(f"v_mfma_f32_32x32x16_bf16 {vr(ACC,16)}, {vr(WB+4*j,4)}, {vr(XBUF+4*(k%4),4)}, {vr(ACC,16)}")
        wload(WB + 4*j)
    a(f"s_add_u32 s{sIt}, s{sIt}, 1")
    a(f"s_cmp_lt_u32 s{sIt}, 6")
    a(f"s_cbranch_scc1 {L1}")
    st.mark("ffn2")
    a.nop(12)
    for q in range(4): unpack_add(q, ACC+4*q)
    XBUF = XR
    NBLK = 20
    def blk(s_):
        b = s_ % NBLK
        return (WB + 4*b) if b < 16 else (32 + 4*(b-16))
    for s_ in range(16, 20): wload(blk(s_))
    a("s_barrier")
    a(f"s_branch B2_oload")
    a.label(L_side)
    Lnp0 = "B2_np0"
    a(f"s_cmp_lg_u32 s{sW}, 7")
    a(f"s_cbranch_scc1 {Lnp0}")
    get_tag(a, vT, "B2")
    a(f"s_lshl_b32 s{sT}, s{sCG}, 6")
    poll_flags(a, vT, "B2w", sT, 64, FL_W)
    a.label(Lnp0)
    a("s_barrier")
    a(f"s_sub_u32 s{sT3}, s{sW}, 4")
    a("s_waitcnt vmcnt(0)")
    for jj in range(1, 4):
        Ls = a.newlabel("B2_q")
        a(f"s_cmp_lg_u32 s{sT3}, {jj}")
        a(f"s_cbranch_scc1 {Ls}")
        a(f"v_mov_b32 v{XR}, v{XR+2*jj}")
        a(f"v_mov_b32 v{XR+1}, v{XR+2*jj+1}")
        a(f"v_mov_b32 v{XR+8}, v{XR+8+2*jj}")
        a(f"v_mov_b32 v{XR+9}, v{XR+8+2*jj+1}")
        a.label(Ls)
    for j in range(4): a(f"v_mov_b32 v{40+j}, 0")
    unpack_add(0, 40)
    a(f"s_lshl_b32 s{sRst}, s{sT3}, 11")
    a(f"s_lshl_b32 s{sSoffW}, s{sRho}, 13")
    a(f"s_add_u32 s{sSoffW}, s{sSoffW}, s{sRst}")
    a(f"s_add_u32 s{sWrapW}, s{sRst}, {96*1024}")
    SD = 4
    def wpair(slot):
        a(f"s_add_u32 s{sT2}, s{sWb}, s{sSoffW}")
        a(f"s_add_u32 s{sT}, s{sSoffW}, 8192")
        a(f"buffer_load_dwordx4 {vr(WB+8*slot,4)}, v{vX16}, s[{R_WS}:{R_WS+3}], s{sT2} offen sc1")
        a(f"buffer_load_dwordx4 {vr(WB+8*slot+4,4)}, v{vX16}, s[{R_WS}:{R_WS+3}], s{sT2} offen offset:1024 sc1")
        a(f"s_cmp_eq_u32 s{sT}, s{sWrapW}")
        a(f"s_cselect_b32 s{sSoffW}, s{sRst}, s{sT}")
    for c in range(SD): wpair(c)
    Lnp = "B2_np"
    a(f"s_cmp_lg_u32 s{sW}, 7")
    a(f"s_cbranch_scc1 {Lnp}")
    a(f"s_lshr_b32 s{sT}, s{sRB}, 2")
    a(f"s_lshl_b32 s{sT}, s{sT}, 4")
    poll_flags(a, vT, "B2h", sT, 16, FL_H)
    a.label(Lnp)
    a("s_barrier")
    a(f"s_sub_u32 s{sT3}, s{sW}, 4")
    a(f"s_mul_i32 s{sT}, s{sRB}, {96*1024}")
    a(f"s_add_u32 s63, s{sT}, {WS_H}")
    a(f"s_lshl_b32 s97, s{sT3}, 11")
    a(f"s_add_u32 s63, s63, s97")
    a(f"s_lshl_b32 s{sSoffX}, s{sRho}, 13")
    a(f"v_add_u32 v{vT+5}, s97, v{vX16}")
    vXs = vT+5
    vm = Cnt(a, "vmcnt", 63)
    def xdma(c):
        a(f"s_add_u32 m0, s97, {(c % NXS)*8192}")
        a(f"s_add_u32 s{sT2}, s63, s{sSoffX}")
        a(f"s_add_u32 s{sT}, s{sSoffX}, 8192")
        for i in range(2):
            a(f"buffer_load_dwordx4 v{vX16}, s[{R_WS}:{R_WS+3}], s{sT2} offen offset:{1024*i} sc1 lds")
        a(f"s_cmp_eq_u32 s{sT}, {96*1024}")
        a(f"s_cselect_b32 s{sSoffX}, 0, s{sT}")
        vm.issue(("X", c), 2)
    for c in range(SD): vm.issue(("W", c), 2)
    XD = 6
    for c in range(XD): xdma(c)
    for c in range(12):
        vm.need(("X", c), ("W", c))
        a("s_barrier")
        if c + XD < 12: xdma(c + XD)
        for i in range(2):
            a(f"ds_read_b128 {vr(48+4*i,4)}, v{vXs} offset:{(c % NXS)*8192 + 1024*i}")
        a("s_waitcnt lgkmcnt(1)")
        a(f"v_mfma_f32_32x32x16_bf16 {vr(ACC,16)}, {vr(WB+8*(c%4),4)}, {vr(48,4)}, {vr(ACC,16)}")
        a("s_waitcnt lgkmcnt(0)")
        a(f"v_mfma_f32_32x32x16_bf16 {vr(ACC,16)}, {vr(WB+8*(c%4)+4,4)}, {vr(52,4)}, {vr(ACC,16)}")
        if c + SD < 12: wpair(c % 4); vm.issue(("W", c + SD), 2)
    a(f"s_sub_u32 s{sT3}, s{sW}, 4")
    a(f"s_lshl_b32 s{sT3}, s{sT3}, 1")
    a(f"s_mul_i32 s62, s{sRho}, 5")
    a(f"s_add_u32 s62, s62, s{sT3}")
    for m in range(5):
        for i in range(2):
            a(f"s_add_u32 s{sT}, s62, {8*m+i}")
            a(f"s_cmp_ge_u32 s{sT}, 40")
            a(f"s_cselect_b32 s{sT2}, 40, 0")
            a(f"s_sub_u32 s{sT}, s{sT}, s{sT2}")
            a(f"s_add_u32 s{sT}, s{sT}, 96")
            a(f"s_lshl_b32 s{sT}, s{sT}, 10")
            a(f"s_add_u32 s{sT}, s{sT}, s{sWb}")
            a(f"buffer_load_dwordx4 {vr(WB+4*(2*m+i),4)}, v{vX16}, s[{R_WS}:{R_WS+3}], s{sT} offen sc1")
    Lnp2 = "B2_np2"
    a(f"s_cmp_lg_u32 s{sW}, 7")
    a(f"s_cbranch_scc1 {Lnp2}")
    a(f"s_lshl_b32 s{sT}, s{sRB}, 2")
    poll_flags(a, vT, "B2o", sT, 4, FL_O)
    a.label(Lnp2)
    st.mark("wait_o")
    a("s_barrier")
    a.label("B2_oload")
    a(f"s_mul_i32 s63, s{sRB}, {40*1024}")
    a(f"s_add_u32 s63, s63, {WS_OF}")
    a(f"s_mul_i32 s62, s{sRho}, 5")
    for i in range(5):
        a(f"s_mul_i32 s{sT}, s{sW}, 5")
        a(f"s_add_u32 s{sT}, s{sT}, {i}")
        a(f"s_add_u32 s{sT2}, s{sT}, s62")
        a(f"s_cmp_ge_u32 s{sT2}, 40")
        a(f"s_cselect_b32 s{sIt}, 40, 0")
        a(f"s_sub_u32 s{sT2}, s{sT2}, s{sIt}")
        a(f"s_lshl_b32 s{sT2}, s{sT2}, 10")
        a(f"s_add_u32 s{sT2}, s{sT2}, s63")
        a(f"s_lshl_b32 m0, s{sT}, 10")
        a("s_nop 0")
        a(f"buffer_load_dwordx4 v{vX16}, s[{R_WS}:{R_WS+3}], s{sT2} offen sc1 lds")
    a("s_waitcnt vmcnt(0)")
    a("s_barrier")
    st.mark("oload")
    a(f"s_cmp_ge_u32 s{sW}, 4")
    a(f"s_cbranch_scc1 B2_side2")
    vm = Cnt(a, "vmcnt", 63); lg = Cnt(a, "lgkmcnt", 15)
    def xread(s_):
        r = XBUF + 4*(s_ % 4)
        a(f"ds_read_b128 {vr(r,4)}, v{vX16} offset:{s_*1024}")
        lg.issue(("X", s_))
    for s_ in range(3): xread(s_)
    for s_ in range(40):
        if s_ + 3 < 40: xread(s_ + 3)
        vm.need(("W", s_))
        lg.need(("X", s_))
        a(f"v_mfma_f32_32x32x16_bf16 {vr(ACC,16)}, {vr(blk(s_),4)}, {vr(XBUF+4*(s_%4),4)}, {vr(ACC,16)}")
        if s_ + NBLK < 40:
            wload(blk(s_)); vm.issue(("W", s_ + NBLK))
    st.mark("wo")
    a("s_setprio 3")
    a("s_barrier")
    a.nop(10)
    srd(a, R_C, S_OUT, S_OUT+1, NX)
    for q in range(4):
        a(f"v_cvt_pk_bf16_f32 v{32+2*q}, v{ACC+4*q}, v{ACC+4*q+1}")
        a(f"v_cvt_pk_bf16_f32 v{33+2*q}, v{ACC+4*q+2}, v{ACC+4*q+3}")
        a(f"buffer_store_dwordx2 v[{32+2*q}:{33+2*q}], v{vOut}, s[{R_C}:{R_C+3}], 0 offen offset:{16*q} {OST()}")
    a("s_barrier")
    st.end()
    a("s_endpgm")
    a.label("B2_side2")
    for k in range(4):
        a(f"ds_read_b128 {vr(48+4*k,4)}, v{vXs} offset:{(8*(k//2)+(k%2))*1024}")
    for k in range(10):
        a(f"s_waitcnt lgkmcnt({min(3, 9-k)})")
        a(f"v_mfma_f32_32x32x16_bf16 {vr(ACC,16)}, {vr(WB+4*k,4)}, {vr(48+4*(k%4),4)}, {vr(ACC,16)}")
        if k + 4 < 10:
            a(f"ds_read_b128 {vr(48+4*(k%4),4)}, v{vXs} offset:{(8*((k+4)//2)+((k+4)%2))*1024}")
    a("s_setprio 3")
    a("s_barrier")
    a.nop(12)
    a(f"s_sub_u32 s{sT3}, s{sW}, 4")
    a(f"s_lshl_b32 s{sT}, s{sT3}, 12")
    a(f"v_add_u32 v{vT}, s{sT}, v{vX16}")
    for q in range(4):
        a(f"ds_write_b128 v{vT}, {vr(ACC+4*q,4)} offset:{q*1024}")
    a("s_waitcnt lgkmcnt(0)")
    a("s_barrier")
    a(f"s_lshl_b32 s{sT}, s{sT3}, 10")
    a(f"v_add_u32 v{vT}, s{sT}, v{vX16}")
    for jj in range(4):
        a(f"ds_read_b128 {vr(ACC+4*jj,4)}, v{vT} offset:{jj*4096}")
    a(f"s_lshl_b32 s{sT}, s{sT3}, 4")
    a(f"v_add_u32 v{vOut}, s{sT}, v{vOut}")
    srd(a, R_C, S_OUT, S_OUT+1, NX)
    a("s_waitcnt lgkmcnt(0)")
    for j in range(4):
        a(f"v_add_f32 v{ACC+j}, v{ACC+j}, v{ACC+4+j}")
        a(f"v_add_f32 v{ACC+8+j}, v{ACC+8+j}, v{ACC+12+j}")
    for j in range(4): a(f"v_add_f32 v{ACC+j}, v{ACC+j}, v{40+j}")
    for j in range(4): a(f"v_add_f32 v{ACC+j}, v{ACC+j}, v{ACC+8+j}")
    a(f"v_cvt_pk_bf16_f32 v32, v{ACC}, v{ACC+1}")
    a(f"v_cvt_pk_bf16_f32 v33, v{ACC+2}, v{ACC+3}")
    a(f"buffer_store_dwordx2 v[32:33], v{vOut}, s[{R_C}:{R_C+3}], 0 offen {OST()}")
    st.end()
    a("s_endpgm")

def gen():
    a = Asm()
    a("s_cmp_ge_u32 s2, 768")
    a("s_cbranch_scc1 K_end")
    a("s_load_dwordx16 s[4:19], s[0:1], 0")
    a("s_load_dwordx8 s[20:27], s[0:1], 64")
    a("s_load_dwordx2 s[28:29], s[0:1], 96")
    a(f"v_and_b32 v{vLane}, 63, v0")
    a(f"v_lshrrev_b32 v4, 6, v0")
    a(f"v_lshrrev_b32 v{vH}, 5, v{vLane}")
    a(f"v_readfirstlane_b32 s{sW}, v4")
    a(f"v_and_b32 v{vN}, 31, v{vLane}")
    a("s_waitcnt lgkmcnt(0)")
    srd(a, R_WS, S_WS, S_WS+1, WS_END)
    srd(a, R_FL, S_WS, S_WS+1, FL_SIZE, WS_FL)
    for r in (R_A, R_B, R_C): srd(a, r, S_WS, S_WS+1, WS_END)
    for i in range(4, 16): a(f"v_mov_b32 v{i}, 0")
    a("s_cmp_ge_u32 s2, 512")
    a("s_cbranch_scc1 ROLE_B2")
    a("s_cmp_ge_u32 s2, 256")
    a("s_cbranch_scc1 ROLE_B1")
    role_A(a)
    a.label("ROLE_B1")
    role_B1(a)
    a.label("ROLE_B2")
    role_B2(a)
    a.label("K_end")
    a("s_endpgm")
    grid = OPT.get("grid", 768)
    s = f"; generated by gen2.py\n; @launch grid=({grid},1,1) block=(512,1,1) lds={LDS_BYTES}\n"
    s += '.amdgcn_target "amdgcn-amd-amdhsa--gfx950"\n.text\n'
    s += kernel_header(KN) + a.text()
    s += '.section .rodata,"a"\n.p2align 6\n' + kernel_desc(KN, 128, 102)
    return s

if __name__ == "__main__":
    if "--prof" in sys.argv: PROF = True
    for x in sys.argv:
        if x.startswith("-D"):
            k, _, v = x[2:].partition("="); OPT[k] = int(v) if v else 1
    open(sys.argv[1], "w").write(gen())
    if PROF: json.dump(STAMP_NAMES, open("stamps5.json", "w"))
```

```python
import sys, math, json
from asmlib import *

NAME = "parallel_sum__grouped_kv_mqa__dense_activation_squared_relu__prompt"
KN = NAME + "_kernel"
WS_XF = 0x0
WS_R  = 0x280000
WS_KV = 0x290000
WS_OF = 0x2D0000
WS_H  = 0x550000
WS_FL = 0xB50000
WS_WF = 0xB90000
WS_END = 0xE40000
WS_DBG = 0x2000000
FL_KV, FL_D, FL_H, FL_O, FL_W = 0, 128, 640, 896, 1152
FL_N = 1408
FL_SIZE = FL_N * 128
NX = 2048 * 640 * 2
QSCALE = (20 ** -0.5) * math.log2(math.e)
DELTA = 96.0
LDS_BYTES = 81920
PROF = False
OPT = {}
SPIN_MAX = 200000

S_X, S_WQ, S_WK, S_WV, S_WO, S_W1, S_B1, S_W2, S_B2, S_OUT, S_DBG, S_WS = 4, 6, 8, 10, 12, 16, 18, 20, 22, 24, 26, 28
sW = 30
sTag = 31
R_WS = 32
R_FL = 36
R_A = 40
R_B = 44
R_C = 48
sRB, sCG, sT, sT2, sT3 = 52, 53, 54, 55, 56
vLane, vH, vN = 1, 2, 3

class Stamps:
    def __init__(self, a, role): self.a = a; self.n = 1; self.names = []; self.role = role
    def start(self):
        if not PROF: return
        for i in range(68, 94): self.a(f"s_mov_b32 s{i}, 0")
        self.a("s_memrealtime s[64:65]"); self.a("s_memtime s[66:67]"); self.a("s_waitcnt lgkmcnt(0)"); self.n = 2
    def mark(self, name):
        if not PROF: return
        assert self.n < 15
        self.a(f"s_memtime s[{64+2*self.n}:{65+2*self.n}]"); self.a("s_waitcnt lgkmcnt(0)")
        self.n += 1; self.names.append(name)
    def end(self):
        if not PROF: return
        a = self.a
        a("s_waitcnt vmcnt(0)")
        self.mark("final-drain")
        a("s_memrealtime s[94:95]"); a("s_waitcnt lgkmcnt(0)")
        a("s_mov_b64 exec, 1")
        a(f"s_lshl_b32 s98, s2, 3")
        a(f"s_add_u32 s98, s98, s{sW}")
        a(f"s_lshl_b32 s98, s98, 6")
        a(f"s_add_u32 s98, s98, {WS_DBG}")
        a(f"s_add_u32 s96, s{S_WS}, s98")
        a(f"s_addc_u32 s97, s{S_WS+1}, 0")
        a(f"v_mov_b32 v0, 0")
        for i in list(range(14)) + [15]:
            a(f"v_mov_b32 v1, s{64+2*i}")
            a(f"global_store_dword v0, v1, s[96:97] offset:{4*i}")
        a(f"v_mov_b32 v1, {self.n}")
        a(f"global_store_dword v0, v1, s[96:97] offset:56")
        a("s_waitcnt vmcnt(0)")
        STAMP_NAMES[self.role] = self.names
STAMP_NAMES = {}

def bf16_round(a, dst, src):
    a(f"v_cvt_pk_bf16_f32 v{dst}, v{src}, v{src}")
    a(f"v_lshlrev_b32 v{dst}, 16, v{dst}")

def decode_rb_cg(a, j):
    a(f"s_lshr_b32 s{sCG}, s{j}, 6")
    a(f"s_and_b32 s{sRB}, s{j}, 7")
    a(f"s_lshl_b32 s{sRB}, s{sRB}, 3")
    a(f"s_bfe_u32 s{sT}, s{j}, 0x30003")
    a(f"s_add_u32 s{sRB}, s{sRB}, s{sT}")

def get_tag(a, vt, lab):
    L = f"{lab}_tag"
    a(f"s_mov_b32 s{sT3}, {SPIN_MAX}")
    a(f"v_mov_b32 v{vt}, 0")
    a.label(L)
    a(f"global_load_dword v{vt+1}, v{vt}, s[{S_DBG}:{S_DBG+1}] sc1")
    a("s_waitcnt vmcnt(0)")
    a(f"v_readfirstlane_b32 s{sTag}, v{vt+1}")
    a(f"s_sub_u32 s{sT3}, s{sT3}, 1")
    a(f"s_cmp_eq_u32 s{sT3}, 0")
    a(f"s_cbranch_scc1 {L}_done")
    a(f"s_cmp_eq_u32 s{sTag}, 0")
    a(f"s_cbranch_scc0 {L}_done")
    a("s_sleep 1")
    a(f"s_branch {L}")
    a.label(f"{L}_done")

def poll_flags(a, vt, lab, s_idx, nflags, region, tries=None):
    if nflags == 128:
        poll_flags(a, vt, lab + "a", None, 64, region, tries)
        poll_flags(a, vt, lab + "b", None, 64, region + 64, tries)
        return
    L = f"{lab}_poll"
    a(f"v_lshlrev_b32 v{vt}, 7, v{vLane}")
    if s_idx is None:
        a(f"s_mov_b32 s63, {region*128}")
    else:
        a(f"s_lshl_b32 s63, s{s_idx}, 7")
        if region: a(f"s_add_u32 s63, s63, {region*128}")
    a(f"s_mov_b32 s{sT3}, {tries or SPIN_MAX}")
    a("s_mov_b64 s[100:101], exec")
    if nflags < 64:
        a(f"s_mov_b32 exec_lo, {(1 << min(nflags, 32)) - 1 if nflags < 32 else -1}")
        a(f"s_mov_b32 exec_hi, {((1 << (nflags - 32)) - 1) if nflags > 32 else 0}")
    a.label(L)
    a(f"buffer_load_dword v{vt+1}, v{vt}, s[{R_FL}:{R_FL+3}], s63 offen sc1")
    a("s_waitcnt vmcnt(0)")
    a(f"v_cmp_ne_u32 vcc, s{sTag}, v{vt+1}")
    a("s_nop 1")
    a(f"s_and_b64 exec, exec, vcc")
    a(f"s_cbranch_execz {L}_done")
    a(f"s_sub_u32 s{sT3}, s{sT3}, 1")
    a(f"s_cmp_eq_u32 s{sT3}, 0")
    a(f"s_cbranch_scc1 {L}_done")
    a(f"s_sleep {OPT.get('sleep', 6)}")
    a(f"s_branch {L}")
    a.label(f"{L}_done")
    a("s_mov_b64 exec, s[100:101]")

def set_flag(a, vt, s_idx, region):
    a(f"v_mov_b32 v{vt}, s{sTag}")
    a(f"v_mov_b32 v{vt+1}, 0")
    a(f"s_lshl_b32 s63, s{s_idx}, 7")
    if region: a(f"s_add_u32 s63, s63, {region*128}")
    a("s_mov_b64 s[100:101], exec")
    a("s_mov_b64 exec, 1")
    a(f"buffer_store_dword v{vt}, v{vt+1}, s[{R_FL}:{R_FL+3}], s63 offen sc1")
    a("s_mov_b64 exec, s[100:101]")

def tr_addr(a, dst, dst2, pitch, hrows, second_rows, s_base, t):
    a(f"v_bfe_u32 v{t}, v{vLane}, 2, 2")
    a(f"v_mul_u32_u24 v{t+1}, {hrows}, v{vH}")
    a(f"v_add_u32 v{t}, v{t}, v{t+1}")
    a(f"v_bfe_u32 v{t+1}, v{vLane}, 4, 1")
    a(f"v_and_b32 v{t+2}, 3, v{vLane}")
    a(f"v_lshlrev_b32 v{t+2}, 3, v{t+2}")
    a(f"v_lshl_add_u32 v{t+1}, v{t+1}, 5, v{t+2}")
    a(f"v_mul_u32_u24 v{dst}, {pitch}, v{t}")
    a(f"v_add3_u32 v{dst}, v{dst}, v{t+1}, s{s_base}")
    if dst2 is not None:
        a(f"v_add_u32 v{dst2}, {second_rows*pitch}, v{dst}")

def role_A(a):
    OPT["nopre0"] = 1
    st = Stamps(a, "A")
    st.start()
    XB = 0; XP = 1056; XH = 528; RBUF = 42240
    RING = 42496; NSTG = 3; RW = NSTG*1024; DEPTH = 16
    KSTG = 57856
    KVX = 67072
    LFL = XB + 512
    LFL2 = XB + 1040
    T4F = 75264
    SB = [0, 16384, 32768, 49152]
    QBUF = 65536; QP = 328
    sStep, sSoff, sLds, sRho, sWrap, sIt = 57, 58, 59, 60, 61, 57
    sExp, sFD = 95, 94
    vT = 4
    vVo, vTr, vTr2, vX16 = 12, 13, 14, 15
    X = 16
    TMP = 36
    vSum, vSq, vM = 52, 53, 54
    vOne, vSelLo, vSelHi = 56, 57, 58
    vR, vXa, vWst, vTag = 9, 10, 11, 61
    ACC = 16; FB = 32; WS_ = 64
    a(f"s_mov_b32 s{sT2}, s2")
    decode_rb_cg(a, sT2)
    L_notag = "A_notag"
    a(f"s_cmp_lg_u32 s2, 0")
    a(f"s_cbranch_scc1 {L_notag}")
    a(f"s_cmp_lg_u32 s{sW}, 0")
    a(f"s_cbranch_scc1 {L_notag}")
    a(f"s_memrealtime s[62:63]")
    a("s_waitcnt lgkmcnt(0)")
    a(f"s_or_b32 s62, s62, 1")
    a(f"v_mov_b32 v{vT}, s62")
    a(f"v_mov_b32 v{vT+1}, 0")
    a("s_mov_b64 exec, 1")
    a(f"global_store_dword v{vT+1}, v{vT}, s[{S_DBG}:{S_DBG+1}] sc1")
    a("s_mov_b64 exec, -1")
    a.label(L_notag)
    srd(a, R_A, S_X, S_X+1, NX)
    a(f"s_lshl_b32 s{sT}, s{sRB}, 5")
    a(f"s_lshl_b32 s{sT2}, s{sW}, 2")
    a(f"s_add_u32 s{sT}, s{sT}, s{sT2}")
    a(f"v_lshrrev_b32 v{vT}, 4, v{vLane}")
    a(f"v_add_u32 v{vT}, s{sT}, v{vT}")
    a(f"v_mul_u32_u24 v{vT}, 1280, v{vT}")
    a(f"v_and_b32 v{vT+1}, 15, v{vLane}")
    a(f"v_lshl_add_u32 v{vT}, v{vT+1}, 4, v{vT}")
    for i in range(5):
        a(f"buffer_load_dwordx4 {vr(X+4*i,4)}, v{vT}, s[{R_A}:{R_A+3}], 0 offen offset:{256*i}")
    a(f"v_lshlrev_b32 v{vX16}, 4, v{vLane}")
    a(f"s_and_b32 s{sRho}, s{sRB}, 7")
    L_nowe = "A_nowe"
    a(f"s_cmp_lt_u32 s{sW}, 5")
    a(f"s_cbranch_scc1 {L_nowe}")
    a(f"s_cmp_ge_u32 s{sCG}, 2")
    a(f"s_cbranch_scc1 {L_nowe}")
    a(f"s_cmp_eq_u32 s{sCG}, 1")
    a(f"s_cselect_b32 s{R_B}, s{S_WV}, s{S_WK}")
    a(f"s_cselect_b32 s{R_B+1}, s{S_WV+1}, s{S_WK+1}")
    a(f"s_mov_b32 s{R_B+2}, {640*20*2}")
    a(f"s_mov_b32 s{R_B+3}, 0x00020000")
    a(f"s_sub_u32 s{sT}, s{sW}, 5")
    a(f"s_mul_i32 s{sStep}, s{sT}, 13")
    a(f"s_min_u32 s{sT}, s{sT}, 1")
    a(f"s_add_u32 s{sStep}, s{sStep}, s{sT}")
    a(f"s_mul_i32 s{sT}, s{sRho}, 5")
    a(f"s_add_u32 s{sT2}, s{sStep}, s{sT}")
    a(f"s_cmp_ge_u32 s{sT2}, 40")
    a(f"s_cselect_b32 s{sT}, 40, 0")
    a(f"s_sub_u32 s{sT2}, s{sT2}, s{sT}")
    a(f"s_mul_i32 s{sSoff}, s{sT2}, 640")
    for i in range(14):
        a(f"s_add_u32 s{sT}, s{sSoff}, 640")
        a(f"buffer_load_dwordx4 {vr(WS_+4*i,4)}, v{vX16}, s[{R_B}:{R_B+3}], s{sSoff} offen")
        a(f"s_cmp_eq_u32 s{sT}, 25600")
        a(f"s_cselect_b32 s{sSoff}, 0, s{sT}")
    a.label(L_nowe)
    a("s_barrier")
    L_nq = "A_nq"
    a(f"s_cmp_ge_u32 s{sW}, 5")
    a(f"s_cbranch_scc1 {L_nq}")
    srd(a, R_B, S_WQ, S_WQ+1, 640*640*2)
    a(f"v_lshrrev_b32 v{vT}, 2, v{vLane}")
    a(f"v_mul_u32_u24 v{vT}, 1280, v{vT}")
    a(f"v_and_b32 v{vT+1}, 3, v{vLane}")
    a(f"v_lshl_add_u32 v{vT}, v{vT+1}, 4, v{vT}")
    a(f"s_mul_i32 s{sT}, s{sCG}, 320")
    a(f"s_lshl_b32 s{sT2}, s{sW}, 6")
    a(f"s_add_u32 s{sT}, s{sT}, s{sT2}")
    a(f"v_add_u32 v{vVo}, s{sT}, v{vT}")
    a(f"s_mul_i32 s{sLds}, s{sW}, {RW}")
    a(f"s_add_u32 s{sLds}, s{sLds}, {RING}")
    a(f"s_mul_i32 s{sSoff}, s{sRho}, {5*20480}")
    def wload(k):
        d = WS_ + 4*(k % DEPTH)
        a(f"s_add_u32 s{sT}, s{sSoff}, 20480")
        a(f"buffer_load_dwordx4 {vr(d,4)}, v{vVo}, s[{R_B}:{R_B+3}], s{sSoff} offen")
        a(f"s_cmp_eq_u32 s{sT}, {40*20480}")
        a(f"s_cselect_b32 s{sSoff}, 0, s{sT}")
    NW0 = OPT.get("NW0", 8)
    for k in range(NW0): wload(k)
    tr_addr(a, vTr, vTr2, 64, 8, 4, sLds, vT)
    a(f"v_add_u32 v{vWst}, s{sLds}, v{vX16}")
    a(f"s_waitcnt vmcnt({NW0})")
    a(f"s_branch A_xok")
    a.label(L_nq)
    a(f"s_waitcnt vmcnt(14)")
    a(f"s_cmp_lt_u32 s{sCG}, 2")
    a(f"s_cbranch_scc1 A_xok2")
    a(f"s_waitcnt vmcnt(0)")
    a.label("A_xok2")
    a(f"v_mov_b32 v{vT}, 0")
    a(f"global_load_dword v{vTag}, v{vT}, s[{S_DBG}:{S_DBG+1}] sc1")
    a.label("A_xok")
    st.mark("xwait")
    a(f"v_mov_b32 v{vOne}, 0x3f803f80")
    a(f"v_mov_b32 v{vSelLo}, 0x00003f80")
    a(f"v_mov_b32 v{vSelHi}, 0x3f800000")
    for i in range(4): a(f"v_mov_b32 v{TMP+i}, 0")
    for i in range(20):
        a(f"v_dot2c_f32_bf16 v{TMP+(i%2)}, v{X+i}, v{vOne}")
        a(f"v_dot2c_f32_bf16 v{TMP+2+(i%2)}, v{X+i}, v{X+i}")
    a(f"v_lshrrev_b32 v{vT}, 4, v{vLane}")
    a(f"s_lshl_b32 s{sT}, s{sW}, 2")
    a(f"v_add_u32 v{vT}, s{sT}, v{vT}")
    a(f"v_and_b32 v{vT+1}, 1, v{vLane}")
    a(f"v_mul_u32_u24 v{vT+1}, {XH}, v{vT+1}")
    a(f"v_lshl_add_u32 v{vT+1}, v{vT}, 4, v{vT+1}")
    a(f"v_add_f32 v{vSum}, v{TMP}, v{TMP+1}")
    a(f"v_add_f32 v{vSq}, v{TMP+2}, v{TMP+3}")
    a(f"v_bfe_u32 v{vT+2}, v{vLane}, 1, 3")
    a(f"s_mul_i32 s{sT}, s{sRho}, 5")
    a(f"s_sub_u32 s{sT}, 40, s{sT}")
    for ror in (8, 4, 2, 1):
        a(f"v_add_f32_dpp v{vSum}, v{vSum}, v{vSum} row_ror:{ror} row_mask:0xf bank_mask:0xf")
        a(f"v_add_f32_dpp v{vSq}, v{vSq}, v{vSq} row_ror:{ror} row_mask:0xf bank_mask:0xf")
        if ror != 1: a.nop(1)
    a(f"v_add_u32 v{vT+2}, s{sT}, v{vT+2}")
    inv = f32bits(1.0/640)
    a(f"v_mul_f32 v{vM}, {inv}, v{vSum}")
    a(f"v_mul_f32 v{TMP+1}, {inv}, v{vSq}")
    a(f"v_fma_f32 v{TMP+1}, -v{vM}, v{vM}, v{TMP+1}")
    a(f"v_max_f32 v{TMP+1}, 0, v{TMP+1}")
    bf16_round(a, TMP+1, TMP+1)
    bf16_round(a, vM, vM)
    a(f"v_add_f32 v{TMP+1}, {f32bits(1e-5)}, v{TMP+1}")
    a(f"v_sub_f32 v{vM}, 0, v{vM}")
    bf16_round(a, TMP+1, TMP+1)
    a(f"v_sqrt_f32 v{vSum}, v{TMP+1}")
    for base in range(0, 20, 8):
        g = min(8, 20-base)
        for i in range(g):
            a(f"v_dot2_f32_bf16 v{TMP+2*i}, v{X+base+i}, v{vSelLo}, v{vM}")
            a(f"v_dot2_f32_bf16 v{TMP+2*i+1}, v{X+base+i}, v{vSelHi}, v{vM}")
        if base == 0:
            bf16_round(a, vSum, vSum)
            a(f"v_rcp_f32 v{vR}, v{vSum}")
        else:
            a.nop(3)
        for i in range(g):
            a(f"v_cvt_pk_bf16_f32 v{X+base+i}, v{TMP+2*i}, v{TMP+2*i+1}")
    a(f"v_lshlrev_b32 v{vT+3}, 2, v{vT}")
    a(f"ds_write_b32 v{vT+3}, v{vR} offset:{RBUF}")
    for i in range(5):
        if i: a(f"v_add_u32 v{vT+2}, 8, v{vT+2}")
        a(f"v_subrev_u32 v{vT+3}, 40, v{vT+2}")
        a(f"v_min_u32 v{vT+3}, v{vT+3}, v{vT+2}")
        a(f"v_mul_u32_u24 v{vT+3}, {XP}, v{vT+3}")
        a(f"v_add_u32 v{vT+3}, v{vT+3}, v{vT+1}")
        a(f"ds_write_b128 v{vT+3}, {vr(X+4*i,4)} offset:{XB}")
    a(f"v_mul_u32_u24 v{vXa}, {XH}, v{vH}")
    a(f"v_lshl_add_u32 v{vXa}, v{vN}, 4, v{vXa}")
    a(f"s_cmp_ge_u32 s{sW}, 5")
    a(f"s_cbranch_scc1 A_ln5")
    for k in range(NW0, 10): wload(k)
    a(f"s_cmp_eq_u32 s{sW}, 4")
    a(f"s_cbranch_scc1 A_lnb")
    for k in range(10, DEPTH): wload(k)
    a(f"s_branch A_lnb")
    a.label("A_ln5")
    a(f"v_mov_b32 v{vT}, {LFL}")
    for i in range(4): a(f"v_mov_b32 v{TMP+i}, 0")
    a(f"ds_write_b128 v{vT}, v[{TMP}:{TMP+3}]")
    a(f"ds_write_b128 v{vT}, v[{TMP}:{TMP+3}] offset:{LFL2-LFL}")
    a("s_waitcnt vmcnt(0)")
    a(f"v_readfirstlane_b32 s{sTag}, v{vTag}")
    a.label("A_lnb")
    a("s_waitcnt lgkmcnt(0)")
    a("s_barrier")
    a(f"v_lshlrev_b32 v{vT}, 2, v{vN}")
    a(f"ds_read_b32 v{vR}, v{vT} offset:{RBUF}")
    st.mark("LN")
    def ensure_tag(lab):
        a(f"s_cmp_lg_u32 s{sTag}, 0")
        a(f"s_cbranch_scc1 {lab}_have")
        get_tag(a, vT, lab)
        a.label(f"{lab}_have")
    L_kvp, L_exp, L_bar1 = "A_kvp", "A_exp", "A_bar1"
    a(f"s_cmp_ge_u32 s{sW}, 5")
    a(f"s_cbranch_scc1 {L_kvp}")
    a(f"s_cmp_eq_u32 s{sW}, 4")
    a(f"s_cbranch_scc1 A_job4")
    if OPT.get("noq"): a(f"s_branch {L_bar1}")
    def pipe_gemm(nsteps, wr, rd, need_vm, refill, cin0):
        for k in range(5):
            if k < nsteps:
                need_vm(k, -5 + k)
                wr(k)
            if 0 <= k - 2 < nsteps: rd(k - 2)
        for s_ in range(nsteps):
            n_ops = 0
            if s_ + 5 < nsteps:
                need_vm(s_ + 5, s_)
                wr(s_ + 5)
            if s_ + 3 < nsteps: rd(s_ + 3)
            for t in range(s_ + 1, s_ + 4):
                if t + 2 < nsteps: n_ops += 1
                if t < nsteps: n_ops += 3
            a(f"s_waitcnt lgkmcnt({n_ops})")
            f = FB + 8*(s_ % 4)
            cin = cin0 if s_ == 0 else vr(ACC, 16)
            a(f"v_mfma_f32_32x32x16_bf16 {vr(ACC,16)}, {vr(f,4)}, {vr(f+4,4)}, {cin}")
            refill(s_)
    def q_wr(k): a(f"ds_write_b128 v{vWst}, {vr(WS_+4*(k % DEPTH),4)} offset:{(k % NSTG)*1024}")
    def q_rd(k):
        f = FB + 8*(k % 4)
        a(f"ds_read_b64_tr_b16 v[{f}:{f+1}], v{vTr} offset:{(k % NSTG)*1024}")
        a(f"ds_read_b64_tr_b16 v[{f+2}:{f+3}], v{vTr2} offset:{(k % NSTG)*1024}")
        a(f"ds_read_b128 {vr(f+4,4)}, v{vXa} offset:{XB + k*XP}")
    def q_vm(k, s_now):
        issued = DEPTH + max(0, min(s_now, 40 - DEPTH + QOFF) - QOFF) if s_now > 0 else DEPTH
        issued = min(issued, 40)
        a(f"s_waitcnt vmcnt({issued - 1 - k})")
    QOFF = 0
    def q_refill(s_):
        if s_ + DEPTH < 40: wload(s_ + DEPTH)
    pipe_gemm(40, q_wr, q_rd, q_vm, q_refill, "0")
    st.mark("gemm")
    a.nop(12)
    a(f"v_mul_f32 v{vT}, {f32bits(QSCALE)}, v{vR}")
    for j in range(16): a(f"v_mul_f32 v{ACC+j}, v{ACC+j}, v{vT}")
    for k in range(8): a(f"v_cvt_pk_bf16_f32 v{TMP+k}, v{ACC+2*k}, v{ACC+2*k+1}")
    a(f"s_branch {L_bar1}")

    JW = WS_ + 20
    def job_loads():
        srd(a, R_B, S_WQ, S_WQ+1, 640*640*2)
        a(f"v_lshrrev_b32 v{vT}, 2, v{vLane}")
        a(f"v_mul_u32_u24 v{vT}, 1280, v{vT}")
        a(f"v_and_b32 v{vT+1}, 3, v{vLane}")
        a(f"v_lshl_add_u32 v{vT}, v{vT+1}, 4, v{vT}")
        a(f"s_mul_i32 s{sT}, s{sCG}, 320")
        a(f"s_add_u32 s{sT}, s{sT}, 256")
        a(f"v_add_u32 v{vT}, s{sT}, v{vT}")
        a(f"s_sub_u32 s{sT}, s{sW}, 4")
        a(f"s_mul_i32 s{sT}, s{sT}, 10")
        a(f"s_mul_i32 s{sT2}, s{sRho}, 5")
        a(f"s_add_u32 s{sT}, s{sT}, s{sT2}")
        a(f"s_cmp_ge_u32 s{sT}, 40")
        a(f"s_cselect_b32 s{sT2}, 40, 0")
        a(f"s_sub_u32 s{sT}, s{sT}, s{sT2}")
        a(f"s_mul_i32 s{sSoff}, s{sT}, 20480")
        for k in range(10):
            a(f"s_add_u32 s{sT}, s{sSoff}, 20480")
            a(f"buffer_load_dwordx4 {vr(JW+4*k,4)}, v{vT}, s[{R_B}:{R_B+3}], s{sSoff} offen")
            a(f"s_cmp_eq_u32 s{sT}, {40*20480}")
            a(f"s_cselect_b32 s{sSoff}, 0, s{sT}")
    def job_run(raw, vm_after):
        tr_addr(a, vTr, vTr2, 64, 8, 4, sLds, vT)
        a(f"v_add_u32 v{vWst}, s{sLds}, v{vX16}")
        a(f"s_sub_u32 s{sT}, s{sW}, 4")
        a(f"s_mul_i32 s{sT}, s{sT}, {10*XP}")
        a(f"v_add_u32 v{vVo}, s{sT}, v{vXa}")
        def j_wr(k): a(f"ds_write_b128 v{vWst}, {vr(raw+4*k,4)} offset:{(k % NSTG)*1024}")
        def j_rd(k):
            f = FB + 8*(k % 4)
            a(f"ds_read_b64_tr_b16 v[{f}:{f+1}], v{vTr} offset:{(k % NSTG)*1024}")
            a(f"ds_read_b64_tr_b16 v[{f+2}:{f+3}], v{vTr2} offset:{(k % NSTG)*1024}")
            a(f"ds_read_b128 {vr(f+4,4)}, v{vVo} offset:{k*XP}")
        def j_vm(k, s_): a(f"s_waitcnt vmcnt({9 - k + vm_after})")
        pipe_gemm(10, j_wr, j_rd, j_vm, lambda s_: None, "0")
        a("s_waitcnt lgkmcnt(0)")
        a.nop(12)
    def job_publish():
        Lp5, Lpd = a.newlabel("A_jp5"), a.newlabel("A_jpd")
        a(f"s_cmp_eq_u32 s{sW}, 5")
        a(f"s_cbranch_scc1 {Lp5}")
        for q in range(3): a(f"ds_write_b128 v{vWst}, {vr(ACC+4*q,4)} offset:{q*1024}")
        a(f"s_sub_u32 s{sT}, s{sW}, 6")
        a(f"s_lshl_b32 s{sT}, s{sT}, 10")
        a(f"s_add_u32 s{sT}, s{sT}, {T4F}")
        a(f"v_add_u32 v{vT}, s{sT}, v{vX16}")
        a(f"ds_write_b128 v{vT}, {vr(ACC+12,4)}")
        a(f"s_branch {Lpd}")
        a.label(Lp5)
        a(f"v_add_u32 v{vT}, {KVX+4096}, v{vX16}")
        for q in range(4): a(f"ds_write_b128 v{vT}, {vr(ACC+4*q,4)} offset:{q*1024}")
        a.label(Lpd)
        a(f"s_sub_u32 s{sT}, s{sW}, 5")
        a(f"s_lshl_b32 s{sT}, s{sT}, 2")
        a(f"s_add_u32 s{sT}, s{sT}, {LFL2}")
        a(f"v_mov_b32 v{vT}, s{sT}")
        a(f"v_mov_b32 v{vT+1}, 1")
        a(f"ds_write_b32 v{vT}, v{vT+1}")
    a.label("A_job4")
    job_run(WS_, 0)
    a(f"v_mov_b32 v{vT}, {LFL2}")
    a(f"s_mov_b32 s{sT3}, {SPIN_MAX}")
    a.label("A_j4spin")
    a(f"ds_read_b96 v[{vT+2}:{vT+4}], v{vT}")
    a("s_waitcnt lgkmcnt(0)")
    a(f"v_and_b32 v{vT+2}, v{vT+2}, v{vT+3}")
    a(f"v_and_b32 v{vT+2}, v{vT+2}, v{vT+4}")
    a("s_nop 0")
    a(f"v_readfirstlane_b32 s{sT}, v{vT+2}")
    a(f"s_sub_u32 s{sT3}, s{sT3}, 1")
    a(f"s_cmp_eq_u32 s{sT3}, 0")
    a(f"s_cbranch_scc1 A_j4spin_done")
    a(f"s_cmp_eq_u32 s{sT}, 1")
    a(f"s_cbranch_scc0 A_j4spin")
    a.label("A_j4spin_done")
    a(f"v_add_u32 v{vT}, {KVX+4096}, v{vX16}")
    a(f"v_add_u32 v{vT+1}, {KSTG+3072}, v{vX16}")
    a(f"v_add_u32 v{vT+2}, {T4F}, v{vX16}")
    for q in range(4): a(f"ds_read_b128 {vr(64+4*q,4)}, v{vT} offset:{q*1024}")
    for p_ in range(2):
        for q in range(3): a(f"ds_read_b128 {vr(80+16*p_+4*q,4)}, v{vT+1} offset:{p_*3072 + q*1024}")
        a(f"ds_read_b128 {vr(80+16*p_+12,4)}, v{vT+2} offset:{p_*1024}")
    a("s_waitcnt lgkmcnt(0)")
    for j in range(16): a(f"v_add_f32 v{64+j}, v{64+j}, v{80+j}")
    for j in range(16): a(f"v_add_f32 v{ACC+j}, v{ACC+j}, v{96+j}")
    for j in range(16): a(f"v_add_f32 v{ACC+j}, v{ACC+j}, v{64+j}")
    st.mark("job4")
    a(f"v_mul_f32 v{vT}, {f32bits(QSCALE)}, v{vR}")
    for j in range(16): a(f"v_mul_f32 v{ACC+j}, v{ACC+j}, v{vT}")
    for k in range(8): a(f"v_cvt_pk_bf16_f32 v{TMP+k}, v{ACC+2*k}, v{ACC+2*k+1}")
    a(f"s_branch {L_bar1}")
    def export_d():
        a(f"s_mul_i32 s{sT}, s{sCG}, 2")
        a(f"s_add_u32 s{sT}, s{sT}, s{sW}")
        a(f"s_sub_u32 s{sT}, s{sT}, 6")
        a(f"s_sub_u32 s{sT2}, s{sT}, s{sRho}")
        a(f"s_and_b32 s{sT2}, s{sT2}, 7")
        a(f"s_mul_i32 s{sT2}, s{sT2}, {5*XP}")
        a(f"v_add_u32 v{vT}, s{sT2}, v{vXa}")
        for i in range(5):
            a(f"ds_read_b128 {vr(X+4*i,4)}, v{vT} offset:{XB + XP*i}")
        a(f"s_mul_i32 s{sT2}, s{sRB}, 40")
        a(f"s_mul_i32 s{sExp}, s{sT}, 5")
        a(f"s_add_u32 s{sT2}, s{sT2}, s{sExp}")
        a(f"s_lshl_b32 s{sT2}, s{sT2}, 10")
        if WS_XF: a(f"s_add_u32 s{sT2}, s{sT2}, {WS_XF}")
        a(f"s_lshl_b32 s{sFD}, s{sRB}, 3")
        a(f"s_add_u32 s{sFD}, s{sFD}, s{sT}")
        a(f"v_add_u32 v{vT+1}, 4096, v{vX16}")
        a("s_waitcnt lgkmcnt(0)")
        for i in range(4):
            a(f"buffer_store_dwordx4 {vr(X+4*i,4)}, v{vX16}, s[{R_WS}:{R_WS+3}], s{sT2} offen offset:{1024*i} sc1")
        a(f"buffer_store_dwordx4 {vr(X+16,4)}, v{vT+1}, s[{R_WS}:{R_WS+3}], s{sT2} offen sc1")
        L_nor = "A_nor"
        a(f"s_cmp_lg_u32 s{sT}, 0")
        a(f"s_cbranch_scc1 {L_nor}")
        a(f"s_lshl_b32 s{sT2}, s{sRB}, 7")
        a(f"s_add_u32 s{sT2}, s{sT2}, {WS_R}")
        a(f"v_lshlrev_b32 v{vT}, 2, v{vN}")
        a(f"buffer_store_dword v{vR}, v{vT}, s[{R_WS}:{R_WS+3}], s{sT2} offen sc1")
        a.label(L_nor)
    a.label(L_kvp)
    a("s_setprio 3")
    if OPT.get("expfirst", 0):
        a(f"s_cmp_lt_u32 s{sW}, 6")
        a(f"s_cbranch_scc1 A_noexp")
        export_d()
        a.label("A_noexp")
    a(f"s_cmp_ge_u32 s{sCG}, 2")
    a(f"s_cbranch_scc1 A_kvp_skip")
    a(f"s_sub_u32 s{sT}, s{sW}, 5")
    a(f"s_mul_i32 s{sLds}, s{sT}, 3072")
    a(f"s_add_u32 s{sLds}, s{sLds}, {KSTG}")
    tr_addr(a, vTr, vTr2, 40, 8, 4, sLds, vT)
    a(f"v_add_u32 v{vWst}, s{sLds}, v{vX16}")
    a(f"s_mul_i32 s{sT}, s{sStep}, {XP}")
    a(f"v_add_u32 v{vVo}, s{sT}, v{vXa}")
    a(f"v_add_u32 v{vT+4}, {13*XP}, v{vVo}")
    a(f"s_cmp_eq_u32 s{sW}, 5")
    a(f"s_cbranch_scc1 A_kv13")
    for i in range(4): a(f"v_mov_b32 v{WS_+52+i}, 0")
    a(f"v_mov_b32 v{vT+4}, v{vXa}")
    a.label("A_kv13")
    def k_wr(k): a(f"ds_write_b128 v{vWst}, {vr(WS_+4*k,4)} offset:{(k % NSTG)*1024}")
    def k_rd(k):
        f = FB + 8*(k % 4)
        a(f"ds_read_b64_tr_b16 v[{f}:{f+1}], v{vTr} offset:{(k % NSTG)*1024}")
        a(f"ds_read_b64_tr_b16 v[{f+2}:{f+3}], v{vTr2} offset:{(k % NSTG)*1024}")
        if k == 13: a(f"ds_read_b128 {vr(f+4,4)}, v{vT+4}")
        else: a(f"ds_read_b128 {vr(f+4,4)}, v{vVo} offset:{k*XP}")
    pipe_gemm(14, k_wr, k_rd, lambda k, s_: None, lambda s_: None, "0")
    a("s_waitcnt lgkmcnt(0)")
    job_loads()
    a(f"s_cmp_eq_u32 s{sW}, 5")
    a(f"s_cbranch_scc1 A_kv5")
    a(f"s_sub_u32 s{sT}, s{sW}, 6")
    a(f"s_lshl_b32 s{sT}, s{sT}, 12")
    a(f"s_add_u32 s{sT}, s{sT}, {KVX}")
    a(f"v_add_u32 v{vT}, s{sT}, v{vX16}")
    for q in range(4):
        a(f"ds_write_b128 v{vT}, {vr(ACC+4*q,4)} offset:{q*1024}")
    a(f"s_sub_u32 s{sT}, s{sW}, 6")
    a(f"s_lshl_b32 s{sT}, s{sT}, 2")
    a(f"s_add_u32 s{sT}, s{sT}, {LFL}")
    a(f"v_mov_b32 v{vT}, s{sT}")
    a(f"v_mov_b32 v{vT+1}, 1")
    a(f"ds_write_b32 v{vT}, v{vT+1}")
    a(f"s_branch A_kvp_done")
    a.label("A_kv5")
    a(f"v_mov_b32 v{vT}, {LFL}")
    a(f"s_mov_b32 s{sT3}, {SPIN_MAX}")
    a.label("A_kvspin")
    a(f"ds_read_b64 v[{vT+2}:{vT+3}], v{vT}")
    a("s_waitcnt lgkmcnt(0)")
    a(f"v_and_b32 v{vT+2}, v{vT+2}, v{vT+3}")
    a("s_nop 0")
    a(f"v_readfirstlane_b32 s{sT}, v{vT+2}")
    a(f"s_sub_u32 s{sT3}, s{sT3}, 1")
    a(f"s_cmp_eq_u32 s{sT3}, 0")
    a(f"s_cbranch_scc1 A_kvspin_done")
    a(f"s_cmp_eq_u32 s{sT}, 1")
    a(f"s_cbranch_scc0 A_kvspin")
    a.label("A_kvspin_done")
    a(f"v_add_u32 v{vT}, {KVX}, v{vX16}")
    for p_ in range(2):
        for q in range(4):
            a(f"ds_read_b128 {vr(FB+16*p_+4*q,4)}, v{vT} offset:{p_*4096 + q*1024}")
    a("s_waitcnt lgkmcnt(0)")
    for j in range(16):
        a(f"v_add_f32 v{FB+j}, v{FB+j}, v{FB+16+j}")
    for j in range(16):
        a(f"v_add_f32 v{ACC+j}, v{ACC+j}, v{FB+j}")
    for j in range(16): a(f"v_mul_f32 v{ACC+j}, v{ACC+j}, v{vR}")
    a(f"v_cmp_eq_u32 vcc, 1, v{vH}")
    a(f"v_mov_b32 v{vT}, 1.0")
    a(f"v_mov_b32 v{vT+1}, 0")
    a(f"v_cndmask_b32 v{ACC+8}, v{ACC+8}, v{vT}, vcc")
    for j in range(9, 12): a(f"v_cndmask_b32 v{ACC+j}, v{ACC+j}, v{vT+1}, vcc")
    for j in range(12, 16): a(f"v_mov_b32 v{ACC+j}, 0")
    for k in range(8): a(f"v_cvt_pk_bf16_f32 v{TMP+k}, v{ACC+2*k}, v{ACC+2*k+1}")
    a(f"s_lshl_b32 s{sT}, s{sRB}, 12")
    a(f"s_add_u32 s{sT}, s{sT}, {WS_KV}")
    L_v = "A_v"; L_kvdone = "A_kvdone"
    a(f"s_cmp_eq_u32 s{sCG}, 1")
    a(f"s_cbranch_scc1 {L_v}")
    a(f"buffer_store_dwordx4 {vr(TMP,4)}, v{vX16}, s[{R_WS}:{R_WS+3}], s{sT} offen sc1")
    a(f"v_lshlrev_b32 v{vT}, 3, v{vLane}")
    a(f"buffer_store_dwordx2 v[{TMP+4}:{TMP+5}], v{vT}, s[{R_WS}:{R_WS+3}], s{sT} offen offset:1024 sc1")
    a(f"s_branch {L_kvdone}")
    a.label(L_v)
    a(f"s_mov_b32 s{sLds}, {KVX}")
    a(f"v_lshlrev_b32 v{vT}, 6, v{vN}")
    a(f"v_lshl_add_u32 v{vT}, v{vH}, 3, v{vT}")
    a(f"v_add_u32 v{vT}, s{sLds}, v{vT}")
    for q in range(4):
        a(f"ds_write_b64 v{vT}, v[{TMP+2*q}:{TMP+2*q+1}] offset:{16*q}")
    tr_addr(a, vTr, None, 64, 4, 8, sLds, vT+1)
    for u in range(2):
        a(f"ds_read_b64_tr_b16 v[{TMP+8+4*u}:{TMP+9+4*u}], v{vTr} offset:{u*1024}")
        a(f"ds_read_b64_tr_b16 v[{TMP+10+4*u}:{TMP+11+4*u}], v{vTr} offset:{u*1024 + 512}")
    a("s_waitcnt lgkmcnt(0)")
    a(f"buffer_store_dwordx4 {vr(TMP+8,4)}, v{vX16}, s[{R_WS}:{R_WS+3}], s{sT} offen offset:2048 sc1")
    a(f"buffer_store_dwordx4 {vr(TMP+12,4)}, v{vX16}, s[{R_WS}:{R_WS+3}], s{sT} offen offset:3072 sc1")
    a.label(L_kvdone)
    ensure_tag("A5")
    a("s_waitcnt vmcnt(0)")
    st.mark("k5:drain")
    a(f"s_lshl_b32 s{sT}, s{sRB}, 1")
    a(f"s_add_u32 s{sT}, s{sT}, s{sCG}")
    set_flag(a, vT, sT, FL_KV)
    a(f"s_mov_b32 s{sLds}, {KSTG}")
    job_run(JW, 1)
    job_publish()
    a(f"s_branch {L_bar1}")
    a.label("A_kvp_skip")
    job_loads()
    a(f"s_cmp_lg_u32 s{sW}, 5")
    a(f"s_cbranch_scc1 A_kvp_done")
    a(f"s_mov_b32 s{sLds}, {KSTG}")
    job_run(JW, 0)
    job_publish()
    a(f"s_branch {L_bar1}")
    a.label("A_kvp_done")
    if not OPT.get("expfirst", 0): export_d()
    ensure_tag("A6")
    a(f"s_waitcnt vmcnt({10 if OPT.get('expfirst', 0) else 0})")
    st.mark("x:drain")
    set_flag(a, vT, sFD, FL_D)
    a(f"s_sub_u32 s{sT}, s{sW}, 5")
    a(f"s_mul_i32 s{sLds}, s{sT}, 3072")
    a(f"s_add_u32 s{sLds}, s{sLds}, {KSTG}")
    job_run(JW, 1)
    job_publish()
    a.label(L_bar1)
    a("s_waitcnt vmcnt(0)")
    a.label("A_bar1_nowait")
    a("s_setprio 0")
    a("s_waitcnt lgkmcnt(0)")
    a("s_barrier")
    st.mark("bar0")
    vA16, vA8, vDma, vA16b, vA8b = vX16, 13, 14, 12, 111
    S = [16, 32]
    O = 48
    P = 96
    Q1, Q2 = 104, 108
    K1, K2 = 112, 116
    V1, V2 = 120, 124
    vM2 = 110
    sSoffK, sLdsW = 58, 59
    srd(a, R_A, S_WS, S_WS+1, 262144, WS_KV)
    a(f"s_lshl_b32 s{sLdsW}, s{sW}, 11")
    a(f"v_add_u32 v{vDma}, s{sLdsW}, v{vA16}")
    a(f"v_lshlrev_b32 v{vA8}, 3, v{vLane}")
    a(f"v_add_u32 v{vA16b}, 32768, v{vA16}")
    a(f"v_add_u32 v{vA8b}, 32768, v{vA8}")
    def dma_chunk(slot):
        a(f"s_add_u32 m0, s{sLdsW}, {SB[slot]}")
        a("s_nop 0")
        a(f"buffer_load_dwordx4 v{vDma}, s[{R_A}:{R_A+3}], s{sSoffK} offen sc1 lds")
        a(f"buffer_load_dwordx4 v{vDma}, s[{R_A}:{R_A+3}], s{sSoffK} offen offset:1024 sc1 lds")
        a(f"s_add_u32 s{sSoffK}, s{sSoffK}, 16384")
    L_noqw = "A_noqw"
    a(f"v_mul_u32_u24 v{vT}, {QP}, v{vN}")
    a(f"v_add_u32 v{vT}, {QBUF}, v{vT}")
    a(f"s_cmp_ge_u32 s{sW}, 5")
    a(f"s_cbranch_scc1 {L_noqw}")
    a(f"s_lshl_b32 s{sT}, s{sW}, 6")
    a(f"v_lshl_add_u32 v{vT+1}, v{vH}, 3, v{vT}")
    a(f"v_add_u32 v{vT+1}, s{sT}, v{vT+1}")
    for q in range(4):
        a(f"ds_write_b64 v{vT+1}, v[{TMP+2*q}:{TMP+2*q+1}] offset:{16*q}")
    a.label(L_noqw)
    a("s_waitcnt lgkmcnt(0)")
    a("s_barrier")
    a(f"s_mul_i32 s{sT}, s{sW}, 40")
    a(f"v_add_u32 v{vT}, s{sT}, v{vT}")
    a(f"v_lshl_add_u32 v{vT+1}, v{vH}, 3, v{vT}")
    a(f"ds_read_b64 v[{Q1}:{Q1+1}], v{vT+1}")
    a(f"ds_read_b64 v[{Q1+2}:{Q1+3}], v{vT+1} offset:16")
    a(f"ds_read_b64 v[{Q2}:{Q2+1}], v{vT} offset:32")
    a(f"s_cmp_lg_u32 s{sW}, 7")
    a(f"s_cbranch_scc1 A_nokvp")
    poll_flags(a, vT+2, "A7", None, 128, FL_KV)
    st.mark("kvpoll")
    a.label("A_nokvp")
    a("s_barrier")
    st.mark("bar1")
    a(f"s_mov_b32 s{sSoffK}, 0")
    for c in (0, 1, 2): dma_chunk(c)
    def lds_addr(t, off, wide):
        base = SB[(t // 4) % 4] + (t % 4) * 4096 + off
        if base >= 32768: return (vA16b if wide else vA8b), base - 32768
        return (vA16 if wide else vA8), base
    def rd_K1(t): v_, o = lds_addr(t, 0, True); a(f"ds_read_b128 {vr(K1,4)}, v{v_} offset:{o}")
    def rd_K2(t): v_, o = lds_addr(t, 1024, False); a(f"ds_read_b64 {vr(K2,2)}, v{v_} offset:{o}")
    def rd_V1(t): v_, o = lds_addr(t, 2048, True); a(f"ds_read_b128 {vr(V1,4)}, v{v_} offset:{o}")
    def rd_V2(t): v_, o = lds_addr(t, 3072, True); a(f"ds_read_b128 {vr(V2,4)}, v{v_} offset:{o}")
    def qk1(dst): a(f"v_mfma_f32_32x32x16_bf16 {vr(dst,16)}, {vr(K1,4)}, {vr(Q1,4)}, 0")
    def qk2(dst): a(f"v_mfma_f32_32x32x8_bf16 {vr(dst,16)}, {vr(K2,2)}, {vr(Q2,2)}, {vr(dst,16)}")
    if OPT.get("nopre0"):
        a("s_waitcnt vmcnt(4)")
        a("s_barrier")
    rd_K1(0); rd_K2(0)
    for i in range(16): a(f"v_mov_b32 v{O+i}, 0")
    a(f"v_cmp_eq_u32 vcc, 1, v{vH}")
    a(f"v_mov_b32 v{vT}, 0")
    a("s_waitcnt lgkmcnt(0)")
    a(f"v_cndmask_b32 v{Q2}, v{Q2}, v{vT}, vcc")
    a(f"v_cndmask_b32 v{Q2+1}, v{Q2+1}, v{vT}, vcc")
    def set_m(delta):
        a(f"v_mov_b32 v{vT}, v{vM2}")
        a.nop(2)
        a(f"v_permlane32_swap_b32 v{vM2}, v{vT}")
        a.nop(1)
        a(f"v_max_f32 v{vM2}, v{vM2}, v{vT}")
        if delta: a(f"v_add_f32 v{vM2}, {f32bits(delta)}, v{vM2}")
        a(f"v_cvt_pk_bf16_f32 v{vT}, -v{vM2}, 0")
        a(f"v_cmp_eq_u32 vcc, 1, v{vH}")
        a.nop(2)
        a(f"v_cndmask_b32 v{Q2}, v{Q2}, v{vT}, vcc")
    a(f"v_mov_b32 v{vM2}, 0xff800000")
    a.nop(1)
    qk1(S[0]); qk2(S[0])
    rd_K1(1); rd_K2(1)
    a("s_waitcnt lgkmcnt(0)")
    qk1(S[1]); qk2(S[1])
    rd_K1(0); rd_K2(0)
    for i in range(4, 8): a(f"v_mov_b32 v{P+i}, 0")
    for i in range(4): a(f"v_mov_b32 v{V2+i}, 0")
    a.nop(4)
    for i in range(8):
        a(f"v_max3_f32 v{vM2}, v{S[0]+2*i}, v{S[0]+2*i+1}, v{vM2}")
    a.nop(4)
    for i in range(8):
        a(f"v_max3_f32 v{vM2}, v{S[1]+2*i}, v{S[1]+2*i+1}, v{vM2}")
    set_m(DELTA)
    a("s_waitcnt lgkmcnt(0)")
    a.nop(1)
    qk1(S[0]); qk2(S[0])
    rd_K1(1); rd_K2(1); rd_V1(0)
    a.nop(12)
    st.mark("sample")
    a(f"s_setprio {OPT.get('aprio', 0)}")
    a(f"s_mov_b32 s{sIt}, 0")
    L_loop = "A_loop"
    a(".p2align 6")
    a.label(L_loop)
    def e(cur, i): a(f"v_exp_f32 v{cur+i}, v{cur+i}")
    def p(cur, k): a(f"v_cvt_pk_bf16_f32 v{P+k}, v{cur+2*k}, v{cur+2*k+1}")
    for t in range(16):
        cur, nxt = S[t % 2], S[(t+1) % 2]
        if t % 4 == 2:
            a("s_waitcnt vmcnt(2)")
            a("s_barrier")
            dma_chunk((t // 4 + 3) % 4)
        e(cur, 0); e(cur, 1)
        a("s_waitcnt lgkmcnt(2)")
        a(f"v_mfma_f32_32x32x16_bf16 {vr(O,16)}, {vr(V2,4)}, {vr(P+4,4)}, {vr(O,16)}")
        rd_V2(t)
        e(cur, 2); e(cur, 3); p(cur, 0); p(cur, 1)
        qk1(nxt)
        rd_K1(t+2)
        e(cur, 4); e(cur, 5); e(cur, 6); e(cur, 7); p(cur, 2); p(cur, 3)
        a("s_waitcnt lgkmcnt(2)")
        qk2(nxt)
        rd_K2(t+2)
        e(cur, 8); e(cur, 9); e(cur, 10); e(cur, 11); p(cur, 4); p(cur, 5)
        a(f"v_mfma_f32_32x32x16_bf16 {vr(O,16)}, {vr(V1,4)}, {vr(P,4)}, {vr(O,16)}")
        rd_V1(t+1)
        e(cur, 12); e(cur, 13); e(cur, 14); e(cur, 15); p(cur, 6); p(cur, 7)
    a(f"s_add_u32 s{sIt}, s{sIt}, 1")
    a(f"s_cmp_lt_u32 s{sIt}, 4")
    a(f"s_cbranch_scc1 {L_loop}")
    a("s_waitcnt lgkmcnt(0)")
    a(f"v_mfma_f32_32x32x16_bf16 {vr(O,16)}, {vr(V2,4)}, {vr(P+4,4)}, {vr(O,16)}")
    a("s_setprio 0")
    st.mark("loop")
    a.nop(16)
    L_fin, L_slow = "A_fin", "A_slow"
    a(f"s_mov_b32 s{sIt}, 0")
    a.label(L_fin)
    a(f"v_mov_b32 v{vT}, v{O+8}")
    a(f"v_mov_b32 v{vT+1}, v{O+8}")
    a.nop(2)
    a(f"v_permlane32_swap_b32 v{vT}, v{vT+1}")
    a(f"v_max3_f32 v{vT+2}, |v{O}|, |v{O+1}|, |v{O+2}|")
    for j in range(3, 12, 2):
        j2 = min(j+1, 11)
        a(f"v_max3_f32 v{vT+2}, |v{O+j}|, |v{O+j2}|, v{vT+2}")
    a(f"v_mov_b32 v{vT+3}, {f32bits(2.0**120)}")
    a(f"v_cmp_nlt_f32 vcc, v{vT+2}, v{vT+3}")
    a(f"v_cmp_nlt_f32 s[62:63], 0, v{vT+1}")
    a.nop(1)
    a(f"s_or_b64 vcc, vcc, s[62:63]")
    a(f"s_cmp_eq_u64 vcc, 0")
    a(f"s_cbranch_scc1 A_store")
    a(f"s_cmp_lg_u32 s{sIt}, 0")
    a(f"s_cbranch_scc1 A_store")
    a(f"s_branch {L_slow}")
    a.label("A_store")
    a(f"v_rcp_f32 v{vT+2}, v{vT+1}")
    a.nop(1)
    for j in range(12): a(f"v_mul_f32 v{O+j}, v{O+j}, v{vT+2}")
    for k in range(6): a(f"v_cvt_pk_bf16_f32 v{P+k}, v{O+2*k}, v{O+2*k+1}")
    a(f"s_lshl_b32 s{sT}, s{sCG}, 3")
    a(f"s_add_u32 s{sT}, s{sT}, s{sW}")
    a(f"s_mul_i32 s{sT}, s{sT}, 20")
    a(f"s_mul_i32 s{sT2}, s{sRB}, {40*1024}")
    a(f"s_add_u32 s{sT2}, s{sT2}, {WS_OF}")
    def oaddr(dst, colv):
        a(f"v_lshrrev_b32 v{dst}, 4, v{colv}")
        a(f"v_lshlrev_b32 v{dst}, 10, v{dst}")
        a(f"v_bfe_u32 v{vT+7}, v{colv}, 3, 1")
        a(f"v_lshl_add_u32 v{dst}, v{vT+7}, 9, v{dst}")
        a(f"v_and_b32 v{vT+7}, 7, v{colv}")
        a(f"v_lshl_add_u32 v{dst}, v{vT+7}, 1, v{dst}")
        a(f"v_lshl_add_u32 v{dst}, v{vN}, 4, v{dst}")
    a(f"v_lshlrev_b32 v{vT+3}, 2, v{vH}")
    a(f"v_add_u32 v{vT+3}, s{sT}, v{vT+3}")
    oaddr(vT+4, vT+3)
    a(f"buffer_store_dwordx2 v[{P}:{P+1}], v{vT+4}, s[{R_WS}:{R_WS+3}], s{sT2} offen sc1")
    a(f"v_add_u32 v{vT+3}, 8, v{vT+3}")
    oaddr(vT+5, vT+3)
    a(f"buffer_store_dwordx2 v[{P+2}:{P+3}], v{vT+5}, s[{R_WS}:{R_WS+3}], s{sT2} offen sc1")
    a(f"s_add_u32 s{sT}, s{sT}, 16")
    a(f"v_mov_b32 v{vT+3}, s{sT}")
    oaddr(vT+6, vT+3)
    a(f"v_cmp_eq_u32 vcc, 0, v{vH}")
    a(f"s_and_saveexec_b64 s[62:63], vcc")
    a(f"buffer_store_dwordx2 v[{P+4}:{P+5}], v{vT+6}, s[{R_WS}:{R_WS+3}], s{sT2} offen sc1")
    a(f"s_mov_b64 exec, s[62:63]")
    a("s_waitcnt vmcnt(0)")
    a("s_barrier")
    L_nofl = "A_nofl"
    a(f"s_cmp_lg_u32 s{sW}, 7")
    a(f"s_cbranch_scc1 {L_nofl}")
    a(f"s_lshl_b32 s{sT}, s{sRB}, 2")
    a(f"s_add_u32 s{sT}, s{sT}, s{sCG}")
    set_flag(a, vT, sT, FL_O)
    a.label(L_nofl)
    st.end()
    a("s_endpgm")
    a.label(L_slow)
    a(f"v_cmp_eq_u32 vcc, 1, v{vH}")
    a(f"v_mov_b32 v{vT}, 0")
    a(f"v_mov_b32 v{vM2}, 0xff800000")
    a(f"v_cndmask_b32 v{Q2}, v{Q2}, v{vT}, vcc")
    a(f"s_mov_b32 s{sSoffK}, 0")
    a.label("A_slow1")
    a(f"buffer_load_dwordx4 {vr(K1,4)}, v{vA16}, s[{R_A}:{R_A+3}], s{sSoffK} offen sc1")
    a(f"buffer_load_dwordx2 {vr(K2,2)}, v{vA8}, s[{R_A}:{R_A+3}], s{sSoffK} offen offset:1024 sc1")
    a("s_waitcnt vmcnt(0)")
    qk1(S[0]); qk2(S[0])
    a.nop(16)
    for i in range(8):
        a(f"v_max3_f32 v{vM2}, v{S[0]+2*i}, v{S[0]+2*i+1}, v{vM2}")
    a(f"s_add_u32 s{sSoffK}, s{sSoffK}, 4096")
    a(f"s_cmp_lt_u32 s{sSoffK}, 262144")
    a(f"s_cbranch_scc1 A_slow1")
    set_m(0.0)
    for i in range(16): a(f"v_mov_b32 v{O+i}, 0")
    a(f"s_mov_b32 s{sSoffK}, 0")
    a.label("A_slow2")
    a(f"buffer_load_dwordx4 {vr(K1,4)}, v{vA16}, s[{R_A}:{R_A+3}], s{sSoffK} offen sc1")
    a(f"buffer_load_dwordx2 {vr(K2,2)}, v{vA8}, s[{R_A}:{R_A+3}], s{sSoffK} offen offset:1024 sc1")
    a(f"buffer_load_dwordx4 {vr(V1,4)}, v{vA16}, s[{R_A}:{R_A+3}], s{sSoffK} offen offset:2048 sc1")
    a(f"buffer_load_dwordx4 {vr(V2,4)}, v{vA16}, s[{R_A}:{R_A+3}], s{sSoffK} offen offset:3072 sc1")
    a("s_waitcnt vmcnt(0)")
    qk1(S[0]); qk2(S[0])
    a.nop(16)
    for i in range(16): e(S[0], i)
    a.nop(1)
    for k in range(8): p(S[0], k)
    a.nop(2)
    a(f"v_mfma_f32_32x32x16_bf16 {vr(O,16)}, {vr(V1,4)}, {vr(P,4)}, {vr(O,16)}")
    a(f"v_mfma_f32_32x32x16_bf16 {vr(O,16)}, {vr(V2,4)}, {vr(P+4,4)}, {vr(O,16)}")
    a(f"s_add_u32 s{sSoffK}, s{sSoffK}, 4096")
    a(f"s_cmp_lt_u32 s{sSoffK}, 262144")
    a(f"s_cbranch_scc1 A_slow2")
    a.nop(16)
    a(f"s_mov_b32 s{sIt}, 1")
    a(f"s_branch {L_fin}")

def role_B1(a):
    st = Stamps(a, "B1")
    st.start()
    if OPT.get("bprio"): a(f"s_setprio {OPT['bprio']}")
    sG, sC = sRB, sCG
    sSoffW, sSoffX, sLdsW, sKH, sXb = 57, 58, 59, 60, 99
    vT = 4; vW = 10; vTr, vX16, vR = 13, 14, 15
    XS = 16; WF = 48; ACC = 76
    SLOT = 24576
    a(f"s_sub_u32 s{sT2}, s2, 256")
    a(f"s_and_b32 s{sG}, s{sT2}, 7")
    a(f"s_lshl_b32 s{sG}, s{sG}, 1")
    a(f"s_bfe_u32 s{sT}, s{sT2}, 0x10003")
    a(f"s_add_u32 s{sG}, s{sG}, s{sT}")
    a(f"s_lshr_b32 s{sC}, s{sT2}, 4")
    a(f"s_lshr_b32 s{sKH}, s{sW}, 2")
    a(f"v_lshlrev_b32 v{vX16}, 4, v{vLane}")
    a(f"s_and_b32 s{sT}, s{sW}, 3")
    a(f"s_mul_i32 s{sT}, s{sT}, 192")
    a(f"s_mul_i32 s{sT2}, s{sC}, 192")
    a(f"s_mul_i32 s{sT3}, s{sKH}, {320*3072}")
    a(f"s_add_u32 s{sT2}, s{sT2}, s{sT3}")
    for i in range(3):
        a(f"v_add_u32 v{vT}, s{sT}, v{vLane}")
        if i: a(f"v_add_u32 v{vT}, {64*i}, v{vT}")
        a(f"v_mul_u32_u24 v{vT+1}, 5462, v{vT}")
        a(f"v_lshrrev_b32 v{vT+1}, 16, v{vT+1}")
        a(f"v_mul_u32_u24 v{vT+2}, 12, v{vT+1}")
        a(f"v_sub_u32 v{vT}, v{vT}, v{vT+2}")
        a(f"v_lshlrev_b32 v{vT}, 4, v{vT}")
        a(f"v_mul_u32_u24 v{vT+1}, 3072, v{vT+1}")
        a(f"v_add3_u32 v{vW+i}, v{vT}, v{vT+1}, s{sT2}")
        if i: a(f"v_subrev_u32 v{vW+i}, {1024*i}, v{vW+i}")
    a(f"s_mul_i32 s{sT}, s{sKH}, 12288")
    tr_addr(a, vTr, None, 192, 8, 4, sT, vT)
    a(f"s_mul_i32 s{sLdsW}, s{sW}, 3072")
    srd(a, R_A, S_W1, S_W1+1, 640*1536*2)
    srd(a, R_B, S_B1, S_B1+1, 1536*2)
    a(f"s_mul_hi_u32 s{sT}, s{sC}, {(1<<32)//5 + 1}")
    a(f"s_mul_i32 s{sT}, s{sT}, 5")
    a(f"s_sub_u32 s{sT}, s{sC}, s{sT}")
    a(f"s_mul_i32 s{sSoffW}, s{sT}, {64*3072}")
    a(f"s_lshl_b32 s{sSoffX}, s{sT}, 12")
    a(f"s_and_b32 s{sT}, s{sW}, 3")
    a(f"s_lshl_b32 s{sT2}, s{sG}, 2")
    a(f"s_add_u32 s{sT}, s{sT}, s{sT2}")
    a(f"s_mul_i32 s{sXb}, s{sT}, {40*1024}")
    a(f"s_mul_i32 s{sT2}, s{sKH}, {20*1024}")
    a(f"s_add_u32 s{sXb}, s{sXb}, s{sT2}")
    if WS_XF: a(f"s_add_u32 s{sXb}, s{sXb}, {WS_XF}")
    def issueW(c):
        a(f"s_add_u32 m0, s{sLdsW}, {(c%3)*SLOT}")
        a(f"s_add_u32 s{sT}, s{sSoffW}, {64*3072}")
        for i in range(3):
            a(f"buffer_load_dwordx4 v{vW+i}, s[{R_A}:{R_A+3}], s{sSoffW} offen offset:{1024*i} lds")
        a(f"s_cmp_eq_u32 s{sT}, {320*3072}")
        a(f"s_cselect_b32 s{sSoffW}, 0, s{sT}")
    def issueX(c):
        xs = XS + 16*(c % 2)
        a(f"s_add_u32 s{sT2}, s{sXb}, s{sSoffX}")
        a(f"s_add_u32 s{sT}, s{sSoffX}, 4096")
        for i in range(4):
            a(f"buffer_load_dwordx4 {vr(xs+4*i,4)}, v{vX16}, s[{R_WS}:{R_WS+3}], s{sT2} offen offset:{1024*i} sc1")
        a(f"s_cmp_eq_u32 s{sT}, 20480")
        a(f"s_cselect_b32 s{sSoffX}, 0, s{sT}")
    a(f"s_cmp_lg_u32 s{sW}, 0")
    a(f"s_cbranch_scc1 B1_pre")
    get_tag(a, vT, "B1")
    a(f"s_lshl_b32 s{sT}, s{sG}, 5")
    if OPT.get("wftries", 1): poll_flags(a, vT, "B1p", sT, 32, FL_D, tries=OPT.get("wftries", 1))
    a.label("B1_pre")
    a("s_barrier")
    st.mark("prepoll")
    sJ = 96
    a(f"s_sub_u32 s{sJ}, s2, 256")
    srd(a, R_C, S_W2, S_W2+1, 1536*640*2)
    vF = 16
    a(f"v_lshrrev_b32 v32, 2, v{vLane}")
    a(f"v_mul_u32_u24 v32, 1280, v32")
    a(f"v_and_b32 v33, 3, v{vLane}")
    a(f"v_lshl_add_u32 v32, v33, 4, v32")
    a(f"s_lshl_b32 s{sT}, s{sW}, 11")
    a(f"v_add_u32 v33, s{sT}, v{vX16}")
    tr_addr(a, 34, None, 64, 4, 8, sT, vT)
    tr_addr(a, 35, None, 64, 8, 4, sT, vT)
    sDst = [92, 93]; sStp = [94, 95]
    for rnd in range(2):
        Lskip = f"B1_wf{rnd}_skip"
        a(f"s_mov_b32 s{sStp[rnd]}, -1")
        if rnd == 1:
            a(f"s_cmp_ge_u32 s{sW}, 3")
            a(f"s_cbranch_scc1 {Lskip}")
        a(f"s_and_b32 s{sT}, s{sJ}, 63")
        a(f"s_mul_i32 s{sT}, s{sT}, 11")
        a(f"s_add_u32 s{sT}, s{sT}, s{sW}")
        if rnd: a(f"s_add_u32 s{sT}, s{sT}, 8")
        a(f"s_cmp_ge_u32 s{sT}, 680")
        a(f"s_cbranch_scc1 {Lskip}")
        a(f"s_mul_hi_u32 s{sT2}, s{sT}, {(1<<32)//136 + 1}")
        a(f"s_mul_i32 s{sT3}, s{sT2}, 136")
        a(f"s_sub_u32 s{sT}, s{sT}, s{sT3}")
        a(f"s_mov_b32 s{sStp[rnd]}, s{sT}")
        a(f"s_lshr_b32 s{sT3}, s{sJ}, 6")
        a(f"s_mul_i32 s{sT3}, s{sT3}, 5")
        a(f"s_add_u32 s{sT2}, s{sT2}, s{sT3}")
        a(f"s_mul_i32 s62, s{sT2}, 136")
        a(f"s_add_u32 s62, s62, s{sT}")
        a(f"s_lshl_b32 s62, s62, 10")
        a(f"s_add_u32 s{sDst[rnd]}, s62, {WS_WF}")
        a(f"s_lshl_b32 s{sT2}, s{sT2}, 6")
        a(f"s_cmp_lt_u32 s{sT}, 96")
        a(f"s_cselect_b32 s{R_C}, s{S_W2}, s{S_WO}")
        a(f"s_cselect_b32 s{R_C+1}, s{S_W2+1}, s{S_WO+1}")
        a(f"s_cselect_b32 s63, 0, 96")
        a(f"s_mov_b32 s{R_C+2}, {640*640*2}")
        a(f"s_cbranch_scc0 B1_wf{rnd}_a")
        a(f"s_mov_b32 s{R_C+2}, {1536*640*2}")
        a.label(f"B1_wf{rnd}_a")
        a(f"s_sub_u32 s{sT3}, s{sT}, s63")
        a(f"s_mul_i32 s{sT3}, s{sT3}, {16*1280}")
        a(f"s_add_u32 s{sT3}, s{sT3}, s{sT2}")
        a(f"buffer_load_dwordx4 v[{16+4*rnd}:{19+4*rnd}], v32, s[{R_C}:{R_C+3}], s{sT3} offen")
        a.label(Lskip)
    a("s_waitcnt vmcnt(0)")
    for rnd in range(2):
        Lskip = f"B1_wg{rnd}_skip"
        a(f"s_cmp_eq_u32 s{sStp[rnd]}, -1")
        a(f"s_cbranch_scc1 {Lskip}")
        a(f"ds_write_b128 v33, v[{16+4*rnd}:{19+4*rnd}] offset:{1024*rnd}")
        a(f"s_cmp_lt_u32 s{sStp[rnd]}, 96")
        a(f"s_cbranch_scc0 B1_wf{rnd}_n")
        a(f"ds_read_b64_tr_b16 v[{24+4*rnd}:{25+4*rnd}], v34 offset:{1024*rnd}")
        a(f"ds_read_b64_tr_b16 v[{26+4*rnd}:{27+4*rnd}], v34 offset:{1024*rnd+512}")
        a(f"s_branch B1_wf{rnd}_s")
        a.label(f"B1_wf{rnd}_n")
        a(f"ds_read_b64_tr_b16 v[{24+4*rnd}:{25+4*rnd}], v35 offset:{1024*rnd}")
        a(f"ds_read_b64_tr_b16 v[{26+4*rnd}:{27+4*rnd}], v35 offset:{1024*rnd+256}")
        a.label(f"B1_wf{rnd}_s")
        a("s_waitcnt lgkmcnt(0)")
        a(f"buffer_store_dwordx4 v[{24+4*rnd}:{27+4*rnd}], v{vX16}, s[{R_WS}:{R_WS+3}], s{sDst[rnd]} offen sc1")
        a.label(Lskip)
    st.mark("wfprep")
    L_np = "B1_np"
    a(f"s_cmp_lg_u32 s{sW}, 0")
    a(f"s_cbranch_scc1 {L_np}")
    a(f"s_lshl_b32 s{sT}, s{sG}, 5")
    poll_flags(a, vT, "B1", sT, 32, FL_D)
    if OPT.get("b1kv"): poll_flags(a, vT, "B1k", None, 128, FL_KV)
    a.label(L_np)
    a("s_barrier")
    st.mark("wait_d")
    issued = []
    def iX(c): issueX(c); issued.extend([("X", c)]*4)
    def iW(c): issueW(c); issued.extend([("W", c)]*3)
    if OPT.get("b1shallow", 1):
        iW(0); iX(0)
    else:
        iW(0); iX(0)
        a("s_barrier")
        iW(1); iX(1)
        a("s_barrier")
        iW(2)
    def wreads(c, k, buf):
        base = (c % 3)*SLOT + k*16*192
        for ct in range(3):
            a(f"ds_read_b64_tr_b16 v[{WF+12*buf+4*ct}:{WF+12*buf+4*ct+1}], v{vTr} offset:{base + ct*64}")
            a(f"ds_read_b64_tr_b16 v[{WF+12*buf+4*ct+2}:{WF+12*buf+4*ct+3}], v{vTr} offset:{base + ct*64 + 4*192}")
    for c in range(5):
        last = max(i for i, e_ in enumerate(issued) if e_ in (("W", c), ("X", c)))
        a(f"s_waitcnt vmcnt({len(issued) - 1 - last})")
        a("s_barrier")
        if c == 0:
            st.mark("b0")
            a(f"s_cmp_lg_u32 s{sW}, 0")
            a(f"s_cbranch_scc1 B1_nofw")
            set_flag(a, vT, sJ, FL_W)
            a.label("B1_nofw")
        if OPT.get("b1shallow", 1):
            if c + 1 < 5: iW(c + 1); iX(c + 1)
        elif 1 <= c <= 2: iW(c + 2)
        xs = XS + 16*(c % 2)
        wreads(c, 0, 0)
        for k in range(4):
            buf = k % 2
            if k < 3:
                wreads(c, k + 1, 1 - buf)
                a("s_waitcnt lgkmcnt(6)")
            else:
                a("s_waitcnt lgkmcnt(0)")
            for ct in range(3):
                cin = "0" if (c == 0 and k == 0) else vr(ACC+16*ct,16)
                a(f"v_mfma_f32_32x32x16_bf16 {vr(ACC+16*ct,16)}, {vr(WF+12*buf+4*ct,4)}, {vr(xs+4*k,4)}, {cin}")
        if c + 2 < 5 and not OPT.get("b1shallow", 1): iX(c + 2)
    st.mark("kloop")
    a("s_setprio 3")
    a(f"s_and_b32 s{sT}, s{sW}, 3")
    a(f"s_lshl_b32 s{sT2}, s{sG}, 2")
    a(f"s_add_u32 s{sT}, s{sT}, s{sT2}")
    a(f"s_lshl_b32 s{sT2}, s{sT}, 7")
    a(f"s_add_u32 s{sT2}, s{sT2}, {WS_R}")
    a(f"v_lshlrev_b32 v{vT}, 2, v{vN}")
    a(f"buffer_load_dword v{vR}, v{vT}, s[{R_WS}:{R_WS+3}], s{sT2} offen sc1")
    a(f"s_mul_i32 s{sT2}, s{sC}, 192")
    a(f"s_lshl_b32 s{sT3}, s{sKH}, 5")
    a(f"s_add_u32 s{sT2}, s{sT2}, s{sT3}")
    a(f"v_lshlrev_b32 v{vT}, 3, v{vH}")
    B = XS
    for ct in range(3):
        for q in range(2):
            a(f"buffer_load_dwordx2 v[{B+4*ct+2*q}:{B+4*ct+2*q+1}], v{vT}, s[{R_B}:{R_B+3}], s{sT2} offen offset:{64*ct+16*q}")
    a(f"s_mul_i32 s{sT}, s{sT}, 96")
    a(f"s_mul_i32 s{sT2}, s{sC}, 6")
    a(f"s_add_u32 s{sT}, s{sT}, s{sT2}")
    a(f"s_add_u32 s{sT}, s{sT}, s{sKH}")
    a(f"s_lshl_b32 s{sXb}, s{sT}, 10")
    a(f"s_add_u32 s{sXb}, s{sXb}, {WS_H}")
    a("s_barrier")
    a.nop(4)
    T = XS + 16
    a(f"s_mul_i32 s{sT}, s{sW}, 6144")
    a(f"v_add_u32 v{vT+1}, s{sT}, v{vX16}")
    a(f"s_xor_b32 s{sT}, s{sW}, 4")
    a(f"s_mul_i32 s{sT}, s{sT}, 6144")
    a(f"v_add_u32 v{vT+2}, s{sT}, v{vX16}")
    a(f"s_cmp_eq_u32 s{sKH}, 1")
    a(f"s_cbranch_scc1 B1_x1")
    for ct in range(3):
        for q in range(2):
            a(f"ds_write_b128 v{vT+1}, {vr(ACC+16*ct+8+4*q,4)} offset:{(2*ct+q)*1024}")
    a(f"s_branch B1_x2")
    a.label("B1_x1")
    for ct in range(3):
        for q in range(2):
            a(f"ds_write_b128 v{vT+1}, {vr(ACC+16*ct+4*q,4)} offset:{(2*ct+q)*1024}")
    a.label("B1_x2")
    a("s_waitcnt lgkmcnt(0)")
    a("s_barrier")
    for i in range(6):
        a(f"ds_read_b128 {vr(T+4*i,4)}, v{vT+2} offset:{i*1024}")
    a("s_waitcnt lgkmcnt(0) vmcnt(0)")
    a(f"s_cmp_eq_u32 s{sKH}, 1")
    a(f"s_cbranch_scc1 B1_y1")
    for ct in range(3):
        for j in range(8): a(f"v_add_f32 v{T+8*ct+j}, v{T+8*ct+j}, v{ACC+16*ct+j}")
    a(f"s_branch B1_y2")
    a.label("B1_y1")
    for ct in range(3):
        for j in range(8): a(f"v_add_f32 v{T+8*ct+j}, v{T+8*ct+j}, v{ACC+16*ct+8+j}")
    a.label("B1_y2")
    TB = 56
    for ct in range(3):
        for q in range(2):
            b0 = B+4*ct+2*q
            acc = T+8*ct+4*q
            a(f"v_lshlrev_b32 v{TB}, 16, v{b0}")
            a(f"v_and_b32 v{TB+1}, 0xffff0000, v{b0}")
            a(f"v_lshlrev_b32 v{TB+2}, 16, v{b0+1}")
            a(f"v_and_b32 v{TB+3}, 0xffff0000, v{b0+1}")
            for j in range(4): a(f"v_fma_f32 v{acc+j}, v{acc+j}, v{vR}, v{TB+j}")
            for j in range(4): a(f"v_max_f32 v{acc+j}, 0, v{acc+j}")
            for j in range(4): a(f"v_mul_f32 v{acc+j}, v{acc+j}, v{acc+j}")
        for k in range(4):
            a(f"v_cvt_pk_bf16_f32 v{60+4*ct+k}, v{T+8*ct+2*k}, v{T+8*ct+2*k+1}")
    a(f"v_add_u32 v{vT}, 4096, v{vX16}")
    a(f"buffer_store_dwordx4 {vr(60,4)}, v{vX16}, s[{R_WS}:{R_WS+3}], s{sXb} offen sc1")
    a(f"buffer_store_dwordx4 {vr(64,4)}, v{vX16}, s[{R_WS}:{R_WS+3}], s{sXb} offen offset:2048 sc1")
    a(f"buffer_store_dwordx4 {vr(68,4)}, v{vT}, s[{R_WS}:{R_WS+3}], s{sXb} offen sc1")
    a("s_waitcnt vmcnt(0)")
    a("s_barrier")
    L_nf = "B1_nf"
    a(f"s_cmp_lg_u32 s{sW}, 0")
    a(f"s_cbranch_scc1 {L_nf}")
    a(f"s_lshl_b32 s{sT}, s{sG}, 4")
    a(f"s_add_u32 s{sT}, s{sT}, s{sC}")
    set_flag(a, vT, sT, FL_H)
    a.label(L_nf)
    st.mark("epi")
    st.end()
    a("s_endpgm")

def role_B2(a):
    st = Stamps(a, "B2")
    st.start()
    if OPT.get("bprio"): a(f"s_setprio {OPT['bprio']}")
    sSoffW, sSoffX, sWb, sIt, sRho, sWrapW, sRst = 57, 58, 59, 60, 61, 98, 99
    vT = 4
    vX16, vXa = 14, 15
    ACC = 16
    XR = 48
    WB = 64
    vOut = vT+3
    NXS = 8
    a(f"s_sub_u32 s{sT2}, s2, 512")
    decode_rb_cg(a, sT2)
    a(f"v_lshlrev_b32 v{vX16}, 4, v{vLane}")
    a(f"s_and_b32 s{sRho}, s{sRB}, 7")
    a(f"s_min_u32 s{sT3}, s{sW}, 4")
    a(f"s_mul_i32 s{sT}, s{sCG}, 5")
    a(f"s_add_u32 s{sT}, s{sT}, s{sT3}")
    a(f"s_mul_i32 s{sWb}, s{sT}, {136*1024}")
    a(f"s_add_u32 s{sWb}, s{sWb}, {WS_WF}")
    a(f"s_lshl_b32 s{sT}, s{sT}, 6")
    srd(a, R_C, S_X, S_X+1, NX)
    a(f"s_lshl_b32 s{sT2}, s{sRB}, 5")
    a(f"v_add_u32 v{vT}, s{sT2}, v{vN}")
    a(f"v_mul_u32_u24 v{vT}, 1280, v{vT}")
    a(f"v_lshl_add_u32 v{vT}, v{vH}, 3, v{vT}")
    a(f"v_add_u32 v{vOut}, s{sT}, v{vT}")
    for q in range(4):
        a(f"buffer_load_dwordx2 v[{XR+2*q}:{XR+2*q+1}], v{vOut}, s[{R_C}:{R_C+3}], 0 offen offset:{16*q}")
    srd(a, R_C, S_B2, S_B2+1, 640*2)
    a(f"v_lshlrev_b32 v{vT}, 3, v{vH}")
    for q in range(4):
        a(f"buffer_load_dwordx2 v[{XR+8+2*q}:{XR+8+2*q+1}], v{vT}, s[{R_C}:{R_C+3}], s{sT} offen offset:{16*q}")
    for i in range(16): a(f"v_mov_b32 v{ACC+i}, 0")
    def unpack_add(q, dst):
        for (src, t) in ((XR+2*q, 32), (XR+8+2*q, 36)):
            a(f"v_lshlrev_b32 v{t}, 16, v{src}")
            a(f"v_and_b32 v{t+1}, 0xffff0000, v{src}")
            a(f"v_lshlrev_b32 v{t+2}, 16, v{src+1}")
            a(f"v_and_b32 v{t+3}, 0xffff0000, v{src+1}")
        for j in range(4): a(f"v_add_f32 v{32+j}, v{32+j}, v{36+j}")
        for j in range(4): a(f"v_add_f32 v{dst+j}, v{dst+j}, v{32+j}")
    L_side = "B2_side"
    a(f"s_cmp_ge_u32 s{sW}, 4")
    a(f"s_cbranch_scc1 {L_side}")
    a("s_barrier")
    a(f"s_lshl_b32 s{sSoffW}, s{sRho}, 13")
    a(f"s_mov_b32 s{sWrapW}, {96*1024}")
    a(f"s_mov_b32 s{sRst}, 0")
    def wload(r):
        a(f"s_add_u32 s{sT2}, s{sWb}, s{sSoffW}")
        a(f"s_add_u32 s{sT}, s{sSoffW}, 1024")
        a(f"buffer_load_dwordx4 {vr(r,4)}, v{vX16}, s[{R_WS}:{R_WS+3}], s{sT2} offen sc1")
        a(f"s_cmp_eq_u32 s{sT}, s{sWrapW}")
        a(f"s_cselect_b32 s{sSoffW}, s{sRst}, s{sT}")
    for k in range(16): wload(WB + 4*k)
    st.mark("setup")
    a(f"s_mov_b32 s{sIt}, 0")
    L1 = "B2_p1"
    a.label(L1)
    XBUF = 32
    for j in range(16):
        k = j % 8
        if k == 0:
            a("s_barrier")
            a(f"s_lshl_b32 s{sT}, s{sIt}, 1")
            if j: a(f"s_add_u32 s{sT}, s{sT}, 1")
            a(f"s_and_b32 s{sT}, s{sT}, {NXS-1}")
            a(f"s_lshl_b32 s{sT}, s{sT}, 13")
            a(f"v_add_u32 v{vXa}, s{sT}, v{vX16}")
            for i in range(3):
                a(f"ds_read_b128 {vr(XBUF+4*i,4)}, v{vXa} offset:{i*1024}")
        if j == 0:
            L1n = "B2_p1n"
            a(f"s_cmp_lg_u32 s{sIt}, 5")
            a(f"s_cbranch_scc1 {L1n}")
            a(f"s_mul_i32 s{sSoffW}, s{sRho}, {5*1024}")
            a(f"s_add_u32 s{sSoffW}, s{sSoffW}, {96*1024}")
            a(f"s_mov_b32 s{sWrapW}, {136*1024}")
            a(f"s_mov_b32 s{sRst}, {96*1024}")
            a.label(L1n)
        if k + 3 < 8:
            a(f"ds_read_b128 {vr(XBUF+4*((k+3)%4),4)}, v{vXa} offset:{(k+3)*1024}")
            a("s_waitcnt vmcnt(15) lgkmcnt(3)")
        else:
            a(f"s_waitcnt vmcnt(15) lgkmcnt({7-k})")
        a(f"v_mfma_f32_32x32x16_bf16 {vr(ACC,16)}, {vr(WB+4*j,4)}, {vr(XBUF+4*(k%4),4)}, {vr(ACC,16)}")
        wload(WB + 4*j)
    a(f"s_add_u32 s{sIt}, s{sIt}, 1")
    a(f"s_cmp_lt_u32 s{sIt}, 6")
    a(f"s_cbranch_scc1 {L1}")
    st.mark("ffn2")
    a.nop(12)
    for q in range(4): unpack_add(q, ACC+4*q)
    XBUF = XR
    NBLK = 20
    def blk(s_):
        b = s_ % NBLK
        return (WB + 4*b) if b < 16 else (32 + 4*(b-16))
    for s_ in range(16, 20): wload(blk(s_))
    a("s_barrier")
    a(f"s_branch B2_oload")
    a.label(L_side)
    a(f"s_cmp_lt_u32 s{sW}, 6")
    a(f"s_cbranch_scc1 B2_np0")
    get_tag(a, vT, "B2")
    a(f"s_cmp_eq_u32 s{sW}, 7")
    a(f"s_cbranch_scc1 B2_ph")
    a(f"s_lshl_b32 s{sT}, s{sCG}, 6")
    poll_flags(a, vT, "B2w", sT, 64, FL_W)
    a(f"s_branch B2_np0")
    a.label("B2_ph")
    a(f"s_lshr_b32 s{sT}, s{sRB}, 2")
    a(f"s_lshl_b32 s{sT}, s{sT}, 4")
    poll_flags(a, vT, "B2h", sT, 16, FL_H)
    a.label("B2_np0")
    a("s_barrier")
    a(f"s_sub_u32 s{sT3}, s{sW}, 4")
    a("s_waitcnt vmcnt(0)")
    for jj in range(1, 4):
        Ls = a.newlabel("B2_q")
        a(f"s_cmp_lg_u32 s{sT3}, {jj}")
        a(f"s_cbranch_scc1 {Ls}")
        a(f"v_mov_b32 v{XR}, v{XR+2*jj}")
        a(f"v_mov_b32 v{XR+1}, v{XR+2*jj+1}")
        a(f"v_mov_b32 v{XR+8}, v{XR+8+2*jj}")
        a(f"v_mov_b32 v{XR+9}, v{XR+8+2*jj+1}")
        a.label(Ls)
    for j in range(4): a(f"v_mov_b32 v{40+j}, 0")
    unpack_add(0, 40)
    a(f"s_lshl_b32 s{sRst}, s{sT3}, 11")
    a(f"s_lshl_b32 s{sSoffW}, s{sRho}, 13")
    a(f"s_add_u32 s{sSoffW}, s{sSoffW}, s{sRst}")
    a(f"s_add_u32 s{sWrapW}, s{sRst}, {96*1024}")
    SD = 4
    def wpair(slot):
        a(f"s_add_u32 s{sT2}, s{sWb}, s{sSoffW}")
        a(f"s_add_u32 s{sT}, s{sSoffW}, 8192")
        a(f"buffer_load_dwordx4 {vr(WB+8*slot,4)}, v{vX16}, s[{R_WS}:{R_WS+3}], s{sT2} offen sc1")
        a(f"buffer_load_dwordx4 {vr(WB+8*slot+4,4)}, v{vX16}, s[{R_WS}:{R_WS+3}], s{sT2} offen offset:1024 sc1")
        a(f"s_cmp_eq_u32 s{sT}, s{sWrapW}")
        a(f"s_cselect_b32 s{sSoffW}, s{sRst}, s{sT}")
    for c in range(SD): wpair(c)
    a(f"s_sub_u32 s{sT3}, s{sW}, 4")
    a(f"s_mul_i32 s{sT}, s{sRB}, {96*1024}")
    a(f"s_add_u32 s63, s{sT}, {WS_H}")
    a(f"s_lshl_b32 s97, s{sT3}, 11")
    a(f"s_add_u32 s63, s63, s97")
    a(f"s_lshl_b32 s{sSoffX}, s{sRho}, 13")
    a(f"v_add_u32 v{vT+5}, s97, v{vX16}")
    vXs = vT+5
    vm = Cnt(a, "vmcnt", 63)
    def xdma(c):
        a(f"s_add_u32 m0, s97, {(c % NXS)*8192}")
        a(f"s_add_u32 s{sT2}, s63, s{sSoffX}")
        a(f"s_add_u32 s{sT}, s{sSoffX}, 8192")
        for i in range(2):
            a(f"buffer_load_dwordx4 v{vX16}, s[{R_WS}:{R_WS+3}], s{sT2} offen offset:{1024*i} sc1 lds")
        a(f"s_cmp_eq_u32 s{sT}, {96*1024}")
        a(f"s_cselect_b32 s{sSoffX}, 0, s{sT}")
        vm.issue(("X", c), 2)
    for c in range(SD): vm.issue(("W", c), 2)
    XD = 6
    for c in range(XD): xdma(c)
    for c in range(12):
        vm.need(("X", c), ("W", c))
        a("s_barrier")
        if c + XD < 12: xdma(c + XD)
        for i in range(2):
            a(f"ds_read_b128 {vr(48+4*i,4)}, v{vXs} offset:{(c % NXS)*8192 + 1024*i}")
        a("s_waitcnt lgkmcnt(1)")
        a(f"v_mfma_f32_32x32x16_bf16 {vr(ACC,16)}, {vr(WB+8*(c%4),4)}, {vr(48,4)}, {vr(ACC,16)}")
        a("s_waitcnt lgkmcnt(0)")
        a(f"v_mfma_f32_32x32x16_bf16 {vr(ACC,16)}, {vr(WB+8*(c%4)+4,4)}, {vr(52,4)}, {vr(ACC,16)}")
        if c + SD < 12: wpair(c % 4); vm.issue(("W", c + SD), 2)
    a(f"s_sub_u32 s{sT3}, s{sW}, 4")
    a(f"s_lshl_b32 s{sT3}, s{sT3}, 1")
    a(f"s_mul_i32 s62, s{sRho}, 5")
    a(f"s_add_u32 s62, s62, s{sT3}")
    for m in range(5):
        for i in range(2):
            a(f"s_add_u32 s{sT}, s62, {8*m+i}")
            a(f"s_cmp_ge_u32 s{sT}, 40")
            a(f"s_cselect_b32 s{sT2}, 40, 0")
            a(f"s_sub_u32 s{sT}, s{sT}, s{sT2}")
            a(f"s_add_u32 s{sT}, s{sT}, 96")
            a(f"s_lshl_b32 s{sT}, s{sT}, 10")
            a(f"s_add_u32 s{sT}, s{sT}, s{sWb}")
            a(f"buffer_load_dwordx4 {vr(WB+4*(2*m+i),4)}, v{vX16}, s[{R_WS}:{R_WS+3}], s{sT} offen sc1")
    Lnp2 = "B2_np2"
    a(f"s_cmp_lg_u32 s{sW}, 7")
    a(f"s_cbranch_scc1 {Lnp2}")
    a(f"s_lshl_b32 s{sT}, s{sRB}, 2")
    poll_flags(a, vT, "B2o", sT, 4, FL_O)
    a.label(Lnp2)
    st.mark("wait_o")
    a("s_barrier")
    a.label("B2_oload")
    a(f"s_mul_i32 s63, s{sRB}, {40*1024}")
    a(f"s_add_u32 s63, s63, {WS_OF}")
    a(f"s_mul_i32 s62, s{sRho}, 5")
    for i in range(5):
        a(f"s_mul_i32 s{sT}, s{sW}, 5")
        a(f"s_add_u32 s{sT}, s{sT}, {i}")
        a(f"s_add_u32 s{sT2}, s{sT}, s62")
        a(f"s_cmp_ge_u32 s{sT2}, 40")
        a(f"s_cselect_b32 s{sIt}, 40, 0")
        a(f"s_sub_u32 s{sT2}, s{sT2}, s{sIt}")
        a(f"s_lshl_b32 s{sT2}, s{sT2}, 10")
        a(f"s_add_u32 s{sT2}, s{sT2}, s63")
        a(f"s_lshl_b32 m0, s{sT}, 10")
        a("s_nop 0")
        a(f"buffer_load_dwordx4 v{vX16}, s[{R_WS}:{R_WS+3}], s{sT2} offen sc1 lds")
    a("s_waitcnt vmcnt(0)")
    a("s_barrier")
    st.mark("oload")
    a(f"s_cmp_ge_u32 s{sW}, 4")
    a(f"s_cbranch_scc1 B2_side2")
    vm = Cnt(a, "vmcnt", 63); lg = Cnt(a, "lgkmcnt", 15)
    def xread(s_):
        r = XBUF + 4*(s_ % 4)
        a(f"ds_read_b128 {vr(r,4)}, v{vX16} offset:{s_*1024}")
        lg.issue(("X", s_))
    for s_ in range(3): xread(s_)
    for s_ in range(40):
        if s_ + 3 < 40: xread(s_ + 3)
        vm.need(("W", s_))
        lg.need(("X", s_))
        a(f"v_mfma_f32_32x32x16_bf16 {vr(ACC,16)}, {vr(blk(s_),4)}, {vr(XBUF+4*(s_%4),4)}, {vr(ACC,16)}")
        if s_ + NBLK < 40:
            wload(blk(s_)); vm.issue(("W", s_ + NBLK))
    st.mark("wo")
    a("s_setprio 3")
    a("s_barrier")
    a.nop(10)
    srd(a, R_C, S_OUT, S_OUT+1, NX)
    for q in range(4):
        a(f"v_cvt_pk_bf16_f32 v{32+2*q}, v{ACC+4*q}, v{ACC+4*q+1}")
        a(f"v_cvt_pk_bf16_f32 v{33+2*q}, v{ACC+4*q+2}, v{ACC+4*q+3}")
        a(f"buffer_store_dwordx2 v[{32+2*q}:{33+2*q}], v{vOut}, s[{R_C}:{R_C+3}], 0 offen offset:{16*q}")
    a("s_barrier")
    st.end()
    a("s_endpgm")
    a.label("B2_side2")
    for k in range(4):
        a(f"ds_read_b128 {vr(48+4*k,4)}, v{vXs} offset:{(8*(k//2)+(k%2))*1024}")
    for k in range(10):
        a(f"s_waitcnt lgkmcnt({min(3, 9-k)})")
        a(f"v_mfma_f32_32x32x16_bf16 {vr(ACC,16)}, {vr(WB+4*k,4)}, {vr(48+4*(k%4),4)}, {vr(ACC,16)}")
        if k + 4 < 10:
            a(f"ds_read_b128 {vr(48+4*(k%4),4)}, v{vXs} offset:{(8*((k+4)//2)+((k+4)%2))*1024}")
    a("s_setprio 3")
    a("s_barrier")
    a.nop(12)
    a(f"s_sub_u32 s{sT3}, s{sW}, 4")
    a(f"s_lshl_b32 s{sT}, s{sT3}, 12")
    a(f"v_add_u32 v{vT}, s{sT}, v{vX16}")
    for q in range(4):
        a(f"ds_write_b128 v{vT}, {vr(ACC+4*q,4)} offset:{q*1024}")
    a("s_waitcnt lgkmcnt(0)")
    a("s_barrier")
    a(f"s_lshl_b32 s{sT}, s{sT3}, 10")
    a(f"v_add_u32 v{vT}, s{sT}, v{vX16}")
    for jj in range(4):
        a(f"ds_read_b128 {vr(ACC+4*jj,4)}, v{vT} offset:{jj*4096}")
    a(f"s_lshl_b32 s{sT}, s{sT3}, 4")
    a(f"v_add_u32 v{vOut}, s{sT}, v{vOut}")
    srd(a, R_C, S_OUT, S_OUT+1, NX)
    a("s_waitcnt lgkmcnt(0)")
    for j in range(4):
        a(f"v_add_f32 v{ACC+j}, v{ACC+j}, v{ACC+4+j}")
        a(f"v_add_f32 v{ACC+8+j}, v{ACC+8+j}, v{ACC+12+j}")
    for j in range(4): a(f"v_add_f32 v{ACC+j}, v{ACC+j}, v{40+j}")
    for j in range(4): a(f"v_add_f32 v{ACC+j}, v{ACC+j}, v{ACC+8+j}")
    a(f"v_cvt_pk_bf16_f32 v32, v{ACC}, v{ACC+1}")
    a(f"v_cvt_pk_bf16_f32 v33, v{ACC+2}, v{ACC+3}")
    a(f"buffer_store_dwordx2 v[32:33], v{vOut}, s[{R_WS if False else R_C}:{R_C+3}], 0 offen")
    st.end()
    a("s_endpgm")

def gen():
    a = Asm()
    a("s_cmp_ge_u32 s2, 768")
    a("s_cbranch_scc1 K_end")
    a("s_load_dwordx16 s[4:19], s[0:1], 0")
    a("s_load_dwordx8 s[20:27], s[0:1], 64")
    a("s_load_dwordx2 s[28:29], s[0:1], 96")
    a(f"v_and_b32 v{vLane}, 63, v0")
    a(f"v_lshrrev_b32 v4, 6, v0")
    a(f"v_lshrrev_b32 v{vH}, 5, v{vLane}")
    a(f"v_readfirstlane_b32 s{sW}, v4")
    a(f"v_and_b32 v{vN}, 31, v{vLane}")
    a("s_waitcnt lgkmcnt(0)")
    srd(a, R_WS, S_WS, S_WS+1, WS_END)
    srd(a, R_FL, S_WS, S_WS+1, FL_SIZE, WS_FL)
    for r in (R_A, R_B, R_C): srd(a, r, S_WS, S_WS+1, WS_END)
    for i in range(4, 16): a(f"v_mov_b32 v{i}, 0")
    a("s_cmp_ge_u32 s2, 512")
    a("s_cbranch_scc1 ROLE_B2")
    a("s_cmp_ge_u32 s2, 256")
    a("s_cbranch_scc1 ROLE_B1")
    role_A(a)
    a.label("ROLE_B1")
    role_B1(a)
    a.label("ROLE_B2")
    role_B2(a)
    a.label("K_end")
    a("s_endpgm")
    grid = OPT.get("grid", 768)
    s = f"; generated by gen2.py\n; @launch grid=({grid},1,1) block=(512,1,1) lds={LDS_BYTES}\n"
    s += '.amdgcn_target "amdgcn-amd-amdhsa--gfx950"\n.text\n'
    s += kernel_header(KN) + a.text()
    s += '.section .rodata,"a"\n.p2align 6\n' + kernel_desc(KN, 128, 102)
    return s

if __name__ == "__main__":
    if "--prof" in sys.argv: PROF = True
    for x in sys.argv:
        if x.startswith("-D"):
            k, _, v = x[2:].partition("="); OPT[k] = int(v) if v else 1
    open(sys.argv[1], "w").write(gen())
    if PROF: json.dump(STAMP_NAMES, open("stamps5.json", "w"))
```

```python
import sys, math, json
from asmlib import *

NAME = "parallel_sum__grouped_kv_mqa__dense_activation_squared_relu__prompt"
KN = NAME + "_kernel"
WS_XF = 0x0
WS_R  = 0x280000
WS_KV = 0x290000
WS_OF = 0x2D0000
WS_H  = 0x550000
WS_FL = 0xB50000
WS_WF = 0xBC0000
WS_END = 0xE70000
WS_DBG = 0x2000000
FL_KV, FL_D, FL_H, FL_W, FL_O = 0, 128, 640, 896, 1152
FL_N = 3200
FL_SIZE = FL_N * 128
NX = 2048 * 640 * 2
QSCALE = (20 ** -0.5) * math.log2(math.e)
DELTA = 96.0
LDS_BYTES = 81920
PROF = False
OPT = {}
SPIN_MAX = 200000

S_X, S_WQ, S_WK, S_WV, S_WO, S_W1, S_B1, S_W2, S_B2, S_OUT, S_DBG, S_WS = 4, 6, 8, 10, 12, 16, 18, 20, 22, 24, 26, 28
sW = 30
sTag = 31
R_WS = 32
R_FL = 36
R_A = 40
R_B = 44
R_C = 48
sRB, sCG, sT, sT2, sT3 = 52, 53, 54, 55, 56
vLane, vH, vN = 1, 2, 3

class Stamps:
    def __init__(self, a, role): self.a = a; self.n = 1; self.names = []; self.role = role
    def start(self):
        if not PROF: return
        for i in range(68, 94): self.a(f"s_mov_b32 s{i}, 0")
        self.a("s_memrealtime s[64:65]"); self.a("s_memtime s[66:67]"); self.a("s_waitcnt lgkmcnt(0)"); self.n = 2
    def mark(self, name):
        if not PROF: return
        assert self.n < 15
        self.a(f"s_memtime s[{64+2*self.n}:{65+2*self.n}]"); self.a("s_waitcnt lgkmcnt(0)")
        self.n += 1; self.names.append(name)
    def end(self):
        if not PROF: return
        a = self.a
        a("s_waitcnt vmcnt(0)")
        self.mark("final-drain")
        a("s_memrealtime s[94:95]"); a("s_waitcnt lgkmcnt(0)")
        a("s_mov_b64 exec, 1")
        a(f"s_lshl_b32 s98, s2, 3")
        a(f"s_add_u32 s98, s98, s{sW}")
        a(f"s_lshl_b32 s98, s98, 6")
        a(f"s_add_u32 s98, s98, {WS_DBG}")
        a(f"s_add_u32 s96, s{S_WS}, s98")
        a(f"s_addc_u32 s97, s{S_WS+1}, 0")
        a(f"v_mov_b32 v0, 0")
        for i in list(range(14)) + [15]:
            a(f"v_mov_b32 v1, s{64+2*i}")
            a(f"global_store_dword v0, v1, s[96:97] offset:{4*i}")
        a(f"v_mov_b32 v1, {self.n}")
        a(f"global_store_dword v0, v1, s[96:97] offset:56")
        a("s_waitcnt vmcnt(0)")
        STAMP_NAMES[self.role] = self.names
STAMP_NAMES = {}

def bf16_round(a, dst, src):
    a(f"v_cvt_pk_bf16_f32 v{dst}, v{src}, v{src}")
    a(f"v_lshlrev_b32 v{dst}, 16, v{dst}")

def decode_rb_cg(a, j):
    a(f"s_lshr_b32 s{sCG}, s{j}, 6")
    a(f"s_and_b32 s{sRB}, s{j}, 7")
    a(f"s_lshl_b32 s{sRB}, s{sRB}, 3")
    a(f"s_bfe_u32 s{sT}, s{j}, 0x30003")
    a(f"s_add_u32 s{sRB}, s{sRB}, s{sT}")

def get_tag(a, vt, lab):
    L = f"{lab}_tag"
    a(f"s_mov_b32 s{sT3}, {SPIN_MAX}")
    a(f"v_mov_b32 v{vt}, 0")
    a.label(L)
    a(f"global_load_dword v{vt+1}, v{vt}, s[{S_DBG}:{S_DBG+1}] sc1")
    a("s_waitcnt vmcnt(0)")
    a(f"v_readfirstlane_b32 s{sTag}, v{vt+1}")
    a(f"s_sub_u32 s{sT3}, s{sT3}, 1")
    a(f"s_cmp_eq_u32 s{sT3}, 0")
    a(f"s_cbranch_scc1 {L}_done")
    a(f"s_cmp_eq_u32 s{sTag}, 0")
    a(f"s_cbranch_scc0 {L}_done")
    a("s_sleep 1")
    a(f"s_branch {L}")
    a.label(f"{L}_done")

def poll_flags(a, vt, lab, s_idx, nflags, region, tries=None, sleep=None):
    if nflags == 128:
        poll_flags(a, vt, lab + "a", None, 64, region, tries, sleep)
        poll_flags(a, vt, lab + "b", None, 64, region + 64, tries, sleep)
        return
    L = f"{lab}_poll"
    a(f"v_lshlrev_b32 v{vt}, 7, v{vLane}")
    if s_idx is None:
        a(f"s_mov_b32 s63, {region*128}")
    else:
        a(f"s_lshl_b32 s63, s{s_idx}, 7")
        if region: a(f"s_add_u32 s63, s63, {region*128}")
    a(f"s_mov_b32 s{sT3}, {tries or SPIN_MAX}")
    a("s_mov_b64 s[100:101], exec")
    if nflags < 64:
        a(f"s_mov_b32 exec_lo, {(1 << min(nflags, 32)) - 1 if nflags < 32 else -1}")
        a(f"s_mov_b32 exec_hi, {((1 << (nflags - 32)) - 1) if nflags > 32 else 0}")
    a.label(L)
    a(f"buffer_load_dword v{vt+1}, v{vt}, s[{R_FL}:{R_FL+3}], s63 offen sc1")
    a("s_waitcnt vmcnt(0)")
    a(f"v_cmp_ne_u32 vcc, s{sTag}, v{vt+1}")
    a("s_nop 1")
    a(f"s_and_b64 exec, exec, vcc")
    a(f"s_cbranch_execz {L}_done")
    a(f"s_sub_u32 s{sT3}, s{sT3}, 1")
    a(f"s_cmp_eq_u32 s{sT3}, 0")
    a(f"s_cbranch_scc1 {L}_done")
    a(f"s_sleep {sleep if sleep is not None else OPT.get('sleep', 6)}")
    a(f"s_branch {L}")
    a.label(f"{L}_done")
    a("s_mov_b64 exec, s[100:101]")

def set_flag(a, vt, s_idx, region):
    a(f"v_mov_b32 v{vt}, s{sTag}")
    a(f"v_mov_b32 v{vt+1}, 0")
    a(f"s_lshl_b32 s63, s{s_idx}, 7")
    if region: a(f"s_add_u32 s63, s63, {region*128}")
    a("s_mov_b64 s[100:101], exec")
    a("s_mov_b64 exec, 1")
    a(f"buffer_store_dword v{vt}, v{vt+1}, s[{R_FL}:{R_FL+3}], s63 offen sc1")
    a("s_mov_b64 exec, s[100:101]")

def tr_addr(a, dst, dst2, pitch, hrows, second_rows, s_base, t):
    a(f"v_bfe_u32 v{t}, v{vLane}, 2, 2")
    a(f"v_mul_u32_u24 v{t+1}, {hrows}, v{vH}")
    a(f"v_add_u32 v{t}, v{t}, v{t+1}")
    a(f"v_bfe_u32 v{t+1}, v{vLane}, 4, 1")
    a(f"v_and_b32 v{t+2}, 3, v{vLane}")
    a(f"v_lshlrev_b32 v{t+2}, 3, v{t+2}")
    a(f"v_lshl_add_u32 v{t+1}, v{t+1}, 5, v{t+2}")
    a(f"v_mul_u32_u24 v{dst}, {pitch}, v{t}")
    a(f"v_add3_u32 v{dst}, v{dst}, v{t+1}, s{s_base}")
    if dst2 is not None:
        a(f"v_add_u32 v{dst2}, {second_rows*pitch}, v{dst}")

def role_A(a):
    OPT["nopre0"] = 1
    st = Stamps(a, "A")
    st.start()
    XB = 0; XP = 1056; XH = 528; RBUF = 42240
    RING = 42496; NSTG = 3; RW = NSTG*1024; DEPTH = 16
    KSTG = 57856
    KVX = 67072
    LFL = XB + 512
    LFL2 = XB + 1040
    T4F = 75264
    SB = [0, 16384, 32768, 49152]
    QBUF = 65536; QP = 328
    sStep, sSoff, sLds, sRho, sWrap, sIt = 57, 58, 59, 60, 61, 57
    sExp, sFD = 95, 94
    vT = 4
    vVo, vTr, vTr2, vX16 = 12, 13, 14, 15
    X = 16
    TMP = 36
    vSum, vSq, vM = 52, 53, 54
    vOne, vSelLo, vSelHi = 56, 57, 58
    vR, vXa, vWst, vTag = 9, 10, 11, 61
    ACC = 16; FB = 32; WS_ = 64
    a(f"s_mov_b32 s{sT2}, s2")
    decode_rb_cg(a, sT2)
    L_notag = "A_notag"
    a(f"s_cmp_lg_u32 s2, 0")
    a(f"s_cbranch_scc1 {L_notag}")
    a(f"s_cmp_lg_u32 s{sW}, 0")
    a(f"s_cbranch_scc1 {L_notag}")
    a(f"s_memrealtime s[62:63]")
    a("s_waitcnt lgkmcnt(0)")
    a(f"s_or_b32 s62, s62, 1")
    a(f"v_mov_b32 v{vT}, s62")
    a(f"v_mov_b32 v{vT+1}, 0")
    a("s_mov_b64 exec, 1")
    a(f"global_store_dword v{vT+1}, v{vT}, s[{S_DBG}:{S_DBG+1}] sc1")
    a("s_mov_b64 exec, -1")
    a.label(L_notag)
    srd(a, R_A, S_X, S_X+1, NX)
    a(f"s_lshl_b32 s{sT}, s{sRB}, 5")
    a(f"s_lshl_b32 s{sT2}, s{sW}, 2")
    a(f"s_add_u32 s{sT}, s{sT}, s{sT2}")
    a(f"v_lshrrev_b32 v{vT}, 4, v{vLane}")
    a(f"v_add_u32 v{vT}, s{sT}, v{vT}")
    a(f"v_mul_u32_u24 v{vT}, 1280, v{vT}")
    a(f"v_and_b32 v{vT+1}, 15, v{vLane}")
    a(f"v_lshl_add_u32 v{vT}, v{vT+1}, 4, v{vT}")
    for i in range(5):
        a(f"buffer_load_dwordx4 {vr(X+4*i,4)}, v{vT}, s[{R_A}:{R_A+3}], 0 offen offset:{256*i}")
    a(f"v_lshlrev_b32 v{vX16}, 4, v{vLane}")
    a(f"s_and_b32 s{sRho}, s{sRB}, 7")
    L_nowe = "A_nowe"
    a(f"s_cmp_lt_u32 s{sW}, 5")
    a(f"s_cbranch_scc1 {L_nowe}")
    a(f"s_cmp_ge_u32 s{sCG}, 2")
    a(f"s_cbranch_scc1 {L_nowe}")
    a(f"s_cmp_eq_u32 s{sCG}, 1")
    a(f"s_cselect_b32 s{R_B}, s{S_WV}, s{S_WK}")
    a(f"s_cselect_b32 s{R_B+1}, s{S_WV+1}, s{S_WK+1}")
    a(f"s_mov_b32 s{R_B+2}, {640*20*2}")
    a(f"s_mov_b32 s{R_B+3}, 0x00020000")
    a(f"s_sub_u32 s{sT}, s{sW}, 5")
    a(f"s_mul_i32 s{sStep}, s{sT}, 13")
    a(f"s_min_u32 s{sT}, s{sT}, 1")
    a(f"s_add_u32 s{sStep}, s{sStep}, s{sT}")
    a(f"s_mul_i32 s{sT}, s{sRho}, 5")
    a(f"s_add_u32 s{sT2}, s{sStep}, s{sT}")
    a(f"s_cmp_ge_u32 s{sT2}, 40")
    a(f"s_cselect_b32 s{sT}, 40, 0")
    a(f"s_sub_u32 s{sT2}, s{sT2}, s{sT}")
    a(f"s_mul_i32 s{sSoff}, s{sT2}, 640")
    for i in range(14):
        a(f"s_add_u32 s{sT}, s{sSoff}, 640")
        a(f"buffer_load_dwordx4 {vr(WS_+4*i,4)}, v{vX16}, s[{R_B}:{R_B+3}], s{sSoff} offen")
        a(f"s_cmp_eq_u32 s{sT}, 25600")
        a(f"s_cselect_b32 s{sSoff}, 0, s{sT}")
    a.label(L_nowe)
    a("s_barrier")
    L_nq = "A_nq"
    a(f"s_cmp_ge_u32 s{sW}, 5")
    a(f"s_cbranch_scc1 {L_nq}")
    srd(a, R_B, S_WQ, S_WQ+1, 640*640*2)
    a(f"v_lshrrev_b32 v{vT}, 2, v{vLane}")
    a(f"v_mul_u32_u24 v{vT}, 1280, v{vT}")
    a(f"v_and_b32 v{vT+1}, 3, v{vLane}")
    a(f"v_lshl_add_u32 v{vT}, v{vT+1}, 4, v{vT}")
    a(f"s_mul_i32 s{sT}, s{sCG}, 320")
    a(f"s_lshl_b32 s{sT2}, s{sW}, 6")
    a(f"s_add_u32 s{sT}, s{sT}, s{sT2}")
    a(f"v_add_u32 v{vVo}, s{sT}, v{vT}")
    a(f"s_mul_i32 s{sLds}, s{sW}, {RW}")
    a(f"s_add_u32 s{sLds}, s{sLds}, {RING}")
    a(f"s_mul_i32 s{sSoff}, s{sRho}, {5*20480}")
    def wload(k):
        d = WS_ + 4*(k % DEPTH)
        a(f"s_add_u32 s{sT}, s{sSoff}, 20480")
        a(f"buffer_load_dwordx4 {vr(d,4)}, v{vVo}, s[{R_B}:{R_B+3}], s{sSoff} offen")
        a(f"s_cmp_eq_u32 s{sT}, {40*20480}")
        a(f"s_cselect_b32 s{sSoff}, 0, s{sT}")
    NW0 = OPT.get("NW0", 8)
    for k in range(NW0): wload(k)
    tr_addr(a, vTr, vTr2, 64, 8, 4, sLds, vT)
    a(f"v_add_u32 v{vWst}, s{sLds}, v{vX16}")
    a(f"s_waitcnt vmcnt({NW0})")
    a(f"s_mov_b32 s{sTag}, 0")
    a(f"s_branch A_xok")
    a.label(L_nq)
    a(f"s_waitcnt vmcnt(14)")
    a(f"s_cmp_lt_u32 s{sCG}, 2")
    a(f"s_cbranch_scc1 A_xok2")
    a(f"s_waitcnt vmcnt(0)")
    a.label("A_xok2")
    a(f"v_mov_b32 v{vT}, 0")
    a(f"global_load_dword v{vTag}, v{vT}, s[{S_DBG}:{S_DBG+1}] sc1")
    a.label("A_xok")
    st.mark("xwait")
    a(f"v_mov_b32 v{vOne}, 0x3f803f80")
    a(f"v_mov_b32 v{vSelLo}, 0x00003f80")
    a(f"v_mov_b32 v{vSelHi}, 0x3f800000")
    for i in range(4): a(f"v_mov_b32 v{TMP+i}, 0")
    for i in range(20):
        a(f"v_dot2c_f32_bf16 v{TMP+(i%2)}, v{X+i}, v{vOne}")
        a(f"v_dot2c_f32_bf16 v{TMP+2+(i%2)}, v{X+i}, v{X+i}")
    a(f"v_lshrrev_b32 v{vT}, 4, v{vLane}")
    a(f"s_lshl_b32 s{sT}, s{sW}, 2")
    a(f"v_add_u32 v{vT}, s{sT}, v{vT}")
    a(f"v_and_b32 v{vT+1}, 1, v{vLane}")
    a(f"v_mul_u32_u24 v{vT+1}, {XH}, v{vT+1}")
    a(f"v_lshl_add_u32 v{vT+1}, v{vT}, 4, v{vT+1}")
    a(f"v_add_f32 v{vSum}, v{TMP}, v{TMP+1}")
    a(f"v_add_f32 v{vSq}, v{TMP+2}, v{TMP+3}")
    a(f"v_bfe_u32 v{vT+2}, v{vLane}, 1, 3")
    a(f"s_mul_i32 s{sT}, s{sRho}, 5")
    a(f"s_sub_u32 s{sT}, 40, s{sT}")
    for ror in (8, 4, 2, 1):
        a(f"v_add_f32_dpp v{vSum}, v{vSum}, v{vSum} row_ror:{ror} row_mask:0xf bank_mask:0xf")
        a(f"v_add_f32_dpp v{vSq}, v{vSq}, v{vSq} row_ror:{ror} row_mask:0xf bank_mask:0xf")
        if ror != 1: a.nop(1)
    a(f"v_add_u32 v{vT+2}, s{sT}, v{vT+2}")
    inv = f32bits(1.0/640)
    a(f"v_mul_f32 v{vM}, {inv}, v{vSum}")
    a(f"v_mul_f32 v{TMP+1}, {inv}, v{vSq}")
    a(f"v_fma_f32 v{TMP+1}, -v{vM}, v{vM}, v{TMP+1}")
    a(f"v_max_f32 v{TMP+1}, 0, v{TMP+1}")
    bf16_round(a, TMP+1, TMP+1)
    bf16_round(a, vM, vM)
    a(f"v_add_f32 v{TMP+1}, {f32bits(1e-5)}, v{TMP+1}")
    a(f"v_sub_f32 v{vM}, 0, v{vM}")
    bf16_round(a, TMP+1, TMP+1)
    a(f"v_sqrt_f32 v{vSum}, v{TMP+1}")
    for base in range(0, 20, 8):
        g = min(8, 20-base)
        for i in range(g):
            a(f"v_dot2_f32_bf16 v{TMP+2*i}, v{X+base+i}, v{vSelLo}, v{vM}")
            a(f"v_dot2_f32_bf16 v{TMP+2*i+1}, v{X+base+i}, v{vSelHi}, v{vM}")
        if base == 0:
            bf16_round(a, vSum, vSum)
            a(f"v_rcp_f32 v{vR}, v{vSum}")
        else:
            a.nop(3)
        for i in range(g):
            a(f"v_cvt_pk_bf16_f32 v{X+base+i}, v{TMP+2*i}, v{TMP+2*i+1}")
    a(f"v_lshlrev_b32 v{vT+3}, 2, v{vT}")
    a(f"ds_write_b32 v{vT+3}, v{vR} offset:{RBUF}")
    for i in range(5):
        if i: a(f"v_add_u32 v{vT+2}, 8, v{vT+2}")
        a(f"v_subrev_u32 v{vT+3}, 40, v{vT+2}")
        a(f"v_min_u32 v{vT+3}, v{vT+3}, v{vT+2}")
        a(f"v_mul_u32_u24 v{vT+3}, {XP}, v{vT+3}")
        a(f"v_add_u32 v{vT+3}, v{vT+3}, v{vT+1}")
        a(f"ds_write_b128 v{vT+3}, {vr(X+4*i,4)} offset:{XB}")
    a(f"v_mul_u32_u24 v{vXa}, {XH}, v{vH}")
    a(f"v_lshl_add_u32 v{vXa}, v{vN}, 4, v{vXa}")
    a(f"s_cmp_ge_u32 s{sW}, 5")
    a(f"s_cbranch_scc1 A_ln5")
    for k in range(NW0, 10): wload(k)
    a(f"s_cmp_eq_u32 s{sW}, 4")
    a(f"s_cbranch_scc1 A_lnb")
    for k in range(10, DEPTH): wload(k)
    a(f"s_branch A_lnb")
    a.label("A_ln5")
    a(f"v_mov_b32 v{vT}, {LFL}")
    for i in range(4): a(f"v_mov_b32 v{TMP+i}, 0")
    a(f"ds_write_b128 v{vT}, v[{TMP}:{TMP+3}]")
    a(f"ds_write_b128 v{vT}, v[{TMP}:{TMP+3}] offset:{LFL2-LFL}")
    a("s_waitcnt vmcnt(0)")
    a(f"v_readfirstlane_b32 s{sTag}, v{vTag}")
    a.label("A_lnb")
    a("s_waitcnt lgkmcnt(0)")
    a("s_barrier")
    a(f"v_lshlrev_b32 v{vT}, 2, v{vN}")
    a(f"ds_read_b32 v{vR}, v{vT} offset:{RBUF}")
    st.mark("LN")
    def ensure_tag(lab):
        a(f"s_cmp_lg_u32 s{sTag}, 0")
        a(f"s_cbranch_scc1 {lab}_have")
        get_tag(a, vT, lab)
        a.label(f"{lab}_have")
    L_kvp, L_exp, L_bar1 = "A_kvp", "A_exp", "A_bar1"
    a(f"s_cmp_ge_u32 s{sW}, 5")
    a(f"s_cbranch_scc1 {L_kvp}")
    a(f"s_cmp_eq_u32 s{sW}, 4")
    a(f"s_cbranch_scc1 A_job4")
    if OPT.get("noq"): a(f"s_branch {L_bar1}")
    def pipe_gemm(nsteps, wr, rd, need_vm, refill, cin0):
        for k in range(5):
            if k < nsteps:
                need_vm(k, -5 + k)
                wr(k)
            if 0 <= k - 2 < nsteps: rd(k - 2)
        for s_ in range(nsteps):
            n_ops = 0
            if s_ + 5 < nsteps:
                need_vm(s_ + 5, s_)
                wr(s_ + 5)
            if s_ + 3 < nsteps: rd(s_ + 3)
            for t in range(s_ + 1, s_ + 4):
                if t + 2 < nsteps: n_ops += 1
                if t < nsteps: n_ops += 3
            a(f"s_waitcnt lgkmcnt({n_ops})")
            f = FB + 8*(s_ % 4)
            cin = cin0 if s_ == 0 else vr(ACC, 16)
            a(f"v_mfma_f32_32x32x16_bf16 {vr(ACC,16)}, {vr(f,4)}, {vr(f+4,4)}, {cin}")
            refill(s_)
    def q_wr(k): a(f"ds_write_b128 v{vWst}, {vr(WS_+4*(k % DEPTH),4)} offset:{(k % NSTG)*1024}")
    def q_rd(k):
        f = FB + 8*(k % 4)
        a(f"ds_read_b64_tr_b16 v[{f}:{f+1}], v{vTr} offset:{(k % NSTG)*1024}")
        a(f"ds_read_b64_tr_b16 v[{f+2}:{f+3}], v{vTr2} offset:{(k % NSTG)*1024}")
        a(f"ds_read_b128 {vr(f+4,4)}, v{vXa} offset:{XB + k*XP}")
    def q_vm(k, s_now):
        issued = DEPTH + max(0, min(s_now, 40 - DEPTH + QOFF) - QOFF) if s_now > 0 else DEPTH
        issued = min(issued, 40)
        a(f"s_waitcnt vmcnt({issued - 1 - k})")
    QOFF = 0
    def q_refill(s_):
        if s_ + DEPTH < 40: wload(s_ + DEPTH)
    pipe_gemm(40, q_wr, q_rd, q_vm, q_refill, "0")
    st.mark("gemm")
    a.nop(12)
    a(f"v_mul_f32 v{vT}, {f32bits(QSCALE)}, v{vR}")
    for j in range(16): a(f"v_mul_f32 v{ACC+j}, v{ACC+j}, v{vT}")
    for k in range(8): a(f"v_cvt_pk_bf16_f32 v{TMP+k}, v{ACC+2*k}, v{ACC+2*k+1}")
    a(f"s_branch {L_bar1}")

    JW = WS_ + 20
    def job_loads():
        srd(a, R_B, S_WQ, S_WQ+1, 640*640*2)
        a(f"v_lshrrev_b32 v{vT}, 2, v{vLane}")
        a(f"v_mul_u32_u24 v{vT}, 1280, v{vT}")
        a(f"v_and_b32 v{vT+1}, 3, v{vLane}")
        a(f"v_lshl_add_u32 v{vT}, v{vT+1}, 4, v{vT}")
        a(f"s_mul_i32 s{sT}, s{sCG}, 320")
        a(f"s_add_u32 s{sT}, s{sT}, 256")
        a(f"v_add_u32 v{vT}, s{sT}, v{vT}")
        a(f"s_sub_u32 s{sT}, s{sW}, 4")
        a(f"s_mul_i32 s{sT}, s{sT}, 10")
        a(f"s_mul_i32 s{sT2}, s{sRho}, 5")
        a(f"s_add_u32 s{sT}, s{sT}, s{sT2}")
        a(f"s_cmp_ge_u32 s{sT}, 40")
        a(f"s_cselect_b32 s{sT2}, 40, 0")
        a(f"s_sub_u32 s{sT}, s{sT}, s{sT2}")
        a(f"s_mul_i32 s{sSoff}, s{sT}, 20480")
        for k in range(10):
            a(f"s_add_u32 s{sT}, s{sSoff}, 20480")
            a(f"buffer_load_dwordx4 {vr(JW+4*k,4)}, v{vT}, s[{R_B}:{R_B+3}], s{sSoff} offen")
            a(f"s_cmp_eq_u32 s{sT}, {40*20480}")
            a(f"s_cselect_b32 s{sSoff}, 0, s{sT}")
    def job_run(raw, vm_after):
        tr_addr(a, vTr, vTr2, 64, 8, 4, sLds, vT)
        a(f"v_add_u32 v{vWst}, s{sLds}, v{vX16}")
        a(f"s_sub_u32 s{sT}, s{sW}, 4")
        a(f"s_mul_i32 s{sT}, s{sT}, {10*XP}")
        a(f"v_add_u32 v{vVo}, s{sT}, v{vXa}")
        def j_wr(k): a(f"ds_write_b128 v{vWst}, {vr(raw+4*k,4)} offset:{(k % NSTG)*1024}")
        def j_rd(k):
            f = FB + 8*(k % 4)
            a(f"ds_read_b64_tr_b16 v[{f}:{f+1}], v{vTr} offset:{(k % NSTG)*1024}")
            a(f"ds_read_b64_tr_b16 v[{f+2}:{f+3}], v{vTr2} offset:{(k % NSTG)*1024}")
            a(f"ds_read_b128 {vr(f+4,4)}, v{vVo} offset:{k*XP}")
        def j_vm(k, s_): a(f"s_waitcnt vmcnt({9 - k + vm_after})")
        pipe_gemm(10, j_wr, j_rd, j_vm, lambda s_: None, "0")
        a("s_waitcnt lgkmcnt(0)")
        a.nop(12)
    def job_publish():
        Lp5, Lpd = a.newlabel("A_jp5"), a.newlabel("A_jpd")
        a(f"s_cmp_eq_u32 s{sW}, 5")
        a(f"s_cbranch_scc1 {Lp5}")
        for q in range(3): a(f"ds_write_b128 v{vWst}, {vr(ACC+4*q,4)} offset:{q*1024}")
        a(f"s_sub_u32 s{sT}, s{sW}, 6")
        a(f"s_lshl_b32 s{sT}, s{sT}, 10")
        a(f"s_add_u32 s{sT}, s{sT}, {T4F}")
        a(f"v_add_u32 v{vT}, s{sT}, v{vX16}")
        a(f"ds_write_b128 v{vT}, {vr(ACC+12,4)}")
        a(f"s_branch {Lpd}")
        a.label(Lp5)
        a(f"v_add_u32 v{vT}, {KVX+4096}, v{vX16}")
        for q in range(4): a(f"ds_write_b128 v{vT}, {vr(ACC+4*q,4)} offset:{q*1024}")
        a.label(Lpd)
        a(f"s_sub_u32 s{sT}, s{sW}, 5")
        a(f"s_lshl_b32 s{sT}, s{sT}, 2")
        a(f"s_add_u32 s{sT}, s{sT}, {LFL2}")
        a(f"v_mov_b32 v{vT}, s{sT}")
        a(f"v_mov_b32 v{vT+1}, 1")
        a(f"ds_write_b32 v{vT}, v{vT+1}")
    a.label("A_job4")
    job_run(WS_, 0)
    a(f"v_mov_b32 v{vT}, {LFL2}")
    a(f"s_mov_b32 s{sT3}, {SPIN_MAX}")
    a.label("A_j4spin")
    a(f"ds_read_b96 v[{vT+2}:{vT+4}], v{vT}")
    a("s_waitcnt lgkmcnt(0)")
    a(f"v_and_b32 v{vT+2}, v{vT+2}, v{vT+3}")
    a(f"v_and_b32 v{vT+2}, v{vT+2}, v{vT+4}")
    a("s_nop 0")
    a(f"v_readfirstlane_b32 s{sT}, v{vT+2}")
    a(f"s_sub_u32 s{sT3}, s{sT3}, 1")
    a(f"s_cmp_eq_u32 s{sT3}, 0")
    a(f"s_cbranch_scc1 A_j4spin_done")
    a(f"s_cmp_eq_u32 s{sT}, 1")
    a(f"s_cbranch_scc0 A_j4spin")
    a.label("A_j4spin_done")
    a(f"v_add_u32 v{vT}, {KVX+4096}, v{vX16}")
    a(f"v_add_u32 v{vT+1}, {KSTG+3072}, v{vX16}")
    a(f"v_add_u32 v{vT+2}, {T4F}, v{vX16}")
    for q in range(4): a(f"ds_read_b128 {vr(64+4*q,4)}, v{vT} offset:{q*1024}")
    for p_ in range(2):
        for q in range(3): a(f"ds_read_b128 {vr(80+16*p_+4*q,4)}, v{vT+1} offset:{p_*3072 + q*1024}")
        a(f"ds_read_b128 {vr(80+16*p_+12,4)}, v{vT+2} offset:{p_*1024}")
    a("s_waitcnt lgkmcnt(0)")
    for j in range(16): a(f"v_add_f32 v{64+j}, v{64+j}, v{80+j}")
    for j in range(16): a(f"v_add_f32 v{ACC+j}, v{ACC+j}, v{96+j}")
    for j in range(16): a(f"v_add_f32 v{ACC+j}, v{ACC+j}, v{64+j}")
    st.mark("job4")
    a(f"v_mul_f32 v{vT}, {f32bits(QSCALE)}, v{vR}")
    for j in range(16): a(f"v_mul_f32 v{ACC+j}, v{ACC+j}, v{vT}")
    for k in range(8): a(f"v_cvt_pk_bf16_f32 v{TMP+k}, v{ACC+2*k}, v{ACC+2*k+1}")
    a(f"s_branch {L_bar1}")
    def export_d():
        a(f"s_mul_i32 s{sT}, s{sCG}, 2")
        a(f"s_add_u32 s{sT}, s{sT}, s{sW}")
        a(f"s_sub_u32 s{sT}, s{sT}, 6")
        a(f"s_sub_u32 s{sT2}, s{sT}, s{sRho}")
        a(f"s_and_b32 s{sT2}, s{sT2}, 7")
        a(f"s_mul_i32 s{sT2}, s{sT2}, {5*XP}")
        a(f"v_add_u32 v{vT}, s{sT2}, v{vXa}")
        for i in range(5):
            a(f"ds_read_b128 {vr(X+4*i,4)}, v{vT} offset:{XB + XP*i}")
        a(f"s_mul_i32 s{sT2}, s{sRB}, 40")
        a(f"s_mul_i32 s{sExp}, s{sT}, 5")
        a(f"s_add_u32 s{sT2}, s{sT2}, s{sExp}")
        a(f"s_lshl_b32 s{sT2}, s{sT2}, 10")
        if WS_XF: a(f"s_add_u32 s{sT2}, s{sT2}, {WS_XF}")
        a(f"s_lshl_b32 s{sFD}, s{sRB}, 3")
        a(f"s_add_u32 s{sFD}, s{sFD}, s{sT}")
        a(f"v_add_u32 v{vT+1}, 4096, v{vX16}")
        a("s_waitcnt lgkmcnt(0)")
        for i in range(4):
            a(f"buffer_store_dwordx4 {vr(X+4*i,4)}, v{vX16}, s[{R_WS}:{R_WS+3}], s{sT2} offen offset:{1024*i} sc1")
        a(f"buffer_store_dwordx4 {vr(X+16,4)}, v{vT+1}, s[{R_WS}:{R_WS+3}], s{sT2} offen sc1")
        L_nor = "A_nor"
        a(f"s_cmp_lg_u32 s{sT}, 0")
        a(f"s_cbranch_scc1 {L_nor}")
        a(f"s_lshl_b32 s{sT2}, s{sRB}, 7")
        a(f"s_add_u32 s{sT2}, s{sT2}, {WS_R}")
        a(f"v_lshlrev_b32 v{vT}, 2, v{vN}")
        a(f"buffer_store_dword v{vR}, v{vT}, s[{R_WS}:{R_WS+3}], s{sT2} offen sc1")
        a.label(L_nor)
    a.label(L_kvp)
    a("s_setprio 3")
    if OPT.get("expfirst", 0):
        a(f"s_cmp_lt_u32 s{sW}, 6")
        a(f"s_cbranch_scc1 A_noexp")
        export_d()
        a.label("A_noexp")
    a(f"s_cmp_ge_u32 s{sCG}, 2")
    a(f"s_cbranch_scc1 A_kvp_skip")
    a(f"s_sub_u32 s{sT}, s{sW}, 5")
    a(f"s_mul_i32 s{sLds}, s{sT}, 3072")
    a(f"s_add_u32 s{sLds}, s{sLds}, {KSTG}")
    tr_addr(a, vTr, vTr2, 40, 8, 4, sLds, vT)
    a(f"v_add_u32 v{vWst}, s{sLds}, v{vX16}")
    a(f"s_mul_i32 s{sT}, s{sStep}, {XP}")
    a(f"v_add_u32 v{vVo}, s{sT}, v{vXa}")
    a(f"v_add_u32 v{vT+4}, {13*XP}, v{vVo}")
    a(f"s_cmp_eq_u32 s{sW}, 5")
    a(f"s_cbranch_scc1 A_kv13")
    for i in range(4): a(f"v_mov_b32 v{WS_+52+i}, 0")
    a(f"v_mov_b32 v{vT+4}, v{vXa}")
    a.label("A_kv13")
    def k_wr(k): a(f"ds_write_b128 v{vWst}, {vr(WS_+4*k,4)} offset:{(k % NSTG)*1024}")
    def k_rd(k):
        f = FB + 8*(k % 4)
        a(f"ds_read_b64_tr_b16 v[{f}:{f+1}], v{vTr} offset:{(k % NSTG)*1024}")
        a(f"ds_read_b64_tr_b16 v[{f+2}:{f+3}], v{vTr2} offset:{(k % NSTG)*1024}")
        if k == 13: a(f"ds_read_b128 {vr(f+4,4)}, v{vT+4}")
        else: a(f"ds_read_b128 {vr(f+4,4)}, v{vVo} offset:{k*XP}")
    pipe_gemm(14, k_wr, k_rd, lambda k, s_: None, lambda s_: None, "0")
    a("s_waitcnt lgkmcnt(0)")
    job_loads()
    a(f"s_cmp_eq_u32 s{sW}, 5")
    a(f"s_cbranch_scc1 A_kv5")
    a(f"s_sub_u32 s{sT}, s{sW}, 6")
    a(f"s_lshl_b32 s{sT}, s{sT}, 12")
    a(f"s_add_u32 s{sT}, s{sT}, {KVX}")
    a(f"v_add_u32 v{vT}, s{sT}, v{vX16}")
    for q in range(4):
        a(f"ds_write_b128 v{vT}, {vr(ACC+4*q,4)} offset:{q*1024}")
    a(f"s_sub_u32 s{sT}, s{sW}, 6")
    a(f"s_lshl_b32 s{sT}, s{sT}, 2")
    a(f"s_add_u32 s{sT}, s{sT}, {LFL}")
    a(f"v_mov_b32 v{vT}, s{sT}")
    a(f"v_mov_b32 v{vT+1}, 1")
    a(f"ds_write_b32 v{vT}, v{vT+1}")
    a(f"s_branch A_kvp_done")
    a.label("A_kv5")
    a(f"v_mov_b32 v{vT}, {LFL}")
    a(f"s_mov_b32 s{sT3}, {SPIN_MAX}")
    a.label("A_kvspin")
    a(f"ds_read_b64 v[{vT+2}:{vT+3}], v{vT}")
    a("s_waitcnt lgkmcnt(0)")
    a(f"v_and_b32 v{vT+2}, v{vT+2}, v{vT+3}")
    a("s_nop 0")
    a(f"v_readfirstlane_b32 s{sT}, v{vT+2}")
    a(f"s_sub_u32 s{sT3}, s{sT3}, 1")
    a(f"s_cmp_eq_u32 s{sT3}, 0")
    a(f"s_cbranch_scc1 A_kvspin_done")
    a(f"s_cmp_eq_u32 s{sT}, 1")
    a(f"s_cbranch_scc0 A_kvspin")
    a.label("A_kvspin_done")
    a(f"v_add_u32 v{vT}, {KVX}, v{vX16}")
    for p_ in range(2):
        for q in range(4):
            a(f"ds_read_b128 {vr(FB+16*p_+4*q,4)}, v{vT} offset:{p_*4096 + q*1024}")
    a("s_waitcnt lgkmcnt(0)")
    for j in range(16):
        a(f"v_add_f32 v{FB+j}, v{FB+j}, v{FB+16+j}")
    for j in range(16):
        a(f"v_add_f32 v{ACC+j}, v{ACC+j}, v{FB+j}")
    for j in range(16): a(f"v_mul_f32 v{ACC+j}, v{ACC+j}, v{vR}")
    a(f"v_cmp_eq_u32 vcc, 1, v{vH}")
    a(f"v_mov_b32 v{vT}, 1.0")
    a(f"v_mov_b32 v{vT+1}, 0")
    a(f"v_cndmask_b32 v{ACC+8}, v{ACC+8}, v{vT}, vcc")
    for j in range(9, 12): a(f"v_cndmask_b32 v{ACC+j}, v{ACC+j}, v{vT+1}, vcc")
    for j in range(12, 16): a(f"v_mov_b32 v{ACC+j}, 0")
    for k in range(8): a(f"v_cvt_pk_bf16_f32 v{TMP+k}, v{ACC+2*k}, v{ACC+2*k+1}")
    a(f"s_lshl_b32 s{sT}, s{sRB}, 12")
    a(f"s_add_u32 s{sT}, s{sT}, {WS_KV}")
    L_v = "A_v"; L_kvdone = "A_kvdone"
    a(f"s_cmp_eq_u32 s{sCG}, 1")
    a(f"s_cbranch_scc1 {L_v}")
    a(f"buffer_store_dwordx4 {vr(TMP,4)}, v{vX16}, s[{R_WS}:{R_WS+3}], s{sT} offen sc1")
    a(f"v_lshlrev_b32 v{vT}, 3, v{vLane}")
    a(f"buffer_store_dwordx2 v[{TMP+4}:{TMP+5}], v{vT}, s[{R_WS}:{R_WS+3}], s{sT} offen offset:1024 sc1")
    a(f"s_branch {L_kvdone}")
    a.label(L_v)
    a(f"s_mov_b32 s{sLds}, {KVX}")
    a(f"v_lshlrev_b32 v{vT}, 6, v{vN}")
    a(f"v_lshl_add_u32 v{vT}, v{vH}, 3, v{vT}")
    a(f"v_add_u32 v{vT}, s{sLds}, v{vT}")
    for q in range(4):
        a(f"ds_write_b64 v{vT}, v[{TMP+2*q}:{TMP+2*q+1}] offset:{16*q}")
    tr_addr(a, vTr, None, 64, 4, 8, sLds, vT+1)
    for u in range(2):
        a(f"ds_read_b64_tr_b16 v[{TMP+8+4*u}:{TMP+9+4*u}], v{vTr} offset:{u*1024}")
        a(f"ds_read_b64_tr_b16 v[{TMP+10+4*u}:{TMP+11+4*u}], v{vTr} offset:{u*1024 + 512}")
    a("s_waitcnt lgkmcnt(0)")
    a(f"buffer_store_dwordx4 {vr(TMP+8,4)}, v{vX16}, s[{R_WS}:{R_WS+3}], s{sT} offen offset:2048 sc1")
    a(f"buffer_store_dwordx4 {vr(TMP+12,4)}, v{vX16}, s[{R_WS}:{R_WS+3}], s{sT} offen offset:3072 sc1")
    a.label(L_kvdone)
    ensure_tag("A5")
    a("s_waitcnt vmcnt(0)")
    st.mark("k5:drain")
    a(f"s_lshl_b32 s{sT}, s{sRB}, 1")
    a(f"s_add_u32 s{sT}, s{sT}, s{sCG}")
    set_flag(a, vT, sT, FL_KV)
    a(f"s_mov_b32 s{sLds}, {KSTG}")
    job_run(JW, 1)
    job_publish()
    a(f"s_branch {L_bar1}")
    a.label("A_kvp_skip")
    job_loads()
    a(f"s_cmp_lg_u32 s{sW}, 5")
    a(f"s_cbranch_scc1 A_kvp_done")
    a(f"s_mov_b32 s{sLds}, {KSTG}")
    job_run(JW, 0)
    job_publish()
    a(f"s_branch {L_bar1}")
    a.label("A_kvp_done")
    if not OPT.get("expfirst", 0): export_d()
    ensure_tag("A6")
    a(f"s_waitcnt vmcnt({10 if OPT.get('expfirst', 0) else 0})")
    st.mark("x:drain")
    set_flag(a, vT, sFD, FL_D)
    a(f"s_sub_u32 s{sT}, s{sW}, 5")
    a(f"s_mul_i32 s{sLds}, s{sT}, 3072")
    a(f"s_add_u32 s{sLds}, s{sLds}, {KSTG}")
    job_run(JW, 1)
    job_publish()
    a.label(L_bar1)
    a("s_waitcnt vmcnt(0)")
    a.label("A_bar1_nowait")
    a("s_setprio 0")
    a("s_waitcnt lgkmcnt(0)")
    a("s_barrier")
    st.mark("bar0")
    vA16, vA8, vDma, vA16b, vA8b = vX16, 13, 14, 12, 111
    S = [16, 32]
    O = 48
    P = 96
    Q1, Q2 = 104, 108
    K1, K2 = 112, 116
    V1, V2 = 120, 124
    vM2 = 110
    sSoffK, sLdsW = 58, 59
    srd(a, R_A, S_WS, S_WS+1, 262144, WS_KV)
    a(f"s_lshl_b32 s{sLdsW}, s{sW}, 11")
    a(f"v_add_u32 v{vDma}, s{sLdsW}, v{vA16}")
    a(f"v_lshlrev_b32 v{vA8}, 3, v{vLane}")
    a(f"v_add_u32 v{vA16b}, 32768, v{vA16}")
    a(f"v_add_u32 v{vA8b}, 32768, v{vA8}")
    def dma_chunk(slot):
        a(f"s_add_u32 m0, s{sLdsW}, {SB[slot]}")
        a("s_nop 0")
        a(f"buffer_load_dwordx4 v{vDma}, s[{R_A}:{R_A+3}], s{sSoffK} offen sc1 lds")
        a(f"buffer_load_dwordx4 v{vDma}, s[{R_A}:{R_A+3}], s{sSoffK} offen offset:1024 sc1 lds")
        a(f"s_add_u32 s{sSoffK}, s{sSoffK}, 16384")
    L_noqw = "A_noqw"
    a(f"v_mul_u32_u24 v{vT}, {QP}, v{vN}")
    a(f"v_add_u32 v{vT}, {QBUF}, v{vT}")
    a(f"s_cmp_ge_u32 s{sW}, 5")
    a(f"s_cbranch_scc1 {L_noqw}")
    a(f"s_lshl_b32 s{sT}, s{sW}, 6")
    a(f"v_lshl_add_u32 v{vT+1}, v{vH}, 3, v{vT}")
    a(f"v_add_u32 v{vT+1}, s{sT}, v{vT+1}")
    for q in range(4):
        a(f"ds_write_b64 v{vT+1}, v[{TMP+2*q}:{TMP+2*q+1}] offset:{16*q}")
    a.label(L_noqw)
    a("s_waitcnt lgkmcnt(0)")
    a("s_barrier")
    a(f"s_mul_i32 s{sT}, s{sW}, 40")
    a(f"v_add_u32 v{vT}, s{sT}, v{vT}")
    a(f"v_lshl_add_u32 v{vT+1}, v{vH}, 3, v{vT}")
    a(f"ds_read_b64 v[{Q1}:{Q1+1}], v{vT+1}")
    a(f"ds_read_b64 v[{Q1+2}:{Q1+3}], v{vT+1} offset:16")
    a(f"ds_read_b64 v[{Q2}:{Q2+1}], v{vT} offset:32")
    a(f"s_cmp_lg_u32 s{sW}, 7")
    a(f"s_cbranch_scc1 A_nokvp")
    poll_flags(a, vT+2, "A7", None, 128, FL_KV, sleep=OPT.get("kvsleep", 1))
    st.mark("kvpoll")
    a.label("A_nokvp")
    a("s_barrier")
    st.mark("bar1")
    a(f"s_mov_b32 s{sSoffK}, 0")
    for c in (0, 1, 2): dma_chunk(c)
    def lds_addr(t, off, wide):
        base = SB[(t // 4) % 4] + (t % 4) * 4096 + off
        if base >= 32768: return (vA16b if wide else vA8b), base - 32768
        return (vA16 if wide else vA8), base
    def rd_K1(t): v_, o = lds_addr(t, 0, True); a(f"ds_read_b128 {vr(K1,4)}, v{v_} offset:{o}")
    def rd_K2(t): v_, o = lds_addr(t, 1024, False); a(f"ds_read_b64 {vr(K2,2)}, v{v_} offset:{o}")
    def rd_V1(t): v_, o = lds_addr(t, 2048, True); a(f"ds_read_b128 {vr(V1,4)}, v{v_} offset:{o}")
    def rd_V2(t): v_, o = lds_addr(t, 3072, True); a(f"ds_read_b128 {vr(V2,4)}, v{v_} offset:{o}")
    def qk1(dst): a(f"v_mfma_f32_32x32x16_bf16 {vr(dst,16)}, {vr(K1,4)}, {vr(Q1,4)}, 0")
    def qk2(dst): a(f"v_mfma_f32_32x32x8_bf16 {vr(dst,16)}, {vr(K2,2)}, {vr(Q2,2)}, {vr(dst,16)}")
    if OPT.get("nopre0"):
        a("s_waitcnt vmcnt(4)")
        a("s_barrier")
    rd_K1(0); rd_K2(0)
    for i in range(16): a(f"v_mov_b32 v{O+i}, 0")
    a(f"v_cmp_eq_u32 vcc, 1, v{vH}")
    a(f"v_mov_b32 v{vT}, 0")
    a("s_waitcnt lgkmcnt(0)")
    a(f"v_cndmask_b32 v{Q2}, v{Q2}, v{vT}, vcc")
    a(f"v_cndmask_b32 v{Q2+1}, v{Q2+1}, v{vT}, vcc")
    def set_m(delta):
        a(f"v_mov_b32 v{vT}, v{vM2}")
        a.nop(2)
        a(f"v_permlane32_swap_b32 v{vM2}, v{vT}")
        a.nop(1)
        a(f"v_max_f32 v{vM2}, v{vM2}, v{vT}")
        if delta: a(f"v_add_f32 v{vM2}, {f32bits(delta)}, v{vM2}")
        a(f"v_cvt_pk_bf16_f32 v{vT}, -v{vM2}, 0")
        a(f"v_cmp_eq_u32 vcc, 1, v{vH}")
        a.nop(2)
        a(f"v_cndmask_b32 v{Q2}, v{Q2}, v{vT}, vcc")
    a(f"v_mov_b32 v{vM2}, 0xff800000")
    a.nop(1)
    qk1(S[0]); qk2(S[0])
    rd_K1(1); rd_K2(1)
    a("s_waitcnt lgkmcnt(0)")
    qk1(S[1]); qk2(S[1])
    rd_K1(0); rd_K2(0)
    for i in range(4, 8): a(f"v_mov_b32 v{P+i}, 0")
    for i in range(4): a(f"v_mov_b32 v{V2+i}, 0")
    a.nop(4)
    for i in range(8):
        a(f"v_max3_f32 v{vM2}, v{S[0]+2*i}, v{S[0]+2*i+1}, v{vM2}")
    a.nop(4)
    for i in range(8):
        a(f"v_max3_f32 v{vM2}, v{S[1]+2*i}, v{S[1]+2*i+1}, v{vM2}")
    set_m(DELTA)
    a("s_waitcnt lgkmcnt(0)")
    a.nop(1)
    qk1(S[0]); qk2(S[0])
    rd_K1(1); rd_K2(1); rd_V1(0)
    a.nop(12)
    st.mark("sample")
    a(f"s_setprio {OPT.get('aprio', 0)}")
    a(f"s_mov_b32 s{sIt}, 0")
    L_loop = "A_loop"
    a(".p2align 6")
    a.label(L_loop)
    def e(cur, i): a(f"v_exp_f32 v{cur+i}, v{cur+i}")
    def p(cur, k): a(f"v_cvt_pk_bf16_f32 v{P+k}, v{cur+2*k}, v{cur+2*k+1}")
    for t in range(16):
        cur, nxt = S[t % 2], S[(t+1) % 2]
        if t % 4 == 2:
            a("s_waitcnt vmcnt(2)")
            a("s_barrier")
            dma_chunk((t // 4 + 3) % 4)
        e(cur, 0); e(cur, 1)
        a("s_waitcnt lgkmcnt(2)")
        a(f"v_mfma_f32_32x32x16_bf16 {vr(O,16)}, {vr(V2,4)}, {vr(P+4,4)}, {vr(O,16)}")
        rd_V2(t)
        e(cur, 2); e(cur, 3); p(cur, 0); p(cur, 1)
        qk1(nxt)
        rd_K1(t+2)
        e(cur, 4); e(cur, 5); e(cur, 6); e(cur, 7); p(cur, 2); p(cur, 3)
        a("s_waitcnt lgkmcnt(2)")
        qk2(nxt)
        rd_K2(t+2)
        e(cur, 8); e(cur, 9); e(cur, 10); e(cur, 11); p(cur, 4); p(cur, 5)
        a(f"v_mfma_f32_32x32x16_bf16 {vr(O,16)}, {vr(V1,4)}, {vr(P,4)}, {vr(O,16)}")
        rd_V1(t+1)
        e(cur, 12); e(cur, 13); e(cur, 14); e(cur, 15); p(cur, 6); p(cur, 7)
    a(f"s_add_u32 s{sIt}, s{sIt}, 1")
    a(f"s_cmp_lt_u32 s{sIt}, 4")
    a(f"s_cbranch_scc1 {L_loop}")
    a("s_waitcnt lgkmcnt(0)")
    a(f"v_mfma_f32_32x32x16_bf16 {vr(O,16)}, {vr(V2,4)}, {vr(P+4,4)}, {vr(O,16)}")
    a("s_setprio 0")
    st.mark("loop")
    a.nop(16)
    L_fin, L_slow = "A_fin", "A_slow"
    a(f"s_mov_b32 s{sIt}, 0")
    a.label(L_fin)
    a(f"v_mov_b32 v{vT}, v{O+8}")
    a(f"v_mov_b32 v{vT+1}, v{O+8}")
    a.nop(2)
    a(f"v_permlane32_swap_b32 v{vT}, v{vT+1}")
    a(f"v_max3_f32 v{vT+2}, |v{O}|, |v{O+1}|, |v{O+2}|")
    for j in range(3, 12, 2):
        j2 = min(j+1, 11)
        a(f"v_max3_f32 v{vT+2}, |v{O+j}|, |v{O+j2}|, v{vT+2}")
    a(f"v_mov_b32 v{vT+3}, {f32bits(2.0**120)}")
    a(f"v_cmp_nlt_f32 vcc, v{vT+2}, v{vT+3}")
    a(f"v_cmp_nlt_f32 s[62:63], 0, v{vT+1}")
    a.nop(1)
    a(f"s_or_b64 vcc, vcc, s[62:63]")
    a(f"s_cmp_eq_u64 vcc, 0")
    a(f"s_cbranch_scc1 A_store")
    a(f"s_cmp_lg_u32 s{sIt}, 0")
    a(f"s_cbranch_scc1 A_store")
    a(f"s_branch {L_slow}")
    a.label("A_store")
    a(f"v_rcp_f32 v{vT+2}, v{vT+1}")
    a.nop(1)
    for j in range(12): a(f"v_mul_f32 v{O+j}, v{O+j}, v{vT+2}")
    for k in range(6): a(f"v_cvt_pk_bf16_f32 v{P+k}, v{O+2*k}, v{O+2*k+1}")
    a(f"s_lshl_b32 s{sT}, s{sCG}, 3")
    a(f"s_add_u32 s{sT}, s{sT}, s{sW}")
    a(f"s_mul_i32 s{sT}, s{sT}, 20")
    a(f"s_mul_i32 s{sT2}, s{sRB}, {40*1024}")
    a(f"s_add_u32 s{sT2}, s{sT2}, {WS_OF}")
    def oaddr(dst, colv):
        a(f"v_lshrrev_b32 v{dst}, 4, v{colv}")
        a(f"v_lshlrev_b32 v{dst}, 10, v{dst}")
        a(f"v_bfe_u32 v{vT+7}, v{colv}, 3, 1")
        a(f"v_lshl_add_u32 v{dst}, v{vT+7}, 9, v{dst}")
        a(f"v_and_b32 v{vT+7}, 7, v{colv}")
        a(f"v_lshl_add_u32 v{dst}, v{vT+7}, 1, v{dst}")
        a(f"v_lshl_add_u32 v{dst}, v{vN}, 4, v{dst}")
    a(f"v_lshlrev_b32 v{vT+3}, 2, v{vH}")
    a(f"v_add_u32 v{vT+3}, s{sT}, v{vT+3}")
    oaddr(vT+4, vT+3)
    a(f"buffer_store_dwordx2 v[{P}:{P+1}], v{vT+4}, s[{R_WS}:{R_WS+3}], s{sT2} offen sc1")
    a(f"v_add_u32 v{vT+3}, 8, v{vT+3}")
    oaddr(vT+5, vT+3)
    a(f"buffer_store_dwordx2 v[{P+2}:{P+3}], v{vT+5}, s[{R_WS}:{R_WS+3}], s{sT2} offen sc1")
    a(f"s_add_u32 s{sT}, s{sT}, 16")
    a(f"v_mov_b32 v{vT+3}, s{sT}")
    oaddr(vT+6, vT+3)
    a(f"v_cmp_eq_u32 vcc, 0, v{vH}")
    a(f"s_and_saveexec_b64 s[62:63], vcc")
    a(f"buffer_store_dwordx2 v[{P+4}:{P+5}], v{vT+6}, s[{R_WS}:{R_WS+3}], s{sT2} offen sc1")
    a(f"s_mov_b64 exec, s[62:63]")
    a(f"s_cmp_lg_u32 s{sTag}, 0")
    a(f"s_cbranch_scc1 A_ohave")
    get_tag(a, vT, "A8")
    a.label("A_ohave")
    a("s_waitcnt vmcnt(0)")
    a(f"s_lshl_b32 s{sT}, s{sRB}, 2")
    a(f"s_add_u32 s{sT}, s{sT}, s{sCG}")
    a(f"s_lshl_b32 s{sT}, s{sT}, 3")
    a(f"s_add_u32 s{sT}, s{sT}, s{sW}")
    set_flag(a, vT, sT, FL_O)
    st.end()
    a("s_endpgm")
    a.label(L_slow)
    a(f"v_cmp_eq_u32 vcc, 1, v{vH}")
    a(f"v_mov_b32 v{vT}, 0")
    a(f"v_mov_b32 v{vM2}, 0xff800000")
    a(f"v_cndmask_b32 v{Q2}, v{Q2}, v{vT}, vcc")
    a(f"s_mov_b32 s{sSoffK}, 0")
    a.label("A_slow1")
    a(f"buffer_load_dwordx4 {vr(K1,4)}, v{vA16}, s[{R_A}:{R_A+3}], s{sSoffK} offen sc1")
    a(f"buffer_load_dwordx2 {vr(K2,2)}, v{vA8}, s[{R_A}:{R_A+3}], s{sSoffK} offen offset:1024 sc1")
    a("s_waitcnt vmcnt(0)")
    qk1(S[0]); qk2(S[0])
    a.nop(16)
    for i in range(8):
        a(f"v_max3_f32 v{vM2}, v{S[0]+2*i}, v{S[0]+2*i+1}, v{vM2}")
    a(f"s_add_u32 s{sSoffK}, s{sSoffK}, 4096")
    a(f"s_cmp_lt_u32 s{sSoffK}, 262144")
    a(f"s_cbranch_scc1 A_slow1")
    set_m(0.0)
    for i in range(16): a(f"v_mov_b32 v{O+i}, 0")
    a(f"s_mov_b32 s{sSoffK}, 0")
    a.label("A_slow2")
    a(f"buffer_load_dwordx4 {vr(K1,4)}, v{vA16}, s[{R_A}:{R_A+3}], s{sSoffK} offen sc1")
    a(f"buffer_load_dwordx2 {vr(K2,2)}, v{vA8}, s[{R_A}:{R_A+3}], s{sSoffK} offen offset:1024 sc1")
    a(f"buffer_load_dwordx4 {vr(V1,4)}, v{vA16}, s[{R_A}:{R_A+3}], s{sSoffK} offen offset:2048 sc1")
    a(f"buffer_load_dwordx4 {vr(V2,4)}, v{vA16}, s[{R_A}:{R_A+3}], s{sSoffK} offen offset:3072 sc1")
    a("s_waitcnt vmcnt(0)")
    qk1(S[0]); qk2(S[0])
    a.nop(16)
    for i in range(16): e(S[0], i)
    a.nop(1)
    for k in range(8): p(S[0], k)
    a.nop(2)
    a(f"v_mfma_f32_32x32x16_bf16 {vr(O,16)}, {vr(V1,4)}, {vr(P,4)}, {vr(O,16)}")
    a(f"v_mfma_f32_32x32x16_bf16 {vr(O,16)}, {vr(V2,4)}, {vr(P+4,4)}, {vr(O,16)}")
    a(f"s_add_u32 s{sSoffK}, s{sSoffK}, 4096")
    a(f"s_cmp_lt_u32 s{sSoffK}, 262144")
    a(f"s_cbranch_scc1 A_slow2")
    a.nop(16)
    a(f"s_mov_b32 s{sIt}, 1")
    a(f"s_branch {L_fin}")

def role_B1(a):
    st = Stamps(a, "B1")
    st.start()
    if OPT.get("bprio"): a(f"s_setprio {OPT['bprio']}")
    sG, sC = sRB, sCG
    sSoffW, sSoffX, sLdsW, sKH, sXb = 57, 58, 59, 60, 99
    vT = 4; vW = 10; vTr, vX16, vR = 13, 14, 15
    XS = 16; WF = 48; ACC = 76
    SLOT = 24576
    a(f"s_sub_u32 s{sT2}, s2, 256")
    a(f"s_and_b32 s{sG}, s{sT2}, 7")
    a(f"s_lshl_b32 s{sG}, s{sG}, 1")
    a(f"s_bfe_u32 s{sT}, s{sT2}, 0x10003")
    a(f"s_add_u32 s{sG}, s{sG}, s{sT}")
    a(f"s_lshr_b32 s{sC}, s{sT2}, 4")
    a(f"s_lshr_b32 s{sKH}, s{sW}, 2")
    a(f"v_lshlrev_b32 v{vX16}, 4, v{vLane}")
    a(f"s_and_b32 s{sT}, s{sW}, 3")
    a(f"s_mul_i32 s{sT}, s{sT}, 192")
    a(f"s_mul_i32 s{sT2}, s{sC}, 192")
    a(f"s_mul_i32 s{sT3}, s{sKH}, {320*3072}")
    a(f"s_add_u32 s{sT2}, s{sT2}, s{sT3}")
    for i in range(3):
        a(f"v_add_u32 v{vT}, s{sT}, v{vLane}")
        if i: a(f"v_add_u32 v{vT}, {64*i}, v{vT}")
        a(f"v_mul_u32_u24 v{vT+1}, 5462, v{vT}")
        a(f"v_lshrrev_b32 v{vT+1}, 16, v{vT+1}")
        a(f"v_mul_u32_u24 v{vT+2}, 12, v{vT+1}")
        a(f"v_sub_u32 v{vT}, v{vT}, v{vT+2}")
        a(f"v_lshlrev_b32 v{vT}, 4, v{vT}")
        a(f"v_mul_u32_u24 v{vT+1}, 3072, v{vT+1}")
        a(f"v_add3_u32 v{vW+i}, v{vT}, v{vT+1}, s{sT2}")
        if i: a(f"v_subrev_u32 v{vW+i}, {1024*i}, v{vW+i}")
    a(f"s_mul_i32 s{sT}, s{sKH}, 12288")
    tr_addr(a, vTr, None, 192, 8, 4, sT, vT)
    a(f"s_mul_i32 s{sLdsW}, s{sW}, 3072")
    srd(a, R_A, S_W1, S_W1+1, 640*1536*2)
    srd(a, R_B, S_B1, S_B1+1, 1536*2)
    a(f"s_mul_hi_u32 s{sT}, s{sC}, {(1<<32)//5 + 1}")
    a(f"s_mul_i32 s{sT}, s{sT}, 5")
    a(f"s_sub_u32 s{sT}, s{sC}, s{sT}")
    a(f"s_mul_i32 s{sSoffW}, s{sT}, {64*3072}")
    a(f"s_lshl_b32 s{sSoffX}, s{sT}, 12")
    a(f"s_and_b32 s{sT}, s{sW}, 3")
    a(f"s_lshl_b32 s{sT2}, s{sG}, 2")
    a(f"s_add_u32 s{sT}, s{sT}, s{sT2}")
    a(f"s_mul_i32 s{sXb}, s{sT}, {40*1024}")
    a(f"s_mul_i32 s{sT2}, s{sKH}, {20*1024}")
    a(f"s_add_u32 s{sXb}, s{sXb}, s{sT2}")
    if WS_XF: a(f"s_add_u32 s{sXb}, s{sXb}, {WS_XF}")
    def issueW(c):
        a(f"s_add_u32 m0, s{sLdsW}, {(c%3)*SLOT}")
        a(f"s_add_u32 s{sT}, s{sSoffW}, {64*3072}")
        for i in range(3):
            a(f"buffer_load_dwordx4 v{vW+i}, s[{R_A}:{R_A+3}], s{sSoffW} offen offset:{1024*i} lds")
        a(f"s_cmp_eq_u32 s{sT}, {320*3072}")
        a(f"s_cselect_b32 s{sSoffW}, 0, s{sT}")
    def issueX(c):
        xs = XS + 16*(c % 2)
        a(f"s_add_u32 s{sT2}, s{sXb}, s{sSoffX}")
        a(f"s_add_u32 s{sT}, s{sSoffX}, 4096")
        for i in range(4):
            a(f"buffer_load_dwordx4 {vr(xs+4*i,4)}, v{vX16}, s[{R_WS}:{R_WS+3}], s{sT2} offen offset:{1024*i} sc1")
        a(f"s_cmp_eq_u32 s{sT}, 20480")
        a(f"s_cselect_b32 s{sSoffX}, 0, s{sT}")
    a(f"s_cmp_lg_u32 s{sW}, 0")
    a(f"s_cbranch_scc1 B1_pre")
    get_tag(a, vT, "B1")
    a(f"s_lshl_b32 s{sT}, s{sG}, 5")
    if OPT.get("wftries", 1): poll_flags(a, vT, "B1p", sT, 32, FL_D, tries=OPT.get("wftries", 1))
    a.label("B1_pre")
    a("s_barrier")
    st.mark("prepoll")
    sJ = 96
    a(f"s_sub_u32 s{sJ}, s2, 256")
    srd(a, R_C, S_W2, S_W2+1, 1536*640*2)
    vF = 16
    a(f"v_lshrrev_b32 v32, 2, v{vLane}")
    a(f"v_mul_u32_u24 v32, 1280, v32")
    a(f"v_and_b32 v33, 3, v{vLane}")
    a(f"v_lshl_add_u32 v32, v33, 4, v32")
    a(f"s_lshl_b32 s{sT}, s{sW}, 11")
    a(f"v_add_u32 v33, s{sT}, v{vX16}")
    tr_addr(a, 34, None, 64, 4, 8, sT, vT)
    tr_addr(a, 35, None, 64, 8, 4, sT, vT)
    sDst = [92, 93]; sStp = [94, 95]
    for rnd in range(2):
        Lskip = f"B1_wf{rnd}_skip"
        a(f"s_mov_b32 s{sStp[rnd]}, -1")
        if rnd == 1:
            a(f"s_cmp_ge_u32 s{sW}, 3")
            a(f"s_cbranch_scc1 {Lskip}")
        a(f"s_and_b32 s{sT}, s{sJ}, 63")
        a(f"s_mul_i32 s{sT}, s{sT}, 11")
        a(f"s_add_u32 s{sT}, s{sT}, s{sW}")
        if rnd: a(f"s_add_u32 s{sT}, s{sT}, 8")
        a(f"s_cmp_ge_u32 s{sT}, 680")
        a(f"s_cbranch_scc1 {Lskip}")
        a(f"s_mul_hi_u32 s{sT2}, s{sT}, {(1<<32)//136 + 1}")
        a(f"s_mul_i32 s{sT3}, s{sT2}, 136")
        a(f"s_sub_u32 s{sT}, s{sT}, s{sT3}")
        a(f"s_mov_b32 s{sStp[rnd]}, s{sT}")
        a(f"s_lshr_b32 s{sT3}, s{sJ}, 6")
        a(f"s_mul_i32 s{sT3}, s{sT3}, 5")
        a(f"s_add_u32 s{sT2}, s{sT2}, s{sT3}")
        a(f"s_mul_i32 s62, s{sT2}, 136")
        a(f"s_add_u32 s62, s62, s{sT}")
        a(f"s_lshl_b32 s62, s62, 10")
        a(f"s_add_u32 s{sDst[rnd]}, s62, {WS_WF}")
        a(f"s_lshl_b32 s{sT2}, s{sT2}, 6")
        a(f"s_cmp_lt_u32 s{sT}, 96")
        a(f"s_cselect_b32 s{R_C}, s{S_W2}, s{S_WO}")
        a(f"s_cselect_b32 s{R_C+1}, s{S_W2+1}, s{S_WO+1}")
        a(f"s_cselect_b32 s63, 0, 96")
        a(f"s_mov_b32 s{R_C+2}, {640*640*2}")
        a(f"s_cbranch_scc0 B1_wf{rnd}_a")
        a(f"s_mov_b32 s{R_C+2}, {1536*640*2}")
        a.label(f"B1_wf{rnd}_a")
        a(f"s_sub_u32 s{sT3}, s{sT}, s63")
        a(f"s_mul_i32 s{sT3}, s{sT3}, {16*1280}")
        a(f"s_add_u32 s{sT3}, s{sT3}, s{sT2}")
        a(f"buffer_load_dwordx4 v[{16+4*rnd}:{19+4*rnd}], v32, s[{R_C}:{R_C+3}], s{sT3} offen")
        a.label(Lskip)
    a("s_waitcnt vmcnt(0)")
    for rnd in range(2):
        Lskip = f"B1_wg{rnd}_skip"
        a(f"s_cmp_eq_u32 s{sStp[rnd]}, -1")
        a(f"s_cbranch_scc1 {Lskip}")
        a(f"ds_write_b128 v33, v[{16+4*rnd}:{19+4*rnd}] offset:{1024*rnd}")
        a(f"s_cmp_lt_u32 s{sStp[rnd]}, 96")
        a(f"s_cbranch_scc0 B1_wf{rnd}_n")
        a(f"ds_read_b64_tr_b16 v[{24+4*rnd}:{25+4*rnd}], v34 offset:{1024*rnd}")
        a(f"ds_read_b64_tr_b16 v[{26+4*rnd}:{27+4*rnd}], v34 offset:{1024*rnd+512}")
        a(f"s_branch B1_wf{rnd}_s")
        a.label(f"B1_wf{rnd}_n")
        a(f"ds_read_b64_tr_b16 v[{24+4*rnd}:{25+4*rnd}], v35 offset:{1024*rnd}")
        a(f"ds_read_b64_tr_b16 v[{26+4*rnd}:{27+4*rnd}], v35 offset:{1024*rnd+256}")
        a.label(f"B1_wf{rnd}_s")
        a("s_waitcnt lgkmcnt(0)")
        a(f"buffer_store_dwordx4 v[{24+4*rnd}:{27+4*rnd}], v{vX16}, s[{R_WS}:{R_WS+3}], s{sDst[rnd]} offen sc1")
        a.label(Lskip)
    st.mark("wfprep")
    L_np = "B1_np"
    a(f"s_cmp_lg_u32 s{sW}, 0")
    a(f"s_cbranch_scc1 {L_np}")
    a(f"s_lshl_b32 s{sT}, s{sG}, 5")
    poll_flags(a, vT, "B1", sT, 32, FL_D)
    if OPT.get("b1kv"): poll_flags(a, vT, "B1k", None, 128, FL_KV)
    a.label(L_np)
    a("s_barrier")
    st.mark("wait_d")
    issued = []
    def iX(c): issueX(c); issued.extend([("X", c)]*4)
    def iW(c): issueW(c); issued.extend([("W", c)]*3)
    if OPT.get("b1shallow", 1):
        iW(0); iX(0)
    else:
        iW(0); iX(0)
        a("s_barrier")
        iW(1); iX(1)
        a("s_barrier")
        iW(2)
    def wreads(c, k, buf):
        base = (c % 3)*SLOT + k*16*192
        for ct in range(3):
            a(f"ds_read_b64_tr_b16 v[{WF+12*buf+4*ct}:{WF+12*buf+4*ct+1}], v{vTr} offset:{base + ct*64}")
            a(f"ds_read_b64_tr_b16 v[{WF+12*buf+4*ct+2}:{WF+12*buf+4*ct+3}], v{vTr} offset:{base + ct*64 + 4*192}")
    for c in range(5):
        last = max(i for i, e_ in enumerate(issued) if e_ in (("W", c), ("X", c)))
        a(f"s_waitcnt vmcnt({len(issued) - 1 - last})")
        a("s_barrier")
        if c == 0:
            st.mark("b0")
            a(f"s_cmp_lg_u32 s{sW}, 0")
            a(f"s_cbranch_scc1 B1_nofw")
            set_flag(a, vT, sJ, FL_W)
            a.label("B1_nofw")
        if OPT.get("b1shallow", 1):
            if c + 1 < 5: iW(c + 1); iX(c + 1)
        elif 1 <= c <= 2: iW(c + 2)
        xs = XS + 16*(c % 2)
        wreads(c, 0, 0)
        for k in range(4):
            buf = k % 2
            if k < 3:
                wreads(c, k + 1, 1 - buf)
                a("s_waitcnt lgkmcnt(6)")
            else:
                a("s_waitcnt lgkmcnt(0)")
            for ct in range(3):
                cin = "0" if (c == 0 and k == 0) else vr(ACC+16*ct,16)
                a(f"v_mfma_f32_32x32x16_bf16 {vr(ACC+16*ct,16)}, {vr(WF+12*buf+4*ct,4)}, {vr(xs+4*k,4)}, {cin}")
        if c + 2 < 5 and not OPT.get("b1shallow", 1): iX(c + 2)
    st.mark("kloop")
    a("s_setprio 3")
    a(f"s_and_b32 s{sT}, s{sW}, 3")
    a(f"s_lshl_b32 s{sT2}, s{sG}, 2")
    a(f"s_add_u32 s{sT}, s{sT}, s{sT2}")
    a(f"s_lshl_b32 s{sT2}, s{sT}, 7")
    a(f"s_add_u32 s{sT2}, s{sT2}, {WS_R}")
    a(f"v_lshlrev_b32 v{vT}, 2, v{vN}")
    a(f"buffer_load_dword v{vR}, v{vT}, s[{R_WS}:{R_WS+3}], s{sT2} offen sc1")
    a(f"s_mul_i32 s{sT2}, s{sC}, 192")
    a(f"s_lshl_b32 s{sT3}, s{sKH}, 5")
    a(f"s_add_u32 s{sT2}, s{sT2}, s{sT3}")
    a(f"v_lshlrev_b32 v{vT}, 3, v{vH}")
    B = XS
    for ct in range(3):
        for q in range(2):
            a(f"buffer_load_dwordx2 v[{B+4*ct+2*q}:{B+4*ct+2*q+1}], v{vT}, s[{R_B}:{R_B+3}], s{sT2} offen offset:{64*ct+16*q}")
    a(f"s_mul_i32 s{sT}, s{sT}, 96")
    a(f"s_mul_i32 s{sT2}, s{sC}, 6")
    a(f"s_add_u32 s{sT}, s{sT}, s{sT2}")
    a(f"s_add_u32 s{sT}, s{sT}, s{sKH}")
    a(f"s_lshl_b32 s{sXb}, s{sT}, 10")
    a(f"s_add_u32 s{sXb}, s{sXb}, {WS_H}")
    a("s_barrier")
    a.nop(4)
    T = XS + 16
    a(f"s_mul_i32 s{sT}, s{sW}, 6144")
    a(f"v_add_u32 v{vT+1}, s{sT}, v{vX16}")
    a(f"s_xor_b32 s{sT}, s{sW}, 4")
    a(f"s_mul_i32 s{sT}, s{sT}, 6144")
    a(f"v_add_u32 v{vT+2}, s{sT}, v{vX16}")
    a(f"s_cmp_eq_u32 s{sKH}, 1")
    a(f"s_cbranch_scc1 B1_x1")
    for ct in range(3):
        for q in range(2):
            a(f"ds_write_b128 v{vT+1}, {vr(ACC+16*ct+8+4*q,4)} offset:{(2*ct+q)*1024}")
    a(f"s_branch B1_x2")
    a.label("B1_x1")
    for ct in range(3):
        for q in range(2):
            a(f"ds_write_b128 v{vT+1}, {vr(ACC+16*ct+4*q,4)} offset:{(2*ct+q)*1024}")
    a.label("B1_x2")
    a("s_waitcnt lgkmcnt(0)")
    a("s_barrier")
    for i in range(6):
        a(f"ds_read_b128 {vr(T+4*i,4)}, v{vT+2} offset:{i*1024}")
    a("s_waitcnt lgkmcnt(0) vmcnt(0)")
    a(f"s_cmp_eq_u32 s{sKH}, 1")
    a(f"s_cbranch_scc1 B1_y1")
    for ct in range(3):
        for j in range(8): a(f"v_add_f32 v{T+8*ct+j}, v{T+8*ct+j}, v{ACC+16*ct+j}")
    a(f"s_branch B1_y2")
    a.label("B1_y1")
    for ct in range(3):
        for j in range(8): a(f"v_add_f32 v{T+8*ct+j}, v{T+8*ct+j}, v{ACC+16*ct+8+j}")
    a.label("B1_y2")
    TB = 56
    for ct in range(3):
        for q in range(2):
            b0 = B+4*ct+2*q
            acc = T+8*ct+4*q
            a(f"v_lshlrev_b32 v{TB}, 16, v{b0}")
            a(f"v_and_b32 v{TB+1}, 0xffff0000, v{b0}")
            a(f"v_lshlrev_b32 v{TB+2}, 16, v{b0+1}")
            a(f"v_and_b32 v{TB+3}, 0xffff0000, v{b0+1}")
            for j in range(4): a(f"v_fma_f32 v{acc+j}, v{acc+j}, v{vR}, v{TB+j}")
            for j in range(4): a(f"v_max_f32 v{acc+j}, 0, v{acc+j}")
            for j in range(4): a(f"v_mul_f32 v{acc+j}, v{acc+j}, v{acc+j}")
        for k in range(4):
            a(f"v_cvt_pk_bf16_f32 v{60+4*ct+k}, v{T+8*ct+2*k}, v{T+8*ct+2*k+1}")
    a(f"v_add_u32 v{vT}, 4096, v{vX16}")
    a(f"buffer_store_dwordx4 {vr(60,4)}, v{vX16}, s[{R_WS}:{R_WS+3}], s{sXb} offen sc1")
    a(f"buffer_store_dwordx4 {vr(64,4)}, v{vX16}, s[{R_WS}:{R_WS+3}], s{sXb} offen offset:2048 sc1")
    a(f"buffer_store_dwordx4 {vr(68,4)}, v{vT}, s[{R_WS}:{R_WS+3}], s{sXb} offen sc1")
    a("s_waitcnt vmcnt(0)")
    a("s_barrier")
    L_nf = "B1_nf"
    a(f"s_cmp_lg_u32 s{sW}, 0")
    a(f"s_cbranch_scc1 {L_nf}")
    a(f"s_lshl_b32 s{sT}, s{sG}, 4")
    a(f"s_add_u32 s{sT}, s{sT}, s{sC}")
    set_flag(a, vT, sT, FL_H)
    a.label(L_nf)
    st.mark("epi")
    st.end()
    a("s_endpgm")

def role_B2(a):
    st = Stamps(a, "B2")
    st.start()
    if OPT.get("bprio"): a(f"s_setprio {OPT['bprio']}")
    sSoffW, sSoffX, sWb, sIt, sRho, sWrapW, sRst = 57, 58, 59, 60, 61, 98, 99
    vT = 4
    vX16, vXa = 14, 15
    ACC = 16
    XR = 48
    WB = 64
    vOut = vT+3
    NXS = 8
    a(f"s_sub_u32 s{sT2}, s2, 512")
    decode_rb_cg(a, sT2)
    a(f"v_lshlrev_b32 v{vX16}, 4, v{vLane}")
    a(f"s_and_b32 s{sRho}, s{sRB}, 7")
    a(f"s_min_u32 s{sT3}, s{sW}, 4")
    a(f"s_mul_i32 s{sT}, s{sCG}, 5")
    a(f"s_add_u32 s{sT}, s{sT}, s{sT3}")
    a(f"s_mul_i32 s{sWb}, s{sT}, {136*1024}")
    a(f"s_add_u32 s{sWb}, s{sWb}, {WS_WF}")
    a(f"s_lshl_b32 s{sT}, s{sT}, 6")
    srd(a, R_C, S_X, S_X+1, NX)
    a(f"s_lshl_b32 s{sT2}, s{sRB}, 5")
    a(f"v_add_u32 v{vT}, s{sT2}, v{vN}")
    a(f"v_mul_u32_u24 v{vT}, 1280, v{vT}")
    a(f"v_lshl_add_u32 v{vT}, v{vH}, 3, v{vT}")
    a(f"v_add_u32 v{vOut}, s{sT}, v{vT}")
    for q in range(4):
        a(f"buffer_load_dwordx2 v[{XR+2*q}:{XR+2*q+1}], v{vOut}, s[{R_C}:{R_C+3}], 0 offen offset:{16*q}")
    srd(a, R_C, S_B2, S_B2+1, 640*2)
    a(f"v_lshlrev_b32 v{vT}, 3, v{vH}")
    for q in range(4):
        a(f"buffer_load_dwordx2 v[{XR+8+2*q}:{XR+8+2*q+1}], v{vT}, s[{R_C}:{R_C+3}], s{sT} offen offset:{16*q}")
    for i in range(16): a(f"v_mov_b32 v{ACC+i}, 0")
    def unpack_add(q, dst):
        for (src, t) in ((XR+2*q, 32), (XR+8+2*q, 36)):
            a(f"v_lshlrev_b32 v{t}, 16, v{src}")
            a(f"v_and_b32 v{t+1}, 0xffff0000, v{src}")
            a(f"v_lshlrev_b32 v{t+2}, 16, v{src+1}")
            a(f"v_and_b32 v{t+3}, 0xffff0000, v{src+1}")
        for j in range(4): a(f"v_add_f32 v{32+j}, v{32+j}, v{36+j}")
        for j in range(4): a(f"v_add_f32 v{dst+j}, v{dst+j}, v{32+j}")
    L_side = "B2_side"
    a(f"s_cmp_ge_u32 s{sW}, 4")
    a(f"s_cbranch_scc1 {L_side}")
    a("s_barrier")
    a(f"s_lshl_b32 s{sSoffW}, s{sRho}, 13")
    a(f"s_mov_b32 s{sWrapW}, {96*1024}")
    a(f"s_mov_b32 s{sRst}, 0")
    def wload(r):
        a(f"s_add_u32 s{sT2}, s{sWb}, s{sSoffW}")
        a(f"s_add_u32 s{sT}, s{sSoffW}, 1024")
        a(f"buffer_load_dwordx4 {vr(r,4)}, v{vX16}, s[{R_WS}:{R_WS+3}], s{sT2} offen sc1")
        a(f"s_cmp_eq_u32 s{sT}, s{sWrapW}")
        a(f"s_cselect_b32 s{sSoffW}, s{sRst}, s{sT}")
    for k in range(16): wload(WB + 4*k)
    st.mark("setup")
    a(f"s_mov_b32 s{sIt}, 0")
    L1 = "B2_p1"
    a.label(L1)
    XBUF = 32
    for j in range(16):
        k = j % 8
        if k == 0:
            a("s_barrier")
            a(f"s_lshl_b32 s{sT}, s{sIt}, 1")
            if j: a(f"s_add_u32 s{sT}, s{sT}, 1")
            a(f"s_and_b32 s{sT}, s{sT}, {NXS-1}")
            a(f"s_lshl_b32 s{sT}, s{sT}, 13")
            a(f"v_add_u32 v{vXa}, s{sT}, v{vX16}")
            for i in range(3):
                a(f"ds_read_b128 {vr(XBUF+4*i,4)}, v{vXa} offset:{i*1024}")
        if j == 0:
            L1n = "B2_p1n"
            a(f"s_cmp_lg_u32 s{sIt}, 5")
            a(f"s_cbranch_scc1 {L1n}")
            a(f"s_mul_i32 s{sSoffW}, s{sRho}, {5*1024}")
            a(f"s_add_u32 s{sSoffW}, s{sSoffW}, {96*1024}")
            a(f"s_mov_b32 s{sWrapW}, {136*1024}")
            a(f"s_mov_b32 s{sRst}, {96*1024}")
            a.label(L1n)
        if k + 3 < 8:
            a(f"ds_read_b128 {vr(XBUF+4*((k+3)%4),4)}, v{vXa} offset:{(k+3)*1024}")
            a("s_waitcnt vmcnt(15) lgkmcnt(3)")
        else:
            a(f"s_waitcnt vmcnt(15) lgkmcnt({7-k})")
        a(f"v_mfma_f32_32x32x16_bf16 {vr(ACC,16)}, {vr(WB+4*j,4)}, {vr(XBUF+4*(k%4),4)}, {vr(ACC,16)}")
        wload(WB + 4*j)
    a(f"s_add_u32 s{sIt}, s{sIt}, 1")
    a(f"s_cmp_lt_u32 s{sIt}, 6")
    a(f"s_cbranch_scc1 {L1}")
    st.mark("ffn2")
    a.nop(12)
    for q in range(4): unpack_add(q, ACC+4*q)
    XBUF = XR
    NBLK = 20
    def blk(s_):
        b = s_ % NBLK
        return (WB + 4*b) if b < 16 else (32 + 4*(b-16))
    for s_ in range(16, 20): wload(blk(s_))
    a("s_barrier")
    a(f"s_branch B2_oload")
    a.label(L_side)
    a(f"s_cmp_lt_u32 s{sW}, 6")
    a(f"s_cbranch_scc1 B2_np0")
    get_tag(a, vT, "B2")
    a(f"s_cmp_eq_u32 s{sW}, 7")
    a(f"s_cbranch_scc1 B2_ph")
    a(f"s_lshl_b32 s{sT}, s{sCG}, 6")
    poll_flags(a, vT, "B2w", sT, 64, FL_W)
    a(f"s_branch B2_np0")
    a.label("B2_ph")
    a(f"s_lshr_b32 s{sT}, s{sRB}, 2")
    a(f"s_lshl_b32 s{sT}, s{sT}, 4")
    poll_flags(a, vT, "B2h", sT, 16, FL_H)
    a.label("B2_np0")
    a("s_barrier")
    a(f"s_sub_u32 s{sT3}, s{sW}, 4")
    a("s_waitcnt vmcnt(0)")
    for jj in range(1, 4):
        Ls = a.newlabel("B2_q")
        a(f"s_cmp_lg_u32 s{sT3}, {jj}")
        a(f"s_cbranch_scc1 {Ls}")
        a(f"v_mov_b32 v{XR}, v{XR+2*jj}")
        a(f"v_mov_b32 v{XR+1}, v{XR+2*jj+1}")
        a(f"v_mov_b32 v{XR+8}, v{XR+8+2*jj}")
        a(f"v_mov_b32 v{XR+9}, v{XR+8+2*jj+1}")
        a.label(Ls)
    for j in range(4): a(f"v_mov_b32 v{40+j}, 0")
    unpack_add(0, 40)
    a(f"s_lshl_b32 s{sRst}, s{sT3}, 11")
    a(f"s_lshl_b32 s{sSoffW}, s{sRho}, 13")
    a(f"s_add_u32 s{sSoffW}, s{sSoffW}, s{sRst}")
    a(f"s_add_u32 s{sWrapW}, s{sRst}, {96*1024}")
    SD = 4
    def wpair(slot):
        a(f"s_add_u32 s{sT2}, s{sWb}, s{sSoffW}")
        a(f"s_add_u32 s{sT}, s{sSoffW}, 8192")
        a(f"buffer_load_dwordx4 {vr(WB+8*slot,4)}, v{vX16}, s[{R_WS}:{R_WS+3}], s{sT2} offen sc1")
        a(f"buffer_load_dwordx4 {vr(WB+8*slot+4,4)}, v{vX16}, s[{R_WS}:{R_WS+3}], s{sT2} offen offset:1024 sc1")
        a(f"s_cmp_eq_u32 s{sT}, s{sWrapW}")
        a(f"s_cselect_b32 s{sSoffW}, s{sRst}, s{sT}")
    for c in range(SD): wpair(c)
    a(f"s_sub_u32 s{sT3}, s{sW}, 4")
    a(f"s_mul_i32 s{sT}, s{sRB}, {96*1024}")
    a(f"s_add_u32 s63, s{sT}, {WS_H}")
    a(f"s_lshl_b32 s97, s{sT3}, 11")
    a(f"s_add_u32 s63, s63, s97")
    a(f"s_lshl_b32 s{sSoffX}, s{sRho}, 13")
    a(f"v_add_u32 v{vT+5}, s97, v{vX16}")
    vXs = vT+5
    vm = Cnt(a, "vmcnt", 63)
    def xdma(c):
        a(f"s_add_u32 m0, s97, {(c % NXS)*8192}")
        a(f"s_add_u32 s{sT2}, s63, s{sSoffX}")
        a(f"s_add_u32 s{sT}, s{sSoffX}, 8192")
        for i in range(2):
            a(f"buffer_load_dwordx4 v{vX16}, s[{R_WS}:{R_WS+3}], s{sT2} offen offset:{1024*i} sc1 lds")
        a(f"s_cmp_eq_u32 s{sT}, {96*1024}")
        a(f"s_cselect_b32 s{sSoffX}, 0, s{sT}")
        vm.issue(("X", c), 2)
    for c in range(SD): vm.issue(("W", c), 2)
    XD = 6
    for c in range(XD): xdma(c)
    for c in range(12):
        vm.need(("X", c), ("W", c))
        a("s_barrier")
        if c + XD < 12: xdma(c + XD)
        for i in range(2):
            a(f"ds_read_b128 {vr(48+4*i,4)}, v{vXs} offset:{(c % NXS)*8192 + 1024*i}")
        a("s_waitcnt lgkmcnt(1)")
        a(f"v_mfma_f32_32x32x16_bf16 {vr(ACC,16)}, {vr(WB+8*(c%4),4)}, {vr(48,4)}, {vr(ACC,16)}")
        a("s_waitcnt lgkmcnt(0)")
        a(f"v_mfma_f32_32x32x16_bf16 {vr(ACC,16)}, {vr(WB+8*(c%4)+4,4)}, {vr(52,4)}, {vr(ACC,16)}")
        if c + SD < 12: wpair(c % 4); vm.issue(("W", c + SD), 2)
    a(f"s_sub_u32 s{sT3}, s{sW}, 4")
    a(f"s_lshl_b32 s{sT3}, s{sT3}, 1")
    a(f"s_mul_i32 s62, s{sRho}, 5")
    a(f"s_add_u32 s62, s62, s{sT3}")
    for m in range(5):
        for i in range(2):
            a(f"s_add_u32 s{sT}, s62, {8*m+i}")
            a(f"s_cmp_ge_u32 s{sT}, 40")
            a(f"s_cselect_b32 s{sT2}, 40, 0")
            a(f"s_sub_u32 s{sT}, s{sT}, s{sT2}")
            a(f"s_add_u32 s{sT}, s{sT}, 96")
            a(f"s_lshl_b32 s{sT}, s{sT}, 10")
            a(f"s_add_u32 s{sT}, s{sT}, s{sWb}")
            a(f"buffer_load_dwordx4 {vr(WB+4*(2*m+i),4)}, v{vX16}, s[{R_WS}:{R_WS+3}], s{sT} offen sc1")
    Lnp2 = "B2_np2"
    a(f"s_cmp_lg_u32 s{sW}, 7")
    a(f"s_cbranch_scc1 {Lnp2}")
    a(f"s_lshl_b32 s{sT}, s{sRB}, 5")
    poll_flags(a, vT, "B2o", sT, 32, FL_O, sleep=OPT.get("osleep", 2))
    a.label(Lnp2)
    st.mark("wait_o")
    a("s_barrier")
    a.label("B2_oload")
    a(f"s_mul_i32 s63, s{sRB}, {40*1024}")
    a(f"s_add_u32 s63, s63, {WS_OF}")
    a(f"s_mul_i32 s62, s{sRho}, 5")
    for i in range(5):
        a(f"s_mul_i32 s{sT}, s{sW}, 5")
        a(f"s_add_u32 s{sT}, s{sT}, {i}")
        a(f"s_add_u32 s{sT2}, s{sT}, s62")
        a(f"s_cmp_ge_u32 s{sT2}, 40")
        a(f"s_cselect_b32 s{sIt}, 40, 0")
        a(f"s_sub_u32 s{sT2}, s{sT2}, s{sIt}")
        a(f"s_lshl_b32 s{sT2}, s{sT2}, 10")
        a(f"s_add_u32 s{sT2}, s{sT2}, s63")
        a(f"s_lshl_b32 m0, s{sT}, 10")
        a("s_nop 0")
        a(f"buffer_load_dwordx4 v{vX16}, s[{R_WS}:{R_WS+3}], s{sT2} offen sc1 lds")
    a("s_waitcnt vmcnt(0)")
    a("s_barrier")
    st.mark("oload")
    a(f"s_cmp_ge_u32 s{sW}, 4")
    a(f"s_cbranch_scc1 B2_side2")
    vm = Cnt(a, "vmcnt", 63); lg = Cnt(a, "lgkmcnt", 15)
    def xread(s_):
        r = XBUF + 4*(s_ % 4)
        a(f"ds_read_b128 {vr(r,4)}, v{vX16} offset:{s_*1024}")
        lg.issue(("X", s_))
    for s_ in range(3): xread(s_)
    for s_ in range(40):
        if s_ + 3 < 40: xread(s_ + 3)
        vm.need(("W", s_))
        lg.need(("X", s_))
        a(f"v_mfma_f32_32x32x16_bf16 {vr(ACC,16)}, {vr(blk(s_),4)}, {vr(XBUF+4*(s_%4),4)}, {vr(ACC,16)}")
        if s_ + NBLK < 40:
            wload(blk(s_)); vm.issue(("W", s_ + NBLK))
    st.mark("wo")
    a("s_setprio 3")
    a("s_barrier")
    a.nop(10)
    srd(a, R_C, S_OUT, S_OUT+1, NX)
    for q in range(4):
        a(f"v_cvt_pk_bf16_f32 v{32+2*q}, v{ACC+4*q}, v{ACC+4*q+1}")
        a(f"v_cvt_pk_bf16_f32 v{33+2*q}, v{ACC+4*q+2}, v{ACC+4*q+3}")
        a(f"buffer_store_dwordx2 v[{32+2*q}:{33+2*q}], v{vOut}, s[{R_C}:{R_C+3}], 0 offen offset:{16*q}")
    a("s_barrier")
    st.end()
    a("s_endpgm")
    a.label("B2_side2")
    for k in range(4):
        a(f"ds_read_b128 {vr(48+4*k,4)}, v{vXs} offset:{(8*(k//2)+(k%2))*1024}")
    for k in range(10):
        a(f"s_waitcnt lgkmcnt({min(3, 9-k)})")
        a(f"v_mfma_f32_32x32x16_bf16 {vr(ACC,16)}, {vr(WB+4*k,4)}, {vr(48+4*(k%4),4)}, {vr(ACC,16)}")
        if k + 4 < 10:
            a(f"ds_read_b128 {vr(48+4*(k%4),4)}, v{vXs} offset:{(8*((k+4)//2)+((k+4)%2))*1024}")
    a("s_setprio 3")
    a("s_barrier")
    a.nop(12)
    a(f"s_sub_u32 s{sT3}, s{sW}, 4")
    a(f"s_lshl_b32 s{sT}, s{sT3}, 12")
    a(f"v_add_u32 v{vT}, s{sT}, v{vX16}")
    for q in range(4):
        a(f"ds_write_b128 v{vT}, {vr(ACC+4*q,4)} offset:{q*1024}")
    a("s_waitcnt lgkmcnt(0)")
    a("s_barrier")
    a(f"s_lshl_b32 s{sT}, s{sT3}, 10")
    a(f"v_add_u32 v{vT}, s{sT}, v{vX16}")
    for jj in range(4):
        a(f"ds_read_b128 {vr(ACC+4*jj,4)}, v{vT} offset:{jj*4096}")
    a(f"s_lshl_b32 s{sT}, s{sT3}, 4")
    a(f"v_add_u32 v{vOut}, s{sT}, v{vOut}")
    srd(a, R_C, S_OUT, S_OUT+1, NX)
    a("s_waitcnt lgkmcnt(0)")
    for j in range(4):
        a(f"v_add_f32 v{ACC+j}, v{ACC+j}, v{ACC+4+j}")
        a(f"v_add_f32 v{ACC+8+j}, v{ACC+8+j}, v{ACC+12+j}")
    for j in range(4): a(f"v_add_f32 v{ACC+j}, v{ACC+j}, v{40+j}")
    for j in range(4): a(f"v_add_f32 v{ACC+j}, v{ACC+j}, v{ACC+8+j}")
    a(f"v_cvt_pk_bf16_f32 v32, v{ACC}, v{ACC+1}")
    a(f"v_cvt_pk_bf16_f32 v33, v{ACC+2}, v{ACC+3}")
    a(f"buffer_store_dwordx2 v[32:33], v{vOut}, s[{R_WS if False else R_C}:{R_C+3}], 0 offen")
    st.end()
    a("s_endpgm")

def gen():
    a = Asm()
    a("s_cmp_ge_u32 s2, 768")
    a("s_cbranch_scc1 K_end")
    a("s_load_dwordx16 s[4:19], s[0:1], 0")
    a("s_load_dwordx8 s[20:27], s[0:1], 64")
    a("s_load_dwordx2 s[28:29], s[0:1], 96")
    a(f"v_and_b32 v{vLane}, 63, v0")
    a(f"v_lshrrev_b32 v4, 6, v0")
    a(f"v_lshrrev_b32 v{vH}, 5, v{vLane}")
    a(f"v_readfirstlane_b32 s{sW}, v4")
    a(f"v_and_b32 v{vN}, 31, v{vLane}")
    a("s_waitcnt lgkmcnt(0)")
    srd(a, R_WS, S_WS, S_WS+1, WS_END)
    srd(a, R_FL, S_WS, S_WS+1, FL_SIZE, WS_FL)
    for r in (R_A, R_B, R_C): srd(a, r, S_WS, S_WS+1, WS_END)
    for i in range(4, 16): a(f"v_mov_b32 v{i}, 0")
    a("s_cmp_ge_u32 s2, 512")
    a("s_cbranch_scc1 ROLE_B2")
    a("s_cmp_ge_u32 s2, 256")
    a("s_cbranch_scc1 ROLE_B1")
    role_A(a)
    a.label("ROLE_B1")
    role_B1(a)
    a.label("ROLE_B2")
    role_B2(a)
    a.label("K_end")
    a("s_endpgm")
    grid = OPT.get("grid", 768)
    s = f"; generated by gen2.py\n; @launch grid=({grid},1,1) block=(512,1,1) lds={LDS_BYTES}\n"
    s += '.amdgcn_target "amdgcn-amd-amdhsa--gfx950"\n.text\n'
    s += kernel_header(KN) + a.text()
    s += '.section .rodata,"a"\n.p2align 6\n' + kernel_desc(KN, 128, 102)
    return s

if __name__ == "__main__":
    if "--prof" in sys.argv: PROF = True
    for x in sys.argv:
        if x.startswith("-D"):
            k, _, v = x[2:].partition("="); OPT[k] = int(v) if v else 1
    open(sys.argv[1], "w").write(gen())
    if PROF: json.dump(STAMP_NAMES, open("stamps5.json", "w"))
```

```python
import sys, math, json
from asmlib import *

NAME = "parallel_sum__grouped_kv_mqa__dense_activation_squared_relu__prompt"
KN = NAME + "_kernel"
WS_XF = 0x0
WS_R  = 0x280000
WS_KV = 0x290000
WS_OF = 0x2D0000
WS_H  = 0x550000
WS_FL = 0xB50000
WS_WF = 0xBC0000
WS_END = 0xE70000
WS_DBG = 0x2000000
FL_KV, FL_D, FL_H, FL_W, FL_O = 0, 128, 640, 896, 1152
FL_N = 3200
FL_SIZE = FL_N * 128
NX = 2048 * 640 * 2
TS = 2688
KVB = 64 * TS
CH = 8 * TS
QSCALE = (20 ** -0.5) * math.log2(math.e)
DELTA = 96.0
LDS_BYTES = 81920
PROF = False
OPT = {}
SPIN_MAX = 200000

S_X, S_WQ, S_WK, S_WV, S_WO, S_W1, S_B1, S_W2, S_B2, S_OUT, S_DBG, S_WS = 4, 6, 8, 10, 12, 16, 18, 20, 22, 24, 26, 28
sW = 30
sTag = 31
R_WS = 32
R_FL = 36
R_A = 40
R_B = 44
R_C = 48
sRB, sCG, sT, sT2, sT3 = 52, 53, 54, 55, 56
vLane, vH, vN = 1, 2, 3

class Stamps:
    def __init__(self, a, role): self.a = a; self.n = 1; self.names = []; self.role = role
    def start(self):
        if not PROF: return
        for i in range(68, 94): self.a(f"s_mov_b32 s{i}, 0")
        self.a("s_memrealtime s[64:65]"); self.a("s_memtime s[66:67]"); self.a("s_waitcnt lgkmcnt(0)"); self.n = 2
    def mark(self, name):
        if not PROF: return
        assert self.n < 15
        self.a(f"s_memtime s[{64+2*self.n}:{65+2*self.n}]"); self.a("s_waitcnt lgkmcnt(0)")
        self.n += 1; self.names.append(name)
    def end(self):
        if not PROF: return
        a = self.a
        a("s_waitcnt vmcnt(0)")
        self.mark("final-drain")
        a("s_memrealtime s[94:95]"); a("s_waitcnt lgkmcnt(0)")
        a("s_mov_b64 exec, 1")
        a(f"s_lshl_b32 s98, s2, 3")
        a(f"s_add_u32 s98, s98, s{sW}")
        a(f"s_lshl_b32 s98, s98, 6")
        a(f"s_add_u32 s98, s98, {WS_DBG}")
        a(f"s_add_u32 s96, s{S_WS}, s98")
        a(f"s_addc_u32 s97, s{S_WS+1}, 0")
        a(f"v_mov_b32 v0, 0")
        for i in list(range(14)) + [15]:
            a(f"v_mov_b32 v1, s{64+2*i}")
            a(f"global_store_dword v0, v1, s[96:97] offset:{4*i}")
        a(f"v_mov_b32 v1, {self.n}")
        a(f"global_store_dword v0, v1, s[96:97] offset:56")
        a("s_waitcnt vmcnt(0)")
        STAMP_NAMES[self.role] = self.names
STAMP_NAMES = {}

def bf16_round(a, dst, src):
    a(f"v_cvt_pk_bf16_f32 v{dst}, v{src}, v{src}")
    a(f"v_lshlrev_b32 v{dst}, 16, v{dst}")

def decode_rb_cg(a, j):
    a(f"s_lshr_b32 s{sCG}, s{j}, 6")
    a(f"s_and_b32 s{sRB}, s{j}, 7")
    a(f"s_lshl_b32 s{sRB}, s{sRB}, 3")
    a(f"s_bfe_u32 s{sT}, s{j}, 0x30003")
    a(f"s_add_u32 s{sRB}, s{sRB}, s{sT}")

def get_tag(a, vt, lab):
    L = f"{lab}_tag"
    a(f"s_mov_b32 s{sT3}, {SPIN_MAX}")
    a(f"v_mov_b32 v{vt}, 0")
    a.label(L)
    a(f"global_load_dword v{vt+1}, v{vt}, s[{S_DBG}:{S_DBG+1}] sc1")
    a("s_waitcnt vmcnt(0)")
    a(f"v_readfirstlane_b32 s{sTag}, v{vt+1}")
    a(f"s_sub_u32 s{sT3}, s{sT3}, 1")
    a(f"s_cmp_eq_u32 s{sT3}, 0")
    a(f"s_cbranch_scc1 {L}_done")
    a(f"s_cmp_eq_u32 s{sTag}, 0")
    a(f"s_cbranch_scc0 {L}_done")
    a("s_sleep 1")
    a(f"s_branch {L}")
    a.label(f"{L}_done")

def poll_flags(a, vt, lab, s_idx, nflags, region, tries=None, sleep=None):
    if nflags == 128:
        poll_flags(a, vt, lab + "a", None, 64, region, tries, sleep)
        poll_flags(a, vt, lab + "b", None, 64, region + 64, tries, sleep)
        return
    L = f"{lab}_poll"
    a(f"v_lshlrev_b32 v{vt}, 7, v{vLane}")
    if s_idx is None:
        a(f"s_mov_b32 s63, {region*128}")
    else:
        a(f"s_lshl_b32 s63, s{s_idx}, 7")
        if region: a(f"s_add_u32 s63, s63, {region*128}")
    a(f"s_mov_b32 s{sT3}, {tries or SPIN_MAX}")
    a("s_mov_b64 s[100:101], exec")
    if nflags < 64:
        a(f"s_mov_b32 exec_lo, {(1 << min(nflags, 32)) - 1 if nflags < 32 else -1}")
        a(f"s_mov_b32 exec_hi, {((1 << (nflags - 32)) - 1) if nflags > 32 else 0}")
    a.label(L)
    a(f"buffer_load_dword v{vt+1}, v{vt}, s[{R_FL}:{R_FL+3}], s63 offen sc1")
    a("s_waitcnt vmcnt(0)")
    a(f"v_cmp_ne_u32 vcc, s{sTag}, v{vt+1}")
    a("s_nop 1")
    a(f"s_and_b64 exec, exec, vcc")
    a(f"s_cbranch_execz {L}_done")
    a(f"s_sub_u32 s{sT3}, s{sT3}, 1")
    a(f"s_cmp_eq_u32 s{sT3}, 0")
    a(f"s_cbranch_scc1 {L}_done")
    a(f"s_sleep {sleep if sleep is not None else OPT.get('sleep', 6)}")
    a(f"s_branch {L}")
    a.label(f"{L}_done")
    a("s_mov_b64 exec, s[100:101]")

def set_flag(a, vt, s_idx, region):
    a(f"v_mov_b32 v{vt}, s{sTag}")
    a(f"v_mov_b32 v{vt+1}, 0")
    a(f"s_lshl_b32 s63, s{s_idx}, 7")
    if region: a(f"s_add_u32 s63, s63, {region*128}")
    a("s_mov_b64 s[100:101], exec")
    a("s_mov_b64 exec, 1")
    a(f"buffer_store_dword v{vt}, v{vt+1}, s[{R_FL}:{R_FL+3}], s63 offen sc1")
    a("s_mov_b64 exec, s[100:101]")

def tr_addr(a, dst, dst2, pitch, hrows, second_rows, s_base, t):
    a(f"v_bfe_u32 v{t}, v{vLane}, 2, 2")
    a(f"v_mul_u32_u24 v{t+1}, {hrows}, v{vH}")
    a(f"v_add_u32 v{t}, v{t}, v{t+1}")
    a(f"v_bfe_u32 v{t+1}, v{vLane}, 4, 1")
    a(f"v_and_b32 v{t+2}, 3, v{vLane}")
    a(f"v_lshlrev_b32 v{t+2}, 3, v{t+2}")
    a(f"v_lshl_add_u32 v{t+1}, v{t+1}, 5, v{t+2}")
    a(f"v_mul_u32_u24 v{dst}, {pitch}, v{t}")
    a(f"v_add3_u32 v{dst}, v{dst}, v{t+1}, s{s_base}")
    if dst2 is not None:
        a(f"v_add_u32 v{dst2}, {second_rows*pitch}, v{dst}")

def role_A(a):
    OPT["nopre0"] = 1
    st = Stamps(a, "A")
    st.start()
    XB = 0; XP = 1056; XH = 528; RBUF = 42240
    RING = 42496; NSTG = 3; RW = NSTG*1024; DEPTH = 16
    KSTG = 57856
    KVX = 67072
    LFL = XB + 512
    LFL2 = XB + 1040
    T4F = 75264
    SB = [0, 16384, 32768, 49152]
    QBUF = 65536; QP = 328
    sStep, sSoff, sLds, sRho, sWrap, sIt = 57, 58, 59, 60, 61, 57
    sExp, sFD = 95, 94
    vT = 4
    vVo, vTr, vTr2, vX16 = 12, 13, 14, 15
    X = 16
    TMP = 36
    vSum, vSq, vM = 52, 53, 54
    vOne, vSelLo, vSelHi = 56, 57, 58
    vR, vXa, vWst, vTag = 9, 10, 11, 61
    ACC = 16; FB = 32; WS_ = 64
    a(f"s_mov_b32 s{sT2}, s2")
    decode_rb_cg(a, sT2)
    L_notag = "A_notag"
    a(f"s_cmp_lg_u32 s2, 0")
    a(f"s_cbranch_scc1 {L_notag}")
    a(f"s_cmp_lg_u32 s{sW}, 0")
    a(f"s_cbranch_scc1 {L_notag}")
    a(f"s_memrealtime s[62:63]")
    a("s_waitcnt lgkmcnt(0)")
    a(f"s_or_b32 s62, s62, 1")
    a(f"v_mov_b32 v{vT}, s62")
    a(f"v_mov_b32 v{vT+1}, 0")
    a("s_mov_b64 exec, 1")
    a(f"global_store_dword v{vT+1}, v{vT}, s[{S_DBG}:{S_DBG+1}] sc1")
    a("s_mov_b64 exec, -1")
    a.label(L_notag)
    srd(a, R_A, S_X, S_X+1, NX)
    a(f"s_lshl_b32 s{sT}, s{sRB}, 5")
    a(f"s_lshl_b32 s{sT2}, s{sW}, 2")
    a(f"s_add_u32 s{sT}, s{sT}, s{sT2}")
    a(f"v_lshrrev_b32 v{vT}, 4, v{vLane}")
    a(f"v_add_u32 v{vT}, s{sT}, v{vT}")
    a(f"v_mul_u32_u24 v{vT}, 1280, v{vT}")
    a(f"v_and_b32 v{vT+1}, 15, v{vLane}")
    a(f"v_lshl_add_u32 v{vT}, v{vT+1}, 4, v{vT}")
    for i in range(5):
        a(f"buffer_load_dwordx4 {vr(X+4*i,4)}, v{vT}, s[{R_A}:{R_A+3}], 0 offen offset:{256*i}")
    a(f"v_lshlrev_b32 v{vX16}, 4, v{vLane}")
    a(f"s_and_b32 s{sRho}, s{sRB}, 7")
    L_nowe = "A_nowe"
    a(f"s_cmp_lt_u32 s{sW}, 5")
    a(f"s_cbranch_scc1 {L_nowe}")
    a(f"s_cmp_ge_u32 s{sCG}, 2")
    a(f"s_cbranch_scc1 {L_nowe}")
    a(f"s_cmp_eq_u32 s{sCG}, 1")
    a(f"s_cselect_b32 s{R_B}, s{S_WV}, s{S_WK}")
    a(f"s_cselect_b32 s{R_B+1}, s{S_WV+1}, s{S_WK+1}")
    a(f"s_mov_b32 s{R_B+2}, {640*20*2}")
    a(f"s_mov_b32 s{R_B+3}, 0x00020000")
    a(f"s_sub_u32 s{sT}, s{sW}, 5")
    a(f"s_mul_i32 s{sStep}, s{sT}, 13")
    a(f"s_min_u32 s{sT}, s{sT}, 1")
    a(f"s_add_u32 s{sStep}, s{sStep}, s{sT}")
    a(f"s_mul_i32 s{sT}, s{sRho}, 5")
    a(f"s_add_u32 s{sT2}, s{sStep}, s{sT}")
    a(f"s_cmp_ge_u32 s{sT2}, 40")
    a(f"s_cselect_b32 s{sT}, 40, 0")
    a(f"s_sub_u32 s{sT2}, s{sT2}, s{sT}")
    a(f"s_mul_i32 s{sSoff}, s{sT2}, 640")
    for i in range(14):
        a(f"s_add_u32 s{sT}, s{sSoff}, 640")
        a(f"buffer_load_dwordx4 {vr(WS_+4*i,4)}, v{vX16}, s[{R_B}:{R_B+3}], s{sSoff} offen")
        a(f"s_cmp_eq_u32 s{sT}, 25600")
        a(f"s_cselect_b32 s{sSoff}, 0, s{sT}")
    a.label(L_nowe)
    a("s_barrier")
    L_nq = "A_nq"
    a(f"s_cmp_ge_u32 s{sW}, 5")
    a(f"s_cbranch_scc1 {L_nq}")
    srd(a, R_B, S_WQ, S_WQ+1, 640*640*2)
    a(f"v_lshrrev_b32 v{vT}, 2, v{vLane}")
    a(f"v_mul_u32_u24 v{vT}, 1280, v{vT}")
    a(f"v_and_b32 v{vT+1}, 3, v{vLane}")
    a(f"v_lshl_add_u32 v{vT}, v{vT+1}, 4, v{vT}")
    a(f"s_mul_i32 s{sT}, s{sCG}, 320")
    a(f"s_lshl_b32 s{sT2}, s{sW}, 6")
    a(f"s_add_u32 s{sT}, s{sT}, s{sT2}")
    a(f"v_add_u32 v{vVo}, s{sT}, v{vT}")
    a(f"s_mul_i32 s{sLds}, s{sW}, {RW}")
    a(f"s_add_u32 s{sLds}, s{sLds}, {RING}")
    a(f"s_mul_i32 s{sSoff}, s{sRho}, {5*20480}")
    def wload(k):
        d = WS_ + 4*(k % DEPTH)
        a(f"s_add_u32 s{sT}, s{sSoff}, 20480")
        a(f"buffer_load_dwordx4 {vr(d,4)}, v{vVo}, s[{R_B}:{R_B+3}], s{sSoff} offen")
        a(f"s_cmp_eq_u32 s{sT}, {40*20480}")
        a(f"s_cselect_b32 s{sSoff}, 0, s{sT}")
    NW0 = OPT.get("NW0", 8)
    for k in range(NW0): wload(k)
    tr_addr(a, vTr, vTr2, 64, 8, 4, sLds, vT)
    a(f"v_add_u32 v{vWst}, s{sLds}, v{vX16}")
    a(f"s_waitcnt vmcnt({NW0})")
    a(f"s_mov_b32 s{sTag}, 0")
    a(f"s_branch A_xok")
    a.label(L_nq)
    a(f"s_waitcnt vmcnt(14)")
    a(f"s_cmp_lt_u32 s{sCG}, 2")
    a(f"s_cbranch_scc1 A_xok2")
    a(f"s_waitcnt vmcnt(0)")
    a.label("A_xok2")
    a(f"v_mov_b32 v{vT}, 0")
    a(f"global_load_dword v{vTag}, v{vT}, s[{S_DBG}:{S_DBG+1}] sc1")
    a.label("A_xok")
    st.mark("xwait")
    a(f"v_mov_b32 v{vOne}, 0x3f803f80")
    a(f"v_mov_b32 v{vSelLo}, 0x00003f80")
    a(f"v_mov_b32 v{vSelHi}, 0x3f800000")
    for i in range(4): a(f"v_mov_b32 v{TMP+i}, 0")
    for i in range(20):
        a(f"v_dot2c_f32_bf16 v{TMP+(i%2)}, v{X+i}, v{vOne}")
        a(f"v_dot2c_f32_bf16 v{TMP+2+(i%2)}, v{X+i}, v{X+i}")
    a(f"v_lshrrev_b32 v{vT}, 4, v{vLane}")
    a(f"s_lshl_b32 s{sT}, s{sW}, 2")
    a(f"v_add_u32 v{vT}, s{sT}, v{vT}")
    a(f"v_and_b32 v{vT+1}, 1, v{vLane}")
    a(f"v_mul_u32_u24 v{vT+1}, {XH}, v{vT+1}")
    a(f"v_lshl_add_u32 v{vT+1}, v{vT}, 4, v{vT+1}")
    a(f"v_add_f32 v{vSum}, v{TMP}, v{TMP+1}")
    a(f"v_add_f32 v{vSq}, v{TMP+2}, v{TMP+3}")
    a(f"v_bfe_u32 v{vT+2}, v{vLane}, 1, 3")
    a(f"s_mul_i32 s{sT}, s{sRho}, 5")
    a(f"s_sub_u32 s{sT}, 40, s{sT}")
    for ror in (8, 4, 2, 1):
        a(f"v_add_f32_dpp v{vSum}, v{vSum}, v{vSum} row_ror:{ror} row_mask:0xf bank_mask:0xf")
        a(f"v_add_f32_dpp v{vSq}, v{vSq}, v{vSq} row_ror:{ror} row_mask:0xf bank_mask:0xf")
        if ror != 1: a.nop(1)
    a(f"v_add_u32 v{vT+2}, s{sT}, v{vT+2}")
    inv = f32bits(1.0/640)
    a(f"v_mul_f32 v{vM}, {inv}, v{vSum}")
    a(f"v_mul_f32 v{TMP+1}, {inv}, v{vSq}")
    a(f"v_fma_f32 v{TMP+1}, -v{vM}, v{vM}, v{TMP+1}")
    a(f"v_max_f32 v{TMP+1}, 0, v{TMP+1}")
    bf16_round(a, TMP+1, TMP+1)
    bf16_round(a, vM, vM)
    a(f"v_add_f32 v{TMP+1}, {f32bits(1e-5)}, v{TMP+1}")
    a(f"v_sub_f32 v{vM}, 0, v{vM}")
    bf16_round(a, TMP+1, TMP+1)
    a(f"v_sqrt_f32 v{vSum}, v{TMP+1}")
    for base in range(0, 20, 8):
        g = min(8, 20-base)
        for i in range(g):
            a(f"v_dot2_f32_bf16 v{TMP+2*i}, v{X+base+i}, v{vSelLo}, v{vM}")
            a(f"v_dot2_f32_bf16 v{TMP+2*i+1}, v{X+base+i}, v{vSelHi}, v{vM}")
        if base == 0:
            bf16_round(a, vSum, vSum)
            a(f"v_rcp_f32 v{vR}, v{vSum}")
        else:
            a.nop(3)
        for i in range(g):
            a(f"v_cvt_pk_bf16_f32 v{X+base+i}, v{TMP+2*i}, v{TMP+2*i+1}")
    a(f"v_lshlrev_b32 v{vT+3}, 2, v{vT}")
    a(f"ds_write_b32 v{vT+3}, v{vR} offset:{RBUF}")
    for i in range(5):
        if i: a(f"v_add_u32 v{vT+2}, 8, v{vT+2}")
        a(f"v_subrev_u32 v{vT+3}, 40, v{vT+2}")
        a(f"v_min_u32 v{vT+3}, v{vT+3}, v{vT+2}")
        a(f"v_mul_u32_u24 v{vT+3}, {XP}, v{vT+3}")
        a(f"v_add_u32 v{vT+3}, v{vT+3}, v{vT+1}")
        a(f"ds_write_b128 v{vT+3}, {vr(X+4*i,4)} offset:{XB}")
    a(f"v_mul_u32_u24 v{vXa}, {XH}, v{vH}")
    a(f"v_lshl_add_u32 v{vXa}, v{vN}, 4, v{vXa}")
    a(f"s_cmp_ge_u32 s{sW}, 5")
    a(f"s_cbranch_scc1 A_ln5")
    for k in range(NW0, 10): wload(k)
    a(f"s_cmp_eq_u32 s{sW}, 4")
    a(f"s_cbranch_scc1 A_lnb")
    for k in range(10, DEPTH): wload(k)
    a(f"s_branch A_lnb")
    a.label("A_ln5")
    a(f"v_mov_b32 v{vT}, {LFL}")
    for i in range(4): a(f"v_mov_b32 v{TMP+i}, 0")
    a(f"ds_write_b128 v{vT}, v[{TMP}:{TMP+3}]")
    a(f"ds_write_b128 v{vT}, v[{TMP}:{TMP+3}] offset:{LFL2-LFL}")
    a("s_waitcnt vmcnt(0)")
    a(f"v_readfirstlane_b32 s{sTag}, v{vTag}")
    a.label("A_lnb")
    a("s_waitcnt lgkmcnt(0)")
    a("s_barrier")
    a(f"v_lshlrev_b32 v{vT}, 2, v{vN}")
    a(f"ds_read_b32 v{vR}, v{vT} offset:{RBUF}")
    st.mark("LN")
    def ensure_tag(lab):
        a(f"s_cmp_lg_u32 s{sTag}, 0")
        a(f"s_cbranch_scc1 {lab}_have")
        get_tag(a, vT, lab)
        a.label(f"{lab}_have")
    L_kvp, L_exp, L_bar1 = "A_kvp", "A_exp", "A_bar1"
    a(f"s_cmp_ge_u32 s{sW}, 5")
    a(f"s_cbranch_scc1 {L_kvp}")
    a(f"s_cmp_eq_u32 s{sW}, 4")
    a(f"s_cbranch_scc1 A_job4")
    if OPT.get("noq"): a(f"s_branch {L_bar1}")
    def pipe_gemm(nsteps, wr, rd, need_vm, refill, cin0):
        for k in range(5):
            if k < nsteps:
                need_vm(k, -5 + k)
                wr(k)
            if 0 <= k - 2 < nsteps: rd(k - 2)
        for s_ in range(nsteps):
            n_ops = 0
            if s_ + 5 < nsteps:
                need_vm(s_ + 5, s_)
                wr(s_ + 5)
            if s_ + 3 < nsteps: rd(s_ + 3)
            for t in range(s_ + 1, s_ + 4):
                if t + 2 < nsteps: n_ops += 1
                if t < nsteps: n_ops += 3
            a(f"s_waitcnt lgkmcnt({n_ops})")
            f = FB + 8*(s_ % 4)
            cin = cin0 if s_ == 0 else vr(ACC, 16)
            a(f"v_mfma_f32_32x32x16_bf16 {vr(ACC,16)}, {vr(f,4)}, {vr(f+4,4)}, {cin}")
            refill(s_)
    def q_wr(k): a(f"ds_write_b128 v{vWst}, {vr(WS_+4*(k % DEPTH),4)} offset:{(k % NSTG)*1024}")
    def q_rd(k):
        f = FB + 8*(k % 4)
        a(f"ds_read_b64_tr_b16 v[{f}:{f+1}], v{vTr} offset:{(k % NSTG)*1024}")
        a(f"ds_read_b64_tr_b16 v[{f+2}:{f+3}], v{vTr2} offset:{(k % NSTG)*1024}")
        a(f"ds_read_b128 {vr(f+4,4)}, v{vXa} offset:{XB + k*XP}")
    def q_vm(k, s_now):
        issued = DEPTH + max(0, min(s_now, 40 - DEPTH + QOFF) - QOFF) if s_now > 0 else DEPTH
        issued = min(issued, 40)
        a(f"s_waitcnt vmcnt({issued - 1 - k})")
    QOFF = 0
    def q_refill(s_):
        if s_ + DEPTH < 40: wload(s_ + DEPTH)
    pipe_gemm(40, q_wr, q_rd, q_vm, q_refill, "0")
    st.mark("gemm")
    a.nop(12)
    a(f"v_mul_f32 v{vT}, {f32bits(QSCALE)}, v{vR}")
    for j in range(16): a(f"v_mul_f32 v{ACC+j}, v{ACC+j}, v{vT}")
    for k in range(8): a(f"v_cvt_pk_bf16_f32 v{TMP+k}, v{ACC+2*k}, v{ACC+2*k+1}")
    a(f"s_branch {L_bar1}")

    JW = WS_ + 20
    def job_loads():
        srd(a, R_B, S_WQ, S_WQ+1, 640*640*2)
        a(f"v_lshrrev_b32 v{vT}, 2, v{vLane}")
        a(f"v_mul_u32_u24 v{vT}, 1280, v{vT}")
        a(f"v_and_b32 v{vT+1}, 3, v{vLane}")
        a(f"v_lshl_add_u32 v{vT}, v{vT+1}, 4, v{vT}")
        a(f"s_mul_i32 s{sT}, s{sCG}, 320")
        a(f"s_add_u32 s{sT}, s{sT}, 256")
        a(f"v_add_u32 v{vT}, s{sT}, v{vT}")
        a(f"s_sub_u32 s{sT}, s{sW}, 4")
        a(f"s_mul_i32 s{sT}, s{sT}, 10")
        a(f"s_mul_i32 s{sT2}, s{sRho}, 5")
        a(f"s_add_u32 s{sT}, s{sT}, s{sT2}")
        a(f"s_cmp_ge_u32 s{sT}, 40")
        a(f"s_cselect_b32 s{sT2}, 40, 0")
        a(f"s_sub_u32 s{sT}, s{sT}, s{sT2}")
        a(f"s_mul_i32 s{sSoff}, s{sT}, 20480")
        for k in range(10):
            a(f"s_add_u32 s{sT}, s{sSoff}, 20480")
            a(f"buffer_load_dwordx4 {vr(JW+4*k,4)}, v{vT}, s[{R_B}:{R_B+3}], s{sSoff} offen")
            a(f"s_cmp_eq_u32 s{sT}, {40*20480}")
            a(f"s_cselect_b32 s{sSoff}, 0, s{sT}")
    def job_run(raw, vm_after):
        tr_addr(a, vTr, vTr2, 64, 8, 4, sLds, vT)
        a(f"v_add_u32 v{vWst}, s{sLds}, v{vX16}")
        a(f"s_sub_u32 s{sT}, s{sW}, 4")
        a(f"s_mul_i32 s{sT}, s{sT}, {10*XP}")
        a(f"v_add_u32 v{vVo}, s{sT}, v{vXa}")
        def j_wr(k): a(f"ds_write_b128 v{vWst}, {vr(raw+4*k,4)} offset:{(k % NSTG)*1024}")
        def j_rd(k):
            f = FB + 8*(k % 4)
            a(f"ds_read_b64_tr_b16 v[{f}:{f+1}], v{vTr} offset:{(k % NSTG)*1024}")
            a(f"ds_read_b64_tr_b16 v[{f+2}:{f+3}], v{vTr2} offset:{(k % NSTG)*1024}")
            a(f"ds_read_b128 {vr(f+4,4)}, v{vVo} offset:{k*XP}")
        def j_vm(k, s_): a(f"s_waitcnt vmcnt({9 - k + vm_after})")
        pipe_gemm(10, j_wr, j_rd, j_vm, lambda s_: None, "0")
        a("s_waitcnt lgkmcnt(0)")
        a.nop(12)
    def job_publish():
        Lp5, Lpd = a.newlabel("A_jp5"), a.newlabel("A_jpd")
        a(f"s_cmp_eq_u32 s{sW}, 5")
        a(f"s_cbranch_scc1 {Lp5}")
        for q in range(3): a(f"ds_write_b128 v{vWst}, {vr(ACC+4*q,4)} offset:{q*1024}")
        a(f"s_sub_u32 s{sT}, s{sW}, 6")
        a(f"s_lshl_b32 s{sT}, s{sT}, 10")
        a(f"s_add_u32 s{sT}, s{sT}, {T4F}")
        a(f"v_add_u32 v{vT}, s{sT}, v{vX16}")
        a(f"ds_write_b128 v{vT}, {vr(ACC+12,4)}")
        a(f"s_branch {Lpd}")
        a.label(Lp5)
        a(f"v_add_u32 v{vT}, {KVX+4096}, v{vX16}")
        for q in range(4): a(f"ds_write_b128 v{vT}, {vr(ACC+4*q,4)} offset:{q*1024}")
        a.label(Lpd)
        a(f"s_sub_u32 s{sT}, s{sW}, 5")
        a(f"s_lshl_b32 s{sT}, s{sT}, 2")
        a(f"s_add_u32 s{sT}, s{sT}, {LFL2}")
        a(f"v_mov_b32 v{vT}, s{sT}")
        a(f"v_mov_b32 v{vT+1}, 1")
        a(f"ds_write_b32 v{vT}, v{vT+1}")
    a.label("A_job4")
    job_run(WS_, 0)
    a(f"v_mov_b32 v{vT}, {LFL2}")
    a(f"s_mov_b32 s{sT3}, {SPIN_MAX}")
    a.label("A_j4spin")
    a(f"ds_read_b96 v[{vT+2}:{vT+4}], v{vT}")
    a("s_waitcnt lgkmcnt(0)")
    a(f"v_and_b32 v{vT+2}, v{vT+2}, v{vT+3}")
    a(f"v_and_b32 v{vT+2}, v{vT+2}, v{vT+4}")
    a("s_nop 0")
    a(f"v_readfirstlane_b32 s{sT}, v{vT+2}")
    a(f"s_sub_u32 s{sT3}, s{sT3}, 1")
    a(f"s_cmp_eq_u32 s{sT3}, 0")
    a(f"s_cbranch_scc1 A_j4spin_done")
    a(f"s_cmp_eq_u32 s{sT}, 1")
    a(f"s_cbranch_scc0 A_j4spin")
    a.label("A_j4spin_done")
    a(f"v_add_u32 v{vT}, {KVX+4096}, v{vX16}")
    a(f"v_add_u32 v{vT+1}, {KSTG+3072}, v{vX16}")
    a(f"v_add_u32 v{vT+2}, {T4F}, v{vX16}")
    for q in range(4): a(f"ds_read_b128 {vr(64+4*q,4)}, v{vT} offset:{q*1024}")
    for p_ in range(2):
        for q in range(3): a(f"ds_read_b128 {vr(80+16*p_+4*q,4)}, v{vT+1} offset:{p_*3072 + q*1024}")
        a(f"ds_read_b128 {vr(80+16*p_+12,4)}, v{vT+2} offset:{p_*1024}")
    a("s_waitcnt lgkmcnt(0)")
    for j in range(16): a(f"v_add_f32 v{64+j}, v{64+j}, v{80+j}")
    for j in range(16): a(f"v_add_f32 v{ACC+j}, v{ACC+j}, v{96+j}")
    for j in range(16): a(f"v_add_f32 v{ACC+j}, v{ACC+j}, v{64+j}")
    st.mark("job4")
    a(f"v_mul_f32 v{vT}, {f32bits(QSCALE)}, v{vR}")
    for j in range(16): a(f"v_mul_f32 v{ACC+j}, v{ACC+j}, v{vT}")
    for k in range(8): a(f"v_cvt_pk_bf16_f32 v{TMP+k}, v{ACC+2*k}, v{ACC+2*k+1}")
    a(f"s_branch {L_bar1}")
    def export_d():
        a(f"s_mul_i32 s{sT}, s{sCG}, 2")
        a(f"s_add_u32 s{sT}, s{sT}, s{sW}")
        a(f"s_sub_u32 s{sT}, s{sT}, 6")
        a(f"s_sub_u32 s{sT2}, s{sT}, s{sRho}")
        a(f"s_and_b32 s{sT2}, s{sT2}, 7")
        a(f"s_mul_i32 s{sT2}, s{sT2}, {5*XP}")
        a(f"v_add_u32 v{vT}, s{sT2}, v{vXa}")
        for i in range(5):
            a(f"ds_read_b128 {vr(X+4*i,4)}, v{vT} offset:{XB + XP*i}")
        a(f"s_mul_i32 s{sT2}, s{sRB}, 40")
        a(f"s_mul_i32 s{sExp}, s{sT}, 5")
        a(f"s_add_u32 s{sT2}, s{sT2}, s{sExp}")
        a(f"s_lshl_b32 s{sT2}, s{sT2}, 10")
        if WS_XF: a(f"s_add_u32 s{sT2}, s{sT2}, {WS_XF}")
        a(f"s_lshl_b32 s{sFD}, s{sRB}, 3")
        a(f"s_add_u32 s{sFD}, s{sFD}, s{sT}")
        a(f"v_add_u32 v{vT+1}, 4096, v{vX16}")
        a("s_waitcnt lgkmcnt(0)")
        for i in range(4):
            a(f"buffer_store_dwordx4 {vr(X+4*i,4)}, v{vX16}, s[{R_WS}:{R_WS+3}], s{sT2} offen offset:{1024*i} sc1")
        a(f"buffer_store_dwordx4 {vr(X+16,4)}, v{vT+1}, s[{R_WS}:{R_WS+3}], s{sT2} offen sc1")
        L_nor = "A_nor"
        a(f"s_cmp_lg_u32 s{sT}, 0")
        a(f"s_cbranch_scc1 {L_nor}")
        a(f"s_lshl_b32 s{sT2}, s{sRB}, 7")
        a(f"s_add_u32 s{sT2}, s{sT2}, {WS_R}")
        a(f"v_lshlrev_b32 v{vT}, 2, v{vN}")
        a(f"buffer_store_dword v{vR}, v{vT}, s[{R_WS}:{R_WS+3}], s{sT2} offen sc1")
        a.label(L_nor)
    a.label(L_kvp)
    a("s_setprio 3")
    if OPT.get("expfirst", 0):
        a(f"s_cmp_lt_u32 s{sW}, 6")
        a(f"s_cbranch_scc1 A_noexp")
        export_d()
        a.label("A_noexp")
    a(f"s_cmp_ge_u32 s{sCG}, 2")
    a(f"s_cbranch_scc1 A_kvp_skip")
    a(f"s_sub_u32 s{sT}, s{sW}, 5")
    a(f"s_mul_i32 s{sLds}, s{sT}, 3072")
    a(f"s_add_u32 s{sLds}, s{sLds}, {KSTG}")
    tr_addr(a, vTr, vTr2, 40, 8, 4, sLds, vT)
    a(f"v_add_u32 v{vWst}, s{sLds}, v{vX16}")
    a(f"s_mul_i32 s{sT}, s{sStep}, {XP}")
    a(f"v_add_u32 v{vVo}, s{sT}, v{vXa}")
    a(f"v_add_u32 v{vT+4}, {13*XP}, v{vVo}")
    a(f"s_cmp_eq_u32 s{sW}, 5")
    a(f"s_cbranch_scc1 A_kv13")
    for i in range(4): a(f"v_mov_b32 v{WS_+52+i}, 0")
    a(f"v_mov_b32 v{vT+4}, v{vXa}")
    a.label("A_kv13")
    def k_wr(k): a(f"ds_write_b128 v{vWst}, {vr(WS_+4*k,4)} offset:{(k % NSTG)*1024}")
    def k_rd(k):
        f = FB + 8*(k % 4)
        a(f"ds_read_b64_tr_b16 v[{f}:{f+1}], v{vTr} offset:{(k % NSTG)*1024}")
        a(f"ds_read_b64_tr_b16 v[{f+2}:{f+3}], v{vTr2} offset:{(k % NSTG)*1024}")
        if k == 13: a(f"ds_read_b128 {vr(f+4,4)}, v{vT+4}")
        else: a(f"ds_read_b128 {vr(f+4,4)}, v{vVo} offset:{k*XP}")
    pipe_gemm(14, k_wr, k_rd, lambda k, s_: None, lambda s_: None, "0")
    a("s_waitcnt lgkmcnt(0)")
    job_loads()
    a(f"s_cmp_eq_u32 s{sW}, 5")
    a(f"s_cbranch_scc1 A_kv5")
    a(f"s_sub_u32 s{sT}, s{sW}, 6")
    a(f"s_lshl_b32 s{sT}, s{sT}, 12")
    a(f"s_add_u32 s{sT}, s{sT}, {KVX}")
    a(f"v_add_u32 v{vT}, s{sT}, v{vX16}")
    for q in range(4):
        a(f"ds_write_b128 v{vT}, {vr(ACC+4*q,4)} offset:{q*1024}")
    a(f"s_sub_u32 s{sT}, s{sW}, 6")
    a(f"s_lshl_b32 s{sT}, s{sT}, 2")
    a(f"s_add_u32 s{sT}, s{sT}, {LFL}")
    a(f"v_mov_b32 v{vT}, s{sT}")
    a(f"v_mov_b32 v{vT+1}, 1")
    a(f"ds_write_b32 v{vT}, v{vT+1}")
    a(f"s_branch A_kvp_done")
    a.label("A_kv5")
    a(f"v_mov_b32 v{vT}, {LFL}")
    a(f"s_mov_b32 s{sT3}, {SPIN_MAX}")
    a.label("A_kvspin")
    a(f"ds_read_b64 v[{vT+2}:{vT+3}], v{vT}")
    a("s_waitcnt lgkmcnt(0)")
    a(f"v_and_b32 v{vT+2}, v{vT+2}, v{vT+3}")
    a("s_nop 0")
    a(f"v_readfirstlane_b32 s{sT}, v{vT+2}")
    a(f"s_sub_u32 s{sT3}, s{sT3}, 1")
    a(f"s_cmp_eq_u32 s{sT3}, 0")
    a(f"s_cbranch_scc1 A_kvspin_done")
    a(f"s_cmp_eq_u32 s{sT}, 1")
    a(f"s_cbranch_scc0 A_kvspin")
    a.label("A_kvspin_done")
    a(f"v_add_u32 v{vT}, {KVX}, v{vX16}")
    for p_ in range(2):
        for q in range(4):
            a(f"ds_read_b128 {vr(FB+16*p_+4*q,4)}, v{vT} offset:{p_*4096 + q*1024}")
    a("s_waitcnt lgkmcnt(0)")
    for j in range(16):
        a(f"v_add_f32 v{FB+j}, v{FB+j}, v{FB+16+j}")
    for j in range(16):
        a(f"v_add_f32 v{ACC+j}, v{ACC+j}, v{FB+j}")
    for j in range(16): a(f"v_mul_f32 v{ACC+j}, v{ACC+j}, v{vR}")
    a(f"v_cmp_eq_u32 vcc, 1, v{vH}")
    a(f"v_mov_b32 v{vT}, 1.0")
    a(f"v_mov_b32 v{vT+1}, 0")
    a(f"v_cndmask_b32 v{ACC+8}, v{ACC+8}, v{vT}, vcc")
    for j in range(9, 12): a(f"v_cndmask_b32 v{ACC+j}, v{ACC+j}, v{vT+1}, vcc")
    for j in range(12, 16): a(f"v_mov_b32 v{ACC+j}, 0")
    for k in range(8): a(f"v_cvt_pk_bf16_f32 v{TMP+k}, v{ACC+2*k}, v{ACC+2*k+1}")
    a(f"s_mul_i32 s{sT}, s{sRB}, {TS}")
    a(f"s_add_u32 s{sT}, s{sT}, {WS_KV}")
    L_v = "A_v"; L_kvdone = "A_kvdone"
    a(f"s_cmp_eq_u32 s{sCG}, 1")
    a(f"s_cbranch_scc1 {L_v}")
    a(f"buffer_store_dwordx4 {vr(TMP,4)}, v{vX16}, s[{R_WS}:{R_WS+3}], s{sT} offen sc1")
    a(f"v_lshlrev_b32 v{vT}, 3, v{vLane}")
    a(f"s_mov_b32 exec_hi, 0")
    a(f"buffer_store_dwordx2 v[{TMP+4}:{TMP+5}], v{vT}, s[{R_WS}:{R_WS+3}], s{sT} offen offset:1024 sc1")
    a(f"s_mov_b32 exec_hi, -1")
    a(f"s_branch {L_kvdone}")
    a.label(L_v)
    a(f"s_mov_b32 s{sLds}, {KVX}")
    a(f"v_lshlrev_b32 v{vT}, 6, v{vN}")
    a(f"v_lshl_add_u32 v{vT}, v{vH}, 3, v{vT}")
    a(f"v_add_u32 v{vT}, s{sLds}, v{vT}")
    for q in range(4):
        a(f"ds_write_b64 v{vT}, v[{TMP+2*q}:{TMP+2*q+1}] offset:{16*q}")
    tr_addr(a, vTr, None, 64, 4, 8, sLds, vT+1)
    for u in range(2):
        a(f"ds_read_b64_tr_b16 v[{TMP+8+4*u}:{TMP+9+4*u}], v{vTr} offset:{u*1024}")
        a(f"ds_read_b64_tr_b16 v[{TMP+10+4*u}:{TMP+11+4*u}], v{vTr} offset:{u*1024 + 512}")
    a(f"v_mul_u32_u24 v{vT}, 336, v{vH}")
    a(f"v_lshl_add_u32 v{vT}, v{vN}, 4, v{vT}")
    a(f"s_mov_b32 exec_lo, 0x1fffff")
    a(f"s_mov_b32 exec_hi, 0x1fffff")
    a("s_waitcnt lgkmcnt(0)")
    a(f"buffer_store_dwordx4 {vr(TMP+8,4)}, v{vT}, s[{R_WS}:{R_WS+3}], s{sT} offen offset:1280 sc1")
    a(f"buffer_store_dwordx4 {vr(TMP+12,4)}, v{vT}, s[{R_WS}:{R_WS+3}], s{sT} offen offset:1952 sc1")
    a(f"s_mov_b64 exec, -1")
    a.label(L_kvdone)
    ensure_tag("A5")
    a("s_waitcnt vmcnt(0)")
    st.mark("k5:drain")
    a(f"s_lshl_b32 s{sT}, s{sRB}, 1")
    a(f"s_add_u32 s{sT}, s{sT}, s{sCG}")
    set_flag(a, vT, sT, FL_KV)
    a(f"s_mov_b32 s{sLds}, {KSTG}")
    job_run(JW, 1)
    job_publish()
    a(f"s_branch {L_bar1}")
    a.label("A_kvp_skip")
    job_loads()
    a(f"s_cmp_lg_u32 s{sW}, 5")
    a(f"s_cbranch_scc1 A_kvp_done")
    a(f"s_mov_b32 s{sLds}, {KSTG}")
    job_run(JW, 0)
    job_publish()
    a(f"s_branch {L_bar1}")
    a.label("A_kvp_done")
    if not OPT.get("expfirst", 0): export_d()
    ensure_tag("A6")
    a(f"s_waitcnt vmcnt({10 if OPT.get('expfirst', 0) else 0})")
    st.mark("x:drain")
    set_flag(a, vT, sFD, FL_D)
    a(f"s_sub_u32 s{sT}, s{sW}, 5")
    a(f"s_mul_i32 s{sLds}, s{sT}, 3072")
    a(f"s_add_u32 s{sLds}, s{sLds}, {KSTG}")
    job_run(JW, 1)
    job_publish()
    a.label(L_bar1)
    a("s_waitcnt vmcnt(0)")
    a.label("A_bar1_nowait")
    a("s_setprio 0")
    a("s_waitcnt lgkmcnt(0)")
    a("s_barrier")
    st.mark("bar0")
    vA16 = vX16
    aK1, aK2, aV, nK1, nK2, nV = 64, 65, 66, 67, 68, 69
    bK2, bV = 70, 71
    CN = 80
    S = [16, 32]
    O = 48
    P = 96
    Q1, Q2 = 104, 108
    K1, K2 = 112, 116
    V1, V2 = 120, 124
    vM2 = 110
    sSoffK, sLdsW, sSlot = 58, 59, 60
    srd(a, R_A, S_WS, S_WS+1, KVB, WS_KV)
    a(f"s_lshl_b32 s{sLdsW}, s{sW}, 10")
    a(f"v_lshlrev_b32 v{bK2}, 3, v{vN}")
    a(f"v_add_u32 v{bK2}, 1024, v{bK2}")
    a(f"v_min_u32 v{bV}, 20, v{vN}")
    a(f"v_lshlrev_b32 v{bV}, 4, v{bV}")
    a(f"v_mul_u32_u24 v{vT}, 336, v{vH}")
    a(f"v_add3_u32 v{bV}, v{bV}, v{vT}, 0")
    a(f"v_add_u32 v{bV}, 1280, v{bV}")
    def dma_chunk(slot_s):
        a(f"s_add_u32 s{sT}, s{slot_s}, s{sLdsW}")
        a(f"s_add_u32 s{sT2}, s{sSoffK}, s{sLdsW}")
        a(f"s_mov_b32 m0, s{sT}")
        a(f"s_add_u32 s{sT}, s{sT}, 8192")
        a(f"buffer_load_dwordx4 v{vA16}, s[{R_A}:{R_A+3}], s{sT2} offen sc1 lds")
        a(f"s_mov_b32 m0, s{sT}")
        a(f"s_add_u32 s{sT2}, s{sT2}, 8192")
        a(f"buffer_load_dwordx4 v{vA16}, s[{R_A}:{R_A+3}], s{sT2} offen sc1 lds")
        Ls = a.newlabel("A_d3")
        a(f"s_cmp_ge_u32 s{sW}, 5")
        a(f"s_cbranch_scc1 {Ls}")
        a(f"s_add_u32 m0, s{sT}, 8192")
        a(f"s_add_u32 s{sT2}, s{sT2}, 8192")
        a(f"buffer_load_dwordx4 v{vA16}, s[{R_A}:{R_A+3}], s{sT2} offen sc1 lds")
        a.label(Ls)
        a(f"s_add_u32 s{sSoffK}, s{sSoffK}, {CH}")
    L_noqw = "A_noqw"
    a(f"v_mul_u32_u24 v{vT}, {QP}, v{vN}")
    a(f"v_add_u32 v{vT}, {QBUF}, v{vT}")
    a(f"s_cmp_ge_u32 s{sW}, 5")
    a(f"s_cbranch_scc1 {L_noqw}")
    a(f"s_lshl_b32 s{sT}, s{sW}, 6")
    a(f"v_lshl_add_u32 v{vT+1}, v{vH}, 3, v{vT}")
    a(f"v_add_u32 v{vT+1}, s{sT}, v{vT+1}")
    for q in range(4):
        a(f"ds_write_b64 v{vT+1}, v[{TMP+2*q}:{TMP+2*q+1}] offset:{16*q}")
    a.label(L_noqw)
    a("s_waitcnt lgkmcnt(0)")
    a("s_barrier")
    a(f"s_mul_i32 s{sT}, s{sW}, 40")
    a(f"v_add_u32 v{vT}, s{sT}, v{vT}")
    a(f"v_lshl_add_u32 v{vT+1}, v{vH}, 3, v{vT}")
    a(f"ds_read_b64 v[{Q1}:{Q1+1}], v{vT+1}")
    a(f"ds_read_b64 v[{Q1+2}:{Q1+3}], v{vT+1} offset:16")
    a(f"ds_read_b64 v[{Q2}:{Q2+1}], v{vT} offset:32")
    a(f"v_mov_b32 v{aK1}, v{vA16}")
    a(f"v_mov_b32 v{aK2}, v{bK2}")
    a(f"v_mov_b32 v{aV}, v{bV}")
    a(f"v_add_u32 v{nK1}, {CH}, v{vA16}")
    a(f"v_add_u32 v{nK2}, {CH}, v{bK2}")
    a(f"v_add_u32 v{nV}, {CH}, v{bV}")
    for i in range(16): a(f"v_mov_b32 v{O+i}, 0")
    a(f"v_cmp_eq_u32 vcc, 1, v{vH}")
    a(f"v_mov_b32 v{vT}, 0")
    a("s_waitcnt lgkmcnt(0)")
    a(f"v_cndmask_b32 v{Q2}, v{Q2}, v{vT}, vcc")
    a(f"v_cndmask_b32 v{Q2+1}, v{Q2+1}, v{vT}, vcc")
    a(f"s_cmp_lg_u32 s{sW}, 7")
    a(f"s_cbranch_scc1 A_nokvp")
    poll_flags(a, vT+2, "A7", None, 128, FL_KV, sleep=OPT.get("kvsleep", 1))
    st.mark("kvpoll")
    a.label("A_nokvp")
    a("s_barrier")
    st.mark("bar1")
    a(f"s_mov_b32 s{sSoffK}, 0")
    a(f"s_mov_b32 s{sSlot}, 0")
    dma_chunk(sSlot)
    a(f"s_mov_b32 s{sSlot}, {CH}")
    dma_chunk(sSlot)
    a(f"s_mov_b32 s{sSlot}, {2*CH}")
    def rd(dst, n, t, off, cur, nxt, op):
        v_ = cur if t < 8 else nxt
        a(f"{op} {vr(dst,n)}, v{v_} offset:{(t % 8)*TS + off}")
    def rd_K1(t): rd(K1, 4, t, 0, aK1, nK1, "ds_read_b128")
    def rd_K2(t): rd(K2, 2, t, 0, aK2, nK2, "ds_read_b64")
    def rd_V1(t): rd(V1, 4, t, 0, aV, nV, "ds_read_b128")
    def rd_V2(t): rd(V2, 4, t, 672, aV, nV, "ds_read_b128")
    def qk1(dst, c="0"): a(f"v_mfma_f32_32x32x16_bf16 {vr(dst,16)}, {vr(K1,4)}, {vr(Q1,4)}, {c}")
    def qk2(dst): a(f"v_mfma_f32_32x32x8_bf16 {vr(dst,16)}, {vr(K2,2)}, {vr(Q2,2)}, {vr(dst,16)}")
    CNR = vr(CN, 16)
    a("s_waitcnt vmcnt(2)")
    a("s_barrier")
    rd_K1(0); rd_K2(0)
    def set_m(delta):
        a(f"v_mov_b32 v{vT}, v{vM2}")
        a.nop(2)
        a(f"v_permlane32_swap_b32 v{vM2}, v{vT}")
        a.nop(1)
        a(f"v_max_f32 v{vM2}, v{vM2}, v{vT}")
        if delta: a(f"v_add_f32 v{vM2}, {f32bits(delta)}, v{vM2}")
        for i in range(16): a(f"v_sub_f32 v{CN+i}, 0, v{vM2}")
    a(f"v_mov_b32 v{vM2}, 0xff800000")
    a("s_waitcnt lgkmcnt(0)")
    qk1(S[0]); qk2(S[0])
    rd_K1(1); rd_K2(1)
    a("s_waitcnt lgkmcnt(0)")
    qk1(S[1]); qk2(S[1])
    rd_K1(0); rd_K2(0)
    for i in range(4, 8): a(f"v_mov_b32 v{P+i}, 0")
    for i in range(4): a(f"v_mov_b32 v{V2+i}, 0")
    a.nop(4)
    for i in range(8):
        a(f"v_max3_f32 v{vM2}, v{S[0]+2*i}, v{S[0]+2*i+1}, v{vM2}")
    a.nop(4)
    for i in range(8):
        a(f"v_max3_f32 v{vM2}, v{S[1]+2*i}, v{S[1]+2*i+1}, v{vM2}")
    set_m(DELTA)
    a("s_waitcnt lgkmcnt(0)")
    a.nop(1)
    qk1(S[0], CNR); qk2(S[0])
    rd_K1(1); rd_K2(1); rd_V1(0)
    a.nop(12)
    st.mark("sample")
    a(f"s_setprio {OPT.get('aprio', 0)}")
    a(f"s_mov_b32 s{sIt}, 0")
    L_loop = "A_loop"
    a(".p2align 6")
    a.label(L_loop)
    def e(cur, i): a(f"v_exp_f32 v{cur+i}, v{cur+i}")
    def p(cur, k): a(f"v_cvt_pk_bf16_f32 v{P+k}, v{cur+2*k}, v{cur+2*k+1}")
    for t in range(8):
        cur, nxt = S[t % 2], S[(t+1) % 2]
        if t == 6:
            a("s_waitcnt vmcnt(0)")
            a("s_barrier")
            dma_chunk(sSlot)
            a(f"s_add_u32 s{sSlot}, s{sSlot}, {CH}")
            a(f"s_cmp_eq_u32 s{sSlot}, {3*CH}")
            a(f"s_cselect_b32 s{sSlot}, 0, s{sSlot}")
        e(cur, 0); e(cur, 1)
        a("s_waitcnt lgkmcnt(2)")
        a(f"v_mfma_f32_32x32x16_bf16 {vr(O,16)}, {vr(V2,4)}, {vr(P+4,4)}, {vr(O,16)}")
        rd_V2(t)
        e(cur, 2); e(cur, 3); p(cur, 0); p(cur, 1)
        qk1(nxt, CNR)
        rd_K1(t+2)
        e(cur, 4); e(cur, 5); e(cur, 6); e(cur, 7); p(cur, 2); p(cur, 3)
        a("s_waitcnt lgkmcnt(2)")
        qk2(nxt)
        rd_K2(t+2)
        e(cur, 8); e(cur, 9); e(cur, 10); e(cur, 11); p(cur, 4); p(cur, 5)
        a(f"v_mfma_f32_32x32x16_bf16 {vr(O,16)}, {vr(V1,4)}, {vr(P,4)}, {vr(O,16)}")
        rd_V1(t+1)
        e(cur, 12); e(cur, 13); e(cur, 14); e(cur, 15); p(cur, 6); p(cur, 7)
    a(f"v_mov_b32 v{aK1}, v{nK1}")
    a(f"v_mov_b32 v{aK2}, v{nK2}")
    a(f"v_mov_b32 v{aV}, v{nV}")
    a(f"s_add_u32 s{sT}, s{sSlot}, {2*CH}")
    a(f"s_cmp_ge_u32 s{sT}, {3*CH}")
    a(f"s_cselect_b32 s{sT2}, {3*CH}, 0")
    a(f"s_sub_u32 s{sT}, s{sT}, s{sT2}")
    a(f"v_add_u32 v{nK1}, s{sT}, v{vA16}")
    a(f"v_add_u32 v{nK2}, s{sT}, v{bK2}")
    a(f"v_add_u32 v{nV}, s{sT}, v{bV}")
    a(f"s_add_u32 s{sIt}, s{sIt}, 1")
    a(f"s_cmp_lt_u32 s{sIt}, 8")
    a(f"s_cbranch_scc1 {L_loop}")
    a("s_waitcnt lgkmcnt(0)")
    a(f"v_mfma_f32_32x32x16_bf16 {vr(O,16)}, {vr(V2,4)}, {vr(P+4,4)}, {vr(O,16)}")
    a("s_setprio 0")
    st.mark("loop")
    a.nop(16)
    L_fin, L_slow = "A_fin", "A_slow"
    a(f"s_mov_b32 s{sIt}, 0")
    a.label(L_fin)
    a(f"v_mov_b32 v{vT}, v{O+8}")
    a(f"v_mov_b32 v{vT+1}, v{O+8}")
    a.nop(2)
    a(f"v_permlane32_swap_b32 v{vT}, v{vT+1}")
    a(f"v_max3_f32 v{vT+2}, |v{O}|, |v{O+1}|, |v{O+2}|")
    for j in range(3, 12, 2):
        j2 = min(j+1, 11)
        a(f"v_max3_f32 v{vT+2}, |v{O+j}|, |v{O+j2}|, v{vT+2}")
    a(f"v_mov_b32 v{vT+3}, {f32bits(2.0**120)}")
    a(f"v_cmp_nlt_f32 vcc, v{vT+2}, v{vT+3}")
    a(f"v_cmp_nlt_f32 s[62:63], 0, v{vT+1}")
    a.nop(1)
    a(f"s_or_b64 vcc, vcc, s[62:63]")
    a(f"s_cmp_eq_u64 vcc, 0")
    a(f"s_cbranch_scc1 A_store")
    a(f"s_cmp_lg_u32 s{sIt}, 0")
    a(f"s_cbranch_scc1 A_store")
    a(f"s_branch {L_slow}")
    a.label("A_store")
    a(f"v_rcp_f32 v{vT+2}, v{vT+1}")
    a.nop(1)
    for j in range(12): a(f"v_mul_f32 v{O+j}, v{O+j}, v{vT+2}")
    for k in range(6): a(f"v_cvt_pk_bf16_f32 v{P+k}, v{O+2*k}, v{O+2*k+1}")
    a(f"s_lshl_b32 s{sT}, s{sCG}, 3")
    a(f"s_add_u32 s{sT}, s{sT}, s{sW}")
    a(f"s_mul_i32 s{sT}, s{sT}, 20")
    a(f"s_mul_i32 s{sT2}, s{sRB}, {40*1024}")
    a(f"s_add_u32 s{sT2}, s{sT2}, {WS_OF}")
    def oaddr(dst, colv):
        a(f"v_lshrrev_b32 v{dst}, 4, v{colv}")
        a(f"v_lshlrev_b32 v{dst}, 10, v{dst}")
        a(f"v_bfe_u32 v{vT+7}, v{colv}, 3, 1")
        a(f"v_lshl_add_u32 v{dst}, v{vT+7}, 9, v{dst}")
        a(f"v_and_b32 v{vT+7}, 7, v{colv}")
        a(f"v_lshl_add_u32 v{dst}, v{vT+7}, 1, v{dst}")
        a(f"v_lshl_add_u32 v{dst}, v{vN}, 4, v{dst}")
    a(f"v_lshlrev_b32 v{vT+3}, 2, v{vH}")
    a(f"v_add_u32 v{vT+3}, s{sT}, v{vT+3}")
    oaddr(vT+4, vT+3)
    a(f"buffer_store_dwordx2 v[{P}:{P+1}], v{vT+4}, s[{R_WS}:{R_WS+3}], s{sT2} offen sc1")
    a(f"v_add_u32 v{vT+3}, 8, v{vT+3}")
    oaddr(vT+5, vT+3)
    a(f"buffer_store_dwordx2 v[{P+2}:{P+3}], v{vT+5}, s[{R_WS}:{R_WS+3}], s{sT2} offen sc1")
    a(f"s_add_u32 s{sT}, s{sT}, 16")
    a(f"v_mov_b32 v{vT+3}, s{sT}")
    oaddr(vT+6, vT+3)
    a(f"v_cmp_eq_u32 vcc, 0, v{vH}")
    a(f"s_and_saveexec_b64 s[62:63], vcc")
    a(f"buffer_store_dwordx2 v[{P+4}:{P+5}], v{vT+6}, s[{R_WS}:{R_WS+3}], s{sT2} offen sc1")
    a(f"s_mov_b64 exec, s[62:63]")
    a(f"s_cmp_lg_u32 s{sTag}, 0")
    a(f"s_cbranch_scc1 A_ohave")
    get_tag(a, vT, "A8")
    a.label("A_ohave")
    a("s_waitcnt vmcnt(0)")
    a(f"s_lshl_b32 s{sT}, s{sRB}, 2")
    a(f"s_add_u32 s{sT}, s{sT}, s{sCG}")
    a(f"s_lshl_b32 s{sT}, s{sT}, 3")
    a(f"s_add_u32 s{sT}, s{sT}, s{sW}")
    set_flag(a, vT, sT, FL_O)
    st.end()
    a("s_endpgm")
    a.label(L_slow)
    a(f"v_mov_b32 v{vM2}, 0xff800000")
    a(f"s_mov_b32 s{sSoffK}, 0")
    a.label("A_slow1")
    a(f"buffer_load_dwordx4 {vr(K1,4)}, v{vA16}, s[{R_A}:{R_A+3}], s{sSoffK} offen sc1")
    a(f"buffer_load_dwordx2 {vr(K2,2)}, v{bK2}, s[{R_A}:{R_A+3}], s{sSoffK} offen sc1")
    a("s_waitcnt vmcnt(0)")
    qk1(S[0]); qk2(S[0])
    a.nop(16)
    for i in range(8):
        a(f"v_max3_f32 v{vM2}, v{S[0]+2*i}, v{S[0]+2*i+1}, v{vM2}")
    a(f"s_add_u32 s{sSoffK}, s{sSoffK}, {TS}")
    a(f"s_cmp_lt_u32 s{sSoffK}, {KVB}")
    a(f"s_cbranch_scc1 A_slow1")
    set_m(0.0)
    for i in range(16): a(f"v_mov_b32 v{O+i}, 0")
    a(f"s_mov_b32 s{sSoffK}, 0")
    a.label("A_slow2")
    a(f"buffer_load_dwordx4 {vr(K1,4)}, v{vA16}, s[{R_A}:{R_A+3}], s{sSoffK} offen sc1")
    a(f"buffer_load_dwordx2 {vr(K2,2)}, v{bK2}, s[{R_A}:{R_A+3}], s{sSoffK} offen sc1")
    a(f"buffer_load_dwordx4 {vr(V1,4)}, v{bV}, s[{R_A}:{R_A+3}], s{sSoffK} offen sc1")
    a(f"buffer_load_dwordx4 {vr(V2,4)}, v{bV}, s[{R_A}:{R_A+3}], s{sSoffK} offen offset:672 sc1")
    a("s_waitcnt vmcnt(0)")
    qk1(S[0], CNR); qk2(S[0])
    a.nop(16)
    for i in range(16): e(S[0], i)
    a.nop(1)
    for k in range(8): p(S[0], k)
    a.nop(2)
    a(f"v_mfma_f32_32x32x16_bf16 {vr(O,16)}, {vr(V1,4)}, {vr(P,4)}, {vr(O,16)}")
    a(f"v_mfma_f32_32x32x16_bf16 {vr(O,16)}, {vr(V2,4)}, {vr(P+4,4)}, {vr(O,16)}")
    a(f"s_add_u32 s{sSoffK}, s{sSoffK}, {TS}")
    a(f"s_cmp_lt_u32 s{sSoffK}, {KVB}")
    a(f"s_cbranch_scc1 A_slow2")
    a.nop(16)
    a(f"s_mov_b32 s{sIt}, 1")
    a(f"s_branch {L_fin}")

def role_B1(a):
    st = Stamps(a, "B")
    st.start()
    if OPT.get("bprio"): a(f"s_setprio {OPT['bprio']}")
    sG, sC = sRB, sCG
    sSoffW, sSoffX, sLdsW, sKH, sXb = 57, 58, 59, 60, 99
    vT = 4; vW = 10; vTr, vX16, vR = 13, 14, 15
    XS = 16; WF = 48; ACC = 76
    SLOT = 24576
    a(f"s_sub_u32 s{sT2}, s2, 256")
    a(f"s_and_b32 s{sG}, s{sT2}, 7")
    a(f"s_lshl_b32 s{sG}, s{sG}, 1")
    a(f"s_bfe_u32 s{sT}, s{sT2}, 0x10003")
    a(f"s_add_u32 s{sG}, s{sG}, s{sT}")
    a(f"s_lshr_b32 s{sC}, s{sT2}, 4")
    a(f"s_lshr_b32 s{sKH}, s{sW}, 2")
    a(f"v_lshlrev_b32 v{vX16}, 4, v{vLane}")
    a(f"s_and_b32 s{sT}, s{sW}, 3")
    a(f"s_mul_i32 s{sT}, s{sT}, 192")
    a(f"s_mul_i32 s{sT2}, s{sC}, 192")
    a(f"s_mul_i32 s{sT3}, s{sKH}, {320*3072}")
    a(f"s_add_u32 s{sT2}, s{sT2}, s{sT3}")
    for i in range(3):
        a(f"v_add_u32 v{vT}, s{sT}, v{vLane}")
        if i: a(f"v_add_u32 v{vT}, {64*i}, v{vT}")
        a(f"v_mul_u32_u24 v{vT+1}, 5462, v{vT}")
        a(f"v_lshrrev_b32 v{vT+1}, 16, v{vT+1}")
        a(f"v_mul_u32_u24 v{vT+2}, 12, v{vT+1}")
        a(f"v_sub_u32 v{vT}, v{vT}, v{vT+2}")
        a(f"v_lshlrev_b32 v{vT}, 4, v{vT}")
        a(f"v_mul_u32_u24 v{vT+1}, 3072, v{vT+1}")
        a(f"v_add3_u32 v{vW+i}, v{vT}, v{vT+1}, s{sT2}")
        if i: a(f"v_subrev_u32 v{vW+i}, {1024*i}, v{vW+i}")
    a(f"s_mul_i32 s{sT}, s{sKH}, 12288")
    tr_addr(a, vTr, None, 192, 8, 4, sT, vT)
    a(f"s_mul_i32 s{sLdsW}, s{sW}, 3072")
    srd(a, R_A, S_W1, S_W1+1, 640*1536*2)
    srd(a, R_B, S_B1, S_B1+1, 1536*2)
    a(f"s_mul_hi_u32 s{sT}, s{sC}, {(1<<32)//5 + 1}")
    a(f"s_mul_i32 s{sT}, s{sT}, 5")
    a(f"s_sub_u32 s{sT}, s{sC}, s{sT}")
    a(f"s_mul_i32 s{sSoffW}, s{sT}, {64*3072}")
    a(f"s_lshl_b32 s{sSoffX}, s{sT}, 12")
    a(f"s_and_b32 s{sT}, s{sW}, 3")
    a(f"s_lshl_b32 s{sT2}, s{sG}, 2")
    a(f"s_add_u32 s{sT}, s{sT}, s{sT2}")
    a(f"s_mul_i32 s{sXb}, s{sT}, {40*1024}")
    a(f"s_mul_i32 s{sT2}, s{sKH}, {20*1024}")
    a(f"s_add_u32 s{sXb}, s{sXb}, s{sT2}")
    if WS_XF: a(f"s_add_u32 s{sXb}, s{sXb}, {WS_XF}")
    def issueW(c):
        a(f"s_add_u32 m0, s{sLdsW}, {(c%3)*SLOT}")
        a(f"s_add_u32 s{sT}, s{sSoffW}, {64*3072}")
        for i in range(3):
            a(f"buffer_load_dwordx4 v{vW+i}, s[{R_A}:{R_A+3}], s{sSoffW} offen offset:{1024*i} lds")
        a(f"s_cmp_eq_u32 s{sT}, {320*3072}")
        a(f"s_cselect_b32 s{sSoffW}, 0, s{sT}")
    def issueX(c):
        xs = XS + 16*(c % 2)
        a(f"s_add_u32 s{sT2}, s{sXb}, s{sSoffX}")
        a(f"s_add_u32 s{sT}, s{sSoffX}, 4096")
        for i in range(4):
            a(f"buffer_load_dwordx4 {vr(xs+4*i,4)}, v{vX16}, s[{R_WS}:{R_WS+3}], s{sT2} offen offset:{1024*i} sc1")
        a(f"s_cmp_eq_u32 s{sT}, 20480")
        a(f"s_cselect_b32 s{sSoffX}, 0, s{sT}")
    sJ = 96
    a(f"s_sub_u32 s{sJ}, s2, 256")
    a(f"s_cmp_lg_u32 s{sW}, 0")
    a(f"s_cbranch_scc1 B1_np")
    get_tag(a, vT, "B1")
    a(f"s_lshl_b32 s{sT}, s{sG}, 5")
    poll_flags(a, vT, "B1", sT, 32, FL_D, sleep=OPT.get("dsleep", 16))
    a.label("B1_np")
    a("s_barrier")
    srd(a, R_C, S_W2, S_W2+1, 1536*640*2)
    a(f"v_lshrrev_b32 v92, 2, v{vLane}")
    a(f"v_mul_u32_u24 v92, 1280, v92")
    a(f"v_and_b32 v93, 3, v{vLane}")
    a(f"v_lshl_add_u32 v92, v93, 4, v92")
    a(f"s_lshl_b32 s{sT}, s{sW}, 10")
    a(f"s_add_u32 s{sT}, s{sT}, 73728")
    a(f"v_add_u32 v93, s{sT}, v{vX16}")
    tr_addr(a, 94, None, 64, 4, 8, sT, vT)
    tr_addr(a, 95, None, 64, 8, 4, sT, vT)
    sDst = [92, 93]; sStp = [94, 95]
    for rnd in range(2):
        Lskip = f"B1_wf{rnd}_skip"
        a(f"s_mov_b32 s{sStp[rnd]}, -1")
        if rnd == 1:
            a(f"s_cmp_ge_u32 s{sW}, 3")
            a(f"s_cbranch_scc1 {Lskip}")
        a(f"s_and_b32 s{sT}, s{sJ}, 63")
        a(f"s_mul_i32 s{sT}, s{sT}, 11")
        a(f"s_add_u32 s{sT}, s{sT}, s{sW}")
        if rnd: a(f"s_add_u32 s{sT}, s{sT}, 8")
        a(f"s_cmp_ge_u32 s{sT}, 680")
        a(f"s_cbranch_scc1 {Lskip}")
        a(f"s_mul_hi_u32 s{sT2}, s{sT}, {(1<<32)//136 + 1}")
        a(f"s_mul_i32 s{sT3}, s{sT2}, 136")
        a(f"s_sub_u32 s{sT}, s{sT}, s{sT3}")
        a(f"s_mov_b32 s{sStp[rnd]}, s{sT}")
        a(f"s_lshr_b32 s{sT3}, s{sJ}, 6")
        a(f"s_mul_i32 s{sT3}, s{sT3}, 5")
        a(f"s_add_u32 s{sT2}, s{sT2}, s{sT3}")
        a(f"s_mul_i32 s62, s{sT2}, 136")
        a(f"s_add_u32 s62, s62, s{sT}")
        a(f"s_lshl_b32 s62, s62, 10")
        a(f"s_add_u32 s{sDst[rnd]}, s62, {WS_WF}")
        a(f"s_lshl_b32 s{sT2}, s{sT2}, 6")
        a(f"s_cmp_lt_u32 s{sT}, 96")
        a(f"s_cselect_b32 s{R_C}, s{S_W2}, s{S_WO}")
        a(f"s_cselect_b32 s{R_C+1}, s{S_W2+1}, s{S_WO+1}")
        a(f"s_cselect_b32 s63, 0, 96")
        a(f"s_mov_b32 s{R_C+2}, {640*640*2}")
        a(f"s_cbranch_scc0 B1_wf{rnd}_a")
        a(f"s_mov_b32 s{R_C+2}, {1536*640*2}")
        a.label(f"B1_wf{rnd}_a")
        a(f"s_sub_u32 s{sT3}, s{sT}, s63")
        a(f"s_mul_i32 s{sT3}, s{sT3}, {16*1280}")
        a(f"s_add_u32 s{sT3}, s{sT3}, s{sT2}")
        a(f"buffer_load_dwordx4 v[{76+4*rnd}:{79+4*rnd}], v92, s[{R_C}:{R_C+3}], s{sT3} offen")
        a.label(Lskip)
    a("s_waitcnt vmcnt(0)")
    for rnd in range(2):
        Lskip = f"B1_wg{rnd}_skip"
        a(f"s_cmp_eq_u32 s{sStp[rnd]}, -1")
        a(f"s_cbranch_scc1 {Lskip}")
        a(f"ds_write_b128 v93, v[{76+4*rnd}:{79+4*rnd}]")
        a(f"s_cmp_lt_u32 s{sStp[rnd]}, 96")
        a(f"s_cbranch_scc0 B1_wf{rnd}_n")
        a(f"ds_read_b64_tr_b16 v[{84+4*rnd}:{85+4*rnd}], v94")
        a(f"ds_read_b64_tr_b16 v[{86+4*rnd}:{87+4*rnd}], v94 offset:512")
        a(f"s_branch B1_wf{rnd}_s")
        a.label(f"B1_wf{rnd}_n")
        a(f"ds_read_b64_tr_b16 v[{84+4*rnd}:{85+4*rnd}], v95")
        a(f"ds_read_b64_tr_b16 v[{86+4*rnd}:{87+4*rnd}], v95 offset:256")
        a.label(f"B1_wf{rnd}_s")
        a("s_waitcnt lgkmcnt(0)")
        a(f"buffer_store_dwordx4 v[{84+4*rnd}:{87+4*rnd}], v{vX16}, s[{R_WS}:{R_WS+3}], s{sDst[rnd]} offen sc1")
        a.label(Lskip)
    issued = []
    def iW(c): issueW(c); issued.extend([("W", c)]*3)
    if OPT.get("prefill", 0):
        for c in range(3): iW(c)
    a(f"s_cmp_lg_u32 s{sW}, 0")
    a(f"s_cbranch_scc1 B1_np2")
    if OPT.get("b1kv", 1): poll_flags(a, vT, "B1k", None, 128, FL_KV, sleep=OPT.get("ksleep", 4))
    a.label("B1_np2")
    a("s_barrier")
    st.mark("wait_d")
    def iX(c): issueX(c); issued.extend([("X", c)]*4)
    if OPT.get("prefill", 0):
        iX(0)
        a("s_barrier")
        iX(1)
    elif OPT.get("b1shallow", 0):
        iW(0); iX(0)
    else:
        iW(0); iX(0)
        a("s_barrier")
        iW(1); iX(1)
        a("s_barrier")
        iW(2)
    def wreads(c, k, buf):
        base = (c % 3)*SLOT + k*16*192
        for ct in range(3):
            a(f"ds_read_b64_tr_b16 v[{WF+12*buf+4*ct}:{WF+12*buf+4*ct+1}], v{vTr} offset:{base + ct*64}")
            a(f"ds_read_b64_tr_b16 v[{WF+12*buf+4*ct+2}:{WF+12*buf+4*ct+3}], v{vTr} offset:{base + ct*64 + 4*192}")
    for c in range(5):
        last = max(i for i, e_ in enumerate(issued) if e_ in (("W", c), ("X", c)))
        a(f"s_waitcnt vmcnt({len(issued) - 1 - last})")
        a("s_barrier")
        if c == 0:
            st.mark("b0")
            a(f"s_cmp_lg_u32 s{sW}, 0")
            a(f"s_cbranch_scc1 B1_nofw")
            set_flag(a, vT, sJ, FL_W)
            a.label("B1_nofw")
        if OPT.get("b1shallow", 0) and not OPT.get("prefill", 0):
            if c + 1 < 5: iW(c + 1); iX(c + 1)
        elif 1 <= c <= 2: iW(c + 2)
        xs = XS + 16*(c % 2)
        wreads(c, 0, 0)
        for k in range(4):
            buf = k % 2
            if k < 3:
                wreads(c, k + 1, 1 - buf)
                a("s_waitcnt lgkmcnt(6)")
            else:
                a("s_waitcnt lgkmcnt(0)")
            for ct in range(3):
                cin = "0" if (c == 0 and k == 0) else vr(ACC+16*ct,16)
                a(f"v_mfma_f32_32x32x16_bf16 {vr(ACC+16*ct,16)}, {vr(WF+12*buf+4*ct,4)}, {vr(xs+4*k,4)}, {cin}")
        if c + 2 < 5 and (OPT.get("prefill", 0) or not OPT.get("b1shallow", 0)): iX(c + 2)
    st.mark("kloop")
    a("s_setprio 3")
    a(f"s_and_b32 s{sT}, s{sW}, 3")
    a(f"s_lshl_b32 s{sT2}, s{sG}, 2")
    a(f"s_add_u32 s{sT}, s{sT}, s{sT2}")
    a(f"s_lshl_b32 s{sT2}, s{sT}, 7")
    a(f"s_add_u32 s{sT2}, s{sT2}, {WS_R}")
    a(f"v_lshlrev_b32 v{vT}, 2, v{vN}")
    a(f"buffer_load_dword v{vR}, v{vT}, s[{R_WS}:{R_WS+3}], s{sT2} offen sc1")
    a(f"v_mov_b32 v72, 0")
    a(f"global_load_dword v73, v72, s[{S_DBG}:{S_DBG+1}] sc1")
    a(f"s_mul_i32 s{sT2}, s{sC}, 192")
    a(f"s_lshl_b32 s{sT3}, s{sKH}, 5")
    a(f"s_add_u32 s{sT2}, s{sT2}, s{sT3}")
    a(f"v_lshlrev_b32 v{vT}, 3, v{vH}")
    B = XS
    for ct in range(3):
        for q in range(2):
            a(f"buffer_load_dwordx2 v[{B+4*ct+2*q}:{B+4*ct+2*q+1}], v{vT}, s[{R_B}:{R_B+3}], s{sT2} offen offset:{64*ct+16*q}")
    a(f"s_mul_i32 s{sT}, s{sT}, 96")
    a(f"s_mul_i32 s{sT2}, s{sC}, 6")
    a(f"s_add_u32 s{sT}, s{sT}, s{sT2}")
    a(f"s_add_u32 s{sT}, s{sT}, s{sKH}")
    a(f"s_lshl_b32 s{sXb}, s{sT}, 10")
    a(f"s_add_u32 s{sXb}, s{sXb}, {WS_H}")
    a("s_barrier")
    a.nop(4)
    T = XS + 16
    a(f"s_mul_i32 s{sT}, s{sW}, 6144")
    a(f"v_add_u32 v{vT+1}, s{sT}, v{vX16}")
    a(f"s_xor_b32 s{sT}, s{sW}, 4")
    a(f"s_mul_i32 s{sT}, s{sT}, 6144")
    a(f"v_add_u32 v{vT+2}, s{sT}, v{vX16}")
    a(f"s_cmp_eq_u32 s{sKH}, 1")
    a(f"s_cbranch_scc1 B1_x1")
    for ct in range(3):
        for q in range(2):
            a(f"ds_write_b128 v{vT+1}, {vr(ACC+16*ct+8+4*q,4)} offset:{(2*ct+q)*1024}")
    a(f"s_branch B1_x2")
    a.label("B1_x1")
    for ct in range(3):
        for q in range(2):
            a(f"ds_write_b128 v{vT+1}, {vr(ACC+16*ct+4*q,4)} offset:{(2*ct+q)*1024}")
    a.label("B1_x2")
    a("s_waitcnt lgkmcnt(0)")
    a("s_barrier")
    for i in range(6):
        a(f"ds_read_b128 {vr(T+4*i,4)}, v{vT+2} offset:{i*1024}")
    a("s_waitcnt lgkmcnt(0) vmcnt(0)")
    a(f"v_readfirstlane_b32 s{sTag}, v73")
    a(f"s_cmp_eq_u32 s{sKH}, 1")
    a(f"s_cbranch_scc1 B1_y1")
    for ct in range(3):
        for j in range(8): a(f"v_add_f32 v{T+8*ct+j}, v{T+8*ct+j}, v{ACC+16*ct+j}")
    a(f"s_branch B1_y2")
    a.label("B1_y1")
    for ct in range(3):
        for j in range(8): a(f"v_add_f32 v{T+8*ct+j}, v{T+8*ct+j}, v{ACC+16*ct+8+j}")
    a.label("B1_y2")
    TB = 56
    for ct in range(3):
        for q in range(2):
            b0 = B+4*ct+2*q
            acc = T+8*ct+4*q
            a(f"v_lshlrev_b32 v{TB}, 16, v{b0}")
            a(f"v_and_b32 v{TB+1}, 0xffff0000, v{b0}")
            a(f"v_lshlrev_b32 v{TB+2}, 16, v{b0+1}")
            a(f"v_and_b32 v{TB+3}, 0xffff0000, v{b0+1}")
            for j in range(4): a(f"v_fma_f32 v{acc+j}, v{acc+j}, v{vR}, v{TB+j}")
            for j in range(4): a(f"v_max_f32 v{acc+j}, 0, v{acc+j}")
            for j in range(4): a(f"v_mul_f32 v{acc+j}, v{acc+j}, v{acc+j}")
        for k in range(4):
            a(f"v_cvt_pk_bf16_f32 v{60+4*ct+k}, v{T+8*ct+2*k}, v{T+8*ct+2*k+1}")
    a(f"v_add_u32 v{vT}, 4096, v{vX16}")
    a(f"buffer_store_dwordx4 {vr(60,4)}, v{vX16}, s[{R_WS}:{R_WS+3}], s{sXb} offen sc1")
    a(f"buffer_store_dwordx4 {vr(64,4)}, v{vX16}, s[{R_WS}:{R_WS+3}], s{sXb} offen offset:2048 sc1")
    a(f"buffer_store_dwordx4 {vr(68,4)}, v{vT}, s[{R_WS}:{R_WS+3}], s{sXb} offen sc1")
    a(f"s_cmp_lg_u32 s{sW}, 6")
    a(f"s_cbranch_scc1 B1_nfw")
    a(f"s_sub_u32 s{sT}, s2, 256")
    a(f"s_lshr_b32 s{sT}, s{sT}, 6")
    a(f"s_lshl_b32 s{sT}, s{sT}, 6")
    poll_flags(a, vT, "B2w", sT, 64, FL_W)
    a.label("B1_nfw")
    a("s_waitcnt vmcnt(0)")
    a("s_barrier")
    L_nf = "B1_nf"
    a(f"s_cmp_lg_u32 s{sW}, 0")
    a(f"s_cbranch_scc1 {L_nf}")
    a(f"s_lshl_b32 s{sT}, s{sG}, 4")
    a(f"s_add_u32 s{sT}, s{sT}, s{sC}")
    set_flag(a, vT, sT, FL_H)
    a.label(L_nf)
    st.mark("epi")
    a("s_setprio 0")
    return st

def role_B2(a, st):
    sSoffW, sSoffX, sWb, sIt, sRho, sWrapW, sRst = 57, 58, 59, 60, 61, 98, 99
    vT = 4
    vX16, vXa = 14, 15
    ACC = 16
    XR = 48
    WB = 64
    vOut = vT+3
    NXS = 8
    a(f"s_sub_u32 s{sT2}, s2, 256")
    decode_rb_cg(a, sT2)
    a(f"v_lshlrev_b32 v{vX16}, 4, v{vLane}")
    a(f"s_and_b32 s{sRho}, s{sRB}, 7")
    a(f"s_min_u32 s{sT3}, s{sW}, 4")
    a(f"s_mul_i32 s{sT}, s{sCG}, 5")
    a(f"s_add_u32 s{sT}, s{sT}, s{sT3}")
    a(f"s_mul_i32 s{sWb}, s{sT}, {136*1024}")
    a(f"s_add_u32 s{sWb}, s{sWb}, {WS_WF}")
    a(f"s_lshl_b32 s{sT}, s{sT}, 6")
    srd(a, R_C, S_X, S_X+1, NX)
    a(f"s_lshl_b32 s{sT2}, s{sRB}, 5")
    a(f"v_add_u32 v{vT}, s{sT2}, v{vN}")
    a(f"v_mul_u32_u24 v{vT}, 1280, v{vT}")
    a(f"v_lshl_add_u32 v{vT}, v{vH}, 3, v{vT}")
    a(f"v_add_u32 v{vOut}, s{sT}, v{vT}")
    for q in range(4):
        a(f"buffer_load_dwordx2 v[{XR+2*q}:{XR+2*q+1}], v{vOut}, s[{R_C}:{R_C+3}], 0 offen offset:{16*q}")
    srd(a, R_C, S_B2, S_B2+1, 640*2)
    a(f"v_lshlrev_b32 v{vT}, 3, v{vH}")
    for q in range(4):
        a(f"buffer_load_dwordx2 v[{XR+8+2*q}:{XR+8+2*q+1}], v{vT}, s[{R_C}:{R_C+3}], s{sT} offen offset:{16*q}")
    for i in range(16): a(f"v_mov_b32 v{ACC+i}, 0")
    def unpack_add(q, dst):
        for (src, t) in ((XR+2*q, 32), (XR+8+2*q, 36)):
            a(f"v_lshlrev_b32 v{t}, 16, v{src}")
            a(f"v_and_b32 v{t+1}, 0xffff0000, v{src}")
            a(f"v_lshlrev_b32 v{t+2}, 16, v{src+1}")
            a(f"v_and_b32 v{t+3}, 0xffff0000, v{src+1}")
        for j in range(4): a(f"v_add_f32 v{32+j}, v{32+j}, v{36+j}")
        for j in range(4): a(f"v_add_f32 v{dst+j}, v{dst+j}, v{32+j}")
    L_side = "B2_side"
    a(f"s_cmp_ge_u32 s{sW}, 4")
    a(f"s_cbranch_scc1 {L_side}")
    a(f"s_lshl_b32 s{sSoffW}, s{sRho}, 13")
    a(f"s_mov_b32 s{sWrapW}, {96*1024}")
    a(f"s_mov_b32 s{sRst}, 0")
    def wload(r):
        a(f"s_add_u32 s{sT2}, s{sWb}, s{sSoffW}")
        a(f"s_add_u32 s{sT}, s{sSoffW}, 1024")
        a(f"buffer_load_dwordx4 {vr(r,4)}, v{vX16}, s[{R_WS}:{R_WS+3}], s{sT2} offen sc1")
        a(f"s_cmp_eq_u32 s{sT}, s{sWrapW}")
        a(f"s_cselect_b32 s{sSoffW}, s{sRst}, s{sT}")
    for k in range(16): wload(WB + 4*k)
    st.mark("setup")
    a("s_barrier")
    a(f"s_mov_b32 s{sIt}, 0")
    L1 = "B2_p1"
    a.label(L1)
    XBUF = 32
    for j in range(16):
        k = j % 8
        if k == 0:
            a("s_barrier")
            a(f"s_lshl_b32 s{sT}, s{sIt}, 1")
            if j: a(f"s_add_u32 s{sT}, s{sT}, 1")
            a(f"s_and_b32 s{sT}, s{sT}, {NXS-1}")
            a(f"s_lshl_b32 s{sT}, s{sT}, 13")
            a(f"v_add_u32 v{vXa}, s{sT}, v{vX16}")
            for i in range(3):
                a(f"ds_read_b128 {vr(XBUF+4*i,4)}, v{vXa} offset:{i*1024}")
        if j == 0:
            L1n = "B2_p1n"
            a(f"s_cmp_lg_u32 s{sIt}, 5")
            a(f"s_cbranch_scc1 {L1n}")
            a(f"s_mul_i32 s{sSoffW}, s{sRho}, {5*1024}")
            a(f"s_add_u32 s{sSoffW}, s{sSoffW}, {96*1024}")
            a(f"s_mov_b32 s{sWrapW}, {136*1024}")
            a(f"s_mov_b32 s{sRst}, {96*1024}")
            a.label(L1n)
        if k + 3 < 8:
            a(f"ds_read_b128 {vr(XBUF+4*((k+3)%4),4)}, v{vXa} offset:{(k+3)*1024}")
            a("s_waitcnt vmcnt(15) lgkmcnt(3)")
        else:
            a(f"s_waitcnt vmcnt(15) lgkmcnt({7-k})")
        a(f"v_mfma_f32_32x32x16_bf16 {vr(ACC,16)}, {vr(WB+4*j,4)}, {vr(XBUF+4*(k%4),4)}, {vr(ACC,16)}")
        wload(WB + 4*j)
    a(f"s_add_u32 s{sIt}, s{sIt}, 1")
    a(f"s_cmp_lt_u32 s{sIt}, 6")
    a(f"s_cbranch_scc1 {L1}")
    st.mark("ffn2")
    a.nop(12)
    for q in range(4): unpack_add(q, ACC+4*q)
    XBUF = XR
    NBLK = 20
    def blk(s_):
        b = s_ % NBLK
        return (WB + 4*b) if b < 16 else (32 + 4*(b-16))
    for s_ in range(16, 20): wload(blk(s_))
    a("s_barrier")
    a(f"s_branch B2_oload")
    a.label(L_side)
    a(f"s_sub_u32 s{sT3}, s{sW}, 4")
    a("s_waitcnt vmcnt(0)")
    for jj in range(1, 4):
        Ls = a.newlabel("B2_q")
        a(f"s_cmp_lg_u32 s{sT3}, {jj}")
        a(f"s_cbranch_scc1 {Ls}")
        a(f"v_mov_b32 v{XR}, v{XR+2*jj}")
        a(f"v_mov_b32 v{XR+1}, v{XR+2*jj+1}")
        a(f"v_mov_b32 v{XR+8}, v{XR+8+2*jj}")
        a(f"v_mov_b32 v{XR+9}, v{XR+8+2*jj+1}")
        a.label(Ls)
    for j in range(4): a(f"v_mov_b32 v{40+j}, 0")
    unpack_add(0, 40)
    a(f"s_lshl_b32 s{sRst}, s{sT3}, 11")
    a(f"s_lshl_b32 s{sSoffW}, s{sRho}, 13")
    a(f"s_add_u32 s{sSoffW}, s{sSoffW}, s{sRst}")
    a(f"s_add_u32 s{sWrapW}, s{sRst}, {96*1024}")
    SD = 4
    def wpair(slot):
        a(f"s_add_u32 s{sT2}, s{sWb}, s{sSoffW}")
        a(f"s_add_u32 s{sT}, s{sSoffW}, 8192")
        a(f"buffer_load_dwordx4 {vr(WB+8*slot,4)}, v{vX16}, s[{R_WS}:{R_WS+3}], s{sT2} offen sc1")
        a(f"buffer_load_dwordx4 {vr(WB+8*slot+4,4)}, v{vX16}, s[{R_WS}:{R_WS+3}], s{sT2} offen offset:1024 sc1")
        a(f"s_cmp_eq_u32 s{sT}, s{sWrapW}")
        a(f"s_cselect_b32 s{sSoffW}, s{sRst}, s{sT}")
    for c in range(SD): wpair(c)
    a(f"s_cmp_lg_u32 s{sW}, 7")
    a(f"s_cbranch_scc1 B2_nph")
    a(f"s_lshr_b32 s{sT}, s{sRB}, 2")
    a(f"s_lshl_b32 s{sT}, s{sT}, 4")
    poll_flags(a, vT, "B2h", sT, 16, FL_H, sleep=2)
    a.label("B2_nph")
    a("s_barrier")
    a(f"s_sub_u32 s{sT3}, s{sW}, 4")
    a(f"s_mul_i32 s{sT}, s{sRB}, {96*1024}")
    a(f"s_add_u32 s63, s{sT}, {WS_H}")
    a(f"s_lshl_b32 s97, s{sT3}, 11")
    a(f"s_add_u32 s63, s63, s97")
    a(f"s_lshl_b32 s{sSoffX}, s{sRho}, 13")
    a(f"v_add_u32 v{vT+5}, s97, v{vX16}")
    vXs = vT+5
    vm = Cnt(a, "vmcnt", 63)
    def xdma(c):
        a(f"s_add_u32 m0, s97, {(c % NXS)*8192}")
        a(f"s_add_u32 s{sT2}, s63, s{sSoffX}")
        a(f"s_add_u32 s{sT}, s{sSoffX}, 8192")
        for i in range(2):
            a(f"buffer_load_dwordx4 v{vX16}, s[{R_WS}:{R_WS+3}], s{sT2} offen offset:{1024*i} sc1 lds")
        a(f"s_cmp_eq_u32 s{sT}, {96*1024}")
        a(f"s_cselect_b32 s{sSoffX}, 0, s{sT}")
        vm.issue(("X", c), 2)
    for c in range(SD): vm.issue(("W", c), 2)
    XD = 6
    for c in range(XD): xdma(c)
    for c in range(12):
        vm.need(("X", c), ("W", c))
        a("s_barrier")
        if c + XD < 12: xdma(c + XD)
        for i in range(2):
            a(f"ds_read_b128 {vr(48+4*i,4)}, v{vXs} offset:{(c % NXS)*8192 + 1024*i}")
        a("s_waitcnt lgkmcnt(1)")
        a(f"v_mfma_f32_32x32x16_bf16 {vr(ACC,16)}, {vr(WB+8*(c%4),4)}, {vr(48,4)}, {vr(ACC,16)}")
        a("s_waitcnt lgkmcnt(0)")
        a(f"v_mfma_f32_32x32x16_bf16 {vr(ACC,16)}, {vr(WB+8*(c%4)+4,4)}, {vr(52,4)}, {vr(ACC,16)}")
        if c + SD < 12: wpair(c % 4); vm.issue(("W", c + SD), 2)
    a(f"s_sub_u32 s{sT3}, s{sW}, 4")
    a(f"s_lshl_b32 s{sT3}, s{sT3}, 1")
    a(f"s_mul_i32 s62, s{sRho}, 5")
    a(f"s_add_u32 s62, s62, s{sT3}")
    for m in range(5):
        for i in range(2):
            a(f"s_add_u32 s{sT}, s62, {8*m+i}")
            a(f"s_cmp_ge_u32 s{sT}, 40")
            a(f"s_cselect_b32 s{sT2}, 40, 0")
            a(f"s_sub_u32 s{sT}, s{sT}, s{sT2}")
            a(f"s_add_u32 s{sT}, s{sT}, 96")
            a(f"s_lshl_b32 s{sT}, s{sT}, 10")
            a(f"s_add_u32 s{sT}, s{sT}, s{sWb}")
            a(f"buffer_load_dwordx4 {vr(WB+4*(2*m+i),4)}, v{vX16}, s[{R_WS}:{R_WS+3}], s{sT} offen sc1")
    Lnp2 = "B2_np2"
    a(f"s_cmp_lg_u32 s{sW}, 7")
    a(f"s_cbranch_scc1 {Lnp2}")
    a(f"s_lshl_b32 s{sT}, s{sRB}, 5")
    poll_flags(a, vT, "B2o", sT, 32, FL_O, sleep=OPT.get("osleep", 2))
    a.label(Lnp2)
    st.mark("wait_o")
    a("s_barrier")
    a.label("B2_oload")
    a(f"s_mul_i32 s63, s{sRB}, {40*1024}")
    a(f"s_add_u32 s63, s63, {WS_OF}")
    a(f"s_mul_i32 s62, s{sRho}, 5")
    for i in range(5):
        a(f"s_mul_i32 s{sT}, s{sW}, 5")
        a(f"s_add_u32 s{sT}, s{sT}, {i}")
        a(f"s_add_u32 s{sT2}, s{sT}, s62")
        a(f"s_cmp_ge_u32 s{sT2}, 40")
        a(f"s_cselect_b32 s{sIt}, 40, 0")
        a(f"s_sub_u32 s{sT2}, s{sT2}, s{sIt}")
        a(f"s_lshl_b32 s{sT2}, s{sT2}, 10")
        a(f"s_add_u32 s{sT2}, s{sT2}, s63")
        a(f"s_lshl_b32 m0, s{sT}, 10")
        a("s_nop 0")
        a(f"buffer_load_dwordx4 v{vX16}, s[{R_WS}:{R_WS+3}], s{sT2} offen sc1 lds")
    a("s_waitcnt vmcnt(0)")
    a("s_barrier")
    st.mark("oload")
    a(f"s_cmp_ge_u32 s{sW}, 4")
    a(f"s_cbranch_scc1 B2_side2")
    vm = Cnt(a, "vmcnt", 63); lg = Cnt(a, "lgkmcnt", 15)
    def xread(s_):
        r = XBUF + 4*(s_ % 4)
        a(f"ds_read_b128 {vr(r,4)}, v{vX16} offset:{s_*1024}")
        lg.issue(("X", s_))
    for s_ in range(3): xread(s_)
    for s_ in range(40):
        if s_ + 3 < 40: xread(s_ + 3)
        vm.need(("W", s_))
        lg.need(("X", s_))
        a(f"v_mfma_f32_32x32x16_bf16 {vr(ACC,16)}, {vr(blk(s_),4)}, {vr(XBUF+4*(s_%4),4)}, {vr(ACC,16)}")
        if s_ + NBLK < 40:
            wload(blk(s_)); vm.issue(("W", s_ + NBLK))
    st.mark("wo")
    a("s_setprio 3")
    a("s_barrier")
    a.nop(10)
    srd(a, R_C, S_OUT, S_OUT+1, NX)
    for q in range(4):
        a(f"v_cvt_pk_bf16_f32 v{32+2*q}, v{ACC+4*q}, v{ACC+4*q+1}")
        a(f"v_cvt_pk_bf16_f32 v{33+2*q}, v{ACC+4*q+2}, v{ACC+4*q+3}")
        a(f"buffer_store_dwordx2 v[{32+2*q}:{33+2*q}], v{vOut}, s[{R_C}:{R_C+3}], 0 offen offset:{16*q}")
    a("s_barrier")
    st.end()
    a("s_endpgm")
    a.label("B2_side2")
    for k in range(4):
        a(f"ds_read_b128 {vr(48+4*k,4)}, v{vXs} offset:{(8*(k//2)+(k%2))*1024}")
    for k in range(10):
        a(f"s_waitcnt lgkmcnt({min(3, 9-k)})")
        a(f"v_mfma_f32_32x32x16_bf16 {vr(ACC,16)}, {vr(WB+4*k,4)}, {vr(48+4*(k%4),4)}, {vr(ACC,16)}")
        if k + 4 < 10:
            a(f"ds_read_b128 {vr(48+4*(k%4),4)}, v{vXs} offset:{(8*((k+4)//2)+((k+4)%2))*1024}")
    a("s_setprio 3")
    a("s_barrier")
    a.nop(12)
    a(f"s_sub_u32 s{sT3}, s{sW}, 4")
    a(f"s_lshl_b32 s{sT}, s{sT3}, 12")
    a(f"v_add_u32 v{vT}, s{sT}, v{vX16}")
    for q in range(4):
        a(f"ds_write_b128 v{vT}, {vr(ACC+4*q,4)} offset:{q*1024}")
    a("s_waitcnt lgkmcnt(0)")
    a("s_barrier")
    a(f"s_lshl_b32 s{sT}, s{sT3}, 10")
    a(f"v_add_u32 v{vT}, s{sT}, v{vX16}")
    for jj in range(4):
        a(f"ds_read_b128 {vr(ACC+4*jj,4)}, v{vT} offset:{jj*4096}")
    a(f"s_lshl_b32 s{sT}, s{sT3}, 4")
    a(f"v_add_u32 v{vOut}, s{sT}, v{vOut}")
    srd(a, R_C, S_OUT, S_OUT+1, NX)
    a("s_waitcnt lgkmcnt(0)")
    for j in range(4):
        a(f"v_add_f32 v{ACC+j}, v{ACC+j}, v{ACC+4+j}")
        a(f"v_add_f32 v{ACC+8+j}, v{ACC+8+j}, v{ACC+12+j}")
    for j in range(4): a(f"v_add_f32 v{ACC+j}, v{ACC+j}, v{40+j}")
    for j in range(4): a(f"v_add_f32 v{ACC+j}, v{ACC+j}, v{ACC+8+j}")
    a(f"v_cvt_pk_bf16_f32 v32, v{ACC}, v{ACC+1}")
    a(f"v_cvt_pk_bf16_f32 v33, v{ACC+2}, v{ACC+3}")
    a(f"buffer_store_dwordx2 v[32:33], v{vOut}, s[{R_WS if False else R_C}:{R_C+3}], 0 offen")
    st.end()
    a("s_endpgm")

def gen():
    a = Asm()
    a("s_cmp_ge_u32 s2, 512")
    a("s_cbranch_scc1 K_end")
    a("s_load_dwordx16 s[4:19], s[0:1], 0")
    a("s_load_dwordx8 s[20:27], s[0:1], 64")
    a("s_load_dwordx2 s[28:29], s[0:1], 96")
    a(f"v_and_b32 v{vLane}, 63, v0")
    a(f"v_lshrrev_b32 v4, 6, v0")
    a(f"v_lshrrev_b32 v{vH}, 5, v{vLane}")
    a(f"v_readfirstlane_b32 s{sW}, v4")
    a(f"v_and_b32 v{vN}, 31, v{vLane}")
    a("s_waitcnt lgkmcnt(0)")
    srd(a, R_WS, S_WS, S_WS+1, WS_END)
    srd(a, R_FL, S_WS, S_WS+1, FL_SIZE, WS_FL)
    for r in (R_A, R_B, R_C): srd(a, r, S_WS, S_WS+1, WS_END)
    for i in range(4, 16): a(f"v_mov_b32 v{i}, 0")
    a("s_cmp_ge_u32 s2, 256")
    a("s_cbranch_scc1 ROLE_B")
    role_A(a)
    a.label("ROLE_B")
    st = role_B1(a)
    role_B2(a, st)
    a.label("K_end")
    a("s_endpgm")
    grid = OPT.get("grid", 512)
    s = f"; generated by gen7.py\n; @launch grid=({grid},1,1) block=(512,1,1) lds={LDS_BYTES}\n"
    s += '.amdgcn_target "amdgcn-amd-amdhsa--gfx950"\n.text\n'
    s += kernel_header(KN) + a.text()
    s += '.section .rodata,"a"\n.p2align 6\n' + kernel_desc(KN, 128, 102)
    return s

if __name__ == "__main__":
    if "--prof" in sys.argv: PROF = True
    for x in sys.argv:
        if x.startswith("-D"):
            k, _, v = x[2:].partition("="); OPT[k] = int(v) if v else 1
    open(sys.argv[1], "w").write(gen())
    if PROF: json.dump(STAMP_NAMES, open("stamps7.json", "w"))
```

```python
import sys, math, json
from asmlib import *

NAME = "parallel_sum__grouped_kv_mqa__dense_activation_squared_relu__prompt"
KN = NAME + "_kernel"
WS_XF = 0x0
WS_R  = 0x280000
WS_KV = 0x290000
WS_OF = 0x2D0000
WS_H  = 0x550000
WS_FL = 0xB50000
WS_WF = 0xBC0000
WS_END = 0xE70000
WS_DBG = 0x2000000
FL_KV, FL_D, FL_H, FL_W, FL_O = 0, 128, 640, 896, 1152
FL_N = 3200
FL_SIZE = FL_N * 128
NX = 2048 * 640 * 2
QSCALE = (20 ** -0.5) * math.log2(math.e)
DELTA = 96.0
LDS_BYTES = 81920
PROF = False
OPT = {}
SPIN_MAX = 200000

S_X, S_WQ, S_WK, S_WV, S_WO, S_W1, S_B1, S_W2, S_B2, S_OUT, S_DBG, S_WS = 4, 6, 8, 10, 12, 16, 18, 20, 22, 24, 26, 28
sW = 30
sTag = 31
R_WS = 32
R_FL = 36
R_A = 40
R_B = 44
R_C = 48
sRB, sCG, sT, sT2, sT3 = 52, 53, 54, 55, 56
vLane, vH, vN = 1, 2, 3

class Stamps:
    def __init__(self, a, role): self.a = a; self.n = 1; self.names = []; self.role = role
    def start(self):
        if not PROF: return
        for i in range(68, 94): self.a(f"s_mov_b32 s{i}, 0")
        self.a("s_memrealtime s[64:65]"); self.a("s_memtime s[66:67]"); self.a("s_waitcnt lgkmcnt(0)"); self.n = 2
    def mark(self, name):
        if not PROF: return
        assert self.n < 15
        self.a(f"s_memtime s[{64+2*self.n}:{65+2*self.n}]"); self.a("s_waitcnt lgkmcnt(0)")
        self.n += 1; self.names.append(name)
    def end(self):
        if not PROF: return
        a = self.a
        a("s_waitcnt vmcnt(0)")
        self.mark("final-drain")
        a("s_memrealtime s[94:95]"); a("s_waitcnt lgkmcnt(0)")
        a("s_mov_b64 exec, 1")
        a(f"s_lshl_b32 s98, s2, 3")
        a(f"s_add_u32 s98, s98, s{sW}")
        a(f"s_lshl_b32 s98, s98, 6")
        a(f"s_add_u32 s98, s98, {WS_DBG}")
        a(f"s_add_u32 s96, s{S_WS}, s98")
        a(f"s_addc_u32 s97, s{S_WS+1}, 0")
        a(f"v_mov_b32 v0, 0")
        for i in list(range(14)) + [15]:
            a(f"v_mov_b32 v1, s{64+2*i}")
            a(f"global_store_dword v0, v1, s[96:97] offset:{4*i}")
        a(f"v_mov_b32 v1, {self.n}")
        a(f"global_store_dword v0, v1, s[96:97] offset:56")
        a("s_waitcnt vmcnt(0)")
        STAMP_NAMES[self.role] = self.names
STAMP_NAMES = {}

def bf16_round(a, dst, src):
    a(f"v_cvt_pk_bf16_f32 v{dst}, v{src}, v{src}")
    a(f"v_lshlrev_b32 v{dst}, 16, v{dst}")

def decode_rb_cg(a, j):
    a(f"s_lshr_b32 s{sCG}, s{j}, 6")
    a(f"s_and_b32 s{sRB}, s{j}, 7")
    a(f"s_lshl_b32 s{sRB}, s{sRB}, 3")
    a(f"s_bfe_u32 s{sT}, s{j}, 0x30003")
    a(f"s_add_u32 s{sRB}, s{sRB}, s{sT}")

def get_tag(a, vt, lab):
    L = f"{lab}_tag"
    a(f"s_mov_b32 s{sT3}, {SPIN_MAX}")
    a(f"v_mov_b32 v{vt}, 0")
    a.label(L)
    a(f"global_load_dword v{vt+1}, v{vt}, s[{S_DBG}:{S_DBG+1}] sc1")
    a("s_waitcnt vmcnt(0)")
    a(f"v_readfirstlane_b32 s{sTag}, v{vt+1}")
    a(f"s_sub_u32 s{sT3}, s{sT3}, 1")
    a(f"s_cmp_eq_u32 s{sT3}, 0")
    a(f"s_cbranch_scc1 {L}_done")
    a(f"s_cmp_eq_u32 s{sTag}, 0")
    a(f"s_cbranch_scc0 {L}_done")
    a("s_sleep 1")
    a(f"s_branch {L}")
    a.label(f"{L}_done")

def poll_flags(a, vt, lab, s_idx, nflags, region, tries=None, sleep=None):
    if nflags == 128:
        poll_flags(a, vt, lab + "a", None, 64, region, tries, sleep)
        poll_flags(a, vt, lab + "b", None, 64, region + 64, tries, sleep)
        return
    L = f"{lab}_poll"
    a(f"v_lshlrev_b32 v{vt}, 7, v{vLane}")
    if s_idx is None:
        a(f"s_mov_b32 s63, {region*128}")
    else:
        a(f"s_lshl_b32 s63, s{s_idx}, 7")
        if region: a(f"s_add_u32 s63, s63, {region*128}")
    a(f"s_mov_b32 s{sT3}, {tries or SPIN_MAX}")
    a("s_mov_b64 s[100:101], exec")
    if nflags < 64:
        a(f"s_mov_b32 exec_lo, {(1 << min(nflags, 32)) - 1 if nflags < 32 else -1}")
        a(f"s_mov_b32 exec_hi, {((1 << (nflags - 32)) - 1) if nflags > 32 else 0}")
    a.label(L)
    a(f"buffer_load_dword v{vt+1}, v{vt}, s[{R_FL}:{R_FL+3}], s63 offen sc1")
    a("s_waitcnt vmcnt(0)")
    a(f"v_cmp_ne_u32 vcc, s{sTag}, v{vt+1}")
    a("s_nop 1")
    a(f"s_and_b64 exec, exec, vcc")
    a(f"s_cbranch_execz {L}_done")
    a(f"s_sub_u32 s{sT3}, s{sT3}, 1")
    a(f"s_cmp_eq_u32 s{sT3}, 0")
    a(f"s_cbranch_scc1 {L}_done")
    a(f"s_sleep {sleep if sleep is not None else OPT.get('sleep', 6)}")
    a(f"s_branch {L}")
    a.label(f"{L}_done")
    a("s_mov_b64 exec, s[100:101]")

def set_flag(a, vt, s_idx, region):
    a(f"v_mov_b32 v{vt}, s{sTag}")
    a(f"v_mov_b32 v{vt+1}, 0")
    a(f"s_lshl_b32 s63, s{s_idx}, 7")
    if region: a(f"s_add_u32 s63, s63, {region*128}")
    a("s_mov_b64 s[100:101], exec")
    a("s_mov_b64 exec, 1")
    a(f"buffer_store_dword v{vt}, v{vt+1}, s[{R_FL}:{R_FL+3}], s63 offen sc1")
    a("s_mov_b64 exec, s[100:101]")

def tr_addr(a, dst, dst2, pitch, hrows, second_rows, s_base, t):
    a(f"v_bfe_u32 v{t}, v{vLane}, 2, 2")
    a(f"v_mul_u32_u24 v{t+1}, {hrows}, v{vH}")
    a(f"v_add_u32 v{t}, v{t}, v{t+1}")
    a(f"v_bfe_u32 v{t+1}, v{vLane}, 4, 1")
    a(f"v_and_b32 v{t+2}, 3, v{vLane}")
    a(f"v_lshlrev_b32 v{t+2}, 3, v{t+2}")
    a(f"v_lshl_add_u32 v{t+1}, v{t+1}, 5, v{t+2}")
    a(f"v_mul_u32_u24 v{dst}, {pitch}, v{t}")
    a(f"v_add3_u32 v{dst}, v{dst}, v{t+1}, s{s_base}")
    if dst2 is not None:
        a(f"v_add_u32 v{dst2}, {second_rows*pitch}, v{dst}")

def role_A(a):
    OPT["nopre0"] = 1
    st = Stamps(a, "A")
    st.start()
    XB = 0; XP = 1056; XH = 528; RBUF = 42240
    RING = 42496; NSTG = 3; RW = NSTG*1024; DEPTH = 16
    KSTG = 57856
    KVX = 67072
    LFL = XB + 512
    LFL2 = XB + 1040
    T4F = 75264
    SB = [0, 16384, 32768, 49152]
    QBUF = 65536; QP = 328
    sStep, sSoff, sLds, sRho, sWrap, sIt = 57, 58, 59, 60, 61, 57
    sExp, sFD = 95, 94
    vT = 4
    vVo, vTr, vTr2, vX16 = 12, 13, 14, 15
    X = 16
    TMP = 36
    vSum, vSq, vM = 52, 53, 54
    vOne, vSelLo, vSelHi = 56, 57, 58
    vR, vXa, vWst, vTag = 9, 10, 11, 61
    ACC = 16; FB = 32; WS_ = 64
    a(f"s_mov_b32 s{sT2}, s2")
    decode_rb_cg(a, sT2)
    L_notag = "A_notag"
    a(f"s_cmp_lg_u32 s2, 0")
    a(f"s_cbranch_scc1 {L_notag}")
    a(f"s_cmp_lg_u32 s{sW}, 0")
    a(f"s_cbranch_scc1 {L_notag}")
    a(f"s_memrealtime s[62:63]")
    a("s_waitcnt lgkmcnt(0)")
    a(f"s_or_b32 s62, s62, 1")
    a(f"v_mov_b32 v{vT}, s62")
    a(f"v_mov_b32 v{vT+1}, 0")
    a("s_mov_b64 exec, 1")
    a(f"global_store_dword v{vT+1}, v{vT}, s[{S_DBG}:{S_DBG+1}] sc1")
    a("s_mov_b64 exec, -1")
    a.label(L_notag)
    srd(a, R_A, S_X, S_X+1, NX)
    a(f"s_lshl_b32 s{sT}, s{sRB}, 5")
    a(f"s_lshl_b32 s{sT2}, s{sW}, 2")
    a(f"s_add_u32 s{sT}, s{sT}, s{sT2}")
    a(f"v_lshrrev_b32 v{vT}, 4, v{vLane}")
    a(f"v_add_u32 v{vT}, s{sT}, v{vT}")
    a(f"v_mul_u32_u24 v{vT}, 1280, v{vT}")
    a(f"v_and_b32 v{vT+1}, 15, v{vLane}")
    a(f"v_lshl_add_u32 v{vT}, v{vT+1}, 4, v{vT}")
    for i in range(5):
        a(f"buffer_load_dwordx4 {vr(X+4*i,4)}, v{vT}, s[{R_A}:{R_A+3}], 0 offen offset:{256*i}")
    a(f"v_lshlrev_b32 v{vX16}, 4, v{vLane}")
    a(f"s_and_b32 s{sRho}, s{sRB}, 7")
    L_nowe = "A_nowe"
    a(f"s_cmp_lt_u32 s{sW}, 5")
    a(f"s_cbranch_scc1 {L_nowe}")
    a(f"s_cmp_ge_u32 s{sCG}, 2")
    a(f"s_cbranch_scc1 {L_nowe}")
    a(f"s_cmp_eq_u32 s{sCG}, 1")
    a(f"s_cselect_b32 s{R_B}, s{S_WV}, s{S_WK}")
    a(f"s_cselect_b32 s{R_B+1}, s{S_WV+1}, s{S_WK+1}")
    a(f"s_mov_b32 s{R_B+2}, {640*20*2}")
    a(f"s_mov_b32 s{R_B+3}, 0x00020000")
    a(f"s_sub_u32 s{sT}, s{sW}, 5")
    a(f"s_mul_i32 s{sStep}, s{sT}, 13")
    a(f"s_min_u32 s{sT}, s{sT}, 1")
    a(f"s_add_u32 s{sStep}, s{sStep}, s{sT}")
    a(f"s_mul_i32 s{sT}, s{sRho}, 5")
    a(f"s_add_u32 s{sT2}, s{sStep}, s{sT}")
    a(f"s_cmp_ge_u32 s{sT2}, 40")
    a(f"s_cselect_b32 s{sT}, 40, 0")
    a(f"s_sub_u32 s{sT2}, s{sT2}, s{sT}")
    a(f"s_mul_i32 s{sSoff}, s{sT2}, 640")
    for i in range(14):
        a(f"s_add_u32 s{sT}, s{sSoff}, 640")
        a(f"buffer_load_dwordx4 {vr(WS_+4*i,4)}, v{vX16}, s[{R_B}:{R_B+3}], s{sSoff} offen")
        a(f"s_cmp_eq_u32 s{sT}, 25600")
        a(f"s_cselect_b32 s{sSoff}, 0, s{sT}")
    a.label(L_nowe)
    a("s_barrier")
    L_nq = "A_nq"
    a(f"s_cmp_ge_u32 s{sW}, 5")
    a(f"s_cbranch_scc1 {L_nq}")
    srd(a, R_B, S_WQ, S_WQ+1, 640*640*2)
    a(f"v_lshrrev_b32 v{vT}, 2, v{vLane}")
    a(f"v_mul_u32_u24 v{vT}, 1280, v{vT}")
    a(f"v_and_b32 v{vT+1}, 3, v{vLane}")
    a(f"v_lshl_add_u32 v{vT}, v{vT+1}, 4, v{vT}")
    a(f"s_mul_i32 s{sT}, s{sCG}, 320")
    a(f"s_lshl_b32 s{sT2}, s{sW}, 6")
    a(f"s_add_u32 s{sT}, s{sT}, s{sT2}")
    a(f"v_add_u32 v{vVo}, s{sT}, v{vT}")
    a(f"s_mul_i32 s{sLds}, s{sW}, {RW}")
    a(f"s_add_u32 s{sLds}, s{sLds}, {RING}")
    a(f"s_mul_i32 s{sSoff}, s{sRho}, {5*20480}")
    def wload(k):
        d = WS_ + 4*(k % DEPTH)
        a(f"s_add_u32 s{sT}, s{sSoff}, 20480")
        a(f"buffer_load_dwordx4 {vr(d,4)}, v{vVo}, s[{R_B}:{R_B+3}], s{sSoff} offen")
        a(f"s_cmp_eq_u32 s{sT}, {40*20480}")
        a(f"s_cselect_b32 s{sSoff}, 0, s{sT}")
    NW0 = OPT.get("NW0", 8)
    for k in range(NW0): wload(k)
    tr_addr(a, vTr, vTr2, 64, 8, 4, sLds, vT)
    a(f"v_add_u32 v{vWst}, s{sLds}, v{vX16}")
    a(f"s_waitcnt vmcnt({NW0})")
    a(f"s_mov_b32 s{sTag}, 0")
    a(f"s_branch A_xok")
    a.label(L_nq)
    a(f"s_waitcnt vmcnt(14)")
    a(f"s_cmp_lt_u32 s{sCG}, 2")
    a(f"s_cbranch_scc1 A_xok2")
    a(f"s_waitcnt vmcnt(0)")
    a.label("A_xok2")
    a(f"v_mov_b32 v{vT}, 0")
    a(f"global_load_dword v{vTag}, v{vT}, s[{S_DBG}:{S_DBG+1}] sc1")
    a.label("A_xok")
    st.mark("xwait")
    a(f"v_mov_b32 v{vOne}, 0x3f803f80")
    a(f"v_mov_b32 v{vSelLo}, 0x00003f80")
    a(f"v_mov_b32 v{vSelHi}, 0x3f800000")
    for i in range(4): a(f"v_mov_b32 v{TMP+i}, 0")
    for i in range(20):
        a(f"v_dot2c_f32_bf16 v{TMP+(i%2)}, v{X+i}, v{vOne}")
        a(f"v_dot2c_f32_bf16 v{TMP+2+(i%2)}, v{X+i}, v{X+i}")
    a(f"v_lshrrev_b32 v{vT}, 4, v{vLane}")
    a(f"s_lshl_b32 s{sT}, s{sW}, 2")
    a(f"v_add_u32 v{vT}, s{sT}, v{vT}")
    a(f"v_and_b32 v{vT+1}, 1, v{vLane}")
    a(f"v_mul_u32_u24 v{vT+1}, {XH}, v{vT+1}")
    a(f"v_lshl_add_u32 v{vT+1}, v{vT}, 4, v{vT+1}")
    a(f"v_add_f32 v{vSum}, v{TMP}, v{TMP+1}")
    a(f"v_add_f32 v{vSq}, v{TMP+2}, v{TMP+3}")
    a(f"v_bfe_u32 v{vT+2}, v{vLane}, 1, 3")
    a(f"s_mul_i32 s{sT}, s{sRho}, 5")
    a(f"s_sub_u32 s{sT}, 40, s{sT}")
    for ror in (8, 4, 2, 1):
        a(f"v_add_f32_dpp v{vSum}, v{vSum}, v{vSum} row_ror:{ror} row_mask:0xf bank_mask:0xf")
        a(f"v_add_f32_dpp v{vSq}, v{vSq}, v{vSq} row_ror:{ror} row_mask:0xf bank_mask:0xf")
        if ror != 1: a.nop(1)
    a(f"v_add_u32 v{vT+2}, s{sT}, v{vT+2}")
    inv = f32bits(1.0/640)
    a(f"v_mul_f32 v{vM}, {inv}, v{vSum}")
    a(f"v_mul_f32 v{TMP+1}, {inv}, v{vSq}")
    a(f"v_fma_f32 v{TMP+1}, -v{vM}, v{vM}, v{TMP+1}")
    a(f"v_max_f32 v{TMP+1}, 0, v{TMP+1}")
    bf16_round(a, TMP+1, TMP+1)
    bf16_round(a, vM, vM)
    a(f"v_add_f32 v{TMP+1}, {f32bits(1e-5)}, v{TMP+1}")
    a(f"v_sub_f32 v{vM}, 0, v{vM}")
    bf16_round(a, TMP+1, TMP+1)
    a(f"v_sqrt_f32 v{vSum}, v{TMP+1}")
    for base in range(0, 20, 8):
        g = min(8, 20-base)
        for i in range(g):
            a(f"v_dot2_f32_bf16 v{TMP+2*i}, v{X+base+i}, v{vSelLo}, v{vM}")
            a(f"v_dot2_f32_bf16 v{TMP+2*i+1}, v{X+base+i}, v{vSelHi}, v{vM}")
        if base == 0:
            bf16_round(a, vSum, vSum)
            a(f"v_rcp_f32 v{vR}, v{vSum}")
        else:
            a.nop(3)
        for i in range(g):
            a(f"v_cvt_pk_bf16_f32 v{X+base+i}, v{TMP+2*i}, v{TMP+2*i+1}")
    a(f"v_lshlrev_b32 v{vT+3}, 2, v{vT}")
    a(f"ds_write_b32 v{vT+3}, v{vR} offset:{RBUF}")
    for i in range(5):
        if i: a(f"v_add_u32 v{vT+2}, 8, v{vT+2}")
        a(f"v_subrev_u32 v{vT+3}, 40, v{vT+2}")
        a(f"v_min_u32 v{vT+3}, v{vT+3}, v{vT+2}")
        a(f"v_mul_u32_u24 v{vT+3}, {XP}, v{vT+3}")
        a(f"v_add_u32 v{vT+3}, v{vT+3}, v{vT+1}")
        a(f"ds_write_b128 v{vT+3}, {vr(X+4*i,4)} offset:{XB}")
    a(f"v_mul_u32_u24 v{vXa}, {XH}, v{vH}")
    a(f"v_lshl_add_u32 v{vXa}, v{vN}, 4, v{vXa}")
    a(f"s_cmp_ge_u32 s{sW}, 5")
    a(f"s_cbranch_scc1 A_ln5")
    for k in range(NW0, 10): wload(k)
    a(f"s_cmp_eq_u32 s{sW}, 4")
    a(f"s_cbranch_scc1 A_lnb")
    for k in range(10, DEPTH): wload(k)
    a(f"s_branch A_lnb")
    a.label("A_ln5")
    a(f"v_mov_b32 v{vT}, {LFL}")
    for i in range(4): a(f"v_mov_b32 v{TMP+i}, 0")
    a(f"ds_write_b128 v{vT}, v[{TMP}:{TMP+3}]")
    a(f"ds_write_b128 v{vT}, v[{TMP}:{TMP+3}] offset:{LFL2-LFL}")
    a("s_waitcnt vmcnt(0)")
    a(f"v_readfirstlane_b32 s{sTag}, v{vTag}")
    a.label("A_lnb")
    a("s_waitcnt lgkmcnt(0)")
    a("s_barrier")
    a(f"v_lshlrev_b32 v{vT}, 2, v{vN}")
    a(f"ds_read_b32 v{vR}, v{vT} offset:{RBUF}")
    st.mark("LN")
    def ensure_tag(lab):
        a(f"s_cmp_lg_u32 s{sTag}, 0")
        a(f"s_cbranch_scc1 {lab}_have")
        get_tag(a, vT, lab)
        a.label(f"{lab}_have")
    L_kvp, L_exp, L_bar1 = "A_kvp", "A_exp", "A_bar1"
    a(f"s_cmp_ge_u32 s{sW}, 5")
    a(f"s_cbranch_scc1 {L_kvp}")
    a(f"s_cmp_eq_u32 s{sW}, 4")
    a(f"s_cbranch_scc1 A_job4")
    if OPT.get("noq"): a(f"s_branch {L_bar1}")
    def pipe_gemm(nsteps, wr, rd, need_vm, refill, cin0):
        for k in range(5):
            if k < nsteps:
                need_vm(k, -5 + k)
                wr(k)
            if 0 <= k - 2 < nsteps: rd(k - 2)
        for s_ in range(nsteps):
            n_ops = 0
            if s_ + 5 < nsteps:
                need_vm(s_ + 5, s_)
                wr(s_ + 5)
            if s_ + 3 < nsteps: rd(s_ + 3)
            for t in range(s_ + 1, s_ + 4):
                if t + 2 < nsteps: n_ops += 1
                if t < nsteps: n_ops += 3
            a(f"s_waitcnt lgkmcnt({n_ops})")
            f = FB + 8*(s_ % 4)
            cin = cin0 if s_ == 0 else vr(ACC, 16)
            a(f"v_mfma_f32_32x32x16_bf16 {vr(ACC,16)}, {vr(f,4)}, {vr(f+4,4)}, {cin}")
            refill(s_)
    def q_wr(k): a(f"ds_write_b128 v{vWst}, {vr(WS_+4*(k % DEPTH),4)} offset:{(k % NSTG)*1024}")
    def q_rd(k):
        f = FB + 8*(k % 4)
        a(f"ds_read_b64_tr_b16 v[{f}:{f+1}], v{vTr} offset:{(k % NSTG)*1024}")
        a(f"ds_read_b64_tr_b16 v[{f+2}:{f+3}], v{vTr2} offset:{(k % NSTG)*1024}")
        a(f"ds_read_b128 {vr(f+4,4)}, v{vXa} offset:{XB + k*XP}")
    def q_vm(k, s_now):
        issued = DEPTH + max(0, min(s_now, 40 - DEPTH + QOFF) - QOFF) if s_now > 0 else DEPTH
        issued = min(issued, 40)
        a(f"s_waitcnt vmcnt({issued - 1 - k})")
    QOFF = 0
    def q_refill(s_):
        if s_ + DEPTH < 40: wload(s_ + DEPTH)
    pipe_gemm(40, q_wr, q_rd, q_vm, q_refill, "0")
    st.mark("gemm")
    a.nop(12)
    a(f"v_mul_f32 v{vT}, {f32bits(QSCALE)}, v{vR}")
    for j in range(16): a(f"v_mul_f32 v{ACC+j}, v{ACC+j}, v{vT}")
    for k in range(8): a(f"v_cvt_pk_bf16_f32 v{TMP+k}, v{ACC+2*k}, v{ACC+2*k+1}")
    a(f"s_branch {L_bar1}")

    JW = WS_ + 20
    def job_loads():
        srd(a, R_B, S_WQ, S_WQ+1, 640*640*2)
        a(f"v_lshrrev_b32 v{vT}, 2, v{vLane}")
        a(f"v_mul_u32_u24 v{vT}, 1280, v{vT}")
        a(f"v_and_b32 v{vT+1}, 3, v{vLane}")
        a(f"v_lshl_add_u32 v{vT}, v{vT+1}, 4, v{vT}")
        a(f"s_mul_i32 s{sT}, s{sCG}, 320")
        a(f"s_add_u32 s{sT}, s{sT}, 256")
        a(f"v_add_u32 v{vT}, s{sT}, v{vT}")
        a(f"s_sub_u32 s{sT}, s{sW}, 4")
        a(f"s_mul_i32 s{sT}, s{sT}, 10")
        a(f"s_mul_i32 s{sT2}, s{sRho}, 5")
        a(f"s_add_u32 s{sT}, s{sT}, s{sT2}")
        a(f"s_cmp_ge_u32 s{sT}, 40")
        a(f"s_cselect_b32 s{sT2}, 40, 0")
        a(f"s_sub_u32 s{sT}, s{sT}, s{sT2}")
        a(f"s_mul_i32 s{sSoff}, s{sT}, 20480")
        for k in range(10):
            a(f"s_add_u32 s{sT}, s{sSoff}, 20480")
            a(f"buffer_load_dwordx4 {vr(JW+4*k,4)}, v{vT}, s[{R_B}:{R_B+3}], s{sSoff} offen")
            a(f"s_cmp_eq_u32 s{sT}, {40*20480}")
            a(f"s_cselect_b32 s{sSoff}, 0, s{sT}")
    def job_run(raw, vm_after):
        tr_addr(a, vTr, vTr2, 64, 8, 4, sLds, vT)
        a(f"v_add_u32 v{vWst}, s{sLds}, v{vX16}")
        a(f"s_sub_u32 s{sT}, s{sW}, 4")
        a(f"s_mul_i32 s{sT}, s{sT}, {10*XP}")
        a(f"v_add_u32 v{vVo}, s{sT}, v{vXa}")
        def j_wr(k): a(f"ds_write_b128 v{vWst}, {vr(raw+4*k,4)} offset:{(k % NSTG)*1024}")
        def j_rd(k):
            f = FB + 8*(k % 4)
            a(f"ds_read_b64_tr_b16 v[{f}:{f+1}], v{vTr} offset:{(k % NSTG)*1024}")
            a(f"ds_read_b64_tr_b16 v[{f+2}:{f+3}], v{vTr2} offset:{(k % NSTG)*1024}")
            a(f"ds_read_b128 {vr(f+4,4)}, v{vVo} offset:{k*XP}")
        def j_vm(k, s_): a(f"s_waitcnt vmcnt({9 - k + vm_after})")
        pipe_gemm(10, j_wr, j_rd, j_vm, lambda s_: None, "0")
        a("s_waitcnt lgkmcnt(0)")
        a.nop(12)
    def job_publish():
        Lp5, Lpd = a.newlabel("A_jp5"), a.newlabel("A_jpd")
        a(f"s_cmp_eq_u32 s{sW}, 5")
        a(f"s_cbranch_scc1 {Lp5}")
        for q in range(3): a(f"ds_write_b128 v{vWst}, {vr(ACC+4*q,4)} offset:{q*1024}")
        a(f"s_sub_u32 s{sT}, s{sW}, 6")
        a(f"s_lshl_b32 s{sT}, s{sT}, 10")
        a(f"s_add_u32 s{sT}, s{sT}, {T4F}")
        a(f"v_add_u32 v{vT}, s{sT}, v{vX16}")
        a(f"ds_write_b128 v{vT}, {vr(ACC+12,4)}")
        a(f"s_branch {Lpd}")
        a.label(Lp5)
        a(f"v_add_u32 v{vT}, {KVX+4096}, v{vX16}")
        for q in range(4): a(f"ds_write_b128 v{vT}, {vr(ACC+4*q,4)} offset:{q*1024}")
        a.label(Lpd)
        a(f"s_sub_u32 s{sT}, s{sW}, 5")
        a(f"s_lshl_b32 s{sT}, s{sT}, 2")
        a(f"s_add_u32 s{sT}, s{sT}, {LFL2}")
        a(f"v_mov_b32 v{vT}, s{sT}")
        a(f"v_mov_b32 v{vT+1}, 1")
        a(f"ds_write_b32 v{vT}, v{vT+1}")
    a.label("A_job4")
    job_run(WS_, 0)
    a(f"v_mov_b32 v{vT}, {LFL2}")
    a(f"s_mov_b32 s{sT3}, {SPIN_MAX}")
    a.label("A_j4spin")
    a(f"ds_read_b96 v[{vT+2}:{vT+4}], v{vT}")
    a("s_waitcnt lgkmcnt(0)")
    a(f"v_and_b32 v{vT+2}, v{vT+2}, v{vT+3}")
    a(f"v_and_b32 v{vT+2}, v{vT+2}, v{vT+4}")
    a("s_nop 0")
    a(f"v_readfirstlane_b32 s{sT}, v{vT+2}")
    a(f"s_sub_u32 s{sT3}, s{sT3}, 1")
    a(f"s_cmp_eq_u32 s{sT3}, 0")
    a(f"s_cbranch_scc1 A_j4spin_done")
    a(f"s_cmp_eq_u32 s{sT}, 1")
    a(f"s_cbranch_scc0 A_j4spin")
    a.label("A_j4spin_done")
    a(f"v_add_u32 v{vT}, {KVX+4096}, v{vX16}")
    a(f"v_add_u32 v{vT+1}, {KSTG+3072}, v{vX16}")
    a(f"v_add_u32 v{vT+2}, {T4F}, v{vX16}")
    for q in range(4): a(f"ds_read_b128 {vr(64+4*q,4)}, v{vT} offset:{q*1024}")
    for p_ in range(2):
        for q in range(3): a(f"ds_read_b128 {vr(80+16*p_+4*q,4)}, v{vT+1} offset:{p_*3072 + q*1024}")
        a(f"ds_read_b128 {vr(80+16*p_+12,4)}, v{vT+2} offset:{p_*1024}")
    a("s_waitcnt lgkmcnt(0)")
    for j in range(16): a(f"v_add_f32 v{64+j}, v{64+j}, v{80+j}")
    for j in range(16): a(f"v_add_f32 v{ACC+j}, v{ACC+j}, v{96+j}")
    for j in range(16): a(f"v_add_f32 v{ACC+j}, v{ACC+j}, v{64+j}")
    st.mark("job4")
    a(f"v_mul_f32 v{vT}, {f32bits(QSCALE)}, v{vR}")
    for j in range(16): a(f"v_mul_f32 v{ACC+j}, v{ACC+j}, v{vT}")
    for k in range(8): a(f"v_cvt_pk_bf16_f32 v{TMP+k}, v{ACC+2*k}, v{ACC+2*k+1}")
    a(f"s_branch {L_bar1}")
    def export_d():
        a(f"s_mul_i32 s{sT}, s{sCG}, 2")
        a(f"s_add_u32 s{sT}, s{sT}, s{sW}")
        a(f"s_sub_u32 s{sT}, s{sT}, 6")
        a(f"s_sub_u32 s{sT2}, s{sT}, s{sRho}")
        a(f"s_and_b32 s{sT2}, s{sT2}, 7")
        a(f"s_mul_i32 s{sT2}, s{sT2}, {5*XP}")
        a(f"v_add_u32 v{vT}, s{sT2}, v{vXa}")
        for i in range(5):
            a(f"ds_read_b128 {vr(X+4*i,4)}, v{vT} offset:{XB + XP*i}")
        a(f"s_mul_i32 s{sT2}, s{sRB}, 40")
        a(f"s_mul_i32 s{sExp}, s{sT}, 5")
        a(f"s_add_u32 s{sT2}, s{sT2}, s{sExp}")
        a(f"s_lshl_b32 s{sT2}, s{sT2}, 10")
        if WS_XF: a(f"s_add_u32 s{sT2}, s{sT2}, {WS_XF}")
        a(f"s_lshl_b32 s{sFD}, s{sRB}, 3")
        a(f"s_add_u32 s{sFD}, s{sFD}, s{sT}")
        a(f"v_add_u32 v{vT+1}, 4096, v{vX16}")
        a("s_waitcnt lgkmcnt(0)")
        for i in range(4):
            a(f"buffer_store_dwordx4 {vr(X+4*i,4)}, v{vX16}, s[{R_WS}:{R_WS+3}], s{sT2} offen offset:{1024*i} sc1")
        a(f"buffer_store_dwordx4 {vr(X+16,4)}, v{vT+1}, s[{R_WS}:{R_WS+3}], s{sT2} offen sc1")
        L_nor = "A_nor"
        a(f"s_cmp_lg_u32 s{sT}, 0")
        a(f"s_cbranch_scc1 {L_nor}")
        a(f"s_lshl_b32 s{sT2}, s{sRB}, 7")
        a(f"s_add_u32 s{sT2}, s{sT2}, {WS_R}")
        a(f"v_lshlrev_b32 v{vT}, 2, v{vN}")
        a(f"buffer_store_dword v{vR}, v{vT}, s[{R_WS}:{R_WS+3}], s{sT2} offen sc1")
        a.label(L_nor)
    a.label(L_kvp)
    a("s_setprio 3")
    if OPT.get("expfirst", 0):
        a(f"s_cmp_lt_u32 s{sW}, 6")
        a(f"s_cbranch_scc1 A_noexp")
        export_d()
        a.label("A_noexp")
    a(f"s_cmp_ge_u32 s{sCG}, 2")
    a(f"s_cbranch_scc1 A_kvp_skip")
    a(f"s_sub_u32 s{sT}, s{sW}, 5")
    a(f"s_mul_i32 s{sLds}, s{sT}, 3072")
    a(f"s_add_u32 s{sLds}, s{sLds}, {KSTG}")
    tr_addr(a, vTr, vTr2, 40, 8, 4, sLds, vT)
    a(f"v_add_u32 v{vWst}, s{sLds}, v{vX16}")
    a(f"s_mul_i32 s{sT}, s{sStep}, {XP}")
    a(f"v_add_u32 v{vVo}, s{sT}, v{vXa}")
    a(f"v_add_u32 v{vT+4}, {13*XP}, v{vVo}")
    a(f"s_cmp_eq_u32 s{sW}, 5")
    a(f"s_cbranch_scc1 A_kv13")
    for i in range(4): a(f"v_mov_b32 v{WS_+52+i}, 0")
    a(f"v_mov_b32 v{vT+4}, v{vXa}")
    a.label("A_kv13")
    def k_wr(k): a(f"ds_write_b128 v{vWst}, {vr(WS_+4*k,4)} offset:{(k % NSTG)*1024}")
    def k_rd(k):
        f = FB + 8*(k % 4)
        a(f"ds_read_b64_tr_b16 v[{f}:{f+1}], v{vTr} offset:{(k % NSTG)*1024}")
        a(f"ds_read_b64_tr_b16 v[{f+2}:{f+3}], v{vTr2} offset:{(k % NSTG)*1024}")
        if k == 13: a(f"ds_read_b128 {vr(f+4,4)}, v{vT+4}")
        else: a(f"ds_read_b128 {vr(f+4,4)}, v{vVo} offset:{k*XP}")
    pipe_gemm(14, k_wr, k_rd, lambda k, s_: None, lambda s_: None, "0")
    a("s_waitcnt lgkmcnt(0)")
    job_loads()
    a(f"s_cmp_eq_u32 s{sW}, 5")
    a(f"s_cbranch_scc1 A_kv5")
    a(f"s_sub_u32 s{sT}, s{sW}, 6")
    a(f"s_lshl_b32 s{sT}, s{sT}, 12")
    a(f"s_add_u32 s{sT}, s{sT}, {KVX}")
    a(f"v_add_u32 v{vT}, s{sT}, v{vX16}")
    for q in range(4):
        a(f"ds_write_b128 v{vT}, {vr(ACC+4*q,4)} offset:{q*1024}")
    a(f"s_sub_u32 s{sT}, s{sW}, 6")
    a(f"s_lshl_b32 s{sT}, s{sT}, 2")
    a(f"s_add_u32 s{sT}, s{sT}, {LFL}")
    a(f"v_mov_b32 v{vT}, s{sT}")
    a(f"v_mov_b32 v{vT+1}, 1")
    a(f"ds_write_b32 v{vT}, v{vT+1}")
    a(f"s_branch A_kvp_done")
    a.label("A_kv5")
    a(f"v_mov_b32 v{vT}, {LFL}")
    a(f"s_mov_b32 s{sT3}, {SPIN_MAX}")
    a.label("A_kvspin")
    a(f"ds_read_b64 v[{vT+2}:{vT+3}], v{vT}")
    a("s_waitcnt lgkmcnt(0)")
    a(f"v_and_b32 v{vT+2}, v{vT+2}, v{vT+3}")
    a("s_nop 0")
    a(f"v_readfirstlane_b32 s{sT}, v{vT+2}")
    a(f"s_sub_u32 s{sT3}, s{sT3}, 1")
    a(f"s_cmp_eq_u32 s{sT3}, 0")
    a(f"s_cbranch_scc1 A_kvspin_done")
    a(f"s_cmp_eq_u32 s{sT}, 1")
    a(f"s_cbranch_scc0 A_kvspin")
    a.label("A_kvspin_done")
    a(f"v_add_u32 v{vT}, {KVX}, v{vX16}")
    for p_ in range(2):
        for q in range(4):
            a(f"ds_read_b128 {vr(FB+16*p_+4*q,4)}, v{vT} offset:{p_*4096 + q*1024}")
    a("s_waitcnt lgkmcnt(0)")
    for j in range(16):
        a(f"v_add_f32 v{FB+j}, v{FB+j}, v{FB+16+j}")
    for j in range(16):
        a(f"v_add_f32 v{ACC+j}, v{ACC+j}, v{FB+j}")
    for j in range(16): a(f"v_mul_f32 v{ACC+j}, v{ACC+j}, v{vR}")
    a(f"v_cmp_eq_u32 vcc, 1, v{vH}")
    a(f"v_mov_b32 v{vT}, 1.0")
    a(f"v_mov_b32 v{vT+1}, 0")
    a(f"v_cndmask_b32 v{ACC+8}, v{ACC+8}, v{vT}, vcc")
    for j in range(9, 12): a(f"v_cndmask_b32 v{ACC+j}, v{ACC+j}, v{vT+1}, vcc")
    for j in range(12, 16): a(f"v_mov_b32 v{ACC+j}, 0")
    for k in range(8): a(f"v_cvt_pk_bf16_f32 v{TMP+k}, v{ACC+2*k}, v{ACC+2*k+1}")
    a(f"s_lshl_b32 s{sT}, s{sRB}, 12")
    a(f"s_add_u32 s{sT}, s{sT}, {WS_KV}")
    L_v = "A_v"; L_kvdone = "A_kvdone"
    a(f"s_cmp_eq_u32 s{sCG}, 1")
    a(f"s_cbranch_scc1 {L_v}")
    a(f"buffer_store_dwordx4 {vr(TMP,4)}, v{vX16}, s[{R_WS}:{R_WS+3}], s{sT} offen sc1")
    a(f"v_lshlrev_b32 v{vT}, 3, v{vLane}")
    a(f"buffer_store_dwordx2 v[{TMP+4}:{TMP+5}], v{vT}, s[{R_WS}:{R_WS+3}], s{sT} offen offset:1024 sc1")
    a(f"s_branch {L_kvdone}")
    a.label(L_v)
    a(f"s_mov_b32 s{sLds}, {KVX}")
    a(f"v_lshlrev_b32 v{vT}, 6, v{vN}")
    a(f"v_lshl_add_u32 v{vT}, v{vH}, 3, v{vT}")
    a(f"v_add_u32 v{vT}, s{sLds}, v{vT}")
    for q in range(4):
        a(f"ds_write_b64 v{vT}, v[{TMP+2*q}:{TMP+2*q+1}] offset:{16*q}")
    tr_addr(a, vTr, None, 64, 4, 8, sLds, vT+1)
    for u in range(2):
        a(f"ds_read_b64_tr_b16 v[{TMP+8+4*u}:{TMP+9+4*u}], v{vTr} offset:{u*1024}")
        a(f"ds_read_b64_tr_b16 v[{TMP+10+4*u}:{TMP+11+4*u}], v{vTr} offset:{u*1024 + 512}")
    a("s_waitcnt lgkmcnt(0)")
    a(f"buffer_store_dwordx4 {vr(TMP+8,4)}, v{vX16}, s[{R_WS}:{R_WS+3}], s{sT} offen offset:2048 sc1")
    a(f"buffer_store_dwordx4 {vr(TMP+12,4)}, v{vX16}, s[{R_WS}:{R_WS+3}], s{sT} offen offset:3072 sc1")
    a.label(L_kvdone)
    ensure_tag("A5")
    a("s_waitcnt vmcnt(0)")
    st.mark("k5:drain")
    a(f"s_lshl_b32 s{sT}, s{sRB}, 1")
    a(f"s_add_u32 s{sT}, s{sT}, s{sCG}")
    set_flag(a, vT, sT, FL_KV)
    a(f"s_mov_b32 s{sLds}, {KSTG}")
    job_run(JW, 1)
    job_publish()
    a(f"s_branch {L_bar1}")
    a.label("A_kvp_skip")
    job_loads()
    a(f"s_cmp_lg_u32 s{sW}, 5")
    a(f"s_cbranch_scc1 A_kvp_done")
    a(f"s_mov_b32 s{sLds}, {KSTG}")
    job_run(JW, 0)
    job_publish()
    a(f"s_branch {L_bar1}")
    a.label("A_kvp_done")
    if not OPT.get("expfirst", 0): export_d()
    ensure_tag("A6")
    a(f"s_waitcnt vmcnt({10 if OPT.get('expfirst', 0) else 0})")
    st.mark("x:drain")
    set_flag(a, vT, sFD, FL_D)
    a(f"s_sub_u32 s{sT}, s{sW}, 5")
    a(f"s_mul_i32 s{sLds}, s{sT}, 3072")
    a(f"s_add_u32 s{sLds}, s{sLds}, {KSTG}")
    job_run(JW, 1)
    job_publish()
    a.label(L_bar1)
    a("s_waitcnt vmcnt(0)")
    a.label("A_bar1_nowait")
    a("s_setprio 0")
    a("s_waitcnt lgkmcnt(0)")
    a("s_barrier")
    st.mark("bar0")
    vA16, vA8, vDma, vA16b, vA8b = vX16, 13, 14, 12, 111
    S = [16, 32]
    O = 48
    P = 96
    Q1, Q2 = 104, 108
    K1, K2 = 112, 116
    V1, V2 = 120, 124
    vM2 = 110
    sSoffK, sLdsW = 58, 59
    srd(a, R_A, S_WS, S_WS+1, 262144, WS_KV)
    a(f"s_lshl_b32 s{sLdsW}, s{sW}, 11")
    a(f"v_add_u32 v{vDma}, s{sLdsW}, v{vA16}")
    a(f"v_lshlrev_b32 v{vA8}, 3, v{vLane}")
    a(f"v_add_u32 v{vA16b}, 32768, v{vA16}")
    a(f"v_add_u32 v{vA8b}, 32768, v{vA8}")
    def dma_chunk(slot):
        a(f"s_add_u32 m0, s{sLdsW}, {SB[slot]}")
        a("s_nop 0")
        a(f"buffer_load_dwordx4 v{vDma}, s[{R_A}:{R_A+3}], s{sSoffK} offen sc1 lds")
        a(f"buffer_load_dwordx4 v{vDma}, s[{R_A}:{R_A+3}], s{sSoffK} offen offset:1024 sc1 lds")
        a(f"s_add_u32 s{sSoffK}, s{sSoffK}, 16384")
    L_noqw = "A_noqw"
    a(f"v_mul_u32_u24 v{vT}, {QP}, v{vN}")
    a(f"v_add_u32 v{vT}, {QBUF}, v{vT}")
    a(f"s_cmp_ge_u32 s{sW}, 5")
    a(f"s_cbranch_scc1 {L_noqw}")
    a(f"s_lshl_b32 s{sT}, s{sW}, 6")
    a(f"v_lshl_add_u32 v{vT+1}, v{vH}, 3, v{vT}")
    a(f"v_add_u32 v{vT+1}, s{sT}, v{vT+1}")
    for q in range(4):
        a(f"ds_write_b64 v{vT+1}, v[{TMP+2*q}:{TMP+2*q+1}] offset:{16*q}")
    a.label(L_noqw)
    a("s_waitcnt lgkmcnt(0)")
    a("s_barrier")
    a(f"s_mul_i32 s{sT}, s{sW}, 40")
    a(f"v_add_u32 v{vT}, s{sT}, v{vT}")
    a(f"v_lshl_add_u32 v{vT+1}, v{vH}, 3, v{vT}")
    a(f"ds_read_b64 v[{Q1}:{Q1+1}], v{vT+1}")
    a(f"ds_read_b64 v[{Q1+2}:{Q1+3}], v{vT+1} offset:16")
    a(f"ds_read_b64 v[{Q2}:{Q2+1}], v{vT} offset:32")
    a(f"s_cmp_lg_u32 s{sW}, 7")
    a(f"s_cbranch_scc1 A_nokvp")
    poll_flags(a, vT+2, "A7", None, 128, FL_KV, sleep=OPT.get("kvsleep", 1))
    st.mark("kvpoll")
    a.label("A_nokvp")
    a("s_barrier")
    st.mark("bar1")
    a(f"s_mov_b32 s{sSoffK}, 0")
    for c in (0, 1, 2): dma_chunk(c)
    def lds_addr(t, off, wide):
        base = SB[(t // 4) % 4] + (t % 4) * 4096 + off
        if base >= 32768: return (vA16b if wide else vA8b), base - 32768
        return (vA16 if wide else vA8), base
    def rd_K1(t): v_, o = lds_addr(t, 0, True); a(f"ds_read_b128 {vr(K1,4)}, v{v_} offset:{o}")
    def rd_K2(t): v_, o = lds_addr(t, 1024, False); a(f"ds_read_b64 {vr(K2,2)}, v{v_} offset:{o}")
    def rd_V1(t): v_, o = lds_addr(t, 2048, True); a(f"ds_read_b128 {vr(V1,4)}, v{v_} offset:{o}")
    def rd_V2(t): v_, o = lds_addr(t, 3072, True); a(f"ds_read_b128 {vr(V2,4)}, v{v_} offset:{o}")
    def qk1(dst): a(f"v_mfma_f32_32x32x16_bf16 {vr(dst,16)}, {vr(K1,4)}, {vr(Q1,4)}, 0")
    def qk2(dst): a(f"v_mfma_f32_32x32x8_bf16 {vr(dst,16)}, {vr(K2,2)}, {vr(Q2,2)}, {vr(dst,16)}")
    if OPT.get("nopre0"):
        a("s_waitcnt vmcnt(4)")
        a("s_barrier")
    rd_K1(0); rd_K2(0)
    for i in range(16): a(f"v_mov_b32 v{O+i}, 0")
    a(f"v_cmp_eq_u32 vcc, 1, v{vH}")
    a(f"v_mov_b32 v{vT}, 0")
    a("s_waitcnt lgkmcnt(0)")
    a(f"v_cndmask_b32 v{Q2}, v{Q2}, v{vT}, vcc")
    a(f"v_cndmask_b32 v{Q2+1}, v{Q2+1}, v{vT}, vcc")
    def set_m(delta):
        a(f"v_mov_b32 v{vT}, v{vM2}")
        a.nop(2)
        a(f"v_permlane32_swap_b32 v{vM2}, v{vT}")
        a.nop(1)
        a(f"v_max_f32 v{vM2}, v{vM2}, v{vT}")
        if delta: a(f"v_add_f32 v{vM2}, {f32bits(delta)}, v{vM2}")
        a(f"v_cvt_pk_bf16_f32 v{vT}, -v{vM2}, 0")
        a(f"v_cmp_eq_u32 vcc, 1, v{vH}")
        a.nop(2)
        a(f"v_cndmask_b32 v{Q2}, v{Q2}, v{vT}, vcc")
    a(f"v_mov_b32 v{vM2}, 0xff800000")
    a.nop(1)
    qk1(S[0]); qk2(S[0])
    rd_K1(1); rd_K2(1)
    a("s_waitcnt lgkmcnt(0)")
    qk1(S[1]); qk2(S[1])
    rd_K1(0); rd_K2(0)
    for i in range(4, 8): a(f"v_mov_b32 v{P+i}, 0")
    for i in range(4): a(f"v_mov_b32 v{V2+i}, 0")
    a.nop(4)
    for i in range(8):
        a(f"v_max3_f32 v{vM2}, v{S[0]+2*i}, v{S[0]+2*i+1}, v{vM2}")
    a.nop(4)
    for i in range(8):
        a(f"v_max3_f32 v{vM2}, v{S[1]+2*i}, v{S[1]+2*i+1}, v{vM2}")
    set_m(DELTA)
    a("s_waitcnt lgkmcnt(0)")
    a.nop(1)
    qk1(S[0]); qk2(S[0])
    rd_K1(1); rd_K2(1); rd_V1(0)
    a.nop(12)
    st.mark("sample")
    a(f"s_setprio {OPT.get('aprio', 0)}")
    a(f"s_mov_b32 s{sIt}, 0")
    L_loop = "A_loop"
    a(".p2align 6")
    a.label(L_loop)
    def e(cur, i): a(f"v_exp_f32 v{cur+i}, v{cur+i}")
    def p(cur, k): a(f"v_cvt_pk_bf16_f32 v{P+k}, v{cur+2*k}, v{cur+2*k+1}")
    for t in range(16):
        cur, nxt = S[t % 2], S[(t+1) % 2]
        if t % 4 == 2:
            a("s_waitcnt vmcnt(2)")
            a("s_barrier")
            dma_chunk((t // 4 + 3) % 4)
        e(cur, 0); e(cur, 1)
        a("s_waitcnt lgkmcnt(2)")
        a(f"v_mfma_f32_32x32x16_bf16 {vr(O,16)}, {vr(V2,4)}, {vr(P+4,4)}, {vr(O,16)}")
        rd_V2(t)
        e(cur, 2); e(cur, 3); p(cur, 0); p(cur, 1)
        qk1(nxt)
        rd_K1(t+2)
        e(cur, 4); e(cur, 5); e(cur, 6); e(cur, 7); p(cur, 2); p(cur, 3)
        a("s_waitcnt lgkmcnt(2)")
        qk2(nxt)
        rd_K2(t+2)
        e(cur, 8); e(cur, 9); e(cur, 10); e(cur, 11); p(cur, 4); p(cur, 5)
        a(f"v_mfma_f32_32x32x16_bf16 {vr(O,16)}, {vr(V1,4)}, {vr(P,4)}, {vr(O,16)}")
        rd_V1(t+1)
        e(cur, 12); e(cur, 13); e(cur, 14); e(cur, 15); p(cur, 6); p(cur, 7)
    a(f"s_add_u32 s{sIt}, s{sIt}, 1")
    a(f"s_cmp_lt_u32 s{sIt}, 4")
    a(f"s_cbranch_scc1 {L_loop}")
    a("s_waitcnt lgkmcnt(0)")
    a(f"v_mfma_f32_32x32x16_bf16 {vr(O,16)}, {vr(V2,4)}, {vr(P+4,4)}, {vr(O,16)}")
    a("s_setprio 0")
    st.mark("loop")
    a.nop(16)
    L_fin, L_slow = "A_fin", "A_slow"
    a(f"s_mov_b32 s{sIt}, 0")
    a.label(L_fin)
    a(f"v_mov_b32 v{vT}, v{O+8}")
    a(f"v_mov_b32 v{vT+1}, v{O+8}")
    a.nop(2)
    a(f"v_permlane32_swap_b32 v{vT}, v{vT+1}")
    a(f"v_max3_f32 v{vT+2}, |v{O}|, |v{O+1}|, |v{O+2}|")
    for j in range(3, 12, 2):
        j2 = min(j+1, 11)
        a(f"v_max3_f32 v{vT+2}, |v{O+j}|, |v{O+j2}|, v{vT+2}")
    a(f"v_mov_b32 v{vT+3}, {f32bits(2.0**120)}")
    a(f"v_cmp_nlt_f32 vcc, v{vT+2}, v{vT+3}")
    a(f"v_cmp_nlt_f32 s[62:63], 0, v{vT+1}")
    a.nop(1)
    a(f"s_or_b64 vcc, vcc, s[62:63]")
    a(f"s_cmp_eq_u64 vcc, 0")
    a(f"s_cbranch_scc1 A_store")
    a(f"s_cmp_lg_u32 s{sIt}, 0")
    a(f"s_cbranch_scc1 A_store")
    a(f"s_branch {L_slow}")
    a.label("A_store")
    a(f"v_rcp_f32 v{vT+2}, v{vT+1}")
    a.nop(1)
    for j in range(12): a(f"v_mul_f32 v{O+j}, v{O+j}, v{vT+2}")
    for k in range(6): a(f"v_cvt_pk_bf16_f32 v{P+k}, v{O+2*k}, v{O+2*k+1}")
    a(f"s_lshl_b32 s{sT}, s{sCG}, 3")
    a(f"s_add_u32 s{sT}, s{sT}, s{sW}")
    a(f"s_mul_i32 s{sT}, s{sT}, 20")
    a(f"s_mul_i32 s{sT2}, s{sRB}, {40*1024}")
    a(f"s_add_u32 s{sT2}, s{sT2}, {WS_OF}")
    def oaddr(dst, colv):
        a(f"v_lshrrev_b32 v{dst}, 4, v{colv}")
        a(f"v_lshlrev_b32 v{dst}, 10, v{dst}")
        a(f"v_bfe_u32 v{vT+7}, v{colv}, 3, 1")
        a(f"v_lshl_add_u32 v{dst}, v{vT+7}, 9, v{dst}")
        a(f"v_and_b32 v{vT+7}, 7, v{colv}")
        a(f"v_lshl_add_u32 v{dst}, v{vT+7}, 1, v{dst}")
        a(f"v_lshl_add_u32 v{dst}, v{vN}, 4, v{dst}")
    a(f"v_lshlrev_b32 v{vT+3}, 2, v{vH}")
    a(f"v_add_u32 v{vT+3}, s{sT}, v{vT+3}")
    oaddr(vT+4, vT+3)
    a(f"buffer_store_dwordx2 v[{P}:{P+1}], v{vT+4}, s[{R_WS}:{R_WS+3}], s{sT2} offen sc1")
    a(f"v_add_u32 v{vT+3}, 8, v{vT+3}")
    oaddr(vT+5, vT+3)
    a(f"buffer_store_dwordx2 v[{P+2}:{P+3}], v{vT+5}, s[{R_WS}:{R_WS+3}], s{sT2} offen sc1")
    a(f"s_add_u32 s{sT}, s{sT}, 16")
    a(f"v_mov_b32 v{vT+3}, s{sT}")
    oaddr(vT+6, vT+3)
    a(f"v_cmp_eq_u32 vcc, 0, v{vH}")
    a(f"s_and_saveexec_b64 s[62:63], vcc")
    a(f"buffer_store_dwordx2 v[{P+4}:{P+5}], v{vT+6}, s[{R_WS}:{R_WS+3}], s{sT2} offen sc1")
    a(f"s_mov_b64 exec, s[62:63]")
    a(f"s_cmp_lg_u32 s{sTag}, 0")
    a(f"s_cbranch_scc1 A_ohave")
    get_tag(a, vT, "A8")
    a.label("A_ohave")
    a("s_waitcnt vmcnt(0)")
    a(f"s_lshl_b32 s{sT}, s{sRB}, 2")
    a(f"s_add_u32 s{sT}, s{sT}, s{sCG}")
    a(f"s_lshl_b32 s{sT}, s{sT}, 3")
    a(f"s_add_u32 s{sT}, s{sT}, s{sW}")
    set_flag(a, vT, sT, FL_O)
    st.end()
    a("s_endpgm")
    a.label(L_slow)
    a(f"v_cmp_eq_u32 vcc, 1, v{vH}")
    a(f"v_mov_b32 v{vT}, 0")
    a(f"v_mov_b32 v{vM2}, 0xff800000")
    a(f"v_cndmask_b32 v{Q2}, v{Q2}, v{vT}, vcc")
    a(f"s_mov_b32 s{sSoffK}, 0")
    a.label("A_slow1")
    a(f"buffer_load_dwordx4 {vr(K1,4)}, v{vA16}, s[{R_A}:{R_A+3}], s{sSoffK} offen sc1")
    a(f"buffer_load_dwordx2 {vr(K2,2)}, v{vA8}, s[{R_A}:{R_A+3}], s{sSoffK} offen offset:1024 sc1")
    a("s_waitcnt vmcnt(0)")
    qk1(S[0]); qk2(S[0])
    a.nop(16)
    for i in range(8):
        a(f"v_max3_f32 v{vM2}, v{S[0]+2*i}, v{S[0]+2*i+1}, v{vM2}")
    a(f"s_add_u32 s{sSoffK}, s{sSoffK}, 4096")
    a(f"s_cmp_lt_u32 s{sSoffK}, 262144")
    a(f"s_cbranch_scc1 A_slow1")
    set_m(0.0)
    for i in range(16): a(f"v_mov_b32 v{O+i}, 0")
    a(f"s_mov_b32 s{sSoffK}, 0")
    a.label("A_slow2")
    a(f"buffer_load_dwordx4 {vr(K1,4)}, v{vA16}, s[{R_A}:{R_A+3}], s{sSoffK} offen sc1")
    a(f"buffer_load_dwordx2 {vr(K2,2)}, v{vA8}, s[{R_A}:{R_A+3}], s{sSoffK} offen offset:1024 sc1")
    a(f"buffer_load_dwordx4 {vr(V1,4)}, v{vA16}, s[{R_A}:{R_A+3}], s{sSoffK} offen offset:2048 sc1")
    a(f"buffer_load_dwordx4 {vr(V2,4)}, v{vA16}, s[{R_A}:{R_A+3}], s{sSoffK} offen offset:3072 sc1")
    a("s_waitcnt vmcnt(0)")
    qk1(S[0]); qk2(S[0])
    a.nop(16)
    for i in range(16): e(S[0], i)
    a.nop(1)
    for k in range(8): p(S[0], k)
    a.nop(2)
    a(f"v_mfma_f32_32x32x16_bf16 {vr(O,16)}, {vr(V1,4)}, {vr(P,4)}, {vr(O,16)}")
    a(f"v_mfma_f32_32x32x16_bf16 {vr(O,16)}, {vr(V2,4)}, {vr(P+4,4)}, {vr(O,16)}")
    a(f"s_add_u32 s{sSoffK}, s{sSoffK}, 4096")
    a(f"s_cmp_lt_u32 s{sSoffK}, 262144")
    a(f"s_cbranch_scc1 A_slow2")
    a.nop(16)
    a(f"s_mov_b32 s{sIt}, 1")
    a(f"s_branch {L_fin}")

def role_B1(a):
    st = Stamps(a, "B1")
    st.start()
    if OPT.get("bprio"): a(f"s_setprio {OPT['bprio']}")
    sG, sC = sRB, sCG
    sSoffW, sSoffX, sLdsW, sKH, sXb = 57, 58, 59, 60, 99
    vT = 4; vW = 10; vTr, vX16, vR = 13, 14, 15
    XS = 16; WF = 48; ACC = 76
    SLOT = 24576
    a(f"s_sub_u32 s{sT2}, s2, 256")
    if OPT.get("xmap", 1):
        a(f"s_bfe_u32 s{sG}, s{sT2}, 0x20001")
        a(f"s_lshl_b32 s{sG}, s{sG}, 2")
        a(f"s_bfe_u32 s{sT}, s{sT2}, 0x20003")
        a(f"s_add_u32 s{sG}, s{sG}, s{sT}")
        a(f"s_and_b32 s{sC}, s{sT2}, 1")
        a(f"s_lshl_b32 s{sC}, s{sC}, 3")
        a(f"s_lshr_b32 s{sT}, s{sT2}, 5")
        a(f"s_add_u32 s{sC}, s{sC}, s{sT}")
    else:
        a(f"s_and_b32 s{sG}, s{sT2}, 7")
        a(f"s_lshl_b32 s{sG}, s{sG}, 1")
        a(f"s_bfe_u32 s{sT}, s{sT2}, 0x10003")
        a(f"s_add_u32 s{sG}, s{sG}, s{sT}")
        a(f"s_lshr_b32 s{sC}, s{sT2}, 4")
    a(f"s_lshr_b32 s{sKH}, s{sW}, 2")
    a(f"v_lshlrev_b32 v{vX16}, 4, v{vLane}")
    a(f"s_and_b32 s{sT}, s{sW}, 3")
    a(f"s_mul_i32 s{sT}, s{sT}, 192")
    a(f"s_mul_i32 s{sT2}, s{sC}, 192")
    a(f"s_mul_i32 s{sT3}, s{sKH}, {320*3072}")
    a(f"s_add_u32 s{sT2}, s{sT2}, s{sT3}")
    for i in range(3):
        a(f"v_add_u32 v{vT}, s{sT}, v{vLane}")
        if i: a(f"v_add_u32 v{vT}, {64*i}, v{vT}")
        a(f"v_mul_u32_u24 v{vT+1}, 5462, v{vT}")
        a(f"v_lshrrev_b32 v{vT+1}, 16, v{vT+1}")
        a(f"v_mul_u32_u24 v{vT+2}, 12, v{vT+1}")
        a(f"v_sub_u32 v{vT}, v{vT}, v{vT+2}")
        a(f"v_lshlrev_b32 v{vT}, 4, v{vT}")
        a(f"v_mul_u32_u24 v{vT+1}, 3072, v{vT+1}")
        a(f"v_add3_u32 v{vW+i}, v{vT}, v{vT+1}, s{sT2}")
        if i: a(f"v_subrev_u32 v{vW+i}, {1024*i}, v{vW+i}")
    a(f"s_mul_i32 s{sT}, s{sKH}, 12288")
    tr_addr(a, vTr, None, 192, 8, 4, sT, vT)
    a(f"s_mul_i32 s{sLdsW}, s{sW}, 3072")
    srd(a, R_A, S_W1, S_W1+1, 640*1536*2)
    srd(a, R_B, S_B1, S_B1+1, 1536*2)
    a(f"s_mul_hi_u32 s{sT}, s{sC}, {(1<<32)//5 + 1}")
    a(f"s_mul_i32 s{sT}, s{sT}, 5")
    a(f"s_sub_u32 s{sT}, s{sC}, s{sT}")
    a(f"s_mul_i32 s{sSoffW}, s{sT}, {64*3072}")
    a(f"s_lshl_b32 s{sSoffX}, s{sT}, 12")
    a(f"s_and_b32 s{sT}, s{sW}, 3")
    a(f"s_lshl_b32 s{sT2}, s{sG}, 2")
    a(f"s_add_u32 s{sT}, s{sT}, s{sT2}")
    a(f"s_mul_i32 s{sXb}, s{sT}, {40*1024}")
    a(f"s_mul_i32 s{sT2}, s{sKH}, {20*1024}")
    a(f"s_add_u32 s{sXb}, s{sXb}, s{sT2}")
    if WS_XF: a(f"s_add_u32 s{sXb}, s{sXb}, {WS_XF}")
    def issueW(c):
        a(f"s_add_u32 m0, s{sLdsW}, {(c%3)*SLOT}")
        a(f"s_add_u32 s{sT}, s{sSoffW}, {64*3072}")
        for i in range(3):
            a(f"buffer_load_dwordx4 v{vW+i}, s[{R_A}:{R_A+3}], s{sSoffW} offen offset:{1024*i} lds")
        a(f"s_cmp_eq_u32 s{sT}, {320*3072}")
        a(f"s_cselect_b32 s{sSoffW}, 0, s{sT}")
    def issueX(c):
        xs = XS + 16*(c % 2)
        a(f"s_add_u32 s{sT2}, s{sXb}, s{sSoffX}")
        a(f"s_add_u32 s{sT}, s{sSoffX}, 4096")
        for i in range(4):
            a(f"buffer_load_dwordx4 {vr(xs+4*i,4)}, v{vX16}, s[{R_WS}:{R_WS+3}], s{sT2} offen offset:{1024*i} sc1")
        a(f"s_cmp_eq_u32 s{sT}, 20480")
        a(f"s_cselect_b32 s{sSoffX}, 0, s{sT}")
    a(f"s_cmp_lg_u32 s{sW}, 0")
    a(f"s_cbranch_scc1 B1_pre")
    get_tag(a, vT, "B1")
    a(f"s_lshl_b32 s{sT}, s{sG}, 5")
    if OPT.get("wftries", 1): poll_flags(a, vT, "B1p", sT, 32, FL_D, tries=OPT.get("wftries", 1))
    a.label("B1_pre")
    a("s_barrier")
    st.mark("prepoll")
    sJ = 96
    a(f"s_sub_u32 s{sJ}, s2, 256")
    srd(a, R_C, S_W2, S_W2+1, 1536*640*2)
    vF = 16
    a(f"v_lshrrev_b32 v32, 2, v{vLane}")
    a(f"v_mul_u32_u24 v32, 1280, v32")
    a(f"v_and_b32 v33, 3, v{vLane}")
    a(f"v_lshl_add_u32 v32, v33, 4, v32")
    a(f"s_lshl_b32 s{sT}, s{sW}, 11")
    a(f"v_add_u32 v33, s{sT}, v{vX16}")
    tr_addr(a, 34, None, 64, 4, 8, sT, vT)
    tr_addr(a, 35, None, 64, 8, 4, sT, vT)
    sDst = [92, 93]; sStp = [94, 95]
    for rnd in range(2):
        Lskip = f"B1_wf{rnd}_skip"
        a(f"s_mov_b32 s{sStp[rnd]}, -1")
        if rnd == 1:
            a(f"s_cmp_ge_u32 s{sW}, 3")
            a(f"s_cbranch_scc1 {Lskip}")
        a(f"s_and_b32 s{sT}, s{sJ}, 63")
        a(f"s_mul_i32 s{sT}, s{sT}, 11")
        a(f"s_add_u32 s{sT}, s{sT}, s{sW}")
        if rnd: a(f"s_add_u32 s{sT}, s{sT}, 8")
        a(f"s_cmp_ge_u32 s{sT}, 680")
        a(f"s_cbranch_scc1 {Lskip}")
        a(f"s_mul_hi_u32 s{sT2}, s{sT}, {(1<<32)//136 + 1}")
        a(f"s_mul_i32 s{sT3}, s{sT2}, 136")
        a(f"s_sub_u32 s{sT}, s{sT}, s{sT3}")
        a(f"s_mov_b32 s{sStp[rnd]}, s{sT}")
        a(f"s_lshr_b32 s{sT3}, s{sJ}, 6")
        a(f"s_mul_i32 s{sT3}, s{sT3}, 5")
        a(f"s_add_u32 s{sT2}, s{sT2}, s{sT3}")
        a(f"s_mul_i32 s62, s{sT2}, 136")
        a(f"s_add_u32 s62, s62, s{sT}")
        a(f"s_lshl_b32 s62, s62, 10")
        a(f"s_add_u32 s{sDst[rnd]}, s62, {WS_WF}")
        a(f"s_lshl_b32 s{sT2}, s{sT2}, 6")
        a(f"s_cmp_lt_u32 s{sT}, 96")
        a(f"s_cselect_b32 s{R_C}, s{S_W2}, s{S_WO}")
        a(f"s_cselect_b32 s{R_C+1}, s{S_W2+1}, s{S_WO+1}")
        a(f"s_cselect_b32 s63, 0, 96")
        a(f"s_mov_b32 s{R_C+2}, {640*640*2}")
        a(f"s_cbranch_scc0 B1_wf{rnd}_a")
        a(f"s_mov_b32 s{R_C+2}, {1536*640*2}")
        a.label(f"B1_wf{rnd}_a")
        a(f"s_sub_u32 s{sT3}, s{sT}, s63")
        a(f"s_mul_i32 s{sT3}, s{sT3}, {16*1280}")
        a(f"s_add_u32 s{sT3}, s{sT3}, s{sT2}")
        a(f"buffer_load_dwordx4 v[{16+4*rnd}:{19+4*rnd}], v32, s[{R_C}:{R_C+3}], s{sT3} offen")
        a.label(Lskip)
    a("s_waitcnt vmcnt(0)")
    for rnd in range(2):
        Lskip = f"B1_wg{rnd}_skip"
        a(f"s_cmp_eq_u32 s{sStp[rnd]}, -1")
        a(f"s_cbranch_scc1 {Lskip}")
        a(f"ds_write_b128 v33, v[{16+4*rnd}:{19+4*rnd}] offset:{1024*rnd}")
        a(f"s_cmp_lt_u32 s{sStp[rnd]}, 96")
        a(f"s_cbranch_scc0 B1_wf{rnd}_n")
        a(f"ds_read_b64_tr_b16 v[{24+4*rnd}:{25+4*rnd}], v34 offset:{1024*rnd}")
        a(f"ds_read_b64_tr_b16 v[{26+4*rnd}:{27+4*rnd}], v34 offset:{1024*rnd+512}")
        a(f"s_branch B1_wf{rnd}_s")
        a.label(f"B1_wf{rnd}_n")
        a(f"ds_read_b64_tr_b16 v[{24+4*rnd}:{25+4*rnd}], v35 offset:{1024*rnd}")
        a(f"ds_read_b64_tr_b16 v[{26+4*rnd}:{27+4*rnd}], v35 offset:{1024*rnd+256}")
        a.label(f"B1_wf{rnd}_s")
        a("s_waitcnt lgkmcnt(0)")
        a(f"buffer_store_dwordx4 v[{24+4*rnd}:{27+4*rnd}], v{vX16}, s[{R_WS}:{R_WS+3}], s{sDst[rnd]} offen sc1")
        a.label(Lskip)
    st.mark("wfprep")
    L_np = "B1_np"
    a(f"s_cmp_lg_u32 s{sW}, 0")
    a(f"s_cbranch_scc1 {L_np}")
    a(f"s_lshl_b32 s{sT}, s{sG}, 5")
    poll_flags(a, vT, "B1", sT, 32, FL_D)
    if OPT.get("b1kv"): poll_flags(a, vT, "B1k", None, 128, FL_KV)
    a.label(L_np)
    a("s_barrier")
    st.mark("wait_d")
    issued = []
    def iX(c): issueX(c); issued.extend([("X", c)]*4)
    def iW(c): issueW(c); issued.extend([("W", c)]*3)
    if OPT.get("b1shallow", 1):
        iW(0); iX(0)
    else:
        iW(0); iX(0)
        a("s_barrier")
        iW(1); iX(1)
        a("s_barrier")
        iW(2)
    def wreads(c, k, buf):
        base = (c % 3)*SLOT + k*16*192
        for ct in range(3):
            a(f"ds_read_b64_tr_b16 v[{WF+12*buf+4*ct}:{WF+12*buf+4*ct+1}], v{vTr} offset:{base + ct*64}")
            a(f"ds_read_b64_tr_b16 v[{WF+12*buf+4*ct+2}:{WF+12*buf+4*ct+3}], v{vTr} offset:{base + ct*64 + 4*192}")
    for c in range(5):
        last = max(i for i, e_ in enumerate(issued) if e_ in (("W", c), ("X", c)))
        a(f"s_waitcnt vmcnt({len(issued) - 1 - last})")
        a("s_barrier")
        if c == 0:
            st.mark("b0")
            a(f"s_cmp_lg_u32 s{sW}, 0")
            a(f"s_cbranch_scc1 B1_nofw")
            set_flag(a, vT, sJ, FL_W)
            a.label("B1_nofw")
        if OPT.get("b1shallow", 1):
            if c + 1 < 5: iW(c + 1); iX(c + 1)
        elif 1 <= c <= 2: iW(c + 2)
        xs = XS + 16*(c % 2)
        wreads(c, 0, 0)
        for k in range(4):
            buf = k % 2
            if k < 3:
                wreads(c, k + 1, 1 - buf)
                a("s_waitcnt lgkmcnt(6)")
            else:
                a("s_waitcnt lgkmcnt(0)")
            for ct in range(3):
                cin = "0" if (c == 0 and k == 0) else vr(ACC+16*ct,16)
                a(f"v_mfma_f32_32x32x16_bf16 {vr(ACC+16*ct,16)}, {vr(WF+12*buf+4*ct,4)}, {vr(xs+4*k,4)}, {cin}")
        if c + 2 < 5 and not OPT.get("b1shallow", 1): iX(c + 2)
    st.mark("kloop")
    a("s_setprio 3")
    a(f"s_and_b32 s{sT}, s{sW}, 3")
    a(f"s_lshl_b32 s{sT2}, s{sG}, 2")
    a(f"s_add_u32 s{sT}, s{sT}, s{sT2}")
    a(f"s_lshl_b32 s{sT2}, s{sT}, 7")
    a(f"s_add_u32 s{sT2}, s{sT2}, {WS_R}")
    a(f"v_lshlrev_b32 v{vT}, 2, v{vN}")
    a(f"buffer_load_dword v{vR}, v{vT}, s[{R_WS}:{R_WS+3}], s{sT2} offen sc1")
    a(f"s_mul_i32 s{sT2}, s{sC}, 192")
    a(f"s_lshl_b32 s{sT3}, s{sKH}, 5")
    a(f"s_add_u32 s{sT2}, s{sT2}, s{sT3}")
    a(f"v_lshlrev_b32 v{vT}, 3, v{vH}")
    B = XS
    for ct in range(3):
        for q in range(2):
            a(f"buffer_load_dwordx2 v[{B+4*ct+2*q}:{B+4*ct+2*q+1}], v{vT}, s[{R_B}:{R_B+3}], s{sT2} offen offset:{64*ct+16*q}")
    a(f"s_mul_i32 s{sT}, s{sT}, 96")
    a(f"s_mul_i32 s{sT2}, s{sC}, 6")
    a(f"s_add_u32 s{sT}, s{sT}, s{sT2}")
    a(f"s_add_u32 s{sT}, s{sT}, s{sKH}")
    a(f"s_lshl_b32 s{sXb}, s{sT}, 10")
    a(f"s_add_u32 s{sXb}, s{sXb}, {WS_H}")
    a("s_barrier")
    a.nop(4)
    T = XS + 16
    a(f"s_mul_i32 s{sT}, s{sW}, 6144")
    a(f"v_add_u32 v{vT+1}, s{sT}, v{vX16}")
    a(f"s_xor_b32 s{sT}, s{sW}, 4")
    a(f"s_mul_i32 s{sT}, s{sT}, 6144")
    a(f"v_add_u32 v{vT+2}, s{sT}, v{vX16}")
    a(f"s_cmp_eq_u32 s{sKH}, 1")
    a(f"s_cbranch_scc1 B1_x1")
    for ct in range(3):
        for q in range(2):
            a(f"ds_write_b128 v{vT+1}, {vr(ACC+16*ct+8+4*q,4)} offset:{(2*ct+q)*1024}")
    a(f"s_branch B1_x2")
    a.label("B1_x1")
    for ct in range(3):
        for q in range(2):
            a(f"ds_write_b128 v{vT+1}, {vr(ACC+16*ct+4*q,4)} offset:{(2*ct+q)*1024}")
    a.label("B1_x2")
    a("s_waitcnt lgkmcnt(0)")
    a("s_barrier")
    for i in range(6):
        a(f"ds_read_b128 {vr(T+4*i,4)}, v{vT+2} offset:{i*1024}")
    a("s_waitcnt lgkmcnt(0) vmcnt(0)")
    a(f"s_cmp_eq_u32 s{sKH}, 1")
    a(f"s_cbranch_scc1 B1_y1")
    for ct in range(3):
        for j in range(8): a(f"v_add_f32 v{T+8*ct+j}, v{T+8*ct+j}, v{ACC+16*ct+j}")
    a(f"s_branch B1_y2")
    a.label("B1_y1")
    for ct in range(3):
        for j in range(8): a(f"v_add_f32 v{T+8*ct+j}, v{T+8*ct+j}, v{ACC+16*ct+8+j}")
    a.label("B1_y2")
    TB = 56
    for ct in range(3):
        for q in range(2):
            b0 = B+4*ct+2*q
            acc = T+8*ct+4*q
            a(f"v_lshlrev_b32 v{TB}, 16, v{b0}")
            a(f"v_and_b32 v{TB+1}, 0xffff0000, v{b0}")
            a(f"v_lshlrev_b32 v{TB+2}, 16, v{b0+1}")
            a(f"v_and_b32 v{TB+3}, 0xffff0000, v{b0+1}")
            for j in range(4): a(f"v_fma_f32 v{acc+j}, v{acc+j}, v{vR}, v{TB+j}")
            for j in range(4): a(f"v_max_f32 v{acc+j}, 0, v{acc+j}")
            for j in range(4): a(f"v_mul_f32 v{acc+j}, v{acc+j}, v{acc+j}")
        for k in range(4):
            a(f"v_cvt_pk_bf16_f32 v{60+4*ct+k}, v{T+8*ct+2*k}, v{T+8*ct+2*k+1}")
    a(f"v_add_u32 v{vT}, 4096, v{vX16}")
    a(f"buffer_store_dwordx4 {vr(60,4)}, v{vX16}, s[{R_WS}:{R_WS+3}], s{sXb} offen sc1")
    a(f"buffer_store_dwordx4 {vr(64,4)}, v{vX16}, s[{R_WS}:{R_WS+3}], s{sXb} offen offset:2048 sc1")
    a(f"buffer_store_dwordx4 {vr(68,4)}, v{vT}, s[{R_WS}:{R_WS+3}], s{sXb} offen sc1")
    a("s_waitcnt vmcnt(0)")
    a("s_barrier")
    L_nf = "B1_nf"
    a(f"s_cmp_lg_u32 s{sW}, 0")
    a(f"s_cbranch_scc1 {L_nf}")
    a(f"s_lshl_b32 s{sT}, s{sG}, 4")
    a(f"s_add_u32 s{sT}, s{sT}, s{sC}")
    set_flag(a, vT, sT, FL_H)
    a.label(L_nf)
    st.mark("epi")
    st.end()
    a("s_endpgm")

def role_B2(a):
    st = Stamps(a, "B2")
    st.start()
    if OPT.get("bprio"): a(f"s_setprio {OPT['bprio']}")
    sSoffW, sSoffX, sWb, sIt, sRho, sWrapW, sRst = 57, 58, 59, 60, 61, 98, 99
    vT = 4
    vX16, vXa = 14, 15
    ACC = 16
    XR = 48
    WB = 64
    vOut = vT+3
    NXS = 8
    a(f"s_sub_u32 s{sT2}, s2, 512")
    if OPT.get("xmap", 1):
        a(f"s_bfe_u32 s{sRB}, s{sT2}, 0x20001")
        a(f"s_lshl_b32 s{sRB}, s{sRB}, 4")
        a(f"s_bfe_u32 s{sT}, s{sT2}, 0x40003")
        a(f"s_add_u32 s{sRB}, s{sRB}, s{sT}")
        a(f"s_and_b32 s{sCG}, s{sT2}, 1")
        a(f"s_lshl_b32 s{sCG}, s{sCG}, 1")
        a(f"s_lshr_b32 s{sT}, s{sT2}, 7")
        a(f"s_add_u32 s{sCG}, s{sCG}, s{sT}")
    else:
        decode_rb_cg(a, sT2)
    a(f"v_lshlrev_b32 v{vX16}, 4, v{vLane}")
    a(f"s_and_b32 s{sRho}, s{sRB}, 7")
    a(f"s_min_u32 s{sT3}, s{sW}, 4")
    a(f"s_mul_i32 s{sT}, s{sCG}, 5")
    a(f"s_add_u32 s{sT}, s{sT}, s{sT3}")
    a(f"s_mul_i32 s{sWb}, s{sT}, {136*1024}")
    a(f"s_add_u32 s{sWb}, s{sWb}, {WS_WF}")
    a(f"s_lshl_b32 s{sT}, s{sT}, 6")
    srd(a, R_C, S_X, S_X+1, NX)
    a(f"s_lshl_b32 s{sT2}, s{sRB}, 5")
    a(f"v_add_u32 v{vT}, s{sT2}, v{vN}")
    a(f"v_mul_u32_u24 v{vT}, 1280, v{vT}")
    a(f"v_lshl_add_u32 v{vT}, v{vH}, 3, v{vT}")
    a(f"v_add_u32 v{vOut}, s{sT}, v{vT}")
    for q in range(4):
        a(f"buffer_load_dwordx2 v[{XR+2*q}:{XR+2*q+1}], v{vOut}, s[{R_C}:{R_C+3}], 0 offen offset:{16*q}")
    srd(a, R_C, S_B2, S_B2+1, 640*2)
    a(f"v_lshlrev_b32 v{vT}, 3, v{vH}")
    for q in range(4):
        a(f"buffer_load_dwordx2 v[{XR+8+2*q}:{XR+8+2*q+1}], v{vT}, s[{R_C}:{R_C+3}], s{sT} offen offset:{16*q}")
    for i in range(16): a(f"v_mov_b32 v{ACC+i}, 0")
    def unpack_add(q, dst):
        for (src, t) in ((XR+2*q, 32), (XR+8+2*q, 36)):
            a(f"v_lshlrev_b32 v{t}, 16, v{src}")
            a(f"v_and_b32 v{t+1}, 0xffff0000, v{src}")
            a(f"v_lshlrev_b32 v{t+2}, 16, v{src+1}")
            a(f"v_and_b32 v{t+3}, 0xffff0000, v{src+1}")
        for j in range(4): a(f"v_add_f32 v{32+j}, v{32+j}, v{36+j}")
        for j in range(4): a(f"v_add_f32 v{dst+j}, v{dst+j}, v{32+j}")
    L_side = "B2_side"
    a(f"s_cmp_ge_u32 s{sW}, 4")
    a(f"s_cbranch_scc1 {L_side}")
    a("s_barrier")
    a(f"s_lshl_b32 s{sSoffW}, s{sRho}, 13")
    a(f"s_mov_b32 s{sWrapW}, {96*1024}")
    a(f"s_mov_b32 s{sRst}, 0")
    def wload(r):
        a(f"s_add_u32 s{sT2}, s{sWb}, s{sSoffW}")
        a(f"s_add_u32 s{sT}, s{sSoffW}, 1024")
        a(f"buffer_load_dwordx4 {vr(r,4)}, v{vX16}, s[{R_WS}:{R_WS+3}], s{sT2} offen sc1")
        a(f"s_cmp_eq_u32 s{sT}, s{sWrapW}")
        a(f"s_cselect_b32 s{sSoffW}, s{sRst}, s{sT}")
    for k in range(16): wload(WB + 4*k)
    st.mark("setup")
    a(f"s_mov_b32 s{sIt}, 0")
    L1 = "B2_p1"
    a.label(L1)
    XBUF = 32
    for j in range(16):
        k = j % 8
        if k == 0:
            a("s_barrier")
            a(f"s_lshl_b32 s{sT}, s{sIt}, 1")
            if j: a(f"s_add_u32 s{sT}, s{sT}, 1")
            a(f"s_and_b32 s{sT}, s{sT}, {NXS-1}")
            a(f"s_lshl_b32 s{sT}, s{sT}, 13")
            a(f"v_add_u32 v{vXa}, s{sT}, v{vX16}")
            for i in range(3):
                a(f"ds_read_b128 {vr(XBUF+4*i,4)}, v{vXa} offset:{i*1024}")
        if j == 0:
            L1n = "B2_p1n"
            a(f"s_cmp_lg_u32 s{sIt}, 5")
            a(f"s_cbranch_scc1 {L1n}")
            a(f"s_mul_i32 s{sSoffW}, s{sRho}, {5*1024}")
            a(f"s_add_u32 s{sSoffW}, s{sSoffW}, {96*1024}")
            a(f"s_mov_b32 s{sWrapW}, {136*1024}")
            a(f"s_mov_b32 s{sRst}, {96*1024}")
            a.label(L1n)
        if k + 3 < 8:
            a(f"ds_read_b128 {vr(XBUF+4*((k+3)%4),4)}, v{vXa} offset:{(k+3)*1024}")
            a("s_waitcnt vmcnt(15) lgkmcnt(3)")
        else:
            a(f"s_waitcnt vmcnt(15) lgkmcnt({7-k})")
        a(f"v_mfma_f32_32x32x16_bf16 {vr(ACC,16)}, {vr(WB+4*j,4)}, {vr(XBUF+4*(k%4),4)}, {vr(ACC,16)}")
        wload(WB + 4*j)
    a(f"s_add_u32 s{sIt}, s{sIt}, 1")
    a(f"s_cmp_lt_u32 s{sIt}, 6")
    a(f"s_cbranch_scc1 {L1}")
    st.mark("ffn2")
    a.nop(12)
    for q in range(4): unpack_add(q, ACC+4*q)
    XBUF = XR
    NBLK = 20
    def blk(s_):
        b = s_ % NBLK
        return (WB + 4*b) if b < 16 else (32 + 4*(b-16))
    for s_ in range(16, 20): wload(blk(s_))
    a("s_barrier")
    a(f"s_branch B2_oload")
    a.label(L_side)
    a(f"s_cmp_lt_u32 s{sW}, 6")
    a(f"s_cbranch_scc1 B2_np0")
    get_tag(a, vT, "B2")
    a(f"s_cmp_eq_u32 s{sW}, 7")
    a(f"s_cbranch_scc1 B2_ph")
    a(f"s_lshl_b32 s{sT}, s{sCG}, 6")
    poll_flags(a, vT, "B2w", sT, 64, FL_W)
    a(f"s_branch B2_np0")
    a.label("B2_ph")
    a(f"s_lshr_b32 s{sT}, s{sRB}, 2")
    a(f"s_lshl_b32 s{sT}, s{sT}, 4")
    poll_flags(a, vT, "B2h", sT, 16, FL_H)
    a.label("B2_np0")
    a("s_barrier")
    a(f"s_sub_u32 s{sT3}, s{sW}, 4")
    a("s_waitcnt vmcnt(0)")
    for jj in range(1, 4):
        Ls = a.newlabel("B2_q")
        a(f"s_cmp_lg_u32 s{sT3}, {jj}")
        a(f"s_cbranch_scc1 {Ls}")
        a(f"v_mov_b32 v{XR}, v{XR+2*jj}")
        a(f"v_mov_b32 v{XR+1}, v{XR+2*jj+1}")
        a(f"v_mov_b32 v{XR+8}, v{XR+8+2*jj}")
        a(f"v_mov_b32 v{XR+9}, v{XR+8+2*jj+1}")
        a.label(Ls)
    for j in range(4): a(f"v_mov_b32 v{40+j}, 0")
    unpack_add(0, 40)
    a(f"s_lshl_b32 s{sRst}, s{sT3}, 11")
    a(f"s_lshl_b32 s{sSoffW}, s{sRho}, 13")
    a(f"s_add_u32 s{sSoffW}, s{sSoffW}, s{sRst}")
    a(f"s_add_u32 s{sWrapW}, s{sRst}, {96*1024}")
    SD = 4
    def wpair(slot):
        a(f"s_add_u32 s{sT2}, s{sWb}, s{sSoffW}")
        a(f"s_add_u32 s{sT}, s{sSoffW}, 8192")
        a(f"buffer_load_dwordx4 {vr(WB+8*slot,4)}, v{vX16}, s[{R_WS}:{R_WS+3}], s{sT2} offen sc1")
        a(f"buffer_load_dwordx4 {vr(WB+8*slot+4,4)}, v{vX16}, s[{R_WS}:{R_WS+3}], s{sT2} offen offset:1024 sc1")
        a(f"s_cmp_eq_u32 s{sT}, s{sWrapW}")
        a(f"s_cselect_b32 s{sSoffW}, s{sRst}, s{sT}")
    for c in range(SD): wpair(c)
    a(f"s_sub_u32 s{sT3}, s{sW}, 4")
    a(f"s_mul_i32 s{sT}, s{sRB}, {96*1024}")
    a(f"s_add_u32 s63, s{sT}, {WS_H}")
    a(f"s_lshl_b32 s97, s{sT3}, 11")
    a(f"s_add_u32 s63, s63, s97")
    a(f"s_lshl_b32 s{sSoffX}, s{sRho}, 13")
    a(f"v_add_u32 v{vT+5}, s97, v{vX16}")
    vXs = vT+5
    vm = Cnt(a, "vmcnt", 63)
    def xdma(c):
        a(f"s_add_u32 m0, s97, {(c % NXS)*8192}")
        a(f"s_add_u32 s{sT2}, s63, s{sSoffX}")
        a(f"s_add_u32 s{sT}, s{sSoffX}, 8192")
        for i in range(2):
            a(f"buffer_load_dwordx4 v{vX16}, s[{R_WS}:{R_WS+3}], s{sT2} offen offset:{1024*i} sc1 lds")
        a(f"s_cmp_eq_u32 s{sT}, {96*1024}")
        a(f"s_cselect_b32 s{sSoffX}, 0, s{sT}")
        vm.issue(("X", c), 2)
    for c in range(SD): vm.issue(("W", c), 2)
    XD = 6
    for c in range(XD): xdma(c)
    for c in range(12):
        vm.need(("X", c), ("W", c))
        a("s_barrier")
        if c + XD < 12: xdma(c + XD)
        for i in range(2):
            a(f"ds_read_b128 {vr(48+4*i,4)}, v{vXs} offset:{(c % NXS)*8192 + 1024*i}")
        a("s_waitcnt lgkmcnt(1)")
        a(f"v_mfma_f32_32x32x16_bf16 {vr(ACC,16)}, {vr(WB+8*(c%4),4)}, {vr(48,4)}, {vr(ACC,16)}")
        a("s_waitcnt lgkmcnt(0)")
        a(f"v_mfma_f32_32x32x16_bf16 {vr(ACC,16)}, {vr(WB+8*(c%4)+4,4)}, {vr(52,4)}, {vr(ACC,16)}")
        if c + SD < 12: wpair(c % 4); vm.issue(("W", c + SD), 2)
    a(f"s_sub_u32 s{sT3}, s{sW}, 4")
    a(f"s_lshl_b32 s{sT3}, s{sT3}, 1")
    a(f"s_mul_i32 s62, s{sRho}, 5")
    a(f"s_add_u32 s62, s62, s{sT3}")
    for m in range(5):
        for i in range(2):
            a(f"s_add_u32 s{sT}, s62, {8*m+i}")
            a(f"s_cmp_ge_u32 s{sT}, 40")
            a(f"s_cselect_b32 s{sT2}, 40, 0")
            a(f"s_sub_u32 s{sT}, s{sT}, s{sT2}")
            a(f"s_add_u32 s{sT}, s{sT}, 96")
            a(f"s_lshl_b32 s{sT}, s{sT}, 10")
            a(f"s_add_u32 s{sT}, s{sT}, s{sWb}")
            a(f"buffer_load_dwordx4 {vr(WB+4*(2*m+i),4)}, v{vX16}, s[{R_WS}:{R_WS+3}], s{sT} offen sc1")
    Lnp2 = "B2_np2"
    a(f"s_cmp_lg_u32 s{sW}, 7")
    a(f"s_cbranch_scc1 {Lnp2}")
    a(f"s_lshl_b32 s{sT}, s{sRB}, 5")
    poll_flags(a, vT, "B2o", sT, 32, FL_O, sleep=OPT.get("osleep", 2))
    a.label(Lnp2)
    st.mark("wait_o")
    a("s_barrier")
    a.label("B2_oload")
    a(f"s_mul_i32 s63, s{sRB}, {40*1024}")
    a(f"s_add_u32 s63, s63, {WS_OF}")
    a(f"s_mul_i32 s62, s{sRho}, 5")
    for i in range(5):
        a(f"s_mul_i32 s{sT}, s{sW}, 5")
        a(f"s_add_u32 s{sT}, s{sT}, {i}")
        a(f"s_add_u32 s{sT2}, s{sT}, s62")
        a(f"s_cmp_ge_u32 s{sT2}, 40")
        a(f"s_cselect_b32 s{sIt}, 40, 0")
        a(f"s_sub_u32 s{sT2}, s{sT2}, s{sIt}")
        a(f"s_lshl_b32 s{sT2}, s{sT2}, 10")
        a(f"s_add_u32 s{sT2}, s{sT2}, s63")
        a(f"s_lshl_b32 m0, s{sT}, 10")
        a("s_nop 0")
        a(f"buffer_load_dwordx4 v{vX16}, s[{R_WS}:{R_WS+3}], s{sT2} offen sc1 lds")
    a("s_waitcnt vmcnt(0)")
    a("s_barrier")
    st.mark("oload")
    a(f"s_cmp_ge_u32 s{sW}, 4")
    a(f"s_cbranch_scc1 B2_side2")
    vm = Cnt(a, "vmcnt", 63); lg = Cnt(a, "lgkmcnt", 15)
    def xread(s_):
        r = XBUF + 4*(s_ % 4)
        a(f"ds_read_b128 {vr(r,4)}, v{vX16} offset:{s_*1024}")
        lg.issue(("X", s_))
    for s_ in range(3): xread(s_)
    for s_ in range(40):
        if s_ + 3 < 40: xread(s_ + 3)
        vm.need(("W", s_))
        lg.need(("X", s_))
        a(f"v_mfma_f32_32x32x16_bf16 {vr(ACC,16)}, {vr(blk(s_),4)}, {vr(XBUF+4*(s_%4),4)}, {vr(ACC,16)}")
        if s_ + NBLK < 40:
            wload(blk(s_)); vm.issue(("W", s_ + NBLK))
    st.mark("wo")
    a("s_setprio 3")
    a("s_barrier")
    a.nop(10)
    srd(a, R_C, S_OUT, S_OUT+1, NX)
    for q in range(4):
        a(f"v_cvt_pk_bf16_f32 v{32+2*q}, v{ACC+4*q}, v{ACC+4*q+1}")
        a(f"v_cvt_pk_bf16_f32 v{33+2*q}, v{ACC+4*q+2}, v{ACC+4*q+3}")
        a(f"buffer_store_dwordx2 v[{32+2*q}:{33+2*q}], v{vOut}, s[{R_C}:{R_C+3}], 0 offen offset:{16*q}")
    a("s_barrier")
    st.end()
    a("s_endpgm")
    a.label("B2_side2")
    for k in range(4):
        a(f"ds_read_b128 {vr(48+4*k,4)}, v{vXs} offset:{(8*(k//2)+(k%2))*1024}")
    for k in range(10):
        a(f"s_waitcnt lgkmcnt({min(3, 9-k)})")
        a(f"v_mfma_f32_32x32x16_bf16 {vr(ACC,16)}, {vr(WB+4*k,4)}, {vr(48+4*(k%4),4)}, {vr(ACC,16)}")
        if k + 4 < 10:
            a(f"ds_read_b128 {vr(48+4*(k%4),4)}, v{vXs} offset:{(8*((k+4)//2)+((k+4)%2))*1024}")
    a("s_setprio 3")
    a("s_barrier")
    a.nop(12)
    a(f"s_sub_u32 s{sT3}, s{sW}, 4")
    a(f"s_lshl_b32 s{sT}, s{sT3}, 12")
    a(f"v_add_u32 v{vT}, s{sT}, v{vX16}")
    for q in range(4):
        a(f"ds_write_b128 v{vT}, {vr(ACC+4*q,4)} offset:{q*1024}")
    a("s_waitcnt lgkmcnt(0)")
    a("s_barrier")
    a(f"s_lshl_b32 s{sT}, s{sT3}, 10")
    a(f"v_add_u32 v{vT}, s{sT}, v{vX16}")
    for jj in range(4):
        a(f"ds_read_b128 {vr(ACC+4*jj,4)}, v{vT} offset:{jj*4096}")
    a(f"s_lshl_b32 s{sT}, s{sT3}, 4")
    a(f"v_add_u32 v{vOut}, s{sT}, v{vOut}")
    srd(a, R_C, S_OUT, S_OUT+1, NX)
    a("s_waitcnt lgkmcnt(0)")
    for j in range(4):
        a(f"v_add_f32 v{ACC+j}, v{ACC+j}, v{ACC+4+j}")
        a(f"v_add_f32 v{ACC+8+j}, v{ACC+8+j}, v{ACC+12+j}")
    for j in range(4): a(f"v_add_f32 v{ACC+j}, v{ACC+j}, v{40+j}")
    for j in range(4): a(f"v_add_f32 v{ACC+j}, v{ACC+j}, v{ACC+8+j}")
    a(f"v_cvt_pk_bf16_f32 v32, v{ACC}, v{ACC+1}")
    a(f"v_cvt_pk_bf16_f32 v33, v{ACC+2}, v{ACC+3}")
    a(f"buffer_store_dwordx2 v[32:33], v{vOut}, s[{R_WS if False else R_C}:{R_C+3}], 0 offen")
    st.end()
    a("s_endpgm")

def gen():
    a = Asm()
    a("s_cmp_ge_u32 s2, 768")
    a("s_cbranch_scc1 K_end")
    a("s_load_dwordx16 s[4:19], s[0:1], 0")
    a("s_load_dwordx8 s[20:27], s[0:1], 64")
    a("s_load_dwordx2 s[28:29], s[0:1], 96")
    a(f"v_and_b32 v{vLane}, 63, v0")
    a(f"v_lshrrev_b32 v4, 6, v0")
    a(f"v_lshrrev_b32 v{vH}, 5, v{vLane}")
    a(f"v_readfirstlane_b32 s{sW}, v4")
    a(f"v_and_b32 v{vN}, 31, v{vLane}")
    a("s_waitcnt lgkmcnt(0)")
    srd(a, R_WS, S_WS, S_WS+1, WS_END)
    srd(a, R_FL, S_WS, S_WS+1, FL_SIZE, WS_FL)
    for r in (R_A, R_B, R_C): srd(a, r, S_WS, S_WS+1, WS_END)
    for i in range(4, 16): a(f"v_mov_b32 v{i}, 0")
    a("s_cmp_ge_u32 s2, 512")
    a("s_cbranch_scc1 ROLE_B2")
    a("s_cmp_ge_u32 s2, 256")
    a("s_cbranch_scc1 ROLE_B1")
    role_A(a)
    a.label("ROLE_B1")
    role_B1(a)
    a.label("ROLE_B2")
    role_B2(a)
    a.label("K_end")
    a("s_endpgm")
    grid = OPT.get("grid", 768)
    s = f"; generated by gen2.py\n; @launch grid=({grid},1,1) block=(512,1,1) lds={LDS_BYTES}\n"
    s += '.amdgcn_target "amdgcn-amd-amdhsa--gfx950"\n.text\n'
    s += kernel_header(KN) + a.text()
    s += '.section .rodata,"a"\n.p2align 6\n' + kernel_desc(KN, 128, 102)
    return s

if __name__ == "__main__":
    if "--prof" in sys.argv: PROF = True
    for x in sys.argv:
        if x.startswith("-D"):
            k, _, v = x[2:].partition("="); OPT[k] = int(v) if v else 1
    open(sys.argv[1], "w").write(gen())
    if PROF: json.dump(STAMP_NAMES, open("stamps5.json", "w"))
```

```python
import sys, math, json
from asmlib import *

NAME = "parallel_sum__grouped_kv_mqa__dense_activation_squared_relu__prompt"
KN = NAME + "_kernel"
WS_XF = 0x0
WS_R  = 0x280000
WS_KV = 0x290000
WS_OF = 0x2D0000
WS_H  = 0x550000
WS_FL = 0xB50000
WS_WF = 0xBC0000
WS_END = 0xE70000
WS_DBG = 0x2000000
FL_KV, FL_D, FL_H, FL_W, FL_O = 0, 128, 640, 896, 1152
FL_N = 3200
FL_SIZE = FL_N * 128
NX = 2048 * 640 * 2
TS = 2688
KVB = 64 * TS
CH = 8 * TS
QSCALE = (20 ** -0.5) * math.log2(math.e)
DELTA = 96.0
LDS_BYTES = 81920
PROF = False
OPT = {}
SPIN_MAX = 200000

S_X, S_WQ, S_WK, S_WV, S_WO, S_W1, S_B1, S_W2, S_B2, S_OUT, S_DBG, S_WS = 4, 6, 8, 10, 12, 16, 18, 20, 22, 24, 26, 28
sW = 30
sTag = 31
R_WS = 32
R_FL = 36
R_A = 40
R_B = 44
R_C = 48
sRB, sCG, sT, sT2, sT3 = 52, 53, 54, 55, 56
vLane, vH, vN = 1, 2, 3

class Stamps:
    def __init__(self, a, role): self.a = a; self.n = 1; self.names = []; self.role = role
    def start(self):
        if not PROF: return
        for i in range(68, 94): self.a(f"s_mov_b32 s{i}, 0")
        self.a("s_memrealtime s[64:65]"); self.a("s_memtime s[66:67]"); self.a("s_waitcnt lgkmcnt(0)"); self.n = 2
    def mark(self, name):
        if not PROF: return
        assert self.n < 15
        self.a(f"s_memtime s[{64+2*self.n}:{65+2*self.n}]"); self.a("s_waitcnt lgkmcnt(0)")
        self.n += 1; self.names.append(name)
    def end(self):
        if not PROF: return
        a = self.a
        a("s_waitcnt vmcnt(0)")
        self.mark("final-drain")
        a("s_memrealtime s[94:95]"); a("s_waitcnt lgkmcnt(0)")
        a("s_mov_b64 exec, 1")
        a(f"s_lshl_b32 s98, s2, 3")
        a(f"s_add_u32 s98, s98, s{sW}")
        a(f"s_lshl_b32 s98, s98, 6")
        a(f"s_add_u32 s98, s98, {WS_DBG}")
        a(f"s_add_u32 s96, s{S_WS}, s98")
        a(f"s_addc_u32 s97, s{S_WS+1}, 0")
        a(f"v_mov_b32 v0, 0")
        for i in list(range(14)) + [15]:
            a(f"v_mov_b32 v1, s{64+2*i}")
            a(f"global_store_dword v0, v1, s[96:97] offset:{4*i}")
        a(f"v_mov_b32 v1, {self.n}")
        a(f"global_store_dword v0, v1, s[96:97] offset:56")
        a("s_waitcnt vmcnt(0)")
        STAMP_NAMES[self.role] = self.names
STAMP_NAMES = {}

def bf16_round(a, dst, src):
    a(f"v_cvt_pk_bf16_f32 v{dst}, v{src}, v{src}")
    a(f"v_lshlrev_b32 v{dst}, 16, v{dst}")

def decode_rb_cg(a, j):
    a(f"s_lshr_b32 s{sCG}, s{j}, 6")
    a(f"s_and_b32 s{sRB}, s{j}, 7")
    a(f"s_lshl_b32 s{sRB}, s{sRB}, 3")
    a(f"s_bfe_u32 s{sT}, s{j}, 0x30003")
    a(f"s_add_u32 s{sRB}, s{sRB}, s{sT}")

def get_tag(a, vt, lab):
    L = f"{lab}_tag"
    a(f"s_mov_b32 s{sT3}, {SPIN_MAX}")
    a(f"v_mov_b32 v{vt}, 0")
    a.label(L)
    a(f"global_load_dword v{vt+1}, v{vt}, s[{S_DBG}:{S_DBG+1}] sc1")
    a("s_waitcnt vmcnt(0)")
    a(f"v_readfirstlane_b32 s{sTag}, v{vt+1}")
    a(f"s_sub_u32 s{sT3}, s{sT3}, 1")
    a(f"s_cmp_eq_u32 s{sT3}, 0")
    a(f"s_cbranch_scc1 {L}_done")
    a(f"s_cmp_eq_u32 s{sTag}, 0")
    a(f"s_cbranch_scc0 {L}_done")
    a("s_sleep 1")
    a(f"s_branch {L}")
    a.label(f"{L}_done")

def poll_flags(a, vt, lab, s_idx, nflags, region, tries=None, sleep=None):
    if nflags == 128:
        poll_flags(a, vt, lab + "a", None, 64, region, tries, sleep)
        poll_flags(a, vt, lab + "b", None, 64, region + 64, tries, sleep)
        return
    L = f"{lab}_poll"
    a(f"v_lshlrev_b32 v{vt}, 7, v{vLane}")
    if s_idx is None:
        a(f"s_mov_b32 s63, {region*128}")
    else:
        a(f"s_lshl_b32 s63, s{s_idx}, 7")
        if region: a(f"s_add_u32 s63, s63, {region*128}")
    a(f"s_mov_b32 s{sT3}, {tries or SPIN_MAX}")
    a("s_mov_b64 s[100:101], exec")
    if nflags < 64:
        a(f"s_mov_b32 exec_lo, {(1 << min(nflags, 32)) - 1 if nflags < 32 else -1}")
        a(f"s_mov_b32 exec_hi, {((1 << (nflags - 32)) - 1) if nflags > 32 else 0}")
    a.label(L)
    a(f"buffer_load_dword v{vt+1}, v{vt}, s[{R_FL}:{R_FL+3}], s63 offen sc1")
    a("s_waitcnt vmcnt(0)")
    a(f"v_cmp_ne_u32 vcc, s{sTag}, v{vt+1}")
    a("s_nop 1")
    a(f"s_and_b64 exec, exec, vcc")
    a(f"s_cbranch_execz {L}_done")
    a(f"s_sub_u32 s{sT3}, s{sT3}, 1")
    a(f"s_cmp_eq_u32 s{sT3}, 0")
    a(f"s_cbranch_scc1 {L}_done")
    a(f"s_sleep {sleep if sleep is not None else OPT.get('sleep', 6)}")
    a(f"s_branch {L}")
    a.label(f"{L}_done")
    a("s_mov_b64 exec, s[100:101]")

def set_flag(a, vt, s_idx, region):
    a(f"v_mov_b32 v{vt}, s{sTag}")
    a(f"v_mov_b32 v{vt+1}, 0")
    a(f"s_lshl_b32 s63, s{s_idx}, 7")
    if region: a(f"s_add_u32 s63, s63, {region*128}")
    a("s_mov_b64 s[100:101], exec")
    a("s_mov_b64 exec, 1")
    a(f"buffer_store_dword v{vt}, v{vt+1}, s[{R_FL}:{R_FL+3}], s63 offen sc1")
    a("s_mov_b64 exec, s[100:101]")

def tr_addr(a, dst, dst2, pitch, hrows, second_rows, s_base, t):
    a(f"v_bfe_u32 v{t}, v{vLane}, 2, 2")
    a(f"v_mul_u32_u24 v{t+1}, {hrows}, v{vH}")
    a(f"v_add_u32 v{t}, v{t}, v{t+1}")
    a(f"v_bfe_u32 v{t+1}, v{vLane}, 4, 1")
    a(f"v_and_b32 v{t+2}, 3, v{vLane}")
    a(f"v_lshlrev_b32 v{t+2}, 3, v{t+2}")
    a(f"v_lshl_add_u32 v{t+1}, v{t+1}, 5, v{t+2}")
    a(f"v_mul_u32_u24 v{dst}, {pitch}, v{t}")
    a(f"v_add3_u32 v{dst}, v{dst}, v{t+1}, s{s_base}")
    if dst2 is not None:
        a(f"v_add_u32 v{dst2}, {second_rows*pitch}, v{dst}")

def role_A(a):
    OPT["nopre0"] = 1
    st = Stamps(a, "A")
    st.start()
    XB = 0; XP = 1056; XH = 528; RBUF = 42240
    RING = 42496; NSTG = 3; RW = NSTG*1024; DEPTH = 16
    KSTG = 57856
    KVX = 67072
    LFL = XB + 512
    LFL2 = XB + 1040
    T4F = 75264
    SB = [0, 16384, 32768, 49152]
    QBUF = 65536; QP = 328
    sStep, sSoff, sLds, sRho, sWrap, sIt = 57, 58, 59, 60, 61, 57
    sExp, sFD = 95, 94
    vT = 4
    vVo, vTr, vTr2, vX16 = 12, 13, 14, 15
    X = 16
    TMP = 36
    vSum, vSq, vM = 52, 53, 54
    vOne, vSelLo, vSelHi = 56, 57, 58
    vR, vXa, vWst, vTag = 9, 10, 11, 61
    ACC = 16; FB = 32; WS_ = 64
    a(f"s_mov_b32 s{sT2}, s2")
    decode_rb_cg(a, sT2)
    L_notag = "A_notag"
    a(f"s_cmp_lg_u32 s2, 0")
    a(f"s_cbranch_scc1 {L_notag}")
    a(f"s_cmp_lg_u32 s{sW}, 0")
    a(f"s_cbranch_scc1 {L_notag}")
    a(f"s_memrealtime s[62:63]")
    a("s_waitcnt lgkmcnt(0)")
    a(f"s_or_b32 s62, s62, 1")
    a(f"v_mov_b32 v{vT}, s62")
    a(f"v_mov_b32 v{vT+1}, 0")
    a("s_mov_b64 exec, 1")
    a(f"global_store_dword v{vT+1}, v{vT}, s[{S_DBG}:{S_DBG+1}] sc1")
    a("s_mov_b64 exec, -1")
    a.label(L_notag)
    srd(a, R_A, S_X, S_X+1, NX)
    a(f"s_lshl_b32 s{sT}, s{sRB}, 5")
    a(f"s_lshl_b32 s{sT2}, s{sW}, 2")
    a(f"s_add_u32 s{sT}, s{sT}, s{sT2}")
    a(f"v_lshrrev_b32 v{vT}, 4, v{vLane}")
    a(f"v_add_u32 v{vT}, s{sT}, v{vT}")
    a(f"v_mul_u32_u24 v{vT}, 1280, v{vT}")
    a(f"v_and_b32 v{vT+1}, 15, v{vLane}")
    a(f"v_lshl_add_u32 v{vT}, v{vT+1}, 4, v{vT}")
    for i in range(5):
        a(f"buffer_load_dwordx4 {vr(X+4*i,4)}, v{vT}, s[{R_A}:{R_A+3}], 0 offen offset:{256*i}")
    a(f"v_lshlrev_b32 v{vX16}, 4, v{vLane}")
    a(f"s_and_b32 s{sRho}, s{sRB}, 7")
    L_nowe = "A_nowe"
    a(f"s_cmp_lt_u32 s{sW}, 5")
    a(f"s_cbranch_scc1 {L_nowe}")
    a(f"s_cmp_ge_u32 s{sCG}, 2")
    a(f"s_cbranch_scc1 {L_nowe}")
    a(f"s_cmp_eq_u32 s{sCG}, 1")
    a(f"s_cselect_b32 s{R_B}, s{S_WV}, s{S_WK}")
    a(f"s_cselect_b32 s{R_B+1}, s{S_WV+1}, s{S_WK+1}")
    a(f"s_mov_b32 s{R_B+2}, {640*20*2}")
    a(f"s_mov_b32 s{R_B+3}, 0x00020000")
    a(f"s_sub_u32 s{sT}, s{sW}, 5")
    a(f"s_mul_i32 s{sStep}, s{sT}, 13")
    a(f"s_min_u32 s{sT}, s{sT}, 1")
    a(f"s_add_u32 s{sStep}, s{sStep}, s{sT}")
    a(f"s_mul_i32 s{sT}, s{sRho}, 5")
    a(f"s_add_u32 s{sT2}, s{sStep}, s{sT}")
    a(f"s_cmp_ge_u32 s{sT2}, 40")
    a(f"s_cselect_b32 s{sT}, 40, 0")
    a(f"s_sub_u32 s{sT2}, s{sT2}, s{sT}")
    a(f"s_mul_i32 s{sSoff}, s{sT2}, 640")
    for i in range(14):
        a(f"s_add_u32 s{sT}, s{sSoff}, 640")
        a(f"buffer_load_dwordx4 {vr(WS_+4*i,4)}, v{vX16}, s[{R_B}:{R_B+3}], s{sSoff} offen")
        a(f"s_cmp_eq_u32 s{sT}, 25600")
        a(f"s_cselect_b32 s{sSoff}, 0, s{sT}")
    a.label(L_nowe)
    a("s_barrier")
    L_nq = "A_nq"
    a(f"s_cmp_ge_u32 s{sW}, 5")
    a(f"s_cbranch_scc1 {L_nq}")
    srd(a, R_B, S_WQ, S_WQ+1, 640*640*2)
    a(f"v_lshrrev_b32 v{vT}, 2, v{vLane}")
    a(f"v_mul_u32_u24 v{vT}, 1280, v{vT}")
    a(f"v_and_b32 v{vT+1}, 3, v{vLane}")
    a(f"v_lshl_add_u32 v{vT}, v{vT+1}, 4, v{vT}")
    a(f"s_mul_i32 s{sT}, s{sCG}, 320")
    a(f"s_lshl_b32 s{sT2}, s{sW}, 6")
    a(f"s_add_u32 s{sT}, s{sT}, s{sT2}")
    a(f"v_add_u32 v{vVo}, s{sT}, v{vT}")
    a(f"s_mul_i32 s{sLds}, s{sW}, {RW}")
    a(f"s_add_u32 s{sLds}, s{sLds}, {RING}")
    a(f"s_mul_i32 s{sSoff}, s{sRho}, {5*20480}")
    def wload(k):
        d = WS_ + 4*(k % DEPTH)
        a(f"s_add_u32 s{sT}, s{sSoff}, 20480")
        a(f"buffer_load_dwordx4 {vr(d,4)}, v{vVo}, s[{R_B}:{R_B+3}], s{sSoff} offen")
        a(f"s_cmp_eq_u32 s{sT}, {40*20480}")
        a(f"s_cselect_b32 s{sSoff}, 0, s{sT}")
    NW0 = OPT.get("NW0", 8)
    for k in range(NW0): wload(k)
    tr_addr(a, vTr, vTr2, 64, 8, 4, sLds, vT)
    a(f"v_add_u32 v{vWst}, s{sLds}, v{vX16}")
    a(f"s_waitcnt vmcnt({NW0})")
    a(f"s_mov_b32 s{sTag}, 0")
    a(f"s_branch A_xok")
    a.label(L_nq)
    a(f"s_waitcnt vmcnt(14)")
    a(f"s_cmp_lt_u32 s{sCG}, 2")
    a(f"s_cbranch_scc1 A_xok2")
    a(f"s_waitcnt vmcnt(0)")
    a.label("A_xok2")
    a(f"v_mov_b32 v{vT}, 0")
    a(f"global_load_dword v{vTag}, v{vT}, s[{S_DBG}:{S_DBG+1}] sc1")
    a.label("A_xok")
    st.mark("xwait")
    a(f"v_mov_b32 v{vOne}, 0x3f803f80")
    a(f"v_mov_b32 v{vSelLo}, 0x00003f80")
    a(f"v_mov_b32 v{vSelHi}, 0x3f800000")
    for i in range(4): a(f"v_mov_b32 v{TMP+i}, 0")
    for i in range(20):
        a(f"v_dot2c_f32_bf16 v{TMP+(i%2)}, v{X+i}, v{vOne}")
        a(f"v_dot2c_f32_bf16 v{TMP+2+(i%2)}, v{X+i}, v{X+i}")
    a(f"v_lshrrev_b32 v{vT}, 4, v{vLane}")
    a(f"s_lshl_b32 s{sT}, s{sW}, 2")
    a(f"v_add_u32 v{vT}, s{sT}, v{vT}")
    a(f"v_and_b32 v{vT+1}, 1, v{vLane}")
    a(f"v_mul_u32_u24 v{vT+1}, {XH}, v{vT+1}")
    a(f"v_lshl_add_u32 v{vT+1}, v{vT}, 4, v{vT+1}")
    a(f"v_add_f32 v{vSum}, v{TMP}, v{TMP+1}")
    a(f"v_add_f32 v{vSq}, v{TMP+2}, v{TMP+3}")
    a(f"v_bfe_u32 v{vT+2}, v{vLane}, 1, 3")
    a(f"s_mul_i32 s{sT}, s{sRho}, 5")
    a(f"s_sub_u32 s{sT}, 40, s{sT}")
    for ror in (8, 4, 2, 1):
        a(f"v_add_f32_dpp v{vSum}, v{vSum}, v{vSum} row_ror:{ror} row_mask:0xf bank_mask:0xf")
        a(f"v_add_f32_dpp v{vSq}, v{vSq}, v{vSq} row_ror:{ror} row_mask:0xf bank_mask:0xf")
        if ror != 1: a.nop(1)
    a(f"v_add_u32 v{vT+2}, s{sT}, v{vT+2}")
    inv = f32bits(1.0/640)
    a(f"v_mul_f32 v{vM}, {inv}, v{vSum}")
    a(f"v_mul_f32 v{TMP+1}, {inv}, v{vSq}")
    a(f"v_fma_f32 v{TMP+1}, -v{vM}, v{vM}, v{TMP+1}")
    a(f"v_max_f32 v{TMP+1}, 0, v{TMP+1}")
    bf16_round(a, TMP+1, TMP+1)
    bf16_round(a, vM, vM)
    a(f"v_add_f32 v{TMP+1}, {f32bits(1e-5)}, v{TMP+1}")
    a(f"v_sub_f32 v{vM}, 0, v{vM}")
    bf16_round(a, TMP+1, TMP+1)
    a(f"v_sqrt_f32 v{vSum}, v{TMP+1}")
    for base in range(0, 20, 8):
        g = min(8, 20-base)
        for i in range(g):
            a(f"v_dot2_f32_bf16 v{TMP+2*i}, v{X+base+i}, v{vSelLo}, v{vM}")
            a(f"v_dot2_f32_bf16 v{TMP+2*i+1}, v{X+base+i}, v{vSelHi}, v{vM}")
        if base == 0:
            bf16_round(a, vSum, vSum)
            a(f"v_rcp_f32 v{vR}, v{vSum}")
        else:
            a.nop(3)
        for i in range(g):
            a(f"v_cvt_pk_bf16_f32 v{X+base+i}, v{TMP+2*i}, v{TMP+2*i+1}")
    a(f"v_lshlrev_b32 v{vT+3}, 2, v{vT}")
    a(f"ds_write_b32 v{vT+3}, v{vR} offset:{RBUF}")
    for i in range(5):
        if i: a(f"v_add_u32 v{vT+2}, 8, v{vT+2}")
        a(f"v_subrev_u32 v{vT+3}, 40, v{vT+2}")
        a(f"v_min_u32 v{vT+3}, v{vT+3}, v{vT+2}")
        a(f"v_mul_u32_u24 v{vT+3}, {XP}, v{vT+3}")
        a(f"v_add_u32 v{vT+3}, v{vT+3}, v{vT+1}")
        a(f"ds_write_b128 v{vT+3}, {vr(X+4*i,4)} offset:{XB}")
    a(f"v_mul_u32_u24 v{vXa}, {XH}, v{vH}")
    a(f"v_lshl_add_u32 v{vXa}, v{vN}, 4, v{vXa}")
    a(f"s_cmp_ge_u32 s{sW}, 5")
    a(f"s_cbranch_scc1 A_ln5")
    for k in range(NW0, 10): wload(k)
    a(f"s_cmp_eq_u32 s{sW}, 4")
    a(f"s_cbranch_scc1 A_lnb")
    for k in range(10, DEPTH): wload(k)
    a(f"s_branch A_lnb")
    a.label("A_ln5")
    a(f"v_mov_b32 v{vT}, {LFL}")
    for i in range(4): a(f"v_mov_b32 v{TMP+i}, 0")
    a(f"ds_write_b128 v{vT}, v[{TMP}:{TMP+3}]")
    a(f"ds_write_b128 v{vT}, v[{TMP}:{TMP+3}] offset:{LFL2-LFL}")
    a("s_waitcnt vmcnt(0)")
    a(f"v_readfirstlane_b32 s{sTag}, v{vTag}")
    a.label("A_lnb")
    a("s_waitcnt lgkmcnt(0)")
    a("s_barrier")
    a(f"v_lshlrev_b32 v{vT}, 2, v{vN}")
    a(f"ds_read_b32 v{vR}, v{vT} offset:{RBUF}")
    st.mark("LN")
    def ensure_tag(lab):
        a(f"s_cmp_lg_u32 s{sTag}, 0")
        a(f"s_cbranch_scc1 {lab}_have")
        get_tag(a, vT, lab)
        a.label(f"{lab}_have")
    L_kvp, L_exp, L_bar1 = "A_kvp", "A_exp", "A_bar1"
    a(f"s_cmp_ge_u32 s{sW}, 5")
    a(f"s_cbranch_scc1 {L_kvp}")
    a(f"s_cmp_eq_u32 s{sW}, 4")
    a(f"s_cbranch_scc1 A_job4")
    if OPT.get("noq"): a(f"s_branch {L_bar1}")
    def pipe_gemm(nsteps, wr, rd, need_vm, refill, cin0):
        for k in range(5):
            if k < nsteps:
                need_vm(k, -5 + k)
                wr(k)
            if 0 <= k - 2 < nsteps: rd(k - 2)
        for s_ in range(nsteps):
            n_ops = 0
            if s_ + 5 < nsteps:
                need_vm(s_ + 5, s_)
                wr(s_ + 5)
            if s_ + 3 < nsteps: rd(s_ + 3)
            for t in range(s_ + 1, s_ + 4):
                if t + 2 < nsteps: n_ops += 1
                if t < nsteps: n_ops += 3
            a(f"s_waitcnt lgkmcnt({n_ops})")
            f = FB + 8*(s_ % 4)
            cin = cin0 if s_ == 0 else vr(ACC, 16)
            a(f"v_mfma_f32_32x32x16_bf16 {vr(ACC,16)}, {vr(f,4)}, {vr(f+4,4)}, {cin}")
            refill(s_)
    def q_wr(k): a(f"ds_write_b128 v{vWst}, {vr(WS_+4*(k % DEPTH),4)} offset:{(k % NSTG)*1024}")
    def q_rd(k):
        f = FB + 8*(k % 4)
        a(f"ds_read_b64_tr_b16 v[{f}:{f+1}], v{vTr} offset:{(k % NSTG)*1024}")
        a(f"ds_read_b64_tr_b16 v[{f+2}:{f+3}], v{vTr2} offset:{(k % NSTG)*1024}")
        a(f"ds_read_b128 {vr(f+4,4)}, v{vXa} offset:{XB + k*XP}")
    def q_vm(k, s_now):
        issued = DEPTH + max(0, min(s_now, 40 - DEPTH + QOFF) - QOFF) if s_now > 0 else DEPTH
        issued = min(issued, 40)
        a(f"s_waitcnt vmcnt({issued - 1 - k})")
    QOFF = 0
    def q_refill(s_):
        if s_ + DEPTH < 40: wload(s_ + DEPTH)
    pipe_gemm(40, q_wr, q_rd, q_vm, q_refill, "0")
    st.mark("gemm")
    a.nop(12)
    a(f"v_mul_f32 v{vT}, {f32bits(QSCALE)}, v{vR}")
    for j in range(16): a(f"v_mul_f32 v{ACC+j}, v{ACC+j}, v{vT}")
    for k in range(8): a(f"v_cvt_pk_bf16_f32 v{TMP+k}, v{ACC+2*k}, v{ACC+2*k+1}")
    a(f"s_branch {L_bar1}")

    JW = WS_ + 20
    def job_loads():
        srd(a, R_B, S_WQ, S_WQ+1, 640*640*2)
        a(f"v_lshrrev_b32 v{vT}, 2, v{vLane}")
        a(f"v_mul_u32_u24 v{vT}, 1280, v{vT}")
        a(f"v_and_b32 v{vT+1}, 3, v{vLane}")
        a(f"v_lshl_add_u32 v{vT}, v{vT+1}, 4, v{vT}")
        a(f"s_mul_i32 s{sT}, s{sCG}, 320")
        a(f"s_add_u32 s{sT}, s{sT}, 256")
        a(f"v_add_u32 v{vT}, s{sT}, v{vT}")
        a(f"s_sub_u32 s{sT}, s{sW}, 4")
        a(f"s_mul_i32 s{sT}, s{sT}, 10")
        a(f"s_mul_i32 s{sT2}, s{sRho}, 5")
        a(f"s_add_u32 s{sT}, s{sT}, s{sT2}")
        a(f"s_cmp_ge_u32 s{sT}, 40")
        a(f"s_cselect_b32 s{sT2}, 40, 0")
        a(f"s_sub_u32 s{sT}, s{sT}, s{sT2}")
        a(f"s_mul_i32 s{sSoff}, s{sT}, 20480")
        for k in range(10):
            a(f"s_add_u32 s{sT}, s{sSoff}, 20480")
            a(f"buffer_load_dwordx4 {vr(JW+4*k,4)}, v{vT}, s[{R_B}:{R_B+3}], s{sSoff} offen")
            a(f"s_cmp_eq_u32 s{sT}, {40*20480}")
            a(f"s_cselect_b32 s{sSoff}, 0, s{sT}")
    def job_run(raw, vm_after):
        tr_addr(a, vTr, vTr2, 64, 8, 4, sLds, vT)
        a(f"v_add_u32 v{vWst}, s{sLds}, v{vX16}")
        a(f"s_sub_u32 s{sT}, s{sW}, 4")
        a(f"s_mul_i32 s{sT}, s{sT}, {10*XP}")
        a(f"v_add_u32 v{vVo}, s{sT}, v{vXa}")
        def j_wr(k): a(f"ds_write_b128 v{vWst}, {vr(raw+4*k,4)} offset:{(k % NSTG)*1024}")
        def j_rd(k):
            f = FB + 8*(k % 4)
            a(f"ds_read_b64_tr_b16 v[{f}:{f+1}], v{vTr} offset:{(k % NSTG)*1024}")
            a(f"ds_read_b64_tr_b16 v[{f+2}:{f+3}], v{vTr2} offset:{(k % NSTG)*1024}")
            a(f"ds_read_b128 {vr(f+4,4)}, v{vVo} offset:{k*XP}")
        def j_vm(k, s_): a(f"s_waitcnt vmcnt({9 - k + vm_after})")
        pipe_gemm(10, j_wr, j_rd, j_vm, lambda s_: None, "0")
        a("s_waitcnt lgkmcnt(0)")
        a.nop(12)
    def job_publish():
        Lp5, Lpd = a.newlabel("A_jp5"), a.newlabel("A_jpd")
        a(f"s_cmp_eq_u32 s{sW}, 5")
        a(f"s_cbranch_scc1 {Lp5}")
        for q in range(3): a(f"ds_write_b128 v{vWst}, {vr(ACC+4*q,4)} offset:{q*1024}")
        a(f"s_sub_u32 s{sT}, s{sW}, 6")
        a(f"s_lshl_b32 s{sT}, s{sT}, 10")
        a(f"s_add_u32 s{sT}, s{sT}, {T4F}")
        a(f"v_add_u32 v{vT}, s{sT}, v{vX16}")
        a(f"ds_write_b128 v{vT}, {vr(ACC+12,4)}")
        a(f"s_branch {Lpd}")
        a.label(Lp5)
        a(f"v_add_u32 v{vT}, {KVX+4096}, v{vX16}")
        for q in range(4): a(f"ds_write_b128 v{vT}, {vr(ACC+4*q,4)} offset:{q*1024}")
        a.label(Lpd)
        a(f"s_sub_u32 s{sT}, s{sW}, 5")
        a(f"s_lshl_b32 s{sT}, s{sT}, 2")
        a(f"s_add_u32 s{sT}, s{sT}, {LFL2}")
        a(f"v_mov_b32 v{vT}, s{sT}")
        a(f"v_mov_b32 v{vT+1}, 1")
        a(f"ds_write_b32 v{vT}, v{vT+1}")
    a.label("A_job4")
    job_run(WS_, 0)
    a(f"v_mov_b32 v{vT}, {LFL2}")
    a(f"s_mov_b32 s{sT3}, {SPIN_MAX}")
    a.label("A_j4spin")
    a(f"ds_read_b96 v[{vT+2}:{vT+4}], v{vT}")
    a("s_waitcnt lgkmcnt(0)")
    a(f"v_and_b32 v{vT+2}, v{vT+2}, v{vT+3}")
    a(f"v_and_b32 v{vT+2}, v{vT+2}, v{vT+4}")
    a("s_nop 0")
    a(f"v_readfirstlane_b32 s{sT}, v{vT+2}")
    a(f"s_sub_u32 s{sT3}, s{sT3}, 1")
    a(f"s_cmp_eq_u32 s{sT3}, 0")
    a(f"s_cbranch_scc1 A_j4spin_done")
    a(f"s_cmp_eq_u32 s{sT}, 1")
    a(f"s_cbranch_scc0 A_j4spin")
    a.label("A_j4spin_done")
    a(f"v_add_u32 v{vT}, {KVX+4096}, v{vX16}")
    a(f"v_add_u32 v{vT+1}, {KSTG+3072}, v{vX16}")
    a(f"v_add_u32 v{vT+2}, {T4F}, v{vX16}")
    for q in range(4): a(f"ds_read_b128 {vr(64+4*q,4)}, v{vT} offset:{q*1024}")
    for p_ in range(2):
        for q in range(3): a(f"ds_read_b128 {vr(80+16*p_+4*q,4)}, v{vT+1} offset:{p_*3072 + q*1024}")
        a(f"ds_read_b128 {vr(80+16*p_+12,4)}, v{vT+2} offset:{p_*1024}")
    a("s_waitcnt lgkmcnt(0)")
    for j in range(16): a(f"v_add_f32 v{64+j}, v{64+j}, v{80+j}")
    for j in range(16): a(f"v_add_f32 v{ACC+j}, v{ACC+j}, v{96+j}")
    for j in range(16): a(f"v_add_f32 v{ACC+j}, v{ACC+j}, v{64+j}")
    st.mark("job4")
    a(f"v_mul_f32 v{vT}, {f32bits(QSCALE)}, v{vR}")
    for j in range(16): a(f"v_mul_f32 v{ACC+j}, v{ACC+j}, v{vT}")
    for k in range(8): a(f"v_cvt_pk_bf16_f32 v{TMP+k}, v{ACC+2*k}, v{ACC+2*k+1}")
    a(f"s_branch {L_bar1}")
    def export_d():
        a(f"s_mul_i32 s{sT}, s{sCG}, 2")
        a(f"s_add_u32 s{sT}, s{sT}, s{sW}")
        a(f"s_sub_u32 s{sT}, s{sT}, 6")
        a(f"s_sub_u32 s{sT2}, s{sT}, s{sRho}")
        a(f"s_and_b32 s{sT2}, s{sT2}, 7")
        a(f"s_mul_i32 s{sT2}, s{sT2}, {5*XP}")
        a(f"v_add_u32 v{vT}, s{sT2}, v{vXa}")
        for i in range(5):
            a(f"ds_read_b128 {vr(X+4*i,4)}, v{vT} offset:{XB + XP*i}")
        a(f"s_mul_i32 s{sT2}, s{sRB}, 40")
        a(f"s_mul_i32 s{sExp}, s{sT}, 5")
        a(f"s_add_u32 s{sT2}, s{sT2}, s{sExp}")
        a(f"s_lshl_b32 s{sT2}, s{sT2}, 10")
        if WS_XF: a(f"s_add_u32 s{sT2}, s{sT2}, {WS_XF}")
        a(f"s_lshl_b32 s{sFD}, s{sRB}, 3")
        a(f"s_add_u32 s{sFD}, s{sFD}, s{sT}")
        a(f"v_add_u32 v{vT+1}, 4096, v{vX16}")
        a("s_waitcnt lgkmcnt(0)")
        for i in range(4):
            a(f"buffer_store_dwordx4 {vr(X+4*i,4)}, v{vX16}, s[{R_WS}:{R_WS+3}], s{sT2} offen offset:{1024*i} sc1")
        a(f"buffer_store_dwordx4 {vr(X+16,4)}, v{vT+1}, s[{R_WS}:{R_WS+3}], s{sT2} offen sc1")
        L_nor = "A_nor"
        a(f"s_cmp_lg_u32 s{sT}, 0")
        a(f"s_cbranch_scc1 {L_nor}")
        a(f"s_lshl_b32 s{sT2}, s{sRB}, 7")
        a(f"s_add_u32 s{sT2}, s{sT2}, {WS_R}")
        a(f"v_lshlrev_b32 v{vT}, 2, v{vN}")
        a(f"buffer_store_dword v{vR}, v{vT}, s[{R_WS}:{R_WS+3}], s{sT2} offen sc1")
        a.label(L_nor)
    a.label(L_kvp)
    a("s_setprio 3")
    if OPT.get("expfirst", 0):
        a(f"s_cmp_lt_u32 s{sW}, 6")
        a(f"s_cbranch_scc1 A_noexp")
        export_d()
        a.label("A_noexp")
    a(f"s_cmp_ge_u32 s{sCG}, 2")
    a(f"s_cbranch_scc1 A_kvp_skip")
    a(f"s_sub_u32 s{sT}, s{sW}, 5")
    a(f"s_mul_i32 s{sLds}, s{sT}, 3072")
    a(f"s_add_u32 s{sLds}, s{sLds}, {KSTG}")
    tr_addr(a, vTr, vTr2, 40, 8, 4, sLds, vT)
    a(f"v_add_u32 v{vWst}, s{sLds}, v{vX16}")
    a(f"s_mul_i32 s{sT}, s{sStep}, {XP}")
    a(f"v_add_u32 v{vVo}, s{sT}, v{vXa}")
    a(f"v_add_u32 v{vT+4}, {13*XP}, v{vVo}")
    a(f"s_cmp_eq_u32 s{sW}, 5")
    a(f"s_cbranch_scc1 A_kv13")
    for i in range(4): a(f"v_mov_b32 v{WS_+52+i}, 0")
    a(f"v_mov_b32 v{vT+4}, v{vXa}")
    a.label("A_kv13")
    def k_wr(k): a(f"ds_write_b128 v{vWst}, {vr(WS_+4*k,4)} offset:{(k % NSTG)*1024}")
    def k_rd(k):
        f = FB + 8*(k % 4)
        a(f"ds_read_b64_tr_b16 v[{f}:{f+1}], v{vTr} offset:{(k % NSTG)*1024}")
        a(f"ds_read_b64_tr_b16 v[{f+2}:{f+3}], v{vTr2} offset:{(k % NSTG)*1024}")
        if k == 13: a(f"ds_read_b128 {vr(f+4,4)}, v{vT+4}")
        else: a(f"ds_read_b128 {vr(f+4,4)}, v{vVo} offset:{k*XP}")
    pipe_gemm(14, k_wr, k_rd, lambda k, s_: None, lambda s_: None, "0")
    a("s_waitcnt lgkmcnt(0)")
    job_loads()
    a(f"s_cmp_eq_u32 s{sW}, 5")
    a(f"s_cbranch_scc1 A_kv5")
    a(f"s_sub_u32 s{sT}, s{sW}, 6")
    a(f"s_lshl_b32 s{sT}, s{sT}, 12")
    a(f"s_add_u32 s{sT}, s{sT}, {KVX}")
    a(f"v_add_u32 v{vT}, s{sT}, v{vX16}")
    for q in range(4):
        a(f"ds_write_b128 v{vT}, {vr(ACC+4*q,4)} offset:{q*1024}")
    a(f"s_sub_u32 s{sT}, s{sW}, 6")
    a(f"s_lshl_b32 s{sT}, s{sT}, 2")
    a(f"s_add_u32 s{sT}, s{sT}, {LFL}")
    a(f"v_mov_b32 v{vT}, s{sT}")
    a(f"v_mov_b32 v{vT+1}, 1")
    a(f"ds_write_b32 v{vT}, v{vT+1}")
    a(f"s_branch A_kvp_done")
    a.label("A_kv5")
    a(f"v_mov_b32 v{vT}, {LFL}")
    a(f"s_mov_b32 s{sT3}, {SPIN_MAX}")
    a.label("A_kvspin")
    a(f"ds_read_b64 v[{vT+2}:{vT+3}], v{vT}")
    a("s_waitcnt lgkmcnt(0)")
    a(f"v_and_b32 v{vT+2}, v{vT+2}, v{vT+3}")
    a("s_nop 0")
    a(f"v_readfirstlane_b32 s{sT}, v{vT+2}")
    a(f"s_sub_u32 s{sT3}, s{sT3}, 1")
    a(f"s_cmp_eq_u32 s{sT3}, 0")
    a(f"s_cbranch_scc1 A_kvspin_done")
    a(f"s_cmp_eq_u32 s{sT}, 1")
    a(f"s_cbranch_scc0 A_kvspin")
    a.label("A_kvspin_done")
    a(f"v_add_u32 v{vT}, {KVX}, v{vX16}")
    for p_ in range(2):
        for q in range(4):
            a(f"ds_read_b128 {vr(FB+16*p_+4*q,4)}, v{vT} offset:{p_*4096 + q*1024}")
    a("s_waitcnt lgkmcnt(0)")
    for j in range(16):
        a(f"v_add_f32 v{FB+j}, v{FB+j}, v{FB+16+j}")
    for j in range(16):
        a(f"v_add_f32 v{ACC+j}, v{ACC+j}, v{FB+j}")
    for j in range(16): a(f"v_mul_f32 v{ACC+j}, v{ACC+j}, v{vR}")
    a(f"v_cmp_eq_u32 vcc, 1, v{vH}")
    a(f"v_mov_b32 v{vT}, 1.0")
    a(f"v_mov_b32 v{vT+1}, 0")
    a(f"v_cndmask_b32 v{ACC+8}, v{ACC+8}, v{vT}, vcc")
    for j in range(9, 12): a(f"v_cndmask_b32 v{ACC+j}, v{ACC+j}, v{vT+1}, vcc")
    for j in range(12, 16): a(f"v_mov_b32 v{ACC+j}, 0")
    for k in range(8): a(f"v_cvt_pk_bf16_f32 v{TMP+k}, v{ACC+2*k}, v{ACC+2*k+1}")
    a(f"s_mul_i32 s{sT}, s{sRB}, {TS}")
    a(f"s_add_u32 s{sT}, s{sT}, {WS_KV}")
    L_v = "A_v"; L_kvdone = "A_kvdone"
    a(f"s_cmp_eq_u32 s{sCG}, 1")
    a(f"s_cbranch_scc1 {L_v}")
    a(f"buffer_store_dwordx4 {vr(TMP,4)}, v{vX16}, s[{R_WS}:{R_WS+3}], s{sT} offen sc1")
    a(f"v_lshlrev_b32 v{vT}, 3, v{vLane}")
    a(f"s_mov_b32 exec_hi, 0")
    a(f"buffer_store_dwordx2 v[{TMP+4}:{TMP+5}], v{vT}, s[{R_WS}:{R_WS+3}], s{sT} offen offset:1024 sc1")
    a(f"s_mov_b32 exec_hi, -1")
    a(f"s_branch {L_kvdone}")
    a.label(L_v)
    a(f"s_mov_b32 s{sLds}, {KVX}")
    a(f"v_lshlrev_b32 v{vT}, 6, v{vN}")
    a(f"v_lshl_add_u32 v{vT}, v{vH}, 3, v{vT}")
    a(f"v_add_u32 v{vT}, s{sLds}, v{vT}")
    for q in range(4):
        a(f"ds_write_b64 v{vT}, v[{TMP+2*q}:{TMP+2*q+1}] offset:{16*q}")
    tr_addr(a, vTr, None, 64, 4, 8, sLds, vT+1)
    for u in range(2):
        a(f"ds_read_b64_tr_b16 v[{TMP+8+4*u}:{TMP+9+4*u}], v{vTr} offset:{u*1024}")
        a(f"ds_read_b64_tr_b16 v[{TMP+10+4*u}:{TMP+11+4*u}], v{vTr} offset:{u*1024 + 512}")
    a(f"v_mul_u32_u24 v{vT}, 336, v{vH}")
    a(f"v_lshl_add_u32 v{vT}, v{vN}, 4, v{vT}")
    a(f"s_mov_b32 exec_lo, 0x1fffff")
    a(f"s_mov_b32 exec_hi, 0x1fffff")
    a("s_waitcnt lgkmcnt(0)")
    a(f"buffer_store_dwordx4 {vr(TMP+8,4)}, v{vT}, s[{R_WS}:{R_WS+3}], s{sT} offen offset:1280 sc1")
    a(f"buffer_store_dwordx4 {vr(TMP+12,4)}, v{vT}, s[{R_WS}:{R_WS+3}], s{sT} offen offset:1952 sc1")
    a(f"s_mov_b64 exec, -1")
    a.label(L_kvdone)
    ensure_tag("A5")
    a("s_waitcnt vmcnt(0)")
    st.mark("k5:drain")
    a(f"s_lshl_b32 s{sT}, s{sRB}, 1")
    a(f"s_add_u32 s{sT}, s{sT}, s{sCG}")
    set_flag(a, vT, sT, FL_KV)
    a(f"s_mov_b32 s{sLds}, {KSTG}")
    job_run(JW, 1)
    job_publish()
    a(f"s_branch {L_bar1}")
    a.label("A_kvp_skip")
    job_loads()
    a(f"s_cmp_lg_u32 s{sW}, 5")
    a(f"s_cbranch_scc1 A_kvp_done")
    a(f"s_mov_b32 s{sLds}, {KSTG}")
    job_run(JW, 0)
    job_publish()
    a(f"s_branch {L_bar1}")
    a.label("A_kvp_done")
    if not OPT.get("expfirst", 0): export_d()
    ensure_tag("A6")
    a(f"s_waitcnt vmcnt({10 if OPT.get('expfirst', 0) else 0})")
    st.mark("x:drain")
    set_flag(a, vT, sFD, FL_D)
    a(f"s_sub_u32 s{sT}, s{sW}, 5")
    a(f"s_mul_i32 s{sLds}, s{sT}, 3072")
    a(f"s_add_u32 s{sLds}, s{sLds}, {KSTG}")
    job_run(JW, 1)
    job_publish()
    a.label(L_bar1)
    a("s_waitcnt vmcnt(0)")
    a.label("A_bar1_nowait")
    a("s_setprio 0")
    a("s_waitcnt lgkmcnt(0)")
    a("s_barrier")
    st.mark("bar0")
    vA16 = vX16
    aK1, aK2, aV, nK1, nK2, nV = 64, 65, 66, 67, 68, 69
    bK2, bV = 70, 71
    CN = 80
    S = [16, 32]
    O = 48
    P = 96
    Q1, Q2 = 104, 108
    K1, K2 = 112, 116
    V1, V2 = 120, 124
    vM2 = 110
    sSoffK, sLdsW, sSlot, sCk = 58, 59, 60, 61
    vFl, vFlo = 72, 73
    srd(a, R_A, S_WS, S_WS+1, KVB, WS_KV)
    a(f"s_lshl_b32 s{sLdsW}, s{sW}, 10")
    a(f"v_lshlrev_b32 v{bK2}, 3, v{vN}")
    a(f"v_add_u32 v{bK2}, 1024, v{bK2}")
    a(f"v_min_u32 v{bV}, 20, v{vN}")
    a(f"v_lshlrev_b32 v{bV}, 4, v{bV}")
    a(f"v_mul_u32_u24 v{vT}, 336, v{vH}")
    a(f"v_add3_u32 v{bV}, v{bV}, v{vT}, 0")
    a(f"v_add_u32 v{bV}, 1280, v{bV}")
    def dma_chunk(slot_s):
        a(f"s_add_u32 s{sT}, s{slot_s}, s{sLdsW}")
        a(f"s_add_u32 s{sT2}, s{sSoffK}, s{sLdsW}")
        a(f"s_mov_b32 m0, s{sT}")
        a(f"s_add_u32 s{sT}, s{sT}, 8192")
        a(f"buffer_load_dwordx4 v{vA16}, s[{R_A}:{R_A+3}], s{sT2} offen sc1 lds")
        a(f"s_mov_b32 m0, s{sT}")
        a(f"s_add_u32 s{sT2}, s{sT2}, 8192")
        a(f"buffer_load_dwordx4 v{vA16}, s[{R_A}:{R_A+3}], s{sT2} offen sc1 lds")
        Ls = a.newlabel("A_d3")
        a(f"s_cmp_ge_u32 s{sW}, 5")
        a(f"s_cbranch_scc1 {Ls}")
        a(f"s_add_u32 m0, s{sT}, 8192")
        a(f"s_add_u32 s{sT2}, s{sT2}, 8192")
        a(f"buffer_load_dwordx4 v{vA16}, s[{R_A}:{R_A+3}], s{sT2} offen sc1 lds")
        a.label(Ls)
        a(f"s_add_u32 s{sSoffK}, s{sSoffK}, {CH}")
        a(f"s_cmp_eq_u32 s{sSoffK}, {8*CH}")
        a(f"s_cselect_b32 s{sSoffK}, 0, s{sSoffK}")
        a(f"s_add_u32 s{sCk}, s{sCk}, 1")
        a(f"s_and_b32 s{sCk}, s{sCk}, 7")
    L_noqw = "A_noqw"
    a(f"v_mul_u32_u24 v{vT}, {QP}, v{vN}")
    a(f"v_add_u32 v{vT}, {QBUF}, v{vT}")
    a(f"s_cmp_ge_u32 s{sW}, 5")
    a(f"s_cbranch_scc1 {L_noqw}")
    a(f"s_lshl_b32 s{sT}, s{sW}, 6")
    a(f"v_lshl_add_u32 v{vT+1}, v{vH}, 3, v{vT}")
    a(f"v_add_u32 v{vT+1}, s{sT}, v{vT+1}")
    for q in range(4):
        a(f"ds_write_b64 v{vT+1}, v[{TMP+2*q}:{TMP+2*q+1}] offset:{16*q}")
    a.label(L_noqw)
    a("s_waitcnt lgkmcnt(0)")
    a("s_barrier")
    a(f"s_mul_i32 s{sT}, s{sW}, 40")
    a(f"v_add_u32 v{vT}, s{sT}, v{vT}")
    a(f"v_lshl_add_u32 v{vT+1}, v{vH}, 3, v{vT}")
    a(f"ds_read_b64 v[{Q1}:{Q1+1}], v{vT+1}")
    a(f"ds_read_b64 v[{Q1+2}:{Q1+3}], v{vT+1} offset:16")
    a(f"ds_read_b64 v[{Q2}:{Q2+1}], v{vT} offset:32")
    a(f"v_mov_b32 v{aK1}, v{vA16}")
    a(f"v_mov_b32 v{aK2}, v{bK2}")
    a(f"v_mov_b32 v{aV}, v{bV}")
    a(f"v_add_u32 v{nK1}, {CH}, v{vA16}")
    a(f"v_add_u32 v{nK2}, {CH}, v{bK2}")
    a(f"v_add_u32 v{nV}, {CH}, v{bV}")
    for i in range(16): a(f"v_mov_b32 v{O+i}, 0")
    a(f"v_cmp_eq_u32 vcc, 1, v{vH}")
    a(f"v_mov_b32 v{vT}, 0")
    a("s_waitcnt lgkmcnt(0)")
    a(f"v_cndmask_b32 v{Q2}, v{Q2}, v{vT}, vcc")
    a(f"v_cndmask_b32 v{Q2+1}, v{Q2+1}, v{vT}, vcc")
    a(f"s_lshr_b32 s{sCk}, s{sRB}, 3")
    a(f"s_mul_i32 s{sSoffK}, s{sCk}, {CH}")
    def check_chunk(lab):
        a(f"s_cmp_lg_u32 s{sW}, 7")
        a(f"s_cbranch_scc1 {lab}_skip")
        a(f"s_lshl_b32 s{sT}, s{sCk}, 4")
        poll_flags(a, vT+2, lab, sT, 16, FL_KV, sleep=OPT.get("kvsleep", 1))
        a.label(f"{lab}_skip")
    check_chunk("A7a")
    a("s_barrier")
    st.mark("bar1")
    a(f"s_mov_b32 s{sSlot}, 0")
    dma_chunk(sSlot)
    a(f"v_min_u32 v{vFlo}, 15, v{vLane}")
    a(f"v_lshlrev_b32 v{vFlo}, 7, v{vFlo}")
    def rd(dst, n, t, off, cur, nxt, op):
        v_ = cur if t < 8 else nxt
        a(f"{op} {vr(dst,n)}, v{v_} offset:{(t % 8)*TS + off}")
    def rd_K1(t): rd(K1, 4, t, 0, aK1, nK1, "ds_read_b128")
    def rd_K2(t): rd(K2, 2, t, 0, aK2, nK2, "ds_read_b64")
    def rd_V1(t): rd(V1, 4, t, 0, aV, nV, "ds_read_b128")
    def rd_V2(t): rd(V2, 4, t, 672, aV, nV, "ds_read_b128")
    def qk1(dst, c="0"): a(f"v_mfma_f32_32x32x16_bf16 {vr(dst,16)}, {vr(K1,4)}, {vr(Q1,4)}, {c}")
    def qk2(dst): a(f"v_mfma_f32_32x32x8_bf16 {vr(dst,16)}, {vr(K2,2)}, {vr(Q2,2)}, {vr(dst,16)}")
    CNR = vr(CN, 16)
    a("s_waitcnt vmcnt(0)")
    a("s_barrier")
    rd_K1(0); rd_K2(0)
    def set_m(delta):
        a(f"v_mov_b32 v{vT}, v{vM2}")
        a.nop(2)
        a(f"v_permlane32_swap_b32 v{vM2}, v{vT}")
        a.nop(1)
        a(f"v_max_f32 v{vM2}, v{vM2}, v{vT}")
        if delta: a(f"v_add_f32 v{vM2}, {f32bits(delta)}, v{vM2}")
        for i in range(16): a(f"v_sub_f32 v{CN+i}, 0, v{vM2}")
    a(f"v_mov_b32 v{vM2}, 0xff800000")
    a("s_waitcnt lgkmcnt(0)")
    qk1(S[0]); qk2(S[0])
    rd_K1(1); rd_K2(1)
    a("s_waitcnt lgkmcnt(0)")
    qk1(S[1]); qk2(S[1])
    rd_K1(0); rd_K2(0)
    for i in range(4, 8): a(f"v_mov_b32 v{P+i}, 0")
    for i in range(4): a(f"v_mov_b32 v{V2+i}, 0")
    a.nop(4)
    for i in range(8):
        a(f"v_max3_f32 v{vM2}, v{S[0]+2*i}, v{S[0]+2*i+1}, v{vM2}")
    a.nop(4)
    for i in range(8):
        a(f"v_max3_f32 v{vM2}, v{S[1]+2*i}, v{S[1]+2*i+1}, v{vM2}")
    set_m(DELTA)
    a("s_waitcnt lgkmcnt(0)")
    a.nop(1)
    qk1(S[0], CNR); qk2(S[0])
    rd_K1(1); rd_K2(1); rd_V1(0)
    check_chunk("A7b")
    a("s_barrier")
    a(f"s_mov_b32 s{sSlot}, {CH}")
    dma_chunk(sSlot)
    a(f"s_mov_b32 s{sSlot}, {2*CH}")
    a.nop(8)
    st.mark("sample")
    a(f"s_setprio {OPT.get('aprio', 0)}")
    a(f"s_mov_b32 s{sIt}, 0")
    L_loop = "A_loop"
    a(".p2align 6")
    a.label(L_loop)
    def e(cur, i): a(f"v_exp_f32 v{cur+i}, v{cur+i}")
    def p(cur, k): a(f"v_cvt_pk_bf16_f32 v{P+k}, v{cur+2*k}, v{cur+2*k+1}")
    for t in range(8):
        cur, nxt = S[t % 2], S[(t+1) % 2]
        if t == 0:
            a(f"s_cmp_lg_u32 s{sW}, 7")
            a(f"s_cbranch_scc1 A_nf0")
            a(f"s_lshl_b32 s{sT}, s{sCk}, 11")
            a(f"s_add_u32 s{sT}, s{sT}, {FL_KV*128}")
            a(f"buffer_load_dword v{vFl}, v{vFlo}, s[{R_FL}:{R_FL+3}], s{sT} offen sc1")
            a.label("A_nf0")
        if t == 6:
            a("s_waitcnt vmcnt(0)")
            a(f"s_cmp_lg_u32 s{sW}, 7")
            a(f"s_cbranch_scc1 A_nf6")
            a(f"v_cmp_ne_u32 vcc, s{sTag}, v{vFl}")
            a("s_nop 1")
            a(f"s_cmp_eq_u64 vcc, 0")
            a(f"s_cbranch_scc1 A_nf6")
            a(f"s_lshl_b32 s{sT}, s{sCk}, 4")
            poll_flags(a, vT+2, "A7c", sT, 16, FL_KV, sleep=1)
            a.label("A_nf6")
            a("s_barrier")
            dma_chunk(sSlot)
            a(f"s_add_u32 s{sSlot}, s{sSlot}, {CH}")
            a(f"s_cmp_eq_u32 s{sSlot}, {3*CH}")
            a(f"s_cselect_b32 s{sSlot}, 0, s{sSlot}")
        e(cur, 0); e(cur, 1)
        a("s_waitcnt lgkmcnt(2)")
        a(f"v_mfma_f32_32x32x16_bf16 {vr(O,16)}, {vr(V2,4)}, {vr(P+4,4)}, {vr(O,16)}")
        rd_V2(t)
        e(cur, 2); e(cur, 3); p(cur, 0); p(cur, 1)
        qk1(nxt, CNR)
        rd_K1(t+2)
        e(cur, 4); e(cur, 5); e(cur, 6); e(cur, 7); p(cur, 2); p(cur, 3)
        a("s_waitcnt lgkmcnt(2)")
        qk2(nxt)
        rd_K2(t+2)
        e(cur, 8); e(cur, 9); e(cur, 10); e(cur, 11); p(cur, 4); p(cur, 5)
        a(f"v_mfma_f32_32x32x16_bf16 {vr(O,16)}, {vr(V1,4)}, {vr(P,4)}, {vr(O,16)}")
        rd_V1(t+1)
        e(cur, 12); e(cur, 13); e(cur, 14); e(cur, 15); p(cur, 6); p(cur, 7)
    a(f"v_mov_b32 v{aK1}, v{nK1}")
    a(f"v_mov_b32 v{aK2}, v{nK2}")
    a(f"v_mov_b32 v{aV}, v{nV}")
    a(f"s_add_u32 s{sT}, s{sSlot}, {2*CH}")
    a(f"s_cmp_ge_u32 s{sT}, {3*CH}")
    a(f"s_cselect_b32 s{sT2}, {3*CH}, 0")
    a(f"s_sub_u32 s{sT}, s{sT}, s{sT2}")
    a(f"v_add_u32 v{nK1}, s{sT}, v{vA16}")
    a(f"v_add_u32 v{nK2}, s{sT}, v{bK2}")
    a(f"v_add_u32 v{nV}, s{sT}, v{bV}")
    a(f"s_add_u32 s{sIt}, s{sIt}, 1")
    a(f"s_cmp_lt_u32 s{sIt}, 8")
    a(f"s_cbranch_scc1 {L_loop}")
    a("s_waitcnt lgkmcnt(0)")
    a(f"v_mfma_f32_32x32x16_bf16 {vr(O,16)}, {vr(V2,4)}, {vr(P+4,4)}, {vr(O,16)}")
    a("s_setprio 0")
    st.mark("loop")
    a.nop(16)
    L_fin, L_slow = "A_fin", "A_slow"
    a(f"s_mov_b32 s{sIt}, 0")
    a.label(L_fin)
    a(f"v_mov_b32 v{vT}, v{O+8}")
    a(f"v_mov_b32 v{vT+1}, v{O+8}")
    a.nop(2)
    a(f"v_permlane32_swap_b32 v{vT}, v{vT+1}")
    a(f"v_max3_f32 v{vT+2}, |v{O}|, |v{O+1}|, |v{O+2}|")
    for j in range(3, 12, 2):
        j2 = min(j+1, 11)
        a(f"v_max3_f32 v{vT+2}, |v{O+j}|, |v{O+j2}|, v{vT+2}")
    a(f"v_mov_b32 v{vT+3}, {f32bits(2.0**120)}")
    a(f"v_cmp_nlt_f32 vcc, v{vT+2}, v{vT+3}")
    a(f"v_cmp_nlt_f32 s[62:63], 0, v{vT+1}")
    a.nop(1)
    a(f"s_or_b64 vcc, vcc, s[62:63]")
    a(f"s_cmp_eq_u64 vcc, 0")
    a(f"s_cbranch_scc1 A_store")
    a(f"s_cmp_lg_u32 s{sIt}, 0")
    a(f"s_cbranch_scc1 A_store")
    a(f"s_branch {L_slow}")
    a.label("A_store")
    a(f"v_rcp_f32 v{vT+2}, v{vT+1}")
    a.nop(1)
    for j in range(12): a(f"v_mul_f32 v{O+j}, v{O+j}, v{vT+2}")
    for k in range(6): a(f"v_cvt_pk_bf16_f32 v{P+k}, v{O+2*k}, v{O+2*k+1}")
    a(f"s_lshl_b32 s{sT}, s{sCG}, 3")
    a(f"s_add_u32 s{sT}, s{sT}, s{sW}")
    a(f"s_mul_i32 s{sT}, s{sT}, 20")
    a(f"s_mul_i32 s{sT2}, s{sRB}, {40*1024}")
    a(f"s_add_u32 s{sT2}, s{sT2}, {WS_OF}")
    def oaddr(dst, colv):
        a(f"v_lshrrev_b32 v{dst}, 4, v{colv}")
        a(f"v_lshlrev_b32 v{dst}, 10, v{dst}")
        a(f"v_bfe_u32 v{vT+7}, v{colv}, 3, 1")
        a(f"v_lshl_add_u32 v{dst}, v{vT+7}, 9, v{dst}")
        a(f"v_and_b32 v{vT+7}, 7, v{colv}")
        a(f"v_lshl_add_u32 v{dst}, v{vT+7}, 1, v{dst}")
        a(f"v_lshl_add_u32 v{dst}, v{vN}, 4, v{dst}")
    a(f"v_lshlrev_b32 v{vT+3}, 2, v{vH}")
    a(f"v_add_u32 v{vT+3}, s{sT}, v{vT+3}")
    oaddr(vT+4, vT+3)
    a(f"buffer_store_dwordx2 v[{P}:{P+1}], v{vT+4}, s[{R_WS}:{R_WS+3}], s{sT2} offen sc1")
    a(f"v_add_u32 v{vT+3}, 8, v{vT+3}")
    oaddr(vT+5, vT+3)
    a(f"buffer_store_dwordx2 v[{P+2}:{P+3}], v{vT+5}, s[{R_WS}:{R_WS+3}], s{sT2} offen sc1")
    a(f"s_add_u32 s{sT}, s{sT}, 16")
    a(f"v_mov_b32 v{vT+3}, s{sT}")
    oaddr(vT+6, vT+3)
    a(f"v_cmp_eq_u32 vcc, 0, v{vH}")
    a(f"s_and_saveexec_b64 s[62:63], vcc")
    a(f"buffer_store_dwordx2 v[{P+4}:{P+5}], v{vT+6}, s[{R_WS}:{R_WS+3}], s{sT2} offen sc1")
    a(f"s_mov_b64 exec, s[62:63]")
    a(f"s_cmp_lg_u32 s{sTag}, 0")
    a(f"s_cbranch_scc1 A_ohave")
    get_tag(a, vT, "A8")
    a.label("A_ohave")
    a("s_waitcnt vmcnt(0)")
    a(f"s_lshl_b32 s{sT}, s{sRB}, 2")
    a(f"s_add_u32 s{sT}, s{sT}, s{sCG}")
    a(f"s_lshl_b32 s{sT}, s{sT}, 3")
    a(f"s_add_u32 s{sT}, s{sT}, s{sW}")
    set_flag(a, vT, sT, FL_O)
    st.end()
    a("s_endpgm")
    a.label(L_slow)
    a(f"v_mov_b32 v{vM2}, 0xff800000")
    a(f"s_mov_b32 s{sSoffK}, 0")
    a.label("A_slow1")
    a(f"buffer_load_dwordx4 {vr(K1,4)}, v{vA16}, s[{R_A}:{R_A+3}], s{sSoffK} offen sc1")
    a(f"buffer_load_dwordx2 {vr(K2,2)}, v{bK2}, s[{R_A}:{R_A+3}], s{sSoffK} offen sc1")
    a("s_waitcnt vmcnt(0)")
    qk1(S[0]); qk2(S[0])
    a.nop(16)
    for i in range(8):
        a(f"v_max3_f32 v{vM2}, v{S[0]+2*i}, v{S[0]+2*i+1}, v{vM2}")
    a(f"s_add_u32 s{sSoffK}, s{sSoffK}, {TS}")
    a(f"s_cmp_lt_u32 s{sSoffK}, {KVB}")
    a(f"s_cbranch_scc1 A_slow1")
    set_m(0.0)
    for i in range(16): a(f"v_mov_b32 v{O+i}, 0")
    a(f"s_mov_b32 s{sSoffK}, 0")
    a.label("A_slow2")
    a(f"buffer_load_dwordx4 {vr(K1,4)}, v{vA16}, s[{R_A}:{R_A+3}], s{sSoffK} offen sc1")
    a(f"buffer_load_dwordx2 {vr(K2,2)}, v{bK2}, s[{R_A}:{R_A+3}], s{sSoffK} offen sc1")
    a(f"buffer_load_dwordx4 {vr(V1,4)}, v{bV}, s[{R_A}:{R_A+3}], s{sSoffK} offen sc1")
    a(f"buffer_load_dwordx4 {vr(V2,4)}, v{bV}, s[{R_A}:{R_A+3}], s{sSoffK} offen offset:672 sc1")
    a("s_waitcnt vmcnt(0)")
    qk1(S[0], CNR); qk2(S[0])
    a.nop(16)
    for i in range(16): e(S[0], i)
    a.nop(1)
    for k in range(8): p(S[0], k)
    a.nop(2)
    a(f"v_mfma_f32_32x32x16_bf16 {vr(O,16)}, {vr(V1,4)}, {vr(P,4)}, {vr(O,16)}")
    a(f"v_mfma_f32_32x32x16_bf16 {vr(O,16)}, {vr(V2,4)}, {vr(P+4,4)}, {vr(O,16)}")
    a(f"s_add_u32 s{sSoffK}, s{sSoffK}, {TS}")
    a(f"s_cmp_lt_u32 s{sSoffK}, {KVB}")
    a(f"s_cbranch_scc1 A_slow2")
    a.nop(16)
    a(f"s_mov_b32 s{sIt}, 1")
    a(f"s_branch {L_fin}")

def role_B1(a):
    st = Stamps(a, "B1")
    st.start()
    if OPT.get("bprio"): a(f"s_setprio {OPT['bprio']}")
    sG, sC = sRB, sCG
    sSoffW, sSoffX, sLdsW, sKH, sXb = 57, 58, 59, 60, 99
    vT = 4; vW = 10; vTr, vX16, vR = 13, 14, 15
    XS = 16; WF = 48; ACC = 76
    SLOT = 24576
    a(f"s_sub_u32 s{sT2}, s2, 256")
    a(f"s_bfe_u32 s{sG}, s{sT2}, 0x20001")
    a(f"s_lshl_b32 s{sG}, s{sG}, 2")
    a(f"s_bfe_u32 s{sT}, s{sT2}, 0x20003")
    a(f"s_add_u32 s{sG}, s{sG}, s{sT}")
    a(f"s_and_b32 s{sC}, s{sT2}, 1")
    a(f"s_lshl_b32 s{sC}, s{sC}, 3")
    a(f"s_lshr_b32 s{sT}, s{sT2}, 5")
    a(f"s_add_u32 s{sC}, s{sC}, s{sT}")
    a(f"s_lshr_b32 s{sKH}, s{sW}, 2")
    a(f"v_lshlrev_b32 v{vX16}, 4, v{vLane}")
    a(f"s_and_b32 s{sT}, s{sW}, 3")
    a(f"s_mul_i32 s{sT}, s{sT}, 192")
    a(f"s_mul_i32 s{sT2}, s{sC}, 192")
    a(f"s_mul_i32 s{sT3}, s{sKH}, {320*3072}")
    a(f"s_add_u32 s{sT2}, s{sT2}, s{sT3}")
    for i in range(3):
        a(f"v_add_u32 v{vT}, s{sT}, v{vLane}")
        if i: a(f"v_add_u32 v{vT}, {64*i}, v{vT}")
        a(f"v_mul_u32_u24 v{vT+1}, 5462, v{vT}")
        a(f"v_lshrrev_b32 v{vT+1}, 16, v{vT+1}")
        a(f"v_mul_u32_u24 v{vT+2}, 12, v{vT+1}")
        a(f"v_sub_u32 v{vT}, v{vT}, v{vT+2}")
        a(f"v_lshlrev_b32 v{vT}, 4, v{vT}")
        a(f"v_mul_u32_u24 v{vT+1}, 3072, v{vT+1}")
        a(f"v_add3_u32 v{vW+i}, v{vT}, v{vT+1}, s{sT2}")
        if i: a(f"v_subrev_u32 v{vW+i}, {1024*i}, v{vW+i}")
    a(f"s_mul_i32 s{sT}, s{sKH}, 12288")
    tr_addr(a, vTr, None, 192, 8, 4, sT, vT)
    a(f"s_mul_i32 s{sLdsW}, s{sW}, 3072")
    srd(a, R_A, S_W1, S_W1+1, 640*1536*2)
    srd(a, R_B, S_B1, S_B1+1, 1536*2)
    a(f"s_mul_hi_u32 s{sT}, s{sC}, {(1<<32)//5 + 1}")
    a(f"s_mul_i32 s{sT}, s{sT}, 5")
    a(f"s_sub_u32 s{sT}, s{sC}, s{sT}")
    a(f"s_mul_i32 s{sSoffW}, s{sT}, {64*3072}")
    a(f"s_lshl_b32 s{sSoffX}, s{sT}, 12")
    a(f"s_and_b32 s{sT}, s{sW}, 3")
    a(f"s_lshl_b32 s{sT2}, s{sG}, 2")
    a(f"s_add_u32 s{sT}, s{sT}, s{sT2}")
    a(f"s_mul_i32 s{sXb}, s{sT}, {40*1024}")
    a(f"s_mul_i32 s{sT2}, s{sKH}, {20*1024}")
    a(f"s_add_u32 s{sXb}, s{sXb}, s{sT2}")
    if WS_XF: a(f"s_add_u32 s{sXb}, s{sXb}, {WS_XF}")
    def issueW(c):
        a(f"s_add_u32 m0, s{sLdsW}, {(c%3)*SLOT}")
        a(f"s_add_u32 s{sT}, s{sSoffW}, {64*3072}")
        for i in range(3):
            a(f"buffer_load_dwordx4 v{vW+i}, s[{R_A}:{R_A+3}], s{sSoffW} offen offset:{1024*i} lds")
        a(f"s_cmp_eq_u32 s{sT}, {320*3072}")
        a(f"s_cselect_b32 s{sSoffW}, 0, s{sT}")
    def issueX(c):
        xs = XS + 16*(c % 2)
        a(f"s_add_u32 s{sT2}, s{sXb}, s{sSoffX}")
        a(f"s_add_u32 s{sT}, s{sSoffX}, 4096")
        for i in range(4):
            a(f"buffer_load_dwordx4 {vr(xs+4*i,4)}, v{vX16}, s[{R_WS}:{R_WS+3}], s{sT2} offen offset:{1024*i} sc1")
        a(f"s_cmp_eq_u32 s{sT}, 20480")
        a(f"s_cselect_b32 s{sSoffX}, 0, s{sT}")
    a(f"s_cmp_lg_u32 s{sW}, 0")
    a(f"s_cbranch_scc1 B1_pre")
    get_tag(a, vT, "B1")
    a(f"s_lshl_b32 s{sT}, s{sG}, 5")
    if OPT.get("wftries", 1): poll_flags(a, vT, "B1p", sT, 32, FL_D, tries=OPT.get("wftries", 1))
    a.label("B1_pre")
    a("s_barrier")
    st.mark("prepoll")
    sJ = 96
    a(f"s_sub_u32 s{sJ}, s2, 256")
    srd(a, R_C, S_W2, S_W2+1, 1536*640*2)
    vF = 16
    a(f"v_lshrrev_b32 v32, 2, v{vLane}")
    a(f"v_mul_u32_u24 v32, 1280, v32")
    a(f"v_and_b32 v33, 3, v{vLane}")
    a(f"v_lshl_add_u32 v32, v33, 4, v32")
    a(f"s_lshl_b32 s{sT}, s{sW}, 11")
    a(f"v_add_u32 v33, s{sT}, v{vX16}")
    tr_addr(a, 34, None, 64, 4, 8, sT, vT)
    tr_addr(a, 35, None, 64, 8, 4, sT, vT)
    sDst = [92, 93]; sStp = [94, 95]
    for rnd in range(2):
        Lskip = f"B1_wf{rnd}_skip"
        a(f"s_mov_b32 s{sStp[rnd]}, -1")
        if rnd == 1:
            a(f"s_cmp_ge_u32 s{sW}, 3")
            a(f"s_cbranch_scc1 {Lskip}")
        a(f"s_and_b32 s{sT}, s{sJ}, 63")
        a(f"s_mul_i32 s{sT}, s{sT}, 11")
        a(f"s_add_u32 s{sT}, s{sT}, s{sW}")
        if rnd: a(f"s_add_u32 s{sT}, s{sT}, 8")
        a(f"s_cmp_ge_u32 s{sT}, 680")
        a(f"s_cbranch_scc1 {Lskip}")
        a(f"s_mul_hi_u32 s{sT2}, s{sT}, {(1<<32)//136 + 1}")
        a(f"s_mul_i32 s{sT3}, s{sT2}, 136")
        a(f"s_sub_u32 s{sT}, s{sT}, s{sT3}")
        a(f"s_mov_b32 s{sStp[rnd]}, s{sT}")
        a(f"s_lshr_b32 s{sT3}, s{sJ}, 6")
        a(f"s_mul_i32 s{sT3}, s{sT3}, 5")
        a(f"s_add_u32 s{sT2}, s{sT2}, s{sT3}")
        a(f"s_mul_i32 s62, s{sT2}, 136")
        a(f"s_add_u32 s62, s62, s{sT}")
        a(f"s_lshl_b32 s62, s62, 10")
        a(f"s_add_u32 s{sDst[rnd]}, s62, {WS_WF}")
        a(f"s_lshl_b32 s{sT2}, s{sT2}, 6")
        a(f"s_cmp_lt_u32 s{sT}, 96")
        a(f"s_cselect_b32 s{R_C}, s{S_W2}, s{S_WO}")
        a(f"s_cselect_b32 s{R_C+1}, s{S_W2+1}, s{S_WO+1}")
        a(f"s_cselect_b32 s63, 0, 96")
        a(f"s_mov_b32 s{R_C+2}, {640*640*2}")
        a(f"s_cbranch_scc0 B1_wf{rnd}_a")
        a(f"s_mov_b32 s{R_C+2}, {1536*640*2}")
        a.label(f"B1_wf{rnd}_a")
        a(f"s_sub_u32 s{sT3}, s{sT}, s63")
        a(f"s_mul_i32 s{sT3}, s{sT3}, {16*1280}")
        a(f"s_add_u32 s{sT3}, s{sT3}, s{sT2}")
        a(f"buffer_load_dwordx4 v[{16+4*rnd}:{19+4*rnd}], v32, s[{R_C}:{R_C+3}], s{sT3} offen")
        a.label(Lskip)
    a("s_waitcnt vmcnt(0)")
    for rnd in range(2):
        Lskip = f"B1_wg{rnd}_skip"
        a(f"s_cmp_eq_u32 s{sStp[rnd]}, -1")
        a(f"s_cbranch_scc1 {Lskip}")
        a(f"ds_write_b128 v33, v[{16+4*rnd}:{19+4*rnd}] offset:{1024*rnd}")
        a(f"s_cmp_lt_u32 s{sStp[rnd]}, 96")
        a(f"s_cbranch_scc0 B1_wf{rnd}_n")
        a(f"ds_read_b64_tr_b16 v[{24+4*rnd}:{25+4*rnd}], v34 offset:{1024*rnd}")
        a(f"ds_read_b64_tr_b16 v[{26+4*rnd}:{27+4*rnd}], v34 offset:{1024*rnd+512}")
        a(f"s_branch B1_wf{rnd}_s")
        a.label(f"B1_wf{rnd}_n")
        a(f"ds_read_b64_tr_b16 v[{24+4*rnd}:{25+4*rnd}], v35 offset:{1024*rnd}")
        a(f"ds_read_b64_tr_b16 v[{26+4*rnd}:{27+4*rnd}], v35 offset:{1024*rnd+256}")
        a.label(f"B1_wf{rnd}_s")
        a("s_waitcnt lgkmcnt(0)")
        a(f"buffer_store_dwordx4 v[{24+4*rnd}:{27+4*rnd}], v{vX16}, s[{R_WS}:{R_WS+3}], s{sDst[rnd]} offen sc1")
        a.label(Lskip)
    st.mark("wfprep")
    L_np = "B1_np"
    a(f"s_cmp_lg_u32 s{sW}, 0")
    a(f"s_cbranch_scc1 {L_np}")
    a(f"s_lshl_b32 s{sT}, s{sG}, 5")
    poll_flags(a, vT, "B1", sT, 32, FL_D)
    if OPT.get("b1kv"): poll_flags(a, vT, "B1k", None, 128, FL_KV)
    a.label(L_np)
    a("s_barrier")
    st.mark("wait_d")
    issued = []
    def iX(c): issueX(c); issued.extend([("X", c)]*4)
    def iW(c): issueW(c); issued.extend([("W", c)]*3)
    if OPT.get("b1shallow", 1):
        iW(0); iX(0)
    else:
        iW(0); iX(0)
        a("s_barrier")
        iW(1); iX(1)
        a("s_barrier")
        iW(2)
    def wreads(c, k, buf):
        base = (c % 3)*SLOT + k*16*192
        for ct in range(3):
            a(f"ds_read_b64_tr_b16 v[{WF+12*buf+4*ct}:{WF+12*buf+4*ct+1}], v{vTr} offset:{base + ct*64}")
            a(f"ds_read_b64_tr_b16 v[{WF+12*buf+4*ct+2}:{WF+12*buf+4*ct+3}], v{vTr} offset:{base + ct*64 + 4*192}")
    for c in range(5):
        last = max(i for i, e_ in enumerate(issued) if e_ in (("W", c), ("X", c)))
        a(f"s_waitcnt vmcnt({len(issued) - 1 - last})")
        a("s_barrier")
        if c == 0:
            st.mark("b0")
            a(f"s_cmp_lg_u32 s{sW}, 0")
            a(f"s_cbranch_scc1 B1_nofw")
            set_flag(a, vT, sJ, FL_W)
            a.label("B1_nofw")
        if OPT.get("b1shallow", 1):
            if c + 1 < 5: iW(c + 1); iX(c + 1)
        elif 1 <= c <= 2: iW(c + 2)
        xs = XS + 16*(c % 2)
        wreads(c, 0, 0)
        for k in range(4):
            buf = k % 2
            if k < 3:
                wreads(c, k + 1, 1 - buf)
                a("s_waitcnt lgkmcnt(6)")
            else:
                a("s_waitcnt lgkmcnt(0)")
            for ct in range(3):
                cin = "0" if (c == 0 and k == 0) else vr(ACC+16*ct,16)
                a(f"v_mfma_f32_32x32x16_bf16 {vr(ACC+16*ct,16)}, {vr(WF+12*buf+4*ct,4)}, {vr(xs+4*k,4)}, {cin}")
        if c + 2 < 5 and not OPT.get("b1shallow", 1): iX(c + 2)
    st.mark("kloop")
    a("s_setprio 3")
    a(f"s_and_b32 s{sT}, s{sW}, 3")
    a(f"s_lshl_b32 s{sT2}, s{sG}, 2")
    a(f"s_add_u32 s{sT}, s{sT}, s{sT2}")
    a(f"s_lshl_b32 s{sT2}, s{sT}, 7")
    a(f"s_add_u32 s{sT2}, s{sT2}, {WS_R}")
    a(f"v_lshlrev_b32 v{vT}, 2, v{vN}")
    a(f"buffer_load_dword v{vR}, v{vT}, s[{R_WS}:{R_WS+3}], s{sT2} offen sc1")
    a(f"s_mul_i32 s{sT2}, s{sC}, 192")
    a(f"s_lshl_b32 s{sT3}, s{sKH}, 5")
    a(f"s_add_u32 s{sT2}, s{sT2}, s{sT3}")
    a(f"v_lshlrev_b32 v{vT}, 3, v{vH}")
    B = XS
    for ct in range(3):
        for q in range(2):
            a(f"buffer_load_dwordx2 v[{B+4*ct+2*q}:{B+4*ct+2*q+1}], v{vT}, s[{R_B}:{R_B+3}], s{sT2} offen offset:{64*ct+16*q}")
    a(f"s_mul_i32 s{sT}, s{sT}, 96")
    a(f"s_mul_i32 s{sT2}, s{sC}, 6")
    a(f"s_add_u32 s{sT}, s{sT}, s{sT2}")
    a(f"s_add_u32 s{sT}, s{sT}, s{sKH}")
    a(f"s_lshl_b32 s{sXb}, s{sT}, 10")
    a(f"s_add_u32 s{sXb}, s{sXb}, {WS_H}")
    a("s_barrier")
    a.nop(4)
    T = XS + 16
    a(f"s_mul_i32 s{sT}, s{sW}, 6144")
    a(f"v_add_u32 v{vT+1}, s{sT}, v{vX16}")
    a(f"s_xor_b32 s{sT}, s{sW}, 4")
    a(f"s_mul_i32 s{sT}, s{sT}, 6144")
    a(f"v_add_u32 v{vT+2}, s{sT}, v{vX16}")
    a(f"s_cmp_eq_u32 s{sKH}, 1")
    a(f"s_cbranch_scc1 B1_x1")
    for ct in range(3):
        for q in range(2):
            a(f"ds_write_b128 v{vT+1}, {vr(ACC+16*ct+8+4*q,4)} offset:{(2*ct+q)*1024}")
    a(f"s_branch B1_x2")
    a.label("B1_x1")
    for ct in range(3):
        for q in range(2):
            a(f"ds_write_b128 v{vT+1}, {vr(ACC+16*ct+4*q,4)} offset:{(2*ct+q)*1024}")
    a.label("B1_x2")
    a("s_waitcnt lgkmcnt(0)")
    a("s_barrier")
    for i in range(6):
        a(f"ds_read_b128 {vr(T+4*i,4)}, v{vT+2} offset:{i*1024}")
    a("s_waitcnt lgkmcnt(0) vmcnt(0)")
    a(f"s_cmp_eq_u32 s{sKH}, 1")
    a(f"s_cbranch_scc1 B1_y1")
    for ct in range(3):
        for j in range(8): a(f"v_add_f32 v{T+8*ct+j}, v{T+8*ct+j}, v{ACC+16*ct+j}")
    a(f"s_branch B1_y2")
    a.label("B1_y1")
    for ct in range(3):
        for j in range(8): a(f"v_add_f32 v{T+8*ct+j}, v{T+8*ct+j}, v{ACC+16*ct+8+j}")
    a.label("B1_y2")
    TB = 56
    for ct in range(3):
        for q in range(2):
            b0 = B+4*ct+2*q
            acc = T+8*ct+4*q
            a(f"v_lshlrev_b32 v{TB}, 16, v{b0}")
            a(f"v_and_b32 v{TB+1}, 0xffff0000, v{b0}")
            a(f"v_lshlrev_b32 v{TB+2}, 16, v{b0+1}")
            a(f"v_and_b32 v{TB+3}, 0xffff0000, v{b0+1}")
            for j in range(4): a(f"v_fma_f32 v{acc+j}, v{acc+j}, v{vR}, v{TB+j}")
            for j in range(4): a(f"v_max_f32 v{acc+j}, 0, v{acc+j}")
            for j in range(4): a(f"v_mul_f32 v{acc+j}, v{acc+j}, v{acc+j}")
        for k in range(4):
            a(f"v_cvt_pk_bf16_f32 v{60+4*ct+k}, v{T+8*ct+2*k}, v{T+8*ct+2*k+1}")
    a(f"v_add_u32 v{vT}, 4096, v{vX16}")
    a(f"buffer_store_dwordx4 {vr(60,4)}, v{vX16}, s[{R_WS}:{R_WS+3}], s{sXb} offen sc1")
    a(f"buffer_store_dwordx4 {vr(64,4)}, v{vX16}, s[{R_WS}:{R_WS+3}], s{sXb} offen offset:2048 sc1")
    a(f"buffer_store_dwordx4 {vr(68,4)}, v{vT}, s[{R_WS}:{R_WS+3}], s{sXb} offen sc1")
    a("s_waitcnt vmcnt(0)")
    a("s_barrier")
    L_nf = "B1_nf"
    a(f"s_cmp_lg_u32 s{sW}, 0")
    a(f"s_cbranch_scc1 {L_nf}")
    a(f"s_lshl_b32 s{sT}, s{sG}, 4")
    a(f"s_add_u32 s{sT}, s{sT}, s{sC}")
    set_flag(a, vT, sT, FL_H)
    a.label(L_nf)
    st.mark("epi")
    st.end()
    a("s_endpgm")

def role_B2(a):
    st = Stamps(a, "B2")
    st.start()
    if OPT.get("bprio"): a(f"s_setprio {OPT['bprio']}")
    sSoffW, sSoffX, sWb, sIt, sRho, sWrapW, sRst = 57, 58, 59, 60, 61, 98, 99
    vT = 4
    vX16, vXa = 14, 15
    ACC = 16
    XR = 48
    WB = 64
    vOut = vT+3
    NXS = 8
    a(f"s_sub_u32 s{sT2}, s2, 512")
    a(f"s_bfe_u32 s{sRB}, s{sT2}, 0x20001")
    a(f"s_lshl_b32 s{sRB}, s{sRB}, 4")
    a(f"s_bfe_u32 s{sT}, s{sT2}, 0x40003")
    a(f"s_add_u32 s{sRB}, s{sRB}, s{sT}")
    a(f"s_and_b32 s{sCG}, s{sT2}, 1")
    a(f"s_lshl_b32 s{sCG}, s{sCG}, 1")
    a(f"s_lshr_b32 s{sT}, s{sT2}, 7")
    a(f"s_add_u32 s{sCG}, s{sCG}, s{sT}")
    a(f"v_lshlrev_b32 v{vX16}, 4, v{vLane}")
    a(f"s_and_b32 s{sRho}, s{sRB}, 7")
    a(f"s_min_u32 s{sT3}, s{sW}, 4")
    a(f"s_mul_i32 s{sT}, s{sCG}, 5")
    a(f"s_add_u32 s{sT}, s{sT}, s{sT3}")
    a(f"s_mul_i32 s{sWb}, s{sT}, {136*1024}")
    a(f"s_add_u32 s{sWb}, s{sWb}, {WS_WF}")
    a(f"s_lshl_b32 s{sT}, s{sT}, 6")
    srd(a, R_C, S_X, S_X+1, NX)
    a(f"s_lshl_b32 s{sT2}, s{sRB}, 5")
    a(f"v_add_u32 v{vT}, s{sT2}, v{vN}")
    a(f"v_mul_u32_u24 v{vT}, 1280, v{vT}")
    a(f"v_lshl_add_u32 v{vT}, v{vH}, 3, v{vT}")
    a(f"v_add_u32 v{vOut}, s{sT}, v{vT}")
    for q in range(4):
        a(f"buffer_load_dwordx2 v[{XR+2*q}:{XR+2*q+1}], v{vOut}, s[{R_C}:{R_C+3}], 0 offen offset:{16*q}")
    srd(a, R_C, S_B2, S_B2+1, 640*2)
    a(f"v_lshlrev_b32 v{vT}, 3, v{vH}")
    for q in range(4):
        a(f"buffer_load_dwordx2 v[{XR+8+2*q}:{XR+8+2*q+1}], v{vT}, s[{R_C}:{R_C+3}], s{sT} offen offset:{16*q}")
    for i in range(16): a(f"v_mov_b32 v{ACC+i}, 0")
    def unpack_add(q, dst):
        for (src, t) in ((XR+2*q, 32), (XR+8+2*q, 36)):
            a(f"v_lshlrev_b32 v{t}, 16, v{src}")
            a(f"v_and_b32 v{t+1}, 0xffff0000, v{src}")
            a(f"v_lshlrev_b32 v{t+2}, 16, v{src+1}")
            a(f"v_and_b32 v{t+3}, 0xffff0000, v{src+1}")
        for j in range(4): a(f"v_add_f32 v{32+j}, v{32+j}, v{36+j}")
        for j in range(4): a(f"v_add_f32 v{dst+j}, v{dst+j}, v{32+j}")
    L_side = "B2_side"
    a(f"s_cmp_ge_u32 s{sW}, 4")
    a(f"s_cbranch_scc1 {L_side}")
    a("s_barrier")
    a(f"s_lshl_b32 s{sSoffW}, s{sRho}, 13")
    a(f"s_mov_b32 s{sWrapW}, {96*1024}")
    a(f"s_mov_b32 s{sRst}, 0")
    def wload(r):
        a(f"s_add_u32 s{sT2}, s{sWb}, s{sSoffW}")
        a(f"s_add_u32 s{sT}, s{sSoffW}, 1024")
        a(f"buffer_load_dwordx4 {vr(r,4)}, v{vX16}, s[{R_WS}:{R_WS+3}], s{sT2} offen sc1")
        a(f"s_cmp_eq_u32 s{sT}, s{sWrapW}")
        a(f"s_cselect_b32 s{sSoffW}, s{sRst}, s{sT}")
    for k in range(16): wload(WB + 4*k)
    st.mark("setup")
    a(f"s_mov_b32 s{sIt}, 0")
    L1 = "B2_p1"
    a.label(L1)
    XBUF = 32
    for j in range(16):
        k = j % 8
        if k == 0:
            a("s_barrier")
            a(f"s_lshl_b32 s{sT}, s{sIt}, 1")
            if j: a(f"s_add_u32 s{sT}, s{sT}, 1")
            a(f"s_and_b32 s{sT}, s{sT}, {NXS-1}")
            a(f"s_lshl_b32 s{sT}, s{sT}, 13")
            a(f"v_add_u32 v{vXa}, s{sT}, v{vX16}")
            for i in range(3):
                a(f"ds_read_b128 {vr(XBUF+4*i,4)}, v{vXa} offset:{i*1024}")
        if j == 0:
            L1n = "B2_p1n"
            a(f"s_cmp_lg_u32 s{sIt}, 5")
            a(f"s_cbranch_scc1 {L1n}")
            a(f"s_mul_i32 s{sSoffW}, s{sRho}, {5*1024}")
            a(f"s_add_u32 s{sSoffW}, s{sSoffW}, {96*1024}")
            a(f"s_mov_b32 s{sWrapW}, {136*1024}")
            a(f"s_mov_b32 s{sRst}, {96*1024}")
            a.label(L1n)
        if k + 3 < 8:
            a(f"ds_read_b128 {vr(XBUF+4*((k+3)%4),4)}, v{vXa} offset:{(k+3)*1024}")
            a("s_waitcnt vmcnt(15) lgkmcnt(3)")
        else:
            a(f"s_waitcnt vmcnt(15) lgkmcnt({7-k})")
        a(f"v_mfma_f32_32x32x16_bf16 {vr(ACC,16)}, {vr(WB+4*j,4)}, {vr(XBUF+4*(k%4),4)}, {vr(ACC,16)}")
        wload(WB + 4*j)
    a(f"s_add_u32 s{sIt}, s{sIt}, 1")
    a(f"s_cmp_lt_u32 s{sIt}, 6")
    a(f"s_cbranch_scc1 {L1}")
    st.mark("ffn2")
    a.nop(12)
    for q in range(4): unpack_add(q, ACC+4*q)
    XBUF = XR
    NBLK = 20
    def blk(s_):
        b = s_ % NBLK
        return (WB + 4*b) if b < 16 else (32 + 4*(b-16))
    for s_ in range(16, 20): wload(blk(s_))
    a("s_barrier")
    a(f"s_branch B2_oload")
    a.label(L_side)
    a(f"s_cmp_lt_u32 s{sW}, 6")
    a(f"s_cbranch_scc1 B2_np0")
    get_tag(a, vT, "B2")
    a(f"s_cmp_eq_u32 s{sW}, 7")
    a(f"s_cbranch_scc1 B2_ph")
    a(f"s_lshl_b32 s{sT}, s{sCG}, 6")
    poll_flags(a, vT, "B2w", sT, 64, FL_W)
    a(f"s_branch B2_np0")
    a.label("B2_ph")
    a(f"s_lshr_b32 s{sT}, s{sRB}, 2")
    a(f"s_lshl_b32 s{sT}, s{sT}, 4")
    poll_flags(a, vT, "B2h", sT, 16, FL_H)
    a.label("B2_np0")
    a("s_barrier")
    a(f"s_sub_u32 s{sT3}, s{sW}, 4")
    a("s_waitcnt vmcnt(0)")
    for jj in range(1, 4):
        Ls = a.newlabel("B2_q")
        a(f"s_cmp_lg_u32 s{sT3}, {jj}")
        a(f"s_cbranch_scc1 {Ls}")
        a(f"v_mov_b32 v{XR}, v{XR+2*jj}")
        a(f"v_mov_b32 v{XR+1}, v{XR+2*jj+1}")
        a(f"v_mov_b32 v{XR+8}, v{XR+8+2*jj}")
        a(f"v_mov_b32 v{XR+9}, v{XR+8+2*jj+1}")
        a.label(Ls)
    for j in range(4): a(f"v_mov_b32 v{40+j}, 0")
    unpack_add(0, 40)
    a(f"s_lshl_b32 s{sRst}, s{sT3}, 11")
    a(f"s_lshl_b32 s{sSoffW}, s{sRho}, 13")
    a(f"s_add_u32 s{sSoffW}, s{sSoffW}, s{sRst}")
    a(f"s_add_u32 s{sWrapW}, s{sRst}, {96*1024}")
    SD = 4
    def wpair(slot):
        a(f"s_add_u32 s{sT2}, s{sWb}, s{sSoffW}")
        a(f"s_add_u32 s{sT}, s{sSoffW}, 8192")
        a(f"buffer_load_dwordx4 {vr(WB+8*slot,4)}, v{vX16}, s[{R_WS}:{R_WS+3}], s{sT2} offen sc1")
        a(f"buffer_load_dwordx4 {vr(WB+8*slot+4,4)}, v{vX16}, s[{R_WS}:{R_WS+3}], s{sT2} offen offset:1024 sc1")
        a(f"s_cmp_eq_u32 s{sT}, s{sWrapW}")
        a(f"s_cselect_b32 s{sSoffW}, s{sRst}, s{sT}")
    for c in range(SD): wpair(c)
    a(f"s_sub_u32 s{sT3}, s{sW}, 4")
    a(f"s_mul_i32 s{sT}, s{sRB}, {96*1024}")
    a(f"s_add_u32 s63, s{sT}, {WS_H}")
    a(f"s_lshl_b32 s97, s{sT3}, 11")
    a(f"s_add_u32 s63, s63, s97")
    a(f"s_lshl_b32 s{sSoffX}, s{sRho}, 13")
    a(f"v_add_u32 v{vT+5}, s97, v{vX16}")
    vXs = vT+5
    vm = Cnt(a, "vmcnt", 63)
    def xdma(c):
        a(f"s_add_u32 m0, s97, {(c % NXS)*8192}")
        a(f"s_add_u32 s{sT2}, s63, s{sSoffX}")
        a(f"s_add_u32 s{sT}, s{sSoffX}, 8192")
        for i in range(2):
            a(f"buffer_load_dwordx4 v{vX16}, s[{R_WS}:{R_WS+3}], s{sT2} offen offset:{1024*i} sc1 lds")
        a(f"s_cmp_eq_u32 s{sT}, {96*1024}")
        a(f"s_cselect_b32 s{sSoffX}, 0, s{sT}")
        vm.issue(("X", c), 2)
    for c in range(SD): vm.issue(("W", c), 2)
    XD = 6
    for c in range(XD): xdma(c)
    for c in range(12):
        vm.need(("X", c), ("W", c))
        a("s_barrier")
        if c + XD < 12: xdma(c + XD)
        for i in range(2):
            a(f"ds_read_b128 {vr(48+4*i,4)}, v{vXs} offset:{(c % NXS)*8192 + 1024*i}")
        a("s_waitcnt lgkmcnt(1)")
        a(f"v_mfma_f32_32x32x16_bf16 {vr(ACC,16)}, {vr(WB+8*(c%4),4)}, {vr(48,4)}, {vr(ACC,16)}")
        a("s_waitcnt lgkmcnt(0)")
        a(f"v_mfma_f32_32x32x16_bf16 {vr(ACC,16)}, {vr(WB+8*(c%4)+4,4)}, {vr(52,4)}, {vr(ACC,16)}")
        if c + SD < 12: wpair(c % 4); vm.issue(("W", c + SD), 2)
    a(f"s_sub_u32 s{sT3}, s{sW}, 4")
    a(f"s_lshl_b32 s{sT3}, s{sT3}, 1")
    a(f"s_mul_i32 s62, s{sRho}, 5")
    a(f"s_add_u32 s62, s62, s{sT3}")
    for m in range(5):
        for i in range(2):
            a(f"s_add_u32 s{sT}, s62, {8*m+i}")
            a(f"s_cmp_ge_u32 s{sT}, 40")
            a(f"s_cselect_b32 s{sT2}, 40, 0")
            a(f"s_sub_u32 s{sT}, s{sT}, s{sT2}")
            a(f"s_add_u32 s{sT}, s{sT}, 96")
            a(f"s_lshl_b32 s{sT}, s{sT}, 10")
            a(f"s_add_u32 s{sT}, s{sT}, s{sWb}")
            a(f"buffer_load_dwordx4 {vr(WB+4*(2*m+i),4)}, v{vX16}, s[{R_WS}:{R_WS+3}], s{sT} offen sc1")
    Lnp2 = "B2_np2"
    a(f"s_cmp_lg_u32 s{sW}, 7")
    a(f"s_cbranch_scc1 {Lnp2}")
    a(f"s_lshl_b32 s{sT}, s{sRB}, 5")
    poll_flags(a, vT, "B2o", sT, 32, FL_O, sleep=OPT.get("osleep", 2))
    a.label(Lnp2)
    st.mark("wait_o")
    a("s_barrier")
    a.label("B2_oload")
    a(f"s_mul_i32 s63, s{sRB}, {40*1024}")
    a(f"s_add_u32 s63, s63, {WS_OF}")
    a(f"s_mul_i32 s62, s{sRho}, 5")
    for i in range(5):
        a(f"s_mul_i32 s{sT}, s{sW}, 5")
        a(f"s_add_u32 s{sT}, s{sT}, {i}")
        a(f"s_add_u32 s{sT2}, s{sT}, s62")
        a(f"s_cmp_ge_u32 s{sT2}, 40")
        a(f"s_cselect_b32 s{sIt}, 40, 0")
        a(f"s_sub_u32 s{sT2}, s{sT2}, s{sIt}")
        a(f"s_lshl_b32 s{sT2}, s{sT2}, 10")
        a(f"s_add_u32 s{sT2}, s{sT2}, s63")
        a(f"s_lshl_b32 m0, s{sT}, 10")
        a("s_nop 0")
        a(f"buffer_load_dwordx4 v{vX16}, s[{R_WS}:{R_WS+3}], s{sT2} offen sc1 lds")
    a("s_waitcnt vmcnt(0)")
    a("s_barrier")
    st.mark("oload")
    a(f"s_cmp_ge_u32 s{sW}, 4")
    a(f"s_cbranch_scc1 B2_side2")
    vm = Cnt(a, "vmcnt", 63); lg = Cnt(a, "lgkmcnt", 15)
    def xread(s_):
        r = XBUF + 4*(s_ % 4)
        a(f"ds_read_b128 {vr(r,4)}, v{vX16} offset:{s_*1024}")
        lg.issue(("X", s_))
    for s_ in range(3): xread(s_)
    for s_ in range(40):
        if s_ + 3 < 40: xread(s_ + 3)
        vm.need(("W", s_))
        lg.need(("X", s_))
        a(f"v_mfma_f32_32x32x16_bf16 {vr(ACC,16)}, {vr(blk(s_),4)}, {vr(XBUF+4*(s_%4),4)}, {vr(ACC,16)}")
        if s_ + NBLK < 40:
            wload(blk(s_)); vm.issue(("W", s_ + NBLK))
    st.mark("wo")
    a("s_setprio 3")
    a("s_barrier")
    a.nop(10)
    srd(a, R_C, S_OUT, S_OUT+1, NX)
    for q in range(4):
        a(f"v_cvt_pk_bf16_f32 v{32+2*q}, v{ACC+4*q}, v{ACC+4*q+1}")
        a(f"v_cvt_pk_bf16_f32 v{33+2*q}, v{ACC+4*q+2}, v{ACC+4*q+3}")
        a(f"buffer_store_dwordx2 v[{32+2*q}:{33+2*q}], v{vOut}, s[{R_C}:{R_C+3}], 0 offen offset:{16*q}")
    a("s_barrier")
    st.end()
    a("s_endpgm")
    a.label("B2_side2")
    for k in range(4):
        a(f"ds_read_b128 {vr(48+4*k,4)}, v{vXs} offset:{(8*(k//2)+(k%2))*1024}")
    for k in range(10):
        a(f"s_waitcnt lgkmcnt({min(3, 9-k)})")
        a(f"v_mfma_f32_32x32x16_bf16 {vr(ACC,16)}, {vr(WB+4*k,4)}, {vr(48+4*(k%4),4)}, {vr(ACC,16)}")
        if k + 4 < 10:
            a(f"ds_read_b128 {vr(48+4*(k%4),4)}, v{vXs} offset:{(8*((k+4)//2)+((k+4)%2))*1024}")
    a("s_setprio 3")
    a("s_barrier")
    a.nop(12)
    a(f"s_sub_u32 s{sT3}, s{sW}, 4")
    a(f"s_lshl_b32 s{sT}, s{sT3}, 12")
    a(f"v_add_u32 v{vT}, s{sT}, v{vX16}")
    for q in range(4):
        a(f"ds_write_b128 v{vT}, {vr(ACC+4*q,4)} offset:{q*1024}")
    a("s_waitcnt lgkmcnt(0)")
    a("s_barrier")
    a(f"s_lshl_b32 s{sT}, s{sT3}, 10")
    a(f"v_add_u32 v{vT}, s{sT}, v{vX16}")
    for jj in range(4):
        a(f"ds_read_b128 {vr(ACC+4*jj,4)}, v{vT} offset:{jj*4096}")
    a(f"s_lshl_b32 s{sT}, s{sT3}, 4")
    a(f"v_add_u32 v{vOut}, s{sT}, v{vOut}")
    srd(a, R_C, S_OUT, S_OUT+1, NX)
    a("s_waitcnt lgkmcnt(0)")
    for j in range(4):
        a(f"v_add_f32 v{ACC+j}, v{ACC+j}, v{ACC+4+j}")
        a(f"v_add_f32 v{ACC+8+j}, v{ACC+8+j}, v{ACC+12+j}")
    for j in range(4): a(f"v_add_f32 v{ACC+j}, v{ACC+j}, v{40+j}")
    for j in range(4): a(f"v_add_f32 v{ACC+j}, v{ACC+j}, v{ACC+8+j}")
    a(f"v_cvt_pk_bf16_f32 v32, v{ACC}, v{ACC+1}")
    a(f"v_cvt_pk_bf16_f32 v33, v{ACC+2}, v{ACC+3}")
    a(f"buffer_store_dwordx2 v[32:33], v{vOut}, s[{R_WS if False else R_C}:{R_C+3}], 0 offen")
    st.end()
    a("s_endpgm")

def gen():
    a = Asm()
    a("s_cmp_ge_u32 s2, 768")
    a("s_cbranch_scc1 K_end")
    a("s_load_dwordx16 s[4:19], s[0:1], 0")
    a("s_load_dwordx8 s[20:27], s[0:1], 64")
    a("s_load_dwordx2 s[28:29], s[0:1], 96")
    a(f"v_and_b32 v{vLane}, 63, v0")
    a(f"v_lshrrev_b32 v4, 6, v0")
    a(f"v_lshrrev_b32 v{vH}, 5, v{vLane}")
    a(f"v_readfirstlane_b32 s{sW}, v4")
    a(f"v_and_b32 v{vN}, 31, v{vLane}")
    a("s_waitcnt lgkmcnt(0)")
    srd(a, R_WS, S_WS, S_WS+1, WS_END)
    srd(a, R_FL, S_WS, S_WS+1, FL_SIZE, WS_FL)
    for r in (R_A, R_B, R_C): srd(a, r, S_WS, S_WS+1, WS_END)
    for i in range(4, 16): a(f"v_mov_b32 v{i}, 0")
    if OPT.get("tlb", 0):
        a(f"s_cmp_lg_u32 s{sW}, 4")
        a(f"s_cbranch_scc1 K_notlb")
        a(f"v_lshlrev_b32 v5, 18, v{vLane}")
        a(f"buffer_load_dword v0, v5, s[{R_WS}:{R_WS+3}], 0 offen")
        a(f"v_lshlrev_b32 v5, 16, v{vLane}")
        for ptr in (S_W1, S_W2, S_WO, S_OUT, S_WQ):
            a(f"global_load_dword v0, v5, s[{ptr}:{ptr+1}]") if False else None
        a.label("K_notlb")
    a("s_cmp_ge_u32 s2, 512")
    a("s_cbranch_scc1 ROLE_B2")
    a("s_cmp_ge_u32 s2, 256")
    a("s_cbranch_scc1 ROLE_B1")
    role_A(a)
    a.label("ROLE_B1")
    role_B1(a)
    a.label("ROLE_B2")
    role_B2(a)
    a.label("K_end")
    a("s_endpgm")
    grid = OPT.get("grid", 768)
    s = f"; generated by gen2.py\n; @launch grid=({grid},1,1) block=(512,1,1) lds={LDS_BYTES}\n"
    s += '.amdgcn_target "amdgcn-amd-amdhsa--gfx950"\n.text\n'
    s += kernel_header(KN) + a.text()
    s += '.section .rodata,"a"\n.p2align 6\n' + kernel_desc(KN, 128, 102)
    return s

if __name__ == "__main__":
    if "--prof" in sys.argv: PROF = True
    for x in sys.argv:
        if x.startswith("-D"):
            k, _, v = x[2:].partition("="); OPT[k] = int(v) if v else 1
    open(sys.argv[1], "w").write(gen())
    if PROF: json.dump(STAMP_NAMES, open("stamps8.json", "w"))
```

```python
import sys, math, json
from asmlib import *

NAME = "parallel_sum__grouped_kv_mqa__dense_activation_squared_relu__prompt"
KN = NAME + "_kernel"
WS_XF = 0x0
WS_R  = 0x280000
WS_KV = 0x290000
WS_OF = 0x2D0000
WS_H  = 0x550000
WS_FL = 0xB50000
WS_WF = 0xBC0000
WS_END = 0xE70000
WS_DBG = 0x2000000
FL_KV, FL_D, FL_H, FL_W, FL_O = 0, 128, 640, 896, 1152
FL_N = 3200
FL_SIZE = FL_N * 128
NX = 2048 * 640 * 2
TS = 2688
KVB = 64 * TS
CH = 8 * TS
QSCALE = (20 ** -0.5) * math.log2(math.e)
DELTA = 96.0
LDS_BYTES = 81920
PROF = False
OPT = {}
SPIN_MAX = 200000

S_X, S_WQ, S_WK, S_WV, S_WO, S_W1, S_B1, S_W2, S_B2, S_OUT, S_DBG, S_WS = 4, 6, 8, 10, 12, 16, 18, 20, 22, 24, 26, 28
sW = 30
sTag = 31
R_WS = 32
R_FL = 36
R_A = 40
R_B = 44
R_C = 48
sRB, sCG, sT, sT2, sT3 = 52, 53, 54, 55, 56
vLane, vH, vN = 1, 2, 3

def diag(a, word, neg=False, va=74):
    if not OPT.get("diag"): return
    a("s_memrealtime s[84:85]")
    a("s_waitcnt lgkmcnt(0)")
    if neg: a("s_not_b32 s84, s84")
    a("s_mov_b64 s[86:87], exec")
    a("s_mov_b64 exec, 1")
    a(f"v_mov_b32 v{va}, s84")
    a(f"v_mov_b32 v{va+1}, {4*word}")
    a(f"global_atomic_umax v{va+1}, v{va}, s[{S_DBG}:{S_DBG+1}] sc1")
    a("s_mov_b64 exec, s[86:87]")

class Stamps:
    def __init__(self, a, role): self.a = a; self.n = 1; self.names = []; self.role = role
    def start(self):
        if not PROF: return
        for i in range(68, 94): self.a(f"s_mov_b32 s{i}, 0")
        self.a("s_memrealtime s[64:65]"); self.a("s_memtime s[66:67]"); self.a("s_waitcnt lgkmcnt(0)"); self.n = 2
    def mark(self, name):
        if not PROF: return
        assert self.n < 15
        self.a(f"s_memtime s[{64+2*self.n}:{65+2*self.n}]"); self.a("s_waitcnt lgkmcnt(0)")
        self.n += 1; self.names.append(name)
    def end(self):
        if not PROF: return
        a = self.a
        a("s_waitcnt vmcnt(0)")
        self.mark("final-drain")
        a("s_memrealtime s[94:95]"); a("s_waitcnt lgkmcnt(0)")
        a("s_mov_b64 exec, 1")
        a(f"s_lshl_b32 s98, s2, 3")
        a(f"s_add_u32 s98, s98, s{sW}")
        a(f"s_lshl_b32 s98, s98, 6")
        a(f"s_add_u32 s98, s98, {WS_DBG}")
        a(f"s_add_u32 s96, s{S_WS}, s98")
        a(f"s_addc_u32 s97, s{S_WS+1}, 0")
        a(f"v_mov_b32 v0, 0")
        for i in list(range(14)) + [15]:
            a(f"v_mov_b32 v1, s{64+2*i}")
            a(f"global_store_dword v0, v1, s[96:97] offset:{4*i}")
        a(f"v_mov_b32 v1, {self.n}")
        a(f"global_store_dword v0, v1, s[96:97] offset:56")
        a("s_waitcnt vmcnt(0)")
        STAMP_NAMES[self.role] = self.names
STAMP_NAMES = {}

def bf16_round(a, dst, src):
    a(f"v_cvt_pk_bf16_f32 v{dst}, v{src}, v{src}")
    a(f"v_lshlrev_b32 v{dst}, 16, v{dst}")

def decode_rb_cg(a, j):
    a(f"s_lshr_b32 s{sCG}, s{j}, 6")
    a(f"s_and_b32 s{sRB}, s{j}, 7")
    a(f"s_lshl_b32 s{sRB}, s{sRB}, 3")
    a(f"s_bfe_u32 s{sT}, s{j}, 0x30003")
    a(f"s_add_u32 s{sRB}, s{sRB}, s{sT}")

def get_tag(a, vt, lab):
    L = f"{lab}_tag"
    a(f"s_mov_b32 s{sT3}, {SPIN_MAX}")
    a(f"v_mov_b32 v{vt}, 0")
    a.label(L)
    a(f"global_load_dword v{vt+1}, v{vt}, s[{S_DBG}:{S_DBG+1}] sc1")
    a("s_waitcnt vmcnt(0)")
    a(f"v_readfirstlane_b32 s{sTag}, v{vt+1}")
    a(f"s_sub_u32 s{sT3}, s{sT3}, 1")
    a(f"s_cmp_eq_u32 s{sT3}, 0")
    a(f"s_cbranch_scc1 {L}_done")
    a(f"s_cmp_eq_u32 s{sTag}, 0")
    a(f"s_cbranch_scc0 {L}_done")
    a("s_sleep 1")
    a(f"s_branch {L}")
    a.label(f"{L}_done")

def poll_flags(a, vt, lab, s_idx, nflags, region, tries=None, sleep=None):
    if nflags == 128:
        poll_flags(a, vt, lab + "a", None, 64, region, tries, sleep)
        poll_flags(a, vt, lab + "b", None, 64, region + 64, tries, sleep)
        return
    L = f"{lab}_poll"
    a(f"v_lshlrev_b32 v{vt}, 7, v{vLane}")
    if s_idx is None:
        a(f"s_mov_b32 s63, {region*128}")
    else:
        a(f"s_lshl_b32 s63, s{s_idx}, 7")
        if region: a(f"s_add_u32 s63, s63, {region*128}")
    a(f"s_mov_b32 s{sT3}, {tries or SPIN_MAX}")
    a("s_mov_b64 s[100:101], exec")
    if nflags < 64:
        a(f"s_mov_b32 exec_lo, {(1 << min(nflags, 32)) - 1 if nflags < 32 else -1}")
        a(f"s_mov_b32 exec_hi, {((1 << (nflags - 32)) - 1) if nflags > 32 else 0}")
    a.label(L)
    a(f"buffer_load_dword v{vt+1}, v{vt}, s[{R_FL}:{R_FL+3}], s63 offen sc1")
    a("s_waitcnt vmcnt(0)")
    a(f"v_cmp_ne_u32 vcc, s{sTag}, v{vt+1}")
    a("s_nop 1")
    a(f"s_and_b64 exec, exec, vcc")
    a(f"s_cbranch_execz {L}_done")
    a(f"s_sub_u32 s{sT3}, s{sT3}, 1")
    a(f"s_cmp_eq_u32 s{sT3}, 0")
    a(f"s_cbranch_scc1 {L}_done")
    a(f"s_sleep {sleep if sleep is not None else OPT.get('sleep', 6)}")
    a(f"s_branch {L}")
    a.label(f"{L}_done")
    a("s_mov_b64 exec, s[100:101]")

def set_flag(a, vt, s_idx, region):
    a(f"v_mov_b32 v{vt}, s{sTag}")
    a(f"v_mov_b32 v{vt+1}, 0")
    a(f"s_lshl_b32 s63, s{s_idx}, 7")
    if region: a(f"s_add_u32 s63, s63, {region*128}")
    a("s_mov_b64 s[100:101], exec")
    a("s_mov_b64 exec, 1")
    a(f"buffer_store_dword v{vt}, v{vt+1}, s[{R_FL}:{R_FL+3}], s63 offen sc1")
    a("s_mov_b64 exec, s[100:101]")

def tr_addr(a, dst, dst2, pitch, hrows, second_rows, s_base, t):
    a(f"v_bfe_u32 v{t}, v{vLane}, 2, 2")
    a(f"v_mul_u32_u24 v{t+1}, {hrows}, v{vH}")
    a(f"v_add_u32 v{t}, v{t}, v{t+1}")
    a(f"v_bfe_u32 v{t+1}, v{vLane}, 4, 1")
    a(f"v_and_b32 v{t+2}, 3, v{vLane}")
    a(f"v_lshlrev_b32 v{t+2}, 3, v{t+2}")
    a(f"v_lshl_add_u32 v{t+1}, v{t+1}, 5, v{t+2}")
    a(f"v_mul_u32_u24 v{dst}, {pitch}, v{t}")
    a(f"v_add3_u32 v{dst}, v{dst}, v{t+1}, s{s_base}")
    if dst2 is not None:
        a(f"v_add_u32 v{dst2}, {second_rows*pitch}, v{dst}")

def role_A(a):
    OPT["nopre0"] = 1
    st = Stamps(a, "A")
    st.start()
    XB = 0; XP = 1056; XH = 528; RBUF = 42240
    RING = 42496; NSTG = 3; RW = NSTG*1024; DEPTH = 16
    KSTG = 57856
    KVX = 67072
    LFL = XB + 512
    LFL2 = XB + 1040
    T4F = 75264
    SB = [0, 16384, 32768, 49152]
    QBUF = 65536; QP = 328
    sStep, sSoff, sLds, sRho, sWrap, sIt = 57, 58, 59, 60, 61, 57
    sExp, sFD = 95, 94
    vT = 4
    vVo, vTr, vTr2, vX16 = 12, 13, 14, 15
    X = 16
    TMP = 36
    vSum, vSq, vM = 52, 53, 54
    vOne, vSelLo, vSelHi = 56, 57, 58
    vR, vXa, vWst, vTag = 9, 10, 11, 61
    ACC = 16; FB = 32; WS_ = 64
    a(f"s_mov_b32 s{sT2}, s2")
    decode_rb_cg(a, sT2)
    L_notag = "A_notag"
    a(f"s_cmp_lg_u32 s2, 0")
    a(f"s_cbranch_scc1 {L_notag}")
    a(f"s_cmp_lg_u32 s{sW}, 0")
    a(f"s_cbranch_scc1 {L_notag}")
    a(f"s_memrealtime s[62:63]")
    a("s_waitcnt lgkmcnt(0)")
    a(f"s_or_b32 s62, s62, 1")
    a(f"v_mov_b32 v{vT}, s62")
    a(f"v_mov_b32 v{vT+1}, 0")
    a("s_mov_b64 exec, 1")
    a(f"global_store_dword v{vT+1}, v{vT}, s[{S_DBG}:{S_DBG+1}] sc1")
    a("s_mov_b64 exec, -1")
    a.label(L_notag)
    srd(a, R_A, S_X, S_X+1, NX)
    a(f"s_lshl_b32 s{sT}, s{sRB}, 5")
    a(f"s_lshl_b32 s{sT2}, s{sW}, 2")
    a(f"s_add_u32 s{sT}, s{sT}, s{sT2}")
    a(f"v_lshrrev_b32 v{vT}, 4, v{vLane}")
    a(f"v_add_u32 v{vT}, s{sT}, v{vT}")
    a(f"v_mul_u32_u24 v{vT}, 1280, v{vT}")
    a(f"v_and_b32 v{vT+1}, 15, v{vLane}")
    a(f"v_lshl_add_u32 v{vT}, v{vT+1}, 4, v{vT}")
    for i in range(5):
        a(f"buffer_load_dwordx4 {vr(X+4*i,4)}, v{vT}, s[{R_A}:{R_A+3}], 0 offen offset:{256*i}")
    a(f"v_lshlrev_b32 v{vX16}, 4, v{vLane}")
    a(f"s_and_b32 s{sRho}, s{sRB}, 7")
    L_nowe = "A_nowe"
    a(f"s_cmp_lt_u32 s{sW}, 5")
    a(f"s_cbranch_scc1 {L_nowe}")
    a(f"s_cmp_ge_u32 s{sCG}, 2")
    a(f"s_cbranch_scc1 {L_nowe}")
    a(f"s_cmp_eq_u32 s{sCG}, 1")
    a(f"s_cselect_b32 s{R_B}, s{S_WV}, s{S_WK}")
    a(f"s_cselect_b32 s{R_B+1}, s{S_WV+1}, s{S_WK+1}")
    a(f"s_mov_b32 s{R_B+2}, {640*20*2}")
    a(f"s_mov_b32 s{R_B+3}, 0x00020000")
    a(f"s_sub_u32 s{sT}, s{sW}, 5")
    a(f"s_mul_i32 s{sStep}, s{sT}, 13")
    a(f"s_min_u32 s{sT}, s{sT}, 1")
    a(f"s_add_u32 s{sStep}, s{sStep}, s{sT}")
    a(f"s_mul_i32 s{sT}, s{sRho}, 5")
    a(f"s_add_u32 s{sT2}, s{sStep}, s{sT}")
    a(f"s_cmp_ge_u32 s{sT2}, 40")
    a(f"s_cselect_b32 s{sT}, 40, 0")
    a(f"s_sub_u32 s{sT2}, s{sT2}, s{sT}")
    a(f"s_mul_i32 s{sSoff}, s{sT2}, 640")
    for i in range(14):
        a(f"s_add_u32 s{sT}, s{sSoff}, 640")
        a(f"buffer_load_dwordx4 {vr(WS_+4*i,4)}, v{vX16}, s[{R_B}:{R_B+3}], s{sSoff} offen")
        a(f"s_cmp_eq_u32 s{sT}, 25600")
        a(f"s_cselect_b32 s{sSoff}, 0, s{sT}")
    a.label(L_nowe)
    a("s_barrier")
    L_nq = "A_nq"
    a(f"s_cmp_ge_u32 s{sW}, 5")
    a(f"s_cbranch_scc1 {L_nq}")
    srd(a, R_B, S_WQ, S_WQ+1, 640*640*2)
    a(f"v_lshrrev_b32 v{vT}, 2, v{vLane}")
    a(f"v_mul_u32_u24 v{vT}, 1280, v{vT}")
    a(f"v_and_b32 v{vT+1}, 3, v{vLane}")
    a(f"v_lshl_add_u32 v{vT}, v{vT+1}, 4, v{vT}")
    a(f"s_mul_i32 s{sT}, s{sCG}, 320")
    a(f"s_lshl_b32 s{sT2}, s{sW}, 6")
    a(f"s_add_u32 s{sT}, s{sT}, s{sT2}")
    a(f"v_add_u32 v{vVo}, s{sT}, v{vT}")
    a(f"s_mul_i32 s{sLds}, s{sW}, {RW}")
    a(f"s_add_u32 s{sLds}, s{sLds}, {RING}")
    a(f"s_mul_i32 s{sSoff}, s{sRho}, {5*20480}")
    def wload(k):
        d = WS_ + 4*(k % DEPTH)
        a(f"s_add_u32 s{sT}, s{sSoff}, 20480")
        a(f"buffer_load_dwordx4 {vr(d,4)}, v{vVo}, s[{R_B}:{R_B+3}], s{sSoff} offen")
        a(f"s_cmp_eq_u32 s{sT}, {40*20480}")
        a(f"s_cselect_b32 s{sSoff}, 0, s{sT}")
    NW0 = OPT.get("NW0", 8)
    for k in range(NW0): wload(k)
    tr_addr(a, vTr, vTr2, 64, 8, 4, sLds, vT)
    a(f"v_add_u32 v{vWst}, s{sLds}, v{vX16}")
    a(f"s_waitcnt vmcnt({NW0})")
    a(f"s_mov_b32 s{sTag}, 0")
    a(f"s_branch A_xok")
    a.label(L_nq)
    a(f"s_waitcnt vmcnt(14)")
    a(f"s_cmp_lt_u32 s{sCG}, 2")
    a(f"s_cbranch_scc1 A_xok2")
    a(f"s_waitcnt vmcnt(0)")
    a.label("A_xok2")
    a(f"v_mov_b32 v{vT}, 0")
    a(f"global_load_dword v{vTag}, v{vT}, s[{S_DBG}:{S_DBG+1}] sc1")
    a.label("A_xok")
    st.mark("xwait")
    a(f"v_mov_b32 v{vOne}, 0x3f803f80")
    a(f"v_mov_b32 v{vSelLo}, 0x00003f80")
    a(f"v_mov_b32 v{vSelHi}, 0x3f800000")
    for i in range(4): a(f"v_mov_b32 v{TMP+i}, 0")
    for i in range(20):
        a(f"v_dot2c_f32_bf16 v{TMP+(i%2)}, v{X+i}, v{vOne}")
        a(f"v_dot2c_f32_bf16 v{TMP+2+(i%2)}, v{X+i}, v{X+i}")
    a(f"v_lshrrev_b32 v{vT}, 4, v{vLane}")
    a(f"s_lshl_b32 s{sT}, s{sW}, 2")
    a(f"v_add_u32 v{vT}, s{sT}, v{vT}")
    a(f"v_and_b32 v{vT+1}, 1, v{vLane}")
    a(f"v_mul_u32_u24 v{vT+1}, {XH}, v{vT+1}")
    a(f"v_lshl_add_u32 v{vT+1}, v{vT}, 4, v{vT+1}")
    a(f"v_add_f32 v{vSum}, v{TMP}, v{TMP+1}")
    a(f"v_add_f32 v{vSq}, v{TMP+2}, v{TMP+3}")
    a(f"v_bfe_u32 v{vT+2}, v{vLane}, 1, 3")
    a(f"s_mul_i32 s{sT}, s{sRho}, 5")
    a(f"s_sub_u32 s{sT}, 40, s{sT}")
    for ror in (8, 4, 2, 1):
        a(f"v_add_f32_dpp v{vSum}, v{vSum}, v{vSum} row_ror:{ror} row_mask:0xf bank_mask:0xf")
        a(f"v_add_f32_dpp v{vSq}, v{vSq}, v{vSq} row_ror:{ror} row_mask:0xf bank_mask:0xf")
        if ror != 1: a.nop(1)
    a(f"v_add_u32 v{vT+2}, s{sT}, v{vT+2}")
    inv = f32bits(1.0/640)
    a(f"v_mul_f32 v{vM}, {inv}, v{vSum}")
    a(f"v_mul_f32 v{TMP+1}, {inv}, v{vSq}")
    a(f"v_fma_f32 v{TMP+1}, -v{vM}, v{vM}, v{TMP+1}")
    a(f"v_max_f32 v{TMP+1}, 0, v{TMP+1}")
    bf16_round(a, TMP+1, TMP+1)
    bf16_round(a, vM, vM)
    a(f"v_add_f32 v{TMP+1}, {f32bits(1e-5)}, v{TMP+1}")
    a(f"v_sub_f32 v{vM}, 0, v{vM}")
    bf16_round(a, TMP+1, TMP+1)
    a(f"v_sqrt_f32 v{vSum}, v{TMP+1}")
    for base in range(0, 20, 8):
        g = min(8, 20-base)
        for i in range(g):
            a(f"v_dot2_f32_bf16 v{TMP+2*i}, v{X+base+i}, v{vSelLo}, v{vM}")
            a(f"v_dot2_f32_bf16 v{TMP+2*i+1}, v{X+base+i}, v{vSelHi}, v{vM}")
        if base == 0:
            bf16_round(a, vSum, vSum)
            a(f"v_rcp_f32 v{vR}, v{vSum}")
        else:
            a.nop(3)
        for i in range(g):
            a(f"v_cvt_pk_bf16_f32 v{X+base+i}, v{TMP+2*i}, v{TMP+2*i+1}")
    a(f"v_lshlrev_b32 v{vT+3}, 2, v{vT}")
    a(f"ds_write_b32 v{vT+3}, v{vR} offset:{RBUF}")
    for i in range(5):
        if i: a(f"v_add_u32 v{vT+2}, 8, v{vT+2}")
        a(f"v_subrev_u32 v{vT+3}, 40, v{vT+2}")
        a(f"v_min_u32 v{vT+3}, v{vT+3}, v{vT+2}")
        a(f"v_mul_u32_u24 v{vT+3}, {XP}, v{vT+3}")
        a(f"v_add_u32 v{vT+3}, v{vT+3}, v{vT+1}")
        a(f"ds_write_b128 v{vT+3}, {vr(X+4*i,4)} offset:{XB}")
    a(f"v_mul_u32_u24 v{vXa}, {XH}, v{vH}")
    a(f"v_lshl_add_u32 v{vXa}, v{vN}, 4, v{vXa}")
    a(f"s_cmp_ge_u32 s{sW}, 5")
    a(f"s_cbranch_scc1 A_ln5")
    for k in range(NW0, 10): wload(k)
    a(f"s_cmp_eq_u32 s{sW}, 4")
    a(f"s_cbranch_scc1 A_lnb")
    for k in range(10, DEPTH): wload(k)
    a(f"s_branch A_lnb")
    a.label("A_ln5")
    a(f"v_mov_b32 v{vT}, {LFL}")
    for i in range(4): a(f"v_mov_b32 v{TMP+i}, 0")
    a(f"ds_write_b128 v{vT}, v[{TMP}:{TMP+3}]")
    a(f"ds_write_b128 v{vT}, v[{TMP}:{TMP+3}] offset:{LFL2-LFL}")
    a("s_waitcnt vmcnt(0)")
    a(f"v_readfirstlane_b32 s{sTag}, v{vTag}")
    a.label("A_lnb")
    a("s_waitcnt lgkmcnt(0)")
    a("s_barrier")
    a(f"v_lshlrev_b32 v{vT}, 2, v{vN}")
    a(f"ds_read_b32 v{vR}, v{vT} offset:{RBUF}")
    st.mark("LN")
    if OPT.get("diag"):
        a(f"s_cmp_lg_u32 s{sW}, 0"); Ld = a.newlabel("dg"); a(f"s_cbranch_scc1 {Ld}"); diag(a, 4, va=62); diag(a, 5, neg=True, va=62); a.label(Ld)
    def ensure_tag(lab):
        a(f"s_cmp_lg_u32 s{sTag}, 0")
        a(f"s_cbranch_scc1 {lab}_have")
        get_tag(a, vT, lab)
        a.label(f"{lab}_have")
    L_kvp, L_exp, L_bar1 = "A_kvp", "A_exp", "A_bar1"
    a(f"s_cmp_ge_u32 s{sW}, 5")
    a(f"s_cbranch_scc1 {L_kvp}")
    a(f"s_cmp_eq_u32 s{sW}, 4")
    a(f"s_cbranch_scc1 A_job4")
    if OPT.get("noq"): a(f"s_branch {L_bar1}")
    def pipe_gemm(nsteps, wr, rd, need_vm, refill, cin0):
        for k in range(5):
            if k < nsteps:
                need_vm(k, -5 + k)
                wr(k)
            if 0 <= k - 2 < nsteps: rd(k - 2)
        for s_ in range(nsteps):
            n_ops = 0
            if s_ + 5 < nsteps:
                need_vm(s_ + 5, s_)
                wr(s_ + 5)
            if s_ + 3 < nsteps: rd(s_ + 3)
            for t in range(s_ + 1, s_ + 4):
                if t + 2 < nsteps: n_ops += 1
                if t < nsteps: n_ops += 3
            a(f"s_waitcnt lgkmcnt({n_ops})")
            f = FB + 8*(s_ % 4)
            cin = cin0 if s_ == 0 else vr(ACC, 16)
            a(f"v_mfma_f32_32x32x16_bf16 {vr(ACC,16)}, {vr(f,4)}, {vr(f+4,4)}, {cin}")
            refill(s_)
    def q_wr(k): a(f"ds_write_b128 v{vWst}, {vr(WS_+4*(k % DEPTH),4)} offset:{(k % NSTG)*1024}")
    def q_rd(k):
        f = FB + 8*(k % 4)
        a(f"ds_read_b64_tr_b16 v[{f}:{f+1}], v{vTr} offset:{(k % NSTG)*1024}")
        a(f"ds_read_b64_tr_b16 v[{f+2}:{f+3}], v{vTr2} offset:{(k % NSTG)*1024}")
        a(f"ds_read_b128 {vr(f+4,4)}, v{vXa} offset:{XB + k*XP}")
    def q_vm(k, s_now):
        issued = DEPTH + max(0, min(s_now, 40 - DEPTH + QOFF) - QOFF) if s_now > 0 else DEPTH
        issued = min(issued, 40)
        a(f"s_waitcnt vmcnt({issued - 1 - k})")
    QOFF = 0
    def q_refill(s_):
        if s_ + DEPTH < 40: wload(s_ + DEPTH)
    pipe_gemm(40, q_wr, q_rd, q_vm, q_refill, "0")
    st.mark("gemm")
    a.nop(12)
    a(f"v_mul_f32 v{vT}, {f32bits(QSCALE)}, v{vR}")
    for j in range(16): a(f"v_mul_f32 v{ACC+j}, v{ACC+j}, v{vT}")
    for k in range(8): a(f"v_cvt_pk_bf16_f32 v{TMP+k}, v{ACC+2*k}, v{ACC+2*k+1}")
    a(f"s_branch {L_bar1}")

    JW = WS_ + 20
    def job_loads():
        srd(a, R_B, S_WQ, S_WQ+1, 640*640*2)
        a(f"v_lshrrev_b32 v{vT}, 2, v{vLane}")
        a(f"v_mul_u32_u24 v{vT}, 1280, v{vT}")
        a(f"v_and_b32 v{vT+1}, 3, v{vLane}")
        a(f"v_lshl_add_u32 v{vT}, v{vT+1}, 4, v{vT}")
        a(f"s_mul_i32 s{sT}, s{sCG}, 320")
        a(f"s_add_u32 s{sT}, s{sT}, 256")
        a(f"v_add_u32 v{vT}, s{sT}, v{vT}")
        a(f"s_sub_u32 s{sT}, s{sW}, 4")
        a(f"s_mul_i32 s{sT}, s{sT}, 10")
        a(f"s_mul_i32 s{sT2}, s{sRho}, 5")
        a(f"s_add_u32 s{sT}, s{sT}, s{sT2}")
        a(f"s_cmp_ge_u32 s{sT}, 40")
        a(f"s_cselect_b32 s{sT2}, 40, 0")
        a(f"s_sub_u32 s{sT}, s{sT}, s{sT2}")
        a(f"s_mul_i32 s{sSoff}, s{sT}, 20480")
        for k in range(10):
            a(f"s_add_u32 s{sT}, s{sSoff}, 20480")
            a(f"buffer_load_dwordx4 {vr(JW+4*k,4)}, v{vT}, s[{R_B}:{R_B+3}], s{sSoff} offen")
            a(f"s_cmp_eq_u32 s{sT}, {40*20480}")
            a(f"s_cselect_b32 s{sSoff}, 0, s{sT}")
    def job_run(raw, vm_after):
        tr_addr(a, vTr, vTr2, 64, 8, 4, sLds, vT)
        a(f"v_add_u32 v{vWst}, s{sLds}, v{vX16}")
        a(f"s_sub_u32 s{sT}, s{sW}, 4")
        a(f"s_mul_i32 s{sT}, s{sT}, {10*XP}")
        a(f"v_add_u32 v{vVo}, s{sT}, v{vXa}")
        def j_wr(k): a(f"ds_write_b128 v{vWst}, {vr(raw+4*k,4)} offset:{(k % NSTG)*1024}")
        def j_rd(k):
            f = FB + 8*(k % 4)
            a(f"ds_read_b64_tr_b16 v[{f}:{f+1}], v{vTr} offset:{(k % NSTG)*1024}")
            a(f"ds_read_b64_tr_b16 v[{f+2}:{f+3}], v{vTr2} offset:{(k % NSTG)*1024}")
            a(f"ds_read_b128 {vr(f+4,4)}, v{vVo} offset:{k*XP}")
        def j_vm(k, s_): a(f"s_waitcnt vmcnt({9 - k + vm_after})")
        pipe_gemm(10, j_wr, j_rd, j_vm, lambda s_: None, "0")
        a("s_waitcnt lgkmcnt(0)")
        a.nop(12)
    def job_publish():
        Lp5, Lpd = a.newlabel("A_jp5"), a.newlabel("A_jpd")
        a(f"s_cmp_eq_u32 s{sW}, 5")
        a(f"s_cbranch_scc1 {Lp5}")
        for q in range(3): a(f"ds_write_b128 v{vWst}, {vr(ACC+4*q,4)} offset:{q*1024}")
        a(f"s_sub_u32 s{sT}, s{sW}, 6")
        a(f"s_lshl_b32 s{sT}, s{sT}, 10")
        a(f"s_add_u32 s{sT}, s{sT}, {T4F}")
        a(f"v_add_u32 v{vT}, s{sT}, v{vX16}")
        a(f"ds_write_b128 v{vT}, {vr(ACC+12,4)}")
        a(f"s_branch {Lpd}")
        a.label(Lp5)
        a(f"v_add_u32 v{vT}, {KVX+4096}, v{vX16}")
        for q in range(4): a(f"ds_write_b128 v{vT}, {vr(ACC+4*q,4)} offset:{q*1024}")
        a.label(Lpd)
        a(f"s_sub_u32 s{sT}, s{sW}, 5")
        a(f"s_lshl_b32 s{sT}, s{sT}, 2")
        a(f"s_add_u32 s{sT}, s{sT}, {LFL2}")
        a(f"v_mov_b32 v{vT}, s{sT}")
        a(f"v_mov_b32 v{vT+1}, 1")
        a(f"ds_write_b32 v{vT}, v{vT+1}")
    a.label("A_job4")
    job_run(WS_, 0)
    a(f"v_mov_b32 v{vT}, {LFL2}")
    a(f"s_mov_b32 s{sT3}, {SPIN_MAX}")
    a.label("A_j4spin")
    a(f"ds_read_b96 v[{vT+2}:{vT+4}], v{vT}")
    a("s_waitcnt lgkmcnt(0)")
    a(f"v_and_b32 v{vT+2}, v{vT+2}, v{vT+3}")
    a(f"v_and_b32 v{vT+2}, v{vT+2}, v{vT+4}")
    a("s_nop 0")
    a(f"v_readfirstlane_b32 s{sT}, v{vT+2}")
    a(f"s_sub_u32 s{sT3}, s{sT3}, 1")
    a(f"s_cmp_eq_u32 s{sT3}, 0")
    a(f"s_cbranch_scc1 A_j4spin_done")
    a(f"s_cmp_eq_u32 s{sT}, 1")
    a(f"s_cbranch_scc0 A_j4spin")
    a.label("A_j4spin_done")
    a(f"v_add_u32 v{vT}, {KVX+4096}, v{vX16}")
    a(f"v_add_u32 v{vT+1}, {KSTG+3072}, v{vX16}")
    a(f"v_add_u32 v{vT+2}, {T4F}, v{vX16}")
    for q in range(4): a(f"ds_read_b128 {vr(64+4*q,4)}, v{vT} offset:{q*1024}")
    for p_ in range(2):
        for q in range(3): a(f"ds_read_b128 {vr(80+16*p_+4*q,4)}, v{vT+1} offset:{p_*3072 + q*1024}")
        a(f"ds_read_b128 {vr(80+16*p_+12,4)}, v{vT+2} offset:{p_*1024}")
    a("s_waitcnt lgkmcnt(0)")
    for j in range(16): a(f"v_add_f32 v{64+j}, v{64+j}, v{80+j}")
    for j in range(16): a(f"v_add_f32 v{ACC+j}, v{ACC+j}, v{96+j}")
    for j in range(16): a(f"v_add_f32 v{ACC+j}, v{ACC+j}, v{64+j}")
    st.mark("job4")
    a(f"v_mul_f32 v{vT}, {f32bits(QSCALE)}, v{vR}")
    for j in range(16): a(f"v_mul_f32 v{ACC+j}, v{ACC+j}, v{vT}")
    for k in range(8): a(f"v_cvt_pk_bf16_f32 v{TMP+k}, v{ACC+2*k}, v{ACC+2*k+1}")
    a(f"s_branch {L_bar1}")
    def export_d():
        a(f"s_mul_i32 s{sT}, s{sCG}, 2")
        a(f"s_add_u32 s{sT}, s{sT}, s{sW}")
        a(f"s_sub_u32 s{sT}, s{sT}, 6")
        a(f"s_sub_u32 s{sT2}, s{sT}, s{sRho}")
        a(f"s_and_b32 s{sT2}, s{sT2}, 7")
        a(f"s_mul_i32 s{sT2}, s{sT2}, {5*XP}")
        a(f"v_add_u32 v{vT}, s{sT2}, v{vXa}")
        for i in range(5):
            a(f"ds_read_b128 {vr(X+4*i,4)}, v{vT} offset:{XB + XP*i}")
        a(f"s_mul_i32 s{sT2}, s{sRB}, 40")
        a(f"s_mul_i32 s{sExp}, s{sT}, 5")
        a(f"s_add_u32 s{sT2}, s{sT2}, s{sExp}")
        a(f"s_lshl_b32 s{sT2}, s{sT2}, 10")
        if WS_XF: a(f"s_add_u32 s{sT2}, s{sT2}, {WS_XF}")
        a(f"s_lshl_b32 s{sFD}, s{sRB}, 3")
        a(f"s_add_u32 s{sFD}, s{sFD}, s{sT}")
        a(f"v_add_u32 v{vT+1}, 4096, v{vX16}")
        a("s_waitcnt lgkmcnt(0)")
        for i in range(4):
            a(f"buffer_store_dwordx4 {vr(X+4*i,4)}, v{vX16}, s[{R_WS}:{R_WS+3}], s{sT2} offen offset:{1024*i} sc1")
        a(f"buffer_store_dwordx4 {vr(X+16,4)}, v{vT+1}, s[{R_WS}:{R_WS+3}], s{sT2} offen sc1")
        L_nor = "A_nor"
        a(f"s_cmp_lg_u32 s{sT}, 0")
        a(f"s_cbranch_scc1 {L_nor}")
        a(f"s_lshl_b32 s{sT2}, s{sRB}, 7")
        a(f"s_add_u32 s{sT2}, s{sT2}, {WS_R}")
        a(f"v_lshlrev_b32 v{vT}, 2, v{vN}")
        a(f"buffer_store_dword v{vR}, v{vT}, s[{R_WS}:{R_WS+3}], s{sT2} offen sc1")
        a.label(L_nor)
    a.label(L_kvp)
    a("s_setprio 3")
    if OPT.get("expfirst", 0):
        a(f"s_cmp_lt_u32 s{sW}, 6")
        a(f"s_cbranch_scc1 A_noexp")
        export_d()
        a.label("A_noexp")
    a(f"s_cmp_ge_u32 s{sCG}, 2")
    a(f"s_cbranch_scc1 A_kvp_skip")
    a(f"s_sub_u32 s{sT}, s{sW}, 5")
    a(f"s_mul_i32 s{sLds}, s{sT}, 3072")
    a(f"s_add_u32 s{sLds}, s{sLds}, {KSTG}")
    tr_addr(a, vTr, vTr2, 40, 8, 4, sLds, vT)
    a(f"v_add_u32 v{vWst}, s{sLds}, v{vX16}")
    a(f"s_mul_i32 s{sT}, s{sStep}, {XP}")
    a(f"v_add_u32 v{vVo}, s{sT}, v{vXa}")
    a(f"v_add_u32 v{vT+4}, {13*XP}, v{vVo}")
    a(f"s_cmp_eq_u32 s{sW}, 5")
    a(f"s_cbranch_scc1 A_kv13")
    for i in range(4): a(f"v_mov_b32 v{WS_+52+i}, 0")
    a(f"v_mov_b32 v{vT+4}, v{vXa}")
    a.label("A_kv13")
    def k_wr(k): a(f"ds_write_b128 v{vWst}, {vr(WS_+4*k,4)} offset:{(k % NSTG)*1024}")
    def k_rd(k):
        f = FB + 8*(k % 4)
        a(f"ds_read_b64_tr_b16 v[{f}:{f+1}], v{vTr} offset:{(k % NSTG)*1024}")
        a(f"ds_read_b64_tr_b16 v[{f+2}:{f+3}], v{vTr2} offset:{(k % NSTG)*1024}")
        if k == 13: a(f"ds_read_b128 {vr(f+4,4)}, v{vT+4}")
        else: a(f"ds_read_b128 {vr(f+4,4)}, v{vVo} offset:{k*XP}")
    pipe_gemm(14, k_wr, k_rd, lambda k, s_: None, lambda s_: None, "0")
    a("s_waitcnt lgkmcnt(0)")
    job_loads()
    a(f"s_cmp_eq_u32 s{sW}, 5")
    a(f"s_cbranch_scc1 A_kv5")
    a(f"s_sub_u32 s{sT}, s{sW}, 6")
    a(f"s_lshl_b32 s{sT}, s{sT}, 12")
    a(f"s_add_u32 s{sT}, s{sT}, {KVX}")
    a(f"v_add_u32 v{vT}, s{sT}, v{vX16}")
    for q in range(4):
        a(f"ds_write_b128 v{vT}, {vr(ACC+4*q,4)} offset:{q*1024}")
    a(f"s_sub_u32 s{sT}, s{sW}, 6")
    a(f"s_lshl_b32 s{sT}, s{sT}, 2")
    a(f"s_add_u32 s{sT}, s{sT}, {LFL}")
    a(f"v_mov_b32 v{vT}, s{sT}")
    a(f"v_mov_b32 v{vT+1}, 1")
    a(f"ds_write_b32 v{vT}, v{vT+1}")
    a(f"s_branch A_kvp_done")
    a.label("A_kv5")
    a(f"v_mov_b32 v{vT}, {LFL}")
    a(f"s_mov_b32 s{sT3}, {SPIN_MAX}")
    a.label("A_kvspin")
    a(f"ds_read_b64 v[{vT+2}:{vT+3}], v{vT}")
    a("s_waitcnt lgkmcnt(0)")
    a(f"v_and_b32 v{vT+2}, v{vT+2}, v{vT+3}")
    a("s_nop 0")
    a(f"v_readfirstlane_b32 s{sT}, v{vT+2}")
    a(f"s_sub_u32 s{sT3}, s{sT3}, 1")
    a(f"s_cmp_eq_u32 s{sT3}, 0")
    a(f"s_cbranch_scc1 A_kvspin_done")
    a(f"s_cmp_eq_u32 s{sT}, 1")
    a(f"s_cbranch_scc0 A_kvspin")
    a.label("A_kvspin_done")
    a(f"v_add_u32 v{vT}, {KVX}, v{vX16}")
    for p_ in range(2):
        for q in range(4):
            a(f"ds_read_b128 {vr(FB+16*p_+4*q,4)}, v{vT} offset:{p_*4096 + q*1024}")
    a("s_waitcnt lgkmcnt(0)")
    for j in range(16):
        a(f"v_add_f32 v{FB+j}, v{FB+j}, v{FB+16+j}")
    for j in range(16):
        a(f"v_add_f32 v{ACC+j}, v{ACC+j}, v{FB+j}")
    for j in range(16): a(f"v_mul_f32 v{ACC+j}, v{ACC+j}, v{vR}")
    a(f"v_cmp_eq_u32 vcc, 1, v{vH}")
    a(f"v_mov_b32 v{vT}, 1.0")
    a(f"v_mov_b32 v{vT+1}, 0")
    a(f"v_cndmask_b32 v{ACC+8}, v{ACC+8}, v{vT}, vcc")
    for j in range(9, 12): a(f"v_cndmask_b32 v{ACC+j}, v{ACC+j}, v{vT+1}, vcc")
    for j in range(12, 16): a(f"v_mov_b32 v{ACC+j}, 0")
    for k in range(8): a(f"v_cvt_pk_bf16_f32 v{TMP+k}, v{ACC+2*k}, v{ACC+2*k+1}")
    a(f"s_mul_i32 s{sT}, s{sRB}, {TS}")
    a(f"s_add_u32 s{sT}, s{sT}, {WS_KV}")
    L_v = "A_v"; L_kvdone = "A_kvdone"
    a(f"s_cmp_eq_u32 s{sCG}, 1")
    a(f"s_cbranch_scc1 {L_v}")
    a(f"buffer_store_dwordx4 {vr(TMP,4)}, v{vX16}, s[{R_WS}:{R_WS+3}], s{sT} offen sc1")
    a(f"v_lshlrev_b32 v{vT}, 3, v{vLane}")
    a(f"s_mov_b32 exec_hi, 0")
    a(f"buffer_store_dwordx2 v[{TMP+4}:{TMP+5}], v{vT}, s[{R_WS}:{R_WS+3}], s{sT} offen offset:1024 sc1")
    a(f"s_mov_b32 exec_hi, -1")
    a(f"s_branch {L_kvdone}")
    a.label(L_v)
    a(f"s_mov_b32 s{sLds}, {KVX}")
    a(f"v_lshlrev_b32 v{vT}, 6, v{vN}")
    a(f"v_lshl_add_u32 v{vT}, v{vH}, 3, v{vT}")
    a(f"v_add_u32 v{vT}, s{sLds}, v{vT}")
    for q in range(4):
        a(f"ds_write_b64 v{vT}, v[{TMP+2*q}:{TMP+2*q+1}] offset:{16*q}")
    tr_addr(a, vTr, None, 64, 4, 8, sLds, vT+1)
    for u in range(2):
        a(f"ds_read_b64_tr_b16 v[{TMP+8+4*u}:{TMP+9+4*u}], v{vTr} offset:{u*1024}")
        a(f"ds_read_b64_tr_b16 v[{TMP+10+4*u}:{TMP+11+4*u}], v{vTr} offset:{u*1024 + 512}")
    a(f"v_mul_u32_u24 v{vT}, 336, v{vH}")
    a(f"v_lshl_add_u32 v{vT}, v{vN}, 4, v{vT}")
    a(f"s_mov_b32 exec_lo, 0x1fffff")
    a(f"s_mov_b32 exec_hi, 0x1fffff")
    a("s_waitcnt lgkmcnt(0)")
    a(f"buffer_store_dwordx4 {vr(TMP+8,4)}, v{vT}, s[{R_WS}:{R_WS+3}], s{sT} offen offset:1280 sc1")
    a(f"buffer_store_dwordx4 {vr(TMP+12,4)}, v{vT}, s[{R_WS}:{R_WS+3}], s{sT} offen offset:1952 sc1")
    a(f"s_mov_b64 exec, -1")
    a.label(L_kvdone)
    ensure_tag("A5")
    a("s_waitcnt vmcnt(0)")
    st.mark("k5:drain")
    a(f"s_lshl_b32 s{sT}, s{sRB}, 1")
    a(f"s_add_u32 s{sT}, s{sT}, s{sCG}")
    set_flag(a, vT, sT, FL_KV)
    a(f"s_mov_b32 s{sLds}, {KSTG}")
    job_run(JW, 1)
    job_publish()
    a(f"s_branch {L_bar1}")
    a.label("A_kvp_skip")
    job_loads()
    a(f"s_cmp_lg_u32 s{sW}, 5")
    a(f"s_cbranch_scc1 A_kvp_done")
    a(f"s_mov_b32 s{sLds}, {KSTG}")
    job_run(JW, 0)
    job_publish()
    a(f"s_branch {L_bar1}")
    a.label("A_kvp_done")
    if not OPT.get("expfirst", 0): export_d()
    ensure_tag("A6")
    a(f"s_waitcnt vmcnt({10 if OPT.get('expfirst', 0) else 0})")
    st.mark("x:drain")
    set_flag(a, vT, sFD, FL_D)
    a(f"s_sub_u32 s{sT}, s{sW}, 5")
    a(f"s_mul_i32 s{sLds}, s{sT}, 3072")
    a(f"s_add_u32 s{sLds}, s{sLds}, {KSTG}")
    job_run(JW, 1)
    job_publish()
    a.label(L_bar1)
    a("s_waitcnt vmcnt(0)")
    a.label("A_bar1_nowait")
    a("s_setprio 0")
    a("s_waitcnt lgkmcnt(0)")
    a("s_barrier")
    st.mark("bar0")
    vA16 = vX16
    aK1, aK2, aV, nK1, nK2, nV = 64, 65, 66, 67, 68, 69
    bK2, bV = 70, 71
    CN = 80
    S = [16, 32]
    O = 48
    P = 96
    Q1, Q2 = 104, 108
    K1, K2 = 112, 116
    V1, V2 = 120, 124
    vM2 = 110
    sSoffK, sLdsW, sSlot, sCk = 58, 59, 60, 61
    vFl, vFlo = 72, 73
    srd(a, R_A, S_WS, S_WS+1, KVB, WS_KV)
    a(f"s_lshl_b32 s{sLdsW}, s{sW}, 10")
    a(f"v_lshlrev_b32 v{bK2}, 3, v{vN}")
    a(f"v_add_u32 v{bK2}, 1024, v{bK2}")
    a(f"v_min_u32 v{bV}, 20, v{vN}")
    a(f"v_lshlrev_b32 v{bV}, 4, v{bV}")
    a(f"v_mul_u32_u24 v{vT}, 336, v{vH}")
    a(f"v_add3_u32 v{bV}, v{bV}, v{vT}, 0")
    a(f"v_add_u32 v{bV}, 1280, v{bV}")
    def dma_chunk(slot_s):
        a(f"s_add_u32 s{sT}, s{slot_s}, s{sLdsW}")
        a(f"s_add_u32 s{sT2}, s{sSoffK}, s{sLdsW}")
        a(f"s_mov_b32 m0, s{sT}")
        a(f"s_add_u32 s{sT}, s{sT}, 8192")
        a(f"buffer_load_dwordx4 v{vA16}, s[{R_A}:{R_A+3}], s{sT2} offen sc1 lds")
        a(f"s_mov_b32 m0, s{sT}")
        a(f"s_add_u32 s{sT2}, s{sT2}, 8192")
        a(f"buffer_load_dwordx4 v{vA16}, s[{R_A}:{R_A+3}], s{sT2} offen sc1 lds")
        Ls = a.newlabel("A_d3")
        a(f"s_cmp_ge_u32 s{sW}, 5")
        a(f"s_cbranch_scc1 {Ls}")
        a(f"s_add_u32 m0, s{sT}, 8192")
        a(f"s_add_u32 s{sT2}, s{sT2}, 8192")
        a(f"buffer_load_dwordx4 v{vA16}, s[{R_A}:{R_A+3}], s{sT2} offen sc1 lds")
        a.label(Ls)
        a(f"s_add_u32 s{sSoffK}, s{sSoffK}, {CH}")
        a(f"s_cmp_eq_u32 s{sSoffK}, {8*CH}")
        a(f"s_cselect_b32 s{sSoffK}, 0, s{sSoffK}")
        a(f"s_add_u32 s{sCk}, s{sCk}, 1")
        a(f"s_and_b32 s{sCk}, s{sCk}, 7")
    L_noqw = "A_noqw"
    a(f"v_mul_u32_u24 v{vT}, {QP}, v{vN}")
    a(f"v_add_u32 v{vT}, {QBUF}, v{vT}")
    a(f"s_cmp_ge_u32 s{sW}, 5")
    a(f"s_cbranch_scc1 {L_noqw}")
    a(f"s_lshl_b32 s{sT}, s{sW}, 6")
    a(f"v_lshl_add_u32 v{vT+1}, v{vH}, 3, v{vT}")
    a(f"v_add_u32 v{vT+1}, s{sT}, v{vT+1}")
    for q in range(4):
        a(f"ds_write_b64 v{vT+1}, v[{TMP+2*q}:{TMP+2*q+1}] offset:{16*q}")
    a.label(L_noqw)
    a("s_waitcnt lgkmcnt(0)")
    a("s_barrier")
    a(f"s_mul_i32 s{sT}, s{sW}, 40")
    a(f"v_add_u32 v{vT}, s{sT}, v{vT}")
    a(f"v_lshl_add_u32 v{vT+1}, v{vH}, 3, v{vT}")
    a(f"ds_read_b64 v[{Q1}:{Q1+1}], v{vT+1}")
    a(f"ds_read_b64 v[{Q1+2}:{Q1+3}], v{vT+1} offset:16")
    a(f"ds_read_b64 v[{Q2}:{Q2+1}], v{vT} offset:32")
    a(f"v_mov_b32 v{aK1}, v{vA16}")
    a(f"v_mov_b32 v{aK2}, v{bK2}")
    a(f"v_mov_b32 v{aV}, v{bV}")
    a(f"v_add_u32 v{nK1}, {CH}, v{vA16}")
    a(f"v_add_u32 v{nK2}, {CH}, v{bK2}")
    a(f"v_add_u32 v{nV}, {CH}, v{bV}")
    for i in range(16): a(f"v_mov_b32 v{O+i}, 0")
    a(f"v_cmp_eq_u32 vcc, 1, v{vH}")
    a(f"v_mov_b32 v{vT}, 0")
    a("s_waitcnt lgkmcnt(0)")
    a(f"v_cndmask_b32 v{Q2}, v{Q2}, v{vT}, vcc")
    a(f"v_cndmask_b32 v{Q2+1}, v{Q2+1}, v{vT}, vcc")
    a(f"s_lshr_b32 s{sCk}, s{sRB}, 3")
    a(f"s_mul_i32 s{sSoffK}, s{sCk}, {CH}")
    def check_chunk(lab):
        a(f"s_cmp_lg_u32 s{sW}, 7")
        a(f"s_cbranch_scc1 {lab}_skip")
        a(f"s_lshl_b32 s{sT}, s{sCk}, 4")
        poll_flags(a, vT+2, lab, sT, 16, FL_KV, sleep=OPT.get("kvsleep", 1))
        a.label(f"{lab}_skip")
    check_chunk("A7a")
    a("s_barrier")
    st.mark("bar1")
    if OPT.get("diag"):
        a(f"s_cmp_lg_u32 s{sW}, 0"); Ld = a.newlabel("dg"); a(f"s_cbranch_scc1 {Ld}"); diag(a, 6); diag(a, 7, neg=True); a.label(Ld)
    a(f"s_mov_b32 s{sSlot}, 0")
    dma_chunk(sSlot)
    a(f"v_min_u32 v{vFlo}, 15, v{vLane}")
    a(f"v_lshlrev_b32 v{vFlo}, 7, v{vFlo}")
    def rd(dst, n, t, off, cur, nxt, op):
        v_ = cur if t < 8 else nxt
        a(f"{op} {vr(dst,n)}, v{v_} offset:{(t % 8)*TS + off}")
    def rd_K1(t): rd(K1, 4, t, 0, aK1, nK1, "ds_read_b128")
    def rd_K2(t): rd(K2, 2, t, 0, aK2, nK2, "ds_read_b64")
    def rd_V1(t): rd(V1, 4, t, 0, aV, nV, "ds_read_b128")
    def rd_V2(t): rd(V2, 4, t, 672, aV, nV, "ds_read_b128")
    def qk1(dst, c="0"): a(f"v_mfma_f32_32x32x16_bf16 {vr(dst,16)}, {vr(K1,4)}, {vr(Q1,4)}, {c}")
    def qk2(dst): a(f"v_mfma_f32_32x32x8_bf16 {vr(dst,16)}, {vr(K2,2)}, {vr(Q2,2)}, {vr(dst,16)}")
    CNR = vr(CN, 16)
    a("s_waitcnt vmcnt(0)")
    a("s_barrier")
    rd_K1(0); rd_K2(0)
    def set_m(delta):
        a(f"v_mov_b32 v{vT}, v{vM2}")
        a.nop(2)
        a(f"v_permlane32_swap_b32 v{vM2}, v{vT}")
        a.nop(1)
        a(f"v_max_f32 v{vM2}, v{vM2}, v{vT}")
        if delta: a(f"v_add_f32 v{vM2}, {f32bits(delta)}, v{vM2}")
        for i in range(16): a(f"v_sub_f32 v{CN+i}, 0, v{vM2}")
    a(f"v_mov_b32 v{vM2}, 0xff800000")
    a("s_waitcnt lgkmcnt(0)")
    qk1(S[0]); qk2(S[0])
    rd_K1(1); rd_K2(1)
    a("s_waitcnt lgkmcnt(0)")
    qk1(S[1]); qk2(S[1])
    rd_K1(0); rd_K2(0)
    for i in range(4, 8): a(f"v_mov_b32 v{P+i}, 0")
    for i in range(4): a(f"v_mov_b32 v{V2+i}, 0")
    a.nop(4)
    for i in range(8):
        a(f"v_max3_f32 v{vM2}, v{S[0]+2*i}, v{S[0]+2*i+1}, v{vM2}")
    a.nop(4)
    for i in range(8):
        a(f"v_max3_f32 v{vM2}, v{S[1]+2*i}, v{S[1]+2*i+1}, v{vM2}")
    set_m(DELTA)
    a("s_waitcnt lgkmcnt(0)")
    a.nop(1)
    qk1(S[0], CNR); qk2(S[0])
    rd_K1(1); rd_K2(1); rd_V1(0)
    check_chunk("A7b")
    a("s_barrier")
    a(f"s_mov_b32 s{sSlot}, {CH}")
    dma_chunk(sSlot)
    a(f"s_mov_b32 s{sSlot}, {2*CH}")
    a.nop(8)
    st.mark("sample")
    a(f"s_setprio {OPT.get('aprio', 0)}")
    a(f"s_mov_b32 s{sIt}, 0")
    L_loop = "A_loop"
    a(".p2align 6")
    a.label(L_loop)
    def e(cur, i): a(f"v_exp_f32 v{cur+i}, v{cur+i}")
    def p(cur, k): a(f"v_cvt_pk_bf16_f32 v{P+k}, v{cur+2*k}, v{cur+2*k+1}")
    for t in range(8):
        cur, nxt = S[t % 2], S[(t+1) % 2]
        if t == 0:
            a(f"s_cmp_lg_u32 s{sW}, 7")
            a(f"s_cbranch_scc1 A_nf0")
            a(f"s_lshl_b32 s{sT}, s{sCk}, 11")
            a(f"s_add_u32 s{sT}, s{sT}, {FL_KV*128}")
            a(f"buffer_load_dword v{vFl}, v{vFlo}, s[{R_FL}:{R_FL+3}], s{sT} offen sc1")
            a.label("A_nf0")
        if t == 6:
            a("s_waitcnt vmcnt(0)")
            a(f"s_cmp_lg_u32 s{sW}, 7")
            a(f"s_cbranch_scc1 A_nf6")
            a(f"v_cmp_ne_u32 vcc, s{sTag}, v{vFl}")
            a("s_nop 1")
            a(f"s_cmp_eq_u64 vcc, 0")
            a(f"s_cbranch_scc1 A_nf6")
            a(f"s_lshl_b32 s{sT}, s{sCk}, 4")
            poll_flags(a, vT+2, "A7c", sT, 16, FL_KV, sleep=1)
            a.label("A_nf6")
            a("s_barrier")
            dma_chunk(sSlot)
            a(f"s_add_u32 s{sSlot}, s{sSlot}, {CH}")
            a(f"s_cmp_eq_u32 s{sSlot}, {3*CH}")
            a(f"s_cselect_b32 s{sSlot}, 0, s{sSlot}")
        e(cur, 0); e(cur, 1)
        a("s_waitcnt lgkmcnt(2)")
        a(f"v_mfma_f32_32x32x16_bf16 {vr(O,16)}, {vr(V2,4)}, {vr(P+4,4)}, {vr(O,16)}")
        rd_V2(t)
        e(cur, 2); e(cur, 3); p(cur, 0); p(cur, 1)
        qk1(nxt, CNR)
        rd_K1(t+2)
        e(cur, 4); e(cur, 5); e(cur, 6); e(cur, 7); p(cur, 2); p(cur, 3)
        a("s_waitcnt lgkmcnt(2)")
        qk2(nxt)
        rd_K2(t+2)
        e(cur, 8); e(cur, 9); e(cur, 10); e(cur, 11); p(cur, 4); p(cur, 5)
        a(f"v_mfma_f32_32x32x16_bf16 {vr(O,16)}, {vr(V1,4)}, {vr(P,4)}, {vr(O,16)}")
        rd_V1(t+1)
        e(cur, 12); e(cur, 13); e(cur, 14); e(cur, 15); p(cur, 6); p(cur, 7)
    a(f"v_mov_b32 v{aK1}, v{nK1}")
    a(f"v_mov_b32 v{aK2}, v{nK2}")
    a(f"v_mov_b32 v{aV}, v{nV}")
    a(f"s_add_u32 s{sT}, s{sSlot}, {2*CH}")
    a(f"s_cmp_ge_u32 s{sT}, {3*CH}")
    a(f"s_cselect_b32 s{sT2}, {3*CH}, 0")
    a(f"s_sub_u32 s{sT}, s{sT}, s{sT2}")
    a(f"v_add_u32 v{nK1}, s{sT}, v{vA16}")
    a(f"v_add_u32 v{nK2}, s{sT}, v{bK2}")
    a(f"v_add_u32 v{nV}, s{sT}, v{bV}")
    a(f"s_add_u32 s{sIt}, s{sIt}, 1")
    a(f"s_cmp_lt_u32 s{sIt}, 8")
    a(f"s_cbranch_scc1 {L_loop}")
    a("s_waitcnt lgkmcnt(0)")
    a(f"v_mfma_f32_32x32x16_bf16 {vr(O,16)}, {vr(V2,4)}, {vr(P+4,4)}, {vr(O,16)}")
    a("s_setprio 0")
    st.mark("loop")
    if OPT.get("diag"):
        a(f"s_cmp_lg_u32 s{sW}, 0"); Ld = a.newlabel("dg"); a(f"s_cbranch_scc1 {Ld}"); diag(a, 8); diag(a, 9, neg=True); a.label(Ld)
    a.nop(16)
    L_fin, L_slow = "A_fin", "A_slow"
    a(f"s_mov_b32 s{sIt}, 0")
    a.label(L_fin)
    a(f"v_mov_b32 v{vT}, v{O+8}")
    a(f"v_mov_b32 v{vT+1}, v{O+8}")
    a.nop(2)
    a(f"v_permlane32_swap_b32 v{vT}, v{vT+1}")
    a(f"v_max3_f32 v{vT+2}, |v{O}|, |v{O+1}|, |v{O+2}|")
    for j in range(3, 12, 2):
        j2 = min(j+1, 11)
        a(f"v_max3_f32 v{vT+2}, |v{O+j}|, |v{O+j2}|, v{vT+2}")
    a(f"v_mov_b32 v{vT+3}, {f32bits(2.0**120)}")
    a(f"v_cmp_nlt_f32 vcc, v{vT+2}, v{vT+3}")
    a(f"v_cmp_nlt_f32 s[62:63], 0, v{vT+1}")
    a.nop(1)
    a(f"s_or_b64 vcc, vcc, s[62:63]")
    a(f"s_cmp_eq_u64 vcc, 0")
    a(f"s_cbranch_scc1 A_store")
    a(f"s_cmp_lg_u32 s{sIt}, 0")
    a(f"s_cbranch_scc1 A_store")
    a(f"s_branch {L_slow}")
    a.label("A_store")
    a(f"v_rcp_f32 v{vT+2}, v{vT+1}")
    a.nop(1)
    for j in range(12): a(f"v_mul_f32 v{O+j}, v{O+j}, v{vT+2}")
    for k in range(6): a(f"v_cvt_pk_bf16_f32 v{P+k}, v{O+2*k}, v{O+2*k+1}")
    a(f"s_lshl_b32 s{sT}, s{sCG}, 3")
    a(f"s_add_u32 s{sT}, s{sT}, s{sW}")
    a(f"s_mul_i32 s{sT}, s{sT}, 20")
    a(f"s_mul_i32 s{sT2}, s{sRB}, {40*1024}")
    a(f"s_add_u32 s{sT2}, s{sT2}, {WS_OF}")
    def oaddr(dst, colv):
        a(f"v_lshrrev_b32 v{dst}, 4, v{colv}")
        a(f"v_lshlrev_b32 v{dst}, 10, v{dst}")
        a(f"v_bfe_u32 v{vT+7}, v{colv}, 3, 1")
        a(f"v_lshl_add_u32 v{dst}, v{vT+7}, 9, v{dst}")
        a(f"v_and_b32 v{vT+7}, 7, v{colv}")
        a(f"v_lshl_add_u32 v{dst}, v{vT+7}, 1, v{dst}")
        a(f"v_lshl_add_u32 v{dst}, v{vN}, 4, v{dst}")
    a(f"v_lshlrev_b32 v{vT+3}, 2, v{vH}")
    a(f"v_add_u32 v{vT+3}, s{sT}, v{vT+3}")
    oaddr(vT+4, vT+3)
    a(f"buffer_store_dwordx2 v[{P}:{P+1}], v{vT+4}, s[{R_WS}:{R_WS+3}], s{sT2} offen sc1")
    a(f"v_add_u32 v{vT+3}, 8, v{vT+3}")
    oaddr(vT+5, vT+3)
    a(f"buffer_store_dwordx2 v[{P+2}:{P+3}], v{vT+5}, s[{R_WS}:{R_WS+3}], s{sT2} offen sc1")
    a(f"s_add_u32 s{sT}, s{sT}, 16")
    a(f"v_mov_b32 v{vT+3}, s{sT}")
    oaddr(vT+6, vT+3)
    a(f"v_cmp_eq_u32 vcc, 0, v{vH}")
    a(f"s_and_saveexec_b64 s[62:63], vcc")
    a(f"buffer_store_dwordx2 v[{P+4}:{P+5}], v{vT+6}, s[{R_WS}:{R_WS+3}], s{sT2} offen sc1")
    a(f"s_mov_b64 exec, s[62:63]")
    a(f"s_cmp_lg_u32 s{sTag}, 0")
    a(f"s_cbranch_scc1 A_ohave")
    get_tag(a, vT, "A8")
    a.label("A_ohave")
    a("s_waitcnt vmcnt(0)")
    a(f"s_lshl_b32 s{sT}, s{sRB}, 2")
    a(f"s_add_u32 s{sT}, s{sT}, s{sCG}")
    a(f"s_lshl_b32 s{sT}, s{sT}, 3")
    a(f"s_add_u32 s{sT}, s{sT}, s{sW}")
    set_flag(a, vT, sT, FL_O)
    st.end()
    a("s_endpgm")
    a.label(L_slow)
    a(f"v_mov_b32 v{vM2}, 0xff800000")
    a(f"s_mov_b32 s{sSoffK}, 0")
    a.label("A_slow1")
    a(f"buffer_load_dwordx4 {vr(K1,4)}, v{vA16}, s[{R_A}:{R_A+3}], s{sSoffK} offen sc1")
    a(f"buffer_load_dwordx2 {vr(K2,2)}, v{bK2}, s[{R_A}:{R_A+3}], s{sSoffK} offen sc1")
    a("s_waitcnt vmcnt(0)")
    qk1(S[0]); qk2(S[0])
    a.nop(16)
    for i in range(8):
        a(f"v_max3_f32 v{vM2}, v{S[0]+2*i}, v{S[0]+2*i+1}, v{vM2}")
    a(f"s_add_u32 s{sSoffK}, s{sSoffK}, {TS}")
    a(f"s_cmp_lt_u32 s{sSoffK}, {KVB}")
    a(f"s_cbranch_scc1 A_slow1")
    set_m(0.0)
    for i in range(16): a(f"v_mov_b32 v{O+i}, 0")
    a(f"s_mov_b32 s{sSoffK}, 0")
    a.label("A_slow2")
    a(f"buffer_load_dwordx4 {vr(K1,4)}, v{vA16}, s[{R_A}:{R_A+3}], s{sSoffK} offen sc1")
    a(f"buffer_load_dwordx2 {vr(K2,2)}, v{bK2}, s[{R_A}:{R_A+3}], s{sSoffK} offen sc1")
    a(f"buffer_load_dwordx4 {vr(V1,4)}, v{bV}, s[{R_A}:{R_A+3}], s{sSoffK} offen sc1")
    a(f"buffer_load_dwordx4 {vr(V2,4)}, v{bV}, s[{R_A}:{R_A+3}], s{sSoffK} offen offset:672 sc1")
    a("s_waitcnt vmcnt(0)")
    qk1(S[0], CNR); qk2(S[0])
    a.nop(16)
    for i in range(16): e(S[0], i)
    a.nop(1)
    for k in range(8): p(S[0], k)
    a.nop(2)
    a(f"v_mfma_f32_32x32x16_bf16 {vr(O,16)}, {vr(V1,4)}, {vr(P,4)}, {vr(O,16)}")
    a(f"v_mfma_f32_32x32x16_bf16 {vr(O,16)}, {vr(V2,4)}, {vr(P+4,4)}, {vr(O,16)}")
    a(f"s_add_u32 s{sSoffK}, s{sSoffK}, {TS}")
    a(f"s_cmp_lt_u32 s{sSoffK}, {KVB}")
    a(f"s_cbranch_scc1 A_slow2")
    a.nop(16)
    a(f"s_mov_b32 s{sIt}, 1")
    a(f"s_branch {L_fin}")

def role_B1(a):
    st = Stamps(a, "B1")
    st.start()
    if OPT.get("bprio"): a(f"s_setprio {OPT['bprio']}")
    sG, sC = sRB, sCG
    sSoffW, sSoffX, sLdsW, sKH, sXb = 57, 58, 59, 60, 99
    vT = 4; vW = 10; vTr, vX16, vR = 13, 14, 15
    XS = 16; WF = 48; ACC = 76
    SLOT = 24576
    a(f"s_sub_u32 s{sT2}, s2, 256")
    a(f"s_bfe_u32 s{sG}, s{sT2}, 0x20001")
    a(f"s_lshl_b32 s{sG}, s{sG}, 2")
    a(f"s_bfe_u32 s{sT}, s{sT2}, 0x20003")
    a(f"s_add_u32 s{sG}, s{sG}, s{sT}")
    a(f"s_and_b32 s{sC}, s{sT2}, 1")
    a(f"s_lshl_b32 s{sC}, s{sC}, 3")
    a(f"s_lshr_b32 s{sT}, s{sT2}, 5")
    a(f"s_add_u32 s{sC}, s{sC}, s{sT}")
    a(f"s_lshr_b32 s{sKH}, s{sW}, 2")
    a(f"v_lshlrev_b32 v{vX16}, 4, v{vLane}")
    a(f"s_and_b32 s{sT}, s{sW}, 3")
    a(f"s_mul_i32 s{sT}, s{sT}, 192")
    a(f"s_mul_i32 s{sT2}, s{sC}, 192")
    a(f"s_mul_i32 s{sT3}, s{sKH}, {320*3072}")
    a(f"s_add_u32 s{sT2}, s{sT2}, s{sT3}")
    for i in range(3):
        a(f"v_add_u32 v{vT}, s{sT}, v{vLane}")
        if i: a(f"v_add_u32 v{vT}, {64*i}, v{vT}")
        a(f"v_mul_u32_u24 v{vT+1}, 5462, v{vT}")
        a(f"v_lshrrev_b32 v{vT+1}, 16, v{vT+1}")
        a(f"v_mul_u32_u24 v{vT+2}, 12, v{vT+1}")
        a(f"v_sub_u32 v{vT}, v{vT}, v{vT+2}")
        a(f"v_lshlrev_b32 v{vT}, 4, v{vT}")
        a(f"v_mul_u32_u24 v{vT+1}, 3072, v{vT+1}")
        a(f"v_add3_u32 v{vW+i}, v{vT}, v{vT+1}, s{sT2}")
        if i: a(f"v_subrev_u32 v{vW+i}, {1024*i}, v{vW+i}")
    a(f"s_mul_i32 s{sT}, s{sKH}, 12288")
    tr_addr(a, vTr, None, 192, 8, 4, sT, vT)
    a(f"s_mul_i32 s{sLdsW}, s{sW}, 3072")
    srd(a, R_A, S_W1, S_W1+1, 640*1536*2)
    srd(a, R_B, S_B1, S_B1+1, 1536*2)
    a(f"s_mul_hi_u32 s{sT}, s{sC}, {(1<<32)//5 + 1}")
    a(f"s_mul_i32 s{sT}, s{sT}, 5")
    a(f"s_sub_u32 s{sT}, s{sC}, s{sT}")
    a(f"s_mul_i32 s{sSoffW}, s{sT}, {64*3072}")
    a(f"s_lshl_b32 s{sSoffX}, s{sT}, 12")
    a(f"s_and_b32 s{sT}, s{sW}, 3")
    a(f"s_lshl_b32 s{sT2}, s{sG}, 2")
    a(f"s_add_u32 s{sT}, s{sT}, s{sT2}")
    a(f"s_mul_i32 s{sXb}, s{sT}, {40*1024}")
    a(f"s_mul_i32 s{sT2}, s{sKH}, {20*1024}")
    a(f"s_add_u32 s{sXb}, s{sXb}, s{sT2}")
    if WS_XF: a(f"s_add_u32 s{sXb}, s{sXb}, {WS_XF}")
    def issueW(c):
        a(f"s_add_u32 m0, s{sLdsW}, {(c%3)*SLOT}")
        a(f"s_add_u32 s{sT}, s{sSoffW}, {64*3072}")
        for i in range(3):
            a(f"buffer_load_dwordx4 v{vW+i}, s[{R_A}:{R_A+3}], s{sSoffW} offen offset:{1024*i} lds")
        a(f"s_cmp_eq_u32 s{sT}, {320*3072}")
        a(f"s_cselect_b32 s{sSoffW}, 0, s{sT}")
    def issueX(c):
        xs = XS + 16*(c % 2)
        a(f"s_add_u32 s{sT2}, s{sXb}, s{sSoffX}")
        a(f"s_add_u32 s{sT}, s{sSoffX}, 4096")
        for i in range(4):
            a(f"buffer_load_dwordx4 {vr(xs+4*i,4)}, v{vX16}, s[{R_WS}:{R_WS+3}], s{sT2} offen offset:{1024*i} sc1")
        a(f"s_cmp_eq_u32 s{sT}, 20480")
        a(f"s_cselect_b32 s{sSoffX}, 0, s{sT}")
    a(f"s_cmp_lg_u32 s{sW}, 0")
    a(f"s_cbranch_scc1 B1_pre")
    get_tag(a, vT, "B1")
    a(f"s_lshl_b32 s{sT}, s{sG}, 5")
    if OPT.get("wftries", 1): poll_flags(a, vT, "B1p", sT, 32, FL_D, tries=OPT.get("wftries", 1))
    a.label("B1_pre")
    a("s_barrier")
    st.mark("prepoll")
    sJ = 96
    a(f"s_sub_u32 s{sJ}, s2, 256")
    srd(a, R_C, S_W2, S_W2+1, 1536*640*2)
    vF = 16
    a(f"v_lshrrev_b32 v32, 2, v{vLane}")
    a(f"v_mul_u32_u24 v32, 1280, v32")
    a(f"v_and_b32 v33, 3, v{vLane}")
    a(f"v_lshl_add_u32 v32, v33, 4, v32")
    a(f"s_lshl_b32 s{sT}, s{sW}, 11")
    a(f"v_add_u32 v33, s{sT}, v{vX16}")
    tr_addr(a, 34, None, 64, 4, 8, sT, vT)
    tr_addr(a, 35, None, 64, 8, 4, sT, vT)
    sDst = [92, 93]; sStp = [94, 95]
    for rnd in range(2):
        Lskip = f"B1_wf{rnd}_skip"
        a(f"s_mov_b32 s{sStp[rnd]}, -1")
        if rnd == 1:
            a(f"s_cmp_ge_u32 s{sW}, 3")
            a(f"s_cbranch_scc1 {Lskip}")
        a(f"s_and_b32 s{sT}, s{sJ}, 63")
        a(f"s_mul_i32 s{sT}, s{sT}, 11")
        a(f"s_add_u32 s{sT}, s{sT}, s{sW}")
        if rnd: a(f"s_add_u32 s{sT}, s{sT}, 8")
        a(f"s_cmp_ge_u32 s{sT}, 680")
        a(f"s_cbranch_scc1 {Lskip}")
        a(f"s_mul_hi_u32 s{sT2}, s{sT}, {(1<<32)//136 + 1}")
        a(f"s_mul_i32 s{sT3}, s{sT2}, 136")
        a(f"s_sub_u32 s{sT}, s{sT}, s{sT3}")
        a(f"s_mov_b32 s{sStp[rnd]}, s{sT}")
        a(f"s_lshr_b32 s{sT3}, s{sJ}, 6")
        a(f"s_mul_i32 s{sT3}, s{sT3}, 5")
        a(f"s_add_u32 s{sT2}, s{sT2}, s{sT3}")
        a(f"s_mul_i32 s62, s{sT2}, 136")
        a(f"s_add_u32 s62, s62, s{sT}")
        a(f"s_lshl_b32 s62, s62, 10")
        a(f"s_add_u32 s{sDst[rnd]}, s62, {WS_WF}")
        a(f"s_lshl_b32 s{sT2}, s{sT2}, 6")
        a(f"s_cmp_lt_u32 s{sT}, 96")
        a(f"s_cselect_b32 s{R_C}, s{S_W2}, s{S_WO}")
        a(f"s_cselect_b32 s{R_C+1}, s{S_W2+1}, s{S_WO+1}")
        a(f"s_cselect_b32 s63, 0, 96")
        a(f"s_mov_b32 s{R_C+2}, {640*640*2}")
        a(f"s_cbranch_scc0 B1_wf{rnd}_a")
        a(f"s_mov_b32 s{R_C+2}, {1536*640*2}")
        a.label(f"B1_wf{rnd}_a")
        a(f"s_sub_u32 s{sT3}, s{sT}, s63")
        a(f"s_mul_i32 s{sT3}, s{sT3}, {16*1280}")
        a(f"s_add_u32 s{sT3}, s{sT3}, s{sT2}")
        a(f"buffer_load_dwordx4 v[{16+4*rnd}:{19+4*rnd}], v32, s[{R_C}:{R_C+3}], s{sT3} offen")
        a.label(Lskip)
    a("s_waitcnt vmcnt(0)")
    for rnd in range(2):
        Lskip = f"B1_wg{rnd}_skip"
        a(f"s_cmp_eq_u32 s{sStp[rnd]}, -1")
        a(f"s_cbranch_scc1 {Lskip}")
        a(f"ds_write_b128 v33, v[{16+4*rnd}:{19+4*rnd}] offset:{1024*rnd}")
        a(f"s_cmp_lt_u32 s{sStp[rnd]}, 96")
        a(f"s_cbranch_scc0 B1_wf{rnd}_n")
        a(f"ds_read_b64_tr_b16 v[{24+4*rnd}:{25+4*rnd}], v34 offset:{1024*rnd}")
        a(f"ds_read_b64_tr_b16 v[{26+4*rnd}:{27+4*rnd}], v34 offset:{1024*rnd+512}")
        a(f"s_branch B1_wf{rnd}_s")
        a.label(f"B1_wf{rnd}_n")
        a(f"ds_read_b64_tr_b16 v[{24+4*rnd}:{25+4*rnd}], v35 offset:{1024*rnd}")
        a(f"ds_read_b64_tr_b16 v[{26+4*rnd}:{27+4*rnd}], v35 offset:{1024*rnd+256}")
        a.label(f"B1_wf{rnd}_s")
        a("s_waitcnt lgkmcnt(0)")
        a(f"buffer_store_dwordx4 v[{24+4*rnd}:{27+4*rnd}], v{vX16}, s[{R_WS}:{R_WS+3}], s{sDst[rnd]} offen sc1")
        a.label(Lskip)
    st.mark("wfprep")
    L_np = "B1_np"
    a(f"s_cmp_lg_u32 s{sW}, 0")
    a(f"s_cbranch_scc1 {L_np}")
    a(f"s_lshl_b32 s{sT}, s{sG}, 5")
    poll_flags(a, vT, "B1", sT, 32, FL_D)
    if OPT.get("b1kv"): poll_flags(a, vT, "B1k", None, 128, FL_KV)
    a.label(L_np)
    a("s_barrier")
    st.mark("wait_d")
    issued = []
    def iX(c): issueX(c); issued.extend([("X", c)]*4)
    def iW(c): issueW(c); issued.extend([("W", c)]*3)
    if OPT.get("b1shallow", 1):
        iW(0); iX(0)
    else:
        iW(0); iX(0)
        a("s_barrier")
        iW(1); iX(1)
        a("s_barrier")
        iW(2)
    def wreads(c, k, buf):
        base = (c % 3)*SLOT + k*16*192
        for ct in range(3):
            a(f"ds_read_b64_tr_b16 v[{WF+12*buf+4*ct}:{WF+12*buf+4*ct+1}], v{vTr} offset:{base + ct*64}")
            a(f"ds_read_b64_tr_b16 v[{WF+12*buf+4*ct+2}:{WF+12*buf+4*ct+3}], v{vTr} offset:{base + ct*64 + 4*192}")
    for c in range(5):
        last = max(i for i, e_ in enumerate(issued) if e_ in (("W", c), ("X", c)))
        a(f"s_waitcnt vmcnt({len(issued) - 1 - last})")
        a("s_barrier")
        if c == 0:
            st.mark("b0")
            a(f"s_cmp_lg_u32 s{sW}, 0")
            a(f"s_cbranch_scc1 B1_nofw")
            set_flag(a, vT, sJ, FL_W)
            a.label("B1_nofw")
        if OPT.get("b1shallow", 1):
            if c + 1 < 5: iW(c + 1); iX(c + 1)
        elif 1 <= c <= 2: iW(c + 2)
        xs = XS + 16*(c % 2)
        wreads(c, 0, 0)
        for k in range(4):
            buf = k % 2
            if k < 3:
                wreads(c, k + 1, 1 - buf)
                a("s_waitcnt lgkmcnt(6)")
            else:
                a("s_waitcnt lgkmcnt(0)")
            for ct in range(3):
                cin = "0" if (c == 0 and k == 0) else vr(ACC+16*ct,16)
                a(f"v_mfma_f32_32x32x16_bf16 {vr(ACC+16*ct,16)}, {vr(WF+12*buf+4*ct,4)}, {vr(xs+4*k,4)}, {cin}")
        if c + 2 < 5 and not OPT.get("b1shallow", 1): iX(c + 2)
    st.mark("kloop")
    a("s_setprio 3")
    a(f"s_and_b32 s{sT}, s{sW}, 3")
    a(f"s_lshl_b32 s{sT2}, s{sG}, 2")
    a(f"s_add_u32 s{sT}, s{sT}, s{sT2}")
    a(f"s_lshl_b32 s{sT2}, s{sT}, 7")
    a(f"s_add_u32 s{sT2}, s{sT2}, {WS_R}")
    a(f"v_lshlrev_b32 v{vT}, 2, v{vN}")
    a(f"buffer_load_dword v{vR}, v{vT}, s[{R_WS}:{R_WS+3}], s{sT2} offen sc1")
    a(f"s_mul_i32 s{sT2}, s{sC}, 192")
    a(f"s_lshl_b32 s{sT3}, s{sKH}, 5")
    a(f"s_add_u32 s{sT2}, s{sT2}, s{sT3}")
    a(f"v_lshlrev_b32 v{vT}, 3, v{vH}")
    B = XS
    for ct in range(3):
        for q in range(2):
            a(f"buffer_load_dwordx2 v[{B+4*ct+2*q}:{B+4*ct+2*q+1}], v{vT}, s[{R_B}:{R_B+3}], s{sT2} offen offset:{64*ct+16*q}")
    a(f"s_mul_i32 s{sT}, s{sT}, 96")
    a(f"s_mul_i32 s{sT2}, s{sC}, 6")
    a(f"s_add_u32 s{sT}, s{sT}, s{sT2}")
    a(f"s_add_u32 s{sT}, s{sT}, s{sKH}")
    a(f"s_lshl_b32 s{sXb}, s{sT}, 10")
    a(f"s_add_u32 s{sXb}, s{sXb}, {WS_H}")
    a("s_barrier")
    a.nop(4)
    T = XS + 16
    a(f"s_mul_i32 s{sT}, s{sW}, 6144")
    a(f"v_add_u32 v{vT+1}, s{sT}, v{vX16}")
    a(f"s_xor_b32 s{sT}, s{sW}, 4")
    a(f"s_mul_i32 s{sT}, s{sT}, 6144")
    a(f"v_add_u32 v{vT+2}, s{sT}, v{vX16}")
    a(f"s_cmp_eq_u32 s{sKH}, 1")
    a(f"s_cbranch_scc1 B1_x1")
    for ct in range(3):
        for q in range(2):
            a(f"ds_write_b128 v{vT+1}, {vr(ACC+16*ct+8+4*q,4)} offset:{(2*ct+q)*1024}")
    a(f"s_branch B1_x2")
    a.label("B1_x1")
    for ct in range(3):
        for q in range(2):
            a(f"ds_write_b128 v{vT+1}, {vr(ACC+16*ct+4*q,4)} offset:{(2*ct+q)*1024}")
    a.label("B1_x2")
    a("s_waitcnt lgkmcnt(0)")
    a("s_barrier")
    for i in range(6):
        a(f"ds_read_b128 {vr(T+4*i,4)}, v{vT+2} offset:{i*1024}")
    a("s_waitcnt lgkmcnt(0) vmcnt(0)")
    a(f"s_cmp_eq_u32 s{sKH}, 1")
    a(f"s_cbranch_scc1 B1_y1")
    for ct in range(3):
        for j in range(8): a(f"v_add_f32 v{T+8*ct+j}, v{T+8*ct+j}, v{ACC+16*ct+j}")
    a(f"s_branch B1_y2")
    a.label("B1_y1")
    for ct in range(3):
        for j in range(8): a(f"v_add_f32 v{T+8*ct+j}, v{T+8*ct+j}, v{ACC+16*ct+8+j}")
    a.label("B1_y2")
    TB = 56
    for ct in range(3):
        for q in range(2):
            b0 = B+4*ct+2*q
            acc = T+8*ct+4*q
            a(f"v_lshlrev_b32 v{TB}, 16, v{b0}")
            a(f"v_and_b32 v{TB+1}, 0xffff0000, v{b0}")
            a(f"v_lshlrev_b32 v{TB+2}, 16, v{b0+1}")
            a(f"v_and_b32 v{TB+3}, 0xffff0000, v{b0+1}")
            for j in range(4): a(f"v_fma_f32 v{acc+j}, v{acc+j}, v{vR}, v{TB+j}")
            for j in range(4): a(f"v_max_f32 v{acc+j}, 0, v{acc+j}")
            for j in range(4): a(f"v_mul_f32 v{acc+j}, v{acc+j}, v{acc+j}")
        for k in range(4):
            a(f"v_cvt_pk_bf16_f32 v{60+4*ct+k}, v{T+8*ct+2*k}, v{T+8*ct+2*k+1}")
    a(f"v_add_u32 v{vT}, 4096, v{vX16}")
    a(f"buffer_store_dwordx4 {vr(60,4)}, v{vX16}, s[{R_WS}:{R_WS+3}], s{sXb} offen sc1")
    a(f"buffer_store_dwordx4 {vr(64,4)}, v{vX16}, s[{R_WS}:{R_WS+3}], s{sXb} offen offset:2048 sc1")
    a(f"buffer_store_dwordx4 {vr(68,4)}, v{vT}, s[{R_WS}:{R_WS+3}], s{sXb} offen sc1")
    a("s_waitcnt vmcnt(0)")
    a("s_barrier")
    L_nf = "B1_nf"
    a(f"s_cmp_lg_u32 s{sW}, 0")
    a(f"s_cbranch_scc1 {L_nf}")
    a(f"s_lshl_b32 s{sT}, s{sG}, 4")
    a(f"s_add_u32 s{sT}, s{sT}, s{sC}")
    set_flag(a, vT, sT, FL_H)
    a.label(L_nf)
    st.mark("epi")
    st.end()
    a("s_endpgm")

def role_B2(a):
    st = Stamps(a, "B2")
    st.start()
    if OPT.get("bprio"): a(f"s_setprio {OPT['bprio']}")
    sSoffW, sSoffX, sWb, sIt, sRho, sWrapW, sRst = 57, 58, 59, 60, 61, 98, 99
    vT = 4
    vX16, vXa = 14, 15
    ACC = 16
    XR = 48
    WB = 64
    vOut = vT+3
    NXS = 8
    a(f"s_sub_u32 s{sT2}, s2, 512")
    a(f"s_bfe_u32 s{sRB}, s{sT2}, 0x20001")
    a(f"s_lshl_b32 s{sRB}, s{sRB}, 4")
    a(f"s_bfe_u32 s{sT}, s{sT2}, 0x40003")
    a(f"s_add_u32 s{sRB}, s{sRB}, s{sT}")
    a(f"s_and_b32 s{sCG}, s{sT2}, 1")
    a(f"s_lshl_b32 s{sCG}, s{sCG}, 1")
    a(f"s_lshr_b32 s{sT}, s{sT2}, 7")
    a(f"s_add_u32 s{sCG}, s{sCG}, s{sT}")
    a(f"v_lshlrev_b32 v{vX16}, 4, v{vLane}")
    a(f"s_and_b32 s{sRho}, s{sRB}, 7")
    a(f"s_min_u32 s{sT3}, s{sW}, 4")
    a(f"s_mul_i32 s{sT}, s{sCG}, 5")
    a(f"s_add_u32 s{sT}, s{sT}, s{sT3}")
    a(f"s_mul_i32 s{sWb}, s{sT}, {136*1024}")
    a(f"s_add_u32 s{sWb}, s{sWb}, {WS_WF}")
    a(f"s_lshl_b32 s{sT}, s{sT}, 6")
    srd(a, R_C, S_X, S_X+1, NX)
    a(f"s_lshl_b32 s{sT2}, s{sRB}, 5")
    a(f"v_add_u32 v{vT}, s{sT2}, v{vN}")
    a(f"v_mul_u32_u24 v{vT}, 1280, v{vT}")
    a(f"v_lshl_add_u32 v{vT}, v{vH}, 3, v{vT}")
    a(f"v_add_u32 v{vOut}, s{sT}, v{vT}")
    for q in range(4):
        a(f"buffer_load_dwordx2 v[{XR+2*q}:{XR+2*q+1}], v{vOut}, s[{R_C}:{R_C+3}], 0 offen offset:{16*q}")
    srd(a, R_C, S_B2, S_B2+1, 640*2)
    a(f"v_lshlrev_b32 v{vT}, 3, v{vH}")
    for q in range(4):
        a(f"buffer_load_dwordx2 v[{XR+8+2*q}:{XR+8+2*q+1}], v{vT}, s[{R_C}:{R_C+3}], s{sT} offen offset:{16*q}")
    for i in range(16): a(f"v_mov_b32 v{ACC+i}, 0")
    def unpack_add(q, dst):
        for (src, t) in ((XR+2*q, 32), (XR+8+2*q, 36)):
            a(f"v_lshlrev_b32 v{t}, 16, v{src}")
            a(f"v_and_b32 v{t+1}, 0xffff0000, v{src}")
            a(f"v_lshlrev_b32 v{t+2}, 16, v{src+1}")
            a(f"v_and_b32 v{t+3}, 0xffff0000, v{src+1}")
        for j in range(4): a(f"v_add_f32 v{32+j}, v{32+j}, v{36+j}")
        for j in range(4): a(f"v_add_f32 v{dst+j}, v{dst+j}, v{32+j}")
    L_side = "B2_side"
    a(f"s_cmp_ge_u32 s{sW}, 4")
    a(f"s_cbranch_scc1 {L_side}")
    a("s_barrier")
    a(f"s_lshl_b32 s{sSoffW}, s{sRho}, 13")
    a(f"s_mov_b32 s{sWrapW}, {96*1024}")
    a(f"s_mov_b32 s{sRst}, 0")
    def wload(r):
        a(f"s_add_u32 s{sT2}, s{sWb}, s{sSoffW}")
        a(f"s_add_u32 s{sT}, s{sSoffW}, 1024")
        a(f"buffer_load_dwordx4 {vr(r,4)}, v{vX16}, s[{R_WS}:{R_WS+3}], s{sT2} offen sc1")
        a(f"s_cmp_eq_u32 s{sT}, s{sWrapW}")
        a(f"s_cselect_b32 s{sSoffW}, s{sRst}, s{sT}")
    for k in range(16): wload(WB + 4*k)
    st.mark("setup")
    a(f"s_mov_b32 s{sIt}, 0")
    L1 = "B2_p1"
    a.label(L1)
    XBUF = 32
    for j in range(16):
        k = j % 8
        if k == 0:
            a("s_barrier")
            a(f"s_lshl_b32 s{sT}, s{sIt}, 1")
            if j: a(f"s_add_u32 s{sT}, s{sT}, 1")
            a(f"s_and_b32 s{sT}, s{sT}, {NXS-1}")
            a(f"s_lshl_b32 s{sT}, s{sT}, 13")
            a(f"v_add_u32 v{vXa}, s{sT}, v{vX16}")
            for i in range(3):
                a(f"ds_read_b128 {vr(XBUF+4*i,4)}, v{vXa} offset:{i*1024}")
        if j == 0:
            L1n = "B2_p1n"
            a(f"s_cmp_lg_u32 s{sIt}, 5")
            a(f"s_cbranch_scc1 {L1n}")
            a(f"s_mul_i32 s{sSoffW}, s{sRho}, {5*1024}")
            a(f"s_add_u32 s{sSoffW}, s{sSoffW}, {96*1024}")
            a(f"s_mov_b32 s{sWrapW}, {136*1024}")
            a(f"s_mov_b32 s{sRst}, {96*1024}")
            a.label(L1n)
        if k + 3 < 8:
            a(f"ds_read_b128 {vr(XBUF+4*((k+3)%4),4)}, v{vXa} offset:{(k+3)*1024}")
            a("s_waitcnt vmcnt(15) lgkmcnt(3)")
        else:
            a(f"s_waitcnt vmcnt(15) lgkmcnt({7-k})")
        a(f"v_mfma_f32_32x32x16_bf16 {vr(ACC,16)}, {vr(WB+4*j,4)}, {vr(XBUF+4*(k%4),4)}, {vr(ACC,16)}")
        wload(WB + 4*j)
    a(f"s_add_u32 s{sIt}, s{sIt}, 1")
    a(f"s_cmp_lt_u32 s{sIt}, 6")
    a(f"s_cbranch_scc1 {L1}")
    st.mark("ffn2")
    a.nop(12)
    for q in range(4): unpack_add(q, ACC+4*q)
    XBUF = XR
    NBLK = 20
    def blk(s_):
        b = s_ % NBLK
        return (WB + 4*b) if b < 16 else (32 + 4*(b-16))
    for s_ in range(16, 20): wload(blk(s_))
    a("s_barrier")
    a(f"s_branch B2_oload")
    a.label(L_side)
    a(f"s_cmp_lt_u32 s{sW}, 6")
    a(f"s_cbranch_scc1 B2_np0")
    get_tag(a, vT, "B2")
    a(f"s_cmp_eq_u32 s{sW}, 7")
    a(f"s_cbranch_scc1 B2_ph")
    a(f"s_lshl_b32 s{sT}, s{sCG}, 6")
    poll_flags(a, vT, "B2w", sT, 64, FL_W)
    a(f"s_branch B2_np0")
    a.label("B2_ph")
    a(f"s_lshr_b32 s{sT}, s{sRB}, 2")
    a(f"s_lshl_b32 s{sT}, s{sT}, 4")
    poll_flags(a, vT, "B2h", sT, 16, FL_H)
    a.label("B2_np0")
    a("s_barrier")
    a(f"s_sub_u32 s{sT3}, s{sW}, 4")
    a("s_waitcnt vmcnt(0)")
    for jj in range(1, 4):
        Ls = a.newlabel("B2_q")
        a(f"s_cmp_lg_u32 s{sT3}, {jj}")
        a(f"s_cbranch_scc1 {Ls}")
        a(f"v_mov_b32 v{XR}, v{XR+2*jj}")
        a(f"v_mov_b32 v{XR+1}, v{XR+2*jj+1}")
        a(f"v_mov_b32 v{XR+8}, v{XR+8+2*jj}")
        a(f"v_mov_b32 v{XR+9}, v{XR+8+2*jj+1}")
        a.label(Ls)
    for j in range(4): a(f"v_mov_b32 v{40+j}, 0")
    unpack_add(0, 40)
    a(f"s_lshl_b32 s{sRst}, s{sT3}, 11")
    a(f"s_lshl_b32 s{sSoffW}, s{sRho}, 13")
    a(f"s_add_u32 s{sSoffW}, s{sSoffW}, s{sRst}")
    a(f"s_add_u32 s{sWrapW}, s{sRst}, {96*1024}")
    SD = 4
    def wpair(slot):
        a(f"s_add_u32 s{sT2}, s{sWb}, s{sSoffW}")
        a(f"s_add_u32 s{sT}, s{sSoffW}, 8192")
        a(f"buffer_load_dwordx4 {vr(WB+8*slot,4)}, v{vX16}, s[{R_WS}:{R_WS+3}], s{sT2} offen sc1")
        a(f"buffer_load_dwordx4 {vr(WB+8*slot+4,4)}, v{vX16}, s[{R_WS}:{R_WS+3}], s{sT2} offen offset:1024 sc1")
        a(f"s_cmp_eq_u32 s{sT}, s{sWrapW}")
        a(f"s_cselect_b32 s{sSoffW}, s{sRst}, s{sT}")
    for c in range(SD): wpair(c)
    a(f"s_sub_u32 s{sT3}, s{sW}, 4")
    a(f"s_mul_i32 s{sT}, s{sRB}, {96*1024}")
    a(f"s_add_u32 s63, s{sT}, {WS_H}")
    a(f"s_lshl_b32 s97, s{sT3}, 11")
    a(f"s_add_u32 s63, s63, s97")
    a(f"s_lshl_b32 s{sSoffX}, s{sRho}, 13")
    a(f"v_add_u32 v{vT+5}, s97, v{vX16}")
    vXs = vT+5
    vm = Cnt(a, "vmcnt", 63)
    def xdma(c):
        a(f"s_add_u32 m0, s97, {(c % NXS)*8192}")
        a(f"s_add_u32 s{sT2}, s63, s{sSoffX}")
        a(f"s_add_u32 s{sT}, s{sSoffX}, 8192")
        for i in range(2):
            a(f"buffer_load_dwordx4 v{vX16}, s[{R_WS}:{R_WS+3}], s{sT2} offen offset:{1024*i} sc1 lds")
        a(f"s_cmp_eq_u32 s{sT}, {96*1024}")
        a(f"s_cselect_b32 s{sSoffX}, 0, s{sT}")
        vm.issue(("X", c), 2)
    for c in range(SD): vm.issue(("W", c), 2)
    XD = 6
    for c in range(XD): xdma(c)
    for c in range(12):
        vm.need(("X", c), ("W", c))
        a("s_barrier")
        if c + XD < 12: xdma(c + XD)
        for i in range(2):
            a(f"ds_read_b128 {vr(48+4*i,4)}, v{vXs} offset:{(c % NXS)*8192 + 1024*i}")
        a("s_waitcnt lgkmcnt(1)")
        a(f"v_mfma_f32_32x32x16_bf16 {vr(ACC,16)}, {vr(WB+8*(c%4),4)}, {vr(48,4)}, {vr(ACC,16)}")
        a("s_waitcnt lgkmcnt(0)")
        a(f"v_mfma_f32_32x32x16_bf16 {vr(ACC,16)}, {vr(WB+8*(c%4)+4,4)}, {vr(52,4)}, {vr(ACC,16)}")
        if c + SD < 12: wpair(c % 4); vm.issue(("W", c + SD), 2)
    a(f"s_sub_u32 s{sT3}, s{sW}, 4")
    a(f"s_lshl_b32 s{sT3}, s{sT3}, 1")
    a(f"s_mul_i32 s62, s{sRho}, 5")
    a(f"s_add_u32 s62, s62, s{sT3}")
    for m in range(5):
        for i in range(2):
            a(f"s_add_u32 s{sT}, s62, {8*m+i}")
            a(f"s_cmp_ge_u32 s{sT}, 40")
            a(f"s_cselect_b32 s{sT2}, 40, 0")
            a(f"s_sub_u32 s{sT}, s{sT}, s{sT2}")
            a(f"s_add_u32 s{sT}, s{sT}, 96")
            a(f"s_lshl_b32 s{sT}, s{sT}, 10")
            a(f"s_add_u32 s{sT}, s{sT}, s{sWb}")
            a(f"buffer_load_dwordx4 {vr(WB+4*(2*m+i),4)}, v{vX16}, s[{R_WS}:{R_WS+3}], s{sT} offen sc1")
    Lnp2 = "B2_np2"
    a(f"s_cmp_lg_u32 s{sW}, 7")
    a(f"s_cbranch_scc1 {Lnp2}")
    a(f"s_lshl_b32 s{sT}, s{sRB}, 5")
    poll_flags(a, vT, "B2o", sT, 32, FL_O, sleep=OPT.get("osleep", 2))
    a.label(Lnp2)
    st.mark("wait_o")
    a("s_barrier")
    a.label("B2_oload")
    a(f"s_mul_i32 s63, s{sRB}, {40*1024}")
    a(f"s_add_u32 s63, s63, {WS_OF}")
    a(f"s_mul_i32 s62, s{sRho}, 5")
    for i in range(5):
        a(f"s_mul_i32 s{sT}, s{sW}, 5")
        a(f"s_add_u32 s{sT}, s{sT}, {i}")
        a(f"s_add_u32 s{sT2}, s{sT}, s62")
        a(f"s_cmp_ge_u32 s{sT2}, 40")
        a(f"s_cselect_b32 s{sIt}, 40, 0")
        a(f"s_sub_u32 s{sT2}, s{sT2}, s{sIt}")
        a(f"s_lshl_b32 s{sT2}, s{sT2}, 10")
        a(f"s_add_u32 s{sT2}, s{sT2}, s63")
        a(f"s_lshl_b32 m0, s{sT}, 10")
        a("s_nop 0")
        a(f"buffer_load_dwordx4 v{vX16}, s[{R_WS}:{R_WS+3}], s{sT2} offen sc1 lds")
    a("s_waitcnt vmcnt(0)")
    a("s_barrier")
    st.mark("oload")
    a(f"s_cmp_ge_u32 s{sW}, 4")
    a(f"s_cbranch_scc1 B2_side2")
    vm = Cnt(a, "vmcnt", 63); lg = Cnt(a, "lgkmcnt", 15)
    def xread(s_):
        r = XBUF + 4*(s_ % 4)
        a(f"ds_read_b128 {vr(r,4)}, v{vX16} offset:{s_*1024}")
        lg.issue(("X", s_))
    for s_ in range(3): xread(s_)
    for s_ in range(40):
        if s_ + 3 < 40: xread(s_ + 3)
        vm.need(("W", s_))
        lg.need(("X", s_))
        a(f"v_mfma_f32_32x32x16_bf16 {vr(ACC,16)}, {vr(blk(s_),4)}, {vr(XBUF+4*(s_%4),4)}, {vr(ACC,16)}")
        if s_ + NBLK < 40:
            wload(blk(s_)); vm.issue(("W", s_ + NBLK))
    st.mark("wo")
    if OPT.get("diag"):
        a(f"s_cmp_lg_u32 s{sW}, 0"); Ld = a.newlabel("dg"); a(f"s_cbranch_scc1 {Ld}"); diag(a, 10); diag(a, 11, neg=True); a.label(Ld)
    a("s_setprio 3")
    a("s_barrier")
    a.nop(10)
    srd(a, R_C, S_OUT, S_OUT+1, NX)
    for q in range(4):
        a(f"v_cvt_pk_bf16_f32 v{32+2*q}, v{ACC+4*q}, v{ACC+4*q+1}")
        a(f"v_cvt_pk_bf16_f32 v{33+2*q}, v{ACC+4*q+2}, v{ACC+4*q+3}")
        a(f"buffer_store_dwordx2 v[{32+2*q}:{33+2*q}], v{vOut}, s[{R_C}:{R_C+3}], 0 offen offset:{16*q}")
    a("s_barrier")
    st.end()
    a("s_endpgm")
    a.label("B2_side2")
    for k in range(4):
        a(f"ds_read_b128 {vr(48+4*k,4)}, v{vXs} offset:{(8*(k//2)+(k%2))*1024}")
    for k in range(10):
        a(f"s_waitcnt lgkmcnt({min(3, 9-k)})")
        a(f"v_mfma_f32_32x32x16_bf16 {vr(ACC,16)}, {vr(WB+4*k,4)}, {vr(48+4*(k%4),4)}, {vr(ACC,16)}")
        if k + 4 < 10:
            a(f"ds_read_b128 {vr(48+4*(k%4),4)}, v{vXs} offset:{(8*((k+4)//2)+((k+4)%2))*1024}")
    a("s_setprio 3")
    a("s_barrier")
    a.nop(12)
    a(f"s_sub_u32 s{sT3}, s{sW}, 4")
    a(f"s_lshl_b32 s{sT}, s{sT3}, 12")
    a(f"v_add_u32 v{vT}, s{sT}, v{vX16}")
    for q in range(4):
        a(f"ds_write_b128 v{vT}, {vr(ACC+4*q,4)} offset:{q*1024}")
    a("s_waitcnt lgkmcnt(0)")
    a("s_barrier")
    a(f"s_lshl_b32 s{sT}, s{sT3}, 10")
    a(f"v_add_u32 v{vT}, s{sT}, v{vX16}")
    for jj in range(4):
        a(f"ds_read_b128 {vr(ACC+4*jj,4)}, v{vT} offset:{jj*4096}")
    a(f"s_lshl_b32 s{sT}, s{sT3}, 4")
    a(f"v_add_u32 v{vOut}, s{sT}, v{vOut}")
    srd(a, R_C, S_OUT, S_OUT+1, NX)
    a("s_waitcnt lgkmcnt(0)")
    for j in range(4):
        a(f"v_add_f32 v{ACC+j}, v{ACC+j}, v{ACC+4+j}")
        a(f"v_add_f32 v{ACC+8+j}, v{ACC+8+j}, v{ACC+12+j}")
    for j in range(4): a(f"v_add_f32 v{ACC+j}, v{ACC+j}, v{40+j}")
    for j in range(4): a(f"v_add_f32 v{ACC+j}, v{ACC+j}, v{ACC+8+j}")
    a(f"v_cvt_pk_bf16_f32 v32, v{ACC}, v{ACC+1}")
    a(f"v_cvt_pk_bf16_f32 v33, v{ACC+2}, v{ACC+3}")
    a(f"buffer_store_dwordx2 v[32:33], v{vOut}, s[{R_WS if False else R_C}:{R_C+3}], 0 offen")
    st.end()
    a("s_endpgm")

def gen():
    a = Asm()
    a("s_cmp_ge_u32 s2, 768")
    a("s_cbranch_scc1 K_end")
    a("s_load_dwordx16 s[4:19], s[0:1], 0")
    a("s_load_dwordx8 s[20:27], s[0:1], 64")
    a("s_load_dwordx2 s[28:29], s[0:1], 96")
    a(f"v_and_b32 v{vLane}, 63, v0")
    a(f"v_lshrrev_b32 v4, 6, v0")
    a(f"v_lshrrev_b32 v{vH}, 5, v{vLane}")
    a(f"v_readfirstlane_b32 s{sW}, v4")
    a(f"v_and_b32 v{vN}, 31, v{vLane}")
    a("s_waitcnt lgkmcnt(0)")
    srd(a, R_WS, S_WS, S_WS+1, WS_END)
    srd(a, R_FL, S_WS, S_WS+1, FL_SIZE, WS_FL)
    for r in (R_A, R_B, R_C): srd(a, r, S_WS, S_WS+1, WS_END)
    for i in range(4, 16): a(f"v_mov_b32 v{i}, 0")
    if OPT.get("tlb", 0):
        a(f"s_cmp_lg_u32 s{sW}, 4")
        a(f"s_cbranch_scc1 K_notlb")
        a(f"v_lshlrev_b32 v5, 18, v{vLane}")
        a(f"buffer_load_dword v0, v5, s[{R_WS}:{R_WS+3}], 0 offen")
        a(f"v_lshlrev_b32 v5, 16, v{vLane}")
        for ptr in (S_W1, S_W2, S_WO, S_OUT, S_WQ):
            a(f"global_load_dword v0, v5, s[{ptr}:{ptr+1}]") if False else None
        a.label("K_notlb")
    if OPT.get("diag"):
        a(f"s_cmp_lg_u32 s{sW}, 0")
        a("s_cbranch_scc1 K_nod")
        diag(a, 2, neg=True); diag(a, 3)
        a.label("K_nod")
    a("s_cmp_ge_u32 s2, 512")
    a("s_cbranch_scc1 ROLE_B2")
    a("s_cmp_ge_u32 s2, 256")
    a("s_cbranch_scc1 ROLE_B1")
    role_A(a)
    a.label("ROLE_B1")
    role_B1(a)
    a.label("ROLE_B2")
    role_B2(a)
    a.label("K_end")
    a("s_endpgm")
    grid = OPT.get("grid", 768)
    s = f"; generated by gen2.py\n; @launch grid=({grid},1,1) block=(512,1,1) lds={LDS_BYTES}\n"
    s += '.amdgcn_target "amdgcn-amd-amdhsa--gfx950"\n.text\n'
    s += kernel_header(KN) + a.text()
    s += '.section .rodata,"a"\n.p2align 6\n' + kernel_desc(KN, 128, 102)
    return s

if __name__ == "__main__":
    if "--prof" in sys.argv: PROF = True
    for x in sys.argv:
        if x.startswith("-D"):
            k, _, v = x[2:].partition("="); OPT[k] = int(v) if v else 1
    open(sys.argv[1], "w").write(gen())
    if PROF: json.dump(STAMP_NAMES, open("stamps8.json", "w"))
```

```python
import sys, math, json
from asmlib import *

NAME = "parallel_sum__grouped_kv_mqa__dense_activation_squared_relu__prompt"
KN = NAME + "_kernel"
WS_XF = 0x0
WS_R  = 0x280000
WS_KV = 0x290000
WS_OF = 0x2D0000
WS_H  = 0x550000
WS_FL = 0xB50000
WS_WF = 0xBC0000
WS_END = 0xE70000
WS_DBG = 0x2000000
FL_KV, FL_D, FL_H, FL_W, FL_O = 0, 128, 640, 896, 1152
FL_N = 3200
FL_SIZE = FL_N * 128
NX = 2048 * 640 * 2
TS = 2688
KVB = 64 * TS
CH = 8 * TS
QSCALE = (20 ** -0.5) * math.log2(math.e)
DELTA = 96.0
LDS_BYTES = 81920
PROF = False
OPT = {}
SPIN_MAX = 200000

S_X, S_WQ, S_WK, S_WV, S_WO, S_W1, S_B1, S_W2, S_B2, S_OUT, S_DBG, S_WS = 4, 6, 8, 10, 12, 16, 18, 20, 22, 24, 26, 28
sW = 30
sTag = 31
R_WS = 32
R_FL = 36
R_A = 40
R_B = 44
R_C = 48
sRB, sCG, sT, sT2, sT3 = 52, 53, 54, 55, 56
vLane, vH, vN = 1, 2, 3

def diag(a, word, neg=False, va=74):
    if not OPT.get("diag") or neg: return
    L = a.newlabel("dgx")
    a(f"s_and_b32 s86, s2, 255")
    a(f"s_cmp_lg_u32 s86, {OPT.get('diagwg', 37)}")
    a(f"s_cbranch_scc1 {L}")
    a("s_memrealtime s[84:85]")
    a("s_waitcnt lgkmcnt(0)")
    a("s_mov_b64 s[86:87], exec")
    a("s_mov_b64 exec, 1")
    a(f"v_mov_b32 v{va}, s84")
    a(f"v_mov_b32 v{va+1}, {4*word}")
    a(f"global_store_dword v{va+1}, v{va}, s[{S_DBG}:{S_DBG+1}]")
    a("s_mov_b64 exec, s[86:87]")
    a.label(L)

class Stamps:
    def __init__(self, a, role): self.a = a; self.n = 1; self.names = []; self.role = role
    def start(self):
        if not PROF: return
        for i in range(68, 94): self.a(f"s_mov_b32 s{i}, 0")
        self.a("s_memrealtime s[64:65]"); self.a("s_memtime s[66:67]"); self.a("s_waitcnt lgkmcnt(0)"); self.n = 2
    def mark(self, name):
        if not PROF: return
        assert self.n < 15
        self.a(f"s_memtime s[{64+2*self.n}:{65+2*self.n}]"); self.a("s_waitcnt lgkmcnt(0)")
        self.n += 1; self.names.append(name)
    def end(self):
        if not PROF: return
        a = self.a
        a("s_waitcnt vmcnt(0)")
        self.mark("final-drain")
        a("s_memrealtime s[94:95]"); a("s_waitcnt lgkmcnt(0)")
        a("s_mov_b64 exec, 1")
        a(f"s_lshl_b32 s98, s2, 3")
        a(f"s_add_u32 s98, s98, s{sW}")
        a(f"s_lshl_b32 s98, s98, 6")
        a(f"s_add_u32 s98, s98, {WS_DBG}")
        a(f"s_add_u32 s96, s{S_WS}, s98")
        a(f"s_addc_u32 s97, s{S_WS+1}, 0")
        a(f"v_mov_b32 v0, 0")
        for i in list(range(14)) + [15]:
            a(f"v_mov_b32 v1, s{64+2*i}")
            a(f"global_store_dword v0, v1, s[96:97] offset:{4*i}")
        a(f"v_mov_b32 v1, {self.n}")
        a(f"global_store_dword v0, v1, s[96:97] offset:56")
        a("s_waitcnt vmcnt(0)")
        STAMP_NAMES[self.role] = self.names
STAMP_NAMES = {}

def bf16_round(a, dst, src):
    a(f"v_cvt_pk_bf16_f32 v{dst}, v{src}, v{src}")
    a(f"v_lshlrev_b32 v{dst}, 16, v{dst}")

def decode_rb_cg(a, j):
    a(f"s_lshr_b32 s{sCG}, s{j}, 6")
    a(f"s_and_b32 s{sRB}, s{j}, 7")
    a(f"s_lshl_b32 s{sRB}, s{sRB}, 3")
    a(f"s_bfe_u32 s{sT}, s{j}, 0x30003")
    a(f"s_add_u32 s{sRB}, s{sRB}, s{sT}")

def get_tag(a, vt, lab):
    L = f"{lab}_tag"
    a(f"s_mov_b32 s{sT3}, {SPIN_MAX}")
    a(f"v_mov_b32 v{vt}, 0")
    a.label(L)
    a(f"global_load_dword v{vt+1}, v{vt}, s[{S_DBG}:{S_DBG+1}] sc1")
    a("s_waitcnt vmcnt(0)")
    a(f"v_readfirstlane_b32 s{sTag}, v{vt+1}")
    a(f"s_sub_u32 s{sT3}, s{sT3}, 1")
    a(f"s_cmp_eq_u32 s{sT3}, 0")
    a(f"s_cbranch_scc1 {L}_done")
    a(f"s_cmp_eq_u32 s{sTag}, 0")
    a(f"s_cbranch_scc0 {L}_done")
    a("s_sleep 1")
    a(f"s_branch {L}")
    a.label(f"{L}_done")

def poll_flags(a, vt, lab, s_idx, nflags, region, tries=None, sleep=None):
    if nflags == 128:
        poll_flags(a, vt, lab + "a", None, 64, region, tries, sleep)
        poll_flags(a, vt, lab + "b", None, 64, region + 64, tries, sleep)
        return
    L = f"{lab}_poll"
    a(f"v_lshlrev_b32 v{vt}, 7, v{vLane}")
    if s_idx is None:
        a(f"s_mov_b32 s63, {region*128}")
    else:
        a(f"s_lshl_b32 s63, s{s_idx}, 7")
        if region: a(f"s_add_u32 s63, s63, {region*128}")
    a(f"s_mov_b32 s{sT3}, {tries or SPIN_MAX}")
    a("s_mov_b64 s[100:101], exec")
    if nflags < 64:
        a(f"s_mov_b32 exec_lo, {(1 << min(nflags, 32)) - 1 if nflags < 32 else -1}")
        a(f"s_mov_b32 exec_hi, {((1 << (nflags - 32)) - 1) if nflags > 32 else 0}")
    a.label(L)
    a(f"buffer_load_dword v{vt+1}, v{vt}, s[{R_FL}:{R_FL+3}], s63 offen sc1")
    a("s_waitcnt vmcnt(0)")
    a(f"v_cmp_ne_u32 vcc, s{sTag}, v{vt+1}")
    a("s_nop 1")
    a(f"s_and_b64 exec, exec, vcc")
    a(f"s_cbranch_execz {L}_done")
    a(f"s_sub_u32 s{sT3}, s{sT3}, 1")
    a(f"s_cmp_eq_u32 s{sT3}, 0")
    a(f"s_cbranch_scc1 {L}_done")
    a(f"s_sleep {sleep if sleep is not None else OPT.get('sleep', 6)}")
    a(f"s_branch {L}")
    a.label(f"{L}_done")
    a("s_mov_b64 exec, s[100:101]")

def set_flag(a, vt, s_idx, region):
    a(f"v_mov_b32 v{vt}, s{sTag}")
    a(f"v_mov_b32 v{vt+1}, 0")
    a(f"s_lshl_b32 s63, s{s_idx}, 7")
    if region: a(f"s_add_u32 s63, s63, {region*128}")
    a("s_mov_b64 s[100:101], exec")
    a("s_mov_b64 exec, 1")
    a(f"buffer_store_dword v{vt}, v{vt+1}, s[{R_FL}:{R_FL+3}], s63 offen sc1")
    a("s_mov_b64 exec, s[100:101]")

def tr_addr(a, dst, dst2, pitch, hrows, second_rows, s_base, t):
    a(f"v_bfe_u32 v{t}, v{vLane}, 2, 2")
    a(f"v_mul_u32_u24 v{t+1}, {hrows}, v{vH}")
    a(f"v_add_u32 v{t}, v{t}, v{t+1}")
    a(f"v_bfe_u32 v{t+1}, v{vLane}, 4, 1")
    a(f"v_and_b32 v{t+2}, 3, v{vLane}")
    a(f"v_lshlrev_b32 v{t+2}, 3, v{t+2}")
    a(f"v_lshl_add_u32 v{t+1}, v{t+1}, 5, v{t+2}")
    a(f"v_mul_u32_u24 v{dst}, {pitch}, v{t}")
    a(f"v_add3_u32 v{dst}, v{dst}, v{t+1}, s{s_base}")
    if dst2 is not None:
        a(f"v_add_u32 v{dst2}, {second_rows*pitch}, v{dst}")

def role_A(a):
    OPT["nopre0"] = 1
    st = Stamps(a, "A")
    st.start()
    XB = 0; XP = 1056; XH = 528; RBUF = 42240
    RING = 42496; NSTG = 3; RW = NSTG*1024; DEPTH = 16
    KSTG = 57856
    KVX = 67072
    LFL = XB + 512
    LFL2 = XB + 1040
    T4F = 75264
    SB = [0, 16384, 32768, 49152]
    QBUF = 65536; QP = 328
    sStep, sSoff, sLds, sRho, sWrap, sIt = 57, 58, 59, 60, 61, 57
    sExp, sFD = 95, 94
    vT = 4
    vVo, vTr, vTr2, vX16 = 12, 13, 14, 15
    X = 16
    TMP = 36
    vSum, vSq, vM = 52, 53, 54
    vOne, vSelLo, vSelHi = 56, 57, 58
    vR, vXa, vWst, vTag = 9, 10, 11, 61
    ACC = 16; FB = 32; WS_ = 64
    a(f"s_mov_b32 s{sT2}, s2")
    decode_rb_cg(a, sT2)
    L_notag = "A_notag"
    a(f"s_cmp_lg_u32 s2, 0")
    a(f"s_cbranch_scc1 {L_notag}")
    a(f"s_cmp_lg_u32 s{sW}, 0")
    a(f"s_cbranch_scc1 {L_notag}")
    a(f"s_memrealtime s[62:63]")
    a("s_waitcnt lgkmcnt(0)")
    a(f"s_or_b32 s62, s62, 1")
    a(f"v_mov_b32 v{vT}, s62")
    a(f"v_mov_b32 v{vT+1}, 0")
    a("s_mov_b64 exec, 1")
    a(f"global_store_dword v{vT+1}, v{vT}, s[{S_DBG}:{S_DBG+1}] sc1")
    a("s_mov_b64 exec, -1")
    a.label(L_notag)
    srd(a, R_A, S_X, S_X+1, NX)
    a(f"s_lshl_b32 s{sT}, s{sRB}, 5")
    a(f"s_lshl_b32 s{sT2}, s{sW}, 2")
    a(f"s_add_u32 s{sT}, s{sT}, s{sT2}")
    a(f"v_lshrrev_b32 v{vT}, 4, v{vLane}")
    a(f"v_add_u32 v{vT}, s{sT}, v{vT}")
    a(f"v_mul_u32_u24 v{vT}, 1280, v{vT}")
    a(f"v_and_b32 v{vT+1}, 15, v{vLane}")
    a(f"v_lshl_add_u32 v{vT}, v{vT+1}, 4, v{vT}")
    for i in range(5):
        a(f"buffer_load_dwordx4 {vr(X+4*i,4)}, v{vT}, s[{R_A}:{R_A+3}], 0 offen offset:{256*i}")
    a(f"v_lshlrev_b32 v{vX16}, 4, v{vLane}")
    a(f"s_and_b32 s{sRho}, s{sRB}, 7")
    L_nowe = "A_nowe"
    a(f"s_cmp_lt_u32 s{sW}, 5")
    a(f"s_cbranch_scc1 {L_nowe}")
    a(f"s_cmp_ge_u32 s{sCG}, 2")
    a(f"s_cbranch_scc1 {L_nowe}")
    a(f"s_cmp_eq_u32 s{sCG}, 1")
    a(f"s_cselect_b32 s{R_B}, s{S_WV}, s{S_WK}")
    a(f"s_cselect_b32 s{R_B+1}, s{S_WV+1}, s{S_WK+1}")
    a(f"s_mov_b32 s{R_B+2}, {640*20*2}")
    a(f"s_mov_b32 s{R_B+3}, 0x00020000")
    a(f"s_sub_u32 s{sT}, s{sW}, 5")
    a(f"s_mul_i32 s{sStep}, s{sT}, 13")
    a(f"s_min_u32 s{sT}, s{sT}, 1")
    a(f"s_add_u32 s{sStep}, s{sStep}, s{sT}")
    a(f"s_mul_i32 s{sT}, s{sRho}, 5")
    a(f"s_add_u32 s{sT2}, s{sStep}, s{sT}")
    a(f"s_cmp_ge_u32 s{sT2}, 40")
    a(f"s_cselect_b32 s{sT}, 40, 0")
    a(f"s_sub_u32 s{sT2}, s{sT2}, s{sT}")
    a(f"s_mul_i32 s{sSoff}, s{sT2}, 640")
    for i in range(14):
        a(f"s_add_u32 s{sT}, s{sSoff}, 640")
        a(f"buffer_load_dwordx4 {vr(WS_+4*i,4)}, v{vX16}, s[{R_B}:{R_B+3}], s{sSoff} offen")
        a(f"s_cmp_eq_u32 s{sT}, 25600")
        a(f"s_cselect_b32 s{sSoff}, 0, s{sT}")
    a.label(L_nowe)
    a("s_barrier")
    L_nq = "A_nq"
    a(f"s_cmp_ge_u32 s{sW}, 5")
    a(f"s_cbranch_scc1 {L_nq}")
    srd(a, R_B, S_WQ, S_WQ+1, 640*640*2)
    a(f"v_lshrrev_b32 v{vT}, 2, v{vLane}")
    a(f"v_mul_u32_u24 v{vT}, 1280, v{vT}")
    a(f"v_and_b32 v{vT+1}, 3, v{vLane}")
    a(f"v_lshl_add_u32 v{vT}, v{vT+1}, 4, v{vT}")
    a(f"s_mul_i32 s{sT}, s{sCG}, 320")
    a(f"s_lshl_b32 s{sT2}, s{sW}, 6")
    a(f"s_add_u32 s{sT}, s{sT}, s{sT2}")
    a(f"v_add_u32 v{vVo}, s{sT}, v{vT}")
    a(f"s_mul_i32 s{sLds}, s{sW}, {RW}")
    a(f"s_add_u32 s{sLds}, s{sLds}, {RING}")
    a(f"s_mul_i32 s{sSoff}, s{sRho}, {5*20480}")
    def wload(k):
        d = WS_ + 4*(k % DEPTH)
        a(f"s_add_u32 s{sT}, s{sSoff}, 20480")
        a(f"buffer_load_dwordx4 {vr(d,4)}, v{vVo}, s[{R_B}:{R_B+3}], s{sSoff} offen")
        a(f"s_cmp_eq_u32 s{sT}, {40*20480}")
        a(f"s_cselect_b32 s{sSoff}, 0, s{sT}")
    NW0 = OPT.get("NW0", 8)
    for k in range(NW0): wload(k)
    tr_addr(a, vTr, vTr2, 64, 8, 4, sLds, vT)
    a(f"v_add_u32 v{vWst}, s{sLds}, v{vX16}")
    a(f"s_waitcnt vmcnt({NW0})")
    a(f"s_mov_b32 s{sTag}, 0")
    a(f"s_branch A_xok")
    a.label(L_nq)
    a(f"s_waitcnt vmcnt(14)")
    a(f"s_cmp_lt_u32 s{sCG}, 2")
    a(f"s_cbranch_scc1 A_xok2")
    a(f"s_waitcnt vmcnt(0)")
    a.label("A_xok2")
    a(f"v_mov_b32 v{vT}, 0")
    a(f"global_load_dword v{vTag}, v{vT}, s[{S_DBG}:{S_DBG+1}] sc1")
    a.label("A_xok")
    st.mark("xwait")
    a(f"v_mov_b32 v{vOne}, 0x3f803f80")
    a(f"v_mov_b32 v{vSelLo}, 0x00003f80")
    a(f"v_mov_b32 v{vSelHi}, 0x3f800000")
    for i in range(4): a(f"v_mov_b32 v{TMP+i}, 0")
    for i in range(20):
        a(f"v_dot2c_f32_bf16 v{TMP+(i%2)}, v{X+i}, v{vOne}")
        a(f"v_dot2c_f32_bf16 v{TMP+2+(i%2)}, v{X+i}, v{X+i}")
    a(f"v_lshrrev_b32 v{vT}, 4, v{vLane}")
    a(f"s_lshl_b32 s{sT}, s{sW}, 2")
    a(f"v_add_u32 v{vT}, s{sT}, v{vT}")
    a(f"v_and_b32 v{vT+1}, 1, v{vLane}")
    a(f"v_mul_u32_u24 v{vT+1}, {XH}, v{vT+1}")
    a(f"v_lshl_add_u32 v{vT+1}, v{vT}, 4, v{vT+1}")
    a(f"v_add_f32 v{vSum}, v{TMP}, v{TMP+1}")
    a(f"v_add_f32 v{vSq}, v{TMP+2}, v{TMP+3}")
    a(f"v_bfe_u32 v{vT+2}, v{vLane}, 1, 3")
    a(f"s_mul_i32 s{sT}, s{sRho}, 5")
    a(f"s_sub_u32 s{sT}, 40, s{sT}")
    for ror in (8, 4, 2, 1):
        a(f"v_add_f32_dpp v{vSum}, v{vSum}, v{vSum} row_ror:{ror} row_mask:0xf bank_mask:0xf")
        a(f"v_add_f32_dpp v{vSq}, v{vSq}, v{vSq} row_ror:{ror} row_mask:0xf bank_mask:0xf")
        if ror != 1: a.nop(1)
    a(f"v_add_u32 v{vT+2}, s{sT}, v{vT+2}")
    inv = f32bits(1.0/640)
    a(f"v_mul_f32 v{vM}, {inv}, v{vSum}")
    a(f"v_mul_f32 v{TMP+1}, {inv}, v{vSq}")
    a(f"v_fma_f32 v{TMP+1}, -v{vM}, v{vM}, v{TMP+1}")
    a(f"v_max_f32 v{TMP+1}, 0, v{TMP+1}")
    bf16_round(a, TMP+1, TMP+1)
    bf16_round(a, vM, vM)
    a(f"v_add_f32 v{TMP+1}, {f32bits(1e-5)}, v{TMP+1}")
    a(f"v_sub_f32 v{vM}, 0, v{vM}")
    bf16_round(a, TMP+1, TMP+1)
    a(f"v_sqrt_f32 v{vSum}, v{TMP+1}")
    for base in range(0, 20, 8):
        g = min(8, 20-base)
        for i in range(g):
            a(f"v_dot2_f32_bf16 v{TMP+2*i}, v{X+base+i}, v{vSelLo}, v{vM}")
            a(f"v_dot2_f32_bf16 v{TMP+2*i+1}, v{X+base+i}, v{vSelHi}, v{vM}")
        if base == 0:
            bf16_round(a, vSum, vSum)
            a(f"v_rcp_f32 v{vR}, v{vSum}")
        else:
            a.nop(3)
        for i in range(g):
            a(f"v_cvt_pk_bf16_f32 v{X+base+i}, v{TMP+2*i}, v{TMP+2*i+1}")
    a(f"v_lshlrev_b32 v{vT+3}, 2, v{vT}")
    a(f"ds_write_b32 v{vT+3}, v{vR} offset:{RBUF}")
    for i in range(5):
        if i: a(f"v_add_u32 v{vT+2}, 8, v{vT+2}")
        a(f"v_subrev_u32 v{vT+3}, 40, v{vT+2}")
        a(f"v_min_u32 v{vT+3}, v{vT+3}, v{vT+2}")
        a(f"v_mul_u32_u24 v{vT+3}, {XP}, v{vT+3}")
        a(f"v_add_u32 v{vT+3}, v{vT+3}, v{vT+1}")
        a(f"ds_write_b128 v{vT+3}, {vr(X+4*i,4)} offset:{XB}")
    a(f"v_mul_u32_u24 v{vXa}, {XH}, v{vH}")
    a(f"v_lshl_add_u32 v{vXa}, v{vN}, 4, v{vXa}")
    a(f"s_cmp_ge_u32 s{sW}, 5")
    a(f"s_cbranch_scc1 A_ln5")
    for k in range(NW0, 10): wload(k)
    a(f"s_cmp_eq_u32 s{sW}, 4")
    a(f"s_cbranch_scc1 A_lnb")
    for k in range(10, DEPTH): wload(k)
    a(f"s_branch A_lnb")
    a.label("A_ln5")
    a(f"v_mov_b32 v{vT}, {LFL}")
    for i in range(4): a(f"v_mov_b32 v{TMP+i}, 0")
    a(f"ds_write_b128 v{vT}, v[{TMP}:{TMP+3}]")
    a(f"ds_write_b128 v{vT}, v[{TMP}:{TMP+3}] offset:{LFL2-LFL}")
    a("s_waitcnt vmcnt(0)")
    a(f"v_readfirstlane_b32 s{sTag}, v{vTag}")
    a.label("A_lnb")
    a("s_waitcnt lgkmcnt(0)")
    a("s_barrier")
    a(f"v_lshlrev_b32 v{vT}, 2, v{vN}")
    a(f"ds_read_b32 v{vR}, v{vT} offset:{RBUF}")
    st.mark("LN")
    if OPT.get("diag"):
        a(f"s_cmp_lg_u32 s{sW}, 0"); Ld = a.newlabel("dg"); a(f"s_cbranch_scc1 {Ld}"); diag(a, 4, va=62); diag(a, 5, neg=True, va=62); a.label(Ld)
    def ensure_tag(lab):
        a(f"s_cmp_lg_u32 s{sTag}, 0")
        a(f"s_cbranch_scc1 {lab}_have")
        get_tag(a, vT, lab)
        a.label(f"{lab}_have")
    L_kvp, L_exp, L_bar1 = "A_kvp", "A_exp", "A_bar1"
    a(f"s_cmp_ge_u32 s{sW}, 5")
    a(f"s_cbranch_scc1 {L_kvp}")
    a(f"s_cmp_eq_u32 s{sW}, 4")
    a(f"s_cbranch_scc1 A_job4")
    if OPT.get("noq"): a(f"s_branch {L_bar1}")
    def pipe_gemm(nsteps, wr, rd, need_vm, refill, cin0):
        for k in range(5):
            if k < nsteps:
                need_vm(k, -5 + k)
                wr(k)
            if 0 <= k - 2 < nsteps: rd(k - 2)
        for s_ in range(nsteps):
            n_ops = 0
            if s_ + 5 < nsteps:
                need_vm(s_ + 5, s_)
                wr(s_ + 5)
            if s_ + 3 < nsteps: rd(s_ + 3)
            for t in range(s_ + 1, s_ + 4):
                if t + 2 < nsteps: n_ops += 1
                if t < nsteps: n_ops += 3
            a(f"s_waitcnt lgkmcnt({n_ops})")
            f = FB + 8*(s_ % 4)
            cin = cin0 if s_ == 0 else vr(ACC, 16)
            a(f"v_mfma_f32_32x32x16_bf16 {vr(ACC,16)}, {vr(f,4)}, {vr(f+4,4)}, {cin}")
            refill(s_)
    def q_wr(k): a(f"ds_write_b128 v{vWst}, {vr(WS_+4*(k % DEPTH),4)} offset:{(k % NSTG)*1024}")
    def q_rd(k):
        f = FB + 8*(k % 4)
        a(f"ds_read_b64_tr_b16 v[{f}:{f+1}], v{vTr} offset:{(k % NSTG)*1024}")
        a(f"ds_read_b64_tr_b16 v[{f+2}:{f+3}], v{vTr2} offset:{(k % NSTG)*1024}")
        a(f"ds_read_b128 {vr(f+4,4)}, v{vXa} offset:{XB + k*XP}")
    def q_vm(k, s_now):
        issued = DEPTH + max(0, min(s_now, 40 - DEPTH + QOFF) - QOFF) if s_now > 0 else DEPTH
        issued = min(issued, 40)
        a(f"s_waitcnt vmcnt({issued - 1 - k})")
    QOFF = 0
    def q_refill(s_):
        if s_ + DEPTH < 40: wload(s_ + DEPTH)
    pipe_gemm(40, q_wr, q_rd, q_vm, q_refill, "0")
    st.mark("gemm")
    a.nop(12)
    a(f"v_mul_f32 v{vT}, {f32bits(QSCALE)}, v{vR}")
    for j in range(16): a(f"v_mul_f32 v{ACC+j}, v{ACC+j}, v{vT}")
    for k in range(8): a(f"v_cvt_pk_bf16_f32 v{TMP+k}, v{ACC+2*k}, v{ACC+2*k+1}")
    a(f"s_branch {L_bar1}")

    JW = WS_ + 20
    def job_loads():
        srd(a, R_B, S_WQ, S_WQ+1, 640*640*2)
        a(f"v_lshrrev_b32 v{vT}, 2, v{vLane}")
        a(f"v_mul_u32_u24 v{vT}, 1280, v{vT}")
        a(f"v_and_b32 v{vT+1}, 3, v{vLane}")
        a(f"v_lshl_add_u32 v{vT}, v{vT+1}, 4, v{vT}")
        a(f"s_mul_i32 s{sT}, s{sCG}, 320")
        a(f"s_add_u32 s{sT}, s{sT}, 256")
        a(f"v_add_u32 v{vT}, s{sT}, v{vT}")
        a(f"s_sub_u32 s{sT}, s{sW}, 4")
        a(f"s_mul_i32 s{sT}, s{sT}, 10")
        a(f"s_mul_i32 s{sT2}, s{sRho}, 5")
        a(f"s_add_u32 s{sT}, s{sT}, s{sT2}")
        a(f"s_cmp_ge_u32 s{sT}, 40")
        a(f"s_cselect_b32 s{sT2}, 40, 0")
        a(f"s_sub_u32 s{sT}, s{sT}, s{sT2}")
        a(f"s_mul_i32 s{sSoff}, s{sT}, 20480")
        for k in range(10):
            a(f"s_add_u32 s{sT}, s{sSoff}, 20480")
            a(f"buffer_load_dwordx4 {vr(JW+4*k,4)}, v{vT}, s[{R_B}:{R_B+3}], s{sSoff} offen")
            a(f"s_cmp_eq_u32 s{sT}, {40*20480}")
            a(f"s_cselect_b32 s{sSoff}, 0, s{sT}")
    def job_run(raw, vm_after):
        tr_addr(a, vTr, vTr2, 64, 8, 4, sLds, vT)
        a(f"v_add_u32 v{vWst}, s{sLds}, v{vX16}")
        a(f"s_sub_u32 s{sT}, s{sW}, 4")
        a(f"s_mul_i32 s{sT}, s{sT}, {10*XP}")
        a(f"v_add_u32 v{vVo}, s{sT}, v{vXa}")
        def j_wr(k): a(f"ds_write_b128 v{vWst}, {vr(raw+4*k,4)} offset:{(k % NSTG)*1024}")
        def j_rd(k):
            f = FB + 8*(k % 4)
            a(f"ds_read_b64_tr_b16 v[{f}:{f+1}], v{vTr} offset:{(k % NSTG)*1024}")
            a(f"ds_read_b64_tr_b16 v[{f+2}:{f+3}], v{vTr2} offset:{(k % NSTG)*1024}")
            a(f"ds_read_b128 {vr(f+4,4)}, v{vVo} offset:{k*XP}")
        def j_vm(k, s_): a(f"s_waitcnt vmcnt({9 - k + vm_after})")
        pipe_gemm(10, j_wr, j_rd, j_vm, lambda s_: None, "0")
        a("s_waitcnt lgkmcnt(0)")
        a.nop(12)
    def job_publish():
        Lp5, Lpd = a.newlabel("A_jp5"), a.newlabel("A_jpd")
        a(f"s_cmp_eq_u32 s{sW}, 5")
        a(f"s_cbranch_scc1 {Lp5}")
        for q in range(3): a(f"ds_write_b128 v{vWst}, {vr(ACC+4*q,4)} offset:{q*1024}")
        a(f"s_sub_u32 s{sT}, s{sW}, 6")
        a(f"s_lshl_b32 s{sT}, s{sT}, 10")
        a(f"s_add_u32 s{sT}, s{sT}, {T4F}")
        a(f"v_add_u32 v{vT}, s{sT}, v{vX16}")
        a(f"ds_write_b128 v{vT}, {vr(ACC+12,4)}")
        a(f"s_branch {Lpd}")
        a.label(Lp5)
        a(f"v_add_u32 v{vT}, {KVX+4096}, v{vX16}")
        for q in range(4): a(f"ds_write_b128 v{vT}, {vr(ACC+4*q,4)} offset:{q*1024}")
        a.label(Lpd)
        a(f"s_sub_u32 s{sT}, s{sW}, 5")
        a(f"s_lshl_b32 s{sT}, s{sT}, 2")
        a(f"s_add_u32 s{sT}, s{sT}, {LFL2}")
        a(f"v_mov_b32 v{vT}, s{sT}")
        a(f"v_mov_b32 v{vT+1}, 1")
        a(f"ds_write_b32 v{vT}, v{vT+1}")
    a.label("A_job4")
    job_run(WS_, 0)
    a(f"v_mov_b32 v{vT}, {LFL2}")
    a(f"s_mov_b32 s{sT3}, {SPIN_MAX}")
    a.label("A_j4spin")
    a(f"ds_read_b96 v[{vT+2}:{vT+4}], v{vT}")
    a("s_waitcnt lgkmcnt(0)")
    a(f"v_and_b32 v{vT+2}, v{vT+2}, v{vT+3}")
    a(f"v_and_b32 v{vT+2}, v{vT+2}, v{vT+4}")
    a("s_nop 0")
    a(f"v_readfirstlane_b32 s{sT}, v{vT+2}")
    a(f"s_sub_u32 s{sT3}, s{sT3}, 1")
    a(f"s_cmp_eq_u32 s{sT3}, 0")
    a(f"s_cbranch_scc1 A_j4spin_done")
    a(f"s_cmp_eq_u32 s{sT}, 1")
    a(f"s_cbranch_scc0 A_j4spin")
    a.label("A_j4spin_done")
    a(f"v_add_u32 v{vT}, {KVX+4096}, v{vX16}")
    a(f"v_add_u32 v{vT+1}, {KSTG+3072}, v{vX16}")
    a(f"v_add_u32 v{vT+2}, {T4F}, v{vX16}")
    for q in range(4): a(f"ds_read_b128 {vr(64+4*q,4)}, v{vT} offset:{q*1024}")
    for p_ in range(2):
        for q in range(3): a(f"ds_read_b128 {vr(80+16*p_+4*q,4)}, v{vT+1} offset:{p_*3072 + q*1024}")
        a(f"ds_read_b128 {vr(80+16*p_+12,4)}, v{vT+2} offset:{p_*1024}")
    a("s_waitcnt lgkmcnt(0)")
    for j in range(16): a(f"v_add_f32 v{64+j}, v{64+j}, v{80+j}")
    for j in range(16): a(f"v_add_f32 v{ACC+j}, v{ACC+j}, v{96+j}")
    for j in range(16): a(f"v_add_f32 v{ACC+j}, v{ACC+j}, v{64+j}")
    st.mark("job4")
    a(f"v_mul_f32 v{vT}, {f32bits(QSCALE)}, v{vR}")
    for j in range(16): a(f"v_mul_f32 v{ACC+j}, v{ACC+j}, v{vT}")
    for k in range(8): a(f"v_cvt_pk_bf16_f32 v{TMP+k}, v{ACC+2*k}, v{ACC+2*k+1}")
    a(f"s_branch {L_bar1}")
    def export_d():
        a(f"s_mul_i32 s{sT}, s{sCG}, 2")
        a(f"s_add_u32 s{sT}, s{sT}, s{sW}")
        a(f"s_sub_u32 s{sT}, s{sT}, 6")
        a(f"s_sub_u32 s{sT2}, s{sT}, s{sRho}")
        a(f"s_and_b32 s{sT2}, s{sT2}, 7")
        a(f"s_mul_i32 s{sT2}, s{sT2}, {5*XP}")
        a(f"v_add_u32 v{vT}, s{sT2}, v{vXa}")
        for i in range(5):
            a(f"ds_read_b128 {vr(X+4*i,4)}, v{vT} offset:{XB + XP*i}")
        a(f"s_mul_i32 s{sT2}, s{sRB}, 40")
        a(f"s_mul_i32 s{sExp}, s{sT}, 5")
        a(f"s_add_u32 s{sT2}, s{sT2}, s{sExp}")
        a(f"s_lshl_b32 s{sT2}, s{sT2}, 10")
        if WS_XF: a(f"s_add_u32 s{sT2}, s{sT2}, {WS_XF}")
        a(f"s_lshl_b32 s{sFD}, s{sRB}, 3")
        a(f"s_add_u32 s{sFD}, s{sFD}, s{sT}")
        a(f"v_add_u32 v{vT+1}, 4096, v{vX16}")
        a("s_waitcnt lgkmcnt(0)")
        for i in range(4):
            a(f"buffer_store_dwordx4 {vr(X+4*i,4)}, v{vX16}, s[{R_WS}:{R_WS+3}], s{sT2} offen offset:{1024*i} sc1")
        a(f"buffer_store_dwordx4 {vr(X+16,4)}, v{vT+1}, s[{R_WS}:{R_WS+3}], s{sT2} offen sc1")
        L_nor = "A_nor"
        a(f"s_cmp_lg_u32 s{sT}, 0")
        a(f"s_cbranch_scc1 {L_nor}")
        a(f"s_lshl_b32 s{sT2}, s{sRB}, 7")
        a(f"s_add_u32 s{sT2}, s{sT2}, {WS_R}")
        a(f"v_lshlrev_b32 v{vT}, 2, v{vN}")
        a(f"buffer_store_dword v{vR}, v{vT}, s[{R_WS}:{R_WS+3}], s{sT2} offen sc1")
        a.label(L_nor)
    a.label(L_kvp)
    a("s_setprio 3")
    if OPT.get("expfirst", 0):
        a(f"s_cmp_lt_u32 s{sW}, 6")
        a(f"s_cbranch_scc1 A_noexp")
        export_d()
        a.label("A_noexp")
    a(f"s_cmp_ge_u32 s{sCG}, 2")
    a(f"s_cbranch_scc1 A_kvp_skip")
    a(f"s_sub_u32 s{sT}, s{sW}, 5")
    a(f"s_mul_i32 s{sLds}, s{sT}, 3072")
    a(f"s_add_u32 s{sLds}, s{sLds}, {KSTG}")
    tr_addr(a, vTr, vTr2, 40, 8, 4, sLds, vT)
    a(f"v_add_u32 v{vWst}, s{sLds}, v{vX16}")
    a(f"s_mul_i32 s{sT}, s{sStep}, {XP}")
    a(f"v_add_u32 v{vVo}, s{sT}, v{vXa}")
    a(f"v_add_u32 v{vT+4}, {13*XP}, v{vVo}")
    a(f"s_cmp_eq_u32 s{sW}, 5")
    a(f"s_cbranch_scc1 A_kv13")
    for i in range(4): a(f"v_mov_b32 v{WS_+52+i}, 0")
    a(f"v_mov_b32 v{vT+4}, v{vXa}")
    a.label("A_kv13")
    def k_wr(k): a(f"ds_write_b128 v{vWst}, {vr(WS_+4*k,4)} offset:{(k % NSTG)*1024}")
    def k_rd(k):
        f = FB + 8*(k % 4)
        a(f"ds_read_b64_tr_b16 v[{f}:{f+1}], v{vTr} offset:{(k % NSTG)*1024}")
        a(f"ds_read_b64_tr_b16 v[{f+2}:{f+3}], v{vTr2} offset:{(k % NSTG)*1024}")
        if k == 13: a(f"ds_read_b128 {vr(f+4,4)}, v{vT+4}")
        else: a(f"ds_read_b128 {vr(f+4,4)}, v{vVo} offset:{k*XP}")
    pipe_gemm(14, k_wr, k_rd, lambda k, s_: None, lambda s_: None, "0")
    a("s_waitcnt lgkmcnt(0)")
    job_loads()
    a(f"s_cmp_eq_u32 s{sW}, 5")
    a(f"s_cbranch_scc1 A_kv5")
    a(f"s_sub_u32 s{sT}, s{sW}, 6")
    a(f"s_lshl_b32 s{sT}, s{sT}, 12")
    a(f"s_add_u32 s{sT}, s{sT}, {KVX}")
    a(f"v_add_u32 v{vT}, s{sT}, v{vX16}")
    for q in range(4):
        a(f"ds_write_b128 v{vT}, {vr(ACC+4*q,4)} offset:{q*1024}")
    a(f"s_sub_u32 s{sT}, s{sW}, 6")
    a(f"s_lshl_b32 s{sT}, s{sT}, 2")
    a(f"s_add_u32 s{sT}, s{sT}, {LFL}")
    a(f"v_mov_b32 v{vT}, s{sT}")
    a(f"v_mov_b32 v{vT+1}, 1")
    a(f"ds_write_b32 v{vT}, v{vT+1}")
    a(f"s_branch A_kvp_done")
    a.label("A_kv5")
    a(f"v_mov_b32 v{vT}, {LFL}")
    a(f"s_mov_b32 s{sT3}, {SPIN_MAX}")
    a.label("A_kvspin")
    a(f"ds_read_b64 v[{vT+2}:{vT+3}], v{vT}")
    a("s_waitcnt lgkmcnt(0)")
    a(f"v_and_b32 v{vT+2}, v{vT+2}, v{vT+3}")
    a("s_nop 0")
    a(f"v_readfirstlane_b32 s{sT}, v{vT+2}")
    a(f"s_sub_u32 s{sT3}, s{sT3}, 1")
    a(f"s_cmp_eq_u32 s{sT3}, 0")
    a(f"s_cbranch_scc1 A_kvspin_done")
    a(f"s_cmp_eq_u32 s{sT}, 1")
    a(f"s_cbranch_scc0 A_kvspin")
    a.label("A_kvspin_done")
    a(f"v_add_u32 v{vT}, {KVX}, v{vX16}")
    for p_ in range(2):
        for q in range(4):
            a(f"ds_read_b128 {vr(FB+16*p_+4*q,4)}, v{vT} offset:{p_*4096 + q*1024}")
    a("s_waitcnt lgkmcnt(0)")
    for j in range(16):
        a(f"v_add_f32 v{FB+j}, v{FB+j}, v{FB+16+j}")
    for j in range(16):
        a(f"v_add_f32 v{ACC+j}, v{ACC+j}, v{FB+j}")
    for j in range(16): a(f"v_mul_f32 v{ACC+j}, v{ACC+j}, v{vR}")
    a(f"v_cmp_eq_u32 vcc, 1, v{vH}")
    a(f"v_mov_b32 v{vT}, 1.0")
    a(f"v_mov_b32 v{vT+1}, 0")
    a(f"v_cndmask_b32 v{ACC+8}, v{ACC+8}, v{vT}, vcc")
    for j in range(9, 12): a(f"v_cndmask_b32 v{ACC+j}, v{ACC+j}, v{vT+1}, vcc")
    for j in range(12, 16): a(f"v_mov_b32 v{ACC+j}, 0")
    for k in range(8): a(f"v_cvt_pk_bf16_f32 v{TMP+k}, v{ACC+2*k}, v{ACC+2*k+1}")
    a(f"s_mul_i32 s{sT}, s{sRB}, {TS}")
    a(f"s_add_u32 s{sT}, s{sT}, {WS_KV}")
    L_v = "A_v"; L_kvdone = "A_kvdone"
    a(f"s_cmp_eq_u32 s{sCG}, 1")
    a(f"s_cbranch_scc1 {L_v}")
    a(f"buffer_store_dwordx4 {vr(TMP,4)}, v{vX16}, s[{R_WS}:{R_WS+3}], s{sT} offen sc1")
    a(f"v_lshlrev_b32 v{vT}, 3, v{vLane}")
    a(f"s_mov_b32 exec_hi, 0")
    a(f"buffer_store_dwordx2 v[{TMP+4}:{TMP+5}], v{vT}, s[{R_WS}:{R_WS+3}], s{sT} offen offset:1024 sc1")
    a(f"s_mov_b32 exec_hi, -1")
    a(f"s_branch {L_kvdone}")
    a.label(L_v)
    a(f"s_mov_b32 s{sLds}, {KVX}")
    a(f"v_lshlrev_b32 v{vT}, 6, v{vN}")
    a(f"v_lshl_add_u32 v{vT}, v{vH}, 3, v{vT}")
    a(f"v_add_u32 v{vT}, s{sLds}, v{vT}")
    for q in range(4):
        a(f"ds_write_b64 v{vT}, v[{TMP+2*q}:{TMP+2*q+1}] offset:{16*q}")
    tr_addr(a, vTr, None, 64, 4, 8, sLds, vT+1)
    for u in range(2):
        a(f"ds_read_b64_tr_b16 v[{TMP+8+4*u}:{TMP+9+4*u}], v{vTr} offset:{u*1024}")
        a(f"ds_read_b64_tr_b16 v[{TMP+10+4*u}:{TMP+11+4*u}], v{vTr} offset:{u*1024 + 512}")
    a(f"v_mul_u32_u24 v{vT}, 336, v{vH}")
    a(f"v_lshl_add_u32 v{vT}, v{vN}, 4, v{vT}")
    a(f"s_mov_b32 exec_lo, 0x1fffff")
    a(f"s_mov_b32 exec_hi, 0x1fffff")
    a("s_waitcnt lgkmcnt(0)")
    a(f"buffer_store_dwordx4 {vr(TMP+8,4)}, v{vT}, s[{R_WS}:{R_WS+3}], s{sT} offen offset:1280 sc1")
    a(f"buffer_store_dwordx4 {vr(TMP+12,4)}, v{vT}, s[{R_WS}:{R_WS+3}], s{sT} offen offset:1952 sc1")
    a(f"s_mov_b64 exec, -1")
    a.label(L_kvdone)
    ensure_tag("A5")
    a("s_waitcnt vmcnt(0)")
    st.mark("k5:drain")
    a(f"s_lshl_b32 s{sT}, s{sRB}, 1")
    a(f"s_add_u32 s{sT}, s{sT}, s{sCG}")
    set_flag(a, vT, sT, FL_KV)
    a(f"s_mov_b32 s{sLds}, {KSTG}")
    job_run(JW, 1)
    job_publish()
    a(f"s_branch {L_bar1}")
    a.label("A_kvp_skip")
    job_loads()
    a(f"s_cmp_lg_u32 s{sW}, 5")
    a(f"s_cbranch_scc1 A_kvp_done")
    a(f"s_mov_b32 s{sLds}, {KSTG}")
    job_run(JW, 0)
    job_publish()
    a(f"s_branch {L_bar1}")
    a.label("A_kvp_done")
    if not OPT.get("expfirst", 0): export_d()
    ensure_tag("A6")
    a(f"s_waitcnt vmcnt({10 if OPT.get('expfirst', 0) else 0})")
    st.mark("x:drain")
    set_flag(a, vT, sFD, FL_D)
    a(f"s_sub_u32 s{sT}, s{sW}, 5")
    a(f"s_mul_i32 s{sLds}, s{sT}, 3072")
    a(f"s_add_u32 s{sLds}, s{sLds}, {KSTG}")
    job_run(JW, 1)
    job_publish()
    a.label(L_bar1)
    a("s_waitcnt vmcnt(0)")
    a.label("A_bar1_nowait")
    a("s_setprio 0")
    a("s_waitcnt lgkmcnt(0)")
    a("s_barrier")
    st.mark("bar0")
    vA16 = vX16
    aK1, aK2, aV, nK1, nK2, nV = 64, 65, 66, 67, 68, 69
    bK2, bV = 70, 71
    CN = 80
    S = [16, 32]
    O = 48
    P = 96
    Q1, Q2 = 104, 108
    K1, K2 = 112, 116
    V1, V2 = 120, 124
    vM2 = 110
    sSoffK, sLdsW, sSlot, sCk = 58, 59, 60, 61
    vFl, vFlo = 72, 73
    srd(a, R_A, S_WS, S_WS+1, KVB, WS_KV)
    a(f"s_lshl_b32 s{sLdsW}, s{sW}, 10")
    a(f"v_lshlrev_b32 v{bK2}, 3, v{vN}")
    a(f"v_add_u32 v{bK2}, 1024, v{bK2}")
    a(f"v_min_u32 v{bV}, 20, v{vN}")
    a(f"v_lshlrev_b32 v{bV}, 4, v{bV}")
    a(f"v_mul_u32_u24 v{vT}, 336, v{vH}")
    a(f"v_add3_u32 v{bV}, v{bV}, v{vT}, 0")
    a(f"v_add_u32 v{bV}, 1280, v{bV}")
    def dma_chunk(slot_s):
        a(f"s_add_u32 s{sT}, s{slot_s}, s{sLdsW}")
        a(f"s_add_u32 s{sT2}, s{sSoffK}, s{sLdsW}")
        a(f"s_mov_b32 m0, s{sT}")
        a(f"s_add_u32 s{sT}, s{sT}, 8192")
        a(f"buffer_load_dwordx4 v{vA16}, s[{R_A}:{R_A+3}], s{sT2} offen sc1 lds")
        a(f"s_mov_b32 m0, s{sT}")
        a(f"s_add_u32 s{sT2}, s{sT2}, 8192")
        a(f"buffer_load_dwordx4 v{vA16}, s[{R_A}:{R_A+3}], s{sT2} offen sc1 lds")
        Ls = a.newlabel("A_d3")
        a(f"s_cmp_ge_u32 s{sW}, 5")
        a(f"s_cbranch_scc1 {Ls}")
        a(f"s_add_u32 m0, s{sT}, 8192")
        a(f"s_add_u32 s{sT2}, s{sT2}, 8192")
        a(f"buffer_load_dwordx4 v{vA16}, s[{R_A}:{R_A+3}], s{sT2} offen sc1 lds")
        a.label(Ls)
        a(f"s_add_u32 s{sSoffK}, s{sSoffK}, {CH}")
        a(f"s_cmp_eq_u32 s{sSoffK}, {8*CH}")
        a(f"s_cselect_b32 s{sSoffK}, 0, s{sSoffK}")
        a(f"s_add_u32 s{sCk}, s{sCk}, 1")
        a(f"s_and_b32 s{sCk}, s{sCk}, 7")
    L_noqw = "A_noqw"
    a(f"v_mul_u32_u24 v{vT}, {QP}, v{vN}")
    a(f"v_add_u32 v{vT}, {QBUF}, v{vT}")
    a(f"s_cmp_ge_u32 s{sW}, 5")
    a(f"s_cbranch_scc1 {L_noqw}")
    a(f"s_lshl_b32 s{sT}, s{sW}, 6")
    a(f"v_lshl_add_u32 v{vT+1}, v{vH}, 3, v{vT}")
    a(f"v_add_u32 v{vT+1}, s{sT}, v{vT+1}")
    for q in range(4):
        a(f"ds_write_b64 v{vT+1}, v[{TMP+2*q}:{TMP+2*q+1}] offset:{16*q}")
    a.label(L_noqw)
    a("s_waitcnt lgkmcnt(0)")
    a("s_barrier")
    a(f"s_mul_i32 s{sT}, s{sW}, 40")
    a(f"v_add_u32 v{vT}, s{sT}, v{vT}")
    a(f"v_lshl_add_u32 v{vT+1}, v{vH}, 3, v{vT}")
    a(f"ds_read_b64 v[{Q1}:{Q1+1}], v{vT+1}")
    a(f"ds_read_b64 v[{Q1+2}:{Q1+3}], v{vT+1} offset:16")
    a(f"ds_read_b64 v[{Q2}:{Q2+1}], v{vT} offset:32")
    a(f"v_mov_b32 v{aK1}, v{vA16}")
    a(f"v_mov_b32 v{aK2}, v{bK2}")
    a(f"v_mov_b32 v{aV}, v{bV}")
    a(f"v_add_u32 v{nK1}, {CH}, v{vA16}")
    a(f"v_add_u32 v{nK2}, {CH}, v{bK2}")
    a(f"v_add_u32 v{nV}, {CH}, v{bV}")
    for i in range(16): a(f"v_mov_b32 v{O+i}, 0")
    a(f"v_cmp_eq_u32 vcc, 1, v{vH}")
    a(f"v_mov_b32 v{vT}, 0")
    a("s_waitcnt lgkmcnt(0)")
    a(f"v_cndmask_b32 v{Q2}, v{Q2}, v{vT}, vcc")
    a(f"v_cndmask_b32 v{Q2+1}, v{Q2+1}, v{vT}, vcc")
    a(f"s_lshr_b32 s{sCk}, s{sRB}, 3")
    a(f"s_mul_i32 s{sSoffK}, s{sCk}, {CH}")
    def check_chunk(lab):
        a(f"s_cmp_lg_u32 s{sW}, 7")
        a(f"s_cbranch_scc1 {lab}_skip")
        a(f"s_lshl_b32 s{sT}, s{sCk}, 4")
        poll_flags(a, vT+2, lab, sT, 16, FL_KV, sleep=OPT.get("kvsleep", 1))
        a.label(f"{lab}_skip")
    check_chunk("A7a")
    a("s_barrier")
    st.mark("bar1")
    if OPT.get("diag"):
        a(f"s_cmp_lg_u32 s{sW}, 0"); Ld = a.newlabel("dg"); a(f"s_cbranch_scc1 {Ld}"); diag(a, 6); diag(a, 7, neg=True); a.label(Ld)
    a(f"s_mov_b32 s{sSlot}, 0")
    dma_chunk(sSlot)
    a(f"v_min_u32 v{vFlo}, 15, v{vLane}")
    a(f"v_lshlrev_b32 v{vFlo}, 7, v{vFlo}")
    def rd(dst, n, t, off, cur, nxt, op):
        v_ = cur if t < 8 else nxt
        a(f"{op} {vr(dst,n)}, v{v_} offset:{(t % 8)*TS + off}")
    def rd_K1(t): rd(K1, 4, t, 0, aK1, nK1, "ds_read_b128")
    def rd_K2(t): rd(K2, 2, t, 0, aK2, nK2, "ds_read_b64")
    def rd_V1(t): rd(V1, 4, t, 0, aV, nV, "ds_read_b128")
    def rd_V2(t): rd(V2, 4, t, 672, aV, nV, "ds_read_b128")
    def qk1(dst, c="0"): a(f"v_mfma_f32_32x32x16_bf16 {vr(dst,16)}, {vr(K1,4)}, {vr(Q1,4)}, {c}")
    def qk2(dst): a(f"v_mfma_f32_32x32x8_bf16 {vr(dst,16)}, {vr(K2,2)}, {vr(Q2,2)}, {vr(dst,16)}")
    CNR = vr(CN, 16)
    a("s_waitcnt vmcnt(0)")
    a("s_barrier")
    rd_K1(0); rd_K2(0)
    def set_m(delta):
        a(f"v_mov_b32 v{vT}, v{vM2}")
        a.nop(2)
        a(f"v_permlane32_swap_b32 v{vM2}, v{vT}")
        a.nop(1)
        a(f"v_max_f32 v{vM2}, v{vM2}, v{vT}")
        if delta: a(f"v_add_f32 v{vM2}, {f32bits(delta)}, v{vM2}")
        for i in range(16): a(f"v_sub_f32 v{CN+i}, 0, v{vM2}")
    a(f"v_mov_b32 v{vM2}, 0xff800000")
    a("s_waitcnt lgkmcnt(0)")
    qk1(S[0]); qk2(S[0])
    rd_K1(1); rd_K2(1)
    a("s_waitcnt lgkmcnt(0)")
    qk1(S[1]); qk2(S[1])
    rd_K1(0); rd_K2(0)
    for i in range(4, 8): a(f"v_mov_b32 v{P+i}, 0")
    for i in range(4): a(f"v_mov_b32 v{V2+i}, 0")
    a.nop(4)
    for i in range(8):
        a(f"v_max3_f32 v{vM2}, v{S[0]+2*i}, v{S[0]+2*i+1}, v{vM2}")
    a.nop(4)
    for i in range(8):
        a(f"v_max3_f32 v{vM2}, v{S[1]+2*i}, v{S[1]+2*i+1}, v{vM2}")
    set_m(DELTA)
    a("s_waitcnt lgkmcnt(0)")
    a.nop(1)
    qk1(S[0], CNR); qk2(S[0])
    rd_K1(1); rd_K2(1); rd_V1(0)
    check_chunk("A7b")
    a("s_barrier")
    a(f"s_mov_b32 s{sSlot}, {CH}")
    dma_chunk(sSlot)
    a(f"s_mov_b32 s{sSlot}, {2*CH}")
    a.nop(8)
    st.mark("sample")
    a(f"s_setprio {OPT.get('aprio', 0)}")
    a(f"s_mov_b32 s{sIt}, 0")
    L_loop = "A_loop"
    a(".p2align 6")
    a.label(L_loop)
    def e(cur, i): a(f"v_exp_f32 v{cur+i}, v{cur+i}")
    def p(cur, k): a(f"v_cvt_pk_bf16_f32 v{P+k}, v{cur+2*k}, v{cur+2*k+1}")
    for t in range(8):
        cur, nxt = S[t % 2], S[(t+1) % 2]
        if t == 0:
            a(f"s_cmp_lg_u32 s{sW}, 7")
            a(f"s_cbranch_scc1 A_nf0")
            a(f"s_lshl_b32 s{sT}, s{sCk}, 11")
            a(f"s_add_u32 s{sT}, s{sT}, {FL_KV*128}")
            a(f"buffer_load_dword v{vFl}, v{vFlo}, s[{R_FL}:{R_FL+3}], s{sT} offen sc1")
            a.label("A_nf0")
        if t == 6:
            a("s_waitcnt vmcnt(0)")
            a(f"s_cmp_lg_u32 s{sW}, 7")
            a(f"s_cbranch_scc1 A_nf6")
            a(f"v_cmp_ne_u32 vcc, s{sTag}, v{vFl}")
            a("s_nop 1")
            a(f"s_cmp_eq_u64 vcc, 0")
            a(f"s_cbranch_scc1 A_nf6")
            a(f"s_lshl_b32 s{sT}, s{sCk}, 4")
            poll_flags(a, vT+2, "A7c", sT, 16, FL_KV, sleep=1)
            a.label("A_nf6")
            a("s_barrier")
            dma_chunk(sSlot)
            a(f"s_add_u32 s{sSlot}, s{sSlot}, {CH}")
            a(f"s_cmp_eq_u32 s{sSlot}, {3*CH}")
            a(f"s_cselect_b32 s{sSlot}, 0, s{sSlot}")
        e(cur, 0); e(cur, 1)
        a("s_waitcnt lgkmcnt(2)")
        a(f"v_mfma_f32_32x32x16_bf16 {vr(O,16)}, {vr(V2,4)}, {vr(P+4,4)}, {vr(O,16)}")
        rd_V2(t)
        e(cur, 2); e(cur, 3); p(cur, 0); p(cur, 1)
        qk1(nxt, CNR)
        rd_K1(t+2)
        e(cur, 4); e(cur, 5); e(cur, 6); e(cur, 7); p(cur, 2); p(cur, 3)
        a("s_waitcnt lgkmcnt(2)")
        qk2(nxt)
        rd_K2(t+2)
        e(cur, 8); e(cur, 9); e(cur, 10); e(cur, 11); p(cur, 4); p(cur, 5)
        a(f"v_mfma_f32_32x32x16_bf16 {vr(O,16)}, {vr(V1,4)}, {vr(P,4)}, {vr(O,16)}")
        rd_V1(t+1)
        e(cur, 12); e(cur, 13); e(cur, 14); e(cur, 15); p(cur, 6); p(cur, 7)
    a(f"v_mov_b32 v{aK1}, v{nK1}")
    a(f"v_mov_b32 v{aK2}, v{nK2}")
    a(f"v_mov_b32 v{aV}, v{nV}")
    a(f"s_add_u32 s{sT}, s{sSlot}, {2*CH}")
    a(f"s_cmp_ge_u32 s{sT}, {3*CH}")
    a(f"s_cselect_b32 s{sT2}, {3*CH}, 0")
    a(f"s_sub_u32 s{sT}, s{sT}, s{sT2}")
    a(f"v_add_u32 v{nK1}, s{sT}, v{vA16}")
    a(f"v_add_u32 v{nK2}, s{sT}, v{bK2}")
    a(f"v_add_u32 v{nV}, s{sT}, v{bV}")
    a(f"s_add_u32 s{sIt}, s{sIt}, 1")
    a(f"s_cmp_lt_u32 s{sIt}, 8")
    a(f"s_cbranch_scc1 {L_loop}")
    a("s_waitcnt lgkmcnt(0)")
    a(f"v_mfma_f32_32x32x16_bf16 {vr(O,16)}, {vr(V2,4)}, {vr(P+4,4)}, {vr(O,16)}")
    a("s_setprio 0")
    st.mark("loop")
    if OPT.get("diag"):
        a(f"s_cmp_lg_u32 s{sW}, 0"); Ld = a.newlabel("dg"); a(f"s_cbranch_scc1 {Ld}"); diag(a, 8); diag(a, 9, neg=True); a.label(Ld)
    a.nop(16)
    L_fin, L_slow = "A_fin", "A_slow"
    a(f"s_mov_b32 s{sIt}, 0")
    a.label(L_fin)
    a(f"v_mov_b32 v{vT}, v{O+8}")
    a(f"v_mov_b32 v{vT+1}, v{O+8}")
    a.nop(2)
    a(f"v_permlane32_swap_b32 v{vT}, v{vT+1}")
    a(f"v_max3_f32 v{vT+2}, |v{O}|, |v{O+1}|, |v{O+2}|")
    for j in range(3, 12, 2):
        j2 = min(j+1, 11)
        a(f"v_max3_f32 v{vT+2}, |v{O+j}|, |v{O+j2}|, v{vT+2}")
    a(f"v_mov_b32 v{vT+3}, {f32bits(2.0**120)}")
    a(f"v_cmp_nlt_f32 vcc, v{vT+2}, v{vT+3}")
    a(f"v_cmp_nlt_f32 s[62:63], 0, v{vT+1}")
    a.nop(1)
    a(f"s_or_b64 vcc, vcc, s[62:63]")
    a(f"s_cmp_eq_u64 vcc, 0")
    a(f"s_cbranch_scc1 A_store")
    a(f"s_cmp_lg_u32 s{sIt}, 0")
    a(f"s_cbranch_scc1 A_store")
    a(f"s_branch {L_slow}")
    a.label("A_store")
    a(f"v_rcp_f32 v{vT+2}, v{vT+1}")
    a.nop(1)
    for j in range(12): a(f"v_mul_f32 v{O+j}, v{O+j}, v{vT+2}")
    for k in range(6): a(f"v_cvt_pk_bf16_f32 v{P+k}, v{O+2*k}, v{O+2*k+1}")
    a(f"s_lshl_b32 s{sT}, s{sCG}, 3")
    a(f"s_add_u32 s{sT}, s{sT}, s{sW}")
    a(f"s_mul_i32 s{sT}, s{sT}, 20")
    a(f"s_mul_i32 s{sT2}, s{sRB}, {40*1024}")
    a(f"s_add_u32 s{sT2}, s{sT2}, {WS_OF}")
    def oaddr(dst, colv):
        a(f"v_lshrrev_b32 v{dst}, 4, v{colv}")
        a(f"v_lshlrev_b32 v{dst}, 10, v{dst}")
        a(f"v_bfe_u32 v{vT+7}, v{colv}, 3, 1")
        a(f"v_lshl_add_u32 v{dst}, v{vT+7}, 9, v{dst}")
        a(f"v_and_b32 v{vT+7}, 7, v{colv}")
        a(f"v_lshl_add_u32 v{dst}, v{vT+7}, 1, v{dst}")
        a(f"v_lshl_add_u32 v{dst}, v{vN}, 4, v{dst}")
    a(f"v_lshlrev_b32 v{vT+3}, 2, v{vH}")
    a(f"v_add_u32 v{vT+3}, s{sT}, v{vT+3}")
    oaddr(vT+4, vT+3)
    a(f"buffer_store_dwordx2 v[{P}:{P+1}], v{vT+4}, s[{R_WS}:{R_WS+3}], s{sT2} offen sc1")
    a(f"v_add_u32 v{vT+3}, 8, v{vT+3}")
    oaddr(vT+5, vT+3)
    a(f"buffer_store_dwordx2 v[{P+2}:{P+3}], v{vT+5}, s[{R_WS}:{R_WS+3}], s{sT2} offen sc1")
    a(f"s_add_u32 s{sT}, s{sT}, 16")
    a(f"v_mov_b32 v{vT+3}, s{sT}")
    oaddr(vT+6, vT+3)
    a(f"v_cmp_eq_u32 vcc, 0, v{vH}")
    a(f"s_and_saveexec_b64 s[62:63], vcc")
    a(f"buffer_store_dwordx2 v[{P+4}:{P+5}], v{vT+6}, s[{R_WS}:{R_WS+3}], s{sT2} offen sc1")
    a(f"s_mov_b64 exec, s[62:63]")
    a(f"s_cmp_lg_u32 s{sTag}, 0")
    a(f"s_cbranch_scc1 A_ohave")
    get_tag(a, vT, "A8")
    a.label("A_ohave")
    a("s_waitcnt vmcnt(0)")
    a(f"s_lshl_b32 s{sT}, s{sRB}, 2")
    a(f"s_add_u32 s{sT}, s{sT}, s{sCG}")
    a(f"s_lshl_b32 s{sT}, s{sT}, 3")
    a(f"s_add_u32 s{sT}, s{sT}, s{sW}")
    set_flag(a, vT, sT, FL_O)
    st.end()
    a("s_endpgm")
    a.label(L_slow)
    a(f"v_mov_b32 v{vM2}, 0xff800000")
    a(f"s_mov_b32 s{sSoffK}, 0")
    a.label("A_slow1")
    a(f"buffer_load_dwordx4 {vr(K1,4)}, v{vA16}, s[{R_A}:{R_A+3}], s{sSoffK} offen sc1")
    a(f"buffer_load_dwordx2 {vr(K2,2)}, v{bK2}, s[{R_A}:{R_A+3}], s{sSoffK} offen sc1")
    a("s_waitcnt vmcnt(0)")
    qk1(S[0]); qk2(S[0])
    a.nop(16)
    for i in range(8):
        a(f"v_max3_f32 v{vM2}, v{S[0]+2*i}, v{S[0]+2*i+1}, v{vM2}")
    a(f"s_add_u32 s{sSoffK}, s{sSoffK}, {TS}")
    a(f"s_cmp_lt_u32 s{sSoffK}, {KVB}")
    a(f"s_cbranch_scc1 A_slow1")
    set_m(0.0)
    for i in range(16): a(f"v_mov_b32 v{O+i}, 0")
    a(f"s_mov_b32 s{sSoffK}, 0")
    a.label("A_slow2")
    a(f"buffer_load_dwordx4 {vr(K1,4)}, v{vA16}, s[{R_A}:{R_A+3}], s{sSoffK} offen sc1")
    a(f"buffer_load_dwordx2 {vr(K2,2)}, v{bK2}, s[{R_A}:{R_A+3}], s{sSoffK} offen sc1")
    a(f"buffer_load_dwordx4 {vr(V1,4)}, v{bV}, s[{R_A}:{R_A+3}], s{sSoffK} offen sc1")
    a(f"buffer_load_dwordx4 {vr(V2,4)}, v{bV}, s[{R_A}:{R_A+3}], s{sSoffK} offen offset:672 sc1")
    a("s_waitcnt vmcnt(0)")
    qk1(S[0], CNR); qk2(S[0])
    a.nop(16)
    for i in range(16): e(S[0], i)
    a.nop(1)
    for k in range(8): p(S[0], k)
    a.nop(2)
    a(f"v_mfma_f32_32x32x16_bf16 {vr(O,16)}, {vr(V1,4)}, {vr(P,4)}, {vr(O,16)}")
    a(f"v_mfma_f32_32x32x16_bf16 {vr(O,16)}, {vr(V2,4)}, {vr(P+4,4)}, {vr(O,16)}")
    a(f"s_add_u32 s{sSoffK}, s{sSoffK}, {TS}")
    a(f"s_cmp_lt_u32 s{sSoffK}, {KVB}")
    a(f"s_cbranch_scc1 A_slow2")
    a.nop(16)
    a(f"s_mov_b32 s{sIt}, 1")
    a(f"s_branch {L_fin}")

def role_B1(a):
    st = Stamps(a, "B1")
    st.start()
    if OPT.get("bprio"): a(f"s_setprio {OPT['bprio']}")
    sG, sC = sRB, sCG
    sSoffW, sSoffX, sLdsW, sKH, sXb = 57, 58, 59, 60, 99
    vT = 4; vW = 10; vTr, vX16, vR = 13, 14, 15
    XS = 16; WF = 48; ACC = 76
    SLOT = 24576
    a(f"s_sub_u32 s{sT2}, s2, 256")
    a(f"s_bfe_u32 s{sG}, s{sT2}, 0x20001")
    a(f"s_lshl_b32 s{sG}, s{sG}, 2")
    a(f"s_bfe_u32 s{sT}, s{sT2}, 0x20003")
    a(f"s_add_u32 s{sG}, s{sG}, s{sT}")
    a(f"s_and_b32 s{sC}, s{sT2}, 1")
    a(f"s_lshl_b32 s{sC}, s{sC}, 3")
    a(f"s_lshr_b32 s{sT}, s{sT2}, 5")
    a(f"s_add_u32 s{sC}, s{sC}, s{sT}")
    a(f"s_lshr_b32 s{sKH}, s{sW}, 2")
    a(f"v_lshlrev_b32 v{vX16}, 4, v{vLane}")
    a(f"s_and_b32 s{sT}, s{sW}, 3")
    a(f"s_mul_i32 s{sT}, s{sT}, 192")
    a(f"s_mul_i32 s{sT2}, s{sC}, 192")
    a(f"s_mul_i32 s{sT3}, s{sKH}, {320*3072}")
    a(f"s_add_u32 s{sT2}, s{sT2}, s{sT3}")
    for i in range(3):
        a(f"v_add_u32 v{vT}, s{sT}, v{vLane}")
        if i: a(f"v_add_u32 v{vT}, {64*i}, v{vT}")
        a(f"v_mul_u32_u24 v{vT+1}, 5462, v{vT}")
        a(f"v_lshrrev_b32 v{vT+1}, 16, v{vT+1}")
        a(f"v_mul_u32_u24 v{vT+2}, 12, v{vT+1}")
        a(f"v_sub_u32 v{vT}, v{vT}, v{vT+2}")
        a(f"v_lshlrev_b32 v{vT}, 4, v{vT}")
        a(f"v_mul_u32_u24 v{vT+1}, 3072, v{vT+1}")
        a(f"v_add3_u32 v{vW+i}, v{vT}, v{vT+1}, s{sT2}")
        if i: a(f"v_subrev_u32 v{vW+i}, {1024*i}, v{vW+i}")
    a(f"s_mul_i32 s{sT}, s{sKH}, 12288")
    tr_addr(a, vTr, None, 192, 8, 4, sT, vT)
    a(f"s_mul_i32 s{sLdsW}, s{sW}, 3072")
    srd(a, R_A, S_W1, S_W1+1, 640*1536*2)
    srd(a, R_B, S_B1, S_B1+1, 1536*2)
    a(f"s_mul_hi_u32 s{sT}, s{sC}, {(1<<32)//5 + 1}")
    a(f"s_mul_i32 s{sT}, s{sT}, 5")
    a(f"s_sub_u32 s{sT}, s{sC}, s{sT}")
    a(f"s_mul_i32 s{sSoffW}, s{sT}, {64*3072}")
    a(f"s_lshl_b32 s{sSoffX}, s{sT}, 12")
    a(f"s_and_b32 s{sT}, s{sW}, 3")
    a(f"s_lshl_b32 s{sT2}, s{sG}, 2")
    a(f"s_add_u32 s{sT}, s{sT}, s{sT2}")
    a(f"s_mul_i32 s{sXb}, s{sT}, {40*1024}")
    a(f"s_mul_i32 s{sT2}, s{sKH}, {20*1024}")
    a(f"s_add_u32 s{sXb}, s{sXb}, s{sT2}")
    if WS_XF: a(f"s_add_u32 s{sXb}, s{sXb}, {WS_XF}")
    def issueW(c):
        a(f"s_add_u32 m0, s{sLdsW}, {(c%3)*SLOT}")
        a(f"s_add_u32 s{sT}, s{sSoffW}, {64*3072}")
        for i in range(3):
            a(f"buffer_load_dwordx4 v{vW+i}, s[{R_A}:{R_A+3}], s{sSoffW} offen offset:{1024*i} lds")
        a(f"s_cmp_eq_u32 s{sT}, {320*3072}")
        a(f"s_cselect_b32 s{sSoffW}, 0, s{sT}")
    def issueX(c):
        xs = XS + 16*(c % 2)
        a(f"s_add_u32 s{sT2}, s{sXb}, s{sSoffX}")
        a(f"s_add_u32 s{sT}, s{sSoffX}, 4096")
        for i in range(4):
            a(f"buffer_load_dwordx4 {vr(xs+4*i,4)}, v{vX16}, s[{R_WS}:{R_WS+3}], s{sT2} offen offset:{1024*i} sc1")
        a(f"s_cmp_eq_u32 s{sT}, 20480")
        a(f"s_cselect_b32 s{sSoffX}, 0, s{sT}")
    a(f"s_cmp_lg_u32 s{sW}, 0")
    a(f"s_cbranch_scc1 B1_pre")
    get_tag(a, vT, "B1")
    a(f"s_lshl_b32 s{sT}, s{sG}, 5")
    if OPT.get("wftries", 1): poll_flags(a, vT, "B1p", sT, 32, FL_D, tries=OPT.get("wftries", 1))
    a.label("B1_pre")
    a("s_barrier")
    st.mark("prepoll")
    sJ = 96
    a(f"s_sub_u32 s{sJ}, s2, 256")
    srd(a, R_C, S_W2, S_W2+1, 1536*640*2)
    vF = 16
    a(f"v_lshrrev_b32 v32, 2, v{vLane}")
    a(f"v_mul_u32_u24 v32, 1280, v32")
    a(f"v_and_b32 v33, 3, v{vLane}")
    a(f"v_lshl_add_u32 v32, v33, 4, v32")
    a(f"s_lshl_b32 s{sT}, s{sW}, 11")
    a(f"v_add_u32 v33, s{sT}, v{vX16}")
    tr_addr(a, 34, None, 64, 4, 8, sT, vT)
    tr_addr(a, 35, None, 64, 8, 4, sT, vT)
    sDst = [92, 93]; sStp = [94, 95]
    for rnd in range(2):
        Lskip = f"B1_wf{rnd}_skip"
        a(f"s_mov_b32 s{sStp[rnd]}, -1")
        if rnd == 1:
            a(f"s_cmp_ge_u32 s{sW}, 3")
            a(f"s_cbranch_scc1 {Lskip}")
        a(f"s_and_b32 s{sT}, s{sJ}, 63")
        a(f"s_mul_i32 s{sT}, s{sT}, 11")
        a(f"s_add_u32 s{sT}, s{sT}, s{sW}")
        if rnd: a(f"s_add_u32 s{sT}, s{sT}, 8")
        a(f"s_cmp_ge_u32 s{sT}, 680")
        a(f"s_cbranch_scc1 {Lskip}")
        a(f"s_mul_hi_u32 s{sT2}, s{sT}, {(1<<32)//136 + 1}")
        a(f"s_mul_i32 s{sT3}, s{sT2}, 136")
        a(f"s_sub_u32 s{sT}, s{sT}, s{sT3}")
        a(f"s_mov_b32 s{sStp[rnd]}, s{sT}")
        a(f"s_lshr_b32 s{sT3}, s{sJ}, 6")
        a(f"s_mul_i32 s{sT3}, s{sT3}, 5")
        a(f"s_add_u32 s{sT2}, s{sT2}, s{sT3}")
        a(f"s_mul_i32 s62, s{sT2}, 136")
        a(f"s_add_u32 s62, s62, s{sT}")
        a(f"s_lshl_b32 s62, s62, 10")
        a(f"s_add_u32 s{sDst[rnd]}, s62, {WS_WF}")
        a(f"s_lshl_b32 s{sT2}, s{sT2}, 6")
        a(f"s_cmp_lt_u32 s{sT}, 96")
        a(f"s_cselect_b32 s{R_C}, s{S_W2}, s{S_WO}")
        a(f"s_cselect_b32 s{R_C+1}, s{S_W2+1}, s{S_WO+1}")
        a(f"s_cselect_b32 s63, 0, 96")
        a(f"s_mov_b32 s{R_C+2}, {640*640*2}")
        a(f"s_cbranch_scc0 B1_wf{rnd}_a")
        a(f"s_mov_b32 s{R_C+2}, {1536*640*2}")
        a.label(f"B1_wf{rnd}_a")
        a(f"s_sub_u32 s{sT3}, s{sT}, s63")
        a(f"s_mul_i32 s{sT3}, s{sT3}, {16*1280}")
        a(f"s_add_u32 s{sT3}, s{sT3}, s{sT2}")
        a(f"buffer_load_dwordx4 v[{16+4*rnd}:{19+4*rnd}], v32, s[{R_C}:{R_C+3}], s{sT3} offen")
        a.label(Lskip)
    a("s_waitcnt vmcnt(0)")
    for rnd in range(2):
        Lskip = f"B1_wg{rnd}_skip"
        a(f"s_cmp_eq_u32 s{sStp[rnd]}, -1")
        a(f"s_cbranch_scc1 {Lskip}")
        a(f"ds_write_b128 v33, v[{16+4*rnd}:{19+4*rnd}] offset:{1024*rnd}")
        a(f"s_cmp_lt_u32 s{sStp[rnd]}, 96")
        a(f"s_cbranch_scc0 B1_wf{rnd}_n")
        a(f"ds_read_b64_tr_b16 v[{24+4*rnd}:{25+4*rnd}], v34 offset:{1024*rnd}")
        a(f"ds_read_b64_tr_b16 v[{26+4*rnd}:{27+4*rnd}], v34 offset:{1024*rnd+512}")
        a(f"s_branch B1_wf{rnd}_s")
        a.label(f"B1_wf{rnd}_n")
        a(f"ds_read_b64_tr_b16 v[{24+4*rnd}:{25+4*rnd}], v35 offset:{1024*rnd}")
        a(f"ds_read_b64_tr_b16 v[{26+4*rnd}:{27+4*rnd}], v35 offset:{1024*rnd+256}")
        a.label(f"B1_wf{rnd}_s")
        a("s_waitcnt lgkmcnt(0)")
        a(f"buffer_store_dwordx4 v[{24+4*rnd}:{27+4*rnd}], v{vX16}, s[{R_WS}:{R_WS+3}], s{sDst[rnd]} offen sc1")
        a.label(Lskip)
    st.mark("wfprep")
    L_np = "B1_np"
    a(f"s_cmp_lg_u32 s{sW}, 0")
    a(f"s_cbranch_scc1 {L_np}")
    a(f"s_lshl_b32 s{sT}, s{sG}, 5")
    poll_flags(a, vT, "B1", sT, 32, FL_D)
    if OPT.get("b1kv"): poll_flags(a, vT, "B1k", None, 128, FL_KV)
    a.label(L_np)
    a("s_barrier")
    st.mark("wait_d")
    issued = []
    def iX(c): issueX(c); issued.extend([("X", c)]*4)
    def iW(c): issueW(c); issued.extend([("W", c)]*3)
    if OPT.get("b1shallow", 1):
        iW(0); iX(0)
    else:
        iW(0); iX(0)
        a("s_barrier")
        iW(1); iX(1)
        a("s_barrier")
        iW(2)
    def wreads(c, k, buf):
        base = (c % 3)*SLOT + k*16*192
        for ct in range(3):
            a(f"ds_read_b64_tr_b16 v[{WF+12*buf+4*ct}:{WF+12*buf+4*ct+1}], v{vTr} offset:{base + ct*64}")
            a(f"ds_read_b64_tr_b16 v[{WF+12*buf+4*ct+2}:{WF+12*buf+4*ct+3}], v{vTr} offset:{base + ct*64 + 4*192}")
    for c in range(5):
        last = max(i for i, e_ in enumerate(issued) if e_ in (("W", c), ("X", c)))
        a(f"s_waitcnt vmcnt({len(issued) - 1 - last})")
        a("s_barrier")
        if c == 0:
            st.mark("b0")
            a(f"s_cmp_lg_u32 s{sW}, 0")
            a(f"s_cbranch_scc1 B1_nofw")
            set_flag(a, vT, sJ, FL_W)
            a.label("B1_nofw")
        if OPT.get("b1shallow", 1):
            if c + 1 < 5: iW(c + 1); iX(c + 1)
        elif 1 <= c <= 2: iW(c + 2)
        xs = XS + 16*(c % 2)
        wreads(c, 0, 0)
        for k in range(4):
            buf = k % 2
            if k < 3:
                wreads(c, k + 1, 1 - buf)
                a("s_waitcnt lgkmcnt(6)")
            else:
                a("s_waitcnt lgkmcnt(0)")
            for ct in range(3):
                cin = "0" if (c == 0 and k == 0) else vr(ACC+16*ct,16)
                a(f"v_mfma_f32_32x32x16_bf16 {vr(ACC+16*ct,16)}, {vr(WF+12*buf+4*ct,4)}, {vr(xs+4*k,4)}, {cin}")
        if c + 2 < 5 and not OPT.get("b1shallow", 1): iX(c + 2)
    st.mark("kloop")
    a("s_setprio 3")
    a(f"s_and_b32 s{sT}, s{sW}, 3")
    a(f"s_lshl_b32 s{sT2}, s{sG}, 2")
    a(f"s_add_u32 s{sT}, s{sT}, s{sT2}")
    a(f"s_lshl_b32 s{sT2}, s{sT}, 7")
    a(f"s_add_u32 s{sT2}, s{sT2}, {WS_R}")
    a(f"v_lshlrev_b32 v{vT}, 2, v{vN}")
    a(f"buffer_load_dword v{vR}, v{vT}, s[{R_WS}:{R_WS+3}], s{sT2} offen sc1")
    a(f"s_mul_i32 s{sT2}, s{sC}, 192")
    a(f"s_lshl_b32 s{sT3}, s{sKH}, 5")
    a(f"s_add_u32 s{sT2}, s{sT2}, s{sT3}")
    a(f"v_lshlrev_b32 v{vT}, 3, v{vH}")
    B = XS
    for ct in range(3):
        for q in range(2):
            a(f"buffer_load_dwordx2 v[{B+4*ct+2*q}:{B+4*ct+2*q+1}], v{vT}, s[{R_B}:{R_B+3}], s{sT2} offen offset:{64*ct+16*q}")
    a(f"s_mul_i32 s{sT}, s{sT}, 96")
    a(f"s_mul_i32 s{sT2}, s{sC}, 6")
    a(f"s_add_u32 s{sT}, s{sT}, s{sT2}")
    a(f"s_add_u32 s{sT}, s{sT}, s{sKH}")
    a(f"s_lshl_b32 s{sXb}, s{sT}, 10")
    a(f"s_add_u32 s{sXb}, s{sXb}, {WS_H}")
    a("s_barrier")
    a.nop(4)
    T = XS + 16
    a(f"s_mul_i32 s{sT}, s{sW}, 6144")
    a(f"v_add_u32 v{vT+1}, s{sT}, v{vX16}")
    a(f"s_xor_b32 s{sT}, s{sW}, 4")
    a(f"s_mul_i32 s{sT}, s{sT}, 6144")
    a(f"v_add_u32 v{vT+2}, s{sT}, v{vX16}")
    a(f"s_cmp_eq_u32 s{sKH}, 1")
    a(f"s_cbranch_scc1 B1_x1")
    for ct in range(3):
        for q in range(2):
            a(f"ds_write_b128 v{vT+1}, {vr(ACC+16*ct+8+4*q,4)} offset:{(2*ct+q)*1024}")
    a(f"s_branch B1_x2")
    a.label("B1_x1")
    for ct in range(3):
        for q in range(2):
            a(f"ds_write_b128 v{vT+1}, {vr(ACC+16*ct+4*q,4)} offset:{(2*ct+q)*1024}")
    a.label("B1_x2")
    a("s_waitcnt lgkmcnt(0)")
    a("s_barrier")
    for i in range(6):
        a(f"ds_read_b128 {vr(T+4*i,4)}, v{vT+2} offset:{i*1024}")
    a("s_waitcnt lgkmcnt(0) vmcnt(0)")
    a(f"s_cmp_eq_u32 s{sKH}, 1")
    a(f"s_cbranch_scc1 B1_y1")
    for ct in range(3):
        for j in range(8): a(f"v_add_f32 v{T+8*ct+j}, v{T+8*ct+j}, v{ACC+16*ct+j}")
    a(f"s_branch B1_y2")
    a.label("B1_y1")
    for ct in range(3):
        for j in range(8): a(f"v_add_f32 v{T+8*ct+j}, v{T+8*ct+j}, v{ACC+16*ct+8+j}")
    a.label("B1_y2")
    TB = 56
    for ct in range(3):
        for q in range(2):
            b0 = B+4*ct+2*q
            acc = T+8*ct+4*q
            a(f"v_lshlrev_b32 v{TB}, 16, v{b0}")
            a(f"v_and_b32 v{TB+1}, 0xffff0000, v{b0}")
            a(f"v_lshlrev_b32 v{TB+2}, 16, v{b0+1}")
            a(f"v_and_b32 v{TB+3}, 0xffff0000, v{b0+1}")
            for j in range(4): a(f"v_fma_f32 v{acc+j}, v{acc+j}, v{vR}, v{TB+j}")
            for j in range(4): a(f"v_max_f32 v{acc+j}, 0, v{acc+j}")
            for j in range(4): a(f"v_mul_f32 v{acc+j}, v{acc+j}, v{acc+j}")
        for k in range(4):
            a(f"v_cvt_pk_bf16_f32 v{60+4*ct+k}, v{T+8*ct+2*k}, v{T+8*ct+2*k+1}")
    a(f"v_add_u32 v{vT}, 4096, v{vX16}")
    a(f"buffer_store_dwordx4 {vr(60,4)}, v{vX16}, s[{R_WS}:{R_WS+3}], s{sXb} offen sc1")
    a(f"buffer_store_dwordx4 {vr(64,4)}, v{vX16}, s[{R_WS}:{R_WS+3}], s{sXb} offen offset:2048 sc1")
    a(f"buffer_store_dwordx4 {vr(68,4)}, v{vT}, s[{R_WS}:{R_WS+3}], s{sXb} offen sc1")
    a("s_waitcnt vmcnt(0)")
    a("s_barrier")
    L_nf = "B1_nf"
    a(f"s_cmp_lg_u32 s{sW}, 0")
    a(f"s_cbranch_scc1 {L_nf}")
    a(f"s_lshl_b32 s{sT}, s{sG}, 4")
    a(f"s_add_u32 s{sT}, s{sT}, s{sC}")
    set_flag(a, vT, sT, FL_H)
    a.label(L_nf)
    st.mark("epi")
    st.end()
    a("s_endpgm")

def role_B2(a):
    st = Stamps(a, "B2")
    st.start()
    if OPT.get("bprio"): a(f"s_setprio {OPT['bprio']}")
    sSoffW, sSoffX, sWb, sIt, sRho, sWrapW, sRst = 57, 58, 59, 60, 61, 98, 99
    vT = 4
    vX16, vXa = 14, 15
    ACC = 16
    XR = 48
    WB = 64
    vOut = vT+3
    NXS = 8
    a(f"s_sub_u32 s{sT2}, s2, 512")
    a(f"s_bfe_u32 s{sRB}, s{sT2}, 0x20001")
    a(f"s_lshl_b32 s{sRB}, s{sRB}, 4")
    a(f"s_bfe_u32 s{sT}, s{sT2}, 0x40003")
    a(f"s_add_u32 s{sRB}, s{sRB}, s{sT}")
    a(f"s_and_b32 s{sCG}, s{sT2}, 1")
    a(f"s_lshl_b32 s{sCG}, s{sCG}, 1")
    a(f"s_lshr_b32 s{sT}, s{sT2}, 7")
    a(f"s_add_u32 s{sCG}, s{sCG}, s{sT}")
    a(f"v_lshlrev_b32 v{vX16}, 4, v{vLane}")
    a(f"s_and_b32 s{sRho}, s{sRB}, 7")
    a(f"s_min_u32 s{sT3}, s{sW}, 4")
    a(f"s_mul_i32 s{sT}, s{sCG}, 5")
    a(f"s_add_u32 s{sT}, s{sT}, s{sT3}")
    a(f"s_mul_i32 s{sWb}, s{sT}, {136*1024}")
    a(f"s_add_u32 s{sWb}, s{sWb}, {WS_WF}")
    a(f"s_lshl_b32 s{sT}, s{sT}, 6")
    srd(a, R_C, S_X, S_X+1, NX)
    a(f"s_lshl_b32 s{sT2}, s{sRB}, 5")
    a(f"v_add_u32 v{vT}, s{sT2}, v{vN}")
    a(f"v_mul_u32_u24 v{vT}, 1280, v{vT}")
    a(f"v_lshl_add_u32 v{vT}, v{vH}, 3, v{vT}")
    a(f"v_add_u32 v{vOut}, s{sT}, v{vT}")
    for q in range(4):
        a(f"buffer_load_dwordx2 v[{XR+2*q}:{XR+2*q+1}], v{vOut}, s[{R_C}:{R_C+3}], 0 offen offset:{16*q}")
    srd(a, R_C, S_B2, S_B2+1, 640*2)
    a(f"v_lshlrev_b32 v{vT}, 3, v{vH}")
    for q in range(4):
        a(f"buffer_load_dwordx2 v[{XR+8+2*q}:{XR+8+2*q+1}], v{vT}, s[{R_C}:{R_C+3}], s{sT} offen offset:{16*q}")
    for i in range(16): a(f"v_mov_b32 v{ACC+i}, 0")
    def unpack_add(q, dst):
        for (src, t) in ((XR+2*q, 32), (XR+8+2*q, 36)):
            a(f"v_lshlrev_b32 v{t}, 16, v{src}")
            a(f"v_and_b32 v{t+1}, 0xffff0000, v{src}")
            a(f"v_lshlrev_b32 v{t+2}, 16, v{src+1}")
            a(f"v_and_b32 v{t+3}, 0xffff0000, v{src+1}")
        for j in range(4): a(f"v_add_f32 v{32+j}, v{32+j}, v{36+j}")
        for j in range(4): a(f"v_add_f32 v{dst+j}, v{dst+j}, v{32+j}")
    L_side = "B2_side"
    a(f"s_cmp_ge_u32 s{sW}, 4")
    a(f"s_cbranch_scc1 {L_side}")
    a("s_barrier")
    a(f"s_lshl_b32 s{sSoffW}, s{sRho}, 13")
    a(f"s_mov_b32 s{sWrapW}, {96*1024}")
    a(f"s_mov_b32 s{sRst}, 0")
    def wload(r):
        a(f"s_add_u32 s{sT2}, s{sWb}, s{sSoffW}")
        a(f"s_add_u32 s{sT}, s{sSoffW}, 1024")
        a(f"buffer_load_dwordx4 {vr(r,4)}, v{vX16}, s[{R_WS}:{R_WS+3}], s{sT2} offen sc1")
        a(f"s_cmp_eq_u32 s{sT}, s{sWrapW}")
        a(f"s_cselect_b32 s{sSoffW}, s{sRst}, s{sT}")
    for k in range(16): wload(WB + 4*k)
    st.mark("setup")
    a(f"s_mov_b32 s{sIt}, 0")
    L1 = "B2_p1"
    a.label(L1)
    XBUF = 32
    for j in range(16):
        k = j % 8
        if k == 0:
            a("s_barrier")
            a(f"s_lshl_b32 s{sT}, s{sIt}, 1")
            if j: a(f"s_add_u32 s{sT}, s{sT}, 1")
            a(f"s_and_b32 s{sT}, s{sT}, {NXS-1}")
            a(f"s_lshl_b32 s{sT}, s{sT}, 13")
            a(f"v_add_u32 v{vXa}, s{sT}, v{vX16}")
            for i in range(3):
                a(f"ds_read_b128 {vr(XBUF+4*i,4)}, v{vXa} offset:{i*1024}")
        if j == 0:
            L1n = "B2_p1n"
            a(f"s_cmp_lg_u32 s{sIt}, 5")
            a(f"s_cbranch_scc1 {L1n}")
            a(f"s_mul_i32 s{sSoffW}, s{sRho}, {5*1024}")
            a(f"s_add_u32 s{sSoffW}, s{sSoffW}, {96*1024}")
            a(f"s_mov_b32 s{sWrapW}, {136*1024}")
            a(f"s_mov_b32 s{sRst}, {96*1024}")
            a.label(L1n)
        if k + 3 < 8:
            a(f"ds_read_b128 {vr(XBUF+4*((k+3)%4),4)}, v{vXa} offset:{(k+3)*1024}")
            a("s_waitcnt vmcnt(15) lgkmcnt(3)")
        else:
            a(f"s_waitcnt vmcnt(15) lgkmcnt({7-k})")
        a(f"v_mfma_f32_32x32x16_bf16 {vr(ACC,16)}, {vr(WB+4*j,4)}, {vr(XBUF+4*(k%4),4)}, {vr(ACC,16)}")
        wload(WB + 4*j)
    a(f"s_add_u32 s{sIt}, s{sIt}, 1")
    a(f"s_cmp_lt_u32 s{sIt}, 6")
    a(f"s_cbranch_scc1 {L1}")
    st.mark("ffn2")
    a.nop(12)
    for q in range(4): unpack_add(q, ACC+4*q)
    XBUF = XR
    NBLK = 20
    def blk(s_):
        b = s_ % NBLK
        return (WB + 4*b) if b < 16 else (32 + 4*(b-16))
    for s_ in range(16, 20): wload(blk(s_))
    a("s_barrier")
    a(f"s_branch B2_oload")
    a.label(L_side)
    a(f"s_cmp_lt_u32 s{sW}, 6")
    a(f"s_cbranch_scc1 B2_np0")
    get_tag(a, vT, "B2")
    a(f"s_cmp_eq_u32 s{sW}, 7")
    a(f"s_cbranch_scc1 B2_ph")
    a(f"s_lshl_b32 s{sT}, s{sCG}, 6")
    poll_flags(a, vT, "B2w", sT, 64, FL_W)
    a(f"s_branch B2_np0")
    a.label("B2_ph")
    a(f"s_lshr_b32 s{sT}, s{sRB}, 2")
    a(f"s_lshl_b32 s{sT}, s{sT}, 4")
    poll_flags(a, vT, "B2h", sT, 16, FL_H)
    a.label("B2_np0")
    a("s_barrier")
    a(f"s_sub_u32 s{sT3}, s{sW}, 4")
    a("s_waitcnt vmcnt(0)")
    for jj in range(1, 4):
        Ls = a.newlabel("B2_q")
        a(f"s_cmp_lg_u32 s{sT3}, {jj}")
        a(f"s_cbranch_scc1 {Ls}")
        a(f"v_mov_b32 v{XR}, v{XR+2*jj}")
        a(f"v_mov_b32 v{XR+1}, v{XR+2*jj+1}")
        a(f"v_mov_b32 v{XR+8}, v{XR+8+2*jj}")
        a(f"v_mov_b32 v{XR+9}, v{XR+8+2*jj+1}")
        a.label(Ls)
    for j in range(4): a(f"v_mov_b32 v{40+j}, 0")
    unpack_add(0, 40)
    a(f"s_lshl_b32 s{sRst}, s{sT3}, 11")
    a(f"s_lshl_b32 s{sSoffW}, s{sRho}, 13")
    a(f"s_add_u32 s{sSoffW}, s{sSoffW}, s{sRst}")
    a(f"s_add_u32 s{sWrapW}, s{sRst}, {96*1024}")
    SD = 4
    def wpair(slot):
        a(f"s_add_u32 s{sT2}, s{sWb}, s{sSoffW}")
        a(f"s_add_u32 s{sT}, s{sSoffW}, 8192")
        a(f"buffer_load_dwordx4 {vr(WB+8*slot,4)}, v{vX16}, s[{R_WS}:{R_WS+3}], s{sT2} offen sc1")
        a(f"buffer_load_dwordx4 {vr(WB+8*slot+4,4)}, v{vX16}, s[{R_WS}:{R_WS+3}], s{sT2} offen offset:1024 sc1")
        a(f"s_cmp_eq_u32 s{sT}, s{sWrapW}")
        a(f"s_cselect_b32 s{sSoffW}, s{sRst}, s{sT}")
    for c in range(SD): wpair(c)
    a(f"s_sub_u32 s{sT3}, s{sW}, 4")
    a(f"s_mul_i32 s{sT}, s{sRB}, {96*1024}")
    a(f"s_add_u32 s63, s{sT}, {WS_H}")
    a(f"s_lshl_b32 s97, s{sT3}, 11")
    a(f"s_add_u32 s63, s63, s97")
    a(f"s_lshl_b32 s{sSoffX}, s{sRho}, 13")
    a(f"v_add_u32 v{vT+5}, s97, v{vX16}")
    vXs = vT+5
    vm = Cnt(a, "vmcnt", 63)
    def xdma(c):
        a(f"s_add_u32 m0, s97, {(c % NXS)*8192}")
        a(f"s_add_u32 s{sT2}, s63, s{sSoffX}")
        a(f"s_add_u32 s{sT}, s{sSoffX}, 8192")
        for i in range(2):
            a(f"buffer_load_dwordx4 v{vX16}, s[{R_WS}:{R_WS+3}], s{sT2} offen offset:{1024*i} sc1 lds")
        a(f"s_cmp_eq_u32 s{sT}, {96*1024}")
        a(f"s_cselect_b32 s{sSoffX}, 0, s{sT}")
        vm.issue(("X", c), 2)
    for c in range(SD): vm.issue(("W", c), 2)
    XD = 6
    for c in range(XD): xdma(c)
    for c in range(12):
        vm.need(("X", c), ("W", c))
        a("s_barrier")
        if c + XD < 12: xdma(c + XD)
        for i in range(2):
            a(f"ds_read_b128 {vr(48+4*i,4)}, v{vXs} offset:{(c % NXS)*8192 + 1024*i}")
        a("s_waitcnt lgkmcnt(1)")
        a(f"v_mfma_f32_32x32x16_bf16 {vr(ACC,16)}, {vr(WB+8*(c%4),4)}, {vr(48,4)}, {vr(ACC,16)}")
        a("s_waitcnt lgkmcnt(0)")
        a(f"v_mfma_f32_32x32x16_bf16 {vr(ACC,16)}, {vr(WB+8*(c%4)+4,4)}, {vr(52,4)}, {vr(ACC,16)}")
        if c + SD < 12: wpair(c % 4); vm.issue(("W", c + SD), 2)
    a(f"s_sub_u32 s{sT3}, s{sW}, 4")
    a(f"s_lshl_b32 s{sT3}, s{sT3}, 1")
    a(f"s_mul_i32 s62, s{sRho}, 5")
    a(f"s_add_u32 s62, s62, s{sT3}")
    for m in range(5):
        for i in range(2):
            a(f"s_add_u32 s{sT}, s62, {8*m+i}")
            a(f"s_cmp_ge_u32 s{sT}, 40")
            a(f"s_cselect_b32 s{sT2}, 40, 0")
            a(f"s_sub_u32 s{sT}, s{sT}, s{sT2}")
            a(f"s_add_u32 s{sT}, s{sT}, 96")
            a(f"s_lshl_b32 s{sT}, s{sT}, 10")
            a(f"s_add_u32 s{sT}, s{sT}, s{sWb}")
            a(f"buffer_load_dwordx4 {vr(WB+4*(2*m+i),4)}, v{vX16}, s[{R_WS}:{R_WS+3}], s{sT} offen sc1")
    Lnp2 = "B2_np2"
    a(f"s_cmp_lg_u32 s{sW}, 7")
    a(f"s_cbranch_scc1 {Lnp2}")
    a(f"s_lshl_b32 s{sT}, s{sRB}, 5")
    poll_flags(a, vT, "B2o", sT, 32, FL_O, sleep=OPT.get("osleep", 2))
    a.label(Lnp2)
    st.mark("wait_o")
    a("s_barrier")
    a.label("B2_oload")
    a(f"s_mul_i32 s63, s{sRB}, {40*1024}")
    a(f"s_add_u32 s63, s63, {WS_OF}")
    a(f"s_mul_i32 s62, s{sRho}, 5")
    for i in range(5):
        a(f"s_mul_i32 s{sT}, s{sW}, 5")
        a(f"s_add_u32 s{sT}, s{sT}, {i}")
        a(f"s_add_u32 s{sT2}, s{sT}, s62")
        a(f"s_cmp_ge_u32 s{sT2}, 40")
        a(f"s_cselect_b32 s{sIt}, 40, 0")
        a(f"s_sub_u32 s{sT2}, s{sT2}, s{sIt}")
        a(f"s_lshl_b32 s{sT2}, s{sT2}, 10")
        a(f"s_add_u32 s{sT2}, s{sT2}, s63")
        a(f"s_lshl_b32 m0, s{sT}, 10")
        a("s_nop 0")
        a(f"buffer_load_dwordx4 v{vX16}, s[{R_WS}:{R_WS+3}], s{sT2} offen sc1 lds")
    a("s_waitcnt vmcnt(0)")
    a("s_barrier")
    st.mark("oload")
    a(f"s_cmp_ge_u32 s{sW}, 4")
    a(f"s_cbranch_scc1 B2_side2")
    vm = Cnt(a, "vmcnt", 63); lg = Cnt(a, "lgkmcnt", 15)
    def xread(s_):
        r = XBUF + 4*(s_ % 4)
        a(f"ds_read_b128 {vr(r,4)}, v{vX16} offset:{s_*1024}")
        lg.issue(("X", s_))
    for s_ in range(3): xread(s_)
    for s_ in range(40):
        if s_ + 3 < 40: xread(s_ + 3)
        vm.need(("W", s_))
        lg.need(("X", s_))
        a(f"v_mfma_f32_32x32x16_bf16 {vr(ACC,16)}, {vr(blk(s_),4)}, {vr(XBUF+4*(s_%4),4)}, {vr(ACC,16)}")
        if s_ + NBLK < 40:
            wload(blk(s_)); vm.issue(("W", s_ + NBLK))
    st.mark("wo")
    if OPT.get("diag"):
        a(f"s_cmp_lg_u32 s{sW}, 0"); Ld = a.newlabel("dg"); a(f"s_cbranch_scc1 {Ld}"); diag(a, 10); diag(a, 11, neg=True); a.label(Ld)
    a("s_setprio 3")
    a("s_barrier")
    a.nop(10)
    srd(a, R_C, S_OUT, S_OUT+1, NX)
    for q in range(4):
        a(f"v_cvt_pk_bf16_f32 v{32+2*q}, v{ACC+4*q}, v{ACC+4*q+1}")
        a(f"v_cvt_pk_bf16_f32 v{33+2*q}, v{ACC+4*q+2}, v{ACC+4*q+3}")
        a(f"buffer_store_dwordx2 v[{32+2*q}:{33+2*q}], v{vOut}, s[{R_C}:{R_C+3}], 0 offen offset:{16*q}")
    a("s_barrier")
    if OPT.get("diag"):
        a("s_waitcnt vmcnt(0)")
        a(f"s_cmp_lg_u32 s{sW}, 0"); Ld = a.newlabel("dg"); a(f"s_cbranch_scc1 {Ld}"); diag(a, 12); a.label(Ld)
    st.end()
    a("s_endpgm")
    a.label("B2_side2")
    for k in range(4):
        a(f"ds_read_b128 {vr(48+4*k,4)}, v{vXs} offset:{(8*(k//2)+(k%2))*1024}")
    for k in range(10):
        a(f"s_waitcnt lgkmcnt({min(3, 9-k)})")
        a(f"v_mfma_f32_32x32x16_bf16 {vr(ACC,16)}, {vr(WB+4*k,4)}, {vr(48+4*(k%4),4)}, {vr(ACC,16)}")
        if k + 4 < 10:
            a(f"ds_read_b128 {vr(48+4*(k%4),4)}, v{vXs} offset:{(8*((k+4)//2)+((k+4)%2))*1024}")
    a("s_setprio 3")
    a("s_barrier")
    a.nop(12)
    a(f"s_sub_u32 s{sT3}, s{sW}, 4")
    a(f"s_lshl_b32 s{sT}, s{sT3}, 12")
    a(f"v_add_u32 v{vT}, s{sT}, v{vX16}")
    for q in range(4):
        a(f"ds_write_b128 v{vT}, {vr(ACC+4*q,4)} offset:{q*1024}")
    a("s_waitcnt lgkmcnt(0)")
    a("s_barrier")
    a(f"s_lshl_b32 s{sT}, s{sT3}, 10")
    a(f"v_add_u32 v{vT}, s{sT}, v{vX16}")
    for jj in range(4):
        a(f"ds_read_b128 {vr(ACC+4*jj,4)}, v{vT} offset:{jj*4096}")
    a(f"s_lshl_b32 s{sT}, s{sT3}, 4")
    a(f"v_add_u32 v{vOut}, s{sT}, v{vOut}")
    srd(a, R_C, S_OUT, S_OUT+1, NX)
    a("s_waitcnt lgkmcnt(0)")
    for j in range(4):
        a(f"v_add_f32 v{ACC+j}, v{ACC+j}, v{ACC+4+j}")
        a(f"v_add_f32 v{ACC+8+j}, v{ACC+8+j}, v{ACC+12+j}")
    for j in range(4): a(f"v_add_f32 v{ACC+j}, v{ACC+j}, v{40+j}")
    for j in range(4): a(f"v_add_f32 v{ACC+j}, v{ACC+j}, v{ACC+8+j}")
    a(f"v_cvt_pk_bf16_f32 v32, v{ACC}, v{ACC+1}")
    a(f"v_cvt_pk_bf16_f32 v33, v{ACC+2}, v{ACC+3}")
    a(f"buffer_store_dwordx2 v[32:33], v{vOut}, s[{R_WS if False else R_C}:{R_C+3}], 0 offen")
    st.end()
    a("s_endpgm")

def gen():
    a = Asm()
    a("s_cmp_ge_u32 s2, 768")
    a("s_cbranch_scc1 K_end")
    a("s_load_dwordx16 s[4:19], s[0:1], 0")
    a("s_load_dwordx8 s[20:27], s[0:1], 64")
    a("s_load_dwordx2 s[28:29], s[0:1], 96")
    a(f"v_and_b32 v{vLane}, 63, v0")
    a(f"v_lshrrev_b32 v4, 6, v0")
    a(f"v_lshrrev_b32 v{vH}, 5, v{vLane}")
    a(f"v_readfirstlane_b32 s{sW}, v4")
    a(f"v_and_b32 v{vN}, 31, v{vLane}")
    a("s_waitcnt lgkmcnt(0)")
    srd(a, R_WS, S_WS, S_WS+1, WS_END)
    srd(a, R_FL, S_WS, S_WS+1, FL_SIZE, WS_FL)
    for r in (R_A, R_B, R_C): srd(a, r, S_WS, S_WS+1, WS_END)
    for i in range(4, 16): a(f"v_mov_b32 v{i}, 0")
    if OPT.get("tlb", 0):
        a(f"s_cmp_lg_u32 s{sW}, 4")
        a(f"s_cbranch_scc1 K_notlb")
        a(f"v_lshlrev_b32 v5, 18, v{vLane}")
        a(f"buffer_load_dword v0, v5, s[{R_WS}:{R_WS+3}], 0 offen")
        a(f"v_lshlrev_b32 v5, 16, v{vLane}")
        for ptr in (S_W1, S_W2, S_WO, S_OUT, S_WQ):
            a(f"global_load_dword v0, v5, s[{ptr}:{ptr+1}]") if False else None
        a.label("K_notlb")
    if OPT.get("diag"):
        a(f"s_cmp_lg_u32 s{sW}, 0")
        a("s_cbranch_scc1 K_nod")
        a("s_cmp_ge_u32 s2, 256")
        a("s_cbranch_scc1 K_nod")
        diag(a, 2)
        a.label("K_nod")
    a("s_cmp_ge_u32 s2, 512")
    a("s_cbranch_scc1 ROLE_B2")
    a("s_cmp_ge_u32 s2, 256")
    a("s_cbranch_scc1 ROLE_B1")
    role_A(a)
    a.label("ROLE_B1")
    role_B1(a)
    a.label("ROLE_B2")
    role_B2(a)
    a.label("K_end")
    a("s_endpgm")
    grid = OPT.get("grid", 768)
    s = f"; generated by gen2.py\n; @launch grid=({grid},1,1) block=(512,1,1) lds={LDS_BYTES}\n"
    s += '.amdgcn_target "amdgcn-amd-amdhsa--gfx950"\n.text\n'
    s += kernel_header(KN) + a.text()
    s += '.section .rodata,"a"\n.p2align 6\n' + kernel_desc(KN, 128, 102)
    return s

if __name__ == "__main__":
    if "--prof" in sys.argv: PROF = True
    for x in sys.argv:
        if x.startswith("-D"):
            k, _, v = x[2:].partition("="); OPT[k] = int(v) if v else 1
    open(sys.argv[1], "w").write(gen())
    if PROF: json.dump(STAMP_NAMES, open("stamps8.json", "w"))
```

```python
import sys, math, json
from asmlib import *

NAME = "parallel_sum__grouped_kv_mqa__dense_activation_squared_relu__prompt"
KN = NAME + "_kernel"
WS_XF = 0x0
WS_R  = 0x280000
WS_KV = 0x290000
WS_OF = 0x2D0000
WS_H  = 0x550000
WS_FL = 0xB50000
WS_WF = 0xBC0000
WS_END = 0xE70000
WS_DBG = 0x2000000
FL_KV, FL_D, FL_H, FL_W, FL_O = 0, 128, 640, 896, 1152
FL_N = 3200
FL_SIZE = FL_N * 128
NX = 2048 * 640 * 2
TS = 2688
VF = 704; VH = 352
KVB = 64 * TS
CH = 8 * TS
QSCALE = (20 ** -0.5) * math.log2(math.e)
DELTA = 96.0
LDS_BYTES = 81920
PROF = False
OPT = {}
SPIN_MAX = 200000

S_X, S_WQ, S_WK, S_WV, S_WO, S_W1, S_B1, S_W2, S_B2, S_OUT, S_DBG, S_WS = 4, 6, 8, 10, 12, 16, 18, 20, 22, 24, 26, 28
sW = 30
sTag = 31
R_WS = 32
R_FL = 36
R_A = 40
R_B = 44
R_C = 48
sRB, sCG, sT, sT2, sT3 = 52, 53, 54, 55, 56
vLane, vH, vN = 1, 2, 3

def diag(a, word, neg=False, va=74):
    if not OPT.get("diag") or neg: return
    L = a.newlabel("dgx")
    a(f"s_and_b32 s86, s2, 255")
    a(f"s_cmp_lg_u32 s86, {OPT.get('diagwg', 37)}")
    a(f"s_cbranch_scc1 {L}")
    a("s_memrealtime s[84:85]")
    a("s_waitcnt lgkmcnt(0)")
    a("s_mov_b64 s[86:87], exec")
    a("s_mov_b64 exec, 1")
    a(f"v_mov_b32 v{va}, s84")
    a(f"v_mov_b32 v{va+1}, {4*word}")
    a(f"global_store_dword v{va+1}, v{va}, s[{S_DBG}:{S_DBG+1}]")
    a("s_mov_b64 exec, s[86:87]")
    a.label(L)

class Stamps:
    def __init__(self, a, role): self.a = a; self.n = 1; self.names = []; self.role = role
    def start(self):
        if not PROF: return
        for i in range(68, 94): self.a(f"s_mov_b32 s{i}, 0")
        self.a("s_memrealtime s[64:65]"); self.a("s_memtime s[66:67]"); self.a("s_waitcnt lgkmcnt(0)"); self.n = 2
    def mark(self, name):
        if not PROF: return
        assert self.n < 15
        self.a(f"s_memtime s[{64+2*self.n}:{65+2*self.n}]"); self.a("s_waitcnt lgkmcnt(0)")
        self.n += 1; self.names.append(name)
    def end(self):
        if not PROF: return
        a = self.a
        a("s_waitcnt vmcnt(0)")
        self.mark("final-drain")
        a("s_memrealtime s[94:95]"); a("s_waitcnt lgkmcnt(0)")
        a("s_mov_b64 exec, 1")
        a(f"s_lshl_b32 s98, s2, 3")
        a(f"s_add_u32 s98, s98, s{sW}")
        a(f"s_lshl_b32 s98, s98, 6")
        a(f"s_add_u32 s98, s98, {WS_DBG}")
        a(f"s_add_u32 s96, s{S_WS}, s98")
        a(f"s_addc_u32 s97, s{S_WS+1}, 0")
        a(f"v_mov_b32 v0, 0")
        for i in list(range(14)) + [15]:
            a(f"v_mov_b32 v1, s{64+2*i}")
            a(f"global_store_dword v0, v1, s[96:97] offset:{4*i}")
        a(f"v_mov_b32 v1, {self.n}")
        a(f"global_store_dword v0, v1, s[96:97] offset:56")
        a("s_waitcnt vmcnt(0)")
        STAMP_NAMES[self.role] = self.names
STAMP_NAMES = {}

def bf16_round(a, dst, src):
    a(f"v_cvt_pk_bf16_f32 v{dst}, v{src}, v{src}")
    a(f"v_lshlrev_b32 v{dst}, 16, v{dst}")

def decode_rb_cg(a, j):
    a(f"s_lshr_b32 s{sCG}, s{j}, 6")
    a(f"s_and_b32 s{sRB}, s{j}, 7")
    a(f"s_lshl_b32 s{sRB}, s{sRB}, 3")
    a(f"s_bfe_u32 s{sT}, s{j}, 0x30003")
    a(f"s_add_u32 s{sRB}, s{sRB}, s{sT}")

def get_tag(a, vt, lab):
    L = f"{lab}_tag"
    a(f"s_mov_b32 s{sT3}, {SPIN_MAX}")
    a(f"v_mov_b32 v{vt}, 0")
    a.label(L)
    a(f"global_load_dword v{vt+1}, v{vt}, s[{S_DBG}:{S_DBG+1}] sc1")
    a("s_waitcnt vmcnt(0)")
    a(f"v_readfirstlane_b32 s{sTag}, v{vt+1}")
    a(f"s_sub_u32 s{sT3}, s{sT3}, 1")
    a(f"s_cmp_eq_u32 s{sT3}, 0")
    a(f"s_cbranch_scc1 {L}_done")
    a(f"s_cmp_eq_u32 s{sTag}, 0")
    a(f"s_cbranch_scc0 {L}_done")
    a("s_sleep 1")
    a(f"s_branch {L}")
    a.label(f"{L}_done")

def poll_flags(a, vt, lab, s_idx, nflags, region, tries=None, sleep=None):
    if nflags == 128:
        poll_flags(a, vt, lab + "a", None, 64, region, tries, sleep)
        poll_flags(a, vt, lab + "b", None, 64, region + 64, tries, sleep)
        return
    L = f"{lab}_poll"
    a(f"v_lshlrev_b32 v{vt}, 7, v{vLane}")
    if s_idx is None:
        a(f"s_mov_b32 s63, {region*128}")
    else:
        a(f"s_lshl_b32 s63, s{s_idx}, 7")
        if region: a(f"s_add_u32 s63, s63, {region*128}")
    a(f"s_mov_b32 s{sT3}, {tries or SPIN_MAX}")
    a("s_mov_b64 s[100:101], exec")
    if nflags < 64:
        a(f"s_mov_b32 exec_lo, {(1 << min(nflags, 32)) - 1 if nflags < 32 else -1}")
        a(f"s_mov_b32 exec_hi, {((1 << (nflags - 32)) - 1) if nflags > 32 else 0}")
    a.label(L)
    a(f"buffer_load_dword v{vt+1}, v{vt}, s[{R_FL}:{R_FL+3}], s63 offen sc1")
    a("s_waitcnt vmcnt(0)")
    a(f"v_cmp_ne_u32 vcc, s{sTag}, v{vt+1}")
    a("s_nop 1")
    a(f"s_and_b64 exec, exec, vcc")
    a(f"s_cbranch_execz {L}_done")
    a(f"s_sub_u32 s{sT3}, s{sT3}, 1")
    a(f"s_cmp_eq_u32 s{sT3}, 0")
    a(f"s_cbranch_scc1 {L}_done")
    a(f"s_sleep {sleep if sleep is not None else OPT.get('sleep', 6)}")
    a(f"s_branch {L}")
    a.label(f"{L}_done")
    a("s_mov_b64 exec, s[100:101]")

def set_flag(a, vt, s_idx, region):
    a(f"v_mov_b32 v{vt}, s{sTag}")
    a(f"v_mov_b32 v{vt+1}, 0")
    a(f"s_lshl_b32 s63, s{s_idx}, 7")
    if region: a(f"s_add_u32 s63, s63, {region*128}")
    a("s_mov_b64 s[100:101], exec")
    a("s_mov_b64 exec, 1")
    a(f"buffer_store_dword v{vt}, v{vt+1}, s[{R_FL}:{R_FL+3}], s63 offen sc1")
    a("s_mov_b64 exec, s[100:101]")

def tr_addr(a, dst, dst2, pitch, hrows, second_rows, s_base, t):
    a(f"v_bfe_u32 v{t}, v{vLane}, 2, 2")
    a(f"v_mul_u32_u24 v{t+1}, {hrows}, v{vH}")
    a(f"v_add_u32 v{t}, v{t}, v{t+1}")
    a(f"v_bfe_u32 v{t+1}, v{vLane}, 4, 1")
    a(f"v_and_b32 v{t+2}, 3, v{vLane}")
    a(f"v_lshlrev_b32 v{t+2}, 3, v{t+2}")
    a(f"v_lshl_add_u32 v{t+1}, v{t+1}, 5, v{t+2}")
    a(f"v_mul_u32_u24 v{dst}, {pitch}, v{t}")
    a(f"v_add3_u32 v{dst}, v{dst}, v{t+1}, s{s_base}")
    if dst2 is not None:
        a(f"v_add_u32 v{dst2}, {second_rows*pitch}, v{dst}")

def role_A(a):
    OPT["nopre0"] = 1
    st = Stamps(a, "A")
    st.start()
    XB = 0; XP = 1056; XH = 528; RBUF = 42240
    RING = 42496; NSTG = 3; RW = NSTG*1024; DEPTH = 16
    KSTG = 57856
    KVX = 67072
    LFL = XB + 512
    LFL2 = XB + 1040
    T4F = 75264
    SB = [0, 16384, 32768, 49152]
    QBUF = 65536; QP = 328
    sStep, sSoff, sLds, sRho, sWrap, sIt = 57, 58, 59, 60, 61, 57
    sExp, sFD = 95, 94
    vT = 4
    vVo, vTr, vTr2, vX16 = 12, 13, 14, 15
    X = 16
    TMP = 36
    vSum, vSq, vM = 52, 53, 54
    vOne, vSelLo, vSelHi = 56, 57, 58
    vR, vXa, vWst, vTag = 9, 10, 11, 61
    ACC = 16; FB = 32; WS_ = 64
    a(f"s_mov_b32 s{sT2}, s2")
    decode_rb_cg(a, sT2)
    L_notag = "A_notag"
    a(f"s_cmp_lg_u32 s2, 0")
    a(f"s_cbranch_scc1 {L_notag}")
    a(f"s_cmp_lg_u32 s{sW}, 0")
    a(f"s_cbranch_scc1 {L_notag}")
    a(f"s_memrealtime s[62:63]")
    a("s_waitcnt lgkmcnt(0)")
    a(f"s_or_b32 s62, s62, 1")
    a(f"v_mov_b32 v{vT}, s62")
    a(f"v_mov_b32 v{vT+1}, 0")
    a("s_mov_b64 exec, 1")
    a(f"global_store_dword v{vT+1}, v{vT}, s[{S_DBG}:{S_DBG+1}] sc1")
    a("s_mov_b64 exec, -1")
    a.label(L_notag)
    srd(a, R_A, S_X, S_X+1, NX)
    a(f"s_lshl_b32 s{sT}, s{sRB}, 5")
    a(f"s_lshl_b32 s{sT2}, s{sW}, 2")
    a(f"s_add_u32 s{sT}, s{sT}, s{sT2}")
    a(f"v_lshrrev_b32 v{vT}, 4, v{vLane}")
    a(f"v_add_u32 v{vT}, s{sT}, v{vT}")
    a(f"v_mul_u32_u24 v{vT}, 1280, v{vT}")
    a(f"v_and_b32 v{vT+1}, 15, v{vLane}")
    a(f"v_lshl_add_u32 v{vT}, v{vT+1}, 4, v{vT}")
    for i in range(5):
        a(f"buffer_load_dwordx4 {vr(X+4*i,4)}, v{vT}, s[{R_A}:{R_A+3}], 0 offen offset:{256*i}")
    a(f"v_lshlrev_b32 v{vX16}, 4, v{vLane}")
    a(f"s_and_b32 s{sRho}, s{sRB}, 7")
    L_nowe = "A_nowe"
    a(f"s_cmp_lt_u32 s{sW}, 5")
    a(f"s_cbranch_scc1 {L_nowe}")
    a(f"s_cmp_ge_u32 s{sCG}, 2")
    a(f"s_cbranch_scc1 {L_nowe}")
    a(f"s_cmp_eq_u32 s{sCG}, 1")
    a(f"s_cselect_b32 s{R_B}, s{S_WV}, s{S_WK}")
    a(f"s_cselect_b32 s{R_B+1}, s{S_WV+1}, s{S_WK+1}")
    a(f"s_mov_b32 s{R_B+2}, {640*20*2}")
    a(f"s_mov_b32 s{R_B+3}, 0x00020000")
    a(f"s_sub_u32 s{sT}, s{sW}, 5")
    a(f"s_mul_i32 s{sStep}, s{sT}, 13")
    a(f"s_min_u32 s{sT}, s{sT}, 1")
    a(f"s_add_u32 s{sStep}, s{sStep}, s{sT}")
    a(f"s_mul_i32 s{sT}, s{sRho}, 5")
    a(f"s_add_u32 s{sT2}, s{sStep}, s{sT}")
    a(f"s_cmp_ge_u32 s{sT2}, 40")
    a(f"s_cselect_b32 s{sT}, 40, 0")
    a(f"s_sub_u32 s{sT2}, s{sT2}, s{sT}")
    a(f"s_mul_i32 s{sSoff}, s{sT2}, 640")
    for i in range(14):
        a(f"s_add_u32 s{sT}, s{sSoff}, 640")
        a(f"buffer_load_dwordx4 {vr(WS_+4*i,4)}, v{vX16}, s[{R_B}:{R_B+3}], s{sSoff} offen")
        a(f"s_cmp_eq_u32 s{sT}, 25600")
        a(f"s_cselect_b32 s{sSoff}, 0, s{sT}")
    a.label(L_nowe)
    a("s_barrier")
    L_nq = "A_nq"
    a(f"s_cmp_ge_u32 s{sW}, 5")
    a(f"s_cbranch_scc1 {L_nq}")
    srd(a, R_B, S_WQ, S_WQ+1, 640*640*2)
    a(f"v_lshrrev_b32 v{vT}, 2, v{vLane}")
    a(f"v_mul_u32_u24 v{vT}, 1280, v{vT}")
    a(f"v_and_b32 v{vT+1}, 3, v{vLane}")
    a(f"v_lshl_add_u32 v{vT}, v{vT+1}, 4, v{vT}")
    a(f"s_mul_i32 s{sT}, s{sCG}, 320")
    a(f"s_lshl_b32 s{sT2}, s{sW}, 6")
    a(f"s_add_u32 s{sT}, s{sT}, s{sT2}")
    a(f"v_add_u32 v{vVo}, s{sT}, v{vT}")
    a(f"s_mul_i32 s{sLds}, s{sW}, {RW}")
    a(f"s_add_u32 s{sLds}, s{sLds}, {RING}")
    a(f"s_mul_i32 s{sSoff}, s{sRho}, {5*20480}")
    def wload(k):
        d = WS_ + 4*(k % DEPTH)
        a(f"s_add_u32 s{sT}, s{sSoff}, 20480")
        a(f"buffer_load_dwordx4 {vr(d,4)}, v{vVo}, s[{R_B}:{R_B+3}], s{sSoff} offen")
        a(f"s_cmp_eq_u32 s{sT}, {40*20480}")
        a(f"s_cselect_b32 s{sSoff}, 0, s{sT}")
    NW0 = OPT.get("NW0", 8)
    for k in range(NW0): wload(k)
    tr_addr(a, vTr, vTr2, 64, 8, 4, sLds, vT)
    a(f"v_add_u32 v{vWst}, s{sLds}, v{vX16}")
    a(f"s_waitcnt vmcnt({NW0})")
    a(f"s_mov_b32 s{sTag}, 0")
    a(f"s_branch A_xok")
    a.label(L_nq)
    a(f"s_waitcnt vmcnt(14)")
    a(f"s_cmp_lt_u32 s{sCG}, 2")
    a(f"s_cbranch_scc1 A_xok2")
    a(f"s_waitcnt vmcnt(0)")
    a.label("A_xok2")
    a(f"v_mov_b32 v{vT}, 0")
    a(f"global_load_dword v{vTag}, v{vT}, s[{S_DBG}:{S_DBG+1}] sc1")
    a.label("A_xok")
    st.mark("xwait")
    a(f"v_mov_b32 v{vOne}, 0x3f803f80")
    a(f"v_mov_b32 v{vSelLo}, 0x00003f80")
    a(f"v_mov_b32 v{vSelHi}, 0x3f800000")
    for i in range(4): a(f"v_mov_b32 v{TMP+i}, 0")
    for i in range(20):
        a(f"v_dot2c_f32_bf16 v{TMP+(i%2)}, v{X+i}, v{vOne}")
        a(f"v_dot2c_f32_bf16 v{TMP+2+(i%2)}, v{X+i}, v{X+i}")
    a(f"v_lshrrev_b32 v{vT}, 4, v{vLane}")
    a(f"s_lshl_b32 s{sT}, s{sW}, 2")
    a(f"v_add_u32 v{vT}, s{sT}, v{vT}")
    a(f"v_and_b32 v{vT+1}, 1, v{vLane}")
    a(f"v_mul_u32_u24 v{vT+1}, {XH}, v{vT+1}")
    a(f"v_lshl_add_u32 v{vT+1}, v{vT}, 4, v{vT+1}")
    a(f"v_add_f32 v{vSum}, v{TMP}, v{TMP+1}")
    a(f"v_add_f32 v{vSq}, v{TMP+2}, v{TMP+3}")
    a(f"v_bfe_u32 v{vT+2}, v{vLane}, 1, 3")
    a(f"s_mul_i32 s{sT}, s{sRho}, 5")
    a(f"s_sub_u32 s{sT}, 40, s{sT}")
    for ror in (8, 4, 2, 1):
        a(f"v_add_f32_dpp v{vSum}, v{vSum}, v{vSum} row_ror:{ror} row_mask:0xf bank_mask:0xf")
        a(f"v_add_f32_dpp v{vSq}, v{vSq}, v{vSq} row_ror:{ror} row_mask:0xf bank_mask:0xf")
        if ror != 1: a.nop(1)
    a(f"v_add_u32 v{vT+2}, s{sT}, v{vT+2}")
    inv = f32bits(1.0/640)
    a(f"v_mul_f32 v{vM}, {inv}, v{vSum}")
    a(f"v_mul_f32 v{TMP+1}, {inv}, v{vSq}")
    a(f"v_fma_f32 v{TMP+1}, -v{vM}, v{vM}, v{TMP+1}")
    a(f"v_max_f32 v{TMP+1}, 0, v{TMP+1}")
    bf16_round(a, TMP+1, TMP+1)
    bf16_round(a, vM, vM)
    a(f"v_add_f32 v{TMP+1}, {f32bits(1e-5)}, v{TMP+1}")
    a(f"v_sub_f32 v{vM}, 0, v{vM}")
    bf16_round(a, TMP+1, TMP+1)
    a(f"v_sqrt_f32 v{vSum}, v{TMP+1}")
    for base in range(0, 20, 8):
        g = min(8, 20-base)
        for i in range(g):
            a(f"v_dot2_f32_bf16 v{TMP+2*i}, v{X+base+i}, v{vSelLo}, v{vM}")
            a(f"v_dot2_f32_bf16 v{TMP+2*i+1}, v{X+base+i}, v{vSelHi}, v{vM}")
        if base == 0:
            bf16_round(a, vSum, vSum)
            a(f"v_rcp_f32 v{vR}, v{vSum}")
        else:
            a.nop(3)
        for i in range(g):
            a(f"v_cvt_pk_bf16_f32 v{X+base+i}, v{TMP+2*i}, v{TMP+2*i+1}")
    a(f"v_lshlrev_b32 v{vT+3}, 2, v{vT}")
    a(f"ds_write_b32 v{vT+3}, v{vR} offset:{RBUF}")
    for i in range(5):
        if i: a(f"v_add_u32 v{vT+2}, 8, v{vT+2}")
        a(f"v_subrev_u32 v{vT+3}, 40, v{vT+2}")
        a(f"v_min_u32 v{vT+3}, v{vT+3}, v{vT+2}")
        a(f"v_mul_u32_u24 v{vT+3}, {XP}, v{vT+3}")
        a(f"v_add_u32 v{vT+3}, v{vT+3}, v{vT+1}")
        a(f"ds_write_b128 v{vT+3}, {vr(X+4*i,4)} offset:{XB}")
    a(f"v_mul_u32_u24 v{vXa}, {XH}, v{vH}")
    a(f"v_lshl_add_u32 v{vXa}, v{vN}, 4, v{vXa}")
    a(f"s_cmp_ge_u32 s{sW}, 5")
    a(f"s_cbranch_scc1 A_ln5")
    for k in range(NW0, 10): wload(k)
    a(f"s_cmp_eq_u32 s{sW}, 4")
    a(f"s_cbranch_scc1 A_lnb")
    for k in range(10, DEPTH): wload(k)
    a(f"s_branch A_lnb")
    a.label("A_ln5")
    a(f"v_mov_b32 v{vT}, {LFL}")
    for i in range(4): a(f"v_mov_b32 v{TMP+i}, 0")
    a(f"ds_write_b128 v{vT}, v[{TMP}:{TMP+3}]")
    a(f"ds_write_b128 v{vT}, v[{TMP}:{TMP+3}] offset:{LFL2-LFL}")
    a("s_waitcnt vmcnt(0)")
    a(f"v_readfirstlane_b32 s{sTag}, v{vTag}")
    a.label("A_lnb")
    a("s_waitcnt lgkmcnt(0)")
    a("s_barrier")
    a(f"v_lshlrev_b32 v{vT}, 2, v{vN}")
    a(f"ds_read_b32 v{vR}, v{vT} offset:{RBUF}")
    st.mark("LN")
    if OPT.get("diag"):
        a(f"s_cmp_lg_u32 s{sW}, 0"); Ld = a.newlabel("dg"); a(f"s_cbranch_scc1 {Ld}"); diag(a, 4, va=62); diag(a, 5, neg=True, va=62); a.label(Ld)
    def ensure_tag(lab):
        a(f"s_cmp_lg_u32 s{sTag}, 0")
        a(f"s_cbranch_scc1 {lab}_have")
        get_tag(a, vT, lab)
        a.label(f"{lab}_have")
    L_kvp, L_exp, L_bar1 = "A_kvp", "A_exp", "A_bar1"
    a(f"s_cmp_ge_u32 s{sW}, 5")
    a(f"s_cbranch_scc1 {L_kvp}")
    a(f"s_cmp_eq_u32 s{sW}, 4")
    a(f"s_cbranch_scc1 A_job4")
    if OPT.get("noq"): a(f"s_branch {L_bar1}")
    def pipe_gemm(nsteps, wr, rd, need_vm, refill, cin0):
        for k in range(5):
            if k < nsteps:
                need_vm(k, -5 + k)
                wr(k)
            if 0 <= k - 2 < nsteps: rd(k - 2)
        for s_ in range(nsteps):
            n_ops = 0
            if s_ + 5 < nsteps:
                need_vm(s_ + 5, s_)
                wr(s_ + 5)
            if s_ + 3 < nsteps: rd(s_ + 3)
            for t in range(s_ + 1, s_ + 4):
                if t + 2 < nsteps: n_ops += 1
                if t < nsteps: n_ops += 3
            a(f"s_waitcnt lgkmcnt({n_ops})")
            f = FB + 8*(s_ % 4)
            cin = cin0 if s_ == 0 else vr(ACC, 16)
            a(f"v_mfma_f32_32x32x16_bf16 {vr(ACC,16)}, {vr(f,4)}, {vr(f+4,4)}, {cin}")
            refill(s_)
    def q_wr(k): a(f"ds_write_b128 v{vWst}, {vr(WS_+4*(k % DEPTH),4)} offset:{(k % NSTG)*1024}")
    def q_rd(k):
        f = FB + 8*(k % 4)
        a(f"ds_read_b64_tr_b16 v[{f}:{f+1}], v{vTr} offset:{(k % NSTG)*1024}")
        a(f"ds_read_b64_tr_b16 v[{f+2}:{f+3}], v{vTr2} offset:{(k % NSTG)*1024}")
        a(f"ds_read_b128 {vr(f+4,4)}, v{vXa} offset:{XB + k*XP}")
    def q_vm(k, s_now):
        issued = DEPTH + max(0, min(s_now, 40 - DEPTH + QOFF) - QOFF) if s_now > 0 else DEPTH
        issued = min(issued, 40)
        a(f"s_waitcnt vmcnt({issued - 1 - k})")
    QOFF = 0
    def q_refill(s_):
        if s_ + DEPTH < 40: wload(s_ + DEPTH)
    pipe_gemm(40, q_wr, q_rd, q_vm, q_refill, "0")
    st.mark("gemm")
    a.nop(12)
    a(f"v_mul_f32 v{vT}, {f32bits(QSCALE)}, v{vR}")
    for j in range(16): a(f"v_mul_f32 v{ACC+j}, v{ACC+j}, v{vT}")
    for k in range(8): a(f"v_cvt_pk_bf16_f32 v{TMP+k}, v{ACC+2*k}, v{ACC+2*k+1}")
    a(f"s_branch {L_bar1}")

    JW = WS_ + 20
    def job_loads():
        srd(a, R_B, S_WQ, S_WQ+1, 640*640*2)
        a(f"v_lshrrev_b32 v{vT}, 2, v{vLane}")
        a(f"v_mul_u32_u24 v{vT}, 1280, v{vT}")
        a(f"v_and_b32 v{vT+1}, 3, v{vLane}")
        a(f"v_lshl_add_u32 v{vT}, v{vT+1}, 4, v{vT}")
        a(f"s_mul_i32 s{sT}, s{sCG}, 320")
        a(f"s_add_u32 s{sT}, s{sT}, 256")
        a(f"v_add_u32 v{vT}, s{sT}, v{vT}")
        a(f"s_sub_u32 s{sT}, s{sW}, 4")
        a(f"s_mul_i32 s{sT}, s{sT}, 10")
        a(f"s_mul_i32 s{sT2}, s{sRho}, 5")
        a(f"s_add_u32 s{sT}, s{sT}, s{sT2}")
        a(f"s_cmp_ge_u32 s{sT}, 40")
        a(f"s_cselect_b32 s{sT2}, 40, 0")
        a(f"s_sub_u32 s{sT}, s{sT}, s{sT2}")
        a(f"s_mul_i32 s{sSoff}, s{sT}, 20480")
        for k in range(10):
            a(f"s_add_u32 s{sT}, s{sSoff}, 20480")
            a(f"buffer_load_dwordx4 {vr(JW+4*k,4)}, v{vT}, s[{R_B}:{R_B+3}], s{sSoff} offen")
            a(f"s_cmp_eq_u32 s{sT}, {40*20480}")
            a(f"s_cselect_b32 s{sSoff}, 0, s{sT}")
    def job_run(raw, vm_after):
        tr_addr(a, vTr, vTr2, 64, 8, 4, sLds, vT)
        a(f"v_add_u32 v{vWst}, s{sLds}, v{vX16}")
        a(f"s_sub_u32 s{sT}, s{sW}, 4")
        a(f"s_mul_i32 s{sT}, s{sT}, {10*XP}")
        a(f"v_add_u32 v{vVo}, s{sT}, v{vXa}")
        def j_wr(k): a(f"ds_write_b128 v{vWst}, {vr(raw+4*k,4)} offset:{(k % NSTG)*1024}")
        def j_rd(k):
            f = FB + 8*(k % 4)
            a(f"ds_read_b64_tr_b16 v[{f}:{f+1}], v{vTr} offset:{(k % NSTG)*1024}")
            a(f"ds_read_b64_tr_b16 v[{f+2}:{f+3}], v{vTr2} offset:{(k % NSTG)*1024}")
            a(f"ds_read_b128 {vr(f+4,4)}, v{vVo} offset:{k*XP}")
        def j_vm(k, s_): a(f"s_waitcnt vmcnt({9 - k + vm_after})")
        pipe_gemm(10, j_wr, j_rd, j_vm, lambda s_: None, "0")
        a("s_waitcnt lgkmcnt(0)")
        a.nop(12)
    def job_publish():
        Lp5, Lpd = a.newlabel("A_jp5"), a.newlabel("A_jpd")
        a(f"s_cmp_eq_u32 s{sW}, 5")
        a(f"s_cbranch_scc1 {Lp5}")
        for q in range(3): a(f"ds_write_b128 v{vWst}, {vr(ACC+4*q,4)} offset:{q*1024}")
        a(f"s_sub_u32 s{sT}, s{sW}, 6")
        a(f"s_lshl_b32 s{sT}, s{sT}, 10")
        a(f"s_add_u32 s{sT}, s{sT}, {T4F}")
        a(f"v_add_u32 v{vT}, s{sT}, v{vX16}")
        a(f"ds_write_b128 v{vT}, {vr(ACC+12,4)}")
        a(f"s_branch {Lpd}")
        a.label(Lp5)
        a(f"v_add_u32 v{vT}, {KVX+4096}, v{vX16}")
        for q in range(4): a(f"ds_write_b128 v{vT}, {vr(ACC+4*q,4)} offset:{q*1024}")
        a.label(Lpd)
        a(f"s_sub_u32 s{sT}, s{sW}, 5")
        a(f"s_lshl_b32 s{sT}, s{sT}, 2")
        a(f"s_add_u32 s{sT}, s{sT}, {LFL2}")
        a(f"v_mov_b32 v{vT}, s{sT}")
        a(f"v_mov_b32 v{vT+1}, 1")
        a(f"ds_write_b32 v{vT}, v{vT+1}")
    a.label("A_job4")
    job_run(WS_, 0)
    a(f"v_mov_b32 v{vT}, {LFL2}")
    a(f"s_mov_b32 s{sT3}, {SPIN_MAX}")
    a.label("A_j4spin")
    a(f"ds_read_b96 v[{vT+2}:{vT+4}], v{vT}")
    a("s_waitcnt lgkmcnt(0)")
    a(f"v_and_b32 v{vT+2}, v{vT+2}, v{vT+3}")
    a(f"v_and_b32 v{vT+2}, v{vT+2}, v{vT+4}")
    a("s_nop 0")
    a(f"v_readfirstlane_b32 s{sT}, v{vT+2}")
    a(f"s_sub_u32 s{sT3}, s{sT3}, 1")
    a(f"s_cmp_eq_u32 s{sT3}, 0")
    a(f"s_cbranch_scc1 A_j4spin_done")
    a(f"s_cmp_eq_u32 s{sT}, 1")
    a(f"s_cbranch_scc0 A_j4spin")
    a.label("A_j4spin_done")
    a(f"v_add_u32 v{vT}, {KVX+4096}, v{vX16}")
    a(f"v_add_u32 v{vT+1}, {KSTG+3072}, v{vX16}")
    a(f"v_add_u32 v{vT+2}, {T4F}, v{vX16}")
    for q in range(4): a(f"ds_read_b128 {vr(64+4*q,4)}, v{vT} offset:{q*1024}")
    for p_ in range(2):
        for q in range(3): a(f"ds_read_b128 {vr(80+16*p_+4*q,4)}, v{vT+1} offset:{p_*3072 + q*1024}")
        a(f"ds_read_b128 {vr(80+16*p_+12,4)}, v{vT+2} offset:{p_*1024}")
    a("s_waitcnt lgkmcnt(0)")
    for j in range(16): a(f"v_add_f32 v{64+j}, v{64+j}, v{80+j}")
    for j in range(16): a(f"v_add_f32 v{ACC+j}, v{ACC+j}, v{96+j}")
    for j in range(16): a(f"v_add_f32 v{ACC+j}, v{ACC+j}, v{64+j}")
    st.mark("job4")
    a(f"v_mul_f32 v{vT}, {f32bits(QSCALE)}, v{vR}")
    for j in range(16): a(f"v_mul_f32 v{ACC+j}, v{ACC+j}, v{vT}")
    for k in range(8): a(f"v_cvt_pk_bf16_f32 v{TMP+k}, v{ACC+2*k}, v{ACC+2*k+1}")
    a(f"s_branch {L_bar1}")
    def export_d():
        a(f"s_mul_i32 s{sT}, s{sCG}, 2")
        a(f"s_add_u32 s{sT}, s{sT}, s{sW}")
        a(f"s_sub_u32 s{sT}, s{sT}, 6")
        a(f"s_sub_u32 s{sT2}, s{sT}, s{sRho}")
        a(f"s_and_b32 s{sT2}, s{sT2}, 7")
        a(f"s_mul_i32 s{sT2}, s{sT2}, {5*XP}")
        a(f"v_add_u32 v{vT}, s{sT2}, v{vXa}")
        for i in range(5):
            a(f"ds_read_b128 {vr(X+4*i,4)}, v{vT} offset:{XB + XP*i}")
        a(f"s_mul_i32 s{sT2}, s{sRB}, 40")
        a(f"s_mul_i32 s{sExp}, s{sT}, 5")
        a(f"s_add_u32 s{sT2}, s{sT2}, s{sExp}")
        a(f"s_lshl_b32 s{sT2}, s{sT2}, 10")
        if WS_XF: a(f"s_add_u32 s{sT2}, s{sT2}, {WS_XF}")
        a(f"s_lshl_b32 s{sFD}, s{sRB}, 3")
        a(f"s_add_u32 s{sFD}, s{sFD}, s{sT}")
        a(f"v_add_u32 v{vT+1}, 4096, v{vX16}")
        a("s_waitcnt lgkmcnt(0)")
        for i in range(4):
            a(f"buffer_store_dwordx4 {vr(X+4*i,4)}, v{vX16}, s[{R_WS}:{R_WS+3}], s{sT2} offen offset:{1024*i} sc1")
        a(f"buffer_store_dwordx4 {vr(X+16,4)}, v{vT+1}, s[{R_WS}:{R_WS+3}], s{sT2} offen sc1")
        L_nor = "A_nor"
        a(f"s_cmp_lg_u32 s{sT}, 0")
        a(f"s_cbranch_scc1 {L_nor}")
        a(f"s_lshl_b32 s{sT2}, s{sRB}, 7")
        a(f"s_add_u32 s{sT2}, s{sT2}, {WS_R}")
        a(f"v_lshlrev_b32 v{vT}, 2, v{vN}")
        a(f"buffer_store_dword v{vR}, v{vT}, s[{R_WS}:{R_WS+3}], s{sT2} offen sc1")
        a.label(L_nor)
    a.label(L_kvp)
    a("s_setprio 3")
    if OPT.get("expfirst", 0):
        a(f"s_cmp_lt_u32 s{sW}, 6")
        a(f"s_cbranch_scc1 A_noexp")
        export_d()
        a.label("A_noexp")
    a(f"s_cmp_ge_u32 s{sCG}, 2")
    a(f"s_cbranch_scc1 A_kvp_skip")
    a(f"s_sub_u32 s{sT}, s{sW}, 5")
    a(f"s_mul_i32 s{sLds}, s{sT}, 3072")
    a(f"s_add_u32 s{sLds}, s{sLds}, {KSTG}")
    tr_addr(a, vTr, vTr2, 40, 8, 4, sLds, vT)
    a(f"v_add_u32 v{vWst}, s{sLds}, v{vX16}")
    a(f"s_mul_i32 s{sT}, s{sStep}, {XP}")
    a(f"v_add_u32 v{vVo}, s{sT}, v{vXa}")
    a(f"v_add_u32 v{vT+4}, {13*XP}, v{vVo}")
    a(f"s_cmp_eq_u32 s{sW}, 5")
    a(f"s_cbranch_scc1 A_kv13")
    for i in range(4): a(f"v_mov_b32 v{WS_+52+i}, 0")
    a(f"v_mov_b32 v{vT+4}, v{vXa}")
    a.label("A_kv13")
    def k_wr(k): a(f"ds_write_b128 v{vWst}, {vr(WS_+4*k,4)} offset:{(k % NSTG)*1024}")
    def k_rd(k):
        f = FB + 8*(k % 4)
        a(f"ds_read_b64_tr_b16 v[{f}:{f+1}], v{vTr} offset:{(k % NSTG)*1024}")
        a(f"ds_read_b64_tr_b16 v[{f+2}:{f+3}], v{vTr2} offset:{(k % NSTG)*1024}")
        if k == 13: a(f"ds_read_b128 {vr(f+4,4)}, v{vT+4}")
        else: a(f"ds_read_b128 {vr(f+4,4)}, v{vVo} offset:{k*XP}")
    pipe_gemm(14, k_wr, k_rd, lambda k, s_: None, lambda s_: None, "0")
    a("s_waitcnt lgkmcnt(0)")
    job_loads()
    a(f"s_cmp_eq_u32 s{sW}, 5")
    a(f"s_cbranch_scc1 A_kv5")
    a(f"s_sub_u32 s{sT}, s{sW}, 6")
    a(f"s_lshl_b32 s{sT}, s{sT}, 12")
    a(f"s_add_u32 s{sT}, s{sT}, {KVX}")
    a(f"v_add_u32 v{vT}, s{sT}, v{vX16}")
    for q in range(4):
        a(f"ds_write_b128 v{vT}, {vr(ACC+4*q,4)} offset:{q*1024}")
    a(f"s_sub_u32 s{sT}, s{sW}, 6")
    a(f"s_lshl_b32 s{sT}, s{sT}, 2")
    a(f"s_add_u32 s{sT}, s{sT}, {LFL}")
    a(f"v_mov_b32 v{vT}, s{sT}")
    a(f"v_mov_b32 v{vT+1}, 1")
    a(f"ds_write_b32 v{vT}, v{vT+1}")
    a(f"s_branch A_kvp_done")
    a.label("A_kv5")
    a(f"v_mov_b32 v{vT}, {LFL}")
    a(f"s_mov_b32 s{sT3}, {SPIN_MAX}")
    a.label("A_kvspin")
    a(f"ds_read_b64 v[{vT+2}:{vT+3}], v{vT}")
    a("s_waitcnt lgkmcnt(0)")
    a(f"v_and_b32 v{vT+2}, v{vT+2}, v{vT+3}")
    a("s_nop 0")
    a(f"v_readfirstlane_b32 s{sT}, v{vT+2}")
    a(f"s_sub_u32 s{sT3}, s{sT3}, 1")
    a(f"s_cmp_eq_u32 s{sT3}, 0")
    a(f"s_cbranch_scc1 A_kvspin_done")
    a(f"s_cmp_eq_u32 s{sT}, 1")
    a(f"s_cbranch_scc0 A_kvspin")
    a.label("A_kvspin_done")
    a(f"v_add_u32 v{vT}, {KVX}, v{vX16}")
    for p_ in range(2):
        for q in range(4):
            a(f"ds_read_b128 {vr(FB+16*p_+4*q,4)}, v{vT} offset:{p_*4096 + q*1024}")
    a("s_waitcnt lgkmcnt(0)")
    for j in range(16):
        a(f"v_add_f32 v{FB+j}, v{FB+j}, v{FB+16+j}")
    for j in range(16):
        a(f"v_add_f32 v{ACC+j}, v{ACC+j}, v{FB+j}")
    for j in range(16): a(f"v_mul_f32 v{ACC+j}, v{ACC+j}, v{vR}")
    a(f"v_cmp_eq_u32 vcc, 1, v{vH}")
    a(f"v_mov_b32 v{vT}, 1.0")
    a(f"v_mov_b32 v{vT+1}, 0")
    a(f"v_cndmask_b32 v{ACC+8}, v{ACC+8}, v{vT}, vcc")
    for j in range(9, 12): a(f"v_cndmask_b32 v{ACC+j}, v{ACC+j}, v{vT+1}, vcc")
    for j in range(12, 16): a(f"v_mov_b32 v{ACC+j}, 0")
    for k in range(8): a(f"v_cvt_pk_bf16_f32 v{TMP+k}, v{ACC+2*k}, v{ACC+2*k+1}")
    a(f"s_mul_i32 s{sT}, s{sRB}, {TS}")
    a(f"s_add_u32 s{sT}, s{sT}, {WS_KV}")
    L_v = "A_v"; L_kvdone = "A_kvdone"
    a(f"s_cmp_eq_u32 s{sCG}, 1")
    a(f"s_cbranch_scc1 {L_v}")
    a(f"buffer_store_dwordx4 {vr(TMP,4)}, v{vX16}, s[{R_WS}:{R_WS+3}], s{sT} offen sc1")
    a(f"v_lshlrev_b32 v{vT}, 3, v{vLane}")
    a(f"s_mov_b32 exec_hi, 0")
    a(f"buffer_store_dwordx2 v[{TMP+4}:{TMP+5}], v{vT}, s[{R_WS}:{R_WS+3}], s{sT} offen offset:1024 sc1")
    a(f"s_mov_b32 exec_hi, -1")
    a(f"s_branch {L_kvdone}")
    a.label(L_v)
    a(f"s_mov_b32 s{sLds}, {KVX}")
    a(f"v_lshlrev_b32 v{vT}, 6, v{vN}")
    a(f"v_lshl_add_u32 v{vT}, v{vH}, 3, v{vT}")
    a(f"v_add_u32 v{vT}, s{sLds}, v{vT}")
    for q in range(4):
        a(f"ds_write_b64 v{vT}, v[{TMP+2*q}:{TMP+2*q+1}] offset:{16*q}")
    tr_addr(a, vTr, None, 64, 4, 8, sLds, vT+1)
    for u in range(2):
        a(f"ds_read_b64_tr_b16 v[{TMP+8+4*u}:{TMP+9+4*u}], v{vTr} offset:{u*1024}")
        a(f"ds_read_b64_tr_b16 v[{TMP+10+4*u}:{TMP+11+4*u}], v{vTr} offset:{u*1024 + 512}")
    a(f"v_mul_u32_u24 v{vT}, {VH}, v{vH}")
    a(f"v_lshl_add_u32 v{vT}, v{vN}, 4, v{vT}")
    a(f"s_mov_b32 exec_lo, 0x3fffff")
    a(f"s_mov_b32 exec_hi, 0x3fffff")
    a("s_waitcnt lgkmcnt(0)")
    a(f"buffer_store_dwordx4 {vr(TMP+8,4)}, v{vT}, s[{R_WS}:{R_WS+3}], s{sT} offen offset:1280 sc1")
    a(f"buffer_store_dwordx4 {vr(TMP+12,4)}, v{vT}, s[{R_WS}:{R_WS+3}], s{sT} offen offset:{1280+VF} sc1")
    a(f"s_mov_b64 exec, -1")
    a.label(L_kvdone)
    ensure_tag("A5")
    a("s_waitcnt vmcnt(0)")
    st.mark("k5:drain")
    a(f"s_lshl_b32 s{sT}, s{sRB}, 1")
    a(f"s_add_u32 s{sT}, s{sT}, s{sCG}")
    set_flag(a, vT, sT, FL_KV)
    a(f"s_mov_b32 s{sLds}, {KSTG}")
    job_run(JW, 1)
    job_publish()
    a(f"s_branch {L_bar1}")
    a.label("A_kvp_skip")
    job_loads()
    a(f"s_cmp_lg_u32 s{sW}, 5")
    a(f"s_cbranch_scc1 A_kvp_done")
    a(f"s_mov_b32 s{sLds}, {KSTG}")
    job_run(JW, 0)
    job_publish()
    a(f"s_branch {L_bar1}")
    a.label("A_kvp_done")
    if not OPT.get("expfirst", 0): export_d()
    ensure_tag("A6")
    a(f"s_waitcnt vmcnt({10 if OPT.get('expfirst', 0) else 0})")
    st.mark("x:drain")
    set_flag(a, vT, sFD, FL_D)
    a(f"s_sub_u32 s{sT}, s{sW}, 5")
    a(f"s_mul_i32 s{sLds}, s{sT}, 3072")
    a(f"s_add_u32 s{sLds}, s{sLds}, {KSTG}")
    job_run(JW, 1)
    job_publish()
    a.label(L_bar1)
    a("s_waitcnt vmcnt(0)")
    a.label("A_bar1_nowait")
    a("s_setprio 0")
    a("s_waitcnt lgkmcnt(0)")
    a("s_barrier")
    st.mark("bar0")
    vA16 = vX16
    aK1, aK2, aV, nK1, nK2, nV = 64, 65, 66, 67, 68, 69
    bK2, bV = 70, 71
    CN = 80
    S = [16, 32]
    O = 48
    P = 96
    Q1, Q2 = 104, 108
    K1, K2 = 112, 116
    V1, V2 = 120, 124
    vM2 = 110
    sSoffK, sLdsW, sSlot, sCk = 58, 59, 60, 61
    vFl, vFlo = 72, 73
    srd(a, R_A, S_WS, S_WS+1, KVB, WS_KV)
    a(f"s_lshl_b32 s{sLdsW}, s{sW}, 10")
    a(f"v_lshlrev_b32 v{bK2}, 3, v{vN}")
    a(f"v_add_u32 v{bK2}, 1024, v{bK2}")
    a(f"v_mov_b32 v{vT}, {1280 + 21*16}")
    a(f"v_cmp_eq_u32 vcc, 1, v{vH}")
    a(f"v_min_u32 v{bV}, 21, v{vN}")
    a(f"v_lshlrev_b32 v{bV}, 4, v{bV}")
    a(f"v_cndmask_b32 v{bK2}, v{bK2}, v{vT}, vcc")
    a(f"v_mul_u32_u24 v{vT}, {VH}, v{vH}")
    a(f"v_add3_u32 v{bV}, v{bV}, v{vT}, 0")
    a(f"v_add_u32 v{bV}, 1280, v{bV}")
    def dma_chunk(slot_s):
        a(f"s_add_u32 s{sT}, s{slot_s}, s{sLdsW}")
        a(f"s_add_u32 s{sT2}, s{sSoffK}, s{sLdsW}")
        a(f"s_mov_b32 m0, s{sT}")
        a(f"s_add_u32 s{sT}, s{sT}, 8192")
        a(f"buffer_load_dwordx4 v{vA16}, s[{R_A}:{R_A+3}], s{sT2} offen sc1 lds")
        a(f"s_mov_b32 m0, s{sT}")
        a(f"s_add_u32 s{sT2}, s{sT2}, 8192")
        a(f"buffer_load_dwordx4 v{vA16}, s[{R_A}:{R_A+3}], s{sT2} offen sc1 lds")
        Ls = a.newlabel("A_d3")
        a(f"s_cmp_ge_u32 s{sW}, 5")
        a(f"s_cbranch_scc1 {Ls}")
        a(f"s_add_u32 m0, s{sT}, 8192")
        a(f"s_add_u32 s{sT2}, s{sT2}, 8192")
        a(f"buffer_load_dwordx4 v{vA16}, s[{R_A}:{R_A+3}], s{sT2} offen sc1 lds")
        a.label(Ls)
        a(f"s_add_u32 s{sSoffK}, s{sSoffK}, {CH}")
        a(f"s_cmp_eq_u32 s{sSoffK}, {8*CH}")
        a(f"s_cselect_b32 s{sSoffK}, 0, s{sSoffK}")
        a(f"s_add_u32 s{sCk}, s{sCk}, 1")
        a(f"s_and_b32 s{sCk}, s{sCk}, 7")
    L_noqw = "A_noqw"
    a(f"v_mul_u32_u24 v{vT}, {QP}, v{vN}")
    a(f"v_add_u32 v{vT}, {QBUF}, v{vT}")
    a(f"s_cmp_ge_u32 s{sW}, 5")
    a(f"s_cbranch_scc1 {L_noqw}")
    a(f"s_lshl_b32 s{sT}, s{sW}, 6")
    a(f"v_lshl_add_u32 v{vT+1}, v{vH}, 3, v{vT}")
    a(f"v_add_u32 v{vT+1}, s{sT}, v{vT+1}")
    for q in range(4):
        a(f"ds_write_b64 v{vT+1}, v[{TMP+2*q}:{TMP+2*q+1}] offset:{16*q}")
    a.label(L_noqw)
    a("s_waitcnt lgkmcnt(0)")
    a("s_barrier")
    a(f"s_mul_i32 s{sT}, s{sW}, 40")
    a(f"v_add_u32 v{vT}, s{sT}, v{vT}")
    a(f"v_lshl_add_u32 v{vT+1}, v{vH}, 3, v{vT}")
    a(f"ds_read_b64 v[{Q1}:{Q1+1}], v{vT+1}")
    a(f"ds_read_b64 v[{Q1+2}:{Q1+3}], v{vT+1} offset:16")
    a(f"ds_read_b64 v[{Q2}:{Q2+1}], v{vT} offset:32")
    a(f"v_mov_b32 v{aK1}, v{vA16}")
    a(f"v_mov_b32 v{aK2}, v{bK2}")
    a(f"v_mov_b32 v{aV}, v{bV}")
    a(f"v_add_u32 v{nK1}, {CH}, v{vA16}")
    a(f"v_add_u32 v{nK2}, {CH}, v{bK2}")
    a(f"v_add_u32 v{nV}, {CH}, v{bV}")
    for i in range(16): a(f"v_mov_b32 v{O+i}, 0")
    a(f"v_cmp_eq_u32 vcc, 1, v{vH}")
    a(f"v_mov_b32 v{vT}, 0")
    a("s_waitcnt lgkmcnt(0)")
    a(f"v_cndmask_b32 v{Q2}, v{Q2}, v{vT}, vcc")
    a(f"v_cndmask_b32 v{Q2+1}, v{Q2+1}, v{vT}, vcc")
    a(f"s_lshr_b32 s{sCk}, s{sRB}, 3")
    a(f"s_mul_i32 s{sSoffK}, s{sCk}, {CH}")
    def check_chunk(lab):
        a(f"s_cmp_lg_u32 s{sW}, 7")
        a(f"s_cbranch_scc1 {lab}_skip")
        a(f"s_lshl_b32 s{sT}, s{sCk}, 4")
        poll_flags(a, vT+2, lab, sT, 16, FL_KV, sleep=OPT.get("kvsleep", 1))
        a.label(f"{lab}_skip")
    check_chunk("A7a")
    a("s_barrier")
    st.mark("bar1")
    if OPT.get("diag"):
        a(f"s_cmp_lg_u32 s{sW}, 0"); Ld = a.newlabel("dg"); a(f"s_cbranch_scc1 {Ld}"); diag(a, 6); diag(a, 7, neg=True); a.label(Ld)
    a(f"s_mov_b32 s{sSlot}, 0")
    dma_chunk(sSlot)
    a(f"v_min_u32 v{vFlo}, 15, v{vLane}")
    a(f"v_lshlrev_b32 v{vFlo}, 7, v{vFlo}")
    def rd(dst, n, t, off, cur, nxt, op):
        v_ = cur if t < 8 else nxt
        a(f"{op} {vr(dst,n)}, v{v_} offset:{(t % 8)*TS + off}")
    def rd_K1(t): rd(K1, 4, t, 0, aK1, nK1, "ds_read_b128")
    def rd_K2(t): rd(K2, 2, t, 0, aK2, nK2, "ds_read_b64")
    def rd_V1(t): rd(V1, 4, t, 0, aV, nV, "ds_read_b128")
    def rd_V2(t): rd(V2, 4, t, VF, aV, nV, "ds_read_b128")
    def qk1(dst, c="0"): a(f"v_mfma_f32_32x32x16_bf16 {vr(dst,16)}, {vr(K1,4)}, {vr(Q1,4)}, {c}")
    def qk2(dst): a(f"v_mfma_f32_32x32x8_bf16 {vr(dst,16)}, {vr(K2,2)}, {vr(Q2,2)}, {vr(dst,16)}")
    CNR = vr(CN, 16)
    a("s_waitcnt vmcnt(0)")
    a("s_barrier")
    rd_K1(0); rd_K2(0)
    def set_m(delta):
        a(f"v_mov_b32 v{vT}, v{vM2}")
        a.nop(2)
        a(f"v_permlane32_swap_b32 v{vM2}, v{vT}")
        a.nop(1)
        a(f"v_max_f32 v{vM2}, v{vM2}, v{vT}")
        if delta: a(f"v_add_f32 v{vM2}, {f32bits(delta)}, v{vM2}")
        for i in range(16): a(f"v_sub_f32 v{CN+i}, 0, v{vM2}")
    a(f"v_mov_b32 v{vM2}, 0xff800000")
    a("s_waitcnt lgkmcnt(0)")
    qk1(S[0]); qk2(S[0])
    rd_K1(1); rd_K2(1)
    a("s_waitcnt lgkmcnt(0)")
    qk1(S[1]); qk2(S[1])
    rd_K1(0); rd_K2(0)
    for i in range(4, 8): a(f"v_mov_b32 v{P+i}, 0")
    for i in range(4): a(f"v_mov_b32 v{V2+i}, 0")
    a.nop(4)
    for i in range(8):
        a(f"v_max3_f32 v{vM2}, v{S[0]+2*i}, v{S[0]+2*i+1}, v{vM2}")
    a.nop(4)
    for i in range(8):
        a(f"v_max3_f32 v{vM2}, v{S[1]+2*i}, v{S[1]+2*i+1}, v{vM2}")
    set_m(DELTA)
    a("s_waitcnt lgkmcnt(0)")
    a.nop(1)
    qk1(S[0], CNR); qk2(S[0])
    rd_K1(1); rd_K2(1); rd_V1(0)
    check_chunk("A7b")
    a("s_barrier")
    a(f"s_mov_b32 s{sSlot}, {CH}")
    dma_chunk(sSlot)
    a(f"s_mov_b32 s{sSlot}, {2*CH}")
    a.nop(8)
    st.mark("sample")
    a(f"s_setprio {OPT.get('aprio', 0)}")
    a(f"s_mov_b32 s{sIt}, 0")
    L_loop = "A_loop"
    a(".p2align 6")
    a.label(L_loop)
    def e(cur, i): a(f"v_exp_f32 v{cur+i}, v{cur+i}")
    def p(cur, k): a(f"v_cvt_pk_bf16_f32 v{P+k}, v{cur+2*k}, v{cur+2*k+1}")
    for t in range(8):
        cur, nxt = S[t % 2], S[(t+1) % 2]
        if t == 0:
            a(f"s_cmp_lg_u32 s{sW}, 7")
            a(f"s_cbranch_scc1 A_nf0")
            a(f"s_lshl_b32 s{sT}, s{sCk}, 11")
            a(f"s_add_u32 s{sT}, s{sT}, {FL_KV*128}")
            a(f"buffer_load_dword v{vFl}, v{vFlo}, s[{R_FL}:{R_FL+3}], s{sT} offen sc1")
            a.label("A_nf0")
        if t == 6:
            a("s_waitcnt vmcnt(0)")
            a(f"s_cmp_lg_u32 s{sW}, 7")
            a(f"s_cbranch_scc1 A_nf6")
            a(f"v_cmp_ne_u32 vcc, s{sTag}, v{vFl}")
            a("s_nop 1")
            a(f"s_cmp_eq_u64 vcc, 0")
            a(f"s_cbranch_scc1 A_nf6")
            a(f"s_lshl_b32 s{sT}, s{sCk}, 4")
            poll_flags(a, vT+2, "A7c", sT, 16, FL_KV, sleep=1)
            a.label("A_nf6")
            a("s_barrier")
            dma_chunk(sSlot)
            a(f"s_add_u32 s{sSlot}, s{sSlot}, {CH}")
            a(f"s_cmp_eq_u32 s{sSlot}, {3*CH}")
            a(f"s_cselect_b32 s{sSlot}, 0, s{sSlot}")
        e(cur, 0); e(cur, 1)
        a("s_waitcnt lgkmcnt(2)")
        a(f"v_mfma_f32_32x32x16_bf16 {vr(O,16)}, {vr(V2,4)}, {vr(P+4,4)}, {vr(O,16)}")
        rd_V2(t)
        e(cur, 2); e(cur, 3); p(cur, 0); p(cur, 1)
        qk1(nxt, CNR)
        rd_K1(t+2)
        e(cur, 4); e(cur, 5); e(cur, 6); e(cur, 7); p(cur, 2); p(cur, 3)
        a("s_waitcnt lgkmcnt(2)")
        qk2(nxt)
        rd_K2(t+2)
        e(cur, 8); e(cur, 9); e(cur, 10); e(cur, 11); p(cur, 4); p(cur, 5)
        a(f"v_mfma_f32_32x32x16_bf16 {vr(O,16)}, {vr(V1,4)}, {vr(P,4)}, {vr(O,16)}")
        rd_V1(t+1)
        e(cur, 12); e(cur, 13); e(cur, 14); e(cur, 15); p(cur, 6); p(cur, 7)
    a(f"v_mov_b32 v{aK1}, v{nK1}")
    a(f"v_mov_b32 v{aK2}, v{nK2}")
    a(f"v_mov_b32 v{aV}, v{nV}")
    a(f"s_add_u32 s{sT}, s{sSlot}, {2*CH}")
    a(f"s_cmp_ge_u32 s{sT}, {3*CH}")
    a(f"s_cselect_b32 s{sT2}, {3*CH}, 0")
    a(f"s_sub_u32 s{sT}, s{sT}, s{sT2}")
    a(f"v_add_u32 v{nK1}, s{sT}, v{vA16}")
    a(f"v_add_u32 v{nK2}, s{sT}, v{bK2}")
    a(f"v_add_u32 v{nV}, s{sT}, v{bV}")
    a(f"s_add_u32 s{sIt}, s{sIt}, 1")
    a(f"s_cmp_lt_u32 s{sIt}, 8")
    a(f"s_cbranch_scc1 {L_loop}")
    a("s_waitcnt lgkmcnt(0)")
    a(f"v_mfma_f32_32x32x16_bf16 {vr(O,16)}, {vr(V2,4)}, {vr(P+4,4)}, {vr(O,16)}")
    a("s_setprio 0")
    st.mark("loop")
    if OPT.get("diag"):
        a(f"s_cmp_lg_u32 s{sW}, 0"); Ld = a.newlabel("dg"); a(f"s_cbranch_scc1 {Ld}"); diag(a, 8); diag(a, 9, neg=True); a.label(Ld)
    a.nop(16)
    L_fin, L_slow = "A_fin", "A_slow"
    a(f"s_mov_b32 s{sIt}, 0")
    a.label(L_fin)
    a(f"v_mov_b32 v{vT}, v{O+8}")
    a(f"v_mov_b32 v{vT+1}, v{O+8}")
    a.nop(2)
    a(f"v_permlane32_swap_b32 v{vT}, v{vT+1}")
    a(f"v_max3_f32 v{vT+2}, |v{O}|, |v{O+1}|, |v{O+2}|")
    for j in range(3, 12, 2):
        j2 = min(j+1, 11)
        a(f"v_max3_f32 v{vT+2}, |v{O+j}|, |v{O+j2}|, v{vT+2}")
    a(f"v_mov_b32 v{vT+3}, {f32bits(2.0**120)}")
    a(f"v_cmp_nlt_f32 vcc, v{vT+2}, v{vT+3}")
    a(f"v_cmp_nlt_f32 s[62:63], 0, v{vT+1}")
    a.nop(1)
    a(f"s_or_b64 vcc, vcc, s[62:63]")
    a(f"s_cmp_eq_u64 vcc, 0")
    a(f"s_cbranch_scc1 A_store")
    a(f"s_cmp_lg_u32 s{sIt}, 0")
    a(f"s_cbranch_scc1 A_store")
    a(f"s_branch {L_slow}")
    a.label("A_store")
    a(f"v_rcp_f32 v{vT+2}, v{vT+1}")
    a.nop(1)
    for j in range(12): a(f"v_mul_f32 v{O+j}, v{O+j}, v{vT+2}")
    for k in range(6): a(f"v_cvt_pk_bf16_f32 v{P+k}, v{O+2*k}, v{O+2*k+1}")
    a(f"s_lshl_b32 s{sT}, s{sCG}, 3")
    a(f"s_add_u32 s{sT}, s{sT}, s{sW}")
    a(f"s_mul_i32 s{sT}, s{sT}, 20")
    a(f"s_mul_i32 s{sT2}, s{sRB}, {40*1024}")
    a(f"s_add_u32 s{sT2}, s{sT2}, {WS_OF}")
    def oaddr(dst, colv):
        a(f"v_lshrrev_b32 v{dst}, 4, v{colv}")
        a(f"v_lshlrev_b32 v{dst}, 10, v{dst}")
        a(f"v_bfe_u32 v{vT+7}, v{colv}, 3, 1")
        a(f"v_lshl_add_u32 v{dst}, v{vT+7}, 9, v{dst}")
        a(f"v_and_b32 v{vT+7}, 7, v{colv}")
        a(f"v_lshl_add_u32 v{dst}, v{vT+7}, 1, v{dst}")
        a(f"v_lshl_add_u32 v{dst}, v{vN}, 4, v{dst}")
    a(f"v_lshlrev_b32 v{vT+3}, 2, v{vH}")
    a(f"v_add_u32 v{vT+3}, s{sT}, v{vT+3}")
    oaddr(vT+4, vT+3)
    a(f"buffer_store_dwordx2 v[{P}:{P+1}], v{vT+4}, s[{R_WS}:{R_WS+3}], s{sT2} offen sc1")
    a(f"v_add_u32 v{vT+3}, 8, v{vT+3}")
    oaddr(vT+5, vT+3)
    a(f"buffer_store_dwordx2 v[{P+2}:{P+3}], v{vT+5}, s[{R_WS}:{R_WS+3}], s{sT2} offen sc1")
    a(f"s_add_u32 s{sT}, s{sT}, 16")
    a(f"v_mov_b32 v{vT+3}, s{sT}")
    oaddr(vT+6, vT+3)
    a(f"v_cmp_eq_u32 vcc, 0, v{vH}")
    a(f"s_and_saveexec_b64 s[62:63], vcc")
    a(f"buffer_store_dwordx2 v[{P+4}:{P+5}], v{vT+6}, s[{R_WS}:{R_WS+3}], s{sT2} offen sc1")
    a(f"s_mov_b64 exec, s[62:63]")
    a(f"s_cmp_lg_u32 s{sTag}, 0")
    a(f"s_cbranch_scc1 A_ohave")
    get_tag(a, vT, "A8")
    a.label("A_ohave")
    a("s_waitcnt vmcnt(0)")
    a(f"s_lshl_b32 s{sT}, s{sRB}, 2")
    a(f"s_add_u32 s{sT}, s{sT}, s{sCG}")
    a(f"s_lshl_b32 s{sT}, s{sT}, 3")
    a(f"s_add_u32 s{sT}, s{sT}, s{sW}")
    set_flag(a, vT, sT, FL_O)
    st.end()
    a("s_endpgm")
    a.label(L_slow)
    a(f"v_mov_b32 v{vM2}, 0xff800000")
    a(f"s_mov_b32 s{sSoffK}, 0")
    a.label("A_slow1")
    a(f"buffer_load_dwordx4 {vr(K1,4)}, v{vA16}, s[{R_A}:{R_A+3}], s{sSoffK} offen sc1")
    a(f"buffer_load_dwordx2 {vr(K2,2)}, v{bK2}, s[{R_A}:{R_A+3}], s{sSoffK} offen sc1")
    a("s_waitcnt vmcnt(0)")
    qk1(S[0]); qk2(S[0])
    a.nop(16)
    for i in range(8):
        a(f"v_max3_f32 v{vM2}, v{S[0]+2*i}, v{S[0]+2*i+1}, v{vM2}")
    a(f"s_add_u32 s{sSoffK}, s{sSoffK}, {TS}")
    a(f"s_cmp_lt_u32 s{sSoffK}, {KVB}")
    a(f"s_cbranch_scc1 A_slow1")
    set_m(0.0)
    for i in range(16): a(f"v_mov_b32 v{O+i}, 0")
    a(f"s_mov_b32 s{sSoffK}, 0")
    a.label("A_slow2")
    a(f"buffer_load_dwordx4 {vr(K1,4)}, v{vA16}, s[{R_A}:{R_A+3}], s{sSoffK} offen sc1")
    a(f"buffer_load_dwordx2 {vr(K2,2)}, v{bK2}, s[{R_A}:{R_A+3}], s{sSoffK} offen sc1")
    a(f"buffer_load_dwordx4 {vr(V1,4)}, v{bV}, s[{R_A}:{R_A+3}], s{sSoffK} offen sc1")
    a(f"buffer_load_dwordx4 {vr(V2,4)}, v{bV}, s[{R_A}:{R_A+3}], s{sSoffK} offen offset:{VF} sc1")
    a("s_waitcnt vmcnt(0)")
    qk1(S[0], CNR); qk2(S[0])
    a.nop(16)
    for i in range(16): e(S[0], i)
    a.nop(1)
    for k in range(8): p(S[0], k)
    a.nop(2)
    a(f"v_mfma_f32_32x32x16_bf16 {vr(O,16)}, {vr(V1,4)}, {vr(P,4)}, {vr(O,16)}")
    a(f"v_mfma_f32_32x32x16_bf16 {vr(O,16)}, {vr(V2,4)}, {vr(P+4,4)}, {vr(O,16)}")
    a(f"s_add_u32 s{sSoffK}, s{sSoffK}, {TS}")
    a(f"s_cmp_lt_u32 s{sSoffK}, {KVB}")
    a(f"s_cbranch_scc1 A_slow2")
    a.nop(16)
    a(f"s_mov_b32 s{sIt}, 1")
    a(f"s_branch {L_fin}")

def role_B1(a):
    st = Stamps(a, "B1")
    st.start()
    if OPT.get("bprio"): a(f"s_setprio {OPT['bprio']}")
    sG, sC = sRB, sCG
    sSoffW, sSoffX, sLdsW, sKH, sXb = 57, 58, 59, 60, 99
    vT = 4; vW = 10; vTr, vX16, vR = 13, 14, 15
    XS = 16; WF = 48; ACC = 76
    SLOT = 24576
    a(f"s_sub_u32 s{sT2}, s2, 256")
    a(f"s_bfe_u32 s{sG}, s{sT2}, 0x20001")
    a(f"s_lshl_b32 s{sG}, s{sG}, 2")
    a(f"s_bfe_u32 s{sT}, s{sT2}, 0x20003")
    a(f"s_add_u32 s{sG}, s{sG}, s{sT}")
    a(f"s_and_b32 s{sC}, s{sT2}, 1")
    a(f"s_lshl_b32 s{sC}, s{sC}, 3")
    a(f"s_lshr_b32 s{sT}, s{sT2}, 5")
    a(f"s_add_u32 s{sC}, s{sC}, s{sT}")
    a(f"s_lshr_b32 s{sKH}, s{sW}, 2")
    a(f"v_lshlrev_b32 v{vX16}, 4, v{vLane}")
    a(f"s_and_b32 s{sT}, s{sW}, 3")
    a(f"s_mul_i32 s{sT}, s{sT}, 192")
    a(f"s_mul_i32 s{sT2}, s{sC}, 192")
    a(f"s_mul_i32 s{sT3}, s{sKH}, {320*3072}")
    a(f"s_add_u32 s{sT2}, s{sT2}, s{sT3}")
    for i in range(3):
        a(f"v_add_u32 v{vT}, s{sT}, v{vLane}")
        if i: a(f"v_add_u32 v{vT}, {64*i}, v{vT}")
        a(f"v_mul_u32_u24 v{vT+1}, 5462, v{vT}")
        a(f"v_lshrrev_b32 v{vT+1}, 16, v{vT+1}")
        a(f"v_mul_u32_u24 v{vT+2}, 12, v{vT+1}")
        a(f"v_sub_u32 v{vT}, v{vT}, v{vT+2}")
        a(f"v_lshlrev_b32 v{vT}, 4, v{vT}")
        a(f"v_mul_u32_u24 v{vT+1}, 3072, v{vT+1}")
        a(f"v_add3_u32 v{vW+i}, v{vT}, v{vT+1}, s{sT2}")
        if i: a(f"v_subrev_u32 v{vW+i}, {1024*i}, v{vW+i}")
    a(f"s_mul_i32 s{sT}, s{sKH}, 12288")
    tr_addr(a, vTr, None, 192, 8, 4, sT, vT)
    a(f"s_mul_i32 s{sLdsW}, s{sW}, 3072")
    srd(a, R_A, S_W1, S_W1+1, 640*1536*2)
    srd(a, R_B, S_B1, S_B1+1, 1536*2)
    a(f"s_mul_hi_u32 s{sT}, s{sC}, {(1<<32)//5 + 1}")
    a(f"s_mul_i32 s{sT}, s{sT}, 5")
    a(f"s_sub_u32 s{sT}, s{sC}, s{sT}")
    a(f"s_mul_i32 s{sSoffW}, s{sT}, {64*3072}")
    a(f"s_lshl_b32 s{sSoffX}, s{sT}, 12")
    a(f"s_and_b32 s{sT}, s{sW}, 3")
    a(f"s_lshl_b32 s{sT2}, s{sG}, 2")
    a(f"s_add_u32 s{sT}, s{sT}, s{sT2}")
    a(f"s_mul_i32 s{sXb}, s{sT}, {40*1024}")
    a(f"s_mul_i32 s{sT2}, s{sKH}, {20*1024}")
    a(f"s_add_u32 s{sXb}, s{sXb}, s{sT2}")
    if WS_XF: a(f"s_add_u32 s{sXb}, s{sXb}, {WS_XF}")
    def issueW(c):
        a(f"s_add_u32 m0, s{sLdsW}, {(c%3)*SLOT}")
        a(f"s_add_u32 s{sT}, s{sSoffW}, {64*3072}")
        for i in range(3):
            a(f"buffer_load_dwordx4 v{vW+i}, s[{R_A}:{R_A+3}], s{sSoffW} offen offset:{1024*i} lds")
        a(f"s_cmp_eq_u32 s{sT}, {320*3072}")
        a(f"s_cselect_b32 s{sSoffW}, 0, s{sT}")
    def issueX(c):
        xs = XS + 16*(c % 2)
        a(f"s_add_u32 s{sT2}, s{sXb}, s{sSoffX}")
        a(f"s_add_u32 s{sT}, s{sSoffX}, 4096")
        for i in range(4):
            a(f"buffer_load_dwordx4 {vr(xs+4*i,4)}, v{vX16}, s[{R_WS}:{R_WS+3}], s{sT2} offen offset:{1024*i} sc1")
        a(f"s_cmp_eq_u32 s{sT}, 20480")
        a(f"s_cselect_b32 s{sSoffX}, 0, s{sT}")
    a(f"s_cmp_lg_u32 s{sW}, 0")
    a(f"s_cbranch_scc1 B1_pre")
    get_tag(a, vT, "B1")
    a(f"s_lshl_b32 s{sT}, s{sG}, 5")
    if OPT.get("wftries", 1): poll_flags(a, vT, "B1p", sT, 32, FL_D, tries=OPT.get("wftries", 1))
    a.label("B1_pre")
    a("s_barrier")
    st.mark("prepoll")
    sJ = 96
    a(f"s_sub_u32 s{sJ}, s2, 256")
    srd(a, R_C, S_W2, S_W2+1, 1536*640*2)
    vF = 16
    a(f"v_lshrrev_b32 v32, 2, v{vLane}")
    a(f"v_mul_u32_u24 v32, 1280, v32")
    a(f"v_and_b32 v33, 3, v{vLane}")
    a(f"v_lshl_add_u32 v32, v33, 4, v32")
    a(f"s_lshl_b32 s{sT}, s{sW}, 11")
    a(f"v_add_u32 v33, s{sT}, v{vX16}")
    tr_addr(a, 34, None, 64, 4, 8, sT, vT)
    tr_addr(a, 35, None, 64, 8, 4, sT, vT)
    sDst = [92, 93]; sStp = [94, 95]
    for rnd in range(2):
        Lskip = f"B1_wf{rnd}_skip"
        a(f"s_mov_b32 s{sStp[rnd]}, -1")
        if rnd == 1:
            a(f"s_cmp_ge_u32 s{sW}, 3")
            a(f"s_cbranch_scc1 {Lskip}")
        a(f"s_and_b32 s{sT}, s{sJ}, 63")
        a(f"s_mul_i32 s{sT}, s{sT}, 11")
        a(f"s_add_u32 s{sT}, s{sT}, s{sW}")
        if rnd: a(f"s_add_u32 s{sT}, s{sT}, 8")
        a(f"s_cmp_ge_u32 s{sT}, 680")
        a(f"s_cbranch_scc1 {Lskip}")
        a(f"s_mul_hi_u32 s{sT2}, s{sT}, {(1<<32)//136 + 1}")
        a(f"s_mul_i32 s{sT3}, s{sT2}, 136")
        a(f"s_sub_u32 s{sT}, s{sT}, s{sT3}")
        a(f"s_mov_b32 s{sStp[rnd]}, s{sT}")
        a(f"s_lshr_b32 s{sT3}, s{sJ}, 6")
        a(f"s_mul_i32 s{sT3}, s{sT3}, 5")
        a(f"s_add_u32 s{sT2}, s{sT2}, s{sT3}")
        a(f"s_mul_i32 s62, s{sT2}, 136")
        a(f"s_add_u32 s62, s62, s{sT}")
        a(f"s_lshl_b32 s62, s62, 10")
        a(f"s_add_u32 s{sDst[rnd]}, s62, {WS_WF}")
        a(f"s_lshl_b32 s{sT2}, s{sT2}, 6")
        a(f"s_cmp_lt_u32 s{sT}, 96")
        a(f"s_cselect_b32 s{R_C}, s{S_W2}, s{S_WO}")
        a(f"s_cselect_b32 s{R_C+1}, s{S_W2+1}, s{S_WO+1}")
        a(f"s_cselect_b32 s63, 0, 96")
        a(f"s_mov_b32 s{R_C+2}, {640*640*2}")
        a(f"s_cbranch_scc0 B1_wf{rnd}_a")
        a(f"s_mov_b32 s{R_C+2}, {1536*640*2}")
        a.label(f"B1_wf{rnd}_a")
        a(f"s_sub_u32 s{sT3}, s{sT}, s63")
        a(f"s_mul_i32 s{sT3}, s{sT3}, {16*1280}")
        a(f"s_add_u32 s{sT3}, s{sT3}, s{sT2}")
        a(f"buffer_load_dwordx4 v[{16+4*rnd}:{19+4*rnd}], v32, s[{R_C}:{R_C+3}], s{sT3} offen")
        a.label(Lskip)
    a("s_waitcnt vmcnt(0)")
    for rnd in range(2):
        Lskip = f"B1_wg{rnd}_skip"
        a(f"s_cmp_eq_u32 s{sStp[rnd]}, -1")
        a(f"s_cbranch_scc1 {Lskip}")
        a(f"ds_write_b128 v33, v[{16+4*rnd}:{19+4*rnd}] offset:{1024*rnd}")
        a(f"s_cmp_lt_u32 s{sStp[rnd]}, 96")
        a(f"s_cbranch_scc0 B1_wf{rnd}_n")
        a(f"ds_read_b64_tr_b16 v[{24+4*rnd}:{25+4*rnd}], v34 offset:{1024*rnd}")
        a(f"ds_read_b64_tr_b16 v[{26+4*rnd}:{27+4*rnd}], v34 offset:{1024*rnd+512}")
        a(f"s_branch B1_wf{rnd}_s")
        a.label(f"B1_wf{rnd}_n")
        a(f"ds_read_b64_tr_b16 v[{24+4*rnd}:{25+4*rnd}], v35 offset:{1024*rnd}")
        a(f"ds_read_b64_tr_b16 v[{26+4*rnd}:{27+4*rnd}], v35 offset:{1024*rnd+256}")
        a.label(f"B1_wf{rnd}_s")
        a("s_waitcnt lgkmcnt(0)")
        a(f"buffer_store_dwordx4 v[{24+4*rnd}:{27+4*rnd}], v{vX16}, s[{R_WS}:{R_WS+3}], s{sDst[rnd]} offen sc1")
        a.label(Lskip)
    st.mark("wfprep")
    L_np = "B1_np"
    a(f"s_cmp_lg_u32 s{sW}, 0")
    a(f"s_cbranch_scc1 {L_np}")
    a(f"s_lshl_b32 s{sT}, s{sG}, 5")
    poll_flags(a, vT, "B1", sT, 32, FL_D)
    if OPT.get("b1kv"): poll_flags(a, vT, "B1k", None, 128, FL_KV)
    a.label(L_np)
    a("s_barrier")
    st.mark("wait_d")
    issued = []
    def iX(c): issueX(c); issued.extend([("X", c)]*4)
    def iW(c): issueW(c); issued.extend([("W", c)]*3)
    if OPT.get("b1shallow", 1):
        iW(0); iX(0)
    else:
        iW(0); iX(0)
        a("s_barrier")
        iW(1); iX(1)
        a("s_barrier")
        iW(2)
    def wreads(c, k, buf):
        base = (c % 3)*SLOT + k*16*192
        for ct in range(3):
            a(f"ds_read_b64_tr_b16 v[{WF+12*buf+4*ct}:{WF+12*buf+4*ct+1}], v{vTr} offset:{base + ct*64}")
            a(f"ds_read_b64_tr_b16 v[{WF+12*buf+4*ct+2}:{WF+12*buf+4*ct+3}], v{vTr} offset:{base + ct*64 + 4*192}")
    for c in range(5):
        last = max(i for i, e_ in enumerate(issued) if e_ in (("W", c), ("X", c)))
        a(f"s_waitcnt vmcnt({len(issued) - 1 - last})")
        a("s_barrier")
        if c == 0:
            st.mark("b0")
            a(f"s_cmp_lg_u32 s{sW}, 0")
            a(f"s_cbranch_scc1 B1_nofw")
            set_flag(a, vT, sJ, FL_W)
            a.label("B1_nofw")
        if OPT.get("b1shallow", 1):
            if c + 1 < 5: iW(c + 1); iX(c + 1)
        elif 1 <= c <= 2: iW(c + 2)
        xs = XS + 16*(c % 2)
        wreads(c, 0, 0)
        for k in range(4):
            buf = k % 2
            if k < 3:
                wreads(c, k + 1, 1 - buf)
                a("s_waitcnt lgkmcnt(6)")
            else:
                a("s_waitcnt lgkmcnt(0)")
            for ct in range(3):
                cin = "0" if (c == 0 and k == 0) else vr(ACC+16*ct,16)
                a(f"v_mfma_f32_32x32x16_bf16 {vr(ACC+16*ct,16)}, {vr(WF+12*buf+4*ct,4)}, {vr(xs+4*k,4)}, {cin}")
        if c + 2 < 5 and not OPT.get("b1shallow", 1): iX(c + 2)
    st.mark("kloop")
    a("s_setprio 3")
    a(f"s_and_b32 s{sT}, s{sW}, 3")
    a(f"s_lshl_b32 s{sT2}, s{sG}, 2")
    a(f"s_add_u32 s{sT}, s{sT}, s{sT2}")
    a(f"s_lshl_b32 s{sT2}, s{sT}, 7")
    a(f"s_add_u32 s{sT2}, s{sT2}, {WS_R}")
    a(f"v_lshlrev_b32 v{vT}, 2, v{vN}")
    a(f"buffer_load_dword v{vR}, v{vT}, s[{R_WS}:{R_WS+3}], s{sT2} offen sc1")
    a(f"s_mul_i32 s{sT2}, s{sC}, 192")
    a(f"s_lshl_b32 s{sT3}, s{sKH}, 5")
    a(f"s_add_u32 s{sT2}, s{sT2}, s{sT3}")
    a(f"v_lshlrev_b32 v{vT}, 3, v{vH}")
    B = XS
    for ct in range(3):
        for q in range(2):
            a(f"buffer_load_dwordx2 v[{B+4*ct+2*q}:{B+4*ct+2*q+1}], v{vT}, s[{R_B}:{R_B+3}], s{sT2} offen offset:{64*ct+16*q}")
    a(f"s_mul_i32 s{sT}, s{sT}, 96")
    a(f"s_mul_i32 s{sT2}, s{sC}, 6")
    a(f"s_add_u32 s{sT}, s{sT}, s{sT2}")
    a(f"s_add_u32 s{sT}, s{sT}, s{sKH}")
    a(f"s_lshl_b32 s{sXb}, s{sT}, 10")
    a(f"s_add_u32 s{sXb}, s{sXb}, {WS_H}")
    a("s_barrier")
    a.nop(4)
    T = XS + 16
    a(f"s_mul_i32 s{sT}, s{sW}, 6144")
    a(f"v_add_u32 v{vT+1}, s{sT}, v{vX16}")
    a(f"s_xor_b32 s{sT}, s{sW}, 4")
    a(f"s_mul_i32 s{sT}, s{sT}, 6144")
    a(f"v_add_u32 v{vT+2}, s{sT}, v{vX16}")
    a(f"s_cmp_eq_u32 s{sKH}, 1")
    a(f"s_cbranch_scc1 B1_x1")
    for ct in range(3):
        for q in range(2):
            a(f"ds_write_b128 v{vT+1}, {vr(ACC+16*ct+8+4*q,4)} offset:{(2*ct+q)*1024}")
    a(f"s_branch B1_x2")
    a.label("B1_x1")
    for ct in range(3):
        for q in range(2):
            a(f"ds_write_b128 v{vT+1}, {vr(ACC+16*ct+4*q,4)} offset:{(2*ct+q)*1024}")
    a.label("B1_x2")
    a("s_waitcnt lgkmcnt(0)")
    a("s_barrier")
    for i in range(6):
        a(f"ds_read_b128 {vr(T+4*i,4)}, v{vT+2} offset:{i*1024}")
    a("s_waitcnt lgkmcnt(0) vmcnt(0)")
    a(f"s_cmp_eq_u32 s{sKH}, 1")
    a(f"s_cbranch_scc1 B1_y1")
    for ct in range(3):
        for j in range(8): a(f"v_add_f32 v{T+8*ct+j}, v{T+8*ct+j}, v{ACC+16*ct+j}")
    a(f"s_branch B1_y2")
    a.label("B1_y1")
    for ct in range(3):
        for j in range(8): a(f"v_add_f32 v{T+8*ct+j}, v{T+8*ct+j}, v{ACC+16*ct+8+j}")
    a.label("B1_y2")
    TB = 56
    for ct in range(3):
        for q in range(2):
            b0 = B+4*ct+2*q
            acc = T+8*ct+4*q
            a(f"v_lshlrev_b32 v{TB}, 16, v{b0}")
            a(f"v_and_b32 v{TB+1}, 0xffff0000, v{b0}")
            a(f"v_lshlrev_b32 v{TB+2}, 16, v{b0+1}")
            a(f"v_and_b32 v{TB+3}, 0xffff0000, v{b0+1}")
            for j in range(4): a(f"v_fma_f32 v{acc+j}, v{acc+j}, v{vR}, v{TB+j}")
            for j in range(4): a(f"v_max_f32 v{acc+j}, 0, v{acc+j}")
            for j in range(4): a(f"v_mul_f32 v{acc+j}, v{acc+j}, v{acc+j}")
        for k in range(4):
            a(f"v_cvt_pk_bf16_f32 v{60+4*ct+k}, v{T+8*ct+2*k}, v{T+8*ct+2*k+1}")
    a(f"v_add_u32 v{vT}, 4096, v{vX16}")
    a(f"buffer_store_dwordx4 {vr(60,4)}, v{vX16}, s[{R_WS}:{R_WS+3}], s{sXb} offen sc1")
    a(f"buffer_store_dwordx4 {vr(64,4)}, v{vX16}, s[{R_WS}:{R_WS+3}], s{sXb} offen offset:2048 sc1")
    a(f"buffer_store_dwordx4 {vr(68,4)}, v{vT}, s[{R_WS}:{R_WS+3}], s{sXb} offen sc1")
    a("s_waitcnt vmcnt(0)")
    a("s_barrier")
    L_nf = "B1_nf"
    a(f"s_cmp_lg_u32 s{sW}, 0")
    a(f"s_cbranch_scc1 {L_nf}")
    a(f"s_lshl_b32 s{sT}, s{sG}, 4")
    a(f"s_add_u32 s{sT}, s{sT}, s{sC}")
    set_flag(a, vT, sT, FL_H)
    a.label(L_nf)
    st.mark("epi")
    st.end()
    a("s_endpgm")

def role_B2(a):
    st = Stamps(a, "B2")
    st.start()
    if OPT.get("bprio"): a(f"s_setprio {OPT['bprio']}")
    sSoffW, sSoffX, sWb, sIt, sRho, sWrapW, sRst = 57, 58, 59, 60, 61, 98, 99
    vT = 4
    vX16, vXa = 14, 15
    ACC = 16
    XR = 48
    WB = 64
    vOut = vT+3
    NXS = 8
    a(f"s_sub_u32 s{sT2}, s2, 512")
    a(f"s_bfe_u32 s{sRB}, s{sT2}, 0x20001")
    a(f"s_lshl_b32 s{sRB}, s{sRB}, 4")
    a(f"s_bfe_u32 s{sT}, s{sT2}, 0x40003")
    a(f"s_add_u32 s{sRB}, s{sRB}, s{sT}")
    a(f"s_and_b32 s{sCG}, s{sT2}, 1")
    a(f"s_lshl_b32 s{sCG}, s{sCG}, 1")
    a(f"s_lshr_b32 s{sT}, s{sT2}, 7")
    a(f"s_add_u32 s{sCG}, s{sCG}, s{sT}")
    a(f"v_lshlrev_b32 v{vX16}, 4, v{vLane}")
    a(f"s_and_b32 s{sRho}, s{sRB}, 7")
    a(f"s_min_u32 s{sT3}, s{sW}, 4")
    a(f"s_mul_i32 s{sT}, s{sCG}, 5")
    a(f"s_add_u32 s{sT}, s{sT}, s{sT3}")
    a(f"s_mul_i32 s{sWb}, s{sT}, {136*1024}")
    a(f"s_add_u32 s{sWb}, s{sWb}, {WS_WF}")
    a(f"s_lshl_b32 s{sT}, s{sT}, 6")
    srd(a, R_C, S_X, S_X+1, NX)
    a(f"s_lshl_b32 s{sT2}, s{sRB}, 5")
    a(f"v_add_u32 v{vT}, s{sT2}, v{vN}")
    a(f"v_mul_u32_u24 v{vT}, 1280, v{vT}")
    a(f"v_lshl_add_u32 v{vT}, v{vH}, 3, v{vT}")
    a(f"v_add_u32 v{vOut}, s{sT}, v{vT}")
    for q in range(4):
        a(f"buffer_load_dwordx2 v[{XR+2*q}:{XR+2*q+1}], v{vOut}, s[{R_C}:{R_C+3}], 0 offen offset:{16*q}")
    srd(a, R_C, S_B2, S_B2+1, 640*2)
    a(f"v_lshlrev_b32 v{vT}, 3, v{vH}")
    for q in range(4):
        a(f"buffer_load_dwordx2 v[{XR+8+2*q}:{XR+8+2*q+1}], v{vT}, s[{R_C}:{R_C+3}], s{sT} offen offset:{16*q}")
    for i in range(16): a(f"v_mov_b32 v{ACC+i}, 0")
    def unpack_add(q, dst):
        for (src, t) in ((XR+2*q, 32), (XR+8+2*q, 36)):
            a(f"v_lshlrev_b32 v{t}, 16, v{src}")
            a(f"v_and_b32 v{t+1}, 0xffff0000, v{src}")
            a(f"v_lshlrev_b32 v{t+2}, 16, v{src+1}")
            a(f"v_and_b32 v{t+3}, 0xffff0000, v{src+1}")
        for j in range(4): a(f"v_add_f32 v{32+j}, v{32+j}, v{36+j}")
        for j in range(4): a(f"v_add_f32 v{dst+j}, v{dst+j}, v{32+j}")
    L_side = "B2_side"
    a(f"s_cmp_ge_u32 s{sW}, 4")
    a(f"s_cbranch_scc1 {L_side}")
    a("s_barrier")
    a(f"s_lshl_b32 s{sSoffW}, s{sRho}, 13")
    a(f"s_mov_b32 s{sWrapW}, {96*1024}")
    a(f"s_mov_b32 s{sRst}, 0")
    def wload(r):
        a(f"s_add_u32 s{sT2}, s{sWb}, s{sSoffW}")
        a(f"s_add_u32 s{sT}, s{sSoffW}, 1024")
        a(f"buffer_load_dwordx4 {vr(r,4)}, v{vX16}, s[{R_WS}:{R_WS+3}], s{sT2} offen sc1")
        a(f"s_cmp_eq_u32 s{sT}, s{sWrapW}")
        a(f"s_cselect_b32 s{sSoffW}, s{sRst}, s{sT}")
    for k in range(16): wload(WB + 4*k)
    st.mark("setup")
    a(f"s_mov_b32 s{sIt}, 0")
    L1 = "B2_p1"
    a.label(L1)
    XBUF = 32
    for j in range(16):
        k = j % 8
        if k == 0:
            a("s_barrier")
            a(f"s_lshl_b32 s{sT}, s{sIt}, 1")
            if j: a(f"s_add_u32 s{sT}, s{sT}, 1")
            a(f"s_and_b32 s{sT}, s{sT}, {NXS-1}")
            a(f"s_lshl_b32 s{sT}, s{sT}, 13")
            a(f"v_add_u32 v{vXa}, s{sT}, v{vX16}")
            for i in range(3):
                a(f"ds_read_b128 {vr(XBUF+4*i,4)}, v{vXa} offset:{i*1024}")
        if j == 0:
            L1n = "B2_p1n"
            a(f"s_cmp_lg_u32 s{sIt}, 5")
            a(f"s_cbranch_scc1 {L1n}")
            a(f"s_mul_i32 s{sSoffW}, s{sRho}, {5*1024}")
            a(f"s_add_u32 s{sSoffW}, s{sSoffW}, {96*1024}")
            a(f"s_mov_b32 s{sWrapW}, {136*1024}")
            a(f"s_mov_b32 s{sRst}, {96*1024}")
            a.label(L1n)
        if k + 3 < 8:
            a(f"ds_read_b128 {vr(XBUF+4*((k+3)%4),4)}, v{vXa} offset:{(k+3)*1024}")
            a("s_waitcnt vmcnt(15) lgkmcnt(3)")
        else:
            a(f"s_waitcnt vmcnt(15) lgkmcnt({7-k})")
        a(f"v_mfma_f32_32x32x16_bf16 {vr(ACC,16)}, {vr(WB+4*j,4)}, {vr(XBUF+4*(k%4),4)}, {vr(ACC,16)}")
        wload(WB + 4*j)
    a(f"s_add_u32 s{sIt}, s{sIt}, 1")
    a(f"s_cmp_lt_u32 s{sIt}, 6")
    a(f"s_cbranch_scc1 {L1}")
    st.mark("ffn2")
    a.nop(12)
    for q in range(4): unpack_add(q, ACC+4*q)
    XBUF = XR
    NBLK = 20
    def blk(s_):
        b = s_ % NBLK
        return (WB + 4*b) if b < 16 else (32 + 4*(b-16))
    for s_ in range(16, 20): wload(blk(s_))
    a("s_barrier")
    a(f"s_branch B2_oload")
    a.label(L_side)
    a(f"s_cmp_lt_u32 s{sW}, 6")
    a(f"s_cbranch_scc1 B2_np0")
    get_tag(a, vT, "B2")
    a(f"s_cmp_eq_u32 s{sW}, 7")
    a(f"s_cbranch_scc1 B2_ph")
    a(f"s_lshl_b32 s{sT}, s{sCG}, 6")
    poll_flags(a, vT, "B2w", sT, 64, FL_W)
    a(f"s_branch B2_np0")
    a.label("B2_ph")
    a(f"s_lshr_b32 s{sT}, s{sRB}, 2")
    a(f"s_lshl_b32 s{sT}, s{sT}, 4")
    poll_flags(a, vT, "B2h", sT, 16, FL_H)
    a.label("B2_np0")
    a("s_barrier")
    a(f"s_sub_u32 s{sT3}, s{sW}, 4")
    a("s_waitcnt vmcnt(0)")
    for jj in range(1, 4):
        Ls = a.newlabel("B2_q")
        a(f"s_cmp_lg_u32 s{sT3}, {jj}")
        a(f"s_cbranch_scc1 {Ls}")
        a(f"v_mov_b32 v{XR}, v{XR+2*jj}")
        a(f"v_mov_b32 v{XR+1}, v{XR+2*jj+1}")
        a(f"v_mov_b32 v{XR+8}, v{XR+8+2*jj}")
        a(f"v_mov_b32 v{XR+9}, v{XR+8+2*jj+1}")
        a.label(Ls)
    for j in range(4): a(f"v_mov_b32 v{40+j}, 0")
    unpack_add(0, 40)
    a(f"s_lshl_b32 s{sRst}, s{sT3}, 11")
    a(f"s_lshl_b32 s{sSoffW}, s{sRho}, 13")
    a(f"s_add_u32 s{sSoffW}, s{sSoffW}, s{sRst}")
    a(f"s_add_u32 s{sWrapW}, s{sRst}, {96*1024}")
    SD = 4
    def wpair(slot):
        a(f"s_add_u32 s{sT2}, s{sWb}, s{sSoffW}")
        a(f"s_add_u32 s{sT}, s{sSoffW}, 8192")
        a(f"buffer_load_dwordx4 {vr(WB+8*slot,4)}, v{vX16}, s[{R_WS}:{R_WS+3}], s{sT2} offen sc1")
        a(f"buffer_load_dwordx4 {vr(WB+8*slot+4,4)}, v{vX16}, s[{R_WS}:{R_WS+3}], s{sT2} offen offset:1024 sc1")
        a(f"s_cmp_eq_u32 s{sT}, s{sWrapW}")
        a(f"s_cselect_b32 s{sSoffW}, s{sRst}, s{sT}")
    for c in range(SD): wpair(c)
    a(f"s_sub_u32 s{sT3}, s{sW}, 4")
    a(f"s_mul_i32 s{sT}, s{sRB}, {96*1024}")
    a(f"s_add_u32 s63, s{sT}, {WS_H}")
    a(f"s_lshl_b32 s97, s{sT3}, 11")
    a(f"s_add_u32 s63, s63, s97")
    a(f"s_lshl_b32 s{sSoffX}, s{sRho}, 13")
    a(f"v_add_u32 v{vT+5}, s97, v{vX16}")
    vXs = vT+5
    vm = Cnt(a, "vmcnt", 63)
    def xdma(c):
        a(f"s_add_u32 m0, s97, {(c % NXS)*8192}")
        a(f"s_add_u32 s{sT2}, s63, s{sSoffX}")
        a(f"s_add_u32 s{sT}, s{sSoffX}, 8192")
        for i in range(2):
            a(f"buffer_load_dwordx4 v{vX16}, s[{R_WS}:{R_WS+3}], s{sT2} offen offset:{1024*i} sc1 lds")
        a(f"s_cmp_eq_u32 s{sT}, {96*1024}")
        a(f"s_cselect_b32 s{sSoffX}, 0, s{sT}")
        vm.issue(("X", c), 2)
    for c in range(SD): vm.issue(("W", c), 2)
    XD = 6
    for c in range(XD): xdma(c)
    for c in range(12):
        vm.need(("X", c), ("W", c))
        a("s_barrier")
        if c + XD < 12: xdma(c + XD)
        for i in range(2):
            a(f"ds_read_b128 {vr(48+4*i,4)}, v{vXs} offset:{(c % NXS)*8192 + 1024*i}")
        a("s_waitcnt lgkmcnt(1)")
        a(f"v_mfma_f32_32x32x16_bf16 {vr(ACC,16)}, {vr(WB+8*(c%4),4)}, {vr(48,4)}, {vr(ACC,16)}")
        a("s_waitcnt lgkmcnt(0)")
        a(f"v_mfma_f32_32x32x16_bf16 {vr(ACC,16)}, {vr(WB+8*(c%4)+4,4)}, {vr(52,4)}, {vr(ACC,16)}")
        if c + SD < 12: wpair(c % 4); vm.issue(("W", c + SD), 2)
    a(f"s_sub_u32 s{sT3}, s{sW}, 4")
    a(f"s_lshl_b32 s{sT3}, s{sT3}, 1")
    a(f"s_mul_i32 s62, s{sRho}, 5")
    a(f"s_add_u32 s62, s62, s{sT3}")
    for m in range(5):
        for i in range(2):
            a(f"s_add_u32 s{sT}, s62, {8*m+i}")
            a(f"s_cmp_ge_u32 s{sT}, 40")
            a(f"s_cselect_b32 s{sT2}, 40, 0")
            a(f"s_sub_u32 s{sT}, s{sT}, s{sT2}")
            a(f"s_add_u32 s{sT}, s{sT}, 96")
            a(f"s_lshl_b32 s{sT}, s{sT}, 10")
            a(f"s_add_u32 s{sT}, s{sT}, s{sWb}")
            a(f"buffer_load_dwordx4 {vr(WB+4*(2*m+i),4)}, v{vX16}, s[{R_WS}:{R_WS+3}], s{sT} offen sc1")
    Lnp2 = "B2_np2"
    a(f"s_cmp_lg_u32 s{sW}, 7")
    a(f"s_cbranch_scc1 {Lnp2}")
    a(f"s_lshl_b32 s{sT}, s{sRB}, 5")
    poll_flags(a, vT, "B2o", sT, 32, FL_O, sleep=OPT.get("osleep", 2))
    a.label(Lnp2)
    st.mark("wait_o")
    a("s_barrier")
    a.label("B2_oload")
    a(f"s_mul_i32 s63, s{sRB}, {40*1024}")
    a(f"s_add_u32 s63, s63, {WS_OF}")
    a(f"s_mul_i32 s62, s{sRho}, 5")
    for i in range(5):
        a(f"s_mul_i32 s{sT}, s{sW}, 5")
        a(f"s_add_u32 s{sT}, s{sT}, {i}")
        a(f"s_add_u32 s{sT2}, s{sT}, s62")
        a(f"s_cmp_ge_u32 s{sT2}, 40")
        a(f"s_cselect_b32 s{sIt}, 40, 0")
        a(f"s_sub_u32 s{sT2}, s{sT2}, s{sIt}")
        a(f"s_lshl_b32 s{sT2}, s{sT2}, 10")
        a(f"s_add_u32 s{sT2}, s{sT2}, s63")
        a(f"s_lshl_b32 m0, s{sT}, 10")
        a("s_nop 0")
        a(f"buffer_load_dwordx4 v{vX16}, s[{R_WS}:{R_WS+3}], s{sT2} offen sc1 lds")
    a("s_waitcnt vmcnt(0)")
    a("s_barrier")
    st.mark("oload")
    a(f"s_cmp_ge_u32 s{sW}, 4")
    a(f"s_cbranch_scc1 B2_side2")
    vm = Cnt(a, "vmcnt", 63); lg = Cnt(a, "lgkmcnt", 15)
    def xread(s_):
        r = XBUF + 4*(s_ % 4)
        a(f"ds_read_b128 {vr(r,4)}, v{vX16} offset:{s_*1024}")
        lg.issue(("X", s_))
    for s_ in range(3): xread(s_)
    for s_ in range(40):
        if s_ + 3 < 40: xread(s_ + 3)
        vm.need(("W", s_))
        lg.need(("X", s_))
        a(f"v_mfma_f32_32x32x16_bf16 {vr(ACC,16)}, {vr(blk(s_),4)}, {vr(XBUF+4*(s_%4),4)}, {vr(ACC,16)}")
        if s_ + NBLK < 40:
            wload(blk(s_)); vm.issue(("W", s_ + NBLK))
    st.mark("wo")
    if OPT.get("diag"):
        a(f"s_cmp_lg_u32 s{sW}, 0"); Ld = a.newlabel("dg"); a(f"s_cbranch_scc1 {Ld}"); diag(a, 10); diag(a, 11, neg=True); a.label(Ld)
    a("s_setprio 3")
    a("s_barrier")
    a.nop(10)
    srd(a, R_C, S_OUT, S_OUT+1, NX)
    for q in range(4):
        a(f"v_cvt_pk_bf16_f32 v{32+2*q}, v{ACC+4*q}, v{ACC+4*q+1}")
        a(f"v_cvt_pk_bf16_f32 v{33+2*q}, v{ACC+4*q+2}, v{ACC+4*q+3}")
        a(f"buffer_store_dwordx2 v[{32+2*q}:{33+2*q}], v{vOut}, s[{R_C}:{R_C+3}], 0 offen offset:{16*q}")
    a("s_barrier")
    if OPT.get("diag"):
        a("s_waitcnt vmcnt(0)")
        a(f"s_cmp_lg_u32 s{sW}, 0"); Ld = a.newlabel("dg"); a(f"s_cbranch_scc1 {Ld}"); diag(a, 12); a.label(Ld)
    st.end()
    a("s_endpgm")
    a.label("B2_side2")
    for k in range(4):
        a(f"ds_read_b128 {vr(48+4*k,4)}, v{vXs} offset:{(8*(k//2)+(k%2))*1024}")
    for k in range(10):
        a(f"s_waitcnt lgkmcnt({min(3, 9-k)})")
        a(f"v_mfma_f32_32x32x16_bf16 {vr(ACC,16)}, {vr(WB+4*k,4)}, {vr(48+4*(k%4),4)}, {vr(ACC,16)}")
        if k + 4 < 10:
            a(f"ds_read_b128 {vr(48+4*(k%4),4)}, v{vXs} offset:{(8*((k+4)//2)+((k+4)%2))*1024}")
    a("s_setprio 3")
    a("s_barrier")
    a.nop(12)
    a(f"s_sub_u32 s{sT3}, s{sW}, 4")
    a(f"s_lshl_b32 s{sT}, s{sT3}, 12")
    a(f"v_add_u32 v{vT}, s{sT}, v{vX16}")
    for q in range(4):
        a(f"ds_write_b128 v{vT}, {vr(ACC+4*q,4)} offset:{q*1024}")
    a("s_waitcnt lgkmcnt(0)")
    a("s_barrier")
    a(f"s_lshl_b32 s{sT}, s{sT3}, 10")
    a(f"v_add_u32 v{vT}, s{sT}, v{vX16}")
    for jj in range(4):
        a(f"ds_read_b128 {vr(ACC+4*jj,4)}, v{vT} offset:{jj*4096}")
    a(f"s_lshl_b32 s{sT}, s{sT3}, 4")
    a(f"v_add_u32 v{vOut}, s{sT}, v{vOut}")
    srd(a, R_C, S_OUT, S_OUT+1, NX)
    a("s_waitcnt lgkmcnt(0)")
    for j in range(4):
        a(f"v_add_f32 v{ACC+j}, v{ACC+j}, v{ACC+4+j}")
        a(f"v_add_f32 v{ACC+8+j}, v{ACC+8+j}, v{ACC+12+j}")
    for j in range(4): a(f"v_add_f32 v{ACC+j}, v{ACC+j}, v{40+j}")
    for j in range(4): a(f"v_add_f32 v{ACC+j}, v{ACC+j}, v{ACC+8+j}")
    a(f"v_cvt_pk_bf16_f32 v32, v{ACC}, v{ACC+1}")
    a(f"v_cvt_pk_bf16_f32 v33, v{ACC+2}, v{ACC+3}")
    a(f"buffer_store_dwordx2 v[32:33], v{vOut}, s[{R_WS if False else R_C}:{R_C+3}], 0 offen")
    st.end()
    a("s_endpgm")

def gen():
    a = Asm()
    a("s_cmp_ge_u32 s2, 768")
    a("s_cbranch_scc1 K_end")
    a("s_load_dwordx16 s[4:19], s[0:1], 0")
    a("s_load_dwordx8 s[20:27], s[0:1], 64")
    a("s_load_dwordx2 s[28:29], s[0:1], 96")
    a(f"v_and_b32 v{vLane}, 63, v0")
    a(f"v_lshrrev_b32 v4, 6, v0")
    a(f"v_lshrrev_b32 v{vH}, 5, v{vLane}")
    a(f"v_readfirstlane_b32 s{sW}, v4")
    a(f"v_and_b32 v{vN}, 31, v{vLane}")
    a("s_waitcnt lgkmcnt(0)")
    srd(a, R_WS, S_WS, S_WS+1, WS_END)
    srd(a, R_FL, S_WS, S_WS+1, FL_SIZE, WS_FL)
    for r in (R_A, R_B, R_C): srd(a, r, S_WS, S_WS+1, WS_END)
    for i in range(4, 16): a(f"v_mov_b32 v{i}, 0")
    if OPT.get("tlb", 0):
        a(f"s_cmp_lg_u32 s{sW}, 4")
        a(f"s_cbranch_scc1 K_notlb")
        a(f"v_lshlrev_b32 v5, 18, v{vLane}")
        a(f"buffer_load_dword v0, v5, s[{R_WS}:{R_WS+3}], 0 offen")
        a(f"v_lshlrev_b32 v5, 16, v{vLane}")
        for ptr in (S_W1, S_W2, S_WO, S_OUT, S_WQ):
            a(f"global_load_dword v0, v5, s[{ptr}:{ptr+1}]") if False else None
        a.label("K_notlb")
    if OPT.get("diag"):
        a(f"s_cmp_lg_u32 s{sW}, 0")
        a("s_cbranch_scc1 K_nod")
        a("s_cmp_ge_u32 s2, 256")
        a("s_cbranch_scc1 K_nod")
        diag(a, 2)
        a.label("K_nod")
    a("s_cmp_ge_u32 s2, 512")
    a("s_cbranch_scc1 ROLE_B2")
    a("s_cmp_ge_u32 s2, 256")
    a("s_cbranch_scc1 ROLE_B1")
    role_A(a)
    a.label("ROLE_B1")
    role_B1(a)
    a.label("ROLE_B2")
    role_B2(a)
    a.label("K_end")
    a("s_endpgm")
    grid = OPT.get("grid", 768)
    s = f"; generated by gen2.py\n; @launch grid=({grid},1,1) block=(512,1,1) lds={LDS_BYTES}\n"
    s += '.amdgcn_target "amdgcn-amd-amdhsa--gfx950"\n.text\n'
    s += kernel_header(KN) + a.text()
    s += '.section .rodata,"a"\n.p2align 6\n' + kernel_desc(KN, 128, 102)
    return s

if __name__ == "__main__":
    if "--prof" in sys.argv: PROF = True
    for x in sys.argv:
        if x.startswith("-D"):
            k, _, v = x[2:].partition("="); OPT[k] = int(v) if v else 1
    open(sys.argv[1], "w").write(gen())
    if PROF: json.dump(STAMP_NAMES, open("stamps8.json", "w"))
```

```python
import sys, math, json
from asmlib import *

NAME = "parallel_sum__grouped_kv_mqa__dense_activation_squared_relu__prompt"
KN = NAME + "_kernel"
WS_XF = 0x0
WS_R  = 0x280000
WS_KV = 0x290000
WS_OF = 0x2D0000
WS_H  = 0x550000
WS_FL = 0xB50000
WS_WF = 0xBC0000
WS_END = 0xE70000
WS_DBG = 0x2000000
FL_KV, FL_D, FL_H, FL_W, FL_O = 0, 128, 640, 896, 1152
FL_N = 3200
FL_SIZE = FL_N * 128
NX = 2048 * 640 * 2
TS = 2688
VF = 704; VH = 352
KVB = 64 * TS
CH = 8 * TS
QSCALE = (20 ** -0.5) * math.log2(math.e)
DELTA = 96.0
LDS_BYTES = 81920
PROF = False
OPT = {}
SPIN_MAX = 200000

S_X, S_WQ, S_WK, S_WV, S_WO, S_W1, S_B1, S_W2, S_B2, S_OUT, S_DBG, S_WS = 4, 6, 8, 10, 12, 16, 18, 20, 22, 24, 26, 28
sW = 30
sTag = 31
R_WS = 32
R_FL = 36
R_A = 40
R_B = 44
R_C = 48
sRB, sCG, sT, sT2, sT3 = 52, 53, 54, 55, 56
vLane, vH, vN = 1, 2, 3

def diag(a, word, neg=False, va=74):
    if not OPT.get("diag") or neg: return
    L = a.newlabel("dgx")
    a(f"s_and_b32 s86, s2, 255")
    a(f"s_cmp_lg_u32 s86, {OPT.get('diagwg', 37)}")
    a(f"s_cbranch_scc1 {L}")
    a("s_memrealtime s[84:85]")
    a("s_waitcnt lgkmcnt(0)")
    a("s_mov_b64 s[86:87], exec")
    a("s_mov_b64 exec, 1")
    a(f"v_mov_b32 v{va}, s84")
    a(f"v_mov_b32 v{va+1}, {4*word}")
    a(f"global_store_dword v{va+1}, v{va}, s[{S_DBG}:{S_DBG+1}]")
    a("s_mov_b64 exec, s[86:87]")
    a.label(L)

class Stamps:
    def __init__(self, a, role): self.a = a; self.n = 1; self.names = []; self.role = role
    def start(self):
        if not PROF: return
        for i in range(68, 94): self.a(f"s_mov_b32 s{i}, 0")
        self.a("s_memrealtime s[64:65]"); self.a("s_memtime s[66:67]"); self.a("s_waitcnt lgkmcnt(0)"); self.n = 2
    def mark(self, name):
        if not PROF: return
        assert self.n < 15
        self.a(f"s_memtime s[{64+2*self.n}:{65+2*self.n}]"); self.a("s_waitcnt lgkmcnt(0)")
        self.n += 1; self.names.append(name)
    def end(self):
        if not PROF: return
        a = self.a
        a("s_waitcnt vmcnt(0)")
        self.mark("final-drain")
        a("s_memrealtime s[94:95]"); a("s_waitcnt lgkmcnt(0)")
        a("s_mov_b64 exec, 1")
        a(f"s_lshl_b32 s98, s2, 3")
        a(f"s_add_u32 s98, s98, s{sW}")
        a(f"s_lshl_b32 s98, s98, 6")
        a(f"s_add_u32 s98, s98, {WS_DBG}")
        a(f"s_add_u32 s96, s{S_WS}, s98")
        a(f"s_addc_u32 s97, s{S_WS+1}, 0")
        a(f"v_mov_b32 v0, 0")
        for i in list(range(14)) + [15]:
            a(f"v_mov_b32 v1, s{64+2*i}")
            a(f"global_store_dword v0, v1, s[96:97] offset:{4*i}")
        a(f"v_mov_b32 v1, {self.n}")
        a(f"global_store_dword v0, v1, s[96:97] offset:56")
        a("s_waitcnt vmcnt(0)")
        STAMP_NAMES[self.role] = self.names
STAMP_NAMES = {}

def bf16_round(a, dst, src):
    a(f"v_cvt_pk_bf16_f32 v{dst}, v{src}, v{src}")
    a(f"v_lshlrev_b32 v{dst}, 16, v{dst}")

def decode_rb_cg(a, j):
    a(f"s_lshr_b32 s{sCG}, s{j}, 6")
    a(f"s_and_b32 s{sRB}, s{j}, 7")
    a(f"s_lshl_b32 s{sRB}, s{sRB}, 3")
    a(f"s_bfe_u32 s{sT}, s{j}, 0x30003")
    a(f"s_add_u32 s{sRB}, s{sRB}, s{sT}")

def get_tag(a, vt, lab):
    L = f"{lab}_tag"
    a(f"s_mov_b32 s{sT3}, {SPIN_MAX}")
    a(f"v_mov_b32 v{vt}, 0")
    a.label(L)
    a(f"global_load_dword v{vt+1}, v{vt}, s[{S_DBG}:{S_DBG+1}] sc1")
    a("s_waitcnt vmcnt(0)")
    a(f"v_readfirstlane_b32 s{sTag}, v{vt+1}")
    a(f"s_sub_u32 s{sT3}, s{sT3}, 1")
    a(f"s_cmp_eq_u32 s{sT3}, 0")
    a(f"s_cbranch_scc1 {L}_done")
    a(f"s_cmp_eq_u32 s{sTag}, 0")
    a(f"s_cbranch_scc0 {L}_done")
    a("s_sleep 1")
    a(f"s_branch {L}")
    a.label(f"{L}_done")

def poll_flags(a, vt, lab, s_idx, nflags, region, tries=None, sleep=None):
    if nflags == 128:
        poll_flags(a, vt, lab + "a", None, 64, region, tries, sleep)
        poll_flags(a, vt, lab + "b", None, 64, region + 64, tries, sleep)
        return
    L = f"{lab}_poll"
    a(f"v_lshlrev_b32 v{vt}, 7, v{vLane}")
    if s_idx is None:
        a(f"s_mov_b32 s63, {region*128}")
    else:
        a(f"s_lshl_b32 s63, s{s_idx}, 7")
        if region: a(f"s_add_u32 s63, s63, {region*128}")
    a(f"s_mov_b32 s{sT3}, {tries or SPIN_MAX}")
    a("s_mov_b64 s[100:101], exec")
    if nflags < 64:
        a(f"s_mov_b32 exec_lo, {(1 << min(nflags, 32)) - 1 if nflags < 32 else -1}")
        a(f"s_mov_b32 exec_hi, {((1 << (nflags - 32)) - 1) if nflags > 32 else 0}")
    a.label(L)
    a(f"buffer_load_dword v{vt+1}, v{vt}, s[{R_FL}:{R_FL+3}], s63 offen sc1")
    a("s_waitcnt vmcnt(0)")
    a(f"v_cmp_ne_u32 vcc, s{sTag}, v{vt+1}")
    a("s_nop 1")
    a(f"s_and_b64 exec, exec, vcc")
    a(f"s_cbranch_execz {L}_done")
    a(f"s_sub_u32 s{sT3}, s{sT3}, 1")
    a(f"s_cmp_eq_u32 s{sT3}, 0")
    a(f"s_cbranch_scc1 {L}_done")
    a(f"s_sleep {sleep if sleep is not None else OPT.get('sleep', 6)}")
    a(f"s_branch {L}")
    a.label(f"{L}_done")
    a("s_mov_b64 exec, s[100:101]")

def set_flag(a, vt, s_idx, region):
    a(f"v_mov_b32 v{vt}, s{sTag}")
    a(f"v_mov_b32 v{vt+1}, 0")
    a(f"s_lshl_b32 s63, s{s_idx}, 7")
    if region: a(f"s_add_u32 s63, s63, {region*128}")
    a("s_mov_b64 s[100:101], exec")
    a("s_mov_b64 exec, 1")
    a(f"buffer_store_dword v{vt}, v{vt+1}, s[{R_FL}:{R_FL+3}], s63 offen sc1")
    a("s_mov_b64 exec, s[100:101]")

def tr_addr(a, dst, dst2, pitch, hrows, second_rows, s_base, t):
    a(f"v_bfe_u32 v{t}, v{vLane}, 2, 2")
    a(f"v_mul_u32_u24 v{t+1}, {hrows}, v{vH}")
    a(f"v_add_u32 v{t}, v{t}, v{t+1}")
    a(f"v_bfe_u32 v{t+1}, v{vLane}, 4, 1")
    a(f"v_and_b32 v{t+2}, 3, v{vLane}")
    a(f"v_lshlrev_b32 v{t+2}, 3, v{t+2}")
    a(f"v_lshl_add_u32 v{t+1}, v{t+1}, 5, v{t+2}")
    a(f"v_mul_u32_u24 v{dst}, {pitch}, v{t}")
    a(f"v_add3_u32 v{dst}, v{dst}, v{t+1}, s{s_base}")
    if dst2 is not None:
        a(f"v_add_u32 v{dst2}, {second_rows*pitch}, v{dst}")

def role_A(a):
    OPT["nopre0"] = 1
    st = Stamps(a, "A")
    st.start()
    XB = 0; XP = 1056; XH = 528; RBUF = 42240
    RING = 42496; NSTG = 3; RW = NSTG*1024; DEPTH = 16
    KSTG = 57856
    KVX = 67072
    LFL = XB + 512
    LFL2 = XB + 1040
    T4F = 75264
    SB = [0, 16384, 32768, 49152]
    QBUF = 65536; QP = 328
    sStep, sSoff, sLds, sRho, sWrap, sIt = 57, 58, 59, 60, 61, 57
    sExp, sFD = 95, 94
    vT = 4
    vVo, vTr, vTr2, vX16 = 12, 13, 14, 15
    X = 16
    TMP = 36
    vSum, vSq, vM = 52, 53, 54
    vOne, vSelLo, vSelHi = 56, 57, 58
    vR, vXa, vWst, vTag = 9, 10, 11, 61
    ACC = 16; FB = 32; WS_ = 64
    a(f"s_mov_b32 s{sT2}, s2")
    decode_rb_cg(a, sT2)
    L_notag = "A_notag"
    a(f"s_cmp_lg_u32 s2, 0")
    a(f"s_cbranch_scc1 {L_notag}")
    a(f"s_cmp_lg_u32 s{sW}, 0")
    a(f"s_cbranch_scc1 {L_notag}")
    a(f"s_memrealtime s[62:63]")
    a("s_waitcnt lgkmcnt(0)")
    a(f"s_or_b32 s62, s62, 1")
    a(f"v_mov_b32 v{vT}, s62")
    a(f"v_mov_b32 v{vT+1}, 0")
    a("s_mov_b64 exec, 1")
    a(f"global_store_dword v{vT+1}, v{vT}, s[{S_DBG}:{S_DBG+1}] sc1")
    a("s_mov_b64 exec, -1")
    a.label(L_notag)
    srd(a, R_A, S_X, S_X+1, NX)
    a(f"s_lshl_b32 s{sT}, s{sRB}, 5")
    a(f"s_lshl_b32 s{sT2}, s{sW}, 2")
    a(f"s_add_u32 s{sT}, s{sT}, s{sT2}")
    a(f"v_lshrrev_b32 v{vT}, 4, v{vLane}")
    a(f"v_add_u32 v{vT}, s{sT}, v{vT}")
    a(f"v_mul_u32_u24 v{vT}, 1280, v{vT}")
    a(f"v_and_b32 v{vT+1}, 15, v{vLane}")
    a(f"v_lshl_add_u32 v{vT}, v{vT+1}, 4, v{vT}")
    for i in range(5):
        a(f"buffer_load_dwordx4 {vr(X+4*i,4)}, v{vT}, s[{R_A}:{R_A+3}], 0 offen offset:{256*i}")
    a(f"v_lshlrev_b32 v{vX16}, 4, v{vLane}")
    a(f"s_and_b32 s{sRho}, s{sRB}, 7")
    L_nowe = "A_nowe"
    a(f"s_cmp_lt_u32 s{sW}, 5")
    a(f"s_cbranch_scc1 {L_nowe}")
    a(f"s_cmp_ge_u32 s{sCG}, 2")
    a(f"s_cbranch_scc1 {L_nowe}")
    a(f"s_cmp_eq_u32 s{sCG}, 1")
    a(f"s_cselect_b32 s{R_B}, s{S_WV}, s{S_WK}")
    a(f"s_cselect_b32 s{R_B+1}, s{S_WV+1}, s{S_WK+1}")
    a(f"s_mov_b32 s{R_B+2}, {640*20*2}")
    a(f"s_mov_b32 s{R_B+3}, 0x00020000")
    a(f"s_sub_u32 s{sT}, s{sW}, 5")
    a(f"s_mul_i32 s{sStep}, s{sT}, 13")
    a(f"s_min_u32 s{sT}, s{sT}, 1")
    a(f"s_add_u32 s{sStep}, s{sStep}, s{sT}")
    a(f"s_mul_i32 s{sT}, s{sRho}, 5")
    a(f"s_add_u32 s{sT2}, s{sStep}, s{sT}")
    a(f"s_cmp_ge_u32 s{sT2}, 40")
    a(f"s_cselect_b32 s{sT}, 40, 0")
    a(f"s_sub_u32 s{sT2}, s{sT2}, s{sT}")
    a(f"s_mul_i32 s{sSoff}, s{sT2}, 640")
    for i in range(14):
        a(f"s_add_u32 s{sT}, s{sSoff}, 640")
        a(f"buffer_load_dwordx4 {vr(WS_+4*i,4)}, v{vX16}, s[{R_B}:{R_B+3}], s{sSoff} offen")
        a(f"s_cmp_eq_u32 s{sT}, 25600")
        a(f"s_cselect_b32 s{sSoff}, 0, s{sT}")
    a.label(L_nowe)
    a("s_barrier")
    L_nq = "A_nq"
    a(f"s_cmp_ge_u32 s{sW}, 5")
    a(f"s_cbranch_scc1 {L_nq}")
    srd(a, R_B, S_WQ, S_WQ+1, 640*640*2)
    a(f"v_lshrrev_b32 v{vT}, 2, v{vLane}")
    a(f"v_mul_u32_u24 v{vT}, 1280, v{vT}")
    a(f"v_and_b32 v{vT+1}, 3, v{vLane}")
    a(f"v_lshl_add_u32 v{vT}, v{vT+1}, 4, v{vT}")
    a(f"s_mul_i32 s{sT}, s{sCG}, 320")
    a(f"s_lshl_b32 s{sT2}, s{sW}, 6")
    a(f"s_add_u32 s{sT}, s{sT}, s{sT2}")
    a(f"v_add_u32 v{vVo}, s{sT}, v{vT}")
    a(f"s_mul_i32 s{sLds}, s{sW}, {RW}")
    a(f"s_add_u32 s{sLds}, s{sLds}, {RING}")
    a(f"s_mul_i32 s{sSoff}, s{sRho}, {5*20480}")
    def wload(k):
        d = WS_ + 4*(k % DEPTH)
        a(f"s_add_u32 s{sT}, s{sSoff}, 20480")
        a(f"buffer_load_dwordx4 {vr(d,4)}, v{vVo}, s[{R_B}:{R_B+3}], s{sSoff} offen")
        a(f"s_cmp_eq_u32 s{sT}, {40*20480}")
        a(f"s_cselect_b32 s{sSoff}, 0, s{sT}")
    NW0 = OPT.get("NW0", 8)
    for k in range(NW0): wload(k)
    tr_addr(a, vTr, vTr2, 64, 8, 4, sLds, vT)
    a(f"v_add_u32 v{vWst}, s{sLds}, v{vX16}")
    a(f"s_waitcnt vmcnt({NW0})")
    a(f"s_mov_b32 s{sTag}, 0")
    a(f"s_branch A_xok")
    a.label(L_nq)
    a(f"s_waitcnt vmcnt(14)")
    a(f"s_cmp_lt_u32 s{sCG}, 2")
    a(f"s_cbranch_scc1 A_xok2")
    a(f"s_waitcnt vmcnt(0)")
    a.label("A_xok2")
    a(f"v_mov_b32 v{vT}, 0")
    a(f"global_load_dword v{vTag}, v{vT}, s[{S_DBG}:{S_DBG+1}] sc1")
    a.label("A_xok")
    st.mark("xwait")
    a(f"v_mov_b32 v{vOne}, 0x3f803f80")
    a(f"v_mov_b32 v{vSelLo}, 0x00003f80")
    a(f"v_mov_b32 v{vSelHi}, 0x3f800000")
    for i in range(4): a(f"v_mov_b32 v{TMP+i}, 0")
    for i in range(20):
        a(f"v_dot2c_f32_bf16 v{TMP+(i%2)}, v{X+i}, v{vOne}")
        a(f"v_dot2c_f32_bf16 v{TMP+2+(i%2)}, v{X+i}, v{X+i}")
    a(f"v_lshrrev_b32 v{vT}, 4, v{vLane}")
    a(f"s_lshl_b32 s{sT}, s{sW}, 2")
    a(f"v_add_u32 v{vT}, s{sT}, v{vT}")
    a(f"v_and_b32 v{vT+1}, 1, v{vLane}")
    a(f"v_mul_u32_u24 v{vT+1}, {XH}, v{vT+1}")
    a(f"v_lshl_add_u32 v{vT+1}, v{vT}, 4, v{vT+1}")
    a(f"v_add_f32 v{vSum}, v{TMP}, v{TMP+1}")
    a(f"v_add_f32 v{vSq}, v{TMP+2}, v{TMP+3}")
    a(f"v_bfe_u32 v{vT+2}, v{vLane}, 1, 3")
    a(f"s_mul_i32 s{sT}, s{sRho}, 5")
    a(f"s_sub_u32 s{sT}, 40, s{sT}")
    for ror in (8, 4, 2, 1):
        a(f"v_add_f32_dpp v{vSum}, v{vSum}, v{vSum} row_ror:{ror} row_mask:0xf bank_mask:0xf")
        a(f"v_add_f32_dpp v{vSq}, v{vSq}, v{vSq} row_ror:{ror} row_mask:0xf bank_mask:0xf")
        if ror != 1: a.nop(1)
    a(f"v_add_u32 v{vT+2}, s{sT}, v{vT+2}")
    inv = f32bits(1.0/640)
    a(f"v_mul_f32 v{vM}, {inv}, v{vSum}")
    a(f"v_mul_f32 v{TMP+1}, {inv}, v{vSq}")
    a(f"v_fma_f32 v{TMP+1}, -v{vM}, v{vM}, v{TMP+1}")
    a(f"v_max_f32 v{TMP+1}, 0, v{TMP+1}")
    bf16_round(a, TMP+1, TMP+1)
    bf16_round(a, vM, vM)
    a(f"v_add_f32 v{TMP+1}, {f32bits(1e-5)}, v{TMP+1}")
    a(f"v_sub_f32 v{vM}, 0, v{vM}")
    bf16_round(a, TMP+1, TMP+1)
    a(f"v_sqrt_f32 v{vSum}, v{TMP+1}")
    for base in range(0, 20, 8):
        g = min(8, 20-base)
        for i in range(g):
            a(f"v_dot2_f32_bf16 v{TMP+2*i}, v{X+base+i}, v{vSelLo}, v{vM}")
            a(f"v_dot2_f32_bf16 v{TMP+2*i+1}, v{X+base+i}, v{vSelHi}, v{vM}")
        if base == 0:
            bf16_round(a, vSum, vSum)
            a(f"v_rcp_f32 v{vR}, v{vSum}")
        else:
            a.nop(3)
        for i in range(g):
            a(f"v_cvt_pk_bf16_f32 v{X+base+i}, v{TMP+2*i}, v{TMP+2*i+1}")
    a(f"v_lshlrev_b32 v{vT+3}, 2, v{vT}")
    a(f"ds_write_b32 v{vT+3}, v{vR} offset:{RBUF}")
    for i in range(5):
        if i: a(f"v_add_u32 v{vT+2}, 8, v{vT+2}")
        a(f"v_subrev_u32 v{vT+3}, 40, v{vT+2}")
        a(f"v_min_u32 v{vT+3}, v{vT+3}, v{vT+2}")
        a(f"v_mul_u32_u24 v{vT+3}, {XP}, v{vT+3}")
        a(f"v_add_u32 v{vT+3}, v{vT+3}, v{vT+1}")
        a(f"ds_write_b128 v{vT+3}, {vr(X+4*i,4)} offset:{XB}")
    a(f"v_mul_u32_u24 v{vXa}, {XH}, v{vH}")
    a(f"v_lshl_add_u32 v{vXa}, v{vN}, 4, v{vXa}")
    a(f"s_cmp_ge_u32 s{sW}, 5")
    a(f"s_cbranch_scc1 A_ln5")
    for k in range(NW0, 10): wload(k)
    a(f"s_cmp_eq_u32 s{sW}, 4")
    a(f"s_cbranch_scc1 A_lnb")
    for k in range(10, DEPTH): wload(k)
    a(f"s_branch A_lnb")
    a.label("A_ln5")
    a(f"v_mov_b32 v{vT}, {LFL}")
    for i in range(4): a(f"v_mov_b32 v{TMP+i}, 0")
    a(f"ds_write_b128 v{vT}, v[{TMP}:{TMP+3}]")
    a(f"ds_write_b128 v{vT}, v[{TMP}:{TMP+3}] offset:{LFL2-LFL}")
    a("s_waitcnt vmcnt(0)")
    a(f"v_readfirstlane_b32 s{sTag}, v{vTag}")
    a.label("A_lnb")
    a("s_waitcnt lgkmcnt(0)")
    a("s_barrier")
    a(f"v_lshlrev_b32 v{vT}, 2, v{vN}")
    a(f"ds_read_b32 v{vR}, v{vT} offset:{RBUF}")
    st.mark("LN")
    if OPT.get("diag"):
        a(f"s_cmp_lg_u32 s{sW}, 0"); Ld = a.newlabel("dg"); a(f"s_cbranch_scc1 {Ld}"); diag(a, 4, va=62); diag(a, 5, neg=True, va=62); a.label(Ld)
    def ensure_tag(lab):
        a(f"s_cmp_lg_u32 s{sTag}, 0")
        a(f"s_cbranch_scc1 {lab}_have")
        get_tag(a, vT, lab)
        a.label(f"{lab}_have")
    L_kvp, L_exp, L_bar1 = "A_kvp", "A_exp", "A_bar1"
    a(f"s_cmp_ge_u32 s{sW}, 5")
    a(f"s_cbranch_scc1 {L_kvp}")
    a(f"s_cmp_eq_u32 s{sW}, 4")
    a(f"s_cbranch_scc1 A_job4")
    if OPT.get("noq"): a(f"s_branch {L_bar1}")
    def pipe_gemm(nsteps, wr, rd, need_vm, refill, cin0):
        for k in range(5):
            if k < nsteps:
                need_vm(k, -5 + k)
                wr(k)
            if 0 <= k - 2 < nsteps: rd(k - 2)
        for s_ in range(nsteps):
            n_ops = 0
            if s_ + 5 < nsteps:
                need_vm(s_ + 5, s_)
                wr(s_ + 5)
            if s_ + 3 < nsteps: rd(s_ + 3)
            for t in range(s_ + 1, s_ + 4):
                if t + 2 < nsteps: n_ops += 1
                if t < nsteps: n_ops += 3
            a(f"s_waitcnt lgkmcnt({n_ops})")
            f = FB + 8*(s_ % 4)
            cin = cin0 if s_ == 0 else vr(ACC, 16)
            a(f"v_mfma_f32_32x32x16_bf16 {vr(ACC,16)}, {vr(f,4)}, {vr(f+4,4)}, {cin}")
            refill(s_)
    def q_wr(k): a(f"ds_write_b128 v{vWst}, {vr(WS_+4*(k % DEPTH),4)} offset:{(k % NSTG)*1024}")
    def q_rd(k):
        f = FB + 8*(k % 4)
        a(f"ds_read_b64_tr_b16 v[{f}:{f+1}], v{vTr} offset:{(k % NSTG)*1024}")
        a(f"ds_read_b64_tr_b16 v[{f+2}:{f+3}], v{vTr2} offset:{(k % NSTG)*1024}")
        a(f"ds_read_b128 {vr(f+4,4)}, v{vXa} offset:{XB + k*XP}")
    def q_vm(k, s_now):
        issued = DEPTH + max(0, min(s_now, 40 - DEPTH + QOFF) - QOFF) if s_now > 0 else DEPTH
        issued = min(issued, 40)
        a(f"s_waitcnt vmcnt({issued - 1 - k})")
    QOFF = 0
    def q_refill(s_):
        if s_ + DEPTH < 40: wload(s_ + DEPTH)
    pipe_gemm(40, q_wr, q_rd, q_vm, q_refill, "0")
    st.mark("gemm")
    a.nop(12)
    a(f"v_mul_f32 v{vT}, {f32bits(QSCALE)}, v{vR}")
    for j in range(16): a(f"v_mul_f32 v{ACC+j}, v{ACC+j}, v{vT}")
    for k in range(8): a(f"v_cvt_pk_bf16_f32 v{TMP+k}, v{ACC+2*k}, v{ACC+2*k+1}")
    a(f"s_branch {L_bar1}")

    JW = WS_ + 20
    def job_loads():
        srd(a, R_B, S_WQ, S_WQ+1, 640*640*2)
        a(f"v_lshrrev_b32 v{vT}, 2, v{vLane}")
        a(f"v_mul_u32_u24 v{vT}, 1280, v{vT}")
        a(f"v_and_b32 v{vT+1}, 3, v{vLane}")
        a(f"v_lshl_add_u32 v{vT}, v{vT+1}, 4, v{vT}")
        a(f"s_mul_i32 s{sT}, s{sCG}, 320")
        a(f"s_add_u32 s{sT}, s{sT}, 256")
        a(f"v_add_u32 v{vT}, s{sT}, v{vT}")
        a(f"s_sub_u32 s{sT}, s{sW}, 4")
        a(f"s_mul_i32 s{sT}, s{sT}, 10")
        a(f"s_mul_i32 s{sT2}, s{sRho}, 5")
        a(f"s_add_u32 s{sT}, s{sT}, s{sT2}")
        a(f"s_cmp_ge_u32 s{sT}, 40")
        a(f"s_cselect_b32 s{sT2}, 40, 0")
        a(f"s_sub_u32 s{sT}, s{sT}, s{sT2}")
        a(f"s_mul_i32 s{sSoff}, s{sT}, 20480")
        for k in range(10):
            a(f"s_add_u32 s{sT}, s{sSoff}, 20480")
            a(f"buffer_load_dwordx4 {vr(JW+4*k,4)}, v{vT}, s[{R_B}:{R_B+3}], s{sSoff} offen")
            a(f"s_cmp_eq_u32 s{sT}, {40*20480}")
            a(f"s_cselect_b32 s{sSoff}, 0, s{sT}")
    def job_run(raw, vm_after):
        tr_addr(a, vTr, vTr2, 64, 8, 4, sLds, vT)
        a(f"v_add_u32 v{vWst}, s{sLds}, v{vX16}")
        a(f"s_sub_u32 s{sT}, s{sW}, 4")
        a(f"s_mul_i32 s{sT}, s{sT}, {10*XP}")
        a(f"v_add_u32 v{vVo}, s{sT}, v{vXa}")
        def j_wr(k): a(f"ds_write_b128 v{vWst}, {vr(raw+4*k,4)} offset:{(k % NSTG)*1024}")
        def j_rd(k):
            f = FB + 8*(k % 4)
            a(f"ds_read_b64_tr_b16 v[{f}:{f+1}], v{vTr} offset:{(k % NSTG)*1024}")
            a(f"ds_read_b64_tr_b16 v[{f+2}:{f+3}], v{vTr2} offset:{(k % NSTG)*1024}")
            a(f"ds_read_b128 {vr(f+4,4)}, v{vVo} offset:{k*XP}")
        def j_vm(k, s_): a(f"s_waitcnt vmcnt({9 - k + vm_after})")
        pipe_gemm(10, j_wr, j_rd, j_vm, lambda s_: None, "0")
        a("s_waitcnt lgkmcnt(0)")
        a.nop(12)
    def job_publish():
        Lp5, Lpd = a.newlabel("A_jp5"), a.newlabel("A_jpd")
        a(f"s_cmp_eq_u32 s{sW}, 5")
        a(f"s_cbranch_scc1 {Lp5}")
        for q in range(3): a(f"ds_write_b128 v{vWst}, {vr(ACC+4*q,4)} offset:{q*1024}")
        a(f"s_sub_u32 s{sT}, s{sW}, 6")
        a(f"s_lshl_b32 s{sT}, s{sT}, 10")
        a(f"s_add_u32 s{sT}, s{sT}, {T4F}")
        a(f"v_add_u32 v{vT}, s{sT}, v{vX16}")
        a(f"ds_write_b128 v{vT}, {vr(ACC+12,4)}")
        a(f"s_branch {Lpd}")
        a.label(Lp5)
        a(f"v_add_u32 v{vT}, {KVX+4096}, v{vX16}")
        for q in range(4): a(f"ds_write_b128 v{vT}, {vr(ACC+4*q,4)} offset:{q*1024}")
        a.label(Lpd)
        a(f"s_sub_u32 s{sT}, s{sW}, 5")
        a(f"s_lshl_b32 s{sT}, s{sT}, 2")
        a(f"s_add_u32 s{sT}, s{sT}, {LFL2}")
        a(f"v_mov_b32 v{vT}, s{sT}")
        a(f"v_mov_b32 v{vT+1}, 1")
        a(f"ds_write_b32 v{vT}, v{vT+1}")
    a.label("A_job4")
    job_run(WS_, 0)
    a(f"v_mov_b32 v{vT}, {LFL2}")
    a(f"s_mov_b32 s{sT3}, {SPIN_MAX}")
    a.label("A_j4spin")
    a(f"ds_read_b96 v[{vT+2}:{vT+4}], v{vT}")
    a("s_waitcnt lgkmcnt(0)")
    a(f"v_and_b32 v{vT+2}, v{vT+2}, v{vT+3}")
    a(f"v_and_b32 v{vT+2}, v{vT+2}, v{vT+4}")
    a("s_nop 0")
    a(f"v_readfirstlane_b32 s{sT}, v{vT+2}")
    a(f"s_sub_u32 s{sT3}, s{sT3}, 1")
    a(f"s_cmp_eq_u32 s{sT3}, 0")
    a(f"s_cbranch_scc1 A_j4spin_done")
    a(f"s_cmp_eq_u32 s{sT}, 1")
    a(f"s_cbranch_scc1 A_j4spin_done")
    a("s_sleep 1")
    a(f"s_branch A_j4spin")
    a.label("A_j4spin_done")
    a(f"v_add_u32 v{vT}, {KVX+4096}, v{vX16}")
    a(f"v_add_u32 v{vT+1}, {KSTG+3072}, v{vX16}")
    a(f"v_add_u32 v{vT+2}, {T4F}, v{vX16}")
    for q in range(4): a(f"ds_read_b128 {vr(64+4*q,4)}, v{vT} offset:{q*1024}")
    for p_ in range(2):
        for q in range(3): a(f"ds_read_b128 {vr(80+16*p_+4*q,4)}, v{vT+1} offset:{p_*3072 + q*1024}")
        a(f"ds_read_b128 {vr(80+16*p_+12,4)}, v{vT+2} offset:{p_*1024}")
    a("s_waitcnt lgkmcnt(0)")
    for j in range(16): a(f"v_add_f32 v{64+j}, v{64+j}, v{80+j}")
    for j in range(16): a(f"v_add_f32 v{ACC+j}, v{ACC+j}, v{96+j}")
    for j in range(16): a(f"v_add_f32 v{ACC+j}, v{ACC+j}, v{64+j}")
    st.mark("job4")
    a(f"v_mul_f32 v{vT}, {f32bits(QSCALE)}, v{vR}")
    for j in range(16): a(f"v_mul_f32 v{ACC+j}, v{ACC+j}, v{vT}")
    for k in range(8): a(f"v_cvt_pk_bf16_f32 v{TMP+k}, v{ACC+2*k}, v{ACC+2*k+1}")
    a(f"s_branch {L_bar1}")
    def export_d():
        a(f"s_mul_i32 s{sT}, s{sCG}, 2")
        a(f"s_add_u32 s{sT}, s{sT}, s{sW}")
        a(f"s_sub_u32 s{sT}, s{sT}, 6")
        a(f"s_sub_u32 s{sT2}, s{sT}, s{sRho}")
        a(f"s_and_b32 s{sT2}, s{sT2}, 7")
        a(f"s_mul_i32 s{sT2}, s{sT2}, {5*XP}")
        a(f"v_add_u32 v{vT}, s{sT2}, v{vXa}")
        for i in range(5):
            a(f"ds_read_b128 {vr(X+4*i,4)}, v{vT} offset:{XB + XP*i}")
        a(f"s_mul_i32 s{sT2}, s{sRB}, 40")
        a(f"s_mul_i32 s{sExp}, s{sT}, 5")
        a(f"s_add_u32 s{sT2}, s{sT2}, s{sExp}")
        a(f"s_lshl_b32 s{sT2}, s{sT2}, 10")
        if WS_XF: a(f"s_add_u32 s{sT2}, s{sT2}, {WS_XF}")
        a(f"s_lshl_b32 s{sFD}, s{sRB}, 3")
        a(f"s_add_u32 s{sFD}, s{sFD}, s{sT}")
        a(f"v_add_u32 v{vT+1}, 4096, v{vX16}")
        a("s_waitcnt lgkmcnt(0)")
        for i in range(4):
            a(f"buffer_store_dwordx4 {vr(X+4*i,4)}, v{vX16}, s[{R_WS}:{R_WS+3}], s{sT2} offen offset:{1024*i} sc1")
        a(f"buffer_store_dwordx4 {vr(X+16,4)}, v{vT+1}, s[{R_WS}:{R_WS+3}], s{sT2} offen sc1")
        L_nor = "A_nor"
        a(f"s_cmp_lg_u32 s{sT}, 0")
        a(f"s_cbranch_scc1 {L_nor}")
        a(f"s_lshl_b32 s{sT2}, s{sRB}, 7")
        a(f"s_add_u32 s{sT2}, s{sT2}, {WS_R}")
        a(f"v_lshlrev_b32 v{vT}, 2, v{vN}")
        a(f"buffer_store_dword v{vR}, v{vT}, s[{R_WS}:{R_WS+3}], s{sT2} offen sc1")
        a.label(L_nor)
    a.label(L_kvp)
    a("s_setprio 3")
    if OPT.get("expfirst", 0):
        a(f"s_cmp_lt_u32 s{sW}, 6")
        a(f"s_cbranch_scc1 A_noexp")
        export_d()
        a.label("A_noexp")
    a(f"s_cmp_ge_u32 s{sCG}, 2")
    a(f"s_cbranch_scc1 A_kvp_skip")
    a(f"s_sub_u32 s{sT}, s{sW}, 5")
    a(f"s_mul_i32 s{sLds}, s{sT}, 3072")
    a(f"s_add_u32 s{sLds}, s{sLds}, {KSTG}")
    tr_addr(a, vTr, vTr2, 40, 8, 4, sLds, vT)
    a(f"v_add_u32 v{vWst}, s{sLds}, v{vX16}")
    a(f"s_mul_i32 s{sT}, s{sStep}, {XP}")
    a(f"v_add_u32 v{vVo}, s{sT}, v{vXa}")
    a(f"v_add_u32 v{vT+4}, {13*XP}, v{vVo}")
    a(f"s_cmp_eq_u32 s{sW}, 5")
    a(f"s_cbranch_scc1 A_kv13")
    for i in range(4): a(f"v_mov_b32 v{WS_+52+i}, 0")
    a(f"v_mov_b32 v{vT+4}, v{vXa}")
    a.label("A_kv13")
    def k_wr(k): a(f"ds_write_b128 v{vWst}, {vr(WS_+4*k,4)} offset:{(k % NSTG)*1024}")
    def k_rd(k):
        f = FB + 8*(k % 4)
        a(f"ds_read_b64_tr_b16 v[{f}:{f+1}], v{vTr} offset:{(k % NSTG)*1024}")
        a(f"ds_read_b64_tr_b16 v[{f+2}:{f+3}], v{vTr2} offset:{(k % NSTG)*1024}")
        if k == 13: a(f"ds_read_b128 {vr(f+4,4)}, v{vT+4}")
        else: a(f"ds_read_b128 {vr(f+4,4)}, v{vVo} offset:{k*XP}")
    pipe_gemm(14, k_wr, k_rd, lambda k, s_: None, lambda s_: None, "0")
    a("s_waitcnt lgkmcnt(0)")
    job_loads()
    a(f"s_cmp_eq_u32 s{sW}, 5")
    a(f"s_cbranch_scc1 A_kv5")
    a(f"s_sub_u32 s{sT}, s{sW}, 6")
    a(f"s_lshl_b32 s{sT}, s{sT}, 12")
    a(f"s_add_u32 s{sT}, s{sT}, {KVX}")
    a(f"v_add_u32 v{vT}, s{sT}, v{vX16}")
    for q in range(4):
        a(f"ds_write_b128 v{vT}, {vr(ACC+4*q,4)} offset:{q*1024}")
    a(f"s_sub_u32 s{sT}, s{sW}, 6")
    a(f"s_lshl_b32 s{sT}, s{sT}, 2")
    a(f"s_add_u32 s{sT}, s{sT}, {LFL}")
    a(f"v_mov_b32 v{vT}, s{sT}")
    a(f"v_mov_b32 v{vT+1}, 1")
    a(f"ds_write_b32 v{vT}, v{vT+1}")
    a(f"s_branch A_kvp_done")
    a.label("A_kv5")
    a(f"v_mov_b32 v{vT}, {LFL}")
    a(f"s_mov_b32 s{sT3}, {SPIN_MAX}")
    a.label("A_kvspin")
    a(f"ds_read_b64 v[{vT+2}:{vT+3}], v{vT}")
    a("s_waitcnt lgkmcnt(0)")
    a(f"v_and_b32 v{vT+2}, v{vT+2}, v{vT+3}")
    a("s_nop 0")
    a(f"v_readfirstlane_b32 s{sT}, v{vT+2}")
    a(f"s_sub_u32 s{sT3}, s{sT3}, 1")
    a(f"s_cmp_eq_u32 s{sT3}, 0")
    a(f"s_cbranch_scc1 A_kvspin_done")
    a(f"s_cmp_eq_u32 s{sT}, 1")
    a(f"s_cbranch_scc1 A_kvspin_done")
    a("s_sleep 1")
    a(f"s_branch A_kvspin")
    a.label("A_kvspin_done")
    a(f"v_add_u32 v{vT}, {KVX}, v{vX16}")
    for p_ in range(2):
        for q in range(4):
            a(f"ds_read_b128 {vr(FB+16*p_+4*q,4)}, v{vT} offset:{p_*4096 + q*1024}")
    a("s_waitcnt lgkmcnt(0)")
    for j in range(16):
        a(f"v_add_f32 v{FB+j}, v{FB+j}, v{FB+16+j}")
    for j in range(16):
        a(f"v_add_f32 v{ACC+j}, v{ACC+j}, v{FB+j}")
    for j in range(16): a(f"v_mul_f32 v{ACC+j}, v{ACC+j}, v{vR}")
    a(f"v_cmp_eq_u32 vcc, 1, v{vH}")
    a(f"v_mov_b32 v{vT}, 1.0")
    a(f"v_mov_b32 v{vT+1}, 0")
    a(f"v_cndmask_b32 v{ACC+8}, v{ACC+8}, v{vT}, vcc")
    for j in range(9, 12): a(f"v_cndmask_b32 v{ACC+j}, v{ACC+j}, v{vT+1}, vcc")
    for j in range(12, 16): a(f"v_mov_b32 v{ACC+j}, 0")
    for k in range(8): a(f"v_cvt_pk_bf16_f32 v{TMP+k}, v{ACC+2*k}, v{ACC+2*k+1}")
    a(f"s_mul_i32 s{sT}, s{sRB}, {TS}")
    a(f"s_add_u32 s{sT}, s{sT}, {WS_KV}")
    L_v = "A_v"; L_kvdone = "A_kvdone"
    a(f"s_cmp_eq_u32 s{sCG}, 1")
    a(f"s_cbranch_scc1 {L_v}")
    a(f"buffer_store_dwordx4 {vr(TMP,4)}, v{vX16}, s[{R_WS}:{R_WS+3}], s{sT} offen sc1")
    a(f"v_lshlrev_b32 v{vT}, 3, v{vLane}")
    a(f"s_mov_b32 exec_hi, 0")
    a(f"buffer_store_dwordx2 v[{TMP+4}:{TMP+5}], v{vT}, s[{R_WS}:{R_WS+3}], s{sT} offen offset:1024 sc1")
    a(f"s_mov_b32 exec_hi, -1")
    a(f"s_branch {L_kvdone}")
    a.label(L_v)
    a(f"s_mov_b32 s{sLds}, {KVX}")
    a(f"v_lshlrev_b32 v{vT}, 6, v{vN}")
    a(f"v_lshl_add_u32 v{vT}, v{vH}, 3, v{vT}")
    a(f"v_add_u32 v{vT}, s{sLds}, v{vT}")
    for q in range(4):
        a(f"ds_write_b64 v{vT}, v[{TMP+2*q}:{TMP+2*q+1}] offset:{16*q}")
    tr_addr(a, vTr, None, 64, 4, 8, sLds, vT+1)
    for u in range(2):
        a(f"ds_read_b64_tr_b16 v[{TMP+8+4*u}:{TMP+9+4*u}], v{vTr} offset:{u*1024}")
        a(f"ds_read_b64_tr_b16 v[{TMP+10+4*u}:{TMP+11+4*u}], v{vTr} offset:{u*1024 + 512}")
    a(f"v_mul_u32_u24 v{vT}, {VH}, v{vH}")
    a(f"v_lshl_add_u32 v{vT}, v{vN}, 4, v{vT}")
    a(f"s_mov_b32 exec_lo, 0x3fffff")
    a(f"s_mov_b32 exec_hi, 0x3fffff")
    a("s_waitcnt lgkmcnt(0)")
    a(f"buffer_store_dwordx4 {vr(TMP+8,4)}, v{vT}, s[{R_WS}:{R_WS+3}], s{sT} offen offset:1280 sc1")
    a(f"buffer_store_dwordx4 {vr(TMP+12,4)}, v{vT}, s[{R_WS}:{R_WS+3}], s{sT} offen offset:{1280+VF} sc1")
    a(f"s_mov_b64 exec, -1")
    a.label(L_kvdone)
    ensure_tag("A5")
    a("s_waitcnt vmcnt(0)")
    st.mark("k5:drain")
    a(f"s_lshl_b32 s{sT}, s{sRB}, 1")
    a(f"s_add_u32 s{sT}, s{sT}, s{sCG}")
    set_flag(a, vT, sT, FL_KV)
    a(f"s_mov_b32 s{sLds}, {KSTG}")
    job_run(JW, 1)
    job_publish()
    a(f"s_branch {L_bar1}")
    a.label("A_kvp_skip")
    job_loads()
    a(f"s_cmp_lg_u32 s{sW}, 5")
    a(f"s_cbranch_scc1 A_kvp_done")
    a(f"s_mov_b32 s{sLds}, {KSTG}")
    job_run(JW, 0)
    job_publish()
    a(f"s_branch {L_bar1}")
    a.label("A_kvp_done")
    if not OPT.get("expfirst", 0): export_d()
    ensure_tag("A6")
    a(f"s_waitcnt vmcnt({10 if OPT.get('expfirst', 0) else 0})")
    st.mark("x:drain")
    set_flag(a, vT, sFD, FL_D)
    a(f"s_sub_u32 s{sT}, s{sW}, 5")
    a(f"s_mul_i32 s{sLds}, s{sT}, 3072")
    a(f"s_add_u32 s{sLds}, s{sLds}, {KSTG}")
    job_run(JW, 1)
    job_publish()
    a.label(L_bar1)
    a("s_waitcnt vmcnt(0)")
    a.label("A_bar1_nowait")
    a("s_setprio 0")
    a("s_waitcnt lgkmcnt(0)")
    a("s_barrier")
    st.mark("bar0")
    vA16 = vX16
    aK1, aK2, aV, nK1, nK2, nV = 64, 65, 66, 67, 68, 69
    bK2, bV = 70, 71
    CN = 80
    S = [16, 32]
    O = 48
    P = 96
    Q1, Q2 = 104, 108
    K1, K2 = 112, 116
    V1, V2 = 120, 124
    vM2 = 110
    sSoffK, sLdsW, sSlot, sCk = 58, 59, 60, 61
    vFl, vFlo = 72, 73
    srd(a, R_A, S_WS, S_WS+1, KVB, WS_KV)
    a(f"s_lshl_b32 s{sLdsW}, s{sW}, 10")
    a(f"v_lshlrev_b32 v{bK2}, 3, v{vN}")
    a(f"v_add_u32 v{bK2}, 1024, v{bK2}")
    a(f"v_mov_b32 v{vT}, {1280 + 21*16}")
    a(f"v_cmp_eq_u32 vcc, 1, v{vH}")
    a(f"v_min_u32 v{bV}, 21, v{vN}")
    a(f"v_lshlrev_b32 v{bV}, 4, v{bV}")
    a(f"v_cndmask_b32 v{bK2}, v{bK2}, v{vT}, vcc")
    a(f"v_mul_u32_u24 v{vT}, {VH}, v{vH}")
    a(f"v_add3_u32 v{bV}, v{bV}, v{vT}, 0")
    a(f"v_add_u32 v{bV}, 1280, v{bV}")
    def dma_chunk(slot_s):
        a(f"s_add_u32 s{sT}, s{slot_s}, s{sLdsW}")
        a(f"s_add_u32 s{sT2}, s{sSoffK}, s{sLdsW}")
        a(f"s_mov_b32 m0, s{sT}")
        a(f"s_add_u32 s{sT}, s{sT}, 8192")
        a(f"buffer_load_dwordx4 v{vA16}, s[{R_A}:{R_A+3}], s{sT2} offen sc1 lds")
        a(f"s_mov_b32 m0, s{sT}")
        a(f"s_add_u32 s{sT2}, s{sT2}, 8192")
        a(f"buffer_load_dwordx4 v{vA16}, s[{R_A}:{R_A+3}], s{sT2} offen sc1 lds")
        Ls = a.newlabel("A_d3")
        a(f"s_cmp_ge_u32 s{sW}, 5")
        a(f"s_cbranch_scc1 {Ls}")
        a(f"s_add_u32 m0, s{sT}, 8192")
        a(f"s_add_u32 s{sT2}, s{sT2}, 8192")
        a(f"buffer_load_dwordx4 v{vA16}, s[{R_A}:{R_A+3}], s{sT2} offen sc1 lds")
        a.label(Ls)
        a(f"s_add_u32 s{sSoffK}, s{sSoffK}, {CH}")
        a(f"s_cmp_eq_u32 s{sSoffK}, {8*CH}")
        a(f"s_cselect_b32 s{sSoffK}, 0, s{sSoffK}")
        a(f"s_add_u32 s{sCk}, s{sCk}, 1")
        a(f"s_and_b32 s{sCk}, s{sCk}, 7")
    L_noqw = "A_noqw"
    a(f"v_mul_u32_u24 v{vT}, {QP}, v{vN}")
    a(f"v_add_u32 v{vT}, {QBUF}, v{vT}")
    a(f"s_cmp_ge_u32 s{sW}, 5")
    a(f"s_cbranch_scc1 {L_noqw}")
    a(f"s_lshl_b32 s{sT}, s{sW}, 6")
    a(f"v_lshl_add_u32 v{vT+1}, v{vH}, 3, v{vT}")
    a(f"v_add_u32 v{vT+1}, s{sT}, v{vT+1}")
    for q in range(4):
        a(f"ds_write_b64 v{vT+1}, v[{TMP+2*q}:{TMP+2*q+1}] offset:{16*q}")
    a.label(L_noqw)
    a("s_waitcnt lgkmcnt(0)")
    a("s_barrier")
    a(f"s_mul_i32 s{sT}, s{sW}, 40")
    a(f"v_add_u32 v{vT}, s{sT}, v{vT}")
    a(f"v_lshl_add_u32 v{vT+1}, v{vH}, 3, v{vT}")
    a(f"ds_read_b64 v[{Q1}:{Q1+1}], v{vT+1}")
    a(f"ds_read_b64 v[{Q1+2}:{Q1+3}], v{vT+1} offset:16")
    a(f"ds_read_b64 v[{Q2}:{Q2+1}], v{vT} offset:32")
    a(f"v_mov_b32 v{aK1}, v{vA16}")
    a(f"v_mov_b32 v{aK2}, v{bK2}")
    a(f"v_mov_b32 v{aV}, v{bV}")
    a(f"v_add_u32 v{nK1}, {CH}, v{vA16}")
    a(f"v_add_u32 v{nK2}, {CH}, v{bK2}")
    a(f"v_add_u32 v{nV}, {CH}, v{bV}")
    for i in range(16): a(f"v_mov_b32 v{O+i}, 0")
    a(f"v_cmp_eq_u32 vcc, 1, v{vH}")
    a(f"v_mov_b32 v{vT}, 0")
    a("s_waitcnt lgkmcnt(0)")
    a(f"v_cndmask_b32 v{Q2}, v{Q2}, v{vT}, vcc")
    a(f"v_cndmask_b32 v{Q2+1}, v{Q2+1}, v{vT}, vcc")
    a(f"s_lshr_b32 s{sCk}, s{sRB}, 3")
    a(f"s_mul_i32 s{sSoffK}, s{sCk}, {CH}")
    def check_chunk(lab):
        a(f"s_cmp_lg_u32 s{sW}, 7")
        a(f"s_cbranch_scc1 {lab}_skip")
        a(f"s_lshl_b32 s{sT}, s{sCk}, 4")
        poll_flags(a, vT+2, lab, sT, 16, FL_KV, sleep=OPT.get("kvsleep", 1))
        a.label(f"{lab}_skip")
    check_chunk("A7a")
    a("s_barrier")
    st.mark("bar1")
    if OPT.get("diag"):
        a(f"s_cmp_lg_u32 s{sW}, 0"); Ld = a.newlabel("dg"); a(f"s_cbranch_scc1 {Ld}"); diag(a, 6); diag(a, 7, neg=True); a.label(Ld)
    a(f"s_mov_b32 s{sSlot}, 0")
    dma_chunk(sSlot)
    a(f"v_min_u32 v{vFlo}, 15, v{vLane}")
    a(f"v_lshlrev_b32 v{vFlo}, 7, v{vFlo}")
    def rd(dst, n, t, off, cur, nxt, op):
        v_ = cur if t < 8 else nxt
        a(f"{op} {vr(dst,n)}, v{v_} offset:{(t % 8)*TS + off}")
    def rd_K1(t): rd(K1, 4, t, 0, aK1, nK1, "ds_read_b128")
    def rd_K2(t): rd(K2, 2, t, 0, aK2, nK2, "ds_read_b64")
    def rd_V1(t): rd(V1, 4, t, 0, aV, nV, "ds_read_b128")
    def rd_V2(t): rd(V2, 4, t, VF, aV, nV, "ds_read_b128")
    def qk1(dst, c="0"): a(f"v_mfma_f32_32x32x16_bf16 {vr(dst,16)}, {vr(K1,4)}, {vr(Q1,4)}, {c}")
    def qk2(dst): a(f"v_mfma_f32_32x32x8_bf16 {vr(dst,16)}, {vr(K2,2)}, {vr(Q2,2)}, {vr(dst,16)}")
    CNR = vr(CN, 16)
    a("s_waitcnt vmcnt(0)")
    a("s_barrier")
    rd_K1(0); rd_K2(0)
    def set_m(delta):
        a(f"v_mov_b32 v{vT}, v{vM2}")
        a.nop(2)
        a(f"v_permlane32_swap_b32 v{vM2}, v{vT}")
        a.nop(1)
        a(f"v_max_f32 v{vM2}, v{vM2}, v{vT}")
        if delta: a(f"v_add_f32 v{vM2}, {f32bits(delta)}, v{vM2}")
        for i in range(16): a(f"v_sub_f32 v{CN+i}, 0, v{vM2}")
    a(f"v_mov_b32 v{vM2}, 0xff800000")
    a("s_waitcnt lgkmcnt(0)")
    qk1(S[0]); qk2(S[0])
    rd_K1(1); rd_K2(1)
    a("s_waitcnt lgkmcnt(0)")
    qk1(S[1]); qk2(S[1])
    rd_K1(0); rd_K2(0)
    for i in range(4, 8): a(f"v_mov_b32 v{P+i}, 0")
    for i in range(4): a(f"v_mov_b32 v{V2+i}, 0")
    a.nop(4)
    for i in range(8):
        a(f"v_max3_f32 v{vM2}, v{S[0]+2*i}, v{S[0]+2*i+1}, v{vM2}")
    a.nop(4)
    for i in range(8):
        a(f"v_max3_f32 v{vM2}, v{S[1]+2*i}, v{S[1]+2*i+1}, v{vM2}")
    set_m(DELTA)
    a("s_waitcnt lgkmcnt(0)")
    a.nop(1)
    qk1(S[0], CNR); qk2(S[0])
    rd_K1(1); rd_K2(1); rd_V1(0)
    check_chunk("A7b")
    a("s_barrier")
    a(f"s_mov_b32 s{sSlot}, {CH}")
    dma_chunk(sSlot)
    a(f"s_mov_b32 s{sSlot}, {2*CH}")
    a.nop(8)
    st.mark("sample")
    a(f"s_setprio {OPT.get('aprio', 0)}")
    a(f"s_mov_b32 s{sIt}, 0")
    L_loop = "A_loop"
    a(".p2align 6")
    a.label(L_loop)
    def e(cur, i): a(f"v_exp_f32 v{cur+i}, v{cur+i}")
    def p(cur, k): a(f"v_cvt_pk_bf16_f32 v{P+k}, v{cur+2*k}, v{cur+2*k+1}")
    for t in range(8):
        cur, nxt = S[t % 2], S[(t+1) % 2]
        if t == 0:
            a(f"s_cmp_lg_u32 s{sW}, 7")
            a(f"s_cbranch_scc1 A_nf0")
            a(f"s_lshl_b32 s{sT}, s{sCk}, 11")
            a(f"s_add_u32 s{sT}, s{sT}, {FL_KV*128}")
            a(f"buffer_load_dword v{vFl}, v{vFlo}, s[{R_FL}:{R_FL+3}], s{sT} offen sc1")
            a.label("A_nf0")
        if t == 6:
            a("s_waitcnt vmcnt(0)")
            a(f"s_cmp_lg_u32 s{sW}, 7")
            a(f"s_cbranch_scc1 A_nf6")
            a(f"v_cmp_ne_u32 vcc, s{sTag}, v{vFl}")
            a("s_nop 1")
            a(f"s_cmp_eq_u64 vcc, 0")
            a(f"s_cbranch_scc1 A_nf6")
            a(f"s_lshl_b32 s{sT}, s{sCk}, 4")
            poll_flags(a, vT+2, "A7c", sT, 16, FL_KV, sleep=1)
            a.label("A_nf6")
            a("s_barrier")
            dma_chunk(sSlot)
            a(f"s_add_u32 s{sSlot}, s{sSlot}, {CH}")
            a(f"s_cmp_eq_u32 s{sSlot}, {3*CH}")
            a(f"s_cselect_b32 s{sSlot}, 0, s{sSlot}")
        e(cur, 0); e(cur, 1)
        a("s_waitcnt lgkmcnt(2)")
        a(f"v_mfma_f32_32x32x16_bf16 {vr(O,16)}, {vr(V2,4)}, {vr(P+4,4)}, {vr(O,16)}")
        rd_V2(t)
        e(cur, 2); e(cur, 3); p(cur, 0); p(cur, 1)
        qk1(nxt, CNR)
        rd_K1(t+2)
        e(cur, 4); e(cur, 5); e(cur, 6); e(cur, 7); p(cur, 2); p(cur, 3)
        a("s_waitcnt lgkmcnt(2)")
        qk2(nxt)
        rd_K2(t+2)
        e(cur, 8); e(cur, 9); e(cur, 10); e(cur, 11); p(cur, 4); p(cur, 5)
        a(f"v_mfma_f32_32x32x16_bf16 {vr(O,16)}, {vr(V1,4)}, {vr(P,4)}, {vr(O,16)}")
        rd_V1(t+1)
        e(cur, 12); e(cur, 13); e(cur, 14); e(cur, 15); p(cur, 6); p(cur, 7)
    a(f"v_mov_b32 v{aK1}, v{nK1}")
    a(f"v_mov_b32 v{aK2}, v{nK2}")
    a(f"v_mov_b32 v{aV}, v{nV}")
    a(f"s_add_u32 s{sT}, s{sSlot}, {2*CH}")
    a(f"s_cmp_ge_u32 s{sT}, {3*CH}")
    a(f"s_cselect_b32 s{sT2}, {3*CH}, 0")
    a(f"s_sub_u32 s{sT}, s{sT}, s{sT2}")
    a(f"v_add_u32 v{nK1}, s{sT}, v{vA16}")
    a(f"v_add_u32 v{nK2}, s{sT}, v{bK2}")
    a(f"v_add_u32 v{nV}, s{sT}, v{bV}")
    a(f"s_add_u32 s{sIt}, s{sIt}, 1")
    a(f"s_cmp_lt_u32 s{sIt}, 8")
    a(f"s_cbranch_scc1 {L_loop}")
    a("s_waitcnt lgkmcnt(0)")
    a(f"v_mfma_f32_32x32x16_bf16 {vr(O,16)}, {vr(V2,4)}, {vr(P+4,4)}, {vr(O,16)}")
    a("s_setprio 0")
    st.mark("loop")
    if OPT.get("diag"):
        a(f"s_cmp_lg_u32 s{sW}, 0"); Ld = a.newlabel("dg"); a(f"s_cbranch_scc1 {Ld}"); diag(a, 8); diag(a, 9, neg=True); a.label(Ld)
    a.nop(16)
    L_fin, L_slow = "A_fin", "A_slow"
    a(f"s_mov_b32 s{sIt}, 0")
    a.label(L_fin)
    a(f"v_mov_b32 v{vT}, v{O+8}")
    a(f"v_mov_b32 v{vT+1}, v{O+8}")
    a.nop(2)
    a(f"v_permlane32_swap_b32 v{vT}, v{vT+1}")
    a(f"v_max3_f32 v{vT+2}, |v{O}|, |v{O+1}|, |v{O+2}|")
    for j in range(3, 12, 2):
        j2 = min(j+1, 11)
        a(f"v_max3_f32 v{vT+2}, |v{O+j}|, |v{O+j2}|, v{vT+2}")
    a(f"v_mov_b32 v{vT+3}, {f32bits(2.0**120)}")
    a(f"v_cmp_nlt_f32 vcc, v{vT+2}, v{vT+3}")
    a(f"v_cmp_nlt_f32 s[62:63], 0, v{vT+1}")
    a.nop(1)
    a(f"s_or_b64 vcc, vcc, s[62:63]")
    a(f"s_cmp_eq_u64 vcc, 0")
    a(f"s_cbranch_scc1 A_store")
    a(f"s_cmp_lg_u32 s{sIt}, 0")
    a(f"s_cbranch_scc1 A_store")
    a(f"s_branch {L_slow}")
    a.label("A_store")
    a(f"v_rcp_f32 v{vT+2}, v{vT+1}")
    a.nop(1)
    for j in range(12): a(f"v_mul_f32 v{O+j}, v{O+j}, v{vT+2}")
    for k in range(6): a(f"v_cvt_pk_bf16_f32 v{P+k}, v{O+2*k}, v{O+2*k+1}")
    a(f"s_lshl_b32 s{sT}, s{sCG}, 3")
    a(f"s_add_u32 s{sT}, s{sT}, s{sW}")
    a(f"s_mul_i32 s{sT}, s{sT}, 20")
    a(f"s_mul_i32 s{sT2}, s{sRB}, {40*1024}")
    a(f"s_add_u32 s{sT2}, s{sT2}, {WS_OF}")
    def oaddr(dst, colv):
        a(f"v_lshrrev_b32 v{dst}, 4, v{colv}")
        a(f"v_lshlrev_b32 v{dst}, 10, v{dst}")
        a(f"v_bfe_u32 v{vT+7}, v{colv}, 3, 1")
        a(f"v_lshl_add_u32 v{dst}, v{vT+7}, 9, v{dst}")
        a(f"v_and_b32 v{vT+7}, 7, v{colv}")
        a(f"v_lshl_add_u32 v{dst}, v{vT+7}, 1, v{dst}")
        a(f"v_lshl_add_u32 v{dst}, v{vN}, 4, v{dst}")
    a(f"v_lshlrev_b32 v{vT+3}, 2, v{vH}")
    a(f"v_add_u32 v{vT+3}, s{sT}, v{vT+3}")
    oaddr(vT+4, vT+3)
    a(f"buffer_store_dwordx2 v[{P}:{P+1}], v{vT+4}, s[{R_WS}:{R_WS+3}], s{sT2} offen sc1")
    a(f"v_add_u32 v{vT+3}, 8, v{vT+3}")
    oaddr(vT+5, vT+3)
    a(f"buffer_store_dwordx2 v[{P+2}:{P+3}], v{vT+5}, s[{R_WS}:{R_WS+3}], s{sT2} offen sc1")
    a(f"s_add_u32 s{sT}, s{sT}, 16")
    a(f"v_mov_b32 v{vT+3}, s{sT}")
    oaddr(vT+6, vT+3)
    a(f"v_cmp_eq_u32 vcc, 0, v{vH}")
    a(f"s_and_saveexec_b64 s[62:63], vcc")
    a(f"buffer_store_dwordx2 v[{P+4}:{P+5}], v{vT+6}, s[{R_WS}:{R_WS+3}], s{sT2} offen sc1")
    a(f"s_mov_b64 exec, s[62:63]")
    a(f"s_cmp_lg_u32 s{sTag}, 0")
    a(f"s_cbranch_scc1 A_ohave")
    get_tag(a, vT, "A8")
    a.label("A_ohave")
    a("s_waitcnt vmcnt(0)")
    a(f"s_lshl_b32 s{sT}, s{sRB}, 2")
    a(f"s_add_u32 s{sT}, s{sT}, s{sCG}")
    a(f"s_lshl_b32 s{sT}, s{sT}, 3")
    a(f"s_add_u32 s{sT}, s{sT}, s{sW}")
    set_flag(a, vT, sT, FL_O)
    st.end()
    a("s_endpgm")
    a.label(L_slow)
    a(f"v_mov_b32 v{vM2}, 0xff800000")
    a(f"s_mov_b32 s{sSoffK}, 0")
    a.label("A_slow1")
    a(f"buffer_load_dwordx4 {vr(K1,4)}, v{vA16}, s[{R_A}:{R_A+3}], s{sSoffK} offen sc1")
    a(f"buffer_load_dwordx2 {vr(K2,2)}, v{bK2}, s[{R_A}:{R_A+3}], s{sSoffK} offen sc1")
    a("s_waitcnt vmcnt(0)")
    qk1(S[0]); qk2(S[0])
    a.nop(16)
    for i in range(8):
        a(f"v_max3_f32 v{vM2}, v{S[0]+2*i}, v{S[0]+2*i+1}, v{vM2}")
    a(f"s_add_u32 s{sSoffK}, s{sSoffK}, {TS}")
    a(f"s_cmp_lt_u32 s{sSoffK}, {KVB}")
    a(f"s_cbranch_scc1 A_slow1")
    set_m(0.0)
    for i in range(16): a(f"v_mov_b32 v{O+i}, 0")
    a(f"s_mov_b32 s{sSoffK}, 0")
    a.label("A_slow2")
    a(f"buffer_load_dwordx4 {vr(K1,4)}, v{vA16}, s[{R_A}:{R_A+3}], s{sSoffK} offen sc1")
    a(f"buffer_load_dwordx2 {vr(K2,2)}, v{bK2}, s[{R_A}:{R_A+3}], s{sSoffK} offen sc1")
    a(f"buffer_load_dwordx4 {vr(V1,4)}, v{bV}, s[{R_A}:{R_A+3}], s{sSoffK} offen sc1")
    a(f"buffer_load_dwordx4 {vr(V2,4)}, v{bV}, s[{R_A}:{R_A+3}], s{sSoffK} offen offset:{VF} sc1")
    a("s_waitcnt vmcnt(0)")
    qk1(S[0], CNR); qk2(S[0])
    a.nop(16)
    for i in range(16): e(S[0], i)
    a.nop(1)
    for k in range(8): p(S[0], k)
    a.nop(2)
    a(f"v_mfma_f32_32x32x16_bf16 {vr(O,16)}, {vr(V1,4)}, {vr(P,4)}, {vr(O,16)}")
    a(f"v_mfma_f32_32x32x16_bf16 {vr(O,16)}, {vr(V2,4)}, {vr(P+4,4)}, {vr(O,16)}")
    a(f"s_add_u32 s{sSoffK}, s{sSoffK}, {TS}")
    a(f"s_cmp_lt_u32 s{sSoffK}, {KVB}")
    a(f"s_cbranch_scc1 A_slow2")
    a.nop(16)
    a(f"s_mov_b32 s{sIt}, 1")
    a(f"s_branch {L_fin}")

def role_B1(a):
    st = Stamps(a, "B1")
    st.start()
    if OPT.get("bprio"): a(f"s_setprio {OPT['bprio']}")
    sG, sC = sRB, sCG
    sSoffW, sSoffX, sLdsW, sKH, sXb = 57, 58, 59, 60, 99
    vT = 4; vW = 10; vTr, vX16, vR = 13, 14, 15
    XS = 16; WF = 48; ACC = 76
    SLOT = 24576
    a(f"s_sub_u32 s{sT2}, s2, 256")
    a(f"s_bfe_u32 s{sG}, s{sT2}, 0x20001")
    a(f"s_lshl_b32 s{sG}, s{sG}, 2")
    a(f"s_bfe_u32 s{sT}, s{sT2}, 0x20003")
    a(f"s_add_u32 s{sG}, s{sG}, s{sT}")
    a(f"s_and_b32 s{sC}, s{sT2}, 1")
    a(f"s_lshl_b32 s{sC}, s{sC}, 3")
    a(f"s_lshr_b32 s{sT}, s{sT2}, 5")
    a(f"s_add_u32 s{sC}, s{sC}, s{sT}")
    a(f"s_lshr_b32 s{sKH}, s{sW}, 2")
    a(f"v_lshlrev_b32 v{vX16}, 4, v{vLane}")
    a(f"s_and_b32 s{sT}, s{sW}, 3")
    a(f"s_mul_i32 s{sT}, s{sT}, 192")
    a(f"s_mul_i32 s{sT2}, s{sC}, 192")
    a(f"s_mul_i32 s{sT3}, s{sKH}, {320*3072}")
    a(f"s_add_u32 s{sT2}, s{sT2}, s{sT3}")
    for i in range(3):
        a(f"v_add_u32 v{vT}, s{sT}, v{vLane}")
        if i: a(f"v_add_u32 v{vT}, {64*i}, v{vT}")
        a(f"v_mul_u32_u24 v{vT+1}, 5462, v{vT}")
        a(f"v_lshrrev_b32 v{vT+1}, 16, v{vT+1}")
        a(f"v_mul_u32_u24 v{vT+2}, 12, v{vT+1}")
        a(f"v_sub_u32 v{vT}, v{vT}, v{vT+2}")
        a(f"v_lshlrev_b32 v{vT}, 4, v{vT}")
        a(f"v_mul_u32_u24 v{vT+1}, 3072, v{vT+1}")
        a(f"v_add3_u32 v{vW+i}, v{vT}, v{vT+1}, s{sT2}")
        if i: a(f"v_subrev_u32 v{vW+i}, {1024*i}, v{vW+i}")
    a(f"s_mul_i32 s{sT}, s{sKH}, 12288")
    tr_addr(a, vTr, None, 192, 8, 4, sT, vT)
    a(f"s_mul_i32 s{sLdsW}, s{sW}, 3072")
    srd(a, R_A, S_W1, S_W1+1, 640*1536*2)
    srd(a, R_B, S_B1, S_B1+1, 1536*2)
    a(f"s_mul_hi_u32 s{sT}, s{sC}, {(1<<32)//5 + 1}")
    a(f"s_mul_i32 s{sT}, s{sT}, 5")
    a(f"s_sub_u32 s{sT}, s{sC}, s{sT}")
    a(f"s_mul_i32 s{sSoffW}, s{sT}, {64*3072}")
    a(f"s_lshl_b32 s{sSoffX}, s{sT}, 12")
    a(f"s_and_b32 s{sT}, s{sW}, 3")
    a(f"s_lshl_b32 s{sT2}, s{sG}, 2")
    a(f"s_add_u32 s{sT}, s{sT}, s{sT2}")
    a(f"s_mul_i32 s{sXb}, s{sT}, {40*1024}")
    a(f"s_mul_i32 s{sT2}, s{sKH}, {20*1024}")
    a(f"s_add_u32 s{sXb}, s{sXb}, s{sT2}")
    if WS_XF: a(f"s_add_u32 s{sXb}, s{sXb}, {WS_XF}")
    def issueW(c):
        a(f"s_add_u32 m0, s{sLdsW}, {(c%3)*SLOT}")
        a(f"s_add_u32 s{sT}, s{sSoffW}, {64*3072}")
        for i in range(3):
            a(f"buffer_load_dwordx4 v{vW+i}, s[{R_A}:{R_A+3}], s{sSoffW} offen offset:{1024*i} lds")
        a(f"s_cmp_eq_u32 s{sT}, {320*3072}")
        a(f"s_cselect_b32 s{sSoffW}, 0, s{sT}")
    def issueX(c):
        xs = XS + 16*(c % 2)
        a(f"s_add_u32 s{sT2}, s{sXb}, s{sSoffX}")
        a(f"s_add_u32 s{sT}, s{sSoffX}, 4096")
        for i in range(4):
            a(f"buffer_load_dwordx4 {vr(xs+4*i,4)}, v{vX16}, s[{R_WS}:{R_WS+3}], s{sT2} offen offset:{1024*i} sc1")
        a(f"s_cmp_eq_u32 s{sT}, 20480")
        a(f"s_cselect_b32 s{sSoffX}, 0, s{sT}")
    a(f"s_cmp_lg_u32 s{sW}, 0")
    a(f"s_cbranch_scc1 B1_pre")
    get_tag(a, vT, "B1")
    a(f"s_lshl_b32 s{sT}, s{sG}, 5")
    if OPT.get("wftries", 1): poll_flags(a, vT, "B1p", sT, 32, FL_D, tries=OPT.get("wftries", 1))
    a.label("B1_pre")
    a("s_barrier")
    st.mark("prepoll")
    sJ = 96
    a(f"s_sub_u32 s{sJ}, s2, 256")
    srd(a, R_C, S_W2, S_W2+1, 1536*640*2)
    vF = 16
    a(f"v_lshrrev_b32 v32, 2, v{vLane}")
    a(f"v_mul_u32_u24 v32, 1280, v32")
    a(f"v_and_b32 v33, 3, v{vLane}")
    a(f"v_lshl_add_u32 v32, v33, 4, v32")
    a(f"s_lshl_b32 s{sT}, s{sW}, 11")
    a(f"v_add_u32 v33, s{sT}, v{vX16}")
    tr_addr(a, 34, None, 64, 4, 8, sT, vT)
    tr_addr(a, 35, None, 64, 8, 4, sT, vT)
    sDst = [92, 93]; sStp = [94, 95]
    for rnd in range(2):
        Lskip = f"B1_wf{rnd}_skip"
        a(f"s_mov_b32 s{sStp[rnd]}, -1")
        if rnd == 1:
            a(f"s_cmp_ge_u32 s{sW}, 3")
            a(f"s_cbranch_scc1 {Lskip}")
        a(f"s_and_b32 s{sT}, s{sJ}, 63")
        a(f"s_mul_i32 s{sT}, s{sT}, 11")
        a(f"s_add_u32 s{sT}, s{sT}, s{sW}")
        if rnd: a(f"s_add_u32 s{sT}, s{sT}, 8")
        a(f"s_cmp_ge_u32 s{sT}, 680")
        a(f"s_cbranch_scc1 {Lskip}")
        a(f"s_mul_hi_u32 s{sT2}, s{sT}, {(1<<32)//136 + 1}")
        a(f"s_mul_i32 s{sT3}, s{sT2}, 136")
        a(f"s_sub_u32 s{sT}, s{sT}, s{sT3}")
        a(f"s_mov_b32 s{sStp[rnd]}, s{sT}")
        a(f"s_lshr_b32 s{sT3}, s{sJ}, 6")
        a(f"s_mul_i32 s{sT3}, s{sT3}, 5")
        a(f"s_add_u32 s{sT2}, s{sT2}, s{sT3}")
        a(f"s_mul_i32 s62, s{sT2}, 136")
        a(f"s_add_u32 s62, s62, s{sT}")
        a(f"s_lshl_b32 s62, s62, 10")
        a(f"s_add_u32 s{sDst[rnd]}, s62, {WS_WF}")
        a(f"s_lshl_b32 s{sT2}, s{sT2}, 6")
        a(f"s_cmp_lt_u32 s{sT}, 96")
        a(f"s_cselect_b32 s{R_C}, s{S_W2}, s{S_WO}")
        a(f"s_cselect_b32 s{R_C+1}, s{S_W2+1}, s{S_WO+1}")
        a(f"s_cselect_b32 s63, 0, 96")
        a(f"s_mov_b32 s{R_C+2}, {640*640*2}")
        a(f"s_cbranch_scc0 B1_wf{rnd}_a")
        a(f"s_mov_b32 s{R_C+2}, {1536*640*2}")
        a.label(f"B1_wf{rnd}_a")
        a(f"s_sub_u32 s{sT3}, s{sT}, s63")
        a(f"s_mul_i32 s{sT3}, s{sT3}, {16*1280}")
        a(f"s_add_u32 s{sT3}, s{sT3}, s{sT2}")
        a(f"buffer_load_dwordx4 v[{16+4*rnd}:{19+4*rnd}], v32, s[{R_C}:{R_C+3}], s{sT3} offen")
        a.label(Lskip)
    a("s_waitcnt vmcnt(0)")
    for rnd in range(2):
        Lskip = f"B1_wg{rnd}_skip"
        a(f"s_cmp_eq_u32 s{sStp[rnd]}, -1")
        a(f"s_cbranch_scc1 {Lskip}")
        a(f"ds_write_b128 v33, v[{16+4*rnd}:{19+4*rnd}] offset:{1024*rnd}")
        a(f"s_cmp_lt_u32 s{sStp[rnd]}, 96")
        a(f"s_cbranch_scc0 B1_wf{rnd}_n")
        a(f"ds_read_b64_tr_b16 v[{24+4*rnd}:{25+4*rnd}], v34 offset:{1024*rnd}")
        a(f"ds_read_b64_tr_b16 v[{26+4*rnd}:{27+4*rnd}], v34 offset:{1024*rnd+512}")
        a(f"s_branch B1_wf{rnd}_s")
        a.label(f"B1_wf{rnd}_n")
        a(f"ds_read_b64_tr_b16 v[{24+4*rnd}:{25+4*rnd}], v35 offset:{1024*rnd}")
        a(f"ds_read_b64_tr_b16 v[{26+4*rnd}:{27+4*rnd}], v35 offset:{1024*rnd+256}")
        a.label(f"B1_wf{rnd}_s")
        a("s_waitcnt lgkmcnt(0)")
        a(f"buffer_store_dwordx4 v[{24+4*rnd}:{27+4*rnd}], v{vX16}, s[{R_WS}:{R_WS+3}], s{sDst[rnd]} offen sc1")
        a.label(Lskip)
    st.mark("wfprep")
    L_np = "B1_np"
    a(f"s_cmp_lg_u32 s{sW}, 0")
    a(f"s_cbranch_scc1 {L_np}")
    a(f"s_lshl_b32 s{sT}, s{sG}, 5")
    poll_flags(a, vT, "B1", sT, 32, FL_D)
    if OPT.get("b1kv"): poll_flags(a, vT, "B1k", None, 128, FL_KV)
    a.label(L_np)
    a("s_barrier")
    st.mark("wait_d")
    issued = []
    def iX(c): issueX(c); issued.extend([("X", c)]*4)
    def iW(c): issueW(c); issued.extend([("W", c)]*3)
    if OPT.get("b1shallow", 1):
        iW(0); iX(0)
    else:
        iW(0); iX(0)
        a("s_barrier")
        iW(1); iX(1)
        a("s_barrier")
        iW(2)
    def wreads(c, k, buf):
        base = (c % 3)*SLOT + k*16*192
        for ct in range(3):
            a(f"ds_read_b64_tr_b16 v[{WF+12*buf+4*ct}:{WF+12*buf+4*ct+1}], v{vTr} offset:{base + ct*64}")
            a(f"ds_read_b64_tr_b16 v[{WF+12*buf+4*ct+2}:{WF+12*buf+4*ct+3}], v{vTr} offset:{base + ct*64 + 4*192}")
    for c in range(5):
        last = max(i for i, e_ in enumerate(issued) if e_ in (("W", c), ("X", c)))
        a(f"s_waitcnt vmcnt({len(issued) - 1 - last})")
        a("s_barrier")
        if c == 0:
            st.mark("b0")
            a(f"s_cmp_lg_u32 s{sW}, 0")
            a(f"s_cbranch_scc1 B1_nofw")
            set_flag(a, vT, sJ, FL_W)
            a.label("B1_nofw")
        if OPT.get("b1shallow", 1):
            if c + 1 < 5: iW(c + 1); iX(c + 1)
        elif 1 <= c <= 2: iW(c + 2)
        xs = XS + 16*(c % 2)
        wreads(c, 0, 0)
        for k in range(4):
            buf = k % 2
            if k < 3:
                wreads(c, k + 1, 1 - buf)
                a("s_waitcnt lgkmcnt(6)")
            else:
                a("s_waitcnt lgkmcnt(0)")
            for ct in range(3):
                cin = "0" if (c == 0 and k == 0) else vr(ACC+16*ct,16)
                a(f"v_mfma_f32_32x32x16_bf16 {vr(ACC+16*ct,16)}, {vr(WF+12*buf+4*ct,4)}, {vr(xs+4*k,4)}, {cin}")
        if c + 2 < 5 and not OPT.get("b1shallow", 1): iX(c + 2)
    st.mark("kloop")
    a("s_setprio 3")
    a(f"s_and_b32 s{sT}, s{sW}, 3")
    a(f"s_lshl_b32 s{sT2}, s{sG}, 2")
    a(f"s_add_u32 s{sT}, s{sT}, s{sT2}")
    a(f"s_lshl_b32 s{sT2}, s{sT}, 7")
    a(f"s_add_u32 s{sT2}, s{sT2}, {WS_R}")
    a(f"v_lshlrev_b32 v{vT}, 2, v{vN}")
    a(f"buffer_load_dword v{vR}, v{vT}, s[{R_WS}:{R_WS+3}], s{sT2} offen sc1")
    a(f"s_mul_i32 s{sT2}, s{sC}, 192")
    a(f"s_lshl_b32 s{sT3}, s{sKH}, 5")
    a(f"s_add_u32 s{sT2}, s{sT2}, s{sT3}")
    a(f"v_lshlrev_b32 v{vT}, 3, v{vH}")
    B = XS
    for ct in range(3):
        for q in range(2):
            a(f"buffer_load_dwordx2 v[{B+4*ct+2*q}:{B+4*ct+2*q+1}], v{vT}, s[{R_B}:{R_B+3}], s{sT2} offen offset:{64*ct+16*q}")
    a(f"s_mul_i32 s{sT}, s{sT}, 96")
    a(f"s_mul_i32 s{sT2}, s{sC}, 6")
    a(f"s_add_u32 s{sT}, s{sT}, s{sT2}")
    a(f"s_add_u32 s{sT}, s{sT}, s{sKH}")
    a(f"s_lshl_b32 s{sXb}, s{sT}, 10")
    a(f"s_add_u32 s{sXb}, s{sXb}, {WS_H}")
    a("s_barrier")
    a.nop(4)
    T = XS + 16
    a(f"s_mul_i32 s{sT}, s{sW}, 6144")
    a(f"v_add_u32 v{vT+1}, s{sT}, v{vX16}")
    a(f"s_xor_b32 s{sT}, s{sW}, 4")
    a(f"s_mul_i32 s{sT}, s{sT}, 6144")
    a(f"v_add_u32 v{vT+2}, s{sT}, v{vX16}")
    a(f"s_cmp_eq_u32 s{sKH}, 1")
    a(f"s_cbranch_scc1 B1_x1")
    for ct in range(3):
        for q in range(2):
            a(f"ds_write_b128 v{vT+1}, {vr(ACC+16*ct+8+4*q,4)} offset:{(2*ct+q)*1024}")
    a(f"s_branch B1_x2")
    a.label("B1_x1")
    for ct in range(3):
        for q in range(2):
            a(f"ds_write_b128 v{vT+1}, {vr(ACC+16*ct+4*q,4)} offset:{(2*ct+q)*1024}")
    a.label("B1_x2")
    a("s_waitcnt lgkmcnt(0)")
    a("s_barrier")
    for i in range(6):
        a(f"ds_read_b128 {vr(T+4*i,4)}, v{vT+2} offset:{i*1024}")
    a("s_waitcnt lgkmcnt(0) vmcnt(0)")
    a(f"s_cmp_eq_u32 s{sKH}, 1")
    a(f"s_cbranch_scc1 B1_y1")
    for ct in range(3):
        for j in range(8): a(f"v_add_f32 v{T+8*ct+j}, v{T+8*ct+j}, v{ACC+16*ct+j}")
    a(f"s_branch B1_y2")
    a.label("B1_y1")
    for ct in range(3):
        for j in range(8): a(f"v_add_f32 v{T+8*ct+j}, v{T+8*ct+j}, v{ACC+16*ct+8+j}")
    a.label("B1_y2")
    TB = 56
    for ct in range(3):
        for q in range(2):
            b0 = B+4*ct+2*q
            acc = T+8*ct+4*q
            a(f"v_lshlrev_b32 v{TB}, 16, v{b0}")
            a(f"v_and_b32 v{TB+1}, 0xffff0000, v{b0}")
            a(f"v_lshlrev_b32 v{TB+2}, 16, v{b0+1}")
            a(f"v_and_b32 v{TB+3}, 0xffff0000, v{b0+1}")
            for j in range(4): a(f"v_fma_f32 v{acc+j}, v{acc+j}, v{vR}, v{TB+j}")
            for j in range(4): a(f"v_max_f32 v{acc+j}, 0, v{acc+j}")
            for j in range(4): a(f"v_mul_f32 v{acc+j}, v{acc+j}, v{acc+j}")
        for k in range(4):
            a(f"v_cvt_pk_bf16_f32 v{60+4*ct+k}, v{T+8*ct+2*k}, v{T+8*ct+2*k+1}")
    a(f"v_add_u32 v{vT}, 4096, v{vX16}")
    a(f"buffer_store_dwordx4 {vr(60,4)}, v{vX16}, s[{R_WS}:{R_WS+3}], s{sXb} offen sc1")
    a(f"buffer_store_dwordx4 {vr(64,4)}, v{vX16}, s[{R_WS}:{R_WS+3}], s{sXb} offen offset:2048 sc1")
    a(f"buffer_store_dwordx4 {vr(68,4)}, v{vT}, s[{R_WS}:{R_WS+3}], s{sXb} offen sc1")
    a("s_waitcnt vmcnt(0)")
    a("s_barrier")
    L_nf = "B1_nf"
    a(f"s_cmp_lg_u32 s{sW}, 0")
    a(f"s_cbranch_scc1 {L_nf}")
    a(f"s_lshl_b32 s{sT}, s{sG}, 4")
    a(f"s_add_u32 s{sT}, s{sT}, s{sC}")
    set_flag(a, vT, sT, FL_H)
    a.label(L_nf)
    st.mark("epi")
    st.end()
    a("s_endpgm")

def role_B2(a):
    st = Stamps(a, "B2")
    st.start()
    if OPT.get("bprio"): a(f"s_setprio {OPT['bprio']}")
    sSoffW, sSoffX, sWb, sIt, sRho, sWrapW, sRst = 57, 58, 59, 60, 61, 98, 99
    vT = 4
    vX16, vXa = 14, 15
    ACC = 16
    XR = 48
    WB = 64
    vOut = vT+3
    NXS = 8
    a(f"s_sub_u32 s{sT2}, s2, 512")
    a(f"s_bfe_u32 s{sRB}, s{sT2}, 0x20001")
    a(f"s_lshl_b32 s{sRB}, s{sRB}, 4")
    a(f"s_bfe_u32 s{sT}, s{sT2}, 0x40003")
    a(f"s_add_u32 s{sRB}, s{sRB}, s{sT}")
    a(f"s_and_b32 s{sCG}, s{sT2}, 1")
    a(f"s_lshl_b32 s{sCG}, s{sCG}, 1")
    a(f"s_lshr_b32 s{sT}, s{sT2}, 7")
    a(f"s_add_u32 s{sCG}, s{sCG}, s{sT}")
    a(f"v_lshlrev_b32 v{vX16}, 4, v{vLane}")
    a(f"s_and_b32 s{sRho}, s{sRB}, 7")
    a(f"s_min_u32 s{sT3}, s{sW}, 4")
    a(f"s_mul_i32 s{sT}, s{sCG}, 5")
    a(f"s_add_u32 s{sT}, s{sT}, s{sT3}")
    a(f"s_mul_i32 s{sWb}, s{sT}, {136*1024}")
    a(f"s_add_u32 s{sWb}, s{sWb}, {WS_WF}")
    a(f"s_lshl_b32 s{sT}, s{sT}, 6")
    srd(a, R_C, S_X, S_X+1, NX)
    a(f"s_lshl_b32 s{sT2}, s{sRB}, 5")
    a(f"v_add_u32 v{vT}, s{sT2}, v{vN}")
    a(f"v_mul_u32_u24 v{vT}, 1280, v{vT}")
    a(f"v_lshl_add_u32 v{vT}, v{vH}, 3, v{vT}")
    a(f"v_add_u32 v{vOut}, s{sT}, v{vT}")
    for q in range(4):
        a(f"buffer_load_dwordx2 v[{XR+2*q}:{XR+2*q+1}], v{vOut}, s[{R_C}:{R_C+3}], 0 offen offset:{16*q}")
    srd(a, R_C, S_B2, S_B2+1, 640*2)
    a(f"v_lshlrev_b32 v{vT}, 3, v{vH}")
    for q in range(4):
        a(f"buffer_load_dwordx2 v[{XR+8+2*q}:{XR+8+2*q+1}], v{vT}, s[{R_C}:{R_C+3}], s{sT} offen offset:{16*q}")
    for i in range(16): a(f"v_mov_b32 v{ACC+i}, 0")
    def unpack_add(q, dst):
        for (src, t) in ((XR+2*q, 32), (XR+8+2*q, 36)):
            a(f"v_lshlrev_b32 v{t}, 16, v{src}")
            a(f"v_and_b32 v{t+1}, 0xffff0000, v{src}")
            a(f"v_lshlrev_b32 v{t+2}, 16, v{src+1}")
            a(f"v_and_b32 v{t+3}, 0xffff0000, v{src+1}")
        for j in range(4): a(f"v_add_f32 v{32+j}, v{32+j}, v{36+j}")
        for j in range(4): a(f"v_add_f32 v{dst+j}, v{dst+j}, v{32+j}")
    L_side = "B2_side"
    a(f"s_cmp_ge_u32 s{sW}, 4")
    a(f"s_cbranch_scc1 {L_side}")
    a("s_barrier")
    a(f"s_lshl_b32 s{sSoffW}, s{sRho}, 13")
    a(f"s_mov_b32 s{sWrapW}, {96*1024}")
    a(f"s_mov_b32 s{sRst}, 0")
    def wload(r):
        a(f"s_add_u32 s{sT2}, s{sWb}, s{sSoffW}")
        a(f"s_add_u32 s{sT}, s{sSoffW}, 1024")
        a(f"buffer_load_dwordx4 {vr(r,4)}, v{vX16}, s[{R_WS}:{R_WS+3}], s{sT2} offen sc1")
        a(f"s_cmp_eq_u32 s{sT}, s{sWrapW}")
        a(f"s_cselect_b32 s{sSoffW}, s{sRst}, s{sT}")
    for k in range(16): wload(WB + 4*k)
    st.mark("setup")
    a(f"s_mov_b32 s{sIt}, 0")
    L1 = "B2_p1"
    a.label(L1)
    XBUF = 32
    for j in range(16):
        k = j % 8
        if k == 0:
            a("s_barrier")
            a(f"s_lshl_b32 s{sT}, s{sIt}, 1")
            if j: a(f"s_add_u32 s{sT}, s{sT}, 1")
            a(f"s_and_b32 s{sT}, s{sT}, {NXS-1}")
            a(f"s_lshl_b32 s{sT}, s{sT}, 13")
            a(f"v_add_u32 v{vXa}, s{sT}, v{vX16}")
            for i in range(3):
                a(f"ds_read_b128 {vr(XBUF+4*i,4)}, v{vXa} offset:{i*1024}")
        if j == 0:
            L1n = "B2_p1n"
            a(f"s_cmp_lg_u32 s{sIt}, 5")
            a(f"s_cbranch_scc1 {L1n}")
            a(f"s_mul_i32 s{sSoffW}, s{sRho}, {5*1024}")
            a(f"s_add_u32 s{sSoffW}, s{sSoffW}, {96*1024}")
            a(f"s_mov_b32 s{sWrapW}, {136*1024}")
            a(f"s_mov_b32 s{sRst}, {96*1024}")
            a.label(L1n)
        if k + 3 < 8:
            a(f"ds_read_b128 {vr(XBUF+4*((k+3)%4),4)}, v{vXa} offset:{(k+3)*1024}")
            a("s_waitcnt vmcnt(15) lgkmcnt(3)")
        else:
            a(f"s_waitcnt vmcnt(15) lgkmcnt({7-k})")
        a(f"v_mfma_f32_32x32x16_bf16 {vr(ACC,16)}, {vr(WB+4*j,4)}, {vr(XBUF+4*(k%4),4)}, {vr(ACC,16)}")
        wload(WB + 4*j)
    a(f"s_add_u32 s{sIt}, s{sIt}, 1")
    a(f"s_cmp_lt_u32 s{sIt}, 6")
    a(f"s_cbranch_scc1 {L1}")
    st.mark("ffn2")
    a.nop(12)
    for q in range(4): unpack_add(q, ACC+4*q)
    XBUF = XR
    NBLK = 20
    def blk(s_):
        b = s_ % NBLK
        return (WB + 4*b) if b < 16 else (32 + 4*(b-16))
    for s_ in range(16, 20): wload(blk(s_))
    a("s_barrier")
    a(f"s_branch B2_oload")
    a.label(L_side)
    a(f"s_cmp_lt_u32 s{sW}, 6")
    a(f"s_cbranch_scc1 B2_np0")
    get_tag(a, vT, "B2")
    a(f"s_cmp_eq_u32 s{sW}, 7")
    a(f"s_cbranch_scc1 B2_ph")
    a(f"s_lshl_b32 s{sT}, s{sCG}, 6")
    poll_flags(a, vT, "B2w", sT, 64, FL_W)
    a(f"s_branch B2_np0")
    a.label("B2_ph")
    a(f"s_lshr_b32 s{sT}, s{sRB}, 2")
    a(f"s_lshl_b32 s{sT}, s{sT}, 4")
    poll_flags(a, vT, "B2h", sT, 16, FL_H)
    a.label("B2_np0")
    a("s_barrier")
    a(f"s_sub_u32 s{sT3}, s{sW}, 4")
    a("s_waitcnt vmcnt(0)")
    for jj in range(1, 4):
        Ls = a.newlabel("B2_q")
        a(f"s_cmp_lg_u32 s{sT3}, {jj}")
        a(f"s_cbranch_scc1 {Ls}")
        a(f"v_mov_b32 v{XR}, v{XR+2*jj}")
        a(f"v_mov_b32 v{XR+1}, v{XR+2*jj+1}")
        a(f"v_mov_b32 v{XR+8}, v{XR+8+2*jj}")
        a(f"v_mov_b32 v{XR+9}, v{XR+8+2*jj+1}")
        a.label(Ls)
    for j in range(4): a(f"v_mov_b32 v{40+j}, 0")
    unpack_add(0, 40)
    a(f"s_lshl_b32 s{sRst}, s{sT3}, 11")
    a(f"s_lshl_b32 s{sSoffW}, s{sRho}, 13")
    a(f"s_add_u32 s{sSoffW}, s{sSoffW}, s{sRst}")
    a(f"s_add_u32 s{sWrapW}, s{sRst}, {96*1024}")
    SD = 4
    def wpair(slot):
        a(f"s_add_u32 s{sT2}, s{sWb}, s{sSoffW}")
        a(f"s_add_u32 s{sT}, s{sSoffW}, 8192")
        a(f"buffer_load_dwordx4 {vr(WB+8*slot,4)}, v{vX16}, s[{R_WS}:{R_WS+3}], s{sT2} offen sc1")
        a(f"buffer_load_dwordx4 {vr(WB+8*slot+4,4)}, v{vX16}, s[{R_WS}:{R_WS+3}], s{sT2} offen offset:1024 sc1")
        a(f"s_cmp_eq_u32 s{sT}, s{sWrapW}")
        a(f"s_cselect_b32 s{sSoffW}, s{sRst}, s{sT}")
    for c in range(SD): wpair(c)
    a(f"s_sub_u32 s{sT3}, s{sW}, 4")
    a(f"s_mul_i32 s{sT}, s{sRB}, {96*1024}")
    a(f"s_add_u32 s63, s{sT}, {WS_H}")
    a(f"s_lshl_b32 s97, s{sT3}, 11")
    a(f"s_add_u32 s63, s63, s97")
    a(f"s_lshl_b32 s{sSoffX}, s{sRho}, 13")
    a(f"v_add_u32 v{vT+5}, s97, v{vX16}")
    vXs = vT+5
    vm = Cnt(a, "vmcnt", 63)
    def xdma(c):
        a(f"s_add_u32 m0, s97, {(c % NXS)*8192}")
        a(f"s_add_u32 s{sT2}, s63, s{sSoffX}")
        a(f"s_add_u32 s{sT}, s{sSoffX}, 8192")
        for i in range(2):
            a(f"buffer_load_dwordx4 v{vX16}, s[{R_WS}:{R_WS+3}], s{sT2} offen offset:{1024*i} sc1 lds")
        a(f"s_cmp_eq_u32 s{sT}, {96*1024}")
        a(f"s_cselect_b32 s{sSoffX}, 0, s{sT}")
        vm.issue(("X", c), 2)
    for c in range(SD): vm.issue(("W", c), 2)
    XD = 6
    for c in range(XD): xdma(c)
    for c in range(12):
        vm.need(("X", c), ("W", c))
        a("s_barrier")
        if c + XD < 12: xdma(c + XD)
        for i in range(2):
            a(f"ds_read_b128 {vr(48+4*i,4)}, v{vXs} offset:{(c % NXS)*8192 + 1024*i}")
        a("s_waitcnt lgkmcnt(1)")
        a(f"v_mfma_f32_32x32x16_bf16 {vr(ACC,16)}, {vr(WB+8*(c%4),4)}, {vr(48,4)}, {vr(ACC,16)}")
        a("s_waitcnt lgkmcnt(0)")
        a(f"v_mfma_f32_32x32x16_bf16 {vr(ACC,16)}, {vr(WB+8*(c%4)+4,4)}, {vr(52,4)}, {vr(ACC,16)}")
        if c + SD < 12: wpair(c % 4); vm.issue(("W", c + SD), 2)
    a(f"s_sub_u32 s{sT3}, s{sW}, 4")
    a(f"s_lshl_b32 s{sT3}, s{sT3}, 1")
    a(f"s_mul_i32 s62, s{sRho}, 5")
    a(f"s_add_u32 s62, s62, s{sT3}")
    for m in range(5):
        for i in range(2):
            a(f"s_add_u32 s{sT}, s62, {8*m+i}")
            a(f"s_cmp_ge_u32 s{sT}, 40")
            a(f"s_cselect_b32 s{sT2}, 40, 0")
            a(f"s_sub_u32 s{sT}, s{sT}, s{sT2}")
            a(f"s_add_u32 s{sT}, s{sT}, 96")
            a(f"s_lshl_b32 s{sT}, s{sT}, 10")
            a(f"s_add_u32 s{sT}, s{sT}, s{sWb}")
            a(f"buffer_load_dwordx4 {vr(WB+4*(2*m+i),4)}, v{vX16}, s[{R_WS}:{R_WS+3}], s{sT} offen sc1")
    Lnp2 = "B2_np2"
    a(f"s_cmp_lg_u32 s{sW}, 7")
    a(f"s_cbranch_scc1 {Lnp2}")
    a(f"s_lshl_b32 s{sT}, s{sRB}, 5")
    poll_flags(a, vT, "B2o", sT, 32, FL_O, sleep=OPT.get("osleep", 2))
    a.label(Lnp2)
    st.mark("wait_o")
    a("s_barrier")
    a.label("B2_oload")
    a(f"s_mul_i32 s63, s{sRB}, {40*1024}")
    a(f"s_add_u32 s63, s63, {WS_OF}")
    a(f"s_mul_i32 s62, s{sRho}, 5")
    for i in range(5):
        a(f"s_mul_i32 s{sT}, s{sW}, 5")
        a(f"s_add_u32 s{sT}, s{sT}, {i}")
        a(f"s_add_u32 s{sT2}, s{sT}, s62")
        a(f"s_cmp_ge_u32 s{sT2}, 40")
        a(f"s_cselect_b32 s{sIt}, 40, 0")
        a(f"s_sub_u32 s{sT2}, s{sT2}, s{sIt}")
        a(f"s_lshl_b32 s{sT2}, s{sT2}, 10")
        a(f"s_add_u32 s{sT2}, s{sT2}, s63")
        a(f"s_lshl_b32 m0, s{sT}, 10")
        a("s_nop 0")
        a(f"buffer_load_dwordx4 v{vX16}, s[{R_WS}:{R_WS+3}], s{sT2} offen sc1 lds")
    a("s_waitcnt vmcnt(0)")
    a("s_barrier")
    st.mark("oload")
    a(f"s_cmp_ge_u32 s{sW}, 4")
    a(f"s_cbranch_scc1 B2_side2")
    vm = Cnt(a, "vmcnt", 63); lg = Cnt(a, "lgkmcnt", 15)
    def xread(s_):
        r = XBUF + 4*(s_ % 4)
        a(f"ds_read_b128 {vr(r,4)}, v{vX16} offset:{s_*1024}")
        lg.issue(("X", s_))
    for s_ in range(3): xread(s_)
    for s_ in range(40):
        if s_ + 3 < 40: xread(s_ + 3)
        vm.need(("W", s_))
        lg.need(("X", s_))
        a(f"v_mfma_f32_32x32x16_bf16 {vr(ACC,16)}, {vr(blk(s_),4)}, {vr(XBUF+4*(s_%4),4)}, {vr(ACC,16)}")
        if s_ + NBLK < 40:
            wload(blk(s_)); vm.issue(("W", s_ + NBLK))
    st.mark("wo")
    if OPT.get("diag"):
        a(f"s_cmp_lg_u32 s{sW}, 0"); Ld = a.newlabel("dg"); a(f"s_cbranch_scc1 {Ld}"); diag(a, 10); diag(a, 11, neg=True); a.label(Ld)
    a("s_setprio 3")
    a("s_barrier")
    a.nop(10)
    srd(a, R_C, S_OUT, S_OUT+1, NX)
    for q in range(4):
        a(f"v_cvt_pk_bf16_f32 v{32+2*q}, v{ACC+4*q}, v{ACC+4*q+1}")
        a(f"v_cvt_pk_bf16_f32 v{33+2*q}, v{ACC+4*q+2}, v{ACC+4*q+3}")
        a(f"buffer_store_dwordx2 v[{32+2*q}:{33+2*q}], v{vOut}, s[{R_C}:{R_C+3}], 0 offen offset:{16*q}")
    a("s_barrier")
    if OPT.get("diag"):
        a("s_waitcnt vmcnt(0)")
        a(f"s_cmp_lg_u32 s{sW}, 0"); Ld = a.newlabel("dg"); a(f"s_cbranch_scc1 {Ld}"); diag(a, 12); a.label(Ld)
    st.end()
    a("s_endpgm")
    a.label("B2_side2")
    for k in range(4):
        a(f"ds_read_b128 {vr(48+4*k,4)}, v{vXs} offset:{(8*(k//2)+(k%2))*1024}")
    for k in range(10):
        a(f"s_waitcnt lgkmcnt({min(3, 9-k)})")
        a(f"v_mfma_f32_32x32x16_bf16 {vr(ACC,16)}, {vr(WB+4*k,4)}, {vr(48+4*(k%4),4)}, {vr(ACC,16)}")
        if k + 4 < 10:
            a(f"ds_read_b128 {vr(48+4*(k%4),4)}, v{vXs} offset:{(8*((k+4)//2)+((k+4)%2))*1024}")
    a("s_setprio 3")
    a("s_barrier")
    a.nop(12)
    a(f"s_sub_u32 s{sT3}, s{sW}, 4")
    a(f"s_lshl_b32 s{sT}, s{sT3}, 12")
    a(f"v_add_u32 v{vT}, s{sT}, v{vX16}")
    for q in range(4):
        a(f"ds_write_b128 v{vT}, {vr(ACC+4*q,4)} offset:{q*1024}")
    a("s_waitcnt lgkmcnt(0)")
    a("s_barrier")
    a(f"s_lshl_b32 s{sT}, s{sT3}, 10")
    a(f"v_add_u32 v{vT}, s{sT}, v{vX16}")
    for jj in range(4):
        a(f"ds_read_b128 {vr(ACC+4*jj,4)}, v{vT} offset:{jj*4096}")
    a(f"s_lshl_b32 s{sT}, s{sT3}, 4")
    a(f"v_add_u32 v{vOut}, s{sT}, v{vOut}")
    srd(a, R_C, S_OUT, S_OUT+1, NX)
    a("s_waitcnt lgkmcnt(0)")
    for j in range(4):
        a(f"v_add_f32 v{ACC+j}, v{ACC+j}, v{ACC+4+j}")
        a(f"v_add_f32 v{ACC+8+j}, v{ACC+8+j}, v{ACC+12+j}")
    for j in range(4): a(f"v_add_f32 v{ACC+j}, v{ACC+j}, v{40+j}")
    for j in range(4): a(f"v_add_f32 v{ACC+j}, v{ACC+j}, v{ACC+8+j}")
    a(f"v_cvt_pk_bf16_f32 v32, v{ACC}, v{ACC+1}")
    a(f"v_cvt_pk_bf16_f32 v33, v{ACC+2}, v{ACC+3}")
    a(f"buffer_store_dwordx2 v[32:33], v{vOut}, s[{R_WS if False else R_C}:{R_C+3}], 0 offen")
    st.end()
    a("s_endpgm")

def gen():
    a = Asm()
    a("s_cmp_ge_u32 s2, 768")
    a("s_cbranch_scc1 K_end")
    a("s_load_dwordx16 s[4:19], s[0:1], 0")
    a("s_load_dwordx8 s[20:27], s[0:1], 64")
    a("s_load_dwordx2 s[28:29], s[0:1], 96")
    a(f"v_and_b32 v{vLane}, 63, v0")
    a(f"v_lshrrev_b32 v4, 6, v0")
    a(f"v_lshrrev_b32 v{vH}, 5, v{vLane}")
    a(f"v_readfirstlane_b32 s{sW}, v4")
    a(f"v_and_b32 v{vN}, 31, v{vLane}")
    a("s_waitcnt lgkmcnt(0)")
    srd(a, R_WS, S_WS, S_WS+1, WS_END)
    srd(a, R_FL, S_WS, S_WS+1, FL_SIZE, WS_FL)
    for r in (R_A, R_B, R_C): srd(a, r, S_WS, S_WS+1, WS_END)
    for i in range(4, 16): a(f"v_mov_b32 v{i}, 0")
    if OPT.get("tlb", 0):
        a(f"s_cmp_lg_u32 s{sW}, 4")
        a(f"s_cbranch_scc1 K_notlb")
        a(f"v_lshlrev_b32 v5, 18, v{vLane}")
        a(f"buffer_load_dword v0, v5, s[{R_WS}:{R_WS+3}], 0 offen")
        a(f"v_lshlrev_b32 v5, 16, v{vLane}")
        for ptr in (S_W1, S_W2, S_WO, S_OUT, S_WQ):
            a(f"global_load_dword v0, v5, s[{ptr}:{ptr+1}]") if False else None
        a.label("K_notlb")
    if OPT.get("diag"):
        a(f"s_cmp_lg_u32 s{sW}, 0")
        a("s_cbranch_scc1 K_nod")
        a("s_cmp_ge_u32 s2, 256")
        a("s_cbranch_scc1 K_nod")
        diag(a, 2)
        a.label("K_nod")
    a("s_cmp_ge_u32 s2, 512")
    a("s_cbranch_scc1 ROLE_B2")
    a("s_cmp_ge_u32 s2, 256")
    a("s_cbranch_scc1 ROLE_B1")
    role_A(a)
    a.label("ROLE_B1")
    role_B1(a)
    a.label("ROLE_B2")
    role_B2(a)
    a.label("K_end")
    a("s_endpgm")
    grid = OPT.get("grid", 768)
    s = f"; generated by gen2.py\n; @launch grid=({grid},1,1) block=(512,1,1) lds={LDS_BYTES}\n"
    s += '.amdgcn_target "amdgcn-amd-amdhsa--gfx950"\n.text\n'
    s += kernel_header(KN) + a.text()
    s += '.section .rodata,"a"\n.p2align 6\n' + kernel_desc(KN, 128, 102)
    return s

if __name__ == "__main__":
    if "--prof" in sys.argv: PROF = True
    for x in sys.argv:
        if x.startswith("-D"):
            k, _, v = x[2:].partition("="); OPT[k] = int(v) if v else 1
    open(sys.argv[1], "w").write(gen())
    if PROF: json.dump(STAMP_NAMES, open("stamps8.json", "w"))
```

```python
import sys, math, json
from asmlib import *

NAME = "parallel_sum__grouped_kv_mqa__dense_activation_squared_relu__prompt"
KN = NAME + "_kernel"
WS_XF = 0x0
WS_R  = 0x280000
WS_KV = 0x290000
WS_OF = 0x2D0000
WS_H  = 0x550000
WS_FL = 0xB50000
WS_WF = 0xBC0000
WS_END = 0xE70000
WS_DBG = 0x2000000
FL_KV, FL_D, FL_H, FL_W, FL_O = 0, 128, 640, 896, 1152
FL_N = 3200
FL_SIZE = FL_N * 128
NX = 2048 * 640 * 2
TS = 2688
VF = 704; VH = 352
KVB = 64 * TS
CH = 8 * TS
QSCALE = (20 ** -0.5) * math.log2(math.e)
DELTA = 96.0
LDS_BYTES = 81920
PROF = False
OPT = {}
SPIN_MAX = 200000

S_X, S_WQ, S_WK, S_WV, S_WO, S_W1, S_B1, S_W2, S_B2, S_OUT, S_DBG, S_WS = 4, 6, 8, 10, 12, 16, 18, 20, 22, 24, 26, 28
sW = 30
sTag = 31
R_WS = 32
R_FL = 36
R_A = 40
R_B = 44
R_C = 48
sRB, sCG, sT, sT2, sT3 = 52, 53, 54, 55, 56
vLane, vH, vN = 1, 2, 3

def diag(a, word, neg=False, va=74):
    if not OPT.get("diag") or neg: return
    L = a.newlabel("dgx")
    a(f"s_and_b32 s86, s2, 255")
    a(f"s_cmp_lg_u32 s86, {OPT.get('diagwg', 37)}")
    a(f"s_cbranch_scc1 {L}")
    a("s_memrealtime s[84:85]")
    a("s_waitcnt lgkmcnt(0)")
    a("s_mov_b64 s[86:87], exec")
    a("s_mov_b64 exec, 1")
    a(f"v_mov_b32 v{va}, s84")
    a(f"v_mov_b32 v{va+1}, {4*word}")
    a(f"global_store_dword v{va+1}, v{va}, s[{S_DBG}:{S_DBG+1}]")
    a("s_mov_b64 exec, s[86:87]")
    a.label(L)

class Stamps:
    def __init__(self, a, role): self.a = a; self.n = 1; self.names = []; self.role = role
    def start(self):
        if not PROF: return
        for i in range(68, 94): self.a(f"s_mov_b32 s{i}, 0")
        self.a("s_memrealtime s[64:65]"); self.a("s_memtime s[66:67]"); self.a("s_waitcnt lgkmcnt(0)"); self.n = 2
    def mark(self, name):
        if not PROF: return
        assert self.n < 15
        self.a(f"s_memtime s[{64+2*self.n}:{65+2*self.n}]"); self.a("s_waitcnt lgkmcnt(0)")
        self.n += 1; self.names.append(name)
    def end(self):
        if not PROF: return
        a = self.a
        a("s_waitcnt vmcnt(0)")
        self.mark("final-drain")
        a("s_memrealtime s[94:95]"); a("s_waitcnt lgkmcnt(0)")
        a("s_mov_b64 exec, 1")
        a(f"s_lshl_b32 s98, s2, 3")
        a(f"s_add_u32 s98, s98, s{sW}")
        a(f"s_lshl_b32 s98, s98, 6")
        a(f"s_add_u32 s98, s98, {WS_DBG}")
        a(f"s_add_u32 s96, s{S_WS}, s98")
        a(f"s_addc_u32 s97, s{S_WS+1}, 0")
        a(f"v_mov_b32 v0, 0")
        for i in list(range(14)) + [15]:
            a(f"v_mov_b32 v1, s{64+2*i}")
            a(f"global_store_dword v0, v1, s[96:97] offset:{4*i}")
        a(f"v_mov_b32 v1, {self.n}")
        a(f"global_store_dword v0, v1, s[96:97] offset:56")
        a("s_waitcnt vmcnt(0)")
        STAMP_NAMES[self.role] = self.names
STAMP_NAMES = {}

def bf16_round(a, dst, src):
    a(f"v_cvt_pk_bf16_f32 v{dst}, v{src}, v{src}")
    a(f"v_lshlrev_b32 v{dst}, 16, v{dst}")

def decode_rb_cg(a, j):
    a(f"s_lshr_b32 s{sCG}, s{j}, 6")
    a(f"s_and_b32 s{sRB}, s{j}, 7")
    a(f"s_lshl_b32 s{sRB}, s{sRB}, 3")
    a(f"s_bfe_u32 s{sT}, s{j}, 0x30003")
    a(f"s_add_u32 s{sRB}, s{sRB}, s{sT}")

def get_tag(a, vt, lab):
    L = f"{lab}_tag"
    a(f"s_mov_b32 s{sT3}, {SPIN_MAX}")
    a(f"v_mov_b32 v{vt}, 0")
    a.label(L)
    a(f"global_load_dword v{vt+1}, v{vt}, s[{S_DBG}:{S_DBG+1}] sc1")
    a("s_waitcnt vmcnt(0)")
    a(f"v_readfirstlane_b32 s{sTag}, v{vt+1}")
    a(f"s_sub_u32 s{sT3}, s{sT3}, 1")
    a(f"s_cmp_eq_u32 s{sT3}, 0")
    a(f"s_cbranch_scc1 {L}_done")
    a(f"s_cmp_eq_u32 s{sTag}, 0")
    a(f"s_cbranch_scc0 {L}_done")
    a("s_sleep 1")
    a(f"s_branch {L}")
    a.label(f"{L}_done")

def poll_flags(a, vt, lab, s_idx, nflags, region, tries=None, sleep=None):
    if nflags == 128:
        poll_flags(a, vt, lab + "a", None, 64, region, tries, sleep)
        poll_flags(a, vt, lab + "b", None, 64, region + 64, tries, sleep)
        return
    L = f"{lab}_poll"
    a(f"v_lshlrev_b32 v{vt}, 7, v{vLane}")
    if s_idx is None:
        a(f"s_mov_b32 s63, {region*128}")
    else:
        a(f"s_lshl_b32 s63, s{s_idx}, 7")
        if region: a(f"s_add_u32 s63, s63, {region*128}")
    a(f"s_mov_b32 s{sT3}, {tries or SPIN_MAX}")
    a("s_mov_b64 s[100:101], exec")
    if nflags < 64:
        a(f"s_mov_b32 exec_lo, {(1 << min(nflags, 32)) - 1 if nflags < 32 else -1}")
        a(f"s_mov_b32 exec_hi, {((1 << (nflags - 32)) - 1) if nflags > 32 else 0}")
    a.label(L)
    a(f"buffer_load_dword v{vt+1}, v{vt}, s[{R_FL}:{R_FL+3}], s63 offen sc1")
    a("s_waitcnt vmcnt(0)")
    a(f"v_cmp_ne_u32 vcc, s{sTag}, v{vt+1}")
    a("s_nop 1")
    a(f"s_and_b64 exec, exec, vcc")
    a(f"s_cbranch_execz {L}_done")
    a(f"s_sub_u32 s{sT3}, s{sT3}, 1")
    a(f"s_cmp_eq_u32 s{sT3}, 0")
    a(f"s_cbranch_scc1 {L}_done")
    a(f"s_sleep {sleep if sleep is not None else OPT.get('sleep', 6)}")
    a(f"s_branch {L}")
    a.label(f"{L}_done")
    a("s_mov_b64 exec, s[100:101]")

def set_flag(a, vt, s_idx, region):
    a(f"v_mov_b32 v{vt}, s{sTag}")
    a(f"v_mov_b32 v{vt+1}, 0")
    a(f"s_lshl_b32 s63, s{s_idx}, 7")
    if region: a(f"s_add_u32 s63, s63, {region*128}")
    a("s_mov_b64 s[100:101], exec")
    a("s_mov_b64 exec, 1")
    a(f"buffer_store_dword v{vt}, v{vt+1}, s[{R_FL}:{R_FL+3}], s63 offen sc1")
    a("s_mov_b64 exec, s[100:101]")

def tr_addr(a, dst, dst2, pitch, hrows, second_rows, s_base, t):
    a(f"v_bfe_u32 v{t}, v{vLane}, 2, 2")
    a(f"v_mul_u32_u24 v{t+1}, {hrows}, v{vH}")
    a(f"v_add_u32 v{t}, v{t}, v{t+1}")
    a(f"v_bfe_u32 v{t+1}, v{vLane}, 4, 1")
    a(f"v_and_b32 v{t+2}, 3, v{vLane}")
    a(f"v_lshlrev_b32 v{t+2}, 3, v{t+2}")
    a(f"v_lshl_add_u32 v{t+1}, v{t+1}, 5, v{t+2}")
    a(f"v_mul_u32_u24 v{dst}, {pitch}, v{t}")
    a(f"v_add3_u32 v{dst}, v{dst}, v{t+1}, s{s_base}")
    if dst2 is not None:
        a(f"v_add_u32 v{dst2}, {second_rows*pitch}, v{dst}")

def role_A(a):
    OPT["nopre0"] = 1
    st = Stamps(a, "A")
    st.start()
    XB = 0; XP = 1056; XH = 528; RBUF = 42240
    RING = 42496; NSTG = 3; RW = NSTG*1024; DEPTH = 16
    KSTG = 57856
    KVX = 67072
    LFL = XB + 512
    LFL2 = XB + 1040
    T4F = 75264
    SB = [0, 16384, 32768, 49152]
    QBUF = 65536; QP = 328
    sStep, sSoff, sLds, sRho, sWrap, sIt = 57, 58, 59, 60, 61, 57
    sExp, sFD = 95, 94
    vT = 4
    vVo, vTr, vTr2, vX16 = 12, 13, 14, 15
    X = 16
    TMP = 36
    vSum, vSq, vM = 52, 53, 54
    vOne, vSelLo, vSelHi = 56, 57, 58
    vR, vXa, vWst, vTag = 9, 10, 11, 61
    ACC = 16; FB = 32; WS_ = 64
    a(f"s_mov_b32 s{sT2}, s2")
    decode_rb_cg(a, sT2)
    L_notag = "A_notag"
    a(f"s_cmp_lg_u32 s2, 0")
    a(f"s_cbranch_scc1 {L_notag}")
    a(f"s_cmp_lg_u32 s{sW}, 0")
    a(f"s_cbranch_scc1 {L_notag}")
    a(f"s_memrealtime s[62:63]")
    a("s_waitcnt lgkmcnt(0)")
    a(f"s_or_b32 s62, s62, 1")
    a(f"v_mov_b32 v{vT}, s62")
    a(f"v_mov_b32 v{vT+1}, 0")
    a("s_mov_b64 exec, 1")
    a(f"global_store_dword v{vT+1}, v{vT}, s[{S_DBG}:{S_DBG+1}] sc1")
    a("s_mov_b64 exec, -1")
    a.label(L_notag)
    srd(a, R_A, S_X, S_X+1, NX)
    a(f"s_lshl_b32 s{sT}, s{sRB}, 5")
    a(f"s_lshl_b32 s{sT2}, s{sW}, 2")
    a(f"s_add_u32 s{sT}, s{sT}, s{sT2}")
    a(f"v_lshrrev_b32 v{vT}, 4, v{vLane}")
    a(f"v_add_u32 v{vT}, s{sT}, v{vT}")
    a(f"v_mul_u32_u24 v{vT}, 1280, v{vT}")
    a(f"v_and_b32 v{vT+1}, 15, v{vLane}")
    a(f"v_lshl_add_u32 v{vT}, v{vT+1}, 4, v{vT}")
    for i in range(5):
        a(f"buffer_load_dwordx4 {vr(X+4*i,4)}, v{vT}, s[{R_A}:{R_A+3}], 0 offen offset:{256*i}")
    a(f"v_lshlrev_b32 v{vX16}, 4, v{vLane}")
    a(f"s_and_b32 s{sRho}, s{sRB}, 7")
    L_nowe = "A_nowe"
    a(f"s_cmp_lt_u32 s{sW}, 5")
    a(f"s_cbranch_scc1 {L_nowe}")
    a(f"s_cmp_ge_u32 s{sCG}, 2")
    a(f"s_cbranch_scc1 {L_nowe}")
    a(f"s_cmp_eq_u32 s{sCG}, 1")
    a(f"s_cselect_b32 s{R_B}, s{S_WV}, s{S_WK}")
    a(f"s_cselect_b32 s{R_B+1}, s{S_WV+1}, s{S_WK+1}")
    a(f"s_mov_b32 s{R_B+2}, {640*20*2}")
    a(f"s_mov_b32 s{R_B+3}, 0x00020000")
    a(f"s_sub_u32 s{sT}, s{sW}, 5")
    a(f"s_mul_i32 s{sStep}, s{sT}, 13")
    a(f"s_min_u32 s{sT}, s{sT}, 1")
    a(f"s_add_u32 s{sStep}, s{sStep}, s{sT}")
    a(f"s_mul_i32 s{sT}, s{sRho}, 5")
    a(f"s_add_u32 s{sT2}, s{sStep}, s{sT}")
    a(f"s_cmp_ge_u32 s{sT2}, 40")
    a(f"s_cselect_b32 s{sT}, 40, 0")
    a(f"s_sub_u32 s{sT2}, s{sT2}, s{sT}")
    a(f"s_mul_i32 s{sSoff}, s{sT2}, 640")
    for i in range(14):
        a(f"s_add_u32 s{sT}, s{sSoff}, 640")
        a(f"buffer_load_dwordx4 {vr(WS_+4*i,4)}, v{vX16}, s[{R_B}:{R_B+3}], s{sSoff} offen")
        a(f"s_cmp_eq_u32 s{sT}, 25600")
        a(f"s_cselect_b32 s{sSoff}, 0, s{sT}")
    a.label(L_nowe)
    a("s_barrier")
    L_nq = "A_nq"
    a(f"s_cmp_ge_u32 s{sW}, 5")
    a(f"s_cbranch_scc1 {L_nq}")
    srd(a, R_B, S_WQ, S_WQ+1, 640*640*2)
    a(f"v_lshrrev_b32 v{vT}, 2, v{vLane}")
    a(f"v_mul_u32_u24 v{vT}, 1280, v{vT}")
    a(f"v_and_b32 v{vT+1}, 3, v{vLane}")
    a(f"v_lshl_add_u32 v{vT}, v{vT+1}, 4, v{vT}")
    a(f"s_mul_i32 s{sT}, s{sCG}, 320")
    a(f"s_lshl_b32 s{sT2}, s{sW}, 6")
    a(f"s_add_u32 s{sT}, s{sT}, s{sT2}")
    a(f"v_add_u32 v{vVo}, s{sT}, v{vT}")
    a(f"s_mul_i32 s{sLds}, s{sW}, {RW}")
    a(f"s_add_u32 s{sLds}, s{sLds}, {RING}")
    a(f"s_mul_i32 s{sSoff}, s{sRho}, {5*20480}")
    def wload(k):
        d = WS_ + 4*(k % DEPTH)
        a(f"s_add_u32 s{sT}, s{sSoff}, 20480")
        a(f"buffer_load_dwordx4 {vr(d,4)}, v{vVo}, s[{R_B}:{R_B+3}], s{sSoff} offen")
        a(f"s_cmp_eq_u32 s{sT}, {40*20480}")
        a(f"s_cselect_b32 s{sSoff}, 0, s{sT}")
    NW0 = OPT.get("NW0", 8)
    for k in range(NW0): wload(k)
    tr_addr(a, vTr, vTr2, 64, 8, 4, sLds, vT)
    a(f"v_add_u32 v{vWst}, s{sLds}, v{vX16}")
    a(f"s_waitcnt vmcnt({NW0})")
    a(f"s_mov_b32 s{sTag}, 0")
    a(f"s_branch A_xok")
    a.label(L_nq)
    a(f"s_waitcnt vmcnt(14)")
    a(f"s_cmp_lt_u32 s{sCG}, 2")
    a(f"s_cbranch_scc1 A_xok2")
    a(f"s_waitcnt vmcnt(0)")
    a.label("A_xok2")
    a(f"v_mov_b32 v{vT}, 0")
    a(f"global_load_dword v{vTag}, v{vT}, s[{S_DBG}:{S_DBG+1}] sc1")
    a.label("A_xok")
    st.mark("xwait")
    a(f"v_mov_b32 v{vOne}, 0x3f803f80")
    a(f"v_mov_b32 v{vSelLo}, 0x00003f80")
    a(f"v_mov_b32 v{vSelHi}, 0x3f800000")
    for i in range(4): a(f"v_mov_b32 v{TMP+i}, 0")
    for i in range(20):
        a(f"v_dot2c_f32_bf16 v{TMP+(i%2)}, v{X+i}, v{vOne}")
        a(f"v_dot2c_f32_bf16 v{TMP+2+(i%2)}, v{X+i}, v{X+i}")
    a(f"v_lshrrev_b32 v{vT}, 4, v{vLane}")
    a(f"s_lshl_b32 s{sT}, s{sW}, 2")
    a(f"v_add_u32 v{vT}, s{sT}, v{vT}")
    a(f"v_and_b32 v{vT+1}, 1, v{vLane}")
    a(f"v_mul_u32_u24 v{vT+1}, {XH}, v{vT+1}")
    a(f"v_lshl_add_u32 v{vT+1}, v{vT}, 4, v{vT+1}")
    a(f"v_add_f32 v{vSum}, v{TMP}, v{TMP+1}")
    a(f"v_add_f32 v{vSq}, v{TMP+2}, v{TMP+3}")
    a(f"v_bfe_u32 v{vT+2}, v{vLane}, 1, 3")
    a(f"s_mul_i32 s{sT}, s{sRho}, 5")
    a(f"s_sub_u32 s{sT}, 40, s{sT}")
    for ror in (8, 4, 2, 1):
        a(f"v_add_f32_dpp v{vSum}, v{vSum}, v{vSum} row_ror:{ror} row_mask:0xf bank_mask:0xf")
        a(f"v_add_f32_dpp v{vSq}, v{vSq}, v{vSq} row_ror:{ror} row_mask:0xf bank_mask:0xf")
        if ror != 1: a.nop(1)
    a(f"v_add_u32 v{vT+2}, s{sT}, v{vT+2}")
    inv = f32bits(1.0/640)
    a(f"v_mul_f32 v{vM}, {inv}, v{vSum}")
    a(f"v_mul_f32 v{TMP+1}, {inv}, v{vSq}")
    a(f"v_fma_f32 v{TMP+1}, -v{vM}, v{vM}, v{TMP+1}")
    a(f"v_max_f32 v{TMP+1}, 0, v{TMP+1}")
    bf16_round(a, TMP+1, TMP+1)
    bf16_round(a, vM, vM)
    a(f"v_add_f32 v{TMP+1}, {f32bits(1e-5)}, v{TMP+1}")
    a(f"v_sub_f32 v{vM}, 0, v{vM}")
    bf16_round(a, TMP+1, TMP+1)
    a(f"v_sqrt_f32 v{vSum}, v{TMP+1}")
    for base in range(0, 20, 8):
        g = min(8, 20-base)
        for i in range(g):
            a(f"v_dot2_f32_bf16 v{TMP+2*i}, v{X+base+i}, v{vSelLo}, v{vM}")
            a(f"v_dot2_f32_bf16 v{TMP+2*i+1}, v{X+base+i}, v{vSelHi}, v{vM}")
        if base == 0:
            bf16_round(a, vSum, vSum)
            a(f"v_rcp_f32 v{vR}, v{vSum}")
        else:
            a.nop(3)
        for i in range(g):
            a(f"v_cvt_pk_bf16_f32 v{X+base+i}, v{TMP+2*i}, v{TMP+2*i+1}")
    a(f"v_lshlrev_b32 v{vT+3}, 2, v{vT}")
    a(f"ds_write_b32 v{vT+3}, v{vR} offset:{RBUF}")
    for i in range(5):
        if i: a(f"v_add_u32 v{vT+2}, 8, v{vT+2}")
        a(f"v_subrev_u32 v{vT+3}, 40, v{vT+2}")
        a(f"v_min_u32 v{vT+3}, v{vT+3}, v{vT+2}")
        a(f"v_mul_u32_u24 v{vT+3}, {XP}, v{vT+3}")
        a(f"v_add_u32 v{vT+3}, v{vT+3}, v{vT+1}")
        a(f"ds_write_b128 v{vT+3}, {vr(X+4*i,4)} offset:{XB}")
    a(f"v_mul_u32_u24 v{vXa}, {XH}, v{vH}")
    a(f"v_lshl_add_u32 v{vXa}, v{vN}, 4, v{vXa}")
    a(f"s_cmp_ge_u32 s{sW}, 5")
    a(f"s_cbranch_scc1 A_ln5")
    for k in range(NW0, 10): wload(k)
    a(f"s_cmp_eq_u32 s{sW}, 4")
    a(f"s_cbranch_scc1 A_lnb")
    for k in range(10, DEPTH): wload(k)
    a(f"s_branch A_lnb")
    a.label("A_ln5")
    a(f"v_mov_b32 v{vT}, {LFL}")
    for i in range(4): a(f"v_mov_b32 v{TMP+i}, 0")
    a(f"ds_write_b128 v{vT}, v[{TMP}:{TMP+3}]")
    a(f"ds_write_b128 v{vT}, v[{TMP}:{TMP+3}] offset:{LFL2-LFL}")
    a("s_waitcnt vmcnt(0)")
    a(f"v_readfirstlane_b32 s{sTag}, v{vTag}")
    a.label("A_lnb")
    a("s_waitcnt lgkmcnt(0)")
    a("s_barrier")
    a(f"v_lshlrev_b32 v{vT}, 2, v{vN}")
    a(f"ds_read_b32 v{vR}, v{vT} offset:{RBUF}")
    st.mark("LN")
    if OPT.get("diag"):
        a(f"s_cmp_lg_u32 s{sW}, 0"); Ld = a.newlabel("dg"); a(f"s_cbranch_scc1 {Ld}"); diag(a, 4, va=62); diag(a, 5, neg=True, va=62); a.label(Ld)
    def ensure_tag(lab):
        a(f"s_cmp_lg_u32 s{sTag}, 0")
        a(f"s_cbranch_scc1 {lab}_have")
        get_tag(a, vT, lab)
        a.label(f"{lab}_have")
    L_kvp, L_exp, L_bar1 = "A_kvp", "A_exp", "A_bar1"
    a(f"s_cmp_ge_u32 s{sW}, 5")
    a(f"s_cbranch_scc1 {L_kvp}")
    a(f"s_cmp_eq_u32 s{sW}, 4")
    a(f"s_cbranch_scc1 A_job4")
    if OPT.get("noq"): a(f"s_branch {L_bar1}")
    def pipe_gemm(nsteps, wr, rd, need_vm, refill, cin0):
        for k in range(5):
            if k < nsteps:
                need_vm(k, -5 + k)
                wr(k)
            if 0 <= k - 2 < nsteps: rd(k - 2)
        for s_ in range(nsteps):
            n_ops = 0
            if s_ + 5 < nsteps:
                need_vm(s_ + 5, s_)
                wr(s_ + 5)
            if s_ + 3 < nsteps: rd(s_ + 3)
            for t in range(s_ + 1, s_ + 4):
                if t + 2 < nsteps: n_ops += 1
                if t < nsteps: n_ops += 3
            a(f"s_waitcnt lgkmcnt({n_ops})")
            f = FB + 8*(s_ % 4)
            cin = cin0 if s_ == 0 else vr(ACC, 16)
            a(f"v_mfma_f32_32x32x16_bf16 {vr(ACC,16)}, {vr(f,4)}, {vr(f+4,4)}, {cin}")
            refill(s_)
    def q_wr(k): a(f"ds_write_b128 v{vWst}, {vr(WS_+4*(k % DEPTH),4)} offset:{(k % NSTG)*1024}")
    def q_rd(k):
        f = FB + 8*(k % 4)
        a(f"ds_read_b64_tr_b16 v[{f}:{f+1}], v{vTr} offset:{(k % NSTG)*1024}")
        a(f"ds_read_b64_tr_b16 v[{f+2}:{f+3}], v{vTr2} offset:{(k % NSTG)*1024}")
        a(f"ds_read_b128 {vr(f+4,4)}, v{vXa} offset:{XB + k*XP}")
    def q_vm(k, s_now):
        issued = DEPTH + max(0, min(s_now, 40 - DEPTH + QOFF) - QOFF) if s_now > 0 else DEPTH
        issued = min(issued, 40)
        a(f"s_waitcnt vmcnt({issued - 1 - k})")
    QOFF = 0
    def q_refill(s_):
        if s_ + DEPTH < 40: wload(s_ + DEPTH)
    pipe_gemm(40, q_wr, q_rd, q_vm, q_refill, "0")
    st.mark("gemm")
    a.nop(12)
    a(f"v_mul_f32 v{vT}, {f32bits(QSCALE)}, v{vR}")
    for j in range(16): a(f"v_mul_f32 v{ACC+j}, v{ACC+j}, v{vT}")
    for k in range(8): a(f"v_cvt_pk_bf16_f32 v{TMP+k}, v{ACC+2*k}, v{ACC+2*k+1}")
    a(f"s_branch {L_bar1}")

    JW = WS_ + 20
    def job_loads():
        srd(a, R_B, S_WQ, S_WQ+1, 640*640*2)
        a(f"v_lshrrev_b32 v{vT}, 2, v{vLane}")
        a(f"v_mul_u32_u24 v{vT}, 1280, v{vT}")
        a(f"v_and_b32 v{vT+1}, 3, v{vLane}")
        a(f"v_lshl_add_u32 v{vT}, v{vT+1}, 4, v{vT}")
        a(f"s_mul_i32 s{sT}, s{sCG}, 320")
        a(f"s_add_u32 s{sT}, s{sT}, 256")
        a(f"v_add_u32 v{vT}, s{sT}, v{vT}")
        a(f"s_sub_u32 s{sT}, s{sW}, 4")
        a(f"s_mul_i32 s{sT}, s{sT}, 10")
        a(f"s_mul_i32 s{sT2}, s{sRho}, 5")
        a(f"s_add_u32 s{sT}, s{sT}, s{sT2}")
        a(f"s_cmp_ge_u32 s{sT}, 40")
        a(f"s_cselect_b32 s{sT2}, 40, 0")
        a(f"s_sub_u32 s{sT}, s{sT}, s{sT2}")
        a(f"s_mul_i32 s{sSoff}, s{sT}, 20480")
        for k in range(10):
            a(f"s_add_u32 s{sT}, s{sSoff}, 20480")
            a(f"buffer_load_dwordx4 {vr(JW+4*k,4)}, v{vT}, s[{R_B}:{R_B+3}], s{sSoff} offen")
            a(f"s_cmp_eq_u32 s{sT}, {40*20480}")
            a(f"s_cselect_b32 s{sSoff}, 0, s{sT}")
    def job_run(raw, vm_after):
        tr_addr(a, vTr, vTr2, 64, 8, 4, sLds, vT)
        a(f"v_add_u32 v{vWst}, s{sLds}, v{vX16}")
        a(f"s_sub_u32 s{sT}, s{sW}, 4")
        a(f"s_mul_i32 s{sT}, s{sT}, {10*XP}")
        a(f"v_add_u32 v{vVo}, s{sT}, v{vXa}")
        def j_wr(k): a(f"ds_write_b128 v{vWst}, {vr(raw+4*k,4)} offset:{(k % NSTG)*1024}")
        def j_rd(k):
            f = FB + 8*(k % 4)
            a(f"ds_read_b64_tr_b16 v[{f}:{f+1}], v{vTr} offset:{(k % NSTG)*1024}")
            a(f"ds_read_b64_tr_b16 v[{f+2}:{f+3}], v{vTr2} offset:{(k % NSTG)*1024}")
            a(f"ds_read_b128 {vr(f+4,4)}, v{vVo} offset:{k*XP}")
        def j_vm(k, s_): a(f"s_waitcnt vmcnt({9 - k + vm_after})")
        pipe_gemm(10, j_wr, j_rd, j_vm, lambda s_: None, "0")
        a("s_waitcnt lgkmcnt(0)")
        a.nop(12)
    def job_publish():
        Lp5, Lpd = a.newlabel("A_jp5"), a.newlabel("A_jpd")
        a(f"s_cmp_eq_u32 s{sW}, 5")
        a(f"s_cbranch_scc1 {Lp5}")
        for q in range(3): a(f"ds_write_b128 v{vWst}, {vr(ACC+4*q,4)} offset:{q*1024}")
        a(f"s_sub_u32 s{sT}, s{sW}, 6")
        a(f"s_lshl_b32 s{sT}, s{sT}, 10")
        a(f"s_add_u32 s{sT}, s{sT}, {T4F}")
        a(f"v_add_u32 v{vT}, s{sT}, v{vX16}")
        a(f"ds_write_b128 v{vT}, {vr(ACC+12,4)}")
        a(f"s_branch {Lpd}")
        a.label(Lp5)
        a(f"v_add_u32 v{vT}, {KVX+4096}, v{vX16}")
        for q in range(4): a(f"ds_write_b128 v{vT}, {vr(ACC+4*q,4)} offset:{q*1024}")
        a.label(Lpd)
        a(f"s_sub_u32 s{sT}, s{sW}, 5")
        a(f"s_lshl_b32 s{sT}, s{sT}, 2")
        a(f"s_add_u32 s{sT}, s{sT}, {LFL2}")
        a(f"v_mov_b32 v{vT}, s{sT}")
        a(f"v_mov_b32 v{vT+1}, 1")
        a(f"ds_write_b32 v{vT}, v{vT+1}")
    a.label("A_job4")
    job_run(WS_, 0)
    a(f"v_mov_b32 v{vT}, {LFL2}")
    a(f"s_mov_b32 s{sT3}, {SPIN_MAX}")
    a.label("A_j4spin")
    a(f"ds_read_b96 v[{vT+2}:{vT+4}], v{vT}")
    a("s_waitcnt lgkmcnt(0)")
    a(f"v_and_b32 v{vT+2}, v{vT+2}, v{vT+3}")
    a(f"v_and_b32 v{vT+2}, v{vT+2}, v{vT+4}")
    a("s_nop 0")
    a(f"v_readfirstlane_b32 s{sT}, v{vT+2}")
    a(f"s_sub_u32 s{sT3}, s{sT3}, 1")
    a(f"s_cmp_eq_u32 s{sT3}, 0")
    a(f"s_cbranch_scc1 A_j4spin_done")
    a(f"s_cmp_eq_u32 s{sT}, 1")
    a(f"s_cbranch_scc1 A_j4spin_done")
    a("s_sleep 1")
    a(f"s_branch A_j4spin")
    a.label("A_j4spin_done")
    a(f"v_add_u32 v{vT}, {KVX+4096}, v{vX16}")
    a(f"v_add_u32 v{vT+1}, {KSTG+3072}, v{vX16}")
    a(f"v_add_u32 v{vT+2}, {T4F}, v{vX16}")
    for q in range(4): a(f"ds_read_b128 {vr(64+4*q,4)}, v{vT} offset:{q*1024}")
    for p_ in range(2):
        for q in range(3): a(f"ds_read_b128 {vr(80+16*p_+4*q,4)}, v{vT+1} offset:{p_*3072 + q*1024}")
        a(f"ds_read_b128 {vr(80+16*p_+12,4)}, v{vT+2} offset:{p_*1024}")
    a("s_waitcnt lgkmcnt(0)")
    for j in range(16): a(f"v_add_f32 v{64+j}, v{64+j}, v{80+j}")
    for j in range(16): a(f"v_add_f32 v{ACC+j}, v{ACC+j}, v{96+j}")
    for j in range(16): a(f"v_add_f32 v{ACC+j}, v{ACC+j}, v{64+j}")
    st.mark("job4")
    a(f"v_mul_f32 v{vT}, {f32bits(QSCALE)}, v{vR}")
    for j in range(16): a(f"v_mul_f32 v{ACC+j}, v{ACC+j}, v{vT}")
    for k in range(8): a(f"v_cvt_pk_bf16_f32 v{TMP+k}, v{ACC+2*k}, v{ACC+2*k+1}")
    a(f"s_branch {L_bar1}")
    def export_d():
        a(f"s_mul_i32 s{sT}, s{sCG}, 2")
        a(f"s_add_u32 s{sT}, s{sT}, s{sW}")
        a(f"s_sub_u32 s{sT}, s{sT}, 6")
        a(f"s_sub_u32 s{sT2}, s{sT}, s{sRho}")
        a(f"s_and_b32 s{sT2}, s{sT2}, 7")
        a(f"s_mul_i32 s{sT2}, s{sT2}, {5*XP}")
        a(f"v_add_u32 v{vT}, s{sT2}, v{vXa}")
        for i in range(5):
            a(f"ds_read_b128 {vr(X+4*i,4)}, v{vT} offset:{XB + XP*i}")
        a(f"s_mul_i32 s{sT2}, s{sRB}, 40")
        a(f"s_mul_i32 s{sExp}, s{sT}, 5")
        a(f"s_add_u32 s{sT2}, s{sT2}, s{sExp}")
        a(f"s_lshl_b32 s{sT2}, s{sT2}, 10")
        if WS_XF: a(f"s_add_u32 s{sT2}, s{sT2}, {WS_XF}")
        a(f"s_lshl_b32 s{sFD}, s{sRB}, 3")
        a(f"s_add_u32 s{sFD}, s{sFD}, s{sT}")
        a(f"v_add_u32 v{vT+1}, 4096, v{vX16}")
        a("s_waitcnt lgkmcnt(0)")
        for i in range(4):
            a(f"buffer_store_dwordx4 {vr(X+4*i,4)}, v{vX16}, s[{R_WS}:{R_WS+3}], s{sT2} offen offset:{1024*i} sc1")
        a(f"buffer_store_dwordx4 {vr(X+16,4)}, v{vT+1}, s[{R_WS}:{R_WS+3}], s{sT2} offen sc1")
        L_nor = "A_nor"
        a(f"s_cmp_lg_u32 s{sT}, 0")
        a(f"s_cbranch_scc1 {L_nor}")
        a(f"s_lshl_b32 s{sT2}, s{sRB}, 7")
        a(f"s_add_u32 s{sT2}, s{sT2}, {WS_R}")
        a(f"v_lshlrev_b32 v{vT}, 2, v{vN}")
        a(f"buffer_store_dword v{vR}, v{vT}, s[{R_WS}:{R_WS+3}], s{sT2} offen sc1")
        a.label(L_nor)
    a.label(L_kvp)
    a("s_setprio 3")
    if OPT.get("expfirst", 0):
        a(f"s_cmp_lt_u32 s{sW}, 6")
        a(f"s_cbranch_scc1 A_noexp")
        export_d()
        a.label("A_noexp")
    a(f"s_cmp_ge_u32 s{sCG}, 2")
    a(f"s_cbranch_scc1 A_kvp_skip")
    a(f"s_sub_u32 s{sT}, s{sW}, 5")
    a(f"s_mul_i32 s{sLds}, s{sT}, 3072")
    a(f"s_add_u32 s{sLds}, s{sLds}, {KSTG}")
    tr_addr(a, vTr, vTr2, 40, 8, 4, sLds, vT)
    a(f"v_add_u32 v{vWst}, s{sLds}, v{vX16}")
    a(f"s_mul_i32 s{sT}, s{sStep}, {XP}")
    a(f"v_add_u32 v{vVo}, s{sT}, v{vXa}")
    a(f"v_add_u32 v{vT+4}, {13*XP}, v{vVo}")
    a(f"s_cmp_eq_u32 s{sW}, 5")
    a(f"s_cbranch_scc1 A_kv13")
    for i in range(4): a(f"v_mov_b32 v{WS_+52+i}, 0")
    a(f"v_mov_b32 v{vT+4}, v{vXa}")
    a.label("A_kv13")
    def k_wr(k): a(f"ds_write_b128 v{vWst}, {vr(WS_+4*k,4)} offset:{(k % NSTG)*1024}")
    def k_rd(k):
        f = FB + 8*(k % 4)
        a(f"ds_read_b64_tr_b16 v[{f}:{f+1}], v{vTr} offset:{(k % NSTG)*1024}")
        a(f"ds_read_b64_tr_b16 v[{f+2}:{f+3}], v{vTr2} offset:{(k % NSTG)*1024}")
        if k == 13: a(f"ds_read_b128 {vr(f+4,4)}, v{vT+4}")
        else: a(f"ds_read_b128 {vr(f+4,4)}, v{vVo} offset:{k*XP}")
    pipe_gemm(14, k_wr, k_rd, lambda k, s_: None, lambda s_: None, "0")
    a("s_waitcnt lgkmcnt(0)")
    job_loads()
    a(f"s_cmp_eq_u32 s{sW}, 5")
    a(f"s_cbranch_scc1 A_kv5")
    a(f"s_sub_u32 s{sT}, s{sW}, 6")
    a(f"s_lshl_b32 s{sT}, s{sT}, 12")
    a(f"s_add_u32 s{sT}, s{sT}, {KVX}")
    a(f"v_add_u32 v{vT}, s{sT}, v{vX16}")
    for q in range(4):
        a(f"ds_write_b128 v{vT}, {vr(ACC+4*q,4)} offset:{q*1024}")
    a(f"s_sub_u32 s{sT}, s{sW}, 6")
    a(f"s_lshl_b32 s{sT}, s{sT}, 2")
    a(f"s_add_u32 s{sT}, s{sT}, {LFL}")
    a(f"v_mov_b32 v{vT}, s{sT}")
    a(f"v_mov_b32 v{vT+1}, 1")
    a(f"ds_write_b32 v{vT}, v{vT+1}")
    a(f"s_branch A_kvp_done")
    a.label("A_kv5")
    a(f"v_mov_b32 v{vT}, {LFL}")
    a(f"s_mov_b32 s{sT3}, {SPIN_MAX}")
    a.label("A_kvspin")
    a(f"ds_read_b64 v[{vT+2}:{vT+3}], v{vT}")
    a("s_waitcnt lgkmcnt(0)")
    a(f"v_and_b32 v{vT+2}, v{vT+2}, v{vT+3}")
    a("s_nop 0")
    a(f"v_readfirstlane_b32 s{sT}, v{vT+2}")
    a(f"s_sub_u32 s{sT3}, s{sT3}, 1")
    a(f"s_cmp_eq_u32 s{sT3}, 0")
    a(f"s_cbranch_scc1 A_kvspin_done")
    a(f"s_cmp_eq_u32 s{sT}, 1")
    a(f"s_cbranch_scc1 A_kvspin_done")
    a("s_sleep 1")
    a(f"s_branch A_kvspin")
    a.label("A_kvspin_done")
    a(f"v_add_u32 v{vT}, {KVX}, v{vX16}")
    for p_ in range(2):
        for q in range(4):
            a(f"ds_read_b128 {vr(FB+16*p_+4*q,4)}, v{vT} offset:{p_*4096 + q*1024}")
    a("s_waitcnt lgkmcnt(0)")
    for j in range(16):
        a(f"v_add_f32 v{FB+j}, v{FB+j}, v{FB+16+j}")
    for j in range(16):
        a(f"v_add_f32 v{ACC+j}, v{ACC+j}, v{FB+j}")
    for j in range(16): a(f"v_mul_f32 v{ACC+j}, v{ACC+j}, v{vR}")
    a(f"v_cmp_eq_u32 vcc, 1, v{vH}")
    a(f"v_mov_b32 v{vT}, 1.0")
    a(f"v_mov_b32 v{vT+1}, 0")
    a(f"v_cndmask_b32 v{ACC+8}, v{ACC+8}, v{vT}, vcc")
    for j in range(9, 12): a(f"v_cndmask_b32 v{ACC+j}, v{ACC+j}, v{vT+1}, vcc")
    for j in range(12, 16): a(f"v_mov_b32 v{ACC+j}, 0")
    for k in range(8): a(f"v_cvt_pk_bf16_f32 v{TMP+k}, v{ACC+2*k}, v{ACC+2*k+1}")
    a(f"s_mul_i32 s{sT}, s{sRB}, {TS}")
    a(f"s_add_u32 s{sT}, s{sT}, {WS_KV}")
    L_v = "A_v"; L_kvdone = "A_kvdone"
    a(f"s_cmp_eq_u32 s{sCG}, 1")
    a(f"s_cbranch_scc1 {L_v}")
    a(f"buffer_store_dwordx4 {vr(TMP,4)}, v{vX16}, s[{R_WS}:{R_WS+3}], s{sT} offen sc1")
    a(f"v_lshlrev_b32 v{vT}, 3, v{vLane}")
    a(f"s_mov_b32 exec_hi, 0")
    a(f"buffer_store_dwordx2 v[{TMP+4}:{TMP+5}], v{vT}, s[{R_WS}:{R_WS+3}], s{sT} offen offset:1024 sc1")
    a(f"s_mov_b32 exec_hi, -1")
    a(f"s_branch {L_kvdone}")
    a.label(L_v)
    a(f"s_mov_b32 s{sLds}, {KVX}")
    a(f"v_lshlrev_b32 v{vT}, 6, v{vN}")
    a(f"v_lshl_add_u32 v{vT}, v{vH}, 3, v{vT}")
    a(f"v_add_u32 v{vT}, s{sLds}, v{vT}")
    for q in range(4):
        a(f"ds_write_b64 v{vT}, v[{TMP+2*q}:{TMP+2*q+1}] offset:{16*q}")
    tr_addr(a, vTr, None, 64, 4, 8, sLds, vT+1)
    for u in range(2):
        a(f"ds_read_b64_tr_b16 v[{TMP+8+4*u}:{TMP+9+4*u}], v{vTr} offset:{u*1024}")
        a(f"ds_read_b64_tr_b16 v[{TMP+10+4*u}:{TMP+11+4*u}], v{vTr} offset:{u*1024 + 512}")
    a(f"v_mul_u32_u24 v{vT}, {VH}, v{vH}")
    a(f"v_lshl_add_u32 v{vT}, v{vN}, 4, v{vT}")
    a(f"s_mov_b32 exec_lo, 0x3fffff")
    a(f"s_mov_b32 exec_hi, 0x3fffff")
    a("s_waitcnt lgkmcnt(0)")
    a(f"buffer_store_dwordx4 {vr(TMP+8,4)}, v{vT}, s[{R_WS}:{R_WS+3}], s{sT} offen offset:1280 sc1")
    a(f"buffer_store_dwordx4 {vr(TMP+12,4)}, v{vT}, s[{R_WS}:{R_WS+3}], s{sT} offen offset:{1280+VF} sc1")
    a(f"s_mov_b64 exec, -1")
    a.label(L_kvdone)
    ensure_tag("A5")
    a("s_waitcnt vmcnt(0)")
    st.mark("k5:drain")
    a(f"s_lshl_b32 s{sT}, s{sRB}, 1")
    a(f"s_add_u32 s{sT}, s{sT}, s{sCG}")
    set_flag(a, vT, sT, FL_KV)
    a(f"s_mov_b32 s{sLds}, {KSTG}")
    job_run(JW, 1)
    job_publish()
    a(f"s_branch {L_bar1}")
    a.label("A_kvp_skip")
    job_loads()
    a(f"s_cmp_lg_u32 s{sW}, 5")
    a(f"s_cbranch_scc1 A_kvp_done")
    a(f"s_mov_b32 s{sLds}, {KSTG}")
    job_run(JW, 0)
    job_publish()
    a(f"s_branch {L_bar1}")
    a.label("A_kvp_done")
    if not OPT.get("expfirst", 0): export_d()
    ensure_tag("A6")
    a(f"s_waitcnt vmcnt({10 if OPT.get('expfirst', 0) else 0})")
    st.mark("x:drain")
    set_flag(a, vT, sFD, FL_D)
    a(f"s_sub_u32 s{sT}, s{sW}, 5")
    a(f"s_mul_i32 s{sLds}, s{sT}, 3072")
    a(f"s_add_u32 s{sLds}, s{sLds}, {KSTG}")
    job_run(JW, 1)
    job_publish()
    a.label(L_bar1)
    a("s_waitcnt vmcnt(0)")
    a.label("A_bar1_nowait")
    a("s_setprio 0")
    a("s_waitcnt lgkmcnt(0)")
    a("s_barrier")
    st.mark("bar0")
    vA16 = vX16
    aK1, aK2, aV, nK1, nK2, nV = 64, 65, 66, 67, 68, 69
    bK2, bV = 70, 71
    CN = 80
    S = [16, 32]
    O = 48
    P = 96
    Q1, Q2 = 104, 108
    K1, K2 = 112, 116
    V1, V2 = 120, 124
    vM2 = 110
    sSoffK, sLdsW, sSlot, sCk = 58, 59, 60, 61
    vFl, vFlo = 72, 73
    srd(a, R_A, S_WS, S_WS+1, KVB, WS_KV)
    a(f"s_lshl_b32 s{sLdsW}, s{sW}, 10")
    a(f"v_lshlrev_b32 v{bK2}, 3, v{vN}")
    a(f"v_add_u32 v{bK2}, 1024, v{bK2}")
    a(f"v_mov_b32 v{vT}, {1280 + 21*16}")
    a(f"v_cmp_eq_u32 vcc, 1, v{vH}")
    a(f"v_min_u32 v{bV}, 21, v{vN}")
    a(f"v_lshlrev_b32 v{bV}, 4, v{bV}")
    a(f"v_cndmask_b32 v{bK2}, v{bK2}, v{vT}, vcc")
    a(f"v_mul_u32_u24 v{vT}, {VH}, v{vH}")
    a(f"v_add3_u32 v{bV}, v{bV}, v{vT}, 0")
    a(f"v_add_u32 v{bV}, 1280, v{bV}")
    def dma_chunk(slot_s):
        Ls = a.newlabel("A_dm")
        a(f"s_cmp_ge_u32 s{sW}, 4")
        a(f"s_cbranch_scc1 {Ls}")
        a(f"s_add_u32 s{sT}, s{slot_s}, s{sLdsW}")
        a(f"s_add_u32 s{sT2}, s{sSoffK}, s{sLdsW}")
        for i in range(6):
            if i == 5:
                a(f"s_cmp_lg_u32 s{sW}, 0")
                a(f"s_cbranch_scc1 {Ls}")
            a(f"s_add_u32 m0, s{sT}, {4096*i}")
            a(f"s_add_u32 s{sT3}, s{sT2}, {4096*i}")
            a(f"buffer_load_dwordx4 v{vA16}, s[{R_A}:{R_A+3}], s{sT3} offen sc1 lds")
        a.label(Ls)
        a(f"s_add_u32 s{sSoffK}, s{sSoffK}, {CH}")
        a(f"s_cmp_eq_u32 s{sSoffK}, {8*CH}")
        a(f"s_cselect_b32 s{sSoffK}, 0, s{sSoffK}")
        a(f"s_add_u32 s{sCk}, s{sCk}, 1")
        a(f"s_and_b32 s{sCk}, s{sCk}, 7")
    L_noqw = "A_noqw"
    a(f"v_mul_u32_u24 v{vT}, {QP}, v{vN}")
    a(f"v_add_u32 v{vT}, {QBUF}, v{vT}")
    a(f"s_cmp_ge_u32 s{sW}, 5")
    a(f"s_cbranch_scc1 {L_noqw}")
    a(f"s_lshl_b32 s{sT}, s{sW}, 6")
    a(f"v_lshl_add_u32 v{vT+1}, v{vH}, 3, v{vT}")
    a(f"v_add_u32 v{vT+1}, s{sT}, v{vT+1}")
    for q in range(4):
        a(f"ds_write_b64 v{vT+1}, v[{TMP+2*q}:{TMP+2*q+1}] offset:{16*q}")
    a.label(L_noqw)
    a("s_waitcnt lgkmcnt(0)")
    a("s_barrier")
    a(f"s_mul_i32 s{sT}, s{sW}, 40")
    a(f"v_add_u32 v{vT}, s{sT}, v{vT}")
    a(f"v_lshl_add_u32 v{vT+1}, v{vH}, 3, v{vT}")
    a(f"ds_read_b64 v[{Q1}:{Q1+1}], v{vT+1}")
    a(f"ds_read_b64 v[{Q1+2}:{Q1+3}], v{vT+1} offset:16")
    a(f"ds_read_b64 v[{Q2}:{Q2+1}], v{vT} offset:32")
    a(f"v_mov_b32 v{aK1}, v{vA16}")
    a(f"v_mov_b32 v{aK2}, v{bK2}")
    a(f"v_mov_b32 v{aV}, v{bV}")
    a(f"v_add_u32 v{nK1}, {CH}, v{vA16}")
    a(f"v_add_u32 v{nK2}, {CH}, v{bK2}")
    a(f"v_add_u32 v{nV}, {CH}, v{bV}")
    for i in range(16): a(f"v_mov_b32 v{O+i}, 0")
    a(f"v_cmp_eq_u32 vcc, 1, v{vH}")
    a(f"v_mov_b32 v{vT}, 0")
    a("s_waitcnt lgkmcnt(0)")
    a(f"v_cndmask_b32 v{Q2}, v{Q2}, v{vT}, vcc")
    a(f"v_cndmask_b32 v{Q2+1}, v{Q2+1}, v{vT}, vcc")
    a(f"s_lshr_b32 s{sCk}, s{sRB}, 3")
    a(f"s_mul_i32 s{sSoffK}, s{sCk}, {CH}")
    def check_chunk(lab):
        a(f"s_cmp_lg_u32 s{sW}, 7")
        a(f"s_cbranch_scc1 {lab}_skip")
        a(f"s_lshl_b32 s{sT}, s{sCk}, 4")
        poll_flags(a, vT+2, lab, sT, 16, FL_KV, sleep=OPT.get("kvsleep", 1))
        a.label(f"{lab}_skip")
    check_chunk("A7a")
    a("s_barrier")
    st.mark("bar1")
    if OPT.get("diag"):
        a(f"s_cmp_lg_u32 s{sW}, 0"); Ld = a.newlabel("dg"); a(f"s_cbranch_scc1 {Ld}"); diag(a, 6); diag(a, 7, neg=True); a.label(Ld)
    a(f"s_mov_b32 s{sSlot}, 0")
    dma_chunk(sSlot)
    a(f"v_min_u32 v{vFlo}, 15, v{vLane}")
    a(f"v_lshlrev_b32 v{vFlo}, 7, v{vFlo}")
    def rd(dst, n, t, off, cur, nxt, op):
        v_ = cur if t < 8 else nxt
        a(f"{op} {vr(dst,n)}, v{v_} offset:{(t % 8)*TS + off}")
    def rd_K1(t): rd(K1, 4, t, 0, aK1, nK1, "ds_read_b128")
    def rd_K2(t): rd(K2, 2, t, 0, aK2, nK2, "ds_read_b64")
    def rd_V1(t): rd(V1, 4, t, 0, aV, nV, "ds_read_b128")
    def rd_V2(t): rd(V2, 4, t, VF, aV, nV, "ds_read_b128")
    def qk1(dst, c="0"): a(f"v_mfma_f32_32x32x16_bf16 {vr(dst,16)}, {vr(K1,4)}, {vr(Q1,4)}, {c}")
    def qk2(dst): a(f"v_mfma_f32_32x32x8_bf16 {vr(dst,16)}, {vr(K2,2)}, {vr(Q2,2)}, {vr(dst,16)}")
    CNR = vr(CN, 16)
    a("s_waitcnt vmcnt(0)")
    a("s_barrier")
    rd_K1(0); rd_K2(0)
    def set_m(delta):
        a(f"v_mov_b32 v{vT}, v{vM2}")
        a.nop(2)
        a(f"v_permlane32_swap_b32 v{vM2}, v{vT}")
        a.nop(1)
        a(f"v_max_f32 v{vM2}, v{vM2}, v{vT}")
        if delta: a(f"v_add_f32 v{vM2}, {f32bits(delta)}, v{vM2}")
        for i in range(16): a(f"v_sub_f32 v{CN+i}, 0, v{vM2}")
    a(f"v_mov_b32 v{vM2}, 0xff800000")
    a("s_waitcnt lgkmcnt(0)")
    qk1(S[0]); qk2(S[0])
    rd_K1(1); rd_K2(1)
    a("s_waitcnt lgkmcnt(0)")
    qk1(S[1]); qk2(S[1])
    rd_K1(0); rd_K2(0)
    for i in range(4, 8): a(f"v_mov_b32 v{P+i}, 0")
    for i in range(4): a(f"v_mov_b32 v{V2+i}, 0")
    a.nop(4)
    for i in range(8):
        a(f"v_max3_f32 v{vM2}, v{S[0]+2*i}, v{S[0]+2*i+1}, v{vM2}")
    a.nop(4)
    for i in range(8):
        a(f"v_max3_f32 v{vM2}, v{S[1]+2*i}, v{S[1]+2*i+1}, v{vM2}")
    set_m(DELTA)
    a("s_waitcnt lgkmcnt(0)")
    a.nop(1)
    qk1(S[0], CNR); qk2(S[0])
    rd_K1(1); rd_K2(1); rd_V1(0)
    check_chunk("A7b")
    a("s_barrier")
    a(f"s_mov_b32 s{sSlot}, {CH}")
    dma_chunk(sSlot)
    a(f"s_mov_b32 s{sSlot}, {2*CH}")
    a.nop(8)
    st.mark("sample")
    a(f"s_setprio {OPT.get('pb', 0)}")
    if OPT.get("fair", 1):
        a(f"s_cmp_lt_u32 s{sW}, 4")
        a(f"s_cbranch_scc1 A_pr0")
        a(f"s_setprio {1 + OPT.get('pb', 0)}")
        a.label("A_pr0")
    a(f"s_mov_b32 s{sIt}, 0")
    L_loop = "A_loop"
    a(".p2align 6")
    a.label(L_loop)
    def e(cur, i): a(f"v_exp_f32 v{cur+i}, v{cur+i}")
    def p(cur, k): a(f"v_cvt_pk_bf16_f32 v{P+k}, v{cur+2*k}, v{cur+2*k+1}")
    for t in range(8):
        cur, nxt = S[t % 2], S[(t+1) % 2]
        if t == OPT.get("tdrop", 4) and OPT.get("fair", 1):
            a(f"s_setprio {OPT.get('pb', 0)}")
        if t == 0:
            a(f"s_cmp_lg_u32 s{sW}, 7")
            a(f"s_cbranch_scc1 A_nf0")
            a(f"s_lshl_b32 s{sT}, s{sCk}, 11")
            a(f"s_add_u32 s{sT}, s{sT}, {FL_KV*128}")
            a(f"buffer_load_dword v{vFl}, v{vFlo}, s[{R_FL}:{R_FL+3}], s{sT} offen sc1")
            a.label("A_nf0")
        if t == 6:
            a("s_waitcnt vmcnt(0)")
            a(f"s_cmp_lg_u32 s{sW}, 7")
            a(f"s_cbranch_scc1 A_nf6")
            a(f"v_cmp_ne_u32 vcc, s{sTag}, v{vFl}")
            a("s_nop 1")
            a(f"s_cmp_eq_u64 vcc, 0")
            a(f"s_cbranch_scc1 A_nf6")
            a(f"s_lshl_b32 s{sT}, s{sCk}, 4")
            poll_flags(a, vT+2, "A7c", sT, 16, FL_KV, sleep=1)
            a.label("A_nf6")
            a("s_barrier")
            if OPT.get("fair", 1):
                a(f"s_cmp_lt_u32 s{sW}, 4")
                a(f"s_cbranch_scc1 A_pr6")
                a(f"s_setprio {1 + OPT.get('pb', 0)}")
                a.label("A_pr6")
            dma_chunk(sSlot)
            a(f"s_add_u32 s{sSlot}, s{sSlot}, {CH}")
            a(f"s_cmp_eq_u32 s{sSlot}, {3*CH}")
            a(f"s_cselect_b32 s{sSlot}, 0, s{sSlot}")
        e(cur, 0); e(cur, 1)
        a("s_waitcnt lgkmcnt(2)")
        a(f"v_mfma_f32_32x32x16_bf16 {vr(O,16)}, {vr(V2,4)}, {vr(P+4,4)}, {vr(O,16)}")
        rd_V2(t)
        e(cur, 2); e(cur, 3); p(cur, 0); p(cur, 1)
        qk1(nxt, CNR)
        rd_K1(t+2)
        e(cur, 4); e(cur, 5); e(cur, 6); e(cur, 7); p(cur, 2); p(cur, 3)
        a("s_waitcnt lgkmcnt(2)")
        qk2(nxt)
        rd_K2(t+2)
        e(cur, 8); e(cur, 9); e(cur, 10); e(cur, 11); p(cur, 4); p(cur, 5)
        a(f"v_mfma_f32_32x32x16_bf16 {vr(O,16)}, {vr(V1,4)}, {vr(P,4)}, {vr(O,16)}")
        rd_V1(t+1)
        e(cur, 12); e(cur, 13); e(cur, 14); e(cur, 15); p(cur, 6); p(cur, 7)
    a(f"v_mov_b32 v{aK1}, v{nK1}")
    a(f"v_mov_b32 v{aK2}, v{nK2}")
    a(f"v_mov_b32 v{aV}, v{nV}")
    a(f"s_add_u32 s{sT}, s{sSlot}, {2*CH}")
    a(f"s_cmp_ge_u32 s{sT}, {3*CH}")
    a(f"s_cselect_b32 s{sT2}, {3*CH}, 0")
    a(f"s_sub_u32 s{sT}, s{sT}, s{sT2}")
    a(f"v_add_u32 v{nK1}, s{sT}, v{vA16}")
    a(f"v_add_u32 v{nK2}, s{sT}, v{bK2}")
    a(f"v_add_u32 v{nV}, s{sT}, v{bV}")
    a(f"s_add_u32 s{sIt}, s{sIt}, 1")
    a(f"s_cmp_lt_u32 s{sIt}, 8")
    a(f"s_cbranch_scc1 {L_loop}")
    a("s_waitcnt lgkmcnt(0)")
    a(f"v_mfma_f32_32x32x16_bf16 {vr(O,16)}, {vr(V2,4)}, {vr(P+4,4)}, {vr(O,16)}")
    a("s_setprio 0")
    st.mark("loop")
    if OPT.get("diag"):
        a(f"s_cmp_lg_u32 s{sW}, 0"); Ld = a.newlabel("dg"); a(f"s_cbranch_scc1 {Ld}"); diag(a, 8); diag(a, 9, neg=True); a.label(Ld)
    a.nop(16)
    L_fin, L_slow = "A_fin", "A_slow"
    a(f"s_mov_b32 s{sIt}, 0")
    a.label(L_fin)
    a(f"v_mov_b32 v{vT}, v{O+8}")
    a(f"v_mov_b32 v{vT+1}, v{O+8}")
    a.nop(2)
    a(f"v_permlane32_swap_b32 v{vT}, v{vT+1}")
    a(f"v_max3_f32 v{vT+2}, |v{O}|, |v{O+1}|, |v{O+2}|")
    for j in range(3, 12, 2):
        j2 = min(j+1, 11)
        a(f"v_max3_f32 v{vT+2}, |v{O+j}|, |v{O+j2}|, v{vT+2}")
    a(f"v_mov_b32 v{vT+3}, {f32bits(2.0**120)}")
    a(f"v_cmp_nlt_f32 vcc, v{vT+2}, v{vT+3}")
    a(f"v_cmp_nlt_f32 s[62:63], 0, v{vT+1}")
    a.nop(1)
    a(f"s_or_b64 vcc, vcc, s[62:63]")
    a(f"s_cmp_eq_u64 vcc, 0")
    a(f"s_cbranch_scc1 A_store")
    a(f"s_cmp_lg_u32 s{sIt}, 0")
    a(f"s_cbranch_scc1 A_store")
    a(f"s_branch {L_slow}")
    a.label("A_store")
    a(f"v_rcp_f32 v{vT+2}, v{vT+1}")
    a.nop(1)
    for j in range(12): a(f"v_mul_f32 v{O+j}, v{O+j}, v{vT+2}")
    for k in range(6): a(f"v_cvt_pk_bf16_f32 v{P+k}, v{O+2*k}, v{O+2*k+1}")
    a(f"s_lshl_b32 s{sT}, s{sCG}, 3")
    a(f"s_add_u32 s{sT}, s{sT}, s{sW}")
    a(f"s_mul_i32 s{sT}, s{sT}, 20")
    a(f"s_mul_i32 s{sT2}, s{sRB}, {40*1024}")
    a(f"s_add_u32 s{sT2}, s{sT2}, {WS_OF}")
    def oaddr(dst, colv):
        a(f"v_lshrrev_b32 v{dst}, 4, v{colv}")
        a(f"v_lshlrev_b32 v{dst}, 10, v{dst}")
        a(f"v_bfe_u32 v{vT+7}, v{colv}, 3, 1")
        a(f"v_lshl_add_u32 v{dst}, v{vT+7}, 9, v{dst}")
        a(f"v_and_b32 v{vT+7}, 7, v{colv}")
        a(f"v_lshl_add_u32 v{dst}, v{vT+7}, 1, v{dst}")
        a(f"v_lshl_add_u32 v{dst}, v{vN}, 4, v{dst}")
    a(f"v_lshlrev_b32 v{vT+3}, 2, v{vH}")
    a(f"v_add_u32 v{vT+3}, s{sT}, v{vT+3}")
    oaddr(vT+4, vT+3)
    a(f"buffer_store_dwordx2 v[{P}:{P+1}], v{vT+4}, s[{R_WS}:{R_WS+3}], s{sT2} offen sc1")
    a(f"v_add_u32 v{vT+3}, 8, v{vT+3}")
    oaddr(vT+5, vT+3)
    a(f"buffer_store_dwordx2 v[{P+2}:{P+3}], v{vT+5}, s[{R_WS}:{R_WS+3}], s{sT2} offen sc1")
    a(f"s_add_u32 s{sT}, s{sT}, 16")
    a(f"v_mov_b32 v{vT+3}, s{sT}")
    oaddr(vT+6, vT+3)
    a(f"v_cmp_eq_u32 vcc, 0, v{vH}")
    a(f"s_and_saveexec_b64 s[62:63], vcc")
    a(f"buffer_store_dwordx2 v[{P+4}:{P+5}], v{vT+6}, s[{R_WS}:{R_WS+3}], s{sT2} offen sc1")
    a(f"s_mov_b64 exec, s[62:63]")
    a(f"s_cmp_lg_u32 s{sTag}, 0")
    a(f"s_cbranch_scc1 A_ohave")
    get_tag(a, vT, "A8")
    a.label("A_ohave")
    a("s_waitcnt vmcnt(0)")
    a(f"s_lshl_b32 s{sT}, s{sRB}, 2")
    a(f"s_add_u32 s{sT}, s{sT}, s{sCG}")
    a(f"s_lshl_b32 s{sT}, s{sT}, 3")
    a(f"s_add_u32 s{sT}, s{sT}, s{sW}")
    set_flag(a, vT, sT, FL_O)
    st.end()
    a("s_endpgm")
    a.label(L_slow)
    a(f"v_mov_b32 v{vM2}, 0xff800000")
    a(f"s_mov_b32 s{sSoffK}, 0")
    a.label("A_slow1")
    a(f"buffer_load_dwordx4 {vr(K1,4)}, v{vA16}, s[{R_A}:{R_A+3}], s{sSoffK} offen sc1")
    a(f"buffer_load_dwordx2 {vr(K2,2)}, v{bK2}, s[{R_A}:{R_A+3}], s{sSoffK} offen sc1")
    a("s_waitcnt vmcnt(0)")
    qk1(S[0]); qk2(S[0])
    a.nop(16)
    for i in range(8):
        a(f"v_max3_f32 v{vM2}, v{S[0]+2*i}, v{S[0]+2*i+1}, v{vM2}")
    a(f"s_add_u32 s{sSoffK}, s{sSoffK}, {TS}")
    a(f"s_cmp_lt_u32 s{sSoffK}, {KVB}")
    a(f"s_cbranch_scc1 A_slow1")
    set_m(0.0)
    for i in range(16): a(f"v_mov_b32 v{O+i}, 0")
    a(f"s_mov_b32 s{sSoffK}, 0")
    a.label("A_slow2")
    a(f"buffer_load_dwordx4 {vr(K1,4)}, v{vA16}, s[{R_A}:{R_A+3}], s{sSoffK} offen sc1")
    a(f"buffer_load_dwordx2 {vr(K2,2)}, v{bK2}, s[{R_A}:{R_A+3}], s{sSoffK} offen sc1")
    a(f"buffer_load_dwordx4 {vr(V1,4)}, v{bV}, s[{R_A}:{R_A+3}], s{sSoffK} offen sc1")
    a(f"buffer_load_dwordx4 {vr(V2,4)}, v{bV}, s[{R_A}:{R_A+3}], s{sSoffK} offen offset:{VF} sc1")
    a("s_waitcnt vmcnt(0)")
    qk1(S[0], CNR); qk2(S[0])
    a.nop(16)
    for i in range(16): e(S[0], i)
    a.nop(1)
    for k in range(8): p(S[0], k)
    a.nop(2)
    a(f"v_mfma_f32_32x32x16_bf16 {vr(O,16)}, {vr(V1,4)}, {vr(P,4)}, {vr(O,16)}")
    a(f"v_mfma_f32_32x32x16_bf16 {vr(O,16)}, {vr(V2,4)}, {vr(P+4,4)}, {vr(O,16)}")
    a(f"s_add_u32 s{sSoffK}, s{sSoffK}, {TS}")
    a(f"s_cmp_lt_u32 s{sSoffK}, {KVB}")
    a(f"s_cbranch_scc1 A_slow2")
    a.nop(16)
    a(f"s_mov_b32 s{sIt}, 1")
    a(f"s_branch {L_fin}")

def role_B1(a):
    st = Stamps(a, "B1")
    st.start()
    if OPT.get("bprio"): a(f"s_setprio {OPT['bprio']}")
    sG, sC = sRB, sCG
    sSoffW, sSoffX, sLdsW, sKH, sXb = 57, 58, 59, 60, 99
    vT = 4; vW = 10; vTr, vX16, vR = 13, 14, 15
    XS = 16; WF = 48; ACC = 76
    SLOT = 24576
    a(f"s_sub_u32 s{sT2}, s2, 256")
    a(f"s_bfe_u32 s{sG}, s{sT2}, 0x20001")
    a(f"s_lshl_b32 s{sG}, s{sG}, 2")
    a(f"s_bfe_u32 s{sT}, s{sT2}, 0x20003")
    a(f"s_add_u32 s{sG}, s{sG}, s{sT}")
    a(f"s_and_b32 s{sC}, s{sT2}, 1")
    a(f"s_lshl_b32 s{sC}, s{sC}, 3")
    a(f"s_lshr_b32 s{sT}, s{sT2}, 5")
    a(f"s_add_u32 s{sC}, s{sC}, s{sT}")
    a(f"s_lshr_b32 s{sKH}, s{sW}, 2")
    a(f"v_lshlrev_b32 v{vX16}, 4, v{vLane}")
    a(f"s_and_b32 s{sT}, s{sW}, 3")
    a(f"s_mul_i32 s{sT}, s{sT}, 192")
    a(f"s_mul_i32 s{sT2}, s{sC}, 192")
    a(f"s_mul_i32 s{sT3}, s{sKH}, {320*3072}")
    a(f"s_add_u32 s{sT2}, s{sT2}, s{sT3}")
    for i in range(3):
        a(f"v_add_u32 v{vT}, s{sT}, v{vLane}")
        if i: a(f"v_add_u32 v{vT}, {64*i}, v{vT}")
        a(f"v_mul_u32_u24 v{vT+1}, 5462, v{vT}")
        a(f"v_lshrrev_b32 v{vT+1}, 16, v{vT+1}")
        a(f"v_mul_u32_u24 v{vT+2}, 12, v{vT+1}")
        a(f"v_sub_u32 v{vT}, v{vT}, v{vT+2}")
        a(f"v_lshlrev_b32 v{vT}, 4, v{vT}")
        a(f"v_mul_u32_u24 v{vT+1}, 3072, v{vT+1}")
        a(f"v_add3_u32 v{vW+i}, v{vT}, v{vT+1}, s{sT2}")
        if i: a(f"v_subrev_u32 v{vW+i}, {1024*i}, v{vW+i}")
    a(f"s_mul_i32 s{sT}, s{sKH}, 12288")
    tr_addr(a, vTr, None, 192, 8, 4, sT, vT)
    a(f"s_mul_i32 s{sLdsW}, s{sW}, 3072")
    srd(a, R_A, S_W1, S_W1+1, 640*1536*2)
    srd(a, R_B, S_B1, S_B1+1, 1536*2)
    a(f"s_mul_hi_u32 s{sT}, s{sC}, {(1<<32)//5 + 1}")
    a(f"s_mul_i32 s{sT}, s{sT}, 5")
    a(f"s_sub_u32 s{sT}, s{sC}, s{sT}")
    a(f"s_mul_i32 s{sSoffW}, s{sT}, {64*3072}")
    a(f"s_lshl_b32 s{sSoffX}, s{sT}, 12")
    a(f"s_and_b32 s{sT}, s{sW}, 3")
    a(f"s_lshl_b32 s{sT2}, s{sG}, 2")
    a(f"s_add_u32 s{sT}, s{sT}, s{sT2}")
    a(f"s_mul_i32 s{sXb}, s{sT}, {40*1024}")
    a(f"s_mul_i32 s{sT2}, s{sKH}, {20*1024}")
    a(f"s_add_u32 s{sXb}, s{sXb}, s{sT2}")
    if WS_XF: a(f"s_add_u32 s{sXb}, s{sXb}, {WS_XF}")
    def issueW(c):
        a(f"s_add_u32 m0, s{sLdsW}, {(c%3)*SLOT}")
        a(f"s_add_u32 s{sT}, s{sSoffW}, {64*3072}")
        for i in range(3):
            a(f"buffer_load_dwordx4 v{vW+i}, s[{R_A}:{R_A+3}], s{sSoffW} offen offset:{1024*i} lds")
        a(f"s_cmp_eq_u32 s{sT}, {320*3072}")
        a(f"s_cselect_b32 s{sSoffW}, 0, s{sT}")
    def issueX(c):
        xs = XS + 16*(c % 2)
        a(f"s_add_u32 s{sT2}, s{sXb}, s{sSoffX}")
        a(f"s_add_u32 s{sT}, s{sSoffX}, 4096")
        for i in range(4):
            a(f"buffer_load_dwordx4 {vr(xs+4*i,4)}, v{vX16}, s[{R_WS}:{R_WS+3}], s{sT2} offen offset:{1024*i} sc1")
        a(f"s_cmp_eq_u32 s{sT}, 20480")
        a(f"s_cselect_b32 s{sSoffX}, 0, s{sT}")
    a(f"s_cmp_lg_u32 s{sW}, 0")
    a(f"s_cbranch_scc1 B1_pre")
    get_tag(a, vT, "B1")
    a(f"s_lshl_b32 s{sT}, s{sG}, 5")
    if OPT.get("wftries", 1): poll_flags(a, vT, "B1p", sT, 32, FL_D, tries=OPT.get("wftries", 1))
    a.label("B1_pre")
    a("s_barrier")
    st.mark("prepoll")
    sJ = 96
    a(f"s_sub_u32 s{sJ}, s2, 256")
    srd(a, R_C, S_W2, S_W2+1, 1536*640*2)
    vF = 16
    a(f"v_lshrrev_b32 v32, 2, v{vLane}")
    a(f"v_mul_u32_u24 v32, 1280, v32")
    a(f"v_and_b32 v33, 3, v{vLane}")
    a(f"v_lshl_add_u32 v32, v33, 4, v32")
    a(f"s_lshl_b32 s{sT}, s{sW}, 11")
    a(f"v_add_u32 v33, s{sT}, v{vX16}")
    tr_addr(a, 34, None, 64, 4, 8, sT, vT)
    tr_addr(a, 35, None, 64, 8, 4, sT, vT)
    sDst = [92, 93]; sStp = [94, 95]
    for rnd in range(2):
        Lskip = f"B1_wf{rnd}_skip"
        a(f"s_mov_b32 s{sStp[rnd]}, -1")
        if rnd == 1:
            a(f"s_cmp_ge_u32 s{sW}, 3")
            a(f"s_cbranch_scc1 {Lskip}")
        a(f"s_and_b32 s{sT}, s{sJ}, 63")
        a(f"s_mul_i32 s{sT}, s{sT}, 11")
        a(f"s_add_u32 s{sT}, s{sT}, s{sW}")
        if rnd: a(f"s_add_u32 s{sT}, s{sT}, 8")
        a(f"s_cmp_ge_u32 s{sT}, 680")
        a(f"s_cbranch_scc1 {Lskip}")
        a(f"s_mul_hi_u32 s{sT2}, s{sT}, {(1<<32)//136 + 1}")
        a(f"s_mul_i32 s{sT3}, s{sT2}, 136")
        a(f"s_sub_u32 s{sT}, s{sT}, s{sT3}")
        a(f"s_mov_b32 s{sStp[rnd]}, s{sT}")
        a(f"s_lshr_b32 s{sT3}, s{sJ}, 6")
        a(f"s_mul_i32 s{sT3}, s{sT3}, 5")
        a(f"s_add_u32 s{sT2}, s{sT2}, s{sT3}")
        a(f"s_mul_i32 s62, s{sT2}, 136")
        a(f"s_add_u32 s62, s62, s{sT}")
        a(f"s_lshl_b32 s62, s62, 10")
        a(f"s_add_u32 s{sDst[rnd]}, s62, {WS_WF}")
        a(f"s_lshl_b32 s{sT2}, s{sT2}, 6")
        a(f"s_cmp_lt_u32 s{sT}, 96")
        a(f"s_cselect_b32 s{R_C}, s{S_W2}, s{S_WO}")
        a(f"s_cselect_b32 s{R_C+1}, s{S_W2+1}, s{S_WO+1}")
        a(f"s_cselect_b32 s63, 0, 96")
        a(f"s_mov_b32 s{R_C+2}, {640*640*2}")
        a(f"s_cbranch_scc0 B1_wf{rnd}_a")
        a(f"s_mov_b32 s{R_C+2}, {1536*640*2}")
        a.label(f"B1_wf{rnd}_a")
        a(f"s_sub_u32 s{sT3}, s{sT}, s63")
        a(f"s_mul_i32 s{sT3}, s{sT3}, {16*1280}")
        a(f"s_add_u32 s{sT3}, s{sT3}, s{sT2}")
        a(f"buffer_load_dwordx4 v[{16+4*rnd}:{19+4*rnd}], v32, s[{R_C}:{R_C+3}], s{sT3} offen")
        a.label(Lskip)
    a("s_waitcnt vmcnt(0)")
    for rnd in range(2):
        Lskip = f"B1_wg{rnd}_skip"
        a(f"s_cmp_eq_u32 s{sStp[rnd]}, -1")
        a(f"s_cbranch_scc1 {Lskip}")
        a(f"ds_write_b128 v33, v[{16+4*rnd}:{19+4*rnd}] offset:{1024*rnd}")
        a(f"s_cmp_lt_u32 s{sStp[rnd]}, 96")
        a(f"s_cbranch_scc0 B1_wf{rnd}_n")
        a(f"ds_read_b64_tr_b16 v[{24+4*rnd}:{25+4*rnd}], v34 offset:{1024*rnd}")
        a(f"ds_read_b64_tr_b16 v[{26+4*rnd}:{27+4*rnd}], v34 offset:{1024*rnd+512}")
        a(f"s_branch B1_wf{rnd}_s")
        a.label(f"B1_wf{rnd}_n")
        a(f"ds_read_b64_tr_b16 v[{24+4*rnd}:{25+4*rnd}], v35 offset:{1024*rnd}")
        a(f"ds_read_b64_tr_b16 v[{26+4*rnd}:{27+4*rnd}], v35 offset:{1024*rnd+256}")
        a.label(f"B1_wf{rnd}_s")
        a("s_waitcnt lgkmcnt(0)")
        a(f"buffer_store_dwordx4 v[{24+4*rnd}:{27+4*rnd}], v{vX16}, s[{R_WS}:{R_WS+3}], s{sDst[rnd]} offen sc1")
        a.label(Lskip)
    st.mark("wfprep")
    L_np = "B1_np"
    a(f"s_cmp_lg_u32 s{sW}, 0")
    a(f"s_cbranch_scc1 {L_np}")
    a(f"s_lshl_b32 s{sT}, s{sG}, 5")
    poll_flags(a, vT, "B1", sT, 32, FL_D)
    if OPT.get("b1kv"): poll_flags(a, vT, "B1k", None, 128, FL_KV)
    a.label(L_np)
    a("s_barrier")
    st.mark("wait_d")
    issued = []
    def iX(c): issueX(c); issued.extend([("X", c)]*4)
    def iW(c): issueW(c); issued.extend([("W", c)]*3)
    if OPT.get("b1shallow", 1):
        iW(0); iX(0)
    else:
        iW(0); iX(0)
        a("s_barrier")
        iW(1); iX(1)
        a("s_barrier")
        iW(2)
    def wreads(c, k, buf):
        base = (c % 3)*SLOT + k*16*192
        for ct in range(3):
            a(f"ds_read_b64_tr_b16 v[{WF+12*buf+4*ct}:{WF+12*buf+4*ct+1}], v{vTr} offset:{base + ct*64}")
            a(f"ds_read_b64_tr_b16 v[{WF+12*buf+4*ct+2}:{WF+12*buf+4*ct+3}], v{vTr} offset:{base + ct*64 + 4*192}")
    for c in range(5):
        last = max(i for i, e_ in enumerate(issued) if e_ in (("W", c), ("X", c)))
        a(f"s_waitcnt vmcnt({len(issued) - 1 - last})")
        a("s_barrier")
        if c == 0:
            st.mark("b0")
            a(f"s_cmp_lg_u32 s{sW}, 0")
            a(f"s_cbranch_scc1 B1_nofw")
            set_flag(a, vT, sJ, FL_W)
            a.label("B1_nofw")
        if OPT.get("b1shallow", 1):
            if c + 1 < 5: iW(c + 1); iX(c + 1)
        elif 1 <= c <= 2: iW(c + 2)
        xs = XS + 16*(c % 2)
        wreads(c, 0, 0)
        for k in range(4):
            buf = k % 2
            if k < 3:
                wreads(c, k + 1, 1 - buf)
                a("s_waitcnt lgkmcnt(6)")
            else:
                a("s_waitcnt lgkmcnt(0)")
            for ct in range(3):
                cin = "0" if (c == 0 and k == 0) else vr(ACC+16*ct,16)
                a(f"v_mfma_f32_32x32x16_bf16 {vr(ACC+16*ct,16)}, {vr(WF+12*buf+4*ct,4)}, {vr(xs+4*k,4)}, {cin}")
        if c + 2 < 5 and not OPT.get("b1shallow", 1): iX(c + 2)
    st.mark("kloop")
    a("s_setprio 3")
    a(f"s_and_b32 s{sT}, s{sW}, 3")
    a(f"s_lshl_b32 s{sT2}, s{sG}, 2")
    a(f"s_add_u32 s{sT}, s{sT}, s{sT2}")
    a(f"s_lshl_b32 s{sT2}, s{sT}, 7")
    a(f"s_add_u32 s{sT2}, s{sT2}, {WS_R}")
    a(f"v_lshlrev_b32 v{vT}, 2, v{vN}")
    a(f"buffer_load_dword v{vR}, v{vT}, s[{R_WS}:{R_WS+3}], s{sT2} offen sc1")
    a(f"s_mul_i32 s{sT2}, s{sC}, 192")
    a(f"s_lshl_b32 s{sT3}, s{sKH}, 5")
    a(f"s_add_u32 s{sT2}, s{sT2}, s{sT3}")
    a(f"v_lshlrev_b32 v{vT}, 3, v{vH}")
    B = XS
    for ct in range(3):
        for q in range(2):
            a(f"buffer_load_dwordx2 v[{B+4*ct+2*q}:{B+4*ct+2*q+1}], v{vT}, s[{R_B}:{R_B+3}], s{sT2} offen offset:{64*ct+16*q}")
    a(f"s_mul_i32 s{sT}, s{sT}, 96")
    a(f"s_mul_i32 s{sT2}, s{sC}, 6")
    a(f"s_add_u32 s{sT}, s{sT}, s{sT2}")
    a(f"s_add_u32 s{sT}, s{sT}, s{sKH}")
    a(f"s_lshl_b32 s{sXb}, s{sT}, 10")
    a(f"s_add_u32 s{sXb}, s{sXb}, {WS_H}")
    a("s_barrier")
    a.nop(4)
    T = XS + 16
    a(f"s_mul_i32 s{sT}, s{sW}, 6144")
    a(f"v_add_u32 v{vT+1}, s{sT}, v{vX16}")
    a(f"s_xor_b32 s{sT}, s{sW}, 4")
    a(f"s_mul_i32 s{sT}, s{sT}, 6144")
    a(f"v_add_u32 v{vT+2}, s{sT}, v{vX16}")
    a(f"s_cmp_eq_u32 s{sKH}, 1")
    a(f"s_cbranch_scc1 B1_x1")
    for ct in range(3):
        for q in range(2):
            a(f"ds_write_b128 v{vT+1}, {vr(ACC+16*ct+8+4*q,4)} offset:{(2*ct+q)*1024}")
    a(f"s_branch B1_x2")
    a.label("B1_x1")
    for ct in range(3):
        for q in range(2):
            a(f"ds_write_b128 v{vT+1}, {vr(ACC+16*ct+4*q,4)} offset:{(2*ct+q)*1024}")
    a.label("B1_x2")
    a("s_waitcnt lgkmcnt(0)")
    a("s_barrier")
    for i in range(6):
        a(f"ds_read_b128 {vr(T+4*i,4)}, v{vT+2} offset:{i*1024}")
    a("s_waitcnt lgkmcnt(0) vmcnt(0)")
    a(f"s_cmp_eq_u32 s{sKH}, 1")
    a(f"s_cbranch_scc1 B1_y1")
    for ct in range(3):
        for j in range(8): a(f"v_add_f32 v{T+8*ct+j}, v{T+8*ct+j}, v{ACC+16*ct+j}")
    a(f"s_branch B1_y2")
    a.label("B1_y1")
    for ct in range(3):
        for j in range(8): a(f"v_add_f32 v{T+8*ct+j}, v{T+8*ct+j}, v{ACC+16*ct+8+j}")
    a.label("B1_y2")
    TB = 56
    for ct in range(3):
        for q in range(2):
            b0 = B+4*ct+2*q
            acc = T+8*ct+4*q
            a(f"v_lshlrev_b32 v{TB}, 16, v{b0}")
            a(f"v_and_b32 v{TB+1}, 0xffff0000, v{b0}")
            a(f"v_lshlrev_b32 v{TB+2}, 16, v{b0+1}")
            a(f"v_and_b32 v{TB+3}, 0xffff0000, v{b0+1}")
            for j in range(4): a(f"v_fma_f32 v{acc+j}, v{acc+j}, v{vR}, v{TB+j}")
            for j in range(4): a(f"v_max_f32 v{acc+j}, 0, v{acc+j}")
            for j in range(4): a(f"v_mul_f32 v{acc+j}, v{acc+j}, v{acc+j}")
        for k in range(4):
            a(f"v_cvt_pk_bf16_f32 v{60+4*ct+k}, v{T+8*ct+2*k}, v{T+8*ct+2*k+1}")
    a(f"v_add_u32 v{vT}, 4096, v{vX16}")
    a(f"buffer_store_dwordx4 {vr(60,4)}, v{vX16}, s[{R_WS}:{R_WS+3}], s{sXb} offen sc1")
    a(f"buffer_store_dwordx4 {vr(64,4)}, v{vX16}, s[{R_WS}:{R_WS+3}], s{sXb} offen offset:2048 sc1")
    a(f"buffer_store_dwordx4 {vr(68,4)}, v{vT}, s[{R_WS}:{R_WS+3}], s{sXb} offen sc1")
    a("s_waitcnt vmcnt(0)")
    a("s_barrier")
    L_nf = "B1_nf"
    a(f"s_cmp_lg_u32 s{sW}, 0")
    a(f"s_cbranch_scc1 {L_nf}")
    a(f"s_lshl_b32 s{sT}, s{sG}, 4")
    a(f"s_add_u32 s{sT}, s{sT}, s{sC}")
    set_flag(a, vT, sT, FL_H)
    a.label(L_nf)
    st.mark("epi")
    st.end()
    a("s_endpgm")

def role_B2(a):
    st = Stamps(a, "B2")
    st.start()
    if OPT.get("bprio"): a(f"s_setprio {OPT['bprio']}")
    sSoffW, sSoffX, sWb, sIt, sRho, sWrapW, sRst = 57, 58, 59, 60, 61, 98, 99
    vT = 4
    vX16, vXa = 14, 15
    ACC = 16
    XR = 48
    WB = 64
    vOut = vT+3
    NXS = 8
    a(f"s_sub_u32 s{sT2}, s2, 512")
    a(f"s_bfe_u32 s{sRB}, s{sT2}, 0x20001")
    a(f"s_lshl_b32 s{sRB}, s{sRB}, 4")
    a(f"s_bfe_u32 s{sT}, s{sT2}, 0x40003")
    a(f"s_add_u32 s{sRB}, s{sRB}, s{sT}")
    a(f"s_and_b32 s{sCG}, s{sT2}, 1")
    a(f"s_lshl_b32 s{sCG}, s{sCG}, 1")
    a(f"s_lshr_b32 s{sT}, s{sT2}, 7")
    a(f"s_add_u32 s{sCG}, s{sCG}, s{sT}")
    a(f"v_lshlrev_b32 v{vX16}, 4, v{vLane}")
    a(f"s_and_b32 s{sRho}, s{sRB}, 7")
    a(f"s_min_u32 s{sT3}, s{sW}, 4")
    a(f"s_mul_i32 s{sT}, s{sCG}, 5")
    a(f"s_add_u32 s{sT}, s{sT}, s{sT3}")
    a(f"s_mul_i32 s{sWb}, s{sT}, {136*1024}")
    a(f"s_add_u32 s{sWb}, s{sWb}, {WS_WF}")
    a(f"s_lshl_b32 s{sT}, s{sT}, 6")
    srd(a, R_C, S_X, S_X+1, NX)
    a(f"s_lshl_b32 s{sT2}, s{sRB}, 5")
    a(f"v_add_u32 v{vT}, s{sT2}, v{vN}")
    a(f"v_mul_u32_u24 v{vT}, 1280, v{vT}")
    a(f"v_lshl_add_u32 v{vT}, v{vH}, 3, v{vT}")
    a(f"v_add_u32 v{vOut}, s{sT}, v{vT}")
    for q in range(4):
        a(f"buffer_load_dwordx2 v[{XR+2*q}:{XR+2*q+1}], v{vOut}, s[{R_C}:{R_C+3}], 0 offen offset:{16*q}")
    srd(a, R_C, S_B2, S_B2+1, 640*2)
    a(f"v_lshlrev_b32 v{vT}, 3, v{vH}")
    for q in range(4):
        a(f"buffer_load_dwordx2 v[{XR+8+2*q}:{XR+8+2*q+1}], v{vT}, s[{R_C}:{R_C+3}], s{sT} offen offset:{16*q}")
    for i in range(16): a(f"v_mov_b32 v{ACC+i}, 0")
    def unpack_add(q, dst):
        for (src, t) in ((XR+2*q, 32), (XR+8+2*q, 36)):
            a(f"v_lshlrev_b32 v{t}, 16, v{src}")
            a(f"v_and_b32 v{t+1}, 0xffff0000, v{src}")
            a(f"v_lshlrev_b32 v{t+2}, 16, v{src+1}")
            a(f"v_and_b32 v{t+3}, 0xffff0000, v{src+1}")
        for j in range(4): a(f"v_add_f32 v{32+j}, v{32+j}, v{36+j}")
        for j in range(4): a(f"v_add_f32 v{dst+j}, v{dst+j}, v{32+j}")
    L_side = "B2_side"
    a(f"s_cmp_ge_u32 s{sW}, 4")
    a(f"s_cbranch_scc1 {L_side}")
    a("s_barrier")
    a(f"s_lshl_b32 s{sSoffW}, s{sRho}, 13")
    a(f"s_mov_b32 s{sWrapW}, {96*1024}")
    a(f"s_mov_b32 s{sRst}, 0")
    def wload(r):
        a(f"s_add_u32 s{sT2}, s{sWb}, s{sSoffW}")
        a(f"s_add_u32 s{sT}, s{sSoffW}, 1024")
        a(f"buffer_load_dwordx4 {vr(r,4)}, v{vX16}, s[{R_WS}:{R_WS+3}], s{sT2} offen sc1")
        a(f"s_cmp_eq_u32 s{sT}, s{sWrapW}")
        a(f"s_cselect_b32 s{sSoffW}, s{sRst}, s{sT}")
    for k in range(16): wload(WB + 4*k)
    st.mark("setup")
    a(f"s_mov_b32 s{sIt}, 0")
    L1 = "B2_p1"
    a.label(L1)
    XBUF = 32
    for j in range(16):
        k = j % 8
        if k == 0:
            a("s_barrier")
            a(f"s_lshl_b32 s{sT}, s{sIt}, 1")
            if j: a(f"s_add_u32 s{sT}, s{sT}, 1")
            a(f"s_and_b32 s{sT}, s{sT}, {NXS-1}")
            a(f"s_lshl_b32 s{sT}, s{sT}, 13")
            a(f"v_add_u32 v{vXa}, s{sT}, v{vX16}")
            for i in range(3):
                a(f"ds_read_b128 {vr(XBUF+4*i,4)}, v{vXa} offset:{i*1024}")
        if j == 0:
            L1n = "B2_p1n"
            a(f"s_cmp_lg_u32 s{sIt}, 5")
            a(f"s_cbranch_scc1 {L1n}")
            a(f"s_mul_i32 s{sSoffW}, s{sRho}, {5*1024}")
            a(f"s_add_u32 s{sSoffW}, s{sSoffW}, {96*1024}")
            a(f"s_mov_b32 s{sWrapW}, {136*1024}")
            a(f"s_mov_b32 s{sRst}, {96*1024}")
            a.label(L1n)
        if k + 3 < 8:
            a(f"ds_read_b128 {vr(XBUF+4*((k+3)%4),4)}, v{vXa} offset:{(k+3)*1024}")
            a("s_waitcnt vmcnt(15) lgkmcnt(3)")
        else:
            a(f"s_waitcnt vmcnt(15) lgkmcnt({7-k})")
        a(f"v_mfma_f32_32x32x16_bf16 {vr(ACC,16)}, {vr(WB+4*j,4)}, {vr(XBUF+4*(k%4),4)}, {vr(ACC,16)}")
        wload(WB + 4*j)
    a(f"s_add_u32 s{sIt}, s{sIt}, 1")
    a(f"s_cmp_lt_u32 s{sIt}, 6")
    a(f"s_cbranch_scc1 {L1}")
    st.mark("ffn2")
    a.nop(12)
    for q in range(4): unpack_add(q, ACC+4*q)
    XBUF = XR
    NBLK = 20
    def blk(s_):
        b = s_ % NBLK
        return (WB + 4*b) if b < 16 else (32 + 4*(b-16))
    for s_ in range(16, 20): wload(blk(s_))
    a("s_barrier")
    a(f"s_branch B2_oload")
    a.label(L_side)
    a(f"s_cmp_lt_u32 s{sW}, 6")
    a(f"s_cbranch_scc1 B2_np0")
    get_tag(a, vT, "B2")
    a(f"s_cmp_eq_u32 s{sW}, 7")
    a(f"s_cbranch_scc1 B2_ph")
    a(f"s_lshl_b32 s{sT}, s{sCG}, 6")
    poll_flags(a, vT, "B2w", sT, 64, FL_W)
    a(f"s_branch B2_np0")
    a.label("B2_ph")
    a(f"s_lshr_b32 s{sT}, s{sRB}, 2")
    a(f"s_lshl_b32 s{sT}, s{sT}, 4")
    poll_flags(a, vT, "B2h", sT, 16, FL_H)
    a.label("B2_np0")
    a("s_barrier")
    a(f"s_sub_u32 s{sT3}, s{sW}, 4")
    a("s_waitcnt vmcnt(0)")
    for jj in range(1, 4):
        Ls = a.newlabel("B2_q")
        a(f"s_cmp_lg_u32 s{sT3}, {jj}")
        a(f"s_cbranch_scc1 {Ls}")
        a(f"v_mov_b32 v{XR}, v{XR+2*jj}")
        a(f"v_mov_b32 v{XR+1}, v{XR+2*jj+1}")
        a(f"v_mov_b32 v{XR+8}, v{XR+8+2*jj}")
        a(f"v_mov_b32 v{XR+9}, v{XR+8+2*jj+1}")
        a.label(Ls)
    for j in range(4): a(f"v_mov_b32 v{40+j}, 0")
    unpack_add(0, 40)
    a(f"s_lshl_b32 s{sRst}, s{sT3}, 11")
    a(f"s_lshl_b32 s{sSoffW}, s{sRho}, 13")
    a(f"s_add_u32 s{sSoffW}, s{sSoffW}, s{sRst}")
    a(f"s_add_u32 s{sWrapW}, s{sRst}, {96*1024}")
    SD = 4
    def wpair(slot):
        a(f"s_add_u32 s{sT2}, s{sWb}, s{sSoffW}")
        a(f"s_add_u32 s{sT}, s{sSoffW}, 8192")
        a(f"buffer_load_dwordx4 {vr(WB+8*slot,4)}, v{vX16}, s[{R_WS}:{R_WS+3}], s{sT2} offen sc1")
        a(f"buffer_load_dwordx4 {vr(WB+8*slot+4,4)}, v{vX16}, s[{R_WS}:{R_WS+3}], s{sT2} offen offset:1024 sc1")
        a(f"s_cmp_eq_u32 s{sT}, s{sWrapW}")
        a(f"s_cselect_b32 s{sSoffW}, s{sRst}, s{sT}")
    for c in range(SD): wpair(c)
    a(f"s_sub_u32 s{sT3}, s{sW}, 4")
    a(f"s_mul_i32 s{sT}, s{sRB}, {96*1024}")
    a(f"s_add_u32 s63, s{sT}, {WS_H}")
    a(f"s_lshl_b32 s97, s{sT3}, 11")
    a(f"s_add_u32 s63, s63, s97")
    a(f"s_lshl_b32 s{sSoffX}, s{sRho}, 13")
    a(f"v_add_u32 v{vT+5}, s97, v{vX16}")
    vXs = vT+5
    vm = Cnt(a, "vmcnt", 63)
    def xdma(c):
        a(f"s_add_u32 m0, s97, {(c % NXS)*8192}")
        a(f"s_add_u32 s{sT2}, s63, s{sSoffX}")
        a(f"s_add_u32 s{sT}, s{sSoffX}, 8192")
        for i in range(2):
            a(f"buffer_load_dwordx4 v{vX16}, s[{R_WS}:{R_WS+3}], s{sT2} offen offset:{1024*i} sc1 lds")
        a(f"s_cmp_eq_u32 s{sT}, {96*1024}")
        a(f"s_cselect_b32 s{sSoffX}, 0, s{sT}")
        vm.issue(("X", c), 2)
    for c in range(SD): vm.issue(("W", c), 2)
    XD = 6
    for c in range(XD): xdma(c)
    for c in range(12):
        vm.need(("X", c), ("W", c))
        a("s_barrier")
        if c + XD < 12: xdma(c + XD)
        for i in range(2):
            a(f"ds_read_b128 {vr(48+4*i,4)}, v{vXs} offset:{(c % NXS)*8192 + 1024*i}")
        a("s_waitcnt lgkmcnt(1)")
        a(f"v_mfma_f32_32x32x16_bf16 {vr(ACC,16)}, {vr(WB+8*(c%4),4)}, {vr(48,4)}, {vr(ACC,16)}")
        a("s_waitcnt lgkmcnt(0)")
        a(f"v_mfma_f32_32x32x16_bf16 {vr(ACC,16)}, {vr(WB+8*(c%4)+4,4)}, {vr(52,4)}, {vr(ACC,16)}")
        if c + SD < 12: wpair(c % 4); vm.issue(("W", c + SD), 2)
    a(f"s_sub_u32 s{sT3}, s{sW}, 4")
    a(f"s_lshl_b32 s{sT3}, s{sT3}, 1")
    a(f"s_mul_i32 s62, s{sRho}, 5")
    a(f"s_add_u32 s62, s62, s{sT3}")
    for m in range(5):
        for i in range(2):
            a(f"s_add_u32 s{sT}, s62, {8*m+i}")
            a(f"s_cmp_ge_u32 s{sT}, 40")
            a(f"s_cselect_b32 s{sT2}, 40, 0")
            a(f"s_sub_u32 s{sT}, s{sT}, s{sT2}")
            a(f"s_add_u32 s{sT}, s{sT}, 96")
            a(f"s_lshl_b32 s{sT}, s{sT}, 10")
            a(f"s_add_u32 s{sT}, s{sT}, s{sWb}")
            a(f"buffer_load_dwordx4 {vr(WB+4*(2*m+i),4)}, v{vX16}, s[{R_WS}:{R_WS+3}], s{sT} offen sc1")
    Lnp2 = "B2_np2"
    a(f"s_cmp_lg_u32 s{sW}, 7")
    a(f"s_cbranch_scc1 {Lnp2}")
    a(f"s_lshl_b32 s{sT}, s{sRB}, 5")
    poll_flags(a, vT, "B2o", sT, 32, FL_O, sleep=OPT.get("osleep", 2))
    a.label(Lnp2)
    st.mark("wait_o")
    a("s_barrier")
    a.label("B2_oload")
    a(f"s_mul_i32 s63, s{sRB}, {40*1024}")
    a(f"s_add_u32 s63, s63, {WS_OF}")
    a(f"s_mul_i32 s62, s{sRho}, 5")
    for i in range(5):
        a(f"s_mul_i32 s{sT}, s{sW}, 5")
        a(f"s_add_u32 s{sT}, s{sT}, {i}")
        a(f"s_add_u32 s{sT2}, s{sT}, s62")
        a(f"s_cmp_ge_u32 s{sT2}, 40")
        a(f"s_cselect_b32 s{sIt}, 40, 0")
        a(f"s_sub_u32 s{sT2}, s{sT2}, s{sIt}")
        a(f"s_lshl_b32 s{sT2}, s{sT2}, 10")
        a(f"s_add_u32 s{sT2}, s{sT2}, s63")
        a(f"s_lshl_b32 m0, s{sT}, 10")
        a("s_nop 0")
        a(f"buffer_load_dwordx4 v{vX16}, s[{R_WS}:{R_WS+3}], s{sT2} offen sc1 lds")
    a("s_waitcnt vmcnt(0)")
    a("s_barrier")
    st.mark("oload")
    a(f"s_cmp_ge_u32 s{sW}, 4")
    a(f"s_cbranch_scc1 B2_side2")
    vm = Cnt(a, "vmcnt", 63); lg = Cnt(a, "lgkmcnt", 15)
    def xread(s_):
        r = XBUF + 4*(s_ % 4)
        a(f"ds_read_b128 {vr(r,4)}, v{vX16} offset:{s_*1024}")
        lg.issue(("X", s_))
    for s_ in range(3): xread(s_)
    for s_ in range(40):
        if s_ + 3 < 40: xread(s_ + 3)
        vm.need(("W", s_))
        lg.need(("X", s_))
        a(f"v_mfma_f32_32x32x16_bf16 {vr(ACC,16)}, {vr(blk(s_),4)}, {vr(XBUF+4*(s_%4),4)}, {vr(ACC,16)}")
        if s_ + NBLK < 40:
            wload(blk(s_)); vm.issue(("W", s_ + NBLK))
    st.mark("wo")
    if OPT.get("diag"):
        a(f"s_cmp_lg_u32 s{sW}, 0"); Ld = a.newlabel("dg"); a(f"s_cbranch_scc1 {Ld}"); diag(a, 10); diag(a, 11, neg=True); a.label(Ld)
    a("s_setprio 3")
    a("s_barrier")
    a.nop(10)
    srd(a, R_C, S_OUT, S_OUT+1, NX)
    for q in range(4):
        a(f"v_cvt_pk_bf16_f32 v{32+2*q}, v{ACC+4*q}, v{ACC+4*q+1}")
        a(f"v_cvt_pk_bf16_f32 v{33+2*q}, v{ACC+4*q+2}, v{ACC+4*q+3}")
        a(f"buffer_store_dwordx2 v[{32+2*q}:{33+2*q}], v{vOut}, s[{R_C}:{R_C+3}], 0 offen offset:{16*q}")
    a("s_barrier")
    if OPT.get("diag"):
        a("s_waitcnt vmcnt(0)")
        a(f"s_cmp_lg_u32 s{sW}, 0"); Ld = a.newlabel("dg"); a(f"s_cbranch_scc1 {Ld}"); diag(a, 12); a.label(Ld)
    st.end()
    a("s_endpgm")
    a.label("B2_side2")
    for k in range(4):
        a(f"ds_read_b128 {vr(48+4*k,4)}, v{vXs} offset:{(8*(k//2)+(k%2))*1024}")
    for k in range(10):
        a(f"s_waitcnt lgkmcnt({min(3, 9-k)})")
        a(f"v_mfma_f32_32x32x16_bf16 {vr(ACC,16)}, {vr(WB+4*k,4)}, {vr(48+4*(k%4),4)}, {vr(ACC,16)}")
        if k + 4 < 10:
            a(f"ds_read_b128 {vr(48+4*(k%4),4)}, v{vXs} offset:{(8*((k+4)//2)+((k+4)%2))*1024}")
    a("s_setprio 3")
    a("s_barrier")
    a.nop(12)
    a(f"s_sub_u32 s{sT3}, s{sW}, 4")
    a(f"s_lshl_b32 s{sT}, s{sT3}, 12")
    a(f"v_add_u32 v{vT}, s{sT}, v{vX16}")
    for q in range(4):
        a(f"ds_write_b128 v{vT}, {vr(ACC+4*q,4)} offset:{q*1024}")
    a("s_waitcnt lgkmcnt(0)")
    a("s_barrier")
    a(f"s_lshl_b32 s{sT}, s{sT3}, 10")
    a(f"v_add_u32 v{vT}, s{sT}, v{vX16}")
    for jj in range(4):
        a(f"ds_read_b128 {vr(ACC+4*jj,4)}, v{vT} offset:{jj*4096}")
    a(f"s_lshl_b32 s{sT}, s{sT3}, 4")
    a(f"v_add_u32 v{vOut}, s{sT}, v{vOut}")
    srd(a, R_C, S_OUT, S_OUT+1, NX)
    a("s_waitcnt lgkmcnt(0)")
    for j in range(4):
        a(f"v_add_f32 v{ACC+j}, v{ACC+j}, v{ACC+4+j}")
        a(f"v_add_f32 v{ACC+8+j}, v{ACC+8+j}, v{ACC+12+j}")
    for j in range(4): a(f"v_add_f32 v{ACC+j}, v{ACC+j}, v{40+j}")
    for j in range(4): a(f"v_add_f32 v{ACC+j}, v{ACC+j}, v{ACC+8+j}")
    a(f"v_cvt_pk_bf16_f32 v32, v{ACC}, v{ACC+1}")
    a(f"v_cvt_pk_bf16_f32 v33, v{ACC+2}, v{ACC+3}")
    a(f"buffer_store_dwordx2 v[32:33], v{vOut}, s[{R_WS if False else R_C}:{R_C+3}], 0 offen")
    st.end()
    a("s_endpgm")

HEADER = """; x + MQA-attention(LN(x)) @ wo + FFN_relu2(LN(x))  -- one launch, three workgroup roles (8 waves each, 2 workgroups per CU).
"""

def gen():
    a = Asm()
    a("s_cmp_ge_u32 s2, 768")
    a("s_cbranch_scc1 K_end")
    a("s_load_dwordx16 s[4:19], s[0:1], 0")
    a("s_load_dwordx8 s[20:27], s[0:1], 64")
    a("s_load_dwordx2 s[28:29], s[0:1], 96")
    a(f"v_and_b32 v{vLane}, 63, v0")
    a(f"v_lshrrev_b32 v4, 6, v0")
    a(f"v_lshrrev_b32 v{vH}, 5, v{vLane}")
    a(f"v_readfirstlane_b32 s{sW}, v4")
    a(f"v_and_b32 v{vN}, 31, v{vLane}")
    a("s_waitcnt lgkmcnt(0)")
    srd(a, R_WS, S_WS, S_WS+1, WS_END)
    srd(a, R_FL, S_WS, S_WS+1, FL_SIZE, WS_FL)
    for r in (R_A, R_B, R_C): srd(a, r, S_WS, S_WS+1, WS_END)
    for i in range(4, 16): a(f"v_mov_b32 v{i}, 0")
    if OPT.get("tlb", 0):
        a(f"s_cmp_lg_u32 s{sW}, 4")
        a(f"s_cbranch_scc1 K_notlb")
        a(f"v_lshlrev_b32 v5, 18, v{vLane}")
        a(f"buffer_load_dword v0, v5, s[{R_WS}:{R_WS+3}], 0 offen")
        a(f"v_lshlrev_b32 v5, 16, v{vLane}")
        for ptr in (S_W1, S_W2, S_WO, S_OUT, S_WQ):
            a(f"global_load_dword v0, v5, s[{ptr}:{ptr+1}]") if False else None
        a.label("K_notlb")
    if OPT.get("diag"):
        a(f"s_cmp_lg_u32 s{sW}, 0")
        a("s_cbranch_scc1 K_nod")
        a("s_cmp_ge_u32 s2, 256")
        a("s_cbranch_scc1 K_nod")
        diag(a, 2)
        a.label("K_nod")
    a("s_cmp_ge_u32 s2, 512")
    a("s_cbranch_scc1 ROLE_B2")
    a("s_cmp_ge_u32 s2, 256")
    a("s_cbranch_scc1 ROLE_B1")
    role_A(a)
    a.label("ROLE_B1")
    role_B1(a)
    a.label("ROLE_B2")
    role_B2(a)
    a.label("K_end")
    a("s_endpgm")
    grid = OPT.get("grid", 768)
    s = f"; @launch grid=({grid},1,1) block=(512,1,1) lds={LDS_BYTES}\n" + HEADER
    s += '.amdgcn_target "amdgcn-amd-amdhsa--gfx950"\n.text\n'
    s += kernel_header(KN) + a.text()
    s += '.section .rodata,"a"\n.p2align 6\n' + kernel_desc(KN, 128, 102)
    return s

if __name__ == "__main__":
    if "--prof" in sys.argv: PROF = True
    for x in sys.argv:
        if x.startswith("-D"):
            k, _, v = x[2:].partition("="); OPT[k] = int(v) if v else 1
    open(sys.argv[1], "w").write(gen())
    if PROF: json.dump(STAMP_NAMES, open("stamps8.json", "w"))
```

```python
import sys, math, json
from asmlib import *

NAME = "parallel_sum__grouped_kv_mqa__dense_activation_squared_relu__prompt"
KN = NAME + "_kernel"
WS_XF = 0x0
WS_R  = 0x280000
WS_KV = 0x290000
WS_OF = 0x2D0000
WS_H  = 0x550000
WS_FL = 0xB50000
WS_WF = 0xBC0000
WS_END = 0xE70000
WS_DBG = 0x2000000
FL_KV, FL_D, FL_H, FL_W, FL_O = 0, 128, 640, 896, 1152
FL_N = 3200
FL_SIZE = FL_N * 128
NX = 2048 * 640 * 2
TS = 2688
VF = 704; VH = 352
KVB = 64 * TS
CH = 8 * TS
QSCALE = (20 ** -0.5) * math.log2(math.e)
DELTA = 96.0
LDS_BYTES = 81920
PROF = False
OPT = {}
SPIN_MAX = 200000

S_X, S_WQ, S_WK, S_WV, S_WO, S_W1, S_B1, S_W2, S_B2, S_OUT, S_DBG, S_WS = 4, 6, 8, 10, 12, 16, 18, 20, 22, 24, 26, 28
sW = 30
sTag = 31
R_WS = 32
R_FL = 36
R_A = 40
R_B = 44
R_C = 48
sRB, sCG, sT, sT2, sT3 = 52, 53, 54, 55, 56
vLane, vH, vN = 1, 2, 3

def diag(a, word, neg=False, va=74):
    if not OPT.get("diag") or neg: return
    L = a.newlabel("dgx")
    a(f"s_and_b32 s86, s2, 255")
    a(f"s_cmp_lg_u32 s86, {OPT.get('diagwg', 37)}")
    a(f"s_cbranch_scc1 {L}")
    a("s_memrealtime s[84:85]")
    a("s_waitcnt lgkmcnt(0)")
    a("s_mov_b64 s[86:87], exec")
    a("s_mov_b64 exec, 1")
    a(f"v_mov_b32 v{va}, s84")
    a(f"v_mov_b32 v{va+1}, {4*word}")
    a(f"global_store_dword v{va+1}, v{va}, s[{S_DBG}:{S_DBG+1}]")
    a("s_mov_b64 exec, s[86:87]")
    a.label(L)

class Stamps:
    def __init__(self, a, role): self.a = a; self.n = 1; self.names = []; self.role = role
    def start(self):
        if not PROF: return
        for i in range(68, 94): self.a(f"s_mov_b32 s{i}, 0")
        self.a("s_memrealtime s[64:65]"); self.a("s_memtime s[66:67]"); self.a("s_waitcnt lgkmcnt(0)"); self.n = 2
    def mark(self, name):
        if not PROF: return
        assert self.n < 15
        self.a(f"s_memtime s[{64+2*self.n}:{65+2*self.n}]"); self.a("s_waitcnt lgkmcnt(0)")
        self.n += 1; self.names.append(name)
    def end(self):
        if not PROF: return
        a = self.a
        a("s_waitcnt vmcnt(0)")
        self.mark("final-drain")
        a("s_memrealtime s[94:95]"); a("s_waitcnt lgkmcnt(0)")
        a("s_mov_b64 exec, 1")
        a(f"s_lshl_b32 s98, s2, 3")
        a(f"s_add_u32 s98, s98, s{sW}")
        a(f"s_lshl_b32 s98, s98, 6")
        a(f"s_add_u32 s98, s98, {WS_DBG}")
        a(f"s_add_u32 s96, s{S_WS}, s98")
        a(f"s_addc_u32 s97, s{S_WS+1}, 0")
        a(f"v_mov_b32 v0, 0")
        for i in list(range(14)) + [15]:
            a(f"v_mov_b32 v1, s{64+2*i}")
            a(f"global_store_dword v0, v1, s[96:97] offset:{4*i}")
        a(f"v_mov_b32 v1, {self.n}")
        a(f"global_store_dword v0, v1, s[96:97] offset:56")
        a("s_waitcnt vmcnt(0)")
        STAMP_NAMES[self.role] = self.names
STAMP_NAMES = {}

def bf16_round(a, dst, src):
    a(f"v_cvt_pk_bf16_f32 v{dst}, v{src}, v{src}")
    a(f"v_lshlrev_b32 v{dst}, 16, v{dst}")

def decode_rb_cg(a, j):
    a(f"s_lshr_b32 s{sCG}, s{j}, 6")
    a(f"s_and_b32 s{sRB}, s{j}, 7")
    a(f"s_lshl_b32 s{sRB}, s{sRB}, 3")
    a(f"s_bfe_u32 s{sT}, s{j}, 0x30003")
    a(f"s_add_u32 s{sRB}, s{sRB}, s{sT}")

def get_tag(a, vt, lab):
    L = f"{lab}_tag"
    a(f"s_mov_b32 s{sT3}, {SPIN_MAX}")
    a(f"v_mov_b32 v{vt}, 0")
    a.label(L)
    a(f"global_load_dword v{vt+1}, v{vt}, s[{S_DBG}:{S_DBG+1}] sc1")
    a("s_waitcnt vmcnt(0)")
    a(f"v_readfirstlane_b32 s{sTag}, v{vt+1}")
    a(f"s_sub_u32 s{sT3}, s{sT3}, 1")
    a(f"s_cmp_eq_u32 s{sT3}, 0")
    a(f"s_cbranch_scc1 {L}_done")
    a(f"s_cmp_eq_u32 s{sTag}, 0")
    a(f"s_cbranch_scc0 {L}_done")
    a("s_sleep 1")
    a(f"s_branch {L}")
    a.label(f"{L}_done")

def poll_flags(a, vt, lab, s_idx, nflags, region, tries=None, sleep=None):
    if nflags == 128:
        poll_flags(a, vt, lab + "a", None, 64, region, tries, sleep)
        poll_flags(a, vt, lab + "b", None, 64, region + 64, tries, sleep)
        return
    L = f"{lab}_poll"
    a(f"v_lshlrev_b32 v{vt}, 7, v{vLane}")
    if s_idx is None:
        a(f"s_mov_b32 s63, {region*128}")
    else:
        a(f"s_lshl_b32 s63, s{s_idx}, 7")
        if region: a(f"s_add_u32 s63, s63, {region*128}")
    a(f"s_mov_b32 s{sT3}, {tries or SPIN_MAX}")
    a("s_mov_b64 s[100:101], exec")
    if nflags < 64:
        a(f"s_mov_b32 exec_lo, {(1 << min(nflags, 32)) - 1 if nflags < 32 else -1}")
        a(f"s_mov_b32 exec_hi, {((1 << (nflags - 32)) - 1) if nflags > 32 else 0}")
    a.label(L)
    a(f"buffer_load_dword v{vt+1}, v{vt}, s[{R_FL}:{R_FL+3}], s63 offen sc1")
    a("s_waitcnt vmcnt(0)")
    a(f"v_cmp_ne_u32 vcc, s{sTag}, v{vt+1}")
    a("s_nop 1")
    a(f"s_and_b64 exec, exec, vcc")
    a(f"s_cbranch_execz {L}_done")
    a(f"s_sub_u32 s{sT3}, s{sT3}, 1")
    a(f"s_cmp_eq_u32 s{sT3}, 0")
    a(f"s_cbranch_scc1 {L}_done")
    a(f"s_sleep {sleep if sleep is not None else OPT.get('sleep', 6)}")
    a(f"s_branch {L}")
    a.label(f"{L}_done")
    a("s_mov_b64 exec, s[100:101]")

def set_flag(a, vt, s_idx, region):
    a(f"v_mov_b32 v{vt}, s{sTag}")
    a(f"v_mov_b32 v{vt+1}, 0")
    a(f"s_lshl_b32 s63, s{s_idx}, 7")
    if region: a(f"s_add_u32 s63, s63, {region*128}")
    a("s_mov_b64 s[100:101], exec")
    a("s_mov_b64 exec, 1")
    a(f"buffer_store_dword v{vt}, v{vt+1}, s[{R_FL}:{R_FL+3}], s63 offen sc1")
    a("s_mov_b64 exec, s[100:101]")

def tr_addr(a, dst, dst2, pitch, hrows, second_rows, s_base, t):
    a(f"v_bfe_u32 v{t}, v{vLane}, 2, 2")
    a(f"v_mul_u32_u24 v{t+1}, {hrows}, v{vH}")
    a(f"v_add_u32 v{t}, v{t}, v{t+1}")
    a(f"v_bfe_u32 v{t+1}, v{vLane}, 4, 1")
    a(f"v_and_b32 v{t+2}, 3, v{vLane}")
    a(f"v_lshlrev_b32 v{t+2}, 3, v{t+2}")
    a(f"v_lshl_add_u32 v{t+1}, v{t+1}, 5, v{t+2}")
    a(f"v_mul_u32_u24 v{dst}, {pitch}, v{t}")
    a(f"v_add3_u32 v{dst}, v{dst}, v{t+1}, s{s_base}")
    if dst2 is not None:
        a(f"v_add_u32 v{dst2}, {second_rows*pitch}, v{dst}")

def role_A(a):
    OPT["nopre0"] = 1
    st = Stamps(a, "A")
    st.start()
    XB = 0; XP = 1056; XH = 528; RBUF = 42240
    RING = 42496; NSTG = 3; RW = NSTG*1024; DEPTH = 16
    KSTG = 57856
    KVX = 67072
    LFL = XB + 512
    LFL2 = XB + 1040
    T4F = 75264
    SB = [0, 16384, 32768, 49152]
    QBUF = 65536; QP = 328
    sStep, sSoff, sLds, sRho, sWrap, sIt = 57, 58, 59, 60, 61, 57
    sExp, sFD = 95, 94
    vT = 4
    vVo, vTr, vTr2, vX16 = 12, 13, 14, 15
    X = 16
    TMP = 36
    vSum, vSq, vM = 52, 53, 54
    vOne, vSelLo, vSelHi = 56, 57, 58
    vR, vXa, vWst, vTag = 9, 10, 11, 61
    ACC = 16; FB = 32; WS_ = 64
    a(f"s_mov_b32 s{sT2}, s2")
    decode_rb_cg(a, sT2)
    L_notag = "A_notag"
    a(f"s_cmp_lg_u32 s2, 0")
    a(f"s_cbranch_scc1 {L_notag}")
    a(f"s_cmp_lg_u32 s{sW}, 0")
    a(f"s_cbranch_scc1 {L_notag}")
    a(f"s_memrealtime s[62:63]")
    a("s_waitcnt lgkmcnt(0)")
    a(f"s_or_b32 s62, s62, 1")
    a(f"v_mov_b32 v{vT}, s62")
    a(f"v_mov_b32 v{vT+1}, 0")
    a("s_mov_b64 exec, 1")
    a(f"global_store_dword v{vT+1}, v{vT}, s[{S_DBG}:{S_DBG+1}] sc1")
    a("s_mov_b64 exec, -1")
    a.label(L_notag)
    srd(a, R_A, S_X, S_X+1, NX)
    a(f"s_lshl_b32 s{sT}, s{sRB}, 5")
    a(f"s_lshl_b32 s{sT2}, s{sW}, 2")
    a(f"s_add_u32 s{sT}, s{sT}, s{sT2}")
    a(f"v_lshrrev_b32 v{vT}, 4, v{vLane}")
    a(f"v_add_u32 v{vT}, s{sT}, v{vT}")
    a(f"v_mul_u32_u24 v{vT}, 1280, v{vT}")
    a(f"v_and_b32 v{vT+1}, 15, v{vLane}")
    a(f"v_lshl_add_u32 v{vT}, v{vT+1}, 4, v{vT}")
    for i in range(5):
        a(f"buffer_load_dwordx4 {vr(X+4*i,4)}, v{vT}, s[{R_A}:{R_A+3}], 0 offen offset:{256*i}")
    a(f"v_lshlrev_b32 v{vX16}, 4, v{vLane}")
    a(f"s_and_b32 s{sRho}, s{sRB}, 7")
    L_nowe = "A_nowe"
    a(f"s_cmp_lt_u32 s{sW}, 5")
    a(f"s_cbranch_scc1 {L_nowe}")
    a(f"s_cmp_ge_u32 s{sCG}, 2")
    a(f"s_cbranch_scc1 {L_nowe}")
    a(f"s_cmp_eq_u32 s{sCG}, 1")
    a(f"s_cselect_b32 s{R_B}, s{S_WV}, s{S_WK}")
    a(f"s_cselect_b32 s{R_B+1}, s{S_WV+1}, s{S_WK+1}")
    a(f"s_mov_b32 s{R_B+2}, {640*20*2}")
    a(f"s_mov_b32 s{R_B+3}, 0x00020000")
    a(f"s_sub_u32 s{sT}, s{sW}, 5")
    a(f"s_mul_i32 s{sStep}, s{sT}, 13")
    a(f"s_min_u32 s{sT}, s{sT}, 1")
    a(f"s_add_u32 s{sStep}, s{sStep}, s{sT}")
    a(f"s_mul_i32 s{sT}, s{sRho}, 5")
    a(f"s_add_u32 s{sT2}, s{sStep}, s{sT}")
    a(f"s_cmp_ge_u32 s{sT2}, 40")
    a(f"s_cselect_b32 s{sT}, 40, 0")
    a(f"s_sub_u32 s{sT2}, s{sT2}, s{sT}")
    a(f"s_mul_i32 s{sSoff}, s{sT2}, 640")
    for i in range(14):
        a(f"s_add_u32 s{sT}, s{sSoff}, 640")
        a(f"buffer_load_dwordx4 {vr(WS_+4*i,4)}, v{vX16}, s[{R_B}:{R_B+3}], s{sSoff} offen")
        a(f"s_cmp_eq_u32 s{sT}, 25600")
        a(f"s_cselect_b32 s{sSoff}, 0, s{sT}")
    a.label(L_nowe)
    a("s_barrier")
    L_nq = "A_nq"
    a(f"s_cmp_ge_u32 s{sW}, 5")
    a(f"s_cbranch_scc1 {L_nq}")
    srd(a, R_B, S_WQ, S_WQ+1, 640*640*2)
    a(f"v_lshrrev_b32 v{vT}, 2, v{vLane}")
    a(f"v_mul_u32_u24 v{vT}, 1280, v{vT}")
    a(f"v_and_b32 v{vT+1}, 3, v{vLane}")
    a(f"v_lshl_add_u32 v{vT}, v{vT+1}, 4, v{vT}")
    a(f"s_mul_i32 s{sT}, s{sCG}, 320")
    a(f"s_lshl_b32 s{sT2}, s{sW}, 6")
    a(f"s_add_u32 s{sT}, s{sT}, s{sT2}")
    a(f"v_add_u32 v{vVo}, s{sT}, v{vT}")
    a(f"s_mul_i32 s{sLds}, s{sW}, {RW}")
    a(f"s_add_u32 s{sLds}, s{sLds}, {RING}")
    a(f"s_mul_i32 s{sSoff}, s{sRho}, {5*20480}")
    def wload(k):
        d = WS_ + 4*(k % DEPTH)
        a(f"s_add_u32 s{sT}, s{sSoff}, 20480")
        a(f"buffer_load_dwordx4 {vr(d,4)}, v{vVo}, s[{R_B}:{R_B+3}], s{sSoff} offen")
        a(f"s_cmp_eq_u32 s{sT}, {40*20480}")
        a(f"s_cselect_b32 s{sSoff}, 0, s{sT}")
    NW0 = OPT.get("NW0", 8)
    for k in range(NW0): wload(k)
    tr_addr(a, vTr, vTr2, 64, 8, 4, sLds, vT)
    a(f"v_add_u32 v{vWst}, s{sLds}, v{vX16}")
    a(f"s_waitcnt vmcnt({NW0})")
    a(f"s_mov_b32 s{sTag}, 0")
    a(f"s_branch A_xok")
    a.label(L_nq)
    a(f"s_waitcnt vmcnt(14)")
    a(f"s_cmp_lt_u32 s{sCG}, 2")
    a(f"s_cbranch_scc1 A_xok2")
    a(f"s_waitcnt vmcnt(0)")
    a.label("A_xok2")
    a(f"v_mov_b32 v{vT}, 0")
    a(f"global_load_dword v{vTag}, v{vT}, s[{S_DBG}:{S_DBG+1}] sc1")
    a.label("A_xok")
    st.mark("xwait")
    a(f"v_mov_b32 v{vOne}, 0x3f803f80")
    a(f"v_mov_b32 v{vSelLo}, 0x00003f80")
    a(f"v_mov_b32 v{vSelHi}, 0x3f800000")
    for i in range(4): a(f"v_mov_b32 v{TMP+i}, 0")
    for i in range(20):
        a(f"v_dot2c_f32_bf16 v{TMP+(i%2)}, v{X+i}, v{vOne}")
        a(f"v_dot2c_f32_bf16 v{TMP+2+(i%2)}, v{X+i}, v{X+i}")
    a(f"v_lshrrev_b32 v{vT}, 4, v{vLane}")
    a(f"s_lshl_b32 s{sT}, s{sW}, 2")
    a(f"v_add_u32 v{vT}, s{sT}, v{vT}")
    a(f"v_and_b32 v{vT+1}, 1, v{vLane}")
    a(f"v_mul_u32_u24 v{vT+1}, {XH}, v{vT+1}")
    a(f"v_lshl_add_u32 v{vT+1}, v{vT}, 4, v{vT+1}")
    a(f"v_add_f32 v{vSum}, v{TMP}, v{TMP+1}")
    a(f"v_add_f32 v{vSq}, v{TMP+2}, v{TMP+3}")
    a(f"v_bfe_u32 v{vT+2}, v{vLane}, 1, 3")
    a(f"s_mul_i32 s{sT}, s{sRho}, 5")
    a(f"s_sub_u32 s{sT}, 40, s{sT}")
    for ror in (8, 4, 2, 1):
        a(f"v_add_f32_dpp v{vSum}, v{vSum}, v{vSum} row_ror:{ror} row_mask:0xf bank_mask:0xf")
        a(f"v_add_f32_dpp v{vSq}, v{vSq}, v{vSq} row_ror:{ror} row_mask:0xf bank_mask:0xf")
        if ror != 1: a.nop(1)
    a(f"v_add_u32 v{vT+2}, s{sT}, v{vT+2}")
    inv = f32bits(1.0/640)
    a(f"v_mul_f32 v{vM}, {inv}, v{vSum}")
    a(f"v_mul_f32 v{TMP+1}, {inv}, v{vSq}")
    a(f"v_fma_f32 v{TMP+1}, -v{vM}, v{vM}, v{TMP+1}")
    a(f"v_max_f32 v{TMP+1}, 0, v{TMP+1}")
    bf16_round(a, TMP+1, TMP+1)
    bf16_round(a, vM, vM)
    a(f"v_add_f32 v{TMP+1}, {f32bits(1e-5)}, v{TMP+1}")
    a(f"v_sub_f32 v{vM}, 0, v{vM}")
    bf16_round(a, TMP+1, TMP+1)
    a(f"v_sqrt_f32 v{vSum}, v{TMP+1}")
    for base in range(0, 20, 8):
        g = min(8, 20-base)
        for i in range(g):
            a(f"v_dot2_f32_bf16 v{TMP+2*i}, v{X+base+i}, v{vSelLo}, v{vM}")
            a(f"v_dot2_f32_bf16 v{TMP+2*i+1}, v{X+base+i}, v{vSelHi}, v{vM}")
        if base == 0:
            bf16_round(a, vSum, vSum)
            a(f"v_rcp_f32 v{vR}, v{vSum}")
        else:
            a.nop(3)
        for i in range(g):
            a(f"v_cvt_pk_bf16_f32 v{X+base+i}, v{TMP+2*i}, v{TMP+2*i+1}")
    a(f"v_lshlrev_b32 v{vT+3}, 2, v{vT}")
    a(f"ds_write_b32 v{vT+3}, v{vR} offset:{RBUF}")
    for i in range(5):
        if i: a(f"v_add_u32 v{vT+2}, 8, v{vT+2}")
        a(f"v_subrev_u32 v{vT+3}, 40, v{vT+2}")
        a(f"v_min_u32 v{vT+3}, v{vT+3}, v{vT+2}")
        a(f"v_mul_u32_u24 v{vT+3}, {XP}, v{vT+3}")
        a(f"v_add_u32 v{vT+3}, v{vT+3}, v{vT+1}")
        a(f"ds_write_b128 v{vT+3}, {vr(X+4*i,4)} offset:{XB}")
    a(f"v_mul_u32_u24 v{vXa}, {XH}, v{vH}")
    a(f"v_lshl_add_u32 v{vXa}, v{vN}, 4, v{vXa}")
    a(f"s_cmp_ge_u32 s{sW}, 5")
    a(f"s_cbranch_scc1 A_ln5")
    for k in range(NW0, 10): wload(k)
    a(f"s_cmp_eq_u32 s{sW}, 4")
    a(f"s_cbranch_scc1 A_lnb")
    for k in range(10, DEPTH): wload(k)
    a(f"s_branch A_lnb")
    a.label("A_ln5")
    a(f"v_mov_b32 v{vT}, {LFL}")
    for i in range(4): a(f"v_mov_b32 v{TMP+i}, 0")
    a(f"ds_write_b128 v{vT}, v[{TMP}:{TMP+3}]")
    a(f"ds_write_b128 v{vT}, v[{TMP}:{TMP+3}] offset:{LFL2-LFL}")
    a("s_waitcnt vmcnt(0)")
    a(f"v_readfirstlane_b32 s{sTag}, v{vTag}")
    a.label("A_lnb")
    a("s_waitcnt lgkmcnt(0)")
    a("s_barrier")
    a(f"v_lshlrev_b32 v{vT}, 2, v{vN}")
    a(f"ds_read_b32 v{vR}, v{vT} offset:{RBUF}")
    st.mark("LN")
    if OPT.get("diag"):
        a(f"s_cmp_lg_u32 s{sW}, 0"); Ld = a.newlabel("dg"); a(f"s_cbranch_scc1 {Ld}"); diag(a, 4, va=62); diag(a, 5, neg=True, va=62); a.label(Ld)
    def ensure_tag(lab):
        a(f"s_cmp_lg_u32 s{sTag}, 0")
        a(f"s_cbranch_scc1 {lab}_have")
        get_tag(a, vT, lab)
        a.label(f"{lab}_have")
    L_kvp, L_exp, L_bar1 = "A_kvp", "A_exp", "A_bar1"
    a(f"s_cmp_ge_u32 s{sW}, 5")
    a(f"s_cbranch_scc1 {L_kvp}")
    a(f"s_cmp_eq_u32 s{sW}, 4")
    a(f"s_cbranch_scc1 A_job4")
    if OPT.get("noq"): a(f"s_branch {L_bar1}")
    def pipe_gemm(nsteps, wr, rd, need_vm, refill, cin0):
        for k in range(5):
            if k < nsteps:
                need_vm(k, -5 + k)
                wr(k)
            if 0 <= k - 2 < nsteps: rd(k - 2)
        for s_ in range(nsteps):
            n_ops = 0
            if s_ + 5 < nsteps:
                need_vm(s_ + 5, s_)
                wr(s_ + 5)
            if s_ + 3 < nsteps: rd(s_ + 3)
            for t in range(s_ + 1, s_ + 4):
                if t + 2 < nsteps: n_ops += 1
                if t < nsteps: n_ops += 3
            a(f"s_waitcnt lgkmcnt({n_ops})")
            f = FB + 8*(s_ % 4)
            cin = cin0 if s_ == 0 else vr(ACC, 16)
            a(f"v_mfma_f32_32x32x16_bf16 {vr(ACC,16)}, {vr(f,4)}, {vr(f+4,4)}, {cin}")
            refill(s_)
    def q_wr(k): a(f"ds_write_b128 v{vWst}, {vr(WS_+4*(k % DEPTH),4)} offset:{(k % NSTG)*1024}")
    def q_rd(k):
        f = FB + 8*(k % 4)
        a(f"ds_read_b64_tr_b16 v[{f}:{f+1}], v{vTr} offset:{(k % NSTG)*1024}")
        a(f"ds_read_b64_tr_b16 v[{f+2}:{f+3}], v{vTr2} offset:{(k % NSTG)*1024}")
        a(f"ds_read_b128 {vr(f+4,4)}, v{vXa} offset:{XB + k*XP}")
    def q_vm(k, s_now):
        issued = DEPTH + max(0, min(s_now, 40 - DEPTH + QOFF) - QOFF) if s_now > 0 else DEPTH
        issued = min(issued, 40)
        a(f"s_waitcnt vmcnt({issued - 1 - k})")
    QOFF = 0
    def q_refill(s_):
        if s_ + DEPTH < 40: wload(s_ + DEPTH)
    pipe_gemm(40, q_wr, q_rd, q_vm, q_refill, "0")
    st.mark("gemm")
    a.nop(12)
    a(f"v_mul_f32 v{vT}, {f32bits(QSCALE)}, v{vR}")
    for j in range(16): a(f"v_mul_f32 v{ACC+j}, v{ACC+j}, v{vT}")
    for k in range(8): a(f"v_cvt_pk_bf16_f32 v{TMP+k}, v{ACC+2*k}, v{ACC+2*k+1}")
    a(f"s_branch {L_bar1}")

    JW = WS_ + 20
    def job_loads():
        srd(a, R_B, S_WQ, S_WQ+1, 640*640*2)
        a(f"v_lshrrev_b32 v{vT}, 2, v{vLane}")
        a(f"v_mul_u32_u24 v{vT}, 1280, v{vT}")
        a(f"v_and_b32 v{vT+1}, 3, v{vLane}")
        a(f"v_lshl_add_u32 v{vT}, v{vT+1}, 4, v{vT}")
        a(f"s_mul_i32 s{sT}, s{sCG}, 320")
        a(f"s_add_u32 s{sT}, s{sT}, 256")
        a(f"v_add_u32 v{vT}, s{sT}, v{vT}")
        a(f"s_sub_u32 s{sT}, s{sW}, 4")
        a(f"s_mul_i32 s{sT}, s{sT}, 10")
        a(f"s_mul_i32 s{sT2}, s{sRho}, 5")
        a(f"s_add_u32 s{sT}, s{sT}, s{sT2}")
        a(f"s_cmp_ge_u32 s{sT}, 40")
        a(f"s_cselect_b32 s{sT2}, 40, 0")
        a(f"s_sub_u32 s{sT}, s{sT}, s{sT2}")
        a(f"s_mul_i32 s{sSoff}, s{sT}, 20480")
        for k in range(10):
            a(f"s_add_u32 s{sT}, s{sSoff}, 20480")
            a(f"buffer_load_dwordx4 {vr(JW+4*k,4)}, v{vT}, s[{R_B}:{R_B+3}], s{sSoff} offen")
            a(f"s_cmp_eq_u32 s{sT}, {40*20480}")
            a(f"s_cselect_b32 s{sSoff}, 0, s{sT}")
    def job_run(raw, vm_after):
        tr_addr(a, vTr, vTr2, 64, 8, 4, sLds, vT)
        a(f"v_add_u32 v{vWst}, s{sLds}, v{vX16}")
        a(f"s_sub_u32 s{sT}, s{sW}, 4")
        a(f"s_mul_i32 s{sT}, s{sT}, {10*XP}")
        a(f"v_add_u32 v{vVo}, s{sT}, v{vXa}")
        def j_wr(k): a(f"ds_write_b128 v{vWst}, {vr(raw+4*k,4)} offset:{(k % NSTG)*1024}")
        def j_rd(k):
            f = FB + 8*(k % 4)
            a(f"ds_read_b64_tr_b16 v[{f}:{f+1}], v{vTr} offset:{(k % NSTG)*1024}")
            a(f"ds_read_b64_tr_b16 v[{f+2}:{f+3}], v{vTr2} offset:{(k % NSTG)*1024}")
            a(f"ds_read_b128 {vr(f+4,4)}, v{vVo} offset:{k*XP}")
        def j_vm(k, s_): a(f"s_waitcnt vmcnt({9 - k + vm_after})")
        pipe_gemm(10, j_wr, j_rd, j_vm, lambda s_: None, "0")
        a("s_waitcnt lgkmcnt(0)")
        a.nop(12)
    def job_publish():
        Lp5, Lpd = a.newlabel("A_jp5"), a.newlabel("A_jpd")
        a(f"s_cmp_eq_u32 s{sW}, 5")
        a(f"s_cbranch_scc1 {Lp5}")
        for q in range(3): a(f"ds_write_b128 v{vWst}, {vr(ACC+4*q,4)} offset:{q*1024}")
        a(f"s_sub_u32 s{sT}, s{sW}, 6")
        a(f"s_lshl_b32 s{sT}, s{sT}, 10")
        a(f"s_add_u32 s{sT}, s{sT}, {T4F}")
        a(f"v_add_u32 v{vT}, s{sT}, v{vX16}")
        a(f"ds_write_b128 v{vT}, {vr(ACC+12,4)}")
        a(f"s_branch {Lpd}")
        a.label(Lp5)
        a(f"v_add_u32 v{vT}, {KVX+4096}, v{vX16}")
        for q in range(4): a(f"ds_write_b128 v{vT}, {vr(ACC+4*q,4)} offset:{q*1024}")
        a.label(Lpd)
        a(f"s_sub_u32 s{sT}, s{sW}, 5")
        a(f"s_lshl_b32 s{sT}, s{sT}, 2")
        a(f"s_add_u32 s{sT}, s{sT}, {LFL2}")
        a(f"v_mov_b32 v{vT}, s{sT}")
        a(f"v_mov_b32 v{vT+1}, 1")
        a(f"ds_write_b32 v{vT}, v{vT+1}")
    a.label("A_job4")
    job_run(WS_, 0)
    a(f"v_mov_b32 v{vT}, {LFL2}")
    a(f"s_mov_b32 s{sT3}, {SPIN_MAX}")
    a.label("A_j4spin")
    a(f"ds_read_b96 v[{vT+2}:{vT+4}], v{vT}")
    a("s_waitcnt lgkmcnt(0)")
    a(f"v_and_b32 v{vT+2}, v{vT+2}, v{vT+3}")
    a(f"v_and_b32 v{vT+2}, v{vT+2}, v{vT+4}")
    a("s_nop 0")
    a(f"v_readfirstlane_b32 s{sT}, v{vT+2}")
    a(f"s_sub_u32 s{sT3}, s{sT3}, 1")
    a(f"s_cmp_eq_u32 s{sT3}, 0")
    a(f"s_cbranch_scc1 A_j4spin_done")
    a(f"s_cmp_eq_u32 s{sT}, 1")
    a(f"s_cbranch_scc1 A_j4spin_done")
    a("s_sleep 1")
    a(f"s_branch A_j4spin")
    a.label("A_j4spin_done")
    a(f"v_add_u32 v{vT}, {KVX+4096}, v{vX16}")
    a(f"v_add_u32 v{vT+1}, {KSTG+3072}, v{vX16}")
    a(f"v_add_u32 v{vT+2}, {T4F}, v{vX16}")
    for q in range(4): a(f"ds_read_b128 {vr(64+4*q,4)}, v{vT} offset:{q*1024}")
    for p_ in range(2):
        for q in range(3): a(f"ds_read_b128 {vr(80+16*p_+4*q,4)}, v{vT+1} offset:{p_*3072 + q*1024}")
        a(f"ds_read_b128 {vr(80+16*p_+12,4)}, v{vT+2} offset:{p_*1024}")
    a("s_waitcnt lgkmcnt(0)")
    for j in range(16): a(f"v_add_f32 v{64+j}, v{64+j}, v{80+j}")
    for j in range(16): a(f"v_add_f32 v{ACC+j}, v{ACC+j}, v{96+j}")
    for j in range(16): a(f"v_add_f32 v{ACC+j}, v{ACC+j}, v{64+j}")
    st.mark("job4")
    a(f"v_mul_f32 v{vT}, {f32bits(QSCALE)}, v{vR}")
    for j in range(16): a(f"v_mul_f32 v{ACC+j}, v{ACC+j}, v{vT}")
    for k in range(8): a(f"v_cvt_pk_bf16_f32 v{TMP+k}, v{ACC+2*k}, v{ACC+2*k+1}")
    a(f"s_branch {L_bar1}")
    def export_d():
        a(f"s_mul_i32 s{sT}, s{sCG}, 2")
        a(f"s_add_u32 s{sT}, s{sT}, s{sW}")
        a(f"s_sub_u32 s{sT}, s{sT}, 6")
        a(f"s_sub_u32 s{sT2}, s{sT}, s{sRho}")
        a(f"s_and_b32 s{sT2}, s{sT2}, 7")
        a(f"s_mul_i32 s{sT2}, s{sT2}, {5*XP}")
        a(f"v_add_u32 v{vT}, s{sT2}, v{vXa}")
        for i in range(5):
            a(f"ds_read_b128 {vr(X+4*i,4)}, v{vT} offset:{XB + XP*i}")
        a(f"s_mul_i32 s{sT2}, s{sRB}, 40")
        a(f"s_mul_i32 s{sExp}, s{sT}, 5")
        a(f"s_add_u32 s{sT2}, s{sT2}, s{sExp}")
        a(f"s_lshl_b32 s{sT2}, s{sT2}, 10")
        if WS_XF: a(f"s_add_u32 s{sT2}, s{sT2}, {WS_XF}")
        a(f"s_lshl_b32 s{sFD}, s{sRB}, 3")
        a(f"s_add_u32 s{sFD}, s{sFD}, s{sT}")
        a(f"v_add_u32 v{vT+1}, 4096, v{vX16}")
        a("s_waitcnt lgkmcnt(0)")
        for i in range(4):
            a(f"buffer_store_dwordx4 {vr(X+4*i,4)}, v{vX16}, s[{R_WS}:{R_WS+3}], s{sT2} offen offset:{1024*i} sc1")
        a(f"buffer_store_dwordx4 {vr(X+16,4)}, v{vT+1}, s[{R_WS}:{R_WS+3}], s{sT2} offen sc1")
        L_nor = "A_nor"
        a(f"s_cmp_lg_u32 s{sT}, 0")
        a(f"s_cbranch_scc1 {L_nor}")
        a(f"s_lshl_b32 s{sT2}, s{sRB}, 7")
        a(f"s_add_u32 s{sT2}, s{sT2}, {WS_R}")
        a(f"v_lshlrev_b32 v{vT}, 2, v{vN}")
        a(f"buffer_store_dword v{vR}, v{vT}, s[{R_WS}:{R_WS+3}], s{sT2} offen sc1")
        a.label(L_nor)
    a.label(L_kvp)
    a("s_setprio 3")
    if OPT.get("expfirst", 0):
        a(f"s_cmp_lt_u32 s{sW}, 6")
        a(f"s_cbranch_scc1 A_noexp")
        export_d()
        a.label("A_noexp")
    a(f"s_cmp_ge_u32 s{sCG}, 2")
    a(f"s_cbranch_scc1 A_kvp_skip")
    a(f"s_sub_u32 s{sT}, s{sW}, 5")
    a(f"s_mul_i32 s{sLds}, s{sT}, 3072")
    a(f"s_add_u32 s{sLds}, s{sLds}, {KSTG}")
    tr_addr(a, vTr, vTr2, 40, 8, 4, sLds, vT)
    a(f"v_add_u32 v{vWst}, s{sLds}, v{vX16}")
    a(f"s_mul_i32 s{sT}, s{sStep}, {XP}")
    a(f"v_add_u32 v{vVo}, s{sT}, v{vXa}")
    a(f"v_add_u32 v{vT+4}, {13*XP}, v{vVo}")
    a(f"s_cmp_eq_u32 s{sW}, 5")
    a(f"s_cbranch_scc1 A_kv13")
    for i in range(4): a(f"v_mov_b32 v{WS_+52+i}, 0")
    a(f"v_mov_b32 v{vT+4}, v{vXa}")
    a.label("A_kv13")
    def k_wr(k): a(f"ds_write_b128 v{vWst}, {vr(WS_+4*k,4)} offset:{(k % NSTG)*1024}")
    def k_rd(k):
        f = FB + 8*(k % 4)
        a(f"ds_read_b64_tr_b16 v[{f}:{f+1}], v{vTr} offset:{(k % NSTG)*1024}")
        a(f"ds_read_b64_tr_b16 v[{f+2}:{f+3}], v{vTr2} offset:{(k % NSTG)*1024}")
        if k == 13: a(f"ds_read_b128 {vr(f+4,4)}, v{vT+4}")
        else: a(f"ds_read_b128 {vr(f+4,4)}, v{vVo} offset:{k*XP}")
    pipe_gemm(14, k_wr, k_rd, lambda k, s_: None, lambda s_: None, "0")
    a("s_waitcnt lgkmcnt(0)")
    job_loads()
    a(f"s_cmp_eq_u32 s{sW}, 5")
    a(f"s_cbranch_scc1 A_kv5")
    a(f"s_sub_u32 s{sT}, s{sW}, 6")
    a(f"s_lshl_b32 s{sT}, s{sT}, 12")
    a(f"s_add_u32 s{sT}, s{sT}, {KVX}")
    a(f"v_add_u32 v{vT}, s{sT}, v{vX16}")
    for q in range(4):
        a(f"ds_write_b128 v{vT}, {vr(ACC+4*q,4)} offset:{q*1024}")
    a(f"s_sub_u32 s{sT}, s{sW}, 6")
    a(f"s_lshl_b32 s{sT}, s{sT}, 2")
    a(f"s_add_u32 s{sT}, s{sT}, {LFL}")
    a(f"v_mov_b32 v{vT}, s{sT}")
    a(f"v_mov_b32 v{vT+1}, 1")
    a(f"ds_write_b32 v{vT}, v{vT+1}")
    a(f"s_branch A_kvp_done")
    a.label("A_kv5")
    a(f"v_mov_b32 v{vT}, {LFL}")
    a(f"s_mov_b32 s{sT3}, {SPIN_MAX}")
    a.label("A_kvspin")
    a(f"ds_read_b64 v[{vT+2}:{vT+3}], v{vT}")
    a("s_waitcnt lgkmcnt(0)")
    a(f"v_and_b32 v{vT+2}, v{vT+2}, v{vT+3}")
    a("s_nop 0")
    a(f"v_readfirstlane_b32 s{sT}, v{vT+2}")
    a(f"s_sub_u32 s{sT3}, s{sT3}, 1")
    a(f"s_cmp_eq_u32 s{sT3}, 0")
    a(f"s_cbranch_scc1 A_kvspin_done")
    a(f"s_cmp_eq_u32 s{sT}, 1")
    a(f"s_cbranch_scc1 A_kvspin_done")
    a("s_sleep 1")
    a(f"s_branch A_kvspin")
    a.label("A_kvspin_done")
    a(f"v_add_u32 v{vT}, {KVX}, v{vX16}")
    for p_ in range(2):
        for q in range(4):
            a(f"ds_read_b128 {vr(FB+16*p_+4*q,4)}, v{vT} offset:{p_*4096 + q*1024}")
    a("s_waitcnt lgkmcnt(0)")
    for j in range(16):
        a(f"v_add_f32 v{FB+j}, v{FB+j}, v{FB+16+j}")
    for j in range(16):
        a(f"v_add_f32 v{ACC+j}, v{ACC+j}, v{FB+j}")
    for j in range(16): a(f"v_mul_f32 v{ACC+j}, v{ACC+j}, v{vR}")
    a(f"v_cmp_eq_u32 vcc, 1, v{vH}")
    a(f"v_mov_b32 v{vT}, 1.0")
    a(f"v_mov_b32 v{vT+1}, 0")
    a(f"v_cndmask_b32 v{ACC+8}, v{ACC+8}, v{vT}, vcc")
    for j in range(9, 12): a(f"v_cndmask_b32 v{ACC+j}, v{ACC+j}, v{vT+1}, vcc")
    for j in range(12, 16): a(f"v_mov_b32 v{ACC+j}, 0")
    for k in range(8): a(f"v_cvt_pk_bf16_f32 v{TMP+k}, v{ACC+2*k}, v{ACC+2*k+1}")
    a(f"s_mul_i32 s{sT}, s{sRB}, {TS}")
    a(f"s_add_u32 s{sT}, s{sT}, {WS_KV}")
    L_v = "A_v"; L_kvdone = "A_kvdone"
    a(f"s_cmp_eq_u32 s{sCG}, 1")
    a(f"s_cbranch_scc1 {L_v}")
    a(f"buffer_store_dwordx4 {vr(TMP,4)}, v{vX16}, s[{R_WS}:{R_WS+3}], s{sT} offen sc1")
    a(f"v_lshlrev_b32 v{vT}, 3, v{vLane}")
    a(f"s_mov_b32 exec_hi, 0")
    a(f"buffer_store_dwordx2 v[{TMP+4}:{TMP+5}], v{vT}, s[{R_WS}:{R_WS+3}], s{sT} offen offset:1024 sc1")
    a(f"s_mov_b32 exec_hi, -1")
    a(f"s_branch {L_kvdone}")
    a.label(L_v)
    a(f"s_mov_b32 s{sLds}, {KVX}")
    a(f"v_lshlrev_b32 v{vT}, 6, v{vN}")
    a(f"v_lshl_add_u32 v{vT}, v{vH}, 3, v{vT}")
    a(f"v_add_u32 v{vT}, s{sLds}, v{vT}")
    for q in range(4):
        a(f"ds_write_b64 v{vT}, v[{TMP+2*q}:{TMP+2*q+1}] offset:{16*q}")
    tr_addr(a, vTr, None, 64, 4, 8, sLds, vT+1)
    for u in range(2):
        a(f"ds_read_b64_tr_b16 v[{TMP+8+4*u}:{TMP+9+4*u}], v{vTr} offset:{u*1024}")
        a(f"ds_read_b64_tr_b16 v[{TMP+10+4*u}:{TMP+11+4*u}], v{vTr} offset:{u*1024 + 512}")
    a(f"v_mul_u32_u24 v{vT}, {VH}, v{vH}")
    a(f"v_lshl_add_u32 v{vT}, v{vN}, 4, v{vT}")
    a(f"s_mov_b32 exec_lo, 0x3fffff")
    a(f"s_mov_b32 exec_hi, 0x3fffff")
    a("s_waitcnt lgkmcnt(0)")
    a(f"buffer_store_dwordx4 {vr(TMP+8,4)}, v{vT}, s[{R_WS}:{R_WS+3}], s{sT} offen offset:1280 sc1")
    a(f"buffer_store_dwordx4 {vr(TMP+12,4)}, v{vT}, s[{R_WS}:{R_WS+3}], s{sT} offen offset:{1280+VF} sc1")
    a(f"s_mov_b64 exec, -1")
    a.label(L_kvdone)
    ensure_tag("A5")
    a("s_waitcnt vmcnt(0)")
    st.mark("k5:drain")
    a(f"s_lshl_b32 s{sT}, s{sRB}, 1")
    a(f"s_add_u32 s{sT}, s{sT}, s{sCG}")
    set_flag(a, vT, sT, FL_KV)
    a(f"s_mov_b32 s{sLds}, {KSTG}")
    job_run(JW, 1)
    job_publish()
    a(f"s_branch {L_bar1}")
    a.label("A_kvp_skip")
    job_loads()
    a(f"s_cmp_lg_u32 s{sW}, 5")
    a(f"s_cbranch_scc1 A_kvp_done")
    a(f"s_mov_b32 s{sLds}, {KSTG}")
    job_run(JW, 0)
    job_publish()
    a(f"s_branch {L_bar1}")
    a.label("A_kvp_done")
    if not OPT.get("expfirst", 0): export_d()
    ensure_tag("A6")
    a(f"s_waitcnt vmcnt({10 if OPT.get('expfirst', 0) else 0})")
    st.mark("x:drain")
    set_flag(a, vT, sFD, FL_D)
    a(f"s_sub_u32 s{sT}, s{sW}, 5")
    a(f"s_mul_i32 s{sLds}, s{sT}, 3072")
    a(f"s_add_u32 s{sLds}, s{sLds}, {KSTG}")
    job_run(JW, 1)
    job_publish()
    a.label(L_bar1)
    a("s_waitcnt vmcnt(0)")
    a.label("A_bar1_nowait")
    a("s_setprio 0")
    a("s_waitcnt lgkmcnt(0)")
    a("s_barrier")
    st.mark("bar0")
    vA16 = vX16
    aK1, aK2, aV, nK1, nK2, nV = 64, 65, 66, 67, 68, 69
    bK2, bV = 70, 71
    CN = 80
    S = [16, 32]
    O = 48
    P = 96
    Q1, Q2 = 104, 108
    K1, K2 = 112, 116
    V1, V2 = 120, 124
    vM2 = 110
    sSoffK, sLdsW, sSlot, sCk = 58, 59, 60, 61
    vFl, vFlo = 72, 73
    srd(a, R_A, S_WS, S_WS+1, KVB, WS_KV)
    a(f"s_lshl_b32 s{sLdsW}, s{sW}, 10")
    a(f"v_lshlrev_b32 v{bK2}, 3, v{vN}")
    a(f"v_add_u32 v{bK2}, 1024, v{bK2}")
    a(f"v_mov_b32 v{vT}, {1280 + 21*16}")
    a(f"v_cmp_eq_u32 vcc, 1, v{vH}")
    a(f"v_min_u32 v{bV}, 21, v{vN}")
    a(f"v_lshlrev_b32 v{bV}, 4, v{bV}")
    a(f"v_cndmask_b32 v{bK2}, v{bK2}, v{vT}, vcc")
    a(f"v_mul_u32_u24 v{vT}, {VH}, v{vH}")
    a(f"v_add3_u32 v{bV}, v{bV}, v{vT}, 0")
    a(f"v_add_u32 v{bV}, 1280, v{bV}")
    def dma_chunk(slot_s):
        Ls = a.newlabel("A_dm")
        a(f"s_cmp_ge_u32 s{sW}, 4")
        a(f"s_cbranch_scc1 {Ls}")
        a(f"s_add_u32 s{sT}, s{slot_s}, s{sLdsW}")
        a(f"s_add_u32 s{sT2}, s{sSoffK}, s{sLdsW}")
        for i in range(6):
            if i == 5:
                a(f"s_cmp_lg_u32 s{sW}, 0")
                a(f"s_cbranch_scc1 {Ls}")
            a(f"s_add_u32 m0, s{sT}, {4096*i}")
            a(f"s_add_u32 s{sT3}, s{sT2}, {4096*i}")
            a(f"buffer_load_dwordx4 v{vA16}, s[{R_A}:{R_A+3}], s{sT3} offen sc1 lds")
        a.label(Ls)
        a(f"s_add_u32 s{sSoffK}, s{sSoffK}, {CH}")
        a(f"s_cmp_eq_u32 s{sSoffK}, {8*CH}")
        a(f"s_cselect_b32 s{sSoffK}, 0, s{sSoffK}")
        a(f"s_add_u32 s{sCk}, s{sCk}, 1")
        a(f"s_and_b32 s{sCk}, s{sCk}, 7")
    L_noqw = "A_noqw"
    a(f"v_mul_u32_u24 v{vT}, {QP}, v{vN}")
    a(f"v_add_u32 v{vT}, {QBUF}, v{vT}")
    a(f"s_cmp_ge_u32 s{sW}, 5")
    a(f"s_cbranch_scc1 {L_noqw}")
    a(f"s_lshl_b32 s{sT}, s{sW}, 6")
    a(f"v_lshl_add_u32 v{vT+1}, v{vH}, 3, v{vT}")
    a(f"v_add_u32 v{vT+1}, s{sT}, v{vT+1}")
    for q in range(4):
        a(f"ds_write_b64 v{vT+1}, v[{TMP+2*q}:{TMP+2*q+1}] offset:{16*q}")
    a.label(L_noqw)
    a("s_waitcnt lgkmcnt(0)")
    a("s_barrier")
    a(f"s_mul_i32 s{sT}, s{sW}, 40")
    a(f"v_add_u32 v{vT}, s{sT}, v{vT}")
    a(f"v_lshl_add_u32 v{vT+1}, v{vH}, 3, v{vT}")
    a(f"ds_read_b64 v[{Q1}:{Q1+1}], v{vT+1}")
    a(f"ds_read_b64 v[{Q1+2}:{Q1+3}], v{vT+1} offset:16")
    a(f"ds_read_b64 v[{Q2}:{Q2+1}], v{vT} offset:32")
    a(f"v_mov_b32 v{aK1}, v{vA16}")
    a(f"v_mov_b32 v{aK2}, v{bK2}")
    a(f"v_mov_b32 v{aV}, v{bV}")
    a(f"v_add_u32 v{nK1}, {CH}, v{vA16}")
    a(f"v_add_u32 v{nK2}, {CH}, v{bK2}")
    a(f"v_add_u32 v{nV}, {CH}, v{bV}")
    for i in range(16): a(f"v_mov_b32 v{O+i}, 0")
    a(f"v_cmp_eq_u32 vcc, 1, v{vH}")
    a(f"v_mov_b32 v{vT}, 0")
    a("s_waitcnt lgkmcnt(0)")
    a(f"v_cndmask_b32 v{Q2}, v{Q2}, v{vT}, vcc")
    a(f"v_cndmask_b32 v{Q2+1}, v{Q2+1}, v{vT}, vcc")
    a(f"s_lshr_b32 s{sCk}, s{sRB}, 3")
    a(f"s_mul_i32 s{sSoffK}, s{sCk}, {CH}")
    def check_chunk(lab):
        a(f"s_cmp_lg_u32 s{sW}, 7")
        a(f"s_cbranch_scc1 {lab}_skip")
        a(f"s_lshl_b32 s{sT}, s{sCk}, 4")
        poll_flags(a, vT+2, lab, sT, 16, FL_KV, sleep=OPT.get("kvsleep", 1))
        a.label(f"{lab}_skip")
    check_chunk("A7a")
    a("s_barrier")
    st.mark("bar1")
    if OPT.get("diag"):
        a(f"s_cmp_lg_u32 s{sW}, 0"); Ld = a.newlabel("dg"); a(f"s_cbranch_scc1 {Ld}"); diag(a, 6); diag(a, 7, neg=True); a.label(Ld)
    a(f"s_mov_b32 s{sSlot}, 0")
    dma_chunk(sSlot)
    a(f"v_min_u32 v{vFlo}, 15, v{vLane}")
    a(f"v_lshlrev_b32 v{vFlo}, 7, v{vFlo}")
    def rd(dst, n, t, off, cur, nxt, op):
        v_ = cur if t < 8 else nxt
        a(f"{op} {vr(dst,n)}, v{v_} offset:{(t % 8)*TS + off}")
    def rd_K1(t): rd(K1, 4, t, 0, aK1, nK1, "ds_read_b128")
    def rd_K2(t): rd(K2, 2, t, 0, aK2, nK2, "ds_read_b64")
    def rd_V1(t): rd(V1, 4, t, 0, aV, nV, "ds_read_b128")
    def rd_V2(t): rd(V2, 4, t, VF, aV, nV, "ds_read_b128")
    def qk1(dst, c="0"): a(f"v_mfma_f32_32x32x16_bf16 {vr(dst,16)}, {vr(K1,4)}, {vr(Q1,4)}, {c}")
    def qk2(dst): a(f"v_mfma_f32_32x32x8_bf16 {vr(dst,16)}, {vr(K2,2)}, {vr(Q2,2)}, {vr(dst,16)}")
    CNR = vr(CN, 16)
    a("s_waitcnt vmcnt(0)")
    a("s_barrier")
    rd_K1(0); rd_K2(0)
    def set_m(delta):
        a(f"v_mov_b32 v{vT}, v{vM2}")
        a.nop(2)
        a(f"v_permlane32_swap_b32 v{vM2}, v{vT}")
        a.nop(1)
        a(f"v_max_f32 v{vM2}, v{vM2}, v{vT}")
        if delta: a(f"v_add_f32 v{vM2}, {f32bits(delta)}, v{vM2}")
        for i in range(16): a(f"v_sub_f32 v{CN+i}, 0, v{vM2}")
    a(f"v_mov_b32 v{vM2}, 0xff800000")
    a("s_waitcnt lgkmcnt(0)")
    qk1(S[0]); qk2(S[0])
    rd_K1(1); rd_K2(1)
    a("s_waitcnt lgkmcnt(0)")
    qk1(S[1]); qk2(S[1])
    rd_K1(0); rd_K2(0)
    for i in range(4, 8): a(f"v_mov_b32 v{P+i}, 0")
    for i in range(4): a(f"v_mov_b32 v{V2+i}, 0")
    a.nop(4)
    for i in range(8):
        a(f"v_max3_f32 v{vM2}, v{S[0]+2*i}, v{S[0]+2*i+1}, v{vM2}")
    a.nop(4)
    for i in range(8):
        a(f"v_max3_f32 v{vM2}, v{S[1]+2*i}, v{S[1]+2*i+1}, v{vM2}")
    set_m(DELTA)
    a("s_waitcnt lgkmcnt(0)")
    a.nop(1)
    qk1(S[0], CNR); qk2(S[0])
    rd_K1(1); rd_K2(1); rd_V1(0)
    check_chunk("A7b")
    a("s_barrier")
    a(f"s_mov_b32 s{sSlot}, {CH}")
    dma_chunk(sSlot)
    a(f"s_mov_b32 s{sSlot}, {2*CH}")
    a.nop(8)
    st.mark("sample")
    a(f"s_setprio {OPT.get('pb', 0)}")
    if OPT.get("fair", 1):
        a(f"s_cmp_lt_u32 s{sW}, 4")
        a(f"s_cbranch_scc1 A_pr0")
        a(f"s_setprio {1 + OPT.get('pb', 0)}")
        a.label("A_pr0")
    a(f"s_mov_b32 s{sIt}, 0")
    L_loop = "A_loop"
    a(".p2align 6")
    a.label(L_loop)
    def e(cur, i): a(f"v_exp_f32 v{cur+i}, v{cur+i}")
    def p(cur, k): a(f"v_cvt_pk_bf16_f32 v{P+k}, v{cur+2*k}, v{cur+2*k+1}")
    for t in range(8):
        cur, nxt = S[t % 2], S[(t+1) % 2]
        if t == OPT.get("tdrop", 4) and OPT.get("fair", 1):
            a(f"s_setprio {OPT.get('pb', 0)}")
        if t == 0:
            a(f"s_cmp_lg_u32 s{sW}, 7")
            a(f"s_cbranch_scc1 A_nf0")
            a(f"s_lshl_b32 s{sT}, s{sCk}, 11")
            a(f"s_add_u32 s{sT}, s{sT}, {FL_KV*128}")
            a(f"buffer_load_dword v{vFl}, v{vFlo}, s[{R_FL}:{R_FL+3}], s{sT} offen sc1")
            a.label("A_nf0")
        if t == 6:
            a("s_waitcnt vmcnt(0)")
            a(f"s_cmp_lg_u32 s{sW}, 7")
            a(f"s_cbranch_scc1 A_nf6")
            a(f"v_cmp_ne_u32 vcc, s{sTag}, v{vFl}")
            a("s_nop 1")
            a(f"s_cmp_eq_u64 vcc, 0")
            a(f"s_cbranch_scc1 A_nf6")
            a(f"s_lshl_b32 s{sT}, s{sCk}, 4")
            poll_flags(a, vT+2, "A7c", sT, 16, FL_KV, sleep=1)
            a.label("A_nf6")
            a("s_barrier")
            if OPT.get("fair", 1):
                a(f"s_cmp_lt_u32 s{sW}, 4")
                a(f"s_cbranch_scc1 A_pr6")
                a(f"s_setprio {1 + OPT.get('pb', 0)}")
                a.label("A_pr6")
            dma_chunk(sSlot)
            a(f"s_add_u32 s{sSlot}, s{sSlot}, {CH}")
            a(f"s_cmp_eq_u32 s{sSlot}, {3*CH}")
            a(f"s_cselect_b32 s{sSlot}, 0, s{sSlot}")
        e(cur, 0); e(cur, 1)
        a("s_waitcnt lgkmcnt(2)")
        a(f"v_mfma_f32_32x32x16_bf16 {vr(O,16)}, {vr(V2,4)}, {vr(P+4,4)}, {vr(O,16)}")
        rd_V2(t)
        e(cur, 2); e(cur, 3); p(cur, 0); p(cur, 1)
        qk1(nxt, CNR)
        rd_K1(t+2)
        e(cur, 4); e(cur, 5); e(cur, 6); e(cur, 7); p(cur, 2); p(cur, 3)
        a("s_waitcnt lgkmcnt(2)")
        qk2(nxt)
        rd_K2(t+2)
        e(cur, 8); e(cur, 9); e(cur, 10); e(cur, 11); p(cur, 4); p(cur, 5)
        a(f"v_mfma_f32_32x32x16_bf16 {vr(O,16)}, {vr(V1,4)}, {vr(P,4)}, {vr(O,16)}")
        rd_V1(t+1)
        e(cur, 12); e(cur, 13); e(cur, 14); e(cur, 15); p(cur, 6); p(cur, 7)
    a(f"v_mov_b32 v{aK1}, v{nK1}")
    a(f"v_mov_b32 v{aK2}, v{nK2}")
    a(f"v_mov_b32 v{aV}, v{nV}")
    a(f"s_add_u32 s{sT}, s{sSlot}, {2*CH}")
    a(f"s_cmp_ge_u32 s{sT}, {3*CH}")
    a(f"s_cselect_b32 s{sT2}, {3*CH}, 0")
    a(f"s_sub_u32 s{sT}, s{sT}, s{sT2}")
    a(f"v_add_u32 v{nK1}, s{sT}, v{vA16}")
    a(f"v_add_u32 v{nK2}, s{sT}, v{bK2}")
    a(f"v_add_u32 v{nV}, s{sT}, v{bV}")
    a(f"s_add_u32 s{sIt}, s{sIt}, 1")
    a(f"s_cmp_lt_u32 s{sIt}, 8")
    a(f"s_cbranch_scc1 {L_loop}")
    a("s_waitcnt lgkmcnt(0)")
    a(f"v_mfma_f32_32x32x16_bf16 {vr(O,16)}, {vr(V2,4)}, {vr(P+4,4)}, {vr(O,16)}")
    a("s_setprio 0")
    st.mark("loop")
    if OPT.get("diag"):
        a(f"s_cmp_lg_u32 s{sW}, 0"); Ld = a.newlabel("dg"); a(f"s_cbranch_scc1 {Ld}"); diag(a, 8); diag(a, 9, neg=True); a.label(Ld)
    a.nop(16)
    L_fin, L_slow = "A_fin", "A_slow"
    a(f"s_mov_b32 s{sIt}, 0")
    a.label(L_fin)
    a(f"v_mov_b32 v{vT}, v{O+8}")
    a(f"v_mov_b32 v{vT+1}, v{O+8}")
    a.nop(2)
    a(f"v_permlane32_swap_b32 v{vT}, v{vT+1}")
    a(f"v_max3_f32 v{vT+2}, |v{O}|, |v{O+1}|, |v{O+2}|")
    for j in range(3, 12, 2):
        j2 = min(j+1, 11)
        a(f"v_max3_f32 v{vT+2}, |v{O+j}|, |v{O+j2}|, v{vT+2}")
    a(f"v_mov_b32 v{vT+3}, {f32bits(2.0**120)}")
    a(f"v_cmp_nlt_f32 vcc, v{vT+2}, v{vT+3}")
    a(f"v_cmp_nlt_f32 s[62:63], 0, v{vT+1}")
    a.nop(1)
    a(f"s_or_b64 vcc, vcc, s[62:63]")
    a(f"s_cmp_eq_u64 vcc, 0")
    a(f"s_cbranch_scc1 A_store")
    a(f"s_cmp_lg_u32 s{sIt}, 0")
    a(f"s_cbranch_scc1 A_store")
    a(f"s_branch {L_slow}")
    a.label("A_store")
    a(f"v_rcp_f32 v{vT+2}, v{vT+1}")
    a.nop(1)
    for j in range(12): a(f"v_mul_f32 v{O+j}, v{O+j}, v{vT+2}")
    for k in range(6): a(f"v_cvt_pk_bf16_f32 v{P+k}, v{O+2*k}, v{O+2*k+1}")
    a(f"s_lshl_b32 s{sT}, s{sCG}, 3")
    a(f"s_add_u32 s{sT}, s{sT}, s{sW}")
    a(f"s_mul_i32 s{sT}, s{sT}, 20")
    a(f"s_mul_i32 s{sT2}, s{sRB}, {40*1024}")
    a(f"s_add_u32 s{sT2}, s{sT2}, {WS_OF}")
    def oaddr(dst, colv):
        a(f"v_lshrrev_b32 v{dst}, 4, v{colv}")
        a(f"v_lshlrev_b32 v{dst}, 10, v{dst}")
        a(f"v_bfe_u32 v{vT+7}, v{colv}, 3, 1")
        a(f"v_lshl_add_u32 v{dst}, v{vT+7}, 9, v{dst}")
        a(f"v_and_b32 v{vT+7}, 7, v{colv}")
        a(f"v_lshl_add_u32 v{dst}, v{vT+7}, 1, v{dst}")
        a(f"v_lshl_add_u32 v{dst}, v{vN}, 4, v{dst}")
    a(f"v_lshlrev_b32 v{vT+3}, 2, v{vH}")
    a(f"v_add_u32 v{vT+3}, s{sT}, v{vT+3}")
    oaddr(vT+4, vT+3)
    a(f"buffer_store_dwordx2 v[{P}:{P+1}], v{vT+4}, s[{R_WS}:{R_WS+3}], s{sT2} offen sc1")
    a(f"v_add_u32 v{vT+3}, 8, v{vT+3}")
    oaddr(vT+5, vT+3)
    a(f"buffer_store_dwordx2 v[{P+2}:{P+3}], v{vT+5}, s[{R_WS}:{R_WS+3}], s{sT2} offen sc1")
    a(f"s_add_u32 s{sT}, s{sT}, 16")
    a(f"v_mov_b32 v{vT+3}, s{sT}")
    oaddr(vT+6, vT+3)
    a(f"v_cmp_eq_u32 vcc, 0, v{vH}")
    a(f"s_and_saveexec_b64 s[62:63], vcc")
    a(f"buffer_store_dwordx2 v[{P+4}:{P+5}], v{vT+6}, s[{R_WS}:{R_WS+3}], s{sT2} offen sc1")
    a(f"s_mov_b64 exec, s[62:63]")
    a(f"s_cmp_lg_u32 s{sTag}, 0")
    a(f"s_cbranch_scc1 A_ohave")
    get_tag(a, vT, "A8")
    a.label("A_ohave")
    a("s_waitcnt vmcnt(0)")
    a(f"s_lshl_b32 s{sT}, s{sRB}, 2")
    a(f"s_add_u32 s{sT}, s{sT}, s{sCG}")
    a(f"s_lshl_b32 s{sT}, s{sT}, 3")
    a(f"s_add_u32 s{sT}, s{sT}, s{sW}")
    set_flag(a, vT, sT, FL_O)
    st.end()
    a("s_endpgm")
    a.label(L_slow)
    a(f"v_mov_b32 v{vM2}, 0xff800000")
    a(f"s_mov_b32 s{sSoffK}, 0")
    a.label("A_slow1")
    a(f"buffer_load_dwordx4 {vr(K1,4)}, v{vA16}, s[{R_A}:{R_A+3}], s{sSoffK} offen sc1")
    a(f"buffer_load_dwordx2 {vr(K2,2)}, v{bK2}, s[{R_A}:{R_A+3}], s{sSoffK} offen sc1")
    a("s_waitcnt vmcnt(0)")
    qk1(S[0]); qk2(S[0])
    a.nop(16)
    for i in range(8):
        a(f"v_max3_f32 v{vM2}, v{S[0]+2*i}, v{S[0]+2*i+1}, v{vM2}")
    a(f"s_add_u32 s{sSoffK}, s{sSoffK}, {TS}")
    a(f"s_cmp_lt_u32 s{sSoffK}, {KVB}")
    a(f"s_cbranch_scc1 A_slow1")
    set_m(0.0)
    for i in range(16): a(f"v_mov_b32 v{O+i}, 0")
    a(f"s_mov_b32 s{sSoffK}, 0")
    a.label("A_slow2")
    a(f"buffer_load_dwordx4 {vr(K1,4)}, v{vA16}, s[{R_A}:{R_A+3}], s{sSoffK} offen sc1")
    a(f"buffer_load_dwordx2 {vr(K2,2)}, v{bK2}, s[{R_A}:{R_A+3}], s{sSoffK} offen sc1")
    a(f"buffer_load_dwordx4 {vr(V1,4)}, v{bV}, s[{R_A}:{R_A+3}], s{sSoffK} offen sc1")
    a(f"buffer_load_dwordx4 {vr(V2,4)}, v{bV}, s[{R_A}:{R_A+3}], s{sSoffK} offen offset:{VF} sc1")
    a("s_waitcnt vmcnt(0)")
    qk1(S[0], CNR); qk2(S[0])
    a.nop(16)
    for i in range(16): e(S[0], i)
    a.nop(1)
    for k in range(8): p(S[0], k)
    a.nop(2)
    a(f"v_mfma_f32_32x32x16_bf16 {vr(O,16)}, {vr(V1,4)}, {vr(P,4)}, {vr(O,16)}")
    a(f"v_mfma_f32_32x32x16_bf16 {vr(O,16)}, {vr(V2,4)}, {vr(P+4,4)}, {vr(O,16)}")
    a(f"s_add_u32 s{sSoffK}, s{sSoffK}, {TS}")
    a(f"s_cmp_lt_u32 s{sSoffK}, {KVB}")
    a(f"s_cbranch_scc1 A_slow2")
    a.nop(16)
    a(f"s_mov_b32 s{sIt}, 1")
    a(f"s_branch {L_fin}")

def role_B1(a):
    st = Stamps(a, "B1")
    st.start()
    if OPT.get("bprio"): a(f"s_setprio {OPT['bprio']}")
    sG, sC = sRB, sCG
    sSoffW, sSoffX, sLdsW, sKH, sXb = 57, 58, 59, 60, 99
    vT = 4; vW = 10; vTr, vX16, vR = 13, 14, 15
    XS = 16; WF = 48; ACC = 76
    SLOT = 24576
    a(f"s_sub_u32 s{sT2}, s2, 256")
    a(f"s_bfe_u32 s{sG}, s{sT2}, 0x20001")
    a(f"s_lshl_b32 s{sG}, s{sG}, 2")
    a(f"s_bfe_u32 s{sT}, s{sT2}, 0x20003")
    a(f"s_add_u32 s{sG}, s{sG}, s{sT}")
    a(f"s_and_b32 s{sC}, s{sT2}, 1")
    a(f"s_lshl_b32 s{sC}, s{sC}, 3")
    a(f"s_lshr_b32 s{sT}, s{sT2}, 5")
    a(f"s_add_u32 s{sC}, s{sC}, s{sT}")
    a(f"s_lshr_b32 s{sKH}, s{sW}, 2")
    a(f"v_lshlrev_b32 v{vX16}, 4, v{vLane}")
    a(f"s_and_b32 s{sT}, s{sW}, 3")
    a(f"s_mul_i32 s{sT}, s{sT}, 192")
    a(f"s_mul_i32 s{sT2}, s{sC}, 192")
    a(f"s_mul_i32 s{sT3}, s{sKH}, {320*3072}")
    a(f"s_add_u32 s{sT2}, s{sT2}, s{sT3}")
    for i in range(3):
        a(f"v_add_u32 v{vT}, s{sT}, v{vLane}")
        if i: a(f"v_add_u32 v{vT}, {64*i}, v{vT}")
        a(f"v_mul_u32_u24 v{vT+1}, 5462, v{vT}")
        a(f"v_lshrrev_b32 v{vT+1}, 16, v{vT+1}")
        a(f"v_mul_u32_u24 v{vT+2}, 12, v{vT+1}")
        a(f"v_sub_u32 v{vT}, v{vT}, v{vT+2}")
        a(f"v_lshlrev_b32 v{vT}, 4, v{vT}")
        a(f"v_mul_u32_u24 v{vT+1}, 3072, v{vT+1}")
        a(f"v_add3_u32 v{vW+i}, v{vT}, v{vT+1}, s{sT2}")
        if i: a(f"v_subrev_u32 v{vW+i}, {1024*i}, v{vW+i}")
    a(f"s_mul_i32 s{sT}, s{sKH}, 12288")
    tr_addr(a, vTr, None, 192, 8, 4, sT, vT)
    a(f"s_mul_i32 s{sLdsW}, s{sW}, 3072")
    srd(a, R_A, S_W1, S_W1+1, 640*1536*2)
    srd(a, R_B, S_B1, S_B1+1, 1536*2)
    a(f"s_mul_hi_u32 s{sT}, s{sC}, {(1<<32)//5 + 1}")
    a(f"s_mul_i32 s{sT}, s{sT}, 5")
    a(f"s_sub_u32 s{sT}, s{sC}, s{sT}")
    a(f"s_mul_i32 s{sSoffW}, s{sT}, {64*3072}")
    a(f"s_lshl_b32 s{sSoffX}, s{sT}, 12")
    a(f"s_and_b32 s{sT}, s{sW}, 3")
    a(f"s_lshl_b32 s{sT2}, s{sG}, 2")
    a(f"s_add_u32 s{sT}, s{sT}, s{sT2}")
    a(f"s_mul_i32 s{sXb}, s{sT}, {40*1024}")
    a(f"s_mul_i32 s{sT2}, s{sKH}, {20*1024}")
    a(f"s_add_u32 s{sXb}, s{sXb}, s{sT2}")
    if WS_XF: a(f"s_add_u32 s{sXb}, s{sXb}, {WS_XF}")
    def issueW(c):
        a(f"s_add_u32 m0, s{sLdsW}, {(c%3)*SLOT}")
        a(f"s_add_u32 s{sT}, s{sSoffW}, {64*3072}")
        for i in range(3):
            a(f"buffer_load_dwordx4 v{vW+i}, s[{R_A}:{R_A+3}], s{sSoffW} offen offset:{1024*i} lds")
        a(f"s_cmp_eq_u32 s{sT}, {320*3072}")
        a(f"s_cselect_b32 s{sSoffW}, 0, s{sT}")
    def issueX(c):
        xs = XS + 16*(c % 2)
        a(f"s_add_u32 s{sT2}, s{sXb}, s{sSoffX}")
        a(f"s_add_u32 s{sT}, s{sSoffX}, 4096")
        for i in range(4):
            a(f"buffer_load_dwordx4 {vr(xs+4*i,4)}, v{vX16}, s[{R_WS}:{R_WS+3}], s{sT2} offen offset:{1024*i} sc1")
        a(f"s_cmp_eq_u32 s{sT}, 20480")
        a(f"s_cselect_b32 s{sSoffX}, 0, s{sT}")
    a(f"s_cmp_lg_u32 s{sW}, 0")
    a(f"s_cbranch_scc1 B1_pre")
    get_tag(a, vT, "B1")
    a(f"s_lshl_b32 s{sT}, s{sG}, 5")
    if OPT.get("wftries", 1): poll_flags(a, vT, "B1p", sT, 32, FL_D, tries=OPT.get("wftries", 1))
    a.label("B1_pre")
    a("s_barrier")
    st.mark("prepoll")
    sJ = 96
    a(f"s_sub_u32 s{sJ}, s2, 256")
    srd(a, R_C, S_W2, S_W2+1, 1536*640*2)
    vF = 16
    a(f"v_lshrrev_b32 v32, 2, v{vLane}")
    a(f"v_mul_u32_u24 v32, 1280, v32")
    a(f"v_and_b32 v33, 3, v{vLane}")
    a(f"v_lshl_add_u32 v32, v33, 4, v32")
    a(f"s_lshl_b32 s{sT}, s{sW}, 11")
    a(f"v_add_u32 v33, s{sT}, v{vX16}")
    tr_addr(a, 34, None, 64, 4, 8, sT, vT)
    tr_addr(a, 35, None, 64, 8, 4, sT, vT)
    sDst = [92, 93]; sStp = [94, 95]
    for rnd in range(2):
        Lskip = f"B1_wf{rnd}_skip"
        a(f"s_mov_b32 s{sStp[rnd]}, -1")
        if rnd == 1:
            a(f"s_cmp_ge_u32 s{sW}, 3")
            a(f"s_cbranch_scc1 {Lskip}")
        a(f"s_and_b32 s{sT}, s{sJ}, 63")
        a(f"s_mul_i32 s{sT}, s{sT}, 11")
        a(f"s_add_u32 s{sT}, s{sT}, s{sW}")
        if rnd: a(f"s_add_u32 s{sT}, s{sT}, 8")
        a(f"s_cmp_ge_u32 s{sT}, 680")
        a(f"s_cbranch_scc1 {Lskip}")
        a(f"s_mul_hi_u32 s{sT2}, s{sT}, {(1<<32)//136 + 1}")
        a(f"s_mul_i32 s{sT3}, s{sT2}, 136")
        a(f"s_sub_u32 s{sT}, s{sT}, s{sT3}")
        a(f"s_mov_b32 s{sStp[rnd]}, s{sT}")
        a(f"s_lshr_b32 s{sT3}, s{sJ}, 6")
        a(f"s_mul_i32 s{sT3}, s{sT3}, 5")
        a(f"s_add_u32 s{sT2}, s{sT2}, s{sT3}")
        a(f"s_mul_i32 s62, s{sT2}, 136")
        a(f"s_add_u32 s62, s62, s{sT}")
        a(f"s_lshl_b32 s62, s62, 10")
        a(f"s_add_u32 s{sDst[rnd]}, s62, {WS_WF}")
        a(f"s_lshl_b32 s{sT2}, s{sT2}, 6")
        a(f"s_cmp_lt_u32 s{sT}, 96")
        a(f"s_cselect_b32 s{R_C}, s{S_W2}, s{S_WO}")
        a(f"s_cselect_b32 s{R_C+1}, s{S_W2+1}, s{S_WO+1}")
        a(f"s_cselect_b32 s63, 0, 96")
        a(f"s_mov_b32 s{R_C+2}, {640*640*2}")
        a(f"s_cbranch_scc0 B1_wf{rnd}_a")
        a(f"s_mov_b32 s{R_C+2}, {1536*640*2}")
        a.label(f"B1_wf{rnd}_a")
        a(f"s_sub_u32 s{sT3}, s{sT}, s63")
        a(f"s_mul_i32 s{sT3}, s{sT3}, {16*1280}")
        a(f"s_add_u32 s{sT3}, s{sT3}, s{sT2}")
        a(f"buffer_load_dwordx4 v[{16+4*rnd}:{19+4*rnd}], v32, s[{R_C}:{R_C+3}], s{sT3} offen")
        a.label(Lskip)
    a("s_waitcnt vmcnt(0)")
    for rnd in range(2):
        Lskip = f"B1_wg{rnd}_skip"
        a(f"s_cmp_eq_u32 s{sStp[rnd]}, -1")
        a(f"s_cbranch_scc1 {Lskip}")
        a(f"ds_write_b128 v33, v[{16+4*rnd}:{19+4*rnd}] offset:{1024*rnd}")
        a(f"s_cmp_lt_u32 s{sStp[rnd]}, 96")
        a(f"s_cbranch_scc0 B1_wf{rnd}_n")
        a(f"ds_read_b64_tr_b16 v[{24+4*rnd}:{25+4*rnd}], v34 offset:{1024*rnd}")
        a(f"ds_read_b64_tr_b16 v[{26+4*rnd}:{27+4*rnd}], v34 offset:{1024*rnd+512}")
        a(f"s_branch B1_wf{rnd}_s")
        a.label(f"B1_wf{rnd}_n")
        a(f"ds_read_b64_tr_b16 v[{24+4*rnd}:{25+4*rnd}], v35 offset:{1024*rnd}")
        a(f"ds_read_b64_tr_b16 v[{26+4*rnd}:{27+4*rnd}], v35 offset:{1024*rnd+256}")
        a.label(f"B1_wf{rnd}_s")
        a("s_waitcnt lgkmcnt(0)")
        a(f"buffer_store_dwordx4 v[{24+4*rnd}:{27+4*rnd}], v{vX16}, s[{R_WS}:{R_WS+3}], s{sDst[rnd]} offen sc1")
        a.label(Lskip)
    st.mark("wfprep")
    L_np = "B1_np"
    a(f"s_cmp_lg_u32 s{sW}, 0")
    a(f"s_cbranch_scc1 {L_np}")
    a(f"s_lshl_b32 s{sT}, s{sG}, 5")
    poll_flags(a, vT, "B1", sT, 32, FL_D)
    if OPT.get("b1kv"): poll_flags(a, vT, "B1k", None, 128, FL_KV)
    a.label(L_np)
    a("s_barrier")
    st.mark("wait_d")
    issued = []
    def iX(c): issueX(c); issued.extend([("X", c)]*4)
    def iW(c): issueW(c); issued.extend([("W", c)]*3)
    if OPT.get("b1shallow", 1):
        iW(0); iX(0)
    else:
        iW(0); iX(0)
        a("s_barrier")
        iW(1); iX(1)
        a("s_barrier")
        iW(2)
    def wreads(c, k, buf):
        base = (c % 3)*SLOT + k*16*192
        for ct in range(3):
            a(f"ds_read_b64_tr_b16 v[{WF+12*buf+4*ct}:{WF+12*buf+4*ct+1}], v{vTr} offset:{base + ct*64}")
            a(f"ds_read_b64_tr_b16 v[{WF+12*buf+4*ct+2}:{WF+12*buf+4*ct+3}], v{vTr} offset:{base + ct*64 + 4*192}")
    for c in range(5):
        last = max(i for i, e_ in enumerate(issued) if e_ in (("W", c), ("X", c)))
        a(f"s_waitcnt vmcnt({len(issued) - 1 - last})")
        a("s_barrier")
        if c == 0:
            st.mark("b0")
            a(f"s_cmp_lg_u32 s{sW}, 0")
            a(f"s_cbranch_scc1 B1_nofw")
            set_flag(a, vT, sJ, FL_W)
            a.label("B1_nofw")
        if OPT.get("b1shallow", 1):
            if c + 1 < 5: iW(c + 1); iX(c + 1)
        elif 1 <= c <= 2: iW(c + 2)
        xs = XS + 16*(c % 2)
        wreads(c, 0, 0)
        for k in range(4):
            buf = k % 2
            if k < 3:
                wreads(c, k + 1, 1 - buf)
                a("s_waitcnt lgkmcnt(6)")
            else:
                a("s_waitcnt lgkmcnt(0)")
            for ct in range(3):
                cin = "0" if (c == 0 and k == 0) else vr(ACC+16*ct,16)
                a(f"v_mfma_f32_32x32x16_bf16 {vr(ACC+16*ct,16)}, {vr(WF+12*buf+4*ct,4)}, {vr(xs+4*k,4)}, {cin}")
        if c + 2 < 5 and not OPT.get("b1shallow", 1): iX(c + 2)
    st.mark("kloop")
    a("s_setprio 3")
    a(f"s_and_b32 s{sT}, s{sW}, 3")
    a(f"s_lshl_b32 s{sT2}, s{sG}, 2")
    a(f"s_add_u32 s{sT}, s{sT}, s{sT2}")
    a(f"s_lshl_b32 s{sT2}, s{sT}, 7")
    a(f"s_add_u32 s{sT2}, s{sT2}, {WS_R}")
    a(f"v_lshlrev_b32 v{vT}, 2, v{vN}")
    a(f"buffer_load_dword v{vR}, v{vT}, s[{R_WS}:{R_WS+3}], s{sT2} offen sc1")
    a(f"s_mul_i32 s{sT2}, s{sC}, 192")
    a(f"s_lshl_b32 s{sT3}, s{sKH}, 5")
    a(f"s_add_u32 s{sT2}, s{sT2}, s{sT3}")
    a(f"v_lshlrev_b32 v{vT}, 3, v{vH}")
    B = XS
    for ct in range(3):
        for q in range(2):
            a(f"buffer_load_dwordx2 v[{B+4*ct+2*q}:{B+4*ct+2*q+1}], v{vT}, s[{R_B}:{R_B+3}], s{sT2} offen offset:{64*ct+16*q}")
    a(f"s_mul_i32 s{sT}, s{sT}, 96")
    a(f"s_mul_i32 s{sT2}, s{sC}, 6")
    a(f"s_add_u32 s{sT}, s{sT}, s{sT2}")
    a(f"s_add_u32 s{sT}, s{sT}, s{sKH}")
    a(f"s_lshl_b32 s{sXb}, s{sT}, 10")
    a(f"s_add_u32 s{sXb}, s{sXb}, {WS_H}")
    a("s_barrier")
    a.nop(4)
    T = XS + 16
    a(f"s_mul_i32 s{sT}, s{sW}, 6144")
    a(f"v_add_u32 v{vT+1}, s{sT}, v{vX16}")
    a(f"s_xor_b32 s{sT}, s{sW}, 4")
    a(f"s_mul_i32 s{sT}, s{sT}, 6144")
    a(f"v_add_u32 v{vT+2}, s{sT}, v{vX16}")
    a(f"s_cmp_eq_u32 s{sKH}, 1")
    a(f"s_cbranch_scc1 B1_x1")
    for ct in range(3):
        for q in range(2):
            a(f"ds_write_b128 v{vT+1}, {vr(ACC+16*ct+8+4*q,4)} offset:{(2*ct+q)*1024}")
    a(f"s_branch B1_x2")
    a.label("B1_x1")
    for ct in range(3):
        for q in range(2):
            a(f"ds_write_b128 v{vT+1}, {vr(ACC+16*ct+4*q,4)} offset:{(2*ct+q)*1024}")
    a.label("B1_x2")
    a("s_waitcnt lgkmcnt(0)")
    a("s_barrier")
    for i in range(6):
        a(f"ds_read_b128 {vr(T+4*i,4)}, v{vT+2} offset:{i*1024}")
    a("s_waitcnt lgkmcnt(0) vmcnt(0)")
    a(f"s_cmp_eq_u32 s{sKH}, 1")
    a(f"s_cbranch_scc1 B1_y1")
    for ct in range(3):
        for j in range(8): a(f"v_add_f32 v{T+8*ct+j}, v{T+8*ct+j}, v{ACC+16*ct+j}")
    a(f"s_branch B1_y2")
    a.label("B1_y1")
    for ct in range(3):
        for j in range(8): a(f"v_add_f32 v{T+8*ct+j}, v{T+8*ct+j}, v{ACC+16*ct+8+j}")
    a.label("B1_y2")
    TB = 56
    for ct in range(3):
        for q in range(2):
            b0 = B+4*ct+2*q
            acc = T+8*ct+4*q
            a(f"v_lshlrev_b32 v{TB}, 16, v{b0}")
            a(f"v_and_b32 v{TB+1}, 0xffff0000, v{b0}")
            a(f"v_lshlrev_b32 v{TB+2}, 16, v{b0+1}")
            a(f"v_and_b32 v{TB+3}, 0xffff0000, v{b0+1}")
            for j in range(4): a(f"v_fma_f32 v{acc+j}, v{acc+j}, v{vR}, v{TB+j}")
            for j in range(4): a(f"v_max_f32 v{acc+j}, 0, v{acc+j}")
            for j in range(4): a(f"v_mul_f32 v{acc+j}, v{acc+j}, v{acc+j}")
        for k in range(4):
            a(f"v_cvt_pk_bf16_f32 v{60+4*ct+k}, v{T+8*ct+2*k}, v{T+8*ct+2*k+1}")
    a(f"v_add_u32 v{vT}, 4096, v{vX16}")
    a(f"buffer_store_dwordx4 {vr(60,4)}, v{vX16}, s[{R_WS}:{R_WS+3}], s{sXb} offen sc1")
    a(f"buffer_store_dwordx4 {vr(64,4)}, v{vX16}, s[{R_WS}:{R_WS+3}], s{sXb} offen offset:2048 sc1")
    a(f"buffer_store_dwordx4 {vr(68,4)}, v{vT}, s[{R_WS}:{R_WS+3}], s{sXb} offen sc1")
    a("s_waitcnt vmcnt(0)")
    a("s_barrier")
    L_nf = "B1_nf"
    a(f"s_cmp_lg_u32 s{sW}, 0")
    a(f"s_cbranch_scc1 {L_nf}")
    a(f"s_lshl_b32 s{sT}, s{sG}, 4")
    a(f"s_add_u32 s{sT}, s{sT}, s{sC}")
    set_flag(a, vT, sT, FL_H)
    a.label(L_nf)
    st.mark("epi")
    st.end()
    a("s_endpgm")

def role_B2(a):
    st = Stamps(a, "B2")
    st.start()
    if OPT.get("bprio"): a(f"s_setprio {OPT['bprio']}")
    sSoffW, sSoffX, sWb, sIt, sRho, sWrapW, sRst = 57, 58, 59, 60, 61, 98, 99
    vT = 4
    vX16, vXa = 14, 15
    ACC = 16
    XR = 48
    WB = 64
    vOut = vT+3
    NXS = 8
    a(f"s_sub_u32 s{sT2}, s2, 512")
    a(f"s_bfe_u32 s{sRB}, s{sT2}, 0x20001")
    a(f"s_lshl_b32 s{sRB}, s{sRB}, 4")
    a(f"s_bfe_u32 s{sT}, s{sT2}, 0x40003")
    a(f"s_add_u32 s{sRB}, s{sRB}, s{sT}")
    a(f"s_and_b32 s{sCG}, s{sT2}, 1")
    a(f"s_lshl_b32 s{sCG}, s{sCG}, 1")
    a(f"s_lshr_b32 s{sT}, s{sT2}, 7")
    a(f"s_add_u32 s{sCG}, s{sCG}, s{sT}")
    a(f"v_lshlrev_b32 v{vX16}, 4, v{vLane}")
    a(f"s_and_b32 s{sRho}, s{sRB}, 7")
    a(f"s_min_u32 s{sT3}, s{sW}, 4")
    a(f"s_mul_i32 s{sT}, s{sCG}, 5")
    a(f"s_add_u32 s{sT}, s{sT}, s{sT3}")
    a(f"s_mul_i32 s{sWb}, s{sT}, {136*1024}")
    a(f"s_add_u32 s{sWb}, s{sWb}, {WS_WF}")
    a(f"s_lshl_b32 s{sT}, s{sT}, 6")
    srd(a, R_C, S_X, S_X+1, NX)
    a(f"s_lshl_b32 s{sT2}, s{sRB}, 5")
    a(f"v_add_u32 v{vT}, s{sT2}, v{vN}")
    a(f"v_mul_u32_u24 v{vT}, 1280, v{vT}")
    a(f"v_lshl_add_u32 v{vT}, v{vH}, 3, v{vT}")
    a(f"v_add_u32 v{vOut}, s{sT}, v{vT}")
    for q in range(4):
        a(f"buffer_load_dwordx2 v[{XR+2*q}:{XR+2*q+1}], v{vOut}, s[{R_C}:{R_C+3}], 0 offen offset:{16*q}")
    srd(a, R_C, S_B2, S_B2+1, 640*2)
    a(f"v_lshlrev_b32 v{vT}, 3, v{vH}")
    for q in range(4):
        a(f"buffer_load_dwordx2 v[{XR+8+2*q}:{XR+8+2*q+1}], v{vT}, s[{R_C}:{R_C+3}], s{sT} offen offset:{16*q}")
    for i in range(16): a(f"v_mov_b32 v{ACC+i}, 0")
    def unpack_add(q, dst):
        for (src, t) in ((XR+2*q, 32), (XR+8+2*q, 36)):
            a(f"v_lshlrev_b32 v{t}, 16, v{src}")
            a(f"v_and_b32 v{t+1}, 0xffff0000, v{src}")
            a(f"v_lshlrev_b32 v{t+2}, 16, v{src+1}")
            a(f"v_and_b32 v{t+3}, 0xffff0000, v{src+1}")
        for j in range(4): a(f"v_add_f32 v{32+j}, v{32+j}, v{36+j}")
        for j in range(4): a(f"v_add_f32 v{dst+j}, v{dst+j}, v{32+j}")
    L_side = "B2_side"
    a(f"s_cmp_ge_u32 s{sW}, 4")
    a(f"s_cbranch_scc1 {L_side}")
    a("s_barrier")
    a(f"s_lshl_b32 s{sSoffW}, s{sRho}, 13")
    a(f"s_mov_b32 s{sWrapW}, {96*1024}")
    a(f"s_mov_b32 s{sRst}, 0")
    def wload(r):
        a(f"s_add_u32 s{sT2}, s{sWb}, s{sSoffW}")
        a(f"s_add_u32 s{sT}, s{sSoffW}, 1024")
        a(f"buffer_load_dwordx4 {vr(r,4)}, v{vX16}, s[{R_WS}:{R_WS+3}], s{sT2} offen sc1")
        a(f"s_cmp_eq_u32 s{sT}, s{sWrapW}")
        a(f"s_cselect_b32 s{sSoffW}, s{sRst}, s{sT}")
    for k in range(16): wload(WB + 4*k)
    st.mark("setup")
    a(f"s_mov_b32 s{sIt}, 0")
    L1 = "B2_p1"
    a.label(L1)
    XBUF = 32
    for j in range(16):
        k = j % 8
        if k == 0:
            a("s_barrier")
            a(f"s_lshl_b32 s{sT}, s{sIt}, 1")
            if j: a(f"s_add_u32 s{sT}, s{sT}, 1")
            a(f"s_and_b32 s{sT}, s{sT}, {NXS-1}")
            a(f"s_lshl_b32 s{sT}, s{sT}, 13")
            a(f"v_add_u32 v{vXa}, s{sT}, v{vX16}")
            for i in range(3):
                a(f"ds_read_b128 {vr(XBUF+4*i,4)}, v{vXa} offset:{i*1024}")
        if j == 0:
            L1n = "B2_p1n"
            a(f"s_cmp_lg_u32 s{sIt}, 5")
            a(f"s_cbranch_scc1 {L1n}")
            a(f"s_mul_i32 s{sSoffW}, s{sRho}, {5*1024}")
            a(f"s_add_u32 s{sSoffW}, s{sSoffW}, {96*1024}")
            a(f"s_mov_b32 s{sWrapW}, {136*1024}")
            a(f"s_mov_b32 s{sRst}, {96*1024}")
            a.label(L1n)
        if k + 3 < 8:
            a(f"ds_read_b128 {vr(XBUF+4*((k+3)%4),4)}, v{vXa} offset:{(k+3)*1024}")
            a("s_waitcnt vmcnt(15) lgkmcnt(3)")
        else:
            a(f"s_waitcnt vmcnt(15) lgkmcnt({7-k})")
        a(f"v_mfma_f32_32x32x16_bf16 {vr(ACC,16)}, {vr(WB+4*j,4)}, {vr(XBUF+4*(k%4),4)}, {vr(ACC,16)}")
        wload(WB + 4*j)
    a(f"s_add_u32 s{sIt}, s{sIt}, 1")
    a(f"s_cmp_lt_u32 s{sIt}, 6")
    a(f"s_cbranch_scc1 {L1}")
    st.mark("ffn2")
    a.nop(12)
    for q in range(4): unpack_add(q, ACC+4*q)
    XBUF = XR
    NBLK = 20
    def blk(s_):
        b = s_ % NBLK
        return (WB + 4*b) if b < 16 else (32 + 4*(b-16))
    for s_ in range(16, 20): wload(blk(s_))
    a("s_barrier")
    a(f"s_branch B2_oload")
    a.label(L_side)
    a(f"s_cmp_lt_u32 s{sW}, 6")
    a(f"s_cbranch_scc1 B2_np0")
    get_tag(a, vT, "B2")
    a(f"s_cmp_eq_u32 s{sW}, 7")
    a(f"s_cbranch_scc1 B2_ph")
    a(f"s_lshl_b32 s{sT}, s{sCG}, 6")
    poll_flags(a, vT, "B2w", sT, 64, FL_W)
    a(f"s_branch B2_np0")
    a.label("B2_ph")
    a(f"s_lshr_b32 s{sT}, s{sRB}, 2")
    a(f"s_lshl_b32 s{sT}, s{sT}, 4")
    poll_flags(a, vT, "B2h", sT, 16, FL_H)
    a.label("B2_np0")
    a("s_barrier")
    a(f"s_sub_u32 s{sT3}, s{sW}, 4")
    a("s_waitcnt vmcnt(0)")
    for jj in range(1, 4):
        Ls = a.newlabel("B2_q")
        a(f"s_cmp_lg_u32 s{sT3}, {jj}")
        a(f"s_cbranch_scc1 {Ls}")
        a(f"v_mov_b32 v{XR}, v{XR+2*jj}")
        a(f"v_mov_b32 v{XR+1}, v{XR+2*jj+1}")
        a(f"v_mov_b32 v{XR+8}, v{XR+8+2*jj}")
        a(f"v_mov_b32 v{XR+9}, v{XR+8+2*jj+1}")
        a.label(Ls)
    for j in range(4): a(f"v_mov_b32 v{40+j}, 0")
    unpack_add(0, 40)
    a(f"s_lshl_b32 s{sRst}, s{sT3}, 11")
    a(f"s_lshl_b32 s{sSoffW}, s{sRho}, 13")
    a(f"s_add_u32 s{sSoffW}, s{sSoffW}, s{sRst}")
    a(f"s_add_u32 s{sWrapW}, s{sRst}, {96*1024}")
    SD = 4
    def wpair(slot):
        a(f"s_add_u32 s{sT2}, s{sWb}, s{sSoffW}")
        a(f"s_add_u32 s{sT}, s{sSoffW}, 8192")
        a(f"buffer_load_dwordx4 {vr(WB+8*slot,4)}, v{vX16}, s[{R_WS}:{R_WS+3}], s{sT2} offen sc1")
        a(f"buffer_load_dwordx4 {vr(WB+8*slot+4,4)}, v{vX16}, s[{R_WS}:{R_WS+3}], s{sT2} offen offset:1024 sc1")
        a(f"s_cmp_eq_u32 s{sT}, s{sWrapW}")
        a(f"s_cselect_b32 s{sSoffW}, s{sRst}, s{sT}")
    for c in range(SD): wpair(c)
    a(f"s_sub_u32 s{sT3}, s{sW}, 4")
    a(f"s_mul_i32 s{sT}, s{sRB}, {96*1024}")
    a(f"s_add_u32 s63, s{sT}, {WS_H}")
    a(f"s_lshl_b32 s97, s{sT3}, 11")
    a(f"s_add_u32 s63, s63, s97")
    a(f"s_lshl_b32 s{sSoffX}, s{sRho}, 13")
    a(f"v_add_u32 v{vT+5}, s97, v{vX16}")
    vXs = vT+5
    vm = Cnt(a, "vmcnt", 63)
    def xdma(c):
        a(f"s_add_u32 m0, s97, {(c % NXS)*8192}")
        a(f"s_add_u32 s{sT2}, s63, s{sSoffX}")
        a(f"s_add_u32 s{sT}, s{sSoffX}, 8192")
        for i in range(2):
            a(f"buffer_load_dwordx4 v{vX16}, s[{R_WS}:{R_WS+3}], s{sT2} offen offset:{1024*i} sc1 lds")
        a(f"s_cmp_eq_u32 s{sT}, {96*1024}")
        a(f"s_cselect_b32 s{sSoffX}, 0, s{sT}")
        vm.issue(("X", c), 2)
    for c in range(SD): vm.issue(("W", c), 2)
    XD = 6
    for c in range(XD): xdma(c)
    for c in range(12):
        vm.need(("X", c), ("W", c))
        a("s_barrier")
        if c + XD < 12: xdma(c + XD)
        for i in range(2):
            a(f"ds_read_b128 {vr(48+4*i,4)}, v{vXs} offset:{(c % NXS)*8192 + 1024*i}")
        a("s_waitcnt lgkmcnt(1)")
        a(f"v_mfma_f32_32x32x16_bf16 {vr(ACC,16)}, {vr(WB+8*(c%4),4)}, {vr(48,4)}, {vr(ACC,16)}")
        a("s_waitcnt lgkmcnt(0)")
        a(f"v_mfma_f32_32x32x16_bf16 {vr(ACC,16)}, {vr(WB+8*(c%4)+4,4)}, {vr(52,4)}, {vr(ACC,16)}")
        if c + SD < 12: wpair(c % 4); vm.issue(("W", c + SD), 2)
    a(f"s_sub_u32 s{sT3}, s{sW}, 4")
    a(f"s_lshl_b32 s{sT3}, s{sT3}, 1")
    a(f"s_mul_i32 s62, s{sRho}, 5")
    a(f"s_add_u32 s62, s62, s{sT3}")
    for m in range(5):
        for i in range(2):
            a(f"s_add_u32 s{sT}, s62, {8*m+i}")
            a(f"s_cmp_ge_u32 s{sT}, 40")
            a(f"s_cselect_b32 s{sT2}, 40, 0")
            a(f"s_sub_u32 s{sT}, s{sT}, s{sT2}")
            a(f"s_add_u32 s{sT}, s{sT}, 96")
            a(f"s_lshl_b32 s{sT}, s{sT}, 10")
            a(f"s_add_u32 s{sT}, s{sT}, s{sWb}")
            a(f"buffer_load_dwordx4 {vr(WB+4*(2*m+i),4)}, v{vX16}, s[{R_WS}:{R_WS+3}], s{sT} offen sc1")
    Lnp2 = "B2_np2"
    a(f"s_cmp_lg_u32 s{sW}, 7")
    a(f"s_cbranch_scc1 {Lnp2}")
    a(f"s_lshl_b32 s{sT}, s{sRB}, 5")
    poll_flags(a, vT, "B2o", sT, 32, FL_O, sleep=OPT.get("osleep", 2))
    a.label(Lnp2)
    st.mark("wait_o")
    a("s_barrier")
    a.label("B2_oload")
    a(f"s_mul_i32 s63, s{sRB}, {40*1024}")
    a(f"s_add_u32 s63, s63, {WS_OF}")
    a(f"s_mul_i32 s62, s{sRho}, 5")
    for i in range(5):
        a(f"s_mul_i32 s{sT}, s{sW}, 5")
        a(f"s_add_u32 s{sT}, s{sT}, {i}")
        a(f"s_add_u32 s{sT2}, s{sT}, s62")
        a(f"s_cmp_ge_u32 s{sT2}, 40")
        a(f"s_cselect_b32 s{sIt}, 40, 0")
        a(f"s_sub_u32 s{sT2}, s{sT2}, s{sIt}")
        a(f"s_lshl_b32 s{sT2}, s{sT2}, 10")
        a(f"s_add_u32 s{sT2}, s{sT2}, s63")
        a(f"s_lshl_b32 m0, s{sT}, 10")
        a("s_nop 0")
        a(f"buffer_load_dwordx4 v{vX16}, s[{R_WS}:{R_WS+3}], s{sT2} offen sc1 lds")
    a("s_waitcnt vmcnt(0)")
    a("s_barrier")
    st.mark("oload")
    a(f"s_cmp_ge_u32 s{sW}, 4")
    a(f"s_cbranch_scc1 B2_side2")
    vm = Cnt(a, "vmcnt", 63); lg = Cnt(a, "lgkmcnt", 15)
    def xread(s_):
        r = XBUF + 4*(s_ % 4)
        a(f"ds_read_b128 {vr(r,4)}, v{vX16} offset:{s_*1024}")
        lg.issue(("X", s_))
    for s_ in range(3): xread(s_)
    for s_ in range(40):
        if s_ + 3 < 40: xread(s_ + 3)
        vm.need(("W", s_))
        lg.need(("X", s_))
        a(f"v_mfma_f32_32x32x16_bf16 {vr(ACC,16)}, {vr(blk(s_),4)}, {vr(XBUF+4*(s_%4),4)}, {vr(ACC,16)}")
        if s_ + NBLK < 40:
            wload(blk(s_)); vm.issue(("W", s_ + NBLK))
    st.mark("wo")
    if OPT.get("diag"):
        a(f"s_cmp_lg_u32 s{sW}, 0"); Ld = a.newlabel("dg"); a(f"s_cbranch_scc1 {Ld}"); diag(a, 10); diag(a, 11, neg=True); a.label(Ld)
    a("s_setprio 3")
    a("s_barrier")
    a.nop(10)
    srd(a, R_C, S_OUT, S_OUT+1, NX)
    for q in range(4):
        a(f"v_cvt_pk_bf16_f32 v{32+2*q}, v{ACC+4*q}, v{ACC+4*q+1}")
        a(f"v_cvt_pk_bf16_f32 v{33+2*q}, v{ACC+4*q+2}, v{ACC+4*q+3}")
        a(f"buffer_store_dwordx2 v[{32+2*q}:{33+2*q}], v{vOut}, s[{R_C}:{R_C+3}], 0 offen offset:{16*q}")
    a("s_barrier")
    if OPT.get("diag"):
        a("s_waitcnt vmcnt(0)")
        a(f"s_cmp_lg_u32 s{sW}, 0"); Ld = a.newlabel("dg"); a(f"s_cbranch_scc1 {Ld}"); diag(a, 12); a.label(Ld)
    st.end()
    a("s_endpgm")
    a.label("B2_side2")
    for k in range(4):
        a(f"ds_read_b128 {vr(48+4*k,4)}, v{vXs} offset:{(8*(k//2)+(k%2))*1024}")
    for k in range(10):
        a(f"s_waitcnt lgkmcnt({min(3, 9-k)})")
        a(f"v_mfma_f32_32x32x16_bf16 {vr(ACC,16)}, {vr(WB+4*k,4)}, {vr(48+4*(k%4),4)}, {vr(ACC,16)}")
        if k + 4 < 10:
            a(f"ds_read_b128 {vr(48+4*(k%4),4)}, v{vXs} offset:{(8*((k+4)//2)+((k+4)%2))*1024}")
    a("s_setprio 3")
    a("s_barrier")
    a.nop(12)
    a(f"s_sub_u32 s{sT3}, s{sW}, 4")
    a(f"s_lshl_b32 s{sT}, s{sT3}, 12")
    a(f"v_add_u32 v{vT}, s{sT}, v{vX16}")
    for q in range(4):
        a(f"ds_write_b128 v{vT}, {vr(ACC+4*q,4)} offset:{q*1024}")
    a("s_waitcnt lgkmcnt(0)")
    a("s_barrier")
    a(f"s_lshl_b32 s{sT}, s{sT3}, 10")
    a(f"v_add_u32 v{vT}, s{sT}, v{vX16}")
    for jj in range(4):
        a(f"ds_read_b128 {vr(ACC+4*jj,4)}, v{vT} offset:{jj*4096}")
    a(f"s_lshl_b32 s{sT}, s{sT3}, 4")
    a(f"v_add_u32 v{vOut}, s{sT}, v{vOut}")
    srd(a, R_C, S_OUT, S_OUT+1, NX)
    a("s_waitcnt lgkmcnt(0)")
    for j in range(4):
        a(f"v_add_f32 v{ACC+j}, v{ACC+j}, v{ACC+4+j}")
        a(f"v_add_f32 v{ACC+8+j}, v{ACC+8+j}, v{ACC+12+j}")
    for j in range(4): a(f"v_add_f32 v{ACC+j}, v{ACC+j}, v{40+j}")
    for j in range(4): a(f"v_add_f32 v{ACC+j}, v{ACC+j}, v{ACC+8+j}")
    a(f"v_cvt_pk_bf16_f32 v32, v{ACC}, v{ACC+1}")
    a(f"v_cvt_pk_bf16_f32 v33, v{ACC+2}, v{ACC+3}")
    a(f"buffer_store_dwordx2 v[32:33], v{vOut}, s[{R_WS if False else R_C}:{R_C+3}], 0 offen")
    st.end()
    a("s_endpgm")

HEADER = """; x + MQA-attention(LN(x)) @ wo + FFN_relu2(LN(x))  -- one launch, three workgroup roles (8 waves each, 2 workgroups per CU).
"""

def gen():
    a = Asm()
    a("s_cmp_ge_u32 s2, 768")
    a("s_cbranch_scc1 K_end")
    a("s_load_dwordx16 s[4:19], s[0:1], 0")
    a("s_load_dwordx8 s[20:27], s[0:1], 64")
    a("s_load_dwordx2 s[28:29], s[0:1], 96")
    a(f"v_and_b32 v{vLane}, 63, v0")
    a(f"v_lshrrev_b32 v4, 6, v0")
    a(f"v_lshrrev_b32 v{vH}, 5, v{vLane}")
    a(f"v_readfirstlane_b32 s{sW}, v4")
    a(f"v_and_b32 v{vN}, 31, v{vLane}")
    a("s_waitcnt lgkmcnt(0)")
    srd(a, R_WS, S_WS, S_WS+1, WS_END)
    srd(a, R_FL, S_WS, S_WS+1, FL_SIZE, WS_FL)
    for r in (R_A, R_B, R_C): srd(a, r, S_WS, S_WS+1, WS_END)
    for i in range(4, 16): a(f"v_mov_b32 v{i}, 0")
    if OPT.get("tlb", 0):
        a(f"s_cmp_lg_u32 s{sW}, 4")
        a(f"s_cbranch_scc1 K_notlb")
        a(f"v_lshlrev_b32 v5, 18, v{vLane}")
        a(f"buffer_load_dword v0, v5, s[{R_WS}:{R_WS+3}], 0 offen")
        a(f"v_lshlrev_b32 v5, 16, v{vLane}")
        for ptr in (S_W1, S_W2, S_WO, S_OUT, S_WQ):
            a(f"global_load_dword v0, v5, s[{ptr}:{ptr+1}]") if False else None
        a.label("K_notlb")
    if OPT.get("diag"):
        a(f"s_cmp_lg_u32 s{sW}, 0")
        a("s_cbranch_scc1 K_nod")
        a("s_cmp_ge_u32 s2, 256")
        a("s_cbranch_scc1 K_nod")
        diag(a, 2)
        a.label("K_nod")
    a("s_cmp_ge_u32 s2, 512")
    a("s_cbranch_scc1 ROLE_B2")
    a("s_cmp_ge_u32 s2, 256")
    a("s_cbranch_scc1 ROLE_B1")
    role_A(a)
    a.label("ROLE_B1")
    n0 = len(a.lines)
    role_B1(a)
    a.label("ROLE_B2")
    role_B2(a)
    if OPT.get("mprio"):
        out = a.lines[:n0]; L = a.lines[n0:]; i = 0; cur = 0
        while i < len(L):
            if "s_setprio" in L[i]: cur = int(L[i].split()[-1])
            if L[i].rstrip().endswith(":") and L[i].strip() in ("ROLE_B2:",): cur = 0
            if "v_mfma" in L[i] and cur == 0:
                j = i
                while j < len(L) and "v_mfma" in L[j]: j += 1
                out.append(f"  s_setprio {OPT['mprio']}"); out += L[i:j]; out.append("  s_setprio 0"); i = j
            else:
                out.append(L[i]); i += 1
        a.lines = out
    a.label("K_end")
    a("s_endpgm")
    grid = OPT.get("grid", 768)
    s = f"; @launch grid=({grid},1,1) block=(512,1,1) lds={LDS_BYTES}\n" + HEADER
    s += '.amdgcn_target "amdgcn-amd-amdhsa--gfx950"\n.text\n'
    s += kernel_header(KN) + a.text()
    s += '.section .rodata,"a"\n.p2align 6\n' + kernel_desc(KN, 128, 102)
    return s

if __name__ == "__main__":
    if "--prof" in sys.argv: PROF = True
    for x in sys.argv:
        if x.startswith("-D"):
            k, _, v = x[2:].partition("="); OPT[k] = int(v) if v else 1
    open(sys.argv[1], "w").write(gen())
    if PROF: json.dump(STAMP_NAMES, open("stamps8.json", "w"))
```

```python
import sys, math, json
from asmlib import *

NAME = "parallel_sum__grouped_kv_mqa__dense_activation_squared_relu__prompt"
KN = NAME + "_kernel"
WS_XF = 0x0
WS_R  = 0x280000
WS_KV = 0x290000
WS_OF = 0x2D0000
WS_H  = 0x550000
WS_FL = 0xB50000
WS_WF = 0xBC0000
WS_END = 0xE70000
WS_DBG = 0x2000000
FL_KV, FL_D, FL_H, FL_W, FL_O = 0, 128, 640, 896, 1152
FL_N = 3200
FL_SIZE = FL_N * 128
NX = 2048 * 640 * 2
TS = 2688
VF = 704; VH = 352
KVB = 64 * TS
CH = 8 * TS
QSCALE = (20 ** -0.5) * math.log2(math.e)
DELTA = 96.0
LDS_BYTES = 81920
PROF = False
OPT = {}
SPIN_MAX = 200000

S_X, S_WQ, S_WK, S_WV, S_WO, S_W1, S_B1, S_W2, S_B2, S_OUT, S_DBG, S_WS = 4, 6, 8, 10, 12, 16, 18, 20, 22, 24, 26, 28
sW = 30
sTag = 31
R_WS = 32
R_FL = 36
R_A = 40
R_B = 44
R_C = 48
sRB, sCG, sT, sT2, sT3 = 52, 53, 54, 55, 56
vLane, vH, vN = 1, 2, 3

def diag(a, word, neg=False, va=74):
    if not OPT.get("diag") or neg: return
    L = a.newlabel("dgx")
    a(f"s_and_b32 s86, s2, 255")
    a(f"s_cmp_lg_u32 s86, {OPT.get('diagwg', 37)}")
    a(f"s_cbranch_scc1 {L}")
    a("s_memrealtime s[84:85]")
    a("s_waitcnt lgkmcnt(0)")
    a("s_mov_b64 s[86:87], exec")
    a("s_mov_b64 exec, 1")
    a(f"v_mov_b32 v{va}, s84")
    a(f"v_mov_b32 v{va+1}, {4*word}")
    a(f"global_store_dword v{va+1}, v{va}, s[{S_DBG}:{S_DBG+1}]")
    a("s_mov_b64 exec, s[86:87]")
    a.label(L)

class Stamps:
    def __init__(self, a, role): self.a = a; self.n = 1; self.names = []; self.role = role
    def start(self):
        if not PROF: return
        for i in range(68, 94): self.a(f"s_mov_b32 s{i}, 0")
        self.a("s_memrealtime s[64:65]"); self.a("s_memtime s[66:67]"); self.a("s_waitcnt lgkmcnt(0)"); self.n = 2
    def mark(self, name):
        if not PROF: return
        assert self.n < 15
        self.a(f"s_memtime s[{64+2*self.n}:{65+2*self.n}]"); self.a("s_waitcnt lgkmcnt(0)")
        self.n += 1; self.names.append(name)
    def end(self):
        if not PROF: return
        a = self.a
        a("s_waitcnt vmcnt(0)")
        self.mark("final-drain")
        a("s_memrealtime s[94:95]"); a("s_waitcnt lgkmcnt(0)")
        a("s_mov_b64 exec, 1")
        a(f"s_lshl_b32 s98, s2, 3")
        a(f"s_add_u32 s98, s98, s{sW}")
        a(f"s_lshl_b32 s98, s98, 6")
        a(f"s_add_u32 s98, s98, {WS_DBG}")
        a(f"s_add_u32 s96, s{S_WS}, s98")
        a(f"s_addc_u32 s97, s{S_WS+1}, 0")
        a(f"v_mov_b32 v0, 0")
        for i in list(range(14)) + [15]:
            a(f"v_mov_b32 v1, s{64+2*i}")
            a(f"global_store_dword v0, v1, s[96:97] offset:{4*i}")
        a(f"v_mov_b32 v1, {self.n}")
        a(f"global_store_dword v0, v1, s[96:97] offset:56")
        a("s_waitcnt vmcnt(0)")
        STAMP_NAMES[self.role] = self.names
STAMP_NAMES = {}

def bf16_round(a, dst, src):
    a(f"v_cvt_pk_bf16_f32 v{dst}, v{src}, v{src}")
    a(f"v_lshlrev_b32 v{dst}, 16, v{dst}")

def decode_rb_cg(a, j):
    a(f"s_lshr_b32 s{sCG}, s{j}, 6")
    a(f"s_and_b32 s{sRB}, s{j}, 7")
    a(f"s_lshl_b32 s{sRB}, s{sRB}, 3")
    a(f"s_bfe_u32 s{sT}, s{j}, 0x30003")
    a(f"s_add_u32 s{sRB}, s{sRB}, s{sT}")

def get_tag(a, vt, lab):
    L = f"{lab}_tag"
    a(f"s_mov_b32 s{sT3}, {SPIN_MAX}")
    a(f"v_mov_b32 v{vt}, 0")
    a.label(L)
    a(f"global_load_dword v{vt+1}, v{vt}, s[{S_DBG}:{S_DBG+1}] sc1")
    a("s_waitcnt vmcnt(0)")
    a(f"v_readfirstlane_b32 s{sTag}, v{vt+1}")
    a(f"s_sub_u32 s{sT3}, s{sT3}, 1")
    a(f"s_cmp_eq_u32 s{sT3}, 0")
    a(f"s_cbranch_scc1 {L}_done")
    a(f"s_cmp_eq_u32 s{sTag}, 0")
    a(f"s_cbranch_scc0 {L}_done")
    a("s_sleep 1")
    a(f"s_branch {L}")
    a.label(f"{L}_done")

def poll_flags(a, vt, lab, s_idx, nflags, region, tries=None, sleep=None):
    if nflags == 128:
        poll_flags(a, vt, lab + "a", None, 64, region, tries, sleep)
        poll_flags(a, vt, lab + "b", None, 64, region + 64, tries, sleep)
        return
    L = f"{lab}_poll"
    a(f"v_lshlrev_b32 v{vt}, 7, v{vLane}")
    if s_idx is None:
        a(f"s_mov_b32 s63, {region*128}")
    else:
        a(f"s_lshl_b32 s63, s{s_idx}, 7")
        if region: a(f"s_add_u32 s63, s63, {region*128}")
    a(f"s_mov_b32 s{sT3}, {tries or SPIN_MAX}")
    a("s_mov_b64 s[100:101], exec")
    if nflags < 64:
        a(f"s_mov_b32 exec_lo, {(1 << min(nflags, 32)) - 1 if nflags < 32 else -1}")
        a(f"s_mov_b32 exec_hi, {((1 << (nflags - 32)) - 1) if nflags > 32 else 0}")
    a.label(L)
    a(f"buffer_load_dword v{vt+1}, v{vt}, s[{R_FL}:{R_FL+3}], s63 offen sc1")
    a("s_waitcnt vmcnt(0)")
    a(f"v_cmp_ne_u32 vcc, s{sTag}, v{vt+1}")
    a("s_nop 1")
    a(f"s_and_b64 exec, exec, vcc")
    a(f"s_cbranch_execz {L}_done")
    a(f"s_sub_u32 s{sT3}, s{sT3}, 1")
    a(f"s_cmp_eq_u32 s{sT3}, 0")
    a(f"s_cbranch_scc1 {L}_done")
    a(f"s_sleep {sleep if sleep is not None else OPT.get('sleep', 6)}")
    a(f"s_branch {L}")
    a.label(f"{L}_done")
    a("s_mov_b64 exec, s[100:101]")

def set_flag(a, vt, s_idx, region):
    a(f"v_mov_b32 v{vt}, s{sTag}")
    a(f"v_mov_b32 v{vt+1}, 0")
    a(f"s_lshl_b32 s63, s{s_idx}, 7")
    if region: a(f"s_add_u32 s63, s63, {region*128}")
    a("s_mov_b64 s[100:101], exec")
    a("s_mov_b64 exec, 1")
    a(f"buffer_store_dword v{vt}, v{vt+1}, s[{R_FL}:{R_FL+3}], s63 offen sc1")
    a("s_mov_b64 exec, s[100:101]")

def tr_addr(a, dst, dst2, pitch, hrows, second_rows, s_base, t):
    a(f"v_bfe_u32 v{t}, v{vLane}, 2, 2")
    a(f"v_mul_u32_u24 v{t+1}, {hrows}, v{vH}")
    a(f"v_add_u32 v{t}, v{t}, v{t+1}")
    a(f"v_bfe_u32 v{t+1}, v{vLane}, 4, 1")
    a(f"v_and_b32 v{t+2}, 3, v{vLane}")
    a(f"v_lshlrev_b32 v{t+2}, 3, v{t+2}")
    a(f"v_lshl_add_u32 v{t+1}, v{t+1}, 5, v{t+2}")
    a(f"v_mul_u32_u24 v{dst}, {pitch}, v{t}")
    a(f"v_add3_u32 v{dst}, v{dst}, v{t+1}, s{s_base}")
    if dst2 is not None:
        a(f"v_add_u32 v{dst2}, {second_rows*pitch}, v{dst}")

def role_A(a):
    OPT["nopre0"] = 1
    st = Stamps(a, "A")
    st.start()
    XB = 0; XP = 1056; XH = 528; RBUF = 42240
    RING = 42496; NSTG = 3; RW = NSTG*1024; DEPTH = 16
    KSTG = 57856
    KVX = 67072
    LFL = XB + 512
    LFL2 = XB + 1040
    T4F = 75264
    SB = [0, 16384, 32768, 49152]
    QBUF = 65536; QP = 328
    sStep, sSoff, sLds, sRho, sWrap, sIt = 57, 58, 59, 60, 61, 57
    sExp, sFD = 95, 94
    vT = 4
    vVo, vTr, vTr2, vX16 = 12, 13, 14, 15
    X = 16
    TMP = 36
    vSum, vSq, vM = 52, 53, 54
    vOne, vSelLo, vSelHi = 56, 57, 58
    vR, vXa, vWst, vTag = 9, 10, 11, 61
    ACC = 16; FB = 32; WS_ = 64
    a(f"s_mov_b32 s{sT2}, s2")
    decode_rb_cg(a, sT2)
    L_notag = "A_notag"
    a(f"s_cmp_lg_u32 s2, 0")
    a(f"s_cbranch_scc1 {L_notag}")
    a(f"s_cmp_lg_u32 s{sW}, 0")
    a(f"s_cbranch_scc1 {L_notag}")
    a(f"s_memrealtime s[62:63]")
    a("s_waitcnt lgkmcnt(0)")
    a(f"s_or_b32 s62, s62, 1")
    a(f"v_mov_b32 v{vT}, s62")
    a(f"v_mov_b32 v{vT+1}, 0")
    a("s_mov_b64 exec, 1")
    a(f"global_store_dword v{vT+1}, v{vT}, s[{S_DBG}:{S_DBG+1}] sc1")
    a("s_mov_b64 exec, -1")
    a.label(L_notag)
    srd(a, R_A, S_X, S_X+1, NX)
    a(f"s_lshl_b32 s{sT}, s{sRB}, 5")
    a(f"s_lshl_b32 s{sT2}, s{sW}, 2")
    a(f"s_add_u32 s{sT}, s{sT}, s{sT2}")
    a(f"v_lshrrev_b32 v{vT}, 4, v{vLane}")
    a(f"v_add_u32 v{vT}, s{sT}, v{vT}")
    a(f"v_mul_u32_u24 v{vT}, 1280, v{vT}")
    a(f"v_and_b32 v{vT+1}, 15, v{vLane}")
    a(f"v_lshl_add_u32 v{vT}, v{vT+1}, 4, v{vT}")
    for i in range(5):
        a(f"buffer_load_dwordx4 {vr(X+4*i,4)}, v{vT}, s[{R_A}:{R_A+3}], 0 offen offset:{256*i}")
    a(f"v_lshlrev_b32 v{vX16}, 4, v{vLane}")
    a(f"s_and_b32 s{sRho}, s{sRB}, 7")
    L_nowe = "A_nowe"
    a(f"s_cmp_lt_u32 s{sW}, 5")
    a(f"s_cbranch_scc1 {L_nowe}")
    a(f"s_cmp_ge_u32 s{sCG}, 2")
    a(f"s_cbranch_scc1 {L_nowe}")
    a(f"s_cmp_eq_u32 s{sCG}, 1")
    a(f"s_cselect_b32 s{R_B}, s{S_WV}, s{S_WK}")
    a(f"s_cselect_b32 s{R_B+1}, s{S_WV+1}, s{S_WK+1}")
    a(f"s_mov_b32 s{R_B+2}, {640*20*2}")
    a(f"s_mov_b32 s{R_B+3}, 0x00020000")
    a(f"s_sub_u32 s{sT}, s{sW}, 5")
    a(f"s_mul_i32 s{sStep}, s{sT}, 13")
    a(f"s_min_u32 s{sT}, s{sT}, 1")
    a(f"s_add_u32 s{sStep}, s{sStep}, s{sT}")
    a(f"s_mul_i32 s{sT}, s{sRho}, 5")
    a(f"s_add_u32 s{sT2}, s{sStep}, s{sT}")
    a(f"s_cmp_ge_u32 s{sT2}, 40")
    a(f"s_cselect_b32 s{sT}, 40, 0")
    a(f"s_sub_u32 s{sT2}, s{sT2}, s{sT}")
    a(f"s_mul_i32 s{sSoff}, s{sT2}, 640")
    for i in range(14):
        a(f"s_add_u32 s{sT}, s{sSoff}, 640")
        a(f"buffer_load_dwordx4 {vr(WS_+4*i,4)}, v{vX16}, s[{R_B}:{R_B+3}], s{sSoff} offen")
        a(f"s_cmp_eq_u32 s{sT}, 25600")
        a(f"s_cselect_b32 s{sSoff}, 0, s{sT}")
    a.label(L_nowe)
    a("s_barrier")
    L_nq = "A_nq"
    a(f"s_cmp_ge_u32 s{sW}, 5")
    a(f"s_cbranch_scc1 {L_nq}")
    srd(a, R_B, S_WQ, S_WQ+1, 640*640*2)
    a(f"v_lshrrev_b32 v{vT}, 2, v{vLane}")
    a(f"v_mul_u32_u24 v{vT}, 1280, v{vT}")
    a(f"v_and_b32 v{vT+1}, 3, v{vLane}")
    a(f"v_lshl_add_u32 v{vT}, v{vT+1}, 4, v{vT}")
    a(f"s_mul_i32 s{sT}, s{sCG}, 320")
    a(f"s_lshl_b32 s{sT2}, s{sW}, 6")
    a(f"s_add_u32 s{sT}, s{sT}, s{sT2}")
    a(f"v_add_u32 v{vVo}, s{sT}, v{vT}")
    a(f"s_mul_i32 s{sLds}, s{sW}, {RW}")
    a(f"s_add_u32 s{sLds}, s{sLds}, {RING}")
    a(f"s_mul_i32 s{sSoff}, s{sRho}, {5*20480}")
    def wload(k):
        d = WS_ + 4*(k % DEPTH)
        a(f"s_add_u32 s{sT}, s{sSoff}, 20480")
        a(f"buffer_load_dwordx4 {vr(d,4)}, v{vVo}, s[{R_B}:{R_B+3}], s{sSoff} offen")
        a(f"s_cmp_eq_u32 s{sT}, {40*20480}")
        a(f"s_cselect_b32 s{sSoff}, 0, s{sT}")
    NW0 = OPT.get("NW0", 8)
    for k in range(NW0): wload(k)
    tr_addr(a, vTr, vTr2, 64, 8, 4, sLds, vT)
    a(f"v_add_u32 v{vWst}, s{sLds}, v{vX16}")
    a(f"s_waitcnt vmcnt({NW0})")
    a(f"s_mov_b32 s{sTag}, 0")
    a(f"s_branch A_xok")
    a.label(L_nq)
    a(f"s_waitcnt vmcnt(14)")
    a(f"s_cmp_lt_u32 s{sCG}, 2")
    a(f"s_cbranch_scc1 A_xok2")
    a(f"s_waitcnt vmcnt(0)")
    a.label("A_xok2")
    a(f"v_mov_b32 v{vT}, 0")
    a(f"global_load_dword v{vTag}, v{vT}, s[{S_DBG}:{S_DBG+1}] sc1")
    a.label("A_xok")
    st.mark("xwait")
    a(f"v_mov_b32 v{vOne}, 0x3f803f80")
    a(f"v_mov_b32 v{vSelLo}, 0x00003f80")
    a(f"v_mov_b32 v{vSelHi}, 0x3f800000")
    for i in range(4): a(f"v_mov_b32 v{TMP+i}, 0")
    for i in range(20):
        a(f"v_dot2c_f32_bf16 v{TMP+(i%2)}, v{X+i}, v{vOne}")
        a(f"v_dot2c_f32_bf16 v{TMP+2+(i%2)}, v{X+i}, v{X+i}")
    a(f"v_lshrrev_b32 v{vT}, 4, v{vLane}")
    a(f"s_lshl_b32 s{sT}, s{sW}, 2")
    a(f"v_add_u32 v{vT}, s{sT}, v{vT}")
    a(f"v_and_b32 v{vT+1}, 1, v{vLane}")
    a(f"v_mul_u32_u24 v{vT+1}, {XH}, v{vT+1}")
    a(f"v_lshl_add_u32 v{vT+1}, v{vT}, 4, v{vT+1}")
    a(f"v_add_f32 v{vSum}, v{TMP}, v{TMP+1}")
    a(f"v_add_f32 v{vSq}, v{TMP+2}, v{TMP+3}")
    a(f"v_bfe_u32 v{vT+2}, v{vLane}, 1, 3")
    a(f"s_mul_i32 s{sT}, s{sRho}, 5")
    a(f"s_sub_u32 s{sT}, 40, s{sT}")
    for ror in (8, 4, 2, 1):
        a(f"v_add_f32_dpp v{vSum}, v{vSum}, v{vSum} row_ror:{ror} row_mask:0xf bank_mask:0xf")
        a(f"v_add_f32_dpp v{vSq}, v{vSq}, v{vSq} row_ror:{ror} row_mask:0xf bank_mask:0xf")
        if ror != 1: a.nop(1)
    a(f"v_add_u32 v{vT+2}, s{sT}, v{vT+2}")
    inv = f32bits(1.0/640)
    a(f"v_mul_f32 v{vM}, {inv}, v{vSum}")
    a(f"v_mul_f32 v{TMP+1}, {inv}, v{vSq}")
    a(f"v_fma_f32 v{TMP+1}, -v{vM}, v{vM}, v{TMP+1}")
    a(f"v_max_f32 v{TMP+1}, 0, v{TMP+1}")
    bf16_round(a, TMP+1, TMP+1)
    bf16_round(a, vM, vM)
    a(f"v_add_f32 v{TMP+1}, {f32bits(1e-5)}, v{TMP+1}")
    a(f"v_sub_f32 v{vM}, 0, v{vM}")
    bf16_round(a, TMP+1, TMP+1)
    a(f"v_sqrt_f32 v{vSum}, v{TMP+1}")
    for base in range(0, 20, 8):
        g = min(8, 20-base)
        for i in range(g):
            a(f"v_dot2_f32_bf16 v{TMP+2*i}, v{X+base+i}, v{vSelLo}, v{vM}")
            a(f"v_dot2_f32_bf16 v{TMP+2*i+1}, v{X+base+i}, v{vSelHi}, v{vM}")
        if base == 0:
            bf16_round(a, vSum, vSum)
            a(f"v_rcp_f32 v{vR}, v{vSum}")
        else:
            a.nop(3)
        for i in range(g):
            a(f"v_cvt_pk_bf16_f32 v{X+base+i}, v{TMP+2*i}, v{TMP+2*i+1}")
    a(f"v_lshlrev_b32 v{vT+3}, 2, v{vT}")
    a(f"ds_write_b32 v{vT+3}, v{vR} offset:{RBUF}")
    for i in range(5):
        if i: a(f"v_add_u32 v{vT+2}, 8, v{vT+2}")
        a(f"v_subrev_u32 v{vT+3}, 40, v{vT+2}")
        a(f"v_min_u32 v{vT+3}, v{vT+3}, v{vT+2}")
        a(f"v_mul_u32_u24 v{vT+3}, {XP}, v{vT+3}")
        a(f"v_add_u32 v{vT+3}, v{vT+3}, v{vT+1}")
        a(f"ds_write_b128 v{vT+3}, {vr(X+4*i,4)} offset:{XB}")
    a(f"v_mul_u32_u24 v{vXa}, {XH}, v{vH}")
    a(f"v_lshl_add_u32 v{vXa}, v{vN}, 4, v{vXa}")
    a(f"s_cmp_ge_u32 s{sW}, 5")
    a(f"s_cbranch_scc1 A_ln5")
    for k in range(NW0, 10): wload(k)
    a(f"s_cmp_eq_u32 s{sW}, 4")
    a(f"s_cbranch_scc1 A_lnb")
    for k in range(10, DEPTH): wload(k)
    a(f"s_branch A_lnb")
    a.label("A_ln5")
    a(f"v_mov_b32 v{vT}, {LFL}")
    for i in range(4): a(f"v_mov_b32 v{TMP+i}, 0")
    a(f"ds_write_b128 v{vT}, v[{TMP}:{TMP+3}]")
    a(f"ds_write_b128 v{vT}, v[{TMP}:{TMP+3}] offset:{LFL2-LFL}")
    a("s_waitcnt vmcnt(0)")
    a(f"v_readfirstlane_b32 s{sTag}, v{vTag}")
    a.label("A_lnb")
    a("s_waitcnt lgkmcnt(0)")
    a("s_barrier")
    a(f"v_lshlrev_b32 v{vT}, 2, v{vN}")
    a(f"ds_read_b32 v{vR}, v{vT} offset:{RBUF}")
    st.mark("LN")
    if OPT.get("diag"):
        a(f"s_cmp_lg_u32 s{sW}, 0"); Ld = a.newlabel("dg"); a(f"s_cbranch_scc1 {Ld}"); diag(a, 4, va=62); diag(a, 5, neg=True, va=62); a.label(Ld)
    def ensure_tag(lab):
        a(f"s_cmp_lg_u32 s{sTag}, 0")
        a(f"s_cbranch_scc1 {lab}_have")
        get_tag(a, vT, lab)
        a.label(f"{lab}_have")
    L_kvp, L_exp, L_bar1 = "A_kvp", "A_exp", "A_bar1"
    a(f"s_cmp_ge_u32 s{sW}, 5")
    a(f"s_cbranch_scc1 {L_kvp}")
    a(f"s_cmp_eq_u32 s{sW}, 4")
    a(f"s_cbranch_scc1 A_job4")
    if OPT.get("noq"): a(f"s_branch {L_bar1}")
    def pipe_gemm(nsteps, wr, rd, need_vm, refill, cin0):
        for k in range(5):
            if k < nsteps:
                need_vm(k, -5 + k)
                wr(k)
            if 0 <= k - 2 < nsteps: rd(k - 2)
        for s_ in range(nsteps):
            n_ops = 0
            if s_ + 5 < nsteps:
                need_vm(s_ + 5, s_)
                wr(s_ + 5)
            if s_ + 3 < nsteps: rd(s_ + 3)
            for t in range(s_ + 1, s_ + 4):
                if t + 2 < nsteps: n_ops += 1
                if t < nsteps: n_ops += 3
            a(f"s_waitcnt lgkmcnt({n_ops})")
            f = FB + 8*(s_ % 4)
            cin = cin0 if s_ == 0 else vr(ACC, 16)
            a(f"v_mfma_f32_32x32x16_bf16 {vr(ACC,16)}, {vr(f,4)}, {vr(f+4,4)}, {cin}")
            refill(s_)
    def q_wr(k): a(f"ds_write_b128 v{vWst}, {vr(WS_+4*(k % DEPTH),4)} offset:{(k % NSTG)*1024}")
    def q_rd(k):
        f = FB + 8*(k % 4)
        a(f"ds_read_b64_tr_b16 v[{f}:{f+1}], v{vTr} offset:{(k % NSTG)*1024}")
        a(f"ds_read_b64_tr_b16 v[{f+2}:{f+3}], v{vTr2} offset:{(k % NSTG)*1024}")
        a(f"ds_read_b128 {vr(f+4,4)}, v{vXa} offset:{XB + k*XP}")
    def q_vm(k, s_now):
        issued = DEPTH + max(0, min(s_now, 40 - DEPTH + QOFF) - QOFF) if s_now > 0 else DEPTH
        issued = min(issued, 40)
        a(f"s_waitcnt vmcnt({issued - 1 - k})")
    QOFF = 0
    def q_refill(s_):
        if s_ + DEPTH < 40: wload(s_ + DEPTH)
    pipe_gemm(40, q_wr, q_rd, q_vm, q_refill, "0")
    st.mark("gemm")
    a.nop(12)
    a(f"v_mul_f32 v{vT}, {f32bits(QSCALE)}, v{vR}")
    for j in range(16): a(f"v_mul_f32 v{ACC+j}, v{ACC+j}, v{vT}")
    for k in range(8): a(f"v_cvt_pk_bf16_f32 v{TMP+k}, v{ACC+2*k}, v{ACC+2*k+1}")
    a(f"s_branch {L_bar1}")

    JW = WS_ + 20
    def job_loads():
        srd(a, R_B, S_WQ, S_WQ+1, 640*640*2)
        a(f"v_lshrrev_b32 v{vT}, 2, v{vLane}")
        a(f"v_mul_u32_u24 v{vT}, 1280, v{vT}")
        a(f"v_and_b32 v{vT+1}, 3, v{vLane}")
        a(f"v_lshl_add_u32 v{vT}, v{vT+1}, 4, v{vT}")
        a(f"s_mul_i32 s{sT}, s{sCG}, 320")
        a(f"s_add_u32 s{sT}, s{sT}, 256")
        a(f"v_add_u32 v{vT}, s{sT}, v{vT}")
        a(f"s_sub_u32 s{sT}, s{sW}, 4")
        a(f"s_mul_i32 s{sT}, s{sT}, 10")
        a(f"s_mul_i32 s{sT2}, s{sRho}, 5")
        a(f"s_add_u32 s{sT}, s{sT}, s{sT2}")
        a(f"s_cmp_ge_u32 s{sT}, 40")
        a(f"s_cselect_b32 s{sT2}, 40, 0")
        a(f"s_sub_u32 s{sT}, s{sT}, s{sT2}")
        a(f"s_mul_i32 s{sSoff}, s{sT}, 20480")
        for k in range(10):
            a(f"s_add_u32 s{sT}, s{sSoff}, 20480")
            a(f"buffer_load_dwordx4 {vr(JW+4*k,4)}, v{vT}, s[{R_B}:{R_B+3}], s{sSoff} offen")
            a(f"s_cmp_eq_u32 s{sT}, {40*20480}")
            a(f"s_cselect_b32 s{sSoff}, 0, s{sT}")
    def job_run(raw, vm_after):
        tr_addr(a, vTr, vTr2, 64, 8, 4, sLds, vT)
        a(f"v_add_u32 v{vWst}, s{sLds}, v{vX16}")
        a(f"s_sub_u32 s{sT}, s{sW}, 4")
        a(f"s_mul_i32 s{sT}, s{sT}, {10*XP}")
        a(f"v_add_u32 v{vVo}, s{sT}, v{vXa}")
        def j_wr(k): a(f"ds_write_b128 v{vWst}, {vr(raw+4*k,4)} offset:{(k % NSTG)*1024}")
        def j_rd(k):
            f = FB + 8*(k % 4)
            a(f"ds_read_b64_tr_b16 v[{f}:{f+1}], v{vTr} offset:{(k % NSTG)*1024}")
            a(f"ds_read_b64_tr_b16 v[{f+2}:{f+3}], v{vTr2} offset:{(k % NSTG)*1024}")
            a(f"ds_read_b128 {vr(f+4,4)}, v{vVo} offset:{k*XP}")
        def j_vm(k, s_): a(f"s_waitcnt vmcnt({9 - k + vm_after})")
        pipe_gemm(10, j_wr, j_rd, j_vm, lambda s_: None, "0")
        a("s_waitcnt lgkmcnt(0)")
        a.nop(12)
    def job_publish():
        Lp5, Lpd = a.newlabel("A_jp5"), a.newlabel("A_jpd")
        a(f"s_cmp_eq_u32 s{sW}, 5")
        a(f"s_cbranch_scc1 {Lp5}")
        for q in range(3): a(f"ds_write_b128 v{vWst}, {vr(ACC+4*q,4)} offset:{q*1024}")
        a(f"s_sub_u32 s{sT}, s{sW}, 6")
        a(f"s_lshl_b32 s{sT}, s{sT}, 10")
        a(f"s_add_u32 s{sT}, s{sT}, {T4F}")
        a(f"v_add_u32 v{vT}, s{sT}, v{vX16}")
        a(f"ds_write_b128 v{vT}, {vr(ACC+12,4)}")
        a(f"s_branch {Lpd}")
        a.label(Lp5)
        a(f"v_add_u32 v{vT}, {KVX+4096}, v{vX16}")
        for q in range(4): a(f"ds_write_b128 v{vT}, {vr(ACC+4*q,4)} offset:{q*1024}")
        a.label(Lpd)
        a(f"s_sub_u32 s{sT}, s{sW}, 5")
        a(f"s_lshl_b32 s{sT}, s{sT}, 2")
        a(f"s_add_u32 s{sT}, s{sT}, {LFL2}")
        a(f"v_mov_b32 v{vT}, s{sT}")
        a(f"v_mov_b32 v{vT+1}, 1")
        a(f"ds_write_b32 v{vT}, v{vT+1}")
    a.label("A_job4")
    job_run(WS_, 0)
    a(f"v_mov_b32 v{vT}, {LFL2}")
    a(f"s_mov_b32 s{sT3}, {SPIN_MAX}")
    a.label("A_j4spin")
    a(f"ds_read_b96 v[{vT+2}:{vT+4}], v{vT}")
    a("s_waitcnt lgkmcnt(0)")
    a(f"v_and_b32 v{vT+2}, v{vT+2}, v{vT+3}")
    a(f"v_and_b32 v{vT+2}, v{vT+2}, v{vT+4}")
    a("s_nop 0")
    a(f"v_readfirstlane_b32 s{sT}, v{vT+2}")
    a(f"s_sub_u32 s{sT3}, s{sT3}, 1")
    a(f"s_cmp_eq_u32 s{sT3}, 0")
    a(f"s_cbranch_scc1 A_j4spin_done")
    a(f"s_cmp_eq_u32 s{sT}, 1")
    a(f"s_cbranch_scc1 A_j4spin_done")
    a("s_sleep 1")
    a(f"s_branch A_j4spin")
    a.label("A_j4spin_done")
    a(f"v_add_u32 v{vT}, {KVX+4096}, v{vX16}")
    a(f"v_add_u32 v{vT+1}, {KSTG+3072}, v{vX16}")
    a(f"v_add_u32 v{vT+2}, {T4F}, v{vX16}")
    for q in range(4): a(f"ds_read_b128 {vr(64+4*q,4)}, v{vT} offset:{q*1024}")
    for p_ in range(2):
        for q in range(3): a(f"ds_read_b128 {vr(80+16*p_+4*q,4)}, v{vT+1} offset:{p_*3072 + q*1024}")
        a(f"ds_read_b128 {vr(80+16*p_+12,4)}, v{vT+2} offset:{p_*1024}")
    a("s_waitcnt lgkmcnt(0)")
    for j in range(16): a(f"v_add_f32 v{64+j}, v{64+j}, v{80+j}")
    for j in range(16): a(f"v_add_f32 v{ACC+j}, v{ACC+j}, v{96+j}")
    for j in range(16): a(f"v_add_f32 v{ACC+j}, v{ACC+j}, v{64+j}")
    st.mark("job4")
    a(f"v_mul_f32 v{vT}, {f32bits(QSCALE)}, v{vR}")
    for j in range(16): a(f"v_mul_f32 v{ACC+j}, v{ACC+j}, v{vT}")
    for k in range(8): a(f"v_cvt_pk_bf16_f32 v{TMP+k}, v{ACC+2*k}, v{ACC+2*k+1}")
    a(f"s_branch {L_bar1}")
    def export_d():
        a(f"s_mul_i32 s{sT}, s{sCG}, 2")
        a(f"s_add_u32 s{sT}, s{sT}, s{sW}")
        a(f"s_sub_u32 s{sT}, s{sT}, 6")
        a(f"s_sub_u32 s{sT2}, s{sT}, s{sRho}")
        a(f"s_and_b32 s{sT2}, s{sT2}, 7")
        a(f"s_mul_i32 s{sT2}, s{sT2}, {5*XP}")
        a(f"v_add_u32 v{vT}, s{sT2}, v{vXa}")
        for i in range(5):
            a(f"ds_read_b128 {vr(X+4*i,4)}, v{vT} offset:{XB + XP*i}")
        a(f"s_mul_i32 s{sT2}, s{sRB}, 40")
        a(f"s_mul_i32 s{sExp}, s{sT}, 5")
        a(f"s_add_u32 s{sT2}, s{sT2}, s{sExp}")
        a(f"s_lshl_b32 s{sT2}, s{sT2}, 10")
        if WS_XF: a(f"s_add_u32 s{sT2}, s{sT2}, {WS_XF}")
        a(f"s_lshl_b32 s{sFD}, s{sRB}, 3")
        a(f"s_add_u32 s{sFD}, s{sFD}, s{sT}")
        a(f"v_add_u32 v{vT+1}, 4096, v{vX16}")
        a("s_waitcnt lgkmcnt(0)")
        for i in range(4):
            a(f"buffer_store_dwordx4 {vr(X+4*i,4)}, v{vX16}, s[{R_WS}:{R_WS+3}], s{sT2} offen offset:{1024*i} sc1")
        a(f"buffer_store_dwordx4 {vr(X+16,4)}, v{vT+1}, s[{R_WS}:{R_WS+3}], s{sT2} offen sc1")
        L_nor = "A_nor"
        a(f"s_cmp_lg_u32 s{sT}, 0")
        a(f"s_cbranch_scc1 {L_nor}")
        a(f"s_lshl_b32 s{sT2}, s{sRB}, 7")
        a(f"s_add_u32 s{sT2}, s{sT2}, {WS_R}")
        a(f"v_lshlrev_b32 v{vT}, 2, v{vN}")
        a(f"buffer_store_dword v{vR}, v{vT}, s[{R_WS}:{R_WS+3}], s{sT2} offen sc1")
        a.label(L_nor)
    a.label(L_kvp)
    a("s_setprio 3")
    if OPT.get("expfirst", 0):
        a(f"s_cmp_lt_u32 s{sW}, 6")
        a(f"s_cbranch_scc1 A_noexp")
        export_d()
        a.label("A_noexp")
    a(f"s_cmp_ge_u32 s{sCG}, 2")
    a(f"s_cbranch_scc1 A_kvp_skip")
    a(f"s_sub_u32 s{sT}, s{sW}, 5")
    a(f"s_mul_i32 s{sLds}, s{sT}, 3072")
    a(f"s_add_u32 s{sLds}, s{sLds}, {KSTG}")
    tr_addr(a, vTr, vTr2, 40, 8, 4, sLds, vT)
    a(f"v_add_u32 v{vWst}, s{sLds}, v{vX16}")
    a(f"s_mul_i32 s{sT}, s{sStep}, {XP}")
    a(f"v_add_u32 v{vVo}, s{sT}, v{vXa}")
    a(f"v_add_u32 v{vT+4}, {13*XP}, v{vVo}")
    a(f"s_cmp_eq_u32 s{sW}, 5")
    a(f"s_cbranch_scc1 A_kv13")
    for i in range(4): a(f"v_mov_b32 v{WS_+52+i}, 0")
    a(f"v_mov_b32 v{vT+4}, v{vXa}")
    a.label("A_kv13")
    def k_wr(k): a(f"ds_write_b128 v{vWst}, {vr(WS_+4*k,4)} offset:{(k % NSTG)*1024}")
    def k_rd(k):
        f = FB + 8*(k % 4)
        a(f"ds_read_b64_tr_b16 v[{f}:{f+1}], v{vTr} offset:{(k % NSTG)*1024}")
        a(f"ds_read_b64_tr_b16 v[{f+2}:{f+3}], v{vTr2} offset:{(k % NSTG)*1024}")
        if k == 13: a(f"ds_read_b128 {vr(f+4,4)}, v{vT+4}")
        else: a(f"ds_read_b128 {vr(f+4,4)}, v{vVo} offset:{k*XP}")
    pipe_gemm(14, k_wr, k_rd, lambda k, s_: None, lambda s_: None, "0")
    a("s_waitcnt lgkmcnt(0)")
    job_loads()
    a(f"s_cmp_eq_u32 s{sW}, 5")
    a(f"s_cbranch_scc1 A_kv5")
    a(f"s_sub_u32 s{sT}, s{sW}, 6")
    a(f"s_lshl_b32 s{sT}, s{sT}, 12")
    a(f"s_add_u32 s{sT}, s{sT}, {KVX}")
    a(f"v_add_u32 v{vT}, s{sT}, v{vX16}")
    for q in range(4):
        a(f"ds_write_b128 v{vT}, {vr(ACC+4*q,4)} offset:{q*1024}")
    a(f"s_sub_u32 s{sT}, s{sW}, 6")
    a(f"s_lshl_b32 s{sT}, s{sT}, 2")
    a(f"s_add_u32 s{sT}, s{sT}, {LFL}")
    a(f"v_mov_b32 v{vT}, s{sT}")
    a(f"v_mov_b32 v{vT+1}, 1")
    a(f"ds_write_b32 v{vT}, v{vT+1}")
    a(f"s_branch A_kvp_done")
    a.label("A_kv5")
    a(f"v_mov_b32 v{vT}, {LFL}")
    a(f"s_mov_b32 s{sT3}, {SPIN_MAX}")
    a.label("A_kvspin")
    a(f"ds_read_b64 v[{vT+2}:{vT+3}], v{vT}")
    a("s_waitcnt lgkmcnt(0)")
    a(f"v_and_b32 v{vT+2}, v{vT+2}, v{vT+3}")
    a("s_nop 0")
    a(f"v_readfirstlane_b32 s{sT}, v{vT+2}")
    a(f"s_sub_u32 s{sT3}, s{sT3}, 1")
    a(f"s_cmp_eq_u32 s{sT3}, 0")
    a(f"s_cbranch_scc1 A_kvspin_done")
    a(f"s_cmp_eq_u32 s{sT}, 1")
    a(f"s_cbranch_scc1 A_kvspin_done")
    a("s_sleep 1")
    a(f"s_branch A_kvspin")
    a.label("A_kvspin_done")
    a(f"v_add_u32 v{vT}, {KVX}, v{vX16}")
    for p_ in range(2):
        for q in range(4):
            a(f"ds_read_b128 {vr(FB+16*p_+4*q,4)}, v{vT} offset:{p_*4096 + q*1024}")
    a("s_waitcnt lgkmcnt(0)")
    for j in range(16):
        a(f"v_add_f32 v{FB+j}, v{FB+j}, v{FB+16+j}")
    for j in range(16):
        a(f"v_add_f32 v{ACC+j}, v{ACC+j}, v{FB+j}")
    for j in range(16): a(f"v_mul_f32 v{ACC+j}, v{ACC+j}, v{vR}")
    a(f"v_cmp_eq_u32 vcc, 1, v{vH}")
    a(f"v_mov_b32 v{vT}, 1.0")
    a(f"v_mov_b32 v{vT+1}, 0")
    a(f"v_cndmask_b32 v{ACC+8}, v{ACC+8}, v{vT}, vcc")
    for j in range(9, 12): a(f"v_cndmask_b32 v{ACC+j}, v{ACC+j}, v{vT+1}, vcc")
    for j in range(12, 16): a(f"v_mov_b32 v{ACC+j}, 0")
    for k in range(8): a(f"v_cvt_pk_bf16_f32 v{TMP+k}, v{ACC+2*k}, v{ACC+2*k+1}")
    a(f"s_mul_i32 s{sT}, s{sRB}, {TS}")
    a(f"s_add_u32 s{sT}, s{sT}, {WS_KV}")
    L_v = "A_v"; L_kvdone = "A_kvdone"
    a(f"s_cmp_eq_u32 s{sCG}, 1")
    a(f"s_cbranch_scc1 {L_v}")
    a(f"buffer_store_dwordx4 {vr(TMP,4)}, v{vX16}, s[{R_WS}:{R_WS+3}], s{sT} offen sc1")
    a(f"v_lshlrev_b32 v{vT}, 3, v{vLane}")
    a(f"s_mov_b32 exec_hi, 0")
    a(f"buffer_store_dwordx2 v[{TMP+4}:{TMP+5}], v{vT}, s[{R_WS}:{R_WS+3}], s{sT} offen offset:1024 sc1")
    a(f"s_mov_b32 exec_hi, -1")
    a(f"s_branch {L_kvdone}")
    a.label(L_v)
    a(f"s_mov_b32 s{sLds}, {KVX}")
    a(f"v_lshlrev_b32 v{vT}, 6, v{vN}")
    a(f"v_lshl_add_u32 v{vT}, v{vH}, 3, v{vT}")
    a(f"v_add_u32 v{vT}, s{sLds}, v{vT}")
    for q in range(4):
        a(f"ds_write_b64 v{vT}, v[{TMP+2*q}:{TMP+2*q+1}] offset:{16*q}")
    tr_addr(a, vTr, None, 64, 4, 8, sLds, vT+1)
    for u in range(2):
        a(f"ds_read_b64_tr_b16 v[{TMP+8+4*u}:{TMP+9+4*u}], v{vTr} offset:{u*1024}")
        a(f"ds_read_b64_tr_b16 v[{TMP+10+4*u}:{TMP+11+4*u}], v{vTr} offset:{u*1024 + 512}")
    a(f"v_mul_u32_u24 v{vT}, {VH}, v{vH}")
    a(f"v_lshl_add_u32 v{vT}, v{vN}, 4, v{vT}")
    a(f"s_mov_b32 exec_lo, 0x3fffff")
    a(f"s_mov_b32 exec_hi, 0x3fffff")
    a("s_waitcnt lgkmcnt(0)")
    a(f"buffer_store_dwordx4 {vr(TMP+8,4)}, v{vT}, s[{R_WS}:{R_WS+3}], s{sT} offen offset:1280 sc1")
    a(f"buffer_store_dwordx4 {vr(TMP+12,4)}, v{vT}, s[{R_WS}:{R_WS+3}], s{sT} offen offset:{1280+VF} sc1")
    a(f"s_mov_b64 exec, -1")
    a.label(L_kvdone)
    ensure_tag("A5")
    a("s_waitcnt vmcnt(0)")
    st.mark("k5:drain")
    a(f"s_lshl_b32 s{sT}, s{sRB}, 1")
    a(f"s_add_u32 s{sT}, s{sT}, s{sCG}")
    set_flag(a, vT, sT, FL_KV)
    a(f"s_mov_b32 s{sLds}, {KSTG}")
    job_run(JW, 1)
    job_publish()
    a(f"s_branch {L_bar1}")
    a.label("A_kvp_skip")
    job_loads()
    a(f"s_cmp_lg_u32 s{sW}, 5")
    a(f"s_cbranch_scc1 A_kvp_done")
    a(f"s_mov_b32 s{sLds}, {KSTG}")
    job_run(JW, 0)
    job_publish()
    a(f"s_branch {L_bar1}")
    a.label("A_kvp_done")
    if not OPT.get("expfirst", 0): export_d()
    ensure_tag("A6")
    a(f"s_waitcnt vmcnt({10 if OPT.get('expfirst', 0) else 0})")
    st.mark("x:drain")
    set_flag(a, vT, sFD, FL_D)
    a(f"s_sub_u32 s{sT}, s{sW}, 5")
    a(f"s_mul_i32 s{sLds}, s{sT}, 3072")
    a(f"s_add_u32 s{sLds}, s{sLds}, {KSTG}")
    job_run(JW, 1)
    job_publish()
    a.label(L_bar1)
    a("s_waitcnt vmcnt(0)")
    a.label("A_bar1_nowait")
    a("s_setprio 0")
    a("s_waitcnt lgkmcnt(0)")
    a("s_barrier")
    st.mark("bar0")
    vA16 = vX16
    aK1, aK2, aV, nK1, nK2, nV = 64, 65, 66, 67, 68, 69
    bK2, bV = 70, 71
    CN = 80
    S = [16, 32]
    O = 48
    P = 96
    Q1, Q2 = 104, 108
    K1, K2 = 112, 116
    V1, V2 = 120, 124
    vM2 = 110
    sSoffK, sLdsW, sSlot, sCk = 58, 59, 60, 61
    vFl, vFlo = 72, 73
    srd(a, R_A, S_WS, S_WS+1, KVB, WS_KV)
    a(f"s_lshl_b32 s{sLdsW}, s{sW}, 10")
    a(f"v_lshlrev_b32 v{bK2}, 3, v{vN}")
    a(f"v_add_u32 v{bK2}, 1024, v{bK2}")
    a(f"v_mov_b32 v{vT}, {1280 + 21*16}")
    a(f"v_cmp_eq_u32 vcc, 1, v{vH}")
    a(f"v_min_u32 v{bV}, 21, v{vN}")
    a(f"v_lshlrev_b32 v{bV}, 4, v{bV}")
    a(f"v_cndmask_b32 v{bK2}, v{bK2}, v{vT}, vcc")
    a(f"v_mul_u32_u24 v{vT}, {VH}, v{vH}")
    a(f"v_add3_u32 v{bV}, v{bV}, v{vT}, 0")
    a(f"v_add_u32 v{bV}, 1280, v{bV}")
    def dma_chunk(slot_s):
        Ls = a.newlabel("A_dm")
        a(f"s_cmp_ge_u32 s{sW}, 4")
        a(f"s_cbranch_scc1 {Ls}")
        a(f"s_add_u32 s{sT}, s{slot_s}, s{sLdsW}")
        a(f"s_add_u32 s{sT2}, s{sSoffK}, s{sLdsW}")
        for i in range(6):
            if i == 5:
                a(f"s_cmp_lg_u32 s{sW}, 0")
                a(f"s_cbranch_scc1 {Ls}")
            a(f"s_add_u32 m0, s{sT}, {4096*i}")
            a(f"s_add_u32 s{sT3}, s{sT2}, {4096*i}")
            a(f"buffer_load_dwordx4 v{vA16}, s[{R_A}:{R_A+3}], s{sT3} offen sc1 lds")
        a.label(Ls)
        a(f"s_add_u32 s{sSoffK}, s{sSoffK}, {CH}")
        a(f"s_cmp_eq_u32 s{sSoffK}, {8*CH}")
        a(f"s_cselect_b32 s{sSoffK}, 0, s{sSoffK}")
        a(f"s_add_u32 s{sCk}, s{sCk}, 1")
        a(f"s_and_b32 s{sCk}, s{sCk}, 7")
    L_noqw = "A_noqw"
    a(f"v_mul_u32_u24 v{vT}, {QP}, v{vN}")
    a(f"v_add_u32 v{vT}, {QBUF}, v{vT}")
    a(f"s_cmp_ge_u32 s{sW}, 5")
    a(f"s_cbranch_scc1 {L_noqw}")
    a(f"s_lshl_b32 s{sT}, s{sW}, 6")
    a(f"v_lshl_add_u32 v{vT+1}, v{vH}, 3, v{vT}")
    a(f"v_add_u32 v{vT+1}, s{sT}, v{vT+1}")
    for q in range(4):
        a(f"ds_write_b64 v{vT+1}, v[{TMP+2*q}:{TMP+2*q+1}] offset:{16*q}")
    a.label(L_noqw)
    a("s_waitcnt lgkmcnt(0)")
    a("s_barrier")
    a(f"s_mul_i32 s{sT}, s{sW}, 40")
    a(f"v_add_u32 v{vT}, s{sT}, v{vT}")
    a(f"v_lshl_add_u32 v{vT+1}, v{vH}, 3, v{vT}")
    a(f"ds_read_b64 v[{Q1}:{Q1+1}], v{vT+1}")
    a(f"ds_read_b64 v[{Q1+2}:{Q1+3}], v{vT+1} offset:16")
    a(f"ds_read_b64 v[{Q2}:{Q2+1}], v{vT} offset:32")
    a(f"v_mov_b32 v{aK1}, v{vA16}")
    a(f"v_mov_b32 v{aK2}, v{bK2}")
    a(f"v_mov_b32 v{aV}, v{bV}")
    a(f"v_add_u32 v{nK1}, {CH}, v{vA16}")
    a(f"v_add_u32 v{nK2}, {CH}, v{bK2}")
    a(f"v_add_u32 v{nV}, {CH}, v{bV}")
    for i in range(16): a(f"v_mov_b32 v{O+i}, 0")
    a(f"v_cmp_eq_u32 vcc, 1, v{vH}")
    a(f"v_mov_b32 v{vT}, 0")
    a("s_waitcnt lgkmcnt(0)")
    a(f"v_cndmask_b32 v{Q2}, v{Q2}, v{vT}, vcc")
    a(f"v_cndmask_b32 v{Q2+1}, v{Q2+1}, v{vT}, vcc")
    a(f"s_lshr_b32 s{sCk}, s{sRB}, 3")
    a(f"s_mul_i32 s{sSoffK}, s{sCk}, {CH}")
    def check_chunk(lab):
        a(f"s_cmp_lg_u32 s{sW}, 7")
        a(f"s_cbranch_scc1 {lab}_skip")
        a(f"s_lshl_b32 s{sT}, s{sCk}, 4")
        poll_flags(a, vT+2, lab, sT, 16, FL_KV, sleep=OPT.get("kvsleep", 1))
        a.label(f"{lab}_skip")
    check_chunk("A7a")
    a("s_barrier")
    st.mark("bar1")
    if OPT.get("diag"):
        a(f"s_cmp_lg_u32 s{sW}, 0"); Ld = a.newlabel("dg"); a(f"s_cbranch_scc1 {Ld}"); diag(a, 6); diag(a, 7, neg=True); a.label(Ld)
    a(f"s_mov_b32 s{sSlot}, 0")
    dma_chunk(sSlot)
    a(f"v_min_u32 v{vFlo}, 15, v{vLane}")
    a(f"v_lshlrev_b32 v{vFlo}, 7, v{vFlo}")
    def rd(dst, n, t, off, cur, nxt, op):
        v_ = cur if t < 8 else nxt
        a(f"{op} {vr(dst,n)}, v{v_} offset:{(t % 8)*TS + off}")
    def rd_K1(t): rd(K1, 4, t, 0, aK1, nK1, "ds_read_b128")
    def rd_K2(t): rd(K2, 2, t, 0, aK2, nK2, "ds_read_b64")
    def rd_V1(t): rd(V1, 4, t, 0, aV, nV, "ds_read_b128")
    def rd_V2(t): rd(V2, 4, t, VF, aV, nV, "ds_read_b128")
    def qk1(dst, c="0"): a(f"v_mfma_f32_32x32x16_bf16 {vr(dst,16)}, {vr(K1,4)}, {vr(Q1,4)}, {c}")
    def qk2(dst): a(f"v_mfma_f32_32x32x8_bf16 {vr(dst,16)}, {vr(K2,2)}, {vr(Q2,2)}, {vr(dst,16)}")
    CNR = vr(CN, 16)
    a("s_waitcnt vmcnt(0)")
    a("s_barrier")
    rd_K1(0); rd_K2(0)
    def set_m(delta):
        a(f"v_mov_b32 v{vT}, v{vM2}")
        a.nop(2)
        a(f"v_permlane32_swap_b32 v{vM2}, v{vT}")
        a.nop(1)
        a(f"v_max_f32 v{vM2}, v{vM2}, v{vT}")
        if delta: a(f"v_add_f32 v{vM2}, {f32bits(delta)}, v{vM2}")
        for i in range(16): a(f"v_sub_f32 v{CN+i}, 0, v{vM2}")
    a(f"v_mov_b32 v{vM2}, 0xff800000")
    a("s_waitcnt lgkmcnt(0)")
    qk1(S[0]); qk2(S[0])
    rd_K1(1); rd_K2(1)
    a("s_waitcnt lgkmcnt(0)")
    qk1(S[1]); qk2(S[1])
    rd_K1(0); rd_K2(0)
    for i in range(4, 8): a(f"v_mov_b32 v{P+i}, 0")
    for i in range(4): a(f"v_mov_b32 v{V2+i}, 0")
    a.nop(4)
    for i in range(8):
        a(f"v_max3_f32 v{vM2}, v{S[0]+2*i}, v{S[0]+2*i+1}, v{vM2}")
    a.nop(4)
    for i in range(8):
        a(f"v_max3_f32 v{vM2}, v{S[1]+2*i}, v{S[1]+2*i+1}, v{vM2}")
    set_m(DELTA)
    a("s_waitcnt lgkmcnt(0)")
    a.nop(1)
    qk1(S[0], CNR); qk2(S[0])
    rd_K1(1); rd_K2(1); rd_V1(0)
    check_chunk("A7b")
    a("s_barrier")
    a(f"s_mov_b32 s{sSlot}, {CH}")
    dma_chunk(sSlot)
    a(f"s_mov_b32 s{sSlot}, {2*CH}")
    a.nop(8)
    st.mark("sample")
    a(f"s_setprio {OPT.get('pb', 0)}")
    if OPT.get("fair", 1):
        a(f"s_cmp_lt_u32 s{sW}, 4")
        a(f"s_cbranch_scc1 A_pr0")
        a(f"s_setprio {1 + OPT.get('pb', 0)}")
        a.label("A_pr0")
    a(f"s_mov_b32 s{sIt}, 0")
    L_loop = "A_loop"
    a(".p2align 6")
    a.label(L_loop)
    def e(cur, i): a(f"v_exp_f32 v{cur+i}, v{cur+i}")
    def p(cur, k): a(f"v_cvt_pk_bf16_f32 v{P+k}, v{cur+2*k}, v{cur+2*k+1}")
    for t in range(8):
        cur, nxt = S[t % 2], S[(t+1) % 2]
        if t == OPT.get("tdrop", 4) and OPT.get("fair", 1):
            a(f"s_setprio {OPT.get('pb', 0)}")
        if t == 0:
            a(f"s_cmp_lg_u32 s{sW}, 7")
            a(f"s_cbranch_scc1 A_nf0")
            a(f"s_lshl_b32 s{sT}, s{sCk}, 11")
            a(f"s_add_u32 s{sT}, s{sT}, {FL_KV*128}")
            a(f"buffer_load_dword v{vFl}, v{vFlo}, s[{R_FL}:{R_FL+3}], s{sT} offen sc1")
            a.label("A_nf0")
        if t == 6:
            a("s_waitcnt vmcnt(0)")
            a(f"s_cmp_lg_u32 s{sW}, 7")
            a(f"s_cbranch_scc1 A_nf6")
            a(f"v_cmp_ne_u32 vcc, s{sTag}, v{vFl}")
            a("s_nop 1")
            a(f"s_cmp_eq_u64 vcc, 0")
            a(f"s_cbranch_scc1 A_nf6")
            a(f"s_lshl_b32 s{sT}, s{sCk}, 4")
            poll_flags(a, vT+2, "A7c", sT, 16, FL_KV, sleep=1)
            a.label("A_nf6")
            a("s_barrier")
            if OPT.get("fair", 1):
                a(f"s_cmp_lt_u32 s{sW}, 4")
                a(f"s_cbranch_scc1 A_pr6")
                a(f"s_setprio {1 + OPT.get('pb', 0)}")
                a.label("A_pr6")
            dma_chunk(sSlot)
            a(f"s_add_u32 s{sSlot}, s{sSlot}, {CH}")
            a(f"s_cmp_eq_u32 s{sSlot}, {3*CH}")
            a(f"s_cselect_b32 s{sSlot}, 0, s{sSlot}")
        e(cur, 0); e(cur, 1)
        a("s_waitcnt lgkmcnt(2)")
        a(f"v_mfma_f32_32x32x16_bf16 {vr(O,16)}, {vr(V2,4)}, {vr(P+4,4)}, {vr(O,16)}")
        rd_V2(t)
        e(cur, 2); e(cur, 3); p(cur, 0); p(cur, 1)
        qk1(nxt, CNR)
        rd_K1(t+2)
        e(cur, 4); e(cur, 5); e(cur, 6); e(cur, 7); p(cur, 2); p(cur, 3)
        a("s_waitcnt lgkmcnt(2)")
        qk2(nxt)
        rd_K2(t+2)
        e(cur, 8); e(cur, 9); e(cur, 10); e(cur, 11); p(cur, 4); p(cur, 5)
        a(f"v_mfma_f32_32x32x16_bf16 {vr(O,16)}, {vr(V1,4)}, {vr(P,4)}, {vr(O,16)}")
        rd_V1(t+1)
        e(cur, 12); e(cur, 13); e(cur, 14); e(cur, 15); p(cur, 6); p(cur, 7)
    a(f"v_mov_b32 v{aK1}, v{nK1}")
    a(f"v_mov_b32 v{aK2}, v{nK2}")
    a(f"v_mov_b32 v{aV}, v{nV}")
    a(f"s_add_u32 s{sT}, s{sSlot}, {2*CH}")
    a(f"s_cmp_ge_u32 s{sT}, {3*CH}")
    a(f"s_cselect_b32 s{sT2}, {3*CH}, 0")
    a(f"s_sub_u32 s{sT}, s{sT}, s{sT2}")
    a(f"v_add_u32 v{nK1}, s{sT}, v{vA16}")
    a(f"v_add_u32 v{nK2}, s{sT}, v{bK2}")
    a(f"v_add_u32 v{nV}, s{sT}, v{bV}")
    a(f"s_add_u32 s{sIt}, s{sIt}, 1")
    a(f"s_cmp_lt_u32 s{sIt}, 8")
    a(f"s_cbranch_scc1 {L_loop}")
    a("s_waitcnt lgkmcnt(0)")
    a(f"v_mfma_f32_32x32x16_bf16 {vr(O,16)}, {vr(V2,4)}, {vr(P+4,4)}, {vr(O,16)}")
    a("s_setprio 0")
    st.mark("loop")
    if OPT.get("diag"):
        a(f"s_cmp_lg_u32 s{sW}, 0"); Ld = a.newlabel("dg"); a(f"s_cbranch_scc1 {Ld}"); diag(a, 8); diag(a, 9, neg=True); a.label(Ld)
    a.nop(16)
    L_fin, L_slow = "A_fin", "A_slow"
    a(f"s_mov_b32 s{sIt}, 0")
    a.label(L_fin)
    a(f"v_mov_b32 v{vT}, v{O+8}")
    a(f"v_mov_b32 v{vT+1}, v{O+8}")
    a.nop(2)
    a(f"v_permlane32_swap_b32 v{vT}, v{vT+1}")
    a(f"v_max3_f32 v{vT+2}, |v{O}|, |v{O+1}|, |v{O+2}|")
    for j in range(3, 12, 2):
        j2 = min(j+1, 11)
        a(f"v_max3_f32 v{vT+2}, |v{O+j}|, |v{O+j2}|, v{vT+2}")
    a(f"v_mov_b32 v{vT+3}, {f32bits(2.0**120)}")
    a(f"v_cmp_nlt_f32 vcc, v{vT+2}, v{vT+3}")
    a(f"v_cmp_nlt_f32 s[62:63], 0, v{vT+1}")
    a.nop(1)
    a(f"s_or_b64 vcc, vcc, s[62:63]")
    a(f"s_cmp_eq_u64 vcc, 0")
    a(f"s_cbranch_scc1 A_store")
    a(f"s_cmp_lg_u32 s{sIt}, 0")
    a(f"s_cbranch_scc1 A_store")
    a(f"s_branch {L_slow}")
    a.label("A_store")
    a(f"v_rcp_f32 v{vT+2}, v{vT+1}")
    a.nop(1)
    for j in range(12): a(f"v_mul_f32 v{O+j}, v{O+j}, v{vT+2}")
    for k in range(6): a(f"v_cvt_pk_bf16_f32 v{P+k}, v{O+2*k}, v{O+2*k+1}")
    a(f"s_lshl_b32 s{sT}, s{sCG}, 3")
    a(f"s_add_u32 s{sT}, s{sT}, s{sW}")
    a(f"s_mul_i32 s{sT}, s{sT}, 20")
    a(f"s_mul_i32 s{sT2}, s{sRB}, {40*1024}")
    a(f"s_add_u32 s{sT2}, s{sT2}, {WS_OF}")
    def oaddr(dst, colv):
        a(f"v_lshrrev_b32 v{dst}, 4, v{colv}")
        a(f"v_lshlrev_b32 v{dst}, 10, v{dst}")
        a(f"v_bfe_u32 v{vT+7}, v{colv}, 3, 1")
        a(f"v_lshl_add_u32 v{dst}, v{vT+7}, 9, v{dst}")
        a(f"v_and_b32 v{vT+7}, 7, v{colv}")
        a(f"v_lshl_add_u32 v{dst}, v{vT+7}, 1, v{dst}")
        a(f"v_lshl_add_u32 v{dst}, v{vN}, 4, v{dst}")
    a(f"v_lshlrev_b32 v{vT+3}, 2, v{vH}")
    a(f"v_add_u32 v{vT+3}, s{sT}, v{vT+3}")
    oaddr(vT+4, vT+3)
    a(f"buffer_store_dwordx2 v[{P}:{P+1}], v{vT+4}, s[{R_WS}:{R_WS+3}], s{sT2} offen sc1")
    a(f"v_add_u32 v{vT+3}, 8, v{vT+3}")
    oaddr(vT+5, vT+3)
    a(f"buffer_store_dwordx2 v[{P+2}:{P+3}], v{vT+5}, s[{R_WS}:{R_WS+3}], s{sT2} offen sc1")
    a(f"s_add_u32 s{sT}, s{sT}, 16")
    a(f"v_mov_b32 v{vT+3}, s{sT}")
    oaddr(vT+6, vT+3)
    a(f"v_cmp_eq_u32 vcc, 0, v{vH}")
    a(f"s_and_saveexec_b64 s[62:63], vcc")
    a(f"buffer_store_dwordx2 v[{P+4}:{P+5}], v{vT+6}, s[{R_WS}:{R_WS+3}], s{sT2} offen sc1")
    a(f"s_mov_b64 exec, s[62:63]")
    a(f"s_cmp_lg_u32 s{sTag}, 0")
    a(f"s_cbranch_scc1 A_ohave")
    get_tag(a, vT, "A8")
    a.label("A_ohave")
    a("s_waitcnt vmcnt(0)")
    a(f"s_lshl_b32 s{sT}, s{sRB}, 2")
    a(f"s_add_u32 s{sT}, s{sT}, s{sCG}")
    a(f"s_lshl_b32 s{sT}, s{sT}, 3")
    a(f"s_add_u32 s{sT}, s{sT}, s{sW}")
    set_flag(a, vT, sT, FL_O)
    st.end()
    a("s_endpgm")
    a.label(L_slow)
    a(f"v_mov_b32 v{vM2}, 0xff800000")
    a(f"s_mov_b32 s{sSoffK}, 0")
    a.label("A_slow1")
    a(f"buffer_load_dwordx4 {vr(K1,4)}, v{vA16}, s[{R_A}:{R_A+3}], s{sSoffK} offen sc1")
    a(f"buffer_load_dwordx2 {vr(K2,2)}, v{bK2}, s[{R_A}:{R_A+3}], s{sSoffK} offen sc1")
    a("s_waitcnt vmcnt(0)")
    qk1(S[0]); qk2(S[0])
    a.nop(16)
    for i in range(8):
        a(f"v_max3_f32 v{vM2}, v{S[0]+2*i}, v{S[0]+2*i+1}, v{vM2}")
    a(f"s_add_u32 s{sSoffK}, s{sSoffK}, {TS}")
    a(f"s_cmp_lt_u32 s{sSoffK}, {KVB}")
    a(f"s_cbranch_scc1 A_slow1")
    set_m(0.0)
    for i in range(16): a(f"v_mov_b32 v{O+i}, 0")
    a(f"s_mov_b32 s{sSoffK}, 0")
    a.label("A_slow2")
    a(f"buffer_load_dwordx4 {vr(K1,4)}, v{vA16}, s[{R_A}:{R_A+3}], s{sSoffK} offen sc1")
    a(f"buffer_load_dwordx2 {vr(K2,2)}, v{bK2}, s[{R_A}:{R_A+3}], s{sSoffK} offen sc1")
    a(f"buffer_load_dwordx4 {vr(V1,4)}, v{bV}, s[{R_A}:{R_A+3}], s{sSoffK} offen sc1")
    a(f"buffer_load_dwordx4 {vr(V2,4)}, v{bV}, s[{R_A}:{R_A+3}], s{sSoffK} offen offset:{VF} sc1")
    a("s_waitcnt vmcnt(0)")
    qk1(S[0], CNR); qk2(S[0])
    a.nop(16)
    for i in range(16): e(S[0], i)
    a.nop(1)
    for k in range(8): p(S[0], k)
    a.nop(2)
    a(f"v_mfma_f32_32x32x16_bf16 {vr(O,16)}, {vr(V1,4)}, {vr(P,4)}, {vr(O,16)}")
    a(f"v_mfma_f32_32x32x16_bf16 {vr(O,16)}, {vr(V2,4)}, {vr(P+4,4)}, {vr(O,16)}")
    a(f"s_add_u32 s{sSoffK}, s{sSoffK}, {TS}")
    a(f"s_cmp_lt_u32 s{sSoffK}, {KVB}")
    a(f"s_cbranch_scc1 A_slow2")
    a.nop(16)
    a(f"s_mov_b32 s{sIt}, 1")
    a(f"s_branch {L_fin}")

def role_B1(a):
    st = Stamps(a, "B")
    st.start()
    if OPT.get("bprio"): a(f"s_setprio {OPT['bprio']}")
    sG, sC = sRB, sCG
    sSoffW, sSoffX, sLdsW, sKH, sXb = 57, 58, 59, 60, 99
    vT = 4; vW = 10; vTr, vX16, vR = 13, 14, 15
    XS = 16; WF = 48; ACC = 76
    SLOT = 24576
    a(f"s_sub_u32 s{sT2}, s2, 256")
    a(f"s_bfe_u32 s{sG}, s{sT2}, 0x20001")
    a(f"s_lshl_b32 s{sG}, s{sG}, 2")
    a(f"s_bfe_u32 s{sT}, s{sT2}, 0x20003")
    a(f"s_add_u32 s{sG}, s{sG}, s{sT}")
    a(f"s_and_b32 s{sC}, s{sT2}, 1")
    a(f"s_lshl_b32 s{sC}, s{sC}, 3")
    a(f"s_lshr_b32 s{sT}, s{sT2}, 5")
    a(f"s_add_u32 s{sC}, s{sC}, s{sT}")
    a(f"s_lshr_b32 s{sKH}, s{sW}, 2")
    a(f"v_lshlrev_b32 v{vX16}, 4, v{vLane}")
    a(f"s_and_b32 s{sT}, s{sW}, 3")
    a(f"s_mul_i32 s{sT}, s{sT}, 192")
    a(f"s_mul_i32 s{sT2}, s{sC}, 192")
    a(f"s_mul_i32 s{sT3}, s{sKH}, {320*3072}")
    a(f"s_add_u32 s{sT2}, s{sT2}, s{sT3}")
    for i in range(3):
        a(f"v_add_u32 v{vT}, s{sT}, v{vLane}")
        if i: a(f"v_add_u32 v{vT}, {64*i}, v{vT}")
        a(f"v_mul_u32_u24 v{vT+1}, 5462, v{vT}")
        a(f"v_lshrrev_b32 v{vT+1}, 16, v{vT+1}")
        a(f"v_mul_u32_u24 v{vT+2}, 12, v{vT+1}")
        a(f"v_sub_u32 v{vT}, v{vT}, v{vT+2}")
        a(f"v_lshlrev_b32 v{vT}, 4, v{vT}")
        a(f"v_mul_u32_u24 v{vT+1}, 3072, v{vT+1}")
        a(f"v_add3_u32 v{vW+i}, v{vT}, v{vT+1}, s{sT2}")
        if i: a(f"v_subrev_u32 v{vW+i}, {1024*i}, v{vW+i}")
    a(f"s_mul_i32 s{sT}, s{sKH}, 12288")
    tr_addr(a, vTr, None, 192, 8, 4, sT, vT)
    a(f"s_mul_i32 s{sLdsW}, s{sW}, 3072")
    srd(a, R_A, S_W1, S_W1+1, 640*1536*2)
    srd(a, R_B, S_B1, S_B1+1, 1536*2)
    a(f"s_mul_hi_u32 s{sT}, s{sC}, {(1<<32)//5 + 1}")
    a(f"s_mul_i32 s{sT}, s{sT}, 5")
    a(f"s_sub_u32 s{sT}, s{sC}, s{sT}")
    a(f"s_mul_i32 s{sSoffW}, s{sT}, {64*3072}")
    a(f"s_lshl_b32 s{sSoffX}, s{sT}, 12")
    a(f"s_and_b32 s{sT}, s{sW}, 3")
    a(f"s_lshl_b32 s{sT2}, s{sG}, 2")
    a(f"s_add_u32 s{sT}, s{sT}, s{sT2}")
    a(f"s_mul_i32 s{sXb}, s{sT}, {40*1024}")
    a(f"s_mul_i32 s{sT2}, s{sKH}, {20*1024}")
    a(f"s_add_u32 s{sXb}, s{sXb}, s{sT2}")
    if WS_XF: a(f"s_add_u32 s{sXb}, s{sXb}, {WS_XF}")
    def issueW(c):
        a(f"s_add_u32 m0, s{sLdsW}, {(c%3)*SLOT}")
        a(f"s_add_u32 s{sT}, s{sSoffW}, {64*3072}")
        for i in range(3):
            a(f"buffer_load_dwordx4 v{vW+i}, s[{R_A}:{R_A+3}], s{sSoffW} offen offset:{1024*i} lds")
        a(f"s_cmp_eq_u32 s{sT}, {320*3072}")
        a(f"s_cselect_b32 s{sSoffW}, 0, s{sT}")
    def issueX(c):
        xs = XS + 16*(c % 2)
        a(f"s_add_u32 s{sT2}, s{sXb}, s{sSoffX}")
        a(f"s_add_u32 s{sT}, s{sSoffX}, 4096")
        for i in range(4):
            a(f"buffer_load_dwordx4 {vr(xs+4*i,4)}, v{vX16}, s[{R_WS}:{R_WS+3}], s{sT2} offen offset:{1024*i} sc1")
        a(f"s_cmp_eq_u32 s{sT}, 20480")
        a(f"s_cselect_b32 s{sSoffX}, 0, s{sT}")
    sJ = 96
    a(f"s_sub_u32 s{sJ}, s2, 256")
    a(f"s_cmp_lg_u32 s{sW}, 0")
    a(f"s_cbranch_scc1 B1_np")
    get_tag(a, vT, "B1")
    a(f"s_lshl_b32 s{sT}, s{sG}, 5")
    poll_flags(a, vT, "B1p", sT, 32, FL_D, tries=OPT.get("wftries", 1), sleep=OPT.get("dsleep", 8))
    a.label("B1_np")
    a("s_barrier")
    srd(a, R_C, S_W2, S_W2+1, 1536*640*2)
    a(f"v_lshrrev_b32 v92, 2, v{vLane}")
    a(f"v_mul_u32_u24 v92, 1280, v92")
    a(f"v_and_b32 v93, 3, v{vLane}")
    a(f"v_lshl_add_u32 v92, v93, 4, v92")
    a(f"s_lshl_b32 s{sT}, s{sW}, 10")
    a(f"s_add_u32 s{sT}, s{sT}, 73728")
    a(f"v_add_u32 v93, s{sT}, v{vX16}")
    tr_addr(a, 94, None, 64, 4, 8, sT, vT)
    tr_addr(a, 95, None, 64, 8, 4, sT, vT)
    sDst = [92, 93]; sStp = [94, 95]
    for rnd in range(2):
        Lskip = f"B1_wf{rnd}_skip"
        a(f"s_mov_b32 s{sStp[rnd]}, -1")
        if rnd == 1:
            a(f"s_cmp_ge_u32 s{sW}, 3")
            a(f"s_cbranch_scc1 {Lskip}")
        a(f"s_and_b32 s{sT}, s{sJ}, 63")
        a(f"s_mul_i32 s{sT}, s{sT}, 11")
        a(f"s_add_u32 s{sT}, s{sT}, s{sW}")
        if rnd: a(f"s_add_u32 s{sT}, s{sT}, 8")
        a(f"s_cmp_ge_u32 s{sT}, 680")
        a(f"s_cbranch_scc1 {Lskip}")
        a(f"s_mul_hi_u32 s{sT2}, s{sT}, {(1<<32)//136 + 1}")
        a(f"s_mul_i32 s{sT3}, s{sT2}, 136")
        a(f"s_sub_u32 s{sT}, s{sT}, s{sT3}")
        a(f"s_mov_b32 s{sStp[rnd]}, s{sT}")
        a(f"s_lshr_b32 s{sT3}, s{sJ}, 6")
        a(f"s_mul_i32 s{sT3}, s{sT3}, 5")
        a(f"s_add_u32 s{sT2}, s{sT2}, s{sT3}")
        a(f"s_mul_i32 s62, s{sT2}, 136")
        a(f"s_add_u32 s62, s62, s{sT}")
        a(f"s_lshl_b32 s62, s62, 10")
        a(f"s_add_u32 s{sDst[rnd]}, s62, {WS_WF}")
        a(f"s_lshl_b32 s{sT2}, s{sT2}, 6")
        a(f"s_cmp_lt_u32 s{sT}, 96")
        a(f"s_cselect_b32 s{R_C}, s{S_W2}, s{S_WO}")
        a(f"s_cselect_b32 s{R_C+1}, s{S_W2+1}, s{S_WO+1}")
        a(f"s_cselect_b32 s63, 0, 96")
        a(f"s_mov_b32 s{R_C+2}, {640*640*2}")
        a(f"s_cbranch_scc0 B1_wf{rnd}_a")
        a(f"s_mov_b32 s{R_C+2}, {1536*640*2}")
        a.label(f"B1_wf{rnd}_a")
        a(f"s_sub_u32 s{sT3}, s{sT}, s63")
        a(f"s_mul_i32 s{sT3}, s{sT3}, {16*1280}")
        a(f"s_add_u32 s{sT3}, s{sT3}, s{sT2}")
        a(f"buffer_load_dwordx4 v[{76+4*rnd}:{79+4*rnd}], v92, s[{R_C}:{R_C+3}], s{sT3} offen")
        a.label(Lskip)
    a("s_waitcnt vmcnt(0)")
    for rnd in range(2):
        Lskip = f"B1_wg{rnd}_skip"
        a(f"s_cmp_eq_u32 s{sStp[rnd]}, -1")
        a(f"s_cbranch_scc1 {Lskip}")
        a(f"ds_write_b128 v93, v[{76+4*rnd}:{79+4*rnd}]")
        a(f"s_cmp_lt_u32 s{sStp[rnd]}, 96")
        a(f"s_cbranch_scc0 B1_wf{rnd}_n")
        a(f"ds_read_b64_tr_b16 v[{84+4*rnd}:{85+4*rnd}], v94")
        a(f"ds_read_b64_tr_b16 v[{86+4*rnd}:{87+4*rnd}], v94 offset:512")
        a(f"s_branch B1_wf{rnd}_s")
        a.label(f"B1_wf{rnd}_n")
        a(f"ds_read_b64_tr_b16 v[{84+4*rnd}:{85+4*rnd}], v95")
        a(f"ds_read_b64_tr_b16 v[{86+4*rnd}:{87+4*rnd}], v95 offset:256")
        a.label(f"B1_wf{rnd}_s")
        a("s_waitcnt lgkmcnt(0)")
        a(f"buffer_store_dwordx4 v[{84+4*rnd}:{87+4*rnd}], v{vX16}, s[{R_WS}:{R_WS+3}], s{sDst[rnd]} offen sc1")
        a.label(Lskip)
    issued = []
    def iW(c): issueW(c); issued.extend([("W", c)]*3)
    if OPT.get("prefill", 0):
        for c in range(3): iW(c)
    a(f"s_cmp_lg_u32 s{sW}, 0")
    a(f"s_cbranch_scc1 B1_np2")
    a(f"s_lshl_b32 s{sT}, s{sG}, 5")
    poll_flags(a, vT, "B1", sT, 32, FL_D, sleep=OPT.get("dsleep", 8))
    if OPT.get("b1kv", 0): poll_flags(a, vT, "B1k", None, 128, FL_KV, sleep=OPT.get("ksleep", 4))
    a.label("B1_np2")
    a("s_barrier")
    st.mark("wait_d")
    def iX(c): issueX(c); issued.extend([("X", c)]*4)
    if OPT.get("prefill", 0):
        iX(0)
        a("s_barrier")
        iX(1)
    elif OPT.get("b1shallow", 0):
        iW(0); iX(0)
    else:
        iW(0); iX(0)
        a("s_barrier")
        iW(1); iX(1)
        a("s_barrier")
        iW(2)
    def wreads(c, k, buf):
        base = (c % 3)*SLOT + k*16*192
        for ct in range(3):
            a(f"ds_read_b64_tr_b16 v[{WF+12*buf+4*ct}:{WF+12*buf+4*ct+1}], v{vTr} offset:{base + ct*64}")
            a(f"ds_read_b64_tr_b16 v[{WF+12*buf+4*ct+2}:{WF+12*buf+4*ct+3}], v{vTr} offset:{base + ct*64 + 4*192}")
    for c in range(5):
        last = max(i for i, e_ in enumerate(issued) if e_ in (("W", c), ("X", c)))
        a(f"s_waitcnt vmcnt({len(issued) - 1 - last})")
        a("s_barrier")
        if c == 0:
            st.mark("b0")
            a(f"s_cmp_lg_u32 s{sW}, 0")
            a(f"s_cbranch_scc1 B1_nofw")
            set_flag(a, vT, sJ, FL_W)
            a.label("B1_nofw")
        if OPT.get("b1shallow", 0) and not OPT.get("prefill", 0):
            if c + 1 < 5: iW(c + 1); iX(c + 1)
        elif 1 <= c <= 2: iW(c + 2)
        xs = XS + 16*(c % 2)
        wreads(c, 0, 0)
        for k in range(4):
            buf = k % 2
            if k < 3:
                wreads(c, k + 1, 1 - buf)
                a("s_waitcnt lgkmcnt(6)")
            else:
                a("s_waitcnt lgkmcnt(0)")
            for ct in range(3):
                cin = "0" if (c == 0 and k == 0) else vr(ACC+16*ct,16)
                a(f"v_mfma_f32_32x32x16_bf16 {vr(ACC+16*ct,16)}, {vr(WF+12*buf+4*ct,4)}, {vr(xs+4*k,4)}, {cin}")
        if c + 2 < 5 and (OPT.get("prefill", 0) or not OPT.get("b1shallow", 0)): iX(c + 2)
    st.mark("kloop")
    a("s_setprio 3")
    a(f"s_and_b32 s{sT}, s{sW}, 3")
    a(f"s_lshl_b32 s{sT2}, s{sG}, 2")
    a(f"s_add_u32 s{sT}, s{sT}, s{sT2}")
    a(f"s_lshl_b32 s{sT2}, s{sT}, 7")
    a(f"s_add_u32 s{sT2}, s{sT2}, {WS_R}")
    a(f"v_lshlrev_b32 v{vT}, 2, v{vN}")
    a(f"buffer_load_dword v{vR}, v{vT}, s[{R_WS}:{R_WS+3}], s{sT2} offen sc1")
    a(f"v_mov_b32 v72, 0")
    a(f"global_load_dword v73, v72, s[{S_DBG}:{S_DBG+1}] sc1")
    a(f"s_mul_i32 s{sT2}, s{sC}, 192")
    a(f"s_lshl_b32 s{sT3}, s{sKH}, 5")
    a(f"s_add_u32 s{sT2}, s{sT2}, s{sT3}")
    a(f"v_lshlrev_b32 v{vT}, 3, v{vH}")
    B = XS
    for ct in range(3):
        for q in range(2):
            a(f"buffer_load_dwordx2 v[{B+4*ct+2*q}:{B+4*ct+2*q+1}], v{vT}, s[{R_B}:{R_B+3}], s{sT2} offen offset:{64*ct+16*q}")
    a(f"s_mul_i32 s{sT}, s{sT}, 96")
    a(f"s_mul_i32 s{sT2}, s{sC}, 6")
    a(f"s_add_u32 s{sT}, s{sT}, s{sT2}")
    a(f"s_add_u32 s{sT}, s{sT}, s{sKH}")
    a(f"s_lshl_b32 s{sXb}, s{sT}, 10")
    a(f"s_add_u32 s{sXb}, s{sXb}, {WS_H}")
    a("s_barrier")
    a.nop(4)
    T = XS + 16
    a(f"s_mul_i32 s{sT}, s{sW}, 6144")
    a(f"v_add_u32 v{vT+1}, s{sT}, v{vX16}")
    a(f"s_xor_b32 s{sT}, s{sW}, 4")
    a(f"s_mul_i32 s{sT}, s{sT}, 6144")
    a(f"v_add_u32 v{vT+2}, s{sT}, v{vX16}")
    a(f"s_cmp_eq_u32 s{sKH}, 1")
    a(f"s_cbranch_scc1 B1_x1")
    for ct in range(3):
        for q in range(2):
            a(f"ds_write_b128 v{vT+1}, {vr(ACC+16*ct+8+4*q,4)} offset:{(2*ct+q)*1024}")
    a(f"s_branch B1_x2")
    a.label("B1_x1")
    for ct in range(3):
        for q in range(2):
            a(f"ds_write_b128 v{vT+1}, {vr(ACC+16*ct+4*q,4)} offset:{(2*ct+q)*1024}")
    a.label("B1_x2")
    a("s_waitcnt lgkmcnt(0)")
    a("s_barrier")
    for i in range(6):
        a(f"ds_read_b128 {vr(T+4*i,4)}, v{vT+2} offset:{i*1024}")
    a("s_waitcnt lgkmcnt(0) vmcnt(0)")
    a(f"v_readfirstlane_b32 s{sTag}, v73")
    a(f"s_cmp_eq_u32 s{sKH}, 1")
    a(f"s_cbranch_scc1 B1_y1")
    for ct in range(3):
        for j in range(8): a(f"v_add_f32 v{T+8*ct+j}, v{T+8*ct+j}, v{ACC+16*ct+j}")
    a(f"s_branch B1_y2")
    a.label("B1_y1")
    for ct in range(3):
        for j in range(8): a(f"v_add_f32 v{T+8*ct+j}, v{T+8*ct+j}, v{ACC+16*ct+8+j}")
    a.label("B1_y2")
    TB = 56
    for ct in range(3):
        for q in range(2):
            b0 = B+4*ct+2*q
            acc = T+8*ct+4*q
            a(f"v_lshlrev_b32 v{TB}, 16, v{b0}")
            a(f"v_and_b32 v{TB+1}, 0xffff0000, v{b0}")
            a(f"v_lshlrev_b32 v{TB+2}, 16, v{b0+1}")
            a(f"v_and_b32 v{TB+3}, 0xffff0000, v{b0+1}")
            for j in range(4): a(f"v_fma_f32 v{acc+j}, v{acc+j}, v{vR}, v{TB+j}")
            for j in range(4): a(f"v_max_f32 v{acc+j}, 0, v{acc+j}")
            for j in range(4): a(f"v_mul_f32 v{acc+j}, v{acc+j}, v{acc+j}")
        for k in range(4):
            a(f"v_cvt_pk_bf16_f32 v{60+4*ct+k}, v{T+8*ct+2*k}, v{T+8*ct+2*k+1}")
    a(f"v_add_u32 v{vT}, 4096, v{vX16}")
    a(f"buffer_store_dwordx4 {vr(60,4)}, v{vX16}, s[{R_WS}:{R_WS+3}], s{sXb} offen sc1")
    a(f"buffer_store_dwordx4 {vr(64,4)}, v{vX16}, s[{R_WS}:{R_WS+3}], s{sXb} offen offset:2048 sc1")
    a(f"buffer_store_dwordx4 {vr(68,4)}, v{vT}, s[{R_WS}:{R_WS+3}], s{sXb} offen sc1")
    a(f"s_cmp_lg_u32 s{sW}, 6")
    a(f"s_cbranch_scc1 B1_nfw")
    a(f"s_sub_u32 s{sT}, s2, 256")
    a(f"s_and_b32 s{sT2}, s{sT}, 1")
    a(f"s_lshl_b32 s{sT2}, s{sT2}, 1")
    a(f"s_lshr_b32 s{sT}, s{sT}, 7")
    a(f"s_add_u32 s{sT}, s{sT}, s{sT2}")
    a(f"s_lshl_b32 s{sT}, s{sT}, 6")
    poll_flags(a, vT, "B2w", sT, 64, FL_W)
    a.label("B1_nfw")
    a("s_waitcnt vmcnt(0)")
    a("s_barrier")
    L_nf = "B1_nf"
    a(f"s_cmp_lg_u32 s{sW}, 0")
    a(f"s_cbranch_scc1 {L_nf}")
    a(f"s_lshl_b32 s{sT}, s{sG}, 4")
    a(f"s_add_u32 s{sT}, s{sT}, s{sC}")
    set_flag(a, vT, sT, FL_H)
    a.label(L_nf)
    st.mark("epi")
    a("s_setprio 0")
    return st

def role_B2(a, st):
    sSoffW, sSoffX, sWb, sIt, sRho, sWrapW, sRst = 57, 58, 59, 60, 61, 98, 99
    vT = 4
    vX16, vXa = 14, 15
    ACC = 16
    XR = 48
    WB = 64
    vOut = vT+3
    NXS = 8
    a(f"s_sub_u32 s{sT2}, s2, 256")
    a(f"s_bfe_u32 s{sRB}, s{sT2}, 0x20001")
    a(f"s_lshl_b32 s{sRB}, s{sRB}, 4")
    a(f"s_bfe_u32 s{sT}, s{sT2}, 0x40003")
    a(f"s_add_u32 s{sRB}, s{sRB}, s{sT}")
    a(f"s_and_b32 s{sCG}, s{sT2}, 1")
    a(f"s_lshl_b32 s{sCG}, s{sCG}, 1")
    a(f"s_lshr_b32 s{sT}, s{sT2}, 7")
    a(f"s_add_u32 s{sCG}, s{sCG}, s{sT}")
    a(f"v_lshlrev_b32 v{vX16}, 4, v{vLane}")
    a(f"s_and_b32 s{sRho}, s{sRB}, 7")
    a(f"s_min_u32 s{sT3}, s{sW}, 4")
    a(f"s_mul_i32 s{sT}, s{sCG}, 5")
    a(f"s_add_u32 s{sT}, s{sT}, s{sT3}")
    a(f"s_mul_i32 s{sWb}, s{sT}, {136*1024}")
    a(f"s_add_u32 s{sWb}, s{sWb}, {WS_WF}")
    a(f"s_lshl_b32 s{sT}, s{sT}, 6")
    srd(a, R_C, S_X, S_X+1, NX)
    a(f"s_lshl_b32 s{sT2}, s{sRB}, 5")
    a(f"v_add_u32 v{vT}, s{sT2}, v{vN}")
    a(f"v_mul_u32_u24 v{vT}, 1280, v{vT}")
    a(f"v_lshl_add_u32 v{vT}, v{vH}, 3, v{vT}")
    a(f"v_add_u32 v{vOut}, s{sT}, v{vT}")
    for q in range(4):
        a(f"buffer_load_dwordx2 v[{XR+2*q}:{XR+2*q+1}], v{vOut}, s[{R_C}:{R_C+3}], 0 offen offset:{16*q}")
    srd(a, R_C, S_B2, S_B2+1, 640*2)
    a(f"v_lshlrev_b32 v{vT}, 3, v{vH}")
    for q in range(4):
        a(f"buffer_load_dwordx2 v[{XR+8+2*q}:{XR+8+2*q+1}], v{vT}, s[{R_C}:{R_C+3}], s{sT} offen offset:{16*q}")
    for i in range(16): a(f"v_mov_b32 v{ACC+i}, 0")
    def unpack_add(q, dst):
        for (src, t) in ((XR+2*q, 32), (XR+8+2*q, 36)):
            a(f"v_lshlrev_b32 v{t}, 16, v{src}")
            a(f"v_and_b32 v{t+1}, 0xffff0000, v{src}")
            a(f"v_lshlrev_b32 v{t+2}, 16, v{src+1}")
            a(f"v_and_b32 v{t+3}, 0xffff0000, v{src+1}")
        for j in range(4): a(f"v_add_f32 v{32+j}, v{32+j}, v{36+j}")
        for j in range(4): a(f"v_add_f32 v{dst+j}, v{dst+j}, v{32+j}")
    L_side = "B2_side"
    a(f"s_cmp_ge_u32 s{sW}, 4")
    a(f"s_cbranch_scc1 {L_side}")
    a(f"s_lshl_b32 s{sSoffW}, s{sRho}, 13")
    a(f"s_mov_b32 s{sWrapW}, {96*1024}")
    a(f"s_mov_b32 s{sRst}, 0")
    def wload(r):
        a(f"s_add_u32 s{sT2}, s{sWb}, s{sSoffW}")
        a(f"s_add_u32 s{sT}, s{sSoffW}, 1024")
        a(f"buffer_load_dwordx4 {vr(r,4)}, v{vX16}, s[{R_WS}:{R_WS+3}], s{sT2} offen sc1")
        a(f"s_cmp_eq_u32 s{sT}, s{sWrapW}")
        a(f"s_cselect_b32 s{sSoffW}, s{sRst}, s{sT}")
    for k in range(16): wload(WB + 4*k)
    st.mark("setup")
    a("s_barrier")
    a(f"s_mov_b32 s{sIt}, 0")
    L1 = "B2_p1"
    a.label(L1)
    XBUF = 32
    for j in range(16):
        k = j % 8
        if k == 0:
            a("s_barrier")
            a(f"s_lshl_b32 s{sT}, s{sIt}, 1")
            if j: a(f"s_add_u32 s{sT}, s{sT}, 1")
            a(f"s_and_b32 s{sT}, s{sT}, {NXS-1}")
            a(f"s_lshl_b32 s{sT}, s{sT}, 13")
            a(f"v_add_u32 v{vXa}, s{sT}, v{vX16}")
            for i in range(3):
                a(f"ds_read_b128 {vr(XBUF+4*i,4)}, v{vXa} offset:{i*1024}")
        if j == 0:
            L1n = "B2_p1n"
            a(f"s_cmp_lg_u32 s{sIt}, 5")
            a(f"s_cbranch_scc1 {L1n}")
            a(f"s_mul_i32 s{sSoffW}, s{sRho}, {5*1024}")
            a(f"s_add_u32 s{sSoffW}, s{sSoffW}, {96*1024}")
            a(f"s_mov_b32 s{sWrapW}, {136*1024}")
            a(f"s_mov_b32 s{sRst}, {96*1024}")
            a.label(L1n)
        if k + 3 < 8:
            a(f"ds_read_b128 {vr(XBUF+4*((k+3)%4),4)}, v{vXa} offset:{(k+3)*1024}")
            a("s_waitcnt vmcnt(15) lgkmcnt(3)")
        else:
            a(f"s_waitcnt vmcnt(15) lgkmcnt({7-k})")
        a(f"v_mfma_f32_32x32x16_bf16 {vr(ACC,16)}, {vr(WB+4*j,4)}, {vr(XBUF+4*(k%4),4)}, {vr(ACC,16)}")
        wload(WB + 4*j)
    a(f"s_add_u32 s{sIt}, s{sIt}, 1")
    a(f"s_cmp_lt_u32 s{sIt}, 6")
    a(f"s_cbranch_scc1 {L1}")
    st.mark("ffn2")
    a.nop(12)
    for q in range(4): unpack_add(q, ACC+4*q)
    XBUF = XR
    NBLK = 20
    def blk(s_):
        b = s_ % NBLK
        return (WB + 4*b) if b < 16 else (32 + 4*(b-16))
    for s_ in range(16, 20): wload(blk(s_))
    a("s_barrier")
    a(f"s_branch B2_oload")
    a.label(L_side)
    a(f"s_sub_u32 s{sT3}, s{sW}, 4")
    a("s_waitcnt vmcnt(0)")
    for jj in range(1, 4):
        Ls = a.newlabel("B2_q")
        a(f"s_cmp_lg_u32 s{sT3}, {jj}")
        a(f"s_cbranch_scc1 {Ls}")
        a(f"v_mov_b32 v{XR}, v{XR+2*jj}")
        a(f"v_mov_b32 v{XR+1}, v{XR+2*jj+1}")
        a(f"v_mov_b32 v{XR+8}, v{XR+8+2*jj}")
        a(f"v_mov_b32 v{XR+9}, v{XR+8+2*jj+1}")
        a.label(Ls)
    for j in range(4): a(f"v_mov_b32 v{40+j}, 0")
    unpack_add(0, 40)
    a(f"s_lshl_b32 s{sRst}, s{sT3}, 11")
    a(f"s_lshl_b32 s{sSoffW}, s{sRho}, 13")
    a(f"s_add_u32 s{sSoffW}, s{sSoffW}, s{sRst}")
    a(f"s_add_u32 s{sWrapW}, s{sRst}, {96*1024}")
    SD = 4
    def wpair(slot):
        a(f"s_add_u32 s{sT2}, s{sWb}, s{sSoffW}")
        a(f"s_add_u32 s{sT}, s{sSoffW}, 8192")
        a(f"buffer_load_dwordx4 {vr(WB+8*slot,4)}, v{vX16}, s[{R_WS}:{R_WS+3}], s{sT2} offen sc1")
        a(f"buffer_load_dwordx4 {vr(WB+8*slot+4,4)}, v{vX16}, s[{R_WS}:{R_WS+3}], s{sT2} offen offset:1024 sc1")
        a(f"s_cmp_eq_u32 s{sT}, s{sWrapW}")
        a(f"s_cselect_b32 s{sSoffW}, s{sRst}, s{sT}")
    for c in range(SD): wpair(c)
    a(f"s_cmp_lg_u32 s{sW}, 7")
    a(f"s_cbranch_scc1 B2_nph")
    a(f"s_lshr_b32 s{sT}, s{sRB}, 2")
    a(f"s_lshl_b32 s{sT}, s{sT}, 4")
    poll_flags(a, vT, "B2h", sT, 16, FL_H, sleep=2)
    a.label("B2_nph")
    a("s_barrier")
    a(f"s_sub_u32 s{sT3}, s{sW}, 4")
    a(f"s_mul_i32 s{sT}, s{sRB}, {96*1024}")
    a(f"s_add_u32 s63, s{sT}, {WS_H}")
    a(f"s_lshl_b32 s97, s{sT3}, 11")
    a(f"s_add_u32 s63, s63, s97")
    a(f"s_lshl_b32 s{sSoffX}, s{sRho}, 13")
    a(f"v_add_u32 v{vT+5}, s97, v{vX16}")
    vXs = vT+5
    vm = Cnt(a, "vmcnt", 63)
    def xdma(c):
        a(f"s_add_u32 m0, s97, {(c % NXS)*8192}")
        a(f"s_add_u32 s{sT2}, s63, s{sSoffX}")
        a(f"s_add_u32 s{sT}, s{sSoffX}, 8192")
        for i in range(2):
            a(f"buffer_load_dwordx4 v{vX16}, s[{R_WS}:{R_WS+3}], s{sT2} offen offset:{1024*i} sc1 lds")
        a(f"s_cmp_eq_u32 s{sT}, {96*1024}")
        a(f"s_cselect_b32 s{sSoffX}, 0, s{sT}")
        vm.issue(("X", c), 2)
    for c in range(SD): vm.issue(("W", c), 2)
    XD = 6
    for c in range(XD): xdma(c)
    for c in range(12):
        vm.need(("X", c), ("W", c))
        a("s_barrier")
        if c + XD < 12: xdma(c + XD)
        for i in range(2):
            a(f"ds_read_b128 {vr(48+4*i,4)}, v{vXs} offset:{(c % NXS)*8192 + 1024*i}")
        a("s_waitcnt lgkmcnt(1)")
        a(f"v_mfma_f32_32x32x16_bf16 {vr(ACC,16)}, {vr(WB+8*(c%4),4)}, {vr(48,4)}, {vr(ACC,16)}")
        a("s_waitcnt lgkmcnt(0)")
        a(f"v_mfma_f32_32x32x16_bf16 {vr(ACC,16)}, {vr(WB+8*(c%4)+4,4)}, {vr(52,4)}, {vr(ACC,16)}")
        if c + SD < 12: wpair(c % 4); vm.issue(("W", c + SD), 2)
    a(f"s_sub_u32 s{sT3}, s{sW}, 4")
    a(f"s_lshl_b32 s{sT3}, s{sT3}, 1")
    a(f"s_mul_i32 s62, s{sRho}, 5")
    a(f"s_add_u32 s62, s62, s{sT3}")
    for m in range(5):
        for i in range(2):
            a(f"s_add_u32 s{sT}, s62, {8*m+i}")
            a(f"s_cmp_ge_u32 s{sT}, 40")
            a(f"s_cselect_b32 s{sT2}, 40, 0")
            a(f"s_sub_u32 s{sT}, s{sT}, s{sT2}")
            a(f"s_add_u32 s{sT}, s{sT}, 96")
            a(f"s_lshl_b32 s{sT}, s{sT}, 10")
            a(f"s_add_u32 s{sT}, s{sT}, s{sWb}")
            a(f"buffer_load_dwordx4 {vr(WB+4*(2*m+i),4)}, v{vX16}, s[{R_WS}:{R_WS+3}], s{sT} offen sc1")
    Lnp2 = "B2_np2"
    a(f"s_cmp_lg_u32 s{sW}, 7")
    a(f"s_cbranch_scc1 {Lnp2}")
    a(f"s_lshl_b32 s{sT}, s{sRB}, 5")
    poll_flags(a, vT, "B2o", sT, 32, FL_O, sleep=OPT.get("osleep", 2))
    a.label(Lnp2)
    st.mark("wait_o")
    a("s_barrier")
    a.label("B2_oload")
    a(f"s_mul_i32 s63, s{sRB}, {40*1024}")
    a(f"s_add_u32 s63, s63, {WS_OF}")
    a(f"s_mul_i32 s62, s{sRho}, 5")
    for i in range(5):
        a(f"s_mul_i32 s{sT}, s{sW}, 5")
        a(f"s_add_u32 s{sT}, s{sT}, {i}")
        a(f"s_add_u32 s{sT2}, s{sT}, s62")
        a(f"s_cmp_ge_u32 s{sT2}, 40")
        a(f"s_cselect_b32 s{sIt}, 40, 0")
        a(f"s_sub_u32 s{sT2}, s{sT2}, s{sIt}")
        a(f"s_lshl_b32 s{sT2}, s{sT2}, 10")
        a(f"s_add_u32 s{sT2}, s{sT2}, s63")
        a(f"s_lshl_b32 m0, s{sT}, 10")
        a("s_nop 0")
        a(f"buffer_load_dwordx4 v{vX16}, s[{R_WS}:{R_WS+3}], s{sT2} offen sc1 lds")
    a("s_waitcnt vmcnt(0)")
    a("s_barrier")
    st.mark("oload")
    a(f"s_cmp_ge_u32 s{sW}, 4")
    a(f"s_cbranch_scc1 B2_side2")
    vm = Cnt(a, "vmcnt", 63); lg = Cnt(a, "lgkmcnt", 15)
    def xread(s_):
        r = XBUF + 4*(s_ % 4)
        a(f"ds_read_b128 {vr(r,4)}, v{vX16} offset:{s_*1024}")
        lg.issue(("X", s_))
    for s_ in range(3): xread(s_)
    for s_ in range(40):
        if s_ + 3 < 40: xread(s_ + 3)
        vm.need(("W", s_))
        lg.need(("X", s_))
        a(f"v_mfma_f32_32x32x16_bf16 {vr(ACC,16)}, {vr(blk(s_),4)}, {vr(XBUF+4*(s_%4),4)}, {vr(ACC,16)}")
        if s_ + NBLK < 40:
            wload(blk(s_)); vm.issue(("W", s_ + NBLK))
    st.mark("wo")
    a("s_setprio 3")
    a("s_barrier")
    a.nop(10)
    srd(a, R_C, S_OUT, S_OUT+1, NX)
    for q in range(4):
        a(f"v_cvt_pk_bf16_f32 v{32+2*q}, v{ACC+4*q}, v{ACC+4*q+1}")
        a(f"v_cvt_pk_bf16_f32 v{33+2*q}, v{ACC+4*q+2}, v{ACC+4*q+3}")
        a(f"buffer_store_dwordx2 v[{32+2*q}:{33+2*q}], v{vOut}, s[{R_C}:{R_C+3}], 0 offen offset:{16*q}")
    a("s_barrier")
    st.end()
    a("s_endpgm")
    a.label("B2_side2")
    for k in range(4):
        a(f"ds_read_b128 {vr(48+4*k,4)}, v{vXs} offset:{(8*(k//2)+(k%2))*1024}")
    for k in range(10):
        a(f"s_waitcnt lgkmcnt({min(3, 9-k)})")
        a(f"v_mfma_f32_32x32x16_bf16 {vr(ACC,16)}, {vr(WB+4*k,4)}, {vr(48+4*(k%4),4)}, {vr(ACC,16)}")
        if k + 4 < 10:
            a(f"ds_read_b128 {vr(48+4*(k%4),4)}, v{vXs} offset:{(8*((k+4)//2)+((k+4)%2))*1024}")
    a("s_setprio 3")
    a("s_barrier")
    a.nop(12)
    a(f"s_sub_u32 s{sT3}, s{sW}, 4")
    a(f"s_lshl_b32 s{sT}, s{sT3}, 12")
    a(f"v_add_u32 v{vT}, s{sT}, v{vX16}")
    for q in range(4):
        a(f"ds_write_b128 v{vT}, {vr(ACC+4*q,4)} offset:{q*1024}")
    a("s_waitcnt lgkmcnt(0)")
    a("s_barrier")
    a(f"s_lshl_b32 s{sT}, s{sT3}, 10")
    a(f"v_add_u32 v{vT}, s{sT}, v{vX16}")
    for jj in range(4):
        a(f"ds_read_b128 {vr(ACC+4*jj,4)}, v{vT} offset:{jj*4096}")
    a(f"s_lshl_b32 s{sT}, s{sT3}, 4")
    a(f"v_add_u32 v{vOut}, s{sT}, v{vOut}")
    srd(a, R_C, S_OUT, S_OUT+1, NX)
    a("s_waitcnt lgkmcnt(0)")
    for j in range(4):
        a(f"v_add_f32 v{ACC+j}, v{ACC+j}, v{ACC+4+j}")
        a(f"v_add_f32 v{ACC+8+j}, v{ACC+8+j}, v{ACC+12+j}")
    for j in range(4): a(f"v_add_f32 v{ACC+j}, v{ACC+j}, v{40+j}")
    for j in range(4): a(f"v_add_f32 v{ACC+j}, v{ACC+j}, v{ACC+8+j}")
    a(f"v_cvt_pk_bf16_f32 v32, v{ACC}, v{ACC+1}")
    a(f"v_cvt_pk_bf16_f32 v33, v{ACC+2}, v{ACC+3}")
    a(f"buffer_store_dwordx2 v[32:33], v{vOut}, s[{R_WS if False else R_C}:{R_C+3}], 0 offen")
    st.end()
    a("s_endpgm")

HEADER = """; x + MQA-attention(LN(x)) @ wo + FFN_relu2(LN(x))  -- one launch, three workgroup roles (8 waves each, 2 workgroups per CU).
"""

def gen():
    a = Asm()
    a("s_cmp_ge_u32 s2, 512")
    a("s_cbranch_scc1 K_end")
    a("s_load_dwordx16 s[4:19], s[0:1], 0")
    a("s_load_dwordx8 s[20:27], s[0:1], 64")
    a("s_load_dwordx2 s[28:29], s[0:1], 96")
    a(f"v_and_b32 v{vLane}, 63, v0")
    a(f"v_lshrrev_b32 v4, 6, v0")
    a(f"v_lshrrev_b32 v{vH}, 5, v{vLane}")
    a(f"v_readfirstlane_b32 s{sW}, v4")
    a(f"v_and_b32 v{vN}, 31, v{vLane}")
    a("s_waitcnt lgkmcnt(0)")
    srd(a, R_WS, S_WS, S_WS+1, WS_END)
    srd(a, R_FL, S_WS, S_WS+1, FL_SIZE, WS_FL)
    for r in (R_A, R_B, R_C): srd(a, r, S_WS, S_WS+1, WS_END)
    for i in range(4, 16): a(f"v_mov_b32 v{i}, 0")
    a("s_cmp_ge_u32 s2, 256")
    a("s_cbranch_scc1 ROLE_B")
    role_A(a)
    a.label("ROLE_B")
    n0 = len(a.lines)
    st = role_B1(a)
    role_B2(a, st)
    if OPT.get("mprio"):
        out = a.lines[:n0]; L = a.lines[n0:]; i = 0; cur = 0
        while i < len(L):
            if "s_setprio" in L[i]: cur = int(L[i].split()[-1])
            if "v_mfma" in L[i] and cur == 0:
                j = i
                while j < len(L) and "v_mfma" in L[j]: j += 1
                out.append(f"  s_setprio {OPT['mprio']}"); out += L[i:j]; out.append("  s_setprio 0"); i = j
            else:
                out.append(L[i]); i += 1
        a.lines = out
    a.label("K_end")
    a("s_endpgm")
    grid = OPT.get("grid", 512)
    s = f"; @launch grid=({grid},1,1) block=(512,1,1) lds={LDS_BYTES}\n" + HEADER
    s += '.amdgcn_target "amdgcn-amd-amdhsa--gfx950"\n.text\n'
    s += kernel_header(KN) + a.text()
    s += '.section .rodata,"a"\n.p2align 6\n' + kernel_desc(KN, 128, 102)
    return s

if __name__ == "__main__":
    if "--prof" in sys.argv: PROF = True
    for x in sys.argv:
        if x.startswith("-D"):
            k, _, v = x[2:].partition("="); OPT[k] = int(v) if v else 1
    open(sys.argv[1], "w").write(gen())
    if PROF: json.dump(STAMP_NAMES, open("stamps9.json", "w"))
```

```python
import sys, math, json
from asmlib import *

NAME = "parallel_sum__grouped_kv_mqa__dense_activation_squared_relu__prompt"
KN = NAME + "_kernel"
WS_XF = 0x0
WS_R  = 0x280000
WS_KV = 0x290000
WS_OF = 0x2D0000
WS_H  = 0x550000
WS_FL = 0xB50000
WS_WF = 0xBC0000
WS_END = 0xE70000
WS_DBG = 0x2000000
FL_KV, FL_D, FL_H, FL_W, FL_O = 0, 128, 640, 896, 1152
FL_N = 3200
FL_SIZE = FL_N * 128
NX = 2048 * 640 * 2
TS = 2688
VF = 704; VH = 352
KVB = 64 * TS
CH = 8 * TS
QSCALE = (20 ** -0.5) * math.log2(math.e)
DELTA = 96.0
LDS_BYTES = 81920
PROF = False
OPT = {}
SPIN_MAX = 200000

S_X, S_WQ, S_WK, S_WV, S_WO, S_W1, S_B1, S_W2, S_B2, S_OUT, S_DBG, S_WS = 4, 6, 8, 10, 12, 16, 18, 20, 22, 24, 26, 28
sW = 30
sTag = 31
R_WS = 32
R_FL = 36
R_A = 40
R_B = 44
R_C = 48
sRB, sCG, sT, sT2, sT3 = 52, 53, 54, 55, 56
vLane, vH, vN = 1, 2, 3

def diag(a, word, neg=False, va=74):
    if not OPT.get("diag") or neg: return
    L = a.newlabel("dgx")
    a(f"s_and_b32 s86, s2, 255")
    a(f"s_cmp_lg_u32 s86, {OPT.get('diagwg', 37)}")
    a(f"s_cbranch_scc1 {L}")
    a("s_memrealtime s[84:85]")
    a("s_waitcnt lgkmcnt(0)")
    a("s_mov_b64 s[86:87], exec")
    a("s_mov_b64 exec, 1")
    a(f"v_mov_b32 v{va}, s84")
    a(f"v_mov_b32 v{va+1}, {4*word}")
    a(f"global_store_dword v{va+1}, v{va}, s[{S_DBG}:{S_DBG+1}]")
    a("s_mov_b64 exec, s[86:87]")
    a.label(L)

class Stamps:
    def __init__(self, a, role): self.a = a; self.n = 1; self.names = []; self.role = role
    def start(self):
        if not PROF: return
        for i in range(68, 94): self.a(f"s_mov_b32 s{i}, 0")
        self.a("s_memrealtime s[64:65]"); self.a("s_memtime s[66:67]"); self.a("s_waitcnt lgkmcnt(0)"); self.n = 2
    def mark(self, name):
        if not PROF: return
        assert self.n < 15
        self.a(f"s_memtime s[{64+2*self.n}:{65+2*self.n}]"); self.a("s_waitcnt lgkmcnt(0)")
        self.n += 1; self.names.append(name)
    def end(self):
        if not PROF: return
        a = self.a
        a("s_waitcnt vmcnt(0)")
        self.mark("final-drain")
        a("s_memrealtime s[94:95]"); a("s_waitcnt lgkmcnt(0)")
        a("s_mov_b64 exec, 1")
        a(f"s_lshl_b32 s98, s2, 3")
        a(f"s_add_u32 s98, s98, s{sW}")
        a(f"s_lshl_b32 s98, s98, 6")
        a(f"s_add_u32 s98, s98, {WS_DBG}")
        a(f"s_add_u32 s96, s{S_WS}, s98")
        a(f"s_addc_u32 s97, s{S_WS+1}, 0")
        a(f"v_mov_b32 v0, 0")
        for i in list(range(14)) + [15]:
            a(f"v_mov_b32 v1, s{64+2*i}")
            a(f"global_store_dword v0, v1, s[96:97] offset:{4*i}")
        a(f"v_mov_b32 v1, {self.n}")
        a(f"global_store_dword v0, v1, s[96:97] offset:56")
        a("s_waitcnt vmcnt(0)")
        STAMP_NAMES[self.role] = self.names
STAMP_NAMES = {}

def bf16_round(a, dst, src):
    a(f"v_cvt_pk_bf16_f32 v{dst}, v{src}, v{src}")
    a(f"v_lshlrev_b32 v{dst}, 16, v{dst}")

def decode_rb_cg(a, j):
    a(f"s_lshr_b32 s{sCG}, s{j}, 6")
    a(f"s_and_b32 s{sRB}, s{j}, 7")
    a(f"s_lshl_b32 s{sRB}, s{sRB}, 3")
    a(f"s_bfe_u32 s{sT}, s{j}, 0x30003")
    a(f"s_add_u32 s{sRB}, s{sRB}, s{sT}")

TAG_AGE = 2000
TAGL = 81904
def get_tag(a, vt, lab, have=False):
    L = f"{lab}_tag"
    a(f"s_mov_b32 s{sT3}, {SPIN_MAX}")
    a(f"v_mov_b32 v{vt}, 0")
    if have:
        a(f"s_cmp_lg_u32 s{sTag}, 0")
        a(f"s_cbranch_scc1 {L}_val")
    a.label(L)
    a(f"global_load_dword v{vt+1}, v{vt}, s[{S_DBG}:{S_DBG+1}] sc1")
    a("s_waitcnt vmcnt(0)")
    a(f"v_readfirstlane_b32 s{sTag}, v{vt+1}")
    a(f"s_sub_u32 s{sT3}, s{sT3}, 1")
    a(f"s_cmp_eq_u32 s{sT3}, 0")
    a(f"s_cbranch_scc1 {L}_done")
    a(f"s_cmp_eq_u32 s{sTag}, 0")
    a(f"s_cbranch_scc0 {L}_val")
    a("s_sleep 1")
    a(f"s_branch {L}")
    a.label(f"{L}_val")
    a("s_memrealtime s[62:63]")
    a("s_waitcnt lgkmcnt(0)")
    a(f"s_sub_u32 s62, s62, s{sTag}")
    a(f"s_cmp_lt_u32 s62, {TAG_AGE}")
    a(f"s_cbranch_scc1 {L}_done")
    a("s_mov_b64 s[62:63], exec")
    a("s_mov_b64 exec, 1")
    a(f"v_mov_b32 v{vt+1}, 0")
    a(f"global_atomic_add v{vt+1}, v{vt}, v{vt+1}, s[{S_DBG}:{S_DBG+1}] sc0 sc1")
    a("s_mov_b64 exec, s[62:63]")
    a("s_waitcnt vmcnt(0)")
    a(f"v_readfirstlane_b32 s{sTag}, v{vt+1}")
    a(f"s_cmp_eq_u32 s{sTag}, 0")
    a(f"s_cbranch_scc0 {L}_done")
    a(f"s_sub_u32 s{sT3}, s{sT3}, 1")
    a(f"s_cmp_eq_u32 s{sT3}, 0")
    a(f"s_cbranch_scc1 {L}_done")
    a("s_sleep 1")
    a(f"s_branch {L}")
    a.label(f"{L}_done")

def tag_to_lds(a, vt):
    a(f"v_mov_b32 v{vt}, {TAGL}")
    a(f"v_mov_b32 v{vt+1}, s{sTag}")
    a(f"ds_write_b32 v{vt}, v{vt+1}")

def tag_from_lds(a, vt):
    a(f"v_mov_b32 v{vt}, {TAGL}")
    a(f"ds_read_b32 v{vt+1}, v{vt}")

def poll_flags(a, vt, lab, s_idx, nflags, region, tries=None, sleep=None):
    if nflags == 128:
        poll_flags(a, vt, lab + "a", None, 64, region, tries, sleep)
        poll_flags(a, vt, lab + "b", None, 64, region + 64, tries, sleep)
        return
    L = f"{lab}_poll"
    a(f"v_lshlrev_b32 v{vt}, 7, v{vLane}")
    if s_idx is None:
        a(f"s_mov_b32 s63, {region*128}")
    else:
        a(f"s_lshl_b32 s63, s{s_idx}, 7")
        if region: a(f"s_add_u32 s63, s63, {region*128}")
    a(f"s_mov_b32 s{sT3}, {tries or SPIN_MAX}")
    a("s_mov_b64 s[100:101], exec")
    if nflags < 64:
        a(f"s_mov_b32 exec_lo, {(1 << min(nflags, 32)) - 1 if nflags < 32 else -1}")
        a(f"s_mov_b32 exec_hi, {((1 << (nflags - 32)) - 1) if nflags > 32 else 0}")
    a.label(L)
    a(f"buffer_load_dword v{vt+1}, v{vt}, s[{R_FL}:{R_FL+3}], s63 offen sc1")
    a("s_waitcnt vmcnt(0)")
    a(f"v_cmp_ne_u32 vcc, s{sTag}, v{vt+1}")
    a("s_nop 1")
    a(f"s_and_b64 exec, exec, vcc")
    a(f"s_cbranch_execz {L}_done")
    a(f"s_sub_u32 s{sT3}, s{sT3}, 1")
    a(f"s_cmp_eq_u32 s{sT3}, 0")
    a(f"s_cbranch_scc1 {L}_done")
    a(f"s_sleep {sleep if sleep is not None else OPT.get('sleep', 6)}")
    a(f"s_branch {L}")
    a.label(f"{L}_done")
    a("s_mov_b64 exec, s[100:101]")

def set_flag(a, vt, s_idx, region):
    a(f"v_mov_b32 v{vt}, s{sTag}")
    a(f"v_mov_b32 v{vt+1}, 0")
    a(f"s_lshl_b32 s63, s{s_idx}, 7")
    if region: a(f"s_add_u32 s63, s63, {region*128}")
    a("s_mov_b64 s[100:101], exec")
    a("s_mov_b64 exec, 1")
    a(f"buffer_store_dword v{vt}, v{vt+1}, s[{R_FL}:{R_FL+3}], s63 offen sc1")
    a("s_mov_b64 exec, s[100:101]")

def tr_addr(a, dst, dst2, pitch, hrows, second_rows, s_base, t):
    a(f"v_bfe_u32 v{t}, v{vLane}, 2, 2")
    a(f"v_mul_u32_u24 v{t+1}, {hrows}, v{vH}")
    a(f"v_add_u32 v{t}, v{t}, v{t+1}")
    a(f"v_bfe_u32 v{t+1}, v{vLane}, 4, 1")
    a(f"v_and_b32 v{t+2}, 3, v{vLane}")
    a(f"v_lshlrev_b32 v{t+2}, 3, v{t+2}")
    a(f"v_lshl_add_u32 v{t+1}, v{t+1}, 5, v{t+2}")
    a(f"v_mul_u32_u24 v{dst}, {pitch}, v{t}")
    a(f"v_add3_u32 v{dst}, v{dst}, v{t+1}, s{s_base}")
    if dst2 is not None:
        a(f"v_add_u32 v{dst2}, {second_rows*pitch}, v{dst}")

def role_A(a):
    OPT["nopre0"] = 1
    st = Stamps(a, "A")
    st.start()
    XB = 0; XP = 1056; XH = 528; RBUF = 42240
    RING = 42496; NSTG = 3; RW = NSTG*1024; DEPTH = 16
    KSTG = 57856
    KVX = 67072
    LFL = XB + 512
    LFL2 = XB + 1040
    T4F = 75264
    SB = [0, 16384, 32768, 49152]
    QBUF = 65536; QP = 328
    sStep, sSoff, sLds, sRho, sWrap, sIt = 57, 58, 59, 60, 61, 57
    sExp, sFD = 95, 94
    vT = 4
    vVo, vTr, vTr2, vX16 = 12, 13, 14, 15
    X = 16
    TMP = 36
    vSum, vSq, vM = 52, 53, 54
    vOne, vSelLo, vSelHi = 56, 57, 58
    vR, vXa, vWst, vTag = 9, 10, 11, 61
    ACC = 16; FB = 32; WS_ = 64
    a(f"s_mov_b32 s{sT2}, s2")
    decode_rb_cg(a, sT2)
    L_notag = "A_notag"
    a(f"s_cmp_lg_u32 s2, 0")
    a(f"s_cbranch_scc1 {L_notag}")
    a(f"s_cmp_lg_u32 s{sW}, 0")
    a(f"s_cbranch_scc1 {L_notag}")
    a(f"s_memrealtime s[62:63]")
    a("s_waitcnt lgkmcnt(0)")
    a(f"s_or_b32 s62, s62, 1")
    a(f"v_mov_b32 v{vT}, s62")
    a(f"v_mov_b32 v{vT+1}, 0")
    a("s_mov_b64 exec, 1")
    a(f"global_store_dword v{vT+1}, v{vT}, s[{S_DBG}:{S_DBG+1}] sc1")
    a("s_mov_b64 exec, -1")
    a.label(L_notag)
    srd(a, R_A, S_X, S_X+1, NX)
    a(f"s_lshl_b32 s{sT}, s{sRB}, 5")
    a(f"s_lshl_b32 s{sT2}, s{sW}, 2")
    a(f"s_add_u32 s{sT}, s{sT}, s{sT2}")
    a(f"v_lshrrev_b32 v{vT}, 4, v{vLane}")
    a(f"v_add_u32 v{vT}, s{sT}, v{vT}")
    a(f"v_mul_u32_u24 v{vT}, 1280, v{vT}")
    a(f"v_and_b32 v{vT+1}, 15, v{vLane}")
    a(f"v_lshl_add_u32 v{vT}, v{vT+1}, 4, v{vT}")
    for i in range(5):
        a(f"buffer_load_dwordx4 {vr(X+4*i,4)}, v{vT}, s[{R_A}:{R_A+3}], 0 offen offset:{256*i}")
    a(f"v_lshlrev_b32 v{vX16}, 4, v{vLane}")
    a(f"s_and_b32 s{sRho}, s{sRB}, 7")
    L_nowe = "A_nowe"
    a(f"s_cmp_lt_u32 s{sW}, 5")
    a(f"s_cbranch_scc1 {L_nowe}")
    a(f"s_cmp_ge_u32 s{sCG}, 2")
    a(f"s_cbranch_scc1 {L_nowe}")
    a(f"s_cmp_eq_u32 s{sCG}, 1")
    a(f"s_cselect_b32 s{R_B}, s{S_WV}, s{S_WK}")
    a(f"s_cselect_b32 s{R_B+1}, s{S_WV+1}, s{S_WK+1}")
    a(f"s_mov_b32 s{R_B+2}, {640*20*2}")
    a(f"s_mov_b32 s{R_B+3}, 0x00020000")
    a(f"s_sub_u32 s{sT}, s{sW}, 5")
    a(f"s_mul_i32 s{sStep}, s{sT}, 13")
    a(f"s_min_u32 s{sT}, s{sT}, 1")
    a(f"s_add_u32 s{sStep}, s{sStep}, s{sT}")
    a(f"s_mul_i32 s{sT}, s{sRho}, 5")
    a(f"s_add_u32 s{sT2}, s{sStep}, s{sT}")
    a(f"s_cmp_ge_u32 s{sT2}, 40")
    a(f"s_cselect_b32 s{sT}, 40, 0")
    a(f"s_sub_u32 s{sT2}, s{sT2}, s{sT}")
    a(f"s_mul_i32 s{sSoff}, s{sT2}, 640")
    for i in range(14):
        a(f"s_add_u32 s{sT}, s{sSoff}, 640")
        a(f"buffer_load_dwordx4 {vr(WS_+4*i,4)}, v{vX16}, s[{R_B}:{R_B+3}], s{sSoff} offen")
        a(f"s_cmp_eq_u32 s{sT}, 25600")
        a(f"s_cselect_b32 s{sSoff}, 0, s{sT}")
    a.label(L_nowe)
    a("s_barrier")
    L_nq = "A_nq"
    a(f"s_cmp_ge_u32 s{sW}, 5")
    a(f"s_cbranch_scc1 {L_nq}")
    srd(a, R_B, S_WQ, S_WQ+1, 640*640*2)
    a(f"v_lshrrev_b32 v{vT}, 2, v{vLane}")
    a(f"v_mul_u32_u24 v{vT}, 1280, v{vT}")
    a(f"v_and_b32 v{vT+1}, 3, v{vLane}")
    a(f"v_lshl_add_u32 v{vT}, v{vT+1}, 4, v{vT}")
    a(f"s_mul_i32 s{sT}, s{sCG}, 320")
    a(f"s_lshl_b32 s{sT2}, s{sW}, 6")
    a(f"s_add_u32 s{sT}, s{sT}, s{sT2}")
    a(f"v_add_u32 v{vVo}, s{sT}, v{vT}")
    a(f"s_mul_i32 s{sLds}, s{sW}, {RW}")
    a(f"s_add_u32 s{sLds}, s{sLds}, {RING}")
    a(f"s_mul_i32 s{sSoff}, s{sRho}, {5*20480}")
    def wload(k):
        d = WS_ + 4*(k % DEPTH)
        a(f"s_add_u32 s{sT}, s{sSoff}, 20480")
        a(f"buffer_load_dwordx4 {vr(d,4)}, v{vVo}, s[{R_B}:{R_B+3}], s{sSoff} offen")
        a(f"s_cmp_eq_u32 s{sT}, {40*20480}")
        a(f"s_cselect_b32 s{sSoff}, 0, s{sT}")
    NW0 = OPT.get("NW0", 8)
    for k in range(NW0): wload(k)
    tr_addr(a, vTr, vTr2, 64, 8, 4, sLds, vT)
    a(f"v_add_u32 v{vWst}, s{sLds}, v{vX16}")
    a(f"s_waitcnt vmcnt({NW0})")
    a(f"s_mov_b32 s{sTag}, 0")
    a(f"s_branch A_xok")
    a.label(L_nq)
    a(f"s_waitcnt vmcnt(14)")
    a(f"s_cmp_lt_u32 s{sCG}, 2")
    a(f"s_cbranch_scc1 A_xok2")
    a(f"s_waitcnt vmcnt(0)")
    a.label("A_xok2")
    a(f"v_mov_b32 v{vT}, 0")
    a(f"global_load_dword v{vTag}, v{vT}, s[{S_DBG}:{S_DBG+1}] sc1")
    a.label("A_xok")
    st.mark("xwait")
    a(f"v_mov_b32 v{vOne}, 0x3f803f80")
    a(f"v_mov_b32 v{vSelLo}, 0x00003f80")
    a(f"v_mov_b32 v{vSelHi}, 0x3f800000")
    for i in range(4): a(f"v_mov_b32 v{TMP+i}, 0")
    for i in range(20):
        a(f"v_dot2c_f32_bf16 v{TMP+(i%2)}, v{X+i}, v{vOne}")
        a(f"v_dot2c_f32_bf16 v{TMP+2+(i%2)}, v{X+i}, v{X+i}")
    a(f"v_lshrrev_b32 v{vT}, 4, v{vLane}")
    a(f"s_lshl_b32 s{sT}, s{sW}, 2")
    a(f"v_add_u32 v{vT}, s{sT}, v{vT}")
    a(f"v_and_b32 v{vT+1}, 1, v{vLane}")
    a(f"v_mul_u32_u24 v{vT+1}, {XH}, v{vT+1}")
    a(f"v_lshl_add_u32 v{vT+1}, v{vT}, 4, v{vT+1}")
    a(f"v_add_f32 v{vSum}, v{TMP}, v{TMP+1}")
    a(f"v_add_f32 v{vSq}, v{TMP+2}, v{TMP+3}")
    a(f"v_bfe_u32 v{vT+2}, v{vLane}, 1, 3")
    a(f"s_mul_i32 s{sT}, s{sRho}, 5")
    a(f"s_sub_u32 s{sT}, 40, s{sT}")
    for ror in (8, 4, 2, 1):
        a(f"v_add_f32_dpp v{vSum}, v{vSum}, v{vSum} row_ror:{ror} row_mask:0xf bank_mask:0xf")
        a(f"v_add_f32_dpp v{vSq}, v{vSq}, v{vSq} row_ror:{ror} row_mask:0xf bank_mask:0xf")
        if ror != 1: a.nop(1)
    a(f"v_add_u32 v{vT+2}, s{sT}, v{vT+2}")
    inv = f32bits(1.0/640)
    a(f"v_mul_f32 v{vM}, {inv}, v{vSum}")
    a(f"v_mul_f32 v{TMP+1}, {inv}, v{vSq}")
    a(f"v_fma_f32 v{TMP+1}, -v{vM}, v{vM}, v{TMP+1}")
    a(f"v_max_f32 v{TMP+1}, 0, v{TMP+1}")
    bf16_round(a, TMP+1, TMP+1)
    bf16_round(a, vM, vM)
    a(f"v_add_f32 v{TMP+1}, {f32bits(1e-5)}, v{TMP+1}")
    a(f"v_sub_f32 v{vM}, 0, v{vM}")
    bf16_round(a, TMP+1, TMP+1)
    a(f"v_sqrt_f32 v{vSum}, v{TMP+1}")
    for base in range(0, 20, 8):
        g = min(8, 20-base)
        for i in range(g):
            a(f"v_dot2_f32_bf16 v{TMP+2*i}, v{X+base+i}, v{vSelLo}, v{vM}")
            a(f"v_dot2_f32_bf16 v{TMP+2*i+1}, v{X+base+i}, v{vSelHi}, v{vM}")
        if base == 0:
            bf16_round(a, vSum, vSum)
            a(f"v_rcp_f32 v{vR}, v{vSum}")
        else:
            a.nop(3)
        for i in range(g):
            a(f"v_cvt_pk_bf16_f32 v{X+base+i}, v{TMP+2*i}, v{TMP+2*i+1}")
    a(f"v_lshlrev_b32 v{vT+3}, 2, v{vT}")
    a(f"ds_write_b32 v{vT+3}, v{vR} offset:{RBUF}")
    for i in range(5):
        if i: a(f"v_add_u32 v{vT+2}, 8, v{vT+2}")
        a(f"v_subrev_u32 v{vT+3}, 40, v{vT+2}")
        a(f"v_min_u32 v{vT+3}, v{vT+3}, v{vT+2}")
        a(f"v_mul_u32_u24 v{vT+3}, {XP}, v{vT+3}")
        a(f"v_add_u32 v{vT+3}, v{vT+3}, v{vT+1}")
        a(f"ds_write_b128 v{vT+3}, {vr(X+4*i,4)} offset:{XB}")
    a(f"v_mul_u32_u24 v{vXa}, {XH}, v{vH}")
    a(f"v_lshl_add_u32 v{vXa}, v{vN}, 4, v{vXa}")
    a(f"s_cmp_ge_u32 s{sW}, 5")
    a(f"s_cbranch_scc1 A_ln5")
    for k in range(NW0, 10): wload(k)
    a(f"s_cmp_eq_u32 s{sW}, 4")
    a(f"s_cbranch_scc1 A_lnb")
    for k in range(10, DEPTH): wload(k)
    a(f"s_branch A_lnb")
    a.label("A_ln5")
    a(f"v_mov_b32 v{vT}, {LFL}")
    for i in range(4): a(f"v_mov_b32 v{TMP+i}, 0")
    a(f"ds_write_b128 v{vT}, v[{TMP}:{TMP+3}]")
    a(f"ds_write_b128 v{vT}, v[{TMP}:{TMP+3}] offset:{LFL2-LFL}")
    a("s_waitcnt vmcnt(0)")
    a(f"v_readfirstlane_b32 s{sTag}, v{vTag}")
    a.label("A_lnb")
    a("s_waitcnt lgkmcnt(0)")
    a("s_barrier")
    a(f"v_lshlrev_b32 v{vT}, 2, v{vN}")
    a(f"ds_read_b32 v{vR}, v{vT} offset:{RBUF}")
    st.mark("LN")
    if OPT.get("diag"):
        a(f"s_cmp_lg_u32 s{sW}, 0"); Ld = a.newlabel("dg"); a(f"s_cbranch_scc1 {Ld}"); diag(a, 4, va=62); diag(a, 5, neg=True, va=62); a.label(Ld)
    def ensure_tag(lab):
        get_tag(a, vT, lab, have=True)
    L_kvp, L_exp, L_bar1 = "A_kvp", "A_exp", "A_bar1"
    a(f"s_cmp_ge_u32 s{sW}, 5")
    a(f"s_cbranch_scc1 {L_kvp}")
    a(f"s_cmp_eq_u32 s{sW}, 4")
    a(f"s_cbranch_scc1 A_job4")
    if OPT.get("noq"): a(f"s_branch {L_bar1}")
    def pipe_gemm(nsteps, wr, rd, need_vm, refill, cin0):
        for k in range(5):
            if k < nsteps:
                need_vm(k, -5 + k)
                wr(k)
            if 0 <= k - 2 < nsteps: rd(k - 2)
        for s_ in range(nsteps):
            n_ops = 0
            if s_ + 5 < nsteps:
                need_vm(s_ + 5, s_)
                wr(s_ + 5)
            if s_ + 3 < nsteps: rd(s_ + 3)
            for t in range(s_ + 1, s_ + 4):
                if t + 2 < nsteps: n_ops += 1
                if t < nsteps: n_ops += 3
            a(f"s_waitcnt lgkmcnt({n_ops})")
            f = FB + 8*(s_ % 4)
            cin = cin0 if s_ == 0 else vr(ACC, 16)
            a(f"v_mfma_f32_32x32x16_bf16 {vr(ACC,16)}, {vr(f,4)}, {vr(f+4,4)}, {cin}")
            refill(s_)
    def q_wr(k): a(f"ds_write_b128 v{vWst}, {vr(WS_+4*(k % DEPTH),4)} offset:{(k % NSTG)*1024}")
    def q_rd(k):
        f = FB + 8*(k % 4)
        a(f"ds_read_b64_tr_b16 v[{f}:{f+1}], v{vTr} offset:{(k % NSTG)*1024}")
        a(f"ds_read_b64_tr_b16 v[{f+2}:{f+3}], v{vTr2} offset:{(k % NSTG)*1024}")
        a(f"ds_read_b128 {vr(f+4,4)}, v{vXa} offset:{XB + k*XP}")
    def q_vm(k, s_now):
        issued = DEPTH + max(0, min(s_now, 40 - DEPTH + QOFF) - QOFF) if s_now > 0 else DEPTH
        issued = min(issued, 40)
        a(f"s_waitcnt vmcnt({issued - 1 - k})")
    QOFF = 0
    def q_refill(s_):
        if s_ + DEPTH < 40: wload(s_ + DEPTH)
    pipe_gemm(40, q_wr, q_rd, q_vm, q_refill, "0")
    st.mark("gemm")
    a.nop(12)
    a(f"v_mul_f32 v{vT}, {f32bits(QSCALE)}, v{vR}")
    for j in range(16): a(f"v_mul_f32 v{ACC+j}, v{ACC+j}, v{vT}")
    for k in range(8): a(f"v_cvt_pk_bf16_f32 v{TMP+k}, v{ACC+2*k}, v{ACC+2*k+1}")
    a(f"s_branch {L_bar1}")

    JW = WS_ + 20
    def job_loads():
        srd(a, R_B, S_WQ, S_WQ+1, 640*640*2)
        a(f"v_lshrrev_b32 v{vT}, 2, v{vLane}")
        a(f"v_mul_u32_u24 v{vT}, 1280, v{vT}")
        a(f"v_and_b32 v{vT+1}, 3, v{vLane}")
        a(f"v_lshl_add_u32 v{vT}, v{vT+1}, 4, v{vT}")
        a(f"s_mul_i32 s{sT}, s{sCG}, 320")
        a(f"s_add_u32 s{sT}, s{sT}, 256")
        a(f"v_add_u32 v{vT}, s{sT}, v{vT}")
        a(f"s_sub_u32 s{sT}, s{sW}, 4")
        a(f"s_mul_i32 s{sT}, s{sT}, 10")
        a(f"s_mul_i32 s{sT2}, s{sRho}, 5")
        a(f"s_add_u32 s{sT}, s{sT}, s{sT2}")
        a(f"s_cmp_ge_u32 s{sT}, 40")
        a(f"s_cselect_b32 s{sT2}, 40, 0")
        a(f"s_sub_u32 s{sT}, s{sT}, s{sT2}")
        a(f"s_mul_i32 s{sSoff}, s{sT}, 20480")
        for k in range(10):
            a(f"s_add_u32 s{sT}, s{sSoff}, 20480")
            a(f"buffer_load_dwordx4 {vr(JW+4*k,4)}, v{vT}, s[{R_B}:{R_B+3}], s{sSoff} offen")
            a(f"s_cmp_eq_u32 s{sT}, {40*20480}")
            a(f"s_cselect_b32 s{sSoff}, 0, s{sT}")
    def job_run(raw, vm_after):
        tr_addr(a, vTr, vTr2, 64, 8, 4, sLds, vT)
        a(f"v_add_u32 v{vWst}, s{sLds}, v{vX16}")
        a(f"s_sub_u32 s{sT}, s{sW}, 4")
        a(f"s_mul_i32 s{sT}, s{sT}, {10*XP}")
        a(f"v_add_u32 v{vVo}, s{sT}, v{vXa}")
        def j_wr(k): a(f"ds_write_b128 v{vWst}, {vr(raw+4*k,4)} offset:{(k % NSTG)*1024}")
        def j_rd(k):
            f = FB + 8*(k % 4)
            a(f"ds_read_b64_tr_b16 v[{f}:{f+1}], v{vTr} offset:{(k % NSTG)*1024}")
            a(f"ds_read_b64_tr_b16 v[{f+2}:{f+3}], v{vTr2} offset:{(k % NSTG)*1024}")
            a(f"ds_read_b128 {vr(f+4,4)}, v{vVo} offset:{k*XP}")
        def j_vm(k, s_): a(f"s_waitcnt vmcnt({9 - k + vm_after})")
        pipe_gemm(10, j_wr, j_rd, j_vm, lambda s_: None, "0")
        a("s_waitcnt lgkmcnt(0)")
        a.nop(12)
    def job_publish():
        Lp5, Lpd = a.newlabel("A_jp5"), a.newlabel("A_jpd")
        a(f"s_cmp_eq_u32 s{sW}, 5")
        a(f"s_cbranch_scc1 {Lp5}")
        for q in range(3): a(f"ds_write_b128 v{vWst}, {vr(ACC+4*q,4)} offset:{q*1024}")
        a(f"s_sub_u32 s{sT}, s{sW}, 6")
        a(f"s_lshl_b32 s{sT}, s{sT}, 10")
        a(f"s_add_u32 s{sT}, s{sT}, {T4F}")
        a(f"v_add_u32 v{vT}, s{sT}, v{vX16}")
        a(f"ds_write_b128 v{vT}, {vr(ACC+12,4)}")
        a(f"s_branch {Lpd}")
        a.label(Lp5)
        a(f"v_add_u32 v{vT}, {KVX+4096}, v{vX16}")
        for q in range(4): a(f"ds_write_b128 v{vT}, {vr(ACC+4*q,4)} offset:{q*1024}")
        a.label(Lpd)
        a(f"s_sub_u32 s{sT}, s{sW}, 5")
        a(f"s_lshl_b32 s{sT}, s{sT}, 2")
        a(f"s_add_u32 s{sT}, s{sT}, {LFL2}")
        a(f"v_mov_b32 v{vT}, s{sT}")
        a(f"v_mov_b32 v{vT+1}, 1")
        a(f"ds_write_b32 v{vT}, v{vT+1}")
    a.label("A_job4")
    job_run(WS_, 0)
    a(f"v_mov_b32 v{vT}, {LFL2}")
    a(f"s_mov_b32 s{sT3}, {SPIN_MAX}")
    a.label("A_j4spin")
    a(f"ds_read_b96 v[{vT+2}:{vT+4}], v{vT}")
    a("s_waitcnt lgkmcnt(0)")
    a(f"v_and_b32 v{vT+2}, v{vT+2}, v{vT+3}")
    a(f"v_and_b32 v{vT+2}, v{vT+2}, v{vT+4}")
    a("s_nop 0")
    a(f"v_readfirstlane_b32 s{sT}, v{vT+2}")
    a(f"s_sub_u32 s{sT3}, s{sT3}, 1")
    a(f"s_cmp_eq_u32 s{sT3}, 0")
    a(f"s_cbranch_scc1 A_j4spin_done")
    a(f"s_cmp_eq_u32 s{sT}, 1")
    a(f"s_cbranch_scc1 A_j4spin_done")
    a("s_sleep 1")
    a(f"s_branch A_j4spin")
    a.label("A_j4spin_done")
    a(f"v_add_u32 v{vT}, {KVX+4096}, v{vX16}")
    a(f"v_add_u32 v{vT+1}, {KSTG+3072}, v{vX16}")
    a(f"v_add_u32 v{vT+2}, {T4F}, v{vX16}")
    for q in range(4): a(f"ds_read_b128 {vr(64+4*q,4)}, v{vT} offset:{q*1024}")
    for p_ in range(2):
        for q in range(3): a(f"ds_read_b128 {vr(80+16*p_+4*q,4)}, v{vT+1} offset:{p_*3072 + q*1024}")
        a(f"ds_read_b128 {vr(80+16*p_+12,4)}, v{vT+2} offset:{p_*1024}")
    a("s_waitcnt lgkmcnt(0)")
    for j in range(16): a(f"v_add_f32 v{64+j}, v{64+j}, v{80+j}")
    for j in range(16): a(f"v_add_f32 v{ACC+j}, v{ACC+j}, v{96+j}")
    for j in range(16): a(f"v_add_f32 v{ACC+j}, v{ACC+j}, v{64+j}")
    st.mark("job4")
    a(f"v_mul_f32 v{vT}, {f32bits(QSCALE)}, v{vR}")
    for j in range(16): a(f"v_mul_f32 v{ACC+j}, v{ACC+j}, v{vT}")
    for k in range(8): a(f"v_cvt_pk_bf16_f32 v{TMP+k}, v{ACC+2*k}, v{ACC+2*k+1}")
    a(f"s_branch {L_bar1}")
    def export_d():
        a(f"s_mul_i32 s{sT}, s{sCG}, 2")
        a(f"s_add_u32 s{sT}, s{sT}, s{sW}")
        a(f"s_sub_u32 s{sT}, s{sT}, 6")
        a(f"s_sub_u32 s{sT2}, s{sT}, s{sRho}")
        a(f"s_and_b32 s{sT2}, s{sT2}, 7")
        a(f"s_mul_i32 s{sT2}, s{sT2}, {5*XP}")
        a(f"v_add_u32 v{vT}, s{sT2}, v{vXa}")
        for i in range(5):
            a(f"ds_read_b128 {vr(X+4*i,4)}, v{vT} offset:{XB + XP*i}")
        a(f"s_mul_i32 s{sT2}, s{sRB}, 40")
        a(f"s_mul_i32 s{sExp}, s{sT}, 5")
        a(f"s_add_u32 s{sT2}, s{sT2}, s{sExp}")
        a(f"s_lshl_b32 s{sT2}, s{sT2}, 10")
        if WS_XF: a(f"s_add_u32 s{sT2}, s{sT2}, {WS_XF}")
        a(f"s_lshl_b32 s{sFD}, s{sRB}, 3")
        a(f"s_add_u32 s{sFD}, s{sFD}, s{sT}")
        a(f"v_add_u32 v{vT+1}, 4096, v{vX16}")
        a("s_waitcnt lgkmcnt(0)")
        for i in range(4):
            a(f"buffer_store_dwordx4 {vr(X+4*i,4)}, v{vX16}, s[{R_WS}:{R_WS+3}], s{sT2} offen offset:{1024*i} sc1")
        a(f"buffer_store_dwordx4 {vr(X+16,4)}, v{vT+1}, s[{R_WS}:{R_WS+3}], s{sT2} offen sc1")
        L_nor = "A_nor"
        a(f"s_cmp_lg_u32 s{sT}, 0")
        a(f"s_cbranch_scc1 {L_nor}")
        a(f"s_lshl_b32 s{sT2}, s{sRB}, 7")
        a(f"s_add_u32 s{sT2}, s{sT2}, {WS_R}")
        a(f"v_lshlrev_b32 v{vT}, 2, v{vN}")
        a(f"buffer_store_dword v{vR}, v{vT}, s[{R_WS}:{R_WS+3}], s{sT2} offen sc1")
        a.label(L_nor)
    a.label(L_kvp)
    a("s_setprio 3")
    if OPT.get("expfirst", 0):
        a(f"s_cmp_lt_u32 s{sW}, 6")
        a(f"s_cbranch_scc1 A_noexp")
        export_d()
        a.label("A_noexp")
    a(f"s_cmp_ge_u32 s{sCG}, 2")
    a(f"s_cbranch_scc1 A_kvp_skip")
    a(f"s_sub_u32 s{sT}, s{sW}, 5")
    a(f"s_mul_i32 s{sLds}, s{sT}, 3072")
    a(f"s_add_u32 s{sLds}, s{sLds}, {KSTG}")
    tr_addr(a, vTr, vTr2, 40, 8, 4, sLds, vT)
    a(f"v_add_u32 v{vWst}, s{sLds}, v{vX16}")
    a(f"s_mul_i32 s{sT}, s{sStep}, {XP}")
    a(f"v_add_u32 v{vVo}, s{sT}, v{vXa}")
    a(f"v_add_u32 v{vT+4}, {13*XP}, v{vVo}")
    a(f"s_cmp_eq_u32 s{sW}, 5")
    a(f"s_cbranch_scc1 A_kv13")
    for i in range(4): a(f"v_mov_b32 v{WS_+52+i}, 0")
    a(f"v_mov_b32 v{vT+4}, v{vXa}")
    a.label("A_kv13")
    def k_wr(k): a(f"ds_write_b128 v{vWst}, {vr(WS_+4*k,4)} offset:{(k % NSTG)*1024}")
    def k_rd(k):
        f = FB + 8*(k % 4)
        a(f"ds_read_b64_tr_b16 v[{f}:{f+1}], v{vTr} offset:{(k % NSTG)*1024}")
        a(f"ds_read_b64_tr_b16 v[{f+2}:{f+3}], v{vTr2} offset:{(k % NSTG)*1024}")
        if k == 13: a(f"ds_read_b128 {vr(f+4,4)}, v{vT+4}")
        else: a(f"ds_read_b128 {vr(f+4,4)}, v{vVo} offset:{k*XP}")
    pipe_gemm(14, k_wr, k_rd, lambda k, s_: None, lambda s_: None, "0")
    a("s_waitcnt lgkmcnt(0)")
    job_loads()
    a(f"s_cmp_eq_u32 s{sW}, 5")
    a(f"s_cbranch_scc1 A_kv5")
    a(f"s_sub_u32 s{sT}, s{sW}, 6")
    a(f"s_lshl_b32 s{sT}, s{sT}, 12")
    a(f"s_add_u32 s{sT}, s{sT}, {KVX}")
    a(f"v_add_u32 v{vT}, s{sT}, v{vX16}")
    for q in range(4):
        a(f"ds_write_b128 v{vT}, {vr(ACC+4*q,4)} offset:{q*1024}")
    a(f"s_sub_u32 s{sT}, s{sW}, 6")
    a(f"s_lshl_b32 s{sT}, s{sT}, 2")
    a(f"s_add_u32 s{sT}, s{sT}, {LFL}")
    a(f"v_mov_b32 v{vT}, s{sT}")
    a(f"v_mov_b32 v{vT+1}, 1")
    a(f"ds_write_b32 v{vT}, v{vT+1}")
    a(f"s_branch A_kvp_done")
    a.label("A_kv5")
    a(f"v_mov_b32 v{vT}, {LFL}")
    a(f"s_mov_b32 s{sT3}, {SPIN_MAX}")
    a.label("A_kvspin")
    a(f"ds_read_b64 v[{vT+2}:{vT+3}], v{vT}")
    a("s_waitcnt lgkmcnt(0)")
    a(f"v_and_b32 v{vT+2}, v{vT+2}, v{vT+3}")
    a("s_nop 0")
    a(f"v_readfirstlane_b32 s{sT}, v{vT+2}")
    a(f"s_sub_u32 s{sT3}, s{sT3}, 1")
    a(f"s_cmp_eq_u32 s{sT3}, 0")
    a(f"s_cbranch_scc1 A_kvspin_done")
    a(f"s_cmp_eq_u32 s{sT}, 1")
    a(f"s_cbranch_scc1 A_kvspin_done")
    a("s_sleep 1")
    a(f"s_branch A_kvspin")
    a.label("A_kvspin_done")
    a(f"v_add_u32 v{vT}, {KVX}, v{vX16}")
    for p_ in range(2):
        for q in range(4):
            a(f"ds_read_b128 {vr(FB+16*p_+4*q,4)}, v{vT} offset:{p_*4096 + q*1024}")
    a("s_waitcnt lgkmcnt(0)")
    for j in range(16):
        a(f"v_add_f32 v{FB+j}, v{FB+j}, v{FB+16+j}")
    for j in range(16):
        a(f"v_add_f32 v{ACC+j}, v{ACC+j}, v{FB+j}")
    for j in range(16): a(f"v_mul_f32 v{ACC+j}, v{ACC+j}, v{vR}")
    a(f"v_cmp_eq_u32 vcc, 1, v{vH}")
    a(f"v_mov_b32 v{vT}, 1.0")
    a(f"v_mov_b32 v{vT+1}, 0")
    a(f"v_cndmask_b32 v{ACC+8}, v{ACC+8}, v{vT}, vcc")
    for j in range(9, 12): a(f"v_cndmask_b32 v{ACC+j}, v{ACC+j}, v{vT+1}, vcc")
    for j in range(12, 16): a(f"v_mov_b32 v{ACC+j}, 0")
    for k in range(8): a(f"v_cvt_pk_bf16_f32 v{TMP+k}, v{ACC+2*k}, v{ACC+2*k+1}")
    a(f"s_mul_i32 s{sT}, s{sRB}, {TS}")
    a(f"s_add_u32 s{sT}, s{sT}, {WS_KV}")
    L_v = "A_v"; L_kvdone = "A_kvdone"
    a(f"s_cmp_eq_u32 s{sCG}, 1")
    a(f"s_cbranch_scc1 {L_v}")
    a(f"buffer_store_dwordx4 {vr(TMP,4)}, v{vX16}, s[{R_WS}:{R_WS+3}], s{sT} offen sc1")
    a(f"v_lshlrev_b32 v{vT}, 3, v{vLane}")
    a(f"s_mov_b32 exec_hi, 0")
    a(f"buffer_store_dwordx2 v[{TMP+4}:{TMP+5}], v{vT}, s[{R_WS}:{R_WS+3}], s{sT} offen offset:1024 sc1")
    a(f"s_mov_b32 exec_hi, -1")
    a(f"s_branch {L_kvdone}")
    a.label(L_v)
    a(f"s_mov_b32 s{sLds}, {KVX}")
    a(f"v_lshlrev_b32 v{vT}, 6, v{vN}")
    a(f"v_lshl_add_u32 v{vT}, v{vH}, 3, v{vT}")
    a(f"v_add_u32 v{vT}, s{sLds}, v{vT}")
    for q in range(4):
        a(f"ds_write_b64 v{vT}, v[{TMP+2*q}:{TMP+2*q+1}] offset:{16*q}")
    tr_addr(a, vTr, None, 64, 4, 8, sLds, vT+1)
    for u in range(2):
        a(f"ds_read_b64_tr_b16 v[{TMP+8+4*u}:{TMP+9+4*u}], v{vTr} offset:{u*1024}")
        a(f"ds_read_b64_tr_b16 v[{TMP+10+4*u}:{TMP+11+4*u}], v{vTr} offset:{u*1024 + 512}")
    a(f"v_mul_u32_u24 v{vT}, {VH}, v{vH}")
    a(f"v_lshl_add_u32 v{vT}, v{vN}, 4, v{vT}")
    a(f"s_mov_b32 exec_lo, 0x3fffff")
    a(f"s_mov_b32 exec_hi, 0x3fffff")
    a("s_waitcnt lgkmcnt(0)")
    a(f"buffer_store_dwordx4 {vr(TMP+8,4)}, v{vT}, s[{R_WS}:{R_WS+3}], s{sT} offen offset:1280 sc1")
    a(f"buffer_store_dwordx4 {vr(TMP+12,4)}, v{vT}, s[{R_WS}:{R_WS+3}], s{sT} offen offset:{1280+VF} sc1")
    a(f"s_mov_b64 exec, -1")
    a.label(L_kvdone)
    ensure_tag("A5")
    a("s_waitcnt vmcnt(0)")
    st.mark("k5:drain")
    a(f"s_lshl_b32 s{sT}, s{sRB}, 1")
    a(f"s_add_u32 s{sT}, s{sT}, s{sCG}")
    set_flag(a, vT, sT, FL_KV)
    a(f"s_mov_b32 s{sLds}, {KSTG}")
    job_run(JW, 1)
    job_publish()
    a(f"s_branch {L_bar1}")
    a.label("A_kvp_skip")
    job_loads()
    a(f"s_cmp_lg_u32 s{sW}, 5")
    a(f"s_cbranch_scc1 A_kvp_done")
    a(f"s_mov_b32 s{sLds}, {KSTG}")
    job_run(JW, 0)
    job_publish()
    a(f"s_branch {L_bar1}")
    a.label("A_kvp_done")
    if not OPT.get("expfirst", 0): export_d()
    ensure_tag("A6")
    tag_to_lds(a, vT)
    a(f"s_waitcnt vmcnt({10 if OPT.get('expfirst', 0) else 0})")
    st.mark("x:drain")
    set_flag(a, vT, sFD, FL_D)
    a(f"s_sub_u32 s{sT}, s{sW}, 5")
    a(f"s_mul_i32 s{sLds}, s{sT}, 3072")
    a(f"s_add_u32 s{sLds}, s{sLds}, {KSTG}")
    job_run(JW, 1)
    job_publish()
    a.label(L_bar1)
    a("s_waitcnt vmcnt(0)")
    a.label("A_bar1_nowait")
    a("s_setprio 0")
    a("s_waitcnt lgkmcnt(0)")
    a("s_barrier")
    st.mark("bar0")
    vA16 = vX16
    aK1, aK2, aV, nK1, nK2, nV = 64, 65, 66, 67, 68, 69
    bK2, bV = 70, 71
    CN = 80
    S = [16, 32]
    O = 48
    P = 96
    Q1, Q2 = 104, 108
    K1, K2 = 112, 116
    V1, V2 = 120, 124
    vM2 = 110
    sSoffK, sLdsW, sSlot, sCk = 58, 59, 60, 61
    vFl, vFlo = 72, 73
    srd(a, R_A, S_WS, S_WS+1, KVB, WS_KV)
    a(f"s_lshl_b32 s{sLdsW}, s{sW}, 10")
    a(f"v_lshlrev_b32 v{bK2}, 3, v{vN}")
    a(f"v_add_u32 v{bK2}, 1024, v{bK2}")
    a(f"v_mov_b32 v{vT}, {1280 + 21*16}")
    a(f"v_cmp_eq_u32 vcc, 1, v{vH}")
    a(f"v_min_u32 v{bV}, 21, v{vN}")
    a(f"v_lshlrev_b32 v{bV}, 4, v{bV}")
    a(f"v_cndmask_b32 v{bK2}, v{bK2}, v{vT}, vcc")
    a(f"v_mul_u32_u24 v{vT}, {VH}, v{vH}")
    a(f"v_add3_u32 v{bV}, v{bV}, v{vT}, 0")
    a(f"v_add_u32 v{bV}, 1280, v{bV}")
    def dma_chunk(slot_s):
        Ls = a.newlabel("A_dm")
        a(f"s_cmp_ge_u32 s{sW}, 4")
        a(f"s_cbranch_scc1 {Ls}")
        a(f"s_add_u32 s{sT}, s{slot_s}, s{sLdsW}")
        a(f"s_add_u32 s{sT2}, s{sSoffK}, s{sLdsW}")
        for i in range(6):
            if i == 5:
                a(f"s_cmp_lg_u32 s{sW}, 0")
                a(f"s_cbranch_scc1 {Ls}")
            a(f"s_add_u32 m0, s{sT}, {4096*i}")
            a(f"s_add_u32 s{sT3}, s{sT2}, {4096*i}")
            a(f"buffer_load_dwordx4 v{vA16}, s[{R_A}:{R_A+3}], s{sT3} offen sc1 lds")
        a.label(Ls)
        a(f"s_add_u32 s{sSoffK}, s{sSoffK}, {CH}")
        a(f"s_cmp_eq_u32 s{sSoffK}, {8*CH}")
        a(f"s_cselect_b32 s{sSoffK}, 0, s{sSoffK}")
        a(f"s_add_u32 s{sCk}, s{sCk}, 1")
        a(f"s_and_b32 s{sCk}, s{sCk}, 7")
    L_noqw = "A_noqw"
    a(f"v_mul_u32_u24 v{vT}, {QP}, v{vN}")
    a(f"v_add_u32 v{vT}, {QBUF}, v{vT}")
    a(f"s_cmp_ge_u32 s{sW}, 5")
    a(f"s_cbranch_scc1 {L_noqw}")
    a(f"s_lshl_b32 s{sT}, s{sW}, 6")
    a(f"v_lshl_add_u32 v{vT+1}, v{vH}, 3, v{vT}")
    a(f"v_add_u32 v{vT+1}, s{sT}, v{vT+1}")
    for q in range(4):
        a(f"ds_write_b64 v{vT+1}, v[{TMP+2*q}:{TMP+2*q+1}] offset:{16*q}")
    a.label(L_noqw)
    a("s_waitcnt lgkmcnt(0)")
    a("s_barrier")
    a(f"s_mul_i32 s{sT}, s{sW}, 40")
    a(f"v_add_u32 v{vT}, s{sT}, v{vT}")
    a(f"v_lshl_add_u32 v{vT+1}, v{vH}, 3, v{vT}")
    a(f"ds_read_b64 v[{Q1}:{Q1+1}], v{vT+1}")
    a(f"ds_read_b64 v[{Q1+2}:{Q1+3}], v{vT+1} offset:16")
    a(f"ds_read_b64 v[{Q2}:{Q2+1}], v{vT} offset:32")
    a(f"v_mov_b32 v{aK1}, v{vA16}")
    a(f"v_mov_b32 v{aK2}, v{bK2}")
    a(f"v_mov_b32 v{aV}, v{bV}")
    a(f"v_add_u32 v{nK1}, {CH}, v{vA16}")
    a(f"v_add_u32 v{nK2}, {CH}, v{bK2}")
    a(f"v_add_u32 v{nV}, {CH}, v{bV}")
    for i in range(16): a(f"v_mov_b32 v{O+i}, 0")
    a(f"v_cmp_eq_u32 vcc, 1, v{vH}")
    a(f"v_mov_b32 v{vT}, 0")
    a("s_waitcnt lgkmcnt(0)")
    a(f"v_cndmask_b32 v{Q2}, v{Q2}, v{vT}, vcc")
    a(f"v_cndmask_b32 v{Q2+1}, v{Q2+1}, v{vT}, vcc")
    a(f"s_lshr_b32 s{sCk}, s{sRB}, 3")
    a(f"s_mul_i32 s{sSoffK}, s{sCk}, {CH}")
    def check_chunk(lab):
        a(f"s_cmp_lg_u32 s{sW}, 7")
        a(f"s_cbranch_scc1 {lab}_skip")
        a(f"s_lshl_b32 s{sT}, s{sCk}, 4")
        poll_flags(a, vT+2, lab, sT, 16, FL_KV, sleep=OPT.get("kvsleep", 1))
        a.label(f"{lab}_skip")
    check_chunk("A7a")
    a("s_barrier")
    st.mark("bar1")
    a(f"s_mov_b32 s{sSlot}, 0")
    dma_chunk(sSlot)
    a(f"v_min_u32 v{vFlo}, 15, v{vLane}")
    a(f"v_lshlrev_b32 v{vFlo}, 7, v{vFlo}")
    def rd(dst, n, t, off, cur, nxt, op):
        v_ = cur if t < 8 else nxt
        a(f"{op} {vr(dst,n)}, v{v_} offset:{(t % 8)*TS + off}")
    def rd_K1(t): rd(K1, 4, t, 0, aK1, nK1, "ds_read_b128")
    def rd_K2(t): rd(K2, 2, t, 0, aK2, nK2, "ds_read_b64")
    def rd_V1(t): rd(V1, 4, t, 0, aV, nV, "ds_read_b128")
    def rd_V2(t): rd(V2, 4, t, VF, aV, nV, "ds_read_b128")
    def qk1(dst, c="0"): a(f"v_mfma_f32_32x32x16_bf16 {vr(dst,16)}, {vr(K1,4)}, {vr(Q1,4)}, {c}")
    def qk2(dst): a(f"v_mfma_f32_32x32x8_bf16 {vr(dst,16)}, {vr(K2,2)}, {vr(Q2,2)}, {vr(dst,16)}")
    CNR = vr(CN, 16)
    if OPT.get("chk2early"): check_chunk("A7b")
    a("s_waitcnt vmcnt(0)")
    a("s_barrier")
    if OPT.get("chk2early"):
        a(f"s_mov_b32 s{sSlot}, {CH}")
        dma_chunk(sSlot)
        a(f"s_mov_b32 s{sSlot}, {2*CH}")
    rd_K1(0); rd_K2(0)
    def set_m(delta):
        a(f"v_mov_b32 v{vT}, v{vM2}")
        a.nop(2)
        a(f"v_permlane32_swap_b32 v{vM2}, v{vT}")
        a.nop(1)
        a(f"v_max_f32 v{vM2}, v{vM2}, v{vT}")
        if delta: a(f"v_add_f32 v{vM2}, {f32bits(delta)}, v{vM2}")
        for i in range(16): a(f"v_sub_f32 v{CN+i}, 0, v{vM2}")
    a(f"v_mov_b32 v{vM2}, 0xff800000")
    a("s_waitcnt lgkmcnt(0)")
    qk1(S[0]); qk2(S[0])
    rd_K1(1); rd_K2(1)
    a("s_waitcnt lgkmcnt(0)")
    qk1(S[1]); qk2(S[1])
    rd_K1(0); rd_K2(0)
    for i in range(4, 8): a(f"v_mov_b32 v{P+i}, 0")
    for i in range(4): a(f"v_mov_b32 v{V2+i}, 0")
    a.nop(4)
    for i in range(8):
        a(f"v_max3_f32 v{vM2}, v{S[0]+2*i}, v{S[0]+2*i+1}, v{vM2}")
    a.nop(4)
    for i in range(8):
        a(f"v_max3_f32 v{vM2}, v{S[1]+2*i}, v{S[1]+2*i+1}, v{vM2}")
    set_m(DELTA)
    a("s_waitcnt lgkmcnt(0)")
    a.nop(1)
    qk1(S[0], CNR); qk2(S[0])
    rd_K1(1); rd_K2(1); rd_V1(0)
    if not OPT.get("chk2early"):
        check_chunk("A7b")
        a("s_barrier")
        a(f"s_mov_b32 s{sSlot}, {CH}")
        dma_chunk(sSlot)
        a(f"s_mov_b32 s{sSlot}, {2*CH}")
    a.nop(12)
    st.mark("sample")
    a(f"s_setprio {OPT.get('pb', 0)}")
    if OPT.get("fair", 1):
        a(f"s_cmp_lt_u32 s{sW}, 4")
        a(f"s_cbranch_scc1 A_pr0")
        a(f"s_setprio {1 + OPT.get('pb', 0)}")
        a.label("A_pr0")
    a(f"s_mov_b32 s{sIt}, 0")
    L_loop = "A_loop"
    a(".p2align 6")
    a.label(L_loop)
    def e(cur, i): a(f"v_exp_f32 v{cur+i}, v{cur+i}")
    def p(cur, k): a(f"v_cvt_pk_bf16_f32 v{P+k}, v{cur+2*k}, v{cur+2*k+1}")
    for t in range(8):
        cur, nxt = S[t % 2], S[(t+1) % 2]
        if t == OPT.get("tdrop", 4) and OPT.get("fair", 1):
            a(f"s_setprio {OPT.get('pb', 0)}")
        if t == 0:
            a(f"s_cmp_lg_u32 s{sW}, 7")
            a(f"s_cbranch_scc1 A_nf0")
            a(f"s_lshl_b32 s{sT}, s{sCk}, 11")
            a(f"s_add_u32 s{sT}, s{sT}, {FL_KV*128}")
            a(f"buffer_load_dword v{vFl}, v{vFlo}, s[{R_FL}:{R_FL+3}], s{sT} offen sc1")
            a.label("A_nf0")
        if t == 6:
            a("s_waitcnt vmcnt(0)")
            a(f"s_cmp_lg_u32 s{sW}, 7")
            a(f"s_cbranch_scc1 A_nf6")
            a(f"v_cmp_ne_u32 vcc, s{sTag}, v{vFl}")
            a("s_nop 1")
            a(f"s_cmp_eq_u64 vcc, 0")
            a(f"s_cbranch_scc1 A_nf6")
            a(f"s_lshl_b32 s{sT}, s{sCk}, 4")
            poll_flags(a, vT+2, "A7c", sT, 16, FL_KV, sleep=1)
            a.label("A_nf6")
            a("s_barrier")
            if OPT.get("fair", 1):
                a(f"s_cmp_lt_u32 s{sW}, 4")
                a(f"s_cbranch_scc1 A_pr6")
                a(f"s_setprio {1 + OPT.get('pb', 0)}")
                a.label("A_pr6")
            dma_chunk(sSlot)
            a(f"s_add_u32 s{sSlot}, s{sSlot}, {CH}")
            a(f"s_cmp_eq_u32 s{sSlot}, {3*CH}")
            a(f"s_cselect_b32 s{sSlot}, 0, s{sSlot}")
        e(cur, 0); e(cur, 1)
        a("s_waitcnt lgkmcnt(2)")
        a(f"v_mfma_f32_32x32x16_bf16 {vr(O,16)}, {vr(V2,4)}, {vr(P+4,4)}, {vr(O,16)}")
        rd_V2(t)
        e(cur, 2); e(cur, 3); p(cur, 0); p(cur, 1)
        qk1(nxt, CNR)
        rd_K1(t+2)
        e(cur, 4); e(cur, 5); e(cur, 6); e(cur, 7); p(cur, 2); p(cur, 3)
        a("s_waitcnt lgkmcnt(2)")
        qk2(nxt)
        rd_K2(t+2)
        e(cur, 8); e(cur, 9); e(cur, 10); e(cur, 11); p(cur, 4); p(cur, 5)
        a(f"v_mfma_f32_32x32x16_bf16 {vr(O,16)}, {vr(V1,4)}, {vr(P,4)}, {vr(O,16)}")
        rd_V1(t+1)
        e(cur, 12); e(cur, 13); e(cur, 14); e(cur, 15); p(cur, 6); p(cur, 7)
    a(f"v_mov_b32 v{aK1}, v{nK1}")
    a(f"v_mov_b32 v{aK2}, v{nK2}")
    a(f"v_mov_b32 v{aV}, v{nV}")
    a(f"s_add_u32 s{sT}, s{sSlot}, {2*CH}")
    a(f"s_cmp_ge_u32 s{sT}, {3*CH}")
    a(f"s_cselect_b32 s{sT2}, {3*CH}, 0")
    a(f"s_sub_u32 s{sT}, s{sT}, s{sT2}")
    a(f"v_add_u32 v{nK1}, s{sT}, v{vA16}")
    a(f"v_add_u32 v{nK2}, s{sT}, v{bK2}")
    a(f"v_add_u32 v{nV}, s{sT}, v{bV}")
    a(f"s_add_u32 s{sIt}, s{sIt}, 1")
    a(f"s_cmp_lt_u32 s{sIt}, 8")
    a(f"s_cbranch_scc1 {L_loop}")
    a("s_waitcnt lgkmcnt(0)")
    a(f"v_mfma_f32_32x32x16_bf16 {vr(O,16)}, {vr(V2,4)}, {vr(P+4,4)}, {vr(O,16)}")
    a("s_setprio 0")
    st.mark("loop")
    if OPT.get("diag"):
        a(f"s_cmp_lg_u32 s{sW}, 0"); Ld = a.newlabel("dg"); a(f"s_cbranch_scc1 {Ld}"); diag(a, 8); diag(a, 9, neg=True); a.label(Ld)
    a.nop(16)
    L_fin, L_slow = "A_fin", "A_slow"
    a(f"s_mov_b32 s{sIt}, 0")
    a.label(L_fin)
    a(f"v_mov_b32 v{vT}, v{O+8}")
    a(f"v_mov_b32 v{vT+1}, v{O+8}")
    a.nop(2)
    a(f"v_permlane32_swap_b32 v{vT}, v{vT+1}")
    a(f"v_max3_f32 v{vT+2}, |v{O}|, |v{O+1}|, |v{O+2}|")
    for j in range(3, 12, 2):
        j2 = min(j+1, 11)
        a(f"v_max3_f32 v{vT+2}, |v{O+j}|, |v{O+j2}|, v{vT+2}")
    a(f"v_mov_b32 v{vT+3}, {f32bits(2.0**120)}")
    a(f"v_cmp_nlt_f32 vcc, v{vT+2}, v{vT+3}")
    a(f"v_cmp_nlt_f32 s[62:63], 0, v{vT+1}")
    a.nop(1)
    a(f"s_or_b64 vcc, vcc, s[62:63]")
    a(f"s_cmp_eq_u64 vcc, 0")
    a(f"s_cbranch_scc1 A_store")
    a(f"s_cmp_lg_u32 s{sIt}, 0")
    a(f"s_cbranch_scc1 A_store")
    a(f"s_branch {L_slow}")
    a.label("A_store")
    a(f"v_rcp_f32 v{vT+2}, v{vT+1}")
    a.nop(1)
    for j in range(12): a(f"v_mul_f32 v{O+j}, v{O+j}, v{vT+2}")
    for k in range(6): a(f"v_cvt_pk_bf16_f32 v{P+k}, v{O+2*k}, v{O+2*k+1}")
    a(f"s_lshl_b32 s{sT}, s{sCG}, 3")
    a(f"s_add_u32 s{sT}, s{sT}, s{sW}")
    a(f"s_mul_i32 s{sT}, s{sT}, 20")
    a(f"s_mul_i32 s{sT2}, s{sRB}, {40*1024}")
    a(f"s_add_u32 s{sT2}, s{sT2}, {WS_OF}")
    def oaddr(dst, colv):
        a(f"v_lshrrev_b32 v{dst}, 4, v{colv}")
        a(f"v_lshlrev_b32 v{dst}, 10, v{dst}")
        a(f"v_bfe_u32 v{vT+7}, v{colv}, 3, 1")
        a(f"v_lshl_add_u32 v{dst}, v{vT+7}, 9, v{dst}")
        a(f"v_and_b32 v{vT+7}, 7, v{colv}")
        a(f"v_lshl_add_u32 v{dst}, v{vT+7}, 1, v{dst}")
        a(f"v_lshl_add_u32 v{dst}, v{vN}, 4, v{dst}")
    a(f"v_lshlrev_b32 v{vT+3}, 2, v{vH}")
    a(f"v_add_u32 v{vT+3}, s{sT}, v{vT+3}")
    oaddr(vT+4, vT+3)
    a(f"buffer_store_dwordx2 v[{P}:{P+1}], v{vT+4}, s[{R_WS}:{R_WS+3}], s{sT2} offen sc1")
    a(f"v_add_u32 v{vT+3}, 8, v{vT+3}")
    oaddr(vT+5, vT+3)
    a(f"buffer_store_dwordx2 v[{P+2}:{P+3}], v{vT+5}, s[{R_WS}:{R_WS+3}], s{sT2} offen sc1")
    a(f"s_add_u32 s{sT}, s{sT}, 16")
    a(f"v_mov_b32 v{vT+3}, s{sT}")
    oaddr(vT+6, vT+3)
    a(f"v_cmp_eq_u32 vcc, 0, v{vH}")
    a(f"s_and_saveexec_b64 s[62:63], vcc")
    a(f"buffer_store_dwordx2 v[{P+4}:{P+5}], v{vT+6}, s[{R_WS}:{R_WS+3}], s{sT2} offen sc1")
    a(f"s_mov_b64 exec, s[62:63]")
    tag_from_lds(a, vT)
    a("s_waitcnt vmcnt(0) lgkmcnt(0)")
    a(f"v_readfirstlane_b32 s{sTag}, v{vT+1}")
    a(f"s_lshl_b32 s{sT}, s{sRB}, 2")
    a(f"s_add_u32 s{sT}, s{sT}, s{sCG}")
    a(f"s_lshl_b32 s{sT}, s{sT}, 3")
    a(f"s_add_u32 s{sT}, s{sT}, s{sW}")
    set_flag(a, vT, sT, FL_O)
    st.end()
    a("s_endpgm")
    a.label(L_slow)
    a(f"v_mov_b32 v{vM2}, 0xff800000")
    a(f"s_mov_b32 s{sSoffK}, 0")
    a.label("A_slow1")
    a(f"buffer_load_dwordx4 {vr(K1,4)}, v{vA16}, s[{R_A}:{R_A+3}], s{sSoffK} offen sc1")
    a(f"buffer_load_dwordx2 {vr(K2,2)}, v{bK2}, s[{R_A}:{R_A+3}], s{sSoffK} offen sc1")
    a("s_waitcnt vmcnt(0)")
    qk1(S[0]); qk2(S[0])
    a.nop(16)
    for i in range(8):
        a(f"v_max3_f32 v{vM2}, v{S[0]+2*i}, v{S[0]+2*i+1}, v{vM2}")
    a(f"s_add_u32 s{sSoffK}, s{sSoffK}, {TS}")
    a(f"s_cmp_lt_u32 s{sSoffK}, {KVB}")
    a(f"s_cbranch_scc1 A_slow1")
    set_m(0.0)
    for i in range(16): a(f"v_mov_b32 v{O+i}, 0")
    a(f"s_mov_b32 s{sSoffK}, 0")
    a.label("A_slow2")
    a(f"buffer_load_dwordx4 {vr(K1,4)}, v{vA16}, s[{R_A}:{R_A+3}], s{sSoffK} offen sc1")
    a(f"buffer_load_dwordx2 {vr(K2,2)}, v{bK2}, s[{R_A}:{R_A+3}], s{sSoffK} offen sc1")
    a(f"buffer_load_dwordx4 {vr(V1,4)}, v{bV}, s[{R_A}:{R_A+3}], s{sSoffK} offen sc1")
    a(f"buffer_load_dwordx4 {vr(V2,4)}, v{bV}, s[{R_A}:{R_A+3}], s{sSoffK} offen offset:{VF} sc1")
    a("s_waitcnt vmcnt(0)")
    qk1(S[0], CNR); qk2(S[0])
    a.nop(16)
    for i in range(16): e(S[0], i)
    a.nop(1)
    for k in range(8): p(S[0], k)
    a.nop(2)
    a(f"v_mfma_f32_32x32x16_bf16 {vr(O,16)}, {vr(V1,4)}, {vr(P,4)}, {vr(O,16)}")
    a(f"v_mfma_f32_32x32x16_bf16 {vr(O,16)}, {vr(V2,4)}, {vr(P+4,4)}, {vr(O,16)}")
    a(f"s_add_u32 s{sSoffK}, s{sSoffK}, {TS}")
    a(f"s_cmp_lt_u32 s{sSoffK}, {KVB}")
    a(f"s_cbranch_scc1 A_slow2")
    a.nop(16)
    a(f"s_mov_b32 s{sIt}, 1")
    a(f"s_branch {L_fin}")

def role_B1(a):
    st = Stamps(a, "B")
    st.start()
    if OPT.get("bprio"): a(f"s_setprio {OPT['bprio']}")
    sG, sC = sRB, sCG
    sSoffW, sSoffX, sLdsW, sKH, sXb = 57, 58, 59, 60, 99
    vT = 4; vW = 10; vTr, vX16, vR = 13, 14, 15
    XS = 16; WF = 48; ACC = 76
    SLOT = 24576
    a(f"s_sub_u32 s{sT2}, s2, 256")
    a(f"s_bfe_u32 s{sG}, s{sT2}, 0x20001")
    a(f"s_lshl_b32 s{sG}, s{sG}, 2")
    a(f"s_bfe_u32 s{sT}, s{sT2}, 0x20003")
    a(f"s_add_u32 s{sG}, s{sG}, s{sT}")
    a(f"s_and_b32 s{sC}, s{sT2}, 1")
    a(f"s_lshl_b32 s{sC}, s{sC}, 3")
    a(f"s_lshr_b32 s{sT}, s{sT2}, 5")
    a(f"s_add_u32 s{sC}, s{sC}, s{sT}")
    a(f"s_lshr_b32 s{sKH}, s{sW}, 2")
    a(f"v_lshlrev_b32 v{vX16}, 4, v{vLane}")
    a(f"s_and_b32 s{sT}, s{sW}, 3")
    a(f"s_mul_i32 s{sT}, s{sT}, 192")
    a(f"s_mul_i32 s{sT2}, s{sC}, 192")
    a(f"s_mul_i32 s{sT3}, s{sKH}, {320*3072}")
    a(f"s_add_u32 s{sT2}, s{sT2}, s{sT3}")
    for i in range(3):
        a(f"v_add_u32 v{vT}, s{sT}, v{vLane}")
        if i: a(f"v_add_u32 v{vT}, {64*i}, v{vT}")
        a(f"v_mul_u32_u24 v{vT+1}, 5462, v{vT}")
        a(f"v_lshrrev_b32 v{vT+1}, 16, v{vT+1}")
        a(f"v_mul_u32_u24 v{vT+2}, 12, v{vT+1}")
        a(f"v_sub_u32 v{vT}, v{vT}, v{vT+2}")
        a(f"v_lshlrev_b32 v{vT}, 4, v{vT}")
        a(f"v_mul_u32_u24 v{vT+1}, 3072, v{vT+1}")
        a(f"v_add3_u32 v{vW+i}, v{vT}, v{vT+1}, s{sT2}")
        if i: a(f"v_subrev_u32 v{vW+i}, {1024*i}, v{vW+i}")
    a(f"s_mul_i32 s{sT}, s{sKH}, 12288")
    tr_addr(a, vTr, None, 192, 8, 4, sT, vT)
    a(f"s_mul_i32 s{sLdsW}, s{sW}, 3072")
    srd(a, R_A, S_W1, S_W1+1, 640*1536*2)
    srd(a, R_B, S_B1, S_B1+1, 1536*2)
    a(f"s_mul_hi_u32 s{sT}, s{sC}, {(1<<32)//5 + 1}")
    a(f"s_mul_i32 s{sT}, s{sT}, 5")
    a(f"s_sub_u32 s{sT}, s{sC}, s{sT}")
    a(f"s_mul_i32 s{sSoffW}, s{sT}, {64*3072}")
    a(f"s_lshl_b32 s{sSoffX}, s{sT}, 12")
    a(f"s_and_b32 s{sT}, s{sW}, 3")
    a(f"s_lshl_b32 s{sT2}, s{sG}, 2")
    a(f"s_add_u32 s{sT}, s{sT}, s{sT2}")
    a(f"s_mul_i32 s{sXb}, s{sT}, {40*1024}")
    a(f"s_mul_i32 s{sT2}, s{sKH}, {20*1024}")
    a(f"s_add_u32 s{sXb}, s{sXb}, s{sT2}")
    if WS_XF: a(f"s_add_u32 s{sXb}, s{sXb}, {WS_XF}")
    def issueW(c):
        a(f"s_add_u32 m0, s{sLdsW}, {(c%3)*SLOT}")
        a(f"s_add_u32 s{sT}, s{sSoffW}, {64*3072}")
        for i in range(3):
            a(f"buffer_load_dwordx4 v{vW+i}, s[{R_A}:{R_A+3}], s{sSoffW} offen offset:{1024*i} lds")
        a(f"s_cmp_eq_u32 s{sT}, {320*3072}")
        a(f"s_cselect_b32 s{sSoffW}, 0, s{sT}")
    def issueX(c):
        xs = XS + 16*(c % 2)
        a(f"s_add_u32 s{sT2}, s{sXb}, s{sSoffX}")
        a(f"s_add_u32 s{sT}, s{sSoffX}, 4096")
        for i in range(4):
            a(f"buffer_load_dwordx4 {vr(xs+4*i,4)}, v{vX16}, s[{R_WS}:{R_WS+3}], s{sT2} offen offset:{1024*i} sc1")
        a(f"s_cmp_eq_u32 s{sT}, 20480")
        a(f"s_cselect_b32 s{sSoffX}, 0, s{sT}")
    sJ = 96
    a(f"s_sub_u32 s{sJ}, s2, 256")
    a(f"s_cmp_lg_u32 s{sW}, 0")
    a(f"s_cbranch_scc1 B1_np")
    get_tag(a, vT, "B1")
    a(f"s_lshl_b32 s{sT}, s{sG}, 5")
    poll_flags(a, vT, "B1p", sT, 32, FL_D, tries=OPT.get("wftries", 1), sleep=OPT.get("dsleep", 8))
    a.label("B1_np")
    a("s_barrier")
    srd(a, R_C, S_W2, S_W2+1, 1536*640*2)
    a(f"v_lshrrev_b32 v92, 2, v{vLane}")
    a(f"v_mul_u32_u24 v92, 1280, v92")
    a(f"v_and_b32 v93, 3, v{vLane}")
    a(f"v_lshl_add_u32 v92, v93, 4, v92")
    a(f"s_lshl_b32 s{sT}, s{sW}, 10")
    a(f"s_add_u32 s{sT}, s{sT}, 73728")
    a(f"v_add_u32 v93, s{sT}, v{vX16}")
    tr_addr(a, 94, None, 64, 4, 8, sT, vT)
    tr_addr(a, 95, None, 64, 8, 4, sT, vT)
    sDst = [92, 93]; sStp = [94, 95]
    for rnd in range(2):
        Lskip = f"B1_wf{rnd}_skip"
        a(f"s_mov_b32 s{sStp[rnd]}, -1")
        if rnd == 1:
            a(f"s_cmp_ge_u32 s{sW}, 3")
            a(f"s_cbranch_scc1 {Lskip}")
        a(f"s_and_b32 s{sT}, s{sJ}, 63")
        a(f"s_mul_i32 s{sT}, s{sT}, 11")
        a(f"s_add_u32 s{sT}, s{sT}, s{sW}")
        if rnd: a(f"s_add_u32 s{sT}, s{sT}, 8")
        a(f"s_cmp_ge_u32 s{sT}, 680")
        a(f"s_cbranch_scc1 {Lskip}")
        a(f"s_mul_hi_u32 s{sT2}, s{sT}, {(1<<32)//136 + 1}")
        a(f"s_mul_i32 s{sT3}, s{sT2}, 136")
        a(f"s_sub_u32 s{sT}, s{sT}, s{sT3}")
        a(f"s_mov_b32 s{sStp[rnd]}, s{sT}")
        a(f"s_lshr_b32 s{sT3}, s{sJ}, 6")
        a(f"s_mul_i32 s{sT3}, s{sT3}, 5")
        a(f"s_add_u32 s{sT2}, s{sT2}, s{sT3}")
        a(f"s_mul_i32 s62, s{sT2}, 136")
        a(f"s_add_u32 s62, s62, s{sT}")
        a(f"s_lshl_b32 s62, s62, 10")
        a(f"s_add_u32 s{sDst[rnd]}, s62, {WS_WF}")
        a(f"s_lshl_b32 s{sT2}, s{sT2}, 6")
        a(f"s_cmp_lt_u32 s{sT}, 96")
        a(f"s_cselect_b32 s{R_C}, s{S_W2}, s{S_WO}")
        a(f"s_cselect_b32 s{R_C+1}, s{S_W2+1}, s{S_WO+1}")
        a(f"s_cselect_b32 s63, 0, 96")
        a(f"s_mov_b32 s{R_C+2}, {640*640*2}")
        a(f"s_cbranch_scc0 B1_wf{rnd}_a")
        a(f"s_mov_b32 s{R_C+2}, {1536*640*2}")
        a.label(f"B1_wf{rnd}_a")
        a(f"s_sub_u32 s{sT3}, s{sT}, s63")
        a(f"s_mul_i32 s{sT3}, s{sT3}, {16*1280}")
        a(f"s_add_u32 s{sT3}, s{sT3}, s{sT2}")
        a(f"buffer_load_dwordx4 v[{76+4*rnd}:{79+4*rnd}], v92, s[{R_C}:{R_C+3}], s{sT3} offen")
        a.label(Lskip)
    a("s_waitcnt vmcnt(0)")
    for rnd in range(2):
        Lskip = f"B1_wg{rnd}_skip"
        a(f"s_cmp_eq_u32 s{sStp[rnd]}, -1")
        a(f"s_cbranch_scc1 {Lskip}")
        a(f"ds_write_b128 v93, v[{76+4*rnd}:{79+4*rnd}]")
        a(f"s_cmp_lt_u32 s{sStp[rnd]}, 96")
        a(f"s_cbranch_scc0 B1_wf{rnd}_n")
        a(f"ds_read_b64_tr_b16 v[{84+4*rnd}:{85+4*rnd}], v94")
        a(f"ds_read_b64_tr_b16 v[{86+4*rnd}:{87+4*rnd}], v94 offset:512")
        a(f"s_branch B1_wf{rnd}_s")
        a.label(f"B1_wf{rnd}_n")
        a(f"ds_read_b64_tr_b16 v[{84+4*rnd}:{85+4*rnd}], v95")
        a(f"ds_read_b64_tr_b16 v[{86+4*rnd}:{87+4*rnd}], v95 offset:256")
        a.label(f"B1_wf{rnd}_s")
        a("s_waitcnt lgkmcnt(0)")
        a(f"buffer_store_dwordx4 v[{84+4*rnd}:{87+4*rnd}], v{vX16}, s[{R_WS}:{R_WS+3}], s{sDst[rnd]} offen sc1")
        a.label(Lskip)
    issued = []
    def iW(c): issueW(c); issued.extend([("W", c)]*3)
    if OPT.get("prefill", 0):
        for c in range(3): iW(c)
    a(f"s_cmp_lg_u32 s{sW}, 0")
    a(f"s_cbranch_scc1 B1_np2")
    a(f"s_lshl_b32 s{sT}, s{sG}, 5")
    poll_flags(a, vT, "B1", sT, 32, FL_D, sleep=OPT.get("dsleep", 8))
    if OPT.get("b1kv", 0): poll_flags(a, vT, "B1k", None, 128, FL_KV, sleep=OPT.get("ksleep", 4))
    a.label("B1_np2")
    a("s_barrier")
    a(f"s_cmp_lg_u32 s{sW}, 0")
    a(f"s_cbranch_scc1 B1_ntl")
    tag_to_lds(a, vT)
    a.label("B1_ntl")
    st.mark("wait_d")
    def iX(c): issueX(c); issued.extend([("X", c)]*4)
    if OPT.get("prefill", 0):
        iX(0)
        a("s_barrier")
        iX(1)
    elif OPT.get("b1shallow", 1):
        iW(0); iX(0)
    else:
        iW(0); iX(0)
        a("s_barrier")
        iW(1); iX(1)
        a("s_barrier")
        iW(2)
    def wreads(c, k, buf):
        base = (c % 3)*SLOT + k*16*192
        for ct in range(3):
            a(f"ds_read_b64_tr_b16 v[{WF+12*buf+4*ct}:{WF+12*buf+4*ct+1}], v{vTr} offset:{base + ct*64}")
            a(f"ds_read_b64_tr_b16 v[{WF+12*buf+4*ct+2}:{WF+12*buf+4*ct+3}], v{vTr} offset:{base + ct*64 + 4*192}")
    for c in range(5):
        last = max(i for i, e_ in enumerate(issued) if e_ in (("W", c), ("X", c)))
        a(f"s_waitcnt vmcnt({len(issued) - 1 - last})")
        a("s_barrier")
        if c == 0:
            st.mark("b0")
            a(f"s_cmp_lg_u32 s{sW}, 0")
            a(f"s_cbranch_scc1 B1_nofw")
            set_flag(a, vT, sJ, FL_W)
            a.label("B1_nofw")
        if OPT.get("b1shallow", 1) and not OPT.get("prefill", 0):
            if c + 1 < 5: iW(c + 1); iX(c + 1)
        elif 1 <= c <= 2: iW(c + 2)
        xs = XS + 16*(c % 2)
        wreads(c, 0, 0)
        for k in range(4):
            buf = k % 2
            if k < 3:
                wreads(c, k + 1, 1 - buf)
                a("s_waitcnt lgkmcnt(6)")
            else:
                a("s_waitcnt lgkmcnt(0)")
            for ct in range(3):
                cin = "0" if (c == 0 and k == 0) else vr(ACC+16*ct,16)
                a(f"v_mfma_f32_32x32x16_bf16 {vr(ACC+16*ct,16)}, {vr(WF+12*buf+4*ct,4)}, {vr(xs+4*k,4)}, {cin}")
        if c + 2 < 5 and (OPT.get("prefill", 0) or not OPT.get("b1shallow", 1)): iX(c + 2)
    st.mark("kloop")
    a("s_setprio 3")
    a(f"s_and_b32 s{sT}, s{sW}, 3")
    a(f"s_lshl_b32 s{sT2}, s{sG}, 2")
    a(f"s_add_u32 s{sT}, s{sT}, s{sT2}")
    a(f"s_lshl_b32 s{sT2}, s{sT}, 7")
    a(f"s_add_u32 s{sT2}, s{sT2}, {WS_R}")
    a(f"v_lshlrev_b32 v{vT}, 2, v{vN}")
    a(f"buffer_load_dword v{vR}, v{vT}, s[{R_WS}:{R_WS+3}], s{sT2} offen sc1")
    tag_from_lds(a, 72)
    a(f"s_mul_i32 s{sT2}, s{sC}, 192")
    a(f"s_lshl_b32 s{sT3}, s{sKH}, 5")
    a(f"s_add_u32 s{sT2}, s{sT2}, s{sT3}")
    a(f"v_lshlrev_b32 v{vT}, 3, v{vH}")
    B = XS
    for ct in range(3):
        for q in range(2):
            a(f"buffer_load_dwordx2 v[{B+4*ct+2*q}:{B+4*ct+2*q+1}], v{vT}, s[{R_B}:{R_B+3}], s{sT2} offen offset:{64*ct+16*q}")
    a(f"s_mul_i32 s{sT}, s{sT}, 96")
    a(f"s_mul_i32 s{sT2}, s{sC}, 6")
    a(f"s_add_u32 s{sT}, s{sT}, s{sT2}")
    a(f"s_add_u32 s{sT}, s{sT}, s{sKH}")
    a(f"s_lshl_b32 s{sXb}, s{sT}, 10")
    a(f"s_add_u32 s{sXb}, s{sXb}, {WS_H}")
    a("s_barrier")
    a.nop(4)
    T = XS + 16
    a(f"s_mul_i32 s{sT}, s{sW}, 6144")
    a(f"v_add_u32 v{vT+1}, s{sT}, v{vX16}")
    a(f"s_xor_b32 s{sT}, s{sW}, 4")
    a(f"s_mul_i32 s{sT}, s{sT}, 6144")
    a(f"v_add_u32 v{vT+2}, s{sT}, v{vX16}")
    a(f"s_cmp_eq_u32 s{sKH}, 1")
    a(f"s_cbranch_scc1 B1_x1")
    for ct in range(3):
        for q in range(2):
            a(f"ds_write_b128 v{vT+1}, {vr(ACC+16*ct+8+4*q,4)} offset:{(2*ct+q)*1024}")
    a(f"s_branch B1_x2")
    a.label("B1_x1")
    for ct in range(3):
        for q in range(2):
            a(f"ds_write_b128 v{vT+1}, {vr(ACC+16*ct+4*q,4)} offset:{(2*ct+q)*1024}")
    a.label("B1_x2")
    a("s_waitcnt lgkmcnt(0)")
    a("s_barrier")
    for i in range(6):
        a(f"ds_read_b128 {vr(T+4*i,4)}, v{vT+2} offset:{i*1024}")
    a("s_waitcnt lgkmcnt(0) vmcnt(0)")
    a(f"v_readfirstlane_b32 s{sTag}, v73")
    a(f"s_cmp_eq_u32 s{sKH}, 1")
    a(f"s_cbranch_scc1 B1_y1")
    for ct in range(3):
        for j in range(8): a(f"v_add_f32 v{T+8*ct+j}, v{T+8*ct+j}, v{ACC+16*ct+j}")
    a(f"s_branch B1_y2")
    a.label("B1_y1")
    for ct in range(3):
        for j in range(8): a(f"v_add_f32 v{T+8*ct+j}, v{T+8*ct+j}, v{ACC+16*ct+8+j}")
    a.label("B1_y2")
    TB = 56
    for ct in range(3):
        for q in range(2):
            b0 = B+4*ct+2*q
            acc = T+8*ct+4*q
            a(f"v_lshlrev_b32 v{TB}, 16, v{b0}")
            a(f"v_and_b32 v{TB+1}, 0xffff0000, v{b0}")
            a(f"v_lshlrev_b32 v{TB+2}, 16, v{b0+1}")
            a(f"v_and_b32 v{TB+3}, 0xffff0000, v{b0+1}")
            for j in range(4): a(f"v_fma_f32 v{acc+j}, v{acc+j}, v{vR}, v{TB+j}")
            for j in range(4): a(f"v_max_f32 v{acc+j}, 0, v{acc+j}")
            for j in range(4): a(f"v_mul_f32 v{acc+j}, v{acc+j}, v{acc+j}")
        for k in range(4):
            a(f"v_cvt_pk_bf16_f32 v{60+4*ct+k}, v{T+8*ct+2*k}, v{T+8*ct+2*k+1}")
    a(f"v_add_u32 v{vT}, 4096, v{vX16}")
    a(f"buffer_store_dwordx4 {vr(60,4)}, v{vX16}, s[{R_WS}:{R_WS+3}], s{sXb} offen sc1")
    a(f"buffer_store_dwordx4 {vr(64,4)}, v{vX16}, s[{R_WS}:{R_WS+3}], s{sXb} offen offset:2048 sc1")
    a(f"buffer_store_dwordx4 {vr(68,4)}, v{vT}, s[{R_WS}:{R_WS+3}], s{sXb} offen sc1")
    a(f"s_cmp_lg_u32 s{sW}, 6")
    a(f"s_cbranch_scc1 B1_nfw")
    a(f"s_sub_u32 s{sT}, s2, 256")
    a(f"s_and_b32 s{sT2}, s{sT}, 1")
    a(f"s_lshl_b32 s{sT2}, s{sT2}, 1")
    a(f"s_lshr_b32 s{sT}, s{sT}, 7")
    a(f"s_add_u32 s{sT}, s{sT}, s{sT2}")
    a(f"s_lshl_b32 s{sT}, s{sT}, 6")
    poll_flags(a, vT, "B2w", sT, 64, FL_W)
    a.label("B1_nfw")
    a("s_waitcnt vmcnt(0)")
    a("s_barrier")
    L_nf = "B1_nf"
    a(f"s_cmp_lg_u32 s{sW}, 0")
    a(f"s_cbranch_scc1 {L_nf}")
    a(f"s_lshl_b32 s{sT}, s{sG}, 4")
    a(f"s_add_u32 s{sT}, s{sT}, s{sC}")
    set_flag(a, vT, sT, FL_H)
    a.label(L_nf)
    st.mark("epi")
    a("s_setprio 0")
    return st

def role_B2(a, st):
    sSoffW, sSoffX, sWb, sIt, sRho, sWrapW, sRst = 57, 58, 59, 60, 61, 98, 99
    vT = 4
    vX16, vXa = 14, 15
    ACC = 16
    XR = 48
    WB = 64
    vOut = vT+3
    NXS = 8
    a(f"s_sub_u32 s{sT2}, s2, 256")
    a(f"s_bfe_u32 s{sRB}, s{sT2}, 0x20001")
    a(f"s_lshl_b32 s{sRB}, s{sRB}, 4")
    a(f"s_bfe_u32 s{sT}, s{sT2}, 0x40003")
    a(f"s_add_u32 s{sRB}, s{sRB}, s{sT}")
    a(f"s_and_b32 s{sCG}, s{sT2}, 1")
    a(f"s_lshl_b32 s{sCG}, s{sCG}, 1")
    a(f"s_lshr_b32 s{sT}, s{sT2}, 7")
    a(f"s_add_u32 s{sCG}, s{sCG}, s{sT}")
    a(f"v_lshlrev_b32 v{vX16}, 4, v{vLane}")
    a(f"s_and_b32 s{sRho}, s{sRB}, 7")
    a(f"s_min_u32 s{sT3}, s{sW}, 4")
    a(f"s_mul_i32 s{sT}, s{sCG}, 5")
    a(f"s_add_u32 s{sT}, s{sT}, s{sT3}")
    a(f"s_mul_i32 s{sWb}, s{sT}, {136*1024}")
    a(f"s_add_u32 s{sWb}, s{sWb}, {WS_WF}")
    a(f"s_lshl_b32 s{sT}, s{sT}, 6")
    srd(a, R_C, S_X, S_X+1, NX)
    a(f"s_lshl_b32 s{sT2}, s{sRB}, 5")
    a(f"v_add_u32 v{vT}, s{sT2}, v{vN}")
    a(f"v_mul_u32_u24 v{vT}, 1280, v{vT}")
    a(f"v_lshl_add_u32 v{vT}, v{vH}, 3, v{vT}")
    a(f"v_add_u32 v{vOut}, s{sT}, v{vT}")
    for q in range(4):
        a(f"buffer_load_dwordx2 v[{XR+2*q}:{XR+2*q+1}], v{vOut}, s[{R_C}:{R_C+3}], 0 offen offset:{16*q}")
    srd(a, R_C, S_B2, S_B2+1, 640*2)
    a(f"v_lshlrev_b32 v{vT}, 3, v{vH}")
    for q in range(4):
        a(f"buffer_load_dwordx2 v[{XR+8+2*q}:{XR+8+2*q+1}], v{vT}, s[{R_C}:{R_C+3}], s{sT} offen offset:{16*q}")
    for i in range(16): a(f"v_mov_b32 v{ACC+i}, 0")
    def unpack_add(q, dst):
        for (src, t) in ((XR+2*q, 32), (XR+8+2*q, 36)):
            a(f"v_lshlrev_b32 v{t}, 16, v{src}")
            a(f"v_and_b32 v{t+1}, 0xffff0000, v{src}")
            a(f"v_lshlrev_b32 v{t+2}, 16, v{src+1}")
            a(f"v_and_b32 v{t+3}, 0xffff0000, v{src+1}")
        for j in range(4): a(f"v_add_f32 v{32+j}, v{32+j}, v{36+j}")
        for j in range(4): a(f"v_add_f32 v{dst+j}, v{dst+j}, v{32+j}")
    L_side = "B2_side"
    a(f"s_cmp_ge_u32 s{sW}, 4")
    a(f"s_cbranch_scc1 {L_side}")
    a(f"s_lshl_b32 s{sSoffW}, s{sRho}, 13")
    a(f"s_mov_b32 s{sWrapW}, {96*1024}")
    a(f"s_mov_b32 s{sRst}, 0")
    def wload(r):
        a(f"s_add_u32 s{sT2}, s{sWb}, s{sSoffW}")
        a(f"s_add_u32 s{sT}, s{sSoffW}, 1024")
        a(f"buffer_load_dwordx4 {vr(r,4)}, v{vX16}, s[{R_WS}:{R_WS+3}], s{sT2} offen sc1")
        a(f"s_cmp_eq_u32 s{sT}, s{sWrapW}")
        a(f"s_cselect_b32 s{sSoffW}, s{sRst}, s{sT}")
    for k in range(16): wload(WB + 4*k)
    st.mark("setup")
    a("s_barrier")
    a(f"s_mov_b32 s{sIt}, 0")
    L1 = "B2_p1"
    a.label(L1)
    XBUF = 32
    for j in range(16):
        k = j % 8
        if k == 0:
            a("s_barrier")
            a(f"s_lshl_b32 s{sT}, s{sIt}, 1")
            if j: a(f"s_add_u32 s{sT}, s{sT}, 1")
            a(f"s_and_b32 s{sT}, s{sT}, {NXS-1}")
            a(f"s_lshl_b32 s{sT}, s{sT}, 13")
            a(f"v_add_u32 v{vXa}, s{sT}, v{vX16}")
            for i in range(3):
                a(f"ds_read_b128 {vr(XBUF+4*i,4)}, v{vXa} offset:{i*1024}")
        if j == 0:
            L1n = "B2_p1n"
            a(f"s_cmp_lg_u32 s{sIt}, 5")
            a(f"s_cbranch_scc1 {L1n}")
            a(f"s_mul_i32 s{sSoffW}, s{sRho}, {5*1024}")
            a(f"s_add_u32 s{sSoffW}, s{sSoffW}, {96*1024}")
            a(f"s_mov_b32 s{sWrapW}, {136*1024}")
            a(f"s_mov_b32 s{sRst}, {96*1024}")
            a.label(L1n)
        if k + 3 < 8:
            a(f"ds_read_b128 {vr(XBUF+4*((k+3)%4),4)}, v{vXa} offset:{(k+3)*1024}")
            a("s_waitcnt vmcnt(15) lgkmcnt(3)")
        else:
            a(f"s_waitcnt vmcnt(15) lgkmcnt({7-k})")
        a(f"v_mfma_f32_32x32x16_bf16 {vr(ACC,16)}, {vr(WB+4*j,4)}, {vr(XBUF+4*(k%4),4)}, {vr(ACC,16)}")
        wload(WB + 4*j)
    a(f"s_add_u32 s{sIt}, s{sIt}, 1")
    a(f"s_cmp_lt_u32 s{sIt}, 6")
    a(f"s_cbranch_scc1 {L1}")
    st.mark("ffn2")
    a.nop(12)
    for q in range(4): unpack_add(q, ACC+4*q)
    XBUF = XR
    NBLK = 20
    def blk(s_):
        b = s_ % NBLK
        return (WB + 4*b) if b < 16 else (32 + 4*(b-16))
    for s_ in range(16, 20): wload(blk(s_))
    a("s_barrier")
    a(f"s_branch B2_oload")
    a.label(L_side)
    a(f"s_sub_u32 s{sT3}, s{sW}, 4")
    a("s_waitcnt vmcnt(0)")
    for jj in range(1, 4):
        Ls = a.newlabel("B2_q")
        a(f"s_cmp_lg_u32 s{sT3}, {jj}")
        a(f"s_cbranch_scc1 {Ls}")
        a(f"v_mov_b32 v{XR}, v{XR+2*jj}")
        a(f"v_mov_b32 v{XR+1}, v{XR+2*jj+1}")
        a(f"v_mov_b32 v{XR+8}, v{XR+8+2*jj}")
        a(f"v_mov_b32 v{XR+9}, v{XR+8+2*jj+1}")
        a.label(Ls)
    for j in range(4): a(f"v_mov_b32 v{40+j}, 0")
    unpack_add(0, 40)
    a(f"s_lshl_b32 s{sRst}, s{sT3}, 11")
    a(f"s_lshl_b32 s{sSoffW}, s{sRho}, 13")
    a(f"s_add_u32 s{sSoffW}, s{sSoffW}, s{sRst}")
    a(f"s_add_u32 s{sWrapW}, s{sRst}, {96*1024}")
    SD = 4
    def wpair(slot):
        a(f"s_add_u32 s{sT2}, s{sWb}, s{sSoffW}")
        a(f"s_add_u32 s{sT}, s{sSoffW}, 8192")
        a(f"buffer_load_dwordx4 {vr(WB+8*slot,4)}, v{vX16}, s[{R_WS}:{R_WS+3}], s{sT2} offen sc1")
        a(f"buffer_load_dwordx4 {vr(WB+8*slot+4,4)}, v{vX16}, s[{R_WS}:{R_WS+3}], s{sT2} offen offset:1024 sc1")
        a(f"s_cmp_eq_u32 s{sT}, s{sWrapW}")
        a(f"s_cselect_b32 s{sSoffW}, s{sRst}, s{sT}")
    for c in range(SD): wpair(c)
    a(f"s_cmp_lg_u32 s{sW}, 7")
    a(f"s_cbranch_scc1 B2_nph")
    a(f"s_lshr_b32 s{sT}, s{sRB}, 2")
    a(f"s_lshl_b32 s{sT}, s{sT}, 4")
    poll_flags(a, vT, "B2h", sT, 16, FL_H, sleep=2)
    a.label("B2_nph")
    a("s_barrier")
    a(f"s_sub_u32 s{sT3}, s{sW}, 4")
    a(f"s_mul_i32 s{sT}, s{sRB}, {96*1024}")
    a(f"s_add_u32 s63, s{sT}, {WS_H}")
    a(f"s_lshl_b32 s97, s{sT3}, 11")
    a(f"s_add_u32 s63, s63, s97")
    a(f"s_lshl_b32 s{sSoffX}, s{sRho}, 13")
    a(f"v_add_u32 v{vT+5}, s97, v{vX16}")
    vXs = vT+5
    vm = Cnt(a, "vmcnt", 63)
    def xdma(c):
        a(f"s_add_u32 m0, s97, {(c % NXS)*8192}")
        a(f"s_add_u32 s{sT2}, s63, s{sSoffX}")
        a(f"s_add_u32 s{sT}, s{sSoffX}, 8192")
        for i in range(2):
            a(f"buffer_load_dwordx4 v{vX16}, s[{R_WS}:{R_WS+3}], s{sT2} offen offset:{1024*i} sc1 lds")
        a(f"s_cmp_eq_u32 s{sT}, {96*1024}")
        a(f"s_cselect_b32 s{sSoffX}, 0, s{sT}")
        vm.issue(("X", c), 2)
    for c in range(SD): vm.issue(("W", c), 2)
    XD = 6
    for c in range(XD): xdma(c)
    for c in range(12):
        vm.need(("X", c), ("W", c))
        a("s_barrier")
        if c + XD < 12: xdma(c + XD)
        for i in range(2):
            a(f"ds_read_b128 {vr(48+4*i,4)}, v{vXs} offset:{(c % NXS)*8192 + 1024*i}")
        a("s_waitcnt lgkmcnt(1)")
        a(f"v_mfma_f32_32x32x16_bf16 {vr(ACC,16)}, {vr(WB+8*(c%4),4)}, {vr(48,4)}, {vr(ACC,16)}")
        a("s_waitcnt lgkmcnt(0)")
        a(f"v_mfma_f32_32x32x16_bf16 {vr(ACC,16)}, {vr(WB+8*(c%4)+4,4)}, {vr(52,4)}, {vr(ACC,16)}")
        if c + SD < 12: wpair(c % 4); vm.issue(("W", c + SD), 2)
    a(f"s_sub_u32 s{sT3}, s{sW}, 4")
    a(f"s_lshl_b32 s{sT3}, s{sT3}, 1")
    a(f"s_mul_i32 s62, s{sRho}, 5")
    a(f"s_add_u32 s62, s62, s{sT3}")
    for m in range(5):
        for i in range(2):
            a(f"s_add_u32 s{sT}, s62, {8*m+i}")
            a(f"s_cmp_ge_u32 s{sT}, 40")
            a(f"s_cselect_b32 s{sT2}, 40, 0")
            a(f"s_sub_u32 s{sT}, s{sT}, s{sT2}")
            a(f"s_add_u32 s{sT}, s{sT}, 96")
            a(f"s_lshl_b32 s{sT}, s{sT}, 10")
            a(f"s_add_u32 s{sT}, s{sT}, s{sWb}")
            a(f"buffer_load_dwordx4 {vr(WB+4*(2*m+i),4)}, v{vX16}, s[{R_WS}:{R_WS+3}], s{sT} offen sc1")
    Lnp2 = "B2_np2"
    a(f"s_cmp_lg_u32 s{sW}, 7")
    a(f"s_cbranch_scc1 {Lnp2}")
    a(f"s_lshl_b32 s{sT}, s{sRB}, 5")
    poll_flags(a, vT, "B2o", sT, 32, FL_O, sleep=OPT.get("osleep", 2))
    a.label(Lnp2)
    st.mark("wait_o")
    a("s_barrier")
    a.label("B2_oload")
    a(f"s_mul_i32 s63, s{sRB}, {40*1024}")
    a(f"s_add_u32 s63, s63, {WS_OF}")
    a(f"s_mul_i32 s62, s{sRho}, 5")
    for i in range(5):
        a(f"s_mul_i32 s{sT}, s{sW}, 5")
        a(f"s_add_u32 s{sT}, s{sT}, {i}")
        a(f"s_add_u32 s{sT2}, s{sT}, s62")
        a(f"s_cmp_ge_u32 s{sT2}, 40")
        a(f"s_cselect_b32 s{sIt}, 40, 0")
        a(f"s_sub_u32 s{sT2}, s{sT2}, s{sIt}")
        a(f"s_lshl_b32 s{sT2}, s{sT2}, 10")
        a(f"s_add_u32 s{sT2}, s{sT2}, s63")
        a(f"s_lshl_b32 m0, s{sT}, 10")
        a("s_nop 0")
        a(f"buffer_load_dwordx4 v{vX16}, s[{R_WS}:{R_WS+3}], s{sT2} offen sc1 lds")
    a("s_waitcnt vmcnt(0)")
    a("s_barrier")
    st.mark("oload")
    a(f"s_cmp_ge_u32 s{sW}, 4")
    a(f"s_cbranch_scc1 B2_side2")
    vm = Cnt(a, "vmcnt", 63); lg = Cnt(a, "lgkmcnt", 15)
    def xread(s_):
        r = XBUF + 4*(s_ % 4)
        a(f"ds_read_b128 {vr(r,4)}, v{vX16} offset:{s_*1024}")
        lg.issue(("X", s_))
    for s_ in range(3): xread(s_)
    for s_ in range(40):
        if s_ + 3 < 40: xread(s_ + 3)
        vm.need(("W", s_))
        lg.need(("X", s_))
        a(f"v_mfma_f32_32x32x16_bf16 {vr(ACC,16)}, {vr(blk(s_),4)}, {vr(XBUF+4*(s_%4),4)}, {vr(ACC,16)}")
        if s_ + NBLK < 40:
            wload(blk(s_)); vm.issue(("W", s_ + NBLK))
    st.mark("wo")
    a("s_setprio 3")
    a("s_barrier")
    a.nop(10)
    srd(a, R_C, S_OUT, S_OUT+1, NX)
    for q in range(4):
        a(f"v_cvt_pk_bf16_f32 v{32+2*q}, v{ACC+4*q}, v{ACC+4*q+1}")
        a(f"v_cvt_pk_bf16_f32 v{33+2*q}, v{ACC+4*q+2}, v{ACC+4*q+3}")
        a(f"buffer_store_dwordx2 v[{32+2*q}:{33+2*q}], v{vOut}, s[{R_C}:{R_C+3}], 0 offen offset:{16*q}")
    a("s_barrier")
    st.end()
    a("s_endpgm")
    a.label("B2_side2")
    for k in range(4):
        a(f"ds_read_b128 {vr(48+4*k,4)}, v{vXs} offset:{(8*(k//2)+(k%2))*1024}")
    for k in range(10):
        a(f"s_waitcnt lgkmcnt({min(3, 9-k)})")
        a(f"v_mfma_f32_32x32x16_bf16 {vr(ACC,16)}, {vr(WB+4*k,4)}, {vr(48+4*(k%4),4)}, {vr(ACC,16)}")
        if k + 4 < 10:
            a(f"ds_read_b128 {vr(48+4*(k%4),4)}, v{vXs} offset:{(8*((k+4)//2)+((k+4)%2))*1024}")
    a("s_setprio 3")
    a("s_barrier")
    a.nop(12)
    a(f"s_sub_u32 s{sT3}, s{sW}, 4")
    a(f"s_lshl_b32 s{sT}, s{sT3}, 12")
    a(f"v_add_u32 v{vT}, s{sT}, v{vX16}")
    for q in range(4):
        a(f"ds_write_b128 v{vT}, {vr(ACC+4*q,4)} offset:{q*1024}")
    a("s_waitcnt lgkmcnt(0)")
    a("s_barrier")
    a(f"s_lshl_b32 s{sT}, s{sT3}, 10")
    a(f"v_add_u32 v{vT}, s{sT}, v{vX16}")
    for jj in range(4):
        a(f"ds_read_b128 {vr(ACC+4*jj,4)}, v{vT} offset:{jj*4096}")
    a(f"s_lshl_b32 s{sT}, s{sT3}, 4")
    a(f"v_add_u32 v{vOut}, s{sT}, v{vOut}")
    srd(a, R_C, S_OUT, S_OUT+1, NX)
    a("s_waitcnt lgkmcnt(0)")
    for j in range(4):
        a(f"v_add_f32 v{ACC+j}, v{ACC+j}, v{ACC+4+j}")
        a(f"v_add_f32 v{ACC+8+j}, v{ACC+8+j}, v{ACC+12+j}")
    for j in range(4): a(f"v_add_f32 v{ACC+j}, v{ACC+j}, v{40+j}")
    for j in range(4): a(f"v_add_f32 v{ACC+j}, v{ACC+j}, v{ACC+8+j}")
    a(f"v_cvt_pk_bf16_f32 v32, v{ACC}, v{ACC+1}")
    a(f"v_cvt_pk_bf16_f32 v33, v{ACC+2}, v{ACC+3}")
    a(f"buffer_store_dwordx2 v[32:33], v{vOut}, s[{R_WS if False else R_C}:{R_C+3}], 0 offen")
    st.end()
    a("s_endpgm")

HEADER = """; out = x + MQA-attention(LN(x)) @ wo + FFN_relu2(LN(x))  -- one launch, two workgroup roles (8 waves each, 2 workgroups per CU).
"""

def gen():
    a = Asm()
    a("s_cmp_ge_u32 s2, 512")
    a("s_cbranch_scc1 K_end")
    a("s_load_dwordx16 s[4:19], s[0:1], 0")
    a("s_load_dwordx8 s[20:27], s[0:1], 64")
    a("s_load_dwordx2 s[28:29], s[0:1], 96")
    a(f"v_and_b32 v{vLane}, 63, v0")
    a(f"v_lshrrev_b32 v4, 6, v0")
    a(f"v_lshrrev_b32 v{vH}, 5, v{vLane}")
    a(f"v_readfirstlane_b32 s{sW}, v4")
    a(f"v_and_b32 v{vN}, 31, v{vLane}")
    a("s_waitcnt lgkmcnt(0)")
    srd(a, R_WS, S_WS, S_WS+1, WS_END)
    srd(a, R_FL, S_WS, S_WS+1, FL_SIZE, WS_FL)
    for r in (R_A, R_B, R_C): srd(a, r, S_WS, S_WS+1, WS_END)
    for i in range(4, 16): a(f"v_mov_b32 v{i}, 0")
    a("s_cmp_ge_u32 s2, 256")
    a("s_cbranch_scc1 ROLE_B")
    role_A(a)
    a.label("ROLE_B")
    n0 = len(a.lines)
    st = role_B1(a)
    role_B2(a, st)
    if OPT.get("mprio"):
        out = a.lines[:n0]; L = a.lines[n0:]; i = 0; cur = 0
        while i < len(L):
            if "s_setprio" in L[i]: cur = int(L[i].split()[-1])
            if "v_mfma" in L[i] and cur == 0:
                j = i
                while j < len(L) and "v_mfma" in L[j]: j += 1
                out.append(f"  s_setprio {OPT['mprio']}"); out += L[i:j]; out.append("  s_setprio 0"); i = j
            else:
                out.append(L[i]); i += 1
        a.lines = out
    a.label("K_end")
    a("s_endpgm")
    grid = OPT.get("grid", 512)
    s = f"; @launch grid=({grid},1,1) block=(512,1,1) lds={LDS_BYTES}\n" + HEADER
    s += '.amdgcn_target "amdgcn-amd-amdhsa--gfx950"\n.text\n'
    s += kernel_header(KN) + a.text()
    s += '.section .rodata,"a"\n.p2align 6\n' + kernel_desc(KN, 128, 102)
    return s

if __name__ == "__main__":
    if "--prof" in sys.argv: PROF = True
    for x in sys.argv:
        if x.startswith("-D"):
            k, _, v = x[2:].partition("="); OPT[k] = int(v) if v else 1
    open(sys.argv[1], "w").write(gen())
    if PROF: json.dump(STAMP_NAMES, open("stamps9.json", "w"))
```

```python
import sys, math, json
from asmlib import *

NAME = "parallel_sum__grouped_kv_mqa__dense_activation_squared_relu__prompt"
KN = NAME + "_kernel"
WS_XF = 0x0
WS_R  = 0x280000
WS_KV = 0x290000
WS_OF = 0x2D0000
WS_H  = 0x550000
WS_FL = 0xB50000
WS_WF = 0xBC0000
WS_END = 0xE70000
WS_DBG = 0x2000000
FL_KV, FL_D, FL_H, FL_W, FL_O = 0, 128, 640, 896, 1152
FL_N = 3200
FL_SIZE = FL_N * 128
NX = 2048 * 640 * 2
TS = 2688
VF = 704; VH = 352
KVB = 64 * TS
CH = 8 * TS
QSCALE = (20 ** -0.5) * math.log2(math.e)
DELTA = 96.0
LDS_BYTES = 81920
PROF = False
OPT = {}
SPIN_MAX = 200063

S_X, S_WQ, S_WK, S_WV, S_WO, S_W1, S_B1, S_W2, S_B2, S_OUT, S_DBG, S_WS = 4, 6, 8, 10, 12, 16, 18, 20, 22, 24, 26, 28
sW = 30
sTag = 31
R_WS = 32
R_FL = 36
R_A = 40
R_B = 44
R_C = 48
sRB, sCG, sT, sT2, sT3 = 52, 53, 54, 55, 56
vLane, vH, vN = 1, 2, 3

def diag(a, word, neg=False, va=74):
    if not OPT.get("diag") or neg: return
    L = a.newlabel("dgx")
    a(f"s_and_b32 s86, s2, 255")
    a(f"s_cmp_lg_u32 s86, {OPT.get('diagwg', 37)}")
    a(f"s_cbranch_scc1 {L}")
    a("s_memrealtime s[84:85]")
    a("s_waitcnt lgkmcnt(0)")
    a("s_mov_b64 s[86:87], exec")
    a("s_mov_b64 exec, 1")
    a(f"v_mov_b32 v{va}, s84")
    a(f"v_mov_b32 v{va+1}, {4*word}")
    a(f"global_store_dword v{va+1}, v{va}, s[{S_DBG}:{S_DBG+1}]")
    a("s_mov_b64 exec, s[86:87]")
    a.label(L)

class Stamps:
    def __init__(self, a, role): self.a = a; self.n = 1; self.names = []; self.role = role
    def start(self):
        if not PROF: return
        for i in range(68, 94): self.a(f"s_mov_b32 s{i}, 0")
        self.a("s_memrealtime s[64:65]"); self.a("s_memtime s[66:67]"); self.a("s_waitcnt lgkmcnt(0)"); self.n = 2
    def mark(self, name):
        if not PROF: return
        assert self.n < 15
        self.a(f"s_memtime s[{64+2*self.n}:{65+2*self.n}]"); self.a("s_waitcnt lgkmcnt(0)")
        self.n += 1; self.names.append(name)
    def end(self):
        if not PROF: return
        a = self.a
        a("s_waitcnt vmcnt(0)")
        self.mark("final-drain")
        a("s_memrealtime s[94:95]"); a("s_waitcnt lgkmcnt(0)")
        a("s_mov_b64 exec, 1")
        a(f"s_lshl_b32 s98, s2, 3")
        a(f"s_add_u32 s98, s98, s{sW}")
        a(f"s_lshl_b32 s98, s98, 6")
        a(f"s_add_u32 s98, s98, {WS_DBG}")
        a(f"s_add_u32 s96, s{S_WS}, s98")
        a(f"s_addc_u32 s97, s{S_WS+1}, 0")
        a(f"v_mov_b32 v0, 0")
        for i in list(range(14)) + [15]:
            a(f"v_mov_b32 v1, s{64+2*i}")
            a(f"global_store_dword v0, v1, s[96:97] offset:{4*i}")
        a(f"v_mov_b32 v1, {self.n}")
        a(f"global_store_dword v0, v1, s[96:97] offset:56")
        a("s_waitcnt vmcnt(0)")
        STAMP_NAMES[self.role] = self.names
STAMP_NAMES = {}

def bf16_round(a, dst, src):
    a(f"v_cvt_pk_bf16_f32 v{dst}, v{src}, v{src}")
    a(f"v_lshlrev_b32 v{dst}, 16, v{dst}")

def decode_rb_cg(a, j):
    a(f"s_lshr_b32 s{sCG}, s{j}, 6")
    a(f"s_and_b32 s{sRB}, s{j}, 7")
    a(f"s_lshl_b32 s{sRB}, s{sRB}, 3")
    a(f"s_bfe_u32 s{sT}, s{j}, 0x30003")
    a(f"s_add_u32 s{sRB}, s{sRB}, s{sT}")

TAG_AGE = 2000
TAGL = 81904
def get_tag(a, vt, lab, have=False):
    L = f"{lab}_tag"
    a(f"s_mov_b32 s{sT3}, {SPIN_MAX}")
    a(f"v_mov_b32 v{vt}, 0")
    if have:
        a(f"s_cmp_lg_u32 s{sTag}, 0")
        a(f"s_cbranch_scc1 {L}_val")
    a.label(L)
    a(f"global_load_dword v{vt+1}, v{vt}, s[{S_DBG}:{S_DBG+1}] sc1")
    a("s_waitcnt vmcnt(0)")
    a(f"v_readfirstlane_b32 s{sTag}, v{vt+1}")
    a(f"s_sub_u32 s{sT3}, s{sT3}, 1")
    a(f"s_cmp_eq_u32 s{sT3}, 0")
    a(f"s_cbranch_scc1 {L}_done")
    a(f"s_cmp_eq_u32 s{sTag}, 0")
    a(f"s_cbranch_scc0 {L}_val")
    a(f"s_and_b32 s62, s{sT3}, 31")
    a(f"s_cmp_eq_u32 s62, 0")
    a(f"s_cbranch_scc1 {L}_atom")
    a("s_sleep 1")
    a(f"s_branch {L}")
    a.label(f"{L}_val")
    a("s_memrealtime s[62:63]")
    a("s_waitcnt lgkmcnt(0)")
    a(f"s_sub_u32 s62, s62, s{sTag}")
    a(f"s_cmp_lt_u32 s62, {TAG_AGE}")
    a(f"s_cbranch_scc1 {L}_done")
    a.label(f"{L}_atom")
    a("s_mov_b64 s[62:63], exec")
    a("s_mov_b64 exec, 1")
    a(f"v_mov_b32 v{vt+1}, 0")
    a(f"global_atomic_add v{vt+1}, v{vt}, v{vt+1}, s[{S_DBG}:{S_DBG+1}] sc0 sc1")
    a("s_mov_b64 exec, s[62:63]")
    a("s_waitcnt vmcnt(0)")
    a(f"v_readfirstlane_b32 s{sTag}, v{vt+1}")
    a(f"s_cmp_eq_u32 s{sTag}, 0")
    a(f"s_cbranch_scc0 {L}_done")
    a(f"s_sub_u32 s{sT3}, s{sT3}, 1")
    a(f"s_cmp_eq_u32 s{sT3}, 0")
    a(f"s_cbranch_scc1 {L}_done")
    a("s_sleep 1")
    a(f"s_branch {L}")
    a.label(f"{L}_done")

def tag_to_lds(a, vt):
    a(f"v_mov_b32 v{vt}, {TAGL}")
    a(f"v_mov_b32 v{vt+1}, s{sTag}")
    a(f"ds_write_b32 v{vt}, v{vt+1}")

def tag_from_lds(a, vt):
    a(f"v_mov_b32 v{vt}, {TAGL}")
    a(f"ds_read_b32 v{vt+1}, v{vt}")

def poll_flags(a, vt, lab, s_idx, nflags, region, tries=None, sleep=None):
    if nflags == 128:
        poll_flags(a, vt, lab + "a", None, 64, region, tries, sleep)
        poll_flags(a, vt, lab + "b", None, 64, region + 64, tries, sleep)
        return
    L = f"{lab}_poll"
    a(f"v_lshlrev_b32 v{vt}, 7, v{vLane}")
    if s_idx is None:
        a(f"s_mov_b32 s63, {region*128}")
    else:
        a(f"s_lshl_b32 s63, s{s_idx}, 7")
        if region: a(f"s_add_u32 s63, s63, {region*128}")
    a(f"s_mov_b32 s{sT3}, {tries or SPIN_MAX}")
    a("s_mov_b64 s[100:101], exec")
    if nflags < 64:
        a(f"s_mov_b32 exec_lo, {(1 << min(nflags, 32)) - 1 if nflags < 32 else -1}")
        a(f"s_mov_b32 exec_hi, {((1 << (nflags - 32)) - 1) if nflags > 32 else 0}")
    a.label(L)
    a(f"s_and_b32 s62, s{sT3}, 63")
    a(f"s_cmp_eq_u32 s62, 0")
    a(f"s_cbranch_scc1 {L}_atom")
    a(f"buffer_load_dword v{vt+1}, v{vt}, s[{R_FL}:{R_FL+3}], s63 offen sc1")
    a(f"s_branch {L}_got")
    a.label(f"{L}_atom")
    a(f"v_mov_b32 v{vt+1}, 0")
    a(f"buffer_atomic_add v{vt+1}, v{vt}, s[{R_FL}:{R_FL+3}], s63 offen sc0 sc1")
    a.label(f"{L}_got")
    a("s_waitcnt vmcnt(0)")
    a(f"v_cmp_ne_u32 vcc, s{sTag}, v{vt+1}")
    a("s_nop 1")
    a(f"s_and_b64 exec, exec, vcc")
    a(f"s_cbranch_execz {L}_done")
    a(f"s_sub_u32 s{sT3}, s{sT3}, 1")
    a(f"s_cmp_eq_u32 s{sT3}, 0")
    a(f"s_cbranch_scc1 {L}_done")
    a(f"s_sleep {sleep if sleep is not None else OPT.get('sleep', 6)}")
    a(f"s_branch {L}")
    a.label(f"{L}_done")
    a("s_mov_b64 exec, s[100:101]")

def set_flag(a, vt, s_idx, region):
    a(f"v_mov_b32 v{vt}, s{sTag}")
    a(f"v_mov_b32 v{vt+1}, 0")
    a(f"s_lshl_b32 s63, s{s_idx}, 7")
    if region: a(f"s_add_u32 s63, s63, {region*128}")
    a("s_mov_b64 s[100:101], exec")
    a("s_mov_b64 exec, 1")
    a(f"buffer_store_dword v{vt}, v{vt+1}, s[{R_FL}:{R_FL+3}], s63 offen sc1")
    a("s_mov_b64 exec, s[100:101]")

def tr_addr(a, dst, dst2, pitch, hrows, second_rows, s_base, t):
    a(f"v_bfe_u32 v{t}, v{vLane}, 2, 2")
    a(f"v_mul_u32_u24 v{t+1}, {hrows}, v{vH}")
    a(f"v_add_u32 v{t}, v{t}, v{t+1}")
    a(f"v_bfe_u32 v{t+1}, v{vLane}, 4, 1")
    a(f"v_and_b32 v{t+2}, 3, v{vLane}")
    a(f"v_lshlrev_b32 v{t+2}, 3, v{t+2}")
    a(f"v_lshl_add_u32 v{t+1}, v{t+1}, 5, v{t+2}")
    a(f"v_mul_u32_u24 v{dst}, {pitch}, v{t}")
    a(f"v_add3_u32 v{dst}, v{dst}, v{t+1}, s{s_base}")
    if dst2 is not None:
        a(f"v_add_u32 v{dst2}, {second_rows*pitch}, v{dst}")

def role_A(a):
    OPT["nopre0"] = 1
    st = Stamps(a, "A")
    st.start()
    XB = 0; XP = 1056; XH = 528; RBUF = 42240
    RING = 42496; NSTG = 3; RW = NSTG*1024; DEPTH = 16
    KSTG = 57856
    KVX = 67072
    LFL = XB + 512
    LFL2 = XB + 1040
    T4F = 75264
    SB = [0, 16384, 32768, 49152]
    QBUF = 65536; QP = 328
    sStep, sSoff, sLds, sRho, sWrap, sIt = 57, 58, 59, 60, 61, 57
    sExp, sFD = 95, 94
    vT = 4
    vVo, vTr, vTr2, vX16 = 12, 13, 14, 15
    X = 16
    TMP = 36
    vSum, vSq, vM = 52, 53, 54
    vOne, vSelLo, vSelHi = 56, 57, 58
    vR, vXa, vWst, vTag = 9, 10, 11, 61
    ACC = 16; FB = 32; WS_ = 64
    a(f"s_mov_b32 s{sT2}, s2")
    decode_rb_cg(a, sT2)
    L_notag = "A_notag"
    a(f"s_cmp_lg_u32 s2, 0")
    a(f"s_cbranch_scc1 {L_notag}")
    a(f"s_cmp_lg_u32 s{sW}, 0")
    a(f"s_cbranch_scc1 {L_notag}")
    a(f"s_memrealtime s[62:63]")
    a("s_waitcnt lgkmcnt(0)")
    a(f"s_or_b32 s62, s62, 1")
    a(f"v_mov_b32 v{vT}, s62")
    a(f"v_mov_b32 v{vT+1}, 0")
    a("s_mov_b64 exec, 1")
    a(f"global_store_dword v{vT+1}, v{vT}, s[{S_DBG}:{S_DBG+1}] sc1")
    a("s_mov_b64 exec, -1")
    a.label(L_notag)
    srd(a, R_A, S_X, S_X+1, NX)
    a(f"s_lshl_b32 s{sT}, s{sRB}, 5")
    a(f"s_lshl_b32 s{sT2}, s{sW}, 2")
    a(f"s_add_u32 s{sT}, s{sT}, s{sT2}")
    a(f"v_lshrrev_b32 v{vT}, 4, v{vLane}")
    a(f"v_add_u32 v{vT}, s{sT}, v{vT}")
    a(f"v_mul_u32_u24 v{vT}, 1280, v{vT}")
    a(f"v_and_b32 v{vT+1}, 15, v{vLane}")
    a(f"v_lshl_add_u32 v{vT}, v{vT+1}, 4, v{vT}")
    for i in range(5):
        a(f"buffer_load_dwordx4 {vr(X+4*i,4)}, v{vT}, s[{R_A}:{R_A+3}], 0 offen offset:{256*i}")
    a(f"v_lshlrev_b32 v{vX16}, 4, v{vLane}")
    a(f"s_and_b32 s{sRho}, s{sRB}, 7")
    L_nowe = "A_nowe"
    a(f"s_cmp_lt_u32 s{sW}, 5")
    a(f"s_cbranch_scc1 {L_nowe}")
    a(f"s_cmp_ge_u32 s{sCG}, 2")
    a(f"s_cbranch_scc1 {L_nowe}")
    a(f"s_cmp_eq_u32 s{sCG}, 1")
    a(f"s_cselect_b32 s{R_B}, s{S_WV}, s{S_WK}")
    a(f"s_cselect_b32 s{R_B+1}, s{S_WV+1}, s{S_WK+1}")
    a(f"s_mov_b32 s{R_B+2}, {640*20*2}")
    a(f"s_mov_b32 s{R_B+3}, 0x00020000")
    a(f"s_sub_u32 s{sT}, s{sW}, 5")
    a(f"s_mul_i32 s{sStep}, s{sT}, 13")
    a(f"s_min_u32 s{sT}, s{sT}, 1")
    a(f"s_add_u32 s{sStep}, s{sStep}, s{sT}")
    a(f"s_mul_i32 s{sT}, s{sRho}, 5")
    a(f"s_add_u32 s{sT2}, s{sStep}, s{sT}")
    a(f"s_cmp_ge_u32 s{sT2}, 40")
    a(f"s_cselect_b32 s{sT}, 40, 0")
    a(f"s_sub_u32 s{sT2}, s{sT2}, s{sT}")
    a(f"s_mul_i32 s{sSoff}, s{sT2}, 640")
    for i in range(14):
        a(f"s_add_u32 s{sT}, s{sSoff}, 640")
        a(f"buffer_load_dwordx4 {vr(WS_+4*i,4)}, v{vX16}, s[{R_B}:{R_B+3}], s{sSoff} offen")
        a(f"s_cmp_eq_u32 s{sT}, 25600")
        a(f"s_cselect_b32 s{sSoff}, 0, s{sT}")
    a.label(L_nowe)
    a("s_barrier")
    L_nq = "A_nq"
    a(f"s_cmp_ge_u32 s{sW}, 5")
    a(f"s_cbranch_scc1 {L_nq}")
    srd(a, R_B, S_WQ, S_WQ+1, 640*640*2)
    a(f"v_lshrrev_b32 v{vT}, 2, v{vLane}")
    a(f"v_mul_u32_u24 v{vT}, 1280, v{vT}")
    a(f"v_and_b32 v{vT+1}, 3, v{vLane}")
    a(f"v_lshl_add_u32 v{vT}, v{vT+1}, 4, v{vT}")
    a(f"s_mul_i32 s{sT}, s{sCG}, 320")
    a(f"s_lshl_b32 s{sT2}, s{sW}, 6")
    a(f"s_add_u32 s{sT}, s{sT}, s{sT2}")
    a(f"v_add_u32 v{vVo}, s{sT}, v{vT}")
    a(f"s_mul_i32 s{sLds}, s{sW}, {RW}")
    a(f"s_add_u32 s{sLds}, s{sLds}, {RING}")
    a(f"s_mul_i32 s{sSoff}, s{sRho}, {5*20480}")
    def wload(k):
        d = WS_ + 4*(k % DEPTH)
        a(f"s_add_u32 s{sT}, s{sSoff}, 20480")
        a(f"buffer_load_dwordx4 {vr(d,4)}, v{vVo}, s[{R_B}:{R_B+3}], s{sSoff} offen")
        a(f"s_cmp_eq_u32 s{sT}, {40*20480}")
        a(f"s_cselect_b32 s{sSoff}, 0, s{sT}")
    NW0 = OPT.get("NW0", 8)
    for k in range(NW0): wload(k)
    tr_addr(a, vTr, vTr2, 64, 8, 4, sLds, vT)
    a(f"v_add_u32 v{vWst}, s{sLds}, v{vX16}")
    a(f"s_waitcnt vmcnt({NW0})")
    a(f"s_mov_b32 s{sTag}, 0")
    a(f"s_branch A_xok")
    a.label(L_nq)
    a(f"s_waitcnt vmcnt(14)")
    a(f"s_cmp_lt_u32 s{sCG}, 2")
    a(f"s_cbranch_scc1 A_xok2")
    a(f"s_waitcnt vmcnt(0)")
    a.label("A_xok2")
    a(f"v_mov_b32 v{vT}, 0")
    a(f"global_load_dword v{vTag}, v{vT}, s[{S_DBG}:{S_DBG+1}] sc1")
    a.label("A_xok")
    st.mark("xwait")
    a(f"v_mov_b32 v{vOne}, 0x3f803f80")
    a(f"v_mov_b32 v{vSelLo}, 0x00003f80")
    a(f"v_mov_b32 v{vSelHi}, 0x3f800000")
    for i in range(4): a(f"v_mov_b32 v{TMP+i}, 0")
    for i in range(20):
        a(f"v_dot2c_f32_bf16 v{TMP+(i%2)}, v{X+i}, v{vOne}")
        a(f"v_dot2c_f32_bf16 v{TMP+2+(i%2)}, v{X+i}, v{X+i}")
    a(f"v_lshrrev_b32 v{vT}, 4, v{vLane}")
    a(f"s_lshl_b32 s{sT}, s{sW}, 2")
    a(f"v_add_u32 v{vT}, s{sT}, v{vT}")
    a(f"v_and_b32 v{vT+1}, 1, v{vLane}")
    a(f"v_mul_u32_u24 v{vT+1}, {XH}, v{vT+1}")
    a(f"v_lshl_add_u32 v{vT+1}, v{vT}, 4, v{vT+1}")
    a(f"v_add_f32 v{vSum}, v{TMP}, v{TMP+1}")
    a(f"v_add_f32 v{vSq}, v{TMP+2}, v{TMP+3}")
    a(f"v_bfe_u32 v{vT+2}, v{vLane}, 1, 3")
    a(f"s_mul_i32 s{sT}, s{sRho}, 5")
    a(f"s_sub_u32 s{sT}, 40, s{sT}")
    for ror in (8, 4, 2, 1):
        a(f"v_add_f32_dpp v{vSum}, v{vSum}, v{vSum} row_ror:{ror} row_mask:0xf bank_mask:0xf")
        a(f"v_add_f32_dpp v{vSq}, v{vSq}, v{vSq} row_ror:{ror} row_mask:0xf bank_mask:0xf")
        if ror != 1: a.nop(1)
    a(f"v_add_u32 v{vT+2}, s{sT}, v{vT+2}")
    inv = f32bits(1.0/640)
    a(f"v_mul_f32 v{vM}, {inv}, v{vSum}")
    a(f"v_mul_f32 v{TMP+1}, {inv}, v{vSq}")
    a(f"v_fma_f32 v{TMP+1}, -v{vM}, v{vM}, v{TMP+1}")
    a(f"v_max_f32 v{TMP+1}, 0, v{TMP+1}")
    bf16_round(a, TMP+1, TMP+1)
    bf16_round(a, vM, vM)
    a(f"v_add_f32 v{TMP+1}, {f32bits(1e-5)}, v{TMP+1}")
    a(f"v_sub_f32 v{vM}, 0, v{vM}")
    bf16_round(a, TMP+1, TMP+1)
    a(f"v_sqrt_f32 v{vSum}, v{TMP+1}")
    for base in range(0, 20, 8):
        g = min(8, 20-base)
        for i in range(g):
            a(f"v_dot2_f32_bf16 v{TMP+2*i}, v{X+base+i}, v{vSelLo}, v{vM}")
            a(f"v_dot2_f32_bf16 v{TMP+2*i+1}, v{X+base+i}, v{vSelHi}, v{vM}")
        if base == 0:
            bf16_round(a, vSum, vSum)
            a(f"v_rcp_f32 v{vR}, v{vSum}")
        else:
            a.nop(3)
        for i in range(g):
            a(f"v_cvt_pk_bf16_f32 v{X+base+i}, v{TMP+2*i}, v{TMP+2*i+1}")
    a(f"v_lshlrev_b32 v{vT+3}, 2, v{vT}")
    a(f"ds_write_b32 v{vT+3}, v{vR} offset:{RBUF}")
    for i in range(5):
        if i: a(f"v_add_u32 v{vT+2}, 8, v{vT+2}")
        a(f"v_subrev_u32 v{vT+3}, 40, v{vT+2}")
        a(f"v_min_u32 v{vT+3}, v{vT+3}, v{vT+2}")
        a(f"v_mul_u32_u24 v{vT+3}, {XP}, v{vT+3}")
        a(f"v_add_u32 v{vT+3}, v{vT+3}, v{vT+1}")
        a(f"ds_write_b128 v{vT+3}, {vr(X+4*i,4)} offset:{XB}")
    a(f"v_mul_u32_u24 v{vXa}, {XH}, v{vH}")
    a(f"v_lshl_add_u32 v{vXa}, v{vN}, 4, v{vXa}")
    a(f"s_cmp_ge_u32 s{sW}, 5")
    a(f"s_cbranch_scc1 A_ln5")
    for k in range(NW0, 10): wload(k)
    a(f"s_cmp_eq_u32 s{sW}, 4")
    a(f"s_cbranch_scc1 A_lnb")
    for k in range(10, DEPTH): wload(k)
    a(f"s_branch A_lnb")
    a.label("A_ln5")
    a(f"v_mov_b32 v{vT}, {LFL}")
    for i in range(4): a(f"v_mov_b32 v{TMP+i}, 0")
    a(f"ds_write_b128 v{vT}, v[{TMP}:{TMP+3}]")
    a(f"ds_write_b128 v{vT}, v[{TMP}:{TMP+3}] offset:{LFL2-LFL}")
    a("s_waitcnt vmcnt(0)")
    a(f"v_readfirstlane_b32 s{sTag}, v{vTag}")
    a.label("A_lnb")
    a("s_waitcnt lgkmcnt(0)")
    a("s_barrier")
    a(f"v_lshlrev_b32 v{vT}, 2, v{vN}")
    a(f"ds_read_b32 v{vR}, v{vT} offset:{RBUF}")
    st.mark("LN")
    if OPT.get("diag"):
        a(f"s_cmp_lg_u32 s{sW}, 0"); Ld = a.newlabel("dg"); a(f"s_cbranch_scc1 {Ld}"); diag(a, 4, va=62); diag(a, 5, neg=True, va=62); a.label(Ld)
    def ensure_tag(lab):
        get_tag(a, vT, lab, have=True)
    L_kvp, L_exp, L_bar1 = "A_kvp", "A_exp", "A_bar1"
    a(f"s_cmp_ge_u32 s{sW}, 5")
    a(f"s_cbranch_scc1 {L_kvp}")
    a(f"s_cmp_eq_u32 s{sW}, 4")
    a(f"s_cbranch_scc1 A_job4")
    if OPT.get("noq"): a(f"s_branch {L_bar1}")
    def pipe_gemm(nsteps, wr, rd, need_vm, refill, cin0):
        for k in range(5):
            if k < nsteps:
                need_vm(k, -5 + k)
                wr(k)
            if 0 <= k - 2 < nsteps: rd(k - 2)
        for s_ in range(nsteps):
            n_ops = 0
            if s_ + 5 < nsteps:
                need_vm(s_ + 5, s_)
                wr(s_ + 5)
            if s_ + 3 < nsteps: rd(s_ + 3)
            for t in range(s_ + 1, s_ + 4):
                if t + 2 < nsteps: n_ops += 1
                if t < nsteps: n_ops += 3
            a(f"s_waitcnt lgkmcnt({n_ops})")
            f = FB + 8*(s_ % 4)
            cin = cin0 if s_ == 0 else vr(ACC, 16)
            a(f"v_mfma_f32_32x32x16_bf16 {vr(ACC,16)}, {vr(f,4)}, {vr(f+4,4)}, {cin}")
            refill(s_)
    def q_wr(k): a(f"ds_write_b128 v{vWst}, {vr(WS_+4*(k % DEPTH),4)} offset:{(k % NSTG)*1024}")
    def q_rd(k):
        f = FB + 8*(k % 4)
        a(f"ds_read_b64_tr_b16 v[{f}:{f+1}], v{vTr} offset:{(k % NSTG)*1024}")
        a(f"ds_read_b64_tr_b16 v[{f+2}:{f+3}], v{vTr2} offset:{(k % NSTG)*1024}")
        a(f"ds_read_b128 {vr(f+4,4)}, v{vXa} offset:{XB + k*XP}")
    def q_vm(k, s_now):
        issued = DEPTH + max(0, min(s_now, 40 - DEPTH + QOFF) - QOFF) if s_now > 0 else DEPTH
        issued = min(issued, 40)
        a(f"s_waitcnt vmcnt({issued - 1 - k})")
    QOFF = 0
    def q_refill(s_):
        if s_ + DEPTH < 40: wload(s_ + DEPTH)
    pipe_gemm(40, q_wr, q_rd, q_vm, q_refill, "0")
    st.mark("gemm")
    a.nop(12)
    a(f"v_mul_f32 v{vT}, {f32bits(QSCALE)}, v{vR}")
    for j in range(16): a(f"v_mul_f32 v{ACC+j}, v{ACC+j}, v{vT}")
    for k in range(8): a(f"v_cvt_pk_bf16_f32 v{TMP+k}, v{ACC+2*k}, v{ACC+2*k+1}")
    a(f"s_branch {L_bar1}")

    JW = WS_ + 20
    def job_loads():
        srd(a, R_B, S_WQ, S_WQ+1, 640*640*2)
        a(f"v_lshrrev_b32 v{vT}, 2, v{vLane}")
        a(f"v_mul_u32_u24 v{vT}, 1280, v{vT}")
        a(f"v_and_b32 v{vT+1}, 3, v{vLane}")
        a(f"v_lshl_add_u32 v{vT}, v{vT+1}, 4, v{vT}")
        a(f"s_mul_i32 s{sT}, s{sCG}, 320")
        a(f"s_add_u32 s{sT}, s{sT}, 256")
        a(f"v_add_u32 v{vT}, s{sT}, v{vT}")
        a(f"s_sub_u32 s{sT}, s{sW}, 4")
        a(f"s_mul_i32 s{sT}, s{sT}, 10")
        a(f"s_mul_i32 s{sT2}, s{sRho}, 5")
        a(f"s_add_u32 s{sT}, s{sT}, s{sT2}")
        a(f"s_cmp_ge_u32 s{sT}, 40")
        a(f"s_cselect_b32 s{sT2}, 40, 0")
        a(f"s_sub_u32 s{sT}, s{sT}, s{sT2}")
        a(f"s_mul_i32 s{sSoff}, s{sT}, 20480")
        for k in range(10):
            a(f"s_add_u32 s{sT}, s{sSoff}, 20480")
            a(f"buffer_load_dwordx4 {vr(JW+4*k,4)}, v{vT}, s[{R_B}:{R_B+3}], s{sSoff} offen")
            a(f"s_cmp_eq_u32 s{sT}, {40*20480}")
            a(f"s_cselect_b32 s{sSoff}, 0, s{sT}")
    def job_run(raw, vm_after):
        tr_addr(a, vTr, vTr2, 64, 8, 4, sLds, vT)
        a(f"v_add_u32 v{vWst}, s{sLds}, v{vX16}")
        a(f"s_sub_u32 s{sT}, s{sW}, 4")
        a(f"s_mul_i32 s{sT}, s{sT}, {10*XP}")
        a(f"v_add_u32 v{vVo}, s{sT}, v{vXa}")
        def j_wr(k): a(f"ds_write_b128 v{vWst}, {vr(raw+4*k,4)} offset:{(k % NSTG)*1024}")
        def j_rd(k):
            f = FB + 8*(k % 4)
            a(f"ds_read_b64_tr_b16 v[{f}:{f+1}], v{vTr} offset:{(k % NSTG)*1024}")
            a(f"ds_read_b64_tr_b16 v[{f+2}:{f+3}], v{vTr2} offset:{(k % NSTG)*1024}")
            a(f"ds_read_b128 {vr(f+4,4)}, v{vVo} offset:{k*XP}")
        def j_vm(k, s_): a(f"s_waitcnt vmcnt({9 - k + vm_after})")
        pipe_gemm(10, j_wr, j_rd, j_vm, lambda s_: None, "0")
        a("s_waitcnt lgkmcnt(0)")
        a.nop(12)
    def job_publish():
        Lp5, Lpd = a.newlabel("A_jp5"), a.newlabel("A_jpd")
        a(f"s_cmp_eq_u32 s{sW}, 5")
        a(f"s_cbranch_scc1 {Lp5}")
        for q in range(3): a(f"ds_write_b128 v{vWst}, {vr(ACC+4*q,4)} offset:{q*1024}")
        a(f"s_sub_u32 s{sT}, s{sW}, 6")
        a(f"s_lshl_b32 s{sT}, s{sT}, 10")
        a(f"s_add_u32 s{sT}, s{sT}, {T4F}")
        a(f"v_add_u32 v{vT}, s{sT}, v{vX16}")
        a(f"ds_write_b128 v{vT}, {vr(ACC+12,4)}")
        a(f"s_branch {Lpd}")
        a.label(Lp5)
        a(f"v_add_u32 v{vT}, {KVX+4096}, v{vX16}")
        for q in range(4): a(f"ds_write_b128 v{vT}, {vr(ACC+4*q,4)} offset:{q*1024}")
        a.label(Lpd)
        a(f"s_sub_u32 s{sT}, s{sW}, 5")
        a(f"s_lshl_b32 s{sT}, s{sT}, 2")
        a(f"s_add_u32 s{sT}, s{sT}, {LFL2}")
        a(f"v_mov_b32 v{vT}, s{sT}")
        a(f"v_mov_b32 v{vT+1}, 1")
        a(f"ds_write_b32 v{vT}, v{vT+1}")
    a.label("A_job4")
    job_run(WS_, 0)
    a(f"v_mov_b32 v{vT}, {LFL2}")
    a(f"s_mov_b32 s{sT3}, {SPIN_MAX}")
    a.label("A_j4spin")
    a(f"ds_read_b96 v[{vT+2}:{vT+4}], v{vT}")
    a("s_waitcnt lgkmcnt(0)")
    a(f"v_and_b32 v{vT+2}, v{vT+2}, v{vT+3}")
    a(f"v_and_b32 v{vT+2}, v{vT+2}, v{vT+4}")
    a("s_nop 0")
    a(f"v_readfirstlane_b32 s{sT}, v{vT+2}")
    a(f"s_sub_u32 s{sT3}, s{sT3}, 1")
    a(f"s_cmp_eq_u32 s{sT3}, 0")
    a(f"s_cbranch_scc1 A_j4spin_done")
    a(f"s_cmp_eq_u32 s{sT}, 1")
    a(f"s_cbranch_scc1 A_j4spin_done")
    a("s_sleep 1")
    a(f"s_branch A_j4spin")
    a.label("A_j4spin_done")
    a(f"v_add_u32 v{vT}, {KVX+4096}, v{vX16}")
    a(f"v_add_u32 v{vT+1}, {KSTG+3072}, v{vX16}")
    a(f"v_add_u32 v{vT+2}, {T4F}, v{vX16}")
    for q in range(4): a(f"ds_read_b128 {vr(64+4*q,4)}, v{vT} offset:{q*1024}")
    for p_ in range(2):
        for q in range(3): a(f"ds_read_b128 {vr(80+16*p_+4*q,4)}, v{vT+1} offset:{p_*3072 + q*1024}")
        a(f"ds_read_b128 {vr(80+16*p_+12,4)}, v{vT+2} offset:{p_*1024}")
    a("s_waitcnt lgkmcnt(0)")
    for j in range(16): a(f"v_add_f32 v{64+j}, v{64+j}, v{80+j}")
    for j in range(16): a(f"v_add_f32 v{ACC+j}, v{ACC+j}, v{96+j}")
    for j in range(16): a(f"v_add_f32 v{ACC+j}, v{ACC+j}, v{64+j}")
    st.mark("job4")
    a(f"v_mul_f32 v{vT}, {f32bits(QSCALE)}, v{vR}")
    for j in range(16): a(f"v_mul_f32 v{ACC+j}, v{ACC+j}, v{vT}")
    for k in range(8): a(f"v_cvt_pk_bf16_f32 v{TMP+k}, v{ACC+2*k}, v{ACC+2*k+1}")
    a(f"s_branch {L_bar1}")
    def export_d():
        a(f"s_mul_i32 s{sT}, s{sCG}, 2")
        a(f"s_add_u32 s{sT}, s{sT}, s{sW}")
        a(f"s_sub_u32 s{sT}, s{sT}, 6")
        a(f"s_sub_u32 s{sT2}, s{sT}, s{sRho}")
        a(f"s_and_b32 s{sT2}, s{sT2}, 7")
        a(f"s_mul_i32 s{sT2}, s{sT2}, {5*XP}")
        a(f"v_add_u32 v{vT}, s{sT2}, v{vXa}")
        for i in range(5):
            a(f"ds_read_b128 {vr(X+4*i,4)}, v{vT} offset:{XB + XP*i}")
        a(f"s_mul_i32 s{sT2}, s{sRB}, 40")
        a(f"s_mul_i32 s{sExp}, s{sT}, 5")
        a(f"s_add_u32 s{sT2}, s{sT2}, s{sExp}")
        a(f"s_lshl_b32 s{sT2}, s{sT2}, 10")
        if WS_XF: a(f"s_add_u32 s{sT2}, s{sT2}, {WS_XF}")
        a(f"s_lshl_b32 s{sFD}, s{sRB}, 3")
        a(f"s_add_u32 s{sFD}, s{sFD}, s{sT}")
        a(f"v_add_u32 v{vT+1}, 4096, v{vX16}")
        a("s_waitcnt lgkmcnt(0)")
        for i in range(4):
            a(f"buffer_store_dwordx4 {vr(X+4*i,4)}, v{vX16}, s[{R_WS}:{R_WS+3}], s{sT2} offen offset:{1024*i} sc1")
        a(f"buffer_store_dwordx4 {vr(X+16,4)}, v{vT+1}, s[{R_WS}:{R_WS+3}], s{sT2} offen sc1")
        L_nor = "A_nor"
        a(f"s_cmp_lg_u32 s{sT}, 0")
        a(f"s_cbranch_scc1 {L_nor}")
        a(f"s_lshl_b32 s{sT2}, s{sRB}, 7")
        a(f"s_add_u32 s{sT2}, s{sT2}, {WS_R}")
        a(f"v_lshlrev_b32 v{vT}, 2, v{vN}")
        a(f"buffer_store_dword v{vR}, v{vT}, s[{R_WS}:{R_WS+3}], s{sT2} offen sc1")
        a.label(L_nor)
    a.label(L_kvp)
    a("s_setprio 3")
    if OPT.get("expfirst", 0):
        a(f"s_cmp_lt_u32 s{sW}, 6")
        a(f"s_cbranch_scc1 A_noexp")
        export_d()
        a.label("A_noexp")
    a(f"s_cmp_ge_u32 s{sCG}, 2")
    a(f"s_cbranch_scc1 A_kvp_skip")
    a(f"s_sub_u32 s{sT}, s{sW}, 5")
    a(f"s_mul_i32 s{sLds}, s{sT}, 3072")
    a(f"s_add_u32 s{sLds}, s{sLds}, {KSTG}")
    tr_addr(a, vTr, vTr2, 40, 8, 4, sLds, vT)
    a(f"v_add_u32 v{vWst}, s{sLds}, v{vX16}")
    a(f"s_mul_i32 s{sT}, s{sStep}, {XP}")
    a(f"v_add_u32 v{vVo}, s{sT}, v{vXa}")
    a(f"v_add_u32 v{vT+4}, {13*XP}, v{vVo}")
    a(f"s_cmp_eq_u32 s{sW}, 5")
    a(f"s_cbranch_scc1 A_kv13")
    for i in range(4): a(f"v_mov_b32 v{WS_+52+i}, 0")
    a(f"v_mov_b32 v{vT+4}, v{vXa}")
    a.label("A_kv13")
    def k_wr(k): a(f"ds_write_b128 v{vWst}, {vr(WS_+4*k,4)} offset:{(k % NSTG)*1024}")
    def k_rd(k):
        f = FB + 8*(k % 4)
        a(f"ds_read_b64_tr_b16 v[{f}:{f+1}], v{vTr} offset:{(k % NSTG)*1024}")
        a(f"ds_read_b64_tr_b16 v[{f+2}:{f+3}], v{vTr2} offset:{(k % NSTG)*1024}")
        if k == 13: a(f"ds_read_b128 {vr(f+4,4)}, v{vT+4}")
        else: a(f"ds_read_b128 {vr(f+4,4)}, v{vVo} offset:{k*XP}")
    pipe_gemm(14, k_wr, k_rd, lambda k, s_: None, lambda s_: None, "0")
    a("s_waitcnt lgkmcnt(0)")
    job_loads()
    a(f"s_cmp_eq_u32 s{sW}, 5")
    a(f"s_cbranch_scc1 A_kv5")
    a(f"s_sub_u32 s{sT}, s{sW}, 6")
    a(f"s_lshl_b32 s{sT}, s{sT}, 12")
    a(f"s_add_u32 s{sT}, s{sT}, {KVX}")
    a(f"v_add_u32 v{vT}, s{sT}, v{vX16}")
    for q in range(4):
        a(f"ds_write_b128 v{vT}, {vr(ACC+4*q,4)} offset:{q*1024}")
    a(f"s_sub_u32 s{sT}, s{sW}, 6")
    a(f"s_lshl_b32 s{sT}, s{sT}, 2")
    a(f"s_add_u32 s{sT}, s{sT}, {LFL}")
    a(f"v_mov_b32 v{vT}, s{sT}")
    a(f"v_mov_b32 v{vT+1}, 1")
    a(f"ds_write_b32 v{vT}, v{vT+1}")
    a(f"s_branch A_kvp_done")
    a.label("A_kv5")
    a(f"v_mov_b32 v{vT}, {LFL}")
    a(f"s_mov_b32 s{sT3}, {SPIN_MAX}")
    a.label("A_kvspin")
    a(f"ds_read_b64 v[{vT+2}:{vT+3}], v{vT}")
    a("s_waitcnt lgkmcnt(0)")
    a(f"v_and_b32 v{vT+2}, v{vT+2}, v{vT+3}")
    a("s_nop 0")
    a(f"v_readfirstlane_b32 s{sT}, v{vT+2}")
    a(f"s_sub_u32 s{sT3}, s{sT3}, 1")
    a(f"s_cmp_eq_u32 s{sT3}, 0")
    a(f"s_cbranch_scc1 A_kvspin_done")
    a(f"s_cmp_eq_u32 s{sT}, 1")
    a(f"s_cbranch_scc1 A_kvspin_done")
    a("s_sleep 1")
    a(f"s_branch A_kvspin")
    a.label("A_kvspin_done")
    a(f"v_add_u32 v{vT}, {KVX}, v{vX16}")
    for p_ in range(2):
        for q in range(4):
            a(f"ds_read_b128 {vr(FB+16*p_+4*q,4)}, v{vT} offset:{p_*4096 + q*1024}")
    a("s_waitcnt lgkmcnt(0)")
    for j in range(16):
        a(f"v_add_f32 v{FB+j}, v{FB+j}, v{FB+16+j}")
    for j in range(16):
        a(f"v_add_f32 v{ACC+j}, v{ACC+j}, v{FB+j}")
    for j in range(16): a(f"v_mul_f32 v{ACC+j}, v{ACC+j}, v{vR}")
    a(f"v_cmp_eq_u32 vcc, 1, v{vH}")
    a(f"v_mov_b32 v{vT}, 1.0")
    a(f"v_mov_b32 v{vT+1}, 0")
    a(f"v_cndmask_b32 v{ACC+8}, v{ACC+8}, v{vT}, vcc")
    for j in range(9, 12): a(f"v_cndmask_b32 v{ACC+j}, v{ACC+j}, v{vT+1}, vcc")
    for j in range(12, 16): a(f"v_mov_b32 v{ACC+j}, 0")
    for k in range(8): a(f"v_cvt_pk_bf16_f32 v{TMP+k}, v{ACC+2*k}, v{ACC+2*k+1}")
    a(f"s_mul_i32 s{sT}, s{sRB}, {TS}")
    a(f"s_add_u32 s{sT}, s{sT}, {WS_KV}")
    L_v = "A_v"; L_kvdone = "A_kvdone"
    a(f"s_cmp_eq_u32 s{sCG}, 1")
    a(f"s_cbranch_scc1 {L_v}")
    a(f"buffer_store_dwordx4 {vr(TMP,4)}, v{vX16}, s[{R_WS}:{R_WS+3}], s{sT} offen sc1")
    a(f"v_lshlrev_b32 v{vT}, 3, v{vLane}")
    a(f"s_mov_b32 exec_hi, 0")
    a(f"buffer_store_dwordx2 v[{TMP+4}:{TMP+5}], v{vT}, s[{R_WS}:{R_WS+3}], s{sT} offen offset:1024 sc1")
    a(f"s_mov_b32 exec_hi, -1")
    a(f"s_branch {L_kvdone}")
    a.label(L_v)
    a(f"s_mov_b32 s{sLds}, {KVX}")
    a(f"v_lshlrev_b32 v{vT}, 6, v{vN}")
    a(f"v_lshl_add_u32 v{vT}, v{vH}, 3, v{vT}")
    a(f"v_add_u32 v{vT}, s{sLds}, v{vT}")
    for q in range(4):
        a(f"ds_write_b64 v{vT}, v[{TMP+2*q}:{TMP+2*q+1}] offset:{16*q}")
    tr_addr(a, vTr, None, 64, 4, 8, sLds, vT+1)
    for u in range(2):
        a(f"ds_read_b64_tr_b16 v[{TMP+8+4*u}:{TMP+9+4*u}], v{vTr} offset:{u*1024}")
        a(f"ds_read_b64_tr_b16 v[{TMP+10+4*u}:{TMP+11+4*u}], v{vTr} offset:{u*1024 + 512}")
    a(f"v_mul_u32_u24 v{vT}, {VH}, v{vH}")
    a(f"v_lshl_add_u32 v{vT}, v{vN}, 4, v{vT}")
    a(f"s_mov_b32 exec_lo, 0x3fffff")
    a(f"s_mov_b32 exec_hi, 0x3fffff")
    a("s_waitcnt lgkmcnt(0)")
    a(f"buffer_store_dwordx4 {vr(TMP+8,4)}, v{vT}, s[{R_WS}:{R_WS+3}], s{sT} offen offset:1280 sc1")
    a(f"buffer_store_dwordx4 {vr(TMP+12,4)}, v{vT}, s[{R_WS}:{R_WS+3}], s{sT} offen offset:{1280+VF} sc1")
    a(f"s_mov_b64 exec, -1")
    a.label(L_kvdone)
    ensure_tag("A5")
    a("s_waitcnt vmcnt(0)")
    st.mark("k5:drain")
    a(f"s_lshl_b32 s{sT}, s{sRB}, 1")
    a(f"s_add_u32 s{sT}, s{sT}, s{sCG}")
    set_flag(a, vT, sT, FL_KV)
    a(f"s_mov_b32 s{sLds}, {KSTG}")
    job_run(JW, 1)
    job_publish()
    a(f"s_branch {L_bar1}")
    a.label("A_kvp_skip")
    job_loads()
    a(f"s_cmp_lg_u32 s{sW}, 5")
    a(f"s_cbranch_scc1 A_kvp_done")
    a(f"s_mov_b32 s{sLds}, {KSTG}")
    job_run(JW, 0)
    job_publish()
    a(f"s_branch {L_bar1}")
    a.label("A_kvp_done")
    if not OPT.get("expfirst", 0): export_d()
    ensure_tag("A6")
    tag_to_lds(a, vT)
    a(f"s_waitcnt vmcnt({10 if OPT.get('expfirst', 0) else 0})")
    st.mark("x:drain")
    set_flag(a, vT, sFD, FL_D)
    a(f"s_sub_u32 s{sT}, s{sW}, 5")
    a(f"s_mul_i32 s{sLds}, s{sT}, 3072")
    a(f"s_add_u32 s{sLds}, s{sLds}, {KSTG}")
    job_run(JW, 1)
    job_publish()
    a.label(L_bar1)
    a("s_waitcnt vmcnt(0)")
    a.label("A_bar1_nowait")
    a("s_setprio 0")
    a("s_waitcnt lgkmcnt(0)")
    a("s_barrier")
    st.mark("bar0")
    vA16 = vX16
    aK1, aK2, aV, nK1, nK2, nV = 64, 65, 66, 67, 68, 69
    bK2, bV = 70, 71
    CN = 80
    S = [16, 32]
    O = 48
    P = 96
    Q1, Q2 = 104, 108
    K1, K2 = 112, 116
    V1, V2 = 120, 124
    vM2 = 110
    sSoffK, sLdsW, sSlot, sCk = 58, 59, 60, 61
    vFl, vFlo = 72, 73
    srd(a, R_A, S_WS, S_WS+1, KVB, WS_KV)
    a(f"s_lshl_b32 s{sLdsW}, s{sW}, 10")
    a(f"v_lshlrev_b32 v{bK2}, 3, v{vN}")
    a(f"v_add_u32 v{bK2}, 1024, v{bK2}")
    a(f"v_mov_b32 v{vT}, {1280 + 21*16}")
    a(f"v_cmp_eq_u32 vcc, 1, v{vH}")
    a(f"v_min_u32 v{bV}, 21, v{vN}")
    a(f"v_lshlrev_b32 v{bV}, 4, v{bV}")
    a(f"v_cndmask_b32 v{bK2}, v{bK2}, v{vT}, vcc")
    a(f"v_mul_u32_u24 v{vT}, {VH}, v{vH}")
    a(f"v_add3_u32 v{bV}, v{bV}, v{vT}, 0")
    a(f"v_add_u32 v{bV}, 1280, v{bV}")
    def dma_chunk(slot_s):
        Ls = a.newlabel("A_dm")
        a(f"s_cmp_ge_u32 s{sW}, 4")
        a(f"s_cbranch_scc1 {Ls}")
        a(f"s_add_u32 s{sT}, s{slot_s}, s{sLdsW}")
        a(f"s_add_u32 s{sT2}, s{sSoffK}, s{sLdsW}")
        for i in range(6):
            if i == 5:
                a(f"s_cmp_lg_u32 s{sW}, 0")
                a(f"s_cbranch_scc1 {Ls}")
            a(f"s_add_u32 m0, s{sT}, {4096*i}")
            a(f"s_add_u32 s{sT3}, s{sT2}, {4096*i}")
            a(f"buffer_load_dwordx4 v{vA16}, s[{R_A}:{R_A+3}], s{sT3} offen sc1 lds")
        a.label(Ls)
        a(f"s_add_u32 s{sSoffK}, s{sSoffK}, {CH}")
        a(f"s_cmp_eq_u32 s{sSoffK}, {8*CH}")
        a(f"s_cselect_b32 s{sSoffK}, 0, s{sSoffK}")
        a(f"s_add_u32 s{sCk}, s{sCk}, 1")
        a(f"s_and_b32 s{sCk}, s{sCk}, 7")
    L_noqw = "A_noqw"
    a(f"v_mul_u32_u24 v{vT}, {QP}, v{vN}")
    a(f"v_add_u32 v{vT}, {QBUF}, v{vT}")
    a(f"s_cmp_ge_u32 s{sW}, 5")
    a(f"s_cbranch_scc1 {L_noqw}")
    a(f"s_lshl_b32 s{sT}, s{sW}, 6")
    a(f"v_lshl_add_u32 v{vT+1}, v{vH}, 3, v{vT}")
    a(f"v_add_u32 v{vT+1}, s{sT}, v{vT+1}")
    for q in range(4):
        a(f"ds_write_b64 v{vT+1}, v[{TMP+2*q}:{TMP+2*q+1}] offset:{16*q}")
    a.label(L_noqw)
    a("s_waitcnt lgkmcnt(0)")
    a("s_barrier")
    a(f"s_mul_i32 s{sT}, s{sW}, 40")
    a(f"v_add_u32 v{vT}, s{sT}, v{vT}")
    a(f"v_lshl_add_u32 v{vT+1}, v{vH}, 3, v{vT}")
    a(f"ds_read_b64 v[{Q1}:{Q1+1}], v{vT+1}")
    a(f"ds_read_b64 v[{Q1+2}:{Q1+3}], v{vT+1} offset:16")
    a(f"ds_read_b64 v[{Q2}:{Q2+1}], v{vT} offset:32")
    a(f"v_mov_b32 v{aK1}, v{vA16}")
    a(f"v_mov_b32 v{aK2}, v{bK2}")
    a(f"v_mov_b32 v{aV}, v{bV}")
    a(f"v_add_u32 v{nK1}, {CH}, v{vA16}")
    a(f"v_add_u32 v{nK2}, {CH}, v{bK2}")
    a(f"v_add_u32 v{nV}, {CH}, v{bV}")
    for i in range(16): a(f"v_mov_b32 v{O+i}, 0")
    a(f"v_cmp_eq_u32 vcc, 1, v{vH}")
    a(f"v_mov_b32 v{vT}, 0")
    a("s_waitcnt lgkmcnt(0)")
    a(f"v_cndmask_b32 v{Q2}, v{Q2}, v{vT}, vcc")
    a(f"v_cndmask_b32 v{Q2+1}, v{Q2+1}, v{vT}, vcc")
    a(f"s_lshr_b32 s{sCk}, s{sRB}, 3")
    a(f"s_mul_i32 s{sSoffK}, s{sCk}, {CH}")
    def check_chunk(lab):
        a(f"s_cmp_lg_u32 s{sW}, 7")
        a(f"s_cbranch_scc1 {lab}_skip")
        a(f"s_lshl_b32 s{sT}, s{sCk}, 4")
        poll_flags(a, vT+2, lab, sT, 16, FL_KV, sleep=OPT.get("kvsleep", 1))
        a.label(f"{lab}_skip")
    check_chunk("A7a")
    a("s_barrier")
    st.mark("bar1")
    a(f"s_mov_b32 s{sSlot}, 0")
    dma_chunk(sSlot)
    a(f"v_min_u32 v{vFlo}, 15, v{vLane}")
    a(f"v_lshlrev_b32 v{vFlo}, 7, v{vFlo}")
    def rd(dst, n, t, off, cur, nxt, op):
        v_ = cur if t < 8 else nxt
        a(f"{op} {vr(dst,n)}, v{v_} offset:{(t % 8)*TS + off}")
    def rd_K1(t): rd(K1, 4, t, 0, aK1, nK1, "ds_read_b128")
    def rd_K2(t): rd(K2, 2, t, 0, aK2, nK2, "ds_read_b64")
    def rd_V1(t): rd(V1, 4, t, 0, aV, nV, "ds_read_b128")
    def rd_V2(t): rd(V2, 4, t, VF, aV, nV, "ds_read_b128")
    def qk1(dst, c="0"): a(f"v_mfma_f32_32x32x16_bf16 {vr(dst,16)}, {vr(K1,4)}, {vr(Q1,4)}, {c}")
    def qk2(dst): a(f"v_mfma_f32_32x32x8_bf16 {vr(dst,16)}, {vr(K2,2)}, {vr(Q2,2)}, {vr(dst,16)}")
    CNR = vr(CN, 16)
    if OPT.get("chk2early"): check_chunk("A7b")
    a("s_waitcnt vmcnt(0)")
    a("s_barrier")
    if OPT.get("chk2early"):
        a(f"s_mov_b32 s{sSlot}, {CH}")
        dma_chunk(sSlot)
        a(f"s_mov_b32 s{sSlot}, {2*CH}")
    rd_K1(0); rd_K2(0)
    def set_m(delta):
        a(f"v_mov_b32 v{vT}, v{vM2}")
        a.nop(2)
        a(f"v_permlane32_swap_b32 v{vM2}, v{vT}")
        a.nop(1)
        a(f"v_max_f32 v{vM2}, v{vM2}, v{vT}")
        if delta: a(f"v_add_f32 v{vM2}, {f32bits(delta)}, v{vM2}")
        for i in range(16): a(f"v_sub_f32 v{CN+i}, 0, v{vM2}")
    a(f"v_mov_b32 v{vM2}, 0xff800000")
    a("s_waitcnt lgkmcnt(0)")
    qk1(S[0]); qk2(S[0])
    rd_K1(1); rd_K2(1)
    a("s_waitcnt lgkmcnt(0)")
    qk1(S[1]); qk2(S[1])
    rd_K1(0); rd_K2(0)
    for i in range(4, 8): a(f"v_mov_b32 v{P+i}, 0")
    for i in range(4): a(f"v_mov_b32 v{V2+i}, 0")
    a.nop(4)
    for i in range(8):
        a(f"v_max3_f32 v{vM2}, v{S[0]+2*i}, v{S[0]+2*i+1}, v{vM2}")
    a.nop(4)
    for i in range(8):
        a(f"v_max3_f32 v{vM2}, v{S[1]+2*i}, v{S[1]+2*i+1}, v{vM2}")
    set_m(DELTA)
    a("s_waitcnt lgkmcnt(0)")
    a.nop(1)
    qk1(S[0], CNR); qk2(S[0])
    rd_K1(1); rd_K2(1); rd_V1(0)
    if not OPT.get("chk2early"):
        check_chunk("A7b")
        a("s_barrier")
        a(f"s_mov_b32 s{sSlot}, {CH}")
        dma_chunk(sSlot)
        a(f"s_mov_b32 s{sSlot}, {2*CH}")
    a.nop(12)
    st.mark("sample")
    a(f"s_setprio {OPT.get('pb', 0)}")
    if OPT.get("fair", 1):
        a(f"s_cmp_lt_u32 s{sW}, 4")
        a(f"s_cbranch_scc1 A_pr0")
        a(f"s_setprio {1 + OPT.get('pb', 0)}")
        a.label("A_pr0")
    a(f"s_mov_b32 s{sIt}, 0")
    L_loop = "A_loop"
    a(".p2align 6")
    a.label(L_loop)
    def e(cur, i): a(f"v_exp_f32 v{cur+i}, v{cur+i}")
    def p(cur, k): a(f"v_cvt_pk_bf16_f32 v{P+k}, v{cur+2*k}, v{cur+2*k+1}")
    for t in range(8):
        cur, nxt = S[t % 2], S[(t+1) % 2]
        if t == OPT.get("tdrop", 4) and OPT.get("fair", 1):
            a(f"s_setprio {OPT.get('pb', 0)}")
        if t == 0:
            a(f"s_cmp_lg_u32 s{sW}, 7")
            a(f"s_cbranch_scc1 A_nf0")
            a(f"s_lshl_b32 s{sT}, s{sCk}, 11")
            a(f"s_add_u32 s{sT}, s{sT}, {FL_KV*128}")
            a(f"buffer_load_dword v{vFl}, v{vFlo}, s[{R_FL}:{R_FL+3}], s{sT} offen sc1")
            a.label("A_nf0")
        if t == 6:
            a("s_waitcnt vmcnt(0)")
            a(f"s_cmp_lg_u32 s{sW}, 7")
            a(f"s_cbranch_scc1 A_nf6")
            a(f"v_cmp_ne_u32 vcc, s{sTag}, v{vFl}")
            a("s_nop 1")
            a(f"s_cmp_eq_u64 vcc, 0")
            a(f"s_cbranch_scc1 A_nf6")
            a(f"s_lshl_b32 s{sT}, s{sCk}, 4")
            poll_flags(a, vT+2, "A7c", sT, 16, FL_KV, sleep=1)
            a.label("A_nf6")
            a("s_barrier")
            if OPT.get("fair", 1):
                a(f"s_cmp_lt_u32 s{sW}, 4")
                a(f"s_cbranch_scc1 A_pr6")
                a(f"s_setprio {1 + OPT.get('pb', 0)}")
                a.label("A_pr6")
            dma_chunk(sSlot)
            a(f"s_add_u32 s{sSlot}, s{sSlot}, {CH}")
            a(f"s_cmp_eq_u32 s{sSlot}, {3*CH}")
            a(f"s_cselect_b32 s{sSlot}, 0, s{sSlot}")
        e(cur, 0); e(cur, 1)
        a("s_waitcnt lgkmcnt(2)")
        a(f"v_mfma_f32_32x32x16_bf16 {vr(O,16)}, {vr(V2,4)}, {vr(P+4,4)}, {vr(O,16)}")
        rd_V2(t)
        e(cur, 2); e(cur, 3); p(cur, 0); p(cur, 1)
        qk1(nxt, CNR)
        rd_K1(t+2)
        e(cur, 4); e(cur, 5); e(cur, 6); e(cur, 7); p(cur, 2); p(cur, 3)
        a("s_waitcnt lgkmcnt(2)")
        qk2(nxt)
        rd_K2(t+2)
        e(cur, 8); e(cur, 9); e(cur, 10); e(cur, 11); p(cur, 4); p(cur, 5)
        a(f"v_mfma_f32_32x32x16_bf16 {vr(O,16)}, {vr(V1,4)}, {vr(P,4)}, {vr(O,16)}")
        rd_V1(t+1)
        e(cur, 12); e(cur, 13); e(cur, 14); e(cur, 15); p(cur, 6); p(cur, 7)
    a(f"v_mov_b32 v{aK1}, v{nK1}")
    a(f"v_mov_b32 v{aK2}, v{nK2}")
    a(f"v_mov_b32 v{aV}, v{nV}")
    a(f"s_add_u32 s{sT}, s{sSlot}, {2*CH}")
    a(f"s_cmp_ge_u32 s{sT}, {3*CH}")
    a(f"s_cselect_b32 s{sT2}, {3*CH}, 0")
    a(f"s_sub_u32 s{sT}, s{sT}, s{sT2}")
    a(f"v_add_u32 v{nK1}, s{sT}, v{vA16}")
    a(f"v_add_u32 v{nK2}, s{sT}, v{bK2}")
    a(f"v_add_u32 v{nV}, s{sT}, v{bV}")
    a(f"s_add_u32 s{sIt}, s{sIt}, 1")
    a(f"s_cmp_lt_u32 s{sIt}, 8")
    a(f"s_cbranch_scc1 {L_loop}")
    a("s_waitcnt lgkmcnt(0)")
    a(f"v_mfma_f32_32x32x16_bf16 {vr(O,16)}, {vr(V2,4)}, {vr(P+4,4)}, {vr(O,16)}")
    a("s_setprio 0")
    st.mark("loop")
    if OPT.get("diag"):
        a(f"s_cmp_lg_u32 s{sW}, 0"); Ld = a.newlabel("dg"); a(f"s_cbranch_scc1 {Ld}"); diag(a, 8); diag(a, 9, neg=True); a.label(Ld)
    a.nop(16)
    L_fin, L_slow = "A_fin", "A_slow"
    a(f"s_mov_b32 s{sIt}, 0")
    a.label(L_fin)
    a(f"v_mov_b32 v{vT}, v{O+8}")
    a(f"v_mov_b32 v{vT+1}, v{O+8}")
    a.nop(2)
    a(f"v_permlane32_swap_b32 v{vT}, v{vT+1}")
    a(f"v_max3_f32 v{vT+2}, |v{O}|, |v{O+1}|, |v{O+2}|")
    for j in range(3, 12, 2):
        j2 = min(j+1, 11)
        a(f"v_max3_f32 v{vT+2}, |v{O+j}|, |v{O+j2}|, v{vT+2}")
    a(f"v_mov_b32 v{vT+3}, {f32bits(2.0**120)}")
    a(f"v_cmp_nlt_f32 vcc, v{vT+2}, v{vT+3}")
    a(f"v_cmp_nlt_f32 s[62:63], 0, v{vT+1}")
    a.nop(1)
    a(f"s_or_b64 vcc, vcc, s[62:63]")
    a(f"s_cmp_eq_u64 vcc, 0")
    a(f"s_cbranch_scc1 A_store")
    a(f"s_cmp_lg_u32 s{sIt}, 0")
    a(f"s_cbranch_scc1 A_store")
    a(f"s_branch {L_slow}")
    a.label("A_store")
    a(f"v_rcp_f32 v{vT+2}, v{vT+1}")
    a.nop(1)
    for j in range(12): a(f"v_mul_f32 v{O+j}, v{O+j}, v{vT+2}")
    for k in range(6): a(f"v_cvt_pk_bf16_f32 v{P+k}, v{O+2*k}, v{O+2*k+1}")
    a(f"s_lshl_b32 s{sT}, s{sCG}, 3")
    a(f"s_add_u32 s{sT}, s{sT}, s{sW}")
    a(f"s_mul_i32 s{sT}, s{sT}, 20")
    a(f"s_mul_i32 s{sT2}, s{sRB}, {40*1024}")
    a(f"s_add_u32 s{sT2}, s{sT2}, {WS_OF}")
    def oaddr(dst, colv):
        a(f"v_lshrrev_b32 v{dst}, 4, v{colv}")
        a(f"v_lshlrev_b32 v{dst}, 10, v{dst}")
        a(f"v_bfe_u32 v{vT+7}, v{colv}, 3, 1")
        a(f"v_lshl_add_u32 v{dst}, v{vT+7}, 9, v{dst}")
        a(f"v_and_b32 v{vT+7}, 7, v{colv}")
        a(f"v_lshl_add_u32 v{dst}, v{vT+7}, 1, v{dst}")
        a(f"v_lshl_add_u32 v{dst}, v{vN}, 4, v{dst}")
    a(f"v_lshlrev_b32 v{vT+3}, 2, v{vH}")
    a(f"v_add_u32 v{vT+3}, s{sT}, v{vT+3}")
    oaddr(vT+4, vT+3)
    a(f"buffer_store_dwordx2 v[{P}:{P+1}], v{vT+4}, s[{R_WS}:{R_WS+3}], s{sT2} offen sc1")
    a(f"v_add_u32 v{vT+3}, 8, v{vT+3}")
    oaddr(vT+5, vT+3)
    a(f"buffer_store_dwordx2 v[{P+2}:{P+3}], v{vT+5}, s[{R_WS}:{R_WS+3}], s{sT2} offen sc1")
    a(f"s_add_u32 s{sT}, s{sT}, 16")
    a(f"v_mov_b32 v{vT+3}, s{sT}")
    oaddr(vT+6, vT+3)
    a(f"v_cmp_eq_u32 vcc, 0, v{vH}")
    a(f"s_and_saveexec_b64 s[62:63], vcc")
    a(f"buffer_store_dwordx2 v[{P+4}:{P+5}], v{vT+6}, s[{R_WS}:{R_WS+3}], s{sT2} offen sc1")
    a(f"s_mov_b64 exec, s[62:63]")
    tag_from_lds(a, vT)
    a("s_waitcnt vmcnt(0) lgkmcnt(0)")
    a(f"v_readfirstlane_b32 s{sTag}, v{vT+1}")
    a(f"s_lshl_b32 s{sT}, s{sRB}, 2")
    a(f"s_add_u32 s{sT}, s{sT}, s{sCG}")
    a(f"s_lshl_b32 s{sT}, s{sT}, 3")
    a(f"s_add_u32 s{sT}, s{sT}, s{sW}")
    set_flag(a, vT, sT, FL_O)
    st.end()
    a("s_endpgm")
    a.label(L_slow)
    a(f"v_mov_b32 v{vM2}, 0xff800000")
    a(f"s_mov_b32 s{sSoffK}, 0")
    a.label("A_slow1")
    a(f"buffer_load_dwordx4 {vr(K1,4)}, v{vA16}, s[{R_A}:{R_A+3}], s{sSoffK} offen sc1")
    a(f"buffer_load_dwordx2 {vr(K2,2)}, v{bK2}, s[{R_A}:{R_A+3}], s{sSoffK} offen sc1")
    a("s_waitcnt vmcnt(0)")
    qk1(S[0]); qk2(S[0])
    a.nop(16)
    for i in range(8):
        a(f"v_max3_f32 v{vM2}, v{S[0]+2*i}, v{S[0]+2*i+1}, v{vM2}")
    a(f"s_add_u32 s{sSoffK}, s{sSoffK}, {TS}")
    a(f"s_cmp_lt_u32 s{sSoffK}, {KVB}")
    a(f"s_cbranch_scc1 A_slow1")
    set_m(0.0)
    for i in range(16): a(f"v_mov_b32 v{O+i}, 0")
    a(f"s_mov_b32 s{sSoffK}, 0")
    a.label("A_slow2")
    a(f"buffer_load_dwordx4 {vr(K1,4)}, v{vA16}, s[{R_A}:{R_A+3}], s{sSoffK} offen sc1")
    a(f"buffer_load_dwordx2 {vr(K2,2)}, v{bK2}, s[{R_A}:{R_A+3}], s{sSoffK} offen sc1")
    a(f"buffer_load_dwordx4 {vr(V1,4)}, v{bV}, s[{R_A}:{R_A+3}], s{sSoffK} offen sc1")
    a(f"buffer_load_dwordx4 {vr(V2,4)}, v{bV}, s[{R_A}:{R_A+3}], s{sSoffK} offen offset:{VF} sc1")
    a("s_waitcnt vmcnt(0)")
    qk1(S[0], CNR); qk2(S[0])
    a.nop(16)
    for i in range(16): e(S[0], i)
    a.nop(1)
    for k in range(8): p(S[0], k)
    a.nop(2)
    a(f"v_mfma_f32_32x32x16_bf16 {vr(O,16)}, {vr(V1,4)}, {vr(P,4)}, {vr(O,16)}")
    a(f"v_mfma_f32_32x32x16_bf16 {vr(O,16)}, {vr(V2,4)}, {vr(P+4,4)}, {vr(O,16)}")
    a(f"s_add_u32 s{sSoffK}, s{sSoffK}, {TS}")
    a(f"s_cmp_lt_u32 s{sSoffK}, {KVB}")
    a(f"s_cbranch_scc1 A_slow2")
    a.nop(16)
    a(f"s_mov_b32 s{sIt}, 1")
    a(f"s_branch {L_fin}")

def role_B1(a):
    st = Stamps(a, "B")
    st.start()
    if OPT.get("bprio"): a(f"s_setprio {OPT['bprio']}")
    sG, sC = sRB, sCG
    sSoffW, sSoffX, sLdsW, sKH, sXb = 57, 58, 59, 60, 99
    vT = 4; vW = 10; vTr, vX16, vR = 13, 14, 15
    XS = 16; WF = 48; ACC = 76
    SLOT = 24576
    a(f"s_sub_u32 s{sT2}, s2, 256")
    a(f"s_bfe_u32 s{sG}, s{sT2}, 0x20001")
    a(f"s_lshl_b32 s{sG}, s{sG}, 2")
    a(f"s_bfe_u32 s{sT}, s{sT2}, 0x20003")
    a(f"s_add_u32 s{sG}, s{sG}, s{sT}")
    a(f"s_and_b32 s{sC}, s{sT2}, 1")
    a(f"s_lshl_b32 s{sC}, s{sC}, 3")
    a(f"s_lshr_b32 s{sT}, s{sT2}, 5")
    a(f"s_add_u32 s{sC}, s{sC}, s{sT}")
    a(f"s_lshr_b32 s{sKH}, s{sW}, 2")
    a(f"v_lshlrev_b32 v{vX16}, 4, v{vLane}")
    a(f"s_and_b32 s{sT}, s{sW}, 3")
    a(f"s_mul_i32 s{sT}, s{sT}, 192")
    a(f"s_mul_i32 s{sT2}, s{sC}, 192")
    a(f"s_mul_i32 s{sT3}, s{sKH}, {320*3072}")
    a(f"s_add_u32 s{sT2}, s{sT2}, s{sT3}")
    for i in range(3):
        a(f"v_add_u32 v{vT}, s{sT}, v{vLane}")
        if i: a(f"v_add_u32 v{vT}, {64*i}, v{vT}")
        a(f"v_mul_u32_u24 v{vT+1}, 5462, v{vT}")
        a(f"v_lshrrev_b32 v{vT+1}, 16, v{vT+1}")
        a(f"v_mul_u32_u24 v{vT+2}, 12, v{vT+1}")
        a(f"v_sub_u32 v{vT}, v{vT}, v{vT+2}")
        a(f"v_lshlrev_b32 v{vT}, 4, v{vT}")
        a(f"v_mul_u32_u24 v{vT+1}, 3072, v{vT+1}")
        a(f"v_add3_u32 v{vW+i}, v{vT}, v{vT+1}, s{sT2}")
        if i: a(f"v_subrev_u32 v{vW+i}, {1024*i}, v{vW+i}")
    a(f"s_mul_i32 s{sT}, s{sKH}, 12288")
    tr_addr(a, vTr, None, 192, 8, 4, sT, vT)
    a(f"s_mul_i32 s{sLdsW}, s{sW}, 3072")
    srd(a, R_A, S_W1, S_W1+1, 640*1536*2)
    srd(a, R_B, S_B1, S_B1+1, 1536*2)
    a(f"s_mul_hi_u32 s{sT}, s{sC}, {(1<<32)//5 + 1}")
    a(f"s_mul_i32 s{sT}, s{sT}, 5")
    a(f"s_sub_u32 s{sT}, s{sC}, s{sT}")
    a(f"s_mul_i32 s{sSoffW}, s{sT}, {64*3072}")
    a(f"s_lshl_b32 s{sSoffX}, s{sT}, 12")
    a(f"s_and_b32 s{sT}, s{sW}, 3")
    a(f"s_lshl_b32 s{sT2}, s{sG}, 2")
    a(f"s_add_u32 s{sT}, s{sT}, s{sT2}")
    a(f"s_mul_i32 s{sXb}, s{sT}, {40*1024}")
    a(f"s_mul_i32 s{sT2}, s{sKH}, {20*1024}")
    a(f"s_add_u32 s{sXb}, s{sXb}, s{sT2}")
    if WS_XF: a(f"s_add_u32 s{sXb}, s{sXb}, {WS_XF}")
    def issueW(c):
        a(f"s_add_u32 m0, s{sLdsW}, {(c%3)*SLOT}")
        a(f"s_add_u32 s{sT}, s{sSoffW}, {64*3072}")
        for i in range(3):
            a(f"buffer_load_dwordx4 v{vW+i}, s[{R_A}:{R_A+3}], s{sSoffW} offen offset:{1024*i} lds")
        a(f"s_cmp_eq_u32 s{sT}, {320*3072}")
        a(f"s_cselect_b32 s{sSoffW}, 0, s{sT}")
    def issueX(c):
        xs = XS + 16*(c % 2)
        a(f"s_add_u32 s{sT2}, s{sXb}, s{sSoffX}")
        a(f"s_add_u32 s{sT}, s{sSoffX}, 4096")
        for i in range(4):
            a(f"buffer_load_dwordx4 {vr(xs+4*i,4)}, v{vX16}, s[{R_WS}:{R_WS+3}], s{sT2} offen offset:{1024*i} sc1")
        a(f"s_cmp_eq_u32 s{sT}, 20480")
        a(f"s_cselect_b32 s{sSoffX}, 0, s{sT}")
    sJ = 96
    a(f"s_sub_u32 s{sJ}, s2, 256")
    a(f"s_cmp_lg_u32 s{sW}, 0")
    a(f"s_cbranch_scc1 B1_np")
    get_tag(a, vT, "B1")
    a(f"s_lshl_b32 s{sT}, s{sG}, 5")
    poll_flags(a, vT, "B1p", sT, 32, FL_D, tries=OPT.get("wftries", 1), sleep=OPT.get("dsleep", 8))
    a.label("B1_np")
    a("s_barrier")
    srd(a, R_C, S_W2, S_W2+1, 1536*640*2)
    a(f"v_lshrrev_b32 v92, 2, v{vLane}")
    a(f"v_mul_u32_u24 v92, 1280, v92")
    a(f"v_and_b32 v93, 3, v{vLane}")
    a(f"v_lshl_add_u32 v92, v93, 4, v92")
    a(f"s_lshl_b32 s{sT}, s{sW}, 10")
    a(f"s_add_u32 s{sT}, s{sT}, 73728")
    a(f"v_add_u32 v93, s{sT}, v{vX16}")
    tr_addr(a, 94, None, 64, 4, 8, sT, vT)
    tr_addr(a, 95, None, 64, 8, 4, sT, vT)
    sDst = [92, 93]; sStp = [94, 95]
    for rnd in range(2):
        Lskip = f"B1_wf{rnd}_skip"
        a(f"s_mov_b32 s{sStp[rnd]}, -1")
        if rnd == 1:
            a(f"s_cmp_ge_u32 s{sW}, 3")
            a(f"s_cbranch_scc1 {Lskip}")
        a(f"s_and_b32 s{sT}, s{sJ}, 63")
        a(f"s_mul_i32 s{sT}, s{sT}, 11")
        a(f"s_add_u32 s{sT}, s{sT}, s{sW}")
        if rnd: a(f"s_add_u32 s{sT}, s{sT}, 8")
        a(f"s_cmp_ge_u32 s{sT}, 680")
        a(f"s_cbranch_scc1 {Lskip}")
        a(f"s_mul_hi_u32 s{sT2}, s{sT}, {(1<<32)//136 + 1}")
        a(f"s_mul_i32 s{sT3}, s{sT2}, 136")
        a(f"s_sub_u32 s{sT}, s{sT}, s{sT3}")
        a(f"s_mov_b32 s{sStp[rnd]}, s{sT}")
        a(f"s_lshr_b32 s{sT3}, s{sJ}, 6")
        a(f"s_mul_i32 s{sT3}, s{sT3}, 5")
        a(f"s_add_u32 s{sT2}, s{sT2}, s{sT3}")
        a(f"s_mul_i32 s62, s{sT2}, 136")
        a(f"s_add_u32 s62, s62, s{sT}")
        a(f"s_lshl_b32 s62, s62, 10")
        a(f"s_add_u32 s{sDst[rnd]}, s62, {WS_WF}")
        a(f"s_lshl_b32 s{sT2}, s{sT2}, 6")
        a(f"s_cmp_lt_u32 s{sT}, 96")
        a(f"s_cselect_b32 s{R_C}, s{S_W2}, s{S_WO}")
        a(f"s_cselect_b32 s{R_C+1}, s{S_W2+1}, s{S_WO+1}")
        a(f"s_cselect_b32 s63, 0, 96")
        a(f"s_mov_b32 s{R_C+2}, {640*640*2}")
        a(f"s_cbranch_scc0 B1_wf{rnd}_a")
        a(f"s_mov_b32 s{R_C+2}, {1536*640*2}")
        a.label(f"B1_wf{rnd}_a")
        a(f"s_sub_u32 s{sT3}, s{sT}, s63")
        a(f"s_mul_i32 s{sT3}, s{sT3}, {16*1280}")
        a(f"s_add_u32 s{sT3}, s{sT3}, s{sT2}")
        a(f"buffer_load_dwordx4 v[{76+4*rnd}:{79+4*rnd}], v92, s[{R_C}:{R_C+3}], s{sT3} offen")
        a.label(Lskip)
    a("s_waitcnt vmcnt(0)")
    for rnd in range(2):
        Lskip = f"B1_wg{rnd}_skip"
        a(f"s_cmp_eq_u32 s{sStp[rnd]}, -1")
        a(f"s_cbranch_scc1 {Lskip}")
        a(f"ds_write_b128 v93, v[{76+4*rnd}:{79+4*rnd}]")
        a(f"s_cmp_lt_u32 s{sStp[rnd]}, 96")
        a(f"s_cbranch_scc0 B1_wf{rnd}_n")
        a(f"ds_read_b64_tr_b16 v[{84+4*rnd}:{85+4*rnd}], v94")
        a(f"ds_read_b64_tr_b16 v[{86+4*rnd}:{87+4*rnd}], v94 offset:512")
        a(f"s_branch B1_wf{rnd}_s")
        a.label(f"B1_wf{rnd}_n")
        a(f"ds_read_b64_tr_b16 v[{84+4*rnd}:{85+4*rnd}], v95")
        a(f"ds_read_b64_tr_b16 v[{86+4*rnd}:{87+4*rnd}], v95 offset:256")
        a.label(f"B1_wf{rnd}_s")
        a("s_waitcnt lgkmcnt(0)")
        a(f"buffer_store_dwordx4 v[{84+4*rnd}:{87+4*rnd}], v{vX16}, s[{R_WS}:{R_WS+3}], s{sDst[rnd]} offen sc1")
        a.label(Lskip)
    issued = []
    def iW(c): issueW(c); issued.extend([("W", c)]*3)
    if OPT.get("prefill", 0):
        for c in range(3): iW(c)
    a(f"s_cmp_lg_u32 s{sW}, 0")
    a(f"s_cbranch_scc1 B1_np2")
    a(f"s_lshl_b32 s{sT}, s{sG}, 5")
    poll_flags(a, vT, "B1", sT, 32, FL_D, sleep=OPT.get("dsleep", 8))
    if OPT.get("b1kv", 0): poll_flags(a, vT, "B1k", None, 128, FL_KV, sleep=OPT.get("ksleep", 4))
    a.label("B1_np2")
    a("s_barrier")
    a(f"s_cmp_lg_u32 s{sW}, 0")
    a(f"s_cbranch_scc1 B1_ntl")
    tag_to_lds(a, vT)
    a.label("B1_ntl")
    st.mark("wait_d")
    def iX(c): issueX(c); issued.extend([("X", c)]*4)
    if OPT.get("prefill", 0):
        iX(0)
        a("s_barrier")
        iX(1)
    elif OPT.get("b1shallow", 1):
        iW(0); iX(0)
    else:
        iW(0); iX(0)
        a("s_barrier")
        iW(1); iX(1)
        a("s_barrier")
        iW(2)
    def wreads(c, k, buf):
        base = (c % 3)*SLOT + k*16*192
        for ct in range(3):
            a(f"ds_read_b64_tr_b16 v[{WF+12*buf+4*ct}:{WF+12*buf+4*ct+1}], v{vTr} offset:{base + ct*64}")
            a(f"ds_read_b64_tr_b16 v[{WF+12*buf+4*ct+2}:{WF+12*buf+4*ct+3}], v{vTr} offset:{base + ct*64 + 4*192}")
    for c in range(5):
        last = max(i for i, e_ in enumerate(issued) if e_ in (("W", c), ("X", c)))
        a(f"s_waitcnt vmcnt({len(issued) - 1 - last})")
        a("s_barrier")
        if c == 0:
            st.mark("b0")
            a(f"s_cmp_lg_u32 s{sW}, 0")
            a(f"s_cbranch_scc1 B1_nofw")
            set_flag(a, vT, sJ, FL_W)
            a.label("B1_nofw")
        if OPT.get("b1shallow", 1) and not OPT.get("prefill", 0):
            if c + 1 < 5: iW(c + 1); iX(c + 1)
        elif 1 <= c <= 2: iW(c + 2)
        xs = XS + 16*(c % 2)
        wreads(c, 0, 0)
        for k in range(4):
            buf = k % 2
            if k < 3:
                wreads(c, k + 1, 1 - buf)
                a("s_waitcnt lgkmcnt(6)")
            else:
                a("s_waitcnt lgkmcnt(0)")
            for ct in range(3):
                cin = "0" if (c == 0 and k == 0) else vr(ACC+16*ct,16)
                a(f"v_mfma_f32_32x32x16_bf16 {vr(ACC+16*ct,16)}, {vr(WF+12*buf+4*ct,4)}, {vr(xs+4*k,4)}, {cin}")
        if c + 2 < 5 and (OPT.get("prefill", 0) or not OPT.get("b1shallow", 1)): iX(c + 2)
    st.mark("kloop")
    a("s_setprio 3")
    a(f"s_and_b32 s{sT}, s{sW}, 3")
    a(f"s_lshl_b32 s{sT2}, s{sG}, 2")
    a(f"s_add_u32 s{sT}, s{sT}, s{sT2}")
    a(f"s_lshl_b32 s{sT2}, s{sT}, 7")
    a(f"s_add_u32 s{sT2}, s{sT2}, {WS_R}")
    a(f"v_lshlrev_b32 v{vT}, 2, v{vN}")
    a(f"buffer_load_dword v{vR}, v{vT}, s[{R_WS}:{R_WS+3}], s{sT2} offen sc1")
    tag_from_lds(a, 72)
    a(f"s_mul_i32 s{sT2}, s{sC}, 192")
    a(f"s_lshl_b32 s{sT3}, s{sKH}, 5")
    a(f"s_add_u32 s{sT2}, s{sT2}, s{sT3}")
    a(f"v_lshlrev_b32 v{vT}, 3, v{vH}")
    B = XS
    for ct in range(3):
        for q in range(2):
            a(f"buffer_load_dwordx2 v[{B+4*ct+2*q}:{B+4*ct+2*q+1}], v{vT}, s[{R_B}:{R_B+3}], s{sT2} offen offset:{64*ct+16*q}")
    a(f"s_mul_i32 s{sT}, s{sT}, 96")
    a(f"s_mul_i32 s{sT2}, s{sC}, 6")
    a(f"s_add_u32 s{sT}, s{sT}, s{sT2}")
    a(f"s_add_u32 s{sT}, s{sT}, s{sKH}")
    a(f"s_lshl_b32 s{sXb}, s{sT}, 10")
    a(f"s_add_u32 s{sXb}, s{sXb}, {WS_H}")
    a("s_barrier")
    a.nop(4)
    T = XS + 16
    a(f"s_mul_i32 s{sT}, s{sW}, 6144")
    a(f"v_add_u32 v{vT+1}, s{sT}, v{vX16}")
    a(f"s_xor_b32 s{sT}, s{sW}, 4")
    a(f"s_mul_i32 s{sT}, s{sT}, 6144")
    a(f"v_add_u32 v{vT+2}, s{sT}, v{vX16}")
    a(f"s_cmp_eq_u32 s{sKH}, 1")
    a(f"s_cbranch_scc1 B1_x1")
    for ct in range(3):
        for q in range(2):
            a(f"ds_write_b128 v{vT+1}, {vr(ACC+16*ct+8+4*q,4)} offset:{(2*ct+q)*1024}")
    a(f"s_branch B1_x2")
    a.label("B1_x1")
    for ct in range(3):
        for q in range(2):
            a(f"ds_write_b128 v{vT+1}, {vr(ACC+16*ct+4*q,4)} offset:{(2*ct+q)*1024}")
    a.label("B1_x2")
    a("s_waitcnt lgkmcnt(0)")
    a("s_barrier")
    for i in range(6):
        a(f"ds_read_b128 {vr(T+4*i,4)}, v{vT+2} offset:{i*1024}")
    a("s_waitcnt lgkmcnt(0) vmcnt(0)")
    a(f"v_readfirstlane_b32 s{sTag}, v73")
    a(f"s_cmp_eq_u32 s{sKH}, 1")
    a(f"s_cbranch_scc1 B1_y1")
    for ct in range(3):
        for j in range(8): a(f"v_add_f32 v{T+8*ct+j}, v{T+8*ct+j}, v{ACC+16*ct+j}")
    a(f"s_branch B1_y2")
    a.label("B1_y1")
    for ct in range(3):
        for j in range(8): a(f"v_add_f32 v{T+8*ct+j}, v{T+8*ct+j}, v{ACC+16*ct+8+j}")
    a.label("B1_y2")
    TB = 56
    for ct in range(3):
        for q in range(2):
            b0 = B+4*ct+2*q
            acc = T+8*ct+4*q
            a(f"v_lshlrev_b32 v{TB}, 16, v{b0}")
            a(f"v_and_b32 v{TB+1}, 0xffff0000, v{b0}")
            a(f"v_lshlrev_b32 v{TB+2}, 16, v{b0+1}")
            a(f"v_and_b32 v{TB+3}, 0xffff0000, v{b0+1}")
            for j in range(4): a(f"v_fma_f32 v{acc+j}, v{acc+j}, v{vR}, v{TB+j}")
            for j in range(4): a(f"v_max_f32 v{acc+j}, 0, v{acc+j}")
            for j in range(4): a(f"v_mul_f32 v{acc+j}, v{acc+j}, v{acc+j}")
        for k in range(4):
            a(f"v_cvt_pk_bf16_f32 v{60+4*ct+k}, v{T+8*ct+2*k}, v{T+8*ct+2*k+1}")
    a(f"v_add_u32 v{vT}, 4096, v{vX16}")
    a(f"buffer_store_dwordx4 {vr(60,4)}, v{vX16}, s[{R_WS}:{R_WS+3}], s{sXb} offen sc1")
    a(f"buffer_store_dwordx4 {vr(64,4)}, v{vX16}, s[{R_WS}:{R_WS+3}], s{sXb} offen offset:2048 sc1")
    a(f"buffer_store_dwordx4 {vr(68,4)}, v{vT}, s[{R_WS}:{R_WS+3}], s{sXb} offen sc1")
    a(f"s_cmp_lg_u32 s{sW}, 6")
    a(f"s_cbranch_scc1 B1_nfw")
    a(f"s_sub_u32 s{sT}, s2, 256")
    a(f"s_and_b32 s{sT2}, s{sT}, 1")
    a(f"s_lshl_b32 s{sT2}, s{sT2}, 1")
    a(f"s_lshr_b32 s{sT}, s{sT}, 7")
    a(f"s_add_u32 s{sT}, s{sT}, s{sT2}")
    a(f"s_lshl_b32 s{sT}, s{sT}, 6")
    poll_flags(a, vT, "B2w", sT, 64, FL_W)
    a.label("B1_nfw")
    a("s_waitcnt vmcnt(0)")
    a("s_barrier")
    L_nf = "B1_nf"
    a(f"s_cmp_lg_u32 s{sW}, 0")
    a(f"s_cbranch_scc1 {L_nf}")
    a(f"s_lshl_b32 s{sT}, s{sG}, 4")
    a(f"s_add_u32 s{sT}, s{sT}, s{sC}")
    set_flag(a, vT, sT, FL_H)
    a.label(L_nf)
    st.mark("epi")
    a("s_setprio 0")
    return st

def role_B2(a, st):
    sSoffW, sSoffX, sWb, sIt, sRho, sWrapW, sRst = 57, 58, 59, 60, 61, 98, 99
    vT = 4
    vX16, vXa = 14, 15
    ACC = 16
    XR = 48
    WB = 64
    vOut = vT+3
    NXS = 8
    a(f"s_sub_u32 s{sT2}, s2, 256")
    a(f"s_bfe_u32 s{sRB}, s{sT2}, 0x20001")
    a(f"s_lshl_b32 s{sRB}, s{sRB}, 4")
    a(f"s_bfe_u32 s{sT}, s{sT2}, 0x40003")
    a(f"s_add_u32 s{sRB}, s{sRB}, s{sT}")
    a(f"s_and_b32 s{sCG}, s{sT2}, 1")
    a(f"s_lshl_b32 s{sCG}, s{sCG}, 1")
    a(f"s_lshr_b32 s{sT}, s{sT2}, 7")
    a(f"s_add_u32 s{sCG}, s{sCG}, s{sT}")
    a(f"v_lshlrev_b32 v{vX16}, 4, v{vLane}")
    a(f"s_and_b32 s{sRho}, s{sRB}, 7")
    a(f"s_min_u32 s{sT3}, s{sW}, 4")
    a(f"s_mul_i32 s{sT}, s{sCG}, 5")
    a(f"s_add_u32 s{sT}, s{sT}, s{sT3}")
    a(f"s_mul_i32 s{sWb}, s{sT}, {136*1024}")
    a(f"s_add_u32 s{sWb}, s{sWb}, {WS_WF}")
    a(f"s_lshl_b32 s{sT}, s{sT}, 6")
    srd(a, R_C, S_X, S_X+1, NX)
    a(f"s_lshl_b32 s{sT2}, s{sRB}, 5")
    a(f"v_add_u32 v{vT}, s{sT2}, v{vN}")
    a(f"v_mul_u32_u24 v{vT}, 1280, v{vT}")
    a(f"v_lshl_add_u32 v{vT}, v{vH}, 3, v{vT}")
    a(f"v_add_u32 v{vOut}, s{sT}, v{vT}")
    for q in range(4):
        a(f"buffer_load_dwordx2 v[{XR+2*q}:{XR+2*q+1}], v{vOut}, s[{R_C}:{R_C+3}], 0 offen offset:{16*q}")
    srd(a, R_C, S_B2, S_B2+1, 640*2)
    a(f"v_lshlrev_b32 v{vT}, 3, v{vH}")
    for q in range(4):
        a(f"buffer_load_dwordx2 v[{XR+8+2*q}:{XR+8+2*q+1}], v{vT}, s[{R_C}:{R_C+3}], s{sT} offen offset:{16*q}")
    for i in range(16): a(f"v_mov_b32 v{ACC+i}, 0")
    def unpack_add(q, dst):
        for (src, t) in ((XR+2*q, 32), (XR+8+2*q, 36)):
            a(f"v_lshlrev_b32 v{t}, 16, v{src}")
            a(f"v_and_b32 v{t+1}, 0xffff0000, v{src}")
            a(f"v_lshlrev_b32 v{t+2}, 16, v{src+1}")
            a(f"v_and_b32 v{t+3}, 0xffff0000, v{src+1}")
        for j in range(4): a(f"v_add_f32 v{32+j}, v{32+j}, v{36+j}")
        for j in range(4): a(f"v_add_f32 v{dst+j}, v{dst+j}, v{32+j}")
    L_side = "B2_side"
    a(f"s_cmp_ge_u32 s{sW}, 4")
    a(f"s_cbranch_scc1 {L_side}")
    a(f"s_lshl_b32 s{sSoffW}, s{sRho}, 13")
    a(f"s_mov_b32 s{sWrapW}, {96*1024}")
    a(f"s_mov_b32 s{sRst}, 0")
    def wload(r):
        a(f"s_add_u32 s{sT2}, s{sWb}, s{sSoffW}")
        a(f"s_add_u32 s{sT}, s{sSoffW}, 1024")
        a(f"buffer_load_dwordx4 {vr(r,4)}, v{vX16}, s[{R_WS}:{R_WS+3}], s{sT2} offen sc1")
        a(f"s_cmp_eq_u32 s{sT}, s{sWrapW}")
        a(f"s_cselect_b32 s{sSoffW}, s{sRst}, s{sT}")
    for k in range(16): wload(WB + 4*k)
    st.mark("setup")
    a("s_barrier")
    a(f"s_mov_b32 s{sIt}, 0")
    L1 = "B2_p1"
    a.label(L1)
    XBUF = 32
    for j in range(16):
        k = j % 8
        if k == 0:
            a("s_barrier")
            a(f"s_lshl_b32 s{sT}, s{sIt}, 1")
            if j: a(f"s_add_u32 s{sT}, s{sT}, 1")
            a(f"s_and_b32 s{sT}, s{sT}, {NXS-1}")
            a(f"s_lshl_b32 s{sT}, s{sT}, 13")
            a(f"v_add_u32 v{vXa}, s{sT}, v{vX16}")
            for i in range(3):
                a(f"ds_read_b128 {vr(XBUF+4*i,4)}, v{vXa} offset:{i*1024}")
        if j == 0:
            L1n = "B2_p1n"
            a(f"s_cmp_lg_u32 s{sIt}, 5")
            a(f"s_cbranch_scc1 {L1n}")
            a(f"s_mul_i32 s{sSoffW}, s{sRho}, {5*1024}")
            a(f"s_add_u32 s{sSoffW}, s{sSoffW}, {96*1024}")
            a(f"s_mov_b32 s{sWrapW}, {136*1024}")
            a(f"s_mov_b32 s{sRst}, {96*1024}")
            a.label(L1n)
        if k + 3 < 8:
            a(f"ds_read_b128 {vr(XBUF+4*((k+3)%4),4)}, v{vXa} offset:{(k+3)*1024}")
            a("s_waitcnt vmcnt(15) lgkmcnt(3)")
        else:
            a(f"s_waitcnt vmcnt(15) lgkmcnt({7-k})")
        a(f"v_mfma_f32_32x32x16_bf16 {vr(ACC,16)}, {vr(WB+4*j,4)}, {vr(XBUF+4*(k%4),4)}, {vr(ACC,16)}")
        wload(WB + 4*j)
    a(f"s_add_u32 s{sIt}, s{sIt}, 1")
    a(f"s_cmp_lt_u32 s{sIt}, 6")
    a(f"s_cbranch_scc1 {L1}")
    st.mark("ffn2")
    a.nop(12)
    for q in range(4): unpack_add(q, ACC+4*q)
    XBUF = XR
    NBLK = 20
    def blk(s_):
        b = s_ % NBLK
        return (WB + 4*b) if b < 16 else (32 + 4*(b-16))
    for s_ in range(16, 20): wload(blk(s_))
    a("s_barrier")
    a(f"s_branch B2_oload")
    a.label(L_side)
    a(f"s_sub_u32 s{sT3}, s{sW}, 4")
    a("s_waitcnt vmcnt(0)")
    for jj in range(1, 4):
        Ls = a.newlabel("B2_q")
        a(f"s_cmp_lg_u32 s{sT3}, {jj}")
        a(f"s_cbranch_scc1 {Ls}")
        a(f"v_mov_b32 v{XR}, v{XR+2*jj}")
        a(f"v_mov_b32 v{XR+1}, v{XR+2*jj+1}")
        a(f"v_mov_b32 v{XR+8}, v{XR+8+2*jj}")
        a(f"v_mov_b32 v{XR+9}, v{XR+8+2*jj+1}")
        a.label(Ls)
    for j in range(4): a(f"v_mov_b32 v{40+j}, 0")
    unpack_add(0, 40)
    a(f"s_lshl_b32 s{sRst}, s{sT3}, 11")
    a(f"s_lshl_b32 s{sSoffW}, s{sRho}, 13")
    a(f"s_add_u32 s{sSoffW}, s{sSoffW}, s{sRst}")
    a(f"s_add_u32 s{sWrapW}, s{sRst}, {96*1024}")
    SD = 4
    def wpair(slot):
        a(f"s_add_u32 s{sT2}, s{sWb}, s{sSoffW}")
        a(f"s_add_u32 s{sT}, s{sSoffW}, 8192")
        a(f"buffer_load_dwordx4 {vr(WB+8*slot,4)}, v{vX16}, s[{R_WS}:{R_WS+3}], s{sT2} offen sc1")
        a(f"buffer_load_dwordx4 {vr(WB+8*slot+4,4)}, v{vX16}, s[{R_WS}:{R_WS+3}], s{sT2} offen offset:1024 sc1")
        a(f"s_cmp_eq_u32 s{sT}, s{sWrapW}")
        a(f"s_cselect_b32 s{sSoffW}, s{sRst}, s{sT}")
    for c in range(SD): wpair(c)
    a(f"s_cmp_lg_u32 s{sW}, 7")
    a(f"s_cbranch_scc1 B2_nph")
    a(f"s_lshr_b32 s{sT}, s{sRB}, 2")
    a(f"s_lshl_b32 s{sT}, s{sT}, 4")
    poll_flags(a, vT, "B2h", sT, 16, FL_H, sleep=2)
    a.label("B2_nph")
    a("s_barrier")
    a(f"s_sub_u32 s{sT3}, s{sW}, 4")
    a(f"s_mul_i32 s{sT}, s{sRB}, {96*1024}")
    a(f"s_add_u32 s63, s{sT}, {WS_H}")
    a(f"s_lshl_b32 s97, s{sT3}, 11")
    a(f"s_add_u32 s63, s63, s97")
    a(f"s_lshl_b32 s{sSoffX}, s{sRho}, 13")
    a(f"v_add_u32 v{vT+5}, s97, v{vX16}")
    vXs = vT+5
    vm = Cnt(a, "vmcnt", 63)
    def xdma(c):
        a(f"s_add_u32 m0, s97, {(c % NXS)*8192}")
        a(f"s_add_u32 s{sT2}, s63, s{sSoffX}")
        a(f"s_add_u32 s{sT}, s{sSoffX}, 8192")
        for i in range(2):
            a(f"buffer_load_dwordx4 v{vX16}, s[{R_WS}:{R_WS+3}], s{sT2} offen offset:{1024*i} sc1 lds")
        a(f"s_cmp_eq_u32 s{sT}, {96*1024}")
        a(f"s_cselect_b32 s{sSoffX}, 0, s{sT}")
        vm.issue(("X", c), 2)
    for c in range(SD): vm.issue(("W", c), 2)
    XD = 6
    for c in range(XD): xdma(c)
    for c in range(12):
        vm.need(("X", c), ("W", c))
        a("s_barrier")
        if c + XD < 12: xdma(c + XD)
        for i in range(2):
            a(f"ds_read_b128 {vr(48+4*i,4)}, v{vXs} offset:{(c % NXS)*8192 + 1024*i}")
        a("s_waitcnt lgkmcnt(1)")
        a(f"v_mfma_f32_32x32x16_bf16 {vr(ACC,16)}, {vr(WB+8*(c%4),4)}, {vr(48,4)}, {vr(ACC,16)}")
        a("s_waitcnt lgkmcnt(0)")
        a(f"v_mfma_f32_32x32x16_bf16 {vr(ACC,16)}, {vr(WB+8*(c%4)+4,4)}, {vr(52,4)}, {vr(ACC,16)}")
        if c + SD < 12: wpair(c % 4); vm.issue(("W", c + SD), 2)
    a(f"s_sub_u32 s{sT3}, s{sW}, 4")
    a(f"s_lshl_b32 s{sT3}, s{sT3}, 1")
    a(f"s_mul_i32 s62, s{sRho}, 5")
    a(f"s_add_u32 s62, s62, s{sT3}")
    for m in range(5):
        for i in range(2):
            a(f"s_add_u32 s{sT}, s62, {8*m+i}")
            a(f"s_cmp_ge_u32 s{sT}, 40")
            a(f"s_cselect_b32 s{sT2}, 40, 0")
            a(f"s_sub_u32 s{sT}, s{sT}, s{sT2}")
            a(f"s_add_u32 s{sT}, s{sT}, 96")
            a(f"s_lshl_b32 s{sT}, s{sT}, 10")
            a(f"s_add_u32 s{sT}, s{sT}, s{sWb}")
            a(f"buffer_load_dwordx4 {vr(WB+4*(2*m+i),4)}, v{vX16}, s[{R_WS}:{R_WS+3}], s{sT} offen sc1")
    Lnp2 = "B2_np2"
    a(f"s_cmp_lg_u32 s{sW}, 7")
    a(f"s_cbranch_scc1 {Lnp2}")
    a(f"s_lshl_b32 s{sT}, s{sRB}, 5")
    poll_flags(a, vT, "B2o", sT, 32, FL_O, sleep=OPT.get("osleep", 2))
    a.label(Lnp2)
    st.mark("wait_o")
    a("s_barrier")
    a.label("B2_oload")
    a(f"s_mul_i32 s63, s{sRB}, {40*1024}")
    a(f"s_add_u32 s63, s63, {WS_OF}")
    a(f"s_mul_i32 s62, s{sRho}, 5")
    for i in range(5):
        a(f"s_mul_i32 s{sT}, s{sW}, 5")
        a(f"s_add_u32 s{sT}, s{sT}, {i}")
        a(f"s_add_u32 s{sT2}, s{sT}, s62")
        a(f"s_cmp_ge_u32 s{sT2}, 40")
        a(f"s_cselect_b32 s{sIt}, 40, 0")
        a(f"s_sub_u32 s{sT2}, s{sT2}, s{sIt}")
        a(f"s_lshl_b32 s{sT2}, s{sT2}, 10")
        a(f"s_add_u32 s{sT2}, s{sT2}, s63")
        a(f"s_lshl_b32 m0, s{sT}, 10")
        a("s_nop 0")
        a(f"buffer_load_dwordx4 v{vX16}, s[{R_WS}:{R_WS+3}], s{sT2} offen sc1 lds")
    a("s_waitcnt vmcnt(0)")
    a("s_barrier")
    st.mark("oload")
    a(f"s_cmp_ge_u32 s{sW}, 4")
    a(f"s_cbranch_scc1 B2_side2")
    vm = Cnt(a, "vmcnt", 63); lg = Cnt(a, "lgkmcnt", 15)
    def xread(s_):
        r = XBUF + 4*(s_ % 4)
        a(f"ds_read_b128 {vr(r,4)}, v{vX16} offset:{s_*1024}")
        lg.issue(("X", s_))
    for s_ in range(3): xread(s_)
    for s_ in range(40):
        if s_ + 3 < 40: xread(s_ + 3)
        vm.need(("W", s_))
        lg.need(("X", s_))
        a(f"v_mfma_f32_32x32x16_bf16 {vr(ACC,16)}, {vr(blk(s_),4)}, {vr(XBUF+4*(s_%4),4)}, {vr(ACC,16)}")
        if s_ + NBLK < 40:
            wload(blk(s_)); vm.issue(("W", s_ + NBLK))
    st.mark("wo")
    a("s_setprio 3")
    a("s_barrier")
    a.nop(10)
    srd(a, R_C, S_OUT, S_OUT+1, NX)
    for q in range(4):
        a(f"v_cvt_pk_bf16_f32 v{32+2*q}, v{ACC+4*q}, v{ACC+4*q+1}")
        a(f"v_cvt_pk_bf16_f32 v{33+2*q}, v{ACC+4*q+2}, v{ACC+4*q+3}")
        a(f"buffer_store_dwordx2 v[{32+2*q}:{33+2*q}], v{vOut}, s[{R_C}:{R_C+3}], 0 offen offset:{16*q}")
    a("s_barrier")
    st.end()
    a("s_endpgm")
    a.label("B2_side2")
    for k in range(4):
        a(f"ds_read_b128 {vr(48+4*k,4)}, v{vXs} offset:{(8*(k//2)+(k%2))*1024}")
    for k in range(10):
        a(f"s_waitcnt lgkmcnt({min(3, 9-k)})")
        a(f"v_mfma_f32_32x32x16_bf16 {vr(ACC,16)}, {vr(WB+4*k,4)}, {vr(48+4*(k%4),4)}, {vr(ACC,16)}")
        if k + 4 < 10:
            a(f"ds_read_b128 {vr(48+4*(k%4),4)}, v{vXs} offset:{(8*((k+4)//2)+((k+4)%2))*1024}")
    a("s_setprio 3")
    a("s_barrier")
    a.nop(12)
    a(f"s_sub_u32 s{sT3}, s{sW}, 4")
    a(f"s_lshl_b32 s{sT}, s{sT3}, 12")
    a(f"v_add_u32 v{vT}, s{sT}, v{vX16}")
    for q in range(4):
        a(f"ds_write_b128 v{vT}, {vr(ACC+4*q,4)} offset:{q*1024}")
    a("s_waitcnt lgkmcnt(0)")
    a("s_barrier")
    a(f"s_lshl_b32 s{sT}, s{sT3}, 10")
    a(f"v_add_u32 v{vT}, s{sT}, v{vX16}")
    for jj in range(4):
        a(f"ds_read_b128 {vr(ACC+4*jj,4)}, v{vT} offset:{jj*4096}")
    a(f"s_lshl_b32 s{sT}, s{sT3}, 4")
    a(f"v_add_u32 v{vOut}, s{sT}, v{vOut}")
    srd(a, R_C, S_OUT, S_OUT+1, NX)
    a("s_waitcnt lgkmcnt(0)")
    for j in range(4):
        a(f"v_add_f32 v{ACC+j}, v{ACC+j}, v{ACC+4+j}")
        a(f"v_add_f32 v{ACC+8+j}, v{ACC+8+j}, v{ACC+12+j}")
    for j in range(4): a(f"v_add_f32 v{ACC+j}, v{ACC+j}, v{40+j}")
    for j in range(4): a(f"v_add_f32 v{ACC+j}, v{ACC+j}, v{ACC+8+j}")
    a(f"v_cvt_pk_bf16_f32 v32, v{ACC}, v{ACC+1}")
    a(f"v_cvt_pk_bf16_f32 v33, v{ACC+2}, v{ACC+3}")
    a(f"buffer_store_dwordx2 v[32:33], v{vOut}, s[{R_WS if False else R_C}:{R_C+3}], 0 offen")
    st.end()
    a("s_endpgm")

HEADER = """; out = x + MQA-attention(LN(x)) @ wo + FFN_relu2(LN(x))  -- one launch, two workgroup roles (8 waves each, 2 workgroups per CU).
"""

def gen():
    a = Asm()
    a("s_cmp_ge_u32 s2, 512")
    a("s_cbranch_scc1 K_end")
    a("s_load_dwordx16 s[4:19], s[0:1], 0")
    a("s_load_dwordx8 s[20:27], s[0:1], 64")
    a("s_load_dwordx2 s[28:29], s[0:1], 96")
    a(f"v_and_b32 v{vLane}, 63, v0")
    a(f"v_lshrrev_b32 v4, 6, v0")
    a(f"v_lshrrev_b32 v{vH}, 5, v{vLane}")
    a(f"v_readfirstlane_b32 s{sW}, v4")
    a(f"v_and_b32 v{vN}, 31, v{vLane}")
    a("s_waitcnt lgkmcnt(0)")
    srd(a, R_WS, S_WS, S_WS+1, WS_END)
    srd(a, R_FL, S_WS, S_WS+1, FL_SIZE, WS_FL)
    for r in (R_A, R_B, R_C): srd(a, r, S_WS, S_WS+1, WS_END)
    for i in range(4, 16): a(f"v_mov_b32 v{i}, 0")
    a("s_cmp_ge_u32 s2, 256")
    a("s_cbranch_scc1 ROLE_B")
    role_A(a)
    a.label("ROLE_B")
    n0 = len(a.lines)
    st = role_B1(a)
    role_B2(a, st)
    if OPT.get("mprio"):
        out = a.lines[:n0]; L = a.lines[n0:]; i = 0; cur = 0
        while i < len(L):
            if "s_setprio" in L[i]: cur = int(L[i].split()[-1])
            if "v_mfma" in L[i] and cur == 0:
                j = i
                while j < len(L) and "v_mfma" in L[j]: j += 1
                out.append(f"  s_setprio {OPT['mprio']}"); out += L[i:j]; out.append("  s_setprio 0"); i = j
            else:
                out.append(L[i]); i += 1
        a.lines = out
    a.label("K_end")
    a("s_endpgm")
    grid = OPT.get("grid", 512)
    s = f"; @launch grid=({grid},1,1) block=(512,1,1) lds={LDS_BYTES}\n" + HEADER
    s += '.amdgcn_target "amdgcn-amd-amdhsa--gfx950"\n.text\n'
    s += kernel_header(KN) + a.text()
    s += '.section .rodata,"a"\n.p2align 6\n' + kernel_desc(KN, 128, 102)
    return s

if __name__ == "__main__":
    if "--prof" in sys.argv: PROF = True
    for x in sys.argv:
        if x.startswith("-D"):
            k, _, v = x[2:].partition("="); OPT[k] = int(v) if v else 1
    open(sys.argv[1], "w").write(gen())
    if PROF: json.dump(STAMP_NAMES, open("stamps9.json", "w"))
```

```python
import sys, math, json
from asmlib import *

NAME = "parallel_sum__grouped_kv_mqa__dense_activation_squared_relu__prompt"
KN = NAME + "_kernel"
WS_XF = 0x0
WS_R  = 0x280000
WS_KV = 0x290000
WS_OF = 0x2D0000
WS_H  = 0x550000
WS_FL = 0xB50000
WS_WF = 0xBC0000
WS_END = 0xE70000
WS_DBG = 0x2000000
FL_KV, FL_D, FL_H, FL_W, FL_O = 0, 128, 640, 896, 1152
FL_N = 3200
FL_SIZE = FL_N * 128
NX = 2048 * 640 * 2
TS = 2688
VF = 704; VH = 352
KVB = 64 * TS
CH = 8 * TS
QSCALE = (20 ** -0.5) * math.log2(math.e)
DELTA = 96.0
LDS_BYTES = 81920
PROF = False
OPT = {}
SPIN_MAX = 200063

S_X, S_WQ, S_WK, S_WV, S_WO, S_W1, S_B1, S_W2, S_B2, S_OUT, S_DBG, S_WS = 4, 6, 8, 10, 12, 16, 18, 20, 22, 24, 26, 28
sW = 30
sTag = 31
R_WS = 32
R_FL = 36
R_A = 40
R_B = 44
R_C = 48
sRB, sCG, sT, sT2, sT3 = 52, 53, 54, 55, 56
vLane, vH, vN = 1, 2, 3

def diag(a, word, neg=False, va=74):
    if not OPT.get("diag") or neg: return
    L = a.newlabel("dgx")
    a(f"s_and_b32 s86, s2, 255")
    a(f"s_cmp_lg_u32 s86, {OPT.get('diagwg', 37)}")
    a(f"s_cbranch_scc1 {L}")
    a("s_memrealtime s[84:85]")
    a("s_waitcnt lgkmcnt(0)")
    a("s_mov_b64 s[86:87], exec")
    a("s_mov_b64 exec, 1")
    a(f"v_mov_b32 v{va}, s84")
    a(f"v_mov_b32 v{va+1}, {4*word}")
    a(f"global_store_dword v{va+1}, v{va}, s[{S_DBG}:{S_DBG+1}]")
    a("s_mov_b64 exec, s[86:87]")
    a.label(L)

class Stamps:
    def __init__(self, a, role): self.a = a; self.n = 1; self.names = []; self.role = role
    def start(self):
        if not PROF: return
        for i in range(68, 94): self.a(f"s_mov_b32 s{i}, 0")
        self.a("s_memrealtime s[64:65]"); self.a("s_memtime s[66:67]"); self.a("s_waitcnt lgkmcnt(0)"); self.n = 2
    def mark(self, name):
        if not PROF: return
        assert self.n < 15
        self.a(f"s_memtime s[{64+2*self.n}:{65+2*self.n}]"); self.a("s_waitcnt lgkmcnt(0)")
        self.n += 1; self.names.append(name)
    def end(self):
        if not PROF: return
        a = self.a
        a("s_waitcnt vmcnt(0)")
        self.mark("final-drain")
        a("s_memrealtime s[94:95]"); a("s_waitcnt lgkmcnt(0)")
        a("s_mov_b64 exec, 1")
        a(f"s_lshl_b32 s98, s2, 3")
        a(f"s_add_u32 s98, s98, s{sW}")
        a(f"s_lshl_b32 s98, s98, 6")
        a(f"s_add_u32 s98, s98, {WS_DBG}")
        a(f"s_add_u32 s96, s{S_WS}, s98")
        a(f"s_addc_u32 s97, s{S_WS+1}, 0")
        a(f"v_mov_b32 v0, 0")
        for i in list(range(14)) + [15]:
            a(f"v_mov_b32 v1, s{64+2*i}")
            a(f"global_store_dword v0, v1, s[96:97] offset:{4*i}")
        a(f"v_mov_b32 v1, {self.n}")
        a(f"global_store_dword v0, v1, s[96:97] offset:56")
        a("s_waitcnt vmcnt(0)")
        STAMP_NAMES[self.role] = self.names
STAMP_NAMES = {}

def bf16_round(a, dst, src):
    a(f"v_cvt_pk_bf16_f32 v{dst}, v{src}, v{src}")
    a(f"v_lshlrev_b32 v{dst}, 16, v{dst}")

def decode_rb_cg(a, j):
    a(f"s_lshr_b32 s{sCG}, s{j}, 6")
    a(f"s_and_b32 s{sRB}, s{j}, 7")
    a(f"s_lshl_b32 s{sRB}, s{sRB}, 3")
    a(f"s_bfe_u32 s{sT}, s{j}, 0x30003")
    a(f"s_add_u32 s{sRB}, s{sRB}, s{sT}")

TAG_AGE = 2000
TAGL = 81904
def get_tag(a, vt, lab, have=False):
    L = f"{lab}_tag"
    a(f"s_mov_b32 s{sT3}, {SPIN_MAX}")
    a(f"v_mov_b32 v{vt}, 0")
    if have:
        a(f"s_cmp_lg_u32 s{sTag}, 0")
        a(f"s_cbranch_scc1 {L}_val")
    a.label(L)
    a(f"global_load_dword v{vt+1}, v{vt}, s[{S_DBG}:{S_DBG+1}] sc1")
    a("s_waitcnt vmcnt(0)")
    a(f"v_readfirstlane_b32 s{sTag}, v{vt+1}")
    a(f"s_sub_u32 s{sT3}, s{sT3}, 1")
    a(f"s_cmp_eq_u32 s{sT3}, 0")
    a(f"s_cbranch_scc1 {L}_done")
    a(f"s_cmp_eq_u32 s{sTag}, 0")
    a(f"s_cbranch_scc0 {L}_val")
    a(f"s_and_b32 s62, s{sT3}, 31")
    a(f"s_cmp_eq_u32 s62, 0")
    a(f"s_cbranch_scc1 {L}_atom")
    a("s_sleep 1")
    a(f"s_branch {L}")
    a.label(f"{L}_val")
    a("s_memrealtime s[62:63]")
    a("s_waitcnt lgkmcnt(0)")
    a(f"s_sub_u32 s62, s62, s{sTag}")
    a(f"s_cmp_lt_u32 s62, {TAG_AGE}")
    a(f"s_cbranch_scc1 {L}_done")
    a.label(f"{L}_atom")
    a("s_mov_b64 s[62:63], exec")
    a("s_mov_b64 exec, 1")
    a(f"v_mov_b32 v{vt+1}, 0")
    a(f"global_atomic_add v{vt+1}, v{vt}, v{vt+1}, s[{S_DBG}:{S_DBG+1}] sc0 sc1")
    a("s_mov_b64 exec, s[62:63]")
    a("s_waitcnt vmcnt(0)")
    a(f"v_readfirstlane_b32 s{sTag}, v{vt+1}")
    a(f"s_cmp_eq_u32 s{sTag}, 0")
    a(f"s_cbranch_scc0 {L}_done")
    a(f"s_sub_u32 s{sT3}, s{sT3}, 1")
    a(f"s_cmp_eq_u32 s{sT3}, 0")
    a(f"s_cbranch_scc1 {L}_done")
    a("s_sleep 1")
    a(f"s_branch {L}")
    a.label(f"{L}_done")

def tag_to_lds(a, vt):
    a(f"v_mov_b32 v{vt}, {TAGL}")
    a(f"v_mov_b32 v{vt+1}, s{sTag}")
    a(f"ds_write_b32 v{vt}, v{vt+1}")

def tag_from_lds(a, vt):
    a(f"v_mov_b32 v{vt}, {TAGL}")
    a(f"ds_read_b32 v{vt+1}, v{vt}")

def poll_flags(a, vt, lab, s_idx, nflags, region, tries=None, sleep=None):
    if nflags == 128:
        poll_flags(a, vt, lab + "a", None, 64, region, tries, sleep)
        poll_flags(a, vt, lab + "b", None, 64, region + 64, tries, sleep)
        return
    L = f"{lab}_poll"
    a(f"v_lshlrev_b32 v{vt}, 7, v{vLane}")
    if s_idx is None:
        a(f"s_mov_b32 s63, {region*128}")
    else:
        a(f"s_lshl_b32 s63, s{s_idx}, 7")
        if region: a(f"s_add_u32 s63, s63, {region*128}")
    a(f"s_mov_b32 s{sT3}, {tries or SPIN_MAX}")
    a("s_mov_b64 s[100:101], exec")
    if nflags < 64:
        a(f"s_mov_b32 exec_lo, {(1 << min(nflags, 32)) - 1 if nflags < 32 else -1}")
        a(f"s_mov_b32 exec_hi, {((1 << (nflags - 32)) - 1) if nflags > 32 else 0}")
    a.label(L)
    a(f"s_and_b32 s62, s{sT3}, 63")
    a(f"s_cmp_eq_u32 s62, 0")
    a(f"s_cbranch_scc1 {L}_atom")
    a(f"buffer_load_dword v{vt+1}, v{vt}, s[{R_FL}:{R_FL+3}], s63 offen sc1")
    a(f"s_branch {L}_got")
    a.label(f"{L}_atom")
    a(f"v_mov_b32 v{vt+1}, 0")
    a(f"buffer_atomic_add v{vt+1}, v{vt}, s[{R_FL}:{R_FL+3}], s63 offen sc0 sc1")
    a.label(f"{L}_got")
    a("s_waitcnt vmcnt(0)")
    a(f"v_cmp_ne_u32 vcc, s{sTag}, v{vt+1}")
    a("s_nop 1")
    a(f"s_and_b64 exec, exec, vcc")
    a(f"s_cbranch_execz {L}_done")
    a(f"s_sub_u32 s{sT3}, s{sT3}, 1")
    a(f"s_cmp_eq_u32 s{sT3}, 0")
    a(f"s_cbranch_scc1 {L}_done")
    a(f"s_sleep {sleep if sleep is not None else OPT.get('sleep', 6)}")
    a(f"s_branch {L}")
    a.label(f"{L}_done")
    a("s_mov_b64 exec, s[100:101]")

def set_flag(a, vt, s_idx, region):
    a(f"v_mov_b32 v{vt}, s{sTag}")
    a(f"v_mov_b32 v{vt+1}, 0")
    a(f"s_lshl_b32 s63, s{s_idx}, 7")
    if region: a(f"s_add_u32 s63, s63, {region*128}")
    a("s_mov_b64 s[100:101], exec")
    a("s_mov_b64 exec, 1")
    a(f"buffer_store_dword v{vt}, v{vt+1}, s[{R_FL}:{R_FL+3}], s63 offen sc1")
    a("s_mov_b64 exec, s[100:101]")

def tr_addr(a, dst, dst2, pitch, hrows, second_rows, s_base, t):
    a(f"v_bfe_u32 v{t}, v{vLane}, 2, 2")
    a(f"v_mul_u32_u24 v{t+1}, {hrows}, v{vH}")
    a(f"v_add_u32 v{t}, v{t}, v{t+1}")
    a(f"v_bfe_u32 v{t+1}, v{vLane}, 4, 1")
    a(f"v_and_b32 v{t+2}, 3, v{vLane}")
    a(f"v_lshlrev_b32 v{t+2}, 3, v{t+2}")
    a(f"v_lshl_add_u32 v{t+1}, v{t+1}, 5, v{t+2}")
    a(f"v_mul_u32_u24 v{dst}, {pitch}, v{t}")
    a(f"v_add3_u32 v{dst}, v{dst}, v{t+1}, s{s_base}")
    if dst2 is not None:
        a(f"v_add_u32 v{dst2}, {second_rows*pitch}, v{dst}")

def common_init(a, skip_a=False):
    srd(a, R_WS, S_WS, S_WS+1, WS_END)
    srd(a, R_FL, S_WS, S_WS+1, FL_SIZE, WS_FL)
    for r in ((R_B, R_C) if skip_a else (R_A, R_B, R_C)): srd(a, r, S_WS, S_WS+1, WS_END)
    for i in range(6, 16): a(f"v_mov_b32 v{i}, 0")

def role_A(a):
    OPT["nopre0"] = 1
    st = Stamps(a, "A")
    st.start()
    XB = 0; XP = 1056; XH = 528; RBUF = 42240
    RING = 42496; NSTG = 3; RW = NSTG*1024; DEPTH = 16
    KSTG = 57856
    KVX = 67072
    LFL = XB + 512
    LFL2 = XB + 1040
    T4F = 75264
    SB = [0, 16384, 32768, 49152]
    QBUF = 65536; QP = 328
    sStep, sSoff, sLds, sRho, sWrap, sIt = 57, 58, 59, 60, 61, 57
    sExp, sFD = 95, 94
    vT = 4
    vVo, vTr, vTr2, vX16 = 12, 13, 14, 15
    X = 16
    TMP = 36
    vSum, vSq, vM = 52, 53, 54
    vOne, vSelLo, vSelHi = 56, 57, 58
    vR, vXa, vWst, vTag = 9, 10, 11, 61
    ACC = 16; FB = 32; WS_ = 64
    a(f"s_mov_b32 s{sT2}, s2")
    decode_rb_cg(a, sT2)
    a(f"s_lshl_b32 s{sT}, s{sRB}, 5")
    a(f"s_lshl_b32 s{sT2}, s{sW}, 2")
    a(f"s_add_u32 s{sT}, s{sT}, s{sT2}")
    a(f"v_lshrrev_b32 v{vT}, 4, v{vLane}")
    a(f"v_add_u32 v{vT}, s{sT}, v{vT}")
    a(f"v_mul_u32_u24 v{vT}, 1280, v{vT}")
    a(f"v_and_b32 v{vT+1}, 15, v{vLane}")
    a(f"v_lshl_add_u32 v{vT}, v{vT+1}, 4, v{vT}")
    a("s_waitcnt lgkmcnt(0)")
    srd(a, R_A, S_X, S_X+1, NX)
    for i in range(5):
        a(f"buffer_load_dwordx4 {vr(X+4*i,4)}, v{vT}, s[{R_A}:{R_A+3}], 0 offen offset:{256*i}")
    common_init(a, skip_a=True)
    L_notag = "A_notag"
    a(f"s_cmp_lg_u32 s2, 0")
    a(f"s_cbranch_scc1 {L_notag}")
    a(f"s_cmp_lg_u32 s{sW}, 0")
    a(f"s_cbranch_scc1 {L_notag}")
    a(f"s_memrealtime s[62:63]")
    a("s_waitcnt lgkmcnt(0)")
    a(f"s_or_b32 s62, s62, 1")
    a(f"v_mov_b32 v{vT+2}, s62")
    a(f"v_mov_b32 v{vT+3}, 0")
    a("s_mov_b64 exec, 1")
    a(f"global_store_dword v{vT+3}, v{vT+2}, s[{S_DBG}:{S_DBG+1}] sc1")
    a("s_mov_b64 exec, -1")
    a.label(L_notag)
    a(f"v_lshlrev_b32 v{vX16}, 4, v{vLane}")
    a(f"s_and_b32 s{sRho}, s{sRB}, 7")
    L_nowe = "A_nowe"
    a(f"s_cmp_lt_u32 s{sW}, 5")
    a(f"s_cbranch_scc1 {L_nowe}")
    a(f"s_cmp_ge_u32 s{sCG}, 2")
    a(f"s_cbranch_scc1 {L_nowe}")
    a(f"s_cmp_eq_u32 s{sCG}, 1")
    a(f"s_cselect_b32 s{R_B}, s{S_WV}, s{S_WK}")
    a(f"s_cselect_b32 s{R_B+1}, s{S_WV+1}, s{S_WK+1}")
    a(f"s_mov_b32 s{R_B+2}, {640*20*2}")
    a(f"s_mov_b32 s{R_B+3}, 0x00020000")
    a(f"s_sub_u32 s{sT}, s{sW}, 5")
    a(f"s_mul_i32 s{sStep}, s{sT}, 13")
    a(f"s_min_u32 s{sT}, s{sT}, 1")
    a(f"s_add_u32 s{sStep}, s{sStep}, s{sT}")
    a(f"s_mul_i32 s{sT}, s{sRho}, 5")
    a(f"s_add_u32 s{sT2}, s{sStep}, s{sT}")
    a(f"s_cmp_ge_u32 s{sT2}, 40")
    a(f"s_cselect_b32 s{sT}, 40, 0")
    a(f"s_sub_u32 s{sT2}, s{sT2}, s{sT}")
    a(f"s_mul_i32 s{sSoff}, s{sT2}, 640")
    for i in range(14):
        a(f"s_add_u32 s{sT}, s{sSoff}, 640")
        a(f"buffer_load_dwordx4 {vr(WS_+4*i,4)}, v{vX16}, s[{R_B}:{R_B+3}], s{sSoff} offen")
        a(f"s_cmp_eq_u32 s{sT}, 25600")
        a(f"s_cselect_b32 s{sSoff}, 0, s{sT}")
    a.label(L_nowe)
    a("s_barrier")
    L_nq = "A_nq"
    a(f"s_cmp_ge_u32 s{sW}, 5")
    a(f"s_cbranch_scc1 {L_nq}")
    srd(a, R_B, S_WQ, S_WQ+1, 640*640*2)
    a(f"v_lshrrev_b32 v{vT}, 2, v{vLane}")
    a(f"v_mul_u32_u24 v{vT}, 1280, v{vT}")
    a(f"v_and_b32 v{vT+1}, 3, v{vLane}")
    a(f"v_lshl_add_u32 v{vT}, v{vT+1}, 4, v{vT}")
    a(f"s_mul_i32 s{sT}, s{sCG}, 320")
    a(f"s_lshl_b32 s{sT2}, s{sW}, 6")
    a(f"s_add_u32 s{sT}, s{sT}, s{sT2}")
    a(f"v_add_u32 v{vVo}, s{sT}, v{vT}")
    a(f"s_mul_i32 s{sLds}, s{sW}, {RW}")
    a(f"s_add_u32 s{sLds}, s{sLds}, {RING}")
    a(f"s_mul_i32 s{sSoff}, s{sRho}, {5*20480}")
    def wload(k):
        d = WS_ + 4*(k % DEPTH)
        a(f"s_add_u32 s{sT}, s{sSoff}, 20480")
        a(f"buffer_load_dwordx4 {vr(d,4)}, v{vVo}, s[{R_B}:{R_B+3}], s{sSoff} offen")
        a(f"s_cmp_eq_u32 s{sT}, {40*20480}")
        a(f"s_cselect_b32 s{sSoff}, 0, s{sT}")
    NW0 = OPT.get("NW0", 8)
    for k in range(NW0): wload(k)
    tr_addr(a, vTr, vTr2, 64, 8, 4, sLds, vT)
    a(f"v_add_u32 v{vWst}, s{sLds}, v{vX16}")
    a(f"s_waitcnt vmcnt({NW0})")
    a(f"s_mov_b32 s{sTag}, 0")
    a(f"s_branch A_xok")
    a.label(L_nq)
    a(f"s_waitcnt vmcnt(14)")
    a(f"s_cmp_lt_u32 s{sCG}, 2")
    a(f"s_cbranch_scc1 A_xok2")
    a(f"s_waitcnt vmcnt(0)")
    a.label("A_xok2")
    a(f"v_mov_b32 v{vT}, 0")
    a(f"global_load_dword v{vTag}, v{vT}, s[{S_DBG}:{S_DBG+1}] sc1")
    a.label("A_xok")
    st.mark("xwait")
    a(f"v_mov_b32 v{vOne}, 0x3f803f80")
    a(f"v_mov_b32 v{vSelLo}, 0x00003f80")
    a(f"v_mov_b32 v{vSelHi}, 0x3f800000")
    for i in range(4): a(f"v_mov_b32 v{TMP+i}, 0")
    for i in range(20):
        a(f"v_dot2c_f32_bf16 v{TMP+(i%2)}, v{X+i}, v{vOne}")
        a(f"v_dot2c_f32_bf16 v{TMP+2+(i%2)}, v{X+i}, v{X+i}")
    a(f"v_lshrrev_b32 v{vT}, 4, v{vLane}")
    a(f"s_lshl_b32 s{sT}, s{sW}, 2")
    a(f"v_add_u32 v{vT}, s{sT}, v{vT}")
    a(f"v_and_b32 v{vT+1}, 1, v{vLane}")
    a(f"v_mul_u32_u24 v{vT+1}, {XH}, v{vT+1}")
    a(f"v_lshl_add_u32 v{vT+1}, v{vT}, 4, v{vT+1}")
    a(f"v_add_f32 v{vSum}, v{TMP}, v{TMP+1}")
    a(f"v_add_f32 v{vSq}, v{TMP+2}, v{TMP+3}")
    a(f"v_bfe_u32 v{vT+2}, v{vLane}, 1, 3")
    a(f"s_mul_i32 s{sT}, s{sRho}, 5")
    a(f"s_sub_u32 s{sT}, 40, s{sT}")
    for ror in (8, 4, 2, 1):
        a(f"v_add_f32_dpp v{vSum}, v{vSum}, v{vSum} row_ror:{ror} row_mask:0xf bank_mask:0xf")
        a(f"v_add_f32_dpp v{vSq}, v{vSq}, v{vSq} row_ror:{ror} row_mask:0xf bank_mask:0xf")
        if ror != 1: a.nop(1)
    a(f"v_add_u32 v{vT+2}, s{sT}, v{vT+2}")
    inv = f32bits(1.0/640)
    a(f"v_mul_f32 v{vM}, {inv}, v{vSum}")
    a(f"v_mul_f32 v{TMP+1}, {inv}, v{vSq}")
    a(f"v_fma_f32 v{TMP+1}, -v{vM}, v{vM}, v{TMP+1}")
    a(f"v_max_f32 v{TMP+1}, 0, v{TMP+1}")
    bf16_round(a, TMP+1, TMP+1)
    bf16_round(a, vM, vM)
    a(f"v_add_f32 v{TMP+1}, {f32bits(1e-5)}, v{TMP+1}")
    a(f"v_sub_f32 v{vM}, 0, v{vM}")
    bf16_round(a, TMP+1, TMP+1)
    a(f"v_sqrt_f32 v{vSum}, v{TMP+1}")
    for base in range(0, 20, 8):
        g = min(8, 20-base)
        for i in range(g):
            a(f"v_dot2_f32_bf16 v{TMP+2*i}, v{X+base+i}, v{vSelLo}, v{vM}")
            a(f"v_dot2_f32_bf16 v{TMP+2*i+1}, v{X+base+i}, v{vSelHi}, v{vM}")
        if base == 0:
            bf16_round(a, vSum, vSum)
            a(f"v_rcp_f32 v{vR}, v{vSum}")
        else:
            a.nop(3)
        for i in range(g):
            a(f"v_cvt_pk_bf16_f32 v{X+base+i}, v{TMP+2*i}, v{TMP+2*i+1}")
    a(f"v_lshlrev_b32 v{vT+3}, 2, v{vT}")
    a(f"ds_write_b32 v{vT+3}, v{vR} offset:{RBUF}")
    for i in range(5):
        if i: a(f"v_add_u32 v{vT+2}, 8, v{vT+2}")
        a(f"v_subrev_u32 v{vT+3}, 40, v{vT+2}")
        a(f"v_min_u32 v{vT+3}, v{vT+3}, v{vT+2}")
        a(f"v_mul_u32_u24 v{vT+3}, {XP}, v{vT+3}")
        a(f"v_add_u32 v{vT+3}, v{vT+3}, v{vT+1}")
        a(f"ds_write_b128 v{vT+3}, {vr(X+4*i,4)} offset:{XB}")
    a(f"v_mul_u32_u24 v{vXa}, {XH}, v{vH}")
    a(f"v_lshl_add_u32 v{vXa}, v{vN}, 4, v{vXa}")
    a(f"s_cmp_ge_u32 s{sW}, 5")
    a(f"s_cbranch_scc1 A_ln5")
    for k in range(NW0, 10): wload(k)
    a(f"s_cmp_eq_u32 s{sW}, 4")
    a(f"s_cbranch_scc1 A_lnb")
    for k in range(10, DEPTH): wload(k)
    a(f"s_branch A_lnb")
    a.label("A_ln5")
    a(f"v_mov_b32 v{vT}, {LFL}")
    for i in range(4): a(f"v_mov_b32 v{TMP+i}, 0")
    a(f"ds_write_b128 v{vT}, v[{TMP}:{TMP+3}]")
    a(f"ds_write_b128 v{vT}, v[{TMP}:{TMP+3}] offset:{LFL2-LFL}")
    a("s_waitcnt vmcnt(0)")
    a(f"v_readfirstlane_b32 s{sTag}, v{vTag}")
    a.label("A_lnb")
    a("s_waitcnt lgkmcnt(0)")
    a("s_barrier")
    a(f"v_lshlrev_b32 v{vT}, 2, v{vN}")
    a(f"ds_read_b32 v{vR}, v{vT} offset:{RBUF}")
    st.mark("LN")
    if OPT.get("diag"):
        a(f"s_cmp_lg_u32 s{sW}, 0"); Ld = a.newlabel("dg"); a(f"s_cbranch_scc1 {Ld}"); diag(a, 4, va=62); diag(a, 5, neg=True, va=62); a.label(Ld)
    def ensure_tag(lab):
        get_tag(a, vT, lab, have=True)
    L_kvp, L_exp, L_bar1 = "A_kvp", "A_exp", "A_bar1"
    a(f"s_cmp_ge_u32 s{sW}, 5")
    a(f"s_cbranch_scc1 {L_kvp}")
    a(f"s_cmp_eq_u32 s{sW}, 4")
    a(f"s_cbranch_scc1 A_job4")
    if OPT.get("noq"): a(f"s_branch {L_bar1}")
    def pipe_gemm(nsteps, wr, rd, need_vm, refill, cin0):
        for k in range(5):
            if k < nsteps:
                need_vm(k, -5 + k)
                wr(k)
            if 0 <= k - 2 < nsteps: rd(k - 2)
        for s_ in range(nsteps):
            n_ops = 0
            if s_ + 5 < nsteps:
                need_vm(s_ + 5, s_)
                wr(s_ + 5)
            if s_ + 3 < nsteps: rd(s_ + 3)
            for t in range(s_ + 1, s_ + 4):
                if t + 2 < nsteps: n_ops += 1
                if t < nsteps: n_ops += 3
            a(f"s_waitcnt lgkmcnt({n_ops})")
            f = FB + 8*(s_ % 4)
            cin = cin0 if s_ == 0 else vr(ACC, 16)
            a(f"v_mfma_f32_32x32x16_bf16 {vr(ACC,16)}, {vr(f,4)}, {vr(f+4,4)}, {cin}")
            refill(s_)
    def q_wr(k): a(f"ds_write_b128 v{vWst}, {vr(WS_+4*(k % DEPTH),4)} offset:{(k % NSTG)*1024}")
    def q_rd(k):
        f = FB + 8*(k % 4)
        a(f"ds_read_b64_tr_b16 v[{f}:{f+1}], v{vTr} offset:{(k % NSTG)*1024}")
        a(f"ds_read_b64_tr_b16 v[{f+2}:{f+3}], v{vTr2} offset:{(k % NSTG)*1024}")
        a(f"ds_read_b128 {vr(f+4,4)}, v{vXa} offset:{XB + k*XP}")
    def q_vm(k, s_now):
        issued = DEPTH + max(0, min(s_now, 40 - DEPTH + QOFF) - QOFF) if s_now > 0 else DEPTH
        issued = min(issued, 40)
        a(f"s_waitcnt vmcnt({issued - 1 - k})")
    QOFF = 0
    def q_refill(s_):
        if s_ + DEPTH < 40: wload(s_ + DEPTH)
    pipe_gemm(40, q_wr, q_rd, q_vm, q_refill, "0")
    st.mark("gemm")
    a.nop(12)
    a(f"v_mul_f32 v{vT}, {f32bits(QSCALE)}, v{vR}")
    for j in range(16): a(f"v_mul_f32 v{ACC+j}, v{ACC+j}, v{vT}")
    for k in range(8): a(f"v_cvt_pk_bf16_f32 v{TMP+k}, v{ACC+2*k}, v{ACC+2*k+1}")
    a(f"s_branch {L_bar1}")

    JW = WS_ + 20
    def job_loads():
        srd(a, R_B, S_WQ, S_WQ+1, 640*640*2)
        a(f"v_lshrrev_b32 v{vT}, 2, v{vLane}")
        a(f"v_mul_u32_u24 v{vT}, 1280, v{vT}")
        a(f"v_and_b32 v{vT+1}, 3, v{vLane}")
        a(f"v_lshl_add_u32 v{vT}, v{vT+1}, 4, v{vT}")
        a(f"s_mul_i32 s{sT}, s{sCG}, 320")
        a(f"s_add_u32 s{sT}, s{sT}, 256")
        a(f"v_add_u32 v{vT}, s{sT}, v{vT}")
        a(f"s_sub_u32 s{sT}, s{sW}, 4")
        a(f"s_mul_i32 s{sT}, s{sT}, 10")
        a(f"s_mul_i32 s{sT2}, s{sRho}, 5")
        a(f"s_add_u32 s{sT}, s{sT}, s{sT2}")
        a(f"s_cmp_ge_u32 s{sT}, 40")
        a(f"s_cselect_b32 s{sT2}, 40, 0")
        a(f"s_sub_u32 s{sT}, s{sT}, s{sT2}")
        a(f"s_mul_i32 s{sSoff}, s{sT}, 20480")
        for k in range(10):
            a(f"s_add_u32 s{sT}, s{sSoff}, 20480")
            a(f"buffer_load_dwordx4 {vr(JW+4*k,4)}, v{vT}, s[{R_B}:{R_B+3}], s{sSoff} offen")
            a(f"s_cmp_eq_u32 s{sT}, {40*20480}")
            a(f"s_cselect_b32 s{sSoff}, 0, s{sT}")
    def job_run(raw, vm_after):
        tr_addr(a, vTr, vTr2, 64, 8, 4, sLds, vT)
        a(f"v_add_u32 v{vWst}, s{sLds}, v{vX16}")
        a(f"s_sub_u32 s{sT}, s{sW}, 4")
        a(f"s_mul_i32 s{sT}, s{sT}, {10*XP}")
        a(f"v_add_u32 v{vVo}, s{sT}, v{vXa}")
        def j_wr(k): a(f"ds_write_b128 v{vWst}, {vr(raw+4*k,4)} offset:{(k % NSTG)*1024}")
        def j_rd(k):
            f = FB + 8*(k % 4)
            a(f"ds_read_b64_tr_b16 v[{f}:{f+1}], v{vTr} offset:{(k % NSTG)*1024}")
            a(f"ds_read_b64_tr_b16 v[{f+2}:{f+3}], v{vTr2} offset:{(k % NSTG)*1024}")
            a(f"ds_read_b128 {vr(f+4,4)}, v{vVo} offset:{k*XP}")
        def j_vm(k, s_): a(f"s_waitcnt vmcnt({9 - k + vm_after})")
        pipe_gemm(10, j_wr, j_rd, j_vm, lambda s_: None, "0")
        a("s_waitcnt lgkmcnt(0)")
        a.nop(12)
    def job_publish():
        Lp5, Lpd = a.newlabel("A_jp5"), a.newlabel("A_jpd")
        a(f"s_cmp_eq_u32 s{sW}, 5")
        a(f"s_cbranch_scc1 {Lp5}")
        for q in range(3): a(f"ds_write_b128 v{vWst}, {vr(ACC+4*q,4)} offset:{q*1024}")
        a(f"s_sub_u32 s{sT}, s{sW}, 6")
        a(f"s_lshl_b32 s{sT}, s{sT}, 10")
        a(f"s_add_u32 s{sT}, s{sT}, {T4F}")
        a(f"v_add_u32 v{vT}, s{sT}, v{vX16}")
        a(f"ds_write_b128 v{vT}, {vr(ACC+12,4)}")
        a(f"s_branch {Lpd}")
        a.label(Lp5)
        a(f"v_add_u32 v{vT}, {KVX+4096}, v{vX16}")
        for q in range(4): a(f"ds_write_b128 v{vT}, {vr(ACC+4*q,4)} offset:{q*1024}")
        a.label(Lpd)
        a(f"s_sub_u32 s{sT}, s{sW}, 5")
        a(f"s_lshl_b32 s{sT}, s{sT}, 2")
        a(f"s_add_u32 s{sT}, s{sT}, {LFL2}")
        a(f"v_mov_b32 v{vT}, s{sT}")
        a(f"v_mov_b32 v{vT+1}, 1")
        a(f"ds_write_b32 v{vT}, v{vT+1}")
    a.label("A_job4")
    job_run(WS_, 0)
    a(f"v_mov_b32 v{vT}, {LFL2}")
    a(f"s_mov_b32 s{sT3}, {SPIN_MAX}")
    a.label("A_j4spin")
    a(f"ds_read_b96 v[{vT+2}:{vT+4}], v{vT}")
    a("s_waitcnt lgkmcnt(0)")
    a(f"v_and_b32 v{vT+2}, v{vT+2}, v{vT+3}")
    a(f"v_and_b32 v{vT+2}, v{vT+2}, v{vT+4}")
    a("s_nop 0")
    a(f"v_readfirstlane_b32 s{sT}, v{vT+2}")
    a(f"s_sub_u32 s{sT3}, s{sT3}, 1")
    a(f"s_cmp_eq_u32 s{sT3}, 0")
    a(f"s_cbranch_scc1 A_j4spin_done")
    a(f"s_cmp_eq_u32 s{sT}, 1")
    a(f"s_cbranch_scc1 A_j4spin_done")
    a("s_sleep 1")
    a(f"s_branch A_j4spin")
    a.label("A_j4spin_done")
    a(f"v_add_u32 v{vT}, {KVX+4096}, v{vX16}")
    a(f"v_add_u32 v{vT+1}, {KSTG+3072}, v{vX16}")
    a(f"v_add_u32 v{vT+2}, {T4F}, v{vX16}")
    for q in range(4): a(f"ds_read_b128 {vr(64+4*q,4)}, v{vT} offset:{q*1024}")
    for p_ in range(2):
        for q in range(3): a(f"ds_read_b128 {vr(80+16*p_+4*q,4)}, v{vT+1} offset:{p_*3072 + q*1024}")
        a(f"ds_read_b128 {vr(80+16*p_+12,4)}, v{vT+2} offset:{p_*1024}")
    a("s_waitcnt lgkmcnt(0)")
    for j in range(16): a(f"v_add_f32 v{64+j}, v{64+j}, v{80+j}")
    for j in range(16): a(f"v_add_f32 v{ACC+j}, v{ACC+j}, v{96+j}")
    for j in range(16): a(f"v_add_f32 v{ACC+j}, v{ACC+j}, v{64+j}")
    st.mark("job4")
    a(f"v_mul_f32 v{vT}, {f32bits(QSCALE)}, v{vR}")
    for j in range(16): a(f"v_mul_f32 v{ACC+j}, v{ACC+j}, v{vT}")
    for k in range(8): a(f"v_cvt_pk_bf16_f32 v{TMP+k}, v{ACC+2*k}, v{ACC+2*k+1}")
    a(f"s_branch {L_bar1}")
    def export_d():
        a(f"s_mul_i32 s{sT}, s{sCG}, 2")
        a(f"s_add_u32 s{sT}, s{sT}, s{sW}")
        a(f"s_sub_u32 s{sT}, s{sT}, 6")
        a(f"s_sub_u32 s{sT2}, s{sT}, s{sRho}")
        a(f"s_and_b32 s{sT2}, s{sT2}, 7")
        a(f"s_mul_i32 s{sT2}, s{sT2}, {5*XP}")
        a(f"v_add_u32 v{vT}, s{sT2}, v{vXa}")
        for i in range(5):
            a(f"ds_read_b128 {vr(X+4*i,4)}, v{vT} offset:{XB + XP*i}")
        a(f"s_mul_i32 s{sT2}, s{sRB}, 40")
        a(f"s_mul_i32 s{sExp}, s{sT}, 5")
        a(f"s_add_u32 s{sT2}, s{sT2}, s{sExp}")
        a(f"s_lshl_b32 s{sT2}, s{sT2}, 10")
        if WS_XF: a(f"s_add_u32 s{sT2}, s{sT2}, {WS_XF}")
        a(f"s_lshl_b32 s{sFD}, s{sRB}, 3")
        a(f"s_add_u32 s{sFD}, s{sFD}, s{sT}")
        a(f"v_add_u32 v{vT+1}, 4096, v{vX16}")
        a("s_waitcnt lgkmcnt(0)")
        for i in range(4):
            a(f"buffer_store_dwordx4 {vr(X+4*i,4)}, v{vX16}, s[{R_WS}:{R_WS+3}], s{sT2} offen offset:{1024*i} sc1")
        a(f"buffer_store_dwordx4 {vr(X+16,4)}, v{vT+1}, s[{R_WS}:{R_WS+3}], s{sT2} offen sc1")
        L_nor = "A_nor"
        a(f"s_cmp_lg_u32 s{sT}, 0")
        a(f"s_cbranch_scc1 {L_nor}")
        a(f"s_lshl_b32 s{sT2}, s{sRB}, 7")
        a(f"s_add_u32 s{sT2}, s{sT2}, {WS_R}")
        a(f"v_lshlrev_b32 v{vT}, 2, v{vN}")
        a(f"buffer_store_dword v{vR}, v{vT}, s[{R_WS}:{R_WS+3}], s{sT2} offen sc1")
        a.label(L_nor)
    a.label(L_kvp)
    a("s_setprio 3")
    if OPT.get("expfirst", 0):
        a(f"s_cmp_lt_u32 s{sW}, 6")
        a(f"s_cbranch_scc1 A_noexp")
        export_d()
        a.label("A_noexp")
    a(f"s_cmp_ge_u32 s{sCG}, 2")
    a(f"s_cbranch_scc1 A_kvp_skip")
    a(f"s_sub_u32 s{sT}, s{sW}, 5")
    a(f"s_mul_i32 s{sLds}, s{sT}, 3072")
    a(f"s_add_u32 s{sLds}, s{sLds}, {KSTG}")
    tr_addr(a, vTr, vTr2, 40, 8, 4, sLds, vT)
    a(f"v_add_u32 v{vWst}, s{sLds}, v{vX16}")
    a(f"s_mul_i32 s{sT}, s{sStep}, {XP}")
    a(f"v_add_u32 v{vVo}, s{sT}, v{vXa}")
    a(f"v_add_u32 v{vT+4}, {13*XP}, v{vVo}")
    a(f"s_cmp_eq_u32 s{sW}, 5")
    a(f"s_cbranch_scc1 A_kv13")
    for i in range(4): a(f"v_mov_b32 v{WS_+52+i}, 0")
    a(f"v_mov_b32 v{vT+4}, v{vXa}")
    a.label("A_kv13")
    def k_wr(k): a(f"ds_write_b128 v{vWst}, {vr(WS_+4*k,4)} offset:{(k % NSTG)*1024}")
    def k_rd(k):
        f = FB + 8*(k % 4)
        a(f"ds_read_b64_tr_b16 v[{f}:{f+1}], v{vTr} offset:{(k % NSTG)*1024}")
        a(f"ds_read_b64_tr_b16 v[{f+2}:{f+3}], v{vTr2} offset:{(k % NSTG)*1024}")
        if k == 13: a(f"ds_read_b128 {vr(f+4,4)}, v{vT+4}")
        else: a(f"ds_read_b128 {vr(f+4,4)}, v{vVo} offset:{k*XP}")
    pipe_gemm(14, k_wr, k_rd, lambda k, s_: None, lambda s_: None, "0")
    a("s_waitcnt lgkmcnt(0)")
    job_loads()
    a(f"s_cmp_eq_u32 s{sW}, 5")
    a(f"s_cbranch_scc1 A_kv5")
    a(f"s_sub_u32 s{sT}, s{sW}, 6")
    a(f"s_lshl_b32 s{sT}, s{sT}, 12")
    a(f"s_add_u32 s{sT}, s{sT}, {KVX}")
    a(f"v_add_u32 v{vT}, s{sT}, v{vX16}")
    for q in range(4):
        a(f"ds_write_b128 v{vT}, {vr(ACC+4*q,4)} offset:{q*1024}")
    a(f"s_sub_u32 s{sT}, s{sW}, 6")
    a(f"s_lshl_b32 s{sT}, s{sT}, 2")
    a(f"s_add_u32 s{sT}, s{sT}, {LFL}")
    a(f"v_mov_b32 v{vT}, s{sT}")
    a(f"v_mov_b32 v{vT+1}, 1")
    a(f"ds_write_b32 v{vT}, v{vT+1}")
    a(f"s_branch A_kvp_done")
    a.label("A_kv5")
    a(f"v_mov_b32 v{vT}, {LFL}")
    a(f"s_mov_b32 s{sT3}, {SPIN_MAX}")
    a.label("A_kvspin")
    a(f"ds_read_b64 v[{vT+2}:{vT+3}], v{vT}")
    a("s_waitcnt lgkmcnt(0)")
    a(f"v_and_b32 v{vT+2}, v{vT+2}, v{vT+3}")
    a("s_nop 0")
    a(f"v_readfirstlane_b32 s{sT}, v{vT+2}")
    a(f"s_sub_u32 s{sT3}, s{sT3}, 1")
    a(f"s_cmp_eq_u32 s{sT3}, 0")
    a(f"s_cbranch_scc1 A_kvspin_done")
    a(f"s_cmp_eq_u32 s{sT}, 1")
    a(f"s_cbranch_scc1 A_kvspin_done")
    a("s_sleep 1")
    a(f"s_branch A_kvspin")
    a.label("A_kvspin_done")
    a(f"v_add_u32 v{vT}, {KVX}, v{vX16}")
    for p_ in range(2):
        for q in range(4):
            a(f"ds_read_b128 {vr(FB+16*p_+4*q,4)}, v{vT} offset:{p_*4096 + q*1024}")
    a("s_waitcnt lgkmcnt(0)")
    for j in range(16):
        a(f"v_add_f32 v{FB+j}, v{FB+j}, v{FB+16+j}")
    for j in range(16):
        a(f"v_add_f32 v{ACC+j}, v{ACC+j}, v{FB+j}")
    for j in range(16): a(f"v_mul_f32 v{ACC+j}, v{ACC+j}, v{vR}")
    a(f"v_cmp_eq_u32 vcc, 1, v{vH}")
    a(f"v_mov_b32 v{vT}, 1.0")
    a(f"v_mov_b32 v{vT+1}, 0")
    a(f"v_cndmask_b32 v{ACC+8}, v{ACC+8}, v{vT}, vcc")
    for j in range(9, 12): a(f"v_cndmask_b32 v{ACC+j}, v{ACC+j}, v{vT+1}, vcc")
    for j in range(12, 16): a(f"v_mov_b32 v{ACC+j}, 0")
    for k in range(8): a(f"v_cvt_pk_bf16_f32 v{TMP+k}, v{ACC+2*k}, v{ACC+2*k+1}")
    a(f"s_mul_i32 s{sT}, s{sRB}, {TS}")
    a(f"s_add_u32 s{sT}, s{sT}, {WS_KV}")
    L_v = "A_v"; L_kvdone = "A_kvdone"
    a(f"s_cmp_eq_u32 s{sCG}, 1")
    a(f"s_cbranch_scc1 {L_v}")
    a(f"buffer_store_dwordx4 {vr(TMP,4)}, v{vX16}, s[{R_WS}:{R_WS+3}], s{sT} offen sc1")
    a(f"v_lshlrev_b32 v{vT}, 3, v{vLane}")
    a(f"s_mov_b32 exec_hi, 0")
    a(f"buffer_store_dwordx2 v[{TMP+4}:{TMP+5}], v{vT}, s[{R_WS}:{R_WS+3}], s{sT} offen offset:1024 sc1")
    a(f"s_mov_b32 exec_hi, -1")
    a(f"s_branch {L_kvdone}")
    a.label(L_v)
    a(f"s_mov_b32 s{sLds}, {KVX}")
    a(f"v_lshlrev_b32 v{vT}, 6, v{vN}")
    a(f"v_lshl_add_u32 v{vT}, v{vH}, 3, v{vT}")
    a(f"v_add_u32 v{vT}, s{sLds}, v{vT}")
    for q in range(4):
        a(f"ds_write_b64 v{vT}, v[{TMP+2*q}:{TMP+2*q+1}] offset:{16*q}")
    tr_addr(a, vTr, None, 64, 4, 8, sLds, vT+1)
    for u in range(2):
        a(f"ds_read_b64_tr_b16 v[{TMP+8+4*u}:{TMP+9+4*u}], v{vTr} offset:{u*1024}")
        a(f"ds_read_b64_tr_b16 v[{TMP+10+4*u}:{TMP+11+4*u}], v{vTr} offset:{u*1024 + 512}")
    a(f"v_mul_u32_u24 v{vT}, {VH}, v{vH}")
    a(f"v_lshl_add_u32 v{vT}, v{vN}, 4, v{vT}")
    a(f"s_mov_b32 exec_lo, 0x3fffff")
    a(f"s_mov_b32 exec_hi, 0x3fffff")
    a("s_waitcnt lgkmcnt(0)")
    a(f"buffer_store_dwordx4 {vr(TMP+8,4)}, v{vT}, s[{R_WS}:{R_WS+3}], s{sT} offen offset:1280 sc1")
    a(f"buffer_store_dwordx4 {vr(TMP+12,4)}, v{vT}, s[{R_WS}:{R_WS+3}], s{sT} offen offset:{1280+VF} sc1")
    a(f"s_mov_b64 exec, -1")
    a.label(L_kvdone)
    ensure_tag("A5")
    a("s_waitcnt vmcnt(0)")
    st.mark("k5:drain")
    a(f"s_lshl_b32 s{sT}, s{sRB}, 1")
    a(f"s_add_u32 s{sT}, s{sT}, s{sCG}")
    set_flag(a, vT, sT, FL_KV)
    a(f"s_mov_b32 s{sLds}, {KSTG}")
    job_run(JW, 1)
    job_publish()
    a(f"s_branch {L_bar1}")
    a.label("A_kvp_skip")
    job_loads()
    a(f"s_cmp_lg_u32 s{sW}, 5")
    a(f"s_cbranch_scc1 A_kvp_done")
    a(f"s_mov_b32 s{sLds}, {KSTG}")
    job_run(JW, 0)
    job_publish()
    a(f"s_branch {L_bar1}")
    a.label("A_kvp_done")
    if not OPT.get("expfirst", 0): export_d()
    ensure_tag("A6")
    tag_to_lds(a, vT)
    a(f"s_waitcnt vmcnt({10 if OPT.get('expfirst', 0) else 0})")
    st.mark("x:drain")
    set_flag(a, vT, sFD, FL_D)
    a(f"s_sub_u32 s{sT}, s{sW}, 5")
    a(f"s_mul_i32 s{sLds}, s{sT}, 3072")
    a(f"s_add_u32 s{sLds}, s{sLds}, {KSTG}")
    job_run(JW, 1)
    job_publish()
    a.label(L_bar1)
    a("s_waitcnt vmcnt(0)")
    a.label("A_bar1_nowait")
    a("s_setprio 0")
    a("s_waitcnt lgkmcnt(0)")
    a("s_barrier")
    st.mark("bar0")
    vA16 = vX16
    aK1, aK2, aV, nK1, nK2, nV = 64, 65, 66, 67, 68, 69
    bK2, bV = 70, 71
    CN = 80
    S = [16, 32]
    O = 48
    P = 96
    Q1, Q2 = 104, 108
    K1, K2 = 112, 116
    V1, V2 = 120, 124
    vM2 = 110
    sSoffK, sLdsW, sSlot, sCk = 58, 59, 60, 61
    vFl, vFlo = 72, 73
    srd(a, R_A, S_WS, S_WS+1, KVB, WS_KV)
    a(f"s_lshl_b32 s{sLdsW}, s{sW}, 10")
    a(f"v_lshlrev_b32 v{bK2}, 3, v{vN}")
    a(f"v_add_u32 v{bK2}, 1024, v{bK2}")
    a(f"v_mov_b32 v{vT}, {1280 + 21*16}")
    a(f"v_cmp_eq_u32 vcc, 1, v{vH}")
    a(f"v_min_u32 v{bV}, 21, v{vN}")
    a(f"v_lshlrev_b32 v{bV}, 4, v{bV}")
    a(f"v_cndmask_b32 v{bK2}, v{bK2}, v{vT}, vcc")
    a(f"v_mul_u32_u24 v{vT}, {VH}, v{vH}")
    a(f"v_add3_u32 v{bV}, v{bV}, v{vT}, 0")
    a(f"v_add_u32 v{bV}, 1280, v{bV}")
    def dma_chunk(slot_s):
        Ls = a.newlabel("A_dm")
        a(f"s_cmp_ge_u32 s{sW}, 4")
        a(f"s_cbranch_scc1 {Ls}")
        a(f"s_add_u32 s{sT}, s{slot_s}, s{sLdsW}")
        a(f"s_add_u32 s{sT2}, s{sSoffK}, s{sLdsW}")
        for i in range(6):
            if i == 5:
                a(f"s_cmp_lg_u32 s{sW}, 0")
                a(f"s_cbranch_scc1 {Ls}")
            a(f"s_add_u32 m0, s{sT}, {4096*i}")
            a(f"s_add_u32 s{sT3}, s{sT2}, {4096*i}")
            a(f"buffer_load_dwordx4 v{vA16}, s[{R_A}:{R_A+3}], s{sT3} offen sc1 lds")
        a.label(Ls)
        a(f"s_add_u32 s{sSoffK}, s{sSoffK}, {CH}")
        a(f"s_cmp_eq_u32 s{sSoffK}, {8*CH}")
        a(f"s_cselect_b32 s{sSoffK}, 0, s{sSoffK}")
        a(f"s_add_u32 s{sCk}, s{sCk}, 1")
        a(f"s_and_b32 s{sCk}, s{sCk}, 7")
    L_noqw = "A_noqw"
    a(f"v_mul_u32_u24 v{vT}, {QP}, v{vN}")
    a(f"v_add_u32 v{vT}, {QBUF}, v{vT}")
    a(f"s_cmp_ge_u32 s{sW}, 5")
    a(f"s_cbranch_scc1 {L_noqw}")
    a(f"s_lshl_b32 s{sT}, s{sW}, 6")
    a(f"v_lshl_add_u32 v{vT+1}, v{vH}, 3, v{vT}")
    a(f"v_add_u32 v{vT+1}, s{sT}, v{vT+1}")
    for q in range(4):
        a(f"ds_write_b64 v{vT+1}, v[{TMP+2*q}:{TMP+2*q+1}] offset:{16*q}")
    a.label(L_noqw)
    a("s_waitcnt lgkmcnt(0)")
    a("s_barrier")
    a(f"s_mul_i32 s{sT}, s{sW}, 40")
    a(f"v_add_u32 v{vT}, s{sT}, v{vT}")
    a(f"v_lshl_add_u32 v{vT+1}, v{vH}, 3, v{vT}")
    a(f"ds_read_b64 v[{Q1}:{Q1+1}], v{vT+1}")
    a(f"ds_read_b64 v[{Q1+2}:{Q1+3}], v{vT+1} offset:16")
    a(f"ds_read_b64 v[{Q2}:{Q2+1}], v{vT} offset:32")
    a(f"v_mov_b32 v{aK1}, v{vA16}")
    a(f"v_mov_b32 v{aK2}, v{bK2}")
    a(f"v_mov_b32 v{aV}, v{bV}")
    a(f"v_add_u32 v{nK1}, {CH}, v{vA16}")
    a(f"v_add_u32 v{nK2}, {CH}, v{bK2}")
    a(f"v_add_u32 v{nV}, {CH}, v{bV}")
    for i in range(16): a(f"v_mov_b32 v{O+i}, 0")
    a(f"v_cmp_eq_u32 vcc, 1, v{vH}")
    a(f"v_mov_b32 v{vT}, 0")
    a("s_waitcnt lgkmcnt(0)")
    a(f"v_cndmask_b32 v{Q2}, v{Q2}, v{vT}, vcc")
    a(f"v_cndmask_b32 v{Q2+1}, v{Q2+1}, v{vT}, vcc")
    a(f"s_lshr_b32 s{sCk}, s{sRB}, 3")
    a(f"s_mul_i32 s{sSoffK}, s{sCk}, {CH}")
    def check_chunk(lab):
        a(f"s_cmp_lg_u32 s{sW}, 7")
        a(f"s_cbranch_scc1 {lab}_skip")
        a(f"s_lshl_b32 s{sT}, s{sCk}, 4")
        poll_flags(a, vT+2, lab, sT, 16, FL_KV, sleep=OPT.get("kvsleep", 1))
        a.label(f"{lab}_skip")
    check_chunk("A7a")
    a("s_barrier")
    st.mark("bar1")
    a(f"s_mov_b32 s{sSlot}, 0")
    dma_chunk(sSlot)
    a(f"v_min_u32 v{vFlo}, 15, v{vLane}")
    a(f"v_lshlrev_b32 v{vFlo}, 7, v{vFlo}")
    def rd(dst, n, t, off, cur, nxt, op):
        v_ = cur if t < 8 else nxt
        a(f"{op} {vr(dst,n)}, v{v_} offset:{(t % 8)*TS + off}")
    def rd_K1(t): rd(K1, 4, t, 0, aK1, nK1, "ds_read_b128")
    def rd_K2(t): rd(K2, 2, t, 0, aK2, nK2, "ds_read_b64")
    def rd_V1(t): rd(V1, 4, t, 0, aV, nV, "ds_read_b128")
    def rd_V2(t): rd(V2, 4, t, VF, aV, nV, "ds_read_b128")
    def qk1(dst, c="0"): a(f"v_mfma_f32_32x32x16_bf16 {vr(dst,16)}, {vr(K1,4)}, {vr(Q1,4)}, {c}")
    def qk2(dst): a(f"v_mfma_f32_32x32x8_bf16 {vr(dst,16)}, {vr(K2,2)}, {vr(Q2,2)}, {vr(dst,16)}")
    CNR = vr(CN, 16)
    if OPT.get("chk2early"): check_chunk("A7b")
    a("s_waitcnt vmcnt(0)")
    a("s_barrier")
    if OPT.get("chk2early"):
        a(f"s_mov_b32 s{sSlot}, {CH}")
        dma_chunk(sSlot)
        a(f"s_mov_b32 s{sSlot}, {2*CH}")
    rd_K1(0); rd_K2(0)
    def set_m(delta):
        a(f"v_mov_b32 v{vT}, v{vM2}")
        a.nop(2)
        a(f"v_permlane32_swap_b32 v{vM2}, v{vT}")
        a.nop(1)
        a(f"v_max_f32 v{vM2}, v{vM2}, v{vT}")
        if delta: a(f"v_add_f32 v{vM2}, {f32bits(delta)}, v{vM2}")
        for i in range(16): a(f"v_sub_f32 v{CN+i}, 0, v{vM2}")
    a(f"v_mov_b32 v{vM2}, 0xff800000")
    a("s_waitcnt lgkmcnt(0)")
    qk1(S[0]); qk2(S[0])
    rd_K1(1); rd_K2(1)
    a("s_waitcnt lgkmcnt(0)")
    qk1(S[1]); qk2(S[1])
    rd_K1(0); rd_K2(0)
    for i in range(4, 8): a(f"v_mov_b32 v{P+i}, 0")
    for i in range(4): a(f"v_mov_b32 v{V2+i}, 0")
    a.nop(4)
    for i in range(8):
        a(f"v_max3_f32 v{vM2}, v{S[0]+2*i}, v{S[0]+2*i+1}, v{vM2}")
    a.nop(4)
    for i in range(8):
        a(f"v_max3_f32 v{vM2}, v{S[1]+2*i}, v{S[1]+2*i+1}, v{vM2}")
    set_m(DELTA)
    a("s_waitcnt lgkmcnt(0)")
    a.nop(1)
    qk1(S[0], CNR); qk2(S[0])
    rd_K1(1); rd_K2(1); rd_V1(0)
    if not OPT.get("chk2early"):
        check_chunk("A7b")
        a("s_barrier")
        a(f"s_mov_b32 s{sSlot}, {CH}")
        dma_chunk(sSlot)
        a(f"s_mov_b32 s{sSlot}, {2*CH}")
    a.nop(12)
    st.mark("sample")
    a(f"s_setprio {OPT.get('pb', 0)}")
    if OPT.get("fair", 1):
        a(f"s_cmp_lt_u32 s{sW}, 4")
        a(f"s_cbranch_scc1 A_pr0")
        a(f"s_setprio {1 + OPT.get('pb', 0)}")
        a.label("A_pr0")
    a(f"s_mov_b32 s{sIt}, 0")
    L_loop = "A_loop"
    a(".p2align 6")
    a.label(L_loop)
    def e(cur, i): a(f"v_exp_f32 v{cur+i}, v{cur+i}")
    def p(cur, k): a(f"v_cvt_pk_bf16_f32 v{P+k}, v{cur+2*k}, v{cur+2*k+1}")
    for t in range(8):
        cur, nxt = S[t % 2], S[(t+1) % 2]
        if t == OPT.get("tdrop", 4) and OPT.get("fair", 1):
            a(f"s_setprio {OPT.get('pb', 0)}")
        if t == 0:
            a(f"s_cmp_lg_u32 s{sW}, 7")
            a(f"s_cbranch_scc1 A_nf0")
            a(f"s_lshl_b32 s{sT}, s{sCk}, 11")
            a(f"s_add_u32 s{sT}, s{sT}, {FL_KV*128}")
            a(f"buffer_load_dword v{vFl}, v{vFlo}, s[{R_FL}:{R_FL+3}], s{sT} offen sc1")
            a.label("A_nf0")
        if t == 6:
            a("s_waitcnt vmcnt(0)")
            a(f"s_cmp_lg_u32 s{sW}, 7")
            a(f"s_cbranch_scc1 A_nf6")
            a(f"v_cmp_ne_u32 vcc, s{sTag}, v{vFl}")
            a("s_nop 1")
            a(f"s_cmp_eq_u64 vcc, 0")
            a(f"s_cbranch_scc1 A_nf6")
            a(f"s_lshl_b32 s{sT}, s{sCk}, 4")
            poll_flags(a, vT+2, "A7c", sT, 16, FL_KV, sleep=1)
            a.label("A_nf6")
            a("s_barrier")
            if OPT.get("fair", 1):
                a(f"s_cmp_lt_u32 s{sW}, 4")
                a(f"s_cbranch_scc1 A_pr6")
                a(f"s_setprio {1 + OPT.get('pb', 0)}")
                a.label("A_pr6")
            dma_chunk(sSlot)
            a(f"s_add_u32 s{sSlot}, s{sSlot}, {CH}")
            a(f"s_cmp_eq_u32 s{sSlot}, {3*CH}")
            a(f"s_cselect_b32 s{sSlot}, 0, s{sSlot}")
        e(cur, 0); e(cur, 1)
        a("s_waitcnt lgkmcnt(2)")
        a(f"v_mfma_f32_32x32x16_bf16 {vr(O,16)}, {vr(V2,4)}, {vr(P+4,4)}, {vr(O,16)}")
        rd_V2(t)
        e(cur, 2); e(cur, 3); p(cur, 0); p(cur, 1)
        qk1(nxt, CNR)
        rd_K1(t+2)
        e(cur, 4); e(cur, 5); e(cur, 6); e(cur, 7); p(cur, 2); p(cur, 3)
        a("s_waitcnt lgkmcnt(2)")
        qk2(nxt)
        rd_K2(t+2)
        e(cur, 8); e(cur, 9); e(cur, 10); e(cur, 11); p(cur, 4); p(cur, 5)
        a(f"v_mfma_f32_32x32x16_bf16 {vr(O,16)}, {vr(V1,4)}, {vr(P,4)}, {vr(O,16)}")
        rd_V1(t+1)
        e(cur, 12); e(cur, 13); e(cur, 14); e(cur, 15); p(cur, 6); p(cur, 7)
    a(f"v_mov_b32 v{aK1}, v{nK1}")
    a(f"v_mov_b32 v{aK2}, v{nK2}")
    a(f"v_mov_b32 v{aV}, v{nV}")
    a(f"s_add_u32 s{sT}, s{sSlot}, {2*CH}")
    a(f"s_cmp_ge_u32 s{sT}, {3*CH}")
    a(f"s_cselect_b32 s{sT2}, {3*CH}, 0")
    a(f"s_sub_u32 s{sT}, s{sT}, s{sT2}")
    a(f"v_add_u32 v{nK1}, s{sT}, v{vA16}")
    a(f"v_add_u32 v{nK2}, s{sT}, v{bK2}")
    a(f"v_add_u32 v{nV}, s{sT}, v{bV}")
    a(f"s_add_u32 s{sIt}, s{sIt}, 1")
    a(f"s_cmp_lt_u32 s{sIt}, 8")
    a(f"s_cbranch_scc1 {L_loop}")
    a("s_waitcnt lgkmcnt(0)")
    a(f"v_mfma_f32_32x32x16_bf16 {vr(O,16)}, {vr(V2,4)}, {vr(P+4,4)}, {vr(O,16)}")
    a("s_setprio 0")
    st.mark("loop")
    if OPT.get("diag"):
        a(f"s_cmp_lg_u32 s{sW}, 0"); Ld = a.newlabel("dg"); a(f"s_cbranch_scc1 {Ld}"); diag(a, 8); diag(a, 9, neg=True); a.label(Ld)
    a.nop(16)
    L_fin, L_slow = "A_fin", "A_slow"
    a(f"s_mov_b32 s{sIt}, 0")
    a.label(L_fin)
    a(f"v_mov_b32 v{vT}, v{O+8}")
    a(f"v_mov_b32 v{vT+1}, v{O+8}")
    a.nop(2)
    a(f"v_permlane32_swap_b32 v{vT}, v{vT+1}")
    a(f"v_max3_f32 v{vT+2}, |v{O}|, |v{O+1}|, |v{O+2}|")
    for j in range(3, 12, 2):
        j2 = min(j+1, 11)
        a(f"v_max3_f32 v{vT+2}, |v{O+j}|, |v{O+j2}|, v{vT+2}")
    a(f"v_mov_b32 v{vT+3}, {f32bits(2.0**120)}")
    a(f"v_cmp_nlt_f32 vcc, v{vT+2}, v{vT+3}")
    a(f"v_cmp_nlt_f32 s[62:63], 0, v{vT+1}")
    a.nop(1)
    a(f"s_or_b64 vcc, vcc, s[62:63]")
    a(f"s_cmp_eq_u64 vcc, 0")
    a(f"s_cbranch_scc1 A_store")
    a(f"s_cmp_lg_u32 s{sIt}, 0")
    a(f"s_cbranch_scc1 A_store")
    a(f"s_branch {L_slow}")
    a.label("A_store")
    a(f"v_rcp_f32 v{vT+2}, v{vT+1}")
    a.nop(1)
    for j in range(12): a(f"v_mul_f32 v{O+j}, v{O+j}, v{vT+2}")
    for k in range(6): a(f"v_cvt_pk_bf16_f32 v{P+k}, v{O+2*k}, v{O+2*k+1}")
    a(f"s_lshl_b32 s{sT}, s{sCG}, 3")
    a(f"s_add_u32 s{sT}, s{sT}, s{sW}")
    a(f"s_mul_i32 s{sT}, s{sT}, 20")
    a(f"s_mul_i32 s{sT2}, s{sRB}, {40*1024}")
    a(f"s_add_u32 s{sT2}, s{sT2}, {WS_OF}")
    def oaddr(dst, colv):
        a(f"v_lshrrev_b32 v{dst}, 4, v{colv}")
        a(f"v_lshlrev_b32 v{dst}, 10, v{dst}")
        a(f"v_bfe_u32 v{vT+7}, v{colv}, 3, 1")
        a(f"v_lshl_add_u32 v{dst}, v{vT+7}, 9, v{dst}")
        a(f"v_and_b32 v{vT+7}, 7, v{colv}")
        a(f"v_lshl_add_u32 v{dst}, v{vT+7}, 1, v{dst}")
        a(f"v_lshl_add_u32 v{dst}, v{vN}, 4, v{dst}")
    a(f"v_lshlrev_b32 v{vT+3}, 2, v{vH}")
    a(f"v_add_u32 v{vT+3}, s{sT}, v{vT+3}")
    oaddr(vT+4, vT+3)
    a(f"buffer_store_dwordx2 v[{P}:{P+1}], v{vT+4}, s[{R_WS}:{R_WS+3}], s{sT2} offen sc1")
    a(f"v_add_u32 v{vT+3}, 8, v{vT+3}")
    oaddr(vT+5, vT+3)
    a(f"buffer_store_dwordx2 v[{P+2}:{P+3}], v{vT+5}, s[{R_WS}:{R_WS+3}], s{sT2} offen sc1")
    a(f"s_add_u32 s{sT}, s{sT}, 16")
    a(f"v_mov_b32 v{vT+3}, s{sT}")
    oaddr(vT+6, vT+3)
    a(f"v_cmp_eq_u32 vcc, 0, v{vH}")
    a(f"s_and_saveexec_b64 s[62:63], vcc")
    a(f"buffer_store_dwordx2 v[{P+4}:{P+5}], v{vT+6}, s[{R_WS}:{R_WS+3}], s{sT2} offen sc1")
    a(f"s_mov_b64 exec, s[62:63]")
    tag_from_lds(a, vT)
    a("s_waitcnt vmcnt(0) lgkmcnt(0)")
    a(f"v_readfirstlane_b32 s{sTag}, v{vT+1}")
    a(f"s_lshl_b32 s{sT}, s{sRB}, 2")
    a(f"s_add_u32 s{sT}, s{sT}, s{sCG}")
    a(f"s_lshl_b32 s{sT}, s{sT}, 3")
    a(f"s_add_u32 s{sT}, s{sT}, s{sW}")
    set_flag(a, vT, sT, FL_O)
    st.end()
    a("s_endpgm")
    a.label(L_slow)
    a(f"v_mov_b32 v{vM2}, 0xff800000")
    a(f"s_mov_b32 s{sSoffK}, 0")
    a.label("A_slow1")
    a(f"buffer_load_dwordx4 {vr(K1,4)}, v{vA16}, s[{R_A}:{R_A+3}], s{sSoffK} offen sc1")
    a(f"buffer_load_dwordx2 {vr(K2,2)}, v{bK2}, s[{R_A}:{R_A+3}], s{sSoffK} offen sc1")
    a("s_waitcnt vmcnt(0)")
    qk1(S[0]); qk2(S[0])
    a.nop(16)
    for i in range(8):
        a(f"v_max3_f32 v{vM2}, v{S[0]+2*i}, v{S[0]+2*i+1}, v{vM2}")
    a(f"s_add_u32 s{sSoffK}, s{sSoffK}, {TS}")
    a(f"s_cmp_lt_u32 s{sSoffK}, {KVB}")
    a(f"s_cbranch_scc1 A_slow1")
    set_m(0.0)
    for i in range(16): a(f"v_mov_b32 v{O+i}, 0")
    a(f"s_mov_b32 s{sSoffK}, 0")
    a.label("A_slow2")
    a(f"buffer_load_dwordx4 {vr(K1,4)}, v{vA16}, s[{R_A}:{R_A+3}], s{sSoffK} offen sc1")
    a(f"buffer_load_dwordx2 {vr(K2,2)}, v{bK2}, s[{R_A}:{R_A+3}], s{sSoffK} offen sc1")
    a(f"buffer_load_dwordx4 {vr(V1,4)}, v{bV}, s[{R_A}:{R_A+3}], s{sSoffK} offen sc1")
    a(f"buffer_load_dwordx4 {vr(V2,4)}, v{bV}, s[{R_A}:{R_A+3}], s{sSoffK} offen offset:{VF} sc1")
    a("s_waitcnt vmcnt(0)")
    qk1(S[0], CNR); qk2(S[0])
    a.nop(16)
    for i in range(16): e(S[0], i)
    a.nop(1)
    for k in range(8): p(S[0], k)
    a.nop(2)
    a(f"v_mfma_f32_32x32x16_bf16 {vr(O,16)}, {vr(V1,4)}, {vr(P,4)}, {vr(O,16)}")
    a(f"v_mfma_f32_32x32x16_bf16 {vr(O,16)}, {vr(V2,4)}, {vr(P+4,4)}, {vr(O,16)}")
    a(f"s_add_u32 s{sSoffK}, s{sSoffK}, {TS}")
    a(f"s_cmp_lt_u32 s{sSoffK}, {KVB}")
    a(f"s_cbranch_scc1 A_slow2")
    a.nop(16)
    a(f"s_mov_b32 s{sIt}, 1")
    a(f"s_branch {L_fin}")

def role_B1(a):
    st = Stamps(a, "B")
    st.start()
    if OPT.get("bprio"): a(f"s_setprio {OPT['bprio']}")
    sG, sC = sRB, sCG
    sSoffW, sSoffX, sLdsW, sKH, sXb = 57, 58, 59, 60, 99
    vT = 4; vW = 10; vTr, vX16, vR = 13, 14, 15
    XS = 16; WF = 48; ACC = 76
    SLOT = 24576
    a(f"s_sub_u32 s{sT2}, s2, 256")
    a(f"s_bfe_u32 s{sG}, s{sT2}, 0x20001")
    a(f"s_lshl_b32 s{sG}, s{sG}, 2")
    a(f"s_bfe_u32 s{sT}, s{sT2}, 0x20003")
    a(f"s_add_u32 s{sG}, s{sG}, s{sT}")
    a(f"s_and_b32 s{sC}, s{sT2}, 1")
    a(f"s_lshl_b32 s{sC}, s{sC}, 3")
    a(f"s_lshr_b32 s{sT}, s{sT2}, 5")
    a(f"s_add_u32 s{sC}, s{sC}, s{sT}")
    a(f"s_lshr_b32 s{sKH}, s{sW}, 2")
    a(f"v_lshlrev_b32 v{vX16}, 4, v{vLane}")
    a(f"s_and_b32 s{sT}, s{sW}, 3")
    a(f"s_mul_i32 s{sT}, s{sT}, 192")
    a(f"s_mul_i32 s{sT2}, s{sC}, 192")
    a(f"s_mul_i32 s{sT3}, s{sKH}, {320*3072}")
    a(f"s_add_u32 s{sT2}, s{sT2}, s{sT3}")
    for i in range(3):
        a(f"v_add_u32 v{vT}, s{sT}, v{vLane}")
        if i: a(f"v_add_u32 v{vT}, {64*i}, v{vT}")
        a(f"v_mul_u32_u24 v{vT+1}, 5462, v{vT}")
        a(f"v_lshrrev_b32 v{vT+1}, 16, v{vT+1}")
        a(f"v_mul_u32_u24 v{vT+2}, 12, v{vT+1}")
        a(f"v_sub_u32 v{vT}, v{vT}, v{vT+2}")
        a(f"v_lshlrev_b32 v{vT}, 4, v{vT}")
        a(f"v_mul_u32_u24 v{vT+1}, 3072, v{vT+1}")
        a(f"v_add3_u32 v{vW+i}, v{vT}, v{vT+1}, s{sT2}")
        if i: a(f"v_subrev_u32 v{vW+i}, {1024*i}, v{vW+i}")
    a(f"s_mul_i32 s{sT}, s{sKH}, 12288")
    tr_addr(a, vTr, None, 192, 8, 4, sT, vT)
    a(f"s_mul_i32 s{sLdsW}, s{sW}, 3072")
    srd(a, R_A, S_W1, S_W1+1, 640*1536*2)
    srd(a, R_B, S_B1, S_B1+1, 1536*2)
    a(f"s_mul_hi_u32 s{sT}, s{sC}, {(1<<32)//5 + 1}")
    a(f"s_mul_i32 s{sT}, s{sT}, 5")
    a(f"s_sub_u32 s{sT}, s{sC}, s{sT}")
    a(f"s_mul_i32 s{sSoffW}, s{sT}, {64*3072}")
    a(f"s_lshl_b32 s{sSoffX}, s{sT}, 12")
    a(f"s_and_b32 s{sT}, s{sW}, 3")
    a(f"s_lshl_b32 s{sT2}, s{sG}, 2")
    a(f"s_add_u32 s{sT}, s{sT}, s{sT2}")
    a(f"s_mul_i32 s{sXb}, s{sT}, {40*1024}")
    a(f"s_mul_i32 s{sT2}, s{sKH}, {20*1024}")
    a(f"s_add_u32 s{sXb}, s{sXb}, s{sT2}")
    if WS_XF: a(f"s_add_u32 s{sXb}, s{sXb}, {WS_XF}")
    def issueW(c):
        a(f"s_add_u32 m0, s{sLdsW}, {(c%3)*SLOT}")
        a(f"s_add_u32 s{sT}, s{sSoffW}, {64*3072}")
        for i in range(3):
            a(f"buffer_load_dwordx4 v{vW+i}, s[{R_A}:{R_A+3}], s{sSoffW} offen offset:{1024*i} lds")
        a(f"s_cmp_eq_u32 s{sT}, {320*3072}")
        a(f"s_cselect_b32 s{sSoffW}, 0, s{sT}")
    def issueX(c):
        xs = XS + 16*(c % 2)
        a(f"s_add_u32 s{sT2}, s{sXb}, s{sSoffX}")
        a(f"s_add_u32 s{sT}, s{sSoffX}, 4096")
        for i in range(4):
            a(f"buffer_load_dwordx4 {vr(xs+4*i,4)}, v{vX16}, s[{R_WS}:{R_WS+3}], s{sT2} offen offset:{1024*i} sc1")
        a(f"s_cmp_eq_u32 s{sT}, 20480")
        a(f"s_cselect_b32 s{sSoffX}, 0, s{sT}")
    sJ = 96
    a(f"s_sub_u32 s{sJ}, s2, 256")
    a(f"s_cmp_lg_u32 s{sW}, 0")
    a(f"s_cbranch_scc1 B1_np")
    get_tag(a, vT, "B1")
    a(f"s_lshl_b32 s{sT}, s{sG}, 5")
    poll_flags(a, vT, "B1p", sT, 32, FL_D, tries=OPT.get("wftries", 1), sleep=OPT.get("dsleep", 8))
    a.label("B1_np")
    a("s_barrier")
    srd(a, R_C, S_W2, S_W2+1, 1536*640*2)
    a(f"v_lshrrev_b32 v92, 2, v{vLane}")
    a(f"v_mul_u32_u24 v92, 1280, v92")
    a(f"v_and_b32 v93, 3, v{vLane}")
    a(f"v_lshl_add_u32 v92, v93, 4, v92")
    a(f"s_lshl_b32 s{sT}, s{sW}, 10")
    a(f"s_add_u32 s{sT}, s{sT}, 73728")
    a(f"v_add_u32 v93, s{sT}, v{vX16}")
    tr_addr(a, 94, None, 64, 4, 8, sT, vT)
    tr_addr(a, 95, None, 64, 8, 4, sT, vT)
    sDst = [92, 93]; sStp = [94, 95]
    for rnd in range(2):
        Lskip = f"B1_wf{rnd}_skip"
        a(f"s_mov_b32 s{sStp[rnd]}, -1")
        if rnd == 1:
            a(f"s_cmp_ge_u32 s{sW}, 3")
            a(f"s_cbranch_scc1 {Lskip}")
        a(f"s_and_b32 s{sT}, s{sJ}, 63")
        a(f"s_mul_i32 s{sT}, s{sT}, 11")
        a(f"s_add_u32 s{sT}, s{sT}, s{sW}")
        if rnd: a(f"s_add_u32 s{sT}, s{sT}, 8")
        a(f"s_cmp_ge_u32 s{sT}, 680")
        a(f"s_cbranch_scc1 {Lskip}")
        a(f"s_mul_hi_u32 s{sT2}, s{sT}, {(1<<32)//136 + 1}")
        a(f"s_mul_i32 s{sT3}, s{sT2}, 136")
        a(f"s_sub_u32 s{sT}, s{sT}, s{sT3}")
        a(f"s_mov_b32 s{sStp[rnd]}, s{sT}")
        a(f"s_lshr_b32 s{sT3}, s{sJ}, 6")
        a(f"s_mul_i32 s{sT3}, s{sT3}, 5")
        a(f"s_add_u32 s{sT2}, s{sT2}, s{sT3}")
        a(f"s_mul_i32 s62, s{sT2}, 136")
        a(f"s_add_u32 s62, s62, s{sT}")
        a(f"s_lshl_b32 s62, s62, 10")
        a(f"s_add_u32 s{sDst[rnd]}, s62, {WS_WF}")
        a(f"s_lshl_b32 s{sT2}, s{sT2}, 6")
        a(f"s_cmp_lt_u32 s{sT}, 96")
        a(f"s_cselect_b32 s{R_C}, s{S_W2}, s{S_WO}")
        a(f"s_cselect_b32 s{R_C+1}, s{S_W2+1}, s{S_WO+1}")
        a(f"s_cselect_b32 s63, 0, 96")
        a(f"s_mov_b32 s{R_C+2}, {640*640*2}")
        a(f"s_cbranch_scc0 B1_wf{rnd}_a")
        a(f"s_mov_b32 s{R_C+2}, {1536*640*2}")
        a.label(f"B1_wf{rnd}_a")
        a(f"s_sub_u32 s{sT3}, s{sT}, s63")
        a(f"s_mul_i32 s{sT3}, s{sT3}, {16*1280}")
        a(f"s_add_u32 s{sT3}, s{sT3}, s{sT2}")
        a(f"buffer_load_dwordx4 v[{76+4*rnd}:{79+4*rnd}], v92, s[{R_C}:{R_C+3}], s{sT3} offen")
        a.label(Lskip)
    a("s_waitcnt vmcnt(0)")
    for rnd in range(2):
        Lskip = f"B1_wg{rnd}_skip"
        a(f"s_cmp_eq_u32 s{sStp[rnd]}, -1")
        a(f"s_cbranch_scc1 {Lskip}")
        a(f"ds_write_b128 v93, v[{76+4*rnd}:{79+4*rnd}]")
        a(f"s_cmp_lt_u32 s{sStp[rnd]}, 96")
        a(f"s_cbranch_scc0 B1_wf{rnd}_n")
        a(f"ds_read_b64_tr_b16 v[{84+4*rnd}:{85+4*rnd}], v94")
        a(f"ds_read_b64_tr_b16 v[{86+4*rnd}:{87+4*rnd}], v94 offset:512")
        a(f"s_branch B1_wf{rnd}_s")
        a.label(f"B1_wf{rnd}_n")
        a(f"ds_read_b64_tr_b16 v[{84+4*rnd}:{85+4*rnd}], v95")
        a(f"ds_read_b64_tr_b16 v[{86+4*rnd}:{87+4*rnd}], v95 offset:256")
        a.label(f"B1_wf{rnd}_s")
        a("s_waitcnt lgkmcnt(0)")
        a(f"buffer_store_dwordx4 v[{84+4*rnd}:{87+4*rnd}], v{vX16}, s[{R_WS}:{R_WS+3}], s{sDst[rnd]} offen sc1")
        a.label(Lskip)
    issued = []
    def iW(c): issueW(c); issued.extend([("W", c)]*3)
    if OPT.get("prefill", 0):
        for c in range(3): iW(c)
    a(f"s_cmp_lg_u32 s{sW}, 0")
    a(f"s_cbranch_scc1 B1_np2")
    a(f"s_lshl_b32 s{sT}, s{sG}, 5")
    poll_flags(a, vT, "B1", sT, 32, FL_D, sleep=OPT.get("dsleep", 8))
    if OPT.get("b1kv", 0): poll_flags(a, vT, "B1k", None, 128, FL_KV, sleep=OPT.get("ksleep", 4))
    a.label("B1_np2")
    a("s_barrier")
    a(f"s_cmp_lg_u32 s{sW}, 0")
    a(f"s_cbranch_scc1 B1_ntl")
    tag_to_lds(a, vT)
    a.label("B1_ntl")
    st.mark("wait_d")
    def iX(c): issueX(c); issued.extend([("X", c)]*4)
    if OPT.get("prefill", 0):
        iX(0)
        a("s_barrier")
        iX(1)
    elif OPT.get("b1shallow", 1):
        iW(0); iX(0)
    else:
        iW(0); iX(0)
        a("s_barrier")
        iW(1); iX(1)
        a("s_barrier")
        iW(2)
    def wreads(c, k, buf):
        base = (c % 3)*SLOT + k*16*192
        for ct in range(3):
            a(f"ds_read_b64_tr_b16 v[{WF+12*buf+4*ct}:{WF+12*buf+4*ct+1}], v{vTr} offset:{base + ct*64}")
            a(f"ds_read_b64_tr_b16 v[{WF+12*buf+4*ct+2}:{WF+12*buf+4*ct+3}], v{vTr} offset:{base + ct*64 + 4*192}")
    for c in range(5):
        last = max(i for i, e_ in enumerate(issued) if e_ in (("W", c), ("X", c)))
        a(f"s_waitcnt vmcnt({len(issued) - 1 - last})")
        a("s_barrier")
        if c == 0:
            st.mark("b0")
            a(f"s_cmp_lg_u32 s{sW}, 0")
            a(f"s_cbranch_scc1 B1_nofw")
            set_flag(a, vT, sJ, FL_W)
            a.label("B1_nofw")
        if OPT.get("b1shallow", 1) and not OPT.get("prefill", 0):
            if c + 1 < 5: iW(c + 1); iX(c + 1)
        elif 1 <= c <= 2: iW(c + 2)
        xs = XS + 16*(c % 2)
        wreads(c, 0, 0)
        for k in range(4):
            buf = k % 2
            if k < 3:
                wreads(c, k + 1, 1 - buf)
                a("s_waitcnt lgkmcnt(6)")
            else:
                a("s_waitcnt lgkmcnt(0)")
            for ct in range(3):
                cin = "0" if (c == 0 and k == 0) else vr(ACC+16*ct,16)
                a(f"v_mfma_f32_32x32x16_bf16 {vr(ACC+16*ct,16)}, {vr(WF+12*buf+4*ct,4)}, {vr(xs+4*k,4)}, {cin}")
        if c + 2 < 5 and (OPT.get("prefill", 0) or not OPT.get("b1shallow", 1)): iX(c + 2)
    st.mark("kloop")
    a("s_setprio 3")
    a(f"s_and_b32 s{sT}, s{sW}, 3")
    a(f"s_lshl_b32 s{sT2}, s{sG}, 2")
    a(f"s_add_u32 s{sT}, s{sT}, s{sT2}")
    a(f"s_lshl_b32 s{sT2}, s{sT}, 7")
    a(f"s_add_u32 s{sT2}, s{sT2}, {WS_R}")
    a(f"v_lshlrev_b32 v{vT}, 2, v{vN}")
    a(f"buffer_load_dword v{vR}, v{vT}, s[{R_WS}:{R_WS+3}], s{sT2} offen sc1")
    tag_from_lds(a, 72)
    a(f"s_mul_i32 s{sT2}, s{sC}, 192")
    a(f"s_lshl_b32 s{sT3}, s{sKH}, 5")
    a(f"s_add_u32 s{sT2}, s{sT2}, s{sT3}")
    a(f"v_lshlrev_b32 v{vT}, 3, v{vH}")
    B = XS
    for ct in range(3):
        for q in range(2):
            a(f"buffer_load_dwordx2 v[{B+4*ct+2*q}:{B+4*ct+2*q+1}], v{vT}, s[{R_B}:{R_B+3}], s{sT2} offen offset:{64*ct+16*q}")
    a(f"s_mul_i32 s{sT}, s{sT}, 96")
    a(f"s_mul_i32 s{sT2}, s{sC}, 6")
    a(f"s_add_u32 s{sT}, s{sT}, s{sT2}")
    a(f"s_add_u32 s{sT}, s{sT}, s{sKH}")
    a(f"s_lshl_b32 s{sXb}, s{sT}, 10")
    a(f"s_add_u32 s{sXb}, s{sXb}, {WS_H}")
    a("s_barrier")
    a.nop(4)
    T = XS + 16
    a(f"s_mul_i32 s{sT}, s{sW}, 6144")
    a(f"v_add_u32 v{vT+1}, s{sT}, v{vX16}")
    a(f"s_xor_b32 s{sT}, s{sW}, 4")
    a(f"s_mul_i32 s{sT}, s{sT}, 6144")
    a(f"v_add_u32 v{vT+2}, s{sT}, v{vX16}")
    a(f"s_cmp_eq_u32 s{sKH}, 1")
    a(f"s_cbranch_scc1 B1_x1")
    for ct in range(3):
        for q in range(2):
            a(f"ds_write_b128 v{vT+1}, {vr(ACC+16*ct+8+4*q,4)} offset:{(2*ct+q)*1024}")
    a(f"s_branch B1_x2")
    a.label("B1_x1")
    for ct in range(3):
        for q in range(2):
            a(f"ds_write_b128 v{vT+1}, {vr(ACC+16*ct+4*q,4)} offset:{(2*ct+q)*1024}")
    a.label("B1_x2")
    a("s_waitcnt lgkmcnt(0)")
    a("s_barrier")
    for i in range(6):
        a(f"ds_read_b128 {vr(T+4*i,4)}, v{vT+2} offset:{i*1024}")
    a("s_waitcnt lgkmcnt(0) vmcnt(0)")
    a(f"v_readfirstlane_b32 s{sTag}, v73")
    a(f"s_cmp_eq_u32 s{sKH}, 1")
    a(f"s_cbranch_scc1 B1_y1")
    for ct in range(3):
        for j in range(8): a(f"v_add_f32 v{T+8*ct+j}, v{T+8*ct+j}, v{ACC+16*ct+j}")
    a(f"s_branch B1_y2")
    a.label("B1_y1")
    for ct in range(3):
        for j in range(8): a(f"v_add_f32 v{T+8*ct+j}, v{T+8*ct+j}, v{ACC+16*ct+8+j}")
    a.label("B1_y2")
    TB = 56
    for ct in range(3):
        for q in range(2):
            b0 = B+4*ct+2*q
            acc = T+8*ct+4*q
            a(f"v_lshlrev_b32 v{TB}, 16, v{b0}")
            a(f"v_and_b32 v{TB+1}, 0xffff0000, v{b0}")
            a(f"v_lshlrev_b32 v{TB+2}, 16, v{b0+1}")
            a(f"v_and_b32 v{TB+3}, 0xffff0000, v{b0+1}")
            for j in range(4): a(f"v_fma_f32 v{acc+j}, v{acc+j}, v{vR}, v{TB+j}")
            for j in range(4): a(f"v_max_f32 v{acc+j}, 0, v{acc+j}")
            for j in range(4): a(f"v_mul_f32 v{acc+j}, v{acc+j}, v{acc+j}")
        for k in range(4):
            a(f"v_cvt_pk_bf16_f32 v{60+4*ct+k}, v{T+8*ct+2*k}, v{T+8*ct+2*k+1}")
    a(f"v_add_u32 v{vT}, 4096, v{vX16}")
    a(f"buffer_store_dwordx4 {vr(60,4)}, v{vX16}, s[{R_WS}:{R_WS+3}], s{sXb} offen sc1")
    a(f"buffer_store_dwordx4 {vr(64,4)}, v{vX16}, s[{R_WS}:{R_WS+3}], s{sXb} offen offset:2048 sc1")
    a(f"buffer_store_dwordx4 {vr(68,4)}, v{vT}, s[{R_WS}:{R_WS+3}], s{sXb} offen sc1")
    a(f"s_cmp_lg_u32 s{sW}, 6")
    a(f"s_cbranch_scc1 B1_nfw")
    a(f"s_sub_u32 s{sT}, s2, 256")
    a(f"s_and_b32 s{sT2}, s{sT}, 1")
    a(f"s_lshl_b32 s{sT2}, s{sT2}, 1")
    a(f"s_lshr_b32 s{sT}, s{sT}, 7")
    a(f"s_add_u32 s{sT}, s{sT}, s{sT2}")
    a(f"s_lshl_b32 s{sT}, s{sT}, 6")
    poll_flags(a, vT, "B2w", sT, 64, FL_W)
    a.label("B1_nfw")
    a("s_waitcnt vmcnt(0)")
    a("s_barrier")
    L_nf = "B1_nf"
    a(f"s_cmp_lg_u32 s{sW}, 0")
    a(f"s_cbranch_scc1 {L_nf}")
    a(f"s_lshl_b32 s{sT}, s{sG}, 4")
    a(f"s_add_u32 s{sT}, s{sT}, s{sC}")
    set_flag(a, vT, sT, FL_H)
    a.label(L_nf)
    st.mark("epi")
    a("s_setprio 0")
    return st

def role_B2(a, st):
    sSoffW, sSoffX, sWb, sIt, sRho, sWrapW, sRst = 57, 58, 59, 60, 61, 98, 99
    vT = 4
    vX16, vXa = 14, 15
    ACC = 16
    XR = 48
    WB = 64
    vOut = vT+3
    NXS = 8
    a(f"s_sub_u32 s{sT2}, s2, 256")
    a(f"s_bfe_u32 s{sRB}, s{sT2}, 0x20001")
    a(f"s_lshl_b32 s{sRB}, s{sRB}, 4")
    a(f"s_bfe_u32 s{sT}, s{sT2}, 0x40003")
    a(f"s_add_u32 s{sRB}, s{sRB}, s{sT}")
    a(f"s_and_b32 s{sCG}, s{sT2}, 1")
    a(f"s_lshl_b32 s{sCG}, s{sCG}, 1")
    a(f"s_lshr_b32 s{sT}, s{sT2}, 7")
    a(f"s_add_u32 s{sCG}, s{sCG}, s{sT}")
    a(f"v_lshlrev_b32 v{vX16}, 4, v{vLane}")
    a(f"s_and_b32 s{sRho}, s{sRB}, 7")
    a(f"s_min_u32 s{sT3}, s{sW}, 4")
    a(f"s_mul_i32 s{sT}, s{sCG}, 5")
    a(f"s_add_u32 s{sT}, s{sT}, s{sT3}")
    a(f"s_mul_i32 s{sWb}, s{sT}, {136*1024}")
    a(f"s_add_u32 s{sWb}, s{sWb}, {WS_WF}")
    a(f"s_lshl_b32 s{sT}, s{sT}, 6")
    srd(a, R_C, S_X, S_X+1, NX)
    a(f"s_lshl_b32 s{sT2}, s{sRB}, 5")
    a(f"v_add_u32 v{vT}, s{sT2}, v{vN}")
    a(f"v_mul_u32_u24 v{vT}, 1280, v{vT}")
    a(f"v_lshl_add_u32 v{vT}, v{vH}, 3, v{vT}")
    a(f"v_add_u32 v{vOut}, s{sT}, v{vT}")
    for q in range(4):
        a(f"buffer_load_dwordx2 v[{XR+2*q}:{XR+2*q+1}], v{vOut}, s[{R_C}:{R_C+3}], 0 offen offset:{16*q}")
    srd(a, R_C, S_B2, S_B2+1, 640*2)
    a(f"v_lshlrev_b32 v{vT}, 3, v{vH}")
    for q in range(4):
        a(f"buffer_load_dwordx2 v[{XR+8+2*q}:{XR+8+2*q+1}], v{vT}, s[{R_C}:{R_C+3}], s{sT} offen offset:{16*q}")
    for i in range(16): a(f"v_mov_b32 v{ACC+i}, 0")
    def unpack_add(q, dst):
        for (src, t) in ((XR+2*q, 32), (XR+8+2*q, 36)):
            a(f"v_lshlrev_b32 v{t}, 16, v{src}")
            a(f"v_and_b32 v{t+1}, 0xffff0000, v{src}")
            a(f"v_lshlrev_b32 v{t+2}, 16, v{src+1}")
            a(f"v_and_b32 v{t+3}, 0xffff0000, v{src+1}")
        for j in range(4): a(f"v_add_f32 v{32+j}, v{32+j}, v{36+j}")
        for j in range(4): a(f"v_add_f32 v{dst+j}, v{dst+j}, v{32+j}")
    L_side = "B2_side"
    a(f"s_cmp_ge_u32 s{sW}, 4")
    a(f"s_cbranch_scc1 {L_side}")
    a(f"s_lshl_b32 s{sSoffW}, s{sRho}, 13")
    a(f"s_mov_b32 s{sWrapW}, {96*1024}")
    a(f"s_mov_b32 s{sRst}, 0")
    def wload(r):
        a(f"s_add_u32 s{sT2}, s{sWb}, s{sSoffW}")
        a(f"s_add_u32 s{sT}, s{sSoffW}, 1024")
        a(f"buffer_load_dwordx4 {vr(r,4)}, v{vX16}, s[{R_WS}:{R_WS+3}], s{sT2} offen sc1")
        a(f"s_cmp_eq_u32 s{sT}, s{sWrapW}")
        a(f"s_cselect_b32 s{sSoffW}, s{sRst}, s{sT}")
    for k in range(16): wload(WB + 4*k)
    st.mark("setup")
    a("s_barrier")
    a(f"s_mov_b32 s{sIt}, 0")
    L1 = "B2_p1"
    a.label(L1)
    XBUF = 32
    for j in range(16):
        k = j % 8
        if k == 0:
            a("s_barrier")
            a(f"s_lshl_b32 s{sT}, s{sIt}, 1")
            if j: a(f"s_add_u32 s{sT}, s{sT}, 1")
            a(f"s_and_b32 s{sT}, s{sT}, {NXS-1}")
            a(f"s_lshl_b32 s{sT}, s{sT}, 13")
            a(f"v_add_u32 v{vXa}, s{sT}, v{vX16}")
            for i in range(3):
                a(f"ds_read_b128 {vr(XBUF+4*i,4)}, v{vXa} offset:{i*1024}")
        if j == 0:
            L1n = "B2_p1n"
            a(f"s_cmp_lg_u32 s{sIt}, 5")
            a(f"s_cbranch_scc1 {L1n}")
            a(f"s_mul_i32 s{sSoffW}, s{sRho}, {5*1024}")
            a(f"s_add_u32 s{sSoffW}, s{sSoffW}, {96*1024}")
            a(f"s_mov_b32 s{sWrapW}, {136*1024}")
            a(f"s_mov_b32 s{sRst}, {96*1024}")
            a.label(L1n)
        if k + 3 < 8:
            a(f"ds_read_b128 {vr(XBUF+4*((k+3)%4),4)}, v{vXa} offset:{(k+3)*1024}")
            a("s_waitcnt vmcnt(15) lgkmcnt(3)")
        else:
            a(f"s_waitcnt vmcnt(15) lgkmcnt({7-k})")
        a(f"v_mfma_f32_32x32x16_bf16 {vr(ACC,16)}, {vr(WB+4*j,4)}, {vr(XBUF+4*(k%4),4)}, {vr(ACC,16)}")
        wload(WB + 4*j)
    a(f"s_add_u32 s{sIt}, s{sIt}, 1")
    a(f"s_cmp_lt_u32 s{sIt}, 6")
    a(f"s_cbranch_scc1 {L1}")
    st.mark("ffn2")
    a.nop(12)
    for q in range(4): unpack_add(q, ACC+4*q)
    XBUF = XR
    NBLK = 20
    def blk(s_):
        b = s_ % NBLK
        return (WB + 4*b) if b < 16 else (32 + 4*(b-16))
    for s_ in range(16, 20): wload(blk(s_))
    a("s_barrier")
    a(f"s_branch B2_oload")
    a.label(L_side)
    a(f"s_sub_u32 s{sT3}, s{sW}, 4")
    a("s_waitcnt vmcnt(0)")
    for jj in range(1, 4):
        Ls = a.newlabel("B2_q")
        a(f"s_cmp_lg_u32 s{sT3}, {jj}")
        a(f"s_cbranch_scc1 {Ls}")
        a(f"v_mov_b32 v{XR}, v{XR+2*jj}")
        a(f"v_mov_b32 v{XR+1}, v{XR+2*jj+1}")
        a(f"v_mov_b32 v{XR+8}, v{XR+8+2*jj}")
        a(f"v_mov_b32 v{XR+9}, v{XR+8+2*jj+1}")
        a.label(Ls)
    for j in range(4): a(f"v_mov_b32 v{40+j}, 0")
    unpack_add(0, 40)
    a(f"s_lshl_b32 s{sRst}, s{sT3}, 11")
    a(f"s_lshl_b32 s{sSoffW}, s{sRho}, 13")
    a(f"s_add_u32 s{sSoffW}, s{sSoffW}, s{sRst}")
    a(f"s_add_u32 s{sWrapW}, s{sRst}, {96*1024}")
    SD = 4
    def wpair(slot):
        a(f"s_add_u32 s{sT2}, s{sWb}, s{sSoffW}")
        a(f"s_add_u32 s{sT}, s{sSoffW}, 8192")
        a(f"buffer_load_dwordx4 {vr(WB+8*slot,4)}, v{vX16}, s[{R_WS}:{R_WS+3}], s{sT2} offen sc1")
        a(f"buffer_load_dwordx4 {vr(WB+8*slot+4,4)}, v{vX16}, s[{R_WS}:{R_WS+3}], s{sT2} offen offset:1024 sc1")
        a(f"s_cmp_eq_u32 s{sT}, s{sWrapW}")
        a(f"s_cselect_b32 s{sSoffW}, s{sRst}, s{sT}")
    for c in range(SD): wpair(c)
    a(f"s_cmp_lg_u32 s{sW}, 7")
    a(f"s_cbranch_scc1 B2_nph")
    a(f"s_lshr_b32 s{sT}, s{sRB}, 2")
    a(f"s_lshl_b32 s{sT}, s{sT}, 4")
    poll_flags(a, vT, "B2h", sT, 16, FL_H, sleep=2)
    a.label("B2_nph")
    a("s_barrier")
    a(f"s_sub_u32 s{sT3}, s{sW}, 4")
    a(f"s_mul_i32 s{sT}, s{sRB}, {96*1024}")
    a(f"s_add_u32 s63, s{sT}, {WS_H}")
    a(f"s_lshl_b32 s97, s{sT3}, 11")
    a(f"s_add_u32 s63, s63, s97")
    a(f"s_lshl_b32 s{sSoffX}, s{sRho}, 13")
    a(f"v_add_u32 v{vT+5}, s97, v{vX16}")
    vXs = vT+5
    vm = Cnt(a, "vmcnt", 63)
    def xdma(c):
        a(f"s_add_u32 m0, s97, {(c % NXS)*8192}")
        a(f"s_add_u32 s{sT2}, s63, s{sSoffX}")
        a(f"s_add_u32 s{sT}, s{sSoffX}, 8192")
        for i in range(2):
            a(f"buffer_load_dwordx4 v{vX16}, s[{R_WS}:{R_WS+3}], s{sT2} offen offset:{1024*i} sc1 lds")
        a(f"s_cmp_eq_u32 s{sT}, {96*1024}")
        a(f"s_cselect_b32 s{sSoffX}, 0, s{sT}")
        vm.issue(("X", c), 2)
    for c in range(SD): vm.issue(("W", c), 2)
    XD = 6
    for c in range(XD): xdma(c)
    for c in range(12):
        vm.need(("X", c), ("W", c))
        a("s_barrier")
        if c + XD < 12: xdma(c + XD)
        for i in range(2):
            a(f"ds_read_b128 {vr(48+4*i,4)}, v{vXs} offset:{(c % NXS)*8192 + 1024*i}")
        a("s_waitcnt lgkmcnt(1)")
        a(f"v_mfma_f32_32x32x16_bf16 {vr(ACC,16)}, {vr(WB+8*(c%4),4)}, {vr(48,4)}, {vr(ACC,16)}")
        a("s_waitcnt lgkmcnt(0)")
        a(f"v_mfma_f32_32x32x16_bf16 {vr(ACC,16)}, {vr(WB+8*(c%4)+4,4)}, {vr(52,4)}, {vr(ACC,16)}")
        if c + SD < 12: wpair(c % 4); vm.issue(("W", c + SD), 2)
    a(f"s_sub_u32 s{sT3}, s{sW}, 4")
    a(f"s_lshl_b32 s{sT3}, s{sT3}, 1")
    a(f"s_mul_i32 s62, s{sRho}, 5")
    a(f"s_add_u32 s62, s62, s{sT3}")
    for m in range(5):
        for i in range(2):
            a(f"s_add_u32 s{sT}, s62, {8*m+i}")
            a(f"s_cmp_ge_u32 s{sT}, 40")
            a(f"s_cselect_b32 s{sT2}, 40, 0")
            a(f"s_sub_u32 s{sT}, s{sT}, s{sT2}")
            a(f"s_add_u32 s{sT}, s{sT}, 96")
            a(f"s_lshl_b32 s{sT}, s{sT}, 10")
            a(f"s_add_u32 s{sT}, s{sT}, s{sWb}")
            a(f"buffer_load_dwordx4 {vr(WB+4*(2*m+i),4)}, v{vX16}, s[{R_WS}:{R_WS+3}], s{sT} offen sc1")
    Lnp2 = "B2_np2"
    a(f"s_cmp_lg_u32 s{sW}, 7")
    a(f"s_cbranch_scc1 {Lnp2}")
    a(f"s_lshl_b32 s{sT}, s{sRB}, 5")
    poll_flags(a, vT, "B2o", sT, 32, FL_O, sleep=OPT.get("osleep", 2))
    a.label(Lnp2)
    st.mark("wait_o")
    a("s_barrier")
    a.label("B2_oload")
    a(f"s_mul_i32 s63, s{sRB}, {40*1024}")
    a(f"s_add_u32 s63, s63, {WS_OF}")
    a(f"s_mul_i32 s62, s{sRho}, 5")
    for i in range(5):
        a(f"s_mul_i32 s{sT}, s{sW}, 5")
        a(f"s_add_u32 s{sT}, s{sT}, {i}")
        a(f"s_add_u32 s{sT2}, s{sT}, s62")
        a(f"s_cmp_ge_u32 s{sT2}, 40")
        a(f"s_cselect_b32 s{sIt}, 40, 0")
        a(f"s_sub_u32 s{sT2}, s{sT2}, s{sIt}")
        a(f"s_lshl_b32 s{sT2}, s{sT2}, 10")
        a(f"s_add_u32 s{sT2}, s{sT2}, s63")
        a(f"s_lshl_b32 m0, s{sT}, 10")
        a("s_nop 0")
        a(f"buffer_load_dwordx4 v{vX16}, s[{R_WS}:{R_WS+3}], s{sT2} offen sc1 lds")
    a("s_waitcnt vmcnt(0)")
    a("s_barrier")
    st.mark("oload")
    a(f"s_cmp_ge_u32 s{sW}, 4")
    a(f"s_cbranch_scc1 B2_side2")
    vm = Cnt(a, "vmcnt", 63); lg = Cnt(a, "lgkmcnt", 15)
    def xread(s_):
        r = XBUF + 4*(s_ % 4)
        a(f"ds_read_b128 {vr(r,4)}, v{vX16} offset:{s_*1024}")
        lg.issue(("X", s_))
    for s_ in range(3): xread(s_)
    for s_ in range(40):
        if s_ + 3 < 40: xread(s_ + 3)
        vm.need(("W", s_))
        lg.need(("X", s_))
        a(f"v_mfma_f32_32x32x16_bf16 {vr(ACC,16)}, {vr(blk(s_),4)}, {vr(XBUF+4*(s_%4),4)}, {vr(ACC,16)}")
        if s_ + NBLK < 40:
            wload(blk(s_)); vm.issue(("W", s_ + NBLK))
    st.mark("wo")
    a("s_setprio 3")
    a("s_barrier")
    a.nop(10)
    srd(a, R_C, S_OUT, S_OUT+1, NX)
    for q in range(4):
        a(f"v_cvt_pk_bf16_f32 v{32+2*q}, v{ACC+4*q}, v{ACC+4*q+1}")
        a(f"v_cvt_pk_bf16_f32 v{33+2*q}, v{ACC+4*q+2}, v{ACC+4*q+3}")
        a(f"buffer_store_dwordx2 v[{32+2*q}:{33+2*q}], v{vOut}, s[{R_C}:{R_C+3}], 0 offen offset:{16*q}")
    a("s_barrier")
    st.end()
    a("s_endpgm")
    a.label("B2_side2")
    for k in range(4):
        a(f"ds_read_b128 {vr(48+4*k,4)}, v{vXs} offset:{(8*(k//2)+(k%2))*1024}")
    for k in range(10):
        a(f"s_waitcnt lgkmcnt({min(3, 9-k)})")
        a(f"v_mfma_f32_32x32x16_bf16 {vr(ACC,16)}, {vr(WB+4*k,4)}, {vr(48+4*(k%4),4)}, {vr(ACC,16)}")
        if k + 4 < 10:
            a(f"ds_read_b128 {vr(48+4*(k%4),4)}, v{vXs} offset:{(8*((k+4)//2)+((k+4)%2))*1024}")
    a("s_setprio 3")
    a("s_barrier")
    a.nop(12)
    a(f"s_sub_u32 s{sT3}, s{sW}, 4")
    a(f"s_lshl_b32 s{sT}, s{sT3}, 12")
    a(f"v_add_u32 v{vT}, s{sT}, v{vX16}")
    for q in range(4):
        a(f"ds_write_b128 v{vT}, {vr(ACC+4*q,4)} offset:{q*1024}")
    a("s_waitcnt lgkmcnt(0)")
    a("s_barrier")
    a(f"s_lshl_b32 s{sT}, s{sT3}, 10")
    a(f"v_add_u32 v{vT}, s{sT}, v{vX16}")
    for jj in range(4):
        a(f"ds_read_b128 {vr(ACC+4*jj,4)}, v{vT} offset:{jj*4096}")
    a(f"s_lshl_b32 s{sT}, s{sT3}, 4")
    a(f"v_add_u32 v{vOut}, s{sT}, v{vOut}")
    srd(a, R_C, S_OUT, S_OUT+1, NX)
    a("s_waitcnt lgkmcnt(0)")
    for j in range(4):
        a(f"v_add_f32 v{ACC+j}, v{ACC+j}, v{ACC+4+j}")
        a(f"v_add_f32 v{ACC+8+j}, v{ACC+8+j}, v{ACC+12+j}")
    for j in range(4): a(f"v_add_f32 v{ACC+j}, v{ACC+j}, v{40+j}")
    for j in range(4): a(f"v_add_f32 v{ACC+j}, v{ACC+j}, v{ACC+8+j}")
    a(f"v_cvt_pk_bf16_f32 v32, v{ACC}, v{ACC+1}")
    a(f"v_cvt_pk_bf16_f32 v33, v{ACC+2}, v{ACC+3}")
    a(f"buffer_store_dwordx2 v[32:33], v{vOut}, s[{R_WS if False else R_C}:{R_C+3}], 0 offen")
    st.end()
    a("s_endpgm")

HEADER = """; out = x + MQA-attention(LN(x)) @ wo + FFN_relu2(LN(x))  -- one launch, two workgroup roles (8 waves each, 2 workgroups per CU).
"""

def gen():
    a = Asm()
    a("s_cmp_ge_u32 s2, 512")
    a("s_cbranch_scc1 K_end")
    a("s_load_dwordx16 s[4:19], s[0:1], 0")
    a("s_load_dwordx8 s[20:27], s[0:1], 64")
    a("s_load_dwordx2 s[28:29], s[0:1], 96")
    a(f"v_and_b32 v{vLane}, 63, v0")
    a(f"v_lshrrev_b32 v4, 6, v0")
    a(f"v_lshrrev_b32 v{vH}, 5, v{vLane}")
    a(f"v_readfirstlane_b32 s{sW}, v4")
    a(f"v_and_b32 v{vN}, 31, v{vLane}")
    a("s_cmp_ge_u32 s2, 256")
    a("s_cbranch_scc1 ROLE_B")
    role_A(a)
    a.label("ROLE_B")
    a("s_waitcnt lgkmcnt(0)")
    common_init(a)
    a("v_mov_b32 v4, 0"); a("v_mov_b32 v5, 0")
    n0 = len(a.lines)
    st = role_B1(a)
    role_B2(a, st)
    if OPT.get("mprio"):
        out = a.lines[:n0]; L = a.lines[n0:]; i = 0; cur = 0
        while i < len(L):
            if "s_setprio" in L[i]: cur = int(L[i].split()[-1])
            if "v_mfma" in L[i] and cur == 0:
                j = i
                while j < len(L) and "v_mfma" in L[j]: j += 1
                out.append(f"  s_setprio {OPT['mprio']}"); out += L[i:j]; out.append("  s_setprio 0"); i = j
            else:
                out.append(L[i]); i += 1
        a.lines = out
    a.label("K_end")
    a("s_endpgm")
    grid = OPT.get("grid", 512)
    s = f"; @launch grid=({grid},1,1) block=(512,1,1) lds={LDS_BYTES}\n" + HEADER
    s += '.amdgcn_target "amdgcn-amd-amdhsa--gfx950"\n.text\n'
    s += kernel_header(KN) + a.text()
    s += '.section .rodata,"a"\n.p2align 6\n' + kernel_desc(KN, 128, 102)
    return s

if __name__ == "__main__":
    if "--prof" in sys.argv: PROF = True
    for x in sys.argv:
        if x.startswith("-D"):
            k, _, v = x[2:].partition("="); OPT[k] = int(v) if v else 1
    open(sys.argv[1], "w").write(gen())
    if PROF: json.dump(STAMP_NAMES, open("stamps9.json", "w"))
```

```python
import sys, math, json
from asmlib import *

NAME = "parallel_sum__grouped_kv_mqa__dense_activation_squared_relu__prompt"
KN = NAME + "_kernel"
WS_XF = 0x0
WS_R  = 0x280000
WS_KV = 0x290000
WS_OF = 0x2D0000
WS_H  = 0x550000
WS_FL = 0xB50000
WS_WF = 0xBC0000
WS_END = 0xE70000
WS_DBG = 0x2000000
FL_KV, FL_D, FL_H, FL_W, FL_O = 0, 128, 640, 896, 1152
FL_N = 3200
FL_SIZE = FL_N * 128
NX = 2048 * 640 * 2
TS = 2688
VF = 704; VH = 352
KVB = 64 * TS
CH = 8 * TS
QSCALE = (20 ** -0.5) * math.log2(math.e)
DELTA = 96.0
LDS_BYTES = 81920
PROF = False
OPT = {}
SPIN_MAX = 200063

S_X, S_WQ, S_WK, S_WV, S_WO, S_W1, S_B1, S_W2, S_B2, S_OUT, S_DBG, S_WS = 4, 6, 8, 10, 12, 16, 18, 20, 22, 24, 26, 28
sW = 30
sTag = 31
R_WS = 32
R_FL = 36
R_A = 40
R_B = 44
R_C = 48
sRB, sCG, sT, sT2, sT3 = 52, 53, 54, 55, 56
vLane, vH, vN = 1, 2, 3

def diag(a, word, neg=False, va=74):
    if not OPT.get("diag") or neg: return
    L = a.newlabel("dgx")
    a(f"s_and_b32 s86, s2, 255")
    a(f"s_cmp_lg_u32 s86, {OPT.get('diagwg', 37)}")
    a(f"s_cbranch_scc1 {L}")
    a("s_memrealtime s[84:85]")
    a("s_waitcnt lgkmcnt(0)")
    a("s_mov_b64 s[86:87], exec")
    a("s_mov_b64 exec, 1")
    a(f"v_mov_b32 v{va}, s84")
    a(f"v_mov_b32 v{va+1}, {4*word}")
    a(f"global_store_dword v{va+1}, v{va}, s[{S_DBG}:{S_DBG+1}]")
    a("s_mov_b64 exec, s[86:87]")
    a.label(L)

class Stamps:
    def __init__(self, a, role): self.a = a; self.n = 1; self.names = []; self.role = role
    def start(self):
        if not PROF: return
        for i in range(68, 94): self.a(f"s_mov_b32 s{i}, 0")
        self.a("s_memrealtime s[64:65]"); self.a("s_memtime s[66:67]"); self.a("s_waitcnt lgkmcnt(0)"); self.n = 2
    def mark(self, name):
        if not PROF: return
        assert self.n < 15
        self.a(f"s_memtime s[{64+2*self.n}:{65+2*self.n}]"); self.a("s_waitcnt lgkmcnt(0)")
        self.n += 1; self.names.append(name)
    def end(self):
        if not PROF: return
        a = self.a
        a("s_waitcnt vmcnt(0)")
        self.mark("final-drain")
        a("s_memrealtime s[94:95]"); a("s_waitcnt lgkmcnt(0)")
        a("s_mov_b64 exec, 1")
        a(f"s_lshl_b32 s98, s2, 3")
        a(f"s_add_u32 s98, s98, s{sW}")
        a(f"s_lshl_b32 s98, s98, 6")
        a(f"s_add_u32 s98, s98, {WS_DBG}")
        a(f"s_add_u32 s96, s{S_WS}, s98")
        a(f"s_addc_u32 s97, s{S_WS+1}, 0")
        a(f"v_mov_b32 v0, 0")
        for i in list(range(14)) + [15]:
            a(f"v_mov_b32 v1, s{64+2*i}")
            a(f"global_store_dword v0, v1, s[96:97] offset:{4*i}")
        a(f"v_mov_b32 v1, {self.n}")
        a(f"global_store_dword v0, v1, s[96:97] offset:56")
        a("s_waitcnt vmcnt(0)")
        STAMP_NAMES[self.role] = self.names
STAMP_NAMES = {}

def bf16_round(a, dst, src):
    a(f"v_cvt_pk_bf16_f32 v{dst}, v{src}, v{src}")
    a(f"v_lshlrev_b32 v{dst}, 16, v{dst}")

def decode_rb_cg(a, j):
    a(f"s_lshr_b32 s{sCG}, s{j}, 6")
    a(f"s_and_b32 s{sRB}, s{j}, 7")
    a(f"s_lshl_b32 s{sRB}, s{sRB}, 3")
    a(f"s_bfe_u32 s{sT}, s{j}, 0x30003")
    a(f"s_add_u32 s{sRB}, s{sRB}, s{sT}")

TAG_AGE = 2000
TAGL = 81904
def get_tag(a, vt, lab, have=False):
    L = f"{lab}_tag"
    a(f"s_mov_b32 s{sT3}, {SPIN_MAX}")
    a(f"v_mov_b32 v{vt}, 0")
    if have:
        a(f"s_cmp_lg_u32 s{sTag}, 0")
        a(f"s_cbranch_scc1 {L}_val")
    a.label(L)
    a(f"global_load_dword v{vt+1}, v{vt}, s[{S_DBG}:{S_DBG+1}] sc1")
    a("s_waitcnt vmcnt(0)")
    a(f"v_readfirstlane_b32 s{sTag}, v{vt+1}")
    a(f"s_sub_u32 s{sT3}, s{sT3}, 1")
    a(f"s_cmp_eq_u32 s{sT3}, 0")
    a(f"s_cbranch_scc1 {L}_done")
    a(f"s_cmp_eq_u32 s{sTag}, 0")
    a(f"s_cbranch_scc0 {L}_val")
    a(f"s_and_b32 s62, s{sT3}, 31")
    a(f"s_cmp_eq_u32 s62, 0")
    a(f"s_cbranch_scc1 {L}_atom")
    a("s_sleep 1")
    a(f"s_branch {L}")
    a.label(f"{L}_val")
    a("s_memrealtime s[62:63]")
    a("s_waitcnt lgkmcnt(0)")
    a(f"s_sub_u32 s62, s62, s{sTag}")
    a(f"s_cmp_lt_u32 s62, {TAG_AGE}")
    a(f"s_cbranch_scc1 {L}_done")
    a.label(f"{L}_atom")
    a("s_mov_b64 s[62:63], exec")
    a("s_mov_b64 exec, 1")
    a(f"v_mov_b32 v{vt+1}, 0")
    a(f"global_atomic_add v{vt+1}, v{vt}, v{vt+1}, s[{S_DBG}:{S_DBG+1}] sc0 sc1")
    a("s_mov_b64 exec, s[62:63]")
    a("s_waitcnt vmcnt(0)")
    a(f"v_readfirstlane_b32 s{sTag}, v{vt+1}")
    a(f"s_cmp_eq_u32 s{sTag}, 0")
    a(f"s_cbranch_scc0 {L}_done")
    a(f"s_sub_u32 s{sT3}, s{sT3}, 1")
    a(f"s_cmp_eq_u32 s{sT3}, 0")
    a(f"s_cbranch_scc1 {L}_done")
    a("s_sleep 1")
    a(f"s_branch {L}")
    a.label(f"{L}_done")

def tag_to_lds(a, vt):
    a(f"v_mov_b32 v{vt}, {TAGL}")
    a(f"v_mov_b32 v{vt+1}, s{sTag}")
    a(f"ds_write_b32 v{vt}, v{vt+1}")

def tag_from_lds(a, vt):
    a(f"v_mov_b32 v{vt}, {TAGL}")
    a(f"ds_read_b32 v{vt+1}, v{vt}")

def poll_flags(a, vt, lab, s_idx, nflags, region, tries=None, sleep=None):
    if nflags == 128:
        poll_flags(a, vt, lab + "a", None, 64, region, tries, sleep)
        poll_flags(a, vt, lab + "b", None, 64, region + 64, tries, sleep)
        return
    L = f"{lab}_poll"
    a(f"v_lshlrev_b32 v{vt}, 7, v{vLane}")
    if s_idx is None:
        a(f"s_mov_b32 s63, {region*128}")
    else:
        a(f"s_lshl_b32 s63, s{s_idx}, 7")
        if region: a(f"s_add_u32 s63, s63, {region*128}")
    a(f"s_mov_b32 s{sT3}, {tries or SPIN_MAX}")
    a("s_mov_b64 s[100:101], exec")
    if nflags < 64:
        a(f"s_mov_b32 exec_lo, {(1 << min(nflags, 32)) - 1 if nflags < 32 else -1}")
        a(f"s_mov_b32 exec_hi, {((1 << (nflags - 32)) - 1) if nflags > 32 else 0}")
    a.label(L)
    a(f"s_and_b32 s62, s{sT3}, 63")
    a(f"s_cmp_eq_u32 s62, 0")
    a(f"s_cbranch_scc1 {L}_atom")
    a(f"buffer_load_dword v{vt+1}, v{vt}, s[{R_FL}:{R_FL+3}], s63 offen sc1")
    a(f"s_branch {L}_got")
    a.label(f"{L}_atom")
    a(f"v_mov_b32 v{vt+1}, 0")
    a(f"buffer_atomic_add v{vt+1}, v{vt}, s[{R_FL}:{R_FL+3}], s63 offen sc0 sc1")
    a.label(f"{L}_got")
    a("s_waitcnt vmcnt(0)")
    a(f"v_cmp_ne_u32 vcc, s{sTag}, v{vt+1}")
    a("s_nop 1")
    a(f"s_and_b64 exec, exec, vcc")
    a(f"s_cbranch_execz {L}_done")
    a(f"s_sub_u32 s{sT3}, s{sT3}, 1")
    a(f"s_cmp_eq_u32 s{sT3}, 0")
    a(f"s_cbranch_scc1 {L}_done")
    a(f"s_sleep {sleep if sleep is not None else OPT.get('sleep', 6)}")
    a(f"s_branch {L}")
    a.label(f"{L}_done")
    a("s_mov_b64 exec, s[100:101]")

def set_flag(a, vt, s_idx, region):
    a(f"v_mov_b32 v{vt}, s{sTag}")
    a(f"v_mov_b32 v{vt+1}, 0")
    a(f"s_lshl_b32 s63, s{s_idx}, 7")
    if region: a(f"s_add_u32 s63, s63, {region*128}")
    a("s_mov_b64 s[100:101], exec")
    a("s_mov_b64 exec, 1")
    a(f"buffer_store_dword v{vt}, v{vt+1}, s[{R_FL}:{R_FL+3}], s63 offen sc1")
    a("s_mov_b64 exec, s[100:101]")

def tr_addr(a, dst, dst2, pitch, hrows, second_rows, s_base, t):
    a(f"v_bfe_u32 v{t}, v{vLane}, 2, 2")
    a(f"v_mul_u32_u24 v{t+1}, {hrows}, v{vH}")
    a(f"v_add_u32 v{t}, v{t}, v{t+1}")
    a(f"v_bfe_u32 v{t+1}, v{vLane}, 4, 1")
    a(f"v_and_b32 v{t+2}, 3, v{vLane}")
    a(f"v_lshlrev_b32 v{t+2}, 3, v{t+2}")
    a(f"v_lshl_add_u32 v{t+1}, v{t+1}, 5, v{t+2}")
    a(f"v_mul_u32_u24 v{dst}, {pitch}, v{t}")
    a(f"v_add3_u32 v{dst}, v{dst}, v{t+1}, s{s_base}")
    if dst2 is not None:
        a(f"v_add_u32 v{dst2}, {second_rows*pitch}, v{dst}")

def common_init(a, skip_a=False):
    srd(a, R_WS, S_WS, S_WS+1, WS_END)
    srd(a, R_FL, S_WS, S_WS+1, FL_SIZE, WS_FL)
    for r in ((R_B, R_C) if skip_a else (R_A, R_B, R_C)): srd(a, r, S_WS, S_WS+1, WS_END)
    for i in range(6, 16): a(f"v_mov_b32 v{i}, 0")

def role_A(a):
    OPT["nopre0"] = 1
    st = Stamps(a, "A")
    st.start()
    XB = 0; XP = 1056; XH = 528; RBUF = 42240
    RING = 42496; NSTG = 3; RW = NSTG*1024; DEPTH = 16
    KSTG = 57856
    KVX = 67072
    LFL = XB + 512
    LFL2 = XB + 1040
    T4F = 75264
    SB = [0, 16384, 32768, 49152]
    QBUF = 65536; QP = 328
    sStep, sSoff, sLds, sRho, sWrap, sIt = 57, 58, 59, 60, 61, 57
    sExp, sFD = 95, 94
    vT = 4
    vVo, vTr, vTr2, vX16 = 12, 13, 14, 15
    X = 16
    TMP = 36
    vSum, vSq, vM = 52, 53, 54
    vOne, vSelLo, vSelHi = 56, 57, 58
    vR, vXa, vWst, vTag = 9, 10, 11, 61
    ACC = 16; FB = 32; WS_ = 64
    a(f"s_mov_b32 s{sT2}, s2")
    decode_rb_cg(a, sT2)
    a(f"s_lshl_b32 s{sT}, s{sRB}, 5")
    a(f"s_lshl_b32 s{sT2}, s{sW}, 2")
    a(f"s_add_u32 s{sT}, s{sT}, s{sT2}")
    a(f"v_lshrrev_b32 v{vT}, 4, v{vLane}")
    a(f"v_add_u32 v{vT}, s{sT}, v{vT}")
    a(f"v_mul_u32_u24 v{vT}, 1280, v{vT}")
    a(f"v_and_b32 v{vT+1}, 15, v{vLane}")
    a(f"v_lshl_add_u32 v{vT}, v{vT+1}, 4, v{vT}")
    a("s_waitcnt lgkmcnt(0)")
    srd(a, R_A, S_X, S_X+1, NX)
    for i in range(5):
        a(f"buffer_load_dwordx4 {vr(X+4*i,4)}, v{vT}, s[{R_A}:{R_A+3}], 0 offen offset:{256*i}")
    common_init(a, skip_a=True)
    L_notag = "A_notag"
    a(f"s_cmp_lg_u32 s2, 0")
    a(f"s_cbranch_scc1 {L_notag}")
    a(f"s_cmp_lg_u32 s{sW}, 0")
    a(f"s_cbranch_scc1 {L_notag}")
    a(f"s_memrealtime s[62:63]")
    a("s_waitcnt lgkmcnt(0)")
    a(f"s_or_b32 s62, s62, 1")
    a(f"v_mov_b32 v{vT+2}, s62")
    a(f"v_mov_b32 v{vT+3}, 0")
    a("s_mov_b64 exec, 1")
    a(f"global_store_dword v{vT+3}, v{vT+2}, s[{S_DBG}:{S_DBG+1}] sc1")
    a("s_mov_b64 exec, -1")
    a.label(L_notag)
    a(f"v_lshlrev_b32 v{vX16}, 4, v{vLane}")
    a(f"s_and_b32 s{sRho}, s{sRB}, 7")
    L_nowe = "A_nowe"
    a(f"s_cmp_lt_u32 s{sW}, 5")
    a(f"s_cbranch_scc1 {L_nowe}")
    a(f"s_cmp_ge_u32 s{sCG}, 2")
    a(f"s_cbranch_scc1 {L_nowe}")
    a(f"s_cmp_eq_u32 s{sCG}, 1")
    a(f"s_cselect_b32 s{R_B}, s{S_WV}, s{S_WK}")
    a(f"s_cselect_b32 s{R_B+1}, s{S_WV+1}, s{S_WK+1}")
    a(f"s_mov_b32 s{R_B+2}, {640*20*2}")
    a(f"s_mov_b32 s{R_B+3}, 0x00020000")
    a(f"s_sub_u32 s{sT}, s{sW}, 5")
    a(f"s_mul_i32 s{sStep}, s{sT}, 13")
    a(f"s_min_u32 s{sT}, s{sT}, 1")
    a(f"s_add_u32 s{sStep}, s{sStep}, s{sT}")
    a(f"s_mul_i32 s{sT}, s{sRho}, 5")
    a(f"s_add_u32 s{sT2}, s{sStep}, s{sT}")
    a(f"s_cmp_ge_u32 s{sT2}, 40")
    a(f"s_cselect_b32 s{sT}, 40, 0")
    a(f"s_sub_u32 s{sT2}, s{sT2}, s{sT}")
    a(f"s_mul_i32 s{sSoff}, s{sT2}, 640")
    for i in range(14):
        a(f"s_add_u32 s{sT}, s{sSoff}, 640")
        a(f"buffer_load_dwordx4 {vr(WS_+4*i,4)}, v{vX16}, s[{R_B}:{R_B+3}], s{sSoff} offen")
        a(f"s_cmp_eq_u32 s{sT}, 25600")
        a(f"s_cselect_b32 s{sSoff}, 0, s{sT}")
    a.label(L_nowe)
    a("s_barrier")
    L_nq = "A_nq"
    a(f"s_cmp_ge_u32 s{sW}, 5")
    a(f"s_cbranch_scc1 {L_nq}")
    srd(a, R_B, S_WQ, S_WQ+1, 640*640*2)
    a(f"v_lshrrev_b32 v{vT}, 2, v{vLane}")
    a(f"v_mul_u32_u24 v{vT}, 1280, v{vT}")
    a(f"v_and_b32 v{vT+1}, 3, v{vLane}")
    a(f"v_lshl_add_u32 v{vT}, v{vT+1}, 4, v{vT}")
    a(f"s_mul_i32 s{sT}, s{sCG}, 320")
    a(f"s_lshl_b32 s{sT2}, s{sW}, 6")
    a(f"s_add_u32 s{sT}, s{sT}, s{sT2}")
    a(f"v_add_u32 v{vVo}, s{sT}, v{vT}")
    a(f"s_mul_i32 s{sLds}, s{sW}, {RW}")
    a(f"s_add_u32 s{sLds}, s{sLds}, {RING}")
    a(f"s_mul_i32 s{sSoff}, s{sRho}, {5*20480}")
    def wload(k):
        d = WS_ + 4*(k % DEPTH)
        a(f"s_add_u32 s{sT}, s{sSoff}, 20480")
        a(f"buffer_load_dwordx4 {vr(d,4)}, v{vVo}, s[{R_B}:{R_B+3}], s{sSoff} offen")
        a(f"s_cmp_eq_u32 s{sT}, {40*20480}")
        a(f"s_cselect_b32 s{sSoff}, 0, s{sT}")
    NW0 = OPT.get("NW0", 8)
    for k in range(NW0): wload(k)
    tr_addr(a, vTr, vTr2, 64, 8, 4, sLds, vT)
    a(f"v_add_u32 v{vWst}, s{sLds}, v{vX16}")
    a(f"s_waitcnt vmcnt({NW0})")
    a(f"s_mov_b32 s{sTag}, 0")
    a(f"s_branch A_xok")
    a.label(L_nq)
    a(f"s_waitcnt vmcnt(14)")
    a(f"s_cmp_lt_u32 s{sCG}, 2")
    a(f"s_cbranch_scc1 A_xok2")
    a(f"s_waitcnt vmcnt(0)")
    a.label("A_xok2")
    a(f"v_mov_b32 v{vT}, 0")
    a(f"global_load_dword v{vTag}, v{vT}, s[{S_DBG}:{S_DBG+1}] sc1")
    a.label("A_xok")
    st.mark("xwait")
    a(f"v_mov_b32 v{vOne}, 0x3f803f80")
    a(f"v_mov_b32 v{vSelLo}, 0x00003f80")
    a(f"v_mov_b32 v{vSelHi}, 0x3f800000")
    for i in range(4): a(f"v_mov_b32 v{TMP+i}, 0")
    for i in range(20):
        a(f"v_dot2c_f32_bf16 v{TMP+(i%2)}, v{X+i}, v{vOne}")
        a(f"v_dot2c_f32_bf16 v{TMP+2+(i%2)}, v{X+i}, v{X+i}")
    a(f"v_lshrrev_b32 v{vT}, 4, v{vLane}")
    a(f"s_lshl_b32 s{sT}, s{sW}, 2")
    a(f"v_add_u32 v{vT}, s{sT}, v{vT}")
    a(f"v_and_b32 v{vT+1}, 1, v{vLane}")
    a(f"v_mul_u32_u24 v{vT+1}, {XH}, v{vT+1}")
    a(f"v_lshl_add_u32 v{vT+1}, v{vT}, 4, v{vT+1}")
    a(f"v_add_f32 v{vSum}, v{TMP}, v{TMP+1}")
    a(f"v_add_f32 v{vSq}, v{TMP+2}, v{TMP+3}")
    a(f"v_bfe_u32 v{vT+2}, v{vLane}, 1, 3")
    a(f"s_mul_i32 s{sT}, s{sRho}, 5")
    a(f"s_sub_u32 s{sT}, 40, s{sT}")
    for ror in (8, 4, 2, 1):
        a(f"v_add_f32_dpp v{vSum}, v{vSum}, v{vSum} row_ror:{ror} row_mask:0xf bank_mask:0xf")
        a(f"v_add_f32_dpp v{vSq}, v{vSq}, v{vSq} row_ror:{ror} row_mask:0xf bank_mask:0xf")
        if ror != 1: a.nop(1)
    a(f"v_add_u32 v{vT+2}, s{sT}, v{vT+2}")
    inv = f32bits(1.0/640)
    a(f"v_mul_f32 v{vM}, {inv}, v{vSum}")
    a(f"v_mul_f32 v{TMP+1}, {inv}, v{vSq}")
    a(f"v_fma_f32 v{TMP+1}, -v{vM}, v{vM}, v{TMP+1}")
    a(f"v_max_f32 v{TMP+1}, 0, v{TMP+1}")
    bf16_round(a, TMP+1, TMP+1)
    bf16_round(a, vM, vM)
    a(f"v_add_f32 v{TMP+1}, {f32bits(1e-5)}, v{TMP+1}")
    a(f"v_sub_f32 v{vM}, 0, v{vM}")
    bf16_round(a, TMP+1, TMP+1)
    a(f"v_sqrt_f32 v{vSum}, v{TMP+1}")
    for base in range(0, 20, 8):
        g = min(8, 20-base)
        for i in range(g):
            a(f"v_dot2_f32_bf16 v{TMP+2*i}, v{X+base+i}, v{vSelLo}, v{vM}")
            a(f"v_dot2_f32_bf16 v{TMP+2*i+1}, v{X+base+i}, v{vSelHi}, v{vM}")
        if base == 0:
            bf16_round(a, vSum, vSum)
            a(f"v_rcp_f32 v{vR}, v{vSum}")
        else:
            a.nop(3)
        for i in range(g):
            a(f"v_cvt_pk_bf16_f32 v{X+base+i}, v{TMP+2*i}, v{TMP+2*i+1}")
    a(f"v_lshlrev_b32 v{vT+3}, 2, v{vT}")
    a(f"ds_write_b32 v{vT+3}, v{vR} offset:{RBUF}")
    for i in range(5):
        if i: a(f"v_add_u32 v{vT+2}, 8, v{vT+2}")
        a(f"v_subrev_u32 v{vT+3}, 40, v{vT+2}")
        a(f"v_min_u32 v{vT+3}, v{vT+3}, v{vT+2}")
        a(f"v_mul_u32_u24 v{vT+3}, {XP}, v{vT+3}")
        a(f"v_add_u32 v{vT+3}, v{vT+3}, v{vT+1}")
        a(f"ds_write_b128 v{vT+3}, {vr(X+4*i,4)} offset:{XB}")
    a(f"v_mul_u32_u24 v{vXa}, {XH}, v{vH}")
    a(f"v_lshl_add_u32 v{vXa}, v{vN}, 4, v{vXa}")
    a(f"s_cmp_ge_u32 s{sW}, 5")
    a(f"s_cbranch_scc1 A_ln5")
    for k in range(NW0, 10): wload(k)
    a(f"s_cmp_eq_u32 s{sW}, 4")
    a(f"s_cbranch_scc1 A_lnb")
    for k in range(10, DEPTH): wload(k)
    a(f"s_branch A_lnb")
    a.label("A_ln5")
    a(f"v_mov_b32 v{vT}, {LFL}")
    for i in range(4): a(f"v_mov_b32 v{TMP+i}, 0")
    a(f"ds_write_b128 v{vT}, v[{TMP}:{TMP+3}]")
    a(f"ds_write_b128 v{vT}, v[{TMP}:{TMP+3}] offset:{LFL2-LFL}")
    a("s_waitcnt vmcnt(0)")
    a(f"v_readfirstlane_b32 s{sTag}, v{vTag}")
    a.label("A_lnb")
    a("s_waitcnt lgkmcnt(0)")
    a("s_barrier")
    a(f"v_lshlrev_b32 v{vT}, 2, v{vN}")
    a(f"ds_read_b32 v{vR}, v{vT} offset:{RBUF}")
    st.mark("LN")
    if OPT.get("diag"):
        a(f"s_cmp_lg_u32 s{sW}, 0"); Ld = a.newlabel("dg"); a(f"s_cbranch_scc1 {Ld}"); diag(a, 4, va=62); diag(a, 5, neg=True, va=62); a.label(Ld)
    def ensure_tag(lab):
        get_tag(a, vT, lab, have=True)
    L_kvp, L_exp, L_bar1 = "A_kvp", "A_exp", "A_bar1"
    a(f"s_cmp_ge_u32 s{sW}, 5")
    a(f"s_cbranch_scc1 {L_kvp}")
    a(f"s_cmp_eq_u32 s{sW}, 4")
    a(f"s_cbranch_scc1 A_job4")
    if OPT.get("noq"): a(f"s_branch {L_bar1}")
    def pipe_gemm(nsteps, wr, rd, need_vm, refill, cin0):
        for k in range(5):
            if k < nsteps:
                need_vm(k, -5 + k)
                wr(k)
            if 0 <= k - 2 < nsteps: rd(k - 2)
        for s_ in range(nsteps):
            n_ops = 0
            if s_ + 5 < nsteps:
                need_vm(s_ + 5, s_)
                wr(s_ + 5)
            if s_ + 3 < nsteps: rd(s_ + 3)
            for t in range(s_ + 1, s_ + 4):
                if t + 2 < nsteps: n_ops += 1
                if t < nsteps: n_ops += 3
            a(f"s_waitcnt lgkmcnt({n_ops})")
            f = FB + 8*(s_ % 4)
            cin = cin0 if s_ == 0 else vr(ACC, 16)
            a(f"v_mfma_f32_32x32x16_bf16 {vr(ACC,16)}, {vr(f,4)}, {vr(f+4,4)}, {cin}")
            refill(s_)
    def q_wr(k): a(f"ds_write_b128 v{vWst}, {vr(WS_+4*(k % DEPTH),4)} offset:{(k % NSTG)*1024}")
    def q_rd(k):
        f = FB + 8*(k % 4)
        a(f"ds_read_b64_tr_b16 v[{f}:{f+1}], v{vTr} offset:{(k % NSTG)*1024}")
        a(f"ds_read_b64_tr_b16 v[{f+2}:{f+3}], v{vTr2} offset:{(k % NSTG)*1024}")
        a(f"ds_read_b128 {vr(f+4,4)}, v{vXa} offset:{XB + k*XP}")
    def q_vm(k, s_now):
        issued = DEPTH + max(0, min(s_now, 40 - DEPTH + QOFF) - QOFF) if s_now > 0 else DEPTH
        issued = min(issued, 40)
        a(f"s_waitcnt vmcnt({issued - 1 - k})")
    QOFF = 0
    PRE = (not PROF) and OPT.get("presoff", 1)
    if PRE:
        for k in range(DEPTH, 40):
            a(f"s_mov_b32 s{64 + k - DEPTH}, s{sSoff}")
            a(f"s_add_u32 s{sT}, s{sSoff}, 20480")
            a(f"s_cmp_eq_u32 s{sT}, {40*20480}")
            a(f"s_cselect_b32 s{sSoff}, 0, s{sT}")
    def q_refill(s_):
        if s_ + DEPTH < 40:
            if PRE:
                k = s_ + DEPTH
                a(f"buffer_load_dwordx4 {vr(WS_ + 4*(k % DEPTH),4)}, v{vVo}, s[{R_B}:{R_B+3}], s{64 + k - DEPTH} offen")
            else:
                wload(s_ + DEPTH)
    pipe_gemm(40, q_wr, q_rd, q_vm, q_refill, "0")
    st.mark("gemm")
    a.nop(12)
    a(f"v_mul_f32 v{vT}, {f32bits(QSCALE)}, v{vR}")
    for j in range(16): a(f"v_mul_f32 v{ACC+j}, v{ACC+j}, v{vT}")
    for k in range(8): a(f"v_cvt_pk_bf16_f32 v{TMP+k}, v{ACC+2*k}, v{ACC+2*k+1}")
    a(f"s_branch {L_bar1}")

    JW = WS_ + 20
    def job_loads():
        srd(a, R_B, S_WQ, S_WQ+1, 640*640*2)
        a(f"v_lshrrev_b32 v{vT}, 2, v{vLane}")
        a(f"v_mul_u32_u24 v{vT}, 1280, v{vT}")
        a(f"v_and_b32 v{vT+1}, 3, v{vLane}")
        a(f"v_lshl_add_u32 v{vT}, v{vT+1}, 4, v{vT}")
        a(f"s_mul_i32 s{sT}, s{sCG}, 320")
        a(f"s_add_u32 s{sT}, s{sT}, 256")
        a(f"v_add_u32 v{vT}, s{sT}, v{vT}")
        a(f"s_sub_u32 s{sT}, s{sW}, 4")
        a(f"s_mul_i32 s{sT}, s{sT}, 10")
        a(f"s_mul_i32 s{sT2}, s{sRho}, 5")
        a(f"s_add_u32 s{sT}, s{sT}, s{sT2}")
        a(f"s_cmp_ge_u32 s{sT}, 40")
        a(f"s_cselect_b32 s{sT2}, 40, 0")
        a(f"s_sub_u32 s{sT}, s{sT}, s{sT2}")
        a(f"s_mul_i32 s{sSoff}, s{sT}, 20480")
        for k in range(10):
            a(f"s_add_u32 s{sT}, s{sSoff}, 20480")
            a(f"buffer_load_dwordx4 {vr(JW+4*k,4)}, v{vT}, s[{R_B}:{R_B+3}], s{sSoff} offen")
            a(f"s_cmp_eq_u32 s{sT}, {40*20480}")
            a(f"s_cselect_b32 s{sSoff}, 0, s{sT}")
    def job_run(raw, vm_after):
        tr_addr(a, vTr, vTr2, 64, 8, 4, sLds, vT)
        a(f"v_add_u32 v{vWst}, s{sLds}, v{vX16}")
        a(f"s_sub_u32 s{sT}, s{sW}, 4")
        a(f"s_mul_i32 s{sT}, s{sT}, {10*XP}")
        a(f"v_add_u32 v{vVo}, s{sT}, v{vXa}")
        def j_wr(k): a(f"ds_write_b128 v{vWst}, {vr(raw+4*k,4)} offset:{(k % NSTG)*1024}")
        def j_rd(k):
            f = FB + 8*(k % 4)
            a(f"ds_read_b64_tr_b16 v[{f}:{f+1}], v{vTr} offset:{(k % NSTG)*1024}")
            a(f"ds_read_b64_tr_b16 v[{f+2}:{f+3}], v{vTr2} offset:{(k % NSTG)*1024}")
            a(f"ds_read_b128 {vr(f+4,4)}, v{vVo} offset:{k*XP}")
        def j_vm(k, s_): a(f"s_waitcnt vmcnt({9 - k + vm_after})")
        pipe_gemm(10, j_wr, j_rd, j_vm, lambda s_: None, "0")
        a("s_waitcnt lgkmcnt(0)")
        a.nop(12)
    def job_publish():
        Lp5, Lpd = a.newlabel("A_jp5"), a.newlabel("A_jpd")
        a(f"s_cmp_eq_u32 s{sW}, 5")
        a(f"s_cbranch_scc1 {Lp5}")
        for q in range(3): a(f"ds_write_b128 v{vWst}, {vr(ACC+4*q,4)} offset:{q*1024}")
        a(f"s_sub_u32 s{sT}, s{sW}, 6")
        a(f"s_lshl_b32 s{sT}, s{sT}, 10")
        a(f"s_add_u32 s{sT}, s{sT}, {T4F}")
        a(f"v_add_u32 v{vT}, s{sT}, v{vX16}")
        a(f"ds_write_b128 v{vT}, {vr(ACC+12,4)}")
        a(f"s_branch {Lpd}")
        a.label(Lp5)
        a(f"v_add_u32 v{vT}, {KVX+4096}, v{vX16}")
        for q in range(4): a(f"ds_write_b128 v{vT}, {vr(ACC+4*q,4)} offset:{q*1024}")
        a.label(Lpd)
        a(f"s_sub_u32 s{sT}, s{sW}, 5")
        a(f"s_lshl_b32 s{sT}, s{sT}, 2")
        a(f"s_add_u32 s{sT}, s{sT}, {LFL2}")
        a(f"v_mov_b32 v{vT}, s{sT}")
        a(f"v_mov_b32 v{vT+1}, 1")
        a(f"ds_write_b32 v{vT}, v{vT+1}")
    a.label("A_job4")
    job_run(WS_, 0)
    a(f"v_mov_b32 v{vT}, {LFL2}")
    a(f"s_mov_b32 s{sT3}, {SPIN_MAX}")
    a.label("A_j4spin")
    a(f"ds_read_b96 v[{vT+2}:{vT+4}], v{vT}")
    a("s_waitcnt lgkmcnt(0)")
    a(f"v_and_b32 v{vT+2}, v{vT+2}, v{vT+3}")
    a(f"v_and_b32 v{vT+2}, v{vT+2}, v{vT+4}")
    a("s_nop 0")
    a(f"v_readfirstlane_b32 s{sT}, v{vT+2}")
    a(f"s_sub_u32 s{sT3}, s{sT3}, 1")
    a(f"s_cmp_eq_u32 s{sT3}, 0")
    a(f"s_cbranch_scc1 A_j4spin_done")
    a(f"s_cmp_eq_u32 s{sT}, 1")
    a(f"s_cbranch_scc1 A_j4spin_done")
    a("s_sleep 1")
    a(f"s_branch A_j4spin")
    a.label("A_j4spin_done")
    a(f"v_add_u32 v{vT}, {KVX+4096}, v{vX16}")
    a(f"v_add_u32 v{vT+1}, {KSTG+3072}, v{vX16}")
    a(f"v_add_u32 v{vT+2}, {T4F}, v{vX16}")
    for q in range(4): a(f"ds_read_b128 {vr(64+4*q,4)}, v{vT} offset:{q*1024}")
    for p_ in range(2):
        for q in range(3): a(f"ds_read_b128 {vr(80+16*p_+4*q,4)}, v{vT+1} offset:{p_*3072 + q*1024}")
        a(f"ds_read_b128 {vr(80+16*p_+12,4)}, v{vT+2} offset:{p_*1024}")
    a("s_waitcnt lgkmcnt(0)")
    for j in range(16): a(f"v_add_f32 v{64+j}, v{64+j}, v{80+j}")
    for j in range(16): a(f"v_add_f32 v{ACC+j}, v{ACC+j}, v{96+j}")
    for j in range(16): a(f"v_add_f32 v{ACC+j}, v{ACC+j}, v{64+j}")
    st.mark("job4")
    a(f"v_mul_f32 v{vT}, {f32bits(QSCALE)}, v{vR}")
    for j in range(16): a(f"v_mul_f32 v{ACC+j}, v{ACC+j}, v{vT}")
    for k in range(8): a(f"v_cvt_pk_bf16_f32 v{TMP+k}, v{ACC+2*k}, v{ACC+2*k+1}")
    a(f"s_branch {L_bar1}")
    def export_d():
        a(f"s_mul_i32 s{sT}, s{sCG}, 2")
        a(f"s_add_u32 s{sT}, s{sT}, s{sW}")
        a(f"s_sub_u32 s{sT}, s{sT}, 6")
        a(f"s_sub_u32 s{sT2}, s{sT}, s{sRho}")
        a(f"s_and_b32 s{sT2}, s{sT2}, 7")
        a(f"s_mul_i32 s{sT2}, s{sT2}, {5*XP}")
        a(f"v_add_u32 v{vT}, s{sT2}, v{vXa}")
        for i in range(5):
            a(f"ds_read_b128 {vr(X+4*i,4)}, v{vT} offset:{XB + XP*i}")
        a(f"s_mul_i32 s{sT2}, s{sRB}, 40")
        a(f"s_mul_i32 s{sExp}, s{sT}, 5")
        a(f"s_add_u32 s{sT2}, s{sT2}, s{sExp}")
        a(f"s_lshl_b32 s{sT2}, s{sT2}, 10")
        if WS_XF: a(f"s_add_u32 s{sT2}, s{sT2}, {WS_XF}")
        a(f"s_lshl_b32 s{sFD}, s{sRB}, 3")
        a(f"s_add_u32 s{sFD}, s{sFD}, s{sT}")
        a(f"v_add_u32 v{vT+1}, 4096, v{vX16}")
        a("s_waitcnt lgkmcnt(0)")
        for i in range(4):
            a(f"buffer_store_dwordx4 {vr(X+4*i,4)}, v{vX16}, s[{R_WS}:{R_WS+3}], s{sT2} offen offset:{1024*i} sc1")
        a(f"buffer_store_dwordx4 {vr(X+16,4)}, v{vT+1}, s[{R_WS}:{R_WS+3}], s{sT2} offen sc1")
        L_nor = "A_nor"
        a(f"s_cmp_lg_u32 s{sT}, 0")
        a(f"s_cbranch_scc1 {L_nor}")
        a(f"s_lshl_b32 s{sT2}, s{sRB}, 7")
        a(f"s_add_u32 s{sT2}, s{sT2}, {WS_R}")
        a(f"v_lshlrev_b32 v{vT}, 2, v{vN}")
        a(f"buffer_store_dword v{vR}, v{vT}, s[{R_WS}:{R_WS+3}], s{sT2} offen sc1")
        a.label(L_nor)
    a.label(L_kvp)
    a("s_setprio 3")
    if OPT.get("expfirst", 0):
        a(f"s_cmp_lt_u32 s{sW}, 6")
        a(f"s_cbranch_scc1 A_noexp")
        export_d()
        a.label("A_noexp")
    a(f"s_cmp_ge_u32 s{sCG}, 2")
    a(f"s_cbranch_scc1 A_kvp_skip")
    a(f"s_sub_u32 s{sT}, s{sW}, 5")
    a(f"s_mul_i32 s{sLds}, s{sT}, 3072")
    a(f"s_add_u32 s{sLds}, s{sLds}, {KSTG}")
    tr_addr(a, vTr, vTr2, 40, 8, 4, sLds, vT)
    a(f"v_add_u32 v{vWst}, s{sLds}, v{vX16}")
    a(f"s_mul_i32 s{sT}, s{sStep}, {XP}")
    a(f"v_add_u32 v{vVo}, s{sT}, v{vXa}")
    a(f"v_add_u32 v{vT+4}, {13*XP}, v{vVo}")
    a(f"s_cmp_eq_u32 s{sW}, 5")
    a(f"s_cbranch_scc1 A_kv13")
    for i in range(4): a(f"v_mov_b32 v{WS_+52+i}, 0")
    a(f"v_mov_b32 v{vT+4}, v{vXa}")
    a.label("A_kv13")
    def k_wr(k): a(f"ds_write_b128 v{vWst}, {vr(WS_+4*k,4)} offset:{(k % NSTG)*1024}")
    def k_rd(k):
        f = FB + 8*(k % 4)
        a(f"ds_read_b64_tr_b16 v[{f}:{f+1}], v{vTr} offset:{(k % NSTG)*1024}")
        a(f"ds_read_b64_tr_b16 v[{f+2}:{f+3}], v{vTr2} offset:{(k % NSTG)*1024}")
        if k == 13: a(f"ds_read_b128 {vr(f+4,4)}, v{vT+4}")
        else: a(f"ds_read_b128 {vr(f+4,4)}, v{vVo} offset:{k*XP}")
    pipe_gemm(14, k_wr, k_rd, lambda k, s_: None, lambda s_: None, "0")
    a("s_waitcnt lgkmcnt(0)")
    job_loads()
    a(f"s_cmp_eq_u32 s{sW}, 5")
    a(f"s_cbranch_scc1 A_kv5")
    a(f"s_sub_u32 s{sT}, s{sW}, 6")
    a(f"s_lshl_b32 s{sT}, s{sT}, 12")
    a(f"s_add_u32 s{sT}, s{sT}, {KVX}")
    a(f"v_add_u32 v{vT}, s{sT}, v{vX16}")
    for q in range(4):
        a(f"ds_write_b128 v{vT}, {vr(ACC+4*q,4)} offset:{q*1024}")
    a(f"s_sub_u32 s{sT}, s{sW}, 6")
    a(f"s_lshl_b32 s{sT}, s{sT}, 2")
    a(f"s_add_u32 s{sT}, s{sT}, {LFL}")
    a(f"v_mov_b32 v{vT}, s{sT}")
    a(f"v_mov_b32 v{vT+1}, 1")
    a(f"ds_write_b32 v{vT}, v{vT+1}")
    a(f"s_branch A_kvp_done")
    a.label("A_kv5")
    a(f"v_mov_b32 v{vT}, {LFL}")
    a(f"s_mov_b32 s{sT3}, {SPIN_MAX}")
    a.label("A_kvspin")
    a(f"ds_read_b64 v[{vT+2}:{vT+3}], v{vT}")
    a("s_waitcnt lgkmcnt(0)")
    a(f"v_and_b32 v{vT+2}, v{vT+2}, v{vT+3}")
    a("s_nop 0")
    a(f"v_readfirstlane_b32 s{sT}, v{vT+2}")
    a(f"s_sub_u32 s{sT3}, s{sT3}, 1")
    a(f"s_cmp_eq_u32 s{sT3}, 0")
    a(f"s_cbranch_scc1 A_kvspin_done")
    a(f"s_cmp_eq_u32 s{sT}, 1")
    a(f"s_cbranch_scc1 A_kvspin_done")
    a("s_sleep 1")
    a(f"s_branch A_kvspin")
    a.label("A_kvspin_done")
    a(f"v_add_u32 v{vT}, {KVX}, v{vX16}")
    for p_ in range(2):
        for q in range(4):
            a(f"ds_read_b128 {vr(FB+16*p_+4*q,4)}, v{vT} offset:{p_*4096 + q*1024}")
    a("s_waitcnt lgkmcnt(0)")
    for j in range(16):
        a(f"v_add_f32 v{FB+j}, v{FB+j}, v{FB+16+j}")
    for j in range(16):
        a(f"v_add_f32 v{ACC+j}, v{ACC+j}, v{FB+j}")
    for j in range(16): a(f"v_mul_f32 v{ACC+j}, v{ACC+j}, v{vR}")
    a(f"v_cmp_eq_u32 vcc, 1, v{vH}")
    a(f"v_mov_b32 v{vT}, 1.0")
    a(f"v_mov_b32 v{vT+1}, 0")
    a(f"v_cndmask_b32 v{ACC+8}, v{ACC+8}, v{vT}, vcc")
    for j in range(9, 12): a(f"v_cndmask_b32 v{ACC+j}, v{ACC+j}, v{vT+1}, vcc")
    for j in range(12, 16): a(f"v_mov_b32 v{ACC+j}, 0")
    for k in range(8): a(f"v_cvt_pk_bf16_f32 v{TMP+k}, v{ACC+2*k}, v{ACC+2*k+1}")
    a(f"s_mul_i32 s{sT}, s{sRB}, {TS}")
    a(f"s_add_u32 s{sT}, s{sT}, {WS_KV}")
    L_v = "A_v"; L_kvdone = "A_kvdone"
    a(f"s_cmp_eq_u32 s{sCG}, 1")
    a(f"s_cbranch_scc1 {L_v}")
    a(f"buffer_store_dwordx4 {vr(TMP,4)}, v{vX16}, s[{R_WS}:{R_WS+3}], s{sT} offen sc1")
    a(f"v_lshlrev_b32 v{vT}, 3, v{vLane}")
    a(f"s_mov_b32 exec_hi, 0")
    a(f"buffer_store_dwordx2 v[{TMP+4}:{TMP+5}], v{vT}, s[{R_WS}:{R_WS+3}], s{sT} offen offset:1024 sc1")
    a(f"s_mov_b32 exec_hi, -1")
    a(f"s_branch {L_kvdone}")
    a.label(L_v)
    a(f"s_mov_b32 s{sLds}, {KVX}")
    a(f"v_lshlrev_b32 v{vT}, 6, v{vN}")
    a(f"v_lshl_add_u32 v{vT}, v{vH}, 3, v{vT}")
    a(f"v_add_u32 v{vT}, s{sLds}, v{vT}")
    for q in range(4):
        a(f"ds_write_b64 v{vT}, v[{TMP+2*q}:{TMP+2*q+1}] offset:{16*q}")
    tr_addr(a, vTr, None, 64, 4, 8, sLds, vT+1)
    for u in range(2):
        a(f"ds_read_b64_tr_b16 v[{TMP+8+4*u}:{TMP+9+4*u}], v{vTr} offset:{u*1024}")
        a(f"ds_read_b64_tr_b16 v[{TMP+10+4*u}:{TMP+11+4*u}], v{vTr} offset:{u*1024 + 512}")
    a(f"v_mul_u32_u24 v{vT}, {VH}, v{vH}")
    a(f"v_lshl_add_u32 v{vT}, v{vN}, 4, v{vT}")
    a(f"s_mov_b32 exec_lo, 0x3fffff")
    a(f"s_mov_b32 exec_hi, 0x3fffff")
    a("s_waitcnt lgkmcnt(0)")
    a(f"buffer_store_dwordx4 {vr(TMP+8,4)}, v{vT}, s[{R_WS}:{R_WS+3}], s{sT} offen offset:1280 sc1")
    a(f"buffer_store_dwordx4 {vr(TMP+12,4)}, v{vT}, s[{R_WS}:{R_WS+3}], s{sT} offen offset:{1280+VF} sc1")
    a(f"s_mov_b64 exec, -1")
    a.label(L_kvdone)
    ensure_tag("A5")
    a("s_waitcnt vmcnt(0)")
    st.mark("k5:drain")
    a(f"s_lshl_b32 s{sT}, s{sRB}, 1")
    a(f"s_add_u32 s{sT}, s{sT}, s{sCG}")
    set_flag(a, vT, sT, FL_KV)
    a(f"s_mov_b32 s{sLds}, {KSTG}")
    job_run(JW, 1)
    job_publish()
    a(f"s_branch {L_bar1}")
    a.label("A_kvp_skip")
    job_loads()
    a(f"s_cmp_lg_u32 s{sW}, 5")
    a(f"s_cbranch_scc1 A_kvp_done")
    a(f"s_mov_b32 s{sLds}, {KSTG}")
    job_run(JW, 0)
    job_publish()
    a(f"s_branch {L_bar1}")
    a.label("A_kvp_done")
    if not OPT.get("expfirst", 0): export_d()
    ensure_tag("A6")
    tag_to_lds(a, vT)
    a(f"s_waitcnt vmcnt({10 if OPT.get('expfirst', 0) else 0})")
    st.mark("x:drain")
    set_flag(a, vT, sFD, FL_D)
    a(f"s_sub_u32 s{sT}, s{sW}, 5")
    a(f"s_mul_i32 s{sLds}, s{sT}, 3072")
    a(f"s_add_u32 s{sLds}, s{sLds}, {KSTG}")
    job_run(JW, 1)
    job_publish()
    a.label(L_bar1)
    a("s_waitcnt vmcnt(0)")
    a.label("A_bar1_nowait")
    a("s_setprio 0")
    a("s_waitcnt lgkmcnt(0)")
    a("s_barrier")
    st.mark("bar0")
    vA16 = vX16
    aK1, aK2, aV, nK1, nK2, nV = 64, 65, 66, 67, 68, 69
    bK2, bV = 70, 71
    CN = 80
    S = [16, 32]
    O = 48
    P = 96
    Q1, Q2 = 104, 108
    K1, K2 = 112, 116
    V1, V2 = 120, 124
    vM2 = 110
    sSoffK, sLdsW, sSlot, sCk = 58, 59, 60, 61
    vFl, vFlo = 72, 73
    srd(a, R_A, S_WS, S_WS+1, KVB, WS_KV)
    a(f"s_lshl_b32 s{sLdsW}, s{sW}, 10")
    a(f"v_lshlrev_b32 v{bK2}, 3, v{vN}")
    a(f"v_add_u32 v{bK2}, 1024, v{bK2}")
    a(f"v_mov_b32 v{vT}, {1280 + 21*16}")
    a(f"v_cmp_eq_u32 vcc, 1, v{vH}")
    a(f"v_min_u32 v{bV}, 21, v{vN}")
    a(f"v_lshlrev_b32 v{bV}, 4, v{bV}")
    a(f"v_cndmask_b32 v{bK2}, v{bK2}, v{vT}, vcc")
    a(f"v_mul_u32_u24 v{vT}, {VH}, v{vH}")
    a(f"v_add3_u32 v{bV}, v{bV}, v{vT}, 0")
    a(f"v_add_u32 v{bV}, 1280, v{bV}")
    def dma_chunk(slot_s):
        Ls = a.newlabel("A_dm")
        a(f"s_cmp_ge_u32 s{sW}, 4")
        a(f"s_cbranch_scc1 {Ls}")
        a(f"s_add_u32 s{sT}, s{slot_s}, s{sLdsW}")
        a(f"s_add_u32 s{sT2}, s{sSoffK}, s{sLdsW}")
        for i in range(6):
            if i == 5:
                a(f"s_cmp_lg_u32 s{sW}, 0")
                a(f"s_cbranch_scc1 {Ls}")
            a(f"s_add_u32 m0, s{sT}, {4096*i}")
            a(f"s_add_u32 s{sT3}, s{sT2}, {4096*i}")
            a(f"buffer_load_dwordx4 v{vA16}, s[{R_A}:{R_A+3}], s{sT3} offen sc1 lds")
        a.label(Ls)
        a(f"s_add_u32 s{sSoffK}, s{sSoffK}, {CH}")
        a(f"s_cmp_eq_u32 s{sSoffK}, {8*CH}")
        a(f"s_cselect_b32 s{sSoffK}, 0, s{sSoffK}")
        a(f"s_add_u32 s{sCk}, s{sCk}, 1")
        a(f"s_and_b32 s{sCk}, s{sCk}, 7")
    L_noqw = "A_noqw"
    a(f"v_mul_u32_u24 v{vT}, {QP}, v{vN}")
    a(f"v_add_u32 v{vT}, {QBUF}, v{vT}")
    a(f"s_cmp_ge_u32 s{sW}, 5")
    a(f"s_cbranch_scc1 {L_noqw}")
    a(f"s_lshl_b32 s{sT}, s{sW}, 6")
    a(f"v_lshl_add_u32 v{vT+1}, v{vH}, 3, v{vT}")
    a(f"v_add_u32 v{vT+1}, s{sT}, v{vT+1}")
    for q in range(4):
        a(f"ds_write_b64 v{vT+1}, v[{TMP+2*q}:{TMP+2*q+1}] offset:{16*q}")
    a.label(L_noqw)
    a("s_waitcnt lgkmcnt(0)")
    a("s_barrier")
    a(f"s_mul_i32 s{sT}, s{sW}, 40")
    a(f"v_add_u32 v{vT}, s{sT}, v{vT}")
    a(f"v_lshl_add_u32 v{vT+1}, v{vH}, 3, v{vT}")
    a(f"ds_read_b64 v[{Q1}:{Q1+1}], v{vT+1}")
    a(f"ds_read_b64 v[{Q1+2}:{Q1+3}], v{vT+1} offset:16")
    a(f"ds_read_b64 v[{Q2}:{Q2+1}], v{vT} offset:32")
    a(f"v_mov_b32 v{aK1}, v{vA16}")
    a(f"v_mov_b32 v{aK2}, v{bK2}")
    a(f"v_mov_b32 v{aV}, v{bV}")
    a(f"v_add_u32 v{nK1}, {CH}, v{vA16}")
    a(f"v_add_u32 v{nK2}, {CH}, v{bK2}")
    a(f"v_add_u32 v{nV}, {CH}, v{bV}")
    for i in range(16): a(f"v_mov_b32 v{O+i}, 0")
    a(f"v_cmp_eq_u32 vcc, 1, v{vH}")
    a(f"v_mov_b32 v{vT}, 0")
    a("s_waitcnt lgkmcnt(0)")
    a(f"v_cndmask_b32 v{Q2}, v{Q2}, v{vT}, vcc")
    a(f"v_cndmask_b32 v{Q2+1}, v{Q2+1}, v{vT}, vcc")
    a(f"s_lshr_b32 s{sCk}, s{sRB}, 3")
    a(f"s_mul_i32 s{sSoffK}, s{sCk}, {CH}")
    def check_chunk(lab):
        a(f"s_cmp_lg_u32 s{sW}, 7")
        a(f"s_cbranch_scc1 {lab}_skip")
        a(f"s_lshl_b32 s{sT}, s{sCk}, 4")
        poll_flags(a, vT+2, lab, sT, 16, FL_KV, sleep=OPT.get("kvsleep", 1))
        a.label(f"{lab}_skip")
    check_chunk("A7a")
    a("s_barrier")
    st.mark("bar1")
    a(f"s_mov_b32 s{sSlot}, 0")
    dma_chunk(sSlot)
    a(f"v_min_u32 v{vFlo}, 15, v{vLane}")
    a(f"v_lshlrev_b32 v{vFlo}, 7, v{vFlo}")
    def rd(dst, n, t, off, cur, nxt, op):
        v_ = cur if t < 8 else nxt
        a(f"{op} {vr(dst,n)}, v{v_} offset:{(t % 8)*TS + off}")
    def rd_K1(t): rd(K1, 4, t, 0, aK1, nK1, "ds_read_b128")
    def rd_K2(t): rd(K2, 2, t, 0, aK2, nK2, "ds_read_b64")
    def rd_V1(t): rd(V1, 4, t, 0, aV, nV, "ds_read_b128")
    def rd_V2(t): rd(V2, 4, t, VF, aV, nV, "ds_read_b128")
    def qk1(dst, c="0"): a(f"v_mfma_f32_32x32x16_bf16 {vr(dst,16)}, {vr(K1,4)}, {vr(Q1,4)}, {c}")
    def qk2(dst): a(f"v_mfma_f32_32x32x8_bf16 {vr(dst,16)}, {vr(K2,2)}, {vr(Q2,2)}, {vr(dst,16)}")
    CNR = vr(CN, 16)
    if OPT.get("chk2early"): check_chunk("A7b")
    a("s_waitcnt vmcnt(0)")
    a("s_barrier")
    if OPT.get("chk2early"):
        a(f"s_mov_b32 s{sSlot}, {CH}")
        dma_chunk(sSlot)
        a(f"s_mov_b32 s{sSlot}, {2*CH}")
    rd_K1(0); rd_K2(0)
    def set_m(delta):
        a(f"v_mov_b32 v{vT}, v{vM2}")
        a.nop(2)
        a(f"v_permlane32_swap_b32 v{vM2}, v{vT}")
        a.nop(1)
        a(f"v_max_f32 v{vM2}, v{vM2}, v{vT}")
        if delta: a(f"v_add_f32 v{vM2}, {f32bits(delta)}, v{vM2}")
        for i in range(16): a(f"v_sub_f32 v{CN+i}, 0, v{vM2}")
    a(f"v_mov_b32 v{vM2}, 0xff800000")
    a("s_waitcnt lgkmcnt(0)")
    qk1(S[0]); qk2(S[0])
    rd_K1(1); rd_K2(1)
    a("s_waitcnt lgkmcnt(0)")
    qk1(S[1]); qk2(S[1])
    rd_K1(0); rd_K2(0)
    for i in range(4, 8): a(f"v_mov_b32 v{P+i}, 0")
    for i in range(4): a(f"v_mov_b32 v{V2+i}, 0")
    a.nop(4)
    for i in range(8):
        a(f"v_max3_f32 v{vM2}, v{S[0]+2*i}, v{S[0]+2*i+1}, v{vM2}")
    a.nop(4)
    for i in range(8):
        a(f"v_max3_f32 v{vM2}, v{S[1]+2*i}, v{S[1]+2*i+1}, v{vM2}")
    set_m(DELTA)
    a("s_waitcnt lgkmcnt(0)")
    a.nop(1)
    qk1(S[0], CNR); qk2(S[0])
    rd_K1(1); rd_K2(1); rd_V1(0)
    if not OPT.get("chk2early"):
        check_chunk("A7b")
        a("s_barrier")
        a(f"s_mov_b32 s{sSlot}, {CH}")
        dma_chunk(sSlot)
        a(f"s_mov_b32 s{sSlot}, {2*CH}")
    a.nop(12)
    st.mark("sample")
    a(f"s_setprio {OPT.get('pb', 0)}")
    if OPT.get("fair", 1):
        a(f"s_cmp_lt_u32 s{sW}, 4")
        a(f"s_cbranch_scc1 A_pr0")
        a(f"s_setprio {1 + OPT.get('pb', 0)}")
        a.label("A_pr0")
    a(f"s_mov_b32 s{sIt}, 0")
    L_loop = "A_loop"
    a(".p2align 6")
    a.label(L_loop)
    def e(cur, i): a(f"v_exp_f32 v{cur+i}, v{cur+i}")
    def p(cur, k): a(f"v_cvt_pk_bf16_f32 v{P+k}, v{cur+2*k}, v{cur+2*k+1}")
    for t in range(8):
        cur, nxt = S[t % 2], S[(t+1) % 2]
        if t == OPT.get("tdrop", 4) and OPT.get("fair", 1):
            a(f"s_setprio {OPT.get('pb', 0)}")
        if t == 0:
            a(f"s_cmp_lg_u32 s{sW}, 7")
            a(f"s_cbranch_scc1 A_nf0")
            a(f"s_lshl_b32 s{sT}, s{sCk}, 11")
            a(f"s_add_u32 s{sT}, s{sT}, {FL_KV*128}")
            a(f"buffer_load_dword v{vFl}, v{vFlo}, s[{R_FL}:{R_FL+3}], s{sT} offen sc1")
            a.label("A_nf0")
        if t == 6:
            a("s_waitcnt vmcnt(0)")
            a(f"s_cmp_lg_u32 s{sW}, 7")
            a(f"s_cbranch_scc1 A_nf6")
            a(f"v_cmp_ne_u32 vcc, s{sTag}, v{vFl}")
            a("s_nop 1")
            a(f"s_cmp_eq_u64 vcc, 0")
            a(f"s_cbranch_scc1 A_nf6")
            a(f"s_lshl_b32 s{sT}, s{sCk}, 4")
            poll_flags(a, vT+2, "A7c", sT, 16, FL_KV, sleep=1)
            a.label("A_nf6")
            a("s_barrier")
            if OPT.get("fair", 1):
                a(f"s_cmp_lt_u32 s{sW}, 4")
                a(f"s_cbranch_scc1 A_pr6")
                a(f"s_setprio {1 + OPT.get('pb', 0)}")
                a.label("A_pr6")
            dma_chunk(sSlot)
            a(f"s_add_u32 s{sSlot}, s{sSlot}, {CH}")
            a(f"s_cmp_eq_u32 s{sSlot}, {3*CH}")
            a(f"s_cselect_b32 s{sSlot}, 0, s{sSlot}")
        e(cur, 0); e(cur, 1)
        a("s_waitcnt lgkmcnt(2)")
        a(f"v_mfma_f32_32x32x16_bf16 {vr(O,16)}, {vr(V2,4)}, {vr(P+4,4)}, {vr(O,16)}")
        rd_V2(t)
        e(cur, 2); e(cur, 3); p(cur, 0); p(cur, 1)
        qk1(nxt, CNR)
        rd_K1(t+2)
        e(cur, 4); e(cur, 5); e(cur, 6); e(cur, 7); p(cur, 2); p(cur, 3)
        a("s_waitcnt lgkmcnt(2)")
        qk2(nxt)
        rd_K2(t+2)
        e(cur, 8); e(cur, 9); e(cur, 10); e(cur, 11); p(cur, 4); p(cur, 5)
        a(f"v_mfma_f32_32x32x16_bf16 {vr(O,16)}, {vr(V1,4)}, {vr(P,4)}, {vr(O,16)}")
        rd_V1(t+1)
        e(cur, 12); e(cur, 13); e(cur, 14); e(cur, 15); p(cur, 6); p(cur, 7)
    a(f"v_mov_b32 v{aK1}, v{nK1}")
    a(f"v_mov_b32 v{aK2}, v{nK2}")
    a(f"v_mov_b32 v{aV}, v{nV}")
    a(f"s_add_u32 s{sT}, s{sSlot}, {2*CH}")
    a(f"s_cmp_ge_u32 s{sT}, {3*CH}")
    a(f"s_cselect_b32 s{sT2}, {3*CH}, 0")
    a(f"s_sub_u32 s{sT}, s{sT}, s{sT2}")
    a(f"v_add_u32 v{nK1}, s{sT}, v{vA16}")
    a(f"v_add_u32 v{nK2}, s{sT}, v{bK2}")
    a(f"v_add_u32 v{nV}, s{sT}, v{bV}")
    a(f"s_add_u32 s{sIt}, s{sIt}, 1")
    a(f"s_cmp_lt_u32 s{sIt}, 8")
    a(f"s_cbranch_scc1 {L_loop}")
    a("s_waitcnt lgkmcnt(0)")
    a(f"v_mfma_f32_32x32x16_bf16 {vr(O,16)}, {vr(V2,4)}, {vr(P+4,4)}, {vr(O,16)}")
    a("s_setprio 0")
    st.mark("loop")
    if OPT.get("diag"):
        a(f"s_cmp_lg_u32 s{sW}, 0"); Ld = a.newlabel("dg"); a(f"s_cbranch_scc1 {Ld}"); diag(a, 8); diag(a, 9, neg=True); a.label(Ld)
    a.nop(16)
    L_fin, L_slow = "A_fin", "A_slow"
    a(f"s_mov_b32 s{sIt}, 0")
    a.label(L_fin)
    a(f"v_mov_b32 v{vT}, v{O+8}")
    a(f"v_mov_b32 v{vT+1}, v{O+8}")
    a.nop(2)
    a(f"v_permlane32_swap_b32 v{vT}, v{vT+1}")
    a(f"v_max3_f32 v{vT+2}, |v{O}|, |v{O+1}|, |v{O+2}|")
    for j in range(3, 12, 2):
        j2 = min(j+1, 11)
        a(f"v_max3_f32 v{vT+2}, |v{O+j}|, |v{O+j2}|, v{vT+2}")
    a(f"v_mov_b32 v{vT+3}, {f32bits(2.0**120)}")
    a(f"v_cmp_nlt_f32 vcc, v{vT+2}, v{vT+3}")
    a(f"v_cmp_nlt_f32 s[62:63], 0, v{vT+1}")
    a.nop(1)
    a(f"s_or_b64 vcc, vcc, s[62:63]")
    a(f"s_cmp_eq_u64 vcc, 0")
    a(f"s_cbranch_scc1 A_store")
    a(f"s_cmp_lg_u32 s{sIt}, 0")
    a(f"s_cbranch_scc1 A_store")
    a(f"s_branch {L_slow}")
    a.label("A_store")
    a(f"v_rcp_f32 v{vT+2}, v{vT+1}")
    a.nop(1)
    for j in range(12): a(f"v_mul_f32 v{O+j}, v{O+j}, v{vT+2}")
    for k in range(6): a(f"v_cvt_pk_bf16_f32 v{P+k}, v{O+2*k}, v{O+2*k+1}")
    a(f"s_lshl_b32 s{sT}, s{sCG}, 3")
    a(f"s_add_u32 s{sT}, s{sT}, s{sW}")
    a(f"s_mul_i32 s{sT}, s{sT}, 20")
    a(f"s_mul_i32 s{sT2}, s{sRB}, {40*1024}")
    a(f"s_add_u32 s{sT2}, s{sT2}, {WS_OF}")
    def oaddr(dst, colv):
        a(f"v_lshrrev_b32 v{dst}, 4, v{colv}")
        a(f"v_lshlrev_b32 v{dst}, 10, v{dst}")
        a(f"v_bfe_u32 v{vT+7}, v{colv}, 3, 1")
        a(f"v_lshl_add_u32 v{dst}, v{vT+7}, 9, v{dst}")
        a(f"v_and_b32 v{vT+7}, 7, v{colv}")
        a(f"v_lshl_add_u32 v{dst}, v{vT+7}, 1, v{dst}")
        a(f"v_lshl_add_u32 v{dst}, v{vN}, 4, v{dst}")
    a(f"v_lshlrev_b32 v{vT+3}, 2, v{vH}")
    a(f"v_add_u32 v{vT+3}, s{sT}, v{vT+3}")
    oaddr(vT+4, vT+3)
    a(f"buffer_store_dwordx2 v[{P}:{P+1}], v{vT+4}, s[{R_WS}:{R_WS+3}], s{sT2} offen sc1")
    a(f"v_add_u32 v{vT+3}, 8, v{vT+3}")
    oaddr(vT+5, vT+3)
    a(f"buffer_store_dwordx2 v[{P+2}:{P+3}], v{vT+5}, s[{R_WS}:{R_WS+3}], s{sT2} offen sc1")
    a(f"s_add_u32 s{sT}, s{sT}, 16")
    a(f"v_mov_b32 v{vT+3}, s{sT}")
    oaddr(vT+6, vT+3)
    a(f"v_cmp_eq_u32 vcc, 0, v{vH}")
    a(f"s_and_saveexec_b64 s[62:63], vcc")
    a(f"buffer_store_dwordx2 v[{P+4}:{P+5}], v{vT+6}, s[{R_WS}:{R_WS+3}], s{sT2} offen sc1")
    a(f"s_mov_b64 exec, s[62:63]")
    tag_from_lds(a, vT)
    a("s_waitcnt vmcnt(0) lgkmcnt(0)")
    a(f"v_readfirstlane_b32 s{sTag}, v{vT+1}")
    a(f"s_lshl_b32 s{sT}, s{sRB}, 2")
    a(f"s_add_u32 s{sT}, s{sT}, s{sCG}")
    a(f"s_lshl_b32 s{sT}, s{sT}, 3")
    a(f"s_add_u32 s{sT}, s{sT}, s{sW}")
    set_flag(a, vT, sT, FL_O)
    st.end()
    a("s_endpgm")
    a.label(L_slow)
    a(f"v_mov_b32 v{vM2}, 0xff800000")
    a(f"s_mov_b32 s{sSoffK}, 0")
    a.label("A_slow1")
    a(f"buffer_load_dwordx4 {vr(K1,4)}, v{vA16}, s[{R_A}:{R_A+3}], s{sSoffK} offen sc1")
    a(f"buffer_load_dwordx2 {vr(K2,2)}, v{bK2}, s[{R_A}:{R_A+3}], s{sSoffK} offen sc1")
    a("s_waitcnt vmcnt(0)")
    qk1(S[0]); qk2(S[0])
    a.nop(16)
    for i in range(8):
        a(f"v_max3_f32 v{vM2}, v{S[0]+2*i}, v{S[0]+2*i+1}, v{vM2}")
    a(f"s_add_u32 s{sSoffK}, s{sSoffK}, {TS}")
    a(f"s_cmp_lt_u32 s{sSoffK}, {KVB}")
    a(f"s_cbranch_scc1 A_slow1")
    set_m(0.0)
    for i in range(16): a(f"v_mov_b32 v{O+i}, 0")
    a(f"s_mov_b32 s{sSoffK}, 0")
    a.label("A_slow2")
    a(f"buffer_load_dwordx4 {vr(K1,4)}, v{vA16}, s[{R_A}:{R_A+3}], s{sSoffK} offen sc1")
    a(f"buffer_load_dwordx2 {vr(K2,2)}, v{bK2}, s[{R_A}:{R_A+3}], s{sSoffK} offen sc1")
    a(f"buffer_load_dwordx4 {vr(V1,4)}, v{bV}, s[{R_A}:{R_A+3}], s{sSoffK} offen sc1")
    a(f"buffer_load_dwordx4 {vr(V2,4)}, v{bV}, s[{R_A}:{R_A+3}], s{sSoffK} offen offset:{VF} sc1")
    a("s_waitcnt vmcnt(0)")
    qk1(S[0], CNR); qk2(S[0])
    a.nop(16)
    for i in range(16): e(S[0], i)
    a.nop(1)
    for k in range(8): p(S[0], k)
    a.nop(2)
    a(f"v_mfma_f32_32x32x16_bf16 {vr(O,16)}, {vr(V1,4)}, {vr(P,4)}, {vr(O,16)}")
    a(f"v_mfma_f32_32x32x16_bf16 {vr(O,16)}, {vr(V2,4)}, {vr(P+4,4)}, {vr(O,16)}")
    a(f"s_add_u32 s{sSoffK}, s{sSoffK}, {TS}")
    a(f"s_cmp_lt_u32 s{sSoffK}, {KVB}")
    a(f"s_cbranch_scc1 A_slow2")
    a.nop(16)
    a(f"s_mov_b32 s{sIt}, 1")
    a(f"s_branch {L_fin}")

def role_B1(a):
    st = Stamps(a, "B")
    st.start()
    if OPT.get("bprio"): a(f"s_setprio {OPT['bprio']}")
    sG, sC = sRB, sCG
    sSoffW, sSoffX, sLdsW, sKH, sXb = 57, 58, 59, 60, 99
    vT = 4; vW = 10; vTr, vX16, vR = 13, 14, 15
    XS = 16; WF = 48; ACC = 76
    SLOT = 24576
    a(f"s_sub_u32 s{sT2}, s2, 256")
    a(f"s_bfe_u32 s{sG}, s{sT2}, 0x20001")
    a(f"s_lshl_b32 s{sG}, s{sG}, 2")
    a(f"s_bfe_u32 s{sT}, s{sT2}, 0x20003")
    a(f"s_add_u32 s{sG}, s{sG}, s{sT}")
    a(f"s_and_b32 s{sC}, s{sT2}, 1")
    a(f"s_lshl_b32 s{sC}, s{sC}, 3")
    a(f"s_lshr_b32 s{sT}, s{sT2}, 5")
    a(f"s_add_u32 s{sC}, s{sC}, s{sT}")
    a(f"s_lshr_b32 s{sKH}, s{sW}, 2")
    a(f"v_lshlrev_b32 v{vX16}, 4, v{vLane}")
    a(f"s_and_b32 s{sT}, s{sW}, 3")
    a(f"s_mul_i32 s{sT}, s{sT}, 192")
    a(f"s_mul_i32 s{sT2}, s{sC}, 192")
    a(f"s_mul_i32 s{sT3}, s{sKH}, {320*3072}")
    a(f"s_add_u32 s{sT2}, s{sT2}, s{sT3}")
    for i in range(3):
        a(f"v_add_u32 v{vT}, s{sT}, v{vLane}")
        if i: a(f"v_add_u32 v{vT}, {64*i}, v{vT}")
        a(f"v_mul_u32_u24 v{vT+1}, 5462, v{vT}")
        a(f"v_lshrrev_b32 v{vT+1}, 16, v{vT+1}")
        a(f"v_mul_u32_u24 v{vT+2}, 12, v{vT+1}")
        a(f"v_sub_u32 v{vT}, v{vT}, v{vT+2}")
        a(f"v_lshlrev_b32 v{vT}, 4, v{vT}")
        a(f"v_mul_u32_u24 v{vT+1}, 3072, v{vT+1}")
        a(f"v_add3_u32 v{vW+i}, v{vT}, v{vT+1}, s{sT2}")
        if i: a(f"v_subrev_u32 v{vW+i}, {1024*i}, v{vW+i}")
    a(f"s_mul_i32 s{sT}, s{sKH}, 12288")
    tr_addr(a, vTr, None, 192, 8, 4, sT, vT)
    a(f"s_mul_i32 s{sLdsW}, s{sW}, 3072")
    srd(a, R_A, S_W1, S_W1+1, 640*1536*2)
    srd(a, R_B, S_B1, S_B1+1, 1536*2)
    a(f"s_mul_hi_u32 s{sT}, s{sC}, {(1<<32)//5 + 1}")
    a(f"s_mul_i32 s{sT}, s{sT}, 5")
    a(f"s_sub_u32 s{sT}, s{sC}, s{sT}")
    a(f"s_mul_i32 s{sSoffW}, s{sT}, {64*3072}")
    a(f"s_lshl_b32 s{sSoffX}, s{sT}, 12")
    a(f"s_and_b32 s{sT}, s{sW}, 3")
    a(f"s_lshl_b32 s{sT2}, s{sG}, 2")
    a(f"s_add_u32 s{sT}, s{sT}, s{sT2}")
    a(f"s_mul_i32 s{sXb}, s{sT}, {40*1024}")
    a(f"s_mul_i32 s{sT2}, s{sKH}, {20*1024}")
    a(f"s_add_u32 s{sXb}, s{sXb}, s{sT2}")
    if WS_XF: a(f"s_add_u32 s{sXb}, s{sXb}, {WS_XF}")
    def issueW(c):
        a(f"s_add_u32 m0, s{sLdsW}, {(c%3)*SLOT}")
        a(f"s_add_u32 s{sT}, s{sSoffW}, {64*3072}")
        for i in range(3):
            a(f"buffer_load_dwordx4 v{vW+i}, s[{R_A}:{R_A+3}], s{sSoffW} offen offset:{1024*i} lds")
        a(f"s_cmp_eq_u32 s{sT}, {320*3072}")
        a(f"s_cselect_b32 s{sSoffW}, 0, s{sT}")
    def issueX(c):
        xs = XS + 16*(c % 2)
        a(f"s_add_u32 s{sT2}, s{sXb}, s{sSoffX}")
        a(f"s_add_u32 s{sT}, s{sSoffX}, 4096")
        for i in range(4):
            a(f"buffer_load_dwordx4 {vr(xs+4*i,4)}, v{vX16}, s[{R_WS}:{R_WS+3}], s{sT2} offen offset:{1024*i} sc1")
        a(f"s_cmp_eq_u32 s{sT}, 20480")
        a(f"s_cselect_b32 s{sSoffX}, 0, s{sT}")
    sJ = 96
    a(f"s_sub_u32 s{sJ}, s2, 256")
    a(f"s_cmp_lg_u32 s{sW}, 0")
    a(f"s_cbranch_scc1 B1_np")
    get_tag(a, vT, "B1")
    a(f"s_lshl_b32 s{sT}, s{sG}, 5")
    poll_flags(a, vT, "B1p", sT, 32, FL_D, tries=OPT.get("wftries", 1), sleep=OPT.get("dsleep", 8))
    a.label("B1_np")
    a("s_barrier")
    srd(a, R_C, S_W2, S_W2+1, 1536*640*2)
    a(f"v_lshrrev_b32 v92, 2, v{vLane}")
    a(f"v_mul_u32_u24 v92, 1280, v92")
    a(f"v_and_b32 v93, 3, v{vLane}")
    a(f"v_lshl_add_u32 v92, v93, 4, v92")
    a(f"s_lshl_b32 s{sT}, s{sW}, 10")
    a(f"s_add_u32 s{sT}, s{sT}, 73728")
    a(f"v_add_u32 v93, s{sT}, v{vX16}")
    tr_addr(a, 94, None, 64, 4, 8, sT, vT)
    tr_addr(a, 95, None, 64, 8, 4, sT, vT)
    sDst = [92, 93]; sStp = [94, 95]
    for rnd in range(2):
        Lskip = f"B1_wf{rnd}_skip"
        a(f"s_mov_b32 s{sStp[rnd]}, -1")
        if rnd == 1:
            a(f"s_cmp_ge_u32 s{sW}, 3")
            a(f"s_cbranch_scc1 {Lskip}")
        a(f"s_and_b32 s{sT}, s{sJ}, 63")
        a(f"s_mul_i32 s{sT}, s{sT}, 11")
        a(f"s_add_u32 s{sT}, s{sT}, s{sW}")
        if rnd: a(f"s_add_u32 s{sT}, s{sT}, 8")
        a(f"s_cmp_ge_u32 s{sT}, 680")
        a(f"s_cbranch_scc1 {Lskip}")
        a(f"s_mul_hi_u32 s{sT2}, s{sT}, {(1<<32)//136 + 1}")
        a(f"s_mul_i32 s{sT3}, s{sT2}, 136")
        a(f"s_sub_u32 s{sT}, s{sT}, s{sT3}")
        a(f"s_mov_b32 s{sStp[rnd]}, s{sT}")
        a(f"s_lshr_b32 s{sT3}, s{sJ}, 6")
        a(f"s_mul_i32 s{sT3}, s{sT3}, 5")
        a(f"s_add_u32 s{sT2}, s{sT2}, s{sT3}")
        a(f"s_mul_i32 s62, s{sT2}, 136")
        a(f"s_add_u32 s62, s62, s{sT}")
        a(f"s_lshl_b32 s62, s62, 10")
        a(f"s_add_u32 s{sDst[rnd]}, s62, {WS_WF}")
        a(f"s_lshl_b32 s{sT2}, s{sT2}, 6")
        a(f"s_cmp_lt_u32 s{sT}, 96")
        a(f"s_cselect_b32 s{R_C}, s{S_W2}, s{S_WO}")
        a(f"s_cselect_b32 s{R_C+1}, s{S_W2+1}, s{S_WO+1}")
        a(f"s_cselect_b32 s63, 0, 96")
        a(f"s_mov_b32 s{R_C+2}, {640*640*2}")
        a(f"s_cbranch_scc0 B1_wf{rnd}_a")
        a(f"s_mov_b32 s{R_C+2}, {1536*640*2}")
        a.label(f"B1_wf{rnd}_a")
        a(f"s_sub_u32 s{sT3}, s{sT}, s63")
        a(f"s_mul_i32 s{sT3}, s{sT3}, {16*1280}")
        a(f"s_add_u32 s{sT3}, s{sT3}, s{sT2}")
        a(f"buffer_load_dwordx4 v[{76+4*rnd}:{79+4*rnd}], v92, s[{R_C}:{R_C+3}], s{sT3} offen")
        a.label(Lskip)
    a("s_waitcnt vmcnt(0)")
    for rnd in range(2):
        Lskip = f"B1_wg{rnd}_skip"
        a(f"s_cmp_eq_u32 s{sStp[rnd]}, -1")
        a(f"s_cbranch_scc1 {Lskip}")
        a(f"ds_write_b128 v93, v[{76+4*rnd}:{79+4*rnd}]")
        a(f"s_cmp_lt_u32 s{sStp[rnd]}, 96")
        a(f"s_cbranch_scc0 B1_wf{rnd}_n")
        a(f"ds_read_b64_tr_b16 v[{84+4*rnd}:{85+4*rnd}], v94")
        a(f"ds_read_b64_tr_b16 v[{86+4*rnd}:{87+4*rnd}], v94 offset:512")
        a(f"s_branch B1_wf{rnd}_s")
        a.label(f"B1_wf{rnd}_n")
        a(f"ds_read_b64_tr_b16 v[{84+4*rnd}:{85+4*rnd}], v95")
        a(f"ds_read_b64_tr_b16 v[{86+4*rnd}:{87+4*rnd}], v95 offset:256")
        a.label(f"B1_wf{rnd}_s")
        a("s_waitcnt lgkmcnt(0)")
        a(f"buffer_store_dwordx4 v[{84+4*rnd}:{87+4*rnd}], v{vX16}, s[{R_WS}:{R_WS+3}], s{sDst[rnd]} offen sc1")
        a.label(Lskip)
    issued = []
    def iW(c): issueW(c); issued.extend([("W", c)]*3)
    if OPT.get("prefill", 0):
        for c in range(3): iW(c)
    a(f"s_cmp_lg_u32 s{sW}, 0")
    a(f"s_cbranch_scc1 B1_np2")
    a(f"s_lshl_b32 s{sT}, s{sG}, 5")
    poll_flags(a, vT, "B1", sT, 32, FL_D, sleep=OPT.get("dsleep", 8))
    if OPT.get("b1kv", 0): poll_flags(a, vT, "B1k", None, 128, FL_KV, sleep=OPT.get("ksleep", 4))
    a.label("B1_np2")
    a("s_barrier")
    a(f"s_cmp_lg_u32 s{sW}, 0")
    a(f"s_cbranch_scc1 B1_ntl")
    tag_to_lds(a, vT)
    a.label("B1_ntl")
    st.mark("wait_d")
    def iX(c): issueX(c); issued.extend([("X", c)]*4)
    if OPT.get("prefill", 0):
        iX(0)
        a("s_barrier")
        iX(1)
    elif OPT.get("b1shallow", 1):
        iW(0); iX(0)
    else:
        iW(0); iX(0)
        a("s_barrier")
        iW(1); iX(1)
        a("s_barrier")
        iW(2)
    def wreads(c, k, buf):
        base = (c % 3)*SLOT + k*16*192
        for ct in range(3):
            a(f"ds_read_b64_tr_b16 v[{WF+12*buf+4*ct}:{WF+12*buf+4*ct+1}], v{vTr} offset:{base + ct*64}")
            a(f"ds_read_b64_tr_b16 v[{WF+12*buf+4*ct+2}:{WF+12*buf+4*ct+3}], v{vTr} offset:{base + ct*64 + 4*192}")
    for c in range(5):
        last = max(i for i, e_ in enumerate(issued) if e_ in (("W", c), ("X", c)))
        a(f"s_waitcnt vmcnt({len(issued) - 1 - last})")
        a("s_barrier")
        if c == 0:
            st.mark("b0")
            a(f"s_cmp_lg_u32 s{sW}, 0")
            a(f"s_cbranch_scc1 B1_nofw")
            set_flag(a, vT, sJ, FL_W)
            a.label("B1_nofw")
        if OPT.get("b1shallow", 1) and not OPT.get("prefill", 0):
            if c + 1 < 5: iW(c + 1); iX(c + 1)
        elif 1 <= c <= 2: iW(c + 2)
        xs = XS + 16*(c % 2)
        wreads(c, 0, 0)
        for k in range(4):
            buf = k % 2
            if k < 3:
                wreads(c, k + 1, 1 - buf)
                a("s_waitcnt lgkmcnt(6)")
            else:
                a("s_waitcnt lgkmcnt(0)")
            for ct in range(3):
                cin = "0" if (c == 0 and k == 0) else vr(ACC+16*ct,16)
                a(f"v_mfma_f32_32x32x16_bf16 {vr(ACC+16*ct,16)}, {vr(WF+12*buf+4*ct,4)}, {vr(xs+4*k,4)}, {cin}")
        if c + 2 < 5 and (OPT.get("prefill", 0) or not OPT.get("b1shallow", 1)): iX(c + 2)
    st.mark("kloop")
    a("s_setprio 3")
    a(f"s_and_b32 s{sT}, s{sW}, 3")
    a(f"s_lshl_b32 s{sT2}, s{sG}, 2")
    a(f"s_add_u32 s{sT}, s{sT}, s{sT2}")
    a(f"s_lshl_b32 s{sT2}, s{sT}, 7")
    a(f"s_add_u32 s{sT2}, s{sT2}, {WS_R}")
    a(f"v_lshlrev_b32 v{vT}, 2, v{vN}")
    a(f"buffer_load_dword v{vR}, v{vT}, s[{R_WS}:{R_WS+3}], s{sT2} offen sc1")
    tag_from_lds(a, 72)
    a(f"s_mul_i32 s{sT2}, s{sC}, 192")
    a(f"s_lshl_b32 s{sT3}, s{sKH}, 5")
    a(f"s_add_u32 s{sT2}, s{sT2}, s{sT3}")
    a(f"v_lshlrev_b32 v{vT}, 3, v{vH}")
    B = XS
    for ct in range(3):
        for q in range(2):
            a(f"buffer_load_dwordx2 v[{B+4*ct+2*q}:{B+4*ct+2*q+1}], v{vT}, s[{R_B}:{R_B+3}], s{sT2} offen offset:{64*ct+16*q}")
    a(f"s_mul_i32 s{sT}, s{sT}, 96")
    a(f"s_mul_i32 s{sT2}, s{sC}, 6")
    a(f"s_add_u32 s{sT}, s{sT}, s{sT2}")
    a(f"s_add_u32 s{sT}, s{sT}, s{sKH}")
    a(f"s_lshl_b32 s{sXb}, s{sT}, 10")
    a(f"s_add_u32 s{sXb}, s{sXb}, {WS_H}")
    a("s_barrier")
    a.nop(4)
    T = XS + 16
    a(f"s_mul_i32 s{sT}, s{sW}, 6144")
    a(f"v_add_u32 v{vT+1}, s{sT}, v{vX16}")
    a(f"s_xor_b32 s{sT}, s{sW}, 4")
    a(f"s_mul_i32 s{sT}, s{sT}, 6144")
    a(f"v_add_u32 v{vT+2}, s{sT}, v{vX16}")
    a(f"s_cmp_eq_u32 s{sKH}, 1")
    a(f"s_cbranch_scc1 B1_x1")
    for ct in range(3):
        for q in range(2):
            a(f"ds_write_b128 v{vT+1}, {vr(ACC+16*ct+8+4*q,4)} offset:{(2*ct+q)*1024}")
    a(f"s_branch B1_x2")
    a.label("B1_x1")
    for ct in range(3):
        for q in range(2):
            a(f"ds_write_b128 v{vT+1}, {vr(ACC+16*ct+4*q,4)} offset:{(2*ct+q)*1024}")
    a.label("B1_x2")
    a("s_waitcnt lgkmcnt(0)")
    a("s_barrier")
    for i in range(6):
        a(f"ds_read_b128 {vr(T+4*i,4)}, v{vT+2} offset:{i*1024}")
    a("s_waitcnt lgkmcnt(0) vmcnt(0)")
    a(f"v_readfirstlane_b32 s{sTag}, v73")
    a(f"s_cmp_eq_u32 s{sKH}, 1")
    a(f"s_cbranch_scc1 B1_y1")
    for ct in range(3):
        for j in range(8): a(f"v_add_f32 v{T+8*ct+j}, v{T+8*ct+j}, v{ACC+16*ct+j}")
    a(f"s_branch B1_y2")
    a.label("B1_y1")
    for ct in range(3):
        for j in range(8): a(f"v_add_f32 v{T+8*ct+j}, v{T+8*ct+j}, v{ACC+16*ct+8+j}")
    a.label("B1_y2")
    TB = 56
    for ct in range(3):
        for q in range(2):
            b0 = B+4*ct+2*q
            acc = T+8*ct+4*q
            a(f"v_lshlrev_b32 v{TB}, 16, v{b0}")
            a(f"v_and_b32 v{TB+1}, 0xffff0000, v{b0}")
            a(f"v_lshlrev_b32 v{TB+2}, 16, v{b0+1}")
            a(f"v_and_b32 v{TB+3}, 0xffff0000, v{b0+1}")
            for j in range(4): a(f"v_fma_f32 v{acc+j}, v{acc+j}, v{vR}, v{TB+j}")
            for j in range(4): a(f"v_max_f32 v{acc+j}, 0, v{acc+j}")
            for j in range(4): a(f"v_mul_f32 v{acc+j}, v{acc+j}, v{acc+j}")
        for k in range(4):
            a(f"v_cvt_pk_bf16_f32 v{60+4*ct+k}, v{T+8*ct+2*k}, v{T+8*ct+2*k+1}")
    a(f"v_add_u32 v{vT}, 4096, v{vX16}")
    a(f"buffer_store_dwordx4 {vr(60,4)}, v{vX16}, s[{R_WS}:{R_WS+3}], s{sXb} offen sc1")
    a(f"buffer_store_dwordx4 {vr(64,4)}, v{vX16}, s[{R_WS}:{R_WS+3}], s{sXb} offen offset:2048 sc1")
    a(f"buffer_store_dwordx4 {vr(68,4)}, v{vT}, s[{R_WS}:{R_WS+3}], s{sXb} offen sc1")
    a(f"s_cmp_lg_u32 s{sW}, 6")
    a(f"s_cbranch_scc1 B1_nfw")
    a(f"s_sub_u32 s{sT}, s2, 256")
    a(f"s_and_b32 s{sT2}, s{sT}, 1")
    a(f"s_lshl_b32 s{sT2}, s{sT2}, 1")
    a(f"s_lshr_b32 s{sT}, s{sT}, 7")
    a(f"s_add_u32 s{sT}, s{sT}, s{sT2}")
    a(f"s_lshl_b32 s{sT}, s{sT}, 6")
    poll_flags(a, vT, "B2w", sT, 64, FL_W)
    a.label("B1_nfw")
    a("s_waitcnt vmcnt(0)")
    a("s_barrier")
    L_nf = "B1_nf"
    a(f"s_cmp_lg_u32 s{sW}, 0")
    a(f"s_cbranch_scc1 {L_nf}")
    a(f"s_lshl_b32 s{sT}, s{sG}, 4")
    a(f"s_add_u32 s{sT}, s{sT}, s{sC}")
    set_flag(a, vT, sT, FL_H)
    a.label(L_nf)
    st.mark("epi")
    a("s_setprio 0")
    return st

def role_B2(a, st):
    sSoffW, sSoffX, sWb, sIt, sRho, sWrapW, sRst = 57, 58, 59, 60, 61, 98, 99
    vT = 4
    vX16, vXa = 14, 15
    ACC = 16
    XR = 48
    WB = 64
    vOut = vT+3
    NXS = 8
    a(f"s_sub_u32 s{sT2}, s2, 256")
    a(f"s_bfe_u32 s{sRB}, s{sT2}, 0x20001")
    a(f"s_lshl_b32 s{sRB}, s{sRB}, 4")
    a(f"s_bfe_u32 s{sT}, s{sT2}, 0x40003")
    a(f"s_add_u32 s{sRB}, s{sRB}, s{sT}")
    a(f"s_and_b32 s{sCG}, s{sT2}, 1")
    a(f"s_lshl_b32 s{sCG}, s{sCG}, 1")
    a(f"s_lshr_b32 s{sT}, s{sT2}, 7")
    a(f"s_add_u32 s{sCG}, s{sCG}, s{sT}")
    a(f"v_lshlrev_b32 v{vX16}, 4, v{vLane}")
    a(f"s_and_b32 s{sRho}, s{sRB}, 7")
    a(f"s_min_u32 s{sT3}, s{sW}, 4")
    a(f"s_mul_i32 s{sT}, s{sCG}, 5")
    a(f"s_add_u32 s{sT}, s{sT}, s{sT3}")
    a(f"s_mul_i32 s{sWb}, s{sT}, {136*1024}")
    a(f"s_add_u32 s{sWb}, s{sWb}, {WS_WF}")
    a(f"s_lshl_b32 s{sT}, s{sT}, 6")
    srd(a, R_C, S_X, S_X+1, NX)
    a(f"s_lshl_b32 s{sT2}, s{sRB}, 5")
    a(f"v_add_u32 v{vT}, s{sT2}, v{vN}")
    a(f"v_mul_u32_u24 v{vT}, 1280, v{vT}")
    a(f"v_lshl_add_u32 v{vT}, v{vH}, 3, v{vT}")
    a(f"v_add_u32 v{vOut}, s{sT}, v{vT}")
    for q in range(4):
        a(f"buffer_load_dwordx2 v[{XR+2*q}:{XR+2*q+1}], v{vOut}, s[{R_C}:{R_C+3}], 0 offen offset:{16*q}")
    srd(a, R_C, S_B2, S_B2+1, 640*2)
    a(f"v_lshlrev_b32 v{vT}, 3, v{vH}")
    for q in range(4):
        a(f"buffer_load_dwordx2 v[{XR+8+2*q}:{XR+8+2*q+1}], v{vT}, s[{R_C}:{R_C+3}], s{sT} offen offset:{16*q}")
    for i in range(16): a(f"v_mov_b32 v{ACC+i}, 0")
    def unpack_add(q, dst):
        for (src, t) in ((XR+2*q, 32), (XR+8+2*q, 36)):
            a(f"v_lshlrev_b32 v{t}, 16, v{src}")
            a(f"v_and_b32 v{t+1}, 0xffff0000, v{src}")
            a(f"v_lshlrev_b32 v{t+2}, 16, v{src+1}")
            a(f"v_and_b32 v{t+3}, 0xffff0000, v{src+1}")
        for j in range(4): a(f"v_add_f32 v{32+j}, v{32+j}, v{36+j}")
        for j in range(4): a(f"v_add_f32 v{dst+j}, v{dst+j}, v{32+j}")
    L_side = "B2_side"
    a(f"s_cmp_ge_u32 s{sW}, 4")
    a(f"s_cbranch_scc1 {L_side}")
    a(f"s_lshl_b32 s{sSoffW}, s{sRho}, 13")
    a(f"s_mov_b32 s{sWrapW}, {96*1024}")
    a(f"s_mov_b32 s{sRst}, 0")
    def wload(r):
        a(f"s_add_u32 s{sT2}, s{sWb}, s{sSoffW}")
        a(f"s_add_u32 s{sT}, s{sSoffW}, 1024")
        a(f"buffer_load_dwordx4 {vr(r,4)}, v{vX16}, s[{R_WS}:{R_WS+3}], s{sT2} offen sc1")
        a(f"s_cmp_eq_u32 s{sT}, s{sWrapW}")
        a(f"s_cselect_b32 s{sSoffW}, s{sRst}, s{sT}")
    for k in range(16): wload(WB + 4*k)
    st.mark("setup")
    a("s_barrier")
    a(f"s_mov_b32 s{sIt}, 0")
    L1 = "B2_p1"
    a.label(L1)
    XBUF = 32
    for j in range(16):
        k = j % 8
        if k == 0:
            a("s_barrier")
            a(f"s_lshl_b32 s{sT}, s{sIt}, 1")
            if j: a(f"s_add_u32 s{sT}, s{sT}, 1")
            a(f"s_and_b32 s{sT}, s{sT}, {NXS-1}")
            a(f"s_lshl_b32 s{sT}, s{sT}, 13")
            a(f"v_add_u32 v{vXa}, s{sT}, v{vX16}")
            for i in range(3):
                a(f"ds_read_b128 {vr(XBUF+4*i,4)}, v{vXa} offset:{i*1024}")
        if j == 0:
            L1n = "B2_p1n"
            a(f"s_cmp_lg_u32 s{sIt}, 5")
            a(f"s_cbranch_scc1 {L1n}")
            a(f"s_mul_i32 s{sSoffW}, s{sRho}, {5*1024}")
            a(f"s_add_u32 s{sSoffW}, s{sSoffW}, {96*1024}")
            a(f"s_mov_b32 s{sWrapW}, {136*1024}")
            a(f"s_mov_b32 s{sRst}, {96*1024}")
            a.label(L1n)
        if k + 3 < 8:
            a(f"ds_read_b128 {vr(XBUF+4*((k+3)%4),4)}, v{vXa} offset:{(k+3)*1024}")
            a("s_waitcnt vmcnt(15) lgkmcnt(3)")
        else:
            a(f"s_waitcnt vmcnt(15) lgkmcnt({7-k})")
        a(f"v_mfma_f32_32x32x16_bf16 {vr(ACC,16)}, {vr(WB+4*j,4)}, {vr(XBUF+4*(k%4),4)}, {vr(ACC,16)}")
        wload(WB + 4*j)
    a(f"s_add_u32 s{sIt}, s{sIt}, 1")
    a(f"s_cmp_lt_u32 s{sIt}, 6")
    a(f"s_cbranch_scc1 {L1}")
    st.mark("ffn2")
    a.nop(12)
    for q in range(4): unpack_add(q, ACC+4*q)
    XBUF = XR
    NBLK = 20
    def blk(s_):
        b = s_ % NBLK
        return (WB + 4*b) if b < 16 else (32 + 4*(b-16))
    for s_ in range(16, 20): wload(blk(s_))
    a("s_barrier")
    a(f"s_branch B2_oload")
    a.label(L_side)
    a(f"s_sub_u32 s{sT3}, s{sW}, 4")
    a("s_waitcnt vmcnt(0)")
    for jj in range(1, 4):
        Ls = a.newlabel("B2_q")
        a(f"s_cmp_lg_u32 s{sT3}, {jj}")
        a(f"s_cbranch_scc1 {Ls}")
        a(f"v_mov_b32 v{XR}, v{XR+2*jj}")
        a(f"v_mov_b32 v{XR+1}, v{XR+2*jj+1}")
        a(f"v_mov_b32 v{XR+8}, v{XR+8+2*jj}")
        a(f"v_mov_b32 v{XR+9}, v{XR+8+2*jj+1}")
        a.label(Ls)
    for j in range(4): a(f"v_mov_b32 v{40+j}, 0")
    unpack_add(0, 40)
    a(f"s_lshl_b32 s{sRst}, s{sT3}, 11")
    a(f"s_lshl_b32 s{sSoffW}, s{sRho}, 13")
    a(f"s_add_u32 s{sSoffW}, s{sSoffW}, s{sRst}")
    a(f"s_add_u32 s{sWrapW}, s{sRst}, {96*1024}")
    SD = 4
    def wpair(slot):
        a(f"s_add_u32 s{sT2}, s{sWb}, s{sSoffW}")
        a(f"s_add_u32 s{sT}, s{sSoffW}, 8192")
        a(f"buffer_load_dwordx4 {vr(WB+8*slot,4)}, v{vX16}, s[{R_WS}:{R_WS+3}], s{sT2} offen sc1")
        a(f"buffer_load_dwordx4 {vr(WB+8*slot+4,4)}, v{vX16}, s[{R_WS}:{R_WS+3}], s{sT2} offen offset:1024 sc1")
        a(f"s_cmp_eq_u32 s{sT}, s{sWrapW}")
        a(f"s_cselect_b32 s{sSoffW}, s{sRst}, s{sT}")
    for c in range(SD): wpair(c)
    a(f"s_cmp_lg_u32 s{sW}, 7")
    a(f"s_cbranch_scc1 B2_nph")
    a(f"s_lshr_b32 s{sT}, s{sRB}, 2")
    a(f"s_lshl_b32 s{sT}, s{sT}, 4")
    poll_flags(a, vT, "B2h", sT, 16, FL_H, sleep=2)
    a.label("B2_nph")
    a("s_barrier")
    a(f"s_sub_u32 s{sT3}, s{sW}, 4")
    a(f"s_mul_i32 s{sT}, s{sRB}, {96*1024}")
    a(f"s_add_u32 s63, s{sT}, {WS_H}")
    a(f"s_lshl_b32 s97, s{sT3}, 11")
    a(f"s_add_u32 s63, s63, s97")
    a(f"s_lshl_b32 s{sSoffX}, s{sRho}, 13")
    a(f"v_add_u32 v{vT+5}, s97, v{vX16}")
    vXs = vT+5
    vm = Cnt(a, "vmcnt", 63)
    def xdma(c):
        a(f"s_add_u32 m0, s97, {(c % NXS)*8192}")
        a(f"s_add_u32 s{sT2}, s63, s{sSoffX}")
        a(f"s_add_u32 s{sT}, s{sSoffX}, 8192")
        for i in range(2):
            a(f"buffer_load_dwordx4 v{vX16}, s[{R_WS}:{R_WS+3}], s{sT2} offen offset:{1024*i} sc1 lds")
        a(f"s_cmp_eq_u32 s{sT}, {96*1024}")
        a(f"s_cselect_b32 s{sSoffX}, 0, s{sT}")
        vm.issue(("X", c), 2)
    for c in range(SD): vm.issue(("W", c), 2)
    XD = 6
    for c in range(XD): xdma(c)
    for c in range(12):
        vm.need(("X", c), ("W", c))
        a("s_barrier")
        if c + XD < 12: xdma(c + XD)
        for i in range(2):
            a(f"ds_read_b128 {vr(48+4*i,4)}, v{vXs} offset:{(c % NXS)*8192 + 1024*i}")
        a("s_waitcnt lgkmcnt(1)")
        a(f"v_mfma_f32_32x32x16_bf16 {vr(ACC,16)}, {vr(WB+8*(c%4),4)}, {vr(48,4)}, {vr(ACC,16)}")
        a("s_waitcnt lgkmcnt(0)")
        a(f"v_mfma_f32_32x32x16_bf16 {vr(ACC,16)}, {vr(WB+8*(c%4)+4,4)}, {vr(52,4)}, {vr(ACC,16)}")
        if c + SD < 12: wpair(c % 4); vm.issue(("W", c + SD), 2)
    a(f"s_sub_u32 s{sT3}, s{sW}, 4")
    a(f"s_lshl_b32 s{sT3}, s{sT3}, 1")
    a(f"s_mul_i32 s62, s{sRho}, 5")
    a(f"s_add_u32 s62, s62, s{sT3}")
    for m in range(5):
        for i in range(2):
            a(f"s_add_u32 s{sT}, s62, {8*m+i}")
            a(f"s_cmp_ge_u32 s{sT}, 40")
            a(f"s_cselect_b32 s{sT2}, 40, 0")
            a(f"s_sub_u32 s{sT}, s{sT}, s{sT2}")
            a(f"s_add_u32 s{sT}, s{sT}, 96")
            a(f"s_lshl_b32 s{sT}, s{sT}, 10")
            a(f"s_add_u32 s{sT}, s{sT}, s{sWb}")
            a(f"buffer_load_dwordx4 {vr(WB+4*(2*m+i),4)}, v{vX16}, s[{R_WS}:{R_WS+3}], s{sT} offen sc1")
    Lnp2 = "B2_np2"
    a(f"s_cmp_lg_u32 s{sW}, 7")
    a(f"s_cbranch_scc1 {Lnp2}")
    a(f"s_lshl_b32 s{sT}, s{sRB}, 5")
    poll_flags(a, vT, "B2o", sT, 32, FL_O, sleep=OPT.get("osleep", 2))
    a.label(Lnp2)
    st.mark("wait_o")
    a("s_barrier")
    a.label("B2_oload")
    a(f"s_mul_i32 s63, s{sRB}, {40*1024}")
    a(f"s_add_u32 s63, s63, {WS_OF}")
    a(f"s_mul_i32 s62, s{sRho}, 5")
    for i in range(5):
        a(f"s_mul_i32 s{sT}, s{sW}, 5")
        a(f"s_add_u32 s{sT}, s{sT}, {i}")
        a(f"s_add_u32 s{sT2}, s{sT}, s62")
        a(f"s_cmp_ge_u32 s{sT2}, 40")
        a(f"s_cselect_b32 s{sIt}, 40, 0")
        a(f"s_sub_u32 s{sT2}, s{sT2}, s{sIt}")
        a(f"s_lshl_b32 s{sT2}, s{sT2}, 10")
        a(f"s_add_u32 s{sT2}, s{sT2}, s63")
        a(f"s_lshl_b32 m0, s{sT}, 10")
        a("s_nop 0")
        a(f"buffer_load_dwordx4 v{vX16}, s[{R_WS}:{R_WS+3}], s{sT2} offen sc1 lds")
    a("s_waitcnt vmcnt(0)")
    a("s_barrier")
    st.mark("oload")
    a(f"s_cmp_ge_u32 s{sW}, 4")
    a(f"s_cbranch_scc1 B2_side2")
    vm = Cnt(a, "vmcnt", 63); lg = Cnt(a, "lgkmcnt", 15)
    def xread(s_):
        r = XBUF + 4*(s_ % 4)
        a(f"ds_read_b128 {vr(r,4)}, v{vX16} offset:{s_*1024}")
        lg.issue(("X", s_))
    for s_ in range(3): xread(s_)
    for s_ in range(40):
        if s_ + 3 < 40: xread(s_ + 3)
        vm.need(("W", s_))
        lg.need(("X", s_))
        a(f"v_mfma_f32_32x32x16_bf16 {vr(ACC,16)}, {vr(blk(s_),4)}, {vr(XBUF+4*(s_%4),4)}, {vr(ACC,16)}")
        if s_ + NBLK < 40:
            wload(blk(s_)); vm.issue(("W", s_ + NBLK))
    st.mark("wo")
    a("s_setprio 3")
    a("s_barrier")
    a.nop(10)
    srd(a, R_C, S_OUT, S_OUT+1, NX)
    for q in range(4):
        a(f"v_cvt_pk_bf16_f32 v{32+2*q}, v{ACC+4*q}, v{ACC+4*q+1}")
        a(f"v_cvt_pk_bf16_f32 v{33+2*q}, v{ACC+4*q+2}, v{ACC+4*q+3}")
        a(f"buffer_store_dwordx2 v[{32+2*q}:{33+2*q}], v{vOut}, s[{R_C}:{R_C+3}], 0 offen offset:{16*q}")
    a("s_barrier")
    st.end()
    a("s_endpgm")
    a.label("B2_side2")
    for k in range(4):
        a(f"ds_read_b128 {vr(48+4*k,4)}, v{vXs} offset:{(8*(k//2)+(k%2))*1024}")
    for k in range(10):
        a(f"s_waitcnt lgkmcnt({min(3, 9-k)})")
        a(f"v_mfma_f32_32x32x16_bf16 {vr(ACC,16)}, {vr(WB+4*k,4)}, {vr(48+4*(k%4),4)}, {vr(ACC,16)}")
        if k + 4 < 10:
            a(f"ds_read_b128 {vr(48+4*(k%4),4)}, v{vXs} offset:{(8*((k+4)//2)+((k+4)%2))*1024}")
    a("s_setprio 3")
    a("s_barrier")
    a.nop(12)
    a(f"s_sub_u32 s{sT3}, s{sW}, 4")
    a(f"s_lshl_b32 s{sT}, s{sT3}, 12")
    a(f"v_add_u32 v{vT}, s{sT}, v{vX16}")
    for q in range(4):
        a(f"ds_write_b128 v{vT}, {vr(ACC+4*q,4)} offset:{q*1024}")
    a("s_waitcnt lgkmcnt(0)")
    a("s_barrier")
    a(f"s_lshl_b32 s{sT}, s{sT3}, 10")
    a(f"v_add_u32 v{vT}, s{sT}, v{vX16}")
    for jj in range(4):
        a(f"ds_read_b128 {vr(ACC+4*jj,4)}, v{vT} offset:{jj*4096}")
    a(f"s_lshl_b32 s{sT}, s{sT3}, 4")
    a(f"v_add_u32 v{vOut}, s{sT}, v{vOut}")
    srd(a, R_C, S_OUT, S_OUT+1, NX)
    a("s_waitcnt lgkmcnt(0)")
    for j in range(4):
        a(f"v_add_f32 v{ACC+j}, v{ACC+j}, v{ACC+4+j}")
        a(f"v_add_f32 v{ACC+8+j}, v{ACC+8+j}, v{ACC+12+j}")
    for j in range(4): a(f"v_add_f32 v{ACC+j}, v{ACC+j}, v{40+j}")
    for j in range(4): a(f"v_add_f32 v{ACC+j}, v{ACC+j}, v{ACC+8+j}")
    a(f"v_cvt_pk_bf16_f32 v32, v{ACC}, v{ACC+1}")
    a(f"v_cvt_pk_bf16_f32 v33, v{ACC+2}, v{ACC+3}")
    a(f"buffer_store_dwordx2 v[32:33], v{vOut}, s[{R_WS if False else R_C}:{R_C+3}], 0 offen")
    st.end()
    a("s_endpgm")

HEADER = """; out = x + MQA-attention(LN(x)) @ wo + FFN_relu2(LN(x))  -- one launch, two workgroup roles (8 waves each, 2 workgroups per CU).
"""

def gen():
    a = Asm()
    a("s_cmp_ge_u32 s2, 512")
    a("s_cbranch_scc1 K_end")
    a("s_load_dwordx16 s[4:19], s[0:1], 0")
    a("s_load_dwordx8 s[20:27], s[0:1], 64")
    a("s_load_dwordx2 s[28:29], s[0:1], 96")
    a(f"v_and_b32 v{vLane}, 63, v0")
    a(f"v_lshrrev_b32 v4, 6, v0")
    a(f"v_lshrrev_b32 v{vH}, 5, v{vLane}")
    a(f"v_readfirstlane_b32 s{sW}, v4")
    a(f"v_and_b32 v{vN}, 31, v{vLane}")
    a("s_cmp_ge_u32 s2, 256")
    a("s_cbranch_scc1 ROLE_B")
    role_A(a)
    a.label("ROLE_B")
    a("s_waitcnt lgkmcnt(0)")
    common_init(a)
    a("v_mov_b32 v4, 0"); a("v_mov_b32 v5, 0")
    n0 = len(a.lines)
    st = role_B1(a)
    role_B2(a, st)
    if OPT.get("mprio"):
        out = a.lines[:n0]; L = a.lines[n0:]; i = 0; cur = 0
        while i < len(L):
            if "s_setprio" in L[i]: cur = int(L[i].split()[-1])
            if "v_mfma" in L[i] and cur == 0:
                j = i
                while j < len(L) and "v_mfma" in L[j]: j += 1
                out.append(f"  s_setprio {OPT['mprio']}"); out += L[i:j]; out.append("  s_setprio 0"); i = j
            else:
                out.append(L[i]); i += 1
        a.lines = out
    a.label("K_end")
    a("s_endpgm")
    grid = OPT.get("grid", 512)
    s = f"; @launch grid=({grid},1,1) block=(512,1,1) lds={LDS_BYTES}\n" + HEADER
    s += '.amdgcn_target "amdgcn-amd-amdhsa--gfx950"\n.text\n'
    s += kernel_header(KN) + a.text()
    s += '.section .rodata,"a"\n.p2align 6\n' + kernel_desc(KN, 128, 102)
    return s

if __name__ == "__main__":
    if "--prof" in sys.argv: PROF = True
    for x in sys.argv:
        if x.startswith("-D"):
            k, _, v = x[2:].partition("="); OPT[k] = int(v) if v else 1
    open(sys.argv[1], "w").write(gen())
    if PROF: json.dump(STAMP_NAMES, open("stamps9.json", "w"))
```

```python
import sys, math, json
from asmlib import *

NAME = "parallel_sum__grouped_kv_mqa__dense_activation_squared_relu__prompt"
KN = NAME + "_kernel"
WS_XF = 0x0
WS_R  = 0x280000
WS_KV = 0x290000
WS_OF = 0x2D0000
WS_H  = 0x550000
WS_FL = 0xB50000
WS_WF = 0xBC0000
WS_END = 0xE70000
WS_DBG = 0x2000000
FL_KV, FL_D, FL_H, FL_W, FL_O = 0, 128, 640, 896, 1152
FL_N = 3200
FL_SIZE = FL_N * 128
NX = 2048 * 640 * 2
TS = 2688
VF = 704; VH = 352
KVB = 64 * TS
CH = 8 * TS
QSCALE = (20 ** -0.5) * math.log2(math.e)
DELTA = 96.0
LDS_BYTES = 81920
PROF = False
OPT = {}
SPIN_MAX = 200063

S_X, S_WQ, S_WK, S_WV, S_WO, S_W1, S_B1, S_W2, S_B2, S_OUT, S_DBG, S_WS = 4, 6, 8, 10, 12, 16, 18, 20, 22, 24, 26, 28
sW = 30
sTag = 31
R_WS = 32
R_FL = 36
R_A = 40
R_B = 44
R_C = 48
sRB, sCG, sT, sT2, sT3 = 52, 53, 54, 55, 56
vLane, vH, vN = 1, 2, 3

def diag(a, word, neg=False, va=74):
    if not OPT.get("diag") or neg: return
    L = a.newlabel("dgx")
    a(f"s_and_b32 s86, s2, 255")
    a(f"s_cmp_lg_u32 s86, {OPT.get('diagwg', 37)}")
    a(f"s_cbranch_scc1 {L}")
    a("s_memrealtime s[84:85]")
    a("s_waitcnt lgkmcnt(0)")
    a("s_mov_b64 s[86:87], exec")
    a("s_mov_b64 exec, 1")
    a(f"v_mov_b32 v{va}, s84")
    a(f"v_mov_b32 v{va+1}, {4*word}")
    a(f"global_store_dword v{va+1}, v{va}, s[{S_DBG}:{S_DBG+1}]")
    a("s_mov_b64 exec, s[86:87]")
    a.label(L)

class Stamps:
    def __init__(self, a, role): self.a = a; self.n = 1; self.names = []; self.role = role
    def start(self):
        if not PROF: return
        for i in range(68, 94): self.a(f"s_mov_b32 s{i}, 0")
        self.a("s_memrealtime s[64:65]"); self.a("s_memtime s[66:67]"); self.a("s_waitcnt lgkmcnt(0)"); self.n = 2
    def mark(self, name):
        if not PROF: return
        assert self.n < 15
        self.a(f"s_memtime s[{64+2*self.n}:{65+2*self.n}]"); self.a("s_waitcnt lgkmcnt(0)")
        self.n += 1; self.names.append(name)
    def end(self):
        if not PROF: return
        a = self.a
        a("s_waitcnt vmcnt(0)")
        self.mark("final-drain")
        a("s_memrealtime s[94:95]"); a("s_waitcnt lgkmcnt(0)")
        a("s_mov_b64 exec, 1")
        a(f"s_lshl_b32 s98, s2, 3")
        a(f"s_add_u32 s98, s98, s{sW}")
        a(f"s_lshl_b32 s98, s98, 6")
        a(f"s_add_u32 s98, s98, {WS_DBG}")
        a(f"s_add_u32 s96, s{S_WS}, s98")
        a(f"s_addc_u32 s97, s{S_WS+1}, 0")
        a(f"v_mov_b32 v0, 0")
        for i in list(range(14)) + [15]:
            a(f"v_mov_b32 v1, s{64+2*i}")
            a(f"global_store_dword v0, v1, s[96:97] offset:{4*i}")
        a(f"v_mov_b32 v1, {self.n}")
        a(f"global_store_dword v0, v1, s[96:97] offset:56")
        a("s_waitcnt vmcnt(0)")
        STAMP_NAMES[self.role] = self.names
STAMP_NAMES = {}

def bf16_round(a, dst, src):
    a(f"v_cvt_pk_bf16_f32 v{dst}, v{src}, v{src}")
    a(f"v_lshlrev_b32 v{dst}, 16, v{dst}")

def decode_rb_cg(a, j):
    a(f"s_lshr_b32 s{sCG}, s{j}, 6")
    a(f"s_and_b32 s{sRB}, s{j}, 7")
    a(f"s_lshl_b32 s{sRB}, s{sRB}, 3")
    a(f"s_bfe_u32 s{sT}, s{j}, 0x30003")
    a(f"s_add_u32 s{sRB}, s{sRB}, s{sT}")

TAG_AGE = 2000
TAGL = 81904
def get_tag(a, vt, lab, have=False):
    L = f"{lab}_tag"
    a(f"s_mov_b32 s{sT3}, {SPIN_MAX}")
    a(f"v_mov_b32 v{vt}, 0")
    if have:
        a(f"s_cmp_lg_u32 s{sTag}, 0")
        a(f"s_cbranch_scc1 {L}_val")
    a.label(L)
    a(f"global_load_dword v{vt+1}, v{vt}, s[{S_DBG}:{S_DBG+1}] sc1")
    a("s_waitcnt vmcnt(0)")
    a(f"v_readfirstlane_b32 s{sTag}, v{vt+1}")
    a(f"s_sub_u32 s{sT3}, s{sT3}, 1")
    a(f"s_cmp_eq_u32 s{sT3}, 0")
    a(f"s_cbranch_scc1 {L}_done")
    a(f"s_cmp_eq_u32 s{sTag}, 0")
    a(f"s_cbranch_scc0 {L}_val")
    a(f"s_and_b32 s62, s{sT3}, 31")
    a(f"s_cmp_eq_u32 s62, 0")
    a(f"s_cbranch_scc1 {L}_atom")
    a("s_sleep 1")
    a(f"s_branch {L}")
    a.label(f"{L}_val")
    a("s_memrealtime s[62:63]")
    a("s_waitcnt lgkmcnt(0)")
    a(f"s_sub_u32 s62, s62, s{sTag}")
    a(f"s_cmp_lt_u32 s62, {TAG_AGE}")
    a(f"s_cbranch_scc1 {L}_done")
    a.label(f"{L}_atom")
    a("s_mov_b64 s[62:63], exec")
    a("s_mov_b64 exec, 1")
    a(f"v_mov_b32 v{vt+1}, 0")
    a(f"global_atomic_add v{vt+1}, v{vt}, v{vt+1}, s[{S_DBG}:{S_DBG+1}] sc0 sc1")
    a("s_mov_b64 exec, s[62:63]")
    a("s_waitcnt vmcnt(0)")
    a(f"v_readfirstlane_b32 s{sTag}, v{vt+1}")
    a(f"s_cmp_eq_u32 s{sTag}, 0")
    a(f"s_cbranch_scc0 {L}_done")
    a(f"s_sub_u32 s{sT3}, s{sT3}, 1")
    a(f"s_cmp_eq_u32 s{sT3}, 0")
    a(f"s_cbranch_scc1 {L}_done")
    a("s_sleep 1")
    a(f"s_branch {L}")
    a.label(f"{L}_done")

def tag_to_lds(a, vt):
    a(f"v_mov_b32 v{vt}, {TAGL}")
    a(f"v_mov_b32 v{vt+1}, s{sTag}")
    a(f"ds_write_b32 v{vt}, v{vt+1}")

def tag_from_lds(a, vt):
    a(f"v_mov_b32 v{vt}, {TAGL}")
    a(f"ds_read_b32 v{vt+1}, v{vt}")

def poll_flags(a, vt, lab, s_idx, nflags, region, tries=None, sleep=None):
    if nflags == 128:
        poll_flags(a, vt, lab + "a", None, 64, region, tries, sleep)
        poll_flags(a, vt, lab + "b", None, 64, region + 64, tries, sleep)
        return
    L = f"{lab}_poll"
    a(f"v_lshlrev_b32 v{vt}, 7, v{vLane}")
    if s_idx is None:
        a(f"s_mov_b32 s63, {region*128}")
    else:
        a(f"s_lshl_b32 s63, s{s_idx}, 7")
        if region: a(f"s_add_u32 s63, s63, {region*128}")
    a(f"s_mov_b32 s{sT3}, {tries or SPIN_MAX}")
    a("s_mov_b64 s[100:101], exec")
    if nflags < 64:
        a(f"s_mov_b32 exec_lo, {(1 << min(nflags, 32)) - 1 if nflags < 32 else -1}")
        a(f"s_mov_b32 exec_hi, {((1 << (nflags - 32)) - 1) if nflags > 32 else 0}")
    a.label(L)
    a(f"s_and_b32 s62, s{sT3}, 63")
    a(f"s_cmp_eq_u32 s62, 0")
    a(f"s_cbranch_scc1 {L}_atom")
    a(f"buffer_load_dword v{vt+1}, v{vt}, s[{R_FL}:{R_FL+3}], s63 offen sc1")
    a(f"s_branch {L}_got")
    a.label(f"{L}_atom")
    a(f"v_mov_b32 v{vt+1}, 0")
    a(f"buffer_atomic_add v{vt+1}, v{vt}, s[{R_FL}:{R_FL+3}], s63 offen sc0 sc1")
    a.label(f"{L}_got")
    a("s_waitcnt vmcnt(0)")
    a(f"v_cmp_ne_u32 vcc, s{sTag}, v{vt+1}")
    a("s_nop 1")
    a(f"s_and_b64 exec, exec, vcc")
    a(f"s_cbranch_execz {L}_done")
    a(f"s_sub_u32 s{sT3}, s{sT3}, 1")
    a(f"s_cmp_eq_u32 s{sT3}, 0")
    a(f"s_cbranch_scc1 {L}_done")
    a(f"s_sleep {sleep if sleep is not None else OPT.get('sleep', 6)}")
    a(f"s_branch {L}")
    a.label(f"{L}_done")
    a("s_mov_b64 exec, s[100:101]")

def set_flag(a, vt, s_idx, region):
    a(f"v_mov_b32 v{vt}, s{sTag}")
    a(f"v_mov_b32 v{vt+1}, 0")
    a(f"s_lshl_b32 s63, s{s_idx}, 7")
    if region: a(f"s_add_u32 s63, s63, {region*128}")
    a("s_mov_b64 s[100:101], exec")
    a("s_mov_b64 exec, 1")
    a(f"buffer_store_dword v{vt}, v{vt+1}, s[{R_FL}:{R_FL+3}], s63 offen sc1")
    a("s_mov_b64 exec, s[100:101]")

def tr_addr(a, dst, dst2, pitch, hrows, second_rows, s_base, t):
    a(f"v_bfe_u32 v{t}, v{vLane}, 2, 2")
    a(f"v_mul_u32_u24 v{t+1}, {hrows}, v{vH}")
    a(f"v_add_u32 v{t}, v{t}, v{t+1}")
    a(f"v_bfe_u32 v{t+1}, v{vLane}, 4, 1")
    a(f"v_and_b32 v{t+2}, 3, v{vLane}")
    a(f"v_lshlrev_b32 v{t+2}, 3, v{t+2}")
    a(f"v_lshl_add_u32 v{t+1}, v{t+1}, 5, v{t+2}")
    a(f"v_mul_u32_u24 v{dst}, {pitch}, v{t}")
    a(f"v_add3_u32 v{dst}, v{dst}, v{t+1}, s{s_base}")
    if dst2 is not None:
        a(f"v_add_u32 v{dst2}, {second_rows*pitch}, v{dst}")

def common_init(a, skip_a=False):
    srd(a, R_WS, S_WS, S_WS+1, WS_END)
    srd(a, R_FL, S_WS, S_WS+1, FL_SIZE, WS_FL)
    for r in ((R_B, R_C) if skip_a else (R_A, R_B, R_C)): srd(a, r, S_WS, S_WS+1, WS_END)
    for i in range(6, 16): a(f"v_mov_b32 v{i}, 0")

def role_A(a):
    OPT["nopre0"] = 1
    st = Stamps(a, "A")
    st.start()
    XB = 0; XP = 1056; XH = 528; RBUF = 42240
    RING = 42496; NSTG = 3; RW = NSTG*1024; DEPTH = 16
    KSTG = 57856
    KVX = 67072
    LFL = XB + 512
    LFL2 = XB + 1040
    T4F = 75264
    SB = [0, 16384, 32768, 49152]
    QBUF = 65536; QP = 328
    sStep, sSoff, sLds, sRho, sWrap, sIt = 57, 58, 59, 60, 61, 57
    sExp, sFD = 95, 94
    vT = 4
    vVo, vTr, vTr2, vX16 = 12, 13, 14, 15
    X = 16
    TMP = 36
    vSum, vSq, vM = 52, 53, 54
    vOne, vSelLo, vSelHi = 56, 57, 58
    vR, vXa, vWst, vTag = 9, 10, 11, 61
    ACC = 16; FB = 32; WS_ = 64
    a(f"s_mov_b32 s{sT2}, s2")
    decode_rb_cg(a, sT2)
    a(f"s_lshl_b32 s{sT}, s{sRB}, 5")
    a(f"s_lshl_b32 s{sT2}, s{sW}, 2")
    a(f"s_add_u32 s{sT}, s{sT}, s{sT2}")
    a(f"v_lshrrev_b32 v{vT}, 4, v{vLane}")
    a(f"v_add_u32 v{vT}, s{sT}, v{vT}")
    a(f"v_mul_u32_u24 v{vT}, 1280, v{vT}")
    a(f"v_and_b32 v{vT+1}, 15, v{vLane}")
    a(f"v_lshl_add_u32 v{vT}, v{vT+1}, 4, v{vT}")
    a("s_waitcnt lgkmcnt(0)")
    srd(a, R_A, S_X, S_X+1, NX)
    for i in range(5):
        a(f"buffer_load_dwordx4 {vr(X+4*i,4)}, v{vT}, s[{R_A}:{R_A+3}], 0 offen offset:{256*i}")
    common_init(a, skip_a=True)
    L_notag = "A_notag"
    a(f"s_cmp_lg_u32 s2, 0")
    a(f"s_cbranch_scc1 {L_notag}")
    a(f"s_cmp_lg_u32 s{sW}, 0")
    a(f"s_cbranch_scc1 {L_notag}")
    a(f"s_memrealtime s[62:63]")
    a("s_waitcnt lgkmcnt(0)")
    a(f"s_or_b32 s62, s62, 1")
    a(f"v_mov_b32 v{vT+2}, s62")
    a(f"v_mov_b32 v{vT+3}, 0")
    a("s_mov_b64 exec, 1")
    a(f"global_store_dword v{vT+3}, v{vT+2}, s[{S_DBG}:{S_DBG+1}] sc1")
    a("s_mov_b64 exec, -1")
    a.label(L_notag)
    a(f"v_lshlrev_b32 v{vX16}, 4, v{vLane}")
    a(f"s_and_b32 s{sRho}, s{sRB}, 7")
    L_nowe = "A_nowe"
    a(f"s_cmp_lt_u32 s{sW}, 5")
    a(f"s_cbranch_scc1 {L_nowe}")
    a(f"s_cmp_ge_u32 s{sCG}, 2")
    a(f"s_cbranch_scc1 {L_nowe}")
    a(f"s_cmp_eq_u32 s{sCG}, 1")
    a(f"s_cselect_b32 s{R_B}, s{S_WV}, s{S_WK}")
    a(f"s_cselect_b32 s{R_B+1}, s{S_WV+1}, s{S_WK+1}")
    a(f"s_mov_b32 s{R_B+2}, {640*20*2}")
    a(f"s_mov_b32 s{R_B+3}, 0x00020000")
    a(f"s_sub_u32 s{sT}, s{sW}, 5")
    a(f"s_mul_i32 s{sStep}, s{sT}, 13")
    a(f"s_min_u32 s{sT}, s{sT}, 1")
    a(f"s_add_u32 s{sStep}, s{sStep}, s{sT}")
    a(f"s_mul_i32 s{sT}, s{sRho}, 5")
    a(f"s_add_u32 s{sT2}, s{sStep}, s{sT}")
    a(f"s_cmp_ge_u32 s{sT2}, 40")
    a(f"s_cselect_b32 s{sT}, 40, 0")
    a(f"s_sub_u32 s{sT2}, s{sT2}, s{sT}")
    a(f"s_mul_i32 s{sSoff}, s{sT2}, 640")
    for i in range(14):
        a(f"s_add_u32 s{sT}, s{sSoff}, 640")
        a(f"buffer_load_dwordx4 {vr(WS_+4*i,4)}, v{vX16}, s[{R_B}:{R_B+3}], s{sSoff} offen")
        a(f"s_cmp_eq_u32 s{sT}, 25600")
        a(f"s_cselect_b32 s{sSoff}, 0, s{sT}")
    a.label(L_nowe)
    a("s_barrier")
    L_nq = "A_nq"
    a(f"s_cmp_ge_u32 s{sW}, 5")
    a(f"s_cbranch_scc1 {L_nq}")
    srd(a, R_B, S_WQ, S_WQ+1, 640*640*2)
    a(f"v_lshrrev_b32 v{vT}, 2, v{vLane}")
    a(f"v_mul_u32_u24 v{vT}, 1280, v{vT}")
    a(f"v_and_b32 v{vT+1}, 3, v{vLane}")
    a(f"v_lshl_add_u32 v{vT}, v{vT+1}, 4, v{vT}")
    a(f"s_mul_i32 s{sT}, s{sCG}, 320")
    a(f"s_lshl_b32 s{sT2}, s{sW}, 6")
    a(f"s_add_u32 s{sT}, s{sT}, s{sT2}")
    a(f"v_add_u32 v{vVo}, s{sT}, v{vT}")
    a(f"s_mul_i32 s{sLds}, s{sW}, {RW}")
    a(f"s_add_u32 s{sLds}, s{sLds}, {RING}")
    a(f"s_mul_i32 s{sSoff}, s{sRho}, {5*20480}")
    def wload(k):
        d = WS_ + 4*(k % DEPTH)
        a(f"s_add_u32 s{sT}, s{sSoff}, 20480")
        a(f"buffer_load_dwordx4 {vr(d,4)}, v{vVo}, s[{R_B}:{R_B+3}], s{sSoff} offen")
        a(f"s_cmp_eq_u32 s{sT}, {40*20480}")
        a(f"s_cselect_b32 s{sSoff}, 0, s{sT}")
    NW0 = OPT.get("NW0", 8)
    for k in range(NW0): wload(k)
    tr_addr(a, vTr, vTr2, 64, 8, 4, sLds, vT)
    a(f"v_add_u32 v{vWst}, s{sLds}, v{vX16}")
    PRE = (not PROF) and OPT.get("presoff", 0)
    if PRE:
        a(f"s_mul_i32 s{sT2}, s{sRho}, 5")
        a(f"s_add_u32 s{sT2}, s{sT2}, {DEPTH}")
        a(f"s_cmp_ge_u32 s{sT2}, 40")
        a(f"s_cselect_b32 s{sT}, 40, 0")
        a(f"s_sub_u32 s{sT2}, s{sT2}, s{sT}")
        a(f"s_mul_i32 s{sT2}, s{sT2}, 20480")
        for k in range(DEPTH, 40):
            a(f"s_mov_b32 s{64 + k - DEPTH}, s{sT2}")
            a(f"s_add_u32 s{sT}, s{sT2}, 20480")
            a(f"s_cmp_eq_u32 s{sT}, {40*20480}")
            a(f"s_cselect_b32 s{sT2}, 0, s{sT}")
    a(f"s_waitcnt vmcnt({NW0})")
    a(f"s_mov_b32 s{sTag}, 0")
    a(f"s_branch A_xok")
    a.label(L_nq)
    a(f"s_waitcnt vmcnt(14)")
    a(f"s_cmp_lt_u32 s{sCG}, 2")
    a(f"s_cbranch_scc1 A_xok2")
    a(f"s_waitcnt vmcnt(0)")
    a.label("A_xok2")
    a(f"v_mov_b32 v{vT}, 0")
    a(f"global_load_dword v{vTag}, v{vT}, s[{S_DBG}:{S_DBG+1}] sc1")
    a.label("A_xok")
    st.mark("xwait")
    a(f"v_mov_b32 v{vOne}, 0x3f803f80")
    a(f"v_mov_b32 v{vSelLo}, 0x00003f80")
    a(f"v_mov_b32 v{vSelHi}, 0x3f800000")
    for i in range(4): a(f"v_mov_b32 v{TMP+i}, 0")
    for i in range(20):
        a(f"v_dot2c_f32_bf16 v{TMP+(i%2)}, v{X+i}, v{vOne}")
        a(f"v_dot2c_f32_bf16 v{TMP+2+(i%2)}, v{X+i}, v{X+i}")
    a(f"v_lshrrev_b32 v{vT}, 4, v{vLane}")
    a(f"s_lshl_b32 s{sT}, s{sW}, 2")
    a(f"v_add_u32 v{vT}, s{sT}, v{vT}")
    a(f"v_and_b32 v{vT+1}, 1, v{vLane}")
    a(f"v_mul_u32_u24 v{vT+1}, {XH}, v{vT+1}")
    a(f"v_lshl_add_u32 v{vT+1}, v{vT}, 4, v{vT+1}")
    a(f"v_add_f32 v{vSum}, v{TMP}, v{TMP+1}")
    a(f"v_add_f32 v{vSq}, v{TMP+2}, v{TMP+3}")
    a(f"v_bfe_u32 v{vT+2}, v{vLane}, 1, 3")
    a(f"s_mul_i32 s{sT}, s{sRho}, 5")
    a(f"s_sub_u32 s{sT}, 40, s{sT}")
    for ror in (8, 4, 2, 1):
        a(f"v_add_f32_dpp v{vSum}, v{vSum}, v{vSum} row_ror:{ror} row_mask:0xf bank_mask:0xf")
        a(f"v_add_f32_dpp v{vSq}, v{vSq}, v{vSq} row_ror:{ror} row_mask:0xf bank_mask:0xf")
        if ror != 1: a.nop(1)
    a(f"v_add_u32 v{vT+2}, s{sT}, v{vT+2}")
    inv = f32bits(1.0/640)
    a(f"v_mul_f32 v{vM}, {inv}, v{vSum}")
    a(f"v_mul_f32 v{TMP+1}, {inv}, v{vSq}")
    a(f"v_fma_f32 v{TMP+1}, -v{vM}, v{vM}, v{TMP+1}")
    a(f"v_max_f32 v{TMP+1}, 0, v{TMP+1}")
    bf16_round(a, TMP+1, TMP+1)
    bf16_round(a, vM, vM)
    a(f"v_add_f32 v{TMP+1}, {f32bits(1e-5)}, v{TMP+1}")
    a(f"v_sub_f32 v{vM}, 0, v{vM}")
    bf16_round(a, TMP+1, TMP+1)
    a(f"v_sqrt_f32 v{vSum}, v{TMP+1}")
    for base in range(0, 20, 8):
        g = min(8, 20-base)
        for i in range(g):
            a(f"v_dot2_f32_bf16 v{TMP+2*i}, v{X+base+i}, v{vSelLo}, v{vM}")
            a(f"v_dot2_f32_bf16 v{TMP+2*i+1}, v{X+base+i}, v{vSelHi}, v{vM}")
        if base == 0:
            bf16_round(a, vSum, vSum)
            a(f"v_rcp_f32 v{vR}, v{vSum}")
        else:
            a.nop(3)
        for i in range(g):
            a(f"v_cvt_pk_bf16_f32 v{X+base+i}, v{TMP+2*i}, v{TMP+2*i+1}")
    a(f"v_lshlrev_b32 v{vT+3}, 2, v{vT}")
    a(f"ds_write_b32 v{vT+3}, v{vR} offset:{RBUF}")
    for i in range(5):
        if i: a(f"v_add_u32 v{vT+2}, 8, v{vT+2}")
        a(f"v_subrev_u32 v{vT+3}, 40, v{vT+2}")
        a(f"v_min_u32 v{vT+3}, v{vT+3}, v{vT+2}")
        a(f"v_mul_u32_u24 v{vT+3}, {XP}, v{vT+3}")
        a(f"v_add_u32 v{vT+3}, v{vT+3}, v{vT+1}")
        a(f"ds_write_b128 v{vT+3}, {vr(X+4*i,4)} offset:{XB}")
    a(f"v_mul_u32_u24 v{vXa}, {XH}, v{vH}")
    a(f"v_lshl_add_u32 v{vXa}, v{vN}, 4, v{vXa}")
    a(f"s_cmp_ge_u32 s{sW}, 5")
    a(f"s_cbranch_scc1 A_ln5")
    for k in range(NW0, 10): wload(k)
    a(f"s_cmp_eq_u32 s{sW}, 4")
    a(f"s_cbranch_scc1 A_lnb")
    for k in range(10, DEPTH): wload(k)
    a(f"s_branch A_lnb")
    a.label("A_ln5")
    a(f"v_mov_b32 v{vT}, {LFL}")
    for i in range(4): a(f"v_mov_b32 v{TMP+i}, 0")
    a(f"ds_write_b128 v{vT}, v[{TMP}:{TMP+3}]")
    a(f"ds_write_b128 v{vT}, v[{TMP}:{TMP+3}] offset:{LFL2-LFL}")
    a("s_waitcnt vmcnt(0)")
    a(f"v_readfirstlane_b32 s{sTag}, v{vTag}")
    a.label("A_lnb")
    a("s_waitcnt lgkmcnt(0)")
    a("s_barrier")
    a(f"v_lshlrev_b32 v{vT}, 2, v{vN}")
    a(f"ds_read_b32 v{vR}, v{vT} offset:{RBUF}")
    st.mark("LN")
    if OPT.get("diag"):
        a(f"s_cmp_lg_u32 s{sW}, 0"); Ld = a.newlabel("dg"); a(f"s_cbranch_scc1 {Ld}"); diag(a, 4, va=62); diag(a, 5, neg=True, va=62); a.label(Ld)
    def ensure_tag(lab):
        get_tag(a, vT, lab, have=True)
    L_kvp, L_exp, L_bar1 = "A_kvp", "A_exp", "A_bar1"
    a(f"s_cmp_ge_u32 s{sW}, 5")
    a(f"s_cbranch_scc1 {L_kvp}")
    a(f"s_cmp_eq_u32 s{sW}, 4")
    a(f"s_cbranch_scc1 A_job4")
    if OPT.get("noq"): a(f"s_branch {L_bar1}")
    def pipe_gemm(nsteps, wr, rd, need_vm, refill, cin0):
        for k in range(5):
            if k < nsteps:
                need_vm(k, -5 + k)
                wr(k)
            if 0 <= k - 2 < nsteps: rd(k - 2)
        for s_ in range(nsteps):
            n_ops = 0
            if s_ + 5 < nsteps:
                need_vm(s_ + 5, s_)
                wr(s_ + 5)
            if s_ + 3 < nsteps: rd(s_ + 3)
            for t in range(s_ + 1, s_ + 4):
                if t + 2 < nsteps: n_ops += 1
                if t < nsteps: n_ops += 3
            a(f"s_waitcnt lgkmcnt({n_ops})")
            f = FB + 8*(s_ % 4)
            cin = cin0 if s_ == 0 else vr(ACC, 16)
            a(f"v_mfma_f32_32x32x16_bf16 {vr(ACC,16)}, {vr(f,4)}, {vr(f+4,4)}, {cin}")
            refill(s_)
    def q_wr(k): a(f"ds_write_b128 v{vWst}, {vr(WS_+4*(k % DEPTH),4)} offset:{(k % NSTG)*1024}")
    def q_rd(k):
        f = FB + 8*(k % 4)
        a(f"ds_read_b64_tr_b16 v[{f}:{f+1}], v{vTr} offset:{(k % NSTG)*1024}")
        a(f"ds_read_b64_tr_b16 v[{f+2}:{f+3}], v{vTr2} offset:{(k % NSTG)*1024}")
        a(f"ds_read_b128 {vr(f+4,4)}, v{vXa} offset:{XB + k*XP}")
    def q_vm(k, s_now):
        issued = DEPTH + max(0, min(s_now, 40 - DEPTH + QOFF) - QOFF) if s_now > 0 else DEPTH
        issued = min(issued, 40)
        a(f"s_waitcnt vmcnt({issued - 1 - k})")
    QOFF = 0
    def q_refill(s_):
        if s_ + DEPTH < 40:
            if PRE:
                k = s_ + DEPTH
                a(f"buffer_load_dwordx4 {vr(WS_ + 4*(k % DEPTH),4)}, v{vVo}, s[{R_B}:{R_B+3}], s{64 + k - DEPTH} offen")
            else:
                wload(s_ + DEPTH)
    pipe_gemm(40, q_wr, q_rd, q_vm, q_refill, "0")
    st.mark("gemm")
    a.nop(12)
    a(f"v_mul_f32 v{vT}, {f32bits(QSCALE)}, v{vR}")
    for j in range(16): a(f"v_mul_f32 v{ACC+j}, v{ACC+j}, v{vT}")
    for k in range(8): a(f"v_cvt_pk_bf16_f32 v{TMP+k}, v{ACC+2*k}, v{ACC+2*k+1}")
    a(f"s_branch {L_bar1}")

    JW = WS_ + 20
    def job_loads():
        srd(a, R_B, S_WQ, S_WQ+1, 640*640*2)
        a(f"v_lshrrev_b32 v{vT}, 2, v{vLane}")
        a(f"v_mul_u32_u24 v{vT}, 1280, v{vT}")
        a(f"v_and_b32 v{vT+1}, 3, v{vLane}")
        a(f"v_lshl_add_u32 v{vT}, v{vT+1}, 4, v{vT}")
        a(f"s_mul_i32 s{sT}, s{sCG}, 320")
        a(f"s_add_u32 s{sT}, s{sT}, 256")
        a(f"v_add_u32 v{vT}, s{sT}, v{vT}")
        a(f"s_sub_u32 s{sT}, s{sW}, 4")
        a(f"s_mul_i32 s{sT}, s{sT}, 10")
        a(f"s_mul_i32 s{sT2}, s{sRho}, 5")
        a(f"s_add_u32 s{sT}, s{sT}, s{sT2}")
        a(f"s_cmp_ge_u32 s{sT}, 40")
        a(f"s_cselect_b32 s{sT2}, 40, 0")
        a(f"s_sub_u32 s{sT}, s{sT}, s{sT2}")
        a(f"s_mul_i32 s{sSoff}, s{sT}, 20480")
        for k in range(10):
            a(f"s_add_u32 s{sT}, s{sSoff}, 20480")
            a(f"buffer_load_dwordx4 {vr(JW+4*k,4)}, v{vT}, s[{R_B}:{R_B+3}], s{sSoff} offen")
            a(f"s_cmp_eq_u32 s{sT}, {40*20480}")
            a(f"s_cselect_b32 s{sSoff}, 0, s{sT}")
    def job_run(raw, vm_after):
        tr_addr(a, vTr, vTr2, 64, 8, 4, sLds, vT)
        a(f"v_add_u32 v{vWst}, s{sLds}, v{vX16}")
        a(f"s_sub_u32 s{sT}, s{sW}, 4")
        a(f"s_mul_i32 s{sT}, s{sT}, {10*XP}")
        a(f"v_add_u32 v{vVo}, s{sT}, v{vXa}")
        def j_wr(k): a(f"ds_write_b128 v{vWst}, {vr(raw+4*k,4)} offset:{(k % NSTG)*1024}")
        def j_rd(k):
            f = FB + 8*(k % 4)
            a(f"ds_read_b64_tr_b16 v[{f}:{f+1}], v{vTr} offset:{(k % NSTG)*1024}")
            a(f"ds_read_b64_tr_b16 v[{f+2}:{f+3}], v{vTr2} offset:{(k % NSTG)*1024}")
            a(f"ds_read_b128 {vr(f+4,4)}, v{vVo} offset:{k*XP}")
        def j_vm(k, s_): a(f"s_waitcnt vmcnt({9 - k + vm_after})")
        pipe_gemm(10, j_wr, j_rd, j_vm, lambda s_: None, "0")
        a("s_waitcnt lgkmcnt(0)")
        a.nop(12)
    def job_publish():
        Lp5, Lpd = a.newlabel("A_jp5"), a.newlabel("A_jpd")
        a(f"s_cmp_eq_u32 s{sW}, 5")
        a(f"s_cbranch_scc1 {Lp5}")
        for q in range(3): a(f"ds_write_b128 v{vWst}, {vr(ACC+4*q,4)} offset:{q*1024}")
        a(f"s_sub_u32 s{sT}, s{sW}, 6")
        a(f"s_lshl_b32 s{sT}, s{sT}, 10")
        a(f"s_add_u32 s{sT}, s{sT}, {T4F}")
        a(f"v_add_u32 v{vT}, s{sT}, v{vX16}")
        a(f"ds_write_b128 v{vT}, {vr(ACC+12,4)}")
        a(f"s_branch {Lpd}")
        a.label(Lp5)
        a(f"v_add_u32 v{vT}, {KVX+4096}, v{vX16}")
        for q in range(4): a(f"ds_write_b128 v{vT}, {vr(ACC+4*q,4)} offset:{q*1024}")
        a.label(Lpd)
        a(f"s_sub_u32 s{sT}, s{sW}, 5")
        a(f"s_lshl_b32 s{sT}, s{sT}, 2")
        a(f"s_add_u32 s{sT}, s{sT}, {LFL2}")
        a(f"v_mov_b32 v{vT}, s{sT}")
        a(f"v_mov_b32 v{vT+1}, 1")
        a(f"ds_write_b32 v{vT}, v{vT+1}")
    a.label("A_job4")
    job_run(WS_, 0)
    a(f"v_mov_b32 v{vT}, {LFL2}")
    a(f"s_mov_b32 s{sT3}, {SPIN_MAX}")
    a.label("A_j4spin")
    a(f"ds_read_b96 v[{vT+2}:{vT+4}], v{vT}")
    a("s_waitcnt lgkmcnt(0)")
    a(f"v_and_b32 v{vT+2}, v{vT+2}, v{vT+3}")
    a(f"v_and_b32 v{vT+2}, v{vT+2}, v{vT+4}")
    a("s_nop 0")
    a(f"v_readfirstlane_b32 s{sT}, v{vT+2}")
    a(f"s_sub_u32 s{sT3}, s{sT3}, 1")
    a(f"s_cmp_eq_u32 s{sT3}, 0")
    a(f"s_cbranch_scc1 A_j4spin_done")
    a(f"s_cmp_eq_u32 s{sT}, 1")
    a(f"s_cbranch_scc1 A_j4spin_done")
    a("s_sleep 1")
    a(f"s_branch A_j4spin")
    a.label("A_j4spin_done")
    a(f"v_add_u32 v{vT}, {KVX+4096}, v{vX16}")
    a(f"v_add_u32 v{vT+1}, {KSTG+3072}, v{vX16}")
    a(f"v_add_u32 v{vT+2}, {T4F}, v{vX16}")
    for q in range(4): a(f"ds_read_b128 {vr(64+4*q,4)}, v{vT} offset:{q*1024}")
    for p_ in range(2):
        for q in range(3): a(f"ds_read_b128 {vr(80+16*p_+4*q,4)}, v{vT+1} offset:{p_*3072 + q*1024}")
        a(f"ds_read_b128 {vr(80+16*p_+12,4)}, v{vT+2} offset:{p_*1024}")
    a("s_waitcnt lgkmcnt(0)")
    for j in range(16): a(f"v_add_f32 v{64+j}, v{64+j}, v{80+j}")
    for j in range(16): a(f"v_add_f32 v{ACC+j}, v{ACC+j}, v{96+j}")
    for j in range(16): a(f"v_add_f32 v{ACC+j}, v{ACC+j}, v{64+j}")
    st.mark("job4")
    a(f"v_mul_f32 v{vT}, {f32bits(QSCALE)}, v{vR}")
    for j in range(16): a(f"v_mul_f32 v{ACC+j}, v{ACC+j}, v{vT}")
    for k in range(8): a(f"v_cvt_pk_bf16_f32 v{TMP+k}, v{ACC+2*k}, v{ACC+2*k+1}")
    a(f"s_branch {L_bar1}")
    def export_d():
        a(f"s_mul_i32 s{sT}, s{sCG}, 2")
        a(f"s_add_u32 s{sT}, s{sT}, s{sW}")
        a(f"s_sub_u32 s{sT}, s{sT}, 6")
        a(f"s_sub_u32 s{sT2}, s{sT}, s{sRho}")
        a(f"s_and_b32 s{sT2}, s{sT2}, 7")
        a(f"s_mul_i32 s{sT2}, s{sT2}, {5*XP}")
        a(f"v_add_u32 v{vT}, s{sT2}, v{vXa}")
        for i in range(5):
            a(f"ds_read_b128 {vr(X+4*i,4)}, v{vT} offset:{XB + XP*i}")
        a(f"s_mul_i32 s{sT2}, s{sRB}, 40")
        a(f"s_mul_i32 s{sExp}, s{sT}, 5")
        a(f"s_add_u32 s{sT2}, s{sT2}, s{sExp}")
        a(f"s_lshl_b32 s{sT2}, s{sT2}, 10")
        if WS_XF: a(f"s_add_u32 s{sT2}, s{sT2}, {WS_XF}")
        a(f"s_lshl_b32 s{sFD}, s{sRB}, 3")
        a(f"s_add_u32 s{sFD}, s{sFD}, s{sT}")
        a(f"v_add_u32 v{vT+1}, 4096, v{vX16}")
        a("s_waitcnt lgkmcnt(0)")
        for i in range(4):
            a(f"buffer_store_dwordx4 {vr(X+4*i,4)}, v{vX16}, s[{R_WS}:{R_WS+3}], s{sT2} offen offset:{1024*i} sc1")
        a(f"buffer_store_dwordx4 {vr(X+16,4)}, v{vT+1}, s[{R_WS}:{R_WS+3}], s{sT2} offen sc1")
        L_nor = "A_nor"
        a(f"s_cmp_lg_u32 s{sT}, 0")
        a(f"s_cbranch_scc1 {L_nor}")
        a(f"s_lshl_b32 s{sT2}, s{sRB}, 7")
        a(f"s_add_u32 s{sT2}, s{sT2}, {WS_R}")
        a(f"v_lshlrev_b32 v{vT}, 2, v{vN}")
        a(f"buffer_store_dword v{vR}, v{vT}, s[{R_WS}:{R_WS+3}], s{sT2} offen sc1")
        a.label(L_nor)
    a.label(L_kvp)
    a("s_setprio 3")
    if OPT.get("expfirst", 0):
        a(f"s_cmp_lt_u32 s{sW}, 6")
        a(f"s_cbranch_scc1 A_noexp")
        export_d()
        a.label("A_noexp")
    a(f"s_cmp_ge_u32 s{sCG}, 2")
    a(f"s_cbranch_scc1 A_kvp_skip")
    a(f"s_sub_u32 s{sT}, s{sW}, 5")
    a(f"s_mul_i32 s{sLds}, s{sT}, 3072")
    a(f"s_add_u32 s{sLds}, s{sLds}, {KSTG}")
    tr_addr(a, vTr, vTr2, 40, 8, 4, sLds, vT)
    a(f"v_add_u32 v{vWst}, s{sLds}, v{vX16}")
    a(f"s_mul_i32 s{sT}, s{sStep}, {XP}")
    a(f"v_add_u32 v{vVo}, s{sT}, v{vXa}")
    a(f"v_add_u32 v{vT+4}, {13*XP}, v{vVo}")
    a(f"s_cmp_eq_u32 s{sW}, 5")
    a(f"s_cbranch_scc1 A_kv13")
    for i in range(4): a(f"v_mov_b32 v{WS_+52+i}, 0")
    a(f"v_mov_b32 v{vT+4}, v{vXa}")
    a.label("A_kv13")
    def k_wr(k): a(f"ds_write_b128 v{vWst}, {vr(WS_+4*k,4)} offset:{(k % NSTG)*1024}")
    def k_rd(k):
        f = FB + 8*(k % 4)
        a(f"ds_read_b64_tr_b16 v[{f}:{f+1}], v{vTr} offset:{(k % NSTG)*1024}")
        a(f"ds_read_b64_tr_b16 v[{f+2}:{f+3}], v{vTr2} offset:{(k % NSTG)*1024}")
        if k == 13: a(f"ds_read_b128 {vr(f+4,4)}, v{vT+4}")
        else: a(f"ds_read_b128 {vr(f+4,4)}, v{vVo} offset:{k*XP}")
    pipe_gemm(14, k_wr, k_rd, lambda k, s_: None, lambda s_: None, "0")
    a("s_waitcnt lgkmcnt(0)")
    job_loads()
    a(f"s_cmp_eq_u32 s{sW}, 5")
    a(f"s_cbranch_scc1 A_kv5")
    a(f"s_sub_u32 s{sT}, s{sW}, 6")
    a(f"s_lshl_b32 s{sT}, s{sT}, 12")
    a(f"s_add_u32 s{sT}, s{sT}, {KVX}")
    a(f"v_add_u32 v{vT}, s{sT}, v{vX16}")
    for q in range(4):
        a(f"ds_write_b128 v{vT}, {vr(ACC+4*q,4)} offset:{q*1024}")
    a(f"s_sub_u32 s{sT}, s{sW}, 6")
    a(f"s_lshl_b32 s{sT}, s{sT}, 2")
    a(f"s_add_u32 s{sT}, s{sT}, {LFL}")
    a(f"v_mov_b32 v{vT}, s{sT}")
    a(f"v_mov_b32 v{vT+1}, 1")
    a(f"ds_write_b32 v{vT}, v{vT+1}")
    a(f"s_branch A_kvp_done")
    a.label("A_kv5")
    a(f"v_mov_b32 v{vT}, {LFL}")
    a(f"s_mov_b32 s{sT3}, {SPIN_MAX}")
    a.label("A_kvspin")
    a(f"ds_read_b64 v[{vT+2}:{vT+3}], v{vT}")
    a("s_waitcnt lgkmcnt(0)")
    a(f"v_and_b32 v{vT+2}, v{vT+2}, v{vT+3}")
    a("s_nop 0")
    a(f"v_readfirstlane_b32 s{sT}, v{vT+2}")
    a(f"s_sub_u32 s{sT3}, s{sT3}, 1")
    a(f"s_cmp_eq_u32 s{sT3}, 0")
    a(f"s_cbranch_scc1 A_kvspin_done")
    a(f"s_cmp_eq_u32 s{sT}, 1")
    a(f"s_cbranch_scc1 A_kvspin_done")
    a("s_sleep 1")
    a(f"s_branch A_kvspin")
    a.label("A_kvspin_done")
    a(f"v_add_u32 v{vT}, {KVX}, v{vX16}")
    for p_ in range(2):
        for q in range(4):
            a(f"ds_read_b128 {vr(FB+16*p_+4*q,4)}, v{vT} offset:{p_*4096 + q*1024}")
    a("s_waitcnt lgkmcnt(0)")
    for j in range(16):
        a(f"v_add_f32 v{FB+j}, v{FB+j}, v{FB+16+j}")
    for j in range(16):
        a(f"v_add_f32 v{ACC+j}, v{ACC+j}, v{FB+j}")
    for j in range(16): a(f"v_mul_f32 v{ACC+j}, v{ACC+j}, v{vR}")
    a(f"v_cmp_eq_u32 vcc, 1, v{vH}")
    a(f"v_mov_b32 v{vT}, 1.0")
    a(f"v_mov_b32 v{vT+1}, 0")
    a(f"v_cndmask_b32 v{ACC+8}, v{ACC+8}, v{vT}, vcc")
    for j in range(9, 12): a(f"v_cndmask_b32 v{ACC+j}, v{ACC+j}, v{vT+1}, vcc")
    for j in range(12, 16): a(f"v_mov_b32 v{ACC+j}, 0")
    for k in range(8): a(f"v_cvt_pk_bf16_f32 v{TMP+k}, v{ACC+2*k}, v{ACC+2*k+1}")
    a(f"s_mul_i32 s{sT}, s{sRB}, {TS}")
    a(f"s_add_u32 s{sT}, s{sT}, {WS_KV}")
    L_v = "A_v"; L_kvdone = "A_kvdone"
    a(f"s_cmp_eq_u32 s{sCG}, 1")
    a(f"s_cbranch_scc1 {L_v}")
    a(f"buffer_store_dwordx4 {vr(TMP,4)}, v{vX16}, s[{R_WS}:{R_WS+3}], s{sT} offen sc1")
    a(f"v_lshlrev_b32 v{vT}, 3, v{vLane}")
    a(f"s_mov_b32 exec_hi, 0")
    a(f"buffer_store_dwordx2 v[{TMP+4}:{TMP+5}], v{vT}, s[{R_WS}:{R_WS+3}], s{sT} offen offset:1024 sc1")
    a(f"s_mov_b32 exec_hi, -1")
    a(f"s_branch {L_kvdone}")
    a.label(L_v)
    a(f"s_mov_b32 s{sLds}, {KVX}")
    a(f"v_lshlrev_b32 v{vT}, 6, v{vN}")
    a(f"v_lshl_add_u32 v{vT}, v{vH}, 3, v{vT}")
    a(f"v_add_u32 v{vT}, s{sLds}, v{vT}")
    for q in range(4):
        a(f"ds_write_b64 v{vT}, v[{TMP+2*q}:{TMP+2*q+1}] offset:{16*q}")
    tr_addr(a, vTr, None, 64, 4, 8, sLds, vT+1)
    for u in range(2):
        a(f"ds_read_b64_tr_b16 v[{TMP+8+4*u}:{TMP+9+4*u}], v{vTr} offset:{u*1024}")
        a(f"ds_read_b64_tr_b16 v[{TMP+10+4*u}:{TMP+11+4*u}], v{vTr} offset:{u*1024 + 512}")
    a(f"v_mul_u32_u24 v{vT}, {VH}, v{vH}")
    a(f"v_lshl_add_u32 v{vT}, v{vN}, 4, v{vT}")
    a(f"s_mov_b32 exec_lo, 0x3fffff")
    a(f"s_mov_b32 exec_hi, 0x3fffff")
    a("s_waitcnt lgkmcnt(0)")
    a(f"buffer_store_dwordx4 {vr(TMP+8,4)}, v{vT}, s[{R_WS}:{R_WS+3}], s{sT} offen offset:1280 sc1")
    a(f"buffer_store_dwordx4 {vr(TMP+12,4)}, v{vT}, s[{R_WS}:{R_WS+3}], s{sT} offen offset:{1280+VF} sc1")
    a(f"s_mov_b64 exec, -1")
    a.label(L_kvdone)
    ensure_tag("A5")
    a("s_waitcnt vmcnt(0)")
    st.mark("k5:drain")
    a(f"s_lshl_b32 s{sT}, s{sRB}, 1")
    a(f"s_add_u32 s{sT}, s{sT}, s{sCG}")
    set_flag(a, vT, sT, FL_KV)
    a(f"s_mov_b32 s{sLds}, {KSTG}")
    job_run(JW, 1)
    job_publish()
    a(f"s_branch {L_bar1}")
    a.label("A_kvp_skip")
    job_loads()
    a(f"s_cmp_lg_u32 s{sW}, 5")
    a(f"s_cbranch_scc1 A_kvp_done")
    a(f"s_mov_b32 s{sLds}, {KSTG}")
    job_run(JW, 0)
    job_publish()
    a(f"s_branch {L_bar1}")
    a.label("A_kvp_done")
    if not OPT.get("expfirst", 0): export_d()
    ensure_tag("A6")
    tag_to_lds(a, vT)
    a(f"s_waitcnt vmcnt({10 if OPT.get('expfirst', 0) else 0})")
    st.mark("x:drain")
    set_flag(a, vT, sFD, FL_D)
    a(f"s_sub_u32 s{sT}, s{sW}, 5")
    a(f"s_mul_i32 s{sLds}, s{sT}, 3072")
    a(f"s_add_u32 s{sLds}, s{sLds}, {KSTG}")
    job_run(JW, 1)
    job_publish()
    a.label(L_bar1)
    a("s_waitcnt vmcnt(0)")
    a.label("A_bar1_nowait")
    a("s_setprio 0")
    a("s_waitcnt lgkmcnt(0)")
    a("s_barrier")
    st.mark("bar0")
    vA16 = vX16
    aK1, aK2, aV, nK1, nK2, nV = 64, 65, 66, 67, 68, 69
    bK2, bV = 70, 71
    CN = 80
    S = [16, 32]
    O = 48
    P = 96
    Q1, Q2 = 104, 108
    K1, K2 = 112, 116
    V1, V2 = 120, 124
    vM2 = 110
    sSoffK, sLdsW, sSlot, sCk = 58, 59, 60, 61
    vFl, vFlo = 72, 73
    srd(a, R_A, S_WS, S_WS+1, KVB, WS_KV)
    a(f"s_lshl_b32 s{sLdsW}, s{sW}, 10")
    a(f"v_lshlrev_b32 v{bK2}, 3, v{vN}")
    a(f"v_add_u32 v{bK2}, 1024, v{bK2}")
    a(f"v_mov_b32 v{vT}, {1280 + 21*16}")
    a(f"v_cmp_eq_u32 vcc, 1, v{vH}")
    a(f"v_min_u32 v{bV}, 21, v{vN}")
    a(f"v_lshlrev_b32 v{bV}, 4, v{bV}")
    a(f"v_cndmask_b32 v{bK2}, v{bK2}, v{vT}, vcc")
    a(f"v_mul_u32_u24 v{vT}, {VH}, v{vH}")
    a(f"v_add3_u32 v{bV}, v{bV}, v{vT}, 0")
    a(f"v_add_u32 v{bV}, 1280, v{bV}")
    def dma_chunk(slot_s):
        Ls = a.newlabel("A_dm")
        a(f"s_cmp_ge_u32 s{sW}, 4")
        a(f"s_cbranch_scc1 {Ls}")
        a(f"s_add_u32 s{sT}, s{slot_s}, s{sLdsW}")
        a(f"s_add_u32 s{sT2}, s{sSoffK}, s{sLdsW}")
        for i in range(6):
            if i == 5:
                a(f"s_cmp_lg_u32 s{sW}, 0")
                a(f"s_cbranch_scc1 {Ls}")
            a(f"s_add_u32 m0, s{sT}, {4096*i}")
            a(f"s_add_u32 s{sT3}, s{sT2}, {4096*i}")
            a(f"buffer_load_dwordx4 v{vA16}, s[{R_A}:{R_A+3}], s{sT3} offen sc1 lds")
        a.label(Ls)
        a(f"s_add_u32 s{sSoffK}, s{sSoffK}, {CH}")
        a(f"s_cmp_eq_u32 s{sSoffK}, {8*CH}")
        a(f"s_cselect_b32 s{sSoffK}, 0, s{sSoffK}")
        a(f"s_add_u32 s{sCk}, s{sCk}, 1")
        a(f"s_and_b32 s{sCk}, s{sCk}, 7")
    L_noqw = "A_noqw"
    a(f"v_mul_u32_u24 v{vT}, {QP}, v{vN}")
    a(f"v_add_u32 v{vT}, {QBUF}, v{vT}")
    a(f"s_cmp_ge_u32 s{sW}, 5")
    a(f"s_cbranch_scc1 {L_noqw}")
    a(f"s_lshl_b32 s{sT}, s{sW}, 6")
    a(f"v_lshl_add_u32 v{vT+1}, v{vH}, 3, v{vT}")
    a(f"v_add_u32 v{vT+1}, s{sT}, v{vT+1}")
    for q in range(4):
        a(f"ds_write_b64 v{vT+1}, v[{TMP+2*q}:{TMP+2*q+1}] offset:{16*q}")
    a.label(L_noqw)
    a("s_waitcnt lgkmcnt(0)")
    a("s_barrier")
    a(f"s_mul_i32 s{sT}, s{sW}, 40")
    a(f"v_add_u32 v{vT}, s{sT}, v{vT}")
    a(f"v_lshl_add_u32 v{vT+1}, v{vH}, 3, v{vT}")
    a(f"ds_read_b64 v[{Q1}:{Q1+1}], v{vT+1}")
    a(f"ds_read_b64 v[{Q1+2}:{Q1+3}], v{vT+1} offset:16")
    a(f"ds_read_b64 v[{Q2}:{Q2+1}], v{vT} offset:32")
    a(f"v_mov_b32 v{aK1}, v{vA16}")
    a(f"v_mov_b32 v{aK2}, v{bK2}")
    a(f"v_mov_b32 v{aV}, v{bV}")
    a(f"v_add_u32 v{nK1}, {CH}, v{vA16}")
    a(f"v_add_u32 v{nK2}, {CH}, v{bK2}")
    a(f"v_add_u32 v{nV}, {CH}, v{bV}")
    for i in range(16): a(f"v_mov_b32 v{O+i}, 0")
    a(f"v_cmp_eq_u32 vcc, 1, v{vH}")
    a(f"v_mov_b32 v{vT}, 0")
    a("s_waitcnt lgkmcnt(0)")
    a(f"v_cndmask_b32 v{Q2}, v{Q2}, v{vT}, vcc")
    a(f"v_cndmask_b32 v{Q2+1}, v{Q2+1}, v{vT}, vcc")
    a(f"s_lshr_b32 s{sCk}, s{sRB}, 3")
    a(f"s_mul_i32 s{sSoffK}, s{sCk}, {CH}")
    def check_chunk(lab):
        a(f"s_cmp_lg_u32 s{sW}, 7")
        a(f"s_cbranch_scc1 {lab}_skip")
        a(f"s_lshl_b32 s{sT}, s{sCk}, 4")
        poll_flags(a, vT+2, lab, sT, 16, FL_KV, sleep=OPT.get("kvsleep", 1))
        a.label(f"{lab}_skip")
    check_chunk("A7a")
    a("s_barrier")
    st.mark("bar1")
    a(f"s_mov_b32 s{sSlot}, 0")
    dma_chunk(sSlot)
    a(f"v_min_u32 v{vFlo}, 15, v{vLane}")
    a(f"v_lshlrev_b32 v{vFlo}, 7, v{vFlo}")
    def rd(dst, n, t, off, cur, nxt, op):
        v_ = cur if t < 8 else nxt
        a(f"{op} {vr(dst,n)}, v{v_} offset:{(t % 8)*TS + off}")
    def rd_K1(t): rd(K1, 4, t, 0, aK1, nK1, "ds_read_b128")
    def rd_K2(t): rd(K2, 2, t, 0, aK2, nK2, "ds_read_b64")
    def rd_V1(t): rd(V1, 4, t, 0, aV, nV, "ds_read_b128")
    def rd_V2(t): rd(V2, 4, t, VF, aV, nV, "ds_read_b128")
    def qk1(dst, c="0"): a(f"v_mfma_f32_32x32x16_bf16 {vr(dst,16)}, {vr(K1,4)}, {vr(Q1,4)}, {c}")
    def qk2(dst): a(f"v_mfma_f32_32x32x8_bf16 {vr(dst,16)}, {vr(K2,2)}, {vr(Q2,2)}, {vr(dst,16)}")
    CNR = vr(CN, 16)
    if OPT.get("chk2early"): check_chunk("A7b")
    a("s_waitcnt vmcnt(0)")
    a("s_barrier")
    if OPT.get("chk2early"):
        a(f"s_mov_b32 s{sSlot}, {CH}")
        dma_chunk(sSlot)
        a(f"s_mov_b32 s{sSlot}, {2*CH}")
    rd_K1(0); rd_K2(0)
    def set_m(delta):
        a(f"v_mov_b32 v{vT}, v{vM2}")
        a.nop(2)
        a(f"v_permlane32_swap_b32 v{vM2}, v{vT}")
        a.nop(1)
        a(f"v_max_f32 v{vM2}, v{vM2}, v{vT}")
        if delta: a(f"v_add_f32 v{vM2}, {f32bits(delta)}, v{vM2}")
        for i in range(16): a(f"v_sub_f32 v{CN+i}, 0, v{vM2}")
    a(f"v_mov_b32 v{vM2}, 0xff800000")
    a("s_waitcnt lgkmcnt(0)")
    qk1(S[0]); qk2(S[0])
    rd_K1(1); rd_K2(1)
    a("s_waitcnt lgkmcnt(0)")
    qk1(S[1]); qk2(S[1])
    rd_K1(0); rd_K2(0)
    for i in range(4, 8): a(f"v_mov_b32 v{P+i}, 0")
    for i in range(4): a(f"v_mov_b32 v{V2+i}, 0")
    a.nop(4)
    for i in range(8):
        a(f"v_max3_f32 v{vM2}, v{S[0]+2*i}, v{S[0]+2*i+1}, v{vM2}")
    a.nop(4)
    for i in range(8):
        a(f"v_max3_f32 v{vM2}, v{S[1]+2*i}, v{S[1]+2*i+1}, v{vM2}")
    set_m(DELTA)
    a("s_waitcnt lgkmcnt(0)")
    a.nop(1)
    qk1(S[0], CNR); qk2(S[0])
    rd_K1(1); rd_K2(1); rd_V1(0)
    if not OPT.get("chk2early"):
        check_chunk("A7b")
        a("s_barrier")
        a(f"s_mov_b32 s{sSlot}, {CH}")
        dma_chunk(sSlot)
        a(f"s_mov_b32 s{sSlot}, {2*CH}")
    a.nop(12)
    st.mark("sample")
    a(f"s_setprio {OPT.get('pb', 0)}")
    if OPT.get("fair", 1):
        a(f"s_cmp_lt_u32 s{sW}, 4")
        a(f"s_cbranch_scc1 A_pr0")
        a(f"s_setprio {1 + OPT.get('pb', 0)}")
        a.label("A_pr0")
    a(f"s_mov_b32 s{sIt}, 0")
    L_loop = "A_loop"
    a(".p2align 6")
    a.label(L_loop)
    def e(cur, i): a(f"v_exp_f32 v{cur+i}, v{cur+i}")
    def p(cur, k): a(f"v_cvt_pk_bf16_f32 v{P+k}, v{cur+2*k}, v{cur+2*k+1}")
    for t in range(8):
        cur, nxt = S[t % 2], S[(t+1) % 2]
        if t == OPT.get("tdrop", 4) and OPT.get("fair", 1):
            a(f"s_setprio {OPT.get('pb', 0)}")
        if t == 0:
            a(f"s_cmp_lg_u32 s{sW}, 7")
            a(f"s_cbranch_scc1 A_nf0")
            a(f"s_lshl_b32 s{sT}, s{sCk}, 11")
            a(f"s_add_u32 s{sT}, s{sT}, {FL_KV*128}")
            a(f"buffer_load_dword v{vFl}, v{vFlo}, s[{R_FL}:{R_FL+3}], s{sT} offen sc1")
            a.label("A_nf0")
        if t == 6:
            a("s_waitcnt vmcnt(0)")
            a(f"s_cmp_lg_u32 s{sW}, 7")
            a(f"s_cbranch_scc1 A_nf6")
            a(f"v_cmp_ne_u32 vcc, s{sTag}, v{vFl}")
            a("s_nop 1")
            a(f"s_cmp_eq_u64 vcc, 0")
            a(f"s_cbranch_scc1 A_nf6")
            a(f"s_lshl_b32 s{sT}, s{sCk}, 4")
            poll_flags(a, vT+2, "A7c", sT, 16, FL_KV, sleep=1)
            a.label("A_nf6")
            a("s_barrier")
            if OPT.get("fair", 1):
                a(f"s_cmp_lt_u32 s{sW}, 4")
                a(f"s_cbranch_scc1 A_pr6")
                a(f"s_setprio {1 + OPT.get('pb', 0)}")
                a.label("A_pr6")
            dma_chunk(sSlot)
            a(f"s_add_u32 s{sSlot}, s{sSlot}, {CH}")
            a(f"s_cmp_eq_u32 s{sSlot}, {3*CH}")
            a(f"s_cselect_b32 s{sSlot}, 0, s{sSlot}")
        e(cur, 0); e(cur, 1)
        a("s_waitcnt lgkmcnt(2)")
        a(f"v_mfma_f32_32x32x16_bf16 {vr(O,16)}, {vr(V2,4)}, {vr(P+4,4)}, {vr(O,16)}")
        rd_V2(t)
        e(cur, 2); e(cur, 3); p(cur, 0); p(cur, 1)
        qk1(nxt, CNR)
        rd_K1(t+2)
        e(cur, 4); e(cur, 5); e(cur, 6); e(cur, 7); p(cur, 2); p(cur, 3)
        a("s_waitcnt lgkmcnt(2)")
        qk2(nxt)
        rd_K2(t+2)
        e(cur, 8); e(cur, 9); e(cur, 10); e(cur, 11); p(cur, 4); p(cur, 5)
        a(f"v_mfma_f32_32x32x16_bf16 {vr(O,16)}, {vr(V1,4)}, {vr(P,4)}, {vr(O,16)}")
        rd_V1(t+1)
        e(cur, 12); e(cur, 13); e(cur, 14); e(cur, 15); p(cur, 6); p(cur, 7)
    a(f"v_mov_b32 v{aK1}, v{nK1}")
    a(f"v_mov_b32 v{aK2}, v{nK2}")
    a(f"v_mov_b32 v{aV}, v{nV}")
    a(f"s_add_u32 s{sT}, s{sSlot}, {2*CH}")
    a(f"s_cmp_ge_u32 s{sT}, {3*CH}")
    a(f"s_cselect_b32 s{sT2}, {3*CH}, 0")
    a(f"s_sub_u32 s{sT}, s{sT}, s{sT2}")
    a(f"v_add_u32 v{nK1}, s{sT}, v{vA16}")
    a(f"v_add_u32 v{nK2}, s{sT}, v{bK2}")
    a(f"v_add_u32 v{nV}, s{sT}, v{bV}")
    a(f"s_add_u32 s{sIt}, s{sIt}, 1")
    a(f"s_cmp_lt_u32 s{sIt}, 8")
    a(f"s_cbranch_scc1 {L_loop}")
    a("s_waitcnt lgkmcnt(0)")
    a(f"v_mfma_f32_32x32x16_bf16 {vr(O,16)}, {vr(V2,4)}, {vr(P+4,4)}, {vr(O,16)}")
    a("s_setprio 0")
    st.mark("loop")
    if OPT.get("diag"):
        a(f"s_cmp_lg_u32 s{sW}, 0"); Ld = a.newlabel("dg"); a(f"s_cbranch_scc1 {Ld}"); diag(a, 8); diag(a, 9, neg=True); a.label(Ld)
    a.nop(16)
    L_fin, L_slow = "A_fin", "A_slow"
    a(f"s_mov_b32 s{sIt}, 0")
    a.label(L_fin)
    a(f"v_mov_b32 v{vT}, v{O+8}")
    a(f"v_mov_b32 v{vT+1}, v{O+8}")
    a.nop(2)
    a(f"v_permlane32_swap_b32 v{vT}, v{vT+1}")
    a(f"v_max3_f32 v{vT+2}, |v{O}|, |v{O+1}|, |v{O+2}|")
    for j in range(3, 12, 2):
        j2 = min(j+1, 11)
        a(f"v_max3_f32 v{vT+2}, |v{O+j}|, |v{O+j2}|, v{vT+2}")
    a(f"v_mov_b32 v{vT+3}, {f32bits(2.0**120)}")
    a(f"v_cmp_nlt_f32 vcc, v{vT+2}, v{vT+3}")
    a(f"v_cmp_nlt_f32 s[62:63], 0, v{vT+1}")
    a.nop(1)
    a(f"s_or_b64 vcc, vcc, s[62:63]")
    a(f"s_cmp_eq_u64 vcc, 0")
    a(f"s_cbranch_scc1 A_store")
    a(f"s_cmp_lg_u32 s{sIt}, 0")
    a(f"s_cbranch_scc1 A_store")
    a(f"s_branch {L_slow}")
    a.label("A_store")
    a(f"v_rcp_f32 v{vT+2}, v{vT+1}")
    a.nop(1)
    for j in range(12): a(f"v_mul_f32 v{O+j}, v{O+j}, v{vT+2}")
    for k in range(6): a(f"v_cvt_pk_bf16_f32 v{P+k}, v{O+2*k}, v{O+2*k+1}")
    a(f"s_lshl_b32 s{sT}, s{sCG}, 3")
    a(f"s_add_u32 s{sT}, s{sT}, s{sW}")
    a(f"s_mul_i32 s{sT}, s{sT}, 20")
    a(f"s_mul_i32 s{sT2}, s{sRB}, {40*1024}")
    a(f"s_add_u32 s{sT2}, s{sT2}, {WS_OF}")
    def oaddr(dst, colv):
        a(f"v_lshrrev_b32 v{dst}, 4, v{colv}")
        a(f"v_lshlrev_b32 v{dst}, 10, v{dst}")
        a(f"v_bfe_u32 v{vT+7}, v{colv}, 3, 1")
        a(f"v_lshl_add_u32 v{dst}, v{vT+7}, 9, v{dst}")
        a(f"v_and_b32 v{vT+7}, 7, v{colv}")
        a(f"v_lshl_add_u32 v{dst}, v{vT+7}, 1, v{dst}")
        a(f"v_lshl_add_u32 v{dst}, v{vN}, 4, v{dst}")
    a(f"v_lshlrev_b32 v{vT+3}, 2, v{vH}")
    a(f"v_add_u32 v{vT+3}, s{sT}, v{vT+3}")
    oaddr(vT+4, vT+3)
    a(f"buffer_store_dwordx2 v[{P}:{P+1}], v{vT+4}, s[{R_WS}:{R_WS+3}], s{sT2} offen sc1")
    a(f"v_add_u32 v{vT+3}, 8, v{vT+3}")
    oaddr(vT+5, vT+3)
    a(f"buffer_store_dwordx2 v[{P+2}:{P+3}], v{vT+5}, s[{R_WS}:{R_WS+3}], s{sT2} offen sc1")
    a(f"s_add_u32 s{sT}, s{sT}, 16")
    a(f"v_mov_b32 v{vT+3}, s{sT}")
    oaddr(vT+6, vT+3)
    a(f"v_cmp_eq_u32 vcc, 0, v{vH}")
    a(f"s_and_saveexec_b64 s[62:63], vcc")
    a(f"buffer_store_dwordx2 v[{P+4}:{P+5}], v{vT+6}, s[{R_WS}:{R_WS+3}], s{sT2} offen sc1")
    a(f"s_mov_b64 exec, s[62:63]")
    tag_from_lds(a, vT)
    a("s_waitcnt vmcnt(0) lgkmcnt(0)")
    a(f"v_readfirstlane_b32 s{sTag}, v{vT+1}")
    a(f"s_lshl_b32 s{sT}, s{sRB}, 2")
    a(f"s_add_u32 s{sT}, s{sT}, s{sCG}")
    a(f"s_lshl_b32 s{sT}, s{sT}, 3")
    a(f"s_add_u32 s{sT}, s{sT}, s{sW}")
    set_flag(a, vT, sT, FL_O)
    st.end()
    a("s_endpgm")
    a.label(L_slow)
    a(f"v_mov_b32 v{vM2}, 0xff800000")
    a(f"s_mov_b32 s{sSoffK}, 0")
    a.label("A_slow1")
    a(f"buffer_load_dwordx4 {vr(K1,4)}, v{vA16}, s[{R_A}:{R_A+3}], s{sSoffK} offen sc1")
    a(f"buffer_load_dwordx2 {vr(K2,2)}, v{bK2}, s[{R_A}:{R_A+3}], s{sSoffK} offen sc1")
    a("s_waitcnt vmcnt(0)")
    qk1(S[0]); qk2(S[0])
    a.nop(16)
    for i in range(8):
        a(f"v_max3_f32 v{vM2}, v{S[0]+2*i}, v{S[0]+2*i+1}, v{vM2}")
    a(f"s_add_u32 s{sSoffK}, s{sSoffK}, {TS}")
    a(f"s_cmp_lt_u32 s{sSoffK}, {KVB}")
    a(f"s_cbranch_scc1 A_slow1")
    set_m(0.0)
    for i in range(16): a(f"v_mov_b32 v{O+i}, 0")
    a(f"s_mov_b32 s{sSoffK}, 0")
    a.label("A_slow2")
    a(f"buffer_load_dwordx4 {vr(K1,4)}, v{vA16}, s[{R_A}:{R_A+3}], s{sSoffK} offen sc1")
    a(f"buffer_load_dwordx2 {vr(K2,2)}, v{bK2}, s[{R_A}:{R_A+3}], s{sSoffK} offen sc1")
    a(f"buffer_load_dwordx4 {vr(V1,4)}, v{bV}, s[{R_A}:{R_A+3}], s{sSoffK} offen sc1")
    a(f"buffer_load_dwordx4 {vr(V2,4)}, v{bV}, s[{R_A}:{R_A+3}], s{sSoffK} offen offset:{VF} sc1")
    a("s_waitcnt vmcnt(0)")
    qk1(S[0], CNR); qk2(S[0])
    a.nop(16)
    for i in range(16): e(S[0], i)
    a.nop(1)
    for k in range(8): p(S[0], k)
    a.nop(2)
    a(f"v_mfma_f32_32x32x16_bf16 {vr(O,16)}, {vr(V1,4)}, {vr(P,4)}, {vr(O,16)}")
    a(f"v_mfma_f32_32x32x16_bf16 {vr(O,16)}, {vr(V2,4)}, {vr(P+4,4)}, {vr(O,16)}")
    a(f"s_add_u32 s{sSoffK}, s{sSoffK}, {TS}")
    a(f"s_cmp_lt_u32 s{sSoffK}, {KVB}")
    a(f"s_cbranch_scc1 A_slow2")
    a.nop(16)
    a(f"s_mov_b32 s{sIt}, 1")
    a(f"s_branch {L_fin}")

def role_B1(a):
    st = Stamps(a, "B")
    st.start()
    if OPT.get("bprio"): a(f"s_setprio {OPT['bprio']}")
    sG, sC = sRB, sCG
    sSoffW, sSoffX, sLdsW, sKH, sXb = 57, 58, 59, 60, 99
    vT = 4; vW = 10; vTr, vX16, vR = 13, 14, 15
    XS = 16; WF = 48; ACC = 76
    SLOT = 24576
    a(f"s_sub_u32 s{sT2}, s2, 256")
    a(f"s_bfe_u32 s{sG}, s{sT2}, 0x20001")
    a(f"s_lshl_b32 s{sG}, s{sG}, 2")
    a(f"s_bfe_u32 s{sT}, s{sT2}, 0x20003")
    a(f"s_add_u32 s{sG}, s{sG}, s{sT}")
    a(f"s_and_b32 s{sC}, s{sT2}, 1")
    a(f"s_lshl_b32 s{sC}, s{sC}, 3")
    a(f"s_lshr_b32 s{sT}, s{sT2}, 5")
    a(f"s_add_u32 s{sC}, s{sC}, s{sT}")
    a(f"s_lshr_b32 s{sKH}, s{sW}, 2")
    a(f"v_lshlrev_b32 v{vX16}, 4, v{vLane}")
    a(f"s_and_b32 s{sT}, s{sW}, 3")
    a(f"s_mul_i32 s{sT}, s{sT}, 192")
    a(f"s_mul_i32 s{sT2}, s{sC}, 192")
    a(f"s_mul_i32 s{sT3}, s{sKH}, {320*3072}")
    a(f"s_add_u32 s{sT2}, s{sT2}, s{sT3}")
    for i in range(3):
        a(f"v_add_u32 v{vT}, s{sT}, v{vLane}")
        if i: a(f"v_add_u32 v{vT}, {64*i}, v{vT}")
        a(f"v_mul_u32_u24 v{vT+1}, 5462, v{vT}")
        a(f"v_lshrrev_b32 v{vT+1}, 16, v{vT+1}")
        a(f"v_mul_u32_u24 v{vT+2}, 12, v{vT+1}")
        a(f"v_sub_u32 v{vT}, v{vT}, v{vT+2}")
        a(f"v_lshlrev_b32 v{vT}, 4, v{vT}")
        a(f"v_mul_u32_u24 v{vT+1}, 3072, v{vT+1}")
        a(f"v_add3_u32 v{vW+i}, v{vT}, v{vT+1}, s{sT2}")
        if i: a(f"v_subrev_u32 v{vW+i}, {1024*i}, v{vW+i}")
    a(f"s_mul_i32 s{sT}, s{sKH}, 12288")
    tr_addr(a, vTr, None, 192, 8, 4, sT, vT)
    a(f"s_mul_i32 s{sLdsW}, s{sW}, 3072")
    srd(a, R_A, S_W1, S_W1+1, 640*1536*2)
    srd(a, R_B, S_B1, S_B1+1, 1536*2)
    a(f"s_mul_hi_u32 s{sT}, s{sC}, {(1<<32)//5 + 1}")
    a(f"s_mul_i32 s{sT}, s{sT}, 5")
    a(f"s_sub_u32 s{sT}, s{sC}, s{sT}")
    a(f"s_mul_i32 s{sSoffW}, s{sT}, {64*3072}")
    a(f"s_lshl_b32 s{sSoffX}, s{sT}, 12")
    a(f"s_and_b32 s{sT}, s{sW}, 3")
    a(f"s_lshl_b32 s{sT2}, s{sG}, 2")
    a(f"s_add_u32 s{sT}, s{sT}, s{sT2}")
    a(f"s_mul_i32 s{sXb}, s{sT}, {40*1024}")
    a(f"s_mul_i32 s{sT2}, s{sKH}, {20*1024}")
    a(f"s_add_u32 s{sXb}, s{sXb}, s{sT2}")
    if WS_XF: a(f"s_add_u32 s{sXb}, s{sXb}, {WS_XF}")
    def issueW(c):
        a(f"s_add_u32 m0, s{sLdsW}, {(c%3)*SLOT}")
        a(f"s_add_u32 s{sT}, s{sSoffW}, {64*3072}")
        for i in range(3):
            a(f"buffer_load_dwordx4 v{vW+i}, s[{R_A}:{R_A+3}], s{sSoffW} offen offset:{1024*i} lds")
        a(f"s_cmp_eq_u32 s{sT}, {320*3072}")
        a(f"s_cselect_b32 s{sSoffW}, 0, s{sT}")
    def issueX(c):
        xs = XS + 16*(c % 2)
        a(f"s_add_u32 s{sT2}, s{sXb}, s{sSoffX}")
        a(f"s_add_u32 s{sT}, s{sSoffX}, 4096")
        for i in range(4):
            a(f"buffer_load_dwordx4 {vr(xs+4*i,4)}, v{vX16}, s[{R_WS}:{R_WS+3}], s{sT2} offen offset:{1024*i} sc1")
        a(f"s_cmp_eq_u32 s{sT}, 20480")
        a(f"s_cselect_b32 s{sSoffX}, 0, s{sT}")
    sJ = 96
    a(f"s_sub_u32 s{sJ}, s2, 256")
    a(f"s_cmp_lg_u32 s{sW}, 0")
    a(f"s_cbranch_scc1 B1_np")
    get_tag(a, vT, "B1")
    a(f"s_lshl_b32 s{sT}, s{sG}, 5")
    poll_flags(a, vT, "B1p", sT, 32, FL_D, tries=OPT.get("wftries", 1), sleep=OPT.get("dsleep", 8))
    a.label("B1_np")
    a("s_barrier")
    srd(a, R_C, S_W2, S_W2+1, 1536*640*2)
    a(f"v_lshrrev_b32 v92, 2, v{vLane}")
    a(f"v_mul_u32_u24 v92, 1280, v92")
    a(f"v_and_b32 v93, 3, v{vLane}")
    a(f"v_lshl_add_u32 v92, v93, 4, v92")
    a(f"s_lshl_b32 s{sT}, s{sW}, 10")
    a(f"s_add_u32 s{sT}, s{sT}, 73728")
    a(f"v_add_u32 v93, s{sT}, v{vX16}")
    tr_addr(a, 94, None, 64, 4, 8, sT, vT)
    tr_addr(a, 95, None, 64, 8, 4, sT, vT)
    sDst = [92, 93]; sStp = [94, 95]
    for rnd in range(2):
        Lskip = f"B1_wf{rnd}_skip"
        a(f"s_mov_b32 s{sStp[rnd]}, -1")
        if rnd == 1:
            a(f"s_cmp_ge_u32 s{sW}, 3")
            a(f"s_cbranch_scc1 {Lskip}")
        a(f"s_and_b32 s{sT}, s{sJ}, 63")
        a(f"s_mul_i32 s{sT}, s{sT}, 11")
        a(f"s_add_u32 s{sT}, s{sT}, s{sW}")
        if rnd: a(f"s_add_u32 s{sT}, s{sT}, 8")
        a(f"s_cmp_ge_u32 s{sT}, 680")
        a(f"s_cbranch_scc1 {Lskip}")
        a(f"s_mul_hi_u32 s{sT2}, s{sT}, {(1<<32)//136 + 1}")
        a(f"s_mul_i32 s{sT3}, s{sT2}, 136")
        a(f"s_sub_u32 s{sT}, s{sT}, s{sT3}")
        a(f"s_mov_b32 s{sStp[rnd]}, s{sT}")
        a(f"s_lshr_b32 s{sT3}, s{sJ}, 6")
        a(f"s_mul_i32 s{sT3}, s{sT3}, 5")
        a(f"s_add_u32 s{sT2}, s{sT2}, s{sT3}")
        a(f"s_mul_i32 s62, s{sT2}, 136")
        a(f"s_add_u32 s62, s62, s{sT}")
        a(f"s_lshl_b32 s62, s62, 10")
        a(f"s_add_u32 s{sDst[rnd]}, s62, {WS_WF}")
        a(f"s_lshl_b32 s{sT2}, s{sT2}, 6")
        a(f"s_cmp_lt_u32 s{sT}, 96")
        a(f"s_cselect_b32 s{R_C}, s{S_W2}, s{S_WO}")
        a(f"s_cselect_b32 s{R_C+1}, s{S_W2+1}, s{S_WO+1}")
        a(f"s_cselect_b32 s63, 0, 96")
        a(f"s_mov_b32 s{R_C+2}, {640*640*2}")
        a(f"s_cbranch_scc0 B1_wf{rnd}_a")
        a(f"s_mov_b32 s{R_C+2}, {1536*640*2}")
        a.label(f"B1_wf{rnd}_a")
        a(f"s_sub_u32 s{sT3}, s{sT}, s63")
        a(f"s_mul_i32 s{sT3}, s{sT3}, {16*1280}")
        a(f"s_add_u32 s{sT3}, s{sT3}, s{sT2}")
        a(f"buffer_load_dwordx4 v[{76+4*rnd}:{79+4*rnd}], v92, s[{R_C}:{R_C+3}], s{sT3} offen")
        a.label(Lskip)
    a("s_waitcnt vmcnt(0)")
    for rnd in range(2):
        Lskip = f"B1_wg{rnd}_skip"
        a(f"s_cmp_eq_u32 s{sStp[rnd]}, -1")
        a(f"s_cbranch_scc1 {Lskip}")
        a(f"ds_write_b128 v93, v[{76+4*rnd}:{79+4*rnd}]")
        a(f"s_cmp_lt_u32 s{sStp[rnd]}, 96")
        a(f"s_cbranch_scc0 B1_wf{rnd}_n")
        a(f"ds_read_b64_tr_b16 v[{84+4*rnd}:{85+4*rnd}], v94")
        a(f"ds_read_b64_tr_b16 v[{86+4*rnd}:{87+4*rnd}], v94 offset:512")
        a(f"s_branch B1_wf{rnd}_s")
        a.label(f"B1_wf{rnd}_n")
        a(f"ds_read_b64_tr_b16 v[{84+4*rnd}:{85+4*rnd}], v95")
        a(f"ds_read_b64_tr_b16 v[{86+4*rnd}:{87+4*rnd}], v95 offset:256")
        a.label(f"B1_wf{rnd}_s")
        a("s_waitcnt lgkmcnt(0)")
        a(f"buffer_store_dwordx4 v[{84+4*rnd}:{87+4*rnd}], v{vX16}, s[{R_WS}:{R_WS+3}], s{sDst[rnd]} offen sc1")
        a.label(Lskip)
    issued = []
    def iW(c): issueW(c); issued.extend([("W", c)]*3)
    if OPT.get("prefill", 0):
        for c in range(3): iW(c)
    a(f"s_cmp_lg_u32 s{sW}, 0")
    a(f"s_cbranch_scc1 B1_np2")
    a(f"s_lshl_b32 s{sT}, s{sG}, 5")
    poll_flags(a, vT, "B1", sT, 32, FL_D, sleep=OPT.get("dsleep", 8))
    if OPT.get("b1kv", 0): poll_flags(a, vT, "B1k", None, 128, FL_KV, sleep=OPT.get("ksleep", 4))
    a.label("B1_np2")
    a("s_barrier")
    a(f"s_cmp_lg_u32 s{sW}, 0")
    a(f"s_cbranch_scc1 B1_ntl")
    tag_to_lds(a, vT)
    a.label("B1_ntl")
    st.mark("wait_d")
    def iX(c): issueX(c); issued.extend([("X", c)]*4)
    if OPT.get("prefill", 0):
        iX(0)
        a("s_barrier")
        iX(1)
    elif OPT.get("b1shallow", 1):
        iW(0); iX(0)
    else:
        iW(0); iX(0)
        a("s_barrier")
        iW(1); iX(1)
        a("s_barrier")
        iW(2)
    def wreads(c, k, buf):
        base = (c % 3)*SLOT + k*16*192
        for ct in range(3):
            a(f"ds_read_b64_tr_b16 v[{WF+12*buf+4*ct}:{WF+12*buf+4*ct+1}], v{vTr} offset:{base + ct*64}")
            a(f"ds_read_b64_tr_b16 v[{WF+12*buf+4*ct+2}:{WF+12*buf+4*ct+3}], v{vTr} offset:{base + ct*64 + 4*192}")
    for c in range(5):
        last = max(i for i, e_ in enumerate(issued) if e_ in (("W", c), ("X", c)))
        a(f"s_waitcnt vmcnt({len(issued) - 1 - last})")
        a("s_barrier")
        if c == 0:
            st.mark("b0")
            a(f"s_cmp_lg_u32 s{sW}, 0")
            a(f"s_cbranch_scc1 B1_nofw")
            set_flag(a, vT, sJ, FL_W)
            a.label("B1_nofw")
        if OPT.get("b1shallow", 1) and not OPT.get("prefill", 0):
            if c + 1 < 5: iW(c + 1); iX(c + 1)
        elif 1 <= c <= 2: iW(c + 2)
        xs = XS + 16*(c % 2)
        wreads(c, 0, 0)
        for k in range(4):
            buf = k % 2
            if k < 3:
                wreads(c, k + 1, 1 - buf)
                a("s_waitcnt lgkmcnt(6)")
            else:
                a("s_waitcnt lgkmcnt(0)")
            for ct in range(3):
                cin = "0" if (c == 0 and k == 0) else vr(ACC+16*ct,16)
                a(f"v_mfma_f32_32x32x16_bf16 {vr(ACC+16*ct,16)}, {vr(WF+12*buf+4*ct,4)}, {vr(xs+4*k,4)}, {cin}")
        if c + 2 < 5 and (OPT.get("prefill", 0) or not OPT.get("b1shallow", 1)): iX(c + 2)
    st.mark("kloop")
    a("s_setprio 3")
    a(f"s_and_b32 s{sT}, s{sW}, 3")
    a(f"s_lshl_b32 s{sT2}, s{sG}, 2")
    a(f"s_add_u32 s{sT}, s{sT}, s{sT2}")
    a(f"s_lshl_b32 s{sT2}, s{sT}, 7")
    a(f"s_add_u32 s{sT2}, s{sT2}, {WS_R}")
    a(f"v_lshlrev_b32 v{vT}, 2, v{vN}")
    a(f"buffer_load_dword v{vR}, v{vT}, s[{R_WS}:{R_WS+3}], s{sT2} offen sc1")
    tag_from_lds(a, 72)
    a(f"s_mul_i32 s{sT2}, s{sC}, 192")
    a(f"s_lshl_b32 s{sT3}, s{sKH}, 5")
    a(f"s_add_u32 s{sT2}, s{sT2}, s{sT3}")
    a(f"v_lshlrev_b32 v{vT}, 3, v{vH}")
    B = XS
    for ct in range(3):
        for q in range(2):
            a(f"buffer_load_dwordx2 v[{B+4*ct+2*q}:{B+4*ct+2*q+1}], v{vT}, s[{R_B}:{R_B+3}], s{sT2} offen offset:{64*ct+16*q}")
    a(f"s_mul_i32 s{sT}, s{sT}, 96")
    a(f"s_mul_i32 s{sT2}, s{sC}, 6")
    a(f"s_add_u32 s{sT}, s{sT}, s{sT2}")
    a(f"s_add_u32 s{sT}, s{sT}, s{sKH}")
    a(f"s_lshl_b32 s{sXb}, s{sT}, 10")
    a(f"s_add_u32 s{sXb}, s{sXb}, {WS_H}")
    a("s_barrier")
    a.nop(4)
    T = XS + 16
    a(f"s_mul_i32 s{sT}, s{sW}, 6144")
    a(f"v_add_u32 v{vT+1}, s{sT}, v{vX16}")
    a(f"s_xor_b32 s{sT}, s{sW}, 4")
    a(f"s_mul_i32 s{sT}, s{sT}, 6144")
    a(f"v_add_u32 v{vT+2}, s{sT}, v{vX16}")
    a(f"s_cmp_eq_u32 s{sKH}, 1")
    a(f"s_cbranch_scc1 B1_x1")
    for ct in range(3):
        for q in range(2):
            a(f"ds_write_b128 v{vT+1}, {vr(ACC+16*ct+8+4*q,4)} offset:{(2*ct+q)*1024}")
    a(f"s_branch B1_x2")
    a.label("B1_x1")
    for ct in range(3):
        for q in range(2):
            a(f"ds_write_b128 v{vT+1}, {vr(ACC+16*ct+4*q,4)} offset:{(2*ct+q)*1024}")
    a.label("B1_x2")
    a("s_waitcnt lgkmcnt(0)")
    a("s_barrier")
    for i in range(6):
        a(f"ds_read_b128 {vr(T+4*i,4)}, v{vT+2} offset:{i*1024}")
    a("s_waitcnt lgkmcnt(0) vmcnt(0)")
    a(f"v_readfirstlane_b32 s{sTag}, v73")
    a(f"s_cmp_eq_u32 s{sKH}, 1")
    a(f"s_cbranch_scc1 B1_y1")
    for ct in range(3):
        for j in range(8): a(f"v_add_f32 v{T+8*ct+j}, v{T+8*ct+j}, v{ACC+16*ct+j}")
    a(f"s_branch B1_y2")
    a.label("B1_y1")
    for ct in range(3):
        for j in range(8): a(f"v_add_f32 v{T+8*ct+j}, v{T+8*ct+j}, v{ACC+16*ct+8+j}")
    a.label("B1_y2")
    TB = 56
    for ct in range(3):
        for q in range(2):
            b0 = B+4*ct+2*q
            acc = T+8*ct+4*q
            a(f"v_lshlrev_b32 v{TB}, 16, v{b0}")
            a(f"v_and_b32 v{TB+1}, 0xffff0000, v{b0}")
            a(f"v_lshlrev_b32 v{TB+2}, 16, v{b0+1}")
            a(f"v_and_b32 v{TB+3}, 0xffff0000, v{b0+1}")
            for j in range(4): a(f"v_fma_f32 v{acc+j}, v{acc+j}, v{vR}, v{TB+j}")
            for j in range(4): a(f"v_max_f32 v{acc+j}, 0, v{acc+j}")
            for j in range(4): a(f"v_mul_f32 v{acc+j}, v{acc+j}, v{acc+j}")
        for k in range(4):
            a(f"v_cvt_pk_bf16_f32 v{60+4*ct+k}, v{T+8*ct+2*k}, v{T+8*ct+2*k+1}")
    a(f"v_add_u32 v{vT}, 4096, v{vX16}")
    a(f"buffer_store_dwordx4 {vr(60,4)}, v{vX16}, s[{R_WS}:{R_WS+3}], s{sXb} offen sc1")
    a(f"buffer_store_dwordx4 {vr(64,4)}, v{vX16}, s[{R_WS}:{R_WS+3}], s{sXb} offen offset:2048 sc1")
    a(f"buffer_store_dwordx4 {vr(68,4)}, v{vT}, s[{R_WS}:{R_WS+3}], s{sXb} offen sc1")
    a(f"s_cmp_lg_u32 s{sW}, 6")
    a(f"s_cbranch_scc1 B1_nfw")
    a(f"s_sub_u32 s{sT}, s2, 256")
    a(f"s_and_b32 s{sT2}, s{sT}, 1")
    a(f"s_lshl_b32 s{sT2}, s{sT2}, 1")
    a(f"s_lshr_b32 s{sT}, s{sT}, 7")
    a(f"s_add_u32 s{sT}, s{sT}, s{sT2}")
    a(f"s_lshl_b32 s{sT}, s{sT}, 6")
    poll_flags(a, vT, "B2w", sT, 64, FL_W)
    a.label("B1_nfw")
    a("s_waitcnt vmcnt(0)")
    a("s_barrier")
    L_nf = "B1_nf"
    a(f"s_cmp_lg_u32 s{sW}, 0")
    a(f"s_cbranch_scc1 {L_nf}")
    a(f"s_lshl_b32 s{sT}, s{sG}, 4")
    a(f"s_add_u32 s{sT}, s{sT}, s{sC}")
    set_flag(a, vT, sT, FL_H)
    a.label(L_nf)
    st.mark("epi")
    a("s_setprio 0")
    return st

def role_B2(a, st):
    sSoffW, sSoffX, sWb, sIt, sRho, sWrapW, sRst = 57, 58, 59, 60, 61, 98, 99
    vT = 4
    vX16, vXa = 14, 15
    ACC = 16
    XR = 48
    WB = 64
    vOut = vT+3
    NXS = 8
    a(f"s_sub_u32 s{sT2}, s2, 256")
    a(f"s_bfe_u32 s{sRB}, s{sT2}, 0x20001")
    a(f"s_lshl_b32 s{sRB}, s{sRB}, 4")
    a(f"s_bfe_u32 s{sT}, s{sT2}, 0x40003")
    a(f"s_add_u32 s{sRB}, s{sRB}, s{sT}")
    a(f"s_and_b32 s{sCG}, s{sT2}, 1")
    a(f"s_lshl_b32 s{sCG}, s{sCG}, 1")
    a(f"s_lshr_b32 s{sT}, s{sT2}, 7")
    a(f"s_add_u32 s{sCG}, s{sCG}, s{sT}")
    a(f"v_lshlrev_b32 v{vX16}, 4, v{vLane}")
    a(f"s_and_b32 s{sRho}, s{sRB}, 7")
    a(f"s_min_u32 s{sT3}, s{sW}, 4")
    a(f"s_mul_i32 s{sT}, s{sCG}, 5")
    a(f"s_add_u32 s{sT}, s{sT}, s{sT3}")
    a(f"s_mul_i32 s{sWb}, s{sT}, {136*1024}")
    a(f"s_add_u32 s{sWb}, s{sWb}, {WS_WF}")
    a(f"s_lshl_b32 s{sT}, s{sT}, 6")
    srd(a, R_C, S_X, S_X+1, NX)
    a(f"s_lshl_b32 s{sT2}, s{sRB}, 5")
    a(f"v_add_u32 v{vT}, s{sT2}, v{vN}")
    a(f"v_mul_u32_u24 v{vT}, 1280, v{vT}")
    a(f"v_lshl_add_u32 v{vT}, v{vH}, 3, v{vT}")
    a(f"v_add_u32 v{vOut}, s{sT}, v{vT}")
    for q in range(4):
        a(f"buffer_load_dwordx2 v[{XR+2*q}:{XR+2*q+1}], v{vOut}, s[{R_C}:{R_C+3}], 0 offen offset:{16*q}")
    srd(a, R_C, S_B2, S_B2+1, 640*2)
    a(f"v_lshlrev_b32 v{vT}, 3, v{vH}")
    for q in range(4):
        a(f"buffer_load_dwordx2 v[{XR+8+2*q}:{XR+8+2*q+1}], v{vT}, s[{R_C}:{R_C+3}], s{sT} offen offset:{16*q}")
    for i in range(16): a(f"v_mov_b32 v{ACC+i}, 0")
    def unpack_add(q, dst):
        for (src, t) in ((XR+2*q, 32), (XR+8+2*q, 36)):
            a(f"v_lshlrev_b32 v{t}, 16, v{src}")
            a(f"v_and_b32 v{t+1}, 0xffff0000, v{src}")
            a(f"v_lshlrev_b32 v{t+2}, 16, v{src+1}")
            a(f"v_and_b32 v{t+3}, 0xffff0000, v{src+1}")
        for j in range(4): a(f"v_add_f32 v{32+j}, v{32+j}, v{36+j}")
        for j in range(4): a(f"v_add_f32 v{dst+j}, v{dst+j}, v{32+j}")
    L_side = "B2_side"
    a(f"s_cmp_ge_u32 s{sW}, 4")
    a(f"s_cbranch_scc1 {L_side}")
    a(f"s_lshl_b32 s{sSoffW}, s{sRho}, 13")
    a(f"s_mov_b32 s{sWrapW}, {96*1024}")
    a(f"s_mov_b32 s{sRst}, 0")
    def wload(r):
        a(f"s_add_u32 s{sT2}, s{sWb}, s{sSoffW}")
        a(f"s_add_u32 s{sT}, s{sSoffW}, 1024")
        a(f"buffer_load_dwordx4 {vr(r,4)}, v{vX16}, s[{R_WS}:{R_WS+3}], s{sT2} offen sc1")
        a(f"s_cmp_eq_u32 s{sT}, s{sWrapW}")
        a(f"s_cselect_b32 s{sSoffW}, s{sRst}, s{sT}")
    for k in range(16): wload(WB + 4*k)
    st.mark("setup")
    a("s_barrier")
    a(f"s_mov_b32 s{sIt}, 0")
    L1 = "B2_p1"
    a.label(L1)
    XBUF = 32
    for j in range(16):
        k = j % 8
        if k == 0:
            a("s_barrier")
            a(f"s_lshl_b32 s{sT}, s{sIt}, 1")
            if j: a(f"s_add_u32 s{sT}, s{sT}, 1")
            a(f"s_and_b32 s{sT}, s{sT}, {NXS-1}")
            a(f"s_lshl_b32 s{sT}, s{sT}, 13")
            a(f"v_add_u32 v{vXa}, s{sT}, v{vX16}")
            for i in range(3):
                a(f"ds_read_b128 {vr(XBUF+4*i,4)}, v{vXa} offset:{i*1024}")
        if j == 0:
            L1n = "B2_p1n"
            a(f"s_cmp_lg_u32 s{sIt}, 5")
            a(f"s_cbranch_scc1 {L1n}")
            a(f"s_mul_i32 s{sSoffW}, s{sRho}, {5*1024}")
            a(f"s_add_u32 s{sSoffW}, s{sSoffW}, {96*1024}")
            a(f"s_mov_b32 s{sWrapW}, {136*1024}")
            a(f"s_mov_b32 s{sRst}, {96*1024}")
            a.label(L1n)
        if k + 3 < 8:
            a(f"ds_read_b128 {vr(XBUF+4*((k+3)%4),4)}, v{vXa} offset:{(k+3)*1024}")
            a("s_waitcnt vmcnt(15) lgkmcnt(3)")
        else:
            a(f"s_waitcnt vmcnt(15) lgkmcnt({7-k})")
        a(f"v_mfma_f32_32x32x16_bf16 {vr(ACC,16)}, {vr(WB+4*j,4)}, {vr(XBUF+4*(k%4),4)}, {vr(ACC,16)}")
        wload(WB + 4*j)
    a(f"s_add_u32 s{sIt}, s{sIt}, 1")
    a(f"s_cmp_lt_u32 s{sIt}, 6")
    a(f"s_cbranch_scc1 {L1}")
    st.mark("ffn2")
    a.nop(12)
    for q in range(4): unpack_add(q, ACC+4*q)
    XBUF = XR
    NBLK = 20
    def blk(s_):
        b = s_ % NBLK
        return (WB + 4*b) if b < 16 else (32 + 4*(b-16))
    for s_ in range(16, 20): wload(blk(s_))
    a("s_barrier")
    a(f"s_branch B2_oload")
    a.label(L_side)
    a(f"s_sub_u32 s{sT3}, s{sW}, 4")
    a("s_waitcnt vmcnt(0)")
    for jj in range(1, 4):
        Ls = a.newlabel("B2_q")
        a(f"s_cmp_lg_u32 s{sT3}, {jj}")
        a(f"s_cbranch_scc1 {Ls}")
        a(f"v_mov_b32 v{XR}, v{XR+2*jj}")
        a(f"v_mov_b32 v{XR+1}, v{XR+2*jj+1}")
        a(f"v_mov_b32 v{XR+8}, v{XR+8+2*jj}")
        a(f"v_mov_b32 v{XR+9}, v{XR+8+2*jj+1}")
        a.label(Ls)
    for j in range(4): a(f"v_mov_b32 v{40+j}, 0")
    unpack_add(0, 40)
    a(f"s_lshl_b32 s{sRst}, s{sT3}, 11")
    a(f"s_lshl_b32 s{sSoffW}, s{sRho}, 13")
    a(f"s_add_u32 s{sSoffW}, s{sSoffW}, s{sRst}")
    a(f"s_add_u32 s{sWrapW}, s{sRst}, {96*1024}")
    SD = 4
    def wpair(slot):
        a(f"s_add_u32 s{sT2}, s{sWb}, s{sSoffW}")
        a(f"s_add_u32 s{sT}, s{sSoffW}, 8192")
        a(f"buffer_load_dwordx4 {vr(WB+8*slot,4)}, v{vX16}, s[{R_WS}:{R_WS+3}], s{sT2} offen sc1")
        a(f"buffer_load_dwordx4 {vr(WB+8*slot+4,4)}, v{vX16}, s[{R_WS}:{R_WS+3}], s{sT2} offen offset:1024 sc1")
        a(f"s_cmp_eq_u32 s{sT}, s{sWrapW}")
        a(f"s_cselect_b32 s{sSoffW}, s{sRst}, s{sT}")
    for c in range(SD): wpair(c)
    a(f"s_cmp_lg_u32 s{sW}, 7")
    a(f"s_cbranch_scc1 B2_nph")
    a(f"s_lshr_b32 s{sT}, s{sRB}, 2")
    a(f"s_lshl_b32 s{sT}, s{sT}, 4")
    poll_flags(a, vT, "B2h", sT, 16, FL_H, sleep=2)
    a.label("B2_nph")
    a("s_barrier")
    a(f"s_sub_u32 s{sT3}, s{sW}, 4")
    a(f"s_mul_i32 s{sT}, s{sRB}, {96*1024}")
    a(f"s_add_u32 s63, s{sT}, {WS_H}")
    a(f"s_lshl_b32 s97, s{sT3}, 11")
    a(f"s_add_u32 s63, s63, s97")
    a(f"s_lshl_b32 s{sSoffX}, s{sRho}, 13")
    a(f"v_add_u32 v{vT+5}, s97, v{vX16}")
    vXs = vT+5
    vm = Cnt(a, "vmcnt", 63)
    def xdma(c):
        a(f"s_add_u32 m0, s97, {(c % NXS)*8192}")
        a(f"s_add_u32 s{sT2}, s63, s{sSoffX}")
        a(f"s_add_u32 s{sT}, s{sSoffX}, 8192")
        for i in range(2):
            a(f"buffer_load_dwordx4 v{vX16}, s[{R_WS}:{R_WS+3}], s{sT2} offen offset:{1024*i} sc1 lds")
        a(f"s_cmp_eq_u32 s{sT}, {96*1024}")
        a(f"s_cselect_b32 s{sSoffX}, 0, s{sT}")
        vm.issue(("X", c), 2)
    for c in range(SD): vm.issue(("W", c), 2)
    XD = 6
    for c in range(XD): xdma(c)
    for c in range(12):
        vm.need(("X", c), ("W", c))
        a("s_barrier")
        if c + XD < 12: xdma(c + XD)
        for i in range(2):
            a(f"ds_read_b128 {vr(48+4*i,4)}, v{vXs} offset:{(c % NXS)*8192 + 1024*i}")
        a("s_waitcnt lgkmcnt(1)")
        a(f"v_mfma_f32_32x32x16_bf16 {vr(ACC,16)}, {vr(WB+8*(c%4),4)}, {vr(48,4)}, {vr(ACC,16)}")
        a("s_waitcnt lgkmcnt(0)")
        a(f"v_mfma_f32_32x32x16_bf16 {vr(ACC,16)}, {vr(WB+8*(c%4)+4,4)}, {vr(52,4)}, {vr(ACC,16)}")
        if c + SD < 12: wpair(c % 4); vm.issue(("W", c + SD), 2)
    a(f"s_sub_u32 s{sT3}, s{sW}, 4")
    a(f"s_lshl_b32 s{sT3}, s{sT3}, 1")
    a(f"s_mul_i32 s62, s{sRho}, 5")
    a(f"s_add_u32 s62, s62, s{sT3}")
    for m in range(5):
        for i in range(2):
            a(f"s_add_u32 s{sT}, s62, {8*m+i}")
            a(f"s_cmp_ge_u32 s{sT}, 40")
            a(f"s_cselect_b32 s{sT2}, 40, 0")
            a(f"s_sub_u32 s{sT}, s{sT}, s{sT2}")
            a(f"s_add_u32 s{sT}, s{sT}, 96")
            a(f"s_lshl_b32 s{sT}, s{sT}, 10")
            a(f"s_add_u32 s{sT}, s{sT}, s{sWb}")
            a(f"buffer_load_dwordx4 {vr(WB+4*(2*m+i),4)}, v{vX16}, s[{R_WS}:{R_WS+3}], s{sT} offen sc1")
    Lnp2 = "B2_np2"
    a(f"s_cmp_lg_u32 s{sW}, 7")
    a(f"s_cbranch_scc1 {Lnp2}")
    a(f"s_lshl_b32 s{sT}, s{sRB}, 5")
    poll_flags(a, vT, "B2o", sT, 32, FL_O, sleep=OPT.get("osleep", 2))
    a.label(Lnp2)
    st.mark("wait_o")
    a("s_barrier")
    a.label("B2_oload")
    a(f"s_mul_i32 s63, s{sRB}, {40*1024}")
    a(f"s_add_u32 s63, s63, {WS_OF}")
    a(f"s_mul_i32 s62, s{sRho}, 5")
    for i in range(5):
        a(f"s_mul_i32 s{sT}, s{sW}, 5")
        a(f"s_add_u32 s{sT}, s{sT}, {i}")
        a(f"s_add_u32 s{sT2}, s{sT}, s62")
        a(f"s_cmp_ge_u32 s{sT2}, 40")
        a(f"s_cselect_b32 s{sIt}, 40, 0")
        a(f"s_sub_u32 s{sT2}, s{sT2}, s{sIt}")
        a(f"s_lshl_b32 s{sT2}, s{sT2}, 10")
        a(f"s_add_u32 s{sT2}, s{sT2}, s63")
        a(f"s_lshl_b32 m0, s{sT}, 10")
        a("s_nop 0")
        a(f"buffer_load_dwordx4 v{vX16}, s[{R_WS}:{R_WS+3}], s{sT2} offen sc1 lds")
    a("s_waitcnt vmcnt(0)")
    a("s_barrier")
    st.mark("oload")
    a(f"s_cmp_ge_u32 s{sW}, 4")
    a(f"s_cbranch_scc1 B2_side2")
    vm = Cnt(a, "vmcnt", 63); lg = Cnt(a, "lgkmcnt", 15)
    def xread(s_):
        r = XBUF + 4*(s_ % 4)
        a(f"ds_read_b128 {vr(r,4)}, v{vX16} offset:{s_*1024}")
        lg.issue(("X", s_))
    for s_ in range(3): xread(s_)
    for s_ in range(40):
        if s_ + 3 < 40: xread(s_ + 3)
        vm.need(("W", s_))
        lg.need(("X", s_))
        a(f"v_mfma_f32_32x32x16_bf16 {vr(ACC,16)}, {vr(blk(s_),4)}, {vr(XBUF+4*(s_%4),4)}, {vr(ACC,16)}")
        if s_ + NBLK < 40:
            wload(blk(s_)); vm.issue(("W", s_ + NBLK))
    st.mark("wo")
    a("s_setprio 3")
    a("s_barrier")
    a.nop(10)
    srd(a, R_C, S_OUT, S_OUT+1, NX)
    for q in range(4):
        a(f"v_cvt_pk_bf16_f32 v{32+2*q}, v{ACC+4*q}, v{ACC+4*q+1}")
        a(f"v_cvt_pk_bf16_f32 v{33+2*q}, v{ACC+4*q+2}, v{ACC+4*q+3}")
        a(f"buffer_store_dwordx2 v[{32+2*q}:{33+2*q}], v{vOut}, s[{R_C}:{R_C+3}], 0 offen offset:{16*q}")
    a("s_barrier")
    st.end()
    a("s_endpgm")
    a.label("B2_side2")
    for k in range(4):
        a(f"ds_read_b128 {vr(48+4*k,4)}, v{vXs} offset:{(8*(k//2)+(k%2))*1024}")
    for k in range(10):
        a(f"s_waitcnt lgkmcnt({min(3, 9-k)})")
        a(f"v_mfma_f32_32x32x16_bf16 {vr(ACC,16)}, {vr(WB+4*k,4)}, {vr(48+4*(k%4),4)}, {vr(ACC,16)}")
        if k + 4 < 10:
            a(f"ds_read_b128 {vr(48+4*(k%4),4)}, v{vXs} offset:{(8*((k+4)//2)+((k+4)%2))*1024}")
    a("s_setprio 3")
    a("s_barrier")
    a.nop(12)
    a(f"s_sub_u32 s{sT3}, s{sW}, 4")
    a(f"s_lshl_b32 s{sT}, s{sT3}, 12")
    a(f"v_add_u32 v{vT}, s{sT}, v{vX16}")
    for q in range(4):
        a(f"ds_write_b128 v{vT}, {vr(ACC+4*q,4)} offset:{q*1024}")
    a("s_waitcnt lgkmcnt(0)")
    a("s_barrier")
    a(f"s_lshl_b32 s{sT}, s{sT3}, 10")
    a(f"v_add_u32 v{vT}, s{sT}, v{vX16}")
    for jj in range(4):
        a(f"ds_read_b128 {vr(ACC+4*jj,4)}, v{vT} offset:{jj*4096}")
    a(f"s_lshl_b32 s{sT}, s{sT3}, 4")
    a(f"v_add_u32 v{vOut}, s{sT}, v{vOut}")
    srd(a, R_C, S_OUT, S_OUT+1, NX)
    a("s_waitcnt lgkmcnt(0)")
    for j in range(4):
        a(f"v_add_f32 v{ACC+j}, v{ACC+j}, v{ACC+4+j}")
        a(f"v_add_f32 v{ACC+8+j}, v{ACC+8+j}, v{ACC+12+j}")
    for j in range(4): a(f"v_add_f32 v{ACC+j}, v{ACC+j}, v{40+j}")
    for j in range(4): a(f"v_add_f32 v{ACC+j}, v{ACC+j}, v{ACC+8+j}")
    a(f"v_cvt_pk_bf16_f32 v32, v{ACC}, v{ACC+1}")
    a(f"v_cvt_pk_bf16_f32 v33, v{ACC+2}, v{ACC+3}")
    a(f"buffer_store_dwordx2 v[32:33], v{vOut}, s[{R_WS if False else R_C}:{R_C+3}], 0 offen")
    st.end()
    a("s_endpgm")

HEADER = """; out = x + MQA-attention(LN(x)) @ wo + FFN_relu2(LN(x))  -- one launch, two workgroup roles (8 waves each, 2 workgroups per CU).
"""

def gen():
    a = Asm()
    a("s_cmp_ge_u32 s2, 512")
    a("s_cbranch_scc1 K_end")
    a("s_load_dwordx16 s[4:19], s[0:1], 0")
    a("s_load_dwordx8 s[20:27], s[0:1], 64")
    a("s_load_dwordx2 s[28:29], s[0:1], 96")
    a(f"v_and_b32 v{vLane}, 63, v0")
    a(f"v_lshrrev_b32 v4, 6, v0")
    a(f"v_lshrrev_b32 v{vH}, 5, v{vLane}")
    a(f"v_readfirstlane_b32 s{sW}, v4")
    a(f"v_and_b32 v{vN}, 31, v{vLane}")
    a("s_cmp_ge_u32 s2, 256")
    a("s_cbranch_scc1 ROLE_B")
    role_A(a)
    a.label("ROLE_B")
    a("s_waitcnt lgkmcnt(0)")
    common_init(a)
    a("v_mov_b32 v4, 0"); a("v_mov_b32 v5, 0")
    n0 = len(a.lines)
    st = role_B1(a)
    role_B2(a, st)
    if OPT.get("mprio"):
        out = a.lines[:n0]; L = a.lines[n0:]; i = 0; cur = 0
        while i < len(L):
            if "s_setprio" in L[i]: cur = int(L[i].split()[-1])
            if "v_mfma" in L[i] and cur == 0:
                j = i
                while j < len(L) and "v_mfma" in L[j]: j += 1
                out.append(f"  s_setprio {OPT['mprio']}"); out += L[i:j]; out.append("  s_setprio 0"); i = j
            else:
                out.append(L[i]); i += 1
        a.lines = out
    a.label("K_end")
    a("s_endpgm")
    grid = OPT.get("grid", 512)
    s = f"; @launch grid=({grid},1,1) block=(512,1,1) lds={LDS_BYTES}\n" + HEADER
    s += '.amdgcn_target "amdgcn-amd-amdhsa--gfx950"\n.text\n'
    s += kernel_header(KN) + a.text()
    s += '.section .rodata,"a"\n.p2align 6\n' + kernel_desc(KN, 128, 102)
    return s

if __name__ == "__main__":
    if "--prof" in sys.argv: PROF = True
    for x in sys.argv:
        if x.startswith("-D"):
            k, _, v = x[2:].partition("="); OPT[k] = int(v) if v else 1
    open(sys.argv[1], "w").write(gen())
    if PROF: json.dump(STAMP_NAMES, open("stamps9.json", "w"))
```

```python
import sys, math, json
from asmlib import *

NAME = "parallel_sum__grouped_kv_mqa__dense_activation_squared_relu__prompt"
KN = NAME + "_kernel"
WS_XF = 0x0
WS_R  = 0x280000
WS_KV = 0x290000
WS_OF = 0x2D0000
WS_H  = 0x550000
WS_FL = 0xB50000
WS_WF = 0xBC0000
WS_END = 0xE70000
WS_DBG = 0x2000000
FL_KV, FL_D, FL_H, FL_W, FL_O = 0, 128, 640, 896, 1152
FL_N = 3200
FL_SIZE = FL_N * 128
NX = 2048 * 640 * 2
TS = 2688
VF = 704; VH = 352
KVB = 64 * TS
CH = 8 * TS
QSCALE = (20 ** -0.5) * math.log2(math.e)
DELTA = 96.0
LDS_BYTES = 81920
PROF = False
OPT = {}
SPIN_MAX = 200063

S_X, S_WQ, S_WK, S_WV, S_WO, S_W1, S_B1, S_W2, S_B2, S_OUT, S_DBG, S_WS = 4, 6, 8, 10, 12, 16, 18, 20, 22, 24, 26, 28
sW = 30
sTag = 31
R_WS = 32
R_FL = 36
R_A = 40
R_B = 44
R_C = 48
sRB, sCG, sT, sT2, sT3 = 52, 53, 54, 55, 56
vLane, vH, vN = 1, 2, 3

def diag(a, word, neg=False, va=74):
    if not OPT.get("diag") or neg: return
    L = a.newlabel("dgx")
    a(f"s_and_b32 s86, s2, 255")
    a(f"s_cmp_lg_u32 s86, {OPT.get('diagwg', 37)}")
    a(f"s_cbranch_scc1 {L}")
    a("s_memrealtime s[84:85]")
    a("s_waitcnt lgkmcnt(0)")
    a("s_mov_b64 s[86:87], exec")
    a("s_mov_b64 exec, 1")
    a(f"v_mov_b32 v{va}, s84")
    a(f"v_mov_b32 v{va+1}, {4*word}")
    a(f"global_store_dword v{va+1}, v{va}, s[{S_DBG}:{S_DBG+1}]")
    a("s_mov_b64 exec, s[86:87]")
    a.label(L)

class Stamps:
    def __init__(self, a, role): self.a = a; self.n = 1; self.names = []; self.role = role
    def start(self):
        if not PROF: return
        for i in range(68, 94): self.a(f"s_mov_b32 s{i}, 0")
        self.a("s_memrealtime s[64:65]"); self.a("s_memtime s[66:67]"); self.a("s_waitcnt lgkmcnt(0)"); self.n = 2
    def mark(self, name):
        if not PROF: return
        assert self.n < 15
        self.a(f"s_memtime s[{64+2*self.n}:{65+2*self.n}]"); self.a("s_waitcnt lgkmcnt(0)")
        self.n += 1; self.names.append(name)
    def end(self):
        if not PROF: return
        a = self.a
        a("s_waitcnt vmcnt(0)")
        self.mark("final-drain")
        a("s_memrealtime s[94:95]"); a("s_waitcnt lgkmcnt(0)")
        a("s_mov_b64 exec, 1")
        a(f"s_lshl_b32 s98, s2, 3")
        a(f"s_add_u32 s98, s98, s{sW}")
        a(f"s_lshl_b32 s98, s98, 6")
        a(f"s_add_u32 s98, s98, {WS_DBG}")
        a(f"s_add_u32 s96, s{S_WS}, s98")
        a(f"s_addc_u32 s97, s{S_WS+1}, 0")
        a(f"v_mov_b32 v0, 0")
        for i in list(range(14)) + [15]:
            a(f"v_mov_b32 v1, s{64+2*i}")
            a(f"global_store_dword v0, v1, s[96:97] offset:{4*i}")
        a(f"v_mov_b32 v1, {self.n}")
        a(f"global_store_dword v0, v1, s[96:97] offset:56")
        a("s_waitcnt vmcnt(0)")
        STAMP_NAMES[self.role] = self.names
STAMP_NAMES = {}

def bf16_round(a, dst, src):
    a(f"v_cvt_pk_bf16_f32 v{dst}, v{src}, v{src}")
    a(f"v_lshlrev_b32 v{dst}, 16, v{dst}")

def decode_rb_cg(a, j):
    a(f"s_lshr_b32 s{sCG}, s{j}, 6")
    a(f"s_and_b32 s{sRB}, s{j}, 7")
    a(f"s_lshl_b32 s{sRB}, s{sRB}, 3")
    a(f"s_bfe_u32 s{sT}, s{j}, 0x30003")
    a(f"s_add_u32 s{sRB}, s{sRB}, s{sT}")

TAG_AGE = 2000
TAGL = 81904
def get_tag(a, vt, lab, have=False):
    L = f"{lab}_tag"
    a(f"s_mov_b32 s{sT3}, {SPIN_MAX}")
    a(f"v_mov_b32 v{vt}, 0")
    if have:
        a(f"s_cmp_lg_u32 s{sTag}, 0")
        a(f"s_cbranch_scc1 {L}_val")
    a.label(L)
    a(f"global_load_dword v{vt+1}, v{vt}, s[{S_DBG}:{S_DBG+1}] sc1")
    a("s_waitcnt vmcnt(0)")
    a(f"v_readfirstlane_b32 s{sTag}, v{vt+1}")
    a(f"s_sub_u32 s{sT3}, s{sT3}, 1")
    a(f"s_cmp_eq_u32 s{sT3}, 0")
    a(f"s_cbranch_scc1 {L}_done")
    a(f"s_cmp_eq_u32 s{sTag}, 0")
    a(f"s_cbranch_scc0 {L}_val")
    a(f"s_and_b32 s62, s{sT3}, 31")
    a(f"s_cmp_eq_u32 s62, 0")
    a(f"s_cbranch_scc1 {L}_atom")
    a("s_sleep 1")
    a(f"s_branch {L}")
    a.label(f"{L}_val")
    a("s_memrealtime s[62:63]")
    a("s_waitcnt lgkmcnt(0)")
    a(f"s_sub_u32 s62, s62, s{sTag}")
    a(f"s_cmp_lt_u32 s62, {TAG_AGE}")
    a(f"s_cbranch_scc1 {L}_done")
    a.label(f"{L}_atom")
    a("s_mov_b64 s[62:63], exec")
    a("s_mov_b64 exec, 1")
    a(f"v_mov_b32 v{vt+1}, 0")
    a(f"global_atomic_add v{vt+1}, v{vt}, v{vt+1}, s[{S_DBG}:{S_DBG+1}] sc0 sc1")
    a("s_mov_b64 exec, s[62:63]")
    a("s_waitcnt vmcnt(0)")
    a(f"v_readfirstlane_b32 s{sTag}, v{vt+1}")
    a(f"s_cmp_eq_u32 s{sTag}, 0")
    a(f"s_cbranch_scc0 {L}_done")
    a(f"s_sub_u32 s{sT3}, s{sT3}, 1")
    a(f"s_cmp_eq_u32 s{sT3}, 0")
    a(f"s_cbranch_scc1 {L}_done")
    a("s_sleep 1")
    a(f"s_branch {L}")
    a.label(f"{L}_done")

def tag_to_lds(a, vt):
    a(f"v_mov_b32 v{vt}, {TAGL}")
    a(f"v_mov_b32 v{vt+1}, s{sTag}")
    a(f"ds_write_b32 v{vt}, v{vt+1}")

def tag_from_lds(a, vt):
    a(f"v_mov_b32 v{vt}, {TAGL}")
    a(f"ds_read_b32 v{vt+1}, v{vt}")

def poll_flags(a, vt, lab, s_idx, nflags, region, tries=None, sleep=None):
    if nflags == 128:
        poll_flags(a, vt, lab + "a", None, 64, region, tries, sleep)
        poll_flags(a, vt, lab + "b", None, 64, region + 64, tries, sleep)
        return
    L = f"{lab}_poll"
    a(f"v_lshlrev_b32 v{vt}, 7, v{vLane}")
    if s_idx is None:
        a(f"s_mov_b32 s63, {region*128}")
    else:
        a(f"s_lshl_b32 s63, s{s_idx}, 7")
        if region: a(f"s_add_u32 s63, s63, {region*128}")
    a(f"s_mov_b32 s{sT3}, {tries or SPIN_MAX}")
    a("s_mov_b64 s[100:101], exec")
    if nflags < 64:
        a(f"s_mov_b32 exec_lo, {(1 << min(nflags, 32)) - 1 if nflags < 32 else -1}")
        a(f"s_mov_b32 exec_hi, {((1 << (nflags - 32)) - 1) if nflags > 32 else 0}")
    a.label(L)
    a(f"s_and_b32 s62, s{sT3}, 63")
    a(f"s_cmp_eq_u32 s62, 0")
    a(f"s_cbranch_scc1 {L}_atom")
    a(f"buffer_load_dword v{vt+1}, v{vt}, s[{R_FL}:{R_FL+3}], s63 offen sc1")
    a(f"s_branch {L}_got")
    a.label(f"{L}_atom")
    a(f"v_mov_b32 v{vt+1}, 0")
    a(f"buffer_atomic_add v{vt+1}, v{vt}, s[{R_FL}:{R_FL+3}], s63 offen sc0 sc1")
    a.label(f"{L}_got")
    a("s_waitcnt vmcnt(0)")
    a(f"v_cmp_ne_u32 vcc, s{sTag}, v{vt+1}")
    a("s_nop 1")
    a(f"s_and_b64 exec, exec, vcc")
    a(f"s_cbranch_execz {L}_done")
    a(f"s_sub_u32 s{sT3}, s{sT3}, 1")
    a(f"s_cmp_eq_u32 s{sT3}, 0")
    a(f"s_cbranch_scc1 {L}_done")
    a(f"s_sleep {sleep if sleep is not None else OPT.get('sleep', 6)}")
    a(f"s_branch {L}")
    a.label(f"{L}_done")
    a("s_mov_b64 exec, s[100:101]")

def set_flag(a, vt, s_idx, region):
    a(f"v_mov_b32 v{vt}, s{sTag}")
    a(f"v_mov_b32 v{vt+1}, 0")
    a(f"s_lshl_b32 s63, s{s_idx}, 7")
    if region: a(f"s_add_u32 s63, s63, {region*128}")
    a("s_mov_b64 s[100:101], exec")
    a("s_mov_b64 exec, 1")
    a(f"buffer_store_dword v{vt}, v{vt+1}, s[{R_FL}:{R_FL+3}], s63 offen sc1")
    a("s_mov_b64 exec, s[100:101]")

def tr_addr(a, dst, dst2, pitch, hrows, second_rows, s_base, t):
    a(f"v_bfe_u32 v{t}, v{vLane}, 2, 2")
    a(f"v_mul_u32_u24 v{t+1}, {hrows}, v{vH}")
    a(f"v_add_u32 v{t}, v{t}, v{t+1}")
    a(f"v_bfe_u32 v{t+1}, v{vLane}, 4, 1")
    a(f"v_and_b32 v{t+2}, 3, v{vLane}")
    a(f"v_lshlrev_b32 v{t+2}, 3, v{t+2}")
    a(f"v_lshl_add_u32 v{t+1}, v{t+1}, 5, v{t+2}")
    a(f"v_mul_u32_u24 v{dst}, {pitch}, v{t}")
    a(f"v_add3_u32 v{dst}, v{dst}, v{t+1}, s{s_base}")
    if dst2 is not None:
        a(f"v_add_u32 v{dst2}, {second_rows*pitch}, v{dst}")

def common_init(a, skip_a=False):
    srd(a, R_WS, S_WS, S_WS+1, WS_END)
    srd(a, R_FL, S_WS, S_WS+1, FL_SIZE, WS_FL)
    for r in ((R_B, R_C) if skip_a else (R_A, R_B, R_C)): srd(a, r, S_WS, S_WS+1, WS_END)
    for i in range(6, 16): a(f"v_mov_b32 v{i}, 0")

def role_A(a):
    OPT["nopre0"] = 1
    st = Stamps(a, "A")
    st.start()
    XB = 0; XP = 1056; XH = 528; RBUF = 42240
    RING = 42496; NSTG = 3; RW = NSTG*1024; DEPTH = 16
    KSTG = 57856
    KVX = 67072
    LFL = XB + 512
    LFL2 = XB + 1040
    T4F = 75264
    SB = [0, 16384, 32768, 49152]
    QBUF = 65536; QP = 328
    sStep, sSoff, sLds, sRho, sWrap, sIt = 57, 58, 59, 60, 61, 57
    sExp, sFD = 95, 94
    vT = 4
    vVo, vTr, vTr2, vX16 = 12, 13, 14, 15
    X = 16
    TMP = 36
    vSum, vSq, vM = 52, 53, 54
    vOne, vSelLo, vSelHi = 56, 57, 58
    vR, vXa, vWst, vTag = 9, 10, 11, 61
    ACC = 16; FB = 32; WS_ = 64
    a(f"s_mov_b32 s{sT2}, s2")
    decode_rb_cg(a, sT2)
    a(f"s_lshl_b32 s{sT}, s{sRB}, 5")
    a(f"s_lshl_b32 s{sT2}, s{sW}, 2")
    a(f"s_add_u32 s{sT}, s{sT}, s{sT2}")
    a(f"v_lshrrev_b32 v{vT}, 4, v{vLane}")
    a(f"v_add_u32 v{vT}, s{sT}, v{vT}")
    a(f"v_mul_u32_u24 v{vT}, 1280, v{vT}")
    a(f"v_and_b32 v{vT+1}, 15, v{vLane}")
    a(f"v_lshl_add_u32 v{vT}, v{vT+1}, 4, v{vT}")
    a("s_waitcnt lgkmcnt(0)")
    srd(a, R_A, S_X, S_X+1, NX)
    for i in range(5):
        a(f"buffer_load_dwordx4 {vr(X+4*i,4)}, v{vT}, s[{R_A}:{R_A+3}], 0 offen offset:{256*i}")
    common_init(a, skip_a=True)
    L_notag = "A_notag"
    a(f"s_cmp_lg_u32 s2, 0")
    a(f"s_cbranch_scc1 {L_notag}")
    a(f"s_cmp_lg_u32 s{sW}, 0")
    a(f"s_cbranch_scc1 {L_notag}")
    a(f"s_memrealtime s[62:63]")
    a("s_waitcnt lgkmcnt(0)")
    a(f"s_or_b32 s62, s62, 1")
    a(f"v_mov_b32 v{vT+2}, s62")
    a(f"v_mov_b32 v{vT+3}, 0")
    a("s_mov_b64 exec, 1")
    a(f"global_store_dword v{vT+3}, v{vT+2}, s[{S_DBG}:{S_DBG+1}] sc1")
    a("s_mov_b64 exec, -1")
    a.label(L_notag)
    a(f"v_lshlrev_b32 v{vX16}, 4, v{vLane}")
    a(f"s_and_b32 s{sRho}, s{sRB}, 7")
    L_nowe = "A_nowe"
    a(f"s_cmp_lt_u32 s{sW}, 5")
    a(f"s_cbranch_scc1 {L_nowe}")
    a(f"s_cmp_ge_u32 s{sCG}, 2")
    a(f"s_cbranch_scc1 {L_nowe}")
    a(f"s_cmp_eq_u32 s{sCG}, 1")
    a(f"s_cselect_b32 s{R_B}, s{S_WV}, s{S_WK}")
    a(f"s_cselect_b32 s{R_B+1}, s{S_WV+1}, s{S_WK+1}")
    a(f"s_mov_b32 s{R_B+2}, {640*20*2}")
    a(f"s_mov_b32 s{R_B+3}, 0x00020000")
    a(f"s_sub_u32 s{sT}, s{sW}, 5")
    a(f"s_mul_i32 s{sStep}, s{sT}, 13")
    a(f"s_min_u32 s{sT}, s{sT}, 1")
    a(f"s_add_u32 s{sStep}, s{sStep}, s{sT}")
    a(f"s_mul_i32 s{sT}, s{sRho}, 5")
    a(f"s_add_u32 s{sT2}, s{sStep}, s{sT}")
    a(f"s_cmp_ge_u32 s{sT2}, 40")
    a(f"s_cselect_b32 s{sT}, 40, 0")
    a(f"s_sub_u32 s{sT2}, s{sT2}, s{sT}")
    a(f"s_mul_i32 s{sSoff}, s{sT2}, 640")
    for i in range(14):
        a(f"s_add_u32 s{sT}, s{sSoff}, 640")
        a(f"buffer_load_dwordx4 {vr(WS_+4*i,4)}, v{vX16}, s[{R_B}:{R_B+3}], s{sSoff} offen")
        a(f"s_cmp_eq_u32 s{sT}, 25600")
        a(f"s_cselect_b32 s{sSoff}, 0, s{sT}")
    a.label(L_nowe)
    a("s_barrier")
    L_nq = "A_nq"
    a(f"s_cmp_ge_u32 s{sW}, 5")
    a(f"s_cbranch_scc1 {L_nq}")
    srd(a, R_B, S_WQ, S_WQ+1, 640*640*2)
    a(f"v_lshrrev_b32 v{vT}, 2, v{vLane}")
    a(f"v_mul_u32_u24 v{vT}, 1280, v{vT}")
    a(f"v_and_b32 v{vT+1}, 3, v{vLane}")
    a(f"v_lshl_add_u32 v{vT}, v{vT+1}, 4, v{vT}")
    a(f"s_mul_i32 s{sT}, s{sCG}, 320")
    a(f"s_lshl_b32 s{sT2}, s{sW}, 6")
    a(f"s_add_u32 s{sT}, s{sT}, s{sT2}")
    a(f"v_add_u32 v{vVo}, s{sT}, v{vT}")
    a(f"s_mul_i32 s{sLds}, s{sW}, {RW}")
    a(f"s_add_u32 s{sLds}, s{sLds}, {RING}")
    a(f"s_mul_i32 s{sSoff}, s{sRho}, {5*20480}")
    def wload(k):
        d = WS_ + 4*(k % DEPTH)
        a(f"s_add_u32 s{sT}, s{sSoff}, 20480")
        a(f"buffer_load_dwordx4 {vr(d,4)}, v{vVo}, s[{R_B}:{R_B+3}], s{sSoff} offen")
        a(f"s_cmp_eq_u32 s{sT}, {40*20480}")
        a(f"s_cselect_b32 s{sSoff}, 0, s{sT}")
    NW0 = OPT.get("NW0", 8)
    for k in range(NW0): wload(k)
    tr_addr(a, vTr, vTr2, 64, 8, 4, sLds, vT)
    a(f"v_add_u32 v{vWst}, s{sLds}, v{vX16}")
    PRE = (not PROF) and OPT.get("presoff", 0)
    if PRE:
        a(f"s_mul_i32 s{sT2}, s{sRho}, 5")
        a(f"s_add_u32 s{sT2}, s{sT2}, {DEPTH}")
        a(f"s_cmp_ge_u32 s{sT2}, 40")
        a(f"s_cselect_b32 s{sT}, 40, 0")
        a(f"s_sub_u32 s{sT2}, s{sT2}, s{sT}")
        a(f"s_mul_i32 s{sT2}, s{sT2}, 20480")
        for k in range(DEPTH, 40):
            a(f"s_mov_b32 s{64 + k - DEPTH}, s{sT2}")
            a(f"s_add_u32 s{sT}, s{sT2}, 20480")
            a(f"s_cmp_eq_u32 s{sT}, {40*20480}")
            a(f"s_cselect_b32 s{sT2}, 0, s{sT}")
    a(f"s_waitcnt vmcnt({NW0})")
    a(f"s_mov_b32 s{sTag}, 0")
    a(f"s_branch A_xok")
    a.label(L_nq)
    a(f"s_waitcnt vmcnt(14)")
    a(f"s_cmp_lt_u32 s{sCG}, 2")
    a(f"s_cbranch_scc1 A_xok2")
    a(f"s_waitcnt vmcnt(0)")
    a.label("A_xok2")
    a(f"v_mov_b32 v{vT}, 0")
    a(f"global_load_dword v{vTag}, v{vT}, s[{S_DBG}:{S_DBG+1}] sc1")
    a.label("A_xok")
    st.mark("xwait")
    a(f"v_mov_b32 v{vOne}, 0x3f803f80")
    a(f"v_mov_b32 v{vSelLo}, 0x00003f80")
    a(f"v_mov_b32 v{vSelHi}, 0x3f800000")
    for i in range(4): a(f"v_mov_b32 v{TMP+i}, 0")
    for i in range(20):
        a(f"v_dot2c_f32_bf16 v{TMP+(i%2)}, v{X+i}, v{vOne}")
        a(f"v_dot2c_f32_bf16 v{TMP+2+(i%2)}, v{X+i}, v{X+i}")
    a(f"v_lshrrev_b32 v{vT}, 4, v{vLane}")
    a(f"s_lshl_b32 s{sT}, s{sW}, 2")
    a(f"v_add_u32 v{vT}, s{sT}, v{vT}")
    a(f"v_and_b32 v{vT+1}, 1, v{vLane}")
    a(f"v_mul_u32_u24 v{vT+1}, {XH}, v{vT+1}")
    a(f"v_lshl_add_u32 v{vT+1}, v{vT}, 4, v{vT+1}")
    a(f"v_add_f32 v{vSum}, v{TMP}, v{TMP+1}")
    a(f"v_add_f32 v{vSq}, v{TMP+2}, v{TMP+3}")
    a(f"v_bfe_u32 v{vT+2}, v{vLane}, 1, 3")
    a(f"s_mul_i32 s{sT}, s{sRho}, 5")
    a(f"s_sub_u32 s{sT}, 40, s{sT}")
    for ror in (8, 4, 2, 1):
        a(f"v_add_f32_dpp v{vSum}, v{vSum}, v{vSum} row_ror:{ror} row_mask:0xf bank_mask:0xf")
        a(f"v_add_f32_dpp v{vSq}, v{vSq}, v{vSq} row_ror:{ror} row_mask:0xf bank_mask:0xf")
        if ror != 1: a.nop(1)
    a(f"v_add_u32 v{vT+2}, s{sT}, v{vT+2}")
    inv = f32bits(1.0/640)
    a(f"v_mul_f32 v{vM}, {inv}, v{vSum}")
    a(f"v_mul_f32 v{TMP+1}, {inv}, v{vSq}")
    a(f"v_fma_f32 v{TMP+1}, -v{vM}, v{vM}, v{TMP+1}")
    a(f"v_max_f32 v{TMP+1}, 0, v{TMP+1}")
    bf16_round(a, TMP+1, TMP+1)
    bf16_round(a, vM, vM)
    a(f"v_add_f32 v{TMP+1}, {f32bits(1e-5)}, v{TMP+1}")
    a(f"v_sub_f32 v{vM}, 0, v{vM}")
    bf16_round(a, TMP+1, TMP+1)
    a(f"v_sqrt_f32 v{vSum}, v{TMP+1}")
    for base in range(0, 20, 8):
        g = min(8, 20-base)
        for i in range(g):
            a(f"v_dot2_f32_bf16 v{TMP+2*i}, v{X+base+i}, v{vSelLo}, v{vM}")
            a(f"v_dot2_f32_bf16 v{TMP+2*i+1}, v{X+base+i}, v{vSelHi}, v{vM}")
        if base == 0:
            bf16_round(a, vSum, vSum)
            a(f"v_rcp_f32 v{vR}, v{vSum}")
        else:
            a.nop(3)
        for i in range(g):
            a(f"v_cvt_pk_bf16_f32 v{X+base+i}, v{TMP+2*i}, v{TMP+2*i+1}")
    a(f"v_lshlrev_b32 v{vT+3}, 2, v{vT}")
    a(f"ds_write_b32 v{vT+3}, v{vR} offset:{RBUF}")
    for i in range(5):
        if i: a(f"v_add_u32 v{vT+2}, 8, v{vT+2}")
        a(f"v_subrev_u32 v{vT+3}, 40, v{vT+2}")
        a(f"v_min_u32 v{vT+3}, v{vT+3}, v{vT+2}")
        a(f"v_mul_u32_u24 v{vT+3}, {XP}, v{vT+3}")
        a(f"v_add_u32 v{vT+3}, v{vT+3}, v{vT+1}")
        a(f"ds_write_b128 v{vT+3}, {vr(X+4*i,4)} offset:{XB}")
    a(f"v_mul_u32_u24 v{vXa}, {XH}, v{vH}")
    a(f"v_lshl_add_u32 v{vXa}, v{vN}, 4, v{vXa}")
    a(f"s_cmp_ge_u32 s{sW}, 5")
    a(f"s_cbranch_scc1 A_ln5")
    for k in range(NW0, 10): wload(k)
    a(f"s_cmp_eq_u32 s{sW}, 4")
    a(f"s_cbranch_scc1 A_lnb")
    for k in range(10, DEPTH): wload(k)
    a(f"s_branch A_lnb")
    a.label("A_ln5")
    a(f"v_mov_b32 v{vT}, {LFL}")
    for i in range(4): a(f"v_mov_b32 v{TMP+i}, 0")
    a(f"ds_write_b128 v{vT}, v[{TMP}:{TMP+3}]")
    a(f"ds_write_b128 v{vT}, v[{TMP}:{TMP+3}] offset:{LFL2-LFL}")
    a("s_waitcnt vmcnt(0)")
    a(f"v_readfirstlane_b32 s{sTag}, v{vTag}")
    a.label("A_lnb")
    a("s_waitcnt lgkmcnt(0)")
    a("s_barrier")
    a(f"v_lshlrev_b32 v{vT}, 2, v{vN}")
    a(f"ds_read_b32 v{vR}, v{vT} offset:{RBUF}")
    st.mark("LN")
    if OPT.get("diag"):
        a(f"s_cmp_lg_u32 s{sW}, 0"); Ld = a.newlabel("dg"); a(f"s_cbranch_scc1 {Ld}"); diag(a, 4, va=62); diag(a, 5, neg=True, va=62); a.label(Ld)
    def ensure_tag(lab):
        get_tag(a, vT, lab, have=True)
    L_kvp, L_exp, L_bar1 = "A_kvp", "A_exp", "A_bar1"
    a(f"s_cmp_ge_u32 s{sW}, 5")
    a(f"s_cbranch_scc1 {L_kvp}")
    a(f"s_cmp_eq_u32 s{sW}, 4")
    a(f"s_cbranch_scc1 A_job4")
    if OPT.get("noq"): a(f"s_branch {L_bar1}")
    def pipe_gemm(nsteps, wr, rd, need_vm, refill, cin0):
        for k in range(5):
            if k < nsteps:
                need_vm(k, -5 + k)
                wr(k)
            if 0 <= k - 2 < nsteps: rd(k - 2)
        for s_ in range(nsteps):
            n_ops = 0
            if s_ + 5 < nsteps:
                need_vm(s_ + 5, s_)
                wr(s_ + 5)
            if s_ + 3 < nsteps: rd(s_ + 3)
            for t in range(s_ + 1, s_ + 4):
                if t + 2 < nsteps: n_ops += 1
                if t < nsteps: n_ops += 3
            a(f"s_waitcnt lgkmcnt({n_ops})")
            f = FB + 8*(s_ % 4)
            cin = cin0 if s_ == 0 else vr(ACC, 16)
            a(f"v_mfma_f32_32x32x16_bf16 {vr(ACC,16)}, {vr(f,4)}, {vr(f+4,4)}, {cin}")
            refill(s_)
    def q_wr(k): a(f"ds_write_b128 v{vWst}, {vr(WS_+4*(k % DEPTH),4)} offset:{(k % NSTG)*1024}")
    def q_rd(k):
        f = FB + 8*(k % 4)
        a(f"ds_read_b64_tr_b16 v[{f}:{f+1}], v{vTr} offset:{(k % NSTG)*1024}")
        a(f"ds_read_b64_tr_b16 v[{f+2}:{f+3}], v{vTr2} offset:{(k % NSTG)*1024}")
        a(f"ds_read_b128 {vr(f+4,4)}, v{vXa} offset:{XB + k*XP}")
    def q_vm(k, s_now):
        issued = DEPTH + max(0, min(s_now, 40 - DEPTH + QOFF) - QOFF) if s_now > 0 else DEPTH
        issued = min(issued, 40)
        a(f"s_waitcnt vmcnt({issued - 1 - k})")
    QOFF = 0
    def q_refill(s_):
        if s_ + DEPTH < 40:
            if PRE:
                k = s_ + DEPTH
                a(f"buffer_load_dwordx4 {vr(WS_ + 4*(k % DEPTH),4)}, v{vVo}, s[{R_B}:{R_B+3}], s{64 + k - DEPTH} offen")
            else:
                wload(s_ + DEPTH)
    pipe_gemm(40, q_wr, q_rd, q_vm, q_refill, "0")
    st.mark("gemm")
    a.nop(12)
    a(f"v_mul_f32 v{vT}, {f32bits(QSCALE)}, v{vR}")
    for j in range(16): a(f"v_mul_f32 v{ACC+j}, v{ACC+j}, v{vT}")
    for k in range(8): a(f"v_cvt_pk_bf16_f32 v{TMP+k}, v{ACC+2*k}, v{ACC+2*k+1}")
    a(f"s_branch {L_bar1}")

    JW = WS_ + 20
    def job_loads():
        srd(a, R_B, S_WQ, S_WQ+1, 640*640*2)
        a(f"v_lshrrev_b32 v{vT}, 2, v{vLane}")
        a(f"v_mul_u32_u24 v{vT}, 1280, v{vT}")
        a(f"v_and_b32 v{vT+1}, 3, v{vLane}")
        a(f"v_lshl_add_u32 v{vT}, v{vT+1}, 4, v{vT}")
        a(f"s_mul_i32 s{sT}, s{sCG}, 320")
        a(f"s_add_u32 s{sT}, s{sT}, 256")
        a(f"v_add_u32 v{vT}, s{sT}, v{vT}")
        a(f"s_sub_u32 s{sT}, s{sW}, 4")
        a(f"s_mul_i32 s{sT}, s{sT}, 10")
        a(f"s_mul_i32 s{sT2}, s{sRho}, 5")
        a(f"s_add_u32 s{sT}, s{sT}, s{sT2}")
        a(f"s_cmp_ge_u32 s{sT}, 40")
        a(f"s_cselect_b32 s{sT2}, 40, 0")
        a(f"s_sub_u32 s{sT}, s{sT}, s{sT2}")
        a(f"s_mul_i32 s{sSoff}, s{sT}, 20480")
        for k in range(10):
            a(f"s_add_u32 s{sT}, s{sSoff}, 20480")
            a(f"buffer_load_dwordx4 {vr(JW+4*k,4)}, v{vT}, s[{R_B}:{R_B+3}], s{sSoff} offen")
            a(f"s_cmp_eq_u32 s{sT}, {40*20480}")
            a(f"s_cselect_b32 s{sSoff}, 0, s{sT}")
    def job_run(raw, vm_after):
        tr_addr(a, vTr, vTr2, 64, 8, 4, sLds, vT)
        a(f"v_add_u32 v{vWst}, s{sLds}, v{vX16}")
        a(f"s_sub_u32 s{sT}, s{sW}, 4")
        a(f"s_mul_i32 s{sT}, s{sT}, {10*XP}")
        a(f"v_add_u32 v{vVo}, s{sT}, v{vXa}")
        def j_wr(k): a(f"ds_write_b128 v{vWst}, {vr(raw+4*k,4)} offset:{(k % NSTG)*1024}")
        def j_rd(k):
            f = FB + 8*(k % 4)
            a(f"ds_read_b64_tr_b16 v[{f}:{f+1}], v{vTr} offset:{(k % NSTG)*1024}")
            a(f"ds_read_b64_tr_b16 v[{f+2}:{f+3}], v{vTr2} offset:{(k % NSTG)*1024}")
            a(f"ds_read_b128 {vr(f+4,4)}, v{vVo} offset:{k*XP}")
        def j_vm(k, s_): a(f"s_waitcnt vmcnt({9 - k + vm_after})")
        pipe_gemm(10, j_wr, j_rd, j_vm, lambda s_: None, "0")
        a("s_waitcnt lgkmcnt(0)")
        a.nop(12)
    def job_publish():
        Lp5, Lpd = a.newlabel("A_jp5"), a.newlabel("A_jpd")
        a(f"s_cmp_eq_u32 s{sW}, 5")
        a(f"s_cbranch_scc1 {Lp5}")
        for q in range(3): a(f"ds_write_b128 v{vWst}, {vr(ACC+4*q,4)} offset:{q*1024}")
        a(f"s_sub_u32 s{sT}, s{sW}, 6")
        a(f"s_lshl_b32 s{sT}, s{sT}, 10")
        a(f"s_add_u32 s{sT}, s{sT}, {T4F}")
        a(f"v_add_u32 v{vT}, s{sT}, v{vX16}")
        a(f"ds_write_b128 v{vT}, {vr(ACC+12,4)}")
        a(f"s_branch {Lpd}")
        a.label(Lp5)
        a(f"v_add_u32 v{vT}, {KVX+4096}, v{vX16}")
        for q in range(4): a(f"ds_write_b128 v{vT}, {vr(ACC+4*q,4)} offset:{q*1024}")
        a.label(Lpd)
        a(f"s_sub_u32 s{sT}, s{sW}, 5")
        a(f"s_lshl_b32 s{sT}, s{sT}, 2")
        a(f"s_add_u32 s{sT}, s{sT}, {LFL2}")
        a(f"v_mov_b32 v{vT}, s{sT}")
        a(f"v_mov_b32 v{vT+1}, 1")
        a(f"ds_write_b32 v{vT}, v{vT+1}")
    a.label("A_job4")
    job_run(WS_, 0)
    a(f"v_mov_b32 v{vT}, {LFL2}")
    a(f"s_mov_b32 s{sT3}, {SPIN_MAX}")
    a.label("A_j4spin")
    a(f"ds_read_b96 v[{vT+2}:{vT+4}], v{vT}")
    a("s_waitcnt lgkmcnt(0)")
    a(f"v_and_b32 v{vT+2}, v{vT+2}, v{vT+3}")
    a(f"v_and_b32 v{vT+2}, v{vT+2}, v{vT+4}")
    a("s_nop 0")
    a(f"v_readfirstlane_b32 s{sT}, v{vT+2}")
    a(f"s_sub_u32 s{sT3}, s{sT3}, 1")
    a(f"s_cmp_eq_u32 s{sT3}, 0")
    a(f"s_cbranch_scc1 A_j4spin_done")
    a(f"s_cmp_eq_u32 s{sT}, 1")
    a(f"s_cbranch_scc1 A_j4spin_done")
    a("s_sleep 1")
    a(f"s_branch A_j4spin")
    a.label("A_j4spin_done")
    a(f"v_add_u32 v{vT}, {KVX+4096}, v{vX16}")
    a(f"v_add_u32 v{vT+1}, {KSTG+3072}, v{vX16}")
    a(f"v_add_u32 v{vT+2}, {T4F}, v{vX16}")
    for q in range(4): a(f"ds_read_b128 {vr(64+4*q,4)}, v{vT} offset:{q*1024}")
    for p_ in range(2):
        for q in range(3): a(f"ds_read_b128 {vr(80+16*p_+4*q,4)}, v{vT+1} offset:{p_*3072 + q*1024}")
        a(f"ds_read_b128 {vr(80+16*p_+12,4)}, v{vT+2} offset:{p_*1024}")
    a("s_waitcnt lgkmcnt(0)")
    for j in range(16): a(f"v_add_f32 v{64+j}, v{64+j}, v{80+j}")
    for j in range(16): a(f"v_add_f32 v{ACC+j}, v{ACC+j}, v{96+j}")
    for j in range(16): a(f"v_add_f32 v{ACC+j}, v{ACC+j}, v{64+j}")
    st.mark("job4")
    a(f"v_mul_f32 v{vT}, {f32bits(QSCALE)}, v{vR}")
    for j in range(16): a(f"v_mul_f32 v{ACC+j}, v{ACC+j}, v{vT}")
    for k in range(8): a(f"v_cvt_pk_bf16_f32 v{TMP+k}, v{ACC+2*k}, v{ACC+2*k+1}")
    a(f"s_branch {L_bar1}")
    def export_d():
        a(f"s_mul_i32 s{sT}, s{sCG}, 2")
        a(f"s_add_u32 s{sT}, s{sT}, s{sW}")
        a(f"s_sub_u32 s{sT}, s{sT}, 6")
        a(f"s_sub_u32 s{sT2}, s{sT}, s{sRho}")
        a(f"s_and_b32 s{sT2}, s{sT2}, 7")
        a(f"s_mul_i32 s{sT2}, s{sT2}, {5*XP}")
        a(f"v_add_u32 v{vT}, s{sT2}, v{vXa}")
        for i in range(5):
            a(f"ds_read_b128 {vr(X+4*i,4)}, v{vT} offset:{XB + XP*i}")
        a(f"s_mul_i32 s{sT2}, s{sRB}, 40")
        a(f"s_mul_i32 s{sExp}, s{sT}, 5")
        a(f"s_add_u32 s{sT2}, s{sT2}, s{sExp}")
        a(f"s_lshl_b32 s{sT2}, s{sT2}, 10")
        if WS_XF: a(f"s_add_u32 s{sT2}, s{sT2}, {WS_XF}")
        a(f"s_lshl_b32 s{sFD}, s{sRB}, 3")
        a(f"s_add_u32 s{sFD}, s{sFD}, s{sT}")
        a(f"v_add_u32 v{vT+1}, 4096, v{vX16}")
        a("s_waitcnt lgkmcnt(0)")
        for i in range(4):
            a(f"buffer_store_dwordx4 {vr(X+4*i,4)}, v{vX16}, s[{R_WS}:{R_WS+3}], s{sT2} offen offset:{1024*i} sc1")
        a(f"buffer_store_dwordx4 {vr(X+16,4)}, v{vT+1}, s[{R_WS}:{R_WS+3}], s{sT2} offen sc1")
        L_nor = "A_nor"
        a(f"s_cmp_lg_u32 s{sT}, 0")
        a(f"s_cbranch_scc1 {L_nor}")
        a(f"s_lshl_b32 s{sT2}, s{sRB}, 7")
        a(f"s_add_u32 s{sT2}, s{sT2}, {WS_R}")
        a(f"v_lshlrev_b32 v{vT}, 2, v{vN}")
        a(f"buffer_store_dword v{vR}, v{vT}, s[{R_WS}:{R_WS+3}], s{sT2} offen sc1")
        a.label(L_nor)
    a.label(L_kvp)
    a("s_setprio 3")
    if OPT.get("expfirst", 0):
        a(f"s_cmp_lt_u32 s{sW}, 6")
        a(f"s_cbranch_scc1 A_noexp")
        export_d()
        a.label("A_noexp")
    a(f"s_cmp_ge_u32 s{sCG}, 2")
    a(f"s_cbranch_scc1 A_kvp_skip")
    a(f"s_sub_u32 s{sT}, s{sW}, 5")
    a(f"s_mul_i32 s{sLds}, s{sT}, 3072")
    a(f"s_add_u32 s{sLds}, s{sLds}, {KSTG}")
    tr_addr(a, vTr, vTr2, 40, 8, 4, sLds, vT)
    a(f"v_add_u32 v{vWst}, s{sLds}, v{vX16}")
    a(f"s_mul_i32 s{sT}, s{sStep}, {XP}")
    a(f"v_add_u32 v{vVo}, s{sT}, v{vXa}")
    a(f"v_add_u32 v{vT+4}, {13*XP}, v{vVo}")
    a(f"s_cmp_eq_u32 s{sW}, 5")
    a(f"s_cbranch_scc1 A_kv13")
    for i in range(4): a(f"v_mov_b32 v{WS_+52+i}, 0")
    a(f"v_mov_b32 v{vT+4}, v{vXa}")
    a.label("A_kv13")
    def k_wr(k): a(f"ds_write_b128 v{vWst}, {vr(WS_+4*k,4)} offset:{(k % NSTG)*1024}")
    def k_rd(k):
        f = FB + 8*(k % 4)
        a(f"ds_read_b64_tr_b16 v[{f}:{f+1}], v{vTr} offset:{(k % NSTG)*1024}")
        a(f"ds_read_b64_tr_b16 v[{f+2}:{f+3}], v{vTr2} offset:{(k % NSTG)*1024}")
        if k == 13: a(f"ds_read_b128 {vr(f+4,4)}, v{vT+4}")
        else: a(f"ds_read_b128 {vr(f+4,4)}, v{vVo} offset:{k*XP}")
    pipe_gemm(14, k_wr, k_rd, lambda k, s_: None, lambda s_: None, "0")
    a("s_waitcnt lgkmcnt(0)")
    job_loads()
    a(f"s_cmp_eq_u32 s{sW}, 5")
    a(f"s_cbranch_scc1 A_kv5")
    a(f"s_sub_u32 s{sT}, s{sW}, 6")
    a(f"s_lshl_b32 s{sT}, s{sT}, 12")
    a(f"s_add_u32 s{sT}, s{sT}, {KVX}")
    a(f"v_add_u32 v{vT}, s{sT}, v{vX16}")
    for q in range(4):
        a(f"ds_write_b128 v{vT}, {vr(ACC+4*q,4)} offset:{q*1024}")
    a(f"s_sub_u32 s{sT}, s{sW}, 6")
    a(f"s_lshl_b32 s{sT}, s{sT}, 2")
    a(f"s_add_u32 s{sT}, s{sT}, {LFL}")
    a(f"v_mov_b32 v{vT}, s{sT}")
    a(f"v_mov_b32 v{vT+1}, 1")
    a(f"ds_write_b32 v{vT}, v{vT+1}")
    a(f"s_branch A_kvp_done")
    a.label("A_kv5")
    a(f"v_mov_b32 v{vT}, {LFL}")
    a(f"s_mov_b32 s{sT3}, {SPIN_MAX}")
    a.label("A_kvspin")
    a(f"ds_read_b64 v[{vT+2}:{vT+3}], v{vT}")
    a("s_waitcnt lgkmcnt(0)")
    a(f"v_and_b32 v{vT+2}, v{vT+2}, v{vT+3}")
    a("s_nop 0")
    a(f"v_readfirstlane_b32 s{sT}, v{vT+2}")
    a(f"s_sub_u32 s{sT3}, s{sT3}, 1")
    a(f"s_cmp_eq_u32 s{sT3}, 0")
    a(f"s_cbranch_scc1 A_kvspin_done")
    a(f"s_cmp_eq_u32 s{sT}, 1")
    a(f"s_cbranch_scc1 A_kvspin_done")
    a("s_sleep 1")
    a(f"s_branch A_kvspin")
    a.label("A_kvspin_done")
    a(f"v_add_u32 v{vT}, {KVX}, v{vX16}")
    for p_ in range(2):
        for q in range(4):
            a(f"ds_read_b128 {vr(FB+16*p_+4*q,4)}, v{vT} offset:{p_*4096 + q*1024}")
    a("s_waitcnt lgkmcnt(0)")
    for j in range(16):
        a(f"v_add_f32 v{FB+j}, v{FB+j}, v{FB+16+j}")
    for j in range(16):
        a(f"v_add_f32 v{ACC+j}, v{ACC+j}, v{FB+j}")
    for j in range(16): a(f"v_mul_f32 v{ACC+j}, v{ACC+j}, v{vR}")
    a(f"v_cmp_eq_u32 vcc, 1, v{vH}")
    a(f"v_mov_b32 v{vT}, 1.0")
    a(f"v_mov_b32 v{vT+1}, 0")
    a(f"v_cndmask_b32 v{ACC+8}, v{ACC+8}, v{vT}, vcc")
    for j in range(9, 12): a(f"v_cndmask_b32 v{ACC+j}, v{ACC+j}, v{vT+1}, vcc")
    for j in range(12, 16): a(f"v_mov_b32 v{ACC+j}, 0")
    for k in range(8): a(f"v_cvt_pk_bf16_f32 v{TMP+k}, v{ACC+2*k}, v{ACC+2*k+1}")
    a(f"s_mul_i32 s{sT}, s{sRB}, {TS}")
    a(f"s_add_u32 s{sT}, s{sT}, {WS_KV}")
    L_v = "A_v"; L_kvdone = "A_kvdone"
    a(f"s_cmp_eq_u32 s{sCG}, 1")
    a(f"s_cbranch_scc1 {L_v}")
    a(f"buffer_store_dwordx4 {vr(TMP,4)}, v{vX16}, s[{R_WS}:{R_WS+3}], s{sT} offen sc1")
    a(f"v_lshlrev_b32 v{vT}, 3, v{vLane}")
    a(f"s_mov_b32 exec_hi, 0")
    a(f"buffer_store_dwordx2 v[{TMP+4}:{TMP+5}], v{vT}, s[{R_WS}:{R_WS+3}], s{sT} offen offset:1024 sc1")
    a(f"s_mov_b32 exec_hi, -1")
    a(f"s_branch {L_kvdone}")
    a.label(L_v)
    a(f"s_mov_b32 s{sLds}, {KVX}")
    a(f"v_lshlrev_b32 v{vT}, 6, v{vN}")
    a(f"v_lshl_add_u32 v{vT}, v{vH}, 3, v{vT}")
    a(f"v_add_u32 v{vT}, s{sLds}, v{vT}")
    for q in range(4):
        a(f"ds_write_b64 v{vT}, v[{TMP+2*q}:{TMP+2*q+1}] offset:{16*q}")
    tr_addr(a, vTr, None, 64, 4, 8, sLds, vT+1)
    for u in range(2):
        a(f"ds_read_b64_tr_b16 v[{TMP+8+4*u}:{TMP+9+4*u}], v{vTr} offset:{u*1024}")
        a(f"ds_read_b64_tr_b16 v[{TMP+10+4*u}:{TMP+11+4*u}], v{vTr} offset:{u*1024 + 512}")
    a(f"v_mul_u32_u24 v{vT}, {VH}, v{vH}")
    a(f"v_lshl_add_u32 v{vT}, v{vN}, 4, v{vT}")
    a(f"s_mov_b32 exec_lo, 0x3fffff")
    a(f"s_mov_b32 exec_hi, 0x3fffff")
    a("s_waitcnt lgkmcnt(0)")
    a(f"buffer_store_dwordx4 {vr(TMP+8,4)}, v{vT}, s[{R_WS}:{R_WS+3}], s{sT} offen offset:1280 sc1")
    a(f"buffer_store_dwordx4 {vr(TMP+12,4)}, v{vT}, s[{R_WS}:{R_WS+3}], s{sT} offen offset:{1280+VF} sc1")
    a(f"s_mov_b64 exec, -1")
    a.label(L_kvdone)
    ensure_tag("A5")
    a("s_waitcnt vmcnt(0)")
    st.mark("k5:drain")
    a(f"s_lshl_b32 s{sT}, s{sRB}, 1")
    a(f"s_add_u32 s{sT}, s{sT}, s{sCG}")
    set_flag(a, vT, sT, FL_KV)
    a(f"s_mov_b32 s{sLds}, {KSTG}")
    job_run(JW, 1)
    job_publish()
    a(f"s_branch {L_bar1}")
    a.label("A_kvp_skip")
    job_loads()
    a(f"s_cmp_lg_u32 s{sW}, 5")
    a(f"s_cbranch_scc1 A_kvp_done")
    a(f"s_mov_b32 s{sLds}, {KSTG}")
    job_run(JW, 0)
    job_publish()
    a(f"s_branch {L_bar1}")
    a.label("A_kvp_done")
    if not OPT.get("expfirst", 0): export_d()
    ensure_tag("A6")
    tag_to_lds(a, vT)
    a(f"s_waitcnt vmcnt({10 if OPT.get('expfirst', 0) else 0})")
    st.mark("x:drain")
    set_flag(a, vT, sFD, FL_D)
    a(f"s_sub_u32 s{sT}, s{sW}, 5")
    a(f"s_mul_i32 s{sLds}, s{sT}, 3072")
    a(f"s_add_u32 s{sLds}, s{sLds}, {KSTG}")
    job_run(JW, 1)
    job_publish()
    a.label(L_bar1)
    a("s_waitcnt vmcnt(0)")
    a.label("A_bar1_nowait")
    a("s_setprio 0")
    a("s_waitcnt lgkmcnt(0)")
    a("s_barrier")
    st.mark("bar0")
    vA16 = vX16
    aK1, aK2, aV, nK1, nK2, nV = 64, 65, 66, 67, 68, 69
    bK2, bV = 70, 71
    CN = 80
    S = [16, 32]
    O = 48
    P = 96
    Q1, Q2 = 104, 108
    K1, K2 = 112, 116
    V1, V2 = 120, 124
    vM2 = 110
    sSoffK, sLdsW, sSlot, sCk = 58, 59, 60, 61
    vFl, vFlo = 72, 73
    srd(a, R_A, S_WS, S_WS+1, KVB, WS_KV)
    a(f"s_lshl_b32 s{sLdsW}, s{sW}, 10")
    a(f"v_lshlrev_b32 v{bK2}, 3, v{vN}")
    a(f"v_add_u32 v{bK2}, 1024, v{bK2}")
    a(f"v_mov_b32 v{vT}, {1280 + 21*16}")
    a(f"v_cmp_eq_u32 vcc, 1, v{vH}")
    a(f"v_min_u32 v{bV}, 21, v{vN}")
    a(f"v_lshlrev_b32 v{bV}, 4, v{bV}")
    a(f"v_cndmask_b32 v{bK2}, v{bK2}, v{vT}, vcc")
    a(f"v_mul_u32_u24 v{vT}, {VH}, v{vH}")
    a(f"v_add3_u32 v{bV}, v{bV}, v{vT}, 0")
    a(f"v_add_u32 v{bV}, 1280, v{bV}")
    def dma_chunk(slot_s):
        Ls = a.newlabel("A_dm")
        a(f"s_cmp_ge_u32 s{sW}, 4")
        a(f"s_cbranch_scc1 {Ls}")
        a(f"s_add_u32 s{sT}, s{slot_s}, s{sLdsW}")
        a(f"s_add_u32 s{sT2}, s{sSoffK}, s{sLdsW}")
        for i in range(6):
            if i == 5:
                a(f"s_cmp_lg_u32 s{sW}, 0")
                a(f"s_cbranch_scc1 {Ls}")
            a(f"s_add_u32 m0, s{sT}, {4096*i}")
            a(f"s_add_u32 s{sT3}, s{sT2}, {4096*i}")
            a(f"buffer_load_dwordx4 v{vA16}, s[{R_A}:{R_A+3}], s{sT3} offen sc1 lds")
        a.label(Ls)
        a(f"s_add_u32 s{sSoffK}, s{sSoffK}, {CH}")
        a(f"s_cmp_eq_u32 s{sSoffK}, {8*CH}")
        a(f"s_cselect_b32 s{sSoffK}, 0, s{sSoffK}")
        a(f"s_add_u32 s{sCk}, s{sCk}, 1")
        a(f"s_and_b32 s{sCk}, s{sCk}, 7")
    L_noqw = "A_noqw"
    a(f"v_mul_u32_u24 v{vT}, {QP}, v{vN}")
    a(f"v_add_u32 v{vT}, {QBUF}, v{vT}")
    a(f"s_cmp_ge_u32 s{sW}, 5")
    a(f"s_cbranch_scc1 {L_noqw}")
    a(f"s_lshl_b32 s{sT}, s{sW}, 6")
    a(f"v_lshl_add_u32 v{vT+1}, v{vH}, 3, v{vT}")
    a(f"v_add_u32 v{vT+1}, s{sT}, v{vT+1}")
    for q in range(4):
        a(f"ds_write_b64 v{vT+1}, v[{TMP+2*q}:{TMP+2*q+1}] offset:{16*q}")
    a.label(L_noqw)
    a("s_waitcnt lgkmcnt(0)")
    a("s_barrier")
    a(f"s_mul_i32 s{sT}, s{sW}, 40")
    a(f"v_add_u32 v{vT}, s{sT}, v{vT}")
    a(f"v_lshl_add_u32 v{vT+1}, v{vH}, 3, v{vT}")
    a(f"ds_read_b64 v[{Q1}:{Q1+1}], v{vT+1}")
    a(f"ds_read_b64 v[{Q1+2}:{Q1+3}], v{vT+1} offset:16")
    a(f"ds_read_b64 v[{Q2}:{Q2+1}], v{vT} offset:32")
    a(f"v_mov_b32 v{aK1}, v{vA16}")
    a(f"v_mov_b32 v{aK2}, v{bK2}")
    a(f"v_mov_b32 v{aV}, v{bV}")
    a(f"v_add_u32 v{nK1}, {CH}, v{vA16}")
    a(f"v_add_u32 v{nK2}, {CH}, v{bK2}")
    a(f"v_add_u32 v{nV}, {CH}, v{bV}")
    for i in range(16): a(f"v_mov_b32 v{O+i}, 0")
    a(f"v_cmp_eq_u32 vcc, 1, v{vH}")
    a(f"v_mov_b32 v{vT}, 0")
    a("s_waitcnt lgkmcnt(0)")
    a(f"v_cndmask_b32 v{Q2}, v{Q2}, v{vT}, vcc")
    a(f"v_cndmask_b32 v{Q2+1}, v{Q2+1}, v{vT}, vcc")
    a(f"s_lshr_b32 s{sCk}, s{sRB}, 3")
    a(f"s_mul_i32 s{sSoffK}, s{sCk}, {CH}")
    def check_chunk(lab):
        a(f"s_cmp_lg_u32 s{sW}, 7")
        a(f"s_cbranch_scc1 {lab}_skip")
        a(f"s_lshl_b32 s{sT}, s{sCk}, 4")
        poll_flags(a, vT+2, lab, sT, 16, FL_KV, sleep=OPT.get("kvsleep", 1))
        a.label(f"{lab}_skip")
    check_chunk("A7a")
    a("s_barrier")
    st.mark("bar1")
    a(f"s_mov_b32 s{sSlot}, 0")
    dma_chunk(sSlot)
    a(f"v_min_u32 v{vFlo}, 15, v{vLane}")
    a(f"v_lshlrev_b32 v{vFlo}, 7, v{vFlo}")
    def rd(dst, n, t, off, cur, nxt, op):
        v_ = cur if t < 8 else nxt
        a(f"{op} {vr(dst,n)}, v{v_} offset:{(t % 8)*TS + off}")
    def rd_K1(t): rd(K1, 4, t, 0, aK1, nK1, "ds_read_b128")
    def rd_K2(t): rd(K2, 2, t, 0, aK2, nK2, "ds_read_b64")
    def rd_V1(t): rd(V1, 4, t, 0, aV, nV, "ds_read_b128")
    def rd_V2(t): rd(V2, 4, t, VF, aV, nV, "ds_read_b128")
    def qk1(dst, c="0"): a(f"v_mfma_f32_32x32x16_bf16 {vr(dst,16)}, {vr(K1,4)}, {vr(Q1,4)}, {c}")
    def qk2(dst): a(f"v_mfma_f32_32x32x8_bf16 {vr(dst,16)}, {vr(K2,2)}, {vr(Q2,2)}, {vr(dst,16)}")
    CNR = vr(CN, 16)
    if OPT.get("chk2early"): check_chunk("A7b")
    a("s_waitcnt vmcnt(0)")
    a("s_barrier")
    if OPT.get("chk2early"):
        a(f"s_mov_b32 s{sSlot}, {CH}")
        dma_chunk(sSlot)
        a(f"s_mov_b32 s{sSlot}, {2*CH}")
    rd_K1(0); rd_K2(0)
    def set_m(delta):
        a(f"v_mov_b32 v{vT}, v{vM2}")
        a.nop(2)
        a(f"v_permlane32_swap_b32 v{vM2}, v{vT}")
        a.nop(1)
        a(f"v_max_f32 v{vM2}, v{vM2}, v{vT}")
        if delta: a(f"v_add_f32 v{vM2}, {f32bits(delta)}, v{vM2}")
        for i in range(16): a(f"v_sub_f32 v{CN+i}, 0, v{vM2}")
    a(f"v_mov_b32 v{vM2}, 0xff800000")
    a("s_waitcnt lgkmcnt(0)")
    qk1(S[0]); qk2(S[0])
    rd_K1(1); rd_K2(1)
    a("s_waitcnt lgkmcnt(0)")
    qk1(S[1]); qk2(S[1])
    rd_K1(0); rd_K2(0)
    for i in range(4, 8): a(f"v_mov_b32 v{P+i}, 0")
    for i in range(4): a(f"v_mov_b32 v{V2+i}, 0")
    a.nop(4)
    for i in range(8):
        a(f"v_max3_f32 v{vM2}, v{S[0]+2*i}, v{S[0]+2*i+1}, v{vM2}")
    a.nop(4)
    for i in range(8):
        a(f"v_max3_f32 v{vM2}, v{S[1]+2*i}, v{S[1]+2*i+1}, v{vM2}")
    set_m(DELTA)
    a("s_waitcnt lgkmcnt(0)")
    a.nop(1)
    qk1(S[0], CNR); qk2(S[0])
    rd_K1(1); rd_K2(1); rd_V1(0)
    if not OPT.get("chk2early"):
        check_chunk("A7b")
        a("s_barrier")
        a(f"s_mov_b32 s{sSlot}, {CH}")
        dma_chunk(sSlot)
        a(f"s_mov_b32 s{sSlot}, {2*CH}")
    a.nop(12)
    st.mark("sample")
    a(f"s_setprio {OPT.get('pb', 0)}")
    if OPT.get("fair", 1):
        a(f"s_cmp_lt_u32 s{sW}, 4")
        a(f"s_cbranch_scc1 A_pr0")
        a(f"s_setprio {1 + OPT.get('pb', 0)}")
        a.label("A_pr0")
    a(f"s_mov_b32 s{sIt}, 0")
    L_loop = "A_loop"
    a(".p2align 6")
    a.label(L_loop)
    def e(cur, i): a(f"v_exp_f32 v{cur+i}, v{cur+i}")
    def p(cur, k): a(f"v_cvt_pk_bf16_f32 v{P+k}, v{cur+2*k}, v{cur+2*k+1}")
    for t in range(8):
        cur, nxt = S[t % 2], S[(t+1) % 2]
        if t == OPT.get("tdrop", 4) and OPT.get("fair", 1):
            a(f"s_setprio {OPT.get('pb', 0)}")
        if t == 0:
            a(f"s_cmp_lg_u32 s{sW}, 7")
            a(f"s_cbranch_scc1 A_nf0")
            a(f"s_lshl_b32 s{sT}, s{sCk}, 11")
            a(f"s_add_u32 s{sT}, s{sT}, {FL_KV*128}")
            a(f"buffer_load_dword v{vFl}, v{vFlo}, s[{R_FL}:{R_FL+3}], s{sT} offen sc1")
            a.label("A_nf0")
        if t == 6:
            a("s_waitcnt vmcnt(0)")
            a(f"s_cmp_lg_u32 s{sW}, 7")
            a(f"s_cbranch_scc1 A_nf6")
            a(f"v_cmp_ne_u32 vcc, s{sTag}, v{vFl}")
            a("s_nop 1")
            a(f"s_cmp_eq_u64 vcc, 0")
            a(f"s_cbranch_scc1 A_nf6")
            a(f"s_lshl_b32 s{sT}, s{sCk}, 4")
            poll_flags(a, vT+2, "A7c", sT, 16, FL_KV, sleep=1)
            a.label("A_nf6")
            a("s_barrier")
            if OPT.get("fair", 1):
                a(f"s_cmp_lt_u32 s{sW}, 4")
                a(f"s_cbranch_scc1 A_pr6")
                a(f"s_setprio {1 + OPT.get('pb', 0)}")
                a.label("A_pr6")
            dma_chunk(sSlot)
            a(f"s_add_u32 s{sSlot}, s{sSlot}, {CH}")
            a(f"s_cmp_eq_u32 s{sSlot}, {3*CH}")
            a(f"s_cselect_b32 s{sSlot}, 0, s{sSlot}")
        e(cur, 0); e(cur, 1)
        a("s_waitcnt lgkmcnt(2)")
        a(f"v_mfma_f32_32x32x16_bf16 {vr(O,16)}, {vr(V2,4)}, {vr(P+4,4)}, {vr(O,16)}")
        rd_V2(t)
        e(cur, 2); e(cur, 3); p(cur, 0); p(cur, 1)
        qk1(nxt, CNR)
        rd_K1(t+2)
        e(cur, 4); e(cur, 5); e(cur, 6); e(cur, 7); p(cur, 2); p(cur, 3)
        a("s_waitcnt lgkmcnt(2)")
        qk2(nxt)
        rd_K2(t+2)
        e(cur, 8); e(cur, 9); e(cur, 10); e(cur, 11); p(cur, 4); p(cur, 5)
        a(f"v_mfma_f32_32x32x16_bf16 {vr(O,16)}, {vr(V1,4)}, {vr(P,4)}, {vr(O,16)}")
        rd_V1(t+1)
        e(cur, 12); e(cur, 13); e(cur, 14); e(cur, 15); p(cur, 6); p(cur, 7)
    a(f"v_mov_b32 v{aK1}, v{nK1}")
    a(f"v_mov_b32 v{aK2}, v{nK2}")
    a(f"v_mov_b32 v{aV}, v{nV}")
    a(f"s_add_u32 s{sT}, s{sSlot}, {2*CH}")
    a(f"s_cmp_ge_u32 s{sT}, {3*CH}")
    a(f"s_cselect_b32 s{sT2}, {3*CH}, 0")
    a(f"s_sub_u32 s{sT}, s{sT}, s{sT2}")
    a(f"v_add_u32 v{nK1}, s{sT}, v{vA16}")
    a(f"v_add_u32 v{nK2}, s{sT}, v{bK2}")
    a(f"v_add_u32 v{nV}, s{sT}, v{bV}")
    a(f"s_add_u32 s{sIt}, s{sIt}, 1")
    a(f"s_cmp_lt_u32 s{sIt}, 8")
    a(f"s_cbranch_scc1 {L_loop}")
    a("s_waitcnt lgkmcnt(0)")
    a(f"v_mfma_f32_32x32x16_bf16 {vr(O,16)}, {vr(V2,4)}, {vr(P+4,4)}, {vr(O,16)}")
    a("s_setprio 0")
    st.mark("loop")
    if OPT.get("diag"):
        a(f"s_cmp_lg_u32 s{sW}, 0"); Ld = a.newlabel("dg"); a(f"s_cbranch_scc1 {Ld}"); diag(a, 8); diag(a, 9, neg=True); a.label(Ld)
    a.nop(16)
    L_fin, L_slow = "A_fin", "A_slow"
    a(f"s_mov_b32 s{sIt}, 0")
    a.label(L_fin)
    a(f"v_mov_b32 v{vT}, v{O+8}")
    a(f"v_mov_b32 v{vT+1}, v{O+8}")
    a.nop(2)
    a(f"v_permlane32_swap_b32 v{vT}, v{vT+1}")
    a(f"v_max3_f32 v{vT+2}, |v{O}|, |v{O+1}|, |v{O+2}|")
    for j in range(3, 12, 2):
        j2 = min(j+1, 11)
        a(f"v_max3_f32 v{vT+2}, |v{O+j}|, |v{O+j2}|, v{vT+2}")
    a(f"v_mov_b32 v{vT+3}, {f32bits(2.0**120)}")
    a(f"v_cmp_nlt_f32 vcc, v{vT+2}, v{vT+3}")
    a(f"v_cmp_nlt_f32 s[62:63], 0, v{vT+1}")
    a.nop(1)
    a(f"s_or_b64 vcc, vcc, s[62:63]")
    a(f"s_cmp_eq_u64 vcc, 0")
    a(f"s_cbranch_scc1 A_store")
    a(f"s_cmp_lg_u32 s{sIt}, 0")
    a(f"s_cbranch_scc1 A_store")
    a(f"s_branch {L_slow}")
    a.label("A_store")
    a(f"v_rcp_f32 v{vT+2}, v{vT+1}")
    a.nop(1)
    for j in range(12): a(f"v_mul_f32 v{O+j}, v{O+j}, v{vT+2}")
    for k in range(6): a(f"v_cvt_pk_bf16_f32 v{P+k}, v{O+2*k}, v{O+2*k+1}")
    OB = 65536
    a(f"s_mul_i32 s{sT}, s{sW}, 20")
    def oaddr(dst, colv):
        a(f"v_lshrrev_b32 v{dst}, 4, v{colv}")
        a(f"v_lshlrev_b32 v{dst}, 10, v{dst}")
        a(f"v_bfe_u32 v{vT+7}, v{colv}, 3, 1")
        a(f"v_lshl_add_u32 v{dst}, v{vT+7}, 9, v{dst}")
        a(f"v_and_b32 v{vT+7}, 7, v{colv}")
        a(f"v_lshl_add_u32 v{dst}, v{vT+7}, 1, v{dst}")
        a(f"v_lshl_add_u32 v{dst}, v{vN}, 4, v{dst}")
        a(f"v_add_u32 v{dst}, {OB}, v{dst}")
    a(f"v_lshlrev_b32 v{vT+3}, 2, v{vH}")
    a(f"v_add_u32 v{vT+3}, s{sT}, v{vT+3}")
    oaddr(vT+4, vT+3)
    a(f"ds_write_b64 v{vT+4}, v[{P}:{P+1}]")
    a(f"v_add_u32 v{vT+3}, 8, v{vT+3}")
    oaddr(vT+5, vT+3)
    a(f"ds_write_b64 v{vT+5}, v[{P+2}:{P+3}]")
    a(f"s_add_u32 s{sT}, s{sT}, 16")
    a(f"v_mov_b32 v{vT+3}, s{sT}")
    oaddr(vT+6, vT+3)
    a(f"s_mov_b32 exec_hi, 0")
    a(f"ds_write_b64 v{vT+6}, v[{P+4}:{P+5}]")
    a(f"s_mov_b32 exec_hi, -1")
    a("s_waitcnt lgkmcnt(0)")
    a("s_barrier")
    a(f"s_lshl_b32 s{sT}, s{sW}, 10")
    a(f"v_add_u32 v{vT+4}, s{sT}, v{vA16}")
    a(f"v_add_u32 v{vT+4}, {OB}, v{vT+4}")
    a(f"ds_read_b128 {vr(K1,4)}, v{vT+4}")
    a(f"ds_read_b128 {vr(V1,4)}, v{vT+4} offset:8192")
    a(f"s_mul_i32 s{sT2}, s{sRB}, 40")
    a(f"s_mul_i32 s{sT3}, s{sCG}, 10")
    a(f"s_add_u32 s{sT2}, s{sT2}, s{sT3}")
    a(f"s_add_u32 s{sT2}, s{sT2}, s{sW}")
    a(f"s_lshl_b32 s{sT2}, s{sT2}, 10")
    a(f"s_add_u32 s{sT2}, s{sT2}, {WS_OF}")
    a("s_waitcnt lgkmcnt(0)")
    a(f"buffer_store_dwordx4 {vr(K1,4)}, v{vA16}, s[{R_WS}:{R_WS+3}], s{sT2} offen sc1")
    a(f"s_cmp_ge_u32 s{sW}, 2")
    a(f"s_cbranch_scc1 A_o1")
    a(f"s_add_u32 s{sT2}, s{sT2}, 8192")
    a(f"buffer_store_dwordx4 {vr(V1,4)}, v{vA16}, s[{R_WS}:{R_WS+3}], s{sT2} offen sc1")
    a.label("A_o1")
    tag_from_lds(a, vT)
    a("s_waitcnt vmcnt(0) lgkmcnt(0)")
    a(f"v_readfirstlane_b32 s{sTag}, v{vT+1}")
    a(f"s_lshl_b32 s{sT}, s{sRB}, 2")
    a(f"s_add_u32 s{sT}, s{sT}, s{sCG}")
    a(f"s_lshl_b32 s{sT}, s{sT}, 3")
    a(f"s_add_u32 s{sT}, s{sT}, s{sW}")
    set_flag(a, vT, sT, FL_O)
    st.end()
    a("s_endpgm")
    a.label(L_slow)
    a(f"v_mov_b32 v{vM2}, 0xff800000")
    a(f"s_mov_b32 s{sSoffK}, 0")
    a.label("A_slow1")
    a(f"buffer_load_dwordx4 {vr(K1,4)}, v{vA16}, s[{R_A}:{R_A+3}], s{sSoffK} offen sc1")
    a(f"buffer_load_dwordx2 {vr(K2,2)}, v{bK2}, s[{R_A}:{R_A+3}], s{sSoffK} offen sc1")
    a("s_waitcnt vmcnt(0)")
    qk1(S[0]); qk2(S[0])
    a.nop(16)
    for i in range(8):
        a(f"v_max3_f32 v{vM2}, v{S[0]+2*i}, v{S[0]+2*i+1}, v{vM2}")
    a(f"s_add_u32 s{sSoffK}, s{sSoffK}, {TS}")
    a(f"s_cmp_lt_u32 s{sSoffK}, {KVB}")
    a(f"s_cbranch_scc1 A_slow1")
    set_m(0.0)
    for i in range(16): a(f"v_mov_b32 v{O+i}, 0")
    a(f"s_mov_b32 s{sSoffK}, 0")
    a.label("A_slow2")
    a(f"buffer_load_dwordx4 {vr(K1,4)}, v{vA16}, s[{R_A}:{R_A+3}], s{sSoffK} offen sc1")
    a(f"buffer_load_dwordx2 {vr(K2,2)}, v{bK2}, s[{R_A}:{R_A+3}], s{sSoffK} offen sc1")
    a(f"buffer_load_dwordx4 {vr(V1,4)}, v{bV}, s[{R_A}:{R_A+3}], s{sSoffK} offen sc1")
    a(f"buffer_load_dwordx4 {vr(V2,4)}, v{bV}, s[{R_A}:{R_A+3}], s{sSoffK} offen offset:{VF} sc1")
    a("s_waitcnt vmcnt(0)")
    qk1(S[0], CNR); qk2(S[0])
    a.nop(16)
    for i in range(16): e(S[0], i)
    a.nop(1)
    for k in range(8): p(S[0], k)
    a.nop(2)
    a(f"v_mfma_f32_32x32x16_bf16 {vr(O,16)}, {vr(V1,4)}, {vr(P,4)}, {vr(O,16)}")
    a(f"v_mfma_f32_32x32x16_bf16 {vr(O,16)}, {vr(V2,4)}, {vr(P+4,4)}, {vr(O,16)}")
    a(f"s_add_u32 s{sSoffK}, s{sSoffK}, {TS}")
    a(f"s_cmp_lt_u32 s{sSoffK}, {KVB}")
    a(f"s_cbranch_scc1 A_slow2")
    a.nop(16)
    a(f"s_mov_b32 s{sIt}, 1")
    a(f"s_branch {L_fin}")

def role_B1(a):
    st = Stamps(a, "B")
    st.start()
    if OPT.get("bprio"): a(f"s_setprio {OPT['bprio']}")
    sG, sC = sRB, sCG
    sSoffW, sSoffX, sLdsW, sKH, sXb = 57, 58, 59, 60, 99
    vT = 4; vW = 10; vTr, vX16, vR = 13, 14, 15
    XS = 16; WF = 48; ACC = 76
    SLOT = 24576
    a(f"s_sub_u32 s{sT2}, s2, 256")
    a(f"s_bfe_u32 s{sG}, s{sT2}, 0x20001")
    a(f"s_lshl_b32 s{sG}, s{sG}, 2")
    a(f"s_bfe_u32 s{sT}, s{sT2}, 0x20003")
    a(f"s_add_u32 s{sG}, s{sG}, s{sT}")
    a(f"s_and_b32 s{sC}, s{sT2}, 1")
    a(f"s_lshl_b32 s{sC}, s{sC}, 3")
    a(f"s_lshr_b32 s{sT}, s{sT2}, 5")
    a(f"s_add_u32 s{sC}, s{sC}, s{sT}")
    a(f"s_lshr_b32 s{sKH}, s{sW}, 2")
    a(f"v_lshlrev_b32 v{vX16}, 4, v{vLane}")
    a(f"s_and_b32 s{sT}, s{sW}, 3")
    a(f"s_mul_i32 s{sT}, s{sT}, 192")
    a(f"s_mul_i32 s{sT2}, s{sC}, 192")
    a(f"s_mul_i32 s{sT3}, s{sKH}, {320*3072}")
    a(f"s_add_u32 s{sT2}, s{sT2}, s{sT3}")
    for i in range(3):
        a(f"v_add_u32 v{vT}, s{sT}, v{vLane}")
        if i: a(f"v_add_u32 v{vT}, {64*i}, v{vT}")
        a(f"v_mul_u32_u24 v{vT+1}, 5462, v{vT}")
        a(f"v_lshrrev_b32 v{vT+1}, 16, v{vT+1}")
        a(f"v_mul_u32_u24 v{vT+2}, 12, v{vT+1}")
        a(f"v_sub_u32 v{vT}, v{vT}, v{vT+2}")
        a(f"v_lshlrev_b32 v{vT}, 4, v{vT}")
        a(f"v_mul_u32_u24 v{vT+1}, 3072, v{vT+1}")
        a(f"v_add3_u32 v{vW+i}, v{vT}, v{vT+1}, s{sT2}")
        if i: a(f"v_subrev_u32 v{vW+i}, {1024*i}, v{vW+i}")
    a(f"s_mul_i32 s{sT}, s{sKH}, 12288")
    tr_addr(a, vTr, None, 192, 8, 4, sT, vT)
    a(f"s_mul_i32 s{sLdsW}, s{sW}, 3072")
    srd(a, R_A, S_W1, S_W1+1, 640*1536*2)
    srd(a, R_B, S_B1, S_B1+1, 1536*2)
    a(f"s_mul_hi_u32 s{sT}, s{sC}, {(1<<32)//5 + 1}")
    a(f"s_mul_i32 s{sT}, s{sT}, 5")
    a(f"s_sub_u32 s{sT}, s{sC}, s{sT}")
    a(f"s_mul_i32 s{sSoffW}, s{sT}, {64*3072}")
    a(f"s_lshl_b32 s{sSoffX}, s{sT}, 12")
    a(f"s_and_b32 s{sT}, s{sW}, 3")
    a(f"s_lshl_b32 s{sT2}, s{sG}, 2")
    a(f"s_add_u32 s{sT}, s{sT}, s{sT2}")
    a(f"s_mul_i32 s{sXb}, s{sT}, {40*1024}")
    a(f"s_mul_i32 s{sT2}, s{sKH}, {20*1024}")
    a(f"s_add_u32 s{sXb}, s{sXb}, s{sT2}")
    if WS_XF: a(f"s_add_u32 s{sXb}, s{sXb}, {WS_XF}")
    def issueW(c):
        a(f"s_add_u32 m0, s{sLdsW}, {(c%3)*SLOT}")
        a(f"s_add_u32 s{sT}, s{sSoffW}, {64*3072}")
        for i in range(3):
            a(f"buffer_load_dwordx4 v{vW+i}, s[{R_A}:{R_A+3}], s{sSoffW} offen offset:{1024*i} lds")
        a(f"s_cmp_eq_u32 s{sT}, {320*3072}")
        a(f"s_cselect_b32 s{sSoffW}, 0, s{sT}")
    def issueX(c):
        xs = XS + 16*(c % 2)
        a(f"s_add_u32 s{sT2}, s{sXb}, s{sSoffX}")
        a(f"s_add_u32 s{sT}, s{sSoffX}, 4096")
        for i in range(4):
            a(f"buffer_load_dwordx4 {vr(xs+4*i,4)}, v{vX16}, s[{R_WS}:{R_WS+3}], s{sT2} offen offset:{1024*i} sc1")
        a(f"s_cmp_eq_u32 s{sT}, 20480")
        a(f"s_cselect_b32 s{sSoffX}, 0, s{sT}")
    sJ = 96
    a(f"s_sub_u32 s{sJ}, s2, 256")
    a(f"s_cmp_lg_u32 s{sW}, 0")
    a(f"s_cbranch_scc1 B1_np")
    get_tag(a, vT, "B1")
    a(f"s_lshl_b32 s{sT}, s{sG}, 5")
    poll_flags(a, vT, "B1p", sT, 32, FL_D, tries=OPT.get("wftries", 1), sleep=OPT.get("dsleep", 8))
    a.label("B1_np")
    a("s_barrier")
    srd(a, R_C, S_W2, S_W2+1, 1536*640*2)
    a(f"v_lshrrev_b32 v92, 2, v{vLane}")
    a(f"v_mul_u32_u24 v92, 1280, v92")
    a(f"v_and_b32 v93, 3, v{vLane}")
    a(f"v_lshl_add_u32 v92, v93, 4, v92")
    a(f"s_lshl_b32 s{sT}, s{sW}, 10")
    a(f"s_add_u32 s{sT}, s{sT}, 73728")
    a(f"v_add_u32 v93, s{sT}, v{vX16}")
    tr_addr(a, 94, None, 64, 4, 8, sT, vT)
    tr_addr(a, 95, None, 64, 8, 4, sT, vT)
    sDst = [92, 93]; sStp = [94, 95]
    for rnd in range(2):
        Lskip = f"B1_wf{rnd}_skip"
        a(f"s_mov_b32 s{sStp[rnd]}, -1")
        if rnd == 1:
            a(f"s_cmp_ge_u32 s{sW}, 3")
            a(f"s_cbranch_scc1 {Lskip}")
        a(f"s_and_b32 s{sT}, s{sJ}, 63")
        a(f"s_mul_i32 s{sT}, s{sT}, 11")
        a(f"s_add_u32 s{sT}, s{sT}, s{sW}")
        if rnd: a(f"s_add_u32 s{sT}, s{sT}, 8")
        a(f"s_cmp_ge_u32 s{sT}, 680")
        a(f"s_cbranch_scc1 {Lskip}")
        a(f"s_mul_hi_u32 s{sT2}, s{sT}, {(1<<32)//136 + 1}")
        a(f"s_mul_i32 s{sT3}, s{sT2}, 136")
        a(f"s_sub_u32 s{sT}, s{sT}, s{sT3}")
        a(f"s_mov_b32 s{sStp[rnd]}, s{sT}")
        a(f"s_lshr_b32 s{sT3}, s{sJ}, 6")
        a(f"s_mul_i32 s{sT3}, s{sT3}, 5")
        a(f"s_add_u32 s{sT2}, s{sT2}, s{sT3}")
        a(f"s_mul_i32 s62, s{sT2}, 136")
        a(f"s_add_u32 s62, s62, s{sT}")
        a(f"s_lshl_b32 s62, s62, 10")
        a(f"s_add_u32 s{sDst[rnd]}, s62, {WS_WF}")
        a(f"s_lshl_b32 s{sT2}, s{sT2}, 6")
        a(f"s_cmp_lt_u32 s{sT}, 96")
        a(f"s_cselect_b32 s{R_C}, s{S_W2}, s{S_WO}")
        a(f"s_cselect_b32 s{R_C+1}, s{S_W2+1}, s{S_WO+1}")
        a(f"s_cselect_b32 s63, 0, 96")
        a(f"s_mov_b32 s{R_C+2}, {640*640*2}")
        a(f"s_cbranch_scc0 B1_wf{rnd}_a")
        a(f"s_mov_b32 s{R_C+2}, {1536*640*2}")
        a.label(f"B1_wf{rnd}_a")
        a(f"s_sub_u32 s{sT3}, s{sT}, s63")
        a(f"s_mul_i32 s{sT3}, s{sT3}, {16*1280}")
        a(f"s_add_u32 s{sT3}, s{sT3}, s{sT2}")
        a(f"buffer_load_dwordx4 v[{76+4*rnd}:{79+4*rnd}], v92, s[{R_C}:{R_C+3}], s{sT3} offen")
        a.label(Lskip)
    a("s_waitcnt vmcnt(0)")
    for rnd in range(2):
        Lskip = f"B1_wg{rnd}_skip"
        a(f"s_cmp_eq_u32 s{sStp[rnd]}, -1")
        a(f"s_cbranch_scc1 {Lskip}")
        a(f"ds_write_b128 v93, v[{76+4*rnd}:{79+4*rnd}]")
        a(f"s_cmp_lt_u32 s{sStp[rnd]}, 96")
        a(f"s_cbranch_scc0 B1_wf{rnd}_n")
        a(f"ds_read_b64_tr_b16 v[{84+4*rnd}:{85+4*rnd}], v94")
        a(f"ds_read_b64_tr_b16 v[{86+4*rnd}:{87+4*rnd}], v94 offset:512")
        a(f"s_branch B1_wf{rnd}_s")
        a.label(f"B1_wf{rnd}_n")
        a(f"ds_read_b64_tr_b16 v[{84+4*rnd}:{85+4*rnd}], v95")
        a(f"ds_read_b64_tr_b16 v[{86+4*rnd}:{87+4*rnd}], v95 offset:256")
        a.label(f"B1_wf{rnd}_s")
        a("s_waitcnt lgkmcnt(0)")
        a(f"buffer_store_dwordx4 v[{84+4*rnd}:{87+4*rnd}], v{vX16}, s[{R_WS}:{R_WS+3}], s{sDst[rnd]} offen sc1")
        a.label(Lskip)
    issued = []
    def iW(c): issueW(c); issued.extend([("W", c)]*3)
    if OPT.get("prefill", 0):
        for c in range(3): iW(c)
    a(f"s_cmp_lg_u32 s{sW}, 0")
    a(f"s_cbranch_scc1 B1_np2")
    a(f"s_lshl_b32 s{sT}, s{sG}, 5")
    poll_flags(a, vT, "B1", sT, 32, FL_D, sleep=OPT.get("dsleep", 8))
    if OPT.get("b1kv", 0): poll_flags(a, vT, "B1k", None, 128, FL_KV, sleep=OPT.get("ksleep", 4))
    a.label("B1_np2")
    a("s_barrier")
    a(f"s_cmp_lg_u32 s{sW}, 0")
    a(f"s_cbranch_scc1 B1_ntl")
    tag_to_lds(a, vT)
    a.label("B1_ntl")
    st.mark("wait_d")
    def iX(c): issueX(c); issued.extend([("X", c)]*4)
    if OPT.get("prefill", 0):
        iX(0)
        a("s_barrier")
        iX(1)
    elif OPT.get("b1shallow", 1):
        iW(0); iX(0)
    else:
        iW(0); iX(0)
        a("s_barrier")
        iW(1); iX(1)
        a("s_barrier")
        iW(2)
    def wreads(c, k, buf):
        base = (c % 3)*SLOT + k*16*192
        for ct in range(3):
            a(f"ds_read_b64_tr_b16 v[{WF+12*buf+4*ct}:{WF+12*buf+4*ct+1}], v{vTr} offset:{base + ct*64}")
            a(f"ds_read_b64_tr_b16 v[{WF+12*buf+4*ct+2}:{WF+12*buf+4*ct+3}], v{vTr} offset:{base + ct*64 + 4*192}")
    for c in range(5):
        last = max(i for i, e_ in enumerate(issued) if e_ in (("W", c), ("X", c)))
        a(f"s_waitcnt vmcnt({len(issued) - 1 - last})")
        a("s_barrier")
        if c == 0:
            st.mark("b0")
            a(f"s_cmp_lg_u32 s{sW}, 0")
            a(f"s_cbranch_scc1 B1_nofw")
            set_flag(a, vT, sJ, FL_W)
            a.label("B1_nofw")
        if OPT.get("b1shallow", 1) and not OPT.get("prefill", 0):
            if c + 1 < 5: iW(c + 1); iX(c + 1)
        elif 1 <= c <= 2: iW(c + 2)
        xs = XS + 16*(c % 2)
        wreads(c, 0, 0)
        for k in range(4):
            buf = k % 2
            if k < 3:
                wreads(c, k + 1, 1 - buf)
                a("s_waitcnt lgkmcnt(6)")
            else:
                a("s_waitcnt lgkmcnt(0)")
            for ct in range(3):
                cin = "0" if (c == 0 and k == 0) else vr(ACC+16*ct,16)
                a(f"v_mfma_f32_32x32x16_bf16 {vr(ACC+16*ct,16)}, {vr(WF+12*buf+4*ct,4)}, {vr(xs+4*k,4)}, {cin}")
        if c + 2 < 5 and (OPT.get("prefill", 0) or not OPT.get("b1shallow", 1)): iX(c + 2)
    st.mark("kloop")
    a("s_setprio 3")
    a(f"s_and_b32 s{sT}, s{sW}, 3")
    a(f"s_lshl_b32 s{sT2}, s{sG}, 2")
    a(f"s_add_u32 s{sT}, s{sT}, s{sT2}")
    a(f"s_lshl_b32 s{sT2}, s{sT}, 7")
    a(f"s_add_u32 s{sT2}, s{sT2}, {WS_R}")
    a(f"v_lshlrev_b32 v{vT}, 2, v{vN}")
    a(f"buffer_load_dword v{vR}, v{vT}, s[{R_WS}:{R_WS+3}], s{sT2} offen sc1")
    tag_from_lds(a, 72)
    a(f"s_mul_i32 s{sT2}, s{sC}, 192")
    a(f"s_lshl_b32 s{sT3}, s{sKH}, 5")
    a(f"s_add_u32 s{sT2}, s{sT2}, s{sT3}")
    a(f"v_lshlrev_b32 v{vT}, 3, v{vH}")
    B = XS
    for ct in range(3):
        for q in range(2):
            a(f"buffer_load_dwordx2 v[{B+4*ct+2*q}:{B+4*ct+2*q+1}], v{vT}, s[{R_B}:{R_B+3}], s{sT2} offen offset:{64*ct+16*q}")
    a(f"s_mul_i32 s{sT}, s{sT}, 96")
    a(f"s_mul_i32 s{sT2}, s{sC}, 6")
    a(f"s_add_u32 s{sT}, s{sT}, s{sT2}")
    a(f"s_add_u32 s{sT}, s{sT}, s{sKH}")
    a(f"s_lshl_b32 s{sXb}, s{sT}, 10")
    a(f"s_add_u32 s{sXb}, s{sXb}, {WS_H}")
    a("s_barrier")
    a.nop(4)
    T = XS + 16
    a(f"s_mul_i32 s{sT}, s{sW}, 6144")
    a(f"v_add_u32 v{vT+1}, s{sT}, v{vX16}")
    a(f"s_xor_b32 s{sT}, s{sW}, 4")
    a(f"s_mul_i32 s{sT}, s{sT}, 6144")
    a(f"v_add_u32 v{vT+2}, s{sT}, v{vX16}")
    a(f"s_cmp_eq_u32 s{sKH}, 1")
    a(f"s_cbranch_scc1 B1_x1")
    for ct in range(3):
        for q in range(2):
            a(f"ds_write_b128 v{vT+1}, {vr(ACC+16*ct+8+4*q,4)} offset:{(2*ct+q)*1024}")
    a(f"s_branch B1_x2")
    a.label("B1_x1")
    for ct in range(3):
        for q in range(2):
            a(f"ds_write_b128 v{vT+1}, {vr(ACC+16*ct+4*q,4)} offset:{(2*ct+q)*1024}")
    a.label("B1_x2")
    a("s_waitcnt lgkmcnt(0)")
    a("s_barrier")
    for i in range(6):
        a(f"ds_read_b128 {vr(T+4*i,4)}, v{vT+2} offset:{i*1024}")
    a("s_waitcnt lgkmcnt(0) vmcnt(0)")
    a(f"v_readfirstlane_b32 s{sTag}, v73")
    a(f"s_cmp_eq_u32 s{sKH}, 1")
    a(f"s_cbranch_scc1 B1_y1")
    for ct in range(3):
        for j in range(8): a(f"v_add_f32 v{T+8*ct+j}, v{T+8*ct+j}, v{ACC+16*ct+j}")
    a(f"s_branch B1_y2")
    a.label("B1_y1")
    for ct in range(3):
        for j in range(8): a(f"v_add_f32 v{T+8*ct+j}, v{T+8*ct+j}, v{ACC+16*ct+8+j}")
    a.label("B1_y2")
    TB = 56
    for ct in range(3):
        for q in range(2):
            b0 = B+4*ct+2*q
            acc = T+8*ct+4*q
            a(f"v_lshlrev_b32 v{TB}, 16, v{b0}")
            a(f"v_and_b32 v{TB+1}, 0xffff0000, v{b0}")
            a(f"v_lshlrev_b32 v{TB+2}, 16, v{b0+1}")
            a(f"v_and_b32 v{TB+3}, 0xffff0000, v{b0+1}")
            for j in range(4): a(f"v_fma_f32 v{acc+j}, v{acc+j}, v{vR}, v{TB+j}")
            for j in range(4): a(f"v_max_f32 v{acc+j}, 0, v{acc+j}")
            for j in range(4): a(f"v_mul_f32 v{acc+j}, v{acc+j}, v{acc+j}")
        for k in range(4):
            a(f"v_cvt_pk_bf16_f32 v{60+4*ct+k}, v{T+8*ct+2*k}, v{T+8*ct+2*k+1}")
    a(f"v_add_u32 v{vT}, 4096, v{vX16}")
    a(f"buffer_store_dwordx4 {vr(60,4)}, v{vX16}, s[{R_WS}:{R_WS+3}], s{sXb} offen sc1")
    a(f"buffer_store_dwordx4 {vr(64,4)}, v{vX16}, s[{R_WS}:{R_WS+3}], s{sXb} offen offset:2048 sc1")
    a(f"buffer_store_dwordx4 {vr(68,4)}, v{vT}, s[{R_WS}:{R_WS+3}], s{sXb} offen sc1")
    a(f"s_cmp_lg_u32 s{sW}, 6")
    a(f"s_cbranch_scc1 B1_nfw")
    a(f"s_sub_u32 s{sT}, s2, 256")
    a(f"s_and_b32 s{sT2}, s{sT}, 1")
    a(f"s_lshl_b32 s{sT2}, s{sT2}, 1")
    a(f"s_lshr_b32 s{sT}, s{sT}, 7")
    a(f"s_add_u32 s{sT}, s{sT}, s{sT2}")
    a(f"s_lshl_b32 s{sT}, s{sT}, 6")
    poll_flags(a, vT, "B2w", sT, 64, FL_W)
    a.label("B1_nfw")
    a("s_waitcnt vmcnt(0)")
    a("s_barrier")
    L_nf = "B1_nf"
    a(f"s_cmp_lg_u32 s{sW}, 0")
    a(f"s_cbranch_scc1 {L_nf}")
    a(f"s_lshl_b32 s{sT}, s{sG}, 4")
    a(f"s_add_u32 s{sT}, s{sT}, s{sC}")
    set_flag(a, vT, sT, FL_H)
    a.label(L_nf)
    st.mark("epi")
    a("s_setprio 0")
    return st

def role_B2(a, st):
    sSoffW, sSoffX, sWb, sIt, sRho, sWrapW, sRst = 57, 58, 59, 60, 61, 98, 99
    vT = 4
    vX16, vXa = 14, 15
    ACC = 16
    XR = 48
    WB = 64
    vOut = vT+3
    NXS = 8
    a(f"s_sub_u32 s{sT2}, s2, 256")
    a(f"s_bfe_u32 s{sRB}, s{sT2}, 0x20001")
    a(f"s_lshl_b32 s{sRB}, s{sRB}, 4")
    a(f"s_bfe_u32 s{sT}, s{sT2}, 0x40003")
    a(f"s_add_u32 s{sRB}, s{sRB}, s{sT}")
    a(f"s_and_b32 s{sCG}, s{sT2}, 1")
    a(f"s_lshl_b32 s{sCG}, s{sCG}, 1")
    a(f"s_lshr_b32 s{sT}, s{sT2}, 7")
    a(f"s_add_u32 s{sCG}, s{sCG}, s{sT}")
    a(f"v_lshlrev_b32 v{vX16}, 4, v{vLane}")
    a(f"s_and_b32 s{sRho}, s{sRB}, 7")
    a(f"s_min_u32 s{sT3}, s{sW}, 4")
    a(f"s_mul_i32 s{sT}, s{sCG}, 5")
    a(f"s_add_u32 s{sT}, s{sT}, s{sT3}")
    a(f"s_mul_i32 s{sWb}, s{sT}, {136*1024}")
    a(f"s_add_u32 s{sWb}, s{sWb}, {WS_WF}")
    a(f"s_lshl_b32 s{sT}, s{sT}, 6")
    srd(a, R_C, S_X, S_X+1, NX)
    a(f"s_lshl_b32 s{sT2}, s{sRB}, 5")
    a(f"v_add_u32 v{vT}, s{sT2}, v{vN}")
    a(f"v_mul_u32_u24 v{vT}, 1280, v{vT}")
    a(f"v_lshl_add_u32 v{vT}, v{vH}, 3, v{vT}")
    a(f"v_add_u32 v{vOut}, s{sT}, v{vT}")
    for q in range(4):
        a(f"buffer_load_dwordx2 v[{XR+2*q}:{XR+2*q+1}], v{vOut}, s[{R_C}:{R_C+3}], 0 offen offset:{16*q}")
    srd(a, R_C, S_B2, S_B2+1, 640*2)
    a(f"v_lshlrev_b32 v{vT}, 3, v{vH}")
    for q in range(4):
        a(f"buffer_load_dwordx2 v[{XR+8+2*q}:{XR+8+2*q+1}], v{vT}, s[{R_C}:{R_C+3}], s{sT} offen offset:{16*q}")
    for i in range(16): a(f"v_mov_b32 v{ACC+i}, 0")
    def unpack_add(q, dst):
        for (src, t) in ((XR+2*q, 32), (XR+8+2*q, 36)):
            a(f"v_lshlrev_b32 v{t}, 16, v{src}")
            a(f"v_and_b32 v{t+1}, 0xffff0000, v{src}")
            a(f"v_lshlrev_b32 v{t+2}, 16, v{src+1}")
            a(f"v_and_b32 v{t+3}, 0xffff0000, v{src+1}")
        for j in range(4): a(f"v_add_f32 v{32+j}, v{32+j}, v{36+j}")
        for j in range(4): a(f"v_add_f32 v{dst+j}, v{dst+j}, v{32+j}")
    L_side = "B2_side"
    a(f"s_cmp_ge_u32 s{sW}, 4")
    a(f"s_cbranch_scc1 {L_side}")
    a(f"s_lshl_b32 s{sSoffW}, s{sRho}, 13")
    a(f"s_mov_b32 s{sWrapW}, {96*1024}")
    a(f"s_mov_b32 s{sRst}, 0")
    def wload(r):
        a(f"s_add_u32 s{sT2}, s{sWb}, s{sSoffW}")
        a(f"s_add_u32 s{sT}, s{sSoffW}, 1024")
        a(f"buffer_load_dwordx4 {vr(r,4)}, v{vX16}, s[{R_WS}:{R_WS+3}], s{sT2} offen sc1")
        a(f"s_cmp_eq_u32 s{sT}, s{sWrapW}")
        a(f"s_cselect_b32 s{sSoffW}, s{sRst}, s{sT}")
    for k in range(16): wload(WB + 4*k)
    st.mark("setup")
    a("s_barrier")
    a(f"s_mov_b32 s{sIt}, 0")
    L1 = "B2_p1"
    a.label(L1)
    XBUF = 32
    for j in range(16):
        k = j % 8
        if k == 0:
            a("s_barrier")
            a(f"s_lshl_b32 s{sT}, s{sIt}, 1")
            if j: a(f"s_add_u32 s{sT}, s{sT}, 1")
            a(f"s_and_b32 s{sT}, s{sT}, {NXS-1}")
            a(f"s_lshl_b32 s{sT}, s{sT}, 13")
            a(f"v_add_u32 v{vXa}, s{sT}, v{vX16}")
            for i in range(3):
                a(f"ds_read_b128 {vr(XBUF+4*i,4)}, v{vXa} offset:{i*1024}")
        if j == 0:
            L1n = "B2_p1n"
            a(f"s_cmp_lg_u32 s{sIt}, 5")
            a(f"s_cbranch_scc1 {L1n}")
            a(f"s_mul_i32 s{sSoffW}, s{sRho}, {5*1024}")
            a(f"s_add_u32 s{sSoffW}, s{sSoffW}, {96*1024}")
            a(f"s_mov_b32 s{sWrapW}, {136*1024}")
            a(f"s_mov_b32 s{sRst}, {96*1024}")
            a.label(L1n)
        if k + 3 < 8:
            a(f"ds_read_b128 {vr(XBUF+4*((k+3)%4),4)}, v{vXa} offset:{(k+3)*1024}")
            a("s_waitcnt vmcnt(15) lgkmcnt(3)")
        else:
            a(f"s_waitcnt vmcnt(15) lgkmcnt({7-k})")
        a(f"v_mfma_f32_32x32x16_bf16 {vr(ACC,16)}, {vr(WB+4*j,4)}, {vr(XBUF+4*(k%4),4)}, {vr(ACC,16)}")
        wload(WB + 4*j)
    a(f"s_add_u32 s{sIt}, s{sIt}, 1")
    a(f"s_cmp_lt_u32 s{sIt}, 6")
    a(f"s_cbranch_scc1 {L1}")
    st.mark("ffn2")
    a.nop(12)
    for q in range(4): unpack_add(q, ACC+4*q)
    XBUF = XR
    NBLK = 20
    def blk(s_):
        b = s_ % NBLK
        return (WB + 4*b) if b < 16 else (32 + 4*(b-16))
    for s_ in range(16, 20): wload(blk(s_))
    a("s_barrier")
    a(f"s_branch B2_oload")
    a.label(L_side)
    a(f"s_sub_u32 s{sT3}, s{sW}, 4")
    a("s_waitcnt vmcnt(0)")
    for jj in range(1, 4):
        Ls = a.newlabel("B2_q")
        a(f"s_cmp_lg_u32 s{sT3}, {jj}")
        a(f"s_cbranch_scc1 {Ls}")
        a(f"v_mov_b32 v{XR}, v{XR+2*jj}")
        a(f"v_mov_b32 v{XR+1}, v{XR+2*jj+1}")
        a(f"v_mov_b32 v{XR+8}, v{XR+8+2*jj}")
        a(f"v_mov_b32 v{XR+9}, v{XR+8+2*jj+1}")
        a.label(Ls)
    for j in range(4): a(f"v_mov_b32 v{40+j}, 0")
    unpack_add(0, 40)
    a(f"s_lshl_b32 s{sRst}, s{sT3}, 11")
    a(f"s_lshl_b32 s{sSoffW}, s{sRho}, 13")
    a(f"s_add_u32 s{sSoffW}, s{sSoffW}, s{sRst}")
    a(f"s_add_u32 s{sWrapW}, s{sRst}, {96*1024}")
    SD = 4
    def wpair(slot):
        a(f"s_add_u32 s{sT2}, s{sWb}, s{sSoffW}")
        a(f"s_add_u32 s{sT}, s{sSoffW}, 8192")
        a(f"buffer_load_dwordx4 {vr(WB+8*slot,4)}, v{vX16}, s[{R_WS}:{R_WS+3}], s{sT2} offen sc1")
        a(f"buffer_load_dwordx4 {vr(WB+8*slot+4,4)}, v{vX16}, s[{R_WS}:{R_WS+3}], s{sT2} offen offset:1024 sc1")
        a(f"s_cmp_eq_u32 s{sT}, s{sWrapW}")
        a(f"s_cselect_b32 s{sSoffW}, s{sRst}, s{sT}")
    for c in range(SD): wpair(c)
    a(f"s_cmp_lg_u32 s{sW}, 7")
    a(f"s_cbranch_scc1 B2_nph")
    a(f"s_lshr_b32 s{sT}, s{sRB}, 2")
    a(f"s_lshl_b32 s{sT}, s{sT}, 4")
    poll_flags(a, vT, "B2h", sT, 16, FL_H, sleep=2)
    a.label("B2_nph")
    a("s_barrier")
    a(f"s_sub_u32 s{sT3}, s{sW}, 4")
    a(f"s_mul_i32 s{sT}, s{sRB}, {96*1024}")
    a(f"s_add_u32 s63, s{sT}, {WS_H}")
    a(f"s_lshl_b32 s97, s{sT3}, 11")
    a(f"s_add_u32 s63, s63, s97")
    a(f"s_lshl_b32 s{sSoffX}, s{sRho}, 13")
    a(f"v_add_u32 v{vT+5}, s97, v{vX16}")
    vXs = vT+5
    vm = Cnt(a, "vmcnt", 63)
    def xdma(c):
        a(f"s_add_u32 m0, s97, {(c % NXS)*8192}")
        a(f"s_add_u32 s{sT2}, s63, s{sSoffX}")
        a(f"s_add_u32 s{sT}, s{sSoffX}, 8192")
        for i in range(2):
            a(f"buffer_load_dwordx4 v{vX16}, s[{R_WS}:{R_WS+3}], s{sT2} offen offset:{1024*i} sc1 lds")
        a(f"s_cmp_eq_u32 s{sT}, {96*1024}")
        a(f"s_cselect_b32 s{sSoffX}, 0, s{sT}")
        vm.issue(("X", c), 2)
    for c in range(SD): vm.issue(("W", c), 2)
    XD = 6
    for c in range(XD): xdma(c)
    for c in range(12):
        vm.need(("X", c), ("W", c))
        a("s_barrier")
        if c + XD < 12: xdma(c + XD)
        for i in range(2):
            a(f"ds_read_b128 {vr(48+4*i,4)}, v{vXs} offset:{(c % NXS)*8192 + 1024*i}")
        a("s_waitcnt lgkmcnt(1)")
        a(f"v_mfma_f32_32x32x16_bf16 {vr(ACC,16)}, {vr(WB+8*(c%4),4)}, {vr(48,4)}, {vr(ACC,16)}")
        a("s_waitcnt lgkmcnt(0)")
        a(f"v_mfma_f32_32x32x16_bf16 {vr(ACC,16)}, {vr(WB+8*(c%4)+4,4)}, {vr(52,4)}, {vr(ACC,16)}")
        if c + SD < 12: wpair(c % 4); vm.issue(("W", c + SD), 2)
    a(f"s_sub_u32 s{sT3}, s{sW}, 4")
    a(f"s_lshl_b32 s{sT3}, s{sT3}, 1")
    a(f"s_mul_i32 s62, s{sRho}, 5")
    a(f"s_add_u32 s62, s62, s{sT3}")
    for m in range(5):
        for i in range(2):
            a(f"s_add_u32 s{sT}, s62, {8*m+i}")
            a(f"s_cmp_ge_u32 s{sT}, 40")
            a(f"s_cselect_b32 s{sT2}, 40, 0")
            a(f"s_sub_u32 s{sT}, s{sT}, s{sT2}")
            a(f"s_add_u32 s{sT}, s{sT}, 96")
            a(f"s_lshl_b32 s{sT}, s{sT}, 10")
            a(f"s_add_u32 s{sT}, s{sT}, s{sWb}")
            a(f"buffer_load_dwordx4 {vr(WB+4*(2*m+i),4)}, v{vX16}, s[{R_WS}:{R_WS+3}], s{sT} offen sc1")
    Lnp2 = "B2_np2"
    a(f"s_cmp_lg_u32 s{sW}, 7")
    a(f"s_cbranch_scc1 {Lnp2}")
    a(f"s_lshl_b32 s{sT}, s{sRB}, 5")
    poll_flags(a, vT, "B2o", sT, 32, FL_O, sleep=OPT.get("osleep", 2))
    a.label(Lnp2)
    st.mark("wait_o")
    a("s_barrier")
    a.label("B2_oload")
    a(f"s_mul_i32 s63, s{sRB}, {40*1024}")
    a(f"s_add_u32 s63, s63, {WS_OF}")
    a(f"s_mul_i32 s62, s{sRho}, 5")
    for i in range(5):
        a(f"s_mul_i32 s{sT}, s{sW}, 5")
        a(f"s_add_u32 s{sT}, s{sT}, {i}")
        a(f"s_add_u32 s{sT2}, s{sT}, s62")
        a(f"s_cmp_ge_u32 s{sT2}, 40")
        a(f"s_cselect_b32 s{sIt}, 40, 0")
        a(f"s_sub_u32 s{sT2}, s{sT2}, s{sIt}")
        a(f"s_lshl_b32 s{sT2}, s{sT2}, 10")
        a(f"s_add_u32 s{sT2}, s{sT2}, s63")
        a(f"s_lshl_b32 m0, s{sT}, 10")
        a("s_nop 0")
        a(f"buffer_load_dwordx4 v{vX16}, s[{R_WS}:{R_WS+3}], s{sT2} offen sc1 lds")
    a("s_waitcnt vmcnt(0)")
    a("s_barrier")
    st.mark("oload")
    a(f"s_cmp_ge_u32 s{sW}, 4")
    a(f"s_cbranch_scc1 B2_side2")
    vm = Cnt(a, "vmcnt", 63); lg = Cnt(a, "lgkmcnt", 15)
    def xread(s_):
        r = XBUF + 4*(s_ % 4)
        a(f"ds_read_b128 {vr(r,4)}, v{vX16} offset:{s_*1024}")
        lg.issue(("X", s_))
    for s_ in range(3): xread(s_)
    for s_ in range(40):
        if s_ + 3 < 40: xread(s_ + 3)
        vm.need(("W", s_))
        lg.need(("X", s_))
        a(f"v_mfma_f32_32x32x16_bf16 {vr(ACC,16)}, {vr(blk(s_),4)}, {vr(XBUF+4*(s_%4),4)}, {vr(ACC,16)}")
        if s_ + NBLK < 40:
            wload(blk(s_)); vm.issue(("W", s_ + NBLK))
    st.mark("wo")
    a("s_setprio 3")
    a("s_barrier")
    a.nop(10)
    srd(a, R_C, S_OUT, S_OUT+1, NX)
    for q in range(4):
        a(f"v_cvt_pk_bf16_f32 v{32+2*q}, v{ACC+4*q}, v{ACC+4*q+1}")
        a(f"v_cvt_pk_bf16_f32 v{33+2*q}, v{ACC+4*q+2}, v{ACC+4*q+3}")
        a(f"buffer_store_dwordx2 v[{32+2*q}:{33+2*q}], v{vOut}, s[{R_C}:{R_C+3}], 0 offen offset:{16*q}")
    a("s_barrier")
    st.end()
    a("s_endpgm")
    a.label("B2_side2")
    for k in range(4):
        a(f"ds_read_b128 {vr(48+4*k,4)}, v{vXs} offset:{(8*(k//2)+(k%2))*1024}")
    for k in range(10):
        a(f"s_waitcnt lgkmcnt({min(3, 9-k)})")
        a(f"v_mfma_f32_32x32x16_bf16 {vr(ACC,16)}, {vr(WB+4*k,4)}, {vr(48+4*(k%4),4)}, {vr(ACC,16)}")
        if k + 4 < 10:
            a(f"ds_read_b128 {vr(48+4*(k%4),4)}, v{vXs} offset:{(8*((k+4)//2)+((k+4)%2))*1024}")
    a("s_setprio 3")
    a("s_barrier")
    a.nop(12)
    a(f"s_sub_u32 s{sT3}, s{sW}, 4")
    a(f"s_lshl_b32 s{sT}, s{sT3}, 12")
    a(f"v_add_u32 v{vT}, s{sT}, v{vX16}")
    for q in range(4):
        a(f"ds_write_b128 v{vT}, {vr(ACC+4*q,4)} offset:{q*1024}")
    a("s_waitcnt lgkmcnt(0)")
    a("s_barrier")
    a(f"s_lshl_b32 s{sT}, s{sT3}, 10")
    a(f"v_add_u32 v{vT}, s{sT}, v{vX16}")
    for jj in range(4):
        a(f"ds_read_b128 {vr(ACC+4*jj,4)}, v{vT} offset:{jj*4096}")
    a(f"s_lshl_b32 s{sT}, s{sT3}, 4")
    a(f"v_add_u32 v{vOut}, s{sT}, v{vOut}")
    srd(a, R_C, S_OUT, S_OUT+1, NX)
    a("s_waitcnt lgkmcnt(0)")
    for j in range(4):
        a(f"v_add_f32 v{ACC+j}, v{ACC+j}, v{ACC+4+j}")
        a(f"v_add_f32 v{ACC+8+j}, v{ACC+8+j}, v{ACC+12+j}")
    for j in range(4): a(f"v_add_f32 v{ACC+j}, v{ACC+j}, v{40+j}")
    for j in range(4): a(f"v_add_f32 v{ACC+j}, v{ACC+j}, v{ACC+8+j}")
    a(f"v_cvt_pk_bf16_f32 v32, v{ACC}, v{ACC+1}")
    a(f"v_cvt_pk_bf16_f32 v33, v{ACC+2}, v{ACC+3}")
    a(f"buffer_store_dwordx2 v[32:33], v{vOut}, s[{R_WS if False else R_C}:{R_C+3}], 0 offen")
    st.end()
    a("s_endpgm")

HEADER = """; out = x + MQA-attention(LN(x)) @ wo + FFN_relu2(LN(x))  -- one launch, two workgroup roles (8 waves each, 2 workgroups per CU).
"""

def gen():
    a = Asm()
    a("s_cmp_ge_u32 s2, 512")
    a("s_cbranch_scc1 K_end")
    a("s_load_dwordx16 s[4:19], s[0:1], 0")
    a("s_load_dwordx8 s[20:27], s[0:1], 64")
    a("s_load_dwordx2 s[28:29], s[0:1], 96")
    a(f"v_and_b32 v{vLane}, 63, v0")
    a(f"v_lshrrev_b32 v4, 6, v0")
    a(f"v_lshrrev_b32 v{vH}, 5, v{vLane}")
    a(f"v_readfirstlane_b32 s{sW}, v4")
    a(f"v_and_b32 v{vN}, 31, v{vLane}")
    a("s_cmp_ge_u32 s2, 256")
    a("s_cbranch_scc1 ROLE_B")
    role_A(a)
    a.label("ROLE_B")
    a("s_waitcnt lgkmcnt(0)")
    common_init(a)
    a("v_mov_b32 v4, 0"); a("v_mov_b32 v5, 0")
    n0 = len(a.lines)
    st = role_B1(a)
    role_B2(a, st)
    if OPT.get("mprio"):
        out = a.lines[:n0]; L = a.lines[n0:]; i = 0; cur = 0
        while i < len(L):
            if "s_setprio" in L[i]: cur = int(L[i].split()[-1])
            if "v_mfma" in L[i] and cur == 0:
                j = i
                while j < len(L) and "v_mfma" in L[j]: j += 1
                out.append(f"  s_setprio {OPT['mprio']}"); out += L[i:j]; out.append("  s_setprio 0"); i = j
            else:
                out.append(L[i]); i += 1
        a.lines = out
    a.label("K_end")
    a("s_endpgm")
    grid = OPT.get("grid", 512)
    s = f"; @launch grid=({grid},1,1) block=(512,1,1) lds={LDS_BYTES}\n" + HEADER
    s += '.amdgcn_target "amdgcn-amd-amdhsa--gfx950"\n.text\n'
    s += kernel_header(KN) + a.text()
    s += '.section .rodata,"a"\n.p2align 6\n' + kernel_desc(KN, 128, 102)
    return s

if __name__ == "__main__":
    if "--prof" in sys.argv: PROF = True
    for x in sys.argv:
        if x.startswith("-D"):
            k, _, v = x[2:].partition("="); OPT[k] = int(v) if v else 1
    open(sys.argv[1], "w").write(gen())
    if PROF: json.dump(STAMP_NAMES, open("stamps9.json", "w"))
```
